```python
import torch

def _softmax(x, axis=-1):
    return torch.softmax(x, dim=axis)
def _gelu(x):
    return torch.nn.functional.gelu(x, approximate="tanh")
def _silu(x):
    return torch.nn.functional.silu(x)
def _sigmoid(x):
    return torch.sigmoid(x)
def _layernorm(x, axis=-1, eps=1e-5):
    m = x.mean(dim=axis, keepdim=True)
    v = x.var(dim=axis, keepdim=True, unbiased=False)
    return (x - m) / torch.sqrt(v + eps)
def _scatter_add(tgt, idx, src, axis=0):
    return tgt.clone().index_add_(axis, idx, src)
def _segment_sum(src, seg, n):
    out = torch.zeros((n,) + src.shape[1:], dtype=src.dtype)
    return out.index_add_(0, seg, src)
def _pad(x, pw):
    flat = tuple(v for pair in reversed(pw) for v in pair)
    return torch.nn.functional.pad(x, flat)

kernel_name = 'gated_mix__softmax_full_mha__glu_gated_geglu__prompt'

def setup_inputs():

    _w = (lambda a: (lambda t: t.to(torch.bfloat16) if t.is_floating_point() else t)(torch.as_tensor(a)))
    def _A_setup():
        B, S, D = 1, 2048, 512
        return {
            "x": _w((lambda *s: torch.randn(*s, dtype=torch.bfloat16) * 0.05)(B, S, D)),
            "wqkv": _w((lambda *s: torch.randn(*s, dtype=torch.bfloat16) * 0.8)(D, 3 * D)),
            "wo": _w((lambda *s: torch.randn(*s, dtype=torch.bfloat16) * 0.05)(D, D)),
        }
    _A_in = _A_setup()

    def _B_setup():
        B, S, Dm, Df = 1, 2048, 512, 1376
        return {
            "x": _w((lambda *s: torch.randn(*s, dtype=torch.bfloat16) * 0.05)(B, S, Dm)),
            "w_gate": _w((lambda *s: torch.randn(*s, dtype=torch.bfloat16) * 3.2)(Dm, Df) * (Dm ** -0.5)),
            "w_up": _w((lambda *s: torch.randn(*s, dtype=torch.bfloat16) * 3.2)(Dm, Df) * (Dm ** -0.5)),
            "w_down": _w((lambda *s: torch.randn(*s, dtype=torch.bfloat16) * 3.2)(Df, Dm) * (Df ** -0.5)),
        }
    _B_in = _B_setup()

    return {
        "A_x": _A_in["x"],
        "A_wqkv": _A_in["wqkv"],
        "A_wo": _A_in["wo"],
        "B_x": _B_in["x"],
        "B_w_gate": _B_in["w_gate"],
        "B_w_up": _B_in["w_up"],
        "B_w_down": _B_in["w_down"],
        "gate_w": _w((lambda *s: torch.randn(*s, dtype=torch.bfloat16) * 0.05)(512) * 16.0),
    }

def reference(A_x, A_wqkv, A_wo, B_x, B_w_gate, B_w_up, B_w_down, gate_w):
    def _A_ref(x, wqkv, wo):
        B, S, D = x.shape
        H = 32; Dh = D // H
        qkv = (lambda x, *d: x.permute(*d))((x @ wqkv).reshape(B, S, 3, H, Dh), 2, 0, 3, 1, 4)
        q, k, v = qkv[0], qkv[1], qkv[2]
        scale = Dh ** -0.5
        scores = torch.einsum("bhqd,bhkd->bhqk", q, k) * scale
        p = _softmax(scores, axis=-1)
        o = torch.einsum("bhqk,bhkd->bhqd", p, v)
        return (lambda x, *d: x.permute(*d))(o, 0, 2, 1, 3).reshape(B, S, D) @ wo

    def _B_ref(x, w_gate, w_up, w_down):
        g = torch.einsum("bsd,df->bsf", x, w_gate)
        u = torch.einsum("bsd,df->bsf", x, w_up)
        h = _gelu(g) * u
        return torch.einsum("bsf,fd->bsd", h, w_down)

    x = A_x
    g = _sigmoid((x * gate_w).sum(-1, keepdims=True))
    a = _A_ref(x, A_wqkv, A_wo)
    b = _B_ref(x, B_w_gate, B_w_up, B_w_down)
    return g * a + (1 - g) * b
```

```python
import re


def vr(a, n=1):
    return f"v{a}" if n == 1 else f"v[{a}:{a + n - 1}]"


def sr(a, n=1):
    return f"s{a}" if n == 1 else f"s[{a}:{a + n - 1}]"


class Counter:
    def __init__(self, asm, name, limit):
        self.asm, self.name, self.limit = asm, name, limit
        self.q = []

    def issue(self, tag):
        self.q.append(tag)

    def need(self, *tags):
        idx = [i for i, t in enumerate(self.q) if t in tags]
        if not idx:
            return None
        n = len(self.q) - 1 - max(idx)
        self.q = self.q[max(idx) + 1:]
        return min(n, self.limit)

    def wait(self, *tags):
        n = self.need(*tags)
        if n is not None:
            self.asm(f"s_waitcnt {self.name}({n})")

    def drain(self):
        self.q = []
        self.asm(f"s_waitcnt {self.name}(0)")

    def reset(self):
        self.q = []


class Asm:
    def __init__(self):
        self.lines = []
        self.vm = Counter(self, "vmcnt", 63)
        self.lg = Counter(self, "lgkmcnt", 15)

    def __call__(self, s):
        for l in s.split("\n"):
            l = l.strip()
            if l:
                self.lines.append("    " + l)

    def label(self, name):
        self.lines.append(name + ":")

    def comment(self, s):
        self.lines.append("    ; " + s)

    def raw(self, s):
        self.lines.append(s)

    def text(self):
        return "\n".join(self.lines) + "\n"


_REG = re.compile(r"\b([vsa])(?:(\d+)\b|\[(\d+):(\d+)\])")
TRANS = ("v_exp_", "v_log_", "v_rcp_", "v_rsq_", "v_sqrt_", "v_sin_", "v_cos_")


def _regs(op):
    out = set()
    for m in _REG.finditer(op):
        k = m.group(1)
        lo = int(m.group(2) if m.group(2) is not None else m.group(3))
        hi = int(m.group(2) if m.group(2) is not None else m.group(4))
        out |= {(k, i) for i in range(lo, hi + 1)}
    if re.search(r"\bvcc\b", op):
        out |= {("s", 106), ("s", 107)}
    if re.search(r"\bm0\b", op):
        out |= {("s", 124)}
    if re.search(r"\bexec\b", op):
        out |= {("s", 126), ("s", 127)}
    return out


class Ins:
    def __init__(self, text, lineno):
        self.text, self.lineno = text, lineno
        body = text.split(";")[0].strip()
        p = body.split(None, 1)
        self.mn = p[0]
        ops = [o.strip() for o in p[1].split(",")] if len(p) > 1 else []
        self.ops = ops
        mn = self.mn
        self.mfma = mn.startswith(("v_mfma", "v_smfmac"))
        self.valu = mn.startswith("v_") and not self.mfma
        self.trans = mn.startswith(TRANS)
        self.dot = mn.startswith("v_dot")
        self.vmem = mn.startswith(("buffer_", "global_"))
        self.ds = mn.startswith("ds_")
        self.salu = mn.startswith("s_")
        self.lds_dma = self.vmem and re.search(r"\blds\b", body) is not None
        self.w, self.r = set(), set()
        self.srcc, self.srcab = set(), set()
        self.store_data = set()
        R = [_regs(o) for o in ops]
        if self.mfma:
            self.w = R[0]
            self.srcab = R[1] | R[2]
            if mn.startswith("v_smfmac"):
                self.srcc = R[0]
                self.srcab |= R[3]
            else:
                self.srcc = R[3]
            self.r = self.srcab | self.srcc
            self.passes = 4 if "16x16" in mn else 8
        elif self.valu:
            if mn.startswith("v_permlane"):
                self.w = R[0] | R[1]
                self.r = R[0] | R[1]
            else:
                self.w = R[0]
                rest = R[1:]
                if mn.startswith(("v_add_co", "v_sub_co", "v_addc_co")):
                    self.w |= R[1]
                    rest = R[2:]
                for x in rest:
                    self.r |= x
                if mn.startswith(("v_fmac", "v_dot2c", "v_writelane")) or "UNUSED_PRESERVE" in body:
                    self.r |= R[0]
        elif self.vmem:
            if self.lds_dma:
                for x in R:
                    self.r |= x
                self.r |= {("s", 124)}
            elif "_load" in mn:
                self.w = R[0]
                for x in R[1:]:
                    self.r |= x
            else:
                for x in R:
                    self.r |= x
                d = R[0] if mn.startswith("buffer_") else R[1]
                if mn.endswith(("x3", "x4")):
                    self.store_data = d
        elif self.ds:
            if mn.startswith(("ds_read", "ds_bpermute", "ds_swizzle")):
                self.w = R[0]
                for x in R[1:]:
                    self.r |= x
            else:
                for x in R:
                    self.r |= x
        elif self.salu:
            if mn.startswith(("s_cmp", "s_waitcnt", "s_nop", "s_barrier", "s_cbranch", "s_branch", "s_setprio", "s_sleep", "s_endpgm")):
                for x in R:
                    self.r |= x
            else:
                if R:
                    self.w = R[0]
                for x in R[1:]:
                    self.r |= x
                if "saveexec" in mn:
                    self.w |= {("s", 126), ("s", 127)}
        self.states = int(ops[0]) + 1 if mn == "s_nop" else 1


def _need(p, c):
    n = 0
    V = lambda s: {x for x in s if x[0] in "va"}
    S = lambda s: {x for x in s if x[0] == "s"}
    if p.mfma:
        big = p.passes == 8
        if c.mfma:
            if p.w & c.srcab:
                n = max(n, 12 if big else 8)
            if p.w & c.srcc and not (p.w == c.srcc and p.passes == c.passes):
                n = max(n, 10 if big else 6)
            if p.w & c.w and not (p.w == c.w):
                n = max(n, 10 if big else 6)
        elif (c.valu and p.w & (c.r | c.w)) or ((c.vmem or c.ds) and p.w & (c.r | c.w)):
            n = max(n, 12 if big else 8)
        if c.valu and p.srcc & c.w:
            n = max(n, 7 if big else 3)
    if p.valu:
        if c.mfma and V(p.w) & c.r:
            n = max(n, 3 if p.dot else 2)
        if p.trans and c.valu and not c.trans and p.w & c.r:
            n = max(n, 1)
        if p.trans and (c.vmem or c.ds) and p.w & c.r:
            n = max(n, 1)
        if p.dot and (c.valu or c.vmem or c.ds) and p.w & (c.r | c.w) and c.mn != p.mn:
            n = max(n, 3)
        if c.vmem and S(p.w) & c.r:
            n = max(n, 5)
        if c.valu and S(p.w) & c.r:
            n = max(n, 4 if c.mn.startswith(("v_readlane", "v_writelane")) else 2)
        if c.mn.startswith(("v_readfirstlane", "v_readlane")) and V(p.w) & c.r:
            n = max(n, 1)
        if c.mn.startswith("v_permlane") and V(p.w) & c.r:
            n = max(n, 2)
        if c.valu and "dpp" in c.text and V(p.w) & c.r:
            n = max(n, 2)
        if ("sdwa" in p.mn or "op_sel" in p.text) and not p.mn.startswith("v_pk") and c.valu and p.w & (c.r | c.w):
            n = max(n, 1)
    if p.store_data and p.store_data & c.w:
        n = max(n, 2)
    if p.salu and ("s", 124) in p.w and c.lds_dma:
        n = max(n, 1)
    return n


def lint(text, window=24):
    ins, labels = [], {}
    for no, l in enumerate(text.split("\n"), 1):
        s = l.split(";")[0].strip()
        if not s or s.startswith("."):
            continue
        if s.endswith(":"):
            labels[s[:-1]] = len(ins)
            continue
        ins.append(Ins(s, no))
    msgs = set()

    def succ(i):
        c = ins[i]
        out = []
        if c.mn == "s_endpgm":
            return out
        if c.mn.startswith(("s_cbranch", "s_branch")) and c.ops[0] in labels:
            out.append(labels[c.ops[0]])
        if c.mn != "s_branch" and i + 1 < len(ins):
            out.append(i + 1)
        return out

    for i, p in enumerate(ins):
        if not (p.mfma or p.valu or p.store_data or (p.salu and ("s", 124) in p.w)):
            continue
        stack = [(j, 0) for j in succ(i)]
        seen = {}
        while stack:
            j, d = stack.pop()
            if j >= len(ins) or d >= 12 or seen.get(j, 99) <= d:
                continue
            seen[j] = d
            c = ins[j]
            n = _need(p, c)
            if n > d:
                msgs.add(f"line {p.lineno} [{p.text}] -> line {c.lineno} [{c.text}]: need {n}, have {d}")
            for k in succ(j):
                stack.append((k, d + c.states))
    return sorted(msgs, key=lambda m: int(m.split()[1]))
```

```python
import struct
import sys

from asmlib import Asm, lint, sr, vr

NAME = "gated_mix__softmax_full_mha__glu_gated_geglu__prompt"


def f32(x):
    return "0x%08x" % struct.unpack("<I", struct.pack("<f", x))[0]


LOG2E = 1.4426950408889634

WS_KV, WS_O, WS_H, WS_FLAG, WS_STAMP = 0x000000, 0x400000, 0x600000, 0xC00000, 0xD00000
FKV, FH, FO = WS_FLAG, WS_FLAG + 0x1000, WS_FLAG + 0x2000
OOB = 0x20000000

SLOT_PHYS = {2: 0, 3: 24576, 4: 49152, 0: 73728, 1: 98304}
QW, QF = 122880, 155648
GWL = QF
PART_L, PART_M, GL = 0, 98304, 135168
RING = [36864, 53248, 69632, 136192]
XCH = 0
LDS_BYTES = 163840

sX, sWQ, sWO, sWG, sWU, sWD, sGW, sOUT, sDBG, sWS = 4, 8, 12, 16, 20, 24, 28, 32, 36, 40
sC, sR, sW, sT, sROT, sRB, sCB = 44, 45, 46, 47, 48, 49, 50
sVM = 52
sT0 = 54
sSPIN = 70
sSTAMP = 72


def slot(n):
    return SLOT_PHYS[n % 5]


class Gen:
    def __init__(self, cfg):
        self.cfg = cfg
        self.a = Asm()
        self.uid = 0

    def lab(self, base):
        self.uid += 1
        return f"L_{base}_{self.uid}"

    def stamp(self, n):
        if self.cfg.get("stamps"):
            a = self.a
            a(f"s_memrealtime {sr(sSTAMP + 2 * n, 2)}")
            a.lg.drain()

    def dump_stamps(self):
        if not self.cfg.get("stamps"):
            return
        a = self.a
        a(f"""s_lshl_b32 s{sT0}, s2, 3
            s_add_u32 s{sT0}, s{sT0}, s{sW}
            s_lshl_b32 s{sT0}, s{sT0}, 6
            s_add_u32 s{sT0}, s{sT0}, {WS_STAMP}
            s_mov_b64 exec, 1""")
        for n in range(14):
            a(f"v_mov_b32 v0, s{sSTAMP + 2 * n}")
            a(f"buffer_store_dword v0, off, {sr(sWS, 4)}, s{sT0} offset:{4 * n}")
        a("s_mov_b64 exec, -1")

    def lane(self, v):
        self.a(f"""v_mbcnt_lo_u32_b32 v{v}, -1, 0
            v_mbcnt_hi_u32_b32 v{v}, -1, v{v}""")

    def dsr(self, op, dst, n, lo, hi, imm, tag):
        reg = lo
        if imm >= 65536:
            reg, imm = hi, imm - 65536
        assert 0 <= imm < 65536 and reg is not None
        self.a(f"{op} {vr(dst, n)}, v{reg} offset:{imm}")
        self.a.lg.issue(tag)

    def poll(self, voff, soff, tmp, srd=sWS):
        a = self.a
        top, done = self.lab("poll"), self.lab("pdone")
        a(f"s_mov_b32 s{sSPIN}, 100000")
        a.label(top)
        a(f"""buffer_load_dword v{tmp}, v{voff}, {sr(srd, 4)}, {soff} offen sc1
            s_waitcnt vmcnt(0)
            v_cmp_eq_u32 vcc, 0, v{tmp}
            s_cbranch_vccz {done}
            s_sleep 1
            s_sub_u32 s{sSPIN}, s{sSPIN}, 1
            s_cmp_lg_u32 s{sSPIN}, 0
            s_cbranch_scc1 {top}""")
        a.label(done)
        a.vm.reset()

    def set_flag(self, soff, tmp, srd=sWS):
        a = self.a
        a(f"""s_mov_b64 exec, 1
            v_mov_b32 v{tmp}, 1
            buffer_store_dword v{tmp}, off, {sr(srd, 4)}, {soff} sc1
            s_mov_b64 exec, -1""")
        a.vm.issue("flag")

    def prologue(self):
        a = self.a
        a("s_cmp_ge_u32 s2, 256\ns_cbranch_scc1 L_end")
        if self.cfg.get("stamps"):
            for n in range(14):
                a(f"s_mov_b32 s{sSTAMP + 2 * n}, 0")
            a(f"s_memrealtime {sr(sSTAMP, 2)}")
        for reg, off in ((sX, 0), (sWQ, 8), (sGW, 56), (sWS, 80), (sDBG, 72), (sWG, 32), (sWU, 40), (sWD, 48), (sWO, 16), (sOUT, 64)):
            a(f"s_load_dwordx2 {sr(reg, 2)}, s[0:1], {off}")
        a(f"""v_lshrrev_b32 v1, 6, v0
            s_and_b32 s{sT0}, s2, 7
            v_readfirstlane_b32 s{sW}, v1
            s_lshr_b32 s{sT0 + 1}, s2, 3
            s_and_b32 s{sR}, s{sT0}, 1
            s_lshl_b32 s{sR}, s{sR}, 3
            s_and_b32 s{sT0 + 2}, s{sT0 + 1}, 7
            s_add_u32 s{sR}, s{sR}, s{sT0 + 2}
            s_lshr_b32 s{sC}, s{sT0}, 1
            s_lshl_b32 s{sC}, s{sC}, 2
            s_lshr_b32 s{sT0 + 2}, s{sT0 + 1}, 3
            s_add_u32 s{sC}, s{sC}, s{sT0 + 2}
            s_add_u32 s{sROT}, s{sC}, s{sR}
            s_and_b32 s{sROT}, s{sROT}, {7 if self.cfg.get('rot', 1) else 0}
            s_lshl_b32 s{sRB}, s{sT0}, 2
            s_and_b32 s{sT0 + 2}, s{sT0 + 1}, 3
            s_add_u32 s{sRB}, s{sRB}, s{sT0 + 2}
            s_lshr_b32 s{sCB}, s{sT0 + 1}, 2
            s_and_b32 s{sT}, s{sW}, 3
            s_mov_b32 s{sVM}, 0x0000ffff
            s_mov_b32 s{sVM + 1}, 0x0000ffff""")
        for reg, size in ((sX, 2097152), (sWQ, 1572864), (sWO, 524288), (sWG, 1409024), (sWU, 1409024), (sWD, 1409024),
                          (sGW, 1024), (sOUT, 2097152), (sDBG, 256), (sWS, 268435456)):
            a(f"s_mov_b32 s{reg + 2}, {size}\ns_mov_b32 s{reg + 3}, 0x00020000")
        a(f"""v_and_b32 v0, 63, v0
            s_cmp_ge_u32 s{sW}, 4
            s_cbranch_scc0 L_mwave""")

    def loader(self):
        a = self.a
        a.vm.reset()
        vX0, vX1, vKV, vQ, vF, vGW = 8, 9, 10, 11, 12, 15
        sXB, sKB, sQB, sFB, sLx, sLk, sLq, sLf, sCh, sO = range(sT0, sT0 + 10)
        a(f"""v_lshrrev_b32 v1, 3, v0
            v_and_b32 v2, 7, v0
            v_lshrrev_b32 v3, 4, v0
            s_lshl_b32 s{sO}, s{sT}, 5
            v_add_u32 v4, s{sO}, v1
            v_xor_b32 v5, v2, v3
            v_lshlrev_b32 v5, 4, v5
            v_lshl_add_u32 v{vX0}, v4, 10, v5
            v_xor_b32 v{vX1}, 64, v{vX0}
            v_add_u32 v{vX1}, 8192, v{vX1}
            s_lshl_b32 s{sO}, s{sT}, 4
            v_add_u32 v4, s{sO}, v1
            v_mul_u32_u24 v4, 3072, v4
            v_and_b32 v5, 1, v3
            v_lshlrev_b32 v5, 2, v5
            v_xor_b32 v5, v2, v5
            v_lshl_add_u32 v{vKV}, v5, 4, v4
            s_lshl_b32 s{sCh}, s{sROT}, 7
            v_lshl_add_u32 v{vGW}, v0, 4, s{sCh}
            v_and_b32 v{vGW}, 0x3ff, v{vGW}
            s_lshl_b32 s{sXB}, s{sR}, 17
            s_and_b32 s{sKB}, s{sC}, 1
            s_add_u32 s{sKB}, s{sKB}, 1
            s_lshl_b32 s{sKB}, s{sKB}, 10
            s_lshr_b32 s{sCh}, s{sC}, 1
            s_lshl_b32 s{sCh}, s{sCh}, 7
            s_add_u32 s{sKB}, s{sKB}, s{sCh}
            s_lshl_b32 s{sLx}, s{sT}, 12
            s_lshl_b32 s{sLk}, s{sT}, 11
            s_mov_b32 m0, {GWL}
            s_waitcnt lgkmcnt(0)
            buffer_load_dwordx4 v{vGW}, {sr(sGW, 4)}, 0 offen lds""")
        a.vm.issue("gw")

        def chunk(i):
            a(f"s_add_u32 s{sCh}, s{sROT}, {i}\ns_and_b32 s{sCh}, s{sCh}, 7")

        def issueA(i):
            B = slot(i)
            chunk(i)
            a(f"s_lshl_b32 s{sO}, s{sCh}, 7\ns_add_u32 s{sO}, s{sO}, s{sXB}")
            for k in range(4):
                a(f"s_add_u32 m0, s{sLx}, {B + 1024 * k}")
                a(f"s_add_u32 s{sO}, s{sO}, 16384" if k == 2 else "s_nop 0")
                a(f"buffer_load_dwordx4 v{vX0 if k % 2 == 0 else vX1}, {sr(sX, 4)}, s{sO} offen lds")
                a.vm.issue(("A", i))
            a(f"s_mul_i32 s{sO}, s{sCh}, 196608")
            for k in range(2):
                a(f"s_add_u32 m0, s{sLk}, {B + 16384 + 1024 * k}")
                a(f"s_add_u32 s{sO}, s{sO}, {'s%d' % sKB if k == 0 else 24576}")
                a(f"buffer_load_dwordx4 v{vKV}, {sr(sWQ, 4)}, s{sO} offen lds")
                a.vm.issue(("A", i))

        def issueQ():
            for i in range(8):
                chunk(i)
                a(f"""s_mul_i32 s{sO}, s{sCh}, 196608
                    s_add_u32 m0, s{sLq}, {QW + 4096 * i}
                    s_add_u32 s{sO}, s{sO}, s{sQB}
                    buffer_load_dwordx4 v{vQ}, {sr(sWQ, 4)}, s{sO} offen lds""")
                a.vm.issue("Q")

        def issueF(i):
            B = slot(8 + i)
            chunk(i)
            a(f"s_mul_i32 s{sO}, s{sCh}, 176128\ns_add_u32 s{sO}, s{sO}, s{sFB}")
            for m in range(2):
                for k in range(3):
                    a(f"s_add_u32 m0, s{sLf}, {B + 12288 * m + 1024 * k}\ns_nop 0")
                    a(f"buffer_load_dwordx4 v{vF + k}, {sr(sWG if m == 0 else sWU, 4)}, s{sO} offen lds")
                    a.vm.issue(("F", i))

        for i in range(5):
            issueA(i)
        a(f"""v_lshrrev_b32 v4, 2, v0
            s_lshl_b32 s{sO}, s{sT}, 4
            v_add_u32 v4, s{sO}, v4
            v_mul_u32_u24 v4, 3072, v4
            v_and_b32 v5, 3, v0
            v_lshl_add_u32 v{vQ}, v5, 4, v4
            s_lshl_b32 s{sQB}, s{sC}, 6
            s_mul_i32 s{sFB}, s{sC}, 192
            s_lshl_b32 s{sLq}, s{sT}, 10
            s_mul_i32 s{sLf}, s{sT}, 3072""")
        for k in range(3):
            a(f"""v_add_u32 v4, {64 * k}, v0
                v_mul_u32_u24 v5, 2731, v4
                v_lshrrev_b32 v5, 15, v5
                v_mul_u32_u24 v6, 12, v5
                v_sub_u32 v6, v4, v6
                v_add_u32 v5, s{sO}, v5
                v_mul_u32_u24 v5, 2752, v5
                v_lshl_add_u32 v{vF + k}, v6, 4, v5""")

        def bar(*tags):
            a.vm.wait(*tags)
            a("s_barrier")

        bar(("A", 0))
        for i in range(1, 8):
            bar(("A", i))
            if i <= 3:
                issueA(i + 4)
                if i == 3:
                    issueQ()
            else:
                issueF(i - 4)
        bar("Q")
        issueF(4)
        bar(("F", 0))
        for i in range(1, 4):
            bar(("F", i))
            issueF(i + 4)
        bar(("F", 7))

    XR, ACC, WS_ = 128, 32, 8
    vFlo, vFhi, vG, vA = 0, 1, 2, 3

    def m_setup(self):
        a = self.a
        self.vXA, self.vXAh, self.vWk, self.vWkh, self.vGWa, self.vQa = 80, 84, 88, 90, 92, 4
        self.vST, self.vZ, self.vGB, self.vGo, self.vQFa = 93, 96, 100, 94, 5
        a(f"""s_setprio {self.cfg.get('prio_m1', 2)}
            v_and_b32 v16, 31, v0
            v_lshrrev_b32 v17, 5, v0
            v_bfe_u32 v18, v0, 1, 3
            v_xor_b32 v18, v18, v17
            s_lshl_b32 s{sT0}, s{sT}, 12
            v_lshlrev_b32 v19, 7, v16
            v_lshl_add_u32 v19, v18, 4, v19
            v_add_u32 v{self.vXA}, s{sT0}, v19""")
        for s in range(1, 4):
            a(f"v_xor_b32 v{self.vXA + s}, {32 * s}, v{self.vXA}")
        for s in range(4):
            a(f"v_add_u32 v{self.vXAh + s}, 0x10000, v{self.vXA + s}")
        a(f"""v_bfe_u32 v18, v0, 2, 2
            v_lshl_add_u32 v18, v17, 3, v18
            v_bfe_u32 v19, v0, 4, 1
            v_and_b32 v20, 3, v0
            v_lshlrev_b32 v20, 3, v20
            v_lshl_add_u32 v20, v19, 5, v20
            v_bfe_u32 v21, v0, 3, 1
            v_lshl_add_u32 v22, v18, 7, v20
            v_lshl_add_u32 v{self.vWk}, v21, 6, v22
            v_xor_b32 v{self.vWk + 1}, 64, v{self.vWk}
            v_add_u32 v{self.vWkh}, 0x10000, v{self.vWk}
            v_add_u32 v{self.vWkh + 1}, 0x10000, v{self.vWk + 1}
            v_lshl_add_u32 v{self.vQa}, v18, 6, v20
            v_add_u32 v{self.vQa}, {QW}, v{self.vQa}
            v_lshlrev_b32 v{self.vGWa}, 4, v17
            v_add_u32 v{self.vGWa}, {GWL}, v{self.vGWa}
            s_lshl_b32 s{sT0}, s{sT}, 10
            s_add_u32 s{sT0}, s{sT0}, {QF}
            v_lshl_add_u32 v{self.vQFa}, v0, 4, s{sT0}
            v_mul_u32_u24 v22, 192, v18""")
        for i in range(4):
            a(f"v_mov_b32 v{self.vZ + i}, 0")
        a(f"""v_and_b32 v23, 0x33, v0
            v_bfe_u32 v25, v0, 2, 1
            v_lshl_add_u32 v23, v25, 3, v23
            v_lshl_add_u32 v23, v21, 2, v23
            v_lshlrev_b32 v23, 4, v23
            v_and_b32 v24, 15, v0
            v_lshlrev_b32 v24, 4, v24
            v_lshl_add_u32 v24, v17, 8, v24
            v_lshl_add_u32 v24, v19, 17, v24
            v_add_u32 v24, 1024, v24
            v_lshlrev_b32 v26, 4, v0
            v_add_u32 v{self.vFlo}, v22, v20
            v_add_u32 v{self.vFhi}, 0x10000, v{self.vFlo}
            s_waitcnt lgkmcnt(0)""")
        skip = self.lab("noreset")
        a(f"""s_or_b32 s{sT0}, s2, s{sW}
            s_cmp_lg_u32 s{sT0}, 0
            s_cbranch_scc1 {skip}""")
        for i in range(16):
            a(f"s_mov_b32 s{sT0}, {WS_FLAG + 1024 * i}")
            a(f"buffer_store_dwordx4 {vr(self.vZ, 4)}, v26, {sr(sWS, 4)}, s{sT0} offen sc1")
        a.label(skip)

    def pass_a(self, isv):
        a = self.a
        a.lg.reset()
        a.vm.reset()
        a(f"v_mov_b32 v{self.vST}, v{24 if isv else 23}")
        XR, ACC, W = self.XR, self.ACC, self.WS_

        def reads(g):
            i, s = divmod(g, 4)
            B = slot(i)
            self.dsr("ds_read_b128", XR + 4 * g, 4, self.vXA + s, self.vXAh + s, B, ("x", g))
            for ct in range(2):
                for u in range(2):
                    self.dsr("ds_read_b64_tr_b16", W + 8 * (g % 3) + 4 * ct + 2 * u, 2, self.vWk + ct, self.vWkh + ct,
                             B + 16384 + (16 * s + 4 * u) * 128, ("w", g, ct))
            self.dsr("ds_read_b128", self.vGB + 4 * (g % 3), 4, self.vGWa, None, 32 * g, ("g", g))

        def comp(g):
            for ct in range(2):
                a.lg.wait(("x", g), ("w", g, ct))
                wf, xf = vr(W + 8 * (g % 3) + 4 * ct, 4), vr(XR + 4 * g, 4)
                d = vr(ACC + 16 * ct, 16)
                A, Bm = (xf, wf) if isv else (wf, xf)
                a(f"v_mfma_f32_32x32x16_bf16 {d}, {A}, {Bm}, {d if g else 0}")
            a.lg.wait(("g", g))
            for k in range(4):
                a(f"v_dot2c_f32_bf16 v{self.vZ + k}, v{XR + 4 * g + k}, v{self.vGB + 4 * (g % 3) + k}")

        for i in range(8):
            g0 = 4 * i
            if i:
                a.lg.drain()
            a("s_barrier")
            if i == 0:
                self.stamp(1)
            reads(g0)
            reads(g0 + 1)
            if i:
                comp(g0 - 1)
            if i == 1:
                skip = self.lab("nogo")
                a(f"""s_or_b32 s{sT0}, s2, s{sW}
                    s_cmp_lg_u32 s{sT0}, 0
                    s_cbranch_scc1 {skip}
                    s_waitcnt vmcnt(0)""")
                self.set_flag("0", self.vGo, sDBG)
                a.label(skip)
            if i == 5:
                a(f"buffer_load_dword v{self.vGo}, off, {sr(sDBG, 4)}, 0 sc1")
            comp(g0)
            reads(g0 + 2)
            comp(g0 + 1)
            reads(g0 + 3)
            comp(g0 + 2)
        comp(31)
        ok = self.lab("go")
        a(f"""s_waitcnt vmcnt(0)
            v_cmp_eq_u32 vcc, 0, v{self.vGo}
            s_cbranch_vccz {ok}
            v_mov_b32 v95, 0""")
        self.poll(95, "0", self.vGo, sDBG)
        a.label(ok)
        a.vm.reset()
        sB = sT0
        a(f"""s_lshr_b32 s{sB}, s{sC}, 1
            s_lshl_b32 s{sB}, s{sB}, 19
            s_lshl_b32 s{sB + 1}, s{sR}, 2
            s_add_u32 s{sB + 1}, s{sB + 1}, s{sT}
            s_lshl_b32 s{sB + 1}, s{sB + 1}, 11
            s_add_u32 s{sB}, s{sB}, s{sB + 1}
            s_nop 1""")
        for ct in range(2):
            for q in range(2):
                d = 112 + 8 * ct + 4 * q
                for k in range(4):
                    s = ACC + 16 * ct + 8 * q + 2 * k
                    a(f"v_cvt_pk_bf16_f32 v{d + k}, v{s}, v{s + 1}")
                if isv:
                    a(f"buffer_store_dwordx4 {vr(d, 4)}, v{self.vST}, {sr(sWS, 4)}, s{sB} offen offset:{512 * q} sc1")
                    if q == 1 and ct == 0:
                        a(f"s_add_u32 s{sB}, s{sB}, 262144")
                else:
                    a(f"buffer_store_dwordx4 {vr(d, 4)}, v{self.vST}, {sr(sWS, 4)}, s{sB} offen sc1")
                    a(f"s_add_u32 s{sB}, s{sB}, 131072")
        self.stamp(2)

    def pass_qf(self):
        a = self.a
        XR, ACC, W = self.XR, self.ACC, self.WS_
        QACC = ACC + 80
        a.lg.reset()
        jobs = [("q", g, 0) for g in range(32)] + [("f", g, t) for g in range(32) for t in range(6)]

        def reads(j):
            kind, g, t = jobs[j]
            i, s = divmod(g, 4)
            for u in range(2):
                dst = W + 4 * (j % 6) + 2 * u
                if kind == "q":
                    self.dsr("ds_read_b64_tr_b16", dst, 2, self.vQa, None, (16 * g + 4 * u) * 64, j)
                else:
                    self.dsr("ds_read_b64_tr_b16", dst, 2, self.vFlo, self.vFhi,
                             slot(8 + i) + 12288 * (t & 1) + (16 * s + 4 * u) * 192 + 64 * (t >> 1), j)

        def gate():
            z = self.vZ
            a(f"""v_add_f32 v{z}, v{z}, v{z + 1}
                v_add_f32 v{z + 2}, v{z + 2}, v{z + 3}
                v_add_f32 v{z}, v{z}, v{z + 2}
                v_mov_b32 v{z + 1}, v{z}
                s_nop 1
                v_permlane32_swap_b32 v{z}, v{z + 1}
                s_nop 1
                v_add_f32 v{z}, v{z}, v{z + 1}
                v_mul_f32 v{z}, {f32(LOG2E)}, v{z}
                v_exp_f32 v{z + 1}, v{z}
                v_exp_f32 v{z + 2}, -v{z}
                v_add_f32 v{z + 1}, 1.0, v{z + 1}
                v_add_f32 v{z + 2}, 1.0, v{z + 2}
                v_min_f32 v{self.vA}, {f32(2.0 ** 100)}, v{z + 1}
                v_rcp_f32 v{self.vG}, v{z + 2}""")

        def q_epilogue():
            a(f"v_mov_b32 v6, {f32(0.25 * LOG2E)}\nv_mov_b32 v7, {f32(0.25 * LOG2E)}")
            for k in range(8):
                a(f"v_pk_mul_f32 {vr(QACC + 2 * k, 2)}, {vr(QACC + 2 * k, 2)}, v[6:7]")
            for k in range(8):
                a(f"v_cvt_pk_bf16_f32 v{QACC + k}, v{QACC + 2 * k}, v{QACC + 2 * k + 1}")
            for hd in range(2):
                a(f"ds_write_b128 v{self.vQFa}, {vr(QACC + 4 * hd, 4)} offset:{4096 * hd}")
                a.lg.issue("qf")

        bar_at = {32 + 24 * i - 4: i for i in range(5)}
        a("s_barrier")
        for j in range(6):
            reads(j)
        gate()
        nxt = 6
        for j in range(len(jobs)):
            kind, g, t = jobs[j]
            if j in bar_at:
                a.lg.drain()
                a("s_barrier")
                if bar_at[j] == 4:
                    self.stamp(4)
                while nxt < j + 6:
                    reads(nxt)
                    nxt += 1
            if j == 32 + 5:
                q_epilogue()
            a.lg.wait(j)
            d = vr(QACC if kind == "q" else ACC + 16 * t, 16)
            a(f"v_mfma_f32_32x32x16_bf16 {d}, {vr(W + 4 * (j % 6), 4)}, {vr(XR + 4 * g, 4)}, {d if g else 0}")
            if j == self.cfg.get("kvflag_at", 32 + 6):
                a(f"""s_lshl_b32 s{sT0}, s{sC}, 6
                    s_lshl_b32 s{sT0 + 1}, s{sR}, 2
                    s_add_u32 s{sT0}, s{sT0}, s{sT0 + 1}
                    s_add_u32 s{sT0}, s{sT0}, s{sT}
                    s_lshl_b32 s{sT0}, s{sT0}, 2
                    s_add_u32 s{sT0}, s{sT0}, {FKV}
                    s_waitcnt vmcnt(0)""")
                self.set_flag(f"s{sT0}", 6)
                self.stamp(3)
            if nxt < len(jobs) and nxt == j + 6 and (j + 1) not in bar_at and (j + 2) not in bar_at:
                reads(nxt)
                nxt += 1
        assert nxt == len(jobs)
        self.stamp(5)

    def gelu(self):
        a = self.a
        ACC = self.ACC
        cA, c0, c1, T, E, OUT, vOff = 128, 130, 132, 136, 152, 168, 134
        k0 = -2.0 * 0.7978845608028654 * LOG2E
        self.lane(vOff)
        a(f"""v_mov_b32 v{cA}, v{self.vA}
            v_mov_b32 v{cA + 1}, v{self.vA}
            v_mov_b32 v{c0}, {f32(k0)}
            v_mov_b32 v{c0 + 1}, {f32(k0)}
            v_mov_b32 v{c1}, {f32(k0 * 0.044715)}
            v_mov_b32 v{c1 + 1}, {f32(k0 * 0.044715)}
            v_lshlrev_b32 v{vOff}, 4, v{vOff}
            s_lshl_b32 s{sT0}, s{sR}, 2
            s_add_u32 s{sT0}, s{sT0}, s{sT}
            s_mul_i32 s{sT0}, s{sT0}, 86
            s_mul_i32 s{sT0 + 1}, s{sC}, 6
            s_add_u32 s{sT0}, s{sT0}, s{sT0 + 1}
            s_lshl_b32 s{sT0}, s{sT0}, 10
            s_add_u32 s{sT0}, s{sT0}, {WS_H}""")
        for j in range(3):
            G, U = ACC + 32 * j, ACC + 32 * j + 16
            p = lambda b, k: vr(b + 2 * k, 2)
            for k in range(8):
                a(f"v_pk_mul_f32 {p(T, k)}, {p(G, k)}, {p(G, k)}")
            for k in range(8):
                a(f"v_pk_fma_f32 {p(T, k)}, {p(T, k)}, {vr(c1, 2)}, {vr(c0, 2)}")
            for k in range(8):
                a(f"v_pk_mul_f32 {p(T, k)}, {p(T, k)}, {p(G, k)}")
            for k in range(16):
                a(f"v_exp_f32 v{T + k}, v{T + k}")
            for k in range(8):
                a(f"v_pk_mul_f32 {p(G, k)}, {p(G, k)}, {p(U, k)}")
            for k in range(8):
                a(f"v_pk_fma_f32 {p(T, k)}, {p(T, k)}, {vr(cA, 2)}, {vr(cA, 2)}")
            for k in range(16):
                a(f"v_rcp_f32 v{T + k}, v{T + k}")
            a(f"""s_cmp_lt_u32 s{sT0 + 1}, {86 - 2 * j}
                s_cselect_b32 s{sT0 + 2}, s{sT0}, {OOB}""")
            for k in range(8):
                a(f"v_pk_mul_f32 {p(G, k)}, {p(G, k)}, {p(T, k)}")
            for q in range(2):
                d = OUT + 8 * j + 4 * q
                for k in range(4):
                    a(f"v_cvt_pk_bf16_f32 v{d + k}, v{G + 8 * q + 2 * k}, v{G + 8 * q + 2 * k + 1}")
                a(f"buffer_store_dwordx4 {vr(d, 4)}, v{vOff}, {sr(sWS, 4)}, s{sT0 + 2} offen offset:{1024 * q} sc1")
            a(f"s_add_u32 s{sT0}, s{sT0}, 2048")

    O_, S_, Q_, KV_, vIDX, vKo, vVo, vGK = 0, 64, 96, 112, 160, 161, 162, 163

    def attn_setup(self, is_m):
        a = self.a
        nL, nM = self.cfg["nL"], 32 - self.cfg["nL"]
        n = nM if is_m else nL
        sK0, sHd, sOff, sEnd, sCnt, sLd = range(sT0 + 4, sT0 + 10)
        self.sOff, self.sEnd, self.sCnt, self.sLd = sOff, sEnd, sCnt, sLd
        vL, vT = 164, 165
        self.lane(vL)
        a(f"""s_lshr_b32 s{sK0}, s{sT}, 1
            s_mul_i32 s{sK0}, s{sK0}, {n}
            s_add_u32 s{sK0}, s{sK0}, {2 * nL if is_m else 0}
            s_and_b32 s{sHd}, s{sW}, 1
            v_and_b32 v{vT}, 31, v{vL}
            v_min_u32 v{vT}, {n - 1}, v{vT}
            v_add_u32 v{vT}, s{sK0}, v{vT}
            v_lshrrev_b32 v{vT + 1}, 5, v{vL}
            v_lshl_add_u32 v{vT}, v{vT + 1}, 6, v{vT}
            v_lshlrev_b32 v{vT}, 2, v{vT}
            s_lshr_b32 s{sT0}, s{sC}, 1
            s_lshl_b32 s{sT0}, s{sT0}, 9
            s_add_u32 s{sT0}, s{sT0}, {FKV}""")
        self.poll(vT, f"s{sT0}", vT + 2)
        if is_m:
            a(f"""s_lshl_b32 s{sT0}, s{sR}, 2
                s_add_u32 s{sT0}, s{sT0}, s{sT}
                s_lshl_b32 s{sT0}, s{sT0}, 4
                s_add_u32 s{sT0}, s{sT0}, s{sC}
                s_lshl_b32 s{sT0}, s{sT0}, 2
                s_add_u32 s{sT0}, s{sT0}, {FH}""")
            self.set_flag(f"s{sT0}", vT + 2)
        for st in range(4):
            for k in range(8):
                a(f"v_mov_b32 v{self.KV_ + 12 * st + 4 + k}, 0x3f803f80")
        a(f"""s_lshl_b32 s{sOff}, s{sC}, 1
            s_add_u32 s{sOff}, s{sOff}, s{sHd}
            s_lshl_b32 s{sOff}, s{sOff}, 17
            s_lshl_b32 s{sT0}, s{sK0}, 11
            s_add_u32 s{sOff}, s{sOff}, s{sT0}
            s_add_u32 s{sEnd}, s{sOff}, {2048 * n}
            s_mov_b32 s{sCnt}, {n // 4}
            v_lshlrev_b32 v{self.vKo}, 4, v{vL}
            v_and_b32 v{self.vVo}, 15, v{vL}
            v_lshlrev_b32 v{self.vVo}, 4, v{self.vVo}
            v_lshl_add_u32 v{self.vVo}, v{vT + 1}, 8, v{self.vVo}
            s_lshl_b32 s{sT0}, s{sHd}, 12
            s_add_u32 s{sT0}, s{sT0}, {QF}
            v_add_u32 v{vT}, s{sT0}, v{self.vKo}""")
        for st in range(3):
            b = self.KV_ + 12 * st
            a(f"""buffer_load_dwordx4 {vr(b, 4)}, v{self.vKo}, {sr(sWS, 4)}, s{sOff} offen sc1
                s_mov_b64 exec, {sr(sVM, 2)}
                buffer_load_dwordx4 {vr(b + 4, 4)}, v{self.vVo}, {sr(sWS, 4)}, s{sOff} offen offset:1024 sc1
                buffer_load_dwordx4 {vr(b + 8, 4)}, v{self.vVo}, {sr(sWS, 4)}, s{sOff} offen offset:1536 sc1
                s_mov_b64 exec, -1
                s_add_u32 s{sOff}, s{sOff}, 2048""")
        for q in range(4):
            a(f"ds_read_b128 {vr(self.Q_ + 4 * q, 4)}, v{vT} offset:{1024 * q}")
        a(f"v_mov_b32 v{self.vIDX}, 0xdddddddd")
        for k in range(64):
            a(f"v_mov_b32 v{self.O_ + k}, 0")
        for k in range(8):
            a(f"v_mov_b32 v{self.S_ + 24 + k}, 0")
        a(f"""s_waitcnt vmcnt(6) lgkmcnt(0)
            v_mfma_f32_32x32x16_bf16 {vr(self.S_, 16)}, {vr(self.KV_, 4)}, {vr(self.Q_, 4)}, 0
            s_nop 11""")

    def attn_loop(self):
        a = self.a
        O, S, Q, KV = self.O_, self.S_, self.Q_, self.KV_
        sOff, sEnd, sCnt, sLd = self.sOff, self.sEnd, self.sCnt, self.sLd
        sm = lambda st, qt, half, n: (f"v_smfmac_f32_32x32x32_bf16 {vr(O + 16 * qt, 16)}, {vr(KV + 12 * st + 4 + 4 * half, 4)}, "
                                      f"{vr(S + 16 * (n & 1) + 8 * half, 8)}, v{self.vIDX}")
        a.raw(".p2align 6")
        a.label("L_attn")
        for n in range(16):
            st, qt = divmod(n, 4)
            cur = S + 16 * (n & 1)
            E = lambda lo, hi: [a(f"v_exp_f32 v{cur + k}, v{cur + k}") for k in range(lo, hi)]
            pst, pqt = divmod((n - 1) % 16, 4)
            nst, nqt = divmod((n + 1) % 16, 4)
            ld = KV + 12 * ((st + 3) % 4)
            E(0, 2)
            a(sm(pst, pqt, 1, n - 1))
            if qt == 0:
                a(f"s_cmp_lt_u32 s{sOff}, s{sEnd}\ns_cselect_b32 s{sLd}, s{sOff}, {OOB}")
            if qt == 3:
                a("s_waitcnt vmcnt(6)")
            E(2, 5)
            a(f"v_mfma_f32_32x32x16_bf16 {vr(S + 16 * ((n + 1) & 1), 16)}, {vr(KV + 12 * nst, 4)}, {vr(Q + 4 * nqt, 4)}, 0")
            if qt == 0:
                a(f"buffer_load_dwordx4 {vr(ld, 4)}, v{self.vKo}, {sr(sWS, 4)}, s{sLd} offen sc1")
            if qt == 2:
                a(f"s_add_u32 s{sOff}, s{sOff}, 2048")
            E(5, 10)
            a(sm(st, qt, 0, n))
            if qt == 1:
                a(f"""s_mov_b64 exec, {sr(sVM, 2)}
                    buffer_load_dwordx4 {vr(ld + 4, 4)}, v{self.vVo}, {sr(sWS, 4)}, s{sLd} offen offset:1024 sc1
                    buffer_load_dwordx4 {vr(ld + 8, 4)}, v{self.vVo}, {sr(sWS, 4)}, s{sLd} offen offset:1536 sc1
                    s_mov_b64 exec, -1""")
            if n == 15:
                a(f"s_sub_u32 s{sCnt}, s{sCnt}, 1\ns_cmp_lg_u32 s{sCnt}, 0")
            E(10, 16)
        a("s_cbranch_scc1 L_attn\ns_nop 0")
        a(sm(3, 3, 1, 15))
        a("s_waitcnt vmcnt(0)")

    def write_partials(self, is_m):
        a = self.a
        vL = 164
        base = PART_M if is_m else PART_L
        self.lane(vL)
        a(f"""s_mul_i32 s{sT0}, s{sT}, 9216
            s_add_u32 s{sT0}, s{sT0}, {base}
            v_lshl_add_u32 v{vL + 1}, v{vL}, 4, s{sT0}
            v_lshl_add_u32 v{vL + 2}, v{vL}, 2, s{sT0}""")
        if is_m:
            a(f"""s_lshl_b32 s{sT0}, s{sT}, 8
                s_add_u32 s{sT0}, s{sT0}, {GL}
                v_lshl_add_u32 v{vL + 3}, v{vL}, 2, s{sT0}
                ds_write_b32 v{vL + 3}, v{self.vGK}""")
        for q in range(4):
            o = self.O_ + 16 * q
            a(f"""ds_write_b128 v{vL + 1}, {vr(o, 4)} offset:{2304 * q}
                ds_write_b128 v{vL + 1}, {vr(o + 4, 4)} offset:{2304 * q + 1024}
                ds_write_b32 v{vL + 2}, v{o + 8} offset:{2304 * q + 2048}""")

    def ffn2(self):
        a = self.a
        ACC, HS, WB, WO = 0, 128, 192, 128
        vL, vD, vH, vA0, vA1, vOw, vOt, vDump = range(64, 72)
        sRing, sH0, sH1, sWd, sStep, sS0, sS1 = range(sT0, sT0 + 7)
        NS, PD = 22, 7
        self.lane(vL)
        a(f"""s_lshl_b32 s{sRing}, s{sT}, 14
            s_add_u32 s{sRing}, s{sRing}, {RING[0]}
            s_cmp_eq_u32 s{sT}, 3
            s_cselect_b32 s{sRing}, {RING[3]}, s{sRing}
            v_lshrrev_b32 v72, 3, v{vL}
            v_and_b32 v73, 7, v{vL}
            v_bfe_u32 v74, v{vL}, 4, 1
            v_lshlrev_b32 v75, 2, v74
            v_xor_b32 v73, v73, v75
            v_lshlrev_b32 v73, 4, v73
            v_lshl_add_u32 v{vD}, v72, 10, v73
            v_lshlrev_b32 v{vH}, 4, v{vL}
            v_add_u32 v{vDump}, s{sRing}, v{vH}
            v_lshrrev_b32 v72, 5, v{vL}
            v_bfe_u32 v73, v{vL}, 2, 2
            v_lshl_add_u32 v72, v72, 2, v73
            v_and_b32 v73, 1, v{vL}
            v_lshlrev_b32 v73, 2, v73
            v_lshl_add_u32 v73, v74, 1, v73
            v_bfe_u32 v75, v{vL}, 1, 1
            v_add_u32 v73, v73, v75
            v_lshlrev_b32 v73, 3, v73
            v_lshl_add_u32 v73, v72, 7, v73
            v_bfe_u32 v75, v{vL}, 3, 1
            v_lshl_add_u32 v73, v75, 6, v73
            v_add_u32 v{vA0}, s{sRing}, v73
            v_xor_b32 v{vA1}, 64, v{vA0}
            s_lshr_b32 s{sS0}, s{sT}, 1
            s_lshl_b32 s{sS0}, s{sS0}, 6
            v_xor_b32 v{vOw}, s{sS0}, v{vA0}
            v_xor_b32 v{vOt}, 64, v{vOw}
            s_mul_i32 s{sStep}, s{sT}, {NS}
            s_mul_i32 s{sH0}, s{sRB}, 172
            s_add_u32 s{sH0}, s{sH0}, s{sStep}
            s_lshl_b32 s{sH0}, s{sH0}, 10
            s_add_u32 s{sH0}, s{sH0}, {WS_H}
            s_lshl_b32 s{sWd}, s{sStep}, 14
            s_lshl_b32 s{sS0}, s{sCB}, 7
            s_add_u32 s{sWd}, s{sWd}, s{sS0}""")
        a.vm.reset()
        a.lg.drain()

        def issue(s):
            if s >= NS + 16:
                return
            if s == NS:
                a(f"""s_lshr_b32 s{sWd}, s{sT}, 1
                    s_lshl_b32 s{sWd}, s{sWd}, 18
                    s_lshl_b32 s{sS0}, s{sCB}, 7
                    s_add_u32 s{sWd}, s{sWd}, s{sS0}""")
            for i in range(2):
                a(f"s_add_u32 m0, s{sRing}, {(s % 8) * 2048 + 1024 * i}")
                a(f"s_add_u32 s{sS0}, s{sWd}, {(s if s < NS else s - NS) * 16384 + 8192 * i}")
                a(f"buffer_load_dwordx4 v{vD}, {sr(sWD if s < NS else sWO, 4)}, s{sS0} offen lds")
                a.vm.issue(s)
            if s < NS:
                a(f"s_add_u32 s{sS0}, s{sH0}, {1024 * s}")
                if s >= NS - 2:
                    a(f"s_cmp_eq_u32 s{sT}, 3\ns_cselect_b32 s{sS0}, {OOB}, s{sS0}")
                a(f"s_add_u32 s{sS1}, s{sS0}, 88064")
                for tt in range(2):
                    a(f"buffer_load_dwordx4 {vr(HS + 8 * (s % 8) + 4 * tt, 4)}, v{vH}, {sr(sWS, 4)}, s{sS0 + tt} offen sc1")
                    a.vm.issue(s)

        def reads(s):
            a.vm.wait(s)
            for ct in range(2):
                for u in range(2):
                    if s < NS:
                        dst, reg = WB + 8 * (s & 1) + 4 * ct + 2 * u, (vA0, vA1)[ct]
                    else:
                        dst, reg = WO + 8 * (s - NS) + 4 * ct + 2 * u, (vOw, vOt)[ct]
                    self.dsr("ds_read_b64_tr_b16", dst, 2, reg, None, (s % 8) * 2048 + 1024 * u, (s, ct))

        for s in range(PD):
            issue(s)
        reads(0)
        for s in range(NS):
            if s + 1 < NS:
                reads(s + 1)
            for ct in range(2):
                a.lg.wait((s, ct))
                for tt in range(2):
                    d = vr(ACC + 32 * tt + 16 * ct, 16)
                    a(f"v_mfma_f32_32x32x16_bf16 {d}, {vr(WB + 8 * (s & 1) + 4 * ct, 4)}, {vr(HS + 8 * (s % 8) + 4 * tt, 4)}, {d if s else 0}")
            issue(s + PD)
        for s in range(NS, NS + 16):
            reads(s)
            a.lg.wait((s - 1, 1))
            issue(s + PD)
        a.lg.drain()
        for k in range(16):
            a(f"ds_write_b128 v{vDump}, {vr(ACC + 4 * k, 4)} offset:{1024 * k}")

    def combine(self):
        a = self.a
        vL, vP, vPh, vS, vSh, vGt, vOff = range(64, 71)
        sHd, sQt, sTT = sT0 + 4, sT0 + 5, sT0 + 6
        self.lane(vL)
        a(f"""s_and_b32 s{sHd}, s{sW}, 1
            s_lshr_b32 s{sQt}, s{sW}, 1
            s_mul_i32 s{sT0}, s{sHd}, 9216
            s_mul_i32 s{sT0 + 1}, s{sQt}, 2304
            s_add_u32 s{sT0}, s{sT0}, s{sT0 + 1}
            v_lshl_add_u32 v{vP}, v{vL}, 4, s{sT0}
            v_lshl_add_u32 v{vS}, v{vL}, 2, s{sT0}
            v_add_u32 v{vPh}, {PART_M}, v{vP}
            v_add_u32 v{vSh}, {PART_M}, v{vS}
            s_lshl_b32 s{sT0}, s{sQt}, 8
            s_add_u32 s{sT0}, s{sT0}, {GL}
            v_lshl_add_u32 v{vGt}, v{vL}, 2, s{sT0}
            v_lshlrev_b32 v{vOff}, 4, v{vL}
            s_lshl_b32 s{sTT}, s{sR}, 2
            s_add_u32 s{sTT}, s{sTT}, s{sQt}
            s_lshl_b32 s{sTT}, s{sTT}, 5
            s_lshl_b32 s{sT0}, s{sC}, 1
            s_add_u32 s{sTT}, s{sTT}, s{sT0}
            s_add_u32 s{sTT}, s{sTT}, s{sHd}
            s_waitcnt lgkmcnt(0)
            s_barrier""")
        self.stamp(10)
        a.lg.reset()
        for i in range(4):
            p, s, off = (vP, vS, 18432 * i) if i < 2 else (vPh, vSh, 18432 * (i - 2))
            a(f"""ds_read_b128 {vr(12 * i, 4)}, v{p} offset:{off}
                ds_read_b128 {vr(12 * i + 4, 4)}, v{p} offset:{off + 1024}
                ds_read_b32 v{12 * i + 8}, v{s} offset:{off + 2048}""")
        a(f"ds_read_b32 v{vGt}, v{vGt}\ns_waitcnt lgkmcnt(7)")
        for k in range(4):
            a(f"v_pk_add_f32 {vr(2 * k, 2)}, {vr(2 * k, 2)}, {vr(12 + 2 * k, 2)}")
        a("v_add_f32 v8, v8, v20\ns_waitcnt lgkmcnt(1)")
        for k in range(4):
            a(f"v_pk_add_f32 {vr(24 + 2 * k, 2)}, {vr(24 + 2 * k, 2)}, {vr(36 + 2 * k, 2)}")
        a("v_add_f32 v32, v32, v44")
        for k in range(4):
            a(f"v_pk_add_f32 {vr(2 * k, 2)}, {vr(2 * k, 2)}, {vr(24 + 2 * k, 2)}")
        lo, hi = self.cfg.get("l_lo", 2.0 ** -24), self.cfg.get("l_hi", 2.0 ** 64)
        a(f"""v_add_f32 v8, v8, v32
            v_max3_f32 v10, abs(v0), abs(v1), abs(v2)
            v_max3_f32 v11, abs(v3), abs(v4), abs(v5)
            v_add_f32 v12, v0, v1
            v_add_f32 v13, v2, v3
            v_max3_f32 v10, abs(v6), abs(v7), v10
            v_add_f32 v14, v4, v5
            v_add_f32 v15, v6, v7
            v_max_f32 v10, v10, v11
            v_cmp_o_f32 {sr(sT0, 2)}, v12, v13
            v_cmp_o_f32 {sr(sT0 + 2, 2)}, v14, v15
            v_cmp_gt_f32 vcc, {f32(2.0 ** 126)}, v10
            s_and_b64 {sr(sT0, 2)}, {sr(sT0, 2)}, {sr(sT0 + 2, 2)}
            s_and_b64 {sr(sT0, 2)}, {sr(sT0, 2)}, vcc
            v_cmp_lt_f32 vcc, {f32(lo)}, v8
            s_and_b64 {sr(sT0, 2)}, {sr(sT0, 2)}, vcc
            v_cmp_gt_f32 vcc, {f32(hi)}, v8
            s_and_b64 {sr(sT0, 2)}, {sr(sT0, 2)}, vcc
            s_cmp_eq_u64 {sr(sT0, 2)}, -1
            s_cbranch_scc0 L_fallback""")
        a.label("L_normalise")
        a(f"""v_rcp_f32 v8, v8
            s_waitcnt lgkmcnt(0)
            v_mul_f32 v8, v8, v{vGt}
            v_mov_b32 v9, v8
            s_lshl_b32 s{sT0}, s{sTT}, 10
            s_add_u32 s{sT0}, s{sT0}, {WS_O}""")
        for k in range(4):
            a(f"v_pk_mul_f32 {vr(2 * k, 2)}, {vr(2 * k, 2)}, v[8:9]")
        for k in range(4):
            a(f"v_cvt_pk_bf16_f32 v{12 + k}, v{2 * k}, v{2 * k + 1}")
        a(f"""buffer_store_dwordx4 v[12:15], v{vOff}, {sr(sWS, 4)}, s{sT0} offen sc1
            s_lshl_b32 s{sT0}, s{sTT}, 2
            s_add_u32 s{sT0}, s{sT0}, {FO}""")
        self.vOff, self.sHd, self.sQt = vOff, sHd, sQt

    def fallback(self):
        a = self.a
        O, S, M, K, V, Q, vMx, vI, vVo = 0, 16, 32, 48, 52, 60, 72, 73, 74
        sO, sN = sT0, sT0 + 1
        vOff = self.vOff
        a.label("L_fallback")
        a(f"""s_lshl_b32 s{sO}, s{self.sHd}, 12
            s_lshl_b32 s{sN}, s{self.sQt}, 10
            s_add_u32 s{sO}, s{sO}, s{sN}
            s_add_u32 s{sO}, s{sO}, {QF}
            v_add_u32 v{vI}, s{sO}, v{vOff}
            ds_read_b128 {vr(Q, 4)}, v{vI}
            v_and_b32 v{vVo}, 0xf0, v{vOff}
            v_lshrrev_b32 v{vMx}, 9, v{vOff}
            v_lshl_add_u32 v{vVo}, v{vMx}, 8, v{vVo}
            v_mov_b32 v{vMx}, 0xff800000
            s_lshl_b32 s{sO}, s{sC}, 1
            s_add_u32 s{sO}, s{sO}, s{self.sHd}
            s_lshl_b32 s{sO}, s{sO}, 17
            s_mov_b32 s{sN}, 64
            s_waitcnt lgkmcnt(0)
            v_mov_b32 v{vI}, 0xdddddddd""")
        a.label("L_fb_max")
        a(f"""buffer_load_dwordx4 {vr(K, 4)}, v{vOff}, {sr(sWS, 4)}, s{sO} offen sc1
            s_waitcnt vmcnt(0)
            v_mfma_f32_32x32x16_bf16 {vr(S, 16)}, {vr(K, 4)}, {vr(Q, 4)}, 0
            s_nop 11""")
        for k in range(8):
            a(f"v_max3_f32 v{vMx}, v{S + 2 * k}, v{S + 2 * k + 1}, v{vMx}")
        a(f"""s_add_u32 s{sO}, s{sO}, 2048
            s_sub_u32 s{sN}, s{sN}, 1
            s_cmp_lg_u32 s{sN}, 0
            s_cbranch_scc1 L_fb_max
            v_mov_b32 v{M}, v{vMx}
            s_nop 1
            v_permlane32_swap_b32 v{vMx}, v{M}
            s_nop 1
            v_max_f32 v{vMx}, v{vMx}, v{M}
            s_sub_u32 s{sO}, s{sO}, 131072
            s_mov_b32 s{sN}, 64""")
        for k in range(16):
            a(f"v_sub_f32 v{M + k}, 0, v{vMx}\nv_mov_b32 v{O + k}, 0")
        for k in range(8):
            a(f"v_mov_b32 v{V + k}, 0x3f803f80")
        a.label("L_fb_sum")
        a(f"""buffer_load_dwordx4 {vr(K, 4)}, v{vOff}, {sr(sWS, 4)}, s{sO} offen sc1
            s_mov_b64 exec, {sr(sVM, 2)}
            buffer_load_dwordx4 {vr(V, 4)}, v{vVo}, {sr(sWS, 4)}, s{sO} offen offset:1024 sc1
            buffer_load_dwordx4 {vr(V + 4, 4)}, v{vVo}, {sr(sWS, 4)}, s{sO} offen offset:1536 sc1
            s_mov_b64 exec, -1
            s_waitcnt vmcnt(0)
            v_mfma_f32_32x32x16_bf16 {vr(S, 16)}, {vr(K, 4)}, {vr(Q, 4)}, {vr(M, 16)}
            s_nop 11""")
        for k in range(16):
            a(f"v_exp_f32 v{S + k}, v{S + k}")
        a(f"""s_nop 1
            v_smfmac_f32_32x32x32_bf16 {vr(O, 16)}, {vr(V, 4)}, {vr(S, 8)}, v{vI}
            v_smfmac_f32_32x32x32_bf16 {vr(O, 16)}, {vr(V + 4, 4)}, {vr(S + 8, 8)}, v{vI}
            s_nop 7
            s_add_u32 s{sO}, s{sO}, 2048
            s_sub_u32 s{sN}, s{sN}, 1
            s_cmp_lg_u32 s{sN}, 0
            s_cbranch_scc1 L_fb_sum
            s_nop 3
            s_branch L_normalise""")

    def final(self):
        a = self.a
        OF, OWN, OTH, WO = 0, 64, 80, 128
        vL, vA, vAh, vAhh, vFl, vH, vOut, vX, vXp = range(96, 105)
        sTT, sKh = sT0 + 4, sT0 + 5
        self.lane(vL)
        a(f"""s_and_b32 s{sTT}, s{sT}, 1
            s_lshr_b32 s{sKh}, s{sT}, 1
            s_lshl_b32 s{sT0 + 1}, s{sTT}, 1
            s_add_u32 s{sT0 + 1}, s{sT0 + 1}, s{sKh}
            s_lshl_b32 s{sT0 + 1}, s{sT0 + 1}, 12
            v_lshl_add_u32 v{vA}, v{vL}, 4, s{sT0 + 1}
            v_add_u32 v{vAh}, {RING[2]}, v{vA}
            v_add_u32 v{vAhh}, {RING[3]}, v{vA}""")
        a.lg.reset()
        for i in range(4):
            reg, off = ((vA, RING[0]), (vA, RING[1]), (vAh, 0), (vAhh, 0))[i]
            dst = (OWN, 16, 32, 48)[i]
            for q in range(4):
                self.dsr("ds_read_b128", dst + 4 * q, 4, reg, None, off + 1024 * q, i)
            if i == 2:
                a.lg.wait(1)
                for k in range(8):
                    a(f"v_pk_add_f32 {vr(OWN + 2 * k, 2)}, {vr(OWN + 2 * k, 2)}, {vr(16 + 2 * k, 2)}")
        a("s_waitcnt vmcnt(0)")
        self.set_flag(f"s{sT0}", vFl)
        self.stamp(11)
        a.lg.drain()
        for b in (32, 48):
            for k in range(8):
                a(f"v_pk_add_f32 {vr(OWN + 2 * k, 2)}, {vr(OWN + 2 * k, 2)}, {vr(b + 2 * k, 2)}")
        a(f"""s_lshl_b32 s{sT0 + 1}, s{sRB}, 1
            s_add_u32 s{sT0 + 1}, s{sT0 + 1}, s{sTT}
            s_lshl_b32 s{sT0 + 2}, s{sT0 + 1}, 5
            s_lshl_b32 s{sT0 + 3}, s{sKh}, 4
            s_add_u32 s{sT0 + 2}, s{sT0 + 2}, s{sT0 + 3}
            s_lshl_b32 s{sT0}, s{sT0 + 2}, 2
            s_add_u32 s{sT0}, s{sT0}, {FO}
            s_lshl_b32 s{sT0 + 2}, s{sT0 + 2}, 10
            s_add_u32 s{sT0 + 2}, s{sT0 + 2}, {WS_O}
            v_and_b32 v{vFl}, 15, v{vL}
            v_lshlrev_b32 v{vFl}, 2, v{vFl}
            v_lshlrev_b32 v{vH}, 4, v{vL}
            v_and_b32 v{vOut}, 31, v{vL}
            v_lshlrev_b32 v{vOut}, 10, v{vOut}
            v_lshrrev_b32 v{vX}, 5, v{vL}
            v_lshl_add_u32 v{vOut}, v{vX}, 5, v{vOut}
            s_lshl_b32 s{sT0 + 1}, s{sT0 + 1}, 15
            s_lshl_b32 s{sT0 + 3}, s{sCB}, 7
            s_add_u32 s{sT0 + 1}, s{sT0 + 1}, s{sT0 + 3}
            s_lshl_b32 s{sT0 + 3}, s{sKh}, 6
            s_add_u32 s{sT0 + 1}, s{sT0 + 1}, s{sT0 + 3}
            s_lshl_b32 s{sT0 + 3}, s{sT}, 12
            v_add_u32 v{vX}, s{sT0 + 3}, v{vH}
            v_xor_b32 v{vXp}, 0x2000, v{vX}
            s_barrier""")
        self.poll(vFl, f"s{sT0}", vA)
        self.stamp(12)
        for s in range(16):
            if s % 4 == 0 and s:
                a(f"s_add_u32 s{sT0 + 2}, s{sT0 + 2}, 4096")
            a(f"buffer_load_dwordx4 {vr(OF + 4 * s, 4)}, v{vH}, {sr(sWS, 4)}, s{sT0 + 2} offen offset:{1024 * (s % 4)} sc1")
            a.vm.issue(s)
        for s in range(16):
            a.vm.wait(s)
            a(f"v_mfma_f32_32x32x16_bf16 {vr(OTH, 16)}, {vr(WO + 8 * s + 4, 4)}, {vr(OF + 4 * s, 4)}, {vr(OTH, 16) if s else 0}")
            a(f"v_mfma_f32_32x32x16_bf16 {vr(OWN, 16)}, {vr(WO + 8 * s, 4)}, {vr(OF + 4 * s, 4)}, {vr(OWN, 16)}")
        a("s_nop 10")
        for q in range(4):
            a(f"ds_write_b128 v{vX}, {vr(OTH + 4 * q, 4)} offset:{XCH + 1024 * q}")
        a("s_waitcnt lgkmcnt(0)\ns_barrier")
        for q in range(4):
            a(f"ds_read_b128 {vr(4 * q, 4)}, v{vXp} offset:{XCH + 1024 * q}")
        for q in range(4):
            a(f"s_waitcnt lgkmcnt({3 - q})")
            for k in range(2):
                r = 4 * q + 2 * k
                a(f"v_pk_add_f32 {vr(OWN + r, 2)}, {vr(OWN + r, 2)}, {vr(r, 2)}")
            for k in range(2):
                r = 4 * q + 2 * k
                a(f"v_cvt_pk_bf16_f32 v{16 + 2 * q + k}, v{OWN + r}, v{OWN + r + 1}")
            if q % 2 == 1:
                a(f"buffer_store_dwordx4 {vr(16 + 4 * (q // 2), 4)}, v{vOut}, {sr(sOUT, 4)}, s{sT0 + 1} offen offset:{16 * (q // 2)}")

    def build(self):
        a = self.a
        cfg = self.cfg
        self.prologue()
        a(f"s_setprio {cfg.get('prio_l', 1)}")
        self.loader()
        self.stamp(4)
        self.attn_setup(False)
        a("s_branch L_attn_entry")

        a.label("L_mwave")
        self.m_setup()
        a(f"s_bitcmp1_b32 s{sC}, 0\ns_cbranch_scc1 L_pass_v")
        self.pass_a(False)
        a("s_branch L_pass_q")
        a.label("L_pass_v")
        self.pass_a(True)
        a.label("L_pass_q")
        self.pass_qf()
        self.gelu()
        self.stamp(6)
        a(f"v_mov_b32 v{self.vGK}, v{self.vG}")
        self.attn_setup(True)
        a(f"s_setprio {cfg.get('prio_m2', 0)}")

        a.label("L_attn_entry")
        self.stamp(7)
        self.attn_loop()
        self.stamp(8)
        a(f"s_cmp_ge_u32 s{sW}, 4\ns_cbranch_scc1 L_lpost")
        self.write_partials(True)
        a("s_branch L_combine")

        a.label("L_lpost")
        vL, vT = 164, 165
        self.lane(vL)
        a(f"""s_lshl_b32 s{sT0}, s{sRB}, 5
            v_add_u32 v{vT}, s{sT0}, v{vL}
            s_lshl_b32 s{sT0}, s{sR}, 6
            s_add_u32 s{sT0}, s{sT0}, s{sC}
            v_and_b32 v{vT + 1}, 3, v{vL}
            v_lshl_add_u32 v{vT + 1}, v{vT + 1}, 4, s{sT0}
            v_cmp_gt_u32 vcc, 32, v{vL}
            s_nop 1
            v_cndmask_b32 v{vT}, v{vT + 1}, v{vT}, vcc
            v_lshlrev_b32 v{vT}, 2, v{vT}
            s_mov_b32 s{sT0}, {FH}""")
        self.poll(vT, f"s{sT0}", vT + 2)
        self.write_partials(False)
        self.ffn2()
        self.stamp(9)

        a.label("L_combine")
        self.combine()
        a(f"s_cmp_ge_u32 s{sW}, 4\ns_cbranch_scc1 L_final")
        a("s_waitcnt vmcnt(0)")
        self.set_flag(f"s{sT0}", 20)
        self.stamp(11)
        self.dump_stamps()
        a("s_endpgm")

        a.label("L_final")
        self.final()
        if cfg.get("stamps"):
            a("s_waitcnt vmcnt(0)")
            self.stamp(13)
            self.dump_stamps()
        a.label("L_end")
        a("s_endpgm")
        self.fallback()
        return a.text()


HEADER = """; Fused kernel: out = g * MHA(x) + (1 - g) * GEGLU(x),  g = sigmoid(x . gate_w)
; Kernarg (88 bytes, pointers): 0 A_x, 8 A_wqkv, 16 A_wo, 24 B_x (unused by the reference), 32 B_w_gate, 40 B_w_up,
;   48 B_w_down, 56 gate_w, 64 d_out, 72 d_debug, 80 d_ws
; 256 workgroups, one per CU; hand-offs between workgroups go through d_ws with write-through stores and flags.
; @launch grid=(256,1,1) block=(512,1,1) lds=%d
.amdgcn_target "amdgcn-amd-amdhsa--gfx950"
.text
.globl %s_kernel
.p2align 8
.type %s_kernel,@function
%s_kernel:
""" % (LDS_BYTES, NAME, NAME, NAME)

FOOTER = """.section .rodata,"a"
.p2align 6
.amdhsa_kernel %s_kernel
  .amdhsa_next_free_vgpr 256
  .amdhsa_next_free_sgpr 102
  .amdhsa_accum_offset 256
  .amdhsa_group_segment_fixed_size 0
  .amdhsa_kernarg_size 88
  .amdhsa_user_sgpr_count 2
  .amdhsa_user_sgpr_kernarg_segment_ptr 1
  .amdhsa_system_sgpr_workgroup_id_x 1
  .amdhsa_float_denorm_mode_32 3
.end_amdhsa_kernel
""" % NAME

DEFAULT = dict(nL=16)


def generate(**kw):
    cfg = dict(DEFAULT)
    cfg.update(kw)
    body = Gen(cfg).build()
    msgs = lint(body)
    return HEADER + body + FOOTER, msgs


if __name__ == "__main__":
    out = sys.argv[1]
    kw = {}
    for arg in sys.argv[2:]:
        k, v = arg.split("=")
        kw[k] = float(v) if "." in v or "e" in v else int(v)
    text, msgs = generate(**kw)
    for m in msgs:
        print("LINT:", m)
    open(out, "w").write(text)
    print("wrote", out, len(text), "bytes,", text.count("\n"), "lines")
```

```python
import struct
import sys

from asmlib import Asm, lint, sr, vr

NAME = "gated_mix__softmax_full_mha__glu_gated_geglu__prompt"


def f32(x):
    return "0x%08x" % struct.unpack("<I", struct.pack("<f", x))[0]


LOG2E = 1.4426950408889634

WS_KV, WS_O, WS_H, WS_FLAG, WS_STAMP = 0x000000, 0x400000, 0x600000, 0xC00000, 0xD00000
FKV, FH, FO = WS_FLAG, WS_FLAG + 0x1000, WS_FLAG + 0x2000
OOB = 0x20000000

SLOT_PHYS = {2: 0, 3: 24576, 4: 49152, 0: 73728, 1: 98304}
QW, QF = 122880, 155648
GWL = QF
PART_L, PART_M, GL = 0, 98304, 135168
RING = [36864, 53248, 69632, 136192]
XCH = 0
LDS_BYTES = 163840

sX, sWQ, sWO, sWG, sWU, sWD, sGW, sOUT, sDBG, sWS = 4, 8, 12, 16, 20, 24, 28, 32, 36, 40
sC, sR, sW, sT, sROT, sRB, sCB = 44, 45, 46, 47, 48, 49, 50
sVM = 52
sT0 = 54
sSPIN = 70
sSTAMP = 72


def slot(n):
    return SLOT_PHYS[n % 5]


class Gen:
    def __init__(self, cfg):
        self.cfg = cfg
        self.a = Asm()
        self.uid = 0

    def lab(self, base):
        self.uid += 1
        return f"L_{base}_{self.uid}"

    def clock(self):
        return "s_memtime" if self.cfg.get("stamps") == 2 else "s_memrealtime"

    def pad(self):
        a = self.a
        n = self.cfg["pad"]
        top, done = self.lab("pad"), self.lab("paddone")
        a(f"""s_waitcnt vmcnt(0) lgkmcnt(0)
            s_cmp_eq_u32 s{sSTAMP + 2 * n}, 0
            s_cbranch_scc1 {done}""")
        a.label(top)
        a(f"""s_sleep 4
            s_memrealtime {sr(sT0, 2)}
            s_waitcnt lgkmcnt(0)
            s_sub_u32 s{sT0}, s{sT0}, s{sSTAMP + 2 * n}
            s_cmp_lt_u32 s{sT0}, 6000
            s_cbranch_scc1 {top}""")
        a.label(done)

    def stamp(self, n):
        if self.cfg.get("stamps") and self.cfg.get("pad", n) == n:
            a = self.a
            a(f"{self.clock()} {sr(sSTAMP + 2 * n, 2)}")
            a.lg.drain()

    def dump_stamps(self, is_m=False):
        if not self.cfg.get("stamps"):
            return
        if "pad" in self.cfg:
            if is_m:
                self.a("s_barrier\ns_barrier")
            self.pad()
            return
        a = self.a
        a(f"""s_lshl_b32 s{sT0}, s2, 3
            s_add_u32 s{sT0}, s{sT0}, s{sW}
            s_lshl_b32 s{sT0}, s{sT0}, 6
            s_add_u32 s{sT0}, s{sT0}, {WS_STAMP}
            s_mov_b64 exec, 1""")
        for n in range(14):
            a(f"v_mov_b32 v0, s{sSTAMP + 2 * n}")
            a(f"buffer_store_dword v0, off, {sr(sWS, 4)}, s{sT0} offset:{4 * n}")
        a("s_mov_b64 exec, -1")

    def lane(self, v):
        self.a(f"""v_mbcnt_lo_u32_b32 v{v}, -1, 0
            v_mbcnt_hi_u32_b32 v{v}, -1, v{v}""")

    def dsr(self, op, dst, n, lo, hi, imm, tag):
        reg = lo
        if imm >= 65536:
            reg, imm = hi, imm - 65536
        assert 0 <= imm < 65536 and reg is not None
        self.a(f"{op} {vr(dst, n)}, v{reg} offset:{imm}")
        self.a.lg.issue(tag)

    def poll(self, voff, soff, tmp, srd=sWS):
        a = self.a
        top, done = self.lab("poll"), self.lab("pdone")
        a(f"s_mov_b32 s{sSPIN}, 100000")
        a.label(top)
        a(f"""buffer_load_dword v{tmp}, v{voff}, {sr(srd, 4)}, {soff} offen sc1
            s_waitcnt vmcnt(0)
            v_cmp_eq_u32 vcc, 0, v{tmp}
            s_cbranch_vccz {done}
            s_sleep 1
            s_sub_u32 s{sSPIN}, s{sSPIN}, 1
            s_cmp_lg_u32 s{sSPIN}, 0
            s_cbranch_scc1 {top}""")
        a.label(done)
        a.vm.reset()

    def set_flag(self, soff, tmp, srd=sWS):
        a = self.a
        a(f"""s_mov_b64 exec, 1
            v_mov_b32 v{tmp}, 1
            buffer_store_dword v{tmp}, off, {sr(srd, 4)}, {soff} sc1
            s_mov_b64 exec, -1""")
        a.vm.issue("flag")

    def prologue(self):
        a = self.a
        a("s_cmp_ge_u32 s2, 256\ns_cbranch_scc1 L_end")
        if self.cfg.get("stamps"):
            for n in range(14):
                a(f"s_mov_b32 s{sSTAMP + 2 * n}, 0")
            a(f"{self.clock()} {sr(sSTAMP, 2)}")
        for reg, off in ((sX, 0), (sWQ, 8), (sGW, 56), (sWS, 80), (sDBG, 72), (sWG, 32), (sWU, 40), (sWD, 48), (sWO, 16), (sOUT, 64)):
            a(f"s_load_dwordx2 {sr(reg, 2)}, s[0:1], {off}")
        a(f"""v_lshrrev_b32 v1, 6, v0
            s_and_b32 s{sT0}, s2, 7
            v_readfirstlane_b32 s{sW}, v1
            s_lshr_b32 s{sT0 + 1}, s2, 3
            s_and_b32 s{sR}, s{sT0}, 1
            s_lshl_b32 s{sR}, s{sR}, 3
            s_and_b32 s{sT0 + 2}, s{sT0 + 1}, 7
            s_add_u32 s{sR}, s{sR}, s{sT0 + 2}
            s_lshr_b32 s{sC}, s{sT0}, 1
            s_lshl_b32 s{sC}, s{sC}, 2
            s_lshr_b32 s{sT0 + 2}, s{sT0 + 1}, 3
            s_add_u32 s{sC}, s{sC}, s{sT0 + 2}
            s_add_u32 s{sROT}, s{sC}, s{sR}
            s_and_b32 s{sROT}, s{sROT}, {7 if self.cfg.get('rot', 1) else 0}
            s_lshl_b32 s{sRB}, s{sT0}, 2
            s_and_b32 s{sT0 + 2}, s{sT0 + 1}, 3
            s_add_u32 s{sRB}, s{sRB}, s{sT0 + 2}
            s_lshr_b32 s{sCB}, s{sT0 + 1}, 2
            s_and_b32 s{sT}, s{sW}, 3
            s_mov_b32 s{sVM}, 0x0000ffff
            s_mov_b32 s{sVM + 1}, 0x0000ffff""")
        for reg, size in ((sX, 2097152), (sWQ, 1572864), (sWO, 524288), (sWG, 1409024), (sWU, 1409024), (sWD, 1409024),
                          (sGW, 1024), (sOUT, 2097152), (sDBG, 256), (sWS, 268435456)):
            a(f"s_mov_b32 s{reg + 2}, {size}\ns_mov_b32 s{reg + 3}, 0x00020000")
        a(f"""v_and_b32 v0, 63, v0
            s_cmp_ge_u32 s{sW}, 4
            s_cbranch_scc0 L_mwave""")

    def loader(self):
        a = self.a
        a.vm.reset()
        vX0, vX1, vKV, vQ, vF, vGW = 8, 9, 10, 11, 12, 15
        sXB, sKB, sQB, sFB, sLx, sLk, sLq, sLf, sCh, sO = range(sT0, sT0 + 10)
        a(f"""v_lshrrev_b32 v1, 3, v0
            v_and_b32 v2, 7, v0
            v_lshrrev_b32 v3, 4, v0
            s_lshl_b32 s{sO}, s{sT}, 5
            v_add_u32 v4, s{sO}, v1
            v_xor_b32 v5, v2, v3
            v_lshlrev_b32 v5, 4, v5
            v_lshl_add_u32 v{vX0}, v4, 10, v5
            v_xor_b32 v{vX1}, 64, v{vX0}
            v_add_u32 v{vX1}, 8192, v{vX1}
            s_lshl_b32 s{sO}, s{sT}, 4
            v_add_u32 v4, s{sO}, v1
            v_mul_u32_u24 v4, 3072, v4
            v_and_b32 v5, 1, v3
            v_lshlrev_b32 v5, 2, v5
            v_xor_b32 v5, v2, v5
            v_lshl_add_u32 v{vKV}, v5, 4, v4
            s_lshl_b32 s{sCh}, s{sROT}, 7
            v_lshl_add_u32 v{vGW}, v0, 4, s{sCh}
            v_and_b32 v{vGW}, 0x3ff, v{vGW}
            s_lshl_b32 s{sXB}, s{sR}, 17
            s_and_b32 s{sKB}, s{sC}, 1
            s_add_u32 s{sKB}, s{sKB}, 1
            s_lshl_b32 s{sKB}, s{sKB}, 10
            s_lshr_b32 s{sCh}, s{sC}, 1
            s_lshl_b32 s{sCh}, s{sCh}, 7
            s_add_u32 s{sKB}, s{sKB}, s{sCh}
            s_lshl_b32 s{sLx}, s{sT}, 12
            s_lshl_b32 s{sLk}, s{sT}, 11
            s_mov_b32 m0, {GWL}
            s_waitcnt lgkmcnt(0)
            buffer_load_dwordx4 v{vGW}, {sr(sGW, 4)}, 0 offen lds""")
        a.vm.issue("gw")

        def chunk(i):
            a(f"s_add_u32 s{sCh}, s{sROT}, {i}\ns_and_b32 s{sCh}, s{sCh}, 7")

        def issueA(i):
            B = slot(i)
            chunk(i)
            a(f"s_lshl_b32 s{sO}, s{sCh}, 7\ns_add_u32 s{sO}, s{sO}, s{sXB}")
            for k in range(4):
                a(f"s_add_u32 m0, s{sLx}, {B + 1024 * k}")
                a(f"s_add_u32 s{sO}, s{sO}, 16384" if k == 2 else "s_nop 0")
                a(f"buffer_load_dwordx4 v{vX0 if k % 2 == 0 else vX1}, {sr(sX, 4)}, s{sO} offen lds")
                a.vm.issue(("A", i))
            a(f"s_mul_i32 s{sO}, s{sCh}, 196608")
            for k in range(2):
                a(f"s_add_u32 m0, s{sLk}, {B + 16384 + 1024 * k}")
                a(f"s_add_u32 s{sO}, s{sO}, {'s%d' % sKB if k == 0 else 24576}")
                a(f"buffer_load_dwordx4 v{vKV}, {sr(sWQ, 4)}, s{sO} offen lds")
                a.vm.issue(("A", i))

        def issueQ():
            for i in range(8):
                chunk(i)
                a(f"""s_mul_i32 s{sO}, s{sCh}, 196608
                    s_add_u32 m0, s{sLq}, {QW + 4096 * i}
                    s_add_u32 s{sO}, s{sO}, s{sQB}
                    buffer_load_dwordx4 v{vQ}, {sr(sWQ, 4)}, s{sO} offen lds""")
                a.vm.issue("Q")

        def issueF(i):
            B = slot(8 + i)
            chunk(i)
            a(f"s_mul_i32 s{sO}, s{sCh}, 176128\ns_add_u32 s{sO}, s{sO}, s{sFB}")
            for m in range(2):
                for k in range(3):
                    a(f"s_add_u32 m0, s{sLf}, {B + 12288 * m + 1024 * k}\ns_nop 0")
                    a(f"buffer_load_dwordx4 v{vF + k}, {sr(sWG if m == 0 else sWU, 4)}, s{sO} offen lds")
                    a.vm.issue(("F", i))

        for i in range(5):
            issueA(i)
        a(f"""v_lshrrev_b32 v4, 2, v0
            s_lshl_b32 s{sO}, s{sT}, 4
            v_add_u32 v4, s{sO}, v4
            v_mul_u32_u24 v4, 3072, v4
            v_and_b32 v5, 3, v0
            v_lshl_add_u32 v{vQ}, v5, 4, v4
            s_lshl_b32 s{sQB}, s{sC}, 6
            s_mul_i32 s{sFB}, s{sC}, 192
            s_lshl_b32 s{sLq}, s{sT}, 10
            s_mul_i32 s{sLf}, s{sT}, 3072""")
        for k in range(3):
            a(f"""v_add_u32 v4, {64 * k}, v0
                v_mul_u32_u24 v5, 2731, v4
                v_lshrrev_b32 v5, 15, v5
                v_mul_u32_u24 v6, 12, v5
                v_sub_u32 v6, v4, v6
                v_add_u32 v5, s{sO}, v5
                v_mul_u32_u24 v5, 2752, v5
                v_lshl_add_u32 v{vF + k}, v6, 4, v5""")

        def bar(*tags):
            a.vm.wait(*tags)
            a("s_barrier")

        bar(("A", 0))
        for i in range(1, 8):
            bar(("A", i))
            if i <= 3:
                issueA(i + 4)
                if i == 3:
                    issueQ()
            else:
                issueF(i - 4)
        bar("Q")
        issueF(4)
        bar(("F", 0))
        for i in range(1, 4):
            bar(("F", i))
            issueF(i + 4)
        bar(("F", 7))

    XR, ACC, WS_ = 128, 32, 8
    vFlo, vFhi, vG, vA = 0, 1, 2, 3

    def m_setup(self):
        a = self.a
        self.vXA, self.vXAh, self.vWk, self.vWkh, self.vGWa, self.vQa = 80, 84, 88, 90, 92, 4
        self.vST, self.vZ, self.vGB, self.vGo, self.vQFa = 93, 96, 100, 94, 5
        a(f"""s_setprio {self.cfg.get('prio_m1', 2)}
            v_and_b32 v16, 31, v0
            v_lshrrev_b32 v17, 5, v0
            v_bfe_u32 v18, v0, 1, 3
            v_xor_b32 v18, v18, v17
            s_lshl_b32 s{sT0}, s{sT}, 12
            v_lshlrev_b32 v19, 7, v16
            v_lshl_add_u32 v19, v18, 4, v19
            v_add_u32 v{self.vXA}, s{sT0}, v19""")
        for s in range(1, 4):
            a(f"v_xor_b32 v{self.vXA + s}, {32 * s}, v{self.vXA}")
        for s in range(4):
            a(f"v_add_u32 v{self.vXAh + s}, 0x10000, v{self.vXA + s}")
        a(f"""v_bfe_u32 v18, v0, 2, 2
            v_lshl_add_u32 v18, v17, 3, v18
            v_bfe_u32 v19, v0, 4, 1
            v_and_b32 v20, 3, v0
            v_lshlrev_b32 v20, 3, v20
            v_lshl_add_u32 v20, v19, 5, v20
            v_bfe_u32 v21, v0, 3, 1
            v_lshl_add_u32 v22, v18, 7, v20
            v_lshl_add_u32 v{self.vWk}, v21, 6, v22
            v_xor_b32 v{self.vWk + 1}, 64, v{self.vWk}
            v_add_u32 v{self.vWkh}, 0x10000, v{self.vWk}
            v_add_u32 v{self.vWkh + 1}, 0x10000, v{self.vWk + 1}
            v_lshl_add_u32 v{self.vQa}, v18, 6, v20
            v_add_u32 v{self.vQa}, {QW}, v{self.vQa}
            v_lshlrev_b32 v{self.vGWa}, 4, v17
            v_add_u32 v{self.vGWa}, {GWL}, v{self.vGWa}
            s_lshl_b32 s{sT0}, s{sT}, 10
            s_add_u32 s{sT0}, s{sT0}, {QF}
            v_lshl_add_u32 v{self.vQFa}, v0, 4, s{sT0}
            v_mul_u32_u24 v22, 192, v18""")
        for i in range(4):
            a(f"v_mov_b32 v{self.vZ + i}, 0")
        a(f"""v_and_b32 v23, 0x33, v0
            v_bfe_u32 v25, v0, 2, 1
            v_lshl_add_u32 v23, v25, 3, v23
            v_lshl_add_u32 v23, v21, 2, v23
            v_lshlrev_b32 v23, 4, v23
            v_and_b32 v24, 15, v0
            v_lshlrev_b32 v24, 4, v24
            v_lshl_add_u32 v24, v17, 8, v24
            v_lshl_add_u32 v24, v19, 17, v24
            v_add_u32 v24, 1024, v24
            v_lshlrev_b32 v26, 4, v0
            v_add_u32 v{self.vFlo}, v22, v20
            v_add_u32 v{self.vFhi}, 0x10000, v{self.vFlo}
            s_waitcnt lgkmcnt(0)""")
        skip = self.lab("noreset")
        a(f"""s_or_b32 s{sT0}, s2, s{sW}
            s_cmp_lg_u32 s{sT0}, 0
            s_cbranch_scc1 {skip}""")
        for i in range(16):
            a(f"s_mov_b32 s{sT0}, {WS_FLAG + 1024 * i}")
            a(f"buffer_store_dwordx4 {vr(self.vZ, 4)}, v26, {sr(sWS, 4)}, s{sT0} offen sc1")
        a.label(skip)

    def pass_a(self, isv):
        a = self.a
        a.lg.reset()
        a.vm.reset()
        a(f"v_mov_b32 v{self.vST}, v{24 if isv else 23}")
        XR, ACC, W = self.XR, self.ACC, self.WS_

        def reads(g):
            i, s = divmod(g, 4)
            B = slot(i)
            self.dsr("ds_read_b128", XR + 4 * g, 4, self.vXA + s, self.vXAh + s, B, ("x", g))
            for ct in range(2):
                for u in range(2):
                    self.dsr("ds_read_b64_tr_b16", W + 8 * (g % 3) + 4 * ct + 2 * u, 2, self.vWk + ct, self.vWkh + ct,
                             B + 16384 + (16 * s + 4 * u) * 128, ("w", g, ct))
            self.dsr("ds_read_b128", self.vGB + 4 * (g % 3), 4, self.vGWa, None, 32 * g, ("g", g))

        def comp(g):
            for ct in range(2):
                a.lg.wait(("x", g), ("w", g, ct))
                wf, xf = vr(W + 8 * (g % 3) + 4 * ct, 4), vr(XR + 4 * g, 4)
                d = vr(ACC + 16 * ct, 16)
                A, Bm = (xf, wf) if isv else (wf, xf)
                a(f"v_mfma_f32_32x32x16_bf16 {d}, {A}, {Bm}, {d if g else 0}")
            a.lg.wait(("g", g))
            for k in range(4):
                a(f"v_dot2c_f32_bf16 v{self.vZ + k}, v{XR + 4 * g + k}, v{self.vGB + 4 * (g % 3) + k}")

        for i in range(8):
            g0 = 4 * i
            if i:
                a.lg.drain()
            a("s_barrier")
            if i == 0:
                self.stamp(1)
            reads(g0)
            reads(g0 + 1)
            if i:
                comp(g0 - 1)
            if i == 1:
                skip = self.lab("nogo")
                a(f"""s_or_b32 s{sT0}, s2, s{sW}
                    s_cmp_lg_u32 s{sT0}, 0
                    s_cbranch_scc1 {skip}
                    s_waitcnt vmcnt(0)""")
                self.set_flag("0", self.vGo, sDBG)
                a.label(skip)
            if i == 5:
                a(f"buffer_load_dword v{self.vGo}, off, {sr(sDBG, 4)}, 0 sc1")
            comp(g0)
            reads(g0 + 2)
            comp(g0 + 1)
            reads(g0 + 3)
            comp(g0 + 2)
        comp(31)
        ok = self.lab("go")
        a(f"""s_waitcnt vmcnt(0)
            v_cmp_eq_u32 vcc, 0, v{self.vGo}
            s_cbranch_vccz {ok}
            v_mov_b32 v95, 0""")
        self.poll(95, "0", self.vGo, sDBG)
        a.label(ok)
        a.vm.reset()
        sB = sT0
        a(f"""s_lshr_b32 s{sB}, s{sC}, 1
            s_lshl_b32 s{sB}, s{sB}, 19
            s_lshl_b32 s{sB + 1}, s{sR}, 2
            s_add_u32 s{sB + 1}, s{sB + 1}, s{sT}
            s_lshl_b32 s{sB + 1}, s{sB + 1}, 11
            s_add_u32 s{sB}, s{sB}, s{sB + 1}
            s_nop 1""")
        for ct in range(2):
            for q in range(2):
                d = 112 + 8 * ct + 4 * q
                for k in range(4):
                    s = ACC + 16 * ct + 8 * q + 2 * k
                    a(f"v_cvt_pk_bf16_f32 v{d + k}, v{s}, v{s + 1}")
                if isv:
                    a(f"buffer_store_dwordx4 {vr(d, 4)}, v{self.vST}, {sr(sWS, 4)}, s{sB} offen offset:{512 * q} sc1")
                    if q == 1 and ct == 0:
                        a(f"s_add_u32 s{sB}, s{sB}, 262144")
                else:
                    a(f"buffer_store_dwordx4 {vr(d, 4)}, v{self.vST}, {sr(sWS, 4)}, s{sB} offen sc1")
                    a(f"s_add_u32 s{sB}, s{sB}, 131072")
        self.stamp(2)

    def pass_qf(self):
        a = self.a
        XR, ACC, W = self.XR, self.ACC, self.WS_
        QACC = ACC + 80
        a.lg.reset()
        jobs = [("q", g, 0) for g in range(32)] + [("f", g, t) for g in range(32) for t in range(6)]

        def reads(j):
            kind, g, t = jobs[j]
            i, s = divmod(g, 4)
            for u in range(2):
                dst = W + 4 * (j % 6) + 2 * u
                if kind == "q":
                    self.dsr("ds_read_b64_tr_b16", dst, 2, self.vQa, None, (16 * g + 4 * u) * 64, j)
                else:
                    self.dsr("ds_read_b64_tr_b16", dst, 2, self.vFlo, self.vFhi,
                             slot(8 + i) + 12288 * (t & 1) + (16 * s + 4 * u) * 192 + 64 * (t >> 1), j)

        def gate():
            z = self.vZ
            a(f"""v_add_f32 v{z}, v{z}, v{z + 1}
                v_add_f32 v{z + 2}, v{z + 2}, v{z + 3}
                v_add_f32 v{z}, v{z}, v{z + 2}
                v_mov_b32 v{z + 1}, v{z}
                s_nop 1
                v_permlane32_swap_b32 v{z}, v{z + 1}
                s_nop 1
                v_add_f32 v{z}, v{z}, v{z + 1}
                v_mul_f32 v{z}, {f32(LOG2E)}, v{z}
                v_exp_f32 v{z + 1}, v{z}
                v_exp_f32 v{z + 2}, -v{z}
                v_add_f32 v{z + 1}, 1.0, v{z + 1}
                v_add_f32 v{z + 2}, 1.0, v{z + 2}
                v_min_f32 v{self.vA}, {f32(2.0 ** 100)}, v{z + 1}
                v_rcp_f32 v{self.vG}, v{z + 2}""")

        def q_epilogue():
            a(f"v_mov_b32 v6, {f32(0.25 * LOG2E)}\nv_mov_b32 v7, {f32(0.25 * LOG2E)}")
            for k in range(8):
                a(f"v_pk_mul_f32 {vr(QACC + 2 * k, 2)}, {vr(QACC + 2 * k, 2)}, v[6:7]")
            for k in range(8):
                a(f"v_cvt_pk_bf16_f32 v{QACC + k}, v{QACC + 2 * k}, v{QACC + 2 * k + 1}")
            for hd in range(2):
                a(f"ds_write_b128 v{self.vQFa}, {vr(QACC + 4 * hd, 4)} offset:{4096 * hd}")
                a.lg.issue("qf")

        bar_at = {32 + 24 * i - 4: i for i in range(5)}
        a("s_barrier")
        for j in range(6):
            reads(j)
        gate()
        nxt = 6
        for j in range(len(jobs)):
            kind, g, t = jobs[j]
            if j in bar_at:
                a.lg.drain()
                a("s_barrier")
                if bar_at[j] == 4:
                    self.stamp(4)
                while nxt < j + 6:
                    reads(nxt)
                    nxt += 1
            if j == 32 + 5:
                q_epilogue()
            a.lg.wait(j)
            d = vr(QACC if kind == "q" else ACC + 16 * t, 16)
            a(f"v_mfma_f32_32x32x16_bf16 {d}, {vr(W + 4 * (j % 6), 4)}, {vr(XR + 4 * g, 4)}, {d if g else 0}")
            if j == self.cfg.get("kvflag_at", 32 + 6):
                a(f"""s_lshl_b32 s{sT0}, s{sC}, 6
                    s_lshl_b32 s{sT0 + 1}, s{sR}, 2
                    s_add_u32 s{sT0}, s{sT0}, s{sT0 + 1}
                    s_add_u32 s{sT0}, s{sT0}, s{sT}
                    s_lshl_b32 s{sT0}, s{sT0}, 2
                    s_add_u32 s{sT0}, s{sT0}, {FKV}
                    s_waitcnt vmcnt(0)""")
                self.set_flag(f"s{sT0}", 6)
                self.stamp(3)
            if nxt < len(jobs) and nxt == j + 6 and (j + 1) not in bar_at and (j + 2) not in bar_at:
                reads(nxt)
                nxt += 1
        assert nxt == len(jobs)
        self.stamp(5)

    def gelu(self):
        a = self.a
        ACC = self.ACC
        cA, c0, c1, T, E, OUT, vOff = 128, 130, 132, 136, 152, 168, 134
        k0 = -2.0 * 0.7978845608028654 * LOG2E
        self.lane(vOff)
        a(f"""v_mov_b32 v{cA}, v{self.vA}
            v_mov_b32 v{cA + 1}, v{self.vA}
            v_mov_b32 v{c0}, {f32(k0)}
            v_mov_b32 v{c0 + 1}, {f32(k0)}
            v_mov_b32 v{c1}, {f32(k0 * 0.044715)}
            v_mov_b32 v{c1 + 1}, {f32(k0 * 0.044715)}
            v_lshlrev_b32 v{vOff}, 4, v{vOff}
            s_lshl_b32 s{sT0}, s{sR}, 2
            s_add_u32 s{sT0}, s{sT0}, s{sT}
            s_mul_i32 s{sT0}, s{sT0}, 86
            s_mul_i32 s{sT0 + 1}, s{sC}, 6
            s_add_u32 s{sT0}, s{sT0}, s{sT0 + 1}
            s_lshl_b32 s{sT0}, s{sT0}, 10
            s_add_u32 s{sT0}, s{sT0}, {WS_H}""")
        for j in range(3):
            G, U = ACC + 32 * j, ACC + 32 * j + 16
            p = lambda b, k: vr(b + 2 * k, 2)
            for k in range(8):
                a(f"v_pk_mul_f32 {p(T, k)}, {p(G, k)}, {p(G, k)}")
            for k in range(8):
                a(f"v_pk_fma_f32 {p(T, k)}, {p(T, k)}, {vr(c1, 2)}, {vr(c0, 2)}")
            for k in range(8):
                a(f"v_pk_mul_f32 {p(T, k)}, {p(T, k)}, {p(G, k)}")
            for k in range(16):
                a(f"v_exp_f32 v{T + k}, v{T + k}")
            for k in range(8):
                a(f"v_pk_mul_f32 {p(G, k)}, {p(G, k)}, {p(U, k)}")
            for k in range(8):
                a(f"v_pk_fma_f32 {p(T, k)}, {p(T, k)}, {vr(cA, 2)}, {vr(cA, 2)}")
            for k in range(16):
                a(f"v_rcp_f32 v{T + k}, v{T + k}")
            a(f"""s_cmp_lt_u32 s{sT0 + 1}, {86 - 2 * j}
                s_cselect_b32 s{sT0 + 2}, s{sT0}, {OOB}""")
            for k in range(8):
                a(f"v_pk_mul_f32 {p(G, k)}, {p(G, k)}, {p(T, k)}")
            for q in range(2):
                d = OUT + 8 * j + 4 * q
                for k in range(4):
                    a(f"v_cvt_pk_bf16_f32 v{d + k}, v{G + 8 * q + 2 * k}, v{G + 8 * q + 2 * k + 1}")
                a(f"buffer_store_dwordx4 {vr(d, 4)}, v{vOff}, {sr(sWS, 4)}, s{sT0 + 2} offen offset:{1024 * q} sc1")
            a(f"s_add_u32 s{sT0}, s{sT0}, 2048")

    O_, S_, Q_, KV_, vIDX, vKo, vVo, vGK = 0, 64, 96, 112, 160, 161, 162, 163

    def attn_setup(self, is_m):
        a = self.a
        nL, nM = self.cfg["nL"], 32 - self.cfg["nL"]
        n = nM if is_m else nL
        sK0, sHd, sOff, sEnd, sCnt, sLd = range(sT0 + 4, sT0 + 10)
        self.sOff, self.sEnd, self.sCnt, self.sLd = sOff, sEnd, sCnt, sLd
        vL, vT = 164, 165
        self.lane(vL)
        a(f"""s_lshr_b32 s{sK0}, s{sT}, 1
            s_mul_i32 s{sK0}, s{sK0}, {n}
            s_add_u32 s{sK0}, s{sK0}, {2 * nL if is_m else 0}
            s_and_b32 s{sHd}, s{sW}, 1
            v_and_b32 v{vT}, 31, v{vL}
            v_min_u32 v{vT}, {n - 1}, v{vT}
            v_add_u32 v{vT}, s{sK0}, v{vT}
            v_lshrrev_b32 v{vT + 1}, 5, v{vL}
            v_lshl_add_u32 v{vT}, v{vT + 1}, 6, v{vT}
            v_lshlrev_b32 v{vT}, 2, v{vT}
            s_lshr_b32 s{sT0}, s{sC}, 1
            s_lshl_b32 s{sT0}, s{sT0}, 9
            s_add_u32 s{sT0}, s{sT0}, {FKV}""")
        self.poll(vT, f"s{sT0}", vT + 2)
        if is_m:
            a(f"""s_lshl_b32 s{sT0}, s{sR}, 2
                s_add_u32 s{sT0}, s{sT0}, s{sT}
                s_lshl_b32 s{sT0}, s{sT0}, 4
                s_add_u32 s{sT0}, s{sT0}, s{sC}
                s_lshl_b32 s{sT0}, s{sT0}, 2
                s_add_u32 s{sT0}, s{sT0}, {FH}""")
            self.set_flag(f"s{sT0}", vT + 2)
        for st in range(4):
            for k in range(8):
                a(f"v_mov_b32 v{self.KV_ + 12 * st + 4 + k}, 0x3f803f80")
        a(f"""s_lshl_b32 s{sOff}, s{sC}, 1
            s_add_u32 s{sOff}, s{sOff}, s{sHd}
            s_lshl_b32 s{sOff}, s{sOff}, 17
            s_lshl_b32 s{sT0}, s{sK0}, 11
            s_add_u32 s{sOff}, s{sOff}, s{sT0}
            s_add_u32 s{sEnd}, s{sOff}, {2048 * n}
            s_mov_b32 s{sCnt}, {n // 4}
            v_lshlrev_b32 v{self.vKo}, 4, v{vL}
            v_and_b32 v{self.vVo}, 15, v{vL}
            v_lshlrev_b32 v{self.vVo}, 4, v{self.vVo}
            v_lshl_add_u32 v{self.vVo}, v{vT + 1}, 8, v{self.vVo}
            s_lshl_b32 s{sT0}, s{sHd}, 12
            s_add_u32 s{sT0}, s{sT0}, {QF}
            v_add_u32 v{vT}, s{sT0}, v{self.vKo}""")
        for st in range(3):
            b = self.KV_ + 12 * st
            a(f"""buffer_load_dwordx4 {vr(b, 4)}, v{self.vKo}, {sr(sWS, 4)}, s{sOff} offen sc1
                s_mov_b64 exec, {sr(sVM, 2)}
                buffer_load_dwordx4 {vr(b + 4, 4)}, v{self.vVo}, {sr(sWS, 4)}, s{sOff} offen offset:1024 sc1
                buffer_load_dwordx4 {vr(b + 8, 4)}, v{self.vVo}, {sr(sWS, 4)}, s{sOff} offen offset:1536 sc1
                s_mov_b64 exec, -1
                s_add_u32 s{sOff}, s{sOff}, 2048""")
        for q in range(4):
            a(f"ds_read_b128 {vr(self.Q_ + 4 * q, 4)}, v{vT} offset:{1024 * q}")
        a(f"v_mov_b32 v{self.vIDX}, 0xdddddddd")
        for k in range(64):
            a(f"v_mov_b32 v{self.O_ + k}, 0")
        for k in range(8):
            a(f"v_mov_b32 v{self.S_ + 24 + k}, 0")
        a(f"""s_waitcnt vmcnt(6) lgkmcnt(0)
            v_mfma_f32_32x32x16_bf16 {vr(self.S_, 16)}, {vr(self.KV_, 4)}, {vr(self.Q_, 4)}, 0
            s_nop 11""")

    def attn_loop(self):
        a = self.a
        O, S, Q, KV = self.O_, self.S_, self.Q_, self.KV_
        sOff, sEnd, sCnt, sLd = self.sOff, self.sEnd, self.sCnt, self.sLd
        sm = lambda st, qt, half, n: (f"v_smfmac_f32_32x32x32_bf16 {vr(O + 16 * qt, 16)}, {vr(KV + 12 * st + 4 + 4 * half, 4)}, "
                                      f"{vr(S + 16 * (n & 1) + 8 * half, 8)}, v{self.vIDX}")
        a.raw(".p2align 6")
        a.label("L_attn")
        for n in range(16):
            st, qt = divmod(n, 4)
            cur = S + 16 * (n & 1)
            E = lambda lo, hi: [a(f"v_exp_f32 v{cur + k}, v{cur + k}") for k in range(lo, hi)]
            pst, pqt = divmod((n - 1) % 16, 4)
            nst, nqt = divmod((n + 1) % 16, 4)
            ld = KV + 12 * ((st + 3) % 4)
            E(0, 2)
            a(sm(pst, pqt, 1, n - 1))
            if qt == 0:
                a(f"s_cmp_lt_u32 s{sOff}, s{sEnd}\ns_cselect_b32 s{sLd}, s{sOff}, {OOB}")
            if qt == 3:
                a("s_waitcnt vmcnt(6)")
            E(2, 5)
            a(f"v_mfma_f32_32x32x16_bf16 {vr(S + 16 * ((n + 1) & 1), 16)}, {vr(KV + 12 * nst, 4)}, {vr(Q + 4 * nqt, 4)}, 0")
            if qt == 0:
                a(f"buffer_load_dwordx4 {vr(ld, 4)}, v{self.vKo}, {sr(sWS, 4)}, s{sLd} offen sc1")
            if qt == 2:
                a(f"s_add_u32 s{sOff}, s{sOff}, 2048")
            E(5, 10)
            a(sm(st, qt, 0, n))
            if qt == 1:
                a(f"""s_mov_b64 exec, {sr(sVM, 2)}
                    buffer_load_dwordx4 {vr(ld + 4, 4)}, v{self.vVo}, {sr(sWS, 4)}, s{sLd} offen offset:1024 sc1
                    buffer_load_dwordx4 {vr(ld + 8, 4)}, v{self.vVo}, {sr(sWS, 4)}, s{sLd} offen offset:1536 sc1
                    s_mov_b64 exec, -1""")
            if n == 15:
                a(f"s_sub_u32 s{sCnt}, s{sCnt}, 1\ns_cmp_lg_u32 s{sCnt}, 0")
            E(10, 16)
        a("s_cbranch_scc1 L_attn\ns_nop 0")
        a(sm(3, 3, 1, 15))
        a("s_waitcnt vmcnt(0)")

    def write_partials(self, is_m):
        a = self.a
        vL = 164
        base = PART_M if is_m else PART_L
        self.lane(vL)
        a(f"""s_mul_i32 s{sT0}, s{sT}, 9216
            s_add_u32 s{sT0}, s{sT0}, {base}
            v_lshl_add_u32 v{vL + 1}, v{vL}, 4, s{sT0}
            v_lshl_add_u32 v{vL + 2}, v{vL}, 2, s{sT0}""")
        if is_m:
            a(f"""s_lshl_b32 s{sT0}, s{sT}, 8
                s_add_u32 s{sT0}, s{sT0}, {GL}
                v_lshl_add_u32 v{vL + 3}, v{vL}, 2, s{sT0}
                ds_write_b32 v{vL + 3}, v{self.vGK}""")
        for q in range(4):
            o = self.O_ + 16 * q
            a(f"""ds_write_b128 v{vL + 1}, {vr(o, 4)} offset:{2304 * q}
                ds_write_b128 v{vL + 1}, {vr(o + 4, 4)} offset:{2304 * q + 1024}
                ds_write_b32 v{vL + 2}, v{o + 8} offset:{2304 * q + 2048}""")

    def ffn2(self):
        a = self.a
        ACC, HS, WB, WO = 0, 128, 192, 128
        vL, vD, vH, vA0, vA1, vOw, vOt, vDump = range(64, 72)
        sRing, sH0, sH1, sWd, sStep, sS0, sS1 = range(sT0, sT0 + 7)
        NS, PD = 22, 7
        self.lane(vL)
        a(f"""s_lshl_b32 s{sRing}, s{sT}, 14
            s_add_u32 s{sRing}, s{sRing}, {RING[0]}
            s_cmp_eq_u32 s{sT}, 3
            s_cselect_b32 s{sRing}, {RING[3]}, s{sRing}
            v_lshrrev_b32 v72, 3, v{vL}
            v_and_b32 v73, 7, v{vL}
            v_bfe_u32 v74, v{vL}, 4, 1
            v_lshlrev_b32 v75, 2, v74
            v_xor_b32 v73, v73, v75
            v_lshlrev_b32 v73, 4, v73
            v_lshl_add_u32 v{vD}, v72, 10, v73
            v_lshlrev_b32 v{vH}, 4, v{vL}
            v_add_u32 v{vDump}, s{sRing}, v{vH}
            v_lshrrev_b32 v72, 5, v{vL}
            v_bfe_u32 v73, v{vL}, 2, 2
            v_lshl_add_u32 v72, v72, 2, v73
            v_and_b32 v73, 1, v{vL}
            v_lshlrev_b32 v73, 2, v73
            v_lshl_add_u32 v73, v74, 1, v73
            v_bfe_u32 v75, v{vL}, 1, 1
            v_add_u32 v73, v73, v75
            v_lshlrev_b32 v73, 3, v73
            v_lshl_add_u32 v73, v72, 7, v73
            v_bfe_u32 v75, v{vL}, 3, 1
            v_lshl_add_u32 v73, v75, 6, v73
            v_add_u32 v{vA0}, s{sRing}, v73
            v_xor_b32 v{vA1}, 64, v{vA0}
            s_lshr_b32 s{sS0}, s{sT}, 1
            s_lshl_b32 s{sS0}, s{sS0}, 6
            v_xor_b32 v{vOw}, s{sS0}, v{vA0}
            v_xor_b32 v{vOt}, 64, v{vOw}
            s_mul_i32 s{sStep}, s{sT}, {NS}
            s_mul_i32 s{sH0}, s{sRB}, 172
            s_add_u32 s{sH0}, s{sH0}, s{sStep}
            s_lshl_b32 s{sH0}, s{sH0}, 10
            s_add_u32 s{sH0}, s{sH0}, {WS_H}
            s_lshl_b32 s{sWd}, s{sStep}, 14
            s_lshl_b32 s{sS0}, s{sCB}, 7
            s_add_u32 s{sWd}, s{sWd}, s{sS0}""")
        a.vm.reset()
        a.lg.drain()

        def issue(s):
            if s >= NS + 16:
                return
            if s == NS:
                a(f"""s_lshr_b32 s{sWd}, s{sT}, 1
                    s_lshl_b32 s{sWd}, s{sWd}, 18
                    s_lshl_b32 s{sS0}, s{sCB}, 7
                    s_add_u32 s{sWd}, s{sWd}, s{sS0}""")
            for i in range(2):
                a(f"s_add_u32 m0, s{sRing}, {(s % 8) * 2048 + 1024 * i}")
                a(f"s_add_u32 s{sS0}, s{sWd}, {(s if s < NS else s - NS) * 16384 + 8192 * i}")
                a(f"buffer_load_dwordx4 v{vD}, {sr(sWD if s < NS else sWO, 4)}, s{sS0} offen lds")
                a.vm.issue(s)
            if s < NS:
                a(f"s_add_u32 s{sS0}, s{sH0}, {1024 * s}")
                if s >= NS - 2:
                    a(f"s_cmp_eq_u32 s{sT}, 3\ns_cselect_b32 s{sS0}, {OOB}, s{sS0}")
                a(f"s_add_u32 s{sS1}, s{sS0}, 88064")
                for tt in range(2):
                    a(f"buffer_load_dwordx4 {vr(HS + 8 * (s % 8) + 4 * tt, 4)}, v{vH}, {sr(sWS, 4)}, s{sS0 + tt} offen sc1")
                    a.vm.issue(s)

        def reads(s):
            a.vm.wait(s)
            for ct in range(2):
                for u in range(2):
                    if s < NS:
                        dst, reg = WB + 8 * (s & 1) + 4 * ct + 2 * u, (vA0, vA1)[ct]
                    else:
                        dst, reg = WO + 8 * (s - NS) + 4 * ct + 2 * u, (vOw, vOt)[ct]
                    self.dsr("ds_read_b64_tr_b16", dst, 2, reg, None, (s % 8) * 2048 + 1024 * u, (s, ct))

        for s in range(PD):
            issue(s)
        reads(0)
        for s in range(NS):
            if s + 1 < NS:
                reads(s + 1)
            for ct in range(2):
                a.lg.wait((s, ct))
                for tt in range(2):
                    d = vr(ACC + 32 * tt + 16 * ct, 16)
                    a(f"v_mfma_f32_32x32x16_bf16 {d}, {vr(WB + 8 * (s & 1) + 4 * ct, 4)}, {vr(HS + 8 * (s % 8) + 4 * tt, 4)}, {d if s else 0}")
            issue(s + PD)
        for s in range(NS, NS + 16):
            reads(s)
            a.lg.wait((s - 1, 1))
            issue(s + PD)
        a.lg.drain()
        for k in range(16):
            a(f"ds_write_b128 v{vDump}, {vr(ACC + 4 * k, 4)} offset:{1024 * k}")

    def combine(self):
        a = self.a
        vL, vP, vPh, vS, vSh, vGt, vOff = range(64, 71)
        sHd, sQt, sTT = sT0 + 4, sT0 + 5, sT0 + 6
        self.lane(vL)
        a(f"""s_and_b32 s{sHd}, s{sW}, 1
            s_lshr_b32 s{sQt}, s{sW}, 1
            s_mul_i32 s{sT0}, s{sHd}, 9216
            s_mul_i32 s{sT0 + 1}, s{sQt}, 2304
            s_add_u32 s{sT0}, s{sT0}, s{sT0 + 1}
            v_lshl_add_u32 v{vP}, v{vL}, 4, s{sT0}
            v_lshl_add_u32 v{vS}, v{vL}, 2, s{sT0}
            v_add_u32 v{vPh}, {PART_M}, v{vP}
            v_add_u32 v{vSh}, {PART_M}, v{vS}
            s_lshl_b32 s{sT0}, s{sQt}, 8
            s_add_u32 s{sT0}, s{sT0}, {GL}
            v_lshl_add_u32 v{vGt}, v{vL}, 2, s{sT0}
            v_lshlrev_b32 v{vOff}, 4, v{vL}
            s_lshl_b32 s{sTT}, s{sR}, 2
            s_add_u32 s{sTT}, s{sTT}, s{sQt}
            s_lshl_b32 s{sTT}, s{sTT}, 5
            s_lshl_b32 s{sT0}, s{sC}, 1
            s_add_u32 s{sTT}, s{sTT}, s{sT0}
            s_add_u32 s{sTT}, s{sTT}, s{sHd}
            s_waitcnt lgkmcnt(0)
            s_barrier""")
        self.stamp(10)
        a.lg.reset()
        for i in range(4):
            p, s, off = (vP, vS, 18432 * i) if i < 2 else (vPh, vSh, 18432 * (i - 2))
            a(f"""ds_read_b128 {vr(12 * i, 4)}, v{p} offset:{off}
                ds_read_b128 {vr(12 * i + 4, 4)}, v{p} offset:{off + 1024}
                ds_read_b32 v{12 * i + 8}, v{s} offset:{off + 2048}""")
        a(f"ds_read_b32 v{vGt}, v{vGt}\ns_waitcnt lgkmcnt(7)")
        for k in range(4):
            a(f"v_pk_add_f32 {vr(2 * k, 2)}, {vr(2 * k, 2)}, {vr(12 + 2 * k, 2)}")
        a("v_add_f32 v8, v8, v20\ns_waitcnt lgkmcnt(1)")
        for k in range(4):
            a(f"v_pk_add_f32 {vr(24 + 2 * k, 2)}, {vr(24 + 2 * k, 2)}, {vr(36 + 2 * k, 2)}")
        a("v_add_f32 v32, v32, v44")
        for k in range(4):
            a(f"v_pk_add_f32 {vr(2 * k, 2)}, {vr(2 * k, 2)}, {vr(24 + 2 * k, 2)}")
        lo, hi = self.cfg.get("l_lo", 2.0 ** -24), self.cfg.get("l_hi", 2.0 ** 64)
        a(f"""v_add_f32 v8, v8, v32
            v_max3_f32 v10, abs(v0), abs(v1), abs(v2)
            v_max3_f32 v11, abs(v3), abs(v4), abs(v5)
            v_add_f32 v12, v0, v1
            v_add_f32 v13, v2, v3
            v_max3_f32 v10, abs(v6), abs(v7), v10
            v_add_f32 v14, v4, v5
            v_add_f32 v15, v6, v7
            v_max_f32 v10, v10, v11
            v_cmp_o_f32 {sr(sT0, 2)}, v12, v13
            v_cmp_o_f32 {sr(sT0 + 2, 2)}, v14, v15
            v_cmp_gt_f32 vcc, {f32(2.0 ** 126)}, v10
            s_and_b64 {sr(sT0, 2)}, {sr(sT0, 2)}, {sr(sT0 + 2, 2)}
            s_and_b64 {sr(sT0, 2)}, {sr(sT0, 2)}, vcc
            v_cmp_lt_f32 vcc, {f32(lo)}, v8
            s_and_b64 {sr(sT0, 2)}, {sr(sT0, 2)}, vcc
            v_cmp_gt_f32 vcc, {f32(hi)}, v8
            s_and_b64 {sr(sT0, 2)}, {sr(sT0, 2)}, vcc
            s_cmp_eq_u64 {sr(sT0, 2)}, -1
            s_cbranch_scc0 L_fallback""")
        a.label("L_normalise")
        a(f"""v_rcp_f32 v8, v8
            s_waitcnt lgkmcnt(0)
            v_mul_f32 v8, v8, v{vGt}
            v_mov_b32 v9, v8
            s_lshl_b32 s{sT0}, s{sTT}, 10
            s_add_u32 s{sT0}, s{sT0}, {WS_O}""")
        for k in range(4):
            a(f"v_pk_mul_f32 {vr(2 * k, 2)}, {vr(2 * k, 2)}, v[8:9]")
        for k in range(4):
            a(f"v_cvt_pk_bf16_f32 v{12 + k}, v{2 * k}, v{2 * k + 1}")
        a(f"""buffer_store_dwordx4 v[12:15], v{vOff}, {sr(sWS, 4)}, s{sT0} offen sc1
            s_lshl_b32 s{sT0}, s{sTT}, 2
            s_add_u32 s{sT0}, s{sT0}, {FO}""")
        self.vOff, self.sHd, self.sQt = vOff, sHd, sQt

    def fallback(self):
        a = self.a
        O, S, M, K, V, Q, vMx, vI, vVo = 0, 16, 32, 48, 52, 60, 72, 73, 74
        sO, sN = sT0, sT0 + 1
        vOff = self.vOff
        a.label("L_fallback")
        a(f"""s_lshl_b32 s{sO}, s{self.sHd}, 12
            s_lshl_b32 s{sN}, s{self.sQt}, 10
            s_add_u32 s{sO}, s{sO}, s{sN}
            s_add_u32 s{sO}, s{sO}, {QF}
            v_add_u32 v{vI}, s{sO}, v{vOff}
            ds_read_b128 {vr(Q, 4)}, v{vI}
            v_and_b32 v{vVo}, 0xf0, v{vOff}
            v_lshrrev_b32 v{vMx}, 9, v{vOff}
            v_lshl_add_u32 v{vVo}, v{vMx}, 8, v{vVo}
            v_mov_b32 v{vMx}, 0xff800000
            s_lshl_b32 s{sO}, s{sC}, 1
            s_add_u32 s{sO}, s{sO}, s{self.sHd}
            s_lshl_b32 s{sO}, s{sO}, 17
            s_mov_b32 s{sN}, 64
            s_waitcnt lgkmcnt(0)
            v_mov_b32 v{vI}, 0xdddddddd""")
        a.label("L_fb_max")
        a(f"""buffer_load_dwordx4 {vr(K, 4)}, v{vOff}, {sr(sWS, 4)}, s{sO} offen sc1
            s_waitcnt vmcnt(0)
            v_mfma_f32_32x32x16_bf16 {vr(S, 16)}, {vr(K, 4)}, {vr(Q, 4)}, 0
            s_nop 11""")
        for k in range(8):
            a(f"v_max3_f32 v{vMx}, v{S + 2 * k}, v{S + 2 * k + 1}, v{vMx}")
        a(f"""s_add_u32 s{sO}, s{sO}, 2048
            s_sub_u32 s{sN}, s{sN}, 1
            s_cmp_lg_u32 s{sN}, 0
            s_cbranch_scc1 L_fb_max
            v_mov_b32 v{M}, v{vMx}
            s_nop 1
            v_permlane32_swap_b32 v{vMx}, v{M}
            s_nop 1
            v_max_f32 v{vMx}, v{vMx}, v{M}
            s_sub_u32 s{sO}, s{sO}, 131072
            s_mov_b32 s{sN}, 64""")
        for k in range(16):
            a(f"v_sub_f32 v{M + k}, 0, v{vMx}\nv_mov_b32 v{O + k}, 0")
        for k in range(8):
            a(f"v_mov_b32 v{V + k}, 0x3f803f80")
        a.label("L_fb_sum")
        a(f"""buffer_load_dwordx4 {vr(K, 4)}, v{vOff}, {sr(sWS, 4)}, s{sO} offen sc1
            s_mov_b64 exec, {sr(sVM, 2)}
            buffer_load_dwordx4 {vr(V, 4)}, v{vVo}, {sr(sWS, 4)}, s{sO} offen offset:1024 sc1
            buffer_load_dwordx4 {vr(V + 4, 4)}, v{vVo}, {sr(sWS, 4)}, s{sO} offen offset:1536 sc1
            s_mov_b64 exec, -1
            s_waitcnt vmcnt(0)
            v_mfma_f32_32x32x16_bf16 {vr(S, 16)}, {vr(K, 4)}, {vr(Q, 4)}, {vr(M, 16)}
            s_nop 11""")
        for k in range(16):
            a(f"v_exp_f32 v{S + k}, v{S + k}")
        a(f"""s_nop 1
            v_smfmac_f32_32x32x32_bf16 {vr(O, 16)}, {vr(V, 4)}, {vr(S, 8)}, v{vI}
            v_smfmac_f32_32x32x32_bf16 {vr(O, 16)}, {vr(V + 4, 4)}, {vr(S + 8, 8)}, v{vI}
            s_nop 7
            s_add_u32 s{sO}, s{sO}, 2048
            s_sub_u32 s{sN}, s{sN}, 1
            s_cmp_lg_u32 s{sN}, 0
            s_cbranch_scc1 L_fb_sum
            s_nop 3
            s_branch L_normalise""")

    def final(self):
        a = self.a
        OF, OWN, OTH, WO = 0, 64, 80, 128
        vL, vA, vAh, vAhh, vFl, vH, vOut, vX, vXp = range(96, 105)
        sTT, sKh = sT0 + 4, sT0 + 5
        self.lane(vL)
        a(f"""s_and_b32 s{sTT}, s{sT}, 1
            s_lshr_b32 s{sKh}, s{sT}, 1
            s_lshl_b32 s{sT0 + 1}, s{sTT}, 1
            s_add_u32 s{sT0 + 1}, s{sT0 + 1}, s{sKh}
            s_lshl_b32 s{sT0 + 1}, s{sT0 + 1}, 12
            v_lshl_add_u32 v{vA}, v{vL}, 4, s{sT0 + 1}
            v_add_u32 v{vAh}, {RING[2]}, v{vA}
            v_add_u32 v{vAhh}, {RING[3]}, v{vA}""")
        a.lg.reset()
        for i in range(4):
            reg, off = ((vA, RING[0]), (vA, RING[1]), (vAh, 0), (vAhh, 0))[i]
            dst = (OWN, 16, 32, 48)[i]
            for q in range(4):
                self.dsr("ds_read_b128", dst + 4 * q, 4, reg, None, off + 1024 * q, i)
            if i == 2:
                a.lg.wait(1)
                for k in range(8):
                    a(f"v_pk_add_f32 {vr(OWN + 2 * k, 2)}, {vr(OWN + 2 * k, 2)}, {vr(16 + 2 * k, 2)}")
        a("s_waitcnt vmcnt(0)")
        self.set_flag(f"s{sT0}", vFl)
        self.stamp(11)
        a.lg.drain()
        for b in (32, 48):
            for k in range(8):
                a(f"v_pk_add_f32 {vr(OWN + 2 * k, 2)}, {vr(OWN + 2 * k, 2)}, {vr(b + 2 * k, 2)}")
        a(f"""s_lshl_b32 s{sT0 + 1}, s{sRB}, 1
            s_add_u32 s{sT0 + 1}, s{sT0 + 1}, s{sTT}
            s_lshl_b32 s{sT0 + 2}, s{sT0 + 1}, 5
            s_lshl_b32 s{sT0 + 3}, s{sKh}, 4
            s_add_u32 s{sT0 + 2}, s{sT0 + 2}, s{sT0 + 3}
            s_lshl_b32 s{sT0}, s{sT0 + 2}, 2
            s_add_u32 s{sT0}, s{sT0}, {FO}
            s_lshl_b32 s{sT0 + 2}, s{sT0 + 2}, 10
            s_add_u32 s{sT0 + 2}, s{sT0 + 2}, {WS_O}
            v_and_b32 v{vFl}, 15, v{vL}
            v_lshlrev_b32 v{vFl}, 2, v{vFl}
            v_lshlrev_b32 v{vH}, 4, v{vL}
            v_and_b32 v{vOut}, 31, v{vL}
            v_lshlrev_b32 v{vOut}, 10, v{vOut}
            v_lshrrev_b32 v{vX}, 5, v{vL}
            v_lshl_add_u32 v{vOut}, v{vX}, 5, v{vOut}
            s_lshl_b32 s{sT0 + 1}, s{sT0 + 1}, 15
            s_lshl_b32 s{sT0 + 3}, s{sCB}, 7
            s_add_u32 s{sT0 + 1}, s{sT0 + 1}, s{sT0 + 3}
            s_lshl_b32 s{sT0 + 3}, s{sKh}, 6
            s_add_u32 s{sT0 + 1}, s{sT0 + 1}, s{sT0 + 3}
            s_lshl_b32 s{sT0 + 3}, s{sT}, 12
            v_add_u32 v{vX}, s{sT0 + 3}, v{vH}
            v_xor_b32 v{vXp}, 0x2000, v{vX}
            s_barrier""")
        self.poll(vFl, f"s{sT0}", vA)
        self.stamp(12)
        for s in range(16):
            if s % 4 == 0 and s:
                a(f"s_add_u32 s{sT0 + 2}, s{sT0 + 2}, 4096")
            a(f"buffer_load_dwordx4 {vr(OF + 4 * s, 4)}, v{vH}, {sr(sWS, 4)}, s{sT0 + 2} offen offset:{1024 * (s % 4)} sc1")
            a.vm.issue(s)
        for s in range(16):
            a.vm.wait(s)
            a(f"v_mfma_f32_32x32x16_bf16 {vr(OTH, 16)}, {vr(WO + 8 * s + 4, 4)}, {vr(OF + 4 * s, 4)}, {vr(OTH, 16) if s else 0}")
            a(f"v_mfma_f32_32x32x16_bf16 {vr(OWN, 16)}, {vr(WO + 8 * s, 4)}, {vr(OF + 4 * s, 4)}, {vr(OWN, 16)}")
        a("s_nop 10")
        for q in range(4):
            a(f"ds_write_b128 v{vX}, {vr(OTH + 4 * q, 4)} offset:{XCH + 1024 * q}")
        a("s_waitcnt lgkmcnt(0)\ns_barrier")
        for q in range(4):
            a(f"ds_read_b128 {vr(4 * q, 4)}, v{vXp} offset:{XCH + 1024 * q}")
        for q in range(4):
            a(f"s_waitcnt lgkmcnt({3 - q})")
            for k in range(2):
                r = 4 * q + 2 * k
                a(f"v_pk_add_f32 {vr(OWN + r, 2)}, {vr(OWN + r, 2)}, {vr(r, 2)}")
            for k in range(2):
                r = 4 * q + 2 * k
                a(f"v_cvt_pk_bf16_f32 v{16 + 2 * q + k}, v{OWN + r}, v{OWN + r + 1}")
            if q % 2 == 1:
                a(f"buffer_store_dwordx4 {vr(16 + 4 * (q // 2), 4)}, v{vOut}, {sr(sOUT, 4)}, s{sT0 + 1} offen offset:{16 * (q // 2)}")

    def build(self):
        a = self.a
        cfg = self.cfg
        self.prologue()
        a(f"s_setprio {cfg.get('prio_l', 1)}")
        self.loader()
        self.stamp(4)
        self.attn_setup(False)
        a("s_branch L_attn_entry")

        a.label("L_mwave")
        self.m_setup()
        a(f"s_bitcmp1_b32 s{sC}, 0\ns_cbranch_scc1 L_pass_v")
        self.pass_a(False)
        a("s_branch L_pass_q")
        a.label("L_pass_v")
        self.pass_a(True)
        a.label("L_pass_q")
        self.pass_qf()
        self.gelu()
        self.stamp(6)
        a(f"v_mov_b32 v{self.vGK}, v{self.vG}")
        self.attn_setup(True)
        a(f"s_setprio {cfg.get('prio_m2', 0)}")

        a.label("L_attn_entry")
        self.stamp(7)
        self.attn_loop()
        self.stamp(8)
        a(f"s_cmp_ge_u32 s{sW}, 4\ns_cbranch_scc1 L_lpost")
        self.write_partials(True)
        a("s_branch L_combine")

        a.label("L_lpost")
        vL, vT = 164, 165
        self.lane(vL)
        a(f"""s_lshl_b32 s{sT0}, s{sRB}, 5
            v_add_u32 v{vT}, s{sT0}, v{vL}
            s_lshl_b32 s{sT0}, s{sR}, 6
            s_add_u32 s{sT0}, s{sT0}, s{sC}
            v_and_b32 v{vT + 1}, 3, v{vL}
            v_lshl_add_u32 v{vT + 1}, v{vT + 1}, 4, s{sT0}
            v_cmp_gt_u32 vcc, 32, v{vL}
            s_nop 1
            v_cndmask_b32 v{vT}, v{vT + 1}, v{vT}, vcc
            v_lshlrev_b32 v{vT}, 2, v{vT}
            s_mov_b32 s{sT0}, {FH}""")
        self.poll(vT, f"s{sT0}", vT + 2)
        self.write_partials(False)
        self.ffn2()
        self.stamp(9)

        a.label("L_combine")
        self.combine()
        a(f"s_cmp_ge_u32 s{sW}, 4\ns_cbranch_scc1 L_final")
        a("s_waitcnt vmcnt(0)")
        self.set_flag(f"s{sT0}", 20)
        self.stamp(11)
        self.dump_stamps(True)
        a("s_endpgm")

        a.label("L_final")
        self.final()
        if cfg.get("stamps"):
            a("s_waitcnt vmcnt(0)")
            self.stamp(13)
            self.dump_stamps()
        a.label("L_end")
        a("s_endpgm")
        self.fallback()
        return a.text()


HEADER = """; Fused kernel: out = g * MHA(x) + (1 - g) * GEGLU(x),  g = sigmoid(x . gate_w)
; Kernarg (88 bytes, pointers): 0 A_x, 8 A_wqkv, 16 A_wo, 24 B_x (unused by the reference), 32 B_w_gate, 40 B_w_up,
;   48 B_w_down, 56 gate_w, 64 d_out, 72 d_debug, 80 d_ws
; 256 workgroups, one per CU; hand-offs between workgroups go through d_ws with write-through stores and flags.
; @launch grid=(256,1,1) block=(512,1,1) lds=%d
.amdgcn_target "amdgcn-amd-amdhsa--gfx950"
.text
.globl %s_kernel
.p2align 8
.type %s_kernel,@function
%s_kernel:
""" % (LDS_BYTES, NAME, NAME, NAME)

FOOTER = """.section .rodata,"a"
.p2align 6
.amdhsa_kernel %s_kernel
  .amdhsa_next_free_vgpr 256
  .amdhsa_next_free_sgpr 102
  .amdhsa_accum_offset 256
  .amdhsa_group_segment_fixed_size 0
  .amdhsa_kernarg_size 88
  .amdhsa_user_sgpr_count 2
  .amdhsa_user_sgpr_kernarg_segment_ptr 1
  .amdhsa_system_sgpr_workgroup_id_x 1
  .amdhsa_float_denorm_mode_32 3
.end_amdhsa_kernel
""" % NAME

DEFAULT = dict(nL=16)


def generate(**kw):
    cfg = dict(DEFAULT)
    cfg.update(kw)
    body = Gen(cfg).build()
    msgs = lint(body)
    return HEADER + body + FOOTER, msgs


if __name__ == "__main__":
    out = sys.argv[1]
    kw = {}
    for arg in sys.argv[2:]:
        k, v = arg.split("=")
        kw[k] = float(v) if "." in v or "e" in v else int(v)
    text, msgs = generate(**kw)
    for m in msgs:
        print("LINT:", m)
    open(out, "w").write(text)
    print("wrote", out, len(text), "bytes,", text.count("\n"), "lines")
```

```python
import struct
import sys

from asmlib import Asm, lint, sr, vr

NAME = "gated_mix__softmax_full_mha__glu_gated_geglu__prompt"


def f32(x):
    return "0x%08x" % struct.unpack("<I", struct.pack("<f", x))[0]


LOG2E = 1.4426950408889634

WS_KV, WS_O, WS_H, WS_FLAG, WS_STAMP = 0x000000, 0x400000, 0x600000, 0xC00000, 0xD00000
FKV, FH, FO = WS_FLAG, WS_FLAG + 0x1000, WS_FLAG + 0x2000
OOB = 0x20000000

SLOT_PHYS = {2: 0, 3: 24576, 4: 49152, 0: 73728, 1: 98304}
QW, QF = 122880, 155648
GWL = QF
PART_L, PART_M, GL = 0, 98304, 135168
RING = [36864, 53248, 69632, 136192]
XCH = 0
LDS_BYTES = 163840

sX, sWQ, sWO, sWG, sWU, sWD, sGW, sOUT, sDBG, sWS = 4, 8, 12, 16, 20, 24, 28, 32, 36, 40
sC, sR, sW, sT, sROT, sRB, sCB = 44, 45, 46, 47, 48, 49, 50
sVM = 52
sT0 = 54
sSPIN = 70
sSTAMP = 72


def slot(n):
    return SLOT_PHYS[n % 5]


class Gen:
    def __init__(self, cfg):
        self.cfg = cfg
        self.a = Asm()
        self.uid = 0

    def lab(self, base):
        self.uid += 1
        return f"L_{base}_{self.uid}"

    def clock(self):
        return "s_memtime" if self.cfg.get("stamps") == 2 else "s_memrealtime"

    def pad(self):
        a = self.a
        n = self.cfg["pad"]
        top, done = self.lab("pad"), self.lab("paddone")
        a(f"""s_waitcnt vmcnt(0) lgkmcnt(0)
            s_cmp_eq_u32 s{sSTAMP + 2 * n}, 0
            s_cbranch_scc1 {done}""")
        a.label(top)
        a(f"""s_sleep 4
            s_memrealtime {sr(sT0, 2)}
            s_waitcnt lgkmcnt(0)
            s_sub_u32 s{sT0}, s{sT0}, s{sSTAMP + 2 * n}
            s_cmp_lt_u32 s{sT0}, 6000
            s_cbranch_scc1 {top}""")
        a.label(done)

    def stamp(self, n):
        if self.cfg.get("stamps") and self.cfg.get("pad", n) == n:
            a = self.a
            a(f"{self.clock()} {sr(sSTAMP + 2 * n, 2)}")
            a.lg.drain()

    def dump_stamps(self, is_m=False):
        if not self.cfg.get("stamps"):
            return
        if "pad" in self.cfg:
            if is_m:
                self.a("s_barrier\ns_barrier")
            self.pad()
            return
        a = self.a
        a(f"""s_lshl_b32 s{sT0}, s2, 3
            s_add_u32 s{sT0}, s{sT0}, s{sW}
            s_lshl_b32 s{sT0}, s{sT0}, 6
            s_add_u32 s{sT0}, s{sT0}, {WS_STAMP}
            s_mov_b64 exec, 1""")
        for n in range(14):
            a(f"v_mov_b32 v0, s{sSTAMP + 2 * n}")
            a(f"buffer_store_dword v0, off, {sr(sWS, 4)}, s{sT0} offset:{4 * n}")
        a("s_mov_b64 exec, -1")

    def lane(self, v):
        self.a(f"""v_mbcnt_lo_u32_b32 v{v}, -1, 0
            v_mbcnt_hi_u32_b32 v{v}, -1, v{v}""")

    def dsr(self, op, dst, n, lo, hi, imm, tag):
        reg = lo
        if imm >= 65536:
            reg, imm = hi, imm - 65536
        assert 0 <= imm < 65536 and reg is not None
        self.a(f"{op} {vr(dst, n)}, v{reg} offset:{imm}")
        self.a.lg.issue(tag)

    def poll(self, voff, soff, tmp, srd=sWS):
        a = self.a
        top, done = self.lab("poll"), self.lab("pdone")
        a(f"s_mov_b32 s{sSPIN}, 100000")
        a.label(top)
        a(f"""buffer_load_dword v{tmp}, v{voff}, {sr(srd, 4)}, {soff} offen sc1
            s_waitcnt vmcnt(0)
            v_cmp_eq_u32 vcc, 0, v{tmp}
            s_cbranch_vccz {done}
            s_sleep 1
            s_sub_u32 s{sSPIN}, s{sSPIN}, 1
            s_cmp_lg_u32 s{sSPIN}, 0
            s_cbranch_scc1 {top}""")
        a.label(done)
        a.vm.reset()

    def set_flag(self, soff, tmp, srd=sWS):
        a = self.a
        a(f"""s_mov_b64 exec, 1
            v_mov_b32 v{tmp}, 1
            buffer_store_dword v{tmp}, off, {sr(srd, 4)}, {soff} sc1
            s_mov_b64 exec, -1""")
        a.vm.issue("flag")

    def rot_code(self):
        if self.cfg.get("rot", 1) != 2:
            return ""
        return f"""s_and_b32 s{sROT}, s{sT0}, 1
            s_lshl_b32 s{sROT}, s{sROT}, 2
            s_and_b32 s{sT0 + 2}, s{sT0}, 6
            s_add_u32 s{sROT}, s{sROT}, s{sT0 + 2}
            s_and_b32 s{sROT}, s{sROT}, 7"""

    def prologue(self):
        a = self.a
        a("s_cmp_ge_u32 s2, 256\ns_cbranch_scc1 L_end")
        if self.cfg.get("stamps"):
            for n in range(14):
                a(f"s_mov_b32 s{sSTAMP + 2 * n}, 0")
            a(f"{self.clock()} {sr(sSTAMP, 2)}")
        for reg, off in ((sX, 0), (sWQ, 8), (sGW, 56), (sWS, 80), (sDBG, 72), (sWG, 32), (sWU, 40), (sWD, 48), (sWO, 16), (sOUT, 64)):
            a(f"s_load_dwordx2 {sr(reg, 2)}, s[0:1], {off}")
        a(f"""v_lshrrev_b32 v1, 6, v0
            s_and_b32 s{sT0}, s2, 7
            v_readfirstlane_b32 s{sW}, v1
            s_lshr_b32 s{sT0 + 1}, s2, 3
            s_and_b32 s{sR}, s{sT0}, 1
            s_lshl_b32 s{sR}, s{sR}, 3
            s_and_b32 s{sT0 + 2}, s{sT0 + 1}, 7
            s_add_u32 s{sR}, s{sR}, s{sT0 + 2}
            s_lshr_b32 s{sC}, s{sT0}, 1
            s_lshl_b32 s{sC}, s{sC}, 2
            s_lshr_b32 s{sT0 + 2}, s{sT0 + 1}, 3
            s_add_u32 s{sC}, s{sC}, s{sT0 + 2}
            s_mul_i32 s{sROT}, s{sC}, {self.cfg.get('rotc', 2)}
            s_add_u32 s{sROT}, s{sROT}, s{sR}
            s_and_b32 s{sROT}, s{sROT}, {7 if self.cfg.get('rot', 1) else 0}
            {self.rot_code()}
            s_lshl_b32 s{sRB}, s{sT0}, 2
            s_and_b32 s{sT0 + 2}, s{sT0 + 1}, 3
            s_add_u32 s{sRB}, s{sRB}, s{sT0 + 2}
            s_lshr_b32 s{sCB}, s{sT0 + 1}, 2
            s_and_b32 s{sT}, s{sW}, 3
            s_mov_b32 s{sVM}, 0x0000ffff
            s_mov_b32 s{sVM + 1}, 0x0000ffff""")
        for reg, size in ((sX, 2097152), (sWQ, 1572864), (sWO, 524288), (sWG, 1409024), (sWU, 1409024), (sWD, 1409024),
                          (sGW, 1024), (sOUT, 2097152), (sDBG, 256), (sWS, 268435456)):
            a(f"s_mov_b32 s{reg + 2}, {size}\ns_mov_b32 s{reg + 3}, 0x00020000")
        a(f"""v_and_b32 v0, 63, v0
            s_cmp_ge_u32 s{sW}, 4
            s_cbranch_scc0 L_mwave""")

    def loader(self):
        a = self.a
        a.vm.reset()
        vX0, vX1, vKV, vQ, vF, vGW = 8, 9, 10, 11, 12, 15
        sXB, sKB, sQB, sFB, sLx, sLk, sLq, sLf, sCh, sO = range(sT0, sT0 + 10)
        a(f"""v_lshrrev_b32 v1, 3, v0
            v_and_b32 v2, 7, v0
            v_lshrrev_b32 v3, 4, v0
            s_lshl_b32 s{sO}, s{sT}, 5
            v_add_u32 v4, s{sO}, v1
            v_xor_b32 v5, v2, v3
            v_lshlrev_b32 v5, 4, v5
            v_lshl_add_u32 v{vX0}, v4, 10, v5
            v_xor_b32 v{vX1}, 64, v{vX0}
            v_add_u32 v{vX1}, 8192, v{vX1}
            s_lshl_b32 s{sO}, s{sT}, 4
            v_add_u32 v4, s{sO}, v1
            v_mul_u32_u24 v4, 3072, v4
            v_and_b32 v5, 1, v3
            v_lshlrev_b32 v5, 2, v5
            v_xor_b32 v5, v2, v5
            v_lshl_add_u32 v{vKV}, v5, 4, v4
            s_lshl_b32 s{sCh}, s{sROT}, 7
            v_lshl_add_u32 v{vGW}, v0, 4, s{sCh}
            v_and_b32 v{vGW}, 0x3ff, v{vGW}
            s_lshl_b32 s{sXB}, s{sR}, 17
            s_and_b32 s{sKB}, s{sC}, 1
            s_add_u32 s{sKB}, s{sKB}, 1
            s_lshl_b32 s{sKB}, s{sKB}, 10
            s_lshr_b32 s{sCh}, s{sC}, 1
            s_lshl_b32 s{sCh}, s{sCh}, 7
            s_add_u32 s{sKB}, s{sKB}, s{sCh}
            s_lshl_b32 s{sLx}, s{sT}, 12
            s_lshl_b32 s{sLk}, s{sT}, 11
            s_waitcnt lgkmcnt(0)""")
        self.stamp(1)

        def issue_gw():
            a(f"""s_mov_b32 m0, {GWL}
                s_nop 0
                buffer_load_dwordx4 v{vGW}, {sr(sGW, 4)}, 0 offen lds""")
            a.vm.issue(("A", 0))

        if self.cfg.get("gwfirst", 1):
            issue_gw()

        def chunk(i):
            a(f"s_add_u32 s{sCh}, s{sROT}, {i}\ns_and_b32 s{sCh}, s{sCh}, 7")

        def issueA(i):
            B = slot(i)
            chunk(i)
            a(f"s_lshl_b32 s{sO}, s{sCh}, 7\ns_add_u32 s{sO}, s{sO}, s{sXB}")
            for k in range(4):
                a(f"s_add_u32 m0, s{sLx}, {B + 1024 * k}")
                a(f"s_add_u32 s{sO}, s{sO}, 16384" if k == 2 else "s_nop 0")
                a(f"buffer_load_dwordx4 v{vX0 if k % 2 == 0 else vX1}, {sr(sX, 4)}, s{sO} offen lds")
                a.vm.issue(("A", i))
            a(f"s_mul_i32 s{sO}, s{sCh}, 196608")
            for k in range(2):
                a(f"s_add_u32 m0, s{sLk}, {B + 16384 + 1024 * k}")
                a(f"s_add_u32 s{sO}, s{sO}, {'s%d' % sKB if k == 0 else 24576}")
                a(f"buffer_load_dwordx4 v{vKV}, {sr(sWQ, 4)}, s{sO} offen lds")
                a.vm.issue(("A", i))

        def issueQ(half):
            for i in range(4 * half, 4 * half + 4):
                chunk(i)
                a(f"""s_mul_i32 s{sO}, s{sCh}, 196608
                    s_add_u32 m0, s{sLq}, {QW + 4096 * i}
                    s_add_u32 s{sO}, s{sO}, s{sQB}
                    buffer_load_dwordx4 v{vQ}, {sr(sWQ, 4)}, s{sO} offen lds""")
                a.vm.issue(("Q", half))

        def issueF(i):
            B = slot(8 + i)
            chunk(i)
            a(f"s_mul_i32 s{sO}, s{sCh}, 176128\ns_add_u32 s{sO}, s{sO}, s{sFB}")
            for m in range(2):
                for k in range(3):
                    a(f"s_add_u32 m0, s{sLf}, {B + 12288 * m + 1024 * k}\ns_nop 0")
                    a(f"buffer_load_dwordx4 v{vF + k}, {sr(sWG if m == 0 else sWU, 4)}, s{sO} offen lds")
                    a.vm.issue(("F", i))

        def setup2():
            a(f"""v_lshrrev_b32 v4, 2, v0
                s_lshl_b32 s{sO}, s{sT}, 4
                v_add_u32 v4, s{sO}, v4
                v_mul_u32_u24 v4, 3072, v4
                v_and_b32 v5, 3, v0
                v_lshl_add_u32 v{vQ}, v5, 4, v4
                s_lshl_b32 s{sQB}, s{sC}, 6
                s_mul_i32 s{sFB}, s{sC}, 192
                s_lshl_b32 s{sLq}, s{sT}, 10
                s_mul_i32 s{sLf}, s{sT}, 3072""")
            for k in range(3):
                a(f"""v_add_u32 v4, {64 * k}, v0
                    v_mul_u32_u24 v5, 2731, v4
                    v_lshrrev_b32 v5, 15, v5
                    v_mul_u32_u24 v6, 12, v5
                    v_sub_u32 v6, v4, v6
                    v_add_u32 v5, s{sO}, v5
                    v_mul_u32_u24 v5, 2752, v5
                    v_lshl_add_u32 v{vF + k}, v6, 4, v5""")

        units = [("A", i) for i in range(8)] + [("Q", 0), ("Q", 1)] + [("F", i) for i in range(8)]
        bars = [("A", i) for i in range(8)] + [("Q", 0), ("Q", 1)] + [("F", i) for i in range(4)] + [("F", 7)]
        free_after = {("A", 5): 2, ("A", 6): 3, ("A", 7): 4, ("F", 0): 5, ("F", 1): 6, ("F", 2): 7, ("F", 3): 8, ("F", 4): 9,
                      ("F", 5): 12, ("F", 6): 13, ("F", 7): 14}
        la = self.cfg.get("la", [1] * 9 + [2, 2, 3, 4, 4, 4])
        if isinstance(la, int):
            la = [la] * 9 + [max(la, x) for x in (2, 2, 3, 4, 4, 4)]
        nxt = 0
        for b, tag in enumerate(bars):
            while nxt < len(units) and nxt <= b + la[b] and free_after.get(units[nxt], 0) <= b:
                kind, i = units[nxt]
                {"A": issueA, "Q": issueQ, "F": issueF}[kind](i)
                nxt += 1
                if nxt == 1:
                    if not self.cfg.get("gwfirst", 1):
                        issue_gw()
                    self.stamp(2)
            if b == 0:
                setup2()
            assert units.index(tag) < nxt, (b, tag)
            a.vm.wait(tag)
            if b in (0, 2, 7):
                self.stamp({0: 3, 2: 5, 7: 6}[b])
            a("s_barrier")
        assert nxt == len(units)

    XR, ACC, WS_ = 128, 32, 8
    vFlo, vFhi, vG, vA = 0, 1, 2, 3

    def m_setup(self):
        a = self.a
        self.vXA, self.vXAh, self.vWk, self.vWkh, self.vGWa, self.vQa = 80, 84, 88, 90, 92, 4
        self.vST, self.vZ, self.vGB, self.vGo, self.vQFa = 93, 96, 100, 94, 5
        a(f"""s_setprio {self.cfg.get('prio_m1', 2)}
            v_and_b32 v16, 31, v0
            v_lshrrev_b32 v17, 5, v0
            v_bfe_u32 v18, v0, 1, 3
            v_xor_b32 v18, v18, v17
            s_lshl_b32 s{sT0}, s{sT}, 12
            v_lshlrev_b32 v19, 7, v16
            v_lshl_add_u32 v19, v18, 4, v19
            v_add_u32 v{self.vXA}, s{sT0}, v19""")
        for s in range(1, 4):
            a(f"v_xor_b32 v{self.vXA + s}, {32 * s}, v{self.vXA}")
        for s in range(4):
            a(f"v_add_u32 v{self.vXAh + s}, 0x10000, v{self.vXA + s}")
        a(f"""v_bfe_u32 v18, v0, 2, 2
            v_lshl_add_u32 v18, v17, 3, v18
            v_bfe_u32 v19, v0, 4, 1
            v_and_b32 v20, 3, v0
            v_lshlrev_b32 v20, 3, v20
            v_lshl_add_u32 v20, v19, 5, v20
            v_bfe_u32 v21, v0, 3, 1
            v_lshl_add_u32 v22, v18, 7, v20
            v_lshl_add_u32 v{self.vWk}, v21, 6, v22
            v_xor_b32 v{self.vWk + 1}, 64, v{self.vWk}
            v_add_u32 v{self.vWkh}, 0x10000, v{self.vWk}
            v_add_u32 v{self.vWkh + 1}, 0x10000, v{self.vWk + 1}
            v_lshl_add_u32 v{self.vQa}, v18, 6, v20
            v_add_u32 v{self.vQa}, {QW}, v{self.vQa}
            v_lshlrev_b32 v{self.vGWa}, 4, v17
            v_add_u32 v{self.vGWa}, {GWL}, v{self.vGWa}
            s_lshl_b32 s{sT0}, s{sT}, 10
            s_add_u32 s{sT0}, s{sT0}, {QF}
            v_lshl_add_u32 v{self.vQFa}, v0, 4, s{sT0}
            v_mul_u32_u24 v22, 192, v18""")
        for i in range(4):
            a(f"v_mov_b32 v{self.vZ + i}, 0")
        a(f"""v_and_b32 v23, 0x33, v0
            v_bfe_u32 v25, v0, 2, 1
            v_lshl_add_u32 v23, v25, 3, v23
            v_lshl_add_u32 v23, v21, 2, v23
            v_lshlrev_b32 v23, 4, v23
            v_and_b32 v24, 15, v0
            v_lshlrev_b32 v24, 4, v24
            v_lshl_add_u32 v24, v17, 8, v24
            v_lshl_add_u32 v24, v19, 17, v24
            v_add_u32 v24, 1024, v24
            v_lshlrev_b32 v26, 4, v0
            v_add_u32 v{self.vFlo}, v22, v20
            v_add_u32 v{self.vFhi}, 0x10000, v{self.vFlo}
            s_waitcnt lgkmcnt(0)""")
        skip = self.lab("noreset")
        a(f"""s_or_b32 s{sT0}, s2, s{sW}
            s_cmp_lg_u32 s{sT0}, 0
            s_cbranch_scc1 {skip}""")
        for i in range(16):
            a(f"s_mov_b32 s{sT0}, {WS_FLAG + 1024 * i}")
            a(f"buffer_store_dwordx4 {vr(self.vZ, 4)}, v26, {sr(sWS, 4)}, s{sT0} offen sc1")
        a.label(skip)

    def pass_a(self, isv):
        a = self.a
        a.lg.reset()
        a.vm.reset()
        a(f"v_mov_b32 v{self.vST}, v{24 if isv else 23}")
        XR, ACC, W = self.XR, self.ACC, self.WS_

        def reads(g):
            i, s = divmod(g, 4)
            B = slot(i)
            self.dsr("ds_read_b128", XR + 4 * g, 4, self.vXA + s, self.vXAh + s, B, ("x", g))
            for ct in range(2):
                for u in range(2):
                    self.dsr("ds_read_b64_tr_b16", W + 8 * (g % 3) + 4 * ct + 2 * u, 2, self.vWk + ct, self.vWkh + ct,
                             B + 16384 + (16 * s + 4 * u) * 128, ("w", g, ct))
            self.dsr("ds_read_b128", self.vGB + 4 * (g % 3), 4, self.vGWa, None, 32 * g, ("g", g))

        def comp(g):
            for ct in range(2):
                a.lg.wait(("x", g), ("w", g, ct))
                wf, xf = vr(W + 8 * (g % 3) + 4 * ct, 4), vr(XR + 4 * g, 4)
                d = vr(ACC + 16 * ct, 16)
                A, Bm = (xf, wf) if isv else (wf, xf)
                a(f"v_mfma_f32_32x32x16_bf16 {d}, {A}, {Bm}, {d if g else 0}")
            a.lg.wait(("g", g))
            for k in range(4):
                a(f"v_dot2c_f32_bf16 v{self.vZ + k}, v{XR + 4 * g + k}, v{self.vGB + 4 * (g % 3) + k}")

        for i in range(8):
            g0 = 4 * i
            if i:
                a.lg.drain()
            a("s_barrier")
            if i == 0:
                self.stamp(1)
            reads(g0)
            reads(g0 + 1)
            if i:
                comp(g0 - 1)
            if i == 1:
                skip = self.lab("nogo")
                a(f"""s_or_b32 s{sT0}, s2, s{sW}
                    s_cmp_lg_u32 s{sT0}, 0
                    s_cbranch_scc1 {skip}
                    s_waitcnt vmcnt(0)""")
                self.set_flag("0", self.vGo, sDBG)
                a.label(skip)
            if i == 5:
                a(f"buffer_load_dword v{self.vGo}, off, {sr(sDBG, 4)}, 0 sc1")
            comp(g0)
            reads(g0 + 2)
            comp(g0 + 1)
            reads(g0 + 3)
            comp(g0 + 2)
        comp(31)
        ok = self.lab("go")
        a(f"""s_waitcnt vmcnt(0)
            v_cmp_eq_u32 vcc, 0, v{self.vGo}
            s_cbranch_vccz {ok}
            v_mov_b32 v95, 0""")
        self.poll(95, "0", self.vGo, sDBG)
        a.label(ok)
        a.vm.reset()
        sB = sT0
        a(f"""s_lshr_b32 s{sB}, s{sC}, 1
            s_lshl_b32 s{sB}, s{sB}, 19
            s_lshl_b32 s{sB + 1}, s{sR}, 2
            s_add_u32 s{sB + 1}, s{sB + 1}, s{sT}
            s_lshl_b32 s{sB + 1}, s{sB + 1}, 11
            s_add_u32 s{sB}, s{sB}, s{sB + 1}
            s_nop 1""")
        for ct in range(2):
            for q in range(2):
                d = 112 + 8 * ct + 4 * q
                for k in range(4):
                    s = ACC + 16 * ct + 8 * q + 2 * k
                    a(f"v_cvt_pk_bf16_f32 v{d + k}, v{s}, v{s + 1}")
                if isv:
                    a(f"buffer_store_dwordx4 {vr(d, 4)}, v{self.vST}, {sr(sWS, 4)}, s{sB} offen offset:{512 * q} sc1")
                    if q == 1 and ct == 0:
                        a(f"s_add_u32 s{sB}, s{sB}, 262144")
                else:
                    a(f"buffer_store_dwordx4 {vr(d, 4)}, v{self.vST}, {sr(sWS, 4)}, s{sB} offen sc1")
                    a(f"s_add_u32 s{sB}, s{sB}, 131072")
        self.stamp(2)

    def pass_qf(self):
        a = self.a
        XR, ACC, W = self.XR, self.ACC, self.WS_
        QACC = ACC + 80
        a.lg.reset()
        jobs = [("q", g, 0) for g in range(32)] + [("f", g, t) for g in range(32) for t in range(6)]

        def reads(j):
            kind, g, t = jobs[j]
            i, s = divmod(g, 4)
            for u in range(2):
                dst = W + 4 * (j % 6) + 2 * u
                if kind == "q":
                    self.dsr("ds_read_b64_tr_b16", dst, 2, self.vQa, None, (16 * g + 4 * u) * 64, j)
                else:
                    self.dsr("ds_read_b64_tr_b16", dst, 2, self.vFlo, self.vFhi,
                             slot(8 + i) + 12288 * (t & 1) + (16 * s + 4 * u) * 192 + 64 * (t >> 1), j)

        def gate():
            z = self.vZ
            a(f"""v_add_f32 v{z}, v{z}, v{z + 1}
                v_add_f32 v{z + 2}, v{z + 2}, v{z + 3}
                v_add_f32 v{z}, v{z}, v{z + 2}
                v_mov_b32 v{z + 1}, v{z}
                s_nop 1
                v_permlane32_swap_b32 v{z}, v{z + 1}
                s_nop 1
                v_add_f32 v{z}, v{z}, v{z + 1}
                v_mul_f32 v{z}, {f32(LOG2E)}, v{z}
                v_exp_f32 v{z + 1}, v{z}
                v_exp_f32 v{z + 2}, -v{z}
                v_add_f32 v{z + 1}, 1.0, v{z + 1}
                v_add_f32 v{z + 2}, 1.0, v{z + 2}
                v_min_f32 v{self.vA}, {f32(2.0 ** 100)}, v{z + 1}
                v_rcp_f32 v{self.vG}, v{z + 2}""")

        def q_epilogue():
            a(f"v_mov_b32 v6, {f32(0.25 * LOG2E)}\nv_mov_b32 v7, {f32(0.25 * LOG2E)}")
            for k in range(8):
                a(f"v_pk_mul_f32 {vr(QACC + 2 * k, 2)}, {vr(QACC + 2 * k, 2)}, v[6:7]")
            for k in range(8):
                a(f"v_cvt_pk_bf16_f32 v{QACC + k}, v{QACC + 2 * k}, v{QACC + 2 * k + 1}")
            for hd in range(2):
                a(f"ds_write_b128 v{self.vQFa}, {vr(QACC + 4 * hd, 4)} offset:{4096 * hd}")
                a.lg.issue("qf")

        bar_at = {32 + 24 * i - 4: i for i in range(5)}
        bar_at[16 - 4] = -1
        a("s_barrier")
        for j in range(6):
            reads(j)
        gate()
        nxt = 6
        for j in range(len(jobs)):
            kind, g, t = jobs[j]
            if j in bar_at:
                a.lg.drain()
                a("s_barrier")
                if bar_at[j] == 4:
                    self.stamp(4)
                while nxt < j + 6:
                    reads(nxt)
                    nxt += 1
            if j == 32 + 5:
                q_epilogue()
            a.lg.wait(j)
            d = vr(QACC if kind == "q" else ACC + 16 * t, 16)
            a(f"v_mfma_f32_32x32x16_bf16 {d}, {vr(W + 4 * (j % 6), 4)}, {vr(XR + 4 * g, 4)}, {d if g else 0}")
            if j == self.cfg.get("kvflag_at", 32 + 6):
                a(f"""s_lshl_b32 s{sT0}, s{sC}, 6
                    s_lshl_b32 s{sT0 + 1}, s{sR}, 2
                    s_add_u32 s{sT0}, s{sT0}, s{sT0 + 1}
                    s_add_u32 s{sT0}, s{sT0}, s{sT}
                    s_lshl_b32 s{sT0}, s{sT0}, 2
                    s_add_u32 s{sT0}, s{sT0}, {FKV}
                    s_waitcnt vmcnt(0)""")
                self.set_flag(f"s{sT0}", 6)
                self.stamp(3)
            if nxt < len(jobs) and nxt == j + 6 and (j + 1) not in bar_at and (j + 2) not in bar_at:
                reads(nxt)
                nxt += 1
        assert nxt == len(jobs)
        self.stamp(5)

    def gelu(self):
        a = self.a
        ACC = self.ACC
        cA, c0, c1, T, E, OUT, vOff = 128, 130, 132, 136, 152, 168, 134
        k0 = -2.0 * 0.7978845608028654 * LOG2E
        self.lane(vOff)
        a(f"""v_mov_b32 v{cA}, v{self.vA}
            v_mov_b32 v{cA + 1}, v{self.vA}
            v_mov_b32 v{c0}, {f32(k0)}
            v_mov_b32 v{c0 + 1}, {f32(k0)}
            v_mov_b32 v{c1}, {f32(k0 * 0.044715)}
            v_mov_b32 v{c1 + 1}, {f32(k0 * 0.044715)}
            v_lshlrev_b32 v{vOff}, 4, v{vOff}
            s_lshl_b32 s{sT0}, s{sR}, 2
            s_add_u32 s{sT0}, s{sT0}, s{sT}
            s_mul_i32 s{sT0}, s{sT0}, 86
            s_mul_i32 s{sT0 + 1}, s{sC}, 6
            s_add_u32 s{sT0}, s{sT0}, s{sT0 + 1}
            s_lshl_b32 s{sT0}, s{sT0}, 10
            s_add_u32 s{sT0}, s{sT0}, {WS_H}""")
        for j in range(3):
            G, U = ACC + 32 * j, ACC + 32 * j + 16
            p = lambda b, k: vr(b + 2 * k, 2)
            for k in range(8):
                a(f"v_pk_mul_f32 {p(T, k)}, {p(G, k)}, {p(G, k)}")
            for k in range(8):
                a(f"v_pk_fma_f32 {p(T, k)}, {p(T, k)}, {vr(c1, 2)}, {vr(c0, 2)}")
            for k in range(8):
                a(f"v_pk_mul_f32 {p(T, k)}, {p(T, k)}, {p(G, k)}")
            for k in range(16):
                a(f"v_exp_f32 v{T + k}, v{T + k}")
            for k in range(8):
                a(f"v_pk_mul_f32 {p(G, k)}, {p(G, k)}, {p(U, k)}")
            for k in range(8):
                a(f"v_pk_fma_f32 {p(T, k)}, {p(T, k)}, {vr(cA, 2)}, {vr(cA, 2)}")
            for k in range(16):
                a(f"v_rcp_f32 v{T + k}, v{T + k}")
            a(f"""s_cmp_lt_u32 s{sT0 + 1}, {86 - 2 * j}
                s_cselect_b32 s{sT0 + 2}, s{sT0}, {OOB}""")
            for k in range(8):
                a(f"v_pk_mul_f32 {p(G, k)}, {p(G, k)}, {p(T, k)}")
            for q in range(2):
                d = OUT + 8 * j + 4 * q
                for k in range(4):
                    a(f"v_cvt_pk_bf16_f32 v{d + k}, v{G + 8 * q + 2 * k}, v{G + 8 * q + 2 * k + 1}")
                a(f"buffer_store_dwordx4 {vr(d, 4)}, v{vOff}, {sr(sWS, 4)}, s{sT0 + 2} offen offset:{1024 * q} sc1")
            a(f"s_add_u32 s{sT0}, s{sT0}, 2048")

    O_, S_, Q_, KV_, vIDX, vKo, vVo, vGK = 0, 64, 96, 112, 160, 161, 162, 163

    def attn_setup(self, is_m):
        a = self.a
        nL, nM = self.cfg["nL"], 32 - self.cfg["nL"]
        n = nM if is_m else nL
        sK0, sHd, sOff, sEnd, sCnt, sLd = range(sT0 + 4, sT0 + 10)
        self.sOff, self.sEnd, self.sCnt, self.sLd = sOff, sEnd, sCnt, sLd
        vL, vT = 164, 165
        self.lane(vL)
        a(f"""s_lshr_b32 s{sK0}, s{sT}, 1
            s_mul_i32 s{sK0}, s{sK0}, {n}
            s_add_u32 s{sK0}, s{sK0}, {2 * nL if is_m else 0}
            s_and_b32 s{sHd}, s{sW}, 1
            v_and_b32 v{vT}, 31, v{vL}
            v_min_u32 v{vT}, {n - 1}, v{vT}
            v_add_u32 v{vT}, s{sK0}, v{vT}
            v_lshrrev_b32 v{vT + 1}, 5, v{vL}
            v_lshl_add_u32 v{vT}, v{vT + 1}, 6, v{vT}
            v_lshlrev_b32 v{vT}, 2, v{vT}
            s_lshr_b32 s{sT0}, s{sC}, 1
            s_lshl_b32 s{sT0}, s{sT0}, 9
            s_add_u32 s{sT0}, s{sT0}, {FKV}""")
        self.poll(vT, f"s{sT0}", vT + 2)
        if is_m:
            a(f"""s_lshl_b32 s{sT0}, s{sR}, 2
                s_add_u32 s{sT0}, s{sT0}, s{sT}
                s_lshl_b32 s{sT0}, s{sT0}, 4
                s_add_u32 s{sT0}, s{sT0}, s{sC}
                s_lshl_b32 s{sT0}, s{sT0}, 2
                s_add_u32 s{sT0}, s{sT0}, {FH}""")
            self.set_flag(f"s{sT0}", vT + 2)
            if self.cfg.get("pf", 1):
                a(f"""s_lshr_b32 s{sT0}, s2, 3
                    s_lshl_b32 s{sT0}, s{sT0}, 2
                    s_add_u32 s{sT0}, s{sT0}, s{sT}
                    v_lshlrev_b32 v{vT + 3}, 7, v{vL}
                    s_mul_i32 s{sT0 + 1}, s{sT0}, 11008
                    s_add_u32 s{sT0 + 2}, s{sT0 + 1}, 8192
                    s_lshl_b32 s{sT0}, s{sT0}, 12
                    buffer_load_dword v{vT + 4}, v{vT + 3}, {sr(sWD, 4)}, s{sT0 + 1} offen
                    s_mov_b64 exec, 0x3fffff
                    buffer_load_dword v{vT + 4}, v{vT + 3}, {sr(sWD, 4)}, s{sT0 + 2} offen
                    s_mov_b32 exec_lo, -1
                    buffer_load_dword v{vT + 4}, v{vT + 3}, {sr(sWO, 4)}, s{sT0} offen
                    s_mov_b64 exec, -1""")
        a(f"""v_and_b32 v{vT + 2}, 0x1b, v{vL}
            v_cmp_eq_u32 vcc, 16, v{vT + 2}
            v_mov_b32 v{vT + 2}, 0x3f803f80
            s_nop 0
            v_cndmask_b32 v{vT + 2}, 0, v{vT + 2}, vcc""")
        for st in range(4):
            for k in range(8):
                a(f"v_mov_b32 v{self.KV_ + 12 * st + 4 + k}, v{vT + 2}")
        a(f"""s_lshl_b32 s{sOff}, s{sC}, 1
            s_add_u32 s{sOff}, s{sOff}, s{sHd}
            s_lshl_b32 s{sOff}, s{sOff}, 17
            s_lshl_b32 s{sT0}, s{sK0}, 11
            s_add_u32 s{sOff}, s{sOff}, s{sT0}
            s_add_u32 s{sEnd}, s{sOff}, {2048 * n}
            s_mov_b32 s{sCnt}, {n // 4}
            v_lshlrev_b32 v{self.vKo}, 4, v{vL}
            v_and_b32 v{self.vVo}, 15, v{vL}
            v_lshlrev_b32 v{self.vVo}, 4, v{self.vVo}
            v_lshl_add_u32 v{self.vVo}, v{vT + 1}, 8, v{self.vVo}
            s_lshl_b32 s{sT0}, s{sHd}, 12
            s_add_u32 s{sT0}, s{sT0}, {QF}
            v_add_u32 v{vT}, s{sT0}, v{self.vKo}""")
        for st in range(3):
            b = self.KV_ + 12 * st
            a(f"""buffer_load_dwordx4 {vr(b, 4)}, v{self.vKo}, {sr(sWS, 4)}, s{sOff} offen sc1
                s_mov_b64 exec, {sr(sVM, 2)}
                buffer_load_dwordx4 {vr(b + 4, 4)}, v{self.vVo}, {sr(sWS, 4)}, s{sOff} offen offset:1024 sc1
                buffer_load_dwordx4 {vr(b + 8, 4)}, v{self.vVo}, {sr(sWS, 4)}, s{sOff} offen offset:1536 sc1
                s_mov_b64 exec, -1
                s_add_u32 s{sOff}, s{sOff}, 2048""")
        for q in range(4):
            a(f"ds_read_b128 {vr(self.Q_ + 4 * q, 4)}, v{vT} offset:{1024 * q}")
        a(f"v_mov_b32 v{self.vIDX}, 0xdddddddd")
        for k in range(64):
            a(f"v_mov_b32 v{self.O_ + k}, 0")
        for k in range(8):
            a(f"v_mov_b32 v{self.S_ + 24 + k}, 0")
        a(f"""s_waitcnt vmcnt(6) lgkmcnt(0)
            v_mfma_f32_32x32x16_bf16 {vr(self.S_, 16)}, {vr(self.KV_, 4)}, {vr(self.Q_, 4)}, 0
            s_nop 11""")

    def attn_loop(self, name, base_prio=None):
        a = self.a
        up = "s_setprio 3" if base_prio is not None else ""
        down = f"s_setprio {base_prio}" if base_prio is not None else ""
        O, S, Q, KV = self.O_, self.S_, self.Q_, self.KV_
        sOff, sEnd, sCnt, sLd = self.sOff, self.sEnd, self.sCnt, self.sLd
        sm = lambda st, qt, half, n: (f"v_smfmac_f32_32x32x32_bf16 {vr(O + 16 * qt, 16)}, {vr(KV + 12 * st + 4 + 4 * half, 4)}, "
                                      f"{vr(S + 16 * (n & 1) + 8 * half, 8)}, v{self.vIDX}")
        a.raw(".p2align 6")
        a.label(name)
        for n in range(16):
            st, qt = divmod(n, 4)
            cur = S + 16 * (n & 1)
            E = lambda lo, hi: [a(f"v_exp_f32 v{cur + k}, v{cur + k}") for k in range(lo, hi)]
            pst, pqt = divmod((n - 1) % 16, 4)
            nst, nqt = divmod((n + 1) % 16, 4)
            ld = KV + 12 * ((st + 3) % 4)
            E(0, 2)
            a(sm(pst, pqt, 1, n - 1))
            if qt == 0:
                a(f"s_cmp_lt_u32 s{sOff}, s{sEnd}\ns_cselect_b32 s{sLd}, s{sOff}, {OOB}")
            if qt == 3:
                a("s_waitcnt vmcnt(6)")
            E(2, 5)
            a(f"v_mfma_f32_32x32x16_bf16 {vr(S + 16 * ((n + 1) & 1), 16)}, {vr(KV + 12 * nst, 4)}, {vr(Q + 4 * nqt, 4)}, 0")
            if qt == 0:
                a(up)
                a(f"buffer_load_dwordx4 {vr(ld, 4)}, v{self.vKo}, {sr(sWS, 4)}, s{sLd} offen sc1")
                a(down)
            if qt == 2:
                a(f"s_add_u32 s{sOff}, s{sOff}, 2048")
            E(5, 10)
            a(sm(st, qt, 0, n))
            if qt == 1:
                a(up)
                a(f"""s_mov_b64 exec, {sr(sVM, 2)}
                    buffer_load_dwordx4 {vr(ld + 4, 4)}, v{self.vVo}, {sr(sWS, 4)}, s{sLd} offen offset:1024 sc1
                    buffer_load_dwordx4 {vr(ld + 8, 4)}, v{self.vVo}, {sr(sWS, 4)}, s{sLd} offen offset:1536 sc1
                    s_mov_b64 exec, -1""")
                a(down)
            if n == 15:
                a(f"s_sub_u32 s{sCnt}, s{sCnt}, 1\ns_cmp_lg_u32 s{sCnt}, 0")
            E(10, 16)
        a(f"s_cbranch_scc1 {name}\ns_nop 0")
        a(sm(3, 3, 1, 15))
        a("s_waitcnt vmcnt(0)")

    def write_partials(self, is_m):
        a = self.a
        vL = 164
        base = PART_M if is_m else PART_L
        self.lane(vL)
        a(f"""s_mul_i32 s{sT0}, s{sT}, 9216
            s_add_u32 s{sT0}, s{sT0}, {base}
            v_lshl_add_u32 v{vL + 1}, v{vL}, 4, s{sT0}
            v_lshl_add_u32 v{vL + 2}, v{vL}, 2, s{sT0}""")
        if is_m:
            a(f"""s_lshl_b32 s{sT0}, s{sT}, 8
                s_add_u32 s{sT0}, s{sT0}, {GL}
                v_lshl_add_u32 v{vL + 3}, v{vL}, 2, s{sT0}
                ds_write_b32 v{vL + 3}, v{self.vGK}""")
        for q in range(4):
            o = self.O_ + 16 * q
            a(f"""ds_write_b128 v{vL + 1}, {vr(o, 4)} offset:{2304 * q}
                ds_write_b128 v{vL + 1}, {vr(o + 4, 4)} offset:{2304 * q + 1024}
                ds_write_b32 v{vL + 2}, v{o + 8} offset:{2304 * q + 2048}""")

    def ffn2(self):
        a = self.a
        ACC, HS, WB, WO = 0, 128, 192, 128
        vL, vD, vH, vA0, vA1, vOw, vOt, vDump = range(64, 72)
        sRing, sH0, sH1, sWd, sStep, sS0, sS1, sK, sLim = range(sT0, sT0 + 9)
        NS, PD = 22, self.cfg.get("pd", 7)
        self.lane(vL)
        a(f"""s_lshl_b32 s{sRing}, s{sT}, 14
            s_add_u32 s{sRing}, s{sRing}, {RING[0]}
            s_cmp_eq_u32 s{sT}, 3
            s_cselect_b32 s{sRing}, {RING[3]}, s{sRing}
            v_lshrrev_b32 v72, 3, v{vL}
            v_and_b32 v73, 7, v{vL}
            v_bfe_u32 v74, v{vL}, 4, 1
            v_lshlrev_b32 v75, 2, v74
            v_xor_b32 v73, v73, v75
            v_lshlrev_b32 v73, 4, v73
            v_lshl_add_u32 v{vD}, v72, 10, v73
            v_lshlrev_b32 v{vH}, 4, v{vL}
            v_add_u32 v{vDump}, s{sRing}, v{vH}
            v_lshrrev_b32 v72, 5, v{vL}
            v_bfe_u32 v73, v{vL}, 2, 2
            v_lshl_add_u32 v72, v72, 2, v73
            v_and_b32 v73, 1, v{vL}
            v_lshlrev_b32 v73, 2, v73
            v_lshl_add_u32 v73, v74, 1, v73
            v_bfe_u32 v75, v{vL}, 1, 1
            v_add_u32 v73, v73, v75
            v_lshlrev_b32 v73, 3, v73
            v_lshl_add_u32 v73, v72, 7, v73
            v_bfe_u32 v75, v{vL}, 3, 1
            v_lshl_add_u32 v73, v75, 6, v73
            v_add_u32 v{vA0}, s{sRing}, v73
            v_xor_b32 v{vA1}, 64, v{vA0}
            s_lshr_b32 s{sS0}, s{sT}, 1
            s_lshl_b32 s{sS0}, s{sS0}, 6
            v_xor_b32 v{vOw}, s{sS0}, v{vA0}
            v_xor_b32 v{vOt}, 64, v{vOw}
            s_mul_i32 s{sStep}, s{sT}, {NS}
            s_mul_i32 s{sH0}, s{sRB}, 172
            s_add_u32 s{sH0}, s{sH0}, s{sStep}
            s_lshl_b32 s{sH0}, s{sH0}, 10
            s_add_u32 s{sH0}, s{sH0}, {WS_H}
            s_lshl_b32 s{sWd}, s{sStep}, 14
            s_lshl_b32 s{sS0}, s{sCB}, 7
            s_add_u32 s{sWd}, s{sWd}, s{sS0}
            s_and_b32 s{sK}, s{sRB}, 3
            s_lshl_b32 s{sK}, s{sK}, 1
            s_add_u32 s{sK}, s{sK}, s{sCB}
            s_and_b32 s{sK}, s{sK}, {7 if self.cfg.get('rot2', 1) else 0}
            s_mul_i32 s{sK}, s{sK}, 11
            s_lshr_b32 s{sK}, s{sK}, 2
            s_cmp_eq_u32 s{sT}, 3
            s_cselect_b32 s{sLim}, 20, 22""")
        a.vm.reset()
        a.lg.drain()

        def issue(s):
            if s >= NS + 16:
                return
            if s == NS:
                a(f"""s_lshr_b32 s{sWd}, s{sT}, 1
                    s_lshl_b32 s{sWd}, s{sWd}, 18
                    s_lshl_b32 s{sS0}, s{sCB}, 7
                    s_add_u32 s{sWd}, s{sWd}, s{sS0}""")
            if s < NS:
                a(f"s_lshl_b32 s{sS1}, s{sK}, 14\ns_add_u32 s{sS1}, s{sS1}, s{sWd}")
            for i in range(2):
                a(f"s_add_u32 m0, s{sRing}, {(s % 8) * 2048 + 1024 * i}")
                if s < NS:
                    a(f"s_add_u32 s{sS0}, s{sS1}, {8192 * i}")
                else:
                    a(f"s_add_u32 s{sS0}, s{sWd}, {(s - NS) * 16384 + 8192 * i}")
                a(f"buffer_load_dwordx4 v{vD}, {sr(sWD if s < NS else sWO, 4)}, s{sS0} offen lds")
                a.vm.issue(s)
            if s < NS:
                a(f"""s_lshl_b32 s{sS0}, s{sK}, 10
                    s_add_u32 s{sS0}, s{sS0}, s{sH0}
                    s_cmp_lt_u32 s{sK}, s{sLim}
                    s_cselect_b32 s{sS0}, s{sS0}, {OOB}
                    s_add_u32 s{sS1}, s{sS0}, 88064
                    s_add_u32 s{sK}, s{sK}, 1
                    s_cmp_eq_u32 s{sK}, {NS}
                    s_cselect_b32 s{sK}, 0, s{sK}""")
                for tt in range(2):
                    a(f"buffer_load_dwordx4 {vr(HS + 8 * (s % 8) + 4 * tt, 4)}, v{vH}, {sr(sWS, 4)}, s{sS0 + tt} offen sc1")
                    a.vm.issue(s)

        def reads(s):
            a.vm.wait(s)
            for ct in range(2):
                for u in range(2):
                    if s < NS:
                        dst, reg = WB + 8 * (s & 1) + 4 * ct + 2 * u, (vA0, vA1)[ct]
                    else:
                        dst, reg = WO + 8 * (s - NS) + 4 * ct + 2 * u, (vOw, vOt)[ct]
                    self.dsr("ds_read_b64_tr_b16", dst, 2, reg, None, (s % 8) * 2048 + 1024 * u, (s, ct))

        for s in range(PD):
            issue(s)
        reads(0)
        for s in range(NS):
            if s + 1 < NS:
                reads(s + 1)
            for ct in range(2):
                a.lg.wait((s, ct))
                for tt in range(2):
                    d = vr(ACC + 32 * tt + 16 * ct, 16)
                    a(f"v_mfma_f32_32x32x16_bf16 {d}, {vr(WB + 8 * (s & 1) + 4 * ct, 4)}, {vr(HS + 8 * (s % 8) + 4 * tt, 4)}, {d if s else 0}")
            issue(s + PD)
        for s in range(NS, NS + 16):
            reads(s)
            a.lg.wait((s - 1, 1))
            issue(s + PD)
        a.lg.drain()
        for k in range(16):
            a(f"ds_write_b128 v{vDump}, {vr(ACC + 4 * k, 4)} offset:{1024 * k}")

    def combine(self):
        a = self.a
        vL, vP, vPh, vS, vSh, vGt, vOff = range(64, 71)
        sHd, sQt, sTT = sT0 + 4, sT0 + 5, sT0 + 6
        self.lane(vL)
        a(f"""s_and_b32 s{sHd}, s{sW}, 1
            s_lshr_b32 s{sQt}, s{sW}, 1
            s_mul_i32 s{sT0}, s{sHd}, 9216
            s_mul_i32 s{sT0 + 1}, s{sQt}, 2304
            s_add_u32 s{sT0}, s{sT0}, s{sT0 + 1}
            v_lshl_add_u32 v{vP}, v{vL}, 4, s{sT0}
            v_lshl_add_u32 v{vS}, v{vL}, 2, s{sT0}
            v_add_u32 v{vPh}, {PART_M}, v{vP}
            v_add_u32 v{vSh}, {PART_M}, v{vS}
            s_lshl_b32 s{sT0}, s{sQt}, 8
            s_add_u32 s{sT0}, s{sT0}, {GL}
            v_lshl_add_u32 v{vGt}, v{vL}, 2, s{sT0}
            v_lshlrev_b32 v{vOff}, 4, v{vL}
            s_lshl_b32 s{sTT}, s{sR}, 2
            s_add_u32 s{sTT}, s{sTT}, s{sQt}
            s_lshl_b32 s{sTT}, s{sTT}, 5
            s_lshl_b32 s{sT0}, s{sC}, 1
            s_add_u32 s{sTT}, s{sTT}, s{sT0}
            s_add_u32 s{sTT}, s{sTT}, s{sHd}
            s_waitcnt lgkmcnt(0)
            s_barrier""")
        self.stamp(10)
        a.lg.reset()
        for i in range(4):
            p, s, off = (vP, vS, 18432 * i) if i < 2 else (vPh, vSh, 18432 * (i - 2))
            a(f"""ds_read_b128 {vr(12 * i, 4)}, v{p} offset:{off}
                ds_read_b128 {vr(12 * i + 4, 4)}, v{p} offset:{off + 1024}
                ds_read_b32 v{12 * i + 8}, v{s} offset:{off + 2048}""")
        a(f"ds_read_b32 v{vGt}, v{vGt}\ns_waitcnt lgkmcnt(7)")
        for k in range(4):
            a(f"v_pk_add_f32 {vr(2 * k, 2)}, {vr(2 * k, 2)}, {vr(12 + 2 * k, 2)}")
        a("v_add_f32 v8, v8, v20\ns_waitcnt lgkmcnt(1)")
        for k in range(4):
            a(f"v_pk_add_f32 {vr(24 + 2 * k, 2)}, {vr(24 + 2 * k, 2)}, {vr(36 + 2 * k, 2)}")
        a("v_add_f32 v32, v32, v44")
        for k in range(4):
            a(f"v_pk_add_f32 {vr(2 * k, 2)}, {vr(2 * k, 2)}, {vr(24 + 2 * k, 2)}")
        lo, hi = self.cfg.get("l_lo", 2.0 ** -24), self.cfg.get("l_hi", 2.0 ** 64)
        a(f"""v_add_f32 v8, v8, v32
            v_max3_f32 v10, abs(v0), abs(v1), abs(v2)
            v_max3_f32 v11, abs(v3), abs(v4), abs(v5)
            v_add_f32 v12, v0, v1
            v_add_f32 v13, v2, v3
            v_max3_f32 v10, abs(v6), abs(v7), v10
            v_add_f32 v14, v4, v5
            v_add_f32 v15, v6, v7
            v_max_f32 v10, v10, v11
            v_cmp_o_f32 {sr(sT0, 2)}, v12, v13
            v_cmp_o_f32 {sr(sT0 + 2, 2)}, v14, v15
            v_cmp_gt_f32 vcc, {f32(2.0 ** 126)}, v10
            s_and_b64 {sr(sT0, 2)}, {sr(sT0, 2)}, {sr(sT0 + 2, 2)}
            s_and_b64 {sr(sT0, 2)}, {sr(sT0, 2)}, vcc
            v_cmp_lt_f32 vcc, {f32(lo)}, v8
            s_and_b64 {sr(sT0, 2)}, {sr(sT0, 2)}, vcc
            v_cmp_gt_f32 vcc, {f32(hi)}, v8
            s_and_b64 {sr(sT0, 2)}, {sr(sT0, 2)}, vcc
            s_cmp_eq_u64 {sr(sT0, 2)}, -1
            s_cbranch_scc0 L_fallback""")
        a.label("L_normalise")
        a(f"""v_rcp_f32 v8, v8
            s_waitcnt lgkmcnt(0)
            v_mul_f32 v8, v8, v{vGt}
            v_mov_b32 v9, v8
            s_lshl_b32 s{sT0}, s{sTT}, 10
            s_add_u32 s{sT0}, s{sT0}, {WS_O}""")
        for k in range(4):
            a(f"v_pk_mul_f32 {vr(2 * k, 2)}, {vr(2 * k, 2)}, v[8:9]")
        for k in range(4):
            a(f"v_cvt_pk_bf16_f32 v{12 + k}, v{2 * k}, v{2 * k + 1}")
        a(f"""buffer_store_dwordx4 v[12:15], v{vOff}, {sr(sWS, 4)}, s{sT0} offen sc1
            s_lshl_b32 s{sT0}, s{sTT}, 2
            s_add_u32 s{sT0}, s{sT0}, {FO}""")
        self.vOff, self.sHd, self.sQt = vOff, sHd, sQt

    def fallback(self):
        a = self.a
        O, S, M, K, V, Q, vMx, vI, vVo = 0, 16, 32, 48, 52, 60, 72, 73, 74
        sO, sN = sT0, sT0 + 1
        vOff = self.vOff
        a.label("L_fallback")
        a(f"""s_lshl_b32 s{sO}, s{self.sHd}, 12
            s_lshl_b32 s{sN}, s{self.sQt}, 10
            s_add_u32 s{sO}, s{sO}, s{sN}
            s_add_u32 s{sO}, s{sO}, {QF}
            v_add_u32 v{vI}, s{sO}, v{vOff}
            ds_read_b128 {vr(Q, 4)}, v{vI}
            v_and_b32 v{vVo}, 0xf0, v{vOff}
            v_lshrrev_b32 v{vMx}, 9, v{vOff}
            v_lshl_add_u32 v{vVo}, v{vMx}, 8, v{vVo}
            v_mov_b32 v{vMx}, 0xff800000
            s_lshl_b32 s{sO}, s{sC}, 1
            s_add_u32 s{sO}, s{sO}, s{self.sHd}
            s_lshl_b32 s{sO}, s{sO}, 17
            s_mov_b32 s{sN}, 64
            s_waitcnt lgkmcnt(0)
            v_mov_b32 v{vI}, 0xdddddddd""")
        a.label("L_fb_max")
        a(f"""buffer_load_dwordx4 {vr(K, 4)}, v{vOff}, {sr(sWS, 4)}, s{sO} offen sc1
            s_waitcnt vmcnt(0)
            v_mfma_f32_32x32x16_bf16 {vr(S, 16)}, {vr(K, 4)}, {vr(Q, 4)}, 0
            s_nop 11""")
        for k in range(8):
            a(f"v_max3_f32 v{vMx}, v{S + 2 * k}, v{S + 2 * k + 1}, v{vMx}")
        a(f"""s_add_u32 s{sO}, s{sO}, 2048
            s_sub_u32 s{sN}, s{sN}, 1
            s_cmp_lg_u32 s{sN}, 0
            s_cbranch_scc1 L_fb_max
            v_mov_b32 v{M}, v{vMx}
            s_nop 1
            v_permlane32_swap_b32 v{vMx}, v{M}
            s_nop 1
            v_max_f32 v{vMx}, v{vMx}, v{M}
            s_sub_u32 s{sO}, s{sO}, 131072
            s_mov_b32 s{sN}, 64""")
        for k in range(16):
            a(f"v_sub_f32 v{M + k}, 0, v{vMx}\nv_mov_b32 v{O + k}, 0")
        for k in range(8):
            a(f"v_mov_b32 v{V + k}, 0x3f803f80")
        a.label("L_fb_sum")
        a(f"""buffer_load_dwordx4 {vr(K, 4)}, v{vOff}, {sr(sWS, 4)}, s{sO} offen sc1
            s_mov_b64 exec, {sr(sVM, 2)}
            buffer_load_dwordx4 {vr(V, 4)}, v{vVo}, {sr(sWS, 4)}, s{sO} offen offset:1024 sc1
            buffer_load_dwordx4 {vr(V + 4, 4)}, v{vVo}, {sr(sWS, 4)}, s{sO} offen offset:1536 sc1
            s_mov_b64 exec, -1
            s_waitcnt vmcnt(0)
            v_mfma_f32_32x32x16_bf16 {vr(S, 16)}, {vr(K, 4)}, {vr(Q, 4)}, {vr(M, 16)}
            s_nop 11""")
        for k in range(16):
            a(f"v_exp_f32 v{S + k}, v{S + k}")
        a(f"""s_nop 1
            v_smfmac_f32_32x32x32_bf16 {vr(O, 16)}, {vr(V, 4)}, {vr(S, 8)}, v{vI}
            v_smfmac_f32_32x32x32_bf16 {vr(O, 16)}, {vr(V + 4, 4)}, {vr(S + 8, 8)}, v{vI}
            s_nop 7
            s_add_u32 s{sO}, s{sO}, 2048
            s_sub_u32 s{sN}, s{sN}, 1
            s_cmp_lg_u32 s{sN}, 0
            s_cbranch_scc1 L_fb_sum
            s_nop 3
            s_branch L_normalise""")

    def final(self):
        a = self.a
        OF, OWN, OTH, WO = 0, 64, 80, 128
        vL, vA, vAh, vAhh, vFl, vH, vOut, vX, vXp = range(96, 105)
        sTT, sKh = sT0 + 4, sT0 + 5
        self.lane(vL)
        a(f"""s_and_b32 s{sTT}, s{sT}, 1
            s_lshr_b32 s{sKh}, s{sT}, 1
            s_lshl_b32 s{sT0 + 1}, s{sTT}, 1
            s_add_u32 s{sT0 + 1}, s{sT0 + 1}, s{sKh}
            s_lshl_b32 s{sT0 + 1}, s{sT0 + 1}, 12
            v_lshl_add_u32 v{vA}, v{vL}, 4, s{sT0 + 1}
            v_add_u32 v{vAh}, {RING[2]}, v{vA}
            v_add_u32 v{vAhh}, {RING[3]}, v{vA}""")
        a.lg.reset()
        for i in range(4):
            reg, off = ((vA, RING[0]), (vA, RING[1]), (vAh, 0), (vAhh, 0))[i]
            dst = (OWN, 16, 32, 48)[i]
            for q in range(4):
                self.dsr("ds_read_b128", dst + 4 * q, 4, reg, None, off + 1024 * q, i)
            if i == 2:
                a.lg.wait(1)
                for k in range(8):
                    a(f"v_pk_add_f32 {vr(OWN + 2 * k, 2)}, {vr(OWN + 2 * k, 2)}, {vr(16 + 2 * k, 2)}")
        a("s_waitcnt vmcnt(0)")
        self.set_flag(f"s{sT0}", vFl)
        self.stamp(11)
        a.lg.drain()
        for b in (32, 48):
            for k in range(8):
                a(f"v_pk_add_f32 {vr(OWN + 2 * k, 2)}, {vr(OWN + 2 * k, 2)}, {vr(b + 2 * k, 2)}")
        a(f"""s_lshl_b32 s{sT0 + 1}, s{sRB}, 1
            s_add_u32 s{sT0 + 1}, s{sT0 + 1}, s{sTT}
            s_lshl_b32 s{sT0 + 2}, s{sT0 + 1}, 5
            s_lshl_b32 s{sT0 + 3}, s{sKh}, 4
            s_add_u32 s{sT0 + 2}, s{sT0 + 2}, s{sT0 + 3}
            s_lshl_b32 s{sT0}, s{sT0 + 2}, 2
            s_add_u32 s{sT0}, s{sT0}, {FO}
            s_lshl_b32 s{sT0 + 2}, s{sT0 + 2}, 10
            s_add_u32 s{sT0 + 2}, s{sT0 + 2}, {WS_O}
            v_and_b32 v{vFl}, 15, v{vL}
            v_lshlrev_b32 v{vFl}, 2, v{vFl}
            v_lshlrev_b32 v{vH}, 4, v{vL}
            v_and_b32 v{vOut}, 31, v{vL}
            v_lshlrev_b32 v{vOut}, 10, v{vOut}
            v_lshrrev_b32 v{vX}, 5, v{vL}
            v_lshl_add_u32 v{vOut}, v{vX}, 5, v{vOut}
            s_lshl_b32 s{sT0 + 1}, s{sT0 + 1}, 15
            s_lshl_b32 s{sT0 + 3}, s{sCB}, 7
            s_add_u32 s{sT0 + 1}, s{sT0 + 1}, s{sT0 + 3}
            s_lshl_b32 s{sT0 + 3}, s{sKh}, 6
            s_add_u32 s{sT0 + 1}, s{sT0 + 1}, s{sT0 + 3}
            s_lshl_b32 s{sT0 + 3}, s{sT}, 12
            v_add_u32 v{vX}, s{sT0 + 3}, v{vH}
            v_xor_b32 v{vXp}, 0x2000, v{vX}
            s_barrier""")
        self.poll(vFl, f"s{sT0}", vA)
        self.stamp(12)
        for s in range(16):
            if s % 4 == 0 and s:
                a(f"s_add_u32 s{sT0 + 2}, s{sT0 + 2}, 4096")
            a(f"buffer_load_dwordx4 {vr(OF + 4 * s, 4)}, v{vH}, {sr(sWS, 4)}, s{sT0 + 2} offen offset:{1024 * (s % 4)} sc1")
            a.vm.issue(s)
        for s in range(16):
            a.vm.wait(s)
            a(f"v_mfma_f32_32x32x16_bf16 {vr(OTH, 16)}, {vr(WO + 8 * s + 4, 4)}, {vr(OF + 4 * s, 4)}, {vr(OTH, 16) if s else 0}")
            a(f"v_mfma_f32_32x32x16_bf16 {vr(OWN, 16)}, {vr(WO + 8 * s, 4)}, {vr(OF + 4 * s, 4)}, {vr(OWN, 16)}")
        a("s_nop 10")
        for q in range(4):
            a(f"ds_write_b128 v{vX}, {vr(OTH + 4 * q, 4)} offset:{XCH + 1024 * q}")
        a("s_waitcnt lgkmcnt(0)\ns_barrier")
        for q in range(4):
            a(f"ds_read_b128 {vr(4 * q, 4)}, v{vXp} offset:{XCH + 1024 * q}")
        for q in range(4):
            a(f"s_waitcnt lgkmcnt({3 - q})")
            for k in range(2):
                r = 4 * q + 2 * k
                a(f"v_pk_add_f32 {vr(OWN + r, 2)}, {vr(OWN + r, 2)}, {vr(r, 2)}")
            for k in range(2):
                r = 4 * q + 2 * k
                a(f"v_cvt_pk_bf16_f32 v{16 + 2 * q + k}, v{OWN + r}, v{OWN + r + 1}")
            if q % 2 == 1:
                a(f"buffer_store_dwordx4 {vr(16 + 4 * (q // 2), 4)}, v{vOut}, {sr(sOUT, 4)}, s{sT0 + 1} offen offset:{16 * (q // 2)}")

    def build(self):
        a = self.a
        cfg = self.cfg
        self.prologue()
        a(f"s_setprio {cfg.get('prio_l', 1)}")
        self.loader()
        self.stamp(4)
        self.attn_setup(False)
        self.stamp(7)
        self.attn_loop("L_attn_l")
        self.stamp(8)
        a("s_branch L_lpost")

        a.label("L_mwave")
        self.m_setup()
        a(f"s_bitcmp1_b32 s{sC}, 0\ns_cbranch_scc1 L_pass_v")
        self.pass_a(False)
        a("s_branch L_pass_q")
        a.label("L_pass_v")
        self.pass_a(True)
        a.label("L_pass_q")
        self.pass_qf()
        self.gelu()
        self.stamp(6)
        a(f"v_mov_b32 v{self.vGK}, v{self.vG}")
        self.attn_setup(True)
        a(f"s_setprio {cfg.get('prio_m2', 0)}")

        self.stamp(7)
        self.attn_loop("L_attn_m", cfg.get('prio_m2', 0) if cfg.get("bump", 1) else None)
        self.stamp(8)
        self.write_partials(True)
        a("s_branch L_combine")

        a.label("L_lpost")
        vL, vT = 164, 165
        self.lane(vL)
        a(f"""s_lshl_b32 s{sT0}, s{sRB}, 5
            v_add_u32 v{vT}, s{sT0}, v{vL}
            s_lshl_b32 s{sT0}, s{sR}, 6
            s_add_u32 s{sT0}, s{sT0}, s{sC}
            v_and_b32 v{vT + 1}, 3, v{vL}
            v_lshl_add_u32 v{vT + 1}, v{vT + 1}, 4, s{sT0}
            v_cmp_gt_u32 vcc, 32, v{vL}
            s_nop 1
            v_cndmask_b32 v{vT}, v{vT + 1}, v{vT}, vcc
            v_lshlrev_b32 v{vT}, 2, v{vT}
            s_mov_b32 s{sT0}, {FH}""")
        self.poll(vT, f"s{sT0}", vT + 2)
        self.write_partials(False)
        self.ffn2()
        self.stamp(9)

        a.label("L_combine")
        self.combine()
        a(f"s_cmp_ge_u32 s{sW}, 4\ns_cbranch_scc1 L_final")
        a("s_waitcnt vmcnt(0)")
        self.set_flag(f"s{sT0}", 20)
        self.stamp(11)
        self.dump_stamps(True)
        a("s_endpgm")

        a.label("L_final")
        self.final()
        if cfg.get("stamps"):
            a("s_waitcnt vmcnt(0)")
            self.stamp(13)
            self.dump_stamps()
        a.label("L_end")
        a("s_endpgm")
        self.fallback()
        return a.text()


HEADER = """; Fused kernel: out = g * MHA(x) + (1 - g) * GEGLU(x),  g = sigmoid(x . gate_w)
; Kernarg (88 bytes, pointers): 0 A_x, 8 A_wqkv, 16 A_wo, 24 B_x (unused by the reference), 32 B_w_gate, 40 B_w_up,
;   48 B_w_down, 56 gate_w, 64 d_out, 72 d_debug, 80 d_ws
; 256 workgroups, one per CU; hand-offs between workgroups go through d_ws with write-through stores and flags.
; @launch grid=(256,1,1) block=(512,1,1) lds=%d
.amdgcn_target "amdgcn-amd-amdhsa--gfx950"
.text
.globl %s_kernel
.p2align 8
.type %s_kernel,@function
%s_kernel:
""" % (LDS_BYTES, NAME, NAME, NAME)

FOOTER = """.section .rodata,"a"
.p2align 6
.amdhsa_kernel %s_kernel
  .amdhsa_next_free_vgpr 256
  .amdhsa_next_free_sgpr 102
  .amdhsa_accum_offset 256
  .amdhsa_group_segment_fixed_size 0
  .amdhsa_kernarg_size 88
  .amdhsa_user_sgpr_count 2
  .amdhsa_user_sgpr_kernarg_segment_ptr 1
  .amdhsa_system_sgpr_workgroup_id_x 1
  .amdhsa_float_denorm_mode_32 3
.end_amdhsa_kernel
""" % NAME

DEFAULT = dict(nL=16)


def generate(**kw):
    cfg = dict(DEFAULT)
    cfg.update(kw)
    body = Gen(cfg).build()
    msgs = lint(body)
    return HEADER + body + FOOTER, msgs


if __name__ == "__main__":
    out = sys.argv[1]
    kw = {}
    for arg in sys.argv[2:]:
        k, v = arg.split("=")
        kw[k] = float(v) if "." in v or "e" in v else int(v)
    text, msgs = generate(**kw)
    for m in msgs:
        print("LINT:", m)
    open(out, "w").write(text)
    print("wrote", out, len(text), "bytes,", text.count("\n"), "lines")
```

```python
import struct
import sys

from asmlib import Asm, lint, sr, vr

NAME = "gated_mix__softmax_full_mha__glu_gated_geglu__prompt"


def f32(x):
    return "0x%08x" % struct.unpack("<I", struct.pack("<f", x))[0]


LOG2E = 1.4426950408889634

WS_KV, WS_O, WS_H, WS_G, WS_FLAG, WS_STAMP = 0x000000, 0x400000, 0x600000, 0xBC0000, 0xC00000, 0xD00000
CKV, CH, CO = WS_FLAG, WS_FLAG + 128 * 128, WS_FLAG + 256 * 128
OOB = 0x20000000

NSLOT = 4
QW, QF, PART, CNT = 98304, 131072, 139264, 157696
LDS_BYTES = 163840

sX, sWQ, sWO, sWG, sWU, sWD, sGW, sOUT, sDBG, sWS = 4, 8, 12, 16, 20, 24, 28, 32, 36, 40
sC, sR, sW, sT, sROT, sRB, sCB, sDEL = 44, 45, 46, 47, 48, 49, 50, 51
sONE, sPV = 71, 69
sVM = 52
sT0 = 54
sSPIN = 70
sSTAMP = 72
SIZES = {sX: 2097152, sWQ: 1572864, sWO: 524288, sWG: 1409024, sWU: 1409024, sWD: 1409024, sGW: 1024, sOUT: 2097152,
         sDBG: 256, sWS: 268435456}
KARG = {sX: 0, sWQ: 8, sWO: 16, sWG: 32, sWU: 40, sWD: 48, sGW: 56, sOUT: 64, sDBG: 72, sWS: 80}


def slot(n):
    return (n % NSLOT) * 24576


class Gen:
    def __init__(self, cfg):
        self.cfg = cfg
        self.a = Asm()
        self.uid = 0

    def lab(self, base):
        self.uid += 1
        return f"L_{base}_{self.uid}"

    def clock(self):
        return "s_memtime" if self.cfg.get("stamps") == 2 else "s_memrealtime"

    def names(self, role):
        if "pad" in self.cfg:
            return ["start", self.cfg["pad"]]
        return self.cfg["st" + role].split(",")

    def stamp(self, name, role):
        if self.cfg.get("stamps") and name in self.names(role):
            n = self.names(role).index(name)
            a = self.a
            a(f"{self.clock()} {sr(sSTAMP + 2 * n, 2)}")
            a.lg.drain()

    def dump_stamps(self, is_l):
        if not self.cfg.get("stamps"):
            return
        a = self.a
        if "pad" in self.cfg:
            n = 0 if self.cfg["pad"] == "start" else 1
            top, done = self.lab("pad"), self.lab("paddone")
            if is_l:
                a("s_barrier")
            a(f"""s_waitcnt vmcnt(0) lgkmcnt(0)
                s_cmp_eq_u32 s{sSTAMP + 2 * n}, 0
                s_cbranch_scc1 {done}""")
            a.label(top)
            a(f"""s_sleep 4
                s_memrealtime {sr(sT0, 2)}
                s_waitcnt lgkmcnt(0)
                s_sub_u32 s{sT0}, s{sT0}, s{sSTAMP + 2 * n}
                s_cmp_lt_u32 s{sT0}, 6000
                s_cbranch_scc1 {top}""")
            a.label(done)
            return
        a(f"""s_lshl_b32 s{sT0}, s2, 3
            s_add_u32 s{sT0}, s{sT0}, s{sW}
            s_lshl_b32 s{sT0}, s{sT0}, 6
            s_add_u32 s{sT0}, s{sT0}, {WS_STAMP}
            s_mov_b64 exec, 1""")
        for n in range(14):
            a(f"v_mov_b32 v0, s{sSTAMP + 2 * n}")
            a(f"buffer_store_dword v0, off, {sr(sWS, 4)}, s{sT0} offset:{4 * n}")
        a("s_mov_b64 exec, -1")

    def lane(self, v):
        self.a(f"""v_mbcnt_lo_u32_b32 v{v}, -1, 0
            v_mbcnt_hi_u32_b32 v{v}, -1, v{v}""")

    def srd(self, *regs):
        for r in regs:
            self.a(f"s_mov_b32 s{r + 2}, {SIZES[r]}\ns_mov_b32 s{r + 3}, 0x00020000")

    def kload(self, *regs):
        for r in regs:
            self.a(f"s_load_dwordx2 {sr(r, 2)}, s[0:1], {KARG[r]}")

    def chunk(self, dst, i):
        a = self.a
        if self.cfg["rot"] in (3, 4):
            a(f"""s_add_u32 s{dst}, s{sDEL}, {i & 3}
                s_and_b32 s{dst}, s{dst}, 3
                s_add_u32 s{dst}, s{dst}, s{sROT}""")
            if i & 4:
                a(f"s_xor_b32 s{dst}, s{dst}, 4")
        else:
            a(f"s_add_u32 s{dst}, s{sROT}, {i}\ns_and_b32 s{dst}, s{dst}, 7")

    def dsr(self, op, dst, n, lo, hi, imm, tag):
        reg = lo
        if imm >= 65536:
            reg, imm = hi, imm - 65536
        assert 0 <= imm < 65536 and reg is not None
        self.a(f"{op} {vr(dst, n)}, v{reg} offset:{imm}")
        self.a.lg.issue(tag)

    def poll(self, voff, soff, tmp, srd=sWS):
        a = self.a
        top, done = self.lab("poll"), self.lab("pdone")
        a(f"s_mov_b32 s{sSPIN}, 100000")
        a.label(top)
        a(f"""buffer_load_dword v{tmp}, v{voff}, {sr(srd, 4)}, {soff} offen sc1
            s_waitcnt vmcnt(0)
            v_cmp_eq_u32 vcc, 0, v{tmp}
            s_cbranch_vccz {done}
            s_sleep 1
            s_sub_u32 s{sSPIN}, s{sSPIN}, 1
            s_cmp_lg_u32 s{sSPIN}, 0
            s_cbranch_scc1 {top}""")
        a.label(done)
        a.vm.reset()

    def signal(self, soff):
        self.a(f"s_atomic_add s{sONE}, {sr(sWS, 2)}, s{soff}")

    def spoll(self, soff, need, back=None):
        a = self.a
        top, done = self.lab("spoll"), back or self.lab("sdone")
        a(f"s_mov_b32 s{sSPIN}, 200000")
        a.label(top)
        a(f"""s_mov_b32 s{sPV}, 0
            s_atomic_add s{sPV}, {sr(sWS, 2)}, s{soff} glc
            s_waitcnt lgkmcnt(0)
            s_cmp_ge_u32 s{sPV}, {need}
            s_cbranch_scc1 {done}
            s_sub_u32 s{sSPIN}, s{sSPIN}, 1
            s_cmp_lg_u32 s{sSPIN}, 0
            s_cbranch_scc1 {top}""")
        if back:
            a(f"s_branch {back}")
        else:
            a.label(done)
        a.lg.reset()

    def set_flag(self, soff, one, srd=sWS):
        a = self.a
        a(f"""s_mov_b64 exec, 1
            buffer_store_dword v{one}, off, {sr(srd, 4)}, {soff} sc1
            s_mov_b64 exec, -1""")
        a.vm.issue("flag")

    def lds_signal(self, addr, one, off):
        a = self.a
        a(f"""s_mov_b64 exec, 1
            ds_add_u32 v{addr}, v{one} offset:{off}
            s_mov_b64 exec, -1""")
        a.lg.issue("sig")

    def lds_probe(self, addr, tmp, off):
        self.a(f"ds_read_b32 v{tmp}, v{addr} offset:{off}")
        self.a.lg.issue("probe")

    def lds_check(self, addr, tmp, off, need):
        a = self.a
        top, done = self.lab("lspin"), self.lab("ldone")
        a.lg.wait("probe")
        a(f"""v_cmp_gt_u32 vcc, {need}, v{tmp}
            s_cbranch_vccz {done}
            s_mov_b32 s{sSPIN}, 1000000""")
        a.label(top)
        a(f"""ds_read_b32 v{tmp}, v{addr} offset:{off}
            s_waitcnt lgkmcnt(0)
            v_cmp_gt_u32 vcc, {need}, v{tmp}
            s_cbranch_vccz {done}
            s_sub_u32 s{sSPIN}, s{sSPIN}, 1
            s_cmp_lg_u32 s{sSPIN}, 0
            s_cbranch_scc1 {top}""")
        a.label(done)

    def prologue(self):
        a = self.a
        cfg = self.cfg
        rb = cfg["rbits"]
        a("s_cmp_ge_u32 s2, 256\ns_cbranch_scc1 L_end")
        if cfg.get("stamps"):
            a(f"{self.clock()} {sr(sSTAMP, 2)}")
        self.kload(sX, sWQ, sWS)
        if cfg.get("stamps"):
            for n in range(1, 14):
                a(f"s_mov_b32 s{sSTAMP + 2 * n}, 0")
        x, j, t = sT0, sT0 + 1, sT0 + 2
        a(f"""v_lshrrev_b32 v1, 6, v0
            s_and_b32 s{x}, s2, 7
            v_readfirstlane_b32 s{sW}, v1
            s_lshr_b32 s{j}, s2, 3
            v_and_b32 v0, 63, v0
            s_and_b32 s{sR}, s{x}, {(1 << (4 - rb)) - 1}
            s_lshl_b32 s{sR}, s{sR}, {rb}
            s_and_b32 s{t}, s{j}, {(1 << rb) - 1}
            s_add_u32 s{sR}, s{sR}, s{t}
            s_lshr_b32 s{sC}, s{x}, {4 - rb}
            s_lshl_b32 s{sC}, s{sC}, {5 - rb}
            s_lshr_b32 s{t}, s{j}, {rb}
            s_add_u32 s{sC}, s{sC}, s{t}
            s_and_b32 s{sT}, s{sW}, 3""")
        rot = cfg["rot"]
        if rot == 0:
            a(f"s_mov_b32 s{sROT}, 0")
        elif rot == 1:
            a(f"""s_mul_i32 s{sROT}, s{sC}, {cfg.get('rotc', 2)}
                s_mul_i32 s{t}, s{sR}, {cfg.get('rotr', 1)}
                s_add_u32 s{sROT}, s{sROT}, s{t}
                s_and_b32 s{sROT}, s{sROT}, 7""")
        else:
            a(f"""s_add_u32 s{sROT}, s{sC}, s{sR}
                s_and_b32 s{sROT}, s{sROT}, 1
                s_lshl_b32 s{sROT}, s{sROT}, 2""")
            if rot == 3:
                a(f"s_mov_b32 s{sDEL}, 0")
            else:
                a(f"""s_lshr_b32 s{sDEL}, s{x}, 1
                    s_lshl_b32 s{t}, s{x}, 1
                    s_add_u32 s{sDEL}, s{sDEL}, s{t}""")
        self.srd(sWS)
        a(f"""s_mov_b32 s{sONE}, 1
            s_cmp_ge_u32 s{sW}, 4
            s_cbranch_scc0 L_mwave""")

    def loader(self):
        a = self.a
        a.vm.reset()
        vX0, vX1, vKV, vQ = 8, 9, 10, 11
        sXB, sKB, sQB, sLx, sLk, sLq, sCh, sO = range(sT0, sT0 + 8)
        self.srd(sX, sWQ)
        a(f"""v_lshrrev_b32 v1, 3, v0
            v_and_b32 v2, 7, v0
            v_lshrrev_b32 v3, 4, v0
            s_lshl_b32 s{sO}, s{sT}, 5
            v_add_u32 v4, s{sO}, v1
            v_xor_b32 v5, v2, v3
            v_lshlrev_b32 v5, 4, v5
            v_lshl_add_u32 v{vX0}, v4, 10, v5
            v_xor_b32 v{vX1}, 64, v{vX0}
            v_add_u32 v{vX1}, 8192, v{vX1}
            s_lshl_b32 s{sO}, s{sT}, 4
            v_add_u32 v4, s{sO}, v1
            v_mul_u32_u24 v4, 3072, v4
            v_and_b32 v5, 1, v3
            v_lshlrev_b32 v5, 2, v5
            v_xor_b32 v5, v2, v5
            v_lshl_add_u32 v{vKV}, v5, 4, v4
            s_lshl_b32 s{sXB}, s{sR}, 17
            s_and_b32 s{sKB}, s{sC}, 1
            s_add_u32 s{sKB}, s{sKB}, 1
            s_lshl_b32 s{sKB}, s{sKB}, 10
            s_lshr_b32 s{sCh}, s{sC}, 1
            s_lshl_b32 s{sCh}, s{sCh}, 7
            s_add_u32 s{sKB}, s{sKB}, s{sCh}
            s_lshl_b32 s{sLx}, s{sT}, 12
            s_lshl_b32 s{sLk}, s{sT}, 11""")

        def issueA(i):
            B = slot(i)
            self.chunk(sCh, i)
            a(f"s_lshl_b32 s{sO}, s{sCh}, 7\ns_add_u32 s{sO}, s{sO}, s{sXB}")
            for k in range(4):
                a(f"s_add_u32 m0, s{sLx}, {B + 1024 * k}")
                if i == 0 and k == 0:
                    a("s_waitcnt lgkmcnt(0)")
                    self.stamp("karg", "L")
                else:
                    a(f"s_add_u32 s{sO}, s{sO}, 16384" if k == 2 else "s_nop 0")
                a(f"buffer_load_dwordx4 v{vX0 if k % 2 == 0 else vX1}, {sr(sX, 4)}, s{sO} offen lds")
                a.vm.issue(("A", i))
            a(f"s_mul_i32 s{sO}, s{sCh}, 196608")
            for k in range(2):
                a(f"s_add_u32 m0, s{sLk}, {B + 16384 + 1024 * k}")
                a(f"s_add_u32 s{sO}, s{sO}, {'s%d' % sKB if k == 0 else 24576}")
                a(f"buffer_load_dwordx4 v{vKV}, {sr(sWQ, 4)}, s{sO} offen lds")
                a.vm.issue(("A", i))

        def issueQ(half):
            for i in range(8):
                self.chunk(sCh, i)
                a(f"""s_mul_i32 s{sO}, s{sCh}, 196608
                    s_add_u32 m0, s{sLq}, {QW + 4096 * i}
                    s_add_u32 s{sO}, s{sO}, s{sQB}
                    buffer_load_dwordx4 v{vQ}, {sr(sWQ, 4)}, s{sO} offen lds""")
                a.vm.issue(("Q", half))

        def setup2():
            a(f"""v_lshrrev_b32 v4, 2, v0
                s_lshl_b32 s{sO}, s{sT}, 4
                v_add_u32 v4, s{sO}, v4
                v_mul_u32_u24 v4, 3072, v4
                v_and_b32 v5, 3, v0
                v_lshl_add_u32 v{vQ}, v5, 4, v4
                s_lshl_b32 s{sQB}, s{sC}, 6
                s_lshl_b32 s{sLq}, s{sT}, 10
                s_mov_b32 s{sVM}, 0x0000ffff
                s_mov_b32 s{sVM + 1}, 0x0000ffff""")
            if self.cfg["tq"]:
                cb = 5 - self.cfg["rbits"]
                nl = 1 << (cb - 1)
                a(f"""v_lshrrev_b32 v4, {cb - 1}, v0
                    v_mul_u32_u24 v4, 3072, v4
                    v_and_b32 v5, {nl - 1}, v0
                    v_lshl_add_u32 v4, v5, 7, v4
                    s_lshr_b32 s{sO}, s2, 3
                    s_lshl_b32 s{sO}, s{sO}, 2
                    s_add_u32 s{sO}, s{sO}, s{sT}
                    s_mul_i32 s{sO}, s{sO}, 12288
                    s_lshr_b32 s{sCh}, s{sC}, {cb}
                    s_lshl_b32 s{sCh}, s{sCh}, {cb + 6}
                    s_add_u32 s{sO}, s{sO}, s{sCh}
                    s_mov_b32 m0, {CNT + 64}
                    s_mov_b64 exec, {(1 << (4 * nl)) - 1}
                    buffer_load_dword v4, {sr(sWQ, 4)}, s{sO} offen lds
                    s_mov_b64 exec, -1""")
                a.vm.issue("touch")
            self.attn_init()

        units = [("A", i) for i in range(8)] + [("Q", 0)]
        la = self.cfg["la"]
        la = [la] * 10 if isinstance(la, int) else la
        nxt = 0
        bs = self.cfg["bs"]
        for b, tag in enumerate(units):
            if b == 8 and bs:
                a("s_barrier")
            while (nxt < len(units) and nxt <= b + la[b] and (units[nxt][0] == "Q" or nxt - NSLOT + 2 <= b)
                   and not (bs and units[nxt][0] == "Q" and b < 8)):
                kind, i = units[nxt]
                {"A": issueA, "Q": issueQ}[kind](i)
                nxt += 1
            if b == 0:
                setup2()
            assert b < nxt
            a.vm.wait(tag)
            self.stamp(f"{tag[0]}{tag[1]}", "L")
            a("s_barrier")

    O_, S_, Q_, KV_ = 16, 80, 112, 128
    vIDX, vKo, vVo, vFl, vQa_, vOne, vCa, vPa, vPs = 12, 13, 14, 15, 6, 7, 1, 2, 3

    def attn_init(self):
        a = self.a
        NST = self.cfg["nst"]
        assert NST == 4
        sHd, sQ, sOff, sRow, sCnt, sLd, sFl = range(sT0 + 8, sT0 + 15)
        self.sHd, self.sQ, self.sOff, self.sKr, self.sCnt, self.sLd, self.sFl = sHd, sQ, sOff, sRow, sCnt, sLd, sFl
        a(f"""s_and_b32 s{sHd}, s{sW}, 1
            s_lshr_b32 s{sQ}, s{sT}, 1
            v_lshrrev_b32 v5, 5, v0
            s_and_b32 s{sRow}, s{sR}, {self.cfg['rowmask']}
            s_add_u32 s{sRow}, s{sRow}, s{sQ}
            s_and_b32 s{sRow}, s{sRow}, 15
            s_mov_b32 s{sCnt}, {32 // NST}
            v_lshlrev_b32 v{self.vKo}, 4, v0
            v_and_b32 v{self.vVo}, 15, v0
            v_lshlrev_b32 v{self.vVo}, 4, v{self.vVo}
            v_lshl_add_u32 v{self.vVo}, v5, 8, v{self.vVo}
            s_lshl_b32 s{sLd}, s{sHd}, 12
            s_add_u32 s{sLd}, s{sLd}, {QF}
            v_add_u32 v{self.vQa_}, s{sLd}, v{self.vKo}
            s_lshl_b32 s{sLd}, s{sQ}, 11
            v_add_u32 v{self.vQa_}, s{sLd}, v{self.vQa_}
            v_mov_b32 v{self.vIDX}, 0xdddddddd
            v_mov_b32 v{self.vOne}, 1
            v_and_b32 v4, 0x1b, v0
            v_cmp_eq_u32 vcc, 16, v4
            v_mov_b32 v4, 0x3f803f80
            s_mul_i32 s{sLd}, s{sT}, 4608
            v_cndmask_b32 v4, 0, v4, vcc
            s_add_u32 s{sLd}, s{sLd}, {PART}
            v_lshl_add_u32 v{self.vPa}, v0, 4, s{sLd}
            v_lshl_add_u32 v{self.vPs}, v0, 2, s{sLd}
            s_lshl_b32 s{sLd}, s{sHd}, 2
            s_add_u32 s{sLd}, s{sLd}, {CNT + 8}
            v_mov_b32 v{self.vCa}, s{sLd}""")
        for st in range(NST):
            for k in range(8):
                a(f"v_mov_b32 v{self.KV_ + 12 * st + 4 + k}, v4")
        for k in range(64):
            a(f"v_mov_b32 v{self.O_ + k}, 0")
        for k in range(8):
            a(f"v_mov_b32 v{self.S_ + 24 + k}, 0")

    def attn_start(self):
        a = self.a
        NST = self.cfg["nst"]
        sOff = self.sOff
        sHB, sFB, sRow, sFl = sT0, sT0 + 1, self.sKr, self.sFl
        a(f"""s_lshl_b32 s{sHB}, s{sC}, 1
            s_add_u32 s{sHB}, s{sHB}, s{self.sHd}
            s_lshl_b32 s{sHB}, s{sHB}, 17
            s_lshr_b32 s{sFB}, s{sC}, 1
            s_lshl_b32 s{sFB}, s{sFB}, 11
            s_add_u32 s{sFB}, s{sFB}, {CKV}
            s_lshl_b32 s{sOff}, s{sRow}, 13
            s_add_u32 s{sOff}, s{sOff}, s{sHB}
            s_lshl_b32 s{sFl}, s{sRow}, 7
            s_add_u32 s{sFl}, s{sFl}, s{sFB}""")
        self.spoll(sFl, 8)
        self.stamp("KVpoll", "L")
        for st in range(NST - 1):
            b = self.KV_ + 12 * st
            a(f"""buffer_load_dwordx4 {vr(b, 4)}, v{self.vKo}, {sr(sWS, 4)}, s{sOff} offen sc1
                s_mov_b64 exec, {sr(sVM, 2)}
                buffer_load_dwordx4 {vr(b + 4, 4)}, v{self.vVo}, {sr(sWS, 4)}, s{sOff} offen offset:1024 sc1
                buffer_load_dwordx4 {vr(b + 8, 4)}, v{self.vVo}, {sr(sWS, 4)}, s{sOff} offen offset:1536 sc1
                s_mov_b64 exec, -1
                s_add_u32 s{sOff}, s{sOff}, 2048""")
        self.stamp("KViss", "L")
        a(f"v_mov_b32 v5, {CNT}")
        a.lg.reset()
        self.lds_probe(5, 4, 16)
        self.lds_check(5, 4, 16, 16)
        a(f"v_xor_b32 v4, 0x800, v{self.vQa_}")
        self.stamp("Qrdy", "L")
        for q in range(4):
            a(f"ds_read_b128 {vr(self.Q_ + 4 * q, 4)}, v{self.vQa_ if q < 2 else 4} offset:{1024 * (q & 1)}")
        a(f"""s_add_u32 s{sRow}, s{sRow}, 2
            s_and_b32 s{sRow}, s{sRow}, 15
            s_lshl_b32 s{sFl}, s{sRow}, 7
            s_add_u32 s{sFl}, s{sFl}, s{sFB}
            s_mov_b32 s{sPV}, 0
            s_waitcnt lgkmcnt(0)
            s_atomic_add s{sPV}, {sr(sWS, 2)}, s{sFl} glc
            s_waitcnt vmcnt({3 * (NST - 2)})
            v_mfma_f32_32x32x16_bf16 {vr(self.S_, 16)}, {vr(self.KV_, 4)}, {vr(self.Q_, 4)}, 0
            s_nop 11""")

    def attn_loop(self):
        a = self.a
        NST = self.cfg["nst"]
        NT = 4 * NST
        O, S, Q, KV = self.O_, self.S_, self.Q_, self.KV_
        sOff, sRow, sCnt, sFl, sHB, sFB = self.sOff, self.sKr, self.sCnt, self.sFl, sT0, sT0 + 1
        sm = lambda st, qt, half, n: (f"v_smfmac_f32_32x32x32_bf16 {vr(O + 16 * qt, 16)}, {vr(KV + 12 * st + 4 + 4 * half, 4)}, "
                                      f"{vr(S + 16 * (n & 1) + 8 * half, 8)}, v{self.vIDX}")
        extra = {
            (2, 0): f"s_lshl_b32 s{sOff}, s{sRow}, 13\ns_add_u32 s{sOff}, s{sOff}, s{sHB}",
            (2, 2): f"s_cmp_eq_u32 s{sCnt}, 1\ns_cselect_b32 s{sOff}, {OOB}, s{sOff}",
            (3, 1): "s_waitcnt lgkmcnt(0)",
            (3, 2): f"s_cmp_lt_u32 s{sPV}, 8\ns_cbranch_scc1 L_kv_wait\nL_kv_ok:",
            (6, 0): f"s_add_u32 s{sRow}, s{sRow}, 2\ns_and_b32 s{sRow}, s{sRow}, 15",
            (6, 2): f"s_lshl_b32 s{sFl}, s{sRow}, 7\ns_add_u32 s{sFl}, s{sFl}, s{sFB}",
            (10, 0): f"s_mov_b32 s{sPV}, 0\ns_atomic_add s{sPV}, {sr(sWS, 2)}, s{sFl} glc",
            (NT - 1, 2): f"s_sub_u32 s{sCnt}, s{sCnt}, 1\ns_cmp_lg_u32 s{sCnt}, 0",
        }

        def ex(n, k):
            for l in extra.get((n, k), "").split("\n"):
                if l.endswith(":"):
                    a.label(l[:-1])
                else:
                    a(l)

        a.raw(".p2align 6")
        a.label("L_attn")
        for n in range(NT):
            st, qt = divmod(n, 4)
            cur = S + 16 * (n & 1)
            E = lambda lo, hi: [a(f"v_exp_f32 v{cur + k}, v{cur + k}") for k in range(lo, hi)]
            pst, pqt = divmod((n - 1) % NT, 4)
            nst, nqt = divmod((n + 1) % NT, 4)
            ld = KV + 12 * ((st - 1) % NST)
            E(0, 2)
            a(sm(pst, pqt, 1, n - 1))
            ex(n, 0)
            if qt == 3:
                a(f"s_waitcnt vmcnt({3 * (NST - 2)})")
            E(2, 5)
            a(f"v_mfma_f32_32x32x16_bf16 {vr(S + 16 * ((n + 1) & 1), 16)}, {vr(KV + 12 * nst, 4)}, {vr(Q + 4 * nqt, 4)}, 0")
            ex(n, 1)
            if qt == 0:
                a(f"buffer_load_dwordx4 {vr(ld, 4)}, v{self.vKo}, {sr(sWS, 4)}, s{sOff} offen sc1")
            if qt == 2 and st:
                a(f"s_add_u32 s{sOff}, s{sOff}, 2048")
            E(5, 10)
            a(sm(st, qt, 0, n))
            ex(n, 2)
            if qt == 1:
                a(f"""s_mov_b64 exec, {sr(sVM, 2)}
                    buffer_load_dwordx4 {vr(ld + 4, 4)}, v{self.vVo}, {sr(sWS, 4)}, s{sOff} offen offset:1024 sc1
                    buffer_load_dwordx4 {vr(ld + 8, 4)}, v{self.vVo}, {sr(sWS, 4)}, s{sOff} offen offset:1536 sc1
                    s_mov_b64 exec, -1""")
            E(10, 16)
        a("s_cbranch_scc1 L_attn\ns_waitcnt lgkmcnt(0)")
        a(sm(NST - 1, 3, 1, NT - 1))

    def attn_finish(self):
        a = self.a
        O, T = self.O_, self.S_
        sA, sF = sT0, sT0 + 1
        a.lg.reset()
        a(f"""s_lshl_b32 s{sF}, s{sR}, 1
            s_add_u32 s{sF}, s{sF}, s{self.sQ}
            s_lshl_b32 s{sF}, s{sF}, 6
            s_lshl_b32 s{sA}, s{sC}, 1
            s_add_u32 s{sF}, s{sF}, s{sA}
            s_add_u32 s{sF}, s{sF}, s{self.sHd}
            s_lshl_b32 s{sA}, s{sF}, 10
            s_add_u32 s{sA}, s{sA}, {WS_O}
            s_lshr_b32 s{sF}, s{sF}, 4
            s_and_b32 s{sT0 + 2}, s{sF}, 1
            s_lshr_b32 s{sF}, s{sF}, 1
            s_add_u32 s{sF}, s{sF}, s{sT0 + 2}
            s_lshl_b32 s{sF}, s{sF}, 7
            s_add_u32 s{sF}, s{sF}, {CO}""")
        for q in range(2):
            o = O + 32 + 16 * q
            a(f"""ds_write_b128 v{self.vPa}, {vr(o, 4)} offset:{2304 * q}
                ds_write_b128 v{self.vPa}, {vr(o + 4, 4)} offset:{2304 * q + 1024}
                ds_write_b32 v{self.vPs}, v{o + 8} offset:{2304 * q + 2048}""")
        self.lds_signal(self.vCa, self.vOne, 0)
        self.lds_probe(self.vCa, 4, 0)
        a(f"""s_mul_i32 s{sT0 + 2}, s{self.sQ}, -18432
            s_add_u32 s{sT0 + 2}, s{sT0 + 2}, 9216
            v_add_u32 v{self.vPa}, s{sT0 + 2}, v{self.vPa}
            v_add_u32 v{self.vPs}, s{sT0 + 2}, v{self.vPs}""")
        self.lds_check(self.vCa, 4, 0, 2)
        self.stamp("pair", "L")
        for q in range(2):
            a(f"""ds_read_b128 {vr(T + 12 * q, 4)}, v{self.vPa} offset:{2304 * q}
                ds_read_b128 {vr(T + 12 * q + 4, 4)}, v{self.vPa} offset:{2304 * q + 1024}
                ds_read_b32 v{T + 12 * q + 8}, v{self.vPs} offset:{2304 * q + 2048}""")
        lo, hi = self.cfg.get("l_lo", 2.0 ** -24), self.cfg.get("l_hi", 2.0 ** 64)
        m = sT0 + 2
        for q in range(2):
            o, t = O + 16 * q, T + 12 * q
            a(f"s_waitcnt lgkmcnt({3 - 3 * q})")
            for k in range(4):
                a(f"v_pk_add_f32 {vr(o + 2 * k, 2)}, {vr(o + 2 * k, 2)}, {vr(t + 2 * k, 2)}")
            a(f"""v_add_f32 v{o + 8}, v{o + 8}, v{t + 8}
                v_pk_add_f32 {vr(t, 2)}, {vr(o, 2)}, {vr(o + 2, 2)}
                v_pk_add_f32 {vr(t + 2, 2)}, {vr(o + 4, 2)}, {vr(o + 6, 2)}
                v_cmp_lt_f32 vcc, {f32(lo)}, v{o + 8}
                v_pk_add_f32 {vr(t, 2)}, {vr(t, 2)}, {vr(t + 2, 2)}
                s_and_b64 {sr(m, 2)}, {'vcc' if q == 0 else sr(m, 2)}, vcc
                v_cmp_gt_f32 vcc, {f32(hi)}, v{o + 8}
                v_add_f32 v{t}, v{t}, v{t + 1}
                s_and_b64 {sr(m, 2)}, {sr(m, 2)}, vcc
                v_sub_f32 v{t}, v{t}, v{t}
                v_cmp_eq_f32 vcc, 0, v{t}
                s_and_b64 {sr(m, 2)}, {sr(m, 2)}, vcc""")
        a(f"s_cmp_eq_u64 {sr(m, 2)}, -1\ns_cbranch_scc0 L_fallback")
        a.label("L_normalise")
        for q in range(2):
            a(f"v_rcp_f32 v{O + 16 * q + 8}, v{O + 16 * q + 8}")
        for q in range(2):
            o = O + 16 * q
            for k in range(4):
                a(f"v_pk_mul_f32 {vr(o + 2 * k, 2)}, {vr(o + 2 * k, 2)}, {vr(o + 8, 2)} op_sel_hi:[1,0]")
            for k in range(4):
                a(f"v_cvt_pk_bf16_f32 v{T + 4 * q + k}, v{o + 2 * k}, v{o + 2 * k + 1}")
            a(f"buffer_store_dwordx4 {vr(T + 4 * q, 4)}, v{self.vKo}, {sr(sWS, 4)}, s{sA} offen sc1")
            if q == 0:
                a(f"s_add_u32 s{sA}, s{sA}, 32768")
        self.stamp("Ost", "L")
        a("s_waitcnt vmcnt(0)")
        self.signal(sF)

    def fallback(self):
        a = self.a
        S, M, K, V, vMx = self.S_, self.S_ + 16, self.KV_, self.KV_ + 4, 4
        sO, sN = sT0 + 2, sT0 + 3
        a.label("L_kv_wait")
        self.spoll(self.sFl, 8, "L_kv_ok")
        a.label("L_fallback")
        a("s_waitcnt vmcnt(0)")
        for q in range(2):
            O, Q = self.O_ + 16 * q, self.Q_ + 4 * q
            a(f"""v_mov_b32 v{vMx}, 0xff800000
                s_lshl_b32 s{sO}, s{sC}, 1
                s_add_u32 s{sO}, s{sO}, s{self.sHd}
                s_lshl_b32 s{sO}, s{sO}, 17
                s_mov_b32 s{sN}, 64""")
            a.label(f"L_fb_max{q}")
            a(f"""buffer_load_dwordx4 {vr(K, 4)}, v{self.vKo}, {sr(sWS, 4)}, s{sO} offen sc1
                s_waitcnt vmcnt(0)
                v_mfma_f32_32x32x16_bf16 {vr(S, 16)}, {vr(K, 4)}, {vr(Q, 4)}, 0
                s_nop 11""")
            for k in range(8):
                a(f"v_max3_f32 v{vMx}, v{S + 2 * k}, v{S + 2 * k + 1}, v{vMx}")
            a(f"""s_add_u32 s{sO}, s{sO}, 2048
                s_sub_u32 s{sN}, s{sN}, 1
                s_cmp_lg_u32 s{sN}, 0
                s_cbranch_scc1 L_fb_max{q}
                v_mov_b32 v{M}, v{vMx}
                s_nop 1
                v_permlane32_swap_b32 v{vMx}, v{M}
                s_nop 1
                v_max_f32 v{vMx}, v{vMx}, v{M}
                s_sub_u32 s{sO}, s{sO}, 131072
                s_mov_b32 s{sN}, 64""")
            for k in range(16):
                a(f"v_sub_f32 v{M + k}, 0, v{vMx}\nv_mov_b32 v{O + k}, 0")
            a.label(f"L_fb_sum{q}")
            a(f"""buffer_load_dwordx4 {vr(K, 4)}, v{self.vKo}, {sr(sWS, 4)}, s{sO} offen sc1
                s_mov_b64 exec, {sr(sVM, 2)}
                buffer_load_dwordx4 {vr(V, 4)}, v{self.vVo}, {sr(sWS, 4)}, s{sO} offen offset:1024 sc1
                buffer_load_dwordx4 {vr(V + 4, 4)}, v{self.vVo}, {sr(sWS, 4)}, s{sO} offen offset:1536 sc1
                s_mov_b64 exec, -1
                s_waitcnt vmcnt(0)
                v_mfma_f32_32x32x16_bf16 {vr(S, 16)}, {vr(K, 4)}, {vr(Q, 4)}, {vr(M, 16)}
                s_nop 11""")
            for k in range(16):
                a(f"v_exp_f32 v{S + k}, v{S + k}")
            a(f"""s_nop 1
                v_smfmac_f32_32x32x32_bf16 {vr(O, 16)}, {vr(V, 4)}, {vr(S, 8)}, v{self.vIDX}
                v_smfmac_f32_32x32x32_bf16 {vr(O, 16)}, {vr(V + 4, 4)}, {vr(S + 8, 8)}, v{self.vIDX}
                s_nop 7
                s_add_u32 s{sO}, s{sO}, 2048
                s_sub_u32 s{sN}, s{sN}, 1
                s_cmp_lg_u32 s{sN}, 0
                s_cbranch_scc1 L_fb_sum{q}
                s_nop 3""")
        a("s_branch L_normalise")

    XR, ACC, WS_ = 128, 32, 8
    vFlo, vFhi, vF, vCnt, v1_, vTmp = 0, 1, 2, 5, 6, 7

    def m_setup(self):
        a = self.a
        self.vXA, self.vXAh, self.vWk, self.vWkh, self.vQa, self.vST, self.vGo, self.vQFa, self.vGa = 80, 84, 88, 90, 92, 93, 94, 95, 96
        self.kload(sDBG, sWG, sWU, sWD, sWO, sOUT, sGW)
        self.srd(sDBG, sWG, sWU, sWD, sWO, sOUT, sGW)
        a(f"""s_lshl_b32 s{sRB}, s{sT0}, 2
            s_and_b32 s{sT0 + 2}, s{sT0 + 1}, 3
            s_add_u32 s{sRB}, s{sRB}, s{sT0 + 2}
            s_lshr_b32 s{sCB}, s{sT0 + 1}, 2
            v_and_b32 v16, 31, v0
            v_lshrrev_b32 v17, 5, v0
            v_bfe_u32 v18, v0, 1, 3
            v_xor_b32 v18, v18, v17
            s_lshl_b32 s{sT0}, s{sT}, 12
            v_lshlrev_b32 v19, 7, v16
            v_lshl_add_u32 v19, v18, 4, v19
            v_add_u32 v{self.vXA}, s{sT0}, v19""")
        for s in range(1, 4):
            a(f"v_xor_b32 v{self.vXA + s}, {32 * s}, v{self.vXA}")
        for s in range(4):
            a(f"v_add_u32 v{self.vXAh + s}, 0x10000, v{self.vXA + s}")
        a(f"""v_bfe_u32 v18, v0, 2, 2
            v_lshl_add_u32 v18, v17, 3, v18
            v_bfe_u32 v19, v0, 4, 1
            v_and_b32 v20, 3, v0
            v_lshlrev_b32 v20, 3, v20
            v_lshl_add_u32 v20, v19, 5, v20
            v_bfe_u32 v21, v0, 3, 1
            v_lshl_add_u32 v22, v18, 7, v20
            v_lshl_add_u32 v{self.vWk}, v21, 6, v22
            v_xor_b32 v{self.vWk + 1}, 64, v{self.vWk}
            v_add_u32 v{self.vWkh}, 0x10000, v{self.vWk}
            v_add_u32 v{self.vWkh + 1}, 0x10000, v{self.vWk + 1}
            v_lshl_add_u32 v{self.vQa}, v18, 6, v20
            v_add_u32 v{self.vQa}, {QW}, v{self.vQa}
            s_lshl_b32 s{sT0}, s{sT}, 10
            s_add_u32 s{sT0}, s{sT0}, {QF}
            v_lshl_add_u32 v{self.vQFa}, v0, 4, s{sT0}
            v_mul_u32_u24 v22, 192, v18
            v_and_b32 v23, 0x33, v0
            v_bfe_u32 v25, v0, 2, 1
            v_lshl_add_u32 v23, v25, 3, v23
            v_lshl_add_u32 v23, v21, 2, v23
            v_lshlrev_b32 v23, 4, v23
            v_and_b32 v24, 15, v0
            v_lshlrev_b32 v{self.vGa}, 2, v24
            v_lshlrev_b32 v24, 4, v24
            v_lshl_add_u32 v24, v17, 8, v24
            v_lshl_add_u32 v24, v19, 17, v24
            v_add_u32 v24, 1024, v24
            v_lshlrev_b32 v26, 4, v0
            s_lshl_b32 s{sT0}, s{sT}, 4""")
        for k in range(3):
            a(f"""v_add_u32 v27, {64 * k}, v0
                v_mul_u32_u24 v28, 2731, v27
                v_lshrrev_b32 v28, 15, v28
                v_mul_u32_u24 v29, 12, v28
                v_sub_u32 v29, v27, v29
                v_add_u32 v28, s{sT0}, v28
                v_mul_u32_u24 v28, 2752, v28
                v_lshl_add_u32 v{self.vF + k}, v29, 4, v28""")
        a(f"""v_add_u32 v{self.vFlo}, v22, v20
            v_add_u32 v{self.vFhi}, 0x10000, v{self.vFlo}
            v_mov_b32 v{self.vCnt}, {CNT}
            v_lshl_add_u32 v{self.v1_}, v26, 3, 4""")
        for i in range(4):
            a(f"v_mov_b32 v{100 + i}, 0")
        a(f"ds_write_b128 v{self.vCnt}, v[100:103]\nds_write_b128 v{self.vCnt}, v[100:103] offset:16\ns_waitcnt lgkmcnt(0)")
        skip = self.lab("noreset")
        a(f"""s_lshr_b32 s{sT0}, s2, 4
            s_or_b32 s{sT0}, s{sT0}, s{sW}
            s_cmp_lg_u32 s{sT0}, 0
            s_cbranch_scc1 {skip}
            s_mul_i32 s{sT0}, s2, 2560
            s_add_u32 s{sT0}, s{sT0}, {WS_FLAG}
            v_lshlrev_b32 v26, 3, v26
            s_mov_b64 exec, 0xfffff
            buffer_store_dword v100, v26, {sr(sWS, 4)}, s{sT0} offen sc1
            s_mov_b64 exec, -1""")
        a.label(skip)

    def pass_a(self, isv):
        a = self.a
        a.lg.reset()
        a.vm.reset()
        a(f"v_mov_b32 v{self.vST}, v{24 if isv else 23}")
        XR, ACC, W = self.XR, self.ACC, self.WS_
        sB = sT0 + 2

        def reads(g):
            i, s = divmod(g, 4)
            B = slot(i)
            self.dsr("ds_read_b128", XR + 4 * g, 4, self.vXA + s, self.vXAh + s, B, ("x", g))
            for ct in range(2):
                for u in range(2):
                    self.dsr("ds_read_b64_tr_b16", W + 8 * (g % 3) + 4 * ct + 2 * u, 2, self.vWk + ct, self.vWkh + ct,
                             B + 16384 + (16 * s + 4 * u) * 128, ("w", g, ct))

        def comp(g):
            for ct in range(2):
                a.lg.wait(("x", g), ("w", g, ct))
                wf, xf = vr(W + 8 * (g % 3) + 4 * ct, 4), vr(XR + 4 * g, 4)
                d = vr(ACC + 16 * ct, 16)
                A, Bm = (xf, wf) if isv else (wf, xf)
                a(f"v_mfma_f32_32x32x16_bf16 {d}, {A}, {Bm}, {d if g else 0}")

        for i in range(8):
            g0 = 4 * i
            if i:
                a.lg.drain()
            a("s_barrier")
            if i == 0:
                self.stamp("BA0", "M")
            reads(g0)
            reads(g0 + 1)
            if i:
                comp(g0 - 1)
            reads(g0 + 2)
            if i == 1:
                skip = self.lab("nogo")
                a(f"""s_lshr_b32 s{sT0}, s2, 4
                    s_or_b32 s{sT0}, s{sT0}, s{sW}
                    s_cmp_lg_u32 s{sT0}, 0
                    s_cbranch_scc1 {skip}
                    s_lshl_b32 s{sT0}, s2, 2
                    s_waitcnt vmcnt(0)""")
                self.set_flag(f"s{sT0}", self.v1_, sDBG)
                a.label(skip)
            if i == 2:
                a(f"""s_lshr_b32 s{sB}, s{sC}, 1
                    s_lshl_b32 s{sB}, s{sB}, 19
                    s_lshl_b32 s{sB + 1}, s{sR}, 2
                    s_add_u32 s{sB + 1}, s{sB + 1}, s{sT}
                    s_lshl_b32 s{sB + 1}, s{sB + 1}, 11
                    s_add_u32 s{sB}, s{sB}, s{sB + 1}""")
            if i == 5:
                a(f"buffer_load_dword v{self.vGo}, v{self.vGa}, {sr(sDBG, 4)}, 0 offen sc1")
            comp(g0)
            reads(g0 + 3)
            comp(g0 + 1)
            comp(g0 + 2)
        comp(31)
        a("s_nop 10")
        for ct in range(2):
            for q in range(2):
                d = 112 + 8 * ct + 4 * q
                for k in range(4):
                    s = ACC + 16 * ct + 8 * q + 2 * k
                    a(f"v_cvt_pk_bf16_f32 v{d + k}, v{s}, v{s + 1}")
                if isv:
                    a(f"buffer_store_dwordx4 {vr(d, 4)}, v{self.vST}, {sr(sWS, 4)}, s{sB} offen offset:{512 * q} sc1")
                    if q == 1 and ct == 0:
                        a(f"s_add_u32 s{sB}, s{sB}, 262144")
                else:
                    a(f"buffer_store_dwordx4 {vr(d, 4)}, v{self.vST}, {sr(sWS, 4)}, s{sB} offen sc1")
                    a(f"s_add_u32 s{sB}, s{sB}, 131072")
        self.stamp("KVst", "M")

    def kv_flag(self):
        a = self.a
        ok = self.lab("go")
        a(f"""s_lshr_b32 s{sT0}, s{sC}, 1
            s_lshl_b32 s{sT0}, s{sT0}, 4
            s_add_u32 s{sT0}, s{sT0}, s{sR}
            s_lshl_b32 s{sT0}, s{sT0}, 7
            s_add_u32 s{sT0}, s{sT0}, {CKV}
            s_waitcnt vmcnt({4 + len(a.vm.q)})
            v_cmp_eq_u32 vcc, 0, v{self.vGo}
            s_cbranch_vccz {ok}""")
        q = list(a.vm.q)
        self.poll(self.vGa, "0", self.vGo, sDBG)
        a.vm.q = q
        a.label(ok)

    def issue_f(self, i):
        a = self.a
        sCh, sO, sFB, sLf = sT0 + 4, sT0 + 5, sT0 + 6, sT0 + 7
        if i == 0:
            a(f"s_mul_i32 s{sFB}, s{sC}, 192\ns_mul_i32 s{sLf}, s{sT}, 3072")
        self.chunk(sCh, i)
        a(f"s_mul_i32 s{sO}, s{sCh}, 176128\ns_add_u32 s{sO}, s{sO}, s{sFB}")
        for m in range(2):
            for k in range(3):
                a(f"s_add_u32 m0, s{sLf}, {slot(i) + 12288 * m + 1024 * k}\ns_nop 0")
                a(f"buffer_load_dwordx4 v{self.vF + k}, {sr(sWG if m == 0 else sWU, 4)}, s{sO} offen lds")
                a.vm.issue(("F", i))

    def touch(self, i, vA):
        a = self.a
        sA = sT0 + 8
        a(f"""s_lshr_b32 s{sA}, s2, 3
            s_lshl_b32 s{sA}, s{sA}, 2
            s_add_u32 s{sA}, s{sA}, s{sT}
            s_mul_i32 s{sA}, s{sA}, {11008 if i < 6 else 4096}
            s_add_u32 s{sA}, s{sA}, {2048 * (i if i < 6 else i - 6)}
            s_mov_b32 m0, {CNT + 64}
            s_mov_b64 exec, {'0x3f' if i == 5 else '0xffff'}
            buffer_load_dword v{vA}, {sr(sWD if i < 6 else sWO, 4)}, s{sA} offen lds
            s_mov_b64 exec, -1""")
        a.vm.issue("touch")

    def pass_q(self):
        a = self.a
        XR, W, QACC = self.XR, self.WS_, 64
        a.lg.reset()
        a.vm.reset()
        flag_at, f0_at = self.cfg["kvflag_at"], self.cfg["f0_at"]

        def reads(g):
            for u in range(2):
                self.dsr("ds_read_b64_tr_b16", W + 4 * (g % 6) + 2 * u, 2, self.vQa, None, (16 * g + 4 * u) * 64, g)

        def hooks(j):
            if j == flag_at:
                if a.vm.q:
                    a(f"s_cmp_eq_u32 s{sC}, 15\ns_cbranch_scc0 L_kvw\ns_waitcnt vmcnt(0)")
                    a.label("L_kvw")
                a(f"s_waitcnt vmcnt({len(a.vm.q)})")
                self.signal(sT0)
                self.stamp("KVflag", "M")
            if j == f0_at:
                skip = self.lab("nof0")
                a(f"s_cmp_eq_u32 s{sC}, 15\ns_cbranch_scc1 {skip}")
                self.issue_f(0)
                a.label(skip)
            if self.cfg["f1_early"] and j == self.cfg["f1_early"]:
                skip = self.lab("nof1")
                a(f"s_cmp_eq_u32 s{sC}, 15\ns_cbranch_scc1 {skip}")
                self.issue_f(1)
                a.label(skip)

        if self.cfg["bs"]:
            a("s_barrier")
        self.kv_flag()
        hooks(-2)
        hooks(-1)
        self.stamp("F0iss", "M")
        a("s_barrier")
        self.stamp("BQ", "M")
        for g in range(6):
            reads(g)
        nxt = 6
        for g in range(32):
            a.lg.wait(g)
            d = vr(QACC, 16)
            a(f"v_mfma_f32_32x32x16_bf16 {d}, {vr(W + 4 * (g % 6), 4)}, {vr(XR + 4 * g, 4)}, {d if g else 0}")
            if nxt < 32:
                reads(nxt)
                nxt += 1
            hooks(g)
        a(f"v_mov_b32 v98, {f32(0.25 * LOG2E)}\ns_nop 10")
        for k in range(8):
            a(f"v_pk_mul_f32 {vr(QACC + 2 * k, 2)}, {vr(QACC + 2 * k, 2)}, v[98:99] op_sel_hi:[1,0]")
        for hd in range(2):
            for k in range(4 * hd, 4 * hd + 4):
                a(f"v_cvt_pk_bf16_f32 v{QACC + k}, v{QACC + 2 * k}, v{QACC + 2 * k + 1}")
            a(f"ds_write_b128 v{self.vQFa}, {vr(QACC + 4 * hd, 4)} offset:{4096 * hd}")
        self.lds_signal(self.vCnt, self.v1_, 16)
        self.stamp("Qdone", "M")
        hooks(32)

    def pass_f(self):
        a = self.a
        XR, ACC, W = self.XR, self.ACC, self.WS_
        N = 192

        def reads(j):
            g, t = divmod(j, 6)
            i, s = divmod(g, 4)
            for u in range(2):
                self.dsr("ds_read_b64_tr_b16", W + 4 * (j % 6) + 2 * u, 2, self.vFlo, self.vFhi,
                         slot(i) + 12288 * (t & 1) + (16 * s + 4 * u) * 192 + 64 * (t >> 1), j)

        def landed(i):
            a.vm.wait(("F", i))
            self.lds_signal(self.vCnt, self.v1_, 0)
            if i + 1 < 8 and not (i == 0 and self.cfg["f1_early"]):
                self.issue_f(i + 1)
            if self.cfg["touch"]:
                self.touch(i, self.v1_)

        landed(0)
        self.lds_probe(self.vCnt, self.vTmp, 0)
        self.lds_check(self.vCnt, self.vTmp, 0, 16)
        self.stamp("F0", "M")
        for j in range(6):
            reads(j)
        sig = self.cfg["sig_at"]
        for j in range(N):
            g, t = divmod(j, 6)
            i, jj = divmod(j, 24)
            a.lg.wait(j)
            d = vr(ACC + 16 * t, 16)
            a(f"v_mfma_f32_32x32x16_bf16 {d}, {vr(W + 4 * (j % 6), 4)}, {vr(XR + 4 * g, 4)}, {d if g else 0}")
            if jj == 23:
                self.stamp(f"f{i}", "M")
            if i < 7:
                if jj == sig:
                    landed(i + 1)
                if jj == 15:
                    self.lds_probe(self.vCnt, self.vTmp, 0)
                if jj == 18:
                    self.lds_check(self.vCnt, self.vTmp, 0, 16 * (i + 2))
            if j + 6 < N:
                reads(j + 6)
        self.lds_signal(self.vCnt, self.v1_, 0)
        self.stamp("Fdone", "M")

    def gelu(self):
        a = self.a
        ACC = self.ACC
        c0, c1, T, OUT, vOff = 130, 132, 136, 168, 134
        k0 = -2.0 * 0.7978845608028654 * LOG2E
        self.lane(vOff)
        a(f"""v_mov_b32 v{c0}, {f32(k0)}
            v_mov_b32 v{c0 + 1}, {f32(k0)}
            v_mov_b32 v{c1}, {f32(k0 * 0.044715)}
            v_mov_b32 v{c1 + 1}, {f32(k0 * 0.044715)}
            v_lshlrev_b32 v{vOff}, 4, v{vOff}
            s_lshl_b32 s{sT0}, s{sR}, 2
            s_add_u32 s{sT0}, s{sT0}, s{sT}
            s_mul_i32 s{sT0}, s{sT0}, 86
            s_mul_i32 s{sT0 + 1}, s{sC}, 6
            s_add_u32 s{sT0}, s{sT0}, s{sT0 + 1}
            s_lshl_b32 s{sT0}, s{sT0}, 10
            s_add_u32 s{sT0}, s{sT0}, {WS_H}""")
        for j in range(3):
            G, U = ACC + 32 * j, ACC + 32 * j + 16
            p = lambda b, k: vr(b + 2 * k, 2)
            for k in range(8):
                a(f"v_pk_mul_f32 {p(T, k)}, {p(G, k)}, {p(G, k)}")
            for k in range(8):
                a(f"v_pk_fma_f32 {p(T, k)}, {p(T, k)}, {vr(c1, 2)}, {vr(c0, 2)}")
            for k in range(8):
                a(f"v_pk_mul_f32 {p(T, k)}, {p(T, k)}, {p(G, k)}")
            for k in range(16):
                a(f"v_exp_f32 v{T + k}, v{T + k}")
            for k in range(8):
                a(f"v_pk_mul_f32 {p(G, k)}, {p(G, k)}, {p(U, k)}")
            for k in range(8):
                a(f"v_pk_add_f32 {p(T, k)}, {p(T, k)}, 1.0 op_sel_hi:[1,0]")
            for k in range(16):
                a(f"v_rcp_f32 v{T + k}, v{T + k}")
            a(f"""s_cmp_lt_u32 s{sT0 + 1}, {86 - 2 * j}
                s_cselect_b32 s{sT0 + 2}, s{sT0}, {OOB}""")
            for k in range(8):
                a(f"v_pk_mul_f32 {p(G, k)}, {p(G, k)}, {p(T, k)}")
            for q in range(2):
                d = OUT + 8 * j + 4 * q
                for k in range(4):
                    a(f"v_cvt_pk_bf16_f32 v{d + k}, v{G + 8 * q + 2 * k}, v{G + 8 * q + 2 * k + 1}")
                a(f"buffer_store_dwordx4 {vr(d, 4)}, v{vOff}, {sr(sWS, 4)}, s{sT0 + 2} offen offset:{1024 * q} sc1")
            a(f"s_add_u32 s{sT0}, s{sT0}, 2048")
        self.lds_probe(self.vCnt, self.vTmp, 0)
        self.lds_check(self.vCnt, self.vTmp, 0, 144)

    def gate(self):
        a = self.a
        XR, GB, Z, vO = self.XR, 32, 8, 12
        sCh = sT0 + 4
        a("s_waitcnt vmcnt(0)")
        a.vm.reset()
        self.lane(vO + 1)
        a(f"v_lshrrev_b32 v{vO}, 5, v{vO + 1}\nv_lshlrev_b32 v{vO}, 4, v{vO}")
        for k in range(4):
            a(f"v_mov_b32 v{Z + k}, 0")
        for half in range(2):
            for i in range(4 * half, 4 * half + 4):
                self.chunk(sCh, i)
                a(f"s_lshl_b32 s{sCh}, s{sCh}, 7")
                for s in range(4):
                    a(f"buffer_load_dwordx4 {vr(GB + 16 * (i & 3) + 4 * s, 4)}, v{vO}, {sr(sGW, 4)}, s{sCh} offen offset:{32 * s}")
            if self.cfg["touch"]:
                for i in range(4 * half, 4 * half + 4):
                    self.touch(i, self.v1_)
            a("s_waitcnt vmcnt(0)")
            for k in range(64):
                a(f"v_dot2c_f32_bf16 v{Z + (k & 3)}, v{XR + 64 * half + k}, v{GB + k}")
        a(f"""s_lshl_b32 s{sT0}, s{sR}, 2
            s_add_u32 s{sT0}, s{sT0}, s{sT}
            s_lshl_b32 s{sT0}, s{sT0}, 7
            s_add_u32 s{sT0}, s{sT0}, {WS_G}
            v_add_f32 v{Z}, v{Z}, v{Z + 1}
            v_add_f32 v{Z + 2}, v{Z + 2}, v{Z + 3}
            v_add_f32 v{Z}, v{Z}, v{Z + 2}
            v_mov_b32 v{Z + 1}, v{Z}
            v_lshlrev_b32 v{vO}, 2, v{vO + 1}
            s_nop 0
            v_permlane32_swap_b32 v{Z}, v{Z + 1}
            s_nop 1
            v_add_f32 v{Z}, v{Z}, v{Z + 1}
            s_mov_b32 exec_hi, 0
            buffer_store_dword v{Z}, v{vO}, {sr(sWS, 4)}, s{sT0} offen sc1
            s_mov_b64 exec, -1""")
        a.lg.reset()
        self.lds_probe(self.vCnt, self.vTmp, 16)
        self.lds_check(self.vCnt, self.vTmp, 16, 16)

    def ffn2(self):
        a = self.a
        ACC, HS, WB = 32, 128, 96
        vL, vD, vH, vA0, vA1, vOw, vOt, vDump, vP, vZ, vD2, vH2 = range(8, 20)
        self.vL, self.vH, self.vDump, self.vZ, self.vOw, self.vOt, self.vP = vL, vH, vDump, vZ, vOw, vOt, vP
        sRing, sS0, sS1, sWc, sW0, sWe, sHc, sH0, sHe, sHl, sFl, sRow = range(sT0, sT0 + 12)
        self.sRow = sRow
        NS, PD, NR, NH, CAP = 22, self.cfg["pd"], 16, 16, self.cfg["cap"]
        self.lane(vL)
        a(f"""s_lshl_b32 s{sRing}, s{sT}, 15
            v_lshrrev_b32 v20, 3, v{vL}
            v_and_b32 v21, 7, v{vL}
            v_bfe_u32 v22, v{vL}, 4, 1
            v_lshlrev_b32 v23, 2, v22
            v_xor_b32 v21, v21, v23
            v_lshlrev_b32 v21, 4, v21
            v_lshl_add_u32 v{vD}, v20, 10, v21
            v_add_u32 v{vD2}, 7168, v{vD}
            s_and_b32 s{sS0}, s{sRB}, 3
            s_lshl_b32 s{sS0}, s{sS0}, 1
            s_add_u32 s{sS0}, s{sS0}, s{sCB}
            s_and_b32 s{sS0}, s{sS0}, {7 if self.cfg['rot2'] else 0}
            s_mul_i32 s{sS0}, s{sS0}, 11
            s_lshr_b32 s{sS0}, s{sS0}, 2
            s_mul_i32 s{sS1}, s{sT}, {NS}
            s_lshl_b32 s{sW0}, s{sS1}, 14
            s_lshl_b32 s{sWc}, s{sCB}, 7
            s_add_u32 s{sW0}, s{sW0}, s{sWc}
            s_add_u32 s{sWe}, s{sW0}, {NS * 16384}
            s_lshl_b32 s{sWc}, s{sS0}, 14
            s_add_u32 s{sWc}, s{sWc}, s{sW0}
            s_mul_i32 s{sHl}, s{sRB}, 172
            s_add_u32 s{sH0}, s{sHl}, s{sS1}
            s_lshl_b32 s{sH0}, s{sH0}, 10
            s_add_u32 s{sH0}, s{sH0}, {WS_H}
            s_add_u32 s{sHe}, s{sH0}, {NS * 1024}
            s_lshl_b32 s{sHc}, s{sS0}, 10
            s_add_u32 s{sHc}, s{sHc}, s{sH0}
            s_lshl_b32 s{sHl}, s{sHl}, 10
            s_add_u32 s{sHl}, s{sHl}, {WS_H + 86 * 1024}
            s_lshl_b32 s{sFl}, s{sR}, 1
            s_lshr_b32 s{sS0}, s{sT}, 1
            s_add_u32 s{sFl}, s{sFl}, s{sS0}
            s_lshl_b32 s{sFl}, s{sFl}, 9
            s_add_u32 s{sFl}, s{sFl}, {CH}
            s_mov_b32 s{sRow}, 0x62223111
            s_cmp_ge_u32 s{sC}, 8
            s_cselect_b32 s{sRow}, 0xf8888444, s{sRow}
            s_and_b32 s{sS0}, s{sC}, 7
            s_lshl_b32 s{sS0}, s{sS0}, 2
            s_lshr_b32 s{sRow}, s{sRow}, s{sS0}""")

        def setup2():
            a(f"""v_lshlrev_b32 v{vH}, 4, v{vL}
                v_add_u32 v{vH2}, 88064, v{vH}
                v_add_u32 v{vDump}, s{sRing}, v{vH}
                v_lshrrev_b32 v20, 5, v{vL}
                v_bfe_u32 v21, v{vL}, 2, 2
                v_lshl_add_u32 v20, v20, 2, v21
                v_and_b32 v21, 1, v{vL}
                v_lshlrev_b32 v21, 2, v21
                v_lshl_add_u32 v21, v22, 1, v21
                v_bfe_u32 v23, v{vL}, 1, 1
                v_add_u32 v21, v21, v23
                v_lshlrev_b32 v21, 3, v21
                v_lshl_add_u32 v21, v20, 7, v21
                v_bfe_u32 v23, v{vL}, 3, 1
                v_lshl_add_u32 v21, v23, 6, v21
                v_add_u32 v{vA0}, s{sRing}, v21
                v_xor_b32 v{vA1}, 64, v{vA0}
                s_lshr_b32 s{sS0}, s{sT}, 1
                s_lshl_b32 s{sS0}, s{sS0}, 6
                v_xor_b32 v{vOw}, s{sS0}, v{vA0}
                v_and_b32 v{vOw}, 0xffff7fff, v{vOw}
                v_xor_b32 v{vOt}, 64, v{vOw}
                v_and_b32 v{vZ}, 31, v{vL}
                v_lshlrev_b32 v{vZ}, 2, v{vZ}
                s_setprio {self.cfg['prio_m']}""")

        a.lg.reset()
        a.vm.reset()
        a.vm.issue("H")

        def cap():
            if len(a.vm.q) > CAP:
                a.vm.q = a.vm.q[len(a.vm.q) - CAP:]
                a(f"s_waitcnt vmcnt({CAP})")

        def issue_w(s):
            if NS <= s < 24 or s >= 32:
                return
            a(f"s_add_u32 m0, s{sRing}, {(s % NR) * 2048}")
            if s == 24:
                a(f"""s_lshl_b32 s{sWc}, s{sT}, 17
                    s_lshl_b32 s{sS0}, s{sCB}, 7
                    s_add_u32 s{sWc}, s{sWc}, s{sS0}""")
            elif s:
                a(f"s_add_u32 s{sWc}, s{sWc}, 16384")
                if s < NS:
                    a(f"s_cmp_eq_u32 s{sWc}, s{sWe}\ns_cselect_b32 s{sWc}, s{sW0}, s{sWc}")
            else:
                a("s_nop 0")
            srd = sr(sWD if s < NS else sWO, 4)
            a(f"buffer_load_dwordx4 v{vD}, {srd}, s{sWc} offen lds")
            a(f"buffer_load_dwordx4 v{vD2}, {srd}, s{sWc} offen offset:1024 lds")
            a.vm.issue(("w", s))
            a.vm.issue(("w", s))

        def issue_h(s):
            if s >= NS:
                return
            if s:
                a(f"""s_add_u32 s{sHc}, s{sHc}, 1024
                    s_cmp_eq_u32 s{sHc}, s{sHe}
                    s_cselect_b32 s{sHc}, s{sH0}, s{sHc}""")
            a(f"s_cmp_lt_u32 s{sHc}, s{sHl}\ns_cselect_b32 s{sS0}, s{sHc}, {OOB}")
            for tt in range(2):
                a(f"buffer_load_dwordx4 {vr(HS + 8 * (s % NH) + 4 * tt, 4)}, v{(vH, vH2)[tt]}, {sr(sWS, 4)}, s{sS0} offen sc1")
                a.vm.issue(("h", s))

        def reads(s):
            if s >= NS:
                return
            a.vm.wait(("w", s))
            for ct in range(2):
                for u in range(2):
                    self.dsr("ds_read_b64_tr_b16", WB + 8 * (s % 3) + 4 * ct + 2 * u, 2, (vA0, vA1)[ct], None,
                             (s % NR) * 2048 + 1024 * u, (s, ct))

        for s in range(NR):
            issue_w(s)
            if s == 1:
                setup2()
                a.vm.wait("H")
                for k in range(4):
                    skip = self.lab("nosig")
                    a(f"s_bitcmp1_b32 s{sRow}, {k}\ns_cbranch_scc0 {skip}")
                    self.signal(sFl)
                    a.label(skip)
                    a(f"s_add_u32 s{sFl}, s{sFl}, 128")
                self.stamp("Hflag", "M")
            cap()
        self.stamp("W0", "M")
        a(f"""s_lshl_b32 s{sFl}, s{sRB}, 2
            s_add_u32 s{sFl}, s{sFl}, s{sT}
            s_lshl_b32 s{sFl}, s{sFl}, 7
            s_add_u32 s{sFl}, s{sFl}, {CH}
            s_cmp_eq_u32 s{sT}, 1
            s_cselect_b32 s{sRow}, 12, 10""")
        self.spoll(sFl, f"s{sRow}")
        self.stamp("Hpoll", "M")
        for s in range(PD):
            issue_h(s)
        a(f"""s_lshl_b32 s{sFl}, s{sRB}, 1
            s_and_b32 s{sS0}, s{sT}, 1
            s_add_u32 s{sFl}, s{sFl}, s{sS0}
            s_lshl_b32 s{sFl}, s{sFl}, 7
            s_add_u32 s{sFl}, s{sFl}, {WS_G}
            buffer_load_dword v{vZ}, v{vZ}, {sr(sWS, 4)}, s{sFl} offen sc1""")
        a.vm.issue("z")
        reads(0)
        reads(1)
        for s in range(NS):
            a.vm.wait(("h", s))
            self.stamp(f"s{s}", "M")
            for k in range(4):
                ct, tt = divmod(k, 2)
                a.lg.wait((s, ct))
                d = vr(ACC + 32 * tt + 16 * ct, 16)
                a(f"v_mfma_f32_32x32x16_bf16 {d}, {vr(WB + 8 * (s % 3) + 4 * ct, 4)}, {vr(HS + 8 * (s % NH) + 4 * tt, 4)}, {d if s else 0}")
                if k == 0:
                    issue_h(s + PD)
                if k == 1:
                    reads(s + 2)
                if k == 2:
                    issue_w(s + NR)
        self.stamp("s22", "M")
        a("s_nop 8")
        for k in (0, 1, 2, 3, 8, 9, 10, 11, 4, 5, 6, 7, 12, 13, 14, 15):
            a(f"ds_write_b128 v{vDump}, {vr(ACC + 4 * k, 4)} offset:{1024 * k}")
        a.vm.drain()
        a.lg.drain()
        self.lds_signal(self.vCnt, self.v1_, 4)
        self.stamp("dump", "M")

    def final(self):
        a = self.a
        OF, OWN, OTH, B, WO = 32, 96, 112, 16, 128
        vL, vH, vX, vZ = self.vL, self.vH, self.vDump, self.vZ
        vA, vAh, vFl, vOut, vXp, vG = 11, 12, 0, 1, 9, 2
        sTT, sKh = sT0 + 4, sT0 + 5
        self.lds_probe(self.vCnt, self.vTmp, 4)
        a(f"""s_and_b32 s{sTT}, s{sT}, 1
            s_lshr_b32 s{sKh}, s{sT}, 1
            s_lshl_b32 s{sT0 + 1}, s{sTT}, 1
            s_add_u32 s{sT0 + 1}, s{sT0 + 1}, s{sKh}
            s_lshl_b32 s{sT0 + 1}, s{sT0 + 1}, 12
            v_mul_f32 v{vG}, {f32(LOG2E)}, v{vZ}
            v_add_u32 v{vA}, s{sT0 + 1}, v{vH}
            v_add_u32 v{vX}, s{sT0 + 1}, v{vX}
            v_exp_f32 v{vG + 2}, v{vG}
            v_exp_f32 v{vG}, -v{vG}
            v_add_u32 v{vAh}, 0x10000, v{vA}
            v_add_f32 v{vG + 2}, 1.0, v{vG + 2}
            v_add_f32 v{vG}, 1.0, v{vG}
            v_rcp_f32 v{vG + 2}, v{vG + 2}
            v_rcp_f32 v{vG}, v{vG}
            s_lshl_b32 s{sT0 + 1}, s{sRB}, 1
            s_add_u32 s{sT0 + 1}, s{sT0 + 1}, s{sTT}
            s_lshl_b32 s{sT0 + 2}, s{sT0 + 1}, 5
            s_lshl_b32 s{sT0 + 3}, s{sKh}, 4
            s_add_u32 s{sT0 + 2}, s{sT0 + 2}, s{sT0 + 3}
            s_lshl_b32 s{sT0}, s{sRB}, 1
            s_add_u32 s{sT0}, s{sT0}, s{sKh}
            s_lshl_b32 s{sT0}, s{sT0}, 7
            s_add_u32 s{sT0}, s{sT0}, {CO}
            s_lshl_b32 s{sT0 + 2}, s{sT0 + 2}, 10
            s_add_u32 s{sT0 + 2}, s{sT0 + 2}, {WS_O}
            v_and_b32 v{vOut}, 31, v{vL}
            v_lshlrev_b32 v{vOut}, 10, v{vOut}
            v_lshrrev_b32 v{vXp}, 5, v{vL}
            v_lshl_add_u32 v{vOut}, v{vXp}, 5, v{vOut}
            s_lshl_b32 s{sT0 + 1}, s{sT0 + 1}, 15
            s_lshl_b32 s{sT0 + 3}, s{sCB}, 7
            s_add_u32 s{sT0 + 1}, s{sT0 + 1}, s{sT0 + 3}
            s_lshl_b32 s{sT0 + 3}, s{sKh}, 6
            s_add_u32 s{sT0 + 1}, s{sT0 + 1}, s{sT0 + 3}
            v_xor_b32 v{vXp}, 0x11000, v{vX}""")
        self.lds_check(self.vCnt, self.vTmp, 4, 16)
        self.stamp("msync", "M")
        a.lg.reset()
        dsts = (B, 32, 48, 64)
        for i in range(4):
            for q in range(4):
                self.dsr("ds_read_b128", dsts[i] + 4 * q, 4, vA, vAh, 32768 * i + 1024 * q, i)
            if i >= 2:
                a.lg.wait(i - 1)
                for k in range(8):
                    a(f"v_pk_add_f32 {vr(B + 2 * k, 2)}, {vr(B + 2 * k, 2)}, {vr(dsts[i - 1] + 2 * k, 2)}")
        for s in range(16):
            for ct in range(2):
                for u in range(2):
                    self.dsr("ds_read_b64_tr_b16", WO + 8 * s + 4 * ct + 2 * u, 2, (self.vOw, self.vOt)[ct], None,
                             32768 * (s >> 3) + (8 + (s & 7)) * 2048 + 1024 * u, ("wo", s))
            a.lg.wait(("wo", s - 2))
        for k in range(8):
            a(f"v_pk_add_f32 {vr(B + 2 * k, 2)}, {vr(B + 2 * k, 2)}, {vr(64 + 2 * k, 2)}")
        for k in range(8):
            a(f"v_pk_mul_f32 {vr(B + 2 * k, 2)}, {vr(B + 2 * k, 2)}, {vr(vG + 2, 2)} op_sel_hi:[1,0]")
        a.lg.drain()
        self.stamp("ffn2", "M")
        self.spoll(sT0, 16)
        a.vm.reset()
        self.stamp("Opoll", "M")
        for s in range(16):
            if s % 4 == 0 and s:
                a(f"s_add_u32 s{sT0 + 2}, s{sT0 + 2}, 4096")
            a(f"buffer_load_dwordx4 {vr(OF + 4 * s, 4)}, v{vH}, {sr(sWS, 4)}, s{sT0 + 2} offen offset:{1024 * (s % 4)} sc1")
            a.vm.issue(s)
        for s in range(16):
            a.vm.wait(s)
            a(f"v_mfma_f32_32x32x16_bf16 {vr(OTH, 16)}, {vr(WO + 8 * s + 4, 4)}, {vr(OF + 4 * s, 4)}, {vr(OTH, 16) if s else 0}")
            a(f"v_mfma_f32_32x32x16_bf16 {vr(OWN, 16)}, {vr(WO + 8 * s, 4)}, {vr(OF + 4 * s, 4)}, {vr(OWN, 16) if s else 0}")
        self.stamp("Omfma", "M")
        a("s_nop 10")
        for q in range(4):
            a(f"ds_write_b128 v{vX}, {vr(OTH + 4 * q, 4)} offset:{1024 * q}")
        for k in range(8):
            a(f"v_pk_fma_f32 {vr(B + 2 * k, 2)}, {vr(OWN + 2 * k, 2)}, {vr(vG, 2)}, {vr(B + 2 * k, 2)} op_sel_hi:[1,0,1]")
        a("s_waitcnt lgkmcnt(0)\ns_barrier")
        for q in range(4):
            a(f"ds_read_b128 {vr(32 + 4 * q, 4)}, v{vXp} offset:{1024 * q}")
        for q in range(4):
            a(f"s_waitcnt lgkmcnt({3 - q})")
            for k in range(2):
                r = 4 * q + 2 * k
                a(f"v_pk_fma_f32 {vr(B + r, 2)}, {vr(32 + r, 2)}, {vr(vG, 2)}, {vr(B + r, 2)} op_sel_hi:[1,0,1]")
            for k in range(2):
                r = 4 * q + 2 * k
                a(f"v_cvt_pk_bf16_f32 v{48 + 2 * q + k}, v{B + r}, v{B + r + 1}")
            if q % 2 == 1:
                a(f"buffer_store_dwordx4 {vr(48 + 4 * (q // 2), 4)}, v{vOut}, {sr(sOUT, 4)}, s{sT0 + 1} offen offset:{16 * (q // 2)} {self.cfg['outpol'].replace('_', ' ')}")

    def build(self):
        a = self.a
        cfg = self.cfg
        self.prologue()
        a(f"s_setprio {cfg['prio_l']}")
        self.loader()
        self.attn_start()
        self.stamp("attn0", "L")
        self.attn_loop()
        self.stamp("attn1", "L")
        self.attn_finish()
        self.stamp("Oflag", "L")
        self.dump_stamps(True)
        a("s_endpgm")

        a.label("L_mwave")
        self.m_setup()
        a(f"s_bitcmp1_b32 s{sC}, 0\ns_cbranch_scc1 L_pass_v")
        self.pass_a(False)
        a("s_branch L_pass_q")
        a.label("L_pass_v")
        self.pass_a(True)
        a.label("L_pass_q")
        self.pass_q()
        a(f"s_cmp_eq_u32 s{sC}, 15\ns_cbranch_scc1 L_gate")
        self.pass_f()
        a(f"s_setprio {cfg['prio_gelu']}")
        self.gelu()
        a.label("L_ffn2")
        self.stamp("gelu", "M")
        self.ffn2()
        self.final()
        if cfg.get("stamps"):
            a("s_waitcnt vmcnt(0)")
            self.stamp("end", "M")
            self.dump_stamps(False)
        a.label("L_end")
        a("s_endpgm")
        a.label("L_gate")
        a(f"s_setprio {cfg['prio_gelu']}")
        self.gate()
        a("s_branch L_ffn2")
        self.fallback()
        return a.text()


HEADER = """; Fused kernel: out = g * MHA(x) + (1 - g) * GEGLU(x),  g = sigmoid(x . gate_w)
; Kernarg (88 bytes, pointers): 0 A_x, 8 A_wqkv, 16 A_wo, 24 B_x (unused by the reference), 32 B_w_gate, 40 B_w_up,
;   48 B_w_down, 56 gate_w, 64 d_out, 72 d_debug, 80 d_ws
; 256 workgroups, one per CU; hand-offs between workgroups go through d_ws with write-through stores and flags.
; @launch grid=(256,1,1) block=(512,1,1) lds=%d
.amdgcn_target "amdgcn-amd-amdhsa--gfx950"
.text
.globl %s_kernel
.p2align 8
.type %s_kernel,@function
%s_kernel:
""" % (LDS_BYTES, NAME, NAME, NAME)

FOOTER = """.section .rodata,"a"
.p2align 6
.amdhsa_kernel %s_kernel
  .amdhsa_next_free_vgpr 256
  .amdhsa_next_free_sgpr 102
  .amdhsa_accum_offset 256
  .amdhsa_group_segment_fixed_size 0
  .amdhsa_kernarg_size 88
  .amdhsa_user_sgpr_count 2
  .amdhsa_user_sgpr_kernarg_segment_ptr 1
  .amdhsa_system_sgpr_workgroup_id_x 1
  .amdhsa_float_denorm_mode_32 3
.end_amdhsa_kernel
""" % NAME

DEFAULT = dict(stM='start,BA0,KVst,KVflag,Qdone,F0,Fdone,gelu,Hflag,Hpoll,ffn2,Opoll,Omfma,end',
               stL='start,karg,A0,A2,A7,KVpoll,Qrdy,attn0,attn1,Ost,Oflag',
               outpol='', rowmask=14, bs=0, touch=1, tq=1, f1_early=0, rbits=3, rot=4, rot2=1, la=1, nst=4, kvflag_at=20, f0_at=20, sig_at=6, pd=3, cap=6, prio_l=2, prio_m=0, prio_gelu=3)


def generate(**kw):
    cfg = dict(DEFAULT)
    cfg.update(kw)
    body = Gen(cfg).build()
    msgs = lint(body)
    if cfg.get("stamps"):
        body += f"; STAMPS M {cfg['stM']}\n"
    return HEADER + body + FOOTER, msgs


if __name__ == "__main__":
    out = sys.argv[1]
    kw = {}
    for arg in sys.argv[2:]:
        k, v = arg.split("=")
        try:
            kw[k] = int(v)
        except ValueError:
            try:
                kw[k] = float(v)
            except ValueError:
                kw[k] = v
    text, msgs = generate(**kw)
    for m in msgs:
        print("LINT:", m)
    open(out, "w").write(text)
    print("wrote", out, len(text), "bytes,", text.count("\n"), "lines")
```

```python
import struct
import sys

from asmlib import Asm, lint, sr, vr

NAME = "gated_mix__softmax_full_mha__glu_gated_geglu__prompt"


def f32(x):
    return "0x%08x" % struct.unpack("<I", struct.pack("<f", x))[0]


LOG2E = 1.4426950408889634

WS_KV, WS_O, WS_H, WS_G, WS_FLAG, WS_STAMP = 0x000000, 0x400000, 0x600000, 0xBC0000, 0xC00000, 0xD00000
CKV, CH, CO = WS_FLAG, WS_FLAG + 128 * 128, WS_FLAG + 256 * 128
OOB = 0x20000000

NSLOT = 4
QW, QF, PART, CNT = 98304, 131072, 139264, 157696
LDS_BYTES = 163840

sX, sWQ, sWO, sWG, sWU, sWD, sGW, sOUT, sDBG, sWS = 4, 8, 12, 16, 20, 24, 28, 32, 36, 40
sC, sR, sW, sT, sROT, sRB, sCB, sDEL = 44, 45, 46, 47, 48, 49, 50, 51
sONE, sPV = 71, 69
sVM = 52
sT0 = 54
sSPIN = 70
sSTAMP = 72
SIZES = {sX: 2097152, sWQ: 1572864, sWO: 524288, sWG: 1409024, sWU: 1409024, sWD: 1409024, sGW: 1024, sOUT: 2097152,
         sDBG: 256, sWS: 268435456}
KARG = {sX: 0, sWQ: 8, sWO: 16, sWG: 32, sWU: 40, sWD: 48, sGW: 56, sOUT: 64, sDBG: 72, sWS: 80}


def slot(n):
    return (n % NSLOT) * 24576


class Gen:
    def __init__(self, cfg):
        self.cfg = cfg
        self.a = Asm()
        self.uid = 0

    def lab(self, base):
        self.uid += 1
        return f"L_{base}_{self.uid}"

    def clock(self):
        return "s_memtime" if self.cfg.get("stamps") == 2 else "s_memrealtime"

    def names(self, role):
        if "pad" in self.cfg:
            return ["start", self.cfg["pad"]]
        return self.cfg["st" + role].split(",")

    def stamp(self, name, role):
        if self.cfg.get("stamps") and name in self.names(role):
            n = self.names(role).index(name)
            a = self.a
            a(f"{self.clock()} {sr(sSTAMP + 2 * n, 2)}")
            a.lg.drain()

    def dump_stamps(self, is_l):
        if not self.cfg.get("stamps"):
            return
        a = self.a
        if "pad" in self.cfg:
            n = 0 if self.cfg["pad"] == "start" else 1
            top, done = self.lab("pad"), self.lab("paddone")
            if is_l:
                a("s_barrier")
            a(f"""s_waitcnt vmcnt(0) lgkmcnt(0)
                s_cmp_eq_u32 s{sSTAMP + 2 * n}, 0
                s_cbranch_scc1 {done}""")
            a.label(top)
            a(f"""s_sleep 4
                s_memrealtime {sr(sT0, 2)}
                s_waitcnt lgkmcnt(0)
                s_sub_u32 s{sT0}, s{sT0}, s{sSTAMP + 2 * n}
                s_cmp_lt_u32 s{sT0}, 6000
                s_cbranch_scc1 {top}""")
            a.label(done)
            return
        a(f"""s_lshl_b32 s{sT0}, s2, 3
            s_add_u32 s{sT0}, s{sT0}, s{sW}
            s_lshl_b32 s{sT0}, s{sT0}, 6
            s_add_u32 s{sT0}, s{sT0}, {WS_STAMP}
            s_mov_b64 exec, 1""")
        for n in range(14):
            a(f"v_mov_b32 v0, s{sSTAMP + 2 * n}")
            a(f"buffer_store_dword v0, off, {sr(sWS, 4)}, s{sT0} offset:{4 * n}")
        a("s_mov_b64 exec, -1")

    def lane(self, v):
        self.a(f"""v_mbcnt_lo_u32_b32 v{v}, -1, 0
            v_mbcnt_hi_u32_b32 v{v}, -1, v{v}""")

    def srd(self, *regs):
        for r in regs:
            self.a(f"s_mov_b32 s{r + 2}, {SIZES[r]}\ns_mov_b32 s{r + 3}, 0x00020000")

    def kload(self, *regs):
        for r in regs:
            self.a(f"s_load_dwordx2 {sr(r, 2)}, s[0:1], {KARG[r]}")

    def chunk(self, dst, i):
        a = self.a
        if self.cfg["rot"] in (3, 4):
            a(f"""s_add_u32 s{dst}, s{sDEL}, {i & 3}
                s_and_b32 s{dst}, s{dst}, 3
                s_add_u32 s{dst}, s{dst}, s{sROT}""")
            if i & 4:
                a(f"s_xor_b32 s{dst}, s{dst}, 4")
        else:
            a(f"s_add_u32 s{dst}, s{sROT}, {i}\ns_and_b32 s{dst}, s{dst}, 7")

    def dsr(self, op, dst, n, lo, hi, imm, tag):
        reg = lo
        if imm >= 65536:
            reg, imm = hi, imm - 65536
        assert 0 <= imm < 65536 and reg is not None
        self.a(f"{op} {vr(dst, n)}, v{reg} offset:{imm}")
        self.a.lg.issue(tag)

    def poll(self, voff, soff, tmp, srd=sWS):
        a = self.a
        top, done = self.lab("poll"), self.lab("pdone")
        a(f"s_mov_b32 s{sSPIN}, 100000")
        a.label(top)
        a(f"""buffer_load_dword v{tmp}, v{voff}, {sr(srd, 4)}, {soff} offen sc1
            s_waitcnt vmcnt(0)
            v_cmp_eq_u32 vcc, 0, v{tmp}
            s_cbranch_vccz {done}
            s_sleep 1
            s_sub_u32 s{sSPIN}, s{sSPIN}, 1
            s_cmp_lg_u32 s{sSPIN}, 0
            s_cbranch_scc1 {top}""")
        a.label(done)
        a.vm.reset()

    def signal(self, soff):
        self.a(f"s_atomic_add s{sONE}, {sr(sWS, 2)}, s{soff}")

    def spoll(self, soff, need, back=None):
        a = self.a
        top, done = self.lab("spoll"), back or self.lab("sdone")
        a(f"s_mov_b32 s{sSPIN}, 200000")
        a.label(top)
        a(f"""s_mov_b32 s{sPV}, 0
            s_atomic_add s{sPV}, {sr(sWS, 2)}, s{soff} glc
            s_waitcnt lgkmcnt(0)
            s_cmp_ge_u32 s{sPV}, {need}
            s_cbranch_scc1 {done}
            s_sub_u32 s{sSPIN}, s{sSPIN}, 1
            s_cmp_lg_u32 s{sSPIN}, 0
            s_cbranch_scc1 {top}""")
        if back:
            a(f"s_branch {back}")
        else:
            a.label(done)
        a.lg.reset()

    def set_flag(self, soff, one, srd=sWS):
        a = self.a
        a(f"""s_mov_b64 exec, 1
            buffer_store_dword v{one}, off, {sr(srd, 4)}, {soff} sc1
            s_mov_b64 exec, -1""")
        a.vm.issue("flag")

    def lds_signal(self, addr, one, off):
        a = self.a
        a(f"""s_mov_b64 exec, 1
            ds_add_u32 v{addr}, v{one} offset:{off}
            s_mov_b64 exec, -1""")
        a.lg.issue("sig")

    def lds_probe(self, addr, tmp, off):
        self.a(f"ds_read_b32 v{tmp}, v{addr} offset:{off}")
        self.a.lg.issue("probe")

    def lds_check(self, addr, tmp, off, need):
        a = self.a
        top, done = self.lab("lspin"), self.lab("ldone")
        a.lg.wait("probe")
        a(f"""v_cmp_gt_u32 vcc, {need}, v{tmp}
            s_cbranch_vccz {done}
            s_mov_b32 s{sSPIN}, 1000000""")
        a.label(top)
        a(f"""ds_read_b32 v{tmp}, v{addr} offset:{off}
            s_waitcnt lgkmcnt(0)
            v_cmp_gt_u32 vcc, {need}, v{tmp}
            s_cbranch_vccz {done}
            s_sub_u32 s{sSPIN}, s{sSPIN}, 1
            s_cmp_lg_u32 s{sSPIN}, 0
            s_cbranch_scc1 {top}""")
        a.label(done)

    def prologue(self):
        a = self.a
        cfg = self.cfg
        rb = cfg["rbits"]
        a("s_cmp_ge_u32 s2, 256\ns_cbranch_scc1 L_end")
        if cfg.get("stamps"):
            a(f"{self.clock()} {sr(sSTAMP, 2)}")
        self.kload(sX, sWQ, sWS)
        if cfg.get("stamps"):
            for n in range(1, 14):
                a(f"s_mov_b32 s{sSTAMP + 2 * n}, 0")
        x, j, t = sT0, sT0 + 1, sT0 + 2
        a(f"""v_lshrrev_b32 v1, 6, v0
            s_and_b32 s{x}, s2, 7
            v_readfirstlane_b32 s{sW}, v1
            s_lshr_b32 s{j}, s2, 3
            v_and_b32 v0, 63, v0
            s_and_b32 s{sR}, s{x}, {(1 << (4 - rb)) - 1}
            s_lshl_b32 s{sR}, s{sR}, {rb}
            s_and_b32 s{t}, s{j}, {(1 << rb) - 1}
            s_add_u32 s{sR}, s{sR}, s{t}
            s_lshr_b32 s{sC}, s{x}, {4 - rb}
            s_lshl_b32 s{sC}, s{sC}, {5 - rb}
            s_lshr_b32 s{t}, s{j}, {rb}
            s_add_u32 s{sC}, s{sC}, s{t}
            s_and_b32 s{sT}, s{sW}, 3""")
        rot = cfg["rot"]
        if rot == 0:
            a(f"s_mov_b32 s{sROT}, 0")
        elif rot == 1:
            a(f"""s_mul_i32 s{sROT}, s{sC}, {cfg.get('rotc', 2)}
                s_mul_i32 s{t}, s{sR}, {cfg.get('rotr', 1)}
                s_add_u32 s{sROT}, s{sROT}, s{t}
                s_and_b32 s{sROT}, s{sROT}, 7""")
        else:
            a(f"""s_add_u32 s{sROT}, s{sC}, s{sR}
                s_and_b32 s{sROT}, s{sROT}, 1
                s_lshl_b32 s{sROT}, s{sROT}, 2""")
            if rot == 3:
                a(f"s_mov_b32 s{sDEL}, 0")
            else:
                a(f"""s_lshr_b32 s{sDEL}, s{x}, 1
                    s_lshl_b32 s{t}, s{x}, 1
                    s_add_u32 s{sDEL}, s{sDEL}, s{t}""")
        self.srd(sWS)
        a(f"""s_mov_b32 s{sONE}, 1
            s_cmp_ge_u32 s{sW}, 4
            s_cbranch_scc0 L_mwave""")

    def loader(self):
        a = self.a
        a.vm.reset()
        vX0, vX1, vKV, vQ = 8, 9, 10, 11
        sXB, sKB, sQB, sLx, sLk, sLq, sCh, sO = range(sT0, sT0 + 8)
        self.srd(sX, sWQ)
        a(f"""v_lshrrev_b32 v1, 3, v0
            v_and_b32 v2, 7, v0
            v_lshrrev_b32 v3, 4, v0
            s_lshl_b32 s{sO}, s{sT}, 5
            v_add_u32 v4, s{sO}, v1
            v_xor_b32 v5, v2, v3
            v_lshlrev_b32 v5, 4, v5
            v_lshl_add_u32 v{vX0}, v4, 10, v5
            v_xor_b32 v{vX1}, 64, v{vX0}
            v_add_u32 v{vX1}, 8192, v{vX1}
            s_lshl_b32 s{sO}, s{sT}, 4
            v_add_u32 v4, s{sO}, v1
            v_mul_u32_u24 v4, 3072, v4
            v_and_b32 v5, 1, v3
            v_lshlrev_b32 v5, 2, v5
            v_xor_b32 v5, v2, v5
            v_lshl_add_u32 v{vKV}, v5, 4, v4
            s_lshl_b32 s{sXB}, s{sR}, 17
            s_and_b32 s{sKB}, s{sC}, 1
            s_add_u32 s{sKB}, s{sKB}, 1
            s_lshl_b32 s{sKB}, s{sKB}, 10
            s_lshr_b32 s{sCh}, s{sC}, 1
            s_lshl_b32 s{sCh}, s{sCh}, 7
            s_add_u32 s{sKB}, s{sKB}, s{sCh}
            s_lshl_b32 s{sLx}, s{sT}, 12
            s_lshl_b32 s{sLk}, s{sT}, 11""")

        def issueA(i):
            B = slot(i)
            self.chunk(sCh, i)
            a(f"s_lshl_b32 s{sO}, s{sCh}, 7\ns_add_u32 s{sO}, s{sO}, s{sXB}")
            for k in range(4):
                a(f"s_add_u32 m0, s{sLx}, {B + 1024 * k}")
                if i == 0 and k == 0:
                    a("s_waitcnt lgkmcnt(0)")
                    self.stamp("karg", "L")
                else:
                    a(f"s_add_u32 s{sO}, s{sO}, 16384" if k == 2 else "s_nop 0")
                a(f"buffer_load_dwordx4 v{vX0 if k % 2 == 0 else vX1}, {sr(sX, 4)}, s{sO} offen lds")
                a.vm.issue(("A", i))
            a(f"s_mul_i32 s{sO}, s{sCh}, 196608")
            for k in range(2):
                a(f"s_add_u32 m0, s{sLk}, {B + 16384 + 1024 * k}")
                a(f"s_add_u32 s{sO}, s{sO}, {'s%d' % sKB if k == 0 else 24576}")
                a(f"buffer_load_dwordx4 v{vKV}, {sr(sWQ, 4)}, s{sO} offen lds")
                a.vm.issue(("A", i))

        def issueQ(half):
            for i in range(8):
                self.chunk(sCh, i)
                a(f"""s_mul_i32 s{sO}, s{sCh}, 196608
                    s_add_u32 m0, s{sLq}, {QW + 4096 * i}
                    s_add_u32 s{sO}, s{sO}, s{sQB}
                    buffer_load_dwordx4 v{vQ}, {sr(sWQ, 4)}, s{sO} offen lds""")
                a.vm.issue(("Q", half))

        def setup2():
            a(f"""v_lshrrev_b32 v4, 2, v0
                s_lshl_b32 s{sO}, s{sT}, 4
                v_add_u32 v4, s{sO}, v4
                v_mul_u32_u24 v4, 3072, v4
                v_and_b32 v5, 3, v0
                v_lshl_add_u32 v{vQ}, v5, 4, v4
                s_lshl_b32 s{sQB}, s{sC}, 6
                s_lshl_b32 s{sLq}, s{sT}, 10
                s_mov_b32 s{sVM}, 0x0000ffff
                s_mov_b32 s{sVM + 1}, 0x0000ffff""")
            if self.cfg["tq"]:
                cb = 5 - self.cfg["rbits"]
                nl = 1 << (cb - 1)
                a(f"""v_lshrrev_b32 v4, {cb - 1}, v0
                    v_mul_u32_u24 v4, 3072, v4
                    v_and_b32 v5, {nl - 1}, v0
                    v_lshl_add_u32 v4, v5, 7, v4
                    s_lshr_b32 s{sO}, s2, 3
                    s_lshl_b32 s{sO}, s{sO}, 2
                    s_add_u32 s{sO}, s{sO}, s{sT}
                    s_mul_i32 s{sO}, s{sO}, 12288
                    s_lshr_b32 s{sCh}, s{sC}, {cb}
                    s_lshl_b32 s{sCh}, s{sCh}, {cb + 6}
                    s_add_u32 s{sO}, s{sO}, s{sCh}
                    s_mov_b32 m0, {CNT + 64}
                    s_mov_b64 exec, {(1 << (4 * nl)) - 1}
                    buffer_load_dword v4, {sr(sWQ, 4)}, s{sO} offen lds
                    s_mov_b64 exec, -1""")
                a.vm.issue("touch")
            self.attn_init()

        units = [("A", i) for i in range(8)] + [("Q", 0)]
        la = self.cfg["la"]
        la = [la] * 10 if isinstance(la, int) else la
        nxt = 0
        bs = self.cfg["bs"]
        for b, tag in enumerate(units):
            if b == 8 and bs:
                a("s_barrier")
            while (nxt < len(units) and nxt <= b + la[b] and (units[nxt][0] == "Q" or nxt - NSLOT + 2 <= b)
                   and not (bs and units[nxt][0] == "Q" and b < 8)):
                kind, i = units[nxt]
                {"A": issueA, "Q": issueQ}[kind](i)
                nxt += 1
            if b == 0:
                setup2()
            assert b < nxt
            a.vm.wait(tag)
            self.stamp(f"{tag[0]}{tag[1]}", "L")
            a("s_barrier")

    O_, S_, Q_, KV_ = 16, 80, 112, 128
    vIDX, vKo, vVo, vFl, vQa_, vOne, vCa, vPa, vPs = 12, 13, 14, 15, 6, 7, 1, 2, 3

    def attn_init(self):
        a = self.a
        NST = self.cfg["nst"]
        assert NST == 4
        sHd, sQ, sOff, sRow, sCnt, sLd, sFl = range(sT0 + 8, sT0 + 15)
        self.sHd, self.sQ, self.sOff, self.sKr, self.sCnt, self.sLd, self.sFl = sHd, sQ, sOff, sRow, sCnt, sLd, sFl
        a(f"""s_and_b32 s{sHd}, s{sW}, 1
            s_lshr_b32 s{sQ}, s{sT}, 1
            v_lshrrev_b32 v5, 5, v0
            s_and_b32 s{sRow}, s{sR}, {self.cfg['rowmask']}
            s_add_u32 s{sRow}, s{sRow}, s{sQ}
            s_and_b32 s{sRow}, s{sRow}, 15
            s_mov_b32 s{sCnt}, {32 // NST}
            v_lshlrev_b32 v{self.vKo}, 4, v0
            v_and_b32 v{self.vVo}, 15, v0
            v_lshlrev_b32 v{self.vVo}, 4, v{self.vVo}
            v_lshl_add_u32 v{self.vVo}, v5, 8, v{self.vVo}
            s_lshl_b32 s{sLd}, s{sHd}, 12
            s_add_u32 s{sLd}, s{sLd}, {QF}
            v_add_u32 v{self.vQa_}, s{sLd}, v{self.vKo}
            s_lshl_b32 s{sLd}, s{sQ}, 11
            v_add_u32 v{self.vQa_}, s{sLd}, v{self.vQa_}
            v_mov_b32 v{self.vIDX}, 0xdddddddd
            v_mov_b32 v{self.vOne}, 1
            v_and_b32 v4, 0x1b, v0
            v_cmp_eq_u32 vcc, 16, v4
            v_mov_b32 v4, 0x3f803f80
            s_mul_i32 s{sLd}, s{sT}, 4608
            v_cndmask_b32 v4, 0, v4, vcc
            s_add_u32 s{sLd}, s{sLd}, {PART}
            v_lshl_add_u32 v{self.vPa}, v0, 4, s{sLd}
            v_lshl_add_u32 v{self.vPs}, v0, 2, s{sLd}
            s_lshl_b32 s{sLd}, s{sHd}, 2
            s_add_u32 s{sLd}, s{sLd}, {CNT + 8}
            v_mov_b32 v{self.vCa}, s{sLd}""")
        for st in range(NST):
            for k in range(8):
                a(f"v_mov_b32 v{self.KV_ + 12 * st + 4 + k}, v4")
        for k in range(64):
            a(f"v_mov_b32 v{self.O_ + k}, 0")
        for k in range(8):
            a(f"v_mov_b32 v{self.S_ + 24 + k}, 0")

    def attn_start(self):
        a = self.a
        NST = self.cfg["nst"]
        sOff = self.sOff
        sHB, sFB, sRow, sFl = sT0, sT0 + 1, self.sKr, self.sFl
        a(f"""s_lshl_b32 s{sHB}, s{sC}, 1
            s_add_u32 s{sHB}, s{sHB}, s{self.sHd}
            s_lshl_b32 s{sHB}, s{sHB}, 17
            s_lshr_b32 s{sFB}, s{sC}, 1
            s_lshl_b32 s{sFB}, s{sFB}, 11
            s_add_u32 s{sFB}, s{sFB}, {CKV}
            s_lshl_b32 s{sOff}, s{sRow}, 13
            s_add_u32 s{sOff}, s{sOff}, s{sHB}
            s_lshl_b32 s{sFl}, s{sRow}, 7
            s_add_u32 s{sFl}, s{sFl}, s{sFB}""")
        self.spoll(sFl, 8)
        self.stamp("KVpoll", "L")
        for st in range(NST - 1):
            b = self.KV_ + 12 * st
            a(f"""buffer_load_dwordx4 {vr(b, 4)}, v{self.vKo}, {sr(sWS, 4)}, s{sOff} offen sc1
                s_mov_b64 exec, {sr(sVM, 2)}
                buffer_load_dwordx4 {vr(b + 4, 4)}, v{self.vVo}, {sr(sWS, 4)}, s{sOff} offen offset:1024 sc1
                buffer_load_dwordx4 {vr(b + 8, 4)}, v{self.vVo}, {sr(sWS, 4)}, s{sOff} offen offset:1536 sc1
                s_mov_b64 exec, -1
                s_add_u32 s{sOff}, s{sOff}, 2048""")
        self.stamp("KViss", "L")
        a(f"v_mov_b32 v5, {CNT}")
        a.lg.reset()
        self.lds_probe(5, 4, 16)
        self.lds_check(5, 4, 16, 16)
        a(f"v_xor_b32 v4, 0x800, v{self.vQa_}")
        self.stamp("Qrdy", "L")
        for q in range(4):
            a(f"ds_read_b128 {vr(self.Q_ + 4 * q, 4)}, v{self.vQa_ if q < 2 else 4} offset:{1024 * (q & 1)}")
        a(f"""s_add_u32 s{sRow}, s{sRow}, 2
            s_and_b32 s{sRow}, s{sRow}, 15
            s_lshl_b32 s{sFl}, s{sRow}, 7
            s_add_u32 s{sFl}, s{sFl}, s{sFB}
            s_mov_b32 s{sPV}, 0
            s_waitcnt lgkmcnt(0)
            s_atomic_add s{sPV}, {sr(sWS, 2)}, s{sFl} glc
            s_waitcnt vmcnt({3 * (NST - 2)})
            v_mfma_f32_32x32x16_bf16 {vr(self.S_, 16)}, {vr(self.KV_, 4)}, {vr(self.Q_, 4)}, 0
            s_nop 11""")

    def attn_loop(self):
        a = self.a
        NST = self.cfg["nst"]
        NT = 4 * NST
        O, S, Q, KV = self.O_, self.S_, self.Q_, self.KV_
        sOff, sRow, sCnt, sFl, sHB, sFB = self.sOff, self.sKr, self.sCnt, self.sFl, sT0, sT0 + 1
        sm = lambda st, qt, half, n: (f"v_smfmac_f32_32x32x32_bf16 {vr(O + 16 * qt, 16)}, {vr(KV + 12 * st + 4 + 4 * half, 4)}, "
                                      f"{vr(S + 16 * (n & 1) + 8 * half, 8)}, v{self.vIDX}")
        extra = {
            (2, 0): f"s_lshl_b32 s{sOff}, s{sRow}, 13\ns_add_u32 s{sOff}, s{sOff}, s{sHB}",
            (2, 2): f"s_cmp_eq_u32 s{sCnt}, 1\ns_cselect_b32 s{sOff}, {OOB}, s{sOff}",
            (3, 1): "s_waitcnt lgkmcnt(0)",
            (3, 2): f"s_cmp_lt_u32 s{sPV}, 8\ns_cbranch_scc1 L_kv_wait\nL_kv_ok:",
            (6, 0): f"s_add_u32 s{sRow}, s{sRow}, 2\ns_and_b32 s{sRow}, s{sRow}, 15",
            (6, 2): f"s_lshl_b32 s{sFl}, s{sRow}, 7\ns_add_u32 s{sFl}, s{sFl}, s{sFB}",
            (10, 0): f"s_mov_b32 s{sPV}, 0\ns_atomic_add s{sPV}, {sr(sWS, 2)}, s{sFl} glc",
            (NT - 1, 2): f"s_sub_u32 s{sCnt}, s{sCnt}, 1\ns_cmp_lg_u32 s{sCnt}, 0",
        }

        def ex(n, k):
            for l in extra.get((n, k), "").split("\n"):
                if l.endswith(":"):
                    a.label(l[:-1])
                else:
                    a(l)

        a.raw(".p2align 6")
        a.label("L_attn")
        for n in range(NT):
            st, qt = divmod(n, 4)
            cur = S + 16 * (n & 1)
            E = lambda lo, hi: [a(f"v_exp_f32 v{cur + k}, v{cur + k}") for k in range(lo, hi)]
            pst, pqt = divmod((n - 1) % NT, 4)
            nst, nqt = divmod((n + 1) % NT, 4)
            ld = KV + 12 * ((st - 1) % NST)
            E(0, 2)
            a(sm(pst, pqt, 1, n - 1))
            ex(n, 0)
            if qt == 3:
                a(f"s_waitcnt vmcnt({3 * (NST - 2)})")
            E(2, 5)
            a(f"v_mfma_f32_32x32x16_bf16 {vr(S + 16 * ((n + 1) & 1), 16)}, {vr(KV + 12 * nst, 4)}, {vr(Q + 4 * nqt, 4)}, 0")
            ex(n, 1)
            if qt == 0:
                a(f"buffer_load_dwordx4 {vr(ld, 4)}, v{self.vKo}, {sr(sWS, 4)}, s{sOff} offen sc1")
            if qt == 2 and st:
                a(f"s_add_u32 s{sOff}, s{sOff}, 2048")
            E(5, 10)
            a(sm(st, qt, 0, n))
            ex(n, 2)
            if qt == 1:
                a(f"""s_mov_b64 exec, {sr(sVM, 2)}
                    buffer_load_dwordx4 {vr(ld + 4, 4)}, v{self.vVo}, {sr(sWS, 4)}, s{sOff} offen offset:1024 sc1
                    buffer_load_dwordx4 {vr(ld + 8, 4)}, v{self.vVo}, {sr(sWS, 4)}, s{sOff} offen offset:1536 sc1
                    s_mov_b64 exec, -1""")
            E(10, 16)
        a("s_cbranch_scc1 L_attn\ns_waitcnt lgkmcnt(0)")
        a(sm(NST - 1, 3, 1, NT - 1))

    def attn_finish(self):
        a = self.a
        O, T = self.O_, self.S_
        sA, sF = sT0, sT0 + 1
        a.lg.reset()
        a(f"""s_lshl_b32 s{sF}, s{sR}, 1
            s_add_u32 s{sF}, s{sF}, s{self.sQ}
            s_lshl_b32 s{sF}, s{sF}, 6
            s_lshl_b32 s{sA}, s{sC}, 1
            s_add_u32 s{sF}, s{sF}, s{sA}
            s_add_u32 s{sF}, s{sF}, s{self.sHd}
            s_lshl_b32 s{sA}, s{sF}, 10
            s_add_u32 s{sA}, s{sA}, {WS_O}
            s_lshr_b32 s{sF}, s{sF}, 4
            s_and_b32 s{sT0 + 2}, s{sF}, 1
            s_lshr_b32 s{sF}, s{sF}, 1
            s_add_u32 s{sF}, s{sF}, s{sT0 + 2}
            s_lshl_b32 s{sF}, s{sF}, 7
            s_add_u32 s{sF}, s{sF}, {CO}""")
        for q in range(2):
            o = O + 32 + 16 * q
            a(f"""ds_write_b128 v{self.vPa}, {vr(o, 4)} offset:{2304 * q}
                ds_write_b128 v{self.vPa}, {vr(o + 4, 4)} offset:{2304 * q + 1024}
                ds_write_b32 v{self.vPs}, v{o + 8} offset:{2304 * q + 2048}""")
        self.lds_signal(self.vCa, self.vOne, 0)
        self.lds_probe(self.vCa, 4, 0)
        a(f"""s_mul_i32 s{sT0 + 2}, s{self.sQ}, -18432
            s_add_u32 s{sT0 + 2}, s{sT0 + 2}, 9216
            v_add_u32 v{self.vPa}, s{sT0 + 2}, v{self.vPa}
            v_add_u32 v{self.vPs}, s{sT0 + 2}, v{self.vPs}""")
        self.lds_check(self.vCa, 4, 0, 2)
        self.stamp("pair", "L")
        for q in range(2):
            a(f"""ds_read_b128 {vr(T + 12 * q, 4)}, v{self.vPa} offset:{2304 * q}
                ds_read_b128 {vr(T + 12 * q + 4, 4)}, v{self.vPa} offset:{2304 * q + 1024}
                ds_read_b32 v{T + 12 * q + 8}, v{self.vPs} offset:{2304 * q + 2048}""")
        lo, hi = self.cfg.get("l_lo", 2.0 ** -24), self.cfg.get("l_hi", 2.0 ** 64)
        m = sT0 + 2
        for q in range(2):
            o, t = O + 16 * q, T + 12 * q
            a(f"s_waitcnt lgkmcnt({3 - 3 * q})")
            for k in range(4):
                a(f"v_pk_add_f32 {vr(o + 2 * k, 2)}, {vr(o + 2 * k, 2)}, {vr(t + 2 * k, 2)}")
            a(f"""v_add_f32 v{o + 8}, v{o + 8}, v{t + 8}
                v_pk_add_f32 {vr(t, 2)}, {vr(o, 2)}, {vr(o + 2, 2)}
                v_pk_add_f32 {vr(t + 2, 2)}, {vr(o + 4, 2)}, {vr(o + 6, 2)}
                v_cmp_lt_f32 vcc, {f32(lo)}, v{o + 8}
                v_pk_add_f32 {vr(t, 2)}, {vr(t, 2)}, {vr(t + 2, 2)}
                s_and_b64 {sr(m, 2)}, {'vcc' if q == 0 else sr(m, 2)}, vcc
                v_cmp_gt_f32 vcc, {f32(hi)}, v{o + 8}
                v_add_f32 v{t}, v{t}, v{t + 1}
                s_and_b64 {sr(m, 2)}, {sr(m, 2)}, vcc
                v_sub_f32 v{t}, v{t}, v{t}
                v_cmp_eq_f32 vcc, 0, v{t}
                s_and_b64 {sr(m, 2)}, {sr(m, 2)}, vcc""")
        a(f"s_cmp_eq_u64 {sr(m, 2)}, -1\ns_cbranch_scc0 L_fallback")
        a.label("L_normalise")
        for q in range(2):
            a(f"v_rcp_f32 v{O + 16 * q + 8}, v{O + 16 * q + 8}")
        for q in range(2):
            o = O + 16 * q
            for k in range(4):
                a(f"v_pk_mul_f32 {vr(o + 2 * k, 2)}, {vr(o + 2 * k, 2)}, {vr(o + 8, 2)} op_sel_hi:[1,0]")
            for k in range(4):
                a(f"v_cvt_pk_bf16_f32 v{T + 4 * q + k}, v{o + 2 * k}, v{o + 2 * k + 1}")
            a(f"buffer_store_dwordx4 {vr(T + 4 * q, 4)}, v{self.vKo}, {sr(sWS, 4)}, s{sA} offen sc1")
            if q == 0:
                a(f"s_add_u32 s{sA}, s{sA}, 32768")
        self.stamp("Ost", "L")
        a("s_waitcnt vmcnt(0)")
        self.signal(sF)

    def fallback(self):
        a = self.a
        S, M, K, V, vMx = self.S_, self.S_ + 16, self.KV_, self.KV_ + 4, 4
        sO, sN = sT0 + 2, sT0 + 3
        a.label("L_kv_wait")
        self.spoll(self.sFl, 8, "L_kv_ok")
        a.label("L_fallback")
        a("s_waitcnt vmcnt(0)")
        for q in range(2):
            O, Q = self.O_ + 16 * q, self.Q_ + 4 * q
            a(f"""v_mov_b32 v{vMx}, 0xff800000
                s_lshl_b32 s{sO}, s{sC}, 1
                s_add_u32 s{sO}, s{sO}, s{self.sHd}
                s_lshl_b32 s{sO}, s{sO}, 17
                s_mov_b32 s{sN}, 64""")
            a.label(f"L_fb_max{q}")
            a(f"""buffer_load_dwordx4 {vr(K, 4)}, v{self.vKo}, {sr(sWS, 4)}, s{sO} offen sc1
                s_waitcnt vmcnt(0)
                v_mfma_f32_32x32x16_bf16 {vr(S, 16)}, {vr(K, 4)}, {vr(Q, 4)}, 0
                s_nop 11""")
            for k in range(8):
                a(f"v_max3_f32 v{vMx}, v{S + 2 * k}, v{S + 2 * k + 1}, v{vMx}")
            a(f"""s_add_u32 s{sO}, s{sO}, 2048
                s_sub_u32 s{sN}, s{sN}, 1
                s_cmp_lg_u32 s{sN}, 0
                s_cbranch_scc1 L_fb_max{q}
                v_mov_b32 v{M}, v{vMx}
                s_nop 1
                v_permlane32_swap_b32 v{vMx}, v{M}
                s_nop 1
                v_max_f32 v{vMx}, v{vMx}, v{M}
                s_sub_u32 s{sO}, s{sO}, 131072
                s_mov_b32 s{sN}, 64""")
            for k in range(16):
                a(f"v_sub_f32 v{M + k}, 0, v{vMx}\nv_mov_b32 v{O + k}, 0")
            a.label(f"L_fb_sum{q}")
            a(f"""buffer_load_dwordx4 {vr(K, 4)}, v{self.vKo}, {sr(sWS, 4)}, s{sO} offen sc1
                s_mov_b64 exec, {sr(sVM, 2)}
                buffer_load_dwordx4 {vr(V, 4)}, v{self.vVo}, {sr(sWS, 4)}, s{sO} offen offset:1024 sc1
                buffer_load_dwordx4 {vr(V + 4, 4)}, v{self.vVo}, {sr(sWS, 4)}, s{sO} offen offset:1536 sc1
                s_mov_b64 exec, -1
                s_waitcnt vmcnt(0)
                v_mfma_f32_32x32x16_bf16 {vr(S, 16)}, {vr(K, 4)}, {vr(Q, 4)}, {vr(M, 16)}
                s_nop 11""")
            for k in range(16):
                a(f"v_exp_f32 v{S + k}, v{S + k}")
            a(f"""s_nop 1
                v_smfmac_f32_32x32x32_bf16 {vr(O, 16)}, {vr(V, 4)}, {vr(S, 8)}, v{self.vIDX}
                v_smfmac_f32_32x32x32_bf16 {vr(O, 16)}, {vr(V + 4, 4)}, {vr(S + 8, 8)}, v{self.vIDX}
                s_nop 7
                s_add_u32 s{sO}, s{sO}, 2048
                s_sub_u32 s{sN}, s{sN}, 1
                s_cmp_lg_u32 s{sN}, 0
                s_cbranch_scc1 L_fb_sum{q}
                s_nop 3""")
        a("s_branch L_normalise")

    XR, ACC, WS_ = 128, 32, 8
    vFlo, vFhi, vF, vCnt, v1_, vTmp = 0, 1, 2, 5, 6, 7

    def m_setup(self):
        a = self.a
        self.vXA, self.vXAh, self.vWk, self.vWkh, self.vQa, self.vST, self.vGo, self.vQFa, self.vGa = 80, 84, 88, 90, 92, 93, 94, 95, 96
        self.kload(sDBG, sWG, sWU, sWD, sWO, sOUT, sGW)
        self.srd(sDBG, sWG, sWU, sWD, sWO, sOUT, sGW)
        a(f"""s_lshl_b32 s{sRB}, s{sT0}, 2
            s_and_b32 s{sT0 + 2}, s{sT0 + 1}, 3
            s_add_u32 s{sRB}, s{sRB}, s{sT0 + 2}
            s_lshr_b32 s{sCB}, s{sT0 + 1}, 2
            v_and_b32 v16, 31, v0
            v_lshrrev_b32 v17, 5, v0
            v_bfe_u32 v18, v0, 1, 3
            v_xor_b32 v18, v18, v17
            s_lshl_b32 s{sT0}, s{sT}, 12
            v_lshlrev_b32 v19, 7, v16
            v_lshl_add_u32 v19, v18, 4, v19
            v_add_u32 v{self.vXA}, s{sT0}, v19""")
        for s in range(1, 4):
            a(f"v_xor_b32 v{self.vXA + s}, {32 * s}, v{self.vXA}")
        for s in range(4):
            a(f"v_add_u32 v{self.vXAh + s}, 0x10000, v{self.vXA + s}")
        a(f"""v_bfe_u32 v18, v0, 2, 2
            v_lshl_add_u32 v18, v17, 3, v18
            v_bfe_u32 v19, v0, 4, 1
            v_and_b32 v20, 3, v0
            v_lshlrev_b32 v20, 3, v20
            v_lshl_add_u32 v20, v19, 5, v20
            v_bfe_u32 v21, v0, 3, 1
            v_lshl_add_u32 v22, v18, 7, v20
            v_lshl_add_u32 v{self.vWk}, v21, 6, v22
            v_xor_b32 v{self.vWk + 1}, 64, v{self.vWk}
            v_add_u32 v{self.vWkh}, 0x10000, v{self.vWk}
            v_add_u32 v{self.vWkh + 1}, 0x10000, v{self.vWk + 1}
            v_lshl_add_u32 v{self.vQa}, v18, 6, v20
            v_add_u32 v{self.vQa}, {QW}, v{self.vQa}
            s_lshl_b32 s{sT0}, s{sT}, 10
            s_add_u32 s{sT0}, s{sT0}, {QF}
            v_lshl_add_u32 v{self.vQFa}, v0, 4, s{sT0}
            v_mul_u32_u24 v22, 192, v18
            v_and_b32 v23, 0x33, v0
            v_bfe_u32 v25, v0, 2, 1
            v_lshl_add_u32 v23, v25, 3, v23
            v_lshl_add_u32 v23, v21, 2, v23
            v_lshlrev_b32 v23, 4, v23
            v_and_b32 v24, 15, v0
            v_lshlrev_b32 v{self.vGa}, 2, v24
            v_lshlrev_b32 v24, 4, v24
            v_lshl_add_u32 v24, v17, 8, v24
            v_lshl_add_u32 v24, v19, 17, v24
            v_add_u32 v24, 1024, v24
            v_lshlrev_b32 v26, 4, v0
            s_lshl_b32 s{sT0}, s{sT}, 4""")
        for k in range(3):
            a(f"""v_add_u32 v27, {64 * k}, v0
                v_mul_u32_u24 v28, 2731, v27
                v_lshrrev_b32 v28, 15, v28
                v_mul_u32_u24 v29, 12, v28
                v_sub_u32 v29, v27, v29
                v_add_u32 v28, s{sT0}, v28
                v_mul_u32_u24 v28, 2752, v28
                v_lshl_add_u32 v{self.vF + k}, v29, 4, v28""")
        a(f"""v_add_u32 v{self.vFlo}, v22, v20
            v_add_u32 v{self.vFhi}, 0x10000, v{self.vFlo}
            v_mov_b32 v{self.vCnt}, {CNT}
            v_lshl_add_u32 v{self.v1_}, v26, 3, 4""")
        for i in range(4):
            a(f"v_mov_b32 v{100 + i}, 0")
        a(f"ds_write_b128 v{self.vCnt}, v[100:103]\nds_write_b128 v{self.vCnt}, v[100:103] offset:16\ns_waitcnt lgkmcnt(0)")
        if self.cfg["tlb"]:
            for reg, off in ((sWG, 0), (sWU, 0), (sWD, 0), (sWO, 0), (sOUT, 0), (sWS, 0x1FFF80), (sWS, 0x3FFF80), (sWS, 0x5FFF80),
                             (sWS, 0x7FFF80), (sWS, 0x9FFF80), (sWS, 0xBFFF80), (sWS, 0xC80000))[:None if self.cfg["tlb"] == 1 else 5]:
                a(f"s_mov_b32 s{sT0}, {off}\ns_buffer_load_dword s{sPV}, {sr(reg, 4)}, s{sT0}")
            a("s_waitcnt lgkmcnt(0)")
        if self.cfg["codepf"]:
            here = self.lab("pc")
            a(f"s_getpc_b64 {sr(sT0 + 2, 2)}")
            a.label(here)
            a(f"""s_sub_u32 s{sT0 + 2}, s{sT0 + 2}, {here}-{NAME}_kernel
                s_subb_u32 s{sT0 + 3}, s{sT0 + 3}, 0
                s_lshr_b32 s{sT0}, s2, 3
                s_lshl_b32 s{sT0}, s{sT0}, 2
                s_add_u32 s{sT0}, s{sT0}, s{sT}
                s_mul_i32 s{sT0}, s{sT0}, 384
                v_add_u32 v27, s{sT0}, v{self.v1_}
                v_min_u32 v27, L_code_end-{NAME}_kernel-4, v27
                v_mov_b32 v29, s{sT0 + 3}
                v_add_co_u32 v28, vcc, s{sT0 + 2}, v27
                s_nop 1
                v_addc_co_u32 v29, vcc, 0, v29, vcc
                s_mov_b64 exec, 7
                global_load_dword v104, v[28:29], off
                s_mov_b64 exec, -1""")
        skip = self.lab("noreset")
        a(f"""s_lshr_b32 s{sT0}, s2, 4
            s_or_b32 s{sT0}, s{sT0}, s{sW}
            s_cmp_lg_u32 s{sT0}, 0
            s_cbranch_scc1 {skip}
            s_mul_i32 s{sT0}, s2, 2560
            s_add_u32 s{sT0}, s{sT0}, {WS_FLAG}
            v_lshlrev_b32 v26, 3, v26
            s_mov_b64 exec, 0xfffff
            buffer_store_dword v100, v26, {sr(sWS, 4)}, s{sT0} offen sc1
            s_mov_b64 exec, -1""")
        a.label(skip)

    def pass_a(self, isv):
        a = self.a
        a.lg.reset()
        a.vm.reset()
        a(f"v_mov_b32 v{self.vST}, v{24 if isv else 23}")
        XR, ACC, W = self.XR, self.ACC, self.WS_
        sB = sT0 + 2

        def reads(g):
            i, s = divmod(g, 4)
            B = slot(i)
            self.dsr("ds_read_b128", XR + 4 * g, 4, self.vXA + s, self.vXAh + s, B, ("x", g))
            for ct in range(2):
                for u in range(2):
                    self.dsr("ds_read_b64_tr_b16", W + 8 * (g % 3) + 4 * ct + 2 * u, 2, self.vWk + ct, self.vWkh + ct,
                             B + 16384 + (16 * s + 4 * u) * 128, ("w", g, ct))

        def comp(g):
            for ct in range(2):
                a.lg.wait(("x", g), ("w", g, ct))
                wf, xf = vr(W + 8 * (g % 3) + 4 * ct, 4), vr(XR + 4 * g, 4)
                d = vr(ACC + 16 * ct, 16)
                A, Bm = (xf, wf) if isv else (wf, xf)
                a(f"v_mfma_f32_32x32x16_bf16 {d}, {A}, {Bm}, {d if g else 0}")

        for i in range(8):
            g0 = 4 * i
            if i:
                a.lg.drain()
            a("s_barrier")
            if i == 0:
                self.stamp("BA0", "M")
            reads(g0)
            reads(g0 + 1)
            if i:
                comp(g0 - 1)
            reads(g0 + 2)
            if i == 1:
                skip = self.lab("nogo")
                a(f"""s_lshr_b32 s{sT0}, s2, 4
                    s_or_b32 s{sT0}, s{sT0}, s{sW}
                    s_cmp_lg_u32 s{sT0}, 0
                    s_cbranch_scc1 {skip}
                    s_lshl_b32 s{sT0}, s2, 2
                    s_waitcnt vmcnt(0)""")
                self.set_flag(f"s{sT0}", self.v1_, sDBG)
                a.label(skip)
            if i == 2:
                a(f"""s_lshr_b32 s{sB}, s{sC}, 1
                    s_lshl_b32 s{sB}, s{sB}, 19
                    s_lshl_b32 s{sB + 1}, s{sR}, 2
                    s_add_u32 s{sB + 1}, s{sB + 1}, s{sT}
                    s_lshl_b32 s{sB + 1}, s{sB + 1}, 11
                    s_add_u32 s{sB}, s{sB}, s{sB + 1}""")
            if i == 5:
                a(f"buffer_load_dword v{self.vGo}, v{self.vGa}, {sr(sDBG, 4)}, 0 offen sc1")
            comp(g0)
            reads(g0 + 3)
            comp(g0 + 1)
            comp(g0 + 2)
        comp(31)
        a("s_nop 10")
        for ct in range(2):
            for q in range(2):
                d = 112 + 8 * ct + 4 * q
                for k in range(4):
                    s = ACC + 16 * ct + 8 * q + 2 * k
                    a(f"v_cvt_pk_bf16_f32 v{d + k}, v{s}, v{s + 1}")
                if isv:
                    a(f"buffer_store_dwordx4 {vr(d, 4)}, v{self.vST}, {sr(sWS, 4)}, s{sB} offen offset:{512 * q} sc1")
                    if q == 1 and ct == 0:
                        a(f"s_add_u32 s{sB}, s{sB}, 262144")
                else:
                    a(f"buffer_store_dwordx4 {vr(d, 4)}, v{self.vST}, {sr(sWS, 4)}, s{sB} offen sc1")
                    a(f"s_add_u32 s{sB}, s{sB}, 131072")
        self.stamp("KVst", "M")

    def kv_flag(self):
        a = self.a
        ok = self.lab("go")
        a(f"""s_lshr_b32 s{sT0}, s{sC}, 1
            s_lshl_b32 s{sT0}, s{sT0}, 4
            s_add_u32 s{sT0}, s{sT0}, s{sR}
            s_lshl_b32 s{sT0}, s{sT0}, 7
            s_add_u32 s{sT0}, s{sT0}, {CKV}
            s_waitcnt vmcnt({4 + len(a.vm.q)})
            v_cmp_eq_u32 vcc, 0, v{self.vGo}
            s_cbranch_vccz {ok}""")
        q = list(a.vm.q)
        self.poll(self.vGa, "0", self.vGo, sDBG)
        a.vm.q = q
        a.label(ok)

    def issue_f(self, i):
        a = self.a
        sCh, sO, sFB, sLf = sT0 + 4, sT0 + 5, sT0 + 6, sT0 + 7
        if i == 0:
            a(f"s_mul_i32 s{sFB}, s{sC}, 192\ns_mul_i32 s{sLf}, s{sT}, 3072")
        self.chunk(sCh, i)
        a(f"s_mul_i32 s{sO}, s{sCh}, 176128\ns_add_u32 s{sO}, s{sO}, s{sFB}")
        for m in range(2):
            for k in range(3):
                a(f"s_add_u32 m0, s{sLf}, {slot(i) + 12288 * m + 1024 * k}\ns_nop 0")
                a(f"buffer_load_dwordx4 v{self.vF + k}, {sr(sWG if m == 0 else sWU, 4)}, s{sO} offen lds")
                a.vm.issue(("F", i))

    def touch(self, i, vA):
        a = self.a
        sA = sT0 + 8
        a(f"""s_lshr_b32 s{sA}, s2, 3
            s_lshl_b32 s{sA}, s{sA}, 2
            s_add_u32 s{sA}, s{sA}, s{sT}
            s_mul_i32 s{sA}, s{sA}, {11008 if i < 6 else 4096}
            s_add_u32 s{sA}, s{sA}, {2048 * (i if i < 6 else i - 6)}
            s_mov_b32 m0, {CNT + 64}
            s_mov_b64 exec, {'0x3f' if i == 5 else '0xffff'}
            buffer_load_dword v{vA}, {sr(sWD if i < 6 else sWO, 4)}, s{sA} offen lds
            s_mov_b64 exec, -1""")
        a.vm.issue("touch")

    def pass_q(self):
        a = self.a
        XR, W, QACC = self.XR, self.WS_, 64
        a.lg.reset()
        a.vm.reset()
        flag_at, f0_at = self.cfg["kvflag_at"], self.cfg["f0_at"]

        def reads(g):
            for u in range(2):
                self.dsr("ds_read_b64_tr_b16", W + 4 * (g % 6) + 2 * u, 2, self.vQa, None, (16 * g + 4 * u) * 64, g)

        def hooks(j):
            if j == flag_at:
                if a.vm.q:
                    a(f"s_cmp_eq_u32 s{sC}, 15\ns_cbranch_scc0 L_kvw\ns_waitcnt vmcnt(0)")
                    a.label("L_kvw")
                a(f"s_waitcnt vmcnt({len(a.vm.q)})")
                self.signal(sT0)
                self.stamp("KVflag", "M")
            if j == f0_at:
                skip = self.lab("nof0")
                a(f"s_cmp_eq_u32 s{sC}, 15\ns_cbranch_scc1 {skip}")
                self.issue_f(0)
                a.label(skip)
            if self.cfg["f1_early"] and j == self.cfg["f1_early"]:
                skip = self.lab("nof1")
                a(f"s_cmp_eq_u32 s{sC}, 15\ns_cbranch_scc1 {skip}")
                self.issue_f(1)
                a.label(skip)

        if self.cfg["bs"]:
            a("s_barrier")
        self.kv_flag()
        hooks(-2)
        hooks(-1)
        self.stamp("F0iss", "M")
        a("s_barrier")
        self.stamp("BQ", "M")
        for g in range(6):
            reads(g)
        nxt = 6
        for g in range(32):
            a.lg.wait(g)
            d = vr(QACC, 16)
            a(f"v_mfma_f32_32x32x16_bf16 {d}, {vr(W + 4 * (g % 6), 4)}, {vr(XR + 4 * g, 4)}, {d if g else 0}")
            if nxt < 32:
                reads(nxt)
                nxt += 1
            hooks(g)
        a(f"v_mov_b32 v98, {f32(0.25 * LOG2E)}\ns_nop 10")
        for k in range(8):
            a(f"v_pk_mul_f32 {vr(QACC + 2 * k, 2)}, {vr(QACC + 2 * k, 2)}, v[98:99] op_sel_hi:[1,0]")
        for hd in range(2):
            for k in range(4 * hd, 4 * hd + 4):
                a(f"v_cvt_pk_bf16_f32 v{QACC + k}, v{QACC + 2 * k}, v{QACC + 2 * k + 1}")
            a(f"ds_write_b128 v{self.vQFa}, {vr(QACC + 4 * hd, 4)} offset:{4096 * hd}")
        self.lds_signal(self.vCnt, self.v1_, 16)
        self.stamp("Qdone", "M")
        hooks(32)

    def pass_f(self):
        a = self.a
        XR, ACC, W = self.XR, self.ACC, self.WS_
        N = 192

        def reads(j):
            g, t = divmod(j, 6)
            i, s = divmod(g, 4)
            for u in range(2):
                self.dsr("ds_read_b64_tr_b16", W + 4 * (j % 6) + 2 * u, 2, self.vFlo, self.vFhi,
                         slot(i) + 12288 * (t & 1) + (16 * s + 4 * u) * 192 + 64 * (t >> 1), j)

        def landed(i):
            a.vm.wait(("F", i))
            self.lds_signal(self.vCnt, self.v1_, 0)
            if i + 1 < 8 and not (i == 0 and self.cfg["f1_early"]):
                self.issue_f(i + 1)
            if self.cfg["touch"]:
                self.touch(i, self.v1_)

        landed(0)
        self.lds_probe(self.vCnt, self.vTmp, 0)
        self.lds_check(self.vCnt, self.vTmp, 0, 16)
        self.stamp("F0", "M")
        for j in range(6):
            reads(j)
        sig = self.cfg["sig_at"]
        for j in range(N):
            g, t = divmod(j, 6)
            i, jj = divmod(j, 24)
            a.lg.wait(j)
            d = vr(ACC + 16 * t, 16)
            a(f"v_mfma_f32_32x32x16_bf16 {d}, {vr(W + 4 * (j % 6), 4)}, {vr(XR + 4 * g, 4)}, {d if g else 0}")
            if jj == 23:
                self.stamp(f"f{i}", "M")
            if i < 7:
                if jj == sig:
                    landed(i + 1)
                if jj == 15:
                    self.lds_probe(self.vCnt, self.vTmp, 0)
                if jj == 18:
                    self.lds_check(self.vCnt, self.vTmp, 0, 16 * (i + 2))
            if j + 6 < N:
                reads(j + 6)
        self.lds_signal(self.vCnt, self.v1_, 0)
        self.stamp("Fdone", "M")

    def gelu(self):
        a = self.a
        ACC = self.ACC
        c0, c1, T, OUT, vOff = 130, 132, 136, 168, 134
        k0 = -2.0 * 0.7978845608028654 * LOG2E
        self.lane(vOff)
        a(f"""v_mov_b32 v{c0}, {f32(k0)}
            v_mov_b32 v{c0 + 1}, {f32(k0)}
            v_mov_b32 v{c1}, {f32(k0 * 0.044715)}
            v_mov_b32 v{c1 + 1}, {f32(k0 * 0.044715)}
            v_lshlrev_b32 v{vOff}, 4, v{vOff}
            s_lshl_b32 s{sT0}, s{sR}, 2
            s_add_u32 s{sT0}, s{sT0}, s{sT}
            s_mul_i32 s{sT0}, s{sT0}, 86
            s_mul_i32 s{sT0 + 1}, s{sC}, 6
            s_add_u32 s{sT0}, s{sT0}, s{sT0 + 1}
            s_lshl_b32 s{sT0}, s{sT0}, 10
            s_add_u32 s{sT0}, s{sT0}, {WS_H}""")
        for j in range(3):
            G, U = ACC + 32 * j, ACC + 32 * j + 16
            p = lambda b, k: vr(b + 2 * k, 2)
            for k in range(8):
                a(f"v_pk_mul_f32 {p(T, k)}, {p(G, k)}, {p(G, k)}")
            for k in range(8):
                a(f"v_pk_fma_f32 {p(T, k)}, {p(T, k)}, {vr(c1, 2)}, {vr(c0, 2)}")
            for k in range(8):
                a(f"v_pk_mul_f32 {p(T, k)}, {p(T, k)}, {p(G, k)}")
            for k in range(16):
                a(f"v_exp_f32 v{T + k}, v{T + k}")
            for k in range(8):
                a(f"v_pk_mul_f32 {p(G, k)}, {p(G, k)}, {p(U, k)}")
            for k in range(8):
                a(f"v_pk_add_f32 {p(T, k)}, {p(T, k)}, 1.0 op_sel_hi:[1,0]")
            for k in range(16):
                a(f"v_rcp_f32 v{T + k}, v{T + k}")
            a(f"""s_cmp_lt_u32 s{sT0 + 1}, {86 - 2 * j}
                s_cselect_b32 s{sT0 + 2}, s{sT0}, {OOB}""")
            for k in range(8):
                a(f"v_pk_mul_f32 {p(G, k)}, {p(G, k)}, {p(T, k)}")
            for q in range(2):
                d = OUT + 8 * j + 4 * q
                for k in range(4):
                    a(f"v_cvt_pk_bf16_f32 v{d + k}, v{G + 8 * q + 2 * k}, v{G + 8 * q + 2 * k + 1}")
                a(f"buffer_store_dwordx4 {vr(d, 4)}, v{vOff}, {sr(sWS, 4)}, s{sT0 + 2} offen offset:{1024 * q} sc1")
            a(f"s_add_u32 s{sT0}, s{sT0}, 2048")
        self.lds_probe(self.vCnt, self.vTmp, 0)
        self.lds_check(self.vCnt, self.vTmp, 0, 144)

    def gate(self):
        a = self.a
        XR, GB, Z, vO = self.XR, 32, 8, 12
        sCh = sT0 + 4
        a("s_waitcnt vmcnt(0)")
        a.vm.reset()
        self.lane(vO + 1)
        a(f"v_lshrrev_b32 v{vO}, 5, v{vO + 1}\nv_lshlrev_b32 v{vO}, 4, v{vO}")
        for k in range(4):
            a(f"v_mov_b32 v{Z + k}, 0")
        for half in range(2):
            for i in range(4 * half, 4 * half + 4):
                self.chunk(sCh, i)
                a(f"s_lshl_b32 s{sCh}, s{sCh}, 7")
                for s in range(4):
                    a(f"buffer_load_dwordx4 {vr(GB + 16 * (i & 3) + 4 * s, 4)}, v{vO}, {sr(sGW, 4)}, s{sCh} offen offset:{32 * s}")
            if self.cfg["touch"]:
                for i in range(4 * half, 4 * half + 4):
                    self.touch(i, self.v1_)
            a("s_waitcnt vmcnt(0)")
            for k in range(64):
                a(f"v_dot2c_f32_bf16 v{Z + (k & 3)}, v{XR + 64 * half + k}, v{GB + k}")
        a(f"""s_lshl_b32 s{sT0}, s{sR}, 2
            s_add_u32 s{sT0}, s{sT0}, s{sT}
            s_lshl_b32 s{sT0}, s{sT0}, 7
            s_add_u32 s{sT0}, s{sT0}, {WS_G}
            v_add_f32 v{Z}, v{Z}, v{Z + 1}
            v_add_f32 v{Z + 2}, v{Z + 2}, v{Z + 3}
            v_add_f32 v{Z}, v{Z}, v{Z + 2}
            v_mov_b32 v{Z + 1}, v{Z}
            v_lshlrev_b32 v{vO}, 2, v{vO + 1}
            s_nop 0
            v_permlane32_swap_b32 v{Z}, v{Z + 1}
            s_nop 1
            v_add_f32 v{Z}, v{Z}, v{Z + 1}
            s_mov_b32 exec_hi, 0
            buffer_store_dword v{Z}, v{vO}, {sr(sWS, 4)}, s{sT0} offen sc1
            s_mov_b64 exec, -1""")
        a.lg.reset()
        self.lds_probe(self.vCnt, self.vTmp, 16)
        self.lds_check(self.vCnt, self.vTmp, 16, 16)

    def ffn2(self):
        a = self.a
        ACC, HS, WB = 32, 128, 96
        vL, vD, vH, vA0, vA1, vOw, vOt, vDump, vP, vZ, vD2, vH2 = range(8, 20)
        self.vL, self.vH, self.vDump, self.vZ, self.vOw, self.vOt, self.vP = vL, vH, vDump, vZ, vOw, vOt, vP
        sRing, sS0, sS1, sWc, sW0, sWe, sHc, sH0, sHe, sHl, sFl, sRow = range(sT0, sT0 + 12)
        self.sRow = sRow
        NS, PD, NR, NH, CAP = 22, self.cfg["pd"], 16, 16, self.cfg["cap"]
        self.lane(vL)
        a(f"""s_lshl_b32 s{sRing}, s{sT}, 15
            v_lshrrev_b32 v20, 3, v{vL}
            v_and_b32 v21, 7, v{vL}
            v_bfe_u32 v22, v{vL}, 4, 1
            v_lshlrev_b32 v23, 2, v22
            v_xor_b32 v21, v21, v23
            v_lshlrev_b32 v21, 4, v21
            v_lshl_add_u32 v{vD}, v20, 10, v21
            v_add_u32 v{vD2}, 7168, v{vD}
            s_and_b32 s{sS0}, s{sRB}, 3
            s_lshl_b32 s{sS0}, s{sS0}, 1
            s_add_u32 s{sS0}, s{sS0}, s{sCB}
            s_and_b32 s{sS0}, s{sS0}, {7 if self.cfg['rot2'] else 0}
            s_mul_i32 s{sS0}, s{sS0}, 11
            s_lshr_b32 s{sS0}, s{sS0}, 2
            s_mul_i32 s{sS1}, s{sT}, {NS}
            s_lshl_b32 s{sW0}, s{sS1}, 14
            s_lshl_b32 s{sWc}, s{sCB}, 7
            s_add_u32 s{sW0}, s{sW0}, s{sWc}
            s_add_u32 s{sWe}, s{sW0}, {NS * 16384}
            s_lshl_b32 s{sWc}, s{sS0}, 14
            s_add_u32 s{sWc}, s{sWc}, s{sW0}
            s_mul_i32 s{sHl}, s{sRB}, 172
            s_add_u32 s{sH0}, s{sHl}, s{sS1}
            s_lshl_b32 s{sH0}, s{sH0}, 10
            s_add_u32 s{sH0}, s{sH0}, {WS_H}
            s_add_u32 s{sHe}, s{sH0}, {NS * 1024}
            s_lshl_b32 s{sHc}, s{sS0}, 10
            s_add_u32 s{sHc}, s{sHc}, s{sH0}
            s_lshl_b32 s{sHl}, s{sHl}, 10
            s_add_u32 s{sHl}, s{sHl}, {WS_H + 86 * 1024}
            s_lshl_b32 s{sFl}, s{sR}, 1
            s_lshr_b32 s{sS0}, s{sT}, 1
            s_add_u32 s{sFl}, s{sFl}, s{sS0}
            s_lshl_b32 s{sFl}, s{sFl}, 9
            s_add_u32 s{sFl}, s{sFl}, {CH}
            s_mov_b32 s{sRow}, 0x62223111
            s_cmp_ge_u32 s{sC}, 8
            s_cselect_b32 s{sRow}, 0xf8888444, s{sRow}
            s_and_b32 s{sS0}, s{sC}, 7
            s_lshl_b32 s{sS0}, s{sS0}, 2
            s_lshr_b32 s{sRow}, s{sRow}, s{sS0}""")

        def setup2():
            a(f"""v_lshlrev_b32 v{vH}, 4, v{vL}
                v_add_u32 v{vH2}, 88064, v{vH}
                v_add_u32 v{vDump}, s{sRing}, v{vH}
                v_lshrrev_b32 v20, 5, v{vL}
                v_bfe_u32 v21, v{vL}, 2, 2
                v_lshl_add_u32 v20, v20, 2, v21
                v_and_b32 v21, 1, v{vL}
                v_lshlrev_b32 v21, 2, v21
                v_lshl_add_u32 v21, v22, 1, v21
                v_bfe_u32 v23, v{vL}, 1, 1
                v_add_u32 v21, v21, v23
                v_lshlrev_b32 v21, 3, v21
                v_lshl_add_u32 v21, v20, 7, v21
                v_bfe_u32 v23, v{vL}, 3, 1
                v_lshl_add_u32 v21, v23, 6, v21
                v_add_u32 v{vA0}, s{sRing}, v21
                v_xor_b32 v{vA1}, 64, v{vA0}
                s_lshr_b32 s{sS0}, s{sT}, 1
                s_lshl_b32 s{sS0}, s{sS0}, 6
                v_xor_b32 v{vOw}, s{sS0}, v{vA0}
                v_and_b32 v{vOw}, 0xffff7fff, v{vOw}
                v_xor_b32 v{vOt}, 64, v{vOw}
                v_and_b32 v{vZ}, 31, v{vL}
                v_lshlrev_b32 v{vZ}, 2, v{vZ}
                s_setprio {self.cfg['prio_m']}""")

        a.lg.reset()
        a.vm.reset()
        a.vm.issue("H")

        def cap():
            if len(a.vm.q) > CAP:
                a.vm.q = a.vm.q[len(a.vm.q) - CAP:]
                a(f"s_waitcnt vmcnt({CAP})")

        def issue_w(s):
            if NS <= s < 24 or s >= 32:
                return
            a(f"s_add_u32 m0, s{sRing}, {(s % NR) * 2048}")
            if s == 24:
                a(f"""s_lshl_b32 s{sWc}, s{sT}, 17
                    s_lshl_b32 s{sS0}, s{sCB}, 7
                    s_add_u32 s{sWc}, s{sWc}, s{sS0}""")
            elif s:
                a(f"s_add_u32 s{sWc}, s{sWc}, 16384")
                if s < NS:
                    a(f"s_cmp_eq_u32 s{sWc}, s{sWe}\ns_cselect_b32 s{sWc}, s{sW0}, s{sWc}")
            else:
                a("s_nop 0")
            srd = sr(sWD if s < NS else sWO, 4)
            a(f"buffer_load_dwordx4 v{vD}, {srd}, s{sWc} offen lds")
            a(f"buffer_load_dwordx4 v{vD2}, {srd}, s{sWc} offen offset:1024 lds")
            a.vm.issue(("w", s))
            a.vm.issue(("w", s))

        def issue_h(s):
            if s >= NS:
                return
            if s:
                a(f"""s_add_u32 s{sHc}, s{sHc}, 1024
                    s_cmp_eq_u32 s{sHc}, s{sHe}
                    s_cselect_b32 s{sHc}, s{sH0}, s{sHc}""")
            a(f"s_cmp_lt_u32 s{sHc}, s{sHl}\ns_cselect_b32 s{sS0}, s{sHc}, {OOB}")
            for tt in range(2):
                a(f"buffer_load_dwordx4 {vr(HS + 8 * (s % NH) + 4 * tt, 4)}, v{(vH, vH2)[tt]}, {sr(sWS, 4)}, s{sS0} offen sc1")
                a.vm.issue(("h", s))

        def reads(s):
            if s >= NS:
                return
            a.vm.wait(("w", s))
            for ct in range(2):
                for u in range(2):
                    self.dsr("ds_read_b64_tr_b16", WB + 8 * (s % 3) + 4 * ct + 2 * u, 2, (vA0, vA1)[ct], None,
                             (s % NR) * 2048 + 1024 * u, (s, ct))

        for s in range(NR):
            issue_w(s)
            if s == 1:
                setup2()
                a.vm.wait("H")
                for k in range(4):
                    skip = self.lab("nosig")
                    a(f"s_bitcmp1_b32 s{sRow}, {k}\ns_cbranch_scc0 {skip}")
                    self.signal(sFl)
                    a.label(skip)
                    a(f"s_add_u32 s{sFl}, s{sFl}, 128")
                self.stamp("Hflag", "M")
            cap()
        self.stamp("W0", "M")
        a(f"""s_lshl_b32 s{sFl}, s{sRB}, 2
            s_add_u32 s{sFl}, s{sFl}, s{sT}
            s_lshl_b32 s{sFl}, s{sFl}, 7
            s_add_u32 s{sFl}, s{sFl}, {CH}
            s_cmp_eq_u32 s{sT}, 1
            s_cselect_b32 s{sRow}, 12, 10""")
        self.spoll(sFl, f"s{sRow}")
        self.stamp("Hpoll", "M")
        for s in range(PD):
            issue_h(s)
        a(f"""s_lshl_b32 s{sFl}, s{sRB}, 1
            s_and_b32 s{sS0}, s{sT}, 1
            s_add_u32 s{sFl}, s{sFl}, s{sS0}
            s_lshl_b32 s{sFl}, s{sFl}, 7
            s_add_u32 s{sFl}, s{sFl}, {WS_G}
            buffer_load_dword v{vZ}, v{vZ}, {sr(sWS, 4)}, s{sFl} offen sc1""")
        a.vm.issue("z")
        reads(0)
        reads(1)
        for s in range(NS):
            a.vm.wait(("h", s))
            self.stamp(f"s{s}", "M")
            for k in range(4):
                ct, tt = divmod(k, 2)
                a.lg.wait((s, ct))
                d = vr(ACC + 32 * tt + 16 * ct, 16)
                a(f"v_mfma_f32_32x32x16_bf16 {d}, {vr(WB + 8 * (s % 3) + 4 * ct, 4)}, {vr(HS + 8 * (s % NH) + 4 * tt, 4)}, {d if s else 0}")
                if k == 0:
                    issue_h(s + PD)
                if k == 1:
                    reads(s + 2)
                if k == 2:
                    issue_w(s + NR)
        self.stamp("s22", "M")
        a("s_nop 8")
        for k in (0, 1, 2, 3, 8, 9, 10, 11, 4, 5, 6, 7, 12, 13, 14, 15):
            a(f"ds_write_b128 v{vDump}, {vr(ACC + 4 * k, 4)} offset:{1024 * k}")
        a.vm.drain()
        a.lg.drain()
        self.lds_signal(self.vCnt, self.v1_, 4)
        self.stamp("dump", "M")

    def final(self):
        a = self.a
        OF, OWN, OTH, B, WO = 32, 96, 112, 16, 128
        vL, vH, vX, vZ = self.vL, self.vH, self.vDump, self.vZ
        vA, vAh, vFl, vOut, vXp, vG = 11, 12, 0, 1, 9, 2
        sTT, sKh = sT0 + 4, sT0 + 5
        self.lds_probe(self.vCnt, self.vTmp, 4)
        a(f"""s_and_b32 s{sTT}, s{sT}, 1
            s_lshr_b32 s{sKh}, s{sT}, 1
            s_lshl_b32 s{sT0 + 1}, s{sTT}, 1
            s_add_u32 s{sT0 + 1}, s{sT0 + 1}, s{sKh}
            s_lshl_b32 s{sT0 + 1}, s{sT0 + 1}, 12
            v_mul_f32 v{vG}, {f32(LOG2E)}, v{vZ}
            v_add_u32 v{vA}, s{sT0 + 1}, v{vH}
            v_add_u32 v{vX}, s{sT0 + 1}, v{vX}
            v_exp_f32 v{vG + 2}, v{vG}
            v_exp_f32 v{vG}, -v{vG}
            v_add_u32 v{vAh}, 0x10000, v{vA}
            v_add_f32 v{vG + 2}, 1.0, v{vG + 2}
            v_add_f32 v{vG}, 1.0, v{vG}
            v_rcp_f32 v{vG + 2}, v{vG + 2}
            v_rcp_f32 v{vG}, v{vG}
            s_lshl_b32 s{sT0 + 1}, s{sRB}, 1
            s_add_u32 s{sT0 + 1}, s{sT0 + 1}, s{sTT}
            s_lshl_b32 s{sT0 + 2}, s{sT0 + 1}, 5
            s_lshl_b32 s{sT0 + 3}, s{sKh}, 4
            s_add_u32 s{sT0 + 2}, s{sT0 + 2}, s{sT0 + 3}
            s_lshl_b32 s{sT0}, s{sRB}, 1
            s_add_u32 s{sT0}, s{sT0}, s{sKh}
            s_lshl_b32 s{sT0}, s{sT0}, 7
            s_add_u32 s{sT0}, s{sT0}, {CO}
            s_lshl_b32 s{sT0 + 2}, s{sT0 + 2}, 10
            s_add_u32 s{sT0 + 2}, s{sT0 + 2}, {WS_O}
            v_and_b32 v{vOut}, 31, v{vL}
            v_lshlrev_b32 v{vOut}, 10, v{vOut}
            v_lshrrev_b32 v{vXp}, 5, v{vL}
            v_lshl_add_u32 v{vOut}, v{vXp}, 5, v{vOut}
            s_lshl_b32 s{sT0 + 1}, s{sT0 + 1}, 15
            s_lshl_b32 s{sT0 + 3}, s{sCB}, 7
            s_add_u32 s{sT0 + 1}, s{sT0 + 1}, s{sT0 + 3}
            s_lshl_b32 s{sT0 + 3}, s{sKh}, 6
            s_add_u32 s{sT0 + 1}, s{sT0 + 1}, s{sT0 + 3}
            v_xor_b32 v{vXp}, 0x11000, v{vX}""")
        self.lds_check(self.vCnt, self.vTmp, 4, 16)
        self.stamp("msync", "M")
        a.lg.reset()
        dsts = (B, 32, 48, 64)
        for i in range(4):
            for q in range(4):
                self.dsr("ds_read_b128", dsts[i] + 4 * q, 4, vA, vAh, 32768 * i + 1024 * q, i)
            if i >= 2:
                a.lg.wait(i - 1)
                for k in range(8):
                    a(f"v_pk_add_f32 {vr(B + 2 * k, 2)}, {vr(B + 2 * k, 2)}, {vr(dsts[i - 1] + 2 * k, 2)}")
        for s in range(16):
            for ct in range(2):
                for u in range(2):
                    self.dsr("ds_read_b64_tr_b16", WO + 8 * s + 4 * ct + 2 * u, 2, (self.vOw, self.vOt)[ct], None,
                             32768 * (s >> 3) + (8 + (s & 7)) * 2048 + 1024 * u, ("wo", s))
            a.lg.wait(("wo", s - 2))
        for k in range(8):
            a(f"v_pk_add_f32 {vr(B + 2 * k, 2)}, {vr(B + 2 * k, 2)}, {vr(64 + 2 * k, 2)}")
        for k in range(8):
            a(f"v_pk_mul_f32 {vr(B + 2 * k, 2)}, {vr(B + 2 * k, 2)}, {vr(vG + 2, 2)} op_sel_hi:[1,0]")
        a.lg.drain()
        self.stamp("ffn2", "M")
        self.spoll(sT0, 16)
        a.vm.reset()
        self.stamp("Opoll", "M")
        for s in range(16):
            if s % 4 == 0 and s:
                a(f"s_add_u32 s{sT0 + 2}, s{sT0 + 2}, 4096")
            a(f"buffer_load_dwordx4 {vr(OF + 4 * s, 4)}, v{vH}, {sr(sWS, 4)}, s{sT0 + 2} offen offset:{1024 * (s % 4)} sc1")
            a.vm.issue(s)
        for s in range(16):
            a.vm.wait(s)
            a(f"v_mfma_f32_32x32x16_bf16 {vr(OTH, 16)}, {vr(WO + 8 * s + 4, 4)}, {vr(OF + 4 * s, 4)}, {vr(OTH, 16) if s else 0}")
            a(f"v_mfma_f32_32x32x16_bf16 {vr(OWN, 16)}, {vr(WO + 8 * s, 4)}, {vr(OF + 4 * s, 4)}, {vr(OWN, 16) if s else 0}")
        self.stamp("Omfma", "M")
        a("s_nop 10")
        for q in range(4):
            a(f"ds_write_b128 v{vX}, {vr(OTH + 4 * q, 4)} offset:{1024 * q}")
        for k in range(8):
            a(f"v_pk_fma_f32 {vr(B + 2 * k, 2)}, {vr(OWN + 2 * k, 2)}, {vr(vG, 2)}, {vr(B + 2 * k, 2)} op_sel_hi:[1,0,1]")
        a("s_waitcnt lgkmcnt(0)\ns_barrier")
        for q in range(4):
            a(f"ds_read_b128 {vr(32 + 4 * q, 4)}, v{vXp} offset:{1024 * q}")
        for q in range(4):
            a(f"s_waitcnt lgkmcnt({3 - q})")
            for k in range(2):
                r = 4 * q + 2 * k
                a(f"v_pk_fma_f32 {vr(B + r, 2)}, {vr(32 + r, 2)}, {vr(vG, 2)}, {vr(B + r, 2)} op_sel_hi:[1,0,1]")
            for k in range(2):
                r = 4 * q + 2 * k
                a(f"v_cvt_pk_bf16_f32 v{48 + 2 * q + k}, v{B + r}, v{B + r + 1}")
            if q % 2 == 1:
                a(f"buffer_store_dwordx4 {vr(48 + 4 * (q // 2), 4)}, v{vOut}, {sr(sOUT, 4)}, s{sT0 + 1} offen offset:{16 * (q // 2)} {self.cfg['outpol'].replace('_', ' ')}")

    def build(self):
        a = self.a
        cfg = self.cfg
        self.prologue()
        a(f"s_setprio {cfg['prio_l']}")
        self.loader()
        self.attn_start()
        self.stamp("attn0", "L")
        self.attn_loop()
        self.stamp("attn1", "L")
        self.attn_finish()
        self.stamp("Oflag", "L")
        self.dump_stamps(True)
        a("s_endpgm")

        a.label("L_mwave")
        self.m_setup()
        a(f"s_bitcmp1_b32 s{sC}, 0\ns_cbranch_scc1 L_pass_v")
        self.pass_a(False)
        a("s_branch L_pass_q")
        a.label("L_pass_v")
        self.pass_a(True)
        a.label("L_pass_q")
        self.pass_q()
        a(f"s_cmp_eq_u32 s{sC}, 15\ns_cbranch_scc1 L_gate")
        self.pass_f()
        a(f"s_setprio {cfg['prio_gelu']}")
        self.gelu()
        a.label("L_ffn2")
        self.stamp("gelu", "M")
        self.ffn2()
        self.final()
        if cfg.get("stamps"):
            a("s_waitcnt vmcnt(0)")
            self.stamp("end", "M")
            self.dump_stamps(False)
        a.label("L_end")
        a("s_endpgm")
        a.label("L_gate")
        a(f"s_setprio {cfg['prio_gelu']}")
        self.gate()
        a("s_branch L_ffn2")
        self.fallback()
        a.label("L_code_end")
        return a.text()


HEADER = """; Fused kernel: out = g * MHA(x) + (1 - g) * GEGLU(x),  g = sigmoid(x . gate_w)
; Kernarg (88 bytes, pointers): 0 A_x, 8 A_wqkv, 16 A_wo, 24 B_x (unused by the reference), 32 B_w_gate, 40 B_w_up,
;   48 B_w_down, 56 gate_w, 64 d_out, 72 d_debug, 80 d_ws
; 256 workgroups, one per CU; hand-offs between workgroups go through d_ws with write-through stores and flags.
; @launch grid=(256,1,1) block=(512,1,1) lds=%d
.amdgcn_target "amdgcn-amd-amdhsa--gfx950"
.text
.globl %s_kernel
.p2align 8
.type %s_kernel,@function
%s_kernel:
""" % (LDS_BYTES, NAME, NAME, NAME)

FOOTER = """.section .rodata,"a"
.p2align 6
.amdhsa_kernel %s_kernel
  .amdhsa_next_free_vgpr 256
  .amdhsa_next_free_sgpr 102
  .amdhsa_accum_offset 256
  .amdhsa_group_segment_fixed_size 0
  .amdhsa_kernarg_size 88
  .amdhsa_user_sgpr_count 2
  .amdhsa_user_sgpr_kernarg_segment_ptr 1
  .amdhsa_system_sgpr_workgroup_id_x 1
  .amdhsa_float_denorm_mode_32 3
.end_amdhsa_kernel
""" % NAME

DEFAULT = dict(stM='start,BA0,KVst,KVflag,Qdone,F0,Fdone,gelu,Hflag,Hpoll,ffn2,Opoll,Omfma,end',
               stL='start,karg,A0,A2,A7,KVpoll,Qrdy,attn0,attn1,Ost,Oflag',
               outpol='', rowmask=14, bs=0, touch=1, tq=1, f1_early=0, rbits=3, rot=4, rot2=1, la=2, nst=4, tlb=0, codepf=0, kvflag_at=20, f0_at=20, sig_at=6, pd=3, cap=6, prio_l=2, prio_m=0, prio_gelu=3)


def generate(**kw):
    cfg = dict(DEFAULT)
    cfg.update(kw)
    body = Gen(cfg).build()
    msgs = lint(body)
    if cfg.get("stamps"):
        body += f"; STAMPS M {cfg['stM']}\n"
    return HEADER + body + FOOTER, msgs


if __name__ == "__main__":
    out = sys.argv[1]
    kw = {}
    for arg in sys.argv[2:]:
        k, v = arg.split("=")
        try:
            kw[k] = int(v)
        except ValueError:
            try:
                kw[k] = float(v)
            except ValueError:
                kw[k] = v
    text, msgs = generate(**kw)
    for m in msgs:
        print("LINT:", m)
    open(out, "w").write(text)
    print("wrote", out, len(text), "bytes,", text.count("\n"), "lines")
```

```python
import struct
import sys

from asmlib import Asm, lint, sr, vr

NAME = "gated_mix__softmax_full_mha__glu_gated_geglu__prompt"


def f32(x):
    return "0x%08x" % struct.unpack("<I", struct.pack("<f", x))[0]


LOG2E = 1.4426950408889634

WS_KV, WS_O, WS_H, WS_G, WS_FLAG, WS_STAMP = 0x000000, 0x400000, 0x600000, 0xBC0000, 0xC00000, 0xD00000
CKV, CH, CO = WS_FLAG, WS_FLAG + 128 * 128, WS_FLAG + 256 * 128
OOB = 0x20000000

NSLOT = 4
QW, QF, PART, CNT = 98304, 131072, 139264, 157696
LDS_BYTES = 163840

sX, sWQ, sWO, sWG, sWU, sWD, sGW, sOUT, sDBG, sWS = 4, 8, 12, 16, 20, 24, 28, 32, 36, 40
sC, sR, sW, sT, sROT, sRB, sCB, sDEL = 44, 45, 46, 47, 48, 49, 50, 51
sONE, sPV = 71, 69
sVM = 52
sT0 = 54
sSPIN = 70
sSTAMP = 72
SIZES = {sX: 2097152, sWQ: 1572864, sWO: 524288, sWG: 1409024, sWU: 1409024, sWD: 1409024, sGW: 1024, sOUT: 2097152,
         sDBG: 256, sWS: 268435456}
KARG = {sX: 0, sWQ: 8, sWO: 16, sWG: 32, sWU: 40, sWD: 48, sGW: 56, sOUT: 64, sDBG: 72, sWS: 80}


def slot(n):
    return (n % NSLOT) * 24576


class Gen:
    def __init__(self, cfg):
        self.cfg = cfg
        self.a = Asm()
        self.uid = 0

    def lab(self, base):
        self.uid += 1
        return f"L_{base}_{self.uid}"

    def clock(self):
        return "s_memtime" if self.cfg.get("stamps") == 2 else "s_memrealtime"

    def names(self, role):
        if "pad" in self.cfg:
            return ["start", self.cfg["pad"]]
        return self.cfg["st" + role].split(",")

    def stamp(self, name, role):
        if self.cfg.get("stamps") and name in self.names(role):
            n = self.names(role).index(name)
            a = self.a
            a(f"{self.clock()} {sr(sSTAMP + 2 * n, 2)}")
            a.lg.drain()

    def dump_stamps(self, is_l):
        if not self.cfg.get("stamps"):
            return
        a = self.a
        if "pad" in self.cfg:
            n = 0 if self.cfg["pad"] == "start" else 1
            top, done = self.lab("pad"), self.lab("paddone")
            if is_l:
                a("s_barrier")
            a(f"""s_waitcnt vmcnt(0) lgkmcnt(0)
                s_cmp_eq_u32 s{sSTAMP + 2 * n}, 0
                s_cbranch_scc1 {done}""")
            a.label(top)
            a(f"""s_sleep 4
                s_memrealtime {sr(sT0, 2)}
                s_waitcnt lgkmcnt(0)
                s_sub_u32 s{sT0}, s{sT0}, s{sSTAMP + 2 * n}
                s_cmp_lt_u32 s{sT0}, 6000
                s_cbranch_scc1 {top}""")
            a.label(done)
            return
        a(f"""s_lshl_b32 s{sT0}, s2, 3
            s_add_u32 s{sT0}, s{sT0}, s{sW}
            s_lshl_b32 s{sT0}, s{sT0}, 6
            s_add_u32 s{sT0}, s{sT0}, {WS_STAMP}
            s_mov_b64 exec, 1""")
        for n in range(14):
            a(f"v_mov_b32 v0, s{sSTAMP + 2 * n}")
            a(f"buffer_store_dword v0, off, {sr(sWS, 4)}, s{sT0} offset:{4 * n}")
        a("s_mov_b64 exec, -1")

    def lane(self, v):
        self.a(f"""v_mbcnt_lo_u32_b32 v{v}, -1, 0
            v_mbcnt_hi_u32_b32 v{v}, -1, v{v}""")

    def srd(self, *regs):
        for r in regs:
            self.a(f"s_mov_b32 s{r + 2}, {SIZES[r]}\ns_mov_b32 s{r + 3}, 0x00020000")

    def kload(self, *regs):
        for r in regs:
            self.a(f"s_load_dwordx2 {sr(r, 2)}, s[0:1], {KARG[r]}")

    def chunk(self, dst, i):
        a = self.a
        if self.cfg["rot"] in (3, 4):
            a(f"""s_add_u32 s{dst}, s{sDEL}, {i & 3}
                s_and_b32 s{dst}, s{dst}, 3
                s_add_u32 s{dst}, s{dst}, s{sROT}""")
            if i & 4:
                a(f"s_xor_b32 s{dst}, s{dst}, 4")
        else:
            a(f"s_add_u32 s{dst}, s{sROT}, {i}\ns_and_b32 s{dst}, s{dst}, 7")

    def dsr(self, op, dst, n, lo, hi, imm, tag):
        reg = lo
        if imm >= 65536:
            reg, imm = hi, imm - 65536
        assert 0 <= imm < 65536 and reg is not None
        self.a(f"{op} {vr(dst, n)}, v{reg} offset:{imm}")
        self.a.lg.issue(tag)

    def poll(self, voff, soff, tmp, srd=sWS):
        a = self.a
        top, done = self.lab("poll"), self.lab("pdone")
        a(f"s_mov_b32 s{sSPIN}, 100000")
        a.label(top)
        a(f"""buffer_load_dword v{tmp}, v{voff}, {sr(srd, 4)}, {soff} offen sc1
            s_waitcnt vmcnt(0)
            v_cmp_gt_u32 vcc, 16, v{tmp}
            s_cbranch_vccz {done}
            s_sleep 8
            s_sub_u32 s{sSPIN}, s{sSPIN}, 1
            s_cmp_lg_u32 s{sSPIN}, 0
            s_cbranch_scc1 {top}""")
        a.label(done)
        a.vm.reset()

    def signal(self, soff):
        self.a(f"s_atomic_add s{sONE}, {sr(sWS, 2)}, s{soff}")

    def spoll(self, soff, need, back=None):
        a = self.a
        top, done = self.lab("spoll"), back or self.lab("sdone")
        a(f"s_mov_b32 s{sSPIN}, 200000")
        a.label(top)
        a(f"""s_mov_b32 s{sPV}, 0
            s_atomic_add s{sPV}, {sr(sWS, 2)}, s{soff} glc
            s_waitcnt lgkmcnt(0)
            s_cmp_ge_u32 s{sPV}, {need}
            s_cbranch_scc1 {done}
            s_sub_u32 s{sSPIN}, s{sSPIN}, 1
            s_cmp_lg_u32 s{sSPIN}, 0
            s_cbranch_scc1 {top}""")
        if back:
            a(f"s_branch {back}")
        else:
            a.label(done)
        a.lg.reset()

    def lds_signal(self, addr, one, off):
        a = self.a
        a(f"""s_mov_b64 exec, 1
            ds_add_u32 v{addr}, v{one} offset:{off}
            s_mov_b64 exec, -1""")
        a.lg.issue("sig")

    def lds_probe(self, addr, tmp, off):
        self.a(f"ds_read_b32 v{tmp}, v{addr} offset:{off}")
        self.a.lg.issue("probe")

    def lds_check(self, addr, tmp, off, need, nap=0):
        a = self.a
        top, done = self.lab("lspin"), self.lab("ldone")
        a.lg.wait("probe")
        a(f"""v_cmp_gt_u32 vcc, {need}, v{tmp}
            s_cbranch_vccz {done}
            s_mov_b32 s{sSPIN}, 1000000""")
        a.label(top)
        if nap:
            a(f"s_sleep {nap}")
        a(f"""ds_read_b32 v{tmp}, v{addr} offset:{off}
            s_waitcnt lgkmcnt(0)
            v_cmp_gt_u32 vcc, {need}, v{tmp}
            s_cbranch_vccz {done}
            s_sub_u32 s{sSPIN}, s{sSPIN}, 1
            s_cmp_lg_u32 s{sSPIN}, 0
            s_cbranch_scc1 {top}""")
        a.label(done)

    def prologue(self):
        a = self.a
        cfg = self.cfg
        rb = cfg["rbits"]
        a("s_cmp_ge_u32 s2, 256\ns_cbranch_scc1 L_end")
        if cfg.get("stamps"):
            a(f"{self.clock()} {sr(sSTAMP, 2)}")
        self.kload(sX, sWQ, sWS)
        if cfg.get("stamps"):
            for n in range(1, 14):
                a(f"s_mov_b32 s{sSTAMP + 2 * n}, 0")
        x, j, t = sT0, sT0 + 1, sT0 + 2
        a(f"""v_lshrrev_b32 v1, 6, v0
            s_and_b32 s{x}, s2, 7
            v_readfirstlane_b32 s{sW}, v1
            s_lshr_b32 s{j}, s2, 3
            v_and_b32 v0, 63, v0
            s_and_b32 s{sR}, s{x}, {(1 << (4 - rb)) - 1}
            s_lshl_b32 s{sR}, s{sR}, {rb}
            s_and_b32 s{t}, s{j}, {(1 << rb) - 1}
            s_add_u32 s{sR}, s{sR}, s{t}
            s_lshr_b32 s{sC}, s{x}, {4 - rb}
            s_lshl_b32 s{sC}, s{sC}, {5 - rb}
            s_lshr_b32 s{t}, s{j}, {rb}
            s_add_u32 s{sC}, s{sC}, s{t}
            s_and_b32 s{sT}, s{sW}, 3""")
        rot = cfg["rot"]
        if rot == 0:
            a(f"s_mov_b32 s{sROT}, 0")
        elif rot == 1:
            a(f"""s_mul_i32 s{sROT}, s{sC}, {cfg.get('rotc', 2)}
                s_mul_i32 s{t}, s{sR}, {cfg.get('rotr', 1)}
                s_add_u32 s{sROT}, s{sROT}, s{t}
                s_and_b32 s{sROT}, s{sROT}, 7""")
        else:
            a(f"""s_add_u32 s{sROT}, s{sC}, s{sR}
                s_and_b32 s{sROT}, s{sROT}, 1
                s_lshl_b32 s{sROT}, s{sROT}, 2""")
            if rot == 3:
                a(f"s_mov_b32 s{sDEL}, 0")
            else:
                a(f"""s_lshr_b32 s{sDEL}, s{x}, 1
                    s_lshl_b32 s{t}, s{x}, 1
                    s_add_u32 s{sDEL}, s{sDEL}, s{t}""")
        self.srd(sWS)
        a(f"""s_mov_b32 s{sONE}, 1
            s_cmp_ge_u32 s{sW}, 4
            s_cbranch_scc0 L_mwave""")

    def loader(self):
        a = self.a
        a.vm.reset()
        vX0, vX1, vKV, vQ = 8, 9, 10, 11
        sXB, sKB, sQB, sLx, sLk, sLq, sCh, sO = range(sT0, sT0 + 8)
        self.srd(sX, sWQ)
        a(f"""v_lshrrev_b32 v1, 3, v0
            v_and_b32 v2, 7, v0
            v_lshrrev_b32 v3, 4, v0
            s_lshl_b32 s{sO}, s{sT}, 5
            v_add_u32 v4, s{sO}, v1
            v_xor_b32 v5, v2, v3
            v_lshlrev_b32 v5, 4, v5
            v_lshl_add_u32 v{vX0}, v4, 10, v5
            v_xor_b32 v{vX1}, 64, v{vX0}
            v_add_u32 v{vX1}, 8192, v{vX1}
            s_lshl_b32 s{sO}, s{sT}, 4
            v_add_u32 v4, s{sO}, v1
            v_mul_u32_u24 v4, 3072, v4
            v_and_b32 v5, 1, v3
            v_lshlrev_b32 v5, 2, v5
            v_xor_b32 v5, v2, v5
            v_lshl_add_u32 v{vKV}, v5, 4, v4
            s_lshl_b32 s{sXB}, s{sR}, 17
            s_and_b32 s{sKB}, s{sC}, 1
            s_add_u32 s{sKB}, s{sKB}, 1
            s_lshl_b32 s{sKB}, s{sKB}, 10
            s_lshr_b32 s{sCh}, s{sC}, 1
            s_lshl_b32 s{sCh}, s{sCh}, 7
            s_add_u32 s{sKB}, s{sKB}, s{sCh}
            s_lshl_b32 s{sLx}, s{sT}, 12
            s_lshl_b32 s{sLk}, s{sT}, 11""")

        def issueA(i):
            B = slot(i)
            self.chunk(sCh, i)
            a(f"s_lshl_b32 s{sO}, s{sCh}, 7\ns_add_u32 s{sO}, s{sO}, s{sXB}")
            for k in range(4):
                a(f"s_add_u32 m0, s{sLx}, {B + 1024 * k}")
                if i == 0 and k == 0:
                    a("s_waitcnt lgkmcnt(0)")
                    self.stamp("karg", "L")
                else:
                    a(f"s_add_u32 s{sO}, s{sO}, 16384" if k == 2 else "s_nop 0")
                a(f"buffer_load_dwordx4 v{vX0 if k % 2 == 0 else vX1}, {sr(sX, 4)}, s{sO} offen {self.cfg['xpol']} lds")
                a.vm.issue(("A", i))
            a(f"s_mul_i32 s{sO}, s{sCh}, 196608")
            for k in range(2):
                a(f"s_add_u32 m0, s{sLk}, {B + 16384 + 1024 * k}")
                a(f"s_add_u32 s{sO}, s{sO}, {'s%d' % sKB if k == 0 else 24576}")
                a(f"buffer_load_dwordx4 v{vKV}, {sr(sWQ, 4)}, s{sO} offen {self.cfg['wpol']} lds")
                a.vm.issue(("A", i))

        def issueQ(lo, hi):
            for i in range(lo, hi):
                self.chunk(sCh, i)
                a(f"""s_mul_i32 s{sO}, s{sCh}, 196608
                    s_add_u32 m0, s{sLq}, {QW + 4096 * i}
                    s_add_u32 s{sO}, s{sO}, s{sQB}
                    buffer_load_dwordx4 v{vQ}, {sr(sWQ, 4)}, s{sO} offen lds""")
                a.vm.issue(("Q", 0))

        def setup2():
            a(f"""v_lshrrev_b32 v4, 2, v0
                s_lshl_b32 s{sO}, s{sT}, 4
                v_add_u32 v4, s{sO}, v4
                v_mul_u32_u24 v4, 3072, v4
                v_and_b32 v5, 3, v0
                v_lshl_add_u32 v{vQ}, v5, 4, v4
                s_lshl_b32 s{sQB}, s{sC}, 6
                s_lshl_b32 s{sLq}, s{sT}, 10
                s_mov_b32 s{sVM}, 0x0000ffff
                s_mov_b32 s{sVM + 1}, 0x0000ffff""")
            if self.cfg["tq"]:
                cb = 5 - self.cfg["rbits"]
                nl = 1 << (cb - 1)
                a(f"""v_lshrrev_b32 v4, {cb - 1}, v0
                    v_mul_u32_u24 v4, 3072, v4
                    v_and_b32 v5, {nl - 1}, v0
                    v_lshl_add_u32 v4, v5, 7, v4
                    s_lshr_b32 s{sO}, s2, 3
                    s_lshl_b32 s{sO}, s{sO}, 2
                    s_add_u32 s{sO}, s{sO}, s{sT}
                    s_mul_i32 s{sO}, s{sO}, 12288
                    s_lshr_b32 s{sCh}, s{sC}, {cb}
                    s_lshl_b32 s{sCh}, s{sCh}, {cb + 6}
                    s_add_u32 s{sO}, s{sO}, s{sCh}
                    s_mov_b32 m0, {CNT + 64}
                    s_mov_b64 exec, {(1 << (4 * nl)) - 1}
                    buffer_load_dword v4, {sr(sWQ, 4)}, s{sO} offen lds
                    s_mov_b64 exec, -1""")
                a.vm.issue("touch")
            a("s_setprio 0")
            self.attn_init()
            a(f"s_setprio {self.cfg['prio_l']}")

        la = self.cfg["la"]
        qs = [int(ch) for ch in str(self.cfg["qs"])[1:]]
        assert sum(qs) == 8
        nxt = 0
        for b in range(9):
            while nxt < 8 and nxt <= b + la and nxt - NSLOT + 2 <= b:
                issueA(nxt)
                nxt += 1
            if b == 0:
                setup2()
            if b >= 6:
                issueQ(sum(qs[:b - 6]), sum(qs[:b - 5]))
            if b == 8 and qs[3]:
                a("s_barrier")
                issueQ(8 - qs[3], 8)
            tag = ("A", b) if b < 8 else ("Q", 0)
            a.vm.wait(tag)
            self.stamp(f"{tag[0]}{tag[1]}", "L")
            a("s_barrier")

    O_, S_, Q_, KV_ = 16, 80, 112, 128
    vIDX, vKo, vVo, vFl, vQa_, vOne, vCa, vPa, vPs = 12, 13, 14, 15, 6, 7, 1, 2, 3

    def attn_init(self):
        a = self.a
        NST = self.cfg["nst"]
        assert NST == 4
        sHd, sQ, sOff, sRow, sCnt, sLd, sFl = range(sT0 + 8, sT0 + 15)
        self.sHd, self.sQ, self.sOff, self.sKr, self.sCnt, self.sLd, self.sFl = sHd, sQ, sOff, sRow, sCnt, sLd, sFl
        a(f"""s_and_b32 s{sHd}, s{sW}, 1
            s_lshr_b32 s{sQ}, s{sT}, 1
            v_lshrrev_b32 v5, 5, v0
            s_and_b32 s{sRow}, s{sR}, {self.cfg['rowmask']}
            s_add_u32 s{sRow}, s{sRow}, s{sQ}
            s_and_b32 s{sRow}, s{sRow}, 15
            s_mov_b32 s{sCnt}, {32 // NST}
            v_lshlrev_b32 v{self.vKo}, 4, v0
            v_and_b32 v{self.vVo}, 15, v0
            v_lshlrev_b32 v{self.vVo}, 4, v{self.vVo}
            v_lshl_add_u32 v{self.vVo}, v5, 8, v{self.vVo}
            s_lshl_b32 s{sLd}, s{sHd}, 12
            s_add_u32 s{sLd}, s{sLd}, {QF}
            v_add_u32 v{self.vQa_}, s{sLd}, v{self.vKo}
            s_lshl_b32 s{sLd}, s{sQ}, 11
            v_add_u32 v{self.vQa_}, s{sLd}, v{self.vQa_}
            v_mov_b32 v{self.vIDX}, 0xdddddddd
            v_mov_b32 v{self.vOne}, 1
            v_and_b32 v4, 0x1b, v0
            v_cmp_eq_u32 vcc, 16, v4
            v_mov_b32 v4, 0x3f803f80
            s_mul_i32 s{sLd}, s{sT}, 4608
            v_cndmask_b32 v4, 0, v4, vcc
            s_add_u32 s{sLd}, s{sLd}, {PART}
            v_lshl_add_u32 v{self.vPa}, v0, 4, s{sLd}
            v_lshl_add_u32 v{self.vPs}, v0, 2, s{sLd}
            s_lshl_b32 s{sLd}, s{sHd}, 2
            s_add_u32 s{sLd}, s{sLd}, {CNT + 8}
            v_mov_b32 v{self.vCa}, s{sLd}
            s_lshl_b32 s{sLd}, s{sT}, 2
            s_add_u32 s{sLd}, s{sLd}, {CNT + 32}
            v_mov_b32 v{self.vFl}, s{sLd}""")
        for st in range(NST):
            for k in range(8):
                a(f"v_mov_b32 v{self.KV_ + 12 * st + 4 + k}, v4")
        for k in range(64):
            a(f"v_mov_b32 v{self.O_ + k}, 0")

    def attn_start(self):
        a = self.a
        NST = self.cfg["nst"]
        sOff = self.sOff
        sHB, sFB, sRow, sFl = sT0, sT0 + 1, self.sKr, self.sFl
        a(f"""s_lshl_b32 s{sHB}, s{sC}, 1
            s_add_u32 s{sHB}, s{sHB}, s{self.sHd}
            s_lshl_b32 s{sHB}, s{sHB}, 17
            s_lshr_b32 s{sFB}, s{sC}, 1
            s_lshl_b32 s{sFB}, s{sFB}, 11
            s_add_u32 s{sFB}, s{sFB}, {CKV}
            s_lshl_b32 s{sOff}, s{sRow}, 13
            s_add_u32 s{sOff}, s{sOff}, s{sHB}
            s_lshl_b32 s{sFl}, s{sRow}, 7
            s_add_u32 s{sFl}, s{sFl}, s{sFB}""")
        self.spoll(sFl, 8)
        self.stamp("KVpoll", "L")
        for st in range(NST - 1):
            b = self.KV_ + 12 * st
            a(f"""buffer_load_dwordx4 {vr(b, 4)}, v{self.vKo}, {sr(sWS, 4)}, s{sOff} offen sc1
                s_mov_b64 exec, {sr(sVM, 2)}
                buffer_load_dwordx4 {vr(b + 4, 4)}, v{self.vVo}, {sr(sWS, 4)}, s{sOff} offen offset:1024 sc1
                buffer_load_dwordx4 {vr(b + 8, 4)}, v{self.vVo}, {sr(sWS, 4)}, s{sOff} offen offset:1536 sc1
                s_mov_b64 exec, -1
                s_add_u32 s{sOff}, s{sOff}, 2048""")
        self.stamp("KViss", "L")
        a(f"v_mov_b32 v5, {CNT}")
        a.lg.reset()
        self.lds_signal(5, self.vOne, 20)
        self.lds_probe(5, 4, 16)
        self.lds_check(5, 4, 16, 16)
        a(f"v_xor_b32 v4, 0x800, v{self.vQa_}")
        self.stamp("Qrdy", "L")
        for q in range(4):
            a(f"ds_read_b128 {vr(self.Q_ + 4 * q, 4)}, v{self.vQa_ if q >= 2 else 4} offset:{1024 * (q & 1)}")
        a(f"""s_add_u32 s{sRow}, s{sRow}, 2
            s_and_b32 s{sRow}, s{sRow}, 15
            s_lshl_b32 s{sFl}, s{sRow}, 7
            s_add_u32 s{sFl}, s{sFl}, s{sFB}
            s_mov_b32 s{sPV}, 0
            s_waitcnt lgkmcnt(0)
            s_atomic_add s{sPV}, {sr(sWS, 2)}, s{sFl} glc
            s_waitcnt vmcnt({3 * (NST - 2)})
            v_mfma_f32_32x32x16_bf16 {vr(self.S_, 16)}, {vr(self.KV_, 4)}, {vr(self.Q_, 4)}, 0
            s_nop 11""")

    def attn_loop(self):
        a = self.a
        NST = self.cfg["nst"]
        NT = 4 * NST
        O, S, Q, KV = self.O_, self.S_, self.Q_, self.KV_
        sOff, sRow, sCnt, sFl, sHB, sFB = self.sOff, self.sKr, self.sCnt, self.sFl, sT0, sT0 + 1
        sm = lambda st, qt, half, n: (f"v_smfmac_f32_32x32x32_bf16 {vr(O + 16 * qt, 16)}, {vr(KV + 12 * st + 4 + 4 * half, 4)}, "
                                      f"{vr(S + 16 * (n & 1) + 8 * half, 8)}, v{self.vIDX}")
        extra = {
            (2, 0): f"s_lshl_b32 s{sOff}, s{sRow}, 13\ns_add_u32 s{sOff}, s{sOff}, s{sHB}",
            (2, 2): f"s_cmp_eq_u32 s{sCnt}, 1\ns_cselect_b32 s{sOff}, {OOB}, s{sOff}",
            (3, 1): "s_waitcnt lgkmcnt(0)",
            (3, 2): f"s_cmp_lt_u32 s{sPV}, 8\ns_cbranch_scc1 L_kv_wait\nL_kv_ok:",
            (6, 0): f"s_add_u32 s{sRow}, s{sRow}, 2\ns_and_b32 s{sRow}, s{sRow}, 15",
            (6, 2): f"s_lshl_b32 s{sFl}, s{sRow}, 7\ns_add_u32 s{sFl}, s{sFl}, s{sFB}",
            (10, 0): f"s_mov_b32 s{sPV}, 0\ns_atomic_add s{sPV}, {sr(sWS, 2)}, s{sFl} glc",
            (NT - 3, 0): f"s_sub_u32 s{sCnt}, s{sCnt}, 1\ns_cmp_eq_u32 s{sCnt}, 0",
        }

        def ex(n, k):
            for l in extra.get((n, k), "").split("\n"):
                if l.endswith(":"):
                    a.label(l[:-1])
                else:
                    a(l)

        a(f"v_exp_f32 v{S}, v{S}\nv_exp_f32 v{S + 1}, v{S + 1}")
        a.raw(".p2align 6")
        a.label("L_attn")
        for n in range(NT + 1):
            st, qt = divmod(n, 4)
            cur = S + 16 * (n & 1)
            E = lambda lo, hi: [a(f"v_exp_f32 v{cur + k}, v{cur + k}") for k in range(lo, hi)]
            pst, pqt = divmod((n - 1) % NT, 4)
            nst, nqt = divmod((n + 1) % NT, 4)
            ld = KV + 12 * ((st - 1) % NST)
            if n:
                E(0, 2)
                a(sm(pst, pqt, 1, n - 1))
            if n == NT:
                break
            if n == NT - 2:
                a("s_cbranch_scc1 L_attn_tail")
            ex(n, 0)
            if qt == 3:
                a(f"s_waitcnt vmcnt({3 * (NST - 2)})")
            E(2, 5)
            a(f"v_mfma_f32_32x32x16_bf16 {vr(S + 16 * ((n + 1) & 1), 16)}, {vr(KV + 12 * nst, 4)}, {vr(Q + 4 * nqt, 4)}, 0")
            ex(n, 1)
            if qt == 0:
                a(f"buffer_load_dwordx4 {vr(ld, 4)}, v{self.vKo}, {sr(sWS, 4)}, s{sOff} offen sc1")
            if qt == 2 and st:
                a(f"s_add_u32 s{sOff}, s{sOff}, 2048")
            E(5, 10)
            a(sm(st, qt, 0, n))
            ex(n, 2)
            if qt == 1:
                a(f"""s_mov_b64 exec, {sr(sVM, 2)}
                    buffer_load_dwordx4 {vr(ld + 4, 4)}, v{self.vVo}, {sr(sWS, 4)}, s{sOff} offen offset:1024 sc1
                    buffer_load_dwordx4 {vr(ld + 8, 4)}, v{self.vVo}, {sr(sWS, 4)}, s{sOff} offen offset:1536 sc1
                    s_mov_b64 exec, -1""")
            E(10, 16)
        a("s_branch L_attn")
        self.sm = sm

    def attn_finish(self):
        a = self.a
        O, S, Q, KV, T, sm = self.O_, self.S_, self.Q_, self.KV_, 192, self.sm
        sA, sF, m = sT0, sT0 + 1, sT0 + 2
        E = lambda n, lo, hi: [a(f"v_exp_f32 v{S + 16 * (n & 1) + k}, v{S + 16 * (n & 1) + k}") for k in range(lo, hi)]

        def give(q):
            o = O + 16 * q
            a(f"""ds_write_b128 v{self.vPa}, {vr(o, 4)} offset:{2304 * q}
                ds_write_b128 v{self.vPa}, {vr(o + 4, 4)} offset:{2304 * q + 1024}
                ds_write_b32 v{self.vPs}, v{o + 8} offset:{2304 * q + 2048}""")

        a.label("L_attn_tail")
        a.lg.reset()
        a("s_waitcnt lgkmcnt(0)")
        give(0)
        E(14, 2, 5)
        a(f"v_mfma_f32_32x32x16_bf16 {vr(S + 16, 16)}, {vr(KV + 36, 4)}, {vr(Q + 12, 4)}, 0")
        a(f"s_lshl_b32 s{sF}, s{sR}, 1")
        E(14, 5, 10)
        a(sm(3, 2, 0, 14))
        give(1)
        if self.cfg["rel"] == 0:
            a(f"ds_write_b32 v{self.vFl}, v{self.vOne}")
        self.lds_signal(self.vCa, self.vOne, 0)
        E(14, 10, 16)
        E(15, 0, 2)
        a(sm(3, 2, 1, 14))
        self.lds_probe(self.vCa, 4, 0)
        a(f"""s_add_u32 s{sF}, s{sF}, s{self.sQ}
            s_lshl_b32 s{sA}, s{sF}, 5
            s_add_u32 s{sA}, s{sA}, s{sC}
            s_lshl_b32 s{sA}, s{sA}, 1
            s_add_u32 s{sA}, s{sA}, s{self.sHd}
            s_mul_i32 s{m}, s{self.sQ}, -18432
            s_add_u32 s{m}, s{m}, 9216""")
        E(15, 2, 10)
        a(sm(3, 3, 0, 15))
        a(f"""s_lshl_b32 s{sA}, s{sA}, 10
            s_add_u32 s{sA}, s{sA}, {WS_O}
            v_add_u32 v{self.vPa}, s{m}, v{self.vPa}
            v_add_u32 v{self.vPs}, s{m}, v{self.vPs}""")
        E(15, 10, 16)
        a(f"""s_lshl_b32 s{sF}, s{sF}, 2
            s_lshr_b32 s{m}, s{sC}, 2""")
        a(sm(3, 3, 1, 15))
        a(f"""s_add_u32 s{sF}, s{sF}, s{m}
            s_lshl_b32 s{sF}, s{sF}, 7
            s_add_u32 s{sF}, s{sF}, {CO}""")
        if self.cfg["rel"] == 1:
            a(f"ds_write_b32 v{self.vFl}, v{self.vOne}")
            a.lg.issue("rel")
        self.stamp("attn1", "L")
        self.lds_check(self.vCa, 4, 0, 2)
        self.stamp("pair", "L")
        for q in range(2):
            a(f"""ds_read_b32 v{T + 12 * q + 8}, v{self.vPs} offset:{2304 * q + 2048}
                ds_read_b128 {vr(T + 12 * q, 4)}, v{self.vPa} offset:{2304 * q}
                ds_read_b128 {vr(T + 12 * q + 4, 4)}, v{self.vPa} offset:{2304 * q + 1024}""")
        for q in range(2):
            o, t = O + 32 + 16 * q, T + 12 * q
            a(f"s_waitcnt lgkmcnt({3 - 3 * q})\nv_add_f32 v{o + 8}, v{o + 8}, v{t + 8}")
            for k in range(8):
                a(f"v_add_f32 v{o + k}, v{o + k}, v{t + k}")
            if q == 0:
                self.normalise(0)
        self.normalise(1)
        if self.cfg["rel"] == 2:
            a(f"ds_write_b32 v{self.vFl}, v{self.vOne}")
        self.stamp("Ost", "L")
        lo, hi = self.cfg.get("l_lo", 2.0 ** -24), self.cfg.get("l_hi", 2.0 ** 64)
        for q in range(2):
            o, t = O + 32 + 16 * q, T + 12 * q
            a(f"""v_pk_add_f32 {vr(t, 2)}, {vr(o, 2)}, {vr(o + 2, 2)}
                v_pk_add_f32 {vr(t + 2, 2)}, {vr(o + 4, 2)}, {vr(o + 6, 2)}
                v_cmp_lt_f32 vcc, {f32(lo)}, v{o + 8}
                v_pk_add_f32 {vr(t, 2)}, {vr(t, 2)}, {vr(t + 2, 2)}
                s_and_b64 {sr(m, 2)}, {'vcc' if q == 0 else sr(m, 2)}, vcc
                v_cmp_gt_f32 vcc, {f32(hi)}, v{o + 8}
                v_add_f32 v{t}, v{t}, v{t + 1}
                s_and_b64 {sr(m, 2)}, {sr(m, 2)}, vcc
                v_sub_f32 v{t}, v{t}, v{t}
                v_cmp_eq_f32 vcc, 0, v{t}
                s_and_b64 {sr(m, 2)}, {sr(m, 2)}, vcc""")
        a(f"s_cmp_eq_u64 {sr(m, 2)}, -1\ns_cbranch_scc0 L_fallback")
        a.label("L_publish")
        a("s_waitcnt vmcnt(0)")
        self.signal(sF)

    def normalise(self, q):
        a = self.a
        o, d = self.O_ + 32 + 16 * q, 224 + 4 * q
        a(f"v_rcp_f32 v{o + 9}, v{o + 8}\ns_add_u32 s{sT0 + 4}, s{sT0}, {32768 * q}")
        for k in range(8):
            a(f"v_mul_f32 v{o + k}, v{o + k}, v{o + 9}")
        for k in range(4):
            a(f"v_cvt_pk_bf16_f32 v{d + k}, v{o + 2 * k}, v{o + 2 * k + 1}")
        a(f"buffer_store_dwordx4 {vr(d, 4)}, v{self.vKo}, {sr(sWS, 4)}, s{sT0 + 4} offen sc1")

    def fallback(self):
        a = self.a
        S, M, K, V, vMx = self.S_, self.S_ + 16, self.KV_, self.KV_ + 4, 4
        sO, sN = sT0 + 2, sT0 + 3
        a.label("L_kv_wait")
        self.spoll(self.sFl, 8, "L_kv_ok")
        a.label("L_fallback")
        a("s_waitcnt vmcnt(0)")
        for q in range(2):
            O, Q = self.O_ + 32 + 16 * q, self.Q_ + 8 + 4 * q
            a(f"""v_mov_b32 v{vMx}, 0xff800000
                s_lshl_b32 s{sO}, s{sC}, 1
                s_add_u32 s{sO}, s{sO}, s{self.sHd}
                s_lshl_b32 s{sO}, s{sO}, 17
                s_mov_b32 s{sN}, 64""")
            a.label(f"L_fb_max{q}")
            a(f"""buffer_load_dwordx4 {vr(K, 4)}, v{self.vKo}, {sr(sWS, 4)}, s{sO} offen sc1
                s_waitcnt vmcnt(0)
                v_mfma_f32_32x32x16_bf16 {vr(S, 16)}, {vr(K, 4)}, {vr(Q, 4)}, 0
                s_nop 11""")
            for k in range(8):
                a(f"v_max3_f32 v{vMx}, v{S + 2 * k}, v{S + 2 * k + 1}, v{vMx}")
            a(f"""s_add_u32 s{sO}, s{sO}, 2048
                s_sub_u32 s{sN}, s{sN}, 1
                s_cmp_lg_u32 s{sN}, 0
                s_cbranch_scc1 L_fb_max{q}
                v_mov_b32 v{M}, v{vMx}
                s_nop 1
                v_permlane32_swap_b32 v{vMx}, v{M}
                s_nop 1
                v_max_f32 v{vMx}, v{vMx}, v{M}
                s_sub_u32 s{sO}, s{sO}, 131072
                s_mov_b32 s{sN}, 64""")
            for k in range(16):
                a(f"v_sub_f32 v{M + k}, 0, v{vMx}\nv_mov_b32 v{O + k}, 0")
            a.label(f"L_fb_sum{q}")
            a(f"""buffer_load_dwordx4 {vr(K, 4)}, v{self.vKo}, {sr(sWS, 4)}, s{sO} offen sc1
                s_mov_b64 exec, {sr(sVM, 2)}
                buffer_load_dwordx4 {vr(V, 4)}, v{self.vVo}, {sr(sWS, 4)}, s{sO} offen offset:1024 sc1
                buffer_load_dwordx4 {vr(V + 4, 4)}, v{self.vVo}, {sr(sWS, 4)}, s{sO} offen offset:1536 sc1
                s_mov_b64 exec, -1
                s_waitcnt vmcnt(0)
                v_mfma_f32_32x32x16_bf16 {vr(S, 16)}, {vr(K, 4)}, {vr(Q, 4)}, {vr(M, 16)}
                s_nop 11""")
            for k in range(16):
                a(f"v_exp_f32 v{S + k}, v{S + k}")
            a(f"""s_nop 1
                v_smfmac_f32_32x32x32_bf16 {vr(O, 16)}, {vr(V, 4)}, {vr(S, 8)}, v{self.vIDX}
                v_smfmac_f32_32x32x32_bf16 {vr(O, 16)}, {vr(V + 4, 4)}, {vr(S + 8, 8)}, v{self.vIDX}
                s_nop 7
                s_add_u32 s{sO}, s{sO}, 2048
                s_sub_u32 s{sN}, s{sN}, 1
                s_cmp_lg_u32 s{sN}, 0
                s_cbranch_scc1 L_fb_sum{q}
                s_nop 3""")
            self.normalise(q)
        a("s_branch L_publish")

    XR, ACC, WS_ = 128, 32, 8
    vFlo, vFhi, vF, vCnt, v1_, vTmp = 0, 1, 2, 5, 6, 7

    def m_setup(self):
        a = self.a
        self.vXA, self.vXAh, self.vWk, self.vWkh, self.vQa, self.vST, self.vGo, self.vQFa, self.vGa = 80, 84, 88, 90, 92, 93, 94, 95, 96
        self.kload(sDBG, sWG, sWU, sWD, sWO, sOUT, sGW)
        self.srd(sDBG, sWG, sWU, sWD, sWO, sOUT, sGW)
        skip = self.lab("noreset")
        a(f"""s_lshr_b32 s{sT0 + 3}, s2, 5
            s_or_b32 s{sT0 + 3}, s{sT0 + 3}, s{sW}
            s_cmp_lg_u32 s{sT0 + 3}, 0
            s_cbranch_scc1 {skip}
            s_mul_i32 s{sT0 + 3}, s2, 1536
            s_add_u32 s{sT0 + 3}, s{sT0 + 3}, {WS_FLAG}
            s_mov_b32 s{sPV}, 0
            s_waitcnt lgkmcnt(0)""")
        for k in range(12):
            a(f"s_atomic_and s{sPV}, {sr(sWS, 2)}, s{sT0 + 3}\ns_add_u32 s{sT0 + 3}, s{sT0 + 3}, 128")
        a.label(skip)
        a(f"""s_lshl_b32 s{sRB}, s{sT0}, 2
            s_and_b32 s{sT0 + 2}, s{sT0 + 1}, 3
            s_add_u32 s{sRB}, s{sRB}, s{sT0 + 2}
            s_lshr_b32 s{sCB}, s{sT0 + 1}, 2
            v_and_b32 v16, 31, v0
            v_lshrrev_b32 v17, 5, v0
            v_bfe_u32 v18, v0, 1, 3
            v_xor_b32 v18, v18, v17
            s_lshl_b32 s{sT0}, s{sT}, 12
            v_lshlrev_b32 v19, 7, v16
            v_lshl_add_u32 v19, v18, 4, v19
            v_add_u32 v{self.vXA}, s{sT0}, v19""")
        for s in range(1, 4):
            a(f"v_xor_b32 v{self.vXA + s}, {32 * s}, v{self.vXA}")
        for s in range(4):
            a(f"v_add_u32 v{self.vXAh + s}, 0x10000, v{self.vXA + s}")
        a(f"""v_bfe_u32 v18, v0, 2, 2
            v_lshl_add_u32 v18, v17, 3, v18
            v_bfe_u32 v19, v0, 4, 1
            v_and_b32 v20, 3, v0
            v_lshlrev_b32 v20, 3, v20
            v_lshl_add_u32 v20, v19, 5, v20
            v_bfe_u32 v21, v0, 3, 1
            v_lshl_add_u32 v22, v18, 7, v20
            v_lshl_add_u32 v{self.vWk}, v21, 6, v22
            v_xor_b32 v{self.vWk + 1}, 64, v{self.vWk}
            v_add_u32 v{self.vWkh}, 0x10000, v{self.vWk}
            v_add_u32 v{self.vWkh + 1}, 0x10000, v{self.vWk + 1}
            v_lshl_add_u32 v{self.vQa}, v18, 6, v20
            v_add_u32 v{self.vQa}, {QW}, v{self.vQa}
            s_lshl_b32 s{sT0}, s{sT}, 10
            s_add_u32 s{sT0}, s{sT0}, {QF}
            v_lshl_add_u32 v{self.vQFa}, v0, 4, s{sT0}
            v_mul_u32_u24 v22, 192, v18
            v_and_b32 v23, 0x33, v0
            v_bfe_u32 v25, v0, 2, 1
            v_lshl_add_u32 v23, v25, 3, v23
            v_lshl_add_u32 v23, v21, 2, v23
            v_lshlrev_b32 v23, 4, v23
            v_and_b32 v24, 15, v0
            v_lshlrev_b32 v{self.vGa}, 7, v17
            v_lshlrev_b32 v24, 4, v24
            v_lshl_add_u32 v24, v17, 8, v24
            v_lshl_add_u32 v24, v19, 17, v24
            v_add_u32 v24, 1024, v24
            v_lshlrev_b32 v26, 4, v0
            s_lshl_b32 s{sT0}, s{sT}, 4""")
        for k in range(3):
            a(f"""v_add_u32 v27, {64 * k}, v0
                v_mul_u32_u24 v28, 2731, v27
                v_lshrrev_b32 v28, 15, v28
                v_mul_u32_u24 v29, 12, v28
                v_sub_u32 v29, v27, v29
                v_add_u32 v28, s{sT0}, v28
                v_mul_u32_u24 v28, 2752, v28
                v_lshl_add_u32 v{self.vF + k}, v29, 4, v28""")
        a(f"""v_add_u32 v{self.vFlo}, v22, v20
            v_add_u32 v{self.vFhi}, 0x10000, v{self.vFlo}
            v_mov_b32 v{self.vCnt}, {CNT}
            v_lshl_add_u32 v{self.v1_}, v26, 3, 4""")
        for i in range(4):
            a(f"v_mov_b32 v{100 + i}, 0")
        a(f"ds_write_b128 v{self.vCnt}, v[100:103]\nds_write_b128 v{self.vCnt}, v[100:103] offset:16\nds_write_b128 v{self.vCnt}, v[100:103] offset:32\ns_waitcnt lgkmcnt(0)")
        skip = self.lab("nogo")
        a(f"""s_lshr_b32 s{sT0}, s2, 5
            s_or_b32 s{sT0}, s{sT0}, s{sW}
            s_cmp_lg_u32 s{sT0}, 0
            s_cbranch_scc1 {skip}
            s_and_b32 s{sT0}, s2, 1
            s_lshl_b32 s{sT0}, s{sT0}, 7
            s_atomic_add s{sONE}, {sr(sDBG, 2)}, s{sT0}
            s_waitcnt lgkmcnt(0)""")
        a.label(skip)
        if self.cfg["tf"]:
            assert self.cfg["rbits"] == 3 and self.cfg["rot"] in (3, 4)
            n = self.cfg["tf"]
            up, done = self.lab("tfu"), self.lab("tfd")
            a(f"""v_lshrrev_b32 v27, 8, v26
                v_add_u32 v27, s{sDEL}, v27
                v_and_b32 v27, 3, v27
                v_bfe_u32 v28, v26, 7, 1
                v_lshl_add_u32 v27, v27, 6, v28
                v_mul_u32_u24 v27, 2752, v27
                v_bfe_u32 v28, v26, 4, 3
                v_lshlrev_b32 v28, 7, v28
                v_min_u32 v28, 764, v28
                v_add_u32 v27, v27, v28
                s_lshr_b32 s{sT0}, s{sT}, 1
                s_lshl_b32 s{sT0}, s{sT0}, 7
                s_lshr_b32 s{sT0 + 1}, s2, 3
                s_add_u32 s{sT0}, s{sT0}, s{sT0 + 1}
                s_mul_i32 s{sT0}, s{sT0}, 5504
                s_lshr_b32 s{sT0 + 1}, s{sC}, 2
                s_mul_i32 s{sT0 + 1}, s{sT0 + 1}, 768
                s_add_u32 s{sT0}, s{sT0}, s{sT0 + 1}
                s_mov_b32 m0, {CNT + 64}
                s_mov_b32 exec_lo, {hex(0x7f7f7f7f & ((1 << min(32, 16 * n)) - 1))}
                s_mov_b32 exec_hi, {hex(0x7f7f7f7f & ((1 << max(0, 16 * n - 32)) - 1))}
                s_bitcmp1_b32 s{sT}, 0
                s_cbranch_scc1 {up}
                buffer_load_dword v27, {sr(sWG, 4)}, s{sT0} offen lds
                s_branch {done}""")
            a.label(up)
            a(f"buffer_load_dword v27, {sr(sWU, 4)}, s{sT0} offen lds")
            a.label(done)
            a("s_mov_b64 exec, -1")

    def pass_a(self, isv):
        a = self.a
        a.lg.reset()
        a.vm.reset()
        a(f"v_mov_b32 v{self.vST}, v{24 if isv else 23}")
        XR, ACC, W = self.XR, self.ACC, self.WS_
        sB = sT0 + 2

        def reads(g):
            i, s = divmod(g, 4)
            B = slot(i)
            self.dsr("ds_read_b128", XR + 4 * g, 4, self.vXA + s, self.vXAh + s, B, ("x", g))
            for ct in range(2):
                for u in range(2):
                    self.dsr("ds_read_b64_tr_b16", W + 8 * (g % 3) + 4 * ct + 2 * u, 2, self.vWk + ct, self.vWkh + ct,
                             B + 16384 + (16 * s + 4 * u) * 128, ("w", g, ct))

        def comp(g):
            for ct in range(2):
                a.lg.wait(("x", g), ("w", g, ct))
                wf, xf = vr(W + 8 * (g % 3) + 4 * ct, 4), vr(XR + 4 * g, 4)
                d = vr(ACC + 16 * ct, 16)
                A, Bm = (xf, wf) if isv else (wf, xf)
                a(f"v_mfma_f32_32x32x16_bf16 {d}, {A}, {Bm}, {d if g else 0}")

        for i in range(8):
            g0 = 4 * i
            if i:
                a.lg.drain()
            a("s_barrier")
            if i == 0:
                self.stamp("BA0", "M")
            reads(g0)
            reads(g0 + 1)
            if i:
                comp(g0 - 1)
            reads(g0 + 2)
            if i == 2:
                a(f"""s_lshr_b32 s{sB}, s{sC}, 1
                    s_lshl_b32 s{sB}, s{sB}, 19
                    s_lshl_b32 s{sB + 1}, s{sR}, 2
                    s_add_u32 s{sB + 1}, s{sB + 1}, s{sT}
                    s_lshl_b32 s{sB + 1}, s{sB + 1}, 11
                    s_add_u32 s{sB}, s{sB}, s{sB + 1}""")
            if i == 5:
                a(f"buffer_load_dword v{self.vGo}, v{self.vGa}, {sr(sDBG, 4)}, 0 offen sc1")
            comp(g0)
            reads(g0 + 3)
            comp(g0 + 1)
            comp(g0 + 2)
        comp(31)
        a("s_nop 10")
        for ct in range(2):
            for q in range(2):
                d = 112 + 8 * ct + 4 * q
                for k in range(4):
                    s = ACC + 16 * ct + 8 * q + 2 * k
                    a(f"v_cvt_pk_bf16_f32 v{d + k}, v{s}, v{s + 1}")
                if isv:
                    a(f"buffer_store_dwordx4 {vr(d, 4)}, v{self.vST}, {sr(sWS, 4)}, s{sB} offen offset:{512 * q} sc1")
                    if q == 1 and ct == 0:
                        a(f"s_add_u32 s{sB}, s{sB}, 262144")
                else:
                    a(f"buffer_store_dwordx4 {vr(d, 4)}, v{self.vST}, {sr(sWS, 4)}, s{sB} offen sc1")
                    a(f"s_add_u32 s{sB}, s{sB}, 131072")
        self.stamp("KVst", "M")

    def kv_flag(self):
        a = self.a
        ok = self.lab("go")
        a(f"""s_lshr_b32 s{sT0}, s{sC}, 1
            s_lshl_b32 s{sT0}, s{sT0}, 4
            s_add_u32 s{sT0}, s{sT0}, s{sR}
            s_lshl_b32 s{sT0}, s{sT0}, 7
            s_add_u32 s{sT0}, s{sT0}, {CKV}
            s_waitcnt vmcnt({4 + len(a.vm.q)})
            v_cmp_gt_u32 vcc, 16, v{self.vGo}
            s_cbranch_vccz {ok}""")
        q = list(a.vm.q)
        self.poll(self.vGa, "0", self.vGo, sDBG)
        a.vm.q = q
        a.label(ok)

    def issue_f(self, i):
        a = self.a
        sCh, sO, sFB, sLf = sT0 + 4, sT0 + 5, sT0 + 6, sT0 + 7
        if i == 0:
            a(f"s_mul_i32 s{sFB}, s{sC}, 192\ns_mul_i32 s{sLf}, s{sT}, 3072")
        self.chunk(sCh, i)
        a(f"s_mul_i32 s{sO}, s{sCh}, 176128\ns_add_u32 s{sO}, s{sO}, s{sFB}")
        for m in range(2):
            for k in range(3):
                a(f"s_add_u32 m0, s{sLf}, {slot(i) + 12288 * m + 1024 * k}\ns_nop 0")
                a(f"buffer_load_dwordx4 v{self.vF + k}, {sr(sWG if m == 0 else sWU, 4)}, s{sO} offen {self.cfg['fpol']} lds")
                a.vm.issue(("F", i))

    def touch(self, i, vA):
        a = self.a
        sA = sT0 + 8
        a(f"""s_lshr_b32 s{sA}, s2, 3
            s_lshl_b32 s{sA}, s{sA}, 2
            s_add_u32 s{sA}, s{sA}, s{sT}
            s_mul_i32 s{sA}, s{sA}, {11008 if i < 6 else 4096}
            s_add_u32 s{sA}, s{sA}, {2048 * (i if i < 6 else i - 6)}
            s_mov_b32 m0, {CNT + 64}
            s_mov_b64 exec, {'0x3f' if i == 5 else '0xffff'}
            buffer_load_dword v{vA}, {sr(sWD if i < 6 else sWO, 4)}, s{sA} offen lds
            s_mov_b64 exec, -1""")
        a.vm.issue("touch")

    def pass_q(self):
        a = self.a
        XR, W, QACC = self.XR, self.WS_, 64
        a.lg.reset()
        a.vm.reset()
        flag_at, f0_at = self.cfg["kvflag_at"], self.cfg["f0_at"]

        def reads(g):
            for u in range(2):
                self.dsr("ds_read_b64_tr_b16", W + 4 * (g % 6) + 2 * u, 2, self.vQa, None, (16 * g + 4 * u) * 64, g)

        def hooks(j):
            if j == flag_at:
                if a.vm.q:
                    a(f"s_cmp_eq_u32 s{sC}, 15\ns_cbranch_scc0 L_kvw\ns_waitcnt vmcnt(0)")
                    a.label("L_kvw")
                a(f"s_waitcnt vmcnt({len(a.vm.q)})")
                self.stamp("KVack", "M")
                self.signal(sT0)
                self.stamp("KVflag", "M")
            if j == f0_at:
                skip = self.lab("nof0")
                a(f"s_cmp_eq_u32 s{sC}, 15\ns_cbranch_scc1 {skip}")
                self.issue_f(0)
                a.label(skip)
            if self.cfg["f1_early"] and j == self.cfg["f1_early"]:
                skip = self.lab("nof1")
                a(f"s_cmp_eq_u32 s{sC}, 15\ns_cbranch_scc1 {skip}")
                self.issue_f(1)
                a.label(skip)

        if self.cfg["qs"] % 10:
            a("s_barrier")
        self.kv_flag()
        hooks(-2)
        hooks(-1)
        self.stamp("F0iss", "M")
        a("s_barrier")
        self.stamp("BQ", "M")
        for g in range(6):
            reads(g)
        nxt = 6
        for g in range(32):
            a.lg.wait(g)
            d = vr(QACC, 16)
            a(f"v_mfma_f32_32x32x16_bf16 {d}, {vr(W + 4 * (g % 6), 4)}, {vr(XR + 4 * g, 4)}, {d if g else 0}")
            if nxt < 32:
                reads(nxt)
                nxt += 1
            hooks(g)
        a(f"v_mov_b32 v98, {f32(0.25 * LOG2E)}\ns_nop 10")
        for k in range(8):
            a(f"v_pk_mul_f32 {vr(QACC + 2 * k, 2)}, {vr(QACC + 2 * k, 2)}, v[98:99] op_sel_hi:[1,0]")
        for hd in range(2):
            for k in range(4 * hd, 4 * hd + 4):
                a(f"v_cvt_pk_bf16_f32 v{QACC + k}, v{QACC + 2 * k}, v{QACC + 2 * k + 1}")
            a(f"ds_write_b128 v{self.vQFa}, {vr(QACC + 4 * hd, 4)} offset:{4096 * hd}")
        self.lds_signal(self.vCnt, self.v1_, 16)
        self.stamp("Qdone", "M")
        hooks(32)

    def pass_f(self):
        a = self.a
        XR, ACC, W = self.XR, self.ACC, self.WS_
        N = 192

        def reads(j):
            g, t = divmod(j, 6)
            i, s = divmod(g, 4)
            for u in range(2):
                self.dsr("ds_read_b64_tr_b16", W + 4 * (j % 6) + 2 * u, 2, self.vFlo, self.vFhi,
                         slot(i) + 12288 * (t & 1) + (16 * s + 4 * u) * 192 + 64 * (t >> 1), j)

        gf, gat = self.cfg["gate_f"], self.cfg.get("gate_at", 8)

        def landed(i):
            a.vm.wait(("F", i))
            self.lds_signal(self.vCnt, self.v1_, 0)
            if i + 1 != gf:
                more(i)

        def more(i):
            if i + 1 < 8 and not (i == 0 and self.cfg["f1_early"]):
                self.issue_f(i + 1)
            if self.cfg["touch"] and i + 1 >= gf:
                for k in (range(i + 1) if i + 1 == gf else [i]):
                    self.touch(k, self.v1_)

        landed(0)
        self.lds_probe(self.vCnt, self.vTmp, 0)
        self.lds_check(self.vCnt, self.vTmp, 0, 16)
        self.stamp("F0", "M")
        for j in range(6):
            reads(j)
        sig = self.cfg["sig_at"]
        for j in range(N):
            g, t = divmod(j, 6)
            i, jj = divmod(j, 24)
            a.lg.wait(j)
            d = vr(ACC + 16 * t, 16)
            a(f"v_mfma_f32_32x32x16_bf16 {d}, {vr(W + 4 * (j % 6), 4)}, {vr(XR + 4 * g, 4)}, {d if g else 0}")
            if jj == 23:
                self.stamp(f"f{i}", "M")
            if gf and j == gat - 2:
                self.lds_probe(self.vCnt, self.vTmp, 20)
            if gf and j == gat:
                self.lds_check(self.vCnt, self.vTmp, 20, 4)
                more(gf - 1)
            if i < 7:
                if jj == (sig if i or gf != 1 else 14):
                    landed(i + 1)
                if jj == 15:
                    self.lds_probe(self.vCnt, self.vTmp, 0)
                if jj == 18:
                    self.lds_check(self.vCnt, self.vTmp, 0, 16 * (i + 2))
            if j + 6 < N:
                reads(j + 6)
        self.lds_signal(self.vCnt, self.v1_, 0)
        self.stamp("Fdone", "M")

    def gelu(self):
        a = self.a
        ACC = self.ACC
        c0, c1, T, OUT, vOff = 130, 132, 136, 168, 134
        sT0 = globals()["sT0"] + 12
        nw = [0]

        def stage(j):
            if j and nw[0] < self.cfg["wpre"]:
                self.issue_w(nw[0])
                nw[0] += 1
                self.cap()

        k0 = -2.0 * 0.7978845608028654 * LOG2E
        self.lane(vOff)
        a(f"""v_mov_b32 v{c0}, {f32(k0)}
            v_mov_b32 v{c0 + 1}, {f32(k0)}
            v_mov_b32 v{c1}, {f32(k0 * 0.044715)}
            v_mov_b32 v{c1 + 1}, {f32(k0 * 0.044715)}
            v_lshlrev_b32 v{vOff}, 4, v{vOff}
            s_lshl_b32 s{sT0}, s{sR}, 2
            s_add_u32 s{sT0}, s{sT0}, s{sT}
            s_mul_i32 s{sT0}, s{sT0}, 86
            s_mul_i32 s{sT0 + 1}, s{sC}, 6
            s_add_u32 s{sT0}, s{sT0}, s{sT0 + 1}
            s_lshl_b32 s{sT0}, s{sT0}, 10
            s_add_u32 s{sT0}, s{sT0}, {WS_H}""")
        for j in range(3):
            G, U = ACC + 32 * j, ACC + 32 * j + 16
            p = lambda b, k: vr(b + 2 * k, 2)
            for k in range(8):
                a(f"v_pk_mul_f32 {p(T, k)}, {p(G, k)}, {p(G, k)}")
            stage(j)
            for k in range(8):
                a(f"v_pk_fma_f32 {p(T, k)}, {p(T, k)}, {vr(c1, 2)}, {vr(c0, 2)}")
            stage(j)
            for k in range(8):
                a(f"v_pk_mul_f32 {p(T, k)}, {p(T, k)}, {p(G, k)}")
            stage(j)
            for k in range(16):
                a(f"v_exp_f32 v{T + k}, v{T + k}")
            stage(j)
            for k in range(8):
                a(f"v_pk_mul_f32 {p(G, k)}, {p(G, k)}, {p(U, k)}")
            stage(j)
            for k in range(8):
                a(f"v_pk_add_f32 {p(T, k)}, {p(T, k)}, 1.0 op_sel_hi:[1,0]")
            stage(j)
            for k in range(16):
                a(f"v_rcp_f32 v{T + k}, v{T + k}")
            if j == 0:
                self.lds_probe(self.vCnt, self.vTmp, 0)
            a(f"""s_cmp_lt_u32 s{sT0 + 1}, {86 - 2 * j}
                s_cselect_b32 s{sT0 + 2}, s{sT0}, {OOB}""")
            for k in range(8):
                a(f"v_pk_mul_f32 {p(G, k)}, {p(G, k)}, {p(T, k)}")
            for q in range(2):
                d = OUT + 8 * j + 4 * q
                for k in range(4):
                    a(f"v_cvt_pk_bf16_f32 v{d + k}, v{G + 8 * q + 2 * k}, v{G + 8 * q + 2 * k + 1}")
                a(f"buffer_store_dwordx4 {vr(d, 4)}, v{vOff}, {sr(sWS, 4)}, s{sT0 + 2} offen offset:{1024 * q} sc1")
                a.vm.issue("H")
            a(f"s_add_u32 s{sT0}, s{sT0}, 2048")
            if j == 0:
                self.lds_check(self.vCnt, self.vTmp, 0, 144)
        assert nw[0] == self.cfg["wpre"]

    def gate(self):
        a = self.a
        XR, GB, Z, vO = self.XR, 32, 24, 28
        sCh = sT0 + 4
        a("s_waitcnt vmcnt(0)")
        a.vm.reset()
        self.lane(vO + 1)
        a(f"v_lshrrev_b32 v{vO}, 5, v{vO + 1}\nv_lshlrev_b32 v{vO}, 4, v{vO}")
        for k in range(4):
            a(f"v_mov_b32 v{Z + k}, 0")
        for half in range(2):
            for i in range(4 * half, 4 * half + 4):
                self.chunk(sCh, i)
                a(f"s_lshl_b32 s{sCh}, s{sCh}, 7")
                for s in range(4):
                    a(f"buffer_load_dwordx4 {vr(GB + 16 * (i & 3) + 4 * s, 4)}, v{vO}, {sr(sGW, 4)}, s{sCh} offen offset:{32 * s}")
            if self.cfg["touch"]:
                for i in range(4 * half, 4 * half + 4):
                    self.touch(i, self.v1_)
            a("s_waitcnt vmcnt(0)")
            for k in range(64):
                a(f"v_dot2c_f32_bf16 v{Z + (k & 3)}, v{XR + 64 * half + k}, v{GB + k}")
        a(f"""s_lshl_b32 s{sT0}, s{sR}, 2
            s_add_u32 s{sT0}, s{sT0}, s{sT}
            s_lshl_b32 s{sT0}, s{sT0}, 7
            s_add_u32 s{sT0}, s{sT0}, {WS_G}
            v_add_f32 v{Z}, v{Z}, v{Z + 1}
            v_add_f32 v{Z + 2}, v{Z + 2}, v{Z + 3}
            v_add_f32 v{Z}, v{Z}, v{Z + 2}
            v_mov_b32 v{Z + 1}, v{Z}
            v_lshlrev_b32 v{vO}, 2, v{vO + 1}
            s_nop 0
            v_permlane32_swap_b32 v{Z}, v{Z + 1}
            s_nop 1
            v_add_f32 v{Z}, v{Z}, v{Z + 1}
            s_mov_b32 s{sT0 + 12}, s{sT0}""")
        a.lg.reset()
        self.lds_probe(self.vCnt, self.vTmp, 16)
        self.lds_check(self.vCnt, self.vTmp, 16, 16)
        self.ffn2_setup()
        for k in range(self.cfg["wpre"]):
            self.issue_w(k)
            self.cap()
        a(f"""s_mov_b32 exec_hi, 0
            buffer_store_dword v{Z}, v{vO}, {sr(sWS, 4)}, s{sT0 + 12} offen sc1
            s_mov_b64 exec, -1""")

    def ffn2_setup(self):
        a = self.a
        ACC, HS, WB = 32, 128, 96
        vL, vD, vH, vA0, vA1, vOw, vOt, vDump, vP, vZ, vD2, vH2 = range(8, 20)
        self.vL, self.vDump, self.vZ, self.vA0, self.vA1, self.vP = vL, vDump, vZ, vA0, vA1, vP
        sRing, sS0, sS1, sWc, sW0, sWe, sHc, sH0, sHe, sHl, sFl, sRow = range(sT0, sT0 + 12)
        self.sRow = sRow
        NS, PD, NR, NH, CAP = 22, self.cfg["pd"], 16, 16, self.cfg["cap"]
        self.lane(vL)
        a(f"""s_lshl_b32 s{sRing}, s{sT}, 15
            v_lshrrev_b32 v20, 3, v{vL}
            v_and_b32 v21, 7, v{vL}
            v_bfe_u32 v22, v{vL}, 4, 1
            v_lshlrev_b32 v23, 2, v22
            v_xor_b32 v21, v21, v23
            v_lshlrev_b32 v21, 4, v21
            v_lshl_add_u32 v{vD}, v20, 10, v21
            v_add_u32 v{vD2}, 7168, v{vD}
            s_and_b32 s{sS0}, s{sRB}, 3
            s_lshl_b32 s{sS0}, s{sS0}, 1
            s_add_u32 s{sS0}, s{sS0}, s{sCB}
            s_and_b32 s{sS0}, s{sS0}, {7 if self.cfg['rot2'] else 0}
            s_mul_i32 s{sS0}, s{sS0}, 11
            s_lshr_b32 s{sS0}, s{sS0}, 2
            s_mul_i32 s{sS1}, s{sT}, {NS}
            s_lshl_b32 s{sW0}, s{sS1}, 14
            s_lshl_b32 s{sWc}, s{sCB}, 7
            s_add_u32 s{sW0}, s{sW0}, s{sWc}
            s_add_u32 s{sWe}, s{sW0}, {NS * 16384}
            s_lshl_b32 s{sWc}, s{sS0}, 14
            s_add_u32 s{sWc}, s{sWc}, s{sW0}
            s_mul_i32 s{sHl}, s{sRB}, 172
            s_add_u32 s{sH0}, s{sHl}, s{sS1}
            s_lshl_b32 s{sH0}, s{sH0}, 10
            s_add_u32 s{sH0}, s{sH0}, {WS_H}
            s_add_u32 s{sHe}, s{sH0}, {NS * 1024}
            s_lshl_b32 s{sHc}, s{sS0}, 10
            s_add_u32 s{sHc}, s{sHc}, s{sH0}
            s_lshl_b32 s{sHl}, s{sHl}, 10
            s_add_u32 s{sHl}, s{sHl}, {WS_H + 86 * 1024}
            s_lshl_b32 s{sFl}, s{sR}, 1
            s_lshr_b32 s{sS0}, s{sT}, 1
            s_add_u32 s{sFl}, s{sFl}, s{sS0}
            s_lshl_b32 s{sFl}, s{sFl}, 9
            s_add_u32 s{sFl}, s{sFl}, {CH}
            s_mov_b32 s{sRow}, 0x62223111
            s_cmp_ge_u32 s{sC}, 8
            s_cselect_b32 s{sRow}, 0xf8888444, s{sRow}
            s_and_b32 s{sS0}, s{sC}, 7
            s_lshl_b32 s{sS0}, s{sS0}, 2
            s_lshr_b32 s{sRow}, s{sRow}, s{sS0}""")

    def cap(self):
        a, CAP = self.a, self.cfg["cap"]
        if len(a.vm.q) > CAP:
            a.vm.q = a.vm.q[len(a.vm.q) - CAP:]
            a(f"s_waitcnt vmcnt({CAP})")

    def issue_w(self, s):
        a = self.a
        vD, vD2 = 9, 18
        sRing, sS0, sS1, sWc, sW0, sWe = range(sT0, sT0 + 6)
        a(f"s_add_u32 m0, s{sRing}, {(s if s < 16 else s - 8) * 2048}")
        if s:
            a(f"s_add_u32 s{sWc}, s{sWc}, 16384\ns_cmp_eq_u32 s{sWc}, s{sWe}\ns_cselect_b32 s{sWc}, s{sW0}, s{sWc}")
        else:
            a("s_nop 0")
        a(f"buffer_load_dwordx4 v{vD}, {sr(sWD, 4)}, s{sWc} offen lds")
        a(f"buffer_load_dwordx4 v{vD2}, {sr(sWD, 4)}, s{sWc} offen offset:1024 lds")
        a.vm.issue(("w", s))
        a.vm.issue(("w", s))

    def ffn2(self):
        a = self.a
        ACC, HS, WB = 32, 128, 96
        vL, vD, vH, vA0, vA1, vOw, vOt, vDump, vP, vZ, vD2, vH2 = range(8, 20)
        self.vL, self.vDump, self.vZ, self.vA0, self.vA1, self.vP = vL, vDump, vZ, vA0, vA1, vP
        sRing, sS0, sS1, sWc, sW0, sWe, sHc, sH0, sHe, sHl, sFl, sRow = range(sT0, sT0 + 12)
        self.sRow = sRow
        NS, PD, NR, NH, CAP = 22, self.cfg["pd"], 16, 16, self.cfg["cap"]
        cap, issue_w = self.cap, self.issue_w

        def setup2():
            a(f"""v_lshlrev_b32 v{vP}, 4, v{vL}
                s_and_b32 s{sS0}, s{sT}, 1
                s_mul_i32 s{sS0}, s{sS0}, 88064
                v_add_u32 v{vH}, s{sS0}, v{vP}
                s_sub_u32 s{sS0}, 88064, s{sS0}
                v_add_u32 v{vH2}, s{sS0}, v{vP}
                v_add_u32 v{vDump}, s{sRing}, v{vP}
                v_lshrrev_b32 v20, 5, v{vL}
                v_bfe_u32 v21, v{vL}, 2, 2
                v_lshl_add_u32 v20, v20, 2, v21
                v_and_b32 v21, 1, v{vL}
                v_lshlrev_b32 v21, 2, v21
                v_lshl_add_u32 v21, v22, 1, v21
                v_bfe_u32 v23, v{vL}, 1, 1
                v_add_u32 v21, v21, v23
                v_lshlrev_b32 v21, 3, v21
                v_lshl_add_u32 v21, v20, 7, v21
                v_bfe_u32 v23, v{vL}, 3, 1
                v_lshl_add_u32 v21, v23, 6, v21
                v_add_u32 v{vA0}, s{sRing}, v21
                s_lshr_b32 s{sS0}, s{sT}, 1
                s_lshl_b32 s{sS0}, s{sS0}, 6
                v_xor_b32 v{vA0}, s{sS0}, v{vA0}
                v_xor_b32 v{vA1}, 64, v{vA0}
                s_lshl_b32 s{sS0}, s{sT}, 2
                v_add_u32 v{vOw}, s{sS0}, v{self.vCnt}
                v_and_b32 v{vZ}, 31, v{vL}
                v_lshlrev_b32 v{vZ}, 2, v{vZ}
                s_setprio {self.cfg['prio_m']}""")

        a.lg.reset()
        a.vm.reset()
        a.vm.issue("H")

        wslot = lambda s: s if s < NR else s - 8

        def issue_wo(s):
            a(f"s_add_u32 m0, s{sRing}, {s * 2048}")
            if s == 0:
                a(f"""s_lshl_b32 s{sRow}, s{sT}, 17
                    s_lshl_b32 s{sS1}, s{sCB}, 7
                    s_add_u32 s{sRow}, s{sRow}, s{sS1}""")
            else:
                a(f"s_add_u32 s{sRow}, s{sRow}, 16384")
            a(f"buffer_load_dwordx4 v{vD}, {sr(sWO, 4)}, s{sRow} offen lds")
            a(f"buffer_load_dwordx4 v{vD2}, {sr(sWO, 4)}, s{sRow} offen offset:1024 lds")
            a.vm.issue("wo")
            a.vm.issue("wo")

        def issue_h(s):
            if s >= NS:
                return
            if s:
                a(f"""s_add_u32 s{sHc}, s{sHc}, 1024
                    s_cmp_eq_u32 s{sHc}, s{sHe}
                    s_cselect_b32 s{sHc}, s{sH0}, s{sHc}""")
            a(f"s_cmp_lt_u32 s{sHc}, s{sHl}\ns_cselect_b32 s{sS0}, s{sHc}, {OOB}")
            for tt in range(2):
                a(f"buffer_load_dwordx4 {vr(HS + 8 * (s % NH) + 4 * tt, 4)}, v{(vH, vH2)[tt]}, {sr(sWS, 4)}, s{sS0} offen sc1")
                a.vm.issue(("h", s))

        wreg = lambda s: (WB + 8 * (s % 3)) if s < 16 else (104, 112, 120, 96, 176, 184)[s - 16]

        def reads(s):
            a.vm.wait(("w", s))
            for ct in range(2):
                for u in range(2):
                    self.dsr("ds_read_b64_tr_b16", wreg(s) + 4 * ct + 2 * u, 2, (vA0, vA1)[ct], None,
                             wslot(s) * 2048 + 1024 * u, (s, ct))

        wpre = self.cfg["wpre"]
        setup2()
        for s in range(wpre, min(NR, wpre + 2)):
            issue_w(s)
        a.vm.wait("H")
        for k in range(4):
            skip = self.lab("nosig")
            a(f"s_bitcmp1_b32 s{sRow}, {k}\ns_cbranch_scc0 {skip}")
            self.signal(sFl)
            a.label(skip)
            a(f"s_add_u32 s{sFl}, s{sFl}, 128")
        self.stamp("Hflag", "M")
        for s in range(wpre + 2, NR):
            issue_w(s)
            cap()
        self.stamp("W0", "M")
        a(f"""s_lshl_b32 s{sFl}, s{sRB}, 2
            s_add_u32 s{sFl}, s{sFl}, s{sT}
            s_lshl_b32 s{sFl}, s{sFl}, 7
            s_add_u32 s{sFl}, s{sFl}, {CH}
            s_cmp_eq_u32 s{sT}, 1
            s_cselect_b32 s{sRow}, 12, 10""")
        self.spoll(sFl, f"s{sRow}")
        self.stamp("Hpoll", "M")
        for s in range(PD):
            issue_h(s)
        a(f"""s_lshl_b32 s{sFl}, s{sRB}, 1
            s_and_b32 s{sS0}, s{sT}, 1
            s_add_u32 s{sFl}, s{sFl}, s{sS0}
            s_lshl_b32 s{sFl}, s{sFl}, 7
            s_add_u32 s{sFl}, s{sFl}, {WS_G}
            buffer_load_dword v{vZ}, v{vZ}, {sr(sWS, 4)}, s{sFl} offen sc1""")
        a.vm.issue("z")
        reads(0)
        reads(1)
        nh = PD
        hold = NS - self.cfg["defer"]
        assert hold <= 16 or hold == NS

        def mm(s, ct, tt):
            a.vm.wait(("h", s))
            a.lg.wait((s, ct))
            d = vr(ACC + 32 * tt + 16 * ct, 16)
            a(f"v_mfma_f32_32x32x16_bf16 {d}, {vr(wreg(s) + 4 * ct, 4)}, {vr(HS + 8 * (s % NH) + 4 * tt, 4)}, {d if s else 0}")

        for s in range(17):
            if s == hold or s == 16:
                while nh < NS:
                    issue_h(nh)
                    nh += 1
                    cap()
            if s == hold:
                self.stamp("hold", "M")
                self.lds_probe(vOw, self.vTmp, 32)
                self.lds_check(vOw, self.vTmp, 32, 1, nap=2)
                self.stamp("resume", "M")
            if s == 16:
                break
            self.stamp(f"s{s}", "M")
            for k in range(4):
                mm(s, *divmod(k, 2))
                if k == 0 and nh < NS:
                    issue_h(nh)
                    nh += 1
                if k == 1:
                    reads(s + 2)
                if k == 2:
                    if s < 8:
                        issue_wo(s)
                    elif s < 14:
                        issue_w(s + 8)
                    elif nh < NS:
                        issue_h(nh)
                        nh += 1
                if k == 3 and s == 11:
                    a.vm.wait("wo")
                    self.lds_signal(self.vCnt, self.v1_, 24)
                if k == 3 and s == 15:
                    reads(18)
        self.stamp("s16", "M")
        self.final_setup()
        for n, (ct, tt) in enumerate(((0, 1), (1, 0), (1, 1), (0, 0))):
            for s in range(16, NS):
                mm(s, ct, tt)
                if n == 0 and s < 19:
                    reads(s + 3)
                if n == 0 and s == 18:
                    for _ in range(2):
                        self.lds_probe(self.vCnt, self.vTmp, 24)
                if n == 1 and s == 16:
                    a.lg.wait((21, 1))
                if n and s >= 18:
                    k = (8, 4, 12)[n - 1] + s - 18
                    if s == 18:
                        a("s_nop 8" if n < 3 else "s_nop 3")
                    a(f"ds_write_b128 v{vDump}, {vr(ACC + 4 * k, 4)} offset:{16384 + 1024 * k}")
                if n == 3 and s == 16:
                    self.early_o()
        self.lds_signal(self.vCnt, self.v1_, 4)
        self.stamp("s22", "M")

    def final_setup(self):
        a = self.a
        sFl, sOut, sO, sA, sTT, sKh, sF2, sG = range(sT0 + 1, sT0 + 9)
        a(f"""s_and_b32 s{sTT}, s{sT}, 1
            s_lshr_b32 s{sKh}, s{sT}, 1
            s_lshl_b32 s{sFl}, s{sRB}, 1
            s_add_u32 s{sFl}, s{sFl}, s{sKh}
            s_lshl_b32 s{sFl}, s{sFl}, 8
            s_add_u32 s{sFl}, s{sFl}, {CO}
            s_add_u32 s{sF2}, s{sFl}, 128
            s_mov_b32 s{sPV}, 0
            s_mov_b32 s{sA}, 0
            s_atomic_add s{sPV}, {sr(sWS, 2)}, s{sFl} glc
            s_atomic_add s{sA}, {sr(sWS, 2)}, s{sF2} glc
            s_lshl_b32 s{sOut}, s{sRB}, 1
            s_add_u32 s{sOut}, s{sOut}, s{sTT}
            s_lshl_b32 s{sO}, s{sOut}, 5
            s_lshl_b32 s{sG}, s{sKh}, 4
            s_add_u32 s{sO}, s{sO}, s{sG}
            s_lshl_b32 s{sO}, s{sO}, 10
            s_add_u32 s{sO}, s{sO}, {WS_O}
            s_lshl_b32 s{sOut}, s{sOut}, 15
            s_lshl_b32 s{sG}, s{sCB}, 7
            s_add_u32 s{sOut}, s{sOut}, s{sG}
            s_lshl_b32 s{sG}, s{sKh}, 6
            s_add_u32 s{sOut}, s{sOut}, s{sG}""")

    def oloads(self, h, sO):
        a = self.a
        for s in range(8 * h, 8 * h + 8):
            if s % 8 == 4:
                a(f"s_add_u32 s{sO}, s{sO}, 4096")
            a(f"buffer_load_dwordx4 {vr(192 + 4 * s, 4)}, v{self.vP}, {sr(sWS, 4)}, s{sO} offen offset:{1024 * (s % 4)} sc1")
            a.vm.issue(s)

    def early_o(self):
        a = self.a
        sFl, sOut, sO, sA, sTT, sKh, sF2, sG, sE, sX = range(sT0 + 1, sT0 + 11)
        skip = self.lab("noearly")
        a.vm.drain()
        a(f"""s_waitcnt lgkmcnt(0)
            s_min_u32 s{sE}, s{sPV}, s{sA}
            s_lshr_b32 s{sE}, s{sE}, 3
            s_cbranch_scc0 {skip}
            s_mov_b32 s{sX}, s{sO}""")
        self.oloads(0, sX)
        a(f"s_add_u32 s{sX}, s{sX}, 4096")
        self.oloads(1, sX)
        a.label(skip)
        a.vm.reset()

    def final(self):
        a = self.a
        B, PT, OWN, OTH, OF, WO = 32, 48, 96, 112, 192, 128
        vL, vH, vX, vZ, vA0, vA1 = self.vL, self.vP, self.vDump, self.vZ, self.vA0, self.vA1
        vOut, vG, vP1, vP2, vP3, vB0, vB1 = 1, 2, 9, 10, 13, 18, 19
        sFl, sOut, sO, sA, sTT, sKh, sF2, sG, sE, sX = range(sT0 + 1, sT0 + 11)
        top, got, loaded, join = self.lab("opoll"), self.lab("ogot"), self.lab("oloaded"), self.lab("ojoin")
        a.lg.reset()
        a(f"""v_xor_b32 v{vP1}, 0x10000, v{vX}
            v_xor_b32 v{vP2}, 0x8000, v{vX}
            v_xor_b32 v{vP3}, 0x18000, v{vX}
            v_mul_f32 v{vG}, {f32(LOG2E)}, v{vZ}
            v_and_b32 v{vOut}, 31, v{vL}
            v_exp_f32 v{vG + 2}, v{vG}
            v_exp_f32 v{vG}, -v{vG}
            v_lshlrev_b32 v{vOut}, 10, v{vOut}
            v_add_f32 v{vG + 2}, 1.0, v{vG + 2}
            v_add_f32 v{vG}, 1.0, v{vG}
            v_rcp_f32 v{vG + 2}, v{vG + 2}
            v_rcp_f32 v{vG}, v{vG}
            v_lshrrev_b32 v{vL}, 5, v{vL}
            v_lshl_add_u32 v{vOut}, v{vL}, 5, v{vOut}""")
        self.lds_check(self.vCnt, self.vTmp, 24, 16)
        a(f"""s_mov_b32 s{sG}, 0
            s_cmp_lg_u32 s{sE}, 0
            s_cbranch_scc1 {loaded}
            s_mov_b32 s{sSPIN}, 200000""")
        a.label(top)
        a(f"""s_mov_b32 s{sPV}, 0
            s_mov_b32 s{sA}, 0
            s_atomic_add s{sPV}, {sr(sWS, 2)}, s{sFl} glc
            s_atomic_add s{sA}, {sr(sWS, 2)}, s{sF2} glc
            s_sub_u32 s{sSPIN}, s{sSPIN}, 1
            s_cbranch_scc1 {got}
            s_waitcnt lgkmcnt(0)
            s_max_u32 s{sE}, s{sPV}, s{sA}
            s_cmp_lt_u32 s{sE}, 8
            s_cbranch_scc1 {top}""")
        a.label(got)
        a(f"""s_waitcnt lgkmcnt(0)
            s_cmp_lt_u32 s{sPV}, 8
            s_cselect_b32 s{sG}, 1, 0
            s_lshl_b32 s{sX}, s{sG}, 13
            s_add_u32 s{sO}, s{sO}, s{sX}""")
        self.stamp("Opoll", "M")
        a.vm.reset()
        self.oloads(0, sO)
        a(f"""s_xor_b32 s{sO}, s{sO}, 0x3000
            s_min_u32 s{sE}, s{sPV}, s{sA}
            s_lshr_b32 s{sE}, s{sE}, 3
            s_cselect_b32 s{sX}, s{sO}, {OOB}""")
        self.oloads(1, sX)
        a.label(loaded)
        a(f"""s_xor_b32 s{sF2}, s{sG}, 1
            s_lshl_b32 s{sF2}, s{sF2}, 7
            s_add_u32 s{sF2}, s{sF2}, s{sFl}
            s_xor_b32 s{sG}, s{sG}, s{sTT}
            s_lshl_b32 s{sG}, s{sG}, 15
            v_xor_b32 v{vA0}, s{sG}, v{vA0}
            v_xor_b32 v{vA1}, s{sG}, v{vA1}
            v_xor_b32 v{vB0}, 0x8000, v{vA0}
            v_xor_b32 v{vB1}, 0x8000, v{vA1}""")
        a.lg.reset()

        def wreads(s):
            if s >= 16:
                return
            for ct in range(2):
                for u in range(2):
                    self.dsr("ds_read_b64_tr_b16", WO + 8 * (s % 8) + 4 * ct + 2 * u, 2, ((vA0, vA1), (vB0, vB1))[s >> 3][ct], None,
                             (s & 7) * 2048 + 1024 * u, ("wo", s))

        def step(s):
            a.vm.wait(s)
            a.lg.wait(("wo", s))
            w = WO + 8 * (s % 8)
            ot, ow = (vr(OTH, 16), vr(OWN, 16)) if s < 8 else (vr(PT + 32, 16), vr(PT + 16, 16))
            a(f"v_mfma_f32_32x32x16_bf16 {ot}, {vr(w + 4, 4)}, {vr(OF + 4 * s, 4)}, {ot if s % 8 else 0}")
            wreads(s + 2)
            if 2 <= s < 8:
                i, h = divmod(s - 2, 2)
                for k in range(8 * h, 8 * h + 4):
                    a(f"v_add_f32 v{B + k}, v{B + k}, v{PT + 16 * i + k}")
            a(f"v_mfma_f32_32x32x16_bf16 {ow}, {vr(w, 4)}, {vr(OF + 4 * s, 4)}, {ow if s % 8 else 0}")
            if s < 6:
                i, h = divmod(s, 2)
                for q in range(2 * h, 2 * h + 2):
                    self.dsr("ds_read_b128", PT + 16 * i + 4 * q, 4, (vP1, vP2, vP3)[i], None, 16384 + 4096 * (i + 1) + 1024 * q, ("wo", s + 2))
            if 2 <= s < 8:
                i, h = divmod(s - 2, 2)
                for k in range(8 * h + 4, 8 * h + 8):
                    a(f"v_add_f32 v{B + k}, v{B + k}, v{PT + 16 * i + k}")
            if 8 <= s < 12:
                for k in range(4 * (s - 8), 4 * (s - 8) + 4):
                    a(f"v_mul_f32 v{B + k}, v{B + k}, v{vG + 2}")

        self.lds_probe(self.vCnt, self.vTmp, 4)
        for s in range(2):
            wreads(s)
        self.lds_check(self.vCnt, self.vTmp, 4, 16)
        self.stamp("msync", "M")
        for s in range(8):
            step(s)
        q, le = list(a.vm.q), list(a.lg.q)
        a(f"s_cmp_lg_u32 s{sE}, 0\ns_cbranch_scc1 {join}")
        self.spoll(sF2, 8)
        a.vm.drain()
        self.oloads(1, sO)
        assert a.vm.q == q
        a.lg.q = le
        a.label(join)
        for s in range(8, 16):
            step(s)
        self.stamp("Omfma", "M")
        a("s_nop 10")
        for q in range(4):
            for k in range(4 * q, 4 * q + 4):
                a(f"v_add_f32 v{OTH + k}, v{OTH + k}, v{PT + 32 + k}")
            a(f"ds_write_b128 v{vX}, {vr(OTH + 4 * q, 4)} offset:{16384 + 1024 * q}")
        for k in range(8):
            a(f"v_pk_add_f32 {vr(OWN + 2 * k, 2)}, {vr(OWN + 2 * k, 2)}, {vr(PT + 16 + 2 * k, 2)}")
        for k in range(8):
            a(f"v_pk_fma_f32 {vr(B + 2 * k, 2)}, {vr(OWN + 2 * k, 2)}, {vr(vG, 2)}, {vr(B + 2 * k, 2)} op_sel_hi:[1,0,1]")
        a("s_waitcnt lgkmcnt(0)\ns_barrier")
        for q in range(4):
            a(f"ds_read_b128 {vr(PT + 4 * q, 4)}, v{vP1} offset:{16384 + 1024 * q}")
        for q in range(4):
            a(f"s_waitcnt lgkmcnt({3 - q})")
            for k in range(2):
                r = 4 * q + 2 * k
                a(f"v_pk_fma_f32 {vr(B + r, 2)}, {vr(PT + r, 2)}, {vr(vG, 2)}, {vr(B + r, 2)} op_sel_hi:[1,0,1]")
            for k in range(2):
                r = 4 * q + 2 * k
                a(f"v_cvt_pk_bf16_f32 v{64 + 2 * q + k}, v{B + r}, v{B + r + 1}")
            if q % 2 == 1:
                a(f"buffer_store_dwordx4 {vr(64 + 4 * (q // 2), 4)}, v{vOut}, {sr(sOUT, 4)}, s{sOut} offen offset:{16 * (q // 2)}")

    def build(self):
        a = self.a
        cfg = self.cfg
        self.prologue()
        a(f"s_setprio {cfg['prio_l']}")
        self.loader()
        self.attn_start()
        self.stamp("attn0", "L")
        self.attn_loop()
        self.attn_finish()
        self.stamp("Oflag", "L")
        self.dump_stamps(True)
        a("s_endpgm")

        a.label("L_mwave")
        self.m_setup()
        a(f"s_bitcmp1_b32 s{sC}, 0\ns_cbranch_scc1 L_pass_v")
        self.pass_a(False)
        a("s_branch L_pass_q")
        a.label("L_pass_v")
        self.pass_a(True)
        a.label("L_pass_q")
        self.pass_q()
        a(f"s_cmp_eq_u32 s{sC}, 15\ns_cbranch_scc1 L_gate")
        self.pass_f()
        a(f"s_setprio {cfg['prio_gelu']}")
        self.ffn2_setup()
        self.gelu()
        a.label("L_ffn2")
        self.stamp("gelu", "M")
        self.ffn2()
        self.final()
        if cfg.get("stamps"):
            a("s_waitcnt vmcnt(0)")
            self.stamp("end", "M")
            self.dump_stamps(False)
        a.label("L_end")
        a("s_endpgm")
        a.label("L_gate")
        a(f"s_setprio {cfg['prio_gelu']}")
        self.gate()
        a("s_branch L_ffn2")
        self.fallback()
        return a.text()


HEADER = """; Fused kernel: out = g * MHA(x) + (1 - g) * GEGLU(x),  g = sigmoid(x . gate_w)
; Kernarg (88 bytes, pointers): 0 A_x, 8 A_wqkv, 16 A_wo, 24 B_x (unused by the reference), 32 B_w_gate, 40 B_w_up,
;   48 B_w_down, 56 gate_w, 64 d_out, 72 d_debug, 80 d_ws
; 256 workgroups, one per CU; hand-offs between workgroups go through d_ws with write-through stores and flags.
; @launch grid=(256,1,1) block=(512,1,1) lds=%d
.amdgcn_target "amdgcn-amd-amdhsa--gfx950"
.text
.globl %s_kernel
.p2align 8
.type %s_kernel,@function
%s_kernel:
""" % (LDS_BYTES, NAME, NAME, NAME)

FOOTER = """.section .rodata,"a"
.p2align 6
.amdhsa_kernel %s_kernel
  .amdhsa_next_free_vgpr 256
  .amdhsa_next_free_sgpr 102
  .amdhsa_accum_offset 256
  .amdhsa_group_segment_fixed_size 0
  .amdhsa_kernarg_size 88
  .amdhsa_user_sgpr_count 2
  .amdhsa_user_sgpr_kernarg_segment_ptr 1
  .amdhsa_system_sgpr_workgroup_id_x 1
  .amdhsa_float_denorm_mode_32 3
.end_amdhsa_kernel
""" % NAME

DEFAULT = dict(stM='start,BA0,KVst,KVflag,Qdone,F0,Fdone,gelu,Hflag,Hpoll,ffn2,Opoll,Omfma,end',
               stL='start,karg,A0,A2,A7,KVpoll,Qrdy,attn0,attn1,Ost,Oflag',
               outpol='', rowmask=14, qs=14400, tf=0, gate_f=1, gate_at=4, wpre=6, rel=1, touch=1, tq=1, f1_early=0, rbits=3, rot=4, rot2=1, la=2, nst=4, defer=0, xpol='', wpol='', fpol='', kvflag_at=8, f0_at=4, sig_at=6, pd=2, cap=6, prio_l=2, prio_m=0, prio_gelu=3)


def generate(**kw):
    cfg = dict(DEFAULT)
    cfg.update(kw)
    body = Gen(cfg).build()
    msgs = lint(body)
    if cfg.get("stamps"):
        body += f"; STAMPS M {cfg['stM']}\n"
    return HEADER + body + FOOTER, msgs


if __name__ == "__main__":
    out = sys.argv[1]
    kw = {}
    for arg in sys.argv[2:]:
        k, v = arg.split("=")
        try:
            kw[k] = int(v)
        except ValueError:
            try:
                kw[k] = float(v)
            except ValueError:
                kw[k] = v
    text, msgs = generate(**kw)
    for m in msgs:
        print("LINT:", m)
    open(out, "w").write(text)
    print("wrote", out, len(text), "bytes,", text.count("\n"), "lines")
```

```python
import struct
import sys

from asmlib import Asm, lint, sr, vr

NAME = "gated_mix__softmax_full_mha__glu_gated_geglu__prompt"


def f32(x):
    return "0x%08x" % struct.unpack("<I", struct.pack("<f", x))[0]


LOG2E = 1.4426950408889634

WS_KV, WS_O, WS_H, WS_G, WS_FLAG, WS_STAMP = 0x000000, 0x400000, 0x600000, 0xBC0000, 0xC00000, 0xD00000
CKV, CH, CO = WS_FLAG, WS_FLAG + 128 * 128, WS_FLAG + 256 * 128
OOB = 0x20000000

NSLOT = 4
QW, QF, PART, CNT = 98304, 131072, 139264, 157696
LDS_BYTES = 163840

sX, sWQ, sWO, sWG, sWU, sWD, sGW, sOUT, sDBG, sWS = 4, 8, 12, 16, 20, 24, 28, 32, 36, 40
sC, sR, sW, sT, sROT, sRB, sCB, sDEL = 44, 45, 46, 47, 48, 49, 50, 51
sONE, sPV = 71, 69
sVM = 52
sT0 = 54
sSPIN = 70
sSTAMP = 72
SIZES = {sX: 2097152, sWQ: 1572864, sWO: 524288, sWG: 1409024, sWU: 1409024, sWD: 1409024, sGW: 1024, sOUT: 2097152,
         sDBG: 256, sWS: 268435456}
KARG = {sX: 0, sWQ: 8, sWO: 16, sWG: 32, sWU: 40, sWD: 48, sGW: 56, sOUT: 64, sDBG: 72, sWS: 80}


def slot(n):
    return (n % NSLOT) * 24576


class Gen:
    def __init__(self, cfg):
        self.cfg = cfg
        self.a = Asm()
        self.uid = 0

    def lab(self, base):
        self.uid += 1
        return f"L_{base}_{self.uid}"

    def clock(self):
        return "s_memtime" if self.cfg.get("stamps") == 2 else "s_memrealtime"

    def names(self, role):
        if "pad" in self.cfg:
            return ["start", self.cfg["pad"]]
        return self.cfg["st" + role].split(",")

    def stamp(self, name, role):
        if self.cfg.get("stamps") and name in self.names(role):
            n = self.names(role).index(name)
            a = self.a
            a(f"{self.clock()} {sr(sSTAMP + 2 * n, 2)}")
            a.lg.drain()

    def dump_stamps(self, is_l):
        if not self.cfg.get("stamps"):
            return
        a = self.a
        if "pad" in self.cfg:
            n = 0 if self.cfg["pad"] == "start" else 1
            top, done = self.lab("pad"), self.lab("paddone")
            if is_l:
                a("s_barrier")
            if "padx" in self.cfg:
                a(f"""s_and_b32 s{sT0}, s2, 7
                    s_cmp_eq_u32 s{sT0}, {self.cfg['padx']}
                    s_cselect_b32 s{sSTAMP + 2 * n}, s{sSTAMP + 2 * n}, 0""")
            a(f"""s_waitcnt vmcnt(0) lgkmcnt(0)
                s_cmp_eq_u32 s{sSTAMP + 2 * n}, 0
                s_cbranch_scc1 {done}""")
            a.label(top)
            a(f"""s_sleep 4
                s_memrealtime {sr(sT0, 2)}
                s_waitcnt lgkmcnt(0)
                s_sub_u32 s{sT0}, s{sT0}, s{sSTAMP + 2 * n}
                s_cmp_lt_u32 s{sT0}, 6000
                s_cbranch_scc1 {top}""")
            a.label(done)
            return
        a(f"""s_lshl_b32 s{sT0}, s2, 3
            s_add_u32 s{sT0}, s{sT0}, s{sW}
            s_lshl_b32 s{sT0}, s{sT0}, 6
            s_add_u32 s{sT0}, s{sT0}, {WS_STAMP}
            s_mov_b64 exec, 1""")
        for n in range(14):
            a(f"v_mov_b32 v0, s{sSTAMP + 2 * n}")
            a(f"buffer_store_dword v0, off, {sr(sWS, 4)}, s{sT0} offset:{4 * n}")
        a("s_mov_b64 exec, -1")

    def lane(self, v):
        self.a(f"""v_mbcnt_lo_u32_b32 v{v}, -1, 0
            v_mbcnt_hi_u32_b32 v{v}, -1, v{v}""")

    def srd(self, *regs):
        for r in regs:
            self.a(f"s_mov_b32 s{r + 2}, {SIZES[r]}\ns_mov_b32 s{r + 3}, 0x00020000")

    def kload(self, *regs):
        for r in regs:
            self.a(f"s_load_dwordx2 {sr(r, 2)}, s[0:1], {KARG[r]}")

    def chunk(self, dst, i):
        a = self.a
        if self.cfg["rot"] in (3, 4):
            a(f"""s_add_u32 s{dst}, s{sDEL}, {i & 3}
                s_and_b32 s{dst}, s{dst}, 3
                s_add_u32 s{dst}, s{dst}, s{sROT}""")
            if i & 4:
                a(f"s_xor_b32 s{dst}, s{dst}, 4")
        else:
            a(f"s_add_u32 s{dst}, s{sROT}, {i}\ns_and_b32 s{dst}, s{dst}, 7")

    def dsr(self, op, dst, n, lo, hi, imm, tag):
        reg = lo
        if imm >= 65536:
            reg, imm = hi, imm - 65536
        assert 0 <= imm < 65536 and reg is not None
        self.a(f"{op} {vr(dst, n)}, v{reg} offset:{imm}")
        self.a.lg.issue(tag)

    def poll(self, voff, soff, tmp, srd=sWS):
        a = self.a
        top, done = self.lab("poll"), self.lab("pdone")
        a(f"s_mov_b32 s{sSPIN}, 100000")
        a.label(top)
        a(f"""buffer_load_dword v{tmp}, v{voff}, {sr(srd, 4)}, {soff} offen sc1
            s_waitcnt vmcnt(0)
            v_cmp_gt_u32 vcc, 16, v{tmp}
            s_cbranch_vccz {done}
            s_sleep 8
            s_sub_u32 s{sSPIN}, s{sSPIN}, 1
            s_cmp_lg_u32 s{sSPIN}, 0
            s_cbranch_scc1 {top}""")
        a.label(done)
        a.vm.reset()

    def signal(self, soff):
        self.a(f"s_atomic_add s{sONE}, {sr(sWS, 2)}, s{soff}")

    def spoll(self, soff, need, back=None):
        a = self.a
        top, done = self.lab("spoll"), back or self.lab("sdone")
        a(f"s_mov_b32 s{sSPIN}, 200000")
        a.label(top)
        a(f"""s_mov_b32 s{sPV}, 0
            s_atomic_add s{sPV}, {sr(sWS, 2)}, s{soff} glc
            s_waitcnt lgkmcnt(0)
            s_cmp_ge_u32 s{sPV}, {need}
            s_cbranch_scc1 {done}
            s_sub_u32 s{sSPIN}, s{sSPIN}, 1
            s_cmp_lg_u32 s{sSPIN}, 0
            s_cbranch_scc1 {top}""")
        if back:
            a(f"s_branch {back}")
        else:
            a.label(done)
        a.lg.reset()

    def lds_signal(self, addr, one, off):
        a = self.a
        a(f"""s_mov_b64 exec, 1
            ds_add_u32 v{addr}, v{one} offset:{off}
            s_mov_b64 exec, -1""")
        a.lg.issue("sig")

    def lds_probe(self, addr, tmp, off):
        self.a(f"ds_read_b32 v{tmp}, v{addr} offset:{off}")
        self.a.lg.issue("probe")

    def lds_check(self, addr, tmp, off, need, nap=0):
        a = self.a
        top, done = self.lab("lspin"), self.lab("ldone")
        a.lg.wait("probe")
        a(f"""v_cmp_gt_u32 vcc, {need}, v{tmp}
            s_cbranch_vccz {done}
            s_mov_b32 s{sSPIN}, 1000000""")
        a.label(top)
        if nap:
            a(f"s_sleep {nap}")
        a(f"""ds_read_b32 v{tmp}, v{addr} offset:{off}
            s_waitcnt lgkmcnt(0)
            v_cmp_gt_u32 vcc, {need}, v{tmp}
            s_cbranch_vccz {done}
            s_sub_u32 s{sSPIN}, s{sSPIN}, 1
            s_cmp_lg_u32 s{sSPIN}, 0
            s_cbranch_scc1 {top}""")
        a.label(done)

    def prologue(self):
        a = self.a
        cfg = self.cfg
        rb = cfg["rbits"]
        a("s_cmp_ge_u32 s2, 256\ns_cbranch_scc1 L_end")
        if cfg.get("stamps"):
            a(f"{self.clock()} {sr(sSTAMP, 2)}")
        self.kload(sX, sWQ, sWS)
        if cfg.get("stamps"):
            for n in range(1, 14):
                a(f"s_mov_b32 s{sSTAMP + 2 * n}, 0")
        x, j, t = sT0, sT0 + 1, sT0 + 2
        a(f"""v_lshrrev_b32 v1, 6, v0
            s_and_b32 s{x}, s2, 7
            v_readfirstlane_b32 s{sW}, v1
            s_lshr_b32 s{j}, s2, 3
            v_and_b32 v0, 63, v0
            s_and_b32 s{sR}, s{x}, {(1 << (4 - rb)) - 1}
            s_lshl_b32 s{sR}, s{sR}, {rb}
            s_and_b32 s{t}, s{j}, {(1 << rb) - 1}
            s_add_u32 s{sR}, s{sR}, s{t}
            s_lshr_b32 s{sC}, s{x}, {4 - rb}
            s_lshl_b32 s{sC}, s{sC}, {5 - rb}
            s_lshr_b32 s{t}, s{j}, {rb}
            s_add_u32 s{sC}, s{sC}, s{t}
            s_and_b32 s{sT}, s{sW}, 3""")
        rot = cfg["rot"]
        if rot == 0:
            a(f"s_mov_b32 s{sROT}, 0")
        elif rot == 1:
            a(f"""s_mul_i32 s{sROT}, s{sC}, {cfg.get('rotc', 2)}
                s_mul_i32 s{t}, s{sR}, {cfg.get('rotr', 1)}
                s_add_u32 s{sROT}, s{sROT}, s{t}
                s_and_b32 s{sROT}, s{sROT}, 7""")
        else:
            a(f"""s_add_u32 s{sROT}, s{sC}, s{sR}
                s_and_b32 s{sROT}, s{sROT}, 1
                s_lshl_b32 s{sROT}, s{sROT}, 2""")
            if rot == 3:
                a(f"s_mov_b32 s{sDEL}, 0")
            else:
                a(f"""s_lshr_b32 s{sDEL}, s{x}, 1
                    s_lshl_b32 s{t}, s{x}, 1
                    s_add_u32 s{sDEL}, s{sDEL}, s{t}""")
        self.srd(sWS)
        a(f"""s_mov_b32 s{sONE}, 1
            s_cmp_ge_u32 s{sW}, 4
            s_cbranch_scc0 L_mwave""")

    def loader(self):
        a = self.a
        a.vm.reset()
        vX0, vX1, vKV, vQ = 8, 9, 10, 11
        sXB, sKB, sQB, sLx, sLk, sLq, sCh, sO = range(sT0, sT0 + 8)
        self.srd(sX, sWQ)
        a(f"""v_lshrrev_b32 v1, 3, v0
            v_and_b32 v2, 7, v0
            v_lshrrev_b32 v3, 4, v0
            s_lshl_b32 s{sO}, s{sT}, 5
            v_add_u32 v4, s{sO}, v1
            v_xor_b32 v5, v2, v3
            v_lshlrev_b32 v5, 4, v5
            v_lshl_add_u32 v{vX0}, v4, 10, v5
            v_xor_b32 v{vX1}, 64, v{vX0}
            v_add_u32 v{vX1}, 8192, v{vX1}
            s_lshl_b32 s{sO}, s{sT}, 4
            v_add_u32 v4, s{sO}, v1
            v_mul_u32_u24 v4, 3072, v4
            v_and_b32 v5, 1, v3
            v_lshlrev_b32 v5, 2, v5
            v_xor_b32 v5, v2, v5
            v_lshl_add_u32 v{vKV}, v5, 4, v4
            s_lshl_b32 s{sXB}, s{sR}, 17
            s_and_b32 s{sKB}, s{sC}, 1
            s_add_u32 s{sKB}, s{sKB}, 1
            s_lshl_b32 s{sKB}, s{sKB}, 10
            s_lshr_b32 s{sCh}, s{sC}, 1
            s_lshl_b32 s{sCh}, s{sCh}, 7
            s_add_u32 s{sKB}, s{sKB}, s{sCh}
            s_lshl_b32 s{sLx}, s{sT}, 12
            s_lshl_b32 s{sLk}, s{sT}, 11""")

        def issueA(i):
            B = slot(i)
            self.chunk(sCh, i)
            a(f"s_lshl_b32 s{sO}, s{sCh}, 7\ns_add_u32 s{sO}, s{sO}, s{sXB}")
            for k in range(4):
                a(f"s_add_u32 m0, s{sLx}, {B + 1024 * k}")
                if i == 0 and k == 0:
                    a("s_waitcnt lgkmcnt(0)")
                    self.stamp("karg", "L")
                else:
                    a(f"s_add_u32 s{sO}, s{sO}, 16384" if k == 2 else "s_nop 0")
                a(f"buffer_load_dwordx4 v{vX0 if k % 2 == 0 else vX1}, {sr(sX, 4)}, s{sO} offen {self.cfg['xpol']} lds")
                a.vm.issue(("A", i))
            a(f"s_mul_i32 s{sO}, s{sCh}, 196608")
            for k in range(2):
                a(f"s_add_u32 m0, s{sLk}, {B + 16384 + 1024 * k}")
                a(f"s_add_u32 s{sO}, s{sO}, {'s%d' % sKB if k == 0 else 24576}")
                a(f"buffer_load_dwordx4 v{vKV}, {sr(sWQ, 4)}, s{sO} offen {self.cfg['wpol']} lds")
                a.vm.issue(("A", i))

        def issueQ(lo, hi):
            for i in range(lo, hi):
                self.chunk(sCh, i)
                a(f"""s_mul_i32 s{sO}, s{sCh}, 196608
                    s_add_u32 m0, s{sLq}, {QW + 4096 * i}
                    s_add_u32 s{sO}, s{sO}, s{sQB}
                    buffer_load_dwordx4 v{vQ}, {sr(sWQ, 4)}, s{sO} offen lds""")
                a.vm.issue(("Q", 0))

        def setup2():
            a(f"""v_lshrrev_b32 v4, 2, v0
                s_lshl_b32 s{sO}, s{sT}, 4
                v_add_u32 v4, s{sO}, v4
                v_mul_u32_u24 v4, 3072, v4
                v_and_b32 v5, 3, v0
                v_lshl_add_u32 v{vQ}, v5, 4, v4
                s_lshl_b32 s{sQB}, s{sC}, 6
                s_lshl_b32 s{sLq}, s{sT}, 10
                s_mov_b32 s{sVM}, 0x0000ffff
                s_mov_b32 s{sVM + 1}, 0x0000ffff""")
            if self.cfg["tq"]:
                cb = 5 - self.cfg["rbits"]
                nl = 1 << (cb - 1)
                a(f"""v_lshrrev_b32 v4, {cb - 1}, v0
                    v_mul_u32_u24 v4, 3072, v4
                    v_and_b32 v5, {nl - 1}, v0
                    v_lshl_add_u32 v4, v5, 7, v4
                    s_lshr_b32 s{sO}, s2, 3
                    s_lshl_b32 s{sO}, s{sO}, 2
                    s_add_u32 s{sO}, s{sO}, s{sT}
                    s_mul_i32 s{sO}, s{sO}, 12288
                    s_lshr_b32 s{sCh}, s{sC}, {cb}
                    s_lshl_b32 s{sCh}, s{sCh}, {cb + 6}
                    s_add_u32 s{sO}, s{sO}, s{sCh}
                    s_mov_b32 m0, {CNT + 64}
                    s_mov_b64 exec, {(1 << (4 * nl)) - 1}
                    buffer_load_dword v4, {sr(sWQ, 4)}, s{sO} offen lds
                    s_mov_b64 exec, -1""")
                a.vm.issue("touch")
            a("s_setprio 0")
            self.attn_init()
            a(f"s_setprio {self.cfg['prio_l']}")

        la = self.cfg["la"]
        qs = [int(ch) for ch in str(self.cfg["qs"])[1:]]
        assert sum(qs) == 8
        nxt = 0
        for b in range(9):
            while nxt < 8 and nxt <= b + la and nxt - NSLOT + 2 <= b:
                issueA(nxt)
                nxt += 1
            if b == 0:
                setup2()
            if b >= 6:
                issueQ(sum(qs[:b - 6]), sum(qs[:b - 5]))
            if b == 8 and qs[3]:
                a("s_barrier")
                issueQ(8 - qs[3], 8)
            tag = ("A", b) if b < 8 else ("Q", 0)
            a.vm.wait(tag)
            self.stamp(f"{tag[0]}{tag[1]}", "L")
            a("s_barrier")

    O_, S_, Q_, KV_ = 16, 80, 112, 128
    vIDX, vKo, vVo, vFl, vQa_, vOne, vCa, vPa, vPs = 12, 13, 14, 15, 6, 7, 1, 2, 3

    def attn_init(self):
        a = self.a
        NST = self.cfg["nst"]
        assert NST == 4
        sHd, sQ, sOff, sRow, sCnt, sLd, sFl = range(sT0 + 8, sT0 + 15)
        self.sHd, self.sQ, self.sOff, self.sKr, self.sCnt, self.sLd, self.sFl = sHd, sQ, sOff, sRow, sCnt, sLd, sFl
        a(f"""s_and_b32 s{sHd}, s{sW}, 1
            s_lshr_b32 s{sQ}, s{sT}, 1
            v_lshrrev_b32 v5, 5, v0
            s_and_b32 s{sRow}, s{sR}, {self.cfg['rowmask']}
            s_add_u32 s{sRow}, s{sRow}, s{sQ}
            s_and_b32 s{sRow}, s{sRow}, 15
            s_mov_b32 s{sCnt}, {32 // NST}
            v_lshlrev_b32 v{self.vKo}, 4, v0
            v_and_b32 v{self.vVo}, 15, v0
            v_lshlrev_b32 v{self.vVo}, 4, v{self.vVo}
            v_lshl_add_u32 v{self.vVo}, v5, 8, v{self.vVo}
            s_lshl_b32 s{sLd}, s{sHd}, 12
            s_add_u32 s{sLd}, s{sLd}, {QF}
            v_add_u32 v{self.vQa_}, s{sLd}, v{self.vKo}
            s_lshl_b32 s{sLd}, s{sQ}, 11
            v_add_u32 v{self.vQa_}, s{sLd}, v{self.vQa_}
            v_mov_b32 v{self.vIDX}, 0xdddddddd
            v_mov_b32 v{self.vOne}, 1
            v_and_b32 v4, 0x1b, v0
            v_cmp_eq_u32 vcc, 16, v4
            v_mov_b32 v4, 0x3f803f80
            s_mul_i32 s{sLd}, s{sT}, 4608
            v_cndmask_b32 v4, 0, v4, vcc
            s_add_u32 s{sLd}, s{sLd}, {PART}
            v_lshl_add_u32 v{self.vPa}, v0, 4, s{sLd}
            v_lshl_add_u32 v{self.vPs}, v0, 2, s{sLd}
            s_lshl_b32 s{sLd}, s{sHd}, 2
            s_add_u32 s{sLd}, s{sLd}, {CNT + 8}
            v_mov_b32 v{self.vCa}, s{sLd}
            s_lshl_b32 s{sLd}, s{sT}, 2
            s_add_u32 s{sLd}, s{sLd}, {CNT + 32}
            v_mov_b32 v{self.vFl}, s{sLd}""")
        for st in range(NST):
            for k in range(8):
                a(f"v_mov_b32 v{self.KV_ + 12 * st + 4 + k}, v4")
        for k in range(64):
            a(f"v_mov_b32 v{self.O_ + k}, 0")

    def attn_start(self):
        a = self.a
        NST = self.cfg["nst"]
        sOff = self.sOff
        sHB, sFB, sRow, sFl = sT0, sT0 + 1, self.sKr, self.sFl
        a(f"""s_lshl_b32 s{sHB}, s{sC}, 1
            s_add_u32 s{sHB}, s{sHB}, s{self.sHd}
            s_lshl_b32 s{sHB}, s{sHB}, 17
            s_lshr_b32 s{sFB}, s{sC}, 1
            s_lshl_b32 s{sFB}, s{sFB}, 11
            s_add_u32 s{sFB}, s{sFB}, {CKV}
            s_lshl_b32 s{sOff}, s{sRow}, 13
            s_add_u32 s{sOff}, s{sOff}, s{sHB}
            s_lshl_b32 s{sFl}, s{sRow}, 7
            s_add_u32 s{sFl}, s{sFl}, s{sFB}""")
        self.spoll(sFl, 8)
        self.stamp("KVpoll", "L")
        for st in range(NST - 1):
            b = self.KV_ + 12 * st
            a(f"""buffer_load_dwordx4 {vr(b, 4)}, v{self.vKo}, {sr(sWS, 4)}, s{sOff} offen sc1
                s_mov_b64 exec, {sr(sVM, 2)}
                buffer_load_dwordx4 {vr(b + 4, 4)}, v{self.vVo}, {sr(sWS, 4)}, s{sOff} offen offset:1024 sc1
                buffer_load_dwordx4 {vr(b + 8, 4)}, v{self.vVo}, {sr(sWS, 4)}, s{sOff} offen offset:1536 sc1
                s_mov_b64 exec, -1
                s_add_u32 s{sOff}, s{sOff}, 2048""")
        self.stamp("KViss", "L")
        a(f"v_mov_b32 v5, {CNT}")
        a.lg.reset()
        self.lds_signal(5, self.vOne, 20)
        self.lds_probe(5, 4, 16)
        self.lds_check(5, 4, 16, 16)
        a(f"v_xor_b32 v4, 0x800, v{self.vQa_}")
        self.stamp("Qrdy", "L")
        for q in range(4):
            a(f"ds_read_b128 {vr(self.Q_ + 4 * q, 4)}, v{self.vQa_ if q >= 2 else 4} offset:{1024 * (q & 1)}")
        a(f"""s_add_u32 s{sRow}, s{sRow}, 2
            s_and_b32 s{sRow}, s{sRow}, 15
            s_lshl_b32 s{sFl}, s{sRow}, 7
            s_add_u32 s{sFl}, s{sFl}, s{sFB}
            s_mov_b32 s{sPV}, 0
            s_waitcnt lgkmcnt(0)
            s_atomic_add s{sPV}, {sr(sWS, 2)}, s{sFl} glc
            s_waitcnt vmcnt({3 * (NST - 2)})
            v_mfma_f32_32x32x16_bf16 {vr(self.S_, 16)}, {vr(self.KV_, 4)}, {vr(self.Q_, 4)}, 0
            s_nop 11""")

    def attn_loop(self):
        a = self.a
        NST = self.cfg["nst"]
        NT = 4 * NST
        O, S, Q, KV = self.O_, self.S_, self.Q_, self.KV_
        sOff, sRow, sCnt, sFl, sHB, sFB = self.sOff, self.sKr, self.sCnt, self.sFl, sT0, sT0 + 1
        sm = lambda st, qt, half, n: (f"v_smfmac_f32_32x32x32_bf16 {vr(O + 16 * qt, 16)}, {vr(KV + 12 * st + 4 + 4 * half, 4)}, "
                                      f"{vr(S + 16 * (n & 1) + 8 * half, 8)}, v{self.vIDX}")
        extra = {
            (2, 0): f"s_lshl_b32 s{sOff}, s{sRow}, 13\ns_add_u32 s{sOff}, s{sOff}, s{sHB}",
            (2, 2): f"s_cmp_eq_u32 s{sCnt}, 1\ns_cselect_b32 s{sOff}, {OOB}, s{sOff}",
            (3, 1): "s_waitcnt lgkmcnt(0)",
            (3, 2): f"s_cmp_lt_u32 s{sPV}, 8\ns_cbranch_scc1 L_kv_wait\nL_kv_ok:",
            (6, 0): f"s_add_u32 s{sRow}, s{sRow}, 2\ns_and_b32 s{sRow}, s{sRow}, 15",
            (6, 2): f"s_lshl_b32 s{sFl}, s{sRow}, 7\ns_add_u32 s{sFl}, s{sFl}, s{sFB}",
            (10, 0): f"s_mov_b32 s{sPV}, 0\ns_atomic_add s{sPV}, {sr(sWS, 2)}, s{sFl} glc",
            (NT - 3, 0): f"s_sub_u32 s{sCnt}, s{sCnt}, 1\ns_cmp_eq_u32 s{sCnt}, 0",
        }

        def ex(n, k):
            for l in extra.get((n, k), "").split("\n"):
                if l.endswith(":"):
                    a.label(l[:-1])
                else:
                    a(l)

        a(f"v_exp_f32 v{S}, v{S}\nv_exp_f32 v{S + 1}, v{S + 1}")
        a.raw(".p2align 6")
        a.label("L_attn")
        for n in range(NT + 1):
            st, qt = divmod(n, 4)
            cur = S + 16 * (n & 1)
            E = lambda lo, hi: [a(f"v_exp_f32 v{cur + k}, v{cur + k}") for k in range(lo, hi)]
            pst, pqt = divmod((n - 1) % NT, 4)
            nst, nqt = divmod((n + 1) % NT, 4)
            ld = KV + 12 * ((st - 1) % NST)
            if n:
                E(0, 2)
                a(sm(pst, pqt, 1, n - 1))
            if n == NT:
                break
            if n == NT - 2:
                a("s_cbranch_scc1 L_attn_tail")
            ex(n, 0)
            if qt == 3:
                a(f"s_waitcnt vmcnt({3 * (NST - 2)})")
            E(2, 5)
            a(f"v_mfma_f32_32x32x16_bf16 {vr(S + 16 * ((n + 1) & 1), 16)}, {vr(KV + 12 * nst, 4)}, {vr(Q + 4 * nqt, 4)}, 0")
            ex(n, 1)
            if qt == 0:
                a(f"buffer_load_dwordx4 {vr(ld, 4)}, v{self.vKo}, {sr(sWS, 4)}, s{sOff} offen sc1")
            if qt == 2 and st:
                a(f"s_add_u32 s{sOff}, s{sOff}, 2048")
            E(5, 10)
            a(sm(st, qt, 0, n))
            ex(n, 2)
            if qt == 1:
                a(f"""s_mov_b64 exec, {sr(sVM, 2)}
                    buffer_load_dwordx4 {vr(ld + 4, 4)}, v{self.vVo}, {sr(sWS, 4)}, s{sOff} offen offset:1024 sc1
                    buffer_load_dwordx4 {vr(ld + 8, 4)}, v{self.vVo}, {sr(sWS, 4)}, s{sOff} offen offset:1536 sc1
                    s_mov_b64 exec, -1""")
            E(10, 16)
        a("s_branch L_attn")
        self.sm = sm

    def attn_finish(self):
        a = self.a
        O, S, Q, KV, T, sm = self.O_, self.S_, self.Q_, self.KV_, 192, self.sm
        sA, sF, m = sT0, sT0 + 1, sT0 + 2
        E = lambda n, lo, hi: [a(f"v_exp_f32 v{S + 16 * (n & 1) + k}, v{S + 16 * (n & 1) + k}") for k in range(lo, hi)]

        def give(q):
            o = O + 16 * q
            a(f"""ds_write_b128 v{self.vPa}, {vr(o, 4)} offset:{2304 * q}
                ds_write_b128 v{self.vPa}, {vr(o + 4, 4)} offset:{2304 * q + 1024}
                ds_write_b32 v{self.vPs}, v{o + 8} offset:{2304 * q + 2048}""")

        a.label("L_attn_tail")
        a.lg.reset()
        a("s_waitcnt lgkmcnt(0)")
        give(0)
        E(14, 2, 5)
        a(f"v_mfma_f32_32x32x16_bf16 {vr(S + 16, 16)}, {vr(KV + 36, 4)}, {vr(Q + 12, 4)}, 0")
        a(f"s_lshl_b32 s{sF}, s{sR}, 1")
        E(14, 5, 10)
        a(sm(3, 2, 0, 14))
        give(1)
        if self.cfg["rel"] == 0:
            a(f"ds_write_b32 v{self.vFl}, v{self.vOne}")
        self.lds_signal(self.vCa, self.vOne, 0)
        E(14, 10, 16)
        E(15, 0, 2)
        a(sm(3, 2, 1, 14))
        self.lds_probe(self.vCa, 4, 0)
        a(f"""s_add_u32 s{sF}, s{sF}, s{self.sQ}
            s_lshl_b32 s{sA}, s{sF}, 5
            s_add_u32 s{sA}, s{sA}, s{sC}
            s_lshl_b32 s{sA}, s{sA}, 1
            s_add_u32 s{sA}, s{sA}, s{self.sHd}
            s_mul_i32 s{m}, s{self.sQ}, -18432
            s_add_u32 s{m}, s{m}, 9216""")
        E(15, 2, 10)
        a(sm(3, 3, 0, 15))
        a(f"""s_lshl_b32 s{sA}, s{sA}, 10
            s_add_u32 s{sA}, s{sA}, {WS_O}
            v_add_u32 v{self.vPa}, s{m}, v{self.vPa}
            v_add_u32 v{self.vPs}, s{m}, v{self.vPs}""")
        E(15, 10, 16)
        a(f"""s_lshl_b32 s{sF}, s{sF}, 2
            s_lshr_b32 s{m}, s{sC}, 2""")
        a(sm(3, 3, 1, 15))
        a(f"""s_add_u32 s{sF}, s{sF}, s{m}
            s_lshl_b32 s{sF}, s{sF}, 7
            s_add_u32 s{sF}, s{sF}, {CO}""")
        if self.cfg["rel"] == 1:
            a(f"ds_write_b32 v{self.vFl}, v{self.vOne}")
            a.lg.issue("rel")
        self.stamp("attn1", "L")
        self.lds_check(self.vCa, 4, 0, 2)
        self.stamp("pair", "L")
        for q in range(2):
            a(f"""ds_read_b32 v{T + 12 * q + 8}, v{self.vPs} offset:{2304 * q + 2048}
                ds_read_b128 {vr(T + 12 * q, 4)}, v{self.vPa} offset:{2304 * q}
                ds_read_b128 {vr(T + 12 * q + 4, 4)}, v{self.vPa} offset:{2304 * q + 1024}""")
        for q in range(2):
            o, t = O + 32 + 16 * q, T + 12 * q
            a(f"s_waitcnt lgkmcnt({3 - 3 * q})\nv_add_f32 v{o + 8}, v{o + 8}, v{t + 8}")
            for k in range(8):
                a(f"v_add_f32 v{o + k}, v{o + k}, v{t + k}")
            if q == 0:
                self.normalise(0)
        self.normalise(1)
        if self.cfg["rel"] == 2:
            a(f"ds_write_b32 v{self.vFl}, v{self.vOne}")
        self.stamp("Ost", "L")
        lo, hi = self.cfg.get("l_lo", 2.0 ** -24), self.cfg.get("l_hi", 2.0 ** 64)
        for q in range(2):
            o, t = O + 32 + 16 * q, T + 12 * q
            a(f"""v_pk_add_f32 {vr(t, 2)}, {vr(o, 2)}, {vr(o + 2, 2)}
                v_pk_add_f32 {vr(t + 2, 2)}, {vr(o + 4, 2)}, {vr(o + 6, 2)}
                v_cmp_lt_f32 vcc, {f32(lo)}, v{o + 8}
                v_pk_add_f32 {vr(t, 2)}, {vr(t, 2)}, {vr(t + 2, 2)}
                s_and_b64 {sr(m, 2)}, {'vcc' if q == 0 else sr(m, 2)}, vcc
                v_cmp_gt_f32 vcc, {f32(hi)}, v{o + 8}
                v_add_f32 v{t}, v{t}, v{t + 1}
                s_and_b64 {sr(m, 2)}, {sr(m, 2)}, vcc
                v_sub_f32 v{t}, v{t}, v{t}
                v_cmp_eq_f32 vcc, 0, v{t}
                s_and_b64 {sr(m, 2)}, {sr(m, 2)}, vcc""")
        a(f"s_cmp_eq_u64 {sr(m, 2)}, -1\ns_cbranch_scc0 L_fallback")
        a.label("L_publish")
        a("s_waitcnt vmcnt(0)")
        self.signal(sF)

    def normalise(self, q):
        a = self.a
        o, d = self.O_ + 32 + 16 * q, 224 + 4 * q
        a(f"v_rcp_f32 v{o + 9}, v{o + 8}\ns_add_u32 s{sT0 + 4}, s{sT0}, {32768 * q}")
        for k in range(8):
            a(f"v_mul_f32 v{o + k}, v{o + k}, v{o + 9}")
        for k in range(4):
            a(f"v_cvt_pk_bf16_f32 v{d + k}, v{o + 2 * k}, v{o + 2 * k + 1}")
        a(f"buffer_store_dwordx4 {vr(d, 4)}, v{self.vKo}, {sr(sWS, 4)}, s{sT0 + 4} offen sc1")

    def fallback(self):
        a = self.a
        S, M, K, V, vMx = self.S_, self.S_ + 16, self.KV_, self.KV_ + 4, 4
        sO, sN = sT0 + 2, sT0 + 3
        a.label("L_kv_wait")
        self.spoll(self.sFl, 8, "L_kv_ok")
        a.label("L_fallback")
        a("s_waitcnt vmcnt(0)")
        for q in range(2):
            O, Q = self.O_ + 32 + 16 * q, self.Q_ + 8 + 4 * q
            a(f"""v_mov_b32 v{vMx}, 0xff800000
                s_lshl_b32 s{sO}, s{sC}, 1
                s_add_u32 s{sO}, s{sO}, s{self.sHd}
                s_lshl_b32 s{sO}, s{sO}, 17
                s_mov_b32 s{sN}, 64""")
            a.label(f"L_fb_max{q}")
            a(f"""buffer_load_dwordx4 {vr(K, 4)}, v{self.vKo}, {sr(sWS, 4)}, s{sO} offen sc1
                s_waitcnt vmcnt(0)
                v_mfma_f32_32x32x16_bf16 {vr(S, 16)}, {vr(K, 4)}, {vr(Q, 4)}, 0
                s_nop 11""")
            for k in range(8):
                a(f"v_max3_f32 v{vMx}, v{S + 2 * k}, v{S + 2 * k + 1}, v{vMx}")
            a(f"""s_add_u32 s{sO}, s{sO}, 2048
                s_sub_u32 s{sN}, s{sN}, 1
                s_cmp_lg_u32 s{sN}, 0
                s_cbranch_scc1 L_fb_max{q}
                v_mov_b32 v{M}, v{vMx}
                s_nop 1
                v_permlane32_swap_b32 v{vMx}, v{M}
                s_nop 1
                v_max_f32 v{vMx}, v{vMx}, v{M}
                s_sub_u32 s{sO}, s{sO}, 131072
                s_mov_b32 s{sN}, 64""")
            for k in range(16):
                a(f"v_sub_f32 v{M + k}, 0, v{vMx}\nv_mov_b32 v{O + k}, 0")
            a.label(f"L_fb_sum{q}")
            a(f"""buffer_load_dwordx4 {vr(K, 4)}, v{self.vKo}, {sr(sWS, 4)}, s{sO} offen sc1
                s_mov_b64 exec, {sr(sVM, 2)}
                buffer_load_dwordx4 {vr(V, 4)}, v{self.vVo}, {sr(sWS, 4)}, s{sO} offen offset:1024 sc1
                buffer_load_dwordx4 {vr(V + 4, 4)}, v{self.vVo}, {sr(sWS, 4)}, s{sO} offen offset:1536 sc1
                s_mov_b64 exec, -1
                s_waitcnt vmcnt(0)
                v_mfma_f32_32x32x16_bf16 {vr(S, 16)}, {vr(K, 4)}, {vr(Q, 4)}, {vr(M, 16)}
                s_nop 11""")
            for k in range(16):
                a(f"v_exp_f32 v{S + k}, v{S + k}")
            a(f"""s_nop 1
                v_smfmac_f32_32x32x32_bf16 {vr(O, 16)}, {vr(V, 4)}, {vr(S, 8)}, v{self.vIDX}
                v_smfmac_f32_32x32x32_bf16 {vr(O, 16)}, {vr(V + 4, 4)}, {vr(S + 8, 8)}, v{self.vIDX}
                s_nop 7
                s_add_u32 s{sO}, s{sO}, 2048
                s_sub_u32 s{sN}, s{sN}, 1
                s_cmp_lg_u32 s{sN}, 0
                s_cbranch_scc1 L_fb_sum{q}
                s_nop 3""")
            self.normalise(q)
        a("s_branch L_publish")

    XR, ACC, WS_ = 128, 32, 8
    vFlo, vFhi, vF, vCnt, v1_, vTmp = 0, 1, 2, 5, 6, 7

    def m_setup(self):
        a = self.a
        self.vXA, self.vXAh, self.vWk, self.vWkh, self.vQa, self.vST, self.vGo, self.vQFa, self.vGa = 80, 84, 88, 90, 92, 93, 94, 95, 96
        self.kload(sDBG, sWG, sWU, sWD, sWO, sOUT, sGW)
        self.srd(sDBG, sWG, sWU, sWD, sWO, sOUT, sGW)
        skip = self.lab("noreset")
        a(f"""s_lshr_b32 s{sT0 + 3}, s2, 5
            s_or_b32 s{sT0 + 3}, s{sT0 + 3}, s{sW}
            s_cmp_lg_u32 s{sT0 + 3}, 0
            s_cbranch_scc1 {skip}
            s_mul_i32 s{sT0 + 3}, s2, 1536
            s_add_u32 s{sT0 + 3}, s{sT0 + 3}, {WS_FLAG}
            s_mov_b32 s{sPV}, 0
            s_waitcnt lgkmcnt(0)""")
        for k in range(12):
            a(f"s_atomic_and s{sPV}, {sr(sWS, 2)}, s{sT0 + 3}\ns_add_u32 s{sT0 + 3}, s{sT0 + 3}, 128")
        a.label(skip)
        a(f"""s_lshl_b32 s{sRB}, s{sT0}, 2
            s_and_b32 s{sT0 + 2}, s{sT0 + 1}, 3
            s_add_u32 s{sRB}, s{sRB}, s{sT0 + 2}
            s_lshr_b32 s{sCB}, s{sT0 + 1}, 2
            v_and_b32 v16, 31, v0
            v_lshrrev_b32 v17, 5, v0
            v_bfe_u32 v18, v0, 1, 3
            v_xor_b32 v18, v18, v17
            s_lshl_b32 s{sT0}, s{sT}, 12
            v_lshlrev_b32 v19, 7, v16
            v_lshl_add_u32 v19, v18, 4, v19
            v_add_u32 v{self.vXA}, s{sT0}, v19""")
        for s in range(1, 4):
            a(f"v_xor_b32 v{self.vXA + s}, {32 * s}, v{self.vXA}")
        for s in range(4):
            a(f"v_add_u32 v{self.vXAh + s}, 0x10000, v{self.vXA + s}")
        a(f"""v_bfe_u32 v18, v0, 2, 2
            v_lshl_add_u32 v18, v17, 3, v18
            v_bfe_u32 v19, v0, 4, 1
            v_and_b32 v20, 3, v0
            v_lshlrev_b32 v20, 3, v20
            v_lshl_add_u32 v20, v19, 5, v20
            v_bfe_u32 v21, v0, 3, 1
            v_lshl_add_u32 v22, v18, 7, v20
            v_lshl_add_u32 v{self.vWk}, v21, 6, v22
            v_xor_b32 v{self.vWk + 1}, 64, v{self.vWk}
            v_add_u32 v{self.vWkh}, 0x10000, v{self.vWk}
            v_add_u32 v{self.vWkh + 1}, 0x10000, v{self.vWk + 1}
            v_lshl_add_u32 v{self.vQa}, v18, 6, v20
            v_add_u32 v{self.vQa}, {QW}, v{self.vQa}
            s_lshl_b32 s{sT0}, s{sT}, 10
            s_add_u32 s{sT0}, s{sT0}, {QF}
            v_lshl_add_u32 v{self.vQFa}, v0, 4, s{sT0}
            v_mul_u32_u24 v22, 192, v18
            v_and_b32 v23, 0x33, v0
            v_bfe_u32 v25, v0, 2, 1
            v_lshl_add_u32 v23, v25, 3, v23
            v_lshl_add_u32 v23, v21, 2, v23
            v_lshlrev_b32 v23, 4, v23
            v_and_b32 v24, 15, v0
            v_lshlrev_b32 v{self.vGa}, 7, v17
            v_lshlrev_b32 v24, 4, v24
            v_lshl_add_u32 v24, v17, 8, v24
            v_lshl_add_u32 v24, v19, 17, v24
            v_add_u32 v24, 1024, v24
            v_lshlrev_b32 v26, 4, v0
            s_lshl_b32 s{sT0}, s{sT}, 4""")
        for k in range(3):
            a(f"""v_add_u32 v27, {64 * k}, v0
                v_mul_u32_u24 v28, 2731, v27
                v_lshrrev_b32 v28, 15, v28
                v_mul_u32_u24 v29, 12, v28
                v_sub_u32 v29, v27, v29
                v_add_u32 v28, s{sT0}, v28
                v_mul_u32_u24 v28, 2752, v28
                v_lshl_add_u32 v{self.vF + k}, v29, 4, v28""")
        a(f"""v_add_u32 v{self.vFlo}, v22, v20
            v_add_u32 v{self.vFhi}, 0x10000, v{self.vFlo}
            v_mov_b32 v{self.vCnt}, {CNT}
            v_lshl_add_u32 v{self.v1_}, v26, 3, 4""")
        for i in range(4):
            a(f"v_mov_b32 v{100 + i}, 0")
        a(f"ds_write_b128 v{self.vCnt}, v[100:103]\nds_write_b128 v{self.vCnt}, v[100:103] offset:16\nds_write_b128 v{self.vCnt}, v[100:103] offset:32\ns_waitcnt lgkmcnt(0)")
        skip = self.lab("nogo")
        a(f"""s_lshr_b32 s{sT0}, s2, 5
            s_or_b32 s{sT0}, s{sT0}, s{sW}
            s_cmp_lg_u32 s{sT0}, 0
            s_cbranch_scc1 {skip}
            s_and_b32 s{sT0}, s2, 1
            s_lshl_b32 s{sT0}, s{sT0}, 7
            s_atomic_add s{sONE}, {sr(sDBG, 2)}, s{sT0}
            s_waitcnt lgkmcnt(0)""")
        a.label(skip)
        if self.cfg["tf"]:
            assert self.cfg["rbits"] == 3 and self.cfg["rot"] in (3, 4)
            n = self.cfg["tf"]
            up, done = self.lab("tfu"), self.lab("tfd")
            a(f"""v_lshrrev_b32 v27, 8, v26
                v_add_u32 v27, s{sDEL}, v27
                v_and_b32 v27, 3, v27
                v_bfe_u32 v28, v26, 7, 1
                v_lshl_add_u32 v27, v27, 6, v28
                v_mul_u32_u24 v27, 2752, v27
                v_bfe_u32 v28, v26, 4, 3
                v_lshlrev_b32 v28, 7, v28
                v_min_u32 v28, 764, v28
                v_add_u32 v27, v27, v28
                s_lshr_b32 s{sT0}, s{sT}, 1
                s_lshl_b32 s{sT0}, s{sT0}, 7
                s_lshr_b32 s{sT0 + 1}, s2, 3
                s_add_u32 s{sT0}, s{sT0}, s{sT0 + 1}
                s_mul_i32 s{sT0}, s{sT0}, 5504
                s_lshr_b32 s{sT0 + 1}, s{sC}, 2
                s_mul_i32 s{sT0 + 1}, s{sT0 + 1}, 768
                s_add_u32 s{sT0}, s{sT0}, s{sT0 + 1}
                s_mov_b32 m0, {CNT + 64}
                s_mov_b32 exec_lo, {hex(0x7f7f7f7f & ((1 << min(32, 16 * n)) - 1))}
                s_mov_b32 exec_hi, {hex(0x7f7f7f7f & ((1 << max(0, 16 * n - 32)) - 1))}
                s_bitcmp1_b32 s{sT}, 0
                s_cbranch_scc1 {up}
                buffer_load_dword v27, {sr(sWG, 4)}, s{sT0} offen lds
                s_branch {done}""")
            a.label(up)
            a(f"buffer_load_dword v27, {sr(sWU, 4)}, s{sT0} offen lds")
            a.label(done)
            a("s_mov_b64 exec, -1")

    def pass_a(self, isv):
        a = self.a
        a.lg.reset()
        a.vm.reset()
        a(f"v_mov_b32 v{self.vST}, v{24 if isv else 23}")
        XR, ACC, W = self.XR, self.ACC, self.WS_
        sB = sT0 + 2

        def reads(g):
            i, s = divmod(g, 4)
            B = slot(i)
            self.dsr("ds_read_b128", XR + 4 * g, 4, self.vXA + s, self.vXAh + s, B, ("x", g))
            for ct in range(2):
                for u in range(2):
                    self.dsr("ds_read_b64_tr_b16", W + 8 * (g % 3) + 4 * ct + 2 * u, 2, self.vWk + ct, self.vWkh + ct,
                             B + 16384 + (16 * s + 4 * u) * 128, ("w", g, ct))

        def comp(g):
            for ct in range(2):
                a.lg.wait(("x", g), ("w", g, ct))
                wf, xf = vr(W + 8 * (g % 3) + 4 * ct, 4), vr(XR + 4 * g, 4)
                d = vr(ACC + 16 * ct, 16)
                A, Bm = (xf, wf) if isv else (wf, xf)
                a(f"v_mfma_f32_32x32x16_bf16 {d}, {A}, {Bm}, {d if g else 0}")

        for i in range(8):
            g0 = 4 * i
            if i:
                a.lg.drain()
            a("s_barrier")
            if i == 0:
                self.stamp("BA0", "M")
            reads(g0)
            reads(g0 + 1)
            if i:
                comp(g0 - 1)
            reads(g0 + 2)
            if i == 2:
                a(f"""s_lshr_b32 s{sB}, s{sC}, 1
                    s_lshl_b32 s{sB}, s{sB}, 19
                    s_lshl_b32 s{sB + 1}, s{sR}, 2
                    s_add_u32 s{sB + 1}, s{sB + 1}, s{sT}
                    s_lshl_b32 s{sB + 1}, s{sB + 1}, 11
                    s_add_u32 s{sB}, s{sB}, s{sB + 1}""")
            if i == 5:
                a(f"buffer_load_dword v{self.vGo}, v{self.vGa}, {sr(sDBG, 4)}, 0 offen sc1")
            comp(g0)
            reads(g0 + 3)
            comp(g0 + 1)
            comp(g0 + 2)
        comp(31)
        a("s_nop 10")
        for ct in range(2):
            for q in range(2):
                d = 112 + 8 * ct + 4 * q
                for k in range(4):
                    s = ACC + 16 * ct + 8 * q + 2 * k
                    a(f"v_cvt_pk_bf16_f32 v{d + k}, v{s}, v{s + 1}")
                if isv:
                    a(f"buffer_store_dwordx4 {vr(d, 4)}, v{self.vST}, {sr(sWS, 4)}, s{sB} offen offset:{512 * q} sc1")
                    if q == 1 and ct == 0:
                        a(f"s_add_u32 s{sB}, s{sB}, 262144")
                else:
                    a(f"buffer_store_dwordx4 {vr(d, 4)}, v{self.vST}, {sr(sWS, 4)}, s{sB} offen sc1")
                    a(f"s_add_u32 s{sB}, s{sB}, 131072")
        self.stamp("KVst", "M")

    def kv_flag(self):
        a = self.a
        ok = self.lab("go")
        a(f"""s_lshr_b32 s{sT0}, s{sC}, 1
            s_lshl_b32 s{sT0}, s{sT0}, 4
            s_add_u32 s{sT0}, s{sT0}, s{sR}
            s_lshl_b32 s{sT0}, s{sT0}, 7
            s_add_u32 s{sT0}, s{sT0}, {CKV}
            s_waitcnt vmcnt({4 + len(a.vm.q)})
            v_cmp_gt_u32 vcc, 16, v{self.vGo}
            s_cbranch_vccz {ok}""")
        q = list(a.vm.q)
        self.poll(self.vGa, "0", self.vGo, sDBG)
        a.vm.q = q
        a.label(ok)

    def issue_f(self, i):
        a = self.a
        sCh, sO, sFB, sLf = sT0 + 4, sT0 + 5, sT0 + 6, sT0 + 7
        if i == 0:
            a(f"s_mul_i32 s{sFB}, s{sC}, 192\ns_mul_i32 s{sLf}, s{sT}, 3072")
        self.chunk(sCh, i)
        a(f"s_mul_i32 s{sO}, s{sCh}, 176128\ns_add_u32 s{sO}, s{sO}, s{sFB}")
        for m in range(2):
            for k in range(3):
                a(f"s_add_u32 m0, s{sLf}, {slot(i) + 12288 * m + 1024 * k}\ns_nop 0")
                a(f"buffer_load_dwordx4 v{self.vF + k}, {sr(sWG if m == 0 else sWU, 4)}, s{sO} offen {self.cfg['fpol']} lds")
                a.vm.issue(("F", i))

    def touch(self, i, vA):
        a = self.a
        sA = sT0 + 8
        a(f"""s_lshr_b32 s{sA}, s2, 3
            s_lshl_b32 s{sA}, s{sA}, 2
            s_add_u32 s{sA}, s{sA}, s{sT}
            s_mul_i32 s{sA}, s{sA}, {11008 if i < 6 else 4096}
            s_add_u32 s{sA}, s{sA}, {2048 * (i if i < 6 else i - 6)}
            s_mov_b32 m0, {CNT + 64}
            s_mov_b64 exec, {'0x3f' if i == 5 else '0xffff'}
            buffer_load_dword v{vA}, {sr(sWD if i < 6 else sWO, 4)}, s{sA} offen lds
            s_mov_b64 exec, -1""")
        a.vm.issue("touch")

    def pass_q(self):
        a = self.a
        XR, W, QACC = self.XR, self.WS_, 64
        a.lg.reset()
        a.vm.reset()
        flag_at, f0_at = self.cfg["kvflag_at"], self.cfg["f0_at"]

        def reads(g):
            for u in range(2):
                self.dsr("ds_read_b64_tr_b16", W + 4 * (g % 6) + 2 * u, 2, self.vQa, None, (16 * g + 4 * u) * 64, g)

        def hooks(j):
            if j == flag_at:
                if a.vm.q:
                    a(f"s_cmp_eq_u32 s{sC}, 15\ns_cbranch_scc0 L_kvw\ns_waitcnt vmcnt(0)")
                    a.label("L_kvw")
                a(f"s_waitcnt vmcnt({len(a.vm.q)})")
                self.stamp("KVack", "M")
                self.signal(sT0)
                self.stamp("KVflag", "M")
            if j == f0_at:
                skip = self.lab("nof0")
                a(f"s_cmp_eq_u32 s{sC}, 15\ns_cbranch_scc1 {skip}")
                self.issue_f(0)
                a.label(skip)
            if self.cfg["f1_early"] and j == self.cfg["f1_early"]:
                skip = self.lab("nof1")
                a(f"s_cmp_eq_u32 s{sC}, 15\ns_cbranch_scc1 {skip}")
                self.issue_f(1)
                a.label(skip)

        if self.cfg["qs"] % 10:
            a("s_barrier")
        self.kv_flag()
        hooks(-2)
        hooks(-1)
        self.stamp("F0iss", "M")
        a("s_barrier")
        self.stamp("BQ", "M")
        for g in range(6):
            reads(g)
        nxt = 6
        for g in range(32):
            a.lg.wait(g)
            d = vr(QACC, 16)
            a(f"v_mfma_f32_32x32x16_bf16 {d}, {vr(W + 4 * (g % 6), 4)}, {vr(XR + 4 * g, 4)}, {d if g else 0}")
            if nxt < 32:
                reads(nxt)
                nxt += 1
            hooks(g)
        a(f"v_mov_b32 v98, {f32(0.25 * LOG2E)}\ns_nop 10")
        for k in range(8):
            a(f"v_pk_mul_f32 {vr(QACC + 2 * k, 2)}, {vr(QACC + 2 * k, 2)}, v[98:99] op_sel_hi:[1,0]")
        for hd in range(2):
            for k in range(4 * hd, 4 * hd + 4):
                a(f"v_cvt_pk_bf16_f32 v{QACC + k}, v{QACC + 2 * k}, v{QACC + 2 * k + 1}")
            a(f"ds_write_b128 v{self.vQFa}, {vr(QACC + 4 * hd, 4)} offset:{4096 * hd}")
        self.lds_signal(self.vCnt, self.v1_, 16)
        self.stamp("Qdone", "M")
        hooks(32)

    def pass_f(self):
        a = self.a
        XR, ACC, W = self.XR, self.ACC, self.WS_
        N = 192

        def reads(j):
            g, t = divmod(j, 6)
            i, s = divmod(g, 4)
            for u in range(2):
                self.dsr("ds_read_b64_tr_b16", W + 4 * (j % 6) + 2 * u, 2, self.vFlo, self.vFhi,
                         slot(i) + 12288 * (t & 1) + (16 * s + 4 * u) * 192 + 64 * (t >> 1), j)

        gf, gat = self.cfg["gate_f"], self.cfg.get("gate_at", 8)

        def landed(i):
            a.vm.wait(("F", i))
            self.lds_signal(self.vCnt, self.v1_, 0)
            if i + 1 != gf:
                more(i)

        def more(i):
            if i + 1 < 8 and not (i == 0 and self.cfg["f1_early"]):
                self.issue_f(i + 1)
            if self.cfg["touch"] and i + 1 >= gf:
                for k in (range(i + 1) if i + 1 == gf else [i]):
                    self.touch(k, self.v1_)

        landed(0)
        self.lds_probe(self.vCnt, self.vTmp, 0)
        self.lds_check(self.vCnt, self.vTmp, 0, 16)
        self.stamp("F0", "M")
        for j in range(6):
            reads(j)
        sig = self.cfg["sig_at"]
        for j in range(N):
            g, t = divmod(j, 6)
            i, jj = divmod(j, 24)
            a.lg.wait(j)
            d = vr(ACC + 16 * t, 16)
            a(f"v_mfma_f32_32x32x16_bf16 {d}, {vr(W + 4 * (j % 6), 4)}, {vr(XR + 4 * g, 4)}, {d if g else 0}")
            if jj == 23:
                self.stamp(f"f{i}", "M")
            if gf and j == gat - 2:
                self.lds_probe(self.vCnt, self.vTmp, 20)
            if gf and j == gat:
                self.lds_check(self.vCnt, self.vTmp, 20, 4)
                more(gf - 1)
            if i < 7:
                if jj == (sig if i or gf != 1 else 14):
                    landed(i + 1)
                if jj == 15:
                    self.lds_probe(self.vCnt, self.vTmp, 0)
                if jj == 18:
                    self.lds_check(self.vCnt, self.vTmp, 0, 16 * (i + 2))
            if j + 6 < N:
                reads(j + 6)
        self.lds_signal(self.vCnt, self.v1_, 0)
        self.stamp("Fdone", "M")

    def gelu(self):
        a = self.a
        ACC = self.ACC
        c0, c1, T, OUT, vOff = 130, 132, 136, 168, 134
        sT0 = globals()["sT0"] + 12
        nw = [0]

        def stage(j):
            if j and nw[0] < self.cfg["wpre"]:
                self.issue_w(nw[0])
                nw[0] += 1
                self.cap()

        k0 = -2.0 * 0.7978845608028654 * LOG2E
        self.lane(vOff)
        a(f"""v_mov_b32 v{c0}, {f32(k0)}
            v_mov_b32 v{c0 + 1}, {f32(k0)}
            v_mov_b32 v{c1}, {f32(k0 * 0.044715)}
            v_mov_b32 v{c1 + 1}, {f32(k0 * 0.044715)}
            v_lshlrev_b32 v{vOff}, 4, v{vOff}
            s_lshl_b32 s{sT0}, s{sR}, 2
            s_add_u32 s{sT0}, s{sT0}, s{sT}
            s_mul_i32 s{sT0}, s{sT0}, 86
            s_mul_i32 s{sT0 + 1}, s{sC}, 6
            s_add_u32 s{sT0}, s{sT0}, s{sT0 + 1}
            s_lshl_b32 s{sT0}, s{sT0}, 10
            s_add_u32 s{sT0}, s{sT0}, {WS_H}""")
        for j in range(3):
            G, U = ACC + 32 * j, ACC + 32 * j + 16
            p = lambda b, k: vr(b + 2 * k, 2)
            for k in range(8):
                a(f"v_pk_mul_f32 {p(T, k)}, {p(G, k)}, {p(G, k)}")
            stage(j)
            for k in range(8):
                a(f"v_pk_fma_f32 {p(T, k)}, {p(T, k)}, {vr(c1, 2)}, {vr(c0, 2)}")
            stage(j)
            for k in range(8):
                a(f"v_pk_mul_f32 {p(T, k)}, {p(T, k)}, {p(G, k)}")
            stage(j)
            for k in range(16):
                a(f"v_exp_f32 v{T + k}, v{T + k}")
            stage(j)
            for k in range(8):
                a(f"v_pk_mul_f32 {p(G, k)}, {p(G, k)}, {p(U, k)}")
            stage(j)
            for k in range(8):
                a(f"v_pk_add_f32 {p(T, k)}, {p(T, k)}, 1.0 op_sel_hi:[1,0]")
            stage(j)
            for k in range(16):
                a(f"v_rcp_f32 v{T + k}, v{T + k}")
            if j == 0:
                self.lds_probe(self.vCnt, self.vTmp, 0)
            a(f"""s_cmp_lt_u32 s{sT0 + 1}, {86 - 2 * j}
                s_cselect_b32 s{sT0 + 2}, s{sT0}, {OOB}""")
            for k in range(8):
                a(f"v_pk_mul_f32 {p(G, k)}, {p(G, k)}, {p(T, k)}")
            for q in range(2):
                d = OUT + 8 * j + 4 * q
                for k in range(4):
                    a(f"v_cvt_pk_bf16_f32 v{d + k}, v{G + 8 * q + 2 * k}, v{G + 8 * q + 2 * k + 1}")
                a(f"buffer_store_dwordx4 {vr(d, 4)}, v{vOff}, {sr(sWS, 4)}, s{sT0 + 2} offen offset:{1024 * q} sc1")
                a.vm.issue("H")
            a(f"s_add_u32 s{sT0}, s{sT0}, 2048")
            if j == 0:
                self.lds_check(self.vCnt, self.vTmp, 0, 144)
        assert nw[0] == self.cfg["wpre"]

    def gate(self):
        a = self.a
        XR, GB, Z, vO = self.XR, 32, 24, 28
        sCh = sT0 + 4
        a("s_waitcnt vmcnt(0)")
        a.vm.reset()
        self.lane(vO + 1)
        a(f"v_lshrrev_b32 v{vO}, 5, v{vO + 1}\nv_lshlrev_b32 v{vO}, 4, v{vO}")
        for k in range(4):
            a(f"v_mov_b32 v{Z + k}, 0")
        for half in range(2):
            for i in range(4 * half, 4 * half + 4):
                self.chunk(sCh, i)
                a(f"s_lshl_b32 s{sCh}, s{sCh}, 7")
                for s in range(4):
                    a(f"buffer_load_dwordx4 {vr(GB + 16 * (i & 3) + 4 * s, 4)}, v{vO}, {sr(sGW, 4)}, s{sCh} offen offset:{32 * s}")
            if self.cfg["touch"]:
                for i in range(4 * half, 4 * half + 4):
                    self.touch(i, self.v1_)
            a("s_waitcnt vmcnt(0)")
            for k in range(64):
                a(f"v_dot2c_f32_bf16 v{Z + (k & 3)}, v{XR + 64 * half + k}, v{GB + k}")
        a(f"""s_lshl_b32 s{sT0}, s{sR}, 2
            s_add_u32 s{sT0}, s{sT0}, s{sT}
            s_lshl_b32 s{sT0}, s{sT0}, 7
            s_add_u32 s{sT0}, s{sT0}, {WS_G}
            v_add_f32 v{Z}, v{Z}, v{Z + 1}
            v_add_f32 v{Z + 2}, v{Z + 2}, v{Z + 3}
            v_add_f32 v{Z}, v{Z}, v{Z + 2}
            v_mov_b32 v{Z + 1}, v{Z}
            v_lshlrev_b32 v{vO}, 2, v{vO + 1}
            s_nop 0
            v_permlane32_swap_b32 v{Z}, v{Z + 1}
            s_nop 1
            v_add_f32 v{Z}, v{Z}, v{Z + 1}
            s_mov_b32 s{sT0 + 12}, s{sT0}""")
        a.lg.reset()
        self.lds_probe(self.vCnt, self.vTmp, 16)
        self.lds_check(self.vCnt, self.vTmp, 16, 16)
        self.ffn2_setup()
        for k in range(self.cfg["wpre"]):
            self.issue_w(k)
            self.cap()
        a(f"""s_mov_b32 exec_hi, 0
            buffer_store_dword v{Z}, v{vO}, {sr(sWS, 4)}, s{sT0 + 12} offen sc1
            s_mov_b64 exec, -1""")

    def ffn2_setup(self):
        a = self.a
        ACC, HS, WB = 32, 128, 96
        vL, vD, vH, vA0, vA1, vOw, vOt, vDump, vP, vZ, vD2, vH2 = range(8, 20)
        self.vL, self.vDump, self.vZ, self.vA0, self.vA1, self.vP = vL, vDump, vZ, vA0, vA1, vP
        sRing, sS0, sS1, sWc, sW0, sWe, sHc, sH0, sHe, sHl, sFl, sRow = range(sT0, sT0 + 12)
        self.sRow = sRow
        NS, PD, NR, NH, CAP = 22, self.cfg["pd"], 16, 16, self.cfg["cap"]
        self.lane(vL)
        a(f"""s_lshl_b32 s{sRing}, s{sT}, 15
            v_lshrrev_b32 v20, 3, v{vL}
            v_and_b32 v21, 7, v{vL}
            v_bfe_u32 v22, v{vL}, 4, 1
            v_lshlrev_b32 v23, 2, v22
            v_xor_b32 v21, v21, v23
            v_lshlrev_b32 v21, 4, v21
            v_lshl_add_u32 v{vD}, v20, 10, v21
            v_add_u32 v{vD2}, 7168, v{vD}
            s_and_b32 s{sS0}, s{sRB}, 3
            s_lshl_b32 s{sS0}, s{sS0}, 1
            s_add_u32 s{sS0}, s{sS0}, s{sCB}
            s_and_b32 s{sS0}, s{sS0}, {7 if self.cfg['rot2'] else 0}
            s_mul_i32 s{sS0}, s{sS0}, 11
            s_lshr_b32 s{sS0}, s{sS0}, 2
            s_mul_i32 s{sS1}, s{sT}, {NS}
            s_lshl_b32 s{sW0}, s{sS1}, 14
            s_lshl_b32 s{sWc}, s{sCB}, 7
            s_add_u32 s{sW0}, s{sW0}, s{sWc}
            s_add_u32 s{sWe}, s{sW0}, {NS * 16384}
            s_lshl_b32 s{sWc}, s{sS0}, 14
            s_add_u32 s{sWc}, s{sWc}, s{sW0}
            s_mul_i32 s{sHl}, s{sRB}, 172
            s_add_u32 s{sH0}, s{sHl}, s{sS1}
            s_lshl_b32 s{sH0}, s{sH0}, 10
            s_add_u32 s{sH0}, s{sH0}, {WS_H}
            s_add_u32 s{sHe}, s{sH0}, {NS * 1024}
            s_lshl_b32 s{sHc}, s{sS0}, 10
            s_add_u32 s{sHc}, s{sHc}, s{sH0}
            s_lshl_b32 s{sHl}, s{sHl}, 10
            s_add_u32 s{sHl}, s{sHl}, {WS_H + 86 * 1024}
            s_lshl_b32 s{sFl}, s{sR}, 1
            s_lshr_b32 s{sS0}, s{sT}, 1
            s_add_u32 s{sFl}, s{sFl}, s{sS0}
            s_lshl_b32 s{sFl}, s{sFl}, 9
            s_add_u32 s{sFl}, s{sFl}, {CH}
            s_mov_b32 s{sRow}, 0x62223111
            s_cmp_ge_u32 s{sC}, 8
            s_cselect_b32 s{sRow}, 0xf8888444, s{sRow}
            s_and_b32 s{sS0}, s{sC}, 7
            s_lshl_b32 s{sS0}, s{sS0}, 2
            s_lshr_b32 s{sRow}, s{sRow}, s{sS0}""")

    def cap(self):
        a, CAP = self.a, self.cfg["cap"]
        if len(a.vm.q) > CAP:
            a.vm.q = a.vm.q[len(a.vm.q) - CAP:]
            a(f"s_waitcnt vmcnt({CAP})")

    def issue_w(self, s):
        a = self.a
        vD, vD2 = 9, 18
        sRing, sS0, sS1, sWc, sW0, sWe = range(sT0, sT0 + 6)
        a(f"s_add_u32 m0, s{sRing}, {(s if s < 16 else s - 8) * 2048}")
        if s:
            a(f"s_add_u32 s{sWc}, s{sWc}, 16384\ns_cmp_eq_u32 s{sWc}, s{sWe}\ns_cselect_b32 s{sWc}, s{sW0}, s{sWc}")
        else:
            a("s_nop 0")
        a(f"buffer_load_dwordx4 v{vD}, {sr(sWD, 4)}, s{sWc} offen lds")
        a(f"buffer_load_dwordx4 v{vD2}, {sr(sWD, 4)}, s{sWc} offen offset:1024 lds")
        a.vm.issue(("w", s))
        a.vm.issue(("w", s))

    def ffn2(self):
        a = self.a
        ACC, HS, WB = 32, 128, 96
        vL, vD, vH, vA0, vA1, vOw, vOt, vDump, vP, vZ, vD2, vH2 = range(8, 20)
        self.vL, self.vDump, self.vZ, self.vA0, self.vA1, self.vP = vL, vDump, vZ, vA0, vA1, vP
        sRing, sS0, sS1, sWc, sW0, sWe, sHc, sH0, sHe, sHl, sFl, sRow = range(sT0, sT0 + 12)
        self.sRow = sRow
        NS, PD, NR, NH, CAP = 22, self.cfg["pd"], 16, 16, self.cfg["cap"]
        cap, issue_w = self.cap, self.issue_w

        def setup2():
            a(f"""v_lshlrev_b32 v{vP}, 4, v{vL}
                s_and_b32 s{sS0}, s{sT}, 1
                s_mul_i32 s{sS0}, s{sS0}, 88064
                v_add_u32 v{vH}, s{sS0}, v{vP}
                s_sub_u32 s{sS0}, 88064, s{sS0}
                v_add_u32 v{vH2}, s{sS0}, v{vP}
                v_add_u32 v{vDump}, s{sRing}, v{vP}
                v_lshrrev_b32 v20, 5, v{vL}
                v_bfe_u32 v21, v{vL}, 2, 2
                v_lshl_add_u32 v20, v20, 2, v21
                v_and_b32 v21, 1, v{vL}
                v_lshlrev_b32 v21, 2, v21
                v_lshl_add_u32 v21, v22, 1, v21
                v_bfe_u32 v23, v{vL}, 1, 1
                v_add_u32 v21, v21, v23
                v_lshlrev_b32 v21, 3, v21
                v_lshl_add_u32 v21, v20, 7, v21
                v_bfe_u32 v23, v{vL}, 3, 1
                v_lshl_add_u32 v21, v23, 6, v21
                v_add_u32 v{vA0}, s{sRing}, v21
                s_lshr_b32 s{sS0}, s{sT}, 1
                s_lshl_b32 s{sS0}, s{sS0}, 6
                v_xor_b32 v{vA0}, s{sS0}, v{vA0}
                v_xor_b32 v{vA1}, 64, v{vA0}
                s_lshl_b32 s{sS0}, s{sT}, 2
                v_add_u32 v{vOw}, s{sS0}, v{self.vCnt}
                v_and_b32 v{vZ}, 31, v{vL}
                v_lshlrev_b32 v{vZ}, 2, v{vZ}
                s_setprio {self.cfg['prio_m']}""")

        a.lg.reset()
        a.vm.reset()
        a.vm.issue("H")

        wslot = lambda s: s if s < NR else s - 8

        def issue_wo(s):
            a(f"s_add_u32 m0, s{sRing}, {s * 2048}")
            if s == 0:
                a(f"""s_lshl_b32 s{sRow}, s{sT}, 17
                    s_lshl_b32 s{sS1}, s{sCB}, 7
                    s_add_u32 s{sRow}, s{sRow}, s{sS1}""")
            else:
                a(f"s_add_u32 s{sRow}, s{sRow}, 16384")
            a(f"buffer_load_dwordx4 v{vD}, {sr(sWO, 4)}, s{sRow} offen lds")
            a(f"buffer_load_dwordx4 v{vD2}, {sr(sWO, 4)}, s{sRow} offen offset:1024 lds")
            a.vm.issue("wo")
            a.vm.issue("wo")

        def issue_h(s):
            if s >= NS:
                return
            if s:
                a(f"""s_add_u32 s{sHc}, s{sHc}, 1024
                    s_cmp_eq_u32 s{sHc}, s{sHe}
                    s_cselect_b32 s{sHc}, s{sH0}, s{sHc}""")
            a(f"s_cmp_lt_u32 s{sHc}, s{sHl}\ns_cselect_b32 s{sS0}, s{sHc}, {OOB}")
            for tt in range(2):
                a(f"buffer_load_dwordx4 {vr(HS + 8 * (s % NH) + 4 * tt, 4)}, v{(vH, vH2)[tt]}, {sr(sWS, 4)}, s{sS0} offen sc1")
                a.vm.issue(("h", s))

        wreg = lambda s: (WB + 8 * (s % 3)) if s < 16 else (104, 112, 120, 96, 176, 184)[s - 16]

        def reads(s):
            a.vm.wait(("w", s))
            for ct in range(2):
                for u in range(2):
                    self.dsr("ds_read_b64_tr_b16", wreg(s) + 4 * ct + 2 * u, 2, (vA0, vA1)[ct], None,
                             wslot(s) * 2048 + 1024 * u, (s, ct))

        wpre = self.cfg["wpre"]
        setup2()
        for s in range(wpre, min(NR, wpre + 2)):
            issue_w(s)
        a.vm.wait("H")
        for k in range(4):
            skip = self.lab("nosig")
            a(f"s_bitcmp1_b32 s{sRow}, {k}\ns_cbranch_scc0 {skip}")
            self.signal(sFl)
            a.label(skip)
            a(f"s_add_u32 s{sFl}, s{sFl}, 128")
        self.stamp("Hflag", "M")
        for s in range(wpre + 2, NR):
            issue_w(s)
            cap()
        self.stamp("W0", "M")
        a(f"""s_lshl_b32 s{sFl}, s{sRB}, 2
            s_add_u32 s{sFl}, s{sFl}, s{sT}
            s_lshl_b32 s{sFl}, s{sFl}, 7
            s_add_u32 s{sFl}, s{sFl}, {CH}
            s_cmp_eq_u32 s{sT}, 1
            s_cselect_b32 s{sRow}, 12, 10""")
        self.spoll(sFl, f"s{sRow}")
        self.stamp("Hpoll", "M")
        for s in range(PD):
            issue_h(s)
        a(f"""s_lshl_b32 s{sFl}, s{sRB}, 1
            s_and_b32 s{sS0}, s{sT}, 1
            s_add_u32 s{sFl}, s{sFl}, s{sS0}
            s_lshl_b32 s{sFl}, s{sFl}, 7
            s_add_u32 s{sFl}, s{sFl}, {WS_G}
            buffer_load_dword v{vZ}, v{vZ}, {sr(sWS, 4)}, s{sFl} offen sc1""")
        a.vm.issue("z")
        reads(0)
        reads(1)
        nh = PD
        hold = NS - self.cfg["defer"]
        assert hold <= 16 or hold == NS

        def mm(s, ct, tt):
            a.vm.wait(("h", s))
            a.lg.wait((s, ct))
            d = vr(ACC + 32 * tt + 16 * ct, 16)
            a(f"v_mfma_f32_32x32x16_bf16 {d}, {vr(wreg(s) + 4 * ct, 4)}, {vr(HS + 8 * (s % NH) + 4 * tt, 4)}, {d if s else 0}")

        for s in range(17):
            if s == hold or s == 16:
                while nh < NS:
                    issue_h(nh)
                    nh += 1
                    cap()
            if s == hold:
                self.stamp("hold", "M")
                self.lds_probe(vOw, self.vTmp, 32)
                self.lds_check(vOw, self.vTmp, 32, 1, nap=2)
                self.stamp("resume", "M")
            if s == 16:
                break
            self.stamp(f"s{s}", "M")
            for k in range(4):
                mm(s, *divmod(k, 2))
                if k == 0 and nh < NS:
                    issue_h(nh)
                    nh += 1
                if k == 1:
                    reads(s + 2)
                if k == 2:
                    if s < 8:
                        issue_wo(s)
                    elif s < 14:
                        issue_w(s + 8)
                    elif nh < NS:
                        issue_h(nh)
                        nh += 1
                if k == 3 and s == 11:
                    a.vm.wait("wo")
                    self.lds_signal(self.vCnt, self.v1_, 24)
                if k == 3 and s == 15:
                    reads(18)
        self.stamp("s16", "M")
        self.final_setup()
        for n, (ct, tt) in enumerate(((0, 1), (1, 0), (1, 1), (0, 0))):
            for s in range(16, NS):
                mm(s, ct, tt)
                if n == 0 and s < 19:
                    reads(s + 3)
                if n == 0 and s == 18:
                    for _ in range(2):
                        self.lds_probe(self.vCnt, self.vTmp, 24)
                if n == 1 and s == 16:
                    a.lg.wait((21, 1))
                if n and s >= 18:
                    k = (8, 4, 12)[n - 1] + s - 18
                    if s == 18:
                        a("s_nop 8" if n < 3 else "s_nop 3")
                    a(f"ds_write_b128 v{vDump}, {vr(ACC + 4 * k, 4)} offset:{16384 + 1024 * k}")
                if n == 3 and s == 16:
                    self.early_o()
        self.lds_signal(self.vCnt, self.v1_, 4)
        self.stamp("s22", "M")

    def final_setup(self):
        a = self.a
        sFl, sOut, sO, sA, sTT, sKh, sF2, sG = range(sT0 + 1, sT0 + 9)
        a(f"""s_and_b32 s{sTT}, s{sT}, 1
            s_lshr_b32 s{sKh}, s{sT}, 1
            s_lshl_b32 s{sFl}, s{sRB}, 1
            s_add_u32 s{sFl}, s{sFl}, s{sKh}
            s_lshl_b32 s{sFl}, s{sFl}, 8
            s_add_u32 s{sFl}, s{sFl}, {CO}
            s_add_u32 s{sF2}, s{sFl}, 128
            s_mov_b32 s{sPV}, 0
            s_mov_b32 s{sA}, 0
            s_atomic_add s{sPV}, {sr(sWS, 2)}, s{sFl} glc
            s_atomic_add s{sA}, {sr(sWS, 2)}, s{sF2} glc
            s_lshl_b32 s{sOut}, s{sRB}, 1
            s_add_u32 s{sOut}, s{sOut}, s{sTT}
            s_lshl_b32 s{sO}, s{sOut}, 5
            s_lshl_b32 s{sG}, s{sKh}, 4
            s_add_u32 s{sO}, s{sO}, s{sG}
            s_lshl_b32 s{sO}, s{sO}, 10
            s_add_u32 s{sO}, s{sO}, {WS_O}
            s_lshl_b32 s{sOut}, s{sOut}, 15
            s_lshl_b32 s{sG}, s{sCB}, 7
            s_add_u32 s{sOut}, s{sOut}, s{sG}
            s_lshl_b32 s{sG}, s{sKh}, 6
            s_add_u32 s{sOut}, s{sOut}, s{sG}""")

    def oloads(self, h, sO):
        a = self.a
        for s in range(8 * h, 8 * h + 8):
            if s % 8 == 4:
                a(f"s_add_u32 s{sO}, s{sO}, 4096")
            a(f"buffer_load_dwordx4 {vr(192 + 4 * s, 4)}, v{self.vP}, {sr(sWS, 4)}, s{sO} offen offset:{1024 * (s % 4)} sc1")
            a.vm.issue(s)

    def early_o(self):
        a = self.a
        sFl, sOut, sO, sA, sTT, sKh, sF2, sG, sE, sX = range(sT0 + 1, sT0 + 11)
        skip = self.lab("noearly")
        a.vm.drain()
        a(f"""s_waitcnt lgkmcnt(0)
            s_min_u32 s{sE}, s{sPV}, s{sA}
            s_lshr_b32 s{sE}, s{sE}, 3
            s_cbranch_scc0 {skip}
            s_mov_b32 s{sX}, s{sO}""")
        self.oloads(0, sX)
        a(f"s_add_u32 s{sX}, s{sX}, 4096")
        self.oloads(1, sX)
        a.label(skip)
        a.vm.reset()

    def final(self):
        a = self.a
        B, PT, OWN, OTH, OF, WO = 32, 48, 96, 112, 192, 128
        vL, vH, vX, vZ, vA0, vA1 = self.vL, self.vP, self.vDump, self.vZ, self.vA0, self.vA1
        vOut, vG, vP1, vP2, vP3, vB0, vB1 = 1, 2, 9, 10, 13, 18, 19
        sFl, sOut, sO, sA, sTT, sKh, sF2, sG, sE, sX = range(sT0 + 1, sT0 + 11)
        top, got, loaded, join = self.lab("opoll"), self.lab("ogot"), self.lab("oloaded"), self.lab("ojoin")
        a.lg.reset()
        a(f"""v_xor_b32 v{vP1}, 0x10000, v{vX}
            v_xor_b32 v{vP2}, 0x8000, v{vX}
            v_xor_b32 v{vP3}, 0x18000, v{vX}
            v_mul_f32 v{vG}, {f32(LOG2E)}, v{vZ}
            v_and_b32 v{vOut}, 31, v{vL}
            v_exp_f32 v{vG + 2}, v{vG}
            v_exp_f32 v{vG}, -v{vG}
            v_lshlrev_b32 v{vOut}, 10, v{vOut}
            v_add_f32 v{vG + 2}, 1.0, v{vG + 2}
            v_add_f32 v{vG}, 1.0, v{vG}
            v_rcp_f32 v{vG + 2}, v{vG + 2}
            v_rcp_f32 v{vG}, v{vG}
            v_lshrrev_b32 v{vL}, 5, v{vL}
            v_lshl_add_u32 v{vOut}, v{vL}, 5, v{vOut}""")
        self.lds_check(self.vCnt, self.vTmp, 24, 16)
        a(f"""s_mov_b32 s{sG}, 0
            s_cmp_lg_u32 s{sE}, 0
            s_cbranch_scc1 {loaded}
            s_mov_b32 s{sSPIN}, 200000""")
        a.label(top)
        a(f"""s_mov_b32 s{sPV}, 0
            s_mov_b32 s{sA}, 0
            s_atomic_add s{sPV}, {sr(sWS, 2)}, s{sFl} glc
            s_atomic_add s{sA}, {sr(sWS, 2)}, s{sF2} glc
            s_sub_u32 s{sSPIN}, s{sSPIN}, 1
            s_cbranch_scc1 {got}
            s_waitcnt lgkmcnt(0)
            s_max_u32 s{sE}, s{sPV}, s{sA}
            s_cmp_lt_u32 s{sE}, 8
            s_cbranch_scc1 {top}""")
        a.label(got)
        a(f"""s_waitcnt lgkmcnt(0)
            s_cmp_lt_u32 s{sPV}, 8
            s_cselect_b32 s{sG}, 1, 0
            s_lshl_b32 s{sX}, s{sG}, 13
            s_add_u32 s{sO}, s{sO}, s{sX}""")
        self.stamp("Opoll", "M")
        a.vm.reset()
        self.oloads(0, sO)
        a(f"""s_xor_b32 s{sO}, s{sO}, 0x3000
            s_min_u32 s{sE}, s{sPV}, s{sA}
            s_lshr_b32 s{sE}, s{sE}, 3
            s_cselect_b32 s{sX}, s{sO}, {OOB}""")
        self.oloads(1, sX)
        a.label(loaded)
        a(f"""s_xor_b32 s{sF2}, s{sG}, 1
            s_lshl_b32 s{sF2}, s{sF2}, 7
            s_add_u32 s{sF2}, s{sF2}, s{sFl}
            s_xor_b32 s{sG}, s{sG}, s{sTT}
            s_lshl_b32 s{sG}, s{sG}, 15
            v_xor_b32 v{vA0}, s{sG}, v{vA0}
            v_xor_b32 v{vA1}, s{sG}, v{vA1}
            v_xor_b32 v{vB0}, 0x8000, v{vA0}
            v_xor_b32 v{vB1}, 0x8000, v{vA1}""")
        a.lg.reset()

        def wreads(s):
            if s >= 16:
                return
            for ct in range(2):
                for u in range(2):
                    self.dsr("ds_read_b64_tr_b16", WO + 8 * (s % 8) + 4 * ct + 2 * u, 2, ((vA0, vA1), (vB0, vB1))[s >> 3][ct], None,
                             (s & 7) * 2048 + 1024 * u, ("wo", s))

        def step(s):
            a.vm.wait(s)
            a.lg.wait(("wo", s))
            w = WO + 8 * (s % 8)
            ot, ow = (vr(OTH, 16), vr(OWN, 16)) if s < 8 else (vr(PT + 32, 16), vr(PT + 16, 16))
            a(f"v_mfma_f32_32x32x16_bf16 {ot}, {vr(w + 4, 4)}, {vr(OF + 4 * s, 4)}, {ot if s % 8 else 0}")
            wreads(s + 2)
            if 2 <= s < 8:
                i, h = divmod(s - 2, 2)
                for k in range(8 * h, 8 * h + 4):
                    a(f"v_add_f32 v{B + k}, v{B + k}, v{PT + 16 * i + k}")
            a(f"v_mfma_f32_32x32x16_bf16 {ow}, {vr(w, 4)}, {vr(OF + 4 * s, 4)}, {ow if s % 8 else 0}")
            if s < 6:
                i, h = divmod(s, 2)
                for q in range(2 * h, 2 * h + 2):
                    self.dsr("ds_read_b128", PT + 16 * i + 4 * q, 4, (vP1, vP2, vP3)[i], None, 16384 + 4096 * (i + 1) + 1024 * q, ("wo", s + 2))
            if 2 <= s < 8:
                i, h = divmod(s - 2, 2)
                for k in range(8 * h + 4, 8 * h + 8):
                    a(f"v_add_f32 v{B + k}, v{B + k}, v{PT + 16 * i + k}")
            if 8 <= s < 12:
                for k in range(4 * (s - 8), 4 * (s - 8) + 4):
                    a(f"v_mul_f32 v{B + k}, v{B + k}, v{vG + 2}")

        self.lds_probe(self.vCnt, self.vTmp, 4)
        for s in range(2):
            wreads(s)
        self.lds_check(self.vCnt, self.vTmp, 4, 16)
        self.stamp("msync", "M")
        for s in range(8):
            step(s)
        q, le = list(a.vm.q), list(a.lg.q)
        a(f"s_cmp_lg_u32 s{sE}, 0\ns_cbranch_scc1 {join}")
        self.spoll(sF2, 8)
        a.vm.drain()
        self.oloads(1, sO)
        assert a.vm.q == q
        a.lg.q = le
        a.label(join)
        for s in range(8, 16):
            step(s)
        self.stamp("Omfma", "M")
        a("s_nop 10")
        for q in range(4):
            for k in range(4 * q, 4 * q + 4):
                a(f"v_add_f32 v{OTH + k}, v{OTH + k}, v{PT + 32 + k}")
            a(f"ds_write_b128 v{vX}, {vr(OTH + 4 * q, 4)} offset:{16384 + 1024 * q}")
        for k in range(8):
            a(f"v_pk_add_f32 {vr(OWN + 2 * k, 2)}, {vr(OWN + 2 * k, 2)}, {vr(PT + 16 + 2 * k, 2)}")
        for k in range(8):
            a(f"v_pk_fma_f32 {vr(B + 2 * k, 2)}, {vr(OWN + 2 * k, 2)}, {vr(vG, 2)}, {vr(B + 2 * k, 2)} op_sel_hi:[1,0,1]")
        a("s_waitcnt lgkmcnt(0)\ns_barrier")
        for q in range(4):
            a(f"ds_read_b128 {vr(PT + 4 * q, 4)}, v{vP1} offset:{16384 + 1024 * q}")
        for q in range(4):
            a(f"s_waitcnt lgkmcnt({3 - q})")
            for k in range(2):
                r = 4 * q + 2 * k
                a(f"v_pk_fma_f32 {vr(B + r, 2)}, {vr(PT + r, 2)}, {vr(vG, 2)}, {vr(B + r, 2)} op_sel_hi:[1,0,1]")
            for k in range(2):
                r = 4 * q + 2 * k
                a(f"v_cvt_pk_bf16_f32 v{64 + 2 * q + k}, v{B + r}, v{B + r + 1}")
            if q % 2 == 1:
                a(f"buffer_store_dwordx4 {vr(64 + 4 * (q // 2), 4)}, v{vOut}, {sr(sOUT, 4)}, s{sOut} offen offset:{16 * (q // 2)}")

    def build(self):
        a = self.a
        cfg = self.cfg
        self.prologue()
        a(f"s_setprio {cfg['prio_l']}")
        self.loader()
        self.attn_start()
        self.stamp("attn0", "L")
        self.attn_loop()
        self.attn_finish()
        self.stamp("Oflag", "L")
        self.dump_stamps(True)
        a("s_endpgm")

        a.label("L_mwave")
        self.m_setup()
        a(f"s_bitcmp1_b32 s{sC}, 0\ns_cbranch_scc1 L_pass_v")
        self.pass_a(False)
        a("s_branch L_pass_q")
        a.label("L_pass_v")
        self.pass_a(True)
        a.label("L_pass_q")
        self.pass_q()
        a(f"s_cmp_eq_u32 s{sC}, 15\ns_cbranch_scc1 L_gate")
        self.pass_f()
        a(f"s_setprio {cfg['prio_gelu']}")
        self.ffn2_setup()
        self.gelu()
        a.label("L_ffn2")
        self.stamp("gelu", "M")
        self.ffn2()
        self.final()
        if cfg.get("stamps"):
            a("s_waitcnt vmcnt(0)")
            self.stamp("end", "M")
            self.dump_stamps(False)
        a.label("L_end")
        a("s_endpgm")
        a.label("L_gate")
        a(f"s_setprio {cfg['prio_gelu']}")
        self.gate()
        a("s_branch L_ffn2")
        self.fallback()
        return a.text()


HEADER = """; Fused kernel: out = g * MHA(x) + (1 - g) * GEGLU(x),  g = sigmoid(x . gate_w)
; Kernarg (88 bytes, pointers): 0 A_x, 8 A_wqkv, 16 A_wo, 24 B_x (unused by the reference), 32 B_w_gate, 40 B_w_up,
;   48 B_w_down, 56 gate_w, 64 d_out, 72 d_debug, 80 d_ws
; 256 workgroups, one per CU; hand-offs between workgroups go through d_ws with write-through stores and flags.
; @launch grid=(256,1,1) block=(512,1,1) lds=%d
.amdgcn_target "amdgcn-amd-amdhsa--gfx950"
.text
.globl %s_kernel
.p2align 8
.type %s_kernel,@function
%s_kernel:
""" % (LDS_BYTES, NAME, NAME, NAME)

FOOTER = """.section .rodata,"a"
.p2align 6
.amdhsa_kernel %s_kernel
  .amdhsa_next_free_vgpr 256
  .amdhsa_next_free_sgpr 102
  .amdhsa_accum_offset 256
  .amdhsa_group_segment_fixed_size 0
  .amdhsa_kernarg_size 88
  .amdhsa_user_sgpr_count 2
  .amdhsa_user_sgpr_kernarg_segment_ptr 1
  .amdhsa_system_sgpr_workgroup_id_x 1
  .amdhsa_float_denorm_mode_32 3
.end_amdhsa_kernel
""" % NAME

DEFAULT = dict(stM='start,BA0,KVst,KVflag,Qdone,F0,Fdone,gelu,Hflag,Hpoll,ffn2,Opoll,Omfma,end',
               stL='start,karg,A0,A2,A7,KVpoll,Qrdy,attn0,attn1,Ost,Oflag',
               outpol='', rowmask=14, qs=14400, tf=0, gate_f=1, gate_at=4, wpre=6, rel=1, touch=1, tq=1, f1_early=0, rbits=3, rot=4, rot2=1, la=2, nst=4, defer=0, xpol='', wpol='', fpol='', kvflag_at=8, f0_at=4, sig_at=6, pd=2, cap=6, prio_l=2, prio_m=0, prio_gelu=3)


def generate(**kw):
    cfg = dict(DEFAULT)
    cfg.update(kw)
    body = Gen(cfg).build()
    msgs = lint(body)
    if cfg.get("stamps"):
        body += f"; STAMPS M {cfg['stM']}\n"
    return HEADER + body + FOOTER, msgs


if __name__ == "__main__":
    out = sys.argv[1]
    kw = {}
    for arg in sys.argv[2:]:
        k, v = arg.split("=")
        try:
            kw[k] = int(v)
        except ValueError:
            try:
                kw[k] = float(v)
            except ValueError:
                kw[k] = v
    text, msgs = generate(**kw)
    for m in msgs:
        print("LINT:", m)
    open(out, "w").write(text)
    print("wrote", out, len(text), "bytes,", text.count("\n"), "lines")
```

```python
import struct
import sys

from asmlib import Asm, lint, sr, vr

NAME = "gated_mix__softmax_full_mha__glu_gated_geglu__prompt"


def f32(x):
    return "0x%08x" % struct.unpack("<I", struct.pack("<f", x))[0]


LOG2E = 1.4426950408889634

WS_KV, WS_O, WS_H, WS_G, WS_FLAG, WS_STAMP = 0x000000, 0x400000, 0x600000, 0xBC0000, 0xC00000, 0xD00000
CKV, CH, CO = WS_FLAG, WS_FLAG + 128 * 128, WS_FLAG + 256 * 128
OOB = 0x20000000

NSLOT = 4
QW, QF, PART, CNT = 98304, 131072, 139264, 157696
LDS_BYTES = 163840

sX, sWQ, sWO, sWG, sWU, sWD, sGW, sOUT, sDBG, sWS = 4, 8, 12, 16, 20, 24, 28, 32, 36, 40
sC, sR, sW, sT, sROT, sRB, sCB, sDEL = 44, 45, 46, 47, 48, 49, 50, 51
sONE, sPV = 71, 69
sVM = 52
sT0 = 54
sSPIN = 70
sSTAMP = 72
SIZES = {sX: 2097152, sWQ: 1572864, sWO: 524288, sWG: 1409024, sWU: 1409024, sWD: 1409024, sGW: 1024, sOUT: 2097152,
         sDBG: 256, sWS: 268435456}
KARG = {sX: 0, sWQ: 8, sWO: 16, sWG: 32, sWU: 40, sWD: 48, sGW: 56, sOUT: 64, sDBG: 72, sWS: 80}


def slot(n):
    return (n % NSLOT) * 24576


class Gen:
    def __init__(self, cfg):
        self.cfg = cfg
        self.a = Asm()
        self.uid = 0

    def lab(self, base):
        self.uid += 1
        return f"L_{base}_{self.uid}"

    def clock(self):
        return "s_memtime" if self.cfg.get("stamps") == 2 else "s_memrealtime"

    def names(self, role):
        if "pad" in self.cfg:
            return ["start", self.cfg["pad"]]
        return self.cfg["st" + role].split(",")

    def stamp(self, name, role):
        if self.cfg.get("stamps") and name in self.names(role):
            n = self.names(role).index(name)
            a = self.a
            a(f"{self.clock()} {sr(sSTAMP + 2 * n, 2)}")
            a.lg.drain()

    def dump_stamps(self, is_l):
        if not self.cfg.get("stamps"):
            return
        a = self.a
        if "pad" in self.cfg:
            n = 0 if self.cfg["pad"] == "start" else 1
            top, done = self.lab("pad"), self.lab("paddone")
            if is_l:
                a("s_barrier")
            if "padx" in self.cfg:
                a(f"""s_and_b32 s{sT0}, s2, 7
                    s_cmp_eq_u32 s{sT0}, {self.cfg['padx']}
                    s_cselect_b32 s{sSTAMP + 2 * n}, s{sSTAMP + 2 * n}, 0""")
            a(f"""s_waitcnt vmcnt(0) lgkmcnt(0)
                s_cmp_eq_u32 s{sSTAMP + 2 * n}, 0
                s_cbranch_scc1 {done}""")
            a.label(top)
            a(f"""s_sleep 4
                s_memrealtime {sr(sT0, 2)}
                s_waitcnt lgkmcnt(0)
                s_sub_u32 s{sT0}, s{sT0}, s{sSTAMP + 2 * n}
                s_cmp_lt_u32 s{sT0}, 6000
                s_cbranch_scc1 {top}""")
            a.label(done)
            return
        a(f"""s_lshl_b32 s{sT0}, s2, 3
            s_add_u32 s{sT0}, s{sT0}, s{sW}
            s_lshl_b32 s{sT0}, s{sT0}, 6
            s_add_u32 s{sT0}, s{sT0}, {WS_STAMP}
            s_mov_b64 exec, 1""")
        for n in range(14):
            a(f"v_mov_b32 v0, s{sSTAMP + 2 * n}")
            a(f"buffer_store_dword v0, off, {sr(sWS, 4)}, s{sT0} offset:{4 * n}")
        a("s_mov_b64 exec, -1")

    def lane(self, v):
        self.a(f"""v_mbcnt_lo_u32_b32 v{v}, -1, 0
            v_mbcnt_hi_u32_b32 v{v}, -1, v{v}""")

    def srd(self, *regs):
        for r in regs:
            self.a(f"s_mov_b32 s{r + 2}, {SIZES[r]}\ns_mov_b32 s{r + 3}, 0x00020000")

    def kload(self, *regs):
        for r in regs:
            self.a(f"s_load_dwordx2 {sr(r, 2)}, s[0:1], {KARG[r]}")

    def chunk(self, dst, i):
        a = self.a
        if self.cfg["rot"] in (3, 4):
            a(f"""s_add_u32 s{dst}, s{sDEL}, {i & 3}
                s_and_b32 s{dst}, s{dst}, 3
                s_add_u32 s{dst}, s{dst}, s{sROT}""")
            if i & 4:
                a(f"s_xor_b32 s{dst}, s{dst}, 4")
        else:
            a(f"s_add_u32 s{dst}, s{sROT}, {i}\ns_and_b32 s{dst}, s{dst}, 7")

    def dsr(self, op, dst, n, lo, hi, imm, tag):
        reg = lo
        if imm >= 65536:
            reg, imm = hi, imm - 65536
        assert 0 <= imm < 65536 and reg is not None
        self.a(f"{op} {vr(dst, n)}, v{reg} offset:{imm}")
        self.a.lg.issue(tag)

    def poll(self, voff, soff, tmp, srd=sWS):
        a = self.a
        top, done = self.lab("poll"), self.lab("pdone")
        a(f"s_mov_b32 s{sSPIN}, 100000")
        a.label(top)
        a(f"""buffer_load_dword v{tmp}, v{voff}, {sr(srd, 4)}, {soff} offen sc1
            s_waitcnt vmcnt(0)
            v_cmp_gt_u32 vcc, 16, v{tmp}
            s_cbranch_vccz {done}
            s_sleep 8
            s_sub_u32 s{sSPIN}, s{sSPIN}, 1
            s_cmp_lg_u32 s{sSPIN}, 0
            s_cbranch_scc1 {top}""")
        a.label(done)
        a.vm.reset()

    def signal(self, soff):
        self.a(f"s_atomic_add s{sONE}, {sr(sWS, 2)}, s{soff}")

    def spoll(self, soff, need, back=None):
        a = self.a
        top, done = self.lab("spoll"), back or self.lab("sdone")
        a(f"s_mov_b32 s{sSPIN}, 200000")
        a.label(top)
        a(f"""s_mov_b32 s{sPV}, 0
            s_atomic_add s{sPV}, {sr(sWS, 2)}, s{soff} glc
            s_waitcnt lgkmcnt(0)
            s_cmp_ge_u32 s{sPV}, {need}
            s_cbranch_scc1 {done}
            s_sub_u32 s{sSPIN}, s{sSPIN}, 1
            s_cmp_lg_u32 s{sSPIN}, 0
            s_cbranch_scc1 {top}""")
        if back:
            a(f"s_branch {back}")
        else:
            a.label(done)
        a.lg.reset()

    def lds_signal(self, addr, one, off):
        a = self.a
        a(f"""s_mov_b64 exec, 1
            ds_add_u32 v{addr}, v{one} offset:{off}
            s_mov_b64 exec, -1""")
        a.lg.issue("sig")

    def lds_probe(self, addr, tmp, off):
        self.a(f"ds_read_b32 v{tmp}, v{addr} offset:{off}")
        self.a.lg.issue("probe")

    def lds_check(self, addr, tmp, off, need, nap=0):
        a = self.a
        top, done = self.lab("lspin"), self.lab("ldone")
        a.lg.wait("probe")
        a(f"""v_cmp_gt_u32 vcc, {need}, v{tmp}
            s_cbranch_vccz {done}
            s_mov_b32 s{sSPIN}, 1000000""")
        a.label(top)
        if nap:
            a(f"s_sleep {nap}")
        a(f"""ds_read_b32 v{tmp}, v{addr} offset:{off}
            s_waitcnt lgkmcnt(0)
            v_cmp_gt_u32 vcc, {need}, v{tmp}
            s_cbranch_vccz {done}
            s_sub_u32 s{sSPIN}, s{sSPIN}, 1
            s_cmp_lg_u32 s{sSPIN}, 0
            s_cbranch_scc1 {top}""")
        a.label(done)

    def prologue(self):
        a = self.a
        cfg = self.cfg
        rb = cfg["rbits"]
        a("s_cmp_ge_u32 s2, 256\ns_cbranch_scc1 L_end")
        if cfg.get("stamps"):
            a(f"{self.clock()} {sr(sSTAMP, 2)}")
        self.kload(sX, sWQ, sWS)
        if cfg.get("stamps"):
            for n in range(1, 14):
                a(f"s_mov_b32 s{sSTAMP + 2 * n}, 0")
        x, j, t = sT0, sT0 + 1, sT0 + 2
        a(f"""v_lshrrev_b32 v1, 6, v0
            s_and_b32 s{x}, s2, 7
            v_readfirstlane_b32 s{sW}, v1
            s_lshr_b32 s{j}, s2, 3
            v_and_b32 v0, 63, v0
            s_and_b32 s{sR}, s{x}, {(1 << (4 - rb)) - 1}
            s_lshl_b32 s{sR}, s{sR}, {rb}
            s_and_b32 s{t}, s{j}, {(1 << rb) - 1}
            s_add_u32 s{sR}, s{sR}, s{t}
            s_lshr_b32 s{sC}, s{x}, {4 - rb}
            s_lshl_b32 s{sC}, s{sC}, {5 - rb}
            s_lshr_b32 s{t}, s{j}, {rb}
            s_add_u32 s{sC}, s{sC}, s{t}
            s_and_b32 s{sT}, s{sW}, 3""")
        rot = cfg["rot"]
        if rot == 0:
            a(f"s_mov_b32 s{sROT}, 0")
        elif rot == 1:
            a(f"""s_mul_i32 s{sROT}, s{sC}, {cfg.get('rotc', 2)}
                s_mul_i32 s{t}, s{sR}, {cfg.get('rotr', 1)}
                s_add_u32 s{sROT}, s{sROT}, s{t}
                s_and_b32 s{sROT}, s{sROT}, 7""")
        else:
            a(f"""s_add_u32 s{sROT}, s{sC}, s{sR}
                s_and_b32 s{sROT}, s{sROT}, 1
                s_lshl_b32 s{sROT}, s{sROT}, 2""")
            if rot == 3:
                a(f"s_mov_b32 s{sDEL}, 0")
            else:
                a(f"""s_lshr_b32 s{sDEL}, s{x}, 1
                    s_lshl_b32 s{t}, s{x}, 1
                    s_add_u32 s{sDEL}, s{sDEL}, s{t}""")
        self.srd(sWS)
        a(f"""s_mov_b32 s{sONE}, 1
            s_cmp_ge_u32 s{sW}, 4
            s_cbranch_scc0 L_mwave""")

    def loader(self):
        a = self.a
        a.vm.reset()
        vX0, vX1, vKV, vQ = 8, 9, 10, 11
        sXB, sKB, sQB, sLx, sLk, sLq, sCh, sO = range(sT0, sT0 + 8)
        self.srd(sX, sWQ)
        a(f"""v_lshrrev_b32 v1, 3, v0
            v_and_b32 v2, 7, v0
            v_lshrrev_b32 v3, 4, v0
            s_lshl_b32 s{sO}, s{sT}, 5
            v_add_u32 v4, s{sO}, v1
            v_xor_b32 v5, v2, v3
            v_lshlrev_b32 v5, 4, v5
            v_lshl_add_u32 v{vX0}, v4, 10, v5
            v_xor_b32 v{vX1}, 64, v{vX0}
            v_add_u32 v{vX1}, 8192, v{vX1}
            s_lshl_b32 s{sO}, s{sT}, 4
            v_add_u32 v4, s{sO}, v1
            v_mul_u32_u24 v4, 3072, v4
            v_and_b32 v5, 1, v3
            v_lshlrev_b32 v5, 2, v5
            v_xor_b32 v5, v2, v5
            v_lshl_add_u32 v{vKV}, v5, 4, v4
            s_lshl_b32 s{sXB}, s{sR}, 17
            s_and_b32 s{sKB}, s{sC}, 1
            s_add_u32 s{sKB}, s{sKB}, 1
            s_lshl_b32 s{sKB}, s{sKB}, 10
            s_lshr_b32 s{sCh}, s{sC}, 1
            s_lshl_b32 s{sCh}, s{sCh}, 7
            s_add_u32 s{sKB}, s{sKB}, s{sCh}
            s_lshl_b32 s{sLx}, s{sT}, 12
            s_lshl_b32 s{sLk}, s{sT}, 11""")

        def issueA(i):
            B = slot(i)
            self.chunk(sCh, i)
            a(f"s_lshl_b32 s{sO}, s{sCh}, 7\ns_add_u32 s{sO}, s{sO}, s{sXB}")
            for k in range(4):
                a(f"s_add_u32 m0, s{sLx}, {B + 1024 * k}")
                if i == 0 and k == 0:
                    a("s_waitcnt lgkmcnt(0)")
                    self.stamp("karg", "L")
                else:
                    a(f"s_add_u32 s{sO}, s{sO}, 16384" if k == 2 else "s_nop 0")
                a(f"buffer_load_dwordx4 v{vX0 if k % 2 == 0 else vX1}, {sr(sX, 4)}, s{sO} offen {self.cfg['xpol'] if i < self.cfg['xn'] else ''} lds")
                a.vm.issue(("A", i))
            a(f"s_mul_i32 s{sO}, s{sCh}, 196608")
            for k in range(2):
                a(f"s_add_u32 m0, s{sLk}, {B + 16384 + 1024 * k}")
                a(f"s_add_u32 s{sO}, s{sO}, {'s%d' % sKB if k == 0 else 24576}")
                a(f"buffer_load_dwordx4 v{vKV}, {sr(sWQ, 4)}, s{sO} offen {self.cfg['wpol'] if i < self.cfg['wn'] else ''} lds")
                a.vm.issue(("A", i))

        def issueQ(lo, hi):
            for i in range(lo, hi):
                self.chunk(sCh, i)
                a(f"""s_mul_i32 s{sO}, s{sCh}, 196608
                    s_add_u32 m0, s{sLq}, {QW + 4096 * i}
                    s_add_u32 s{sO}, s{sO}, s{sQB}
                    buffer_load_dwordx4 v{vQ}, {sr(sWQ, 4)}, s{sO} offen lds""")
                a.vm.issue(("Q", 0))

        def setup2():
            a(f"""v_lshrrev_b32 v4, 2, v0
                s_lshl_b32 s{sO}, s{sT}, 4
                v_add_u32 v4, s{sO}, v4
                v_mul_u32_u24 v4, 3072, v4
                v_and_b32 v5, 3, v0
                v_lshl_add_u32 v{vQ}, v5, 4, v4
                s_lshl_b32 s{sQB}, s{sC}, 6
                s_lshl_b32 s{sLq}, s{sT}, 10
                s_mov_b32 s{sVM}, 0x0000ffff
                s_mov_b32 s{sVM + 1}, 0x0000ffff""")
            if self.cfg["tq"]:
                cb = 5 - self.cfg["rbits"]
                nl = 1 << (cb - 1)
                a(f"""v_lshrrev_b32 v4, {cb - 1}, v0
                    v_mul_u32_u24 v4, 3072, v4
                    v_and_b32 v5, {nl - 1}, v0
                    v_lshl_add_u32 v4, v5, 7, v4
                    s_lshr_b32 s{sO}, s2, 3
                    s_lshl_b32 s{sO}, s{sO}, 2
                    s_add_u32 s{sO}, s{sO}, s{sT}
                    s_mul_i32 s{sO}, s{sO}, 12288
                    s_lshr_b32 s{sCh}, s{sC}, {cb}
                    s_lshl_b32 s{sCh}, s{sCh}, {cb + 6}
                    s_add_u32 s{sO}, s{sO}, s{sCh}
                    s_mov_b32 m0, {CNT + 64}
                    s_mov_b64 exec, {(1 << (4 * nl)) - 1}
                    buffer_load_dword v4, {sr(sWQ, 4)}, s{sO} offen {self.cfg['qpol']} lds
                    s_mov_b64 exec, -1""")
                a.vm.issue("touch")
            a("s_setprio 0")
            self.attn_init()
            a(f"s_setprio {self.cfg['prio_l']}")

        la = self.cfg["la"]
        qs = [int(ch) for ch in str(self.cfg["qs"])[1:]]
        assert sum(qs) == 8
        nxt = 0
        for b in range(9):
            while nxt < 8 and nxt <= b + la and nxt - NSLOT + 2 <= b:
                issueA(nxt)
                nxt += 1
            if b == 0:
                setup2()
            if b >= 6:
                issueQ(sum(qs[:b - 6]), sum(qs[:b - 5]))
            if b == 8 and qs[3]:
                a("s_barrier")
                issueQ(8 - qs[3], 8)
            tag = ("A", b) if b < 8 else ("Q", 0)
            a.vm.wait(tag)
            self.stamp(f"{tag[0]}{tag[1]}", "L")
            a("s_barrier")

    O_, S_, Q_, KV_ = 16, 80, 112, 128
    vIDX, vKo, vVo, vFl, vQa_, vOne, vCa, vPa, vPs = 12, 13, 14, 15, 6, 7, 1, 2, 3

    def attn_init(self):
        a = self.a
        NST = self.cfg["nst"]
        assert NST == 4
        sHd, sQ, sOff, sRow, sCnt, sLd, sFl = range(sT0 + 8, sT0 + 15)
        self.sHd, self.sQ, self.sOff, self.sKr, self.sCnt, self.sLd, self.sFl = sHd, sQ, sOff, sRow, sCnt, sLd, sFl
        a(f"""s_and_b32 s{sHd}, s{sW}, 1
            s_lshr_b32 s{sQ}, s{sT}, 1
            v_lshrrev_b32 v5, 5, v0
            s_and_b32 s{sRow}, s{sR}, {self.cfg['rowmask']}
            s_add_u32 s{sRow}, s{sRow}, s{sQ}
            s_and_b32 s{sRow}, s{sRow}, 15
            s_mov_b32 s{sCnt}, {32 // NST}
            v_lshlrev_b32 v{self.vKo}, 4, v0
            v_and_b32 v{self.vVo}, 15, v0
            v_lshlrev_b32 v{self.vVo}, 4, v{self.vVo}
            v_lshl_add_u32 v{self.vVo}, v5, 8, v{self.vVo}
            s_lshl_b32 s{sLd}, s{sHd}, 12
            s_add_u32 s{sLd}, s{sLd}, {QF}
            v_add_u32 v{self.vQa_}, s{sLd}, v{self.vKo}
            s_lshl_b32 s{sLd}, s{sQ}, 11
            v_add_u32 v{self.vQa_}, s{sLd}, v{self.vQa_}
            v_mov_b32 v{self.vIDX}, 0xdddddddd
            v_mov_b32 v{self.vOne}, 1
            v_and_b32 v4, 0x1b, v0
            v_cmp_eq_u32 vcc, 16, v4
            v_mov_b32 v4, 0x3f803f80
            s_mul_i32 s{sLd}, s{sT}, 4608
            v_cndmask_b32 v4, 0, v4, vcc
            s_add_u32 s{sLd}, s{sLd}, {PART}
            v_lshl_add_u32 v{self.vPa}, v0, 4, s{sLd}
            v_lshl_add_u32 v{self.vPs}, v0, 2, s{sLd}
            s_lshl_b32 s{sLd}, s{sHd}, 2
            s_add_u32 s{sLd}, s{sLd}, {CNT + 8}
            v_mov_b32 v{self.vCa}, s{sLd}
            s_lshl_b32 s{sLd}, s{sT}, 2
            s_add_u32 s{sLd}, s{sLd}, {CNT + 32}
            v_mov_b32 v{self.vFl}, s{sLd}""")
        for st in range(NST):
            for k in range(8):
                a(f"v_mov_b32 v{self.KV_ + 12 * st + 4 + k}, v4")
        for k in range(64):
            a(f"v_mov_b32 v{self.O_ + k}, 0")

    def attn_start(self):
        a = self.a
        NST = self.cfg["nst"]
        sOff = self.sOff
        sHB, sFB, sRow, sFl = sT0, sT0 + 1, self.sKr, self.sFl
        a(f"""s_lshl_b32 s{sHB}, s{sC}, 1
            s_add_u32 s{sHB}, s{sHB}, s{self.sHd}
            s_lshl_b32 s{sHB}, s{sHB}, 17
            s_lshr_b32 s{sFB}, s{sC}, 1
            s_lshl_b32 s{sFB}, s{sFB}, 11
            s_add_u32 s{sFB}, s{sFB}, {CKV}
            s_lshl_b32 s{sOff}, s{sRow}, 13
            s_add_u32 s{sOff}, s{sOff}, s{sHB}
            s_lshl_b32 s{sFl}, s{sRow}, 7
            s_add_u32 s{sFl}, s{sFl}, s{sFB}""")
        self.spoll(sFl, 8)
        self.stamp("KVpoll", "L")
        for st in range(NST - 1):
            b = self.KV_ + 12 * st
            a(f"""buffer_load_dwordx4 {vr(b, 4)}, v{self.vKo}, {sr(sWS, 4)}, s{sOff} offen sc1
                s_mov_b64 exec, {sr(sVM, 2)}
                buffer_load_dwordx4 {vr(b + 4, 4)}, v{self.vVo}, {sr(sWS, 4)}, s{sOff} offen offset:1024 sc1
                buffer_load_dwordx4 {vr(b + 8, 4)}, v{self.vVo}, {sr(sWS, 4)}, s{sOff} offen offset:1536 sc1
                s_mov_b64 exec, -1
                s_add_u32 s{sOff}, s{sOff}, 2048""")
        self.stamp("KViss", "L")
        a(f"v_mov_b32 v5, {CNT}")
        a.lg.reset()
        self.lds_signal(5, self.vOne, 20)
        self.lds_probe(5, 4, 16)
        self.lds_check(5, 4, 16, 16)
        a(f"v_xor_b32 v4, 0x800, v{self.vQa_}")
        self.stamp("Qrdy", "L")
        for q in range(4):
            a(f"ds_read_b128 {vr(self.Q_ + 4 * q, 4)}, v{self.vQa_ if q >= 2 else 4} offset:{1024 * (q & 1)}")
        a(f"""s_add_u32 s{sRow}, s{sRow}, 2
            s_and_b32 s{sRow}, s{sRow}, 15
            s_lshl_b32 s{sFl}, s{sRow}, 7
            s_add_u32 s{sFl}, s{sFl}, s{sFB}
            s_mov_b32 s{sPV}, 0
            s_waitcnt lgkmcnt(0)
            s_atomic_add s{sPV}, {sr(sWS, 2)}, s{sFl} glc
            s_waitcnt vmcnt({3 * (NST - 2)})
            v_mfma_f32_32x32x16_bf16 {vr(self.S_, 16)}, {vr(self.KV_, 4)}, {vr(self.Q_, 4)}, 0
            s_nop 11""")

    def attn_loop(self):
        a = self.a
        NST = self.cfg["nst"]
        NT = 4 * NST
        O, S, Q, KV = self.O_, self.S_, self.Q_, self.KV_
        sOff, sRow, sCnt, sFl, sHB, sFB = self.sOff, self.sKr, self.sCnt, self.sFl, sT0, sT0 + 1
        sm = lambda st, qt, half, n: (f"v_smfmac_f32_32x32x32_bf16 {vr(O + 16 * qt, 16)}, {vr(KV + 12 * st + 4 + 4 * half, 4)}, "
                                      f"{vr(S + 16 * (n & 1) + 8 * half, 8)}, v{self.vIDX}")
        extra = {
            (2, 0): f"s_lshl_b32 s{sOff}, s{sRow}, 13\ns_add_u32 s{sOff}, s{sOff}, s{sHB}",
            (2, 2): f"s_cmp_eq_u32 s{sCnt}, 1\ns_cselect_b32 s{sOff}, {OOB}, s{sOff}",
            (3, 1): "s_waitcnt lgkmcnt(0)",
            (3, 2): f"s_cmp_lt_u32 s{sPV}, 8\ns_cbranch_scc1 L_kv_wait\nL_kv_ok:",
            (6, 0): f"s_add_u32 s{sRow}, s{sRow}, 2\ns_and_b32 s{sRow}, s{sRow}, 15",
            (6, 2): f"s_lshl_b32 s{sFl}, s{sRow}, 7\ns_add_u32 s{sFl}, s{sFl}, s{sFB}",
            (10, 0): f"s_mov_b32 s{sPV}, 0\ns_atomic_add s{sPV}, {sr(sWS, 2)}, s{sFl} glc",
            (NT - 3, 0): f"s_sub_u32 s{sCnt}, s{sCnt}, 1\ns_cmp_eq_u32 s{sCnt}, 0",
        }

        def ex(n, k):
            for l in extra.get((n, k), "").split("\n"):
                if l.endswith(":"):
                    a.label(l[:-1])
                else:
                    a(l)

        a(f"v_exp_f32 v{S}, v{S}\nv_exp_f32 v{S + 1}, v{S + 1}")
        a.raw(".p2align 6")
        a.label("L_attn")
        for n in range(NT + 1):
            st, qt = divmod(n, 4)
            cur = S + 16 * (n & 1)
            E = lambda lo, hi: [a(f"v_exp_f32 v{cur + k}, v{cur + k}") for k in range(lo, hi)]
            pst, pqt = divmod((n - 1) % NT, 4)
            nst, nqt = divmod((n + 1) % NT, 4)
            ld = KV + 12 * ((st - 1) % NST)
            if n:
                E(0, 2)
                a(sm(pst, pqt, 1, n - 1))
            if n == NT:
                break
            if n == NT - 2:
                a("s_cbranch_scc1 L_attn_tail")
            ex(n, 0)
            if qt == 3:
                a(f"s_waitcnt vmcnt({3 * (NST - 2)})")
            E(2, 5)
            a(f"v_mfma_f32_32x32x16_bf16 {vr(S + 16 * ((n + 1) & 1), 16)}, {vr(KV + 12 * nst, 4)}, {vr(Q + 4 * nqt, 4)}, 0")
            ex(n, 1)
            if qt == 0:
                a(f"buffer_load_dwordx4 {vr(ld, 4)}, v{self.vKo}, {sr(sWS, 4)}, s{sOff} offen sc1")
            if qt == 2 and st:
                a(f"s_add_u32 s{sOff}, s{sOff}, 2048")
            E(5, 10)
            a(sm(st, qt, 0, n))
            ex(n, 2)
            if qt == 1:
                a(f"""s_mov_b64 exec, {sr(sVM, 2)}
                    buffer_load_dwordx4 {vr(ld + 4, 4)}, v{self.vVo}, {sr(sWS, 4)}, s{sOff} offen offset:1024 sc1
                    buffer_load_dwordx4 {vr(ld + 8, 4)}, v{self.vVo}, {sr(sWS, 4)}, s{sOff} offen offset:1536 sc1
                    s_mov_b64 exec, -1""")
            E(10, 16)
        a("s_branch L_attn")
        self.sm = sm

    def attn_finish(self):
        a = self.a
        O, S, Q, KV, T, sm = self.O_, self.S_, self.Q_, self.KV_, 192, self.sm
        sA, sF, m = sT0, sT0 + 1, sT0 + 2
        E = lambda n, lo, hi: [a(f"v_exp_f32 v{S + 16 * (n & 1) + k}, v{S + 16 * (n & 1) + k}") for k in range(lo, hi)]

        def give(q):
            o = O + 16 * q
            a(f"""ds_write_b128 v{self.vPa}, {vr(o, 4)} offset:{2304 * q}
                ds_write_b128 v{self.vPa}, {vr(o + 4, 4)} offset:{2304 * q + 1024}
                ds_write_b32 v{self.vPs}, v{o + 8} offset:{2304 * q + 2048}""")

        a.label("L_attn_tail")
        a.lg.reset()
        a("s_waitcnt lgkmcnt(0)")
        give(0)
        E(14, 2, 5)
        a(f"v_mfma_f32_32x32x16_bf16 {vr(S + 16, 16)}, {vr(KV + 36, 4)}, {vr(Q + 12, 4)}, 0")
        a(f"s_lshl_b32 s{sF}, s{sR}, 1")
        E(14, 5, 10)
        a(sm(3, 2, 0, 14))
        give(1)
        if self.cfg["rel"] == 0:
            a(f"ds_write_b32 v{self.vFl}, v{self.vOne}")
        self.lds_signal(self.vCa, self.vOne, 0)
        E(14, 10, 16)
        E(15, 0, 2)
        a(sm(3, 2, 1, 14))
        self.lds_probe(self.vCa, 4, 0)
        a(f"""s_add_u32 s{sF}, s{sF}, s{self.sQ}
            s_lshl_b32 s{sA}, s{sF}, 5
            s_add_u32 s{sA}, s{sA}, s{sC}
            s_lshl_b32 s{sA}, s{sA}, 1
            s_add_u32 s{sA}, s{sA}, s{self.sHd}
            s_mul_i32 s{m}, s{self.sQ}, -18432
            s_add_u32 s{m}, s{m}, 9216""")
        E(15, 2, 10)
        a(sm(3, 3, 0, 15))
        a(f"""s_lshl_b32 s{sA}, s{sA}, 10
            s_add_u32 s{sA}, s{sA}, {WS_O}
            v_add_u32 v{self.vPa}, s{m}, v{self.vPa}
            v_add_u32 v{self.vPs}, s{m}, v{self.vPs}""")
        E(15, 10, 16)
        a(f"""s_lshl_b32 s{sF}, s{sF}, 2
            s_lshr_b32 s{m}, s{sC}, 2""")
        a(sm(3, 3, 1, 15))
        a(f"""s_add_u32 s{sF}, s{sF}, s{m}
            s_lshl_b32 s{sF}, s{sF}, 7
            s_add_u32 s{sF}, s{sF}, {CO}""")
        if self.cfg["rel"] == 1:
            a(f"ds_write_b32 v{self.vFl}, v{self.vOne}")
            a.lg.issue("rel")
        self.stamp("attn1", "L")
        self.lds_check(self.vCa, 4, 0, 2)
        self.stamp("pair", "L")
        for q in range(2):
            a(f"""ds_read_b32 v{T + 12 * q + 8}, v{self.vPs} offset:{2304 * q + 2048}
                ds_read_b128 {vr(T + 12 * q, 4)}, v{self.vPa} offset:{2304 * q}
                ds_read_b128 {vr(T + 12 * q + 4, 4)}, v{self.vPa} offset:{2304 * q + 1024}""")
        for q in range(2):
            o, t = O + 32 + 16 * q, T + 12 * q
            a(f"s_waitcnt lgkmcnt({3 - 3 * q})\nv_add_f32 v{o + 8}, v{o + 8}, v{t + 8}")
            for k in range(8):
                a(f"v_add_f32 v{o + k}, v{o + k}, v{t + k}")
            if q == 0:
                self.normalise(0)
        self.normalise(1)
        if self.cfg["rel"] == 2:
            a(f"ds_write_b32 v{self.vFl}, v{self.vOne}")
        self.stamp("Ost", "L")
        lo, hi = self.cfg.get("l_lo", 2.0 ** -24), self.cfg.get("l_hi", 2.0 ** 64)
        for q in range(2):
            o, t = O + 32 + 16 * q, T + 12 * q
            a(f"""v_pk_add_f32 {vr(t, 2)}, {vr(o, 2)}, {vr(o + 2, 2)}
                v_pk_add_f32 {vr(t + 2, 2)}, {vr(o + 4, 2)}, {vr(o + 6, 2)}
                v_cmp_lt_f32 vcc, {f32(lo)}, v{o + 8}
                v_pk_add_f32 {vr(t, 2)}, {vr(t, 2)}, {vr(t + 2, 2)}
                s_and_b64 {sr(m, 2)}, {'vcc' if q == 0 else sr(m, 2)}, vcc
                v_cmp_gt_f32 vcc, {f32(hi)}, v{o + 8}
                v_add_f32 v{t}, v{t}, v{t + 1}
                s_and_b64 {sr(m, 2)}, {sr(m, 2)}, vcc
                v_sub_f32 v{t}, v{t}, v{t}
                v_cmp_eq_f32 vcc, 0, v{t}
                s_and_b64 {sr(m, 2)}, {sr(m, 2)}, vcc""")
        a(f"s_cmp_eq_u64 {sr(m, 2)}, -1\ns_cbranch_scc0 L_fallback")
        a.label("L_publish")
        a("s_waitcnt vmcnt(0)")
        self.signal(sF)

    def normalise(self, q):
        a = self.a
        o, d = self.O_ + 32 + 16 * q, 224 + 4 * q
        a(f"v_rcp_f32 v{o + 9}, v{o + 8}\ns_add_u32 s{sT0 + 4}, s{sT0}, {32768 * q}")
        for k in range(8):
            a(f"v_mul_f32 v{o + k}, v{o + k}, v{o + 9}")
        for k in range(4):
            a(f"v_cvt_pk_bf16_f32 v{d + k}, v{o + 2 * k}, v{o + 2 * k + 1}")
        a(f"buffer_store_dwordx4 {vr(d, 4)}, v{self.vKo}, {sr(sWS, 4)}, s{sT0 + 4} offen sc1")

    def fallback(self):
        a = self.a
        S, M, K, V, vMx = self.S_, self.S_ + 16, self.KV_, self.KV_ + 4, 4
        sO, sN = sT0 + 2, sT0 + 3
        a.label("L_kv_wait")
        self.spoll(self.sFl, 8, "L_kv_ok")
        a.label("L_fallback")
        a("s_waitcnt vmcnt(0)")
        for q in range(2):
            O, Q = self.O_ + 32 + 16 * q, self.Q_ + 8 + 4 * q
            a(f"""v_mov_b32 v{vMx}, 0xff800000
                s_lshl_b32 s{sO}, s{sC}, 1
                s_add_u32 s{sO}, s{sO}, s{self.sHd}
                s_lshl_b32 s{sO}, s{sO}, 17
                s_mov_b32 s{sN}, 64""")
            a.label(f"L_fb_max{q}")
            a(f"""buffer_load_dwordx4 {vr(K, 4)}, v{self.vKo}, {sr(sWS, 4)}, s{sO} offen sc1
                s_waitcnt vmcnt(0)
                v_mfma_f32_32x32x16_bf16 {vr(S, 16)}, {vr(K, 4)}, {vr(Q, 4)}, 0
                s_nop 11""")
            for k in range(8):
                a(f"v_max3_f32 v{vMx}, v{S + 2 * k}, v{S + 2 * k + 1}, v{vMx}")
            a(f"""s_add_u32 s{sO}, s{sO}, 2048
                s_sub_u32 s{sN}, s{sN}, 1
                s_cmp_lg_u32 s{sN}, 0
                s_cbranch_scc1 L_fb_max{q}
                v_mov_b32 v{M}, v{vMx}
                s_nop 1
                v_permlane32_swap_b32 v{vMx}, v{M}
                s_nop 1
                v_max_f32 v{vMx}, v{vMx}, v{M}
                s_sub_u32 s{sO}, s{sO}, 131072
                s_mov_b32 s{sN}, 64""")
            for k in range(16):
                a(f"v_sub_f32 v{M + k}, 0, v{vMx}\nv_mov_b32 v{O + k}, 0")
            a.label(f"L_fb_sum{q}")
            a(f"""buffer_load_dwordx4 {vr(K, 4)}, v{self.vKo}, {sr(sWS, 4)}, s{sO} offen sc1
                s_mov_b64 exec, {sr(sVM, 2)}
                buffer_load_dwordx4 {vr(V, 4)}, v{self.vVo}, {sr(sWS, 4)}, s{sO} offen offset:1024 sc1
                buffer_load_dwordx4 {vr(V + 4, 4)}, v{self.vVo}, {sr(sWS, 4)}, s{sO} offen offset:1536 sc1
                s_mov_b64 exec, -1
                s_waitcnt vmcnt(0)
                v_mfma_f32_32x32x16_bf16 {vr(S, 16)}, {vr(K, 4)}, {vr(Q, 4)}, {vr(M, 16)}
                s_nop 11""")
            for k in range(16):
                a(f"v_exp_f32 v{S + k}, v{S + k}")
            a(f"""s_nop 1
                v_smfmac_f32_32x32x32_bf16 {vr(O, 16)}, {vr(V, 4)}, {vr(S, 8)}, v{self.vIDX}
                v_smfmac_f32_32x32x32_bf16 {vr(O, 16)}, {vr(V + 4, 4)}, {vr(S + 8, 8)}, v{self.vIDX}
                s_nop 7
                s_add_u32 s{sO}, s{sO}, 2048
                s_sub_u32 s{sN}, s{sN}, 1
                s_cmp_lg_u32 s{sN}, 0
                s_cbranch_scc1 L_fb_sum{q}
                s_nop 3""")
            self.normalise(q)
        a("s_branch L_publish")

    XR, ACC, WS_ = 128, 32, 8
    vFlo, vFhi, vF, vCnt, v1_, vTmp = 0, 1, 2, 5, 6, 7

    def m_setup(self):
        a = self.a
        self.vXA, self.vXAh, self.vWk, self.vWkh, self.vQa, self.vST, self.vGo, self.vQFa, self.vGa = 80, 84, 88, 90, 92, 93, 94, 95, 96
        self.kload(sDBG, sWG, sWU, sWD, sWO, sOUT, sGW)
        self.srd(sDBG, sWG, sWU, sWD, sWO, sOUT, sGW)
        skip = self.lab("noreset")
        a(f"""s_lshr_b32 s{sT0 + 3}, s2, 5
            s_or_b32 s{sT0 + 3}, s{sT0 + 3}, s{sW}
            s_cmp_lg_u32 s{sT0 + 3}, 0
            s_cbranch_scc1 {skip}
            s_mul_i32 s{sT0 + 3}, s2, 1536
            s_add_u32 s{sT0 + 3}, s{sT0 + 3}, {WS_FLAG}
            s_mov_b32 s{sPV}, 0
            s_waitcnt lgkmcnt(0)""")
        for k in range(12):
            a(f"s_atomic_and s{sPV}, {sr(sWS, 2)}, s{sT0 + 3}\ns_add_u32 s{sT0 + 3}, s{sT0 + 3}, 128")
        a.label(skip)
        a(f"""s_lshl_b32 s{sRB}, s{sT0}, 2
            s_and_b32 s{sT0 + 2}, s{sT0 + 1}, 3
            s_add_u32 s{sRB}, s{sRB}, s{sT0 + 2}
            s_lshr_b32 s{sCB}, s{sT0 + 1}, 2
            v_and_b32 v16, 31, v0
            v_lshrrev_b32 v17, 5, v0
            v_bfe_u32 v18, v0, 1, 3
            v_xor_b32 v18, v18, v17
            s_lshl_b32 s{sT0}, s{sT}, 12
            v_lshlrev_b32 v19, 7, v16
            v_lshl_add_u32 v19, v18, 4, v19
            v_add_u32 v{self.vXA}, s{sT0}, v19""")
        for s in range(1, 4):
            a(f"v_xor_b32 v{self.vXA + s}, {32 * s}, v{self.vXA}")
        for s in range(4):
            a(f"v_add_u32 v{self.vXAh + s}, 0x10000, v{self.vXA + s}")
        a(f"""v_bfe_u32 v18, v0, 2, 2
            v_lshl_add_u32 v18, v17, 3, v18
            v_bfe_u32 v19, v0, 4, 1
            v_and_b32 v20, 3, v0
            v_lshlrev_b32 v20, 3, v20
            v_lshl_add_u32 v20, v19, 5, v20
            v_bfe_u32 v21, v0, 3, 1
            v_lshl_add_u32 v22, v18, 7, v20
            v_lshl_add_u32 v{self.vWk}, v21, 6, v22
            v_xor_b32 v{self.vWk + 1}, 64, v{self.vWk}
            v_add_u32 v{self.vWkh}, 0x10000, v{self.vWk}
            v_add_u32 v{self.vWkh + 1}, 0x10000, v{self.vWk + 1}
            v_lshl_add_u32 v{self.vQa}, v18, 6, v20
            v_add_u32 v{self.vQa}, {QW}, v{self.vQa}
            s_lshl_b32 s{sT0}, s{sT}, 10
            s_add_u32 s{sT0}, s{sT0}, {QF}
            v_lshl_add_u32 v{self.vQFa}, v0, 4, s{sT0}
            v_mul_u32_u24 v22, 192, v18
            v_and_b32 v23, 0x33, v0
            v_bfe_u32 v25, v0, 2, 1
            v_lshl_add_u32 v23, v25, 3, v23
            v_lshl_add_u32 v23, v21, 2, v23
            v_lshlrev_b32 v23, 4, v23
            v_and_b32 v24, 15, v0
            v_lshlrev_b32 v{self.vGa}, 7, v17
            v_lshlrev_b32 v24, 4, v24
            v_lshl_add_u32 v24, v17, 8, v24
            v_lshl_add_u32 v24, v19, 17, v24
            v_add_u32 v24, 1024, v24
            v_lshlrev_b32 v26, 4, v0
            s_lshl_b32 s{sT0}, s{sT}, 4""")
        for k in range(3):
            a(f"""v_add_u32 v27, {64 * k}, v0
                v_mul_u32_u24 v28, 2731, v27
                v_lshrrev_b32 v28, 15, v28
                v_mul_u32_u24 v29, 12, v28
                v_sub_u32 v29, v27, v29
                v_add_u32 v28, s{sT0}, v28
                v_mul_u32_u24 v28, 2752, v28
                v_lshl_add_u32 v{self.vF + k}, v29, 4, v28""")
        a(f"""v_add_u32 v{self.vFlo}, v22, v20
            v_add_u32 v{self.vFhi}, 0x10000, v{self.vFlo}
            v_mov_b32 v{self.vCnt}, {CNT}
            v_lshl_add_u32 v{self.v1_}, v26, 3, 4""")
        for i in range(4):
            a(f"v_mov_b32 v{100 + i}, 0")
        a(f"ds_write_b128 v{self.vCnt}, v[100:103]\nds_write_b128 v{self.vCnt}, v[100:103] offset:16\nds_write_b128 v{self.vCnt}, v[100:103] offset:32\ns_waitcnt lgkmcnt(0)")
        skip = self.lab("nogo")
        a(f"""s_lshr_b32 s{sT0}, s2, 5
            s_or_b32 s{sT0}, s{sT0}, s{sW}
            s_cmp_lg_u32 s{sT0}, 0
            s_cbranch_scc1 {skip}
            s_and_b32 s{sT0}, s2, 1
            s_lshl_b32 s{sT0}, s{sT0}, 7
            s_atomic_add s{sONE}, {sr(sDBG, 2)}, s{sT0}
            s_waitcnt lgkmcnt(0)""")
        a.label(skip)
        if self.cfg["tf"]:
            assert self.cfg["rbits"] == 3 and self.cfg["rot"] in (3, 4)
            n = self.cfg["tf"]
            up, done = self.lab("tfu"), self.lab("tfd")
            a(f"""v_lshrrev_b32 v27, 8, v26
                v_add_u32 v27, s{sDEL}, v27
                v_and_b32 v27, 3, v27
                v_bfe_u32 v28, v26, 7, 1
                v_lshl_add_u32 v27, v27, 6, v28
                v_mul_u32_u24 v27, 2752, v27
                v_bfe_u32 v28, v26, 4, 3
                v_lshlrev_b32 v28, 7, v28
                v_min_u32 v28, 764, v28
                v_add_u32 v27, v27, v28
                s_lshr_b32 s{sT0}, s{sT}, 1
                s_lshl_b32 s{sT0}, s{sT0}, 7
                s_lshr_b32 s{sT0 + 1}, s2, 3
                s_add_u32 s{sT0}, s{sT0}, s{sT0 + 1}
                s_mul_i32 s{sT0}, s{sT0}, 5504
                s_lshr_b32 s{sT0 + 1}, s{sC}, 2
                s_mul_i32 s{sT0 + 1}, s{sT0 + 1}, 768
                s_add_u32 s{sT0}, s{sT0}, s{sT0 + 1}
                s_mov_b32 m0, {CNT + 64}
                s_mov_b32 exec_lo, {hex(0x7f7f7f7f & ((1 << min(32, 16 * n)) - 1))}
                s_mov_b32 exec_hi, {hex(0x7f7f7f7f & ((1 << max(0, 16 * n - 32)) - 1))}
                s_bitcmp1_b32 s{sT}, 0
                s_cbranch_scc1 {up}
                buffer_load_dword v27, {sr(sWG, 4)}, s{sT0} offen lds
                s_branch {done}""")
            a.label(up)
            a(f"buffer_load_dword v27, {sr(sWU, 4)}, s{sT0} offen lds")
            a.label(done)
            a("s_mov_b64 exec, -1")

    def pass_a(self, isv):
        a = self.a
        a.lg.reset()
        a.vm.reset()
        a(f"v_mov_b32 v{self.vST}, v{24 if isv else 23}")
        XR, ACC, W = self.XR, self.ACC, self.WS_
        sB = sT0 + 2

        def reads(g):
            i, s = divmod(g, 4)
            B = slot(i)
            self.dsr("ds_read_b128", XR + 4 * g, 4, self.vXA + s, self.vXAh + s, B, ("x", g))
            for ct in range(2):
                for u in range(2):
                    self.dsr("ds_read_b64_tr_b16", W + 8 * (g % 3) + 4 * ct + 2 * u, 2, self.vWk + ct, self.vWkh + ct,
                             B + 16384 + (16 * s + 4 * u) * 128, ("w", g, ct))

        def comp(g):
            for ct in range(2):
                a.lg.wait(("x", g), ("w", g, ct))
                wf, xf = vr(W + 8 * (g % 3) + 4 * ct, 4), vr(XR + 4 * g, 4)
                d = vr(ACC + 16 * ct, 16)
                A, Bm = (xf, wf) if isv else (wf, xf)
                a(f"v_mfma_f32_32x32x16_bf16 {d}, {A}, {Bm}, {d if g else 0}")

        def kv_stores(real):
            a(f"s_mov_b32 s{sB + 1}, s{sB}")
            for ct in range(2):
                for q in range(2):
                    d = 112 + 8 * ct + 4 * q
                    for k in range(4 if real else 0):
                        s = ACC + 16 * ct + 8 * q + 2 * k
                        a(f"v_cvt_pk_bf16_f32 v{d + k}, v{s}, v{s + 1}")
                    if isv:
                        a(f"buffer_store_dwordx4 {vr(d, 4)}, v{self.vST}, {sr(sWS, 4)}, s{sB + 1} offen offset:{512 * q} sc1")
                        if q == 1 and ct == 0:
                            a(f"s_add_u32 s{sB + 1}, s{sB + 1}, 262144")
                    else:
                        a(f"buffer_store_dwordx4 {vr(d, 4)}, v{self.vST}, {sr(sWS, 4)}, s{sB + 1} offen sc1")
                        a(f"s_add_u32 s{sB + 1}, s{sB + 1}, 131072")

        a(f"""s_lshr_b32 s{sB}, s{sC}, 1
            s_lshl_b32 s{sB}, s{sB}, 19
            s_lshl_b32 s{sB + 1}, s{sR}, 2
            s_add_u32 s{sB + 1}, s{sB + 1}, s{sT}
            s_lshl_b32 s{sB + 1}, s{sB + 1}, 11
            s_add_u32 s{sB}, s{sB}, s{sB + 1}""")
        if self.cfg["pwkv"] == 8:
            kv_stores(False)
        for i in range(8):
            g0 = 4 * i
            if i:
                a.lg.drain()
            a("s_barrier")
            if i == 0:
                self.stamp("BA0", "M")
            reads(g0)
            reads(g0 + 1)
            if i:
                comp(g0 - 1)
            reads(g0 + 2)
            if i == self.cfg["pwkv"]:
                kv_stores(False)
            if i == 5:
                a(f"buffer_load_dword v{self.vGo}, v{self.vGa}, {sr(sDBG, 4)}, 0 offen sc1")
            comp(g0)
            reads(g0 + 3)
            comp(g0 + 1)
            comp(g0 + 2)
        comp(31)
        a("s_waitcnt vmcnt(0)\ns_nop 9")
        kv_stores(True)
        self.stamp("KVst", "M")

    def kv_flag(self):
        a = self.a
        ok = self.lab("go")
        a(f"""s_lshr_b32 s{sT0}, s{sC}, 1
            s_lshl_b32 s{sT0}, s{sT0}, 4
            s_add_u32 s{sT0}, s{sT0}, s{sR}
            s_lshl_b32 s{sT0}, s{sT0}, 7
            s_add_u32 s{sT0}, s{sT0}, {CKV}
            s_waitcnt vmcnt({4 + len(a.vm.q)})
            v_cmp_gt_u32 vcc, 16, v{self.vGo}
            s_cbranch_vccz {ok}""")
        q = list(a.vm.q)
        self.poll(self.vGa, "0", self.vGo, sDBG)
        a.vm.q = q
        a.label(ok)

    def issue_f(self, i):
        a = self.a
        sCh, sO, sFB, sLf = sT0 + 4, sT0 + 5, sT0 + 6, sT0 + 7
        if i == 0:
            a(f"s_mul_i32 s{sFB}, s{sC}, 192\ns_mul_i32 s{sLf}, s{sT}, 3072")
        self.chunk(sCh, i)
        a(f"s_mul_i32 s{sO}, s{sCh}, 176128\ns_add_u32 s{sO}, s{sO}, s{sFB}")
        for m in range(2):
            for k in range(3):
                a(f"s_add_u32 m0, s{sLf}, {slot(i) + 12288 * m + 1024 * k}\ns_nop 0")
                a(f"buffer_load_dwordx4 v{self.vF + k}, {sr(sWG if m == 0 else sWU, 4)}, s{sO} offen {self.cfg['fpol'] if i < self.cfg['fn'] else ''} lds")
                a.vm.issue(("F", i))

    def touch(self, i, vA):
        a = self.a
        sA = sT0 + 8
        a(f"""s_lshr_b32 s{sA}, s2, 3
            s_lshl_b32 s{sA}, s{sA}, 2
            s_add_u32 s{sA}, s{sA}, s{sT}
            s_mul_i32 s{sA}, s{sA}, {11008 if i < 6 else 4096}
            s_add_u32 s{sA}, s{sA}, {2048 * (i if i < 6 else i - 6)}
            s_mov_b32 m0, {CNT + 64}
            s_mov_b64 exec, {'0x3f' if i == 5 else '0xffff'}
            buffer_load_dword v{vA}, {sr(sWD if i < 6 else sWO, 4)}, s{sA} offen {self.cfg['tpol']} lds
            s_mov_b64 exec, -1""")
        a.vm.issue("touch")

    def pass_q(self):
        a = self.a
        XR, W, QACC = self.XR, self.WS_, 64
        a.lg.reset()
        a.vm.reset()
        flag_at, f0_at = self.cfg["kvflag_at"], self.cfg["f0_at"]

        def reads(g):
            for u in range(2):
                self.dsr("ds_read_b64_tr_b16", W + 4 * (g % 6) + 2 * u, 2, self.vQa, None, (16 * g + 4 * u) * 64, g)

        def hooks(j):
            if j == flag_at:
                if a.vm.q:
                    a(f"s_cmp_eq_u32 s{sC}, 15\ns_cbranch_scc0 L_kvw\ns_waitcnt vmcnt(0)")
                    a.label("L_kvw")
                a(f"s_waitcnt vmcnt({len(a.vm.q)})")
                self.stamp("KVack", "M")
                self.signal(sT0)
                self.stamp("KVflag", "M")
            if j == f0_at:
                skip = self.lab("nof0")
                a(f"s_cmp_eq_u32 s{sC}, 15\ns_cbranch_scc1 {skip}")
                self.issue_f(0)
                a.label(skip)
            if self.cfg["f1_early"] and j == self.cfg["f1_early"]:
                skip = self.lab("nof1")
                a(f"s_cmp_eq_u32 s{sC}, 15\ns_cbranch_scc1 {skip}")
                self.issue_f(1)
                a.label(skip)

        if self.cfg["qs"] % 10:
            a("s_barrier")
        self.kv_flag()
        hooks(-2)
        hooks(-1)
        self.stamp("F0iss", "M")
        a("s_barrier")
        self.stamp("BQ", "M")
        for g in range(6):
            reads(g)
        nxt = 6
        for g in range(32):
            a.lg.wait(g)
            d = vr(QACC, 16)
            a(f"v_mfma_f32_32x32x16_bf16 {d}, {vr(W + 4 * (g % 6), 4)}, {vr(XR + 4 * g, 4)}, {d if g else 0}")
            if nxt < 32:
                reads(nxt)
                nxt += 1
            hooks(g)
        a(f"v_mov_b32 v98, {f32(0.25 * LOG2E)}\ns_nop 10")
        for k in range(8):
            a(f"v_pk_mul_f32 {vr(QACC + 2 * k, 2)}, {vr(QACC + 2 * k, 2)}, v[98:99] op_sel_hi:[1,0]")
        for hd in range(2):
            for k in range(4 * hd, 4 * hd + 4):
                a(f"v_cvt_pk_bf16_f32 v{QACC + k}, v{QACC + 2 * k}, v{QACC + 2 * k + 1}")
            a(f"ds_write_b128 v{self.vQFa}, {vr(QACC + 4 * hd, 4)} offset:{4096 * hd}")
        self.lds_signal(self.vCnt, self.v1_, 16)
        self.stamp("Qdone", "M")
        hooks(32)

    def pass_f(self):
        a = self.a
        XR, ACC, W = self.XR, self.ACC, self.WS_
        N = 192

        def reads(j):
            g, t = divmod(j, 6)
            i, s = divmod(g, 4)
            for u in range(2):
                self.dsr("ds_read_b64_tr_b16", W + 4 * (j % 6) + 2 * u, 2, self.vFlo, self.vFhi,
                         slot(i) + 12288 * (t & 1) + (16 * s + 4 * u) * 192 + 64 * (t >> 1), j)

        gf, gat = self.cfg["gate_f"], self.cfg.get("gate_at", 8)

        def landed(i):
            a.vm.wait(("F", i))
            self.lds_signal(self.vCnt, self.v1_, 0)
            if i + 1 != gf:
                more(i)

        def more(i):
            if i + 1 < 8 and not (i == 0 and self.cfg["f1_early"]):
                self.issue_f(i + 1)
            if self.cfg["touch"] and i + 1 >= gf:
                for k in (range(i + 1) if i + 1 == gf else [i]):
                    self.touch(k, self.v1_)

        landed(0)
        self.lds_probe(self.vCnt, self.vTmp, 0)
        self.lds_check(self.vCnt, self.vTmp, 0, 16)
        self.stamp("F0", "M")
        for j in range(6):
            reads(j)
        sig = self.cfg["sig_at"]
        for j in range(N):
            g, t = divmod(j, 6)
            i, jj = divmod(j, 24)
            a.lg.wait(j)
            d = vr(ACC + 16 * t, 16)
            a(f"v_mfma_f32_32x32x16_bf16 {d}, {vr(W + 4 * (j % 6), 4)}, {vr(XR + 4 * g, 4)}, {d if g else 0}")
            if jj == 23:
                self.stamp(f"f{i}", "M")
            if gf and j == gat - 2:
                self.lds_probe(self.vCnt, self.vTmp, 20)
            if gf and j == gat:
                self.lds_check(self.vCnt, self.vTmp, 20, 4)
                more(gf - 1)
            if i < 7:
                if jj == (sig if i or gf != 1 else 14):
                    landed(i + 1)
                if jj == 15:
                    self.lds_probe(self.vCnt, self.vTmp, 0)
                if jj == 18:
                    self.lds_check(self.vCnt, self.vTmp, 0, 16 * (i + 2))
            if j + 6 < N:
                reads(j + 6)
        self.lds_signal(self.vCnt, self.v1_, 0)
        self.stamp("Fdone", "M")

    def gelu(self):
        a = self.a
        ACC = self.ACC
        c0, c1, T, OUT, vOff = 130, 132, 136, 168, 134
        sT0 = globals()["sT0"] + 12
        nw = [0]

        def stage(j):
            if j and nw[0] < self.cfg["wpre"]:
                self.issue_w(nw[0])
                nw[0] += 1
                self.cap()

        k0 = -2.0 * 0.7978845608028654 * LOG2E
        self.lane(vOff)
        a(f"""v_mov_b32 v{c0}, {f32(k0)}
            v_mov_b32 v{c0 + 1}, {f32(k0)}
            v_mov_b32 v{c1}, {f32(k0 * 0.044715)}
            v_mov_b32 v{c1 + 1}, {f32(k0 * 0.044715)}
            v_lshlrev_b32 v{vOff}, 4, v{vOff}
            s_lshl_b32 s{sT0}, s{sR}, 2
            s_add_u32 s{sT0}, s{sT0}, s{sT}
            s_mul_i32 s{sT0}, s{sT0}, 86
            s_mul_i32 s{sT0 + 1}, s{sC}, 6
            s_add_u32 s{sT0}, s{sT0}, s{sT0 + 1}
            s_lshl_b32 s{sT0}, s{sT0}, 10
            s_add_u32 s{sT0}, s{sT0}, {WS_H}""")
        for j in range(3):
            G, U = ACC + 32 * j, ACC + 32 * j + 16
            p = lambda b, k: vr(b + 2 * k, 2)
            for k in range(8):
                a(f"v_pk_mul_f32 {p(T, k)}, {p(G, k)}, {p(G, k)}")
            stage(j)
            for k in range(8):
                a(f"v_pk_fma_f32 {p(T, k)}, {p(T, k)}, {vr(c1, 2)}, {vr(c0, 2)}")
            stage(j)
            for k in range(8):
                a(f"v_pk_mul_f32 {p(T, k)}, {p(T, k)}, {p(G, k)}")
            stage(j)
            for k in range(16):
                a(f"v_exp_f32 v{T + k}, v{T + k}")
            stage(j)
            for k in range(8):
                a(f"v_pk_mul_f32 {p(G, k)}, {p(G, k)}, {p(U, k)}")
            stage(j)
            for k in range(8):
                a(f"v_pk_add_f32 {p(T, k)}, {p(T, k)}, 1.0 op_sel_hi:[1,0]")
            stage(j)
            for k in range(16):
                a(f"v_rcp_f32 v{T + k}, v{T + k}")
            if j == 0:
                self.lds_probe(self.vCnt, self.vTmp, 0)
            a(f"""s_cmp_lt_u32 s{sT0 + 1}, {86 - 2 * j}
                s_cselect_b32 s{sT0 + 2}, s{sT0}, {OOB}""")
            for k in range(8):
                a(f"v_pk_mul_f32 {p(G, k)}, {p(G, k)}, {p(T, k)}")
            for q in range(2):
                d = OUT + 8 * j + 4 * q
                for k in range(4):
                    a(f"v_cvt_pk_bf16_f32 v{d + k}, v{G + 8 * q + 2 * k}, v{G + 8 * q + 2 * k + 1}")
                a(f"buffer_store_dwordx4 {vr(d, 4)}, v{vOff}, {sr(sWS, 4)}, s{sT0 + 2} offen offset:{1024 * q} sc1")
                a.vm.issue("H")
            a(f"s_add_u32 s{sT0}, s{sT0}, 2048")
            if j == 0:
                self.lds_check(self.vCnt, self.vTmp, 0, 144)
        assert nw[0] == self.cfg["wpre"]

    def gate(self):
        a = self.a
        XR, GB, Z, vO = self.XR, 32, 24, 28
        sCh = sT0 + 4
        a("s_waitcnt vmcnt(0)")
        a.vm.reset()
        self.lane(vO + 1)
        a(f"v_lshrrev_b32 v{vO}, 5, v{vO + 1}\nv_lshlrev_b32 v{vO}, 4, v{vO}")
        for k in range(4):
            a(f"v_mov_b32 v{Z + k}, 0")
        for half in range(2):
            for i in range(4 * half, 4 * half + 4):
                self.chunk(sCh, i)
                a(f"s_lshl_b32 s{sCh}, s{sCh}, 7")
                for s in range(4):
                    a(f"buffer_load_dwordx4 {vr(GB + 16 * (i & 3) + 4 * s, 4)}, v{vO}, {sr(sGW, 4)}, s{sCh} offen offset:{32 * s}")
            if self.cfg["touch"]:
                for i in range(4 * half, 4 * half + 4):
                    self.touch(i, self.v1_)
            a("s_waitcnt vmcnt(0)")
            for k in range(64):
                a(f"v_dot2c_f32_bf16 v{Z + (k & 3)}, v{XR + 64 * half + k}, v{GB + k}")
        a(f"""s_lshl_b32 s{sT0}, s{sR}, 2
            s_add_u32 s{sT0}, s{sT0}, s{sT}
            s_lshl_b32 s{sT0}, s{sT0}, 7
            s_add_u32 s{sT0}, s{sT0}, {WS_G}
            v_add_f32 v{Z}, v{Z}, v{Z + 1}
            v_add_f32 v{Z + 2}, v{Z + 2}, v{Z + 3}
            v_add_f32 v{Z}, v{Z}, v{Z + 2}
            v_mov_b32 v{Z + 1}, v{Z}
            v_lshlrev_b32 v{vO}, 2, v{vO + 1}
            s_nop 0
            v_permlane32_swap_b32 v{Z}, v{Z + 1}
            s_nop 1
            v_add_f32 v{Z}, v{Z}, v{Z + 1}
            s_mov_b32 s{sT0 + 12}, s{sT0}""")
        a.lg.reset()
        self.lds_probe(self.vCnt, self.vTmp, 16)
        self.lds_check(self.vCnt, self.vTmp, 16, 16)
        self.ffn2_setup()
        for k in range(self.cfg["wpre"]):
            self.issue_w(k)
            self.cap()
        a(f"""s_mov_b32 exec_hi, 0
            buffer_store_dword v{Z}, v{vO}, {sr(sWS, 4)}, s{sT0 + 12} offen sc1
            s_mov_b64 exec, -1""")

    def ffn2_setup(self):
        a = self.a
        ACC, HS, WB = 32, 128, 96
        vL, vD, vH, vA0, vA1, vOw, vOt, vDump, vP, vZ, vD2, vH2 = range(8, 20)
        self.vL, self.vDump, self.vZ, self.vA0, self.vA1, self.vP = vL, vDump, vZ, vA0, vA1, vP
        sRing, sS0, sS1, sWc, sW0, sWe, sHc, sH0, sHe, sHl, sFl, sRow = range(sT0, sT0 + 12)
        self.sRow = sRow
        NS, PD, NR, NH, CAP = 22, self.cfg["pd"], 16, 16, self.cfg["cap"]
        self.lane(vL)
        a(f"""s_lshl_b32 s{sRing}, s{sT}, 15
            v_lshrrev_b32 v20, 3, v{vL}
            v_and_b32 v21, 7, v{vL}
            v_bfe_u32 v22, v{vL}, 4, 1
            v_lshlrev_b32 v23, 2, v22
            v_xor_b32 v21, v21, v23
            v_lshlrev_b32 v21, 4, v21
            v_lshl_add_u32 v{vD}, v20, 10, v21
            v_add_u32 v{vD2}, 7168, v{vD}
            s_and_b32 s{sS0}, s{sRB}, 3
            s_lshl_b32 s{sS0}, s{sS0}, 1
            s_add_u32 s{sS0}, s{sS0}, s{sCB}
            s_and_b32 s{sS0}, s{sS0}, {7 if self.cfg['rot2'] else 0}
            s_mul_i32 s{sS0}, s{sS0}, 11
            s_lshr_b32 s{sS0}, s{sS0}, 2
            s_mul_i32 s{sS1}, s{sT}, {NS}
            s_lshl_b32 s{sW0}, s{sS1}, 14
            s_lshl_b32 s{sWc}, s{sCB}, 7
            s_add_u32 s{sW0}, s{sW0}, s{sWc}
            s_add_u32 s{sWe}, s{sW0}, {NS * 16384}
            s_lshl_b32 s{sWc}, s{sS0}, 14
            s_add_u32 s{sWc}, s{sWc}, s{sW0}
            s_mul_i32 s{sHl}, s{sRB}, 172
            s_add_u32 s{sH0}, s{sHl}, s{sS1}
            s_lshl_b32 s{sH0}, s{sH0}, 10
            s_add_u32 s{sH0}, s{sH0}, {WS_H}
            s_add_u32 s{sHe}, s{sH0}, {NS * 1024}
            s_lshl_b32 s{sHc}, s{sS0}, 10
            s_add_u32 s{sHc}, s{sHc}, s{sH0}
            s_lshl_b32 s{sHl}, s{sHl}, 10
            s_add_u32 s{sHl}, s{sHl}, {WS_H + 86 * 1024}
            s_lshl_b32 s{sFl}, s{sR}, 1
            s_lshr_b32 s{sS0}, s{sT}, 1
            s_add_u32 s{sFl}, s{sFl}, s{sS0}
            s_lshl_b32 s{sFl}, s{sFl}, 9
            s_add_u32 s{sFl}, s{sFl}, {CH}
            s_mov_b32 s{sRow}, 0x62223111
            s_cmp_ge_u32 s{sC}, 8
            s_cselect_b32 s{sRow}, 0xf8888444, s{sRow}
            s_and_b32 s{sS0}, s{sC}, 7
            s_lshl_b32 s{sS0}, s{sS0}, 2
            s_lshr_b32 s{sRow}, s{sRow}, s{sS0}""")

    def cap(self):
        a, CAP = self.a, self.cfg["cap"]
        if len(a.vm.q) > CAP:
            a.vm.q = a.vm.q[len(a.vm.q) - CAP:]
            a(f"s_waitcnt vmcnt({CAP})")

    def issue_w(self, s):
        a = self.a
        vD, vD2 = 9, 18
        sRing, sS0, sS1, sWc, sW0, sWe = range(sT0, sT0 + 6)
        a(f"s_add_u32 m0, s{sRing}, {(s if s < 16 else s - 8) * 2048}")
        if s:
            a(f"s_add_u32 s{sWc}, s{sWc}, 16384\ns_cmp_eq_u32 s{sWc}, s{sWe}\ns_cselect_b32 s{sWc}, s{sW0}, s{sWc}")
        else:
            a("s_nop 0")
        a(f"buffer_load_dwordx4 v{vD}, {sr(sWD, 4)}, s{sWc} offen lds")
        a(f"buffer_load_dwordx4 v{vD2}, {sr(sWD, 4)}, s{sWc} offen offset:1024 lds")
        a.vm.issue(("w", s))
        a.vm.issue(("w", s))

    def ffn2(self):
        a = self.a
        ACC, HS, WB = 32, 128, 96
        vL, vD, vH, vA0, vA1, vOw, vOt, vDump, vP, vZ, vD2, vH2 = range(8, 20)
        self.vL, self.vDump, self.vZ, self.vA0, self.vA1, self.vP = vL, vDump, vZ, vA0, vA1, vP
        sRing, sS0, sS1, sWc, sW0, sWe, sHc, sH0, sHe, sHl, sFl, sRow = range(sT0, sT0 + 12)
        self.sRow = sRow
        NS, PD, NR, NH, CAP = 22, self.cfg["pd"], 16, 16, self.cfg["cap"]
        cap, issue_w = self.cap, self.issue_w

        def setup2():
            a(f"""v_lshlrev_b32 v{vP}, 4, v{vL}
                s_and_b32 s{sS0}, s{sT}, 1
                s_mul_i32 s{sS0}, s{sS0}, 88064
                v_add_u32 v{vH}, s{sS0}, v{vP}
                s_sub_u32 s{sS0}, 88064, s{sS0}
                v_add_u32 v{vH2}, s{sS0}, v{vP}
                v_add_u32 v{vDump}, s{sRing}, v{vP}
                v_lshrrev_b32 v20, 5, v{vL}
                v_bfe_u32 v21, v{vL}, 2, 2
                v_lshl_add_u32 v20, v20, 2, v21
                v_and_b32 v21, 1, v{vL}
                v_lshlrev_b32 v21, 2, v21
                v_lshl_add_u32 v21, v22, 1, v21
                v_bfe_u32 v23, v{vL}, 1, 1
                v_add_u32 v21, v21, v23
                v_lshlrev_b32 v21, 3, v21
                v_lshl_add_u32 v21, v20, 7, v21
                v_bfe_u32 v23, v{vL}, 3, 1
                v_lshl_add_u32 v21, v23, 6, v21
                v_add_u32 v{vA0}, s{sRing}, v21
                s_lshr_b32 s{sS0}, s{sT}, 1
                s_lshl_b32 s{sS0}, s{sS0}, 6
                v_xor_b32 v{vA0}, s{sS0}, v{vA0}
                v_xor_b32 v{vA1}, 64, v{vA0}
                s_lshl_b32 s{sS0}, s{sT}, 2
                v_add_u32 v{vOw}, s{sS0}, v{self.vCnt}
                v_and_b32 v{vZ}, 31, v{vL}
                v_lshlrev_b32 v{vZ}, 2, v{vZ}
                s_setprio {self.cfg['prio_m']}""")

        a.lg.reset()
        a.vm.reset()
        a.vm.issue("H")

        wslot = lambda s: s if s < NR else s - 8

        def issue_wo(s):
            a(f"s_add_u32 m0, s{sRing}, {s * 2048}")
            if s == 0:
                a(f"""s_lshl_b32 s{sRow}, s{sT}, 17
                    s_lshl_b32 s{sS1}, s{sCB}, 7
                    s_add_u32 s{sRow}, s{sRow}, s{sS1}""")
            else:
                a(f"s_add_u32 s{sRow}, s{sRow}, 16384")
            a(f"buffer_load_dwordx4 v{vD}, {sr(sWO, 4)}, s{sRow} offen lds")
            a(f"buffer_load_dwordx4 v{vD2}, {sr(sWO, 4)}, s{sRow} offen offset:1024 lds")
            a.vm.issue("wo")
            a.vm.issue("wo")

        def issue_h(s):
            if s >= NS:
                return
            if s:
                a(f"""s_add_u32 s{sHc}, s{sHc}, 1024
                    s_cmp_eq_u32 s{sHc}, s{sHe}
                    s_cselect_b32 s{sHc}, s{sH0}, s{sHc}""")
            a(f"s_cmp_lt_u32 s{sHc}, s{sHl}\ns_cselect_b32 s{sS0}, s{sHc}, {OOB}")
            for tt in range(2):
                a(f"buffer_load_dwordx4 {vr(HS + 8 * (s % NH) + 4 * tt, 4)}, v{(vH, vH2)[tt]}, {sr(sWS, 4)}, s{sS0} offen sc1")
                a.vm.issue(("h", s))

        wreg = lambda s: (WB + 8 * (s % 3)) if s < 16 else (104, 112, 120, 96, 176, 184)[s - 16]

        def reads(s):
            a.vm.wait(("w", s))
            for ct in range(2):
                for u in range(2):
                    self.dsr("ds_read_b64_tr_b16", wreg(s) + 4 * ct + 2 * u, 2, (vA0, vA1)[ct], None,
                             wslot(s) * 2048 + 1024 * u, (s, ct))

        wpre = self.cfg["wpre"]
        setup2()
        for s in range(wpre, min(NR, wpre + 2)):
            issue_w(s)
        a.vm.wait("H")
        for k in range(4):
            skip = self.lab("nosig")
            a(f"s_bitcmp1_b32 s{sRow}, {k}\ns_cbranch_scc0 {skip}")
            self.signal(sFl)
            a.label(skip)
            a(f"s_add_u32 s{sFl}, s{sFl}, 128")
        self.stamp("Hflag", "M")
        for s in range(wpre + 2, NR):
            issue_w(s)
            cap()
        if self.cfg["pwo"]:
            a(f"""s_lshl_b32 s{sS0}, s{sR}, 2
                s_add_u32 s{sS0}, s{sS0}, s{sT}
                s_lshl_b32 s{sS0}, s{sS0}, 4
                s_add_u32 s{sS0}, s{sS0}, s{sC}
                s_lshl_b32 s{sS0}, s{sS0}, 11
                s_add_u32 s{sS0}, s{sS0}, {WS_O}
                buffer_store_dwordx4 v[20:23], v{vP}, {sr(sWS, 4)}, s{sS0} offen sc1
                buffer_store_dwordx4 v[20:23], v{vP}, {sr(sWS, 4)}, s{sS0} offen offset:1024 sc1""")
            a.vm.issue("pw")
            a.vm.issue("pw")
        if self.cfg["pwout"]:
            a(f"""s_lshl_b32 s{sS0}, s{sRB}, 2
                s_add_u32 s{sS0}, s{sS0}, s{sT}
                s_lshl_b32 s{sS0}, s{sS0}, 14
                s_lshl_b32 s{sS1}, s{sCB}, 7
                s_add_u32 s{sS0}, s{sS0}, s{sS1}
                buffer_store_dwordx4 v[20:23], v{vD}, {sr(sOUT, 4)}, s{sS0} offen sc1
                buffer_store_dwordx4 v[20:23], v{vD2}, {sr(sOUT, 4)}, s{sS0} offen offset:1024 sc1""")
            a.vm.issue("pw")
            a.vm.issue("pw")
        self.stamp("W0", "M")
        a(f"""s_lshl_b32 s{sFl}, s{sRB}, 2
            s_add_u32 s{sFl}, s{sFl}, s{sT}
            s_lshl_b32 s{sFl}, s{sFl}, 7
            s_add_u32 s{sFl}, s{sFl}, {CH}
            s_cmp_eq_u32 s{sT}, 1
            s_cselect_b32 s{sRow}, 12, 10""")
        self.spoll(sFl, f"s{sRow}")
        self.stamp("Hpoll", "M")
        for s in range(PD):
            issue_h(s)
        a(f"""s_lshl_b32 s{sFl}, s{sRB}, 1
            s_and_b32 s{sS0}, s{sT}, 1
            s_add_u32 s{sFl}, s{sFl}, s{sS0}
            s_lshl_b32 s{sFl}, s{sFl}, 7
            s_add_u32 s{sFl}, s{sFl}, {WS_G}
            buffer_load_dword v{vZ}, v{vZ}, {sr(sWS, 4)}, s{sFl} offen sc1""")
        a.vm.issue("z")
        reads(0)
        reads(1)
        nh = PD
        hold = NS - self.cfg["defer"]
        assert hold <= 16 or hold == NS

        def mm(s, ct, tt):
            a.vm.wait(("h", s))
            a.lg.wait((s, ct))
            d = vr(ACC + 32 * tt + 16 * ct, 16)
            a(f"v_mfma_f32_32x32x16_bf16 {d}, {vr(wreg(s) + 4 * ct, 4)}, {vr(HS + 8 * (s % NH) + 4 * tt, 4)}, {d if s else 0}")

        for s in range(17):
            if s == hold or s == 16:
                while nh < NS:
                    issue_h(nh)
                    nh += 1
                    cap()
            if s == hold:
                self.stamp("hold", "M")
                self.lds_probe(vOw, self.vTmp, 32)
                self.lds_check(vOw, self.vTmp, 32, 1, nap=2)
                self.stamp("resume", "M")
            if s == 16:
                break
            self.stamp(f"s{s}", "M")
            for k in range(4):
                mm(s, *divmod(k, 2))
                if k == 0 and nh < NS:
                    issue_h(nh)
                    nh += 1
                if k == 1:
                    reads(s + 2)
                if k == 2:
                    if s < 8:
                        issue_wo(s)
                    elif s < 14:
                        issue_w(s + 8)
                    elif nh < NS:
                        issue_h(nh)
                        nh += 1
                if k == 3 and s == 11:
                    a.vm.wait("wo")
                    self.lds_signal(self.vCnt, self.v1_, 24)
                if k == 3 and s == 15:
                    reads(18)
        self.stamp("s16", "M")
        self.final_setup()
        for n, (ct, tt) in enumerate(((0, 1), (1, 0), (1, 1), (0, 0))):
            for s in range(16, NS):
                mm(s, ct, tt)
                if n == 0 and s < 19:
                    reads(s + 3)
                if n == 0 and s == 18:
                    for _ in range(2):
                        self.lds_probe(self.vCnt, self.vTmp, 24)
                if n == 1 and s == 16:
                    a.lg.wait((21, 1))
                if n and s >= 18:
                    k = (8, 4, 12)[n - 1] + s - 18
                    if s == 18:
                        a("s_nop 8" if n < 3 else "s_nop 3")
                    a(f"ds_write_b128 v{vDump}, {vr(ACC + 4 * k, 4)} offset:{16384 + 1024 * k}")
                if n == 3 and s == 16:
                    self.early_o()
        self.lds_signal(self.vCnt, self.v1_, 4)
        self.stamp("s22", "M")

    def final_setup(self):
        a = self.a
        sFl, sOut, sO, sA, sTT, sKh, sF2, sG = range(sT0 + 1, sT0 + 9)
        a(f"""s_and_b32 s{sTT}, s{sT}, 1
            s_lshr_b32 s{sKh}, s{sT}, 1
            s_lshl_b32 s{sFl}, s{sRB}, 1
            s_add_u32 s{sFl}, s{sFl}, s{sKh}
            s_lshl_b32 s{sFl}, s{sFl}, 8
            s_add_u32 s{sFl}, s{sFl}, {CO}
            s_add_u32 s{sF2}, s{sFl}, 128
            s_mov_b32 s{sPV}, 0
            s_mov_b32 s{sA}, 0
            s_atomic_add s{sPV}, {sr(sWS, 2)}, s{sFl} glc
            s_atomic_add s{sA}, {sr(sWS, 2)}, s{sF2} glc
            s_lshl_b32 s{sOut}, s{sRB}, 1
            s_add_u32 s{sOut}, s{sOut}, s{sTT}
            s_lshl_b32 s{sO}, s{sOut}, 5
            s_lshl_b32 s{sG}, s{sKh}, 4
            s_add_u32 s{sO}, s{sO}, s{sG}
            s_lshl_b32 s{sO}, s{sO}, 10
            s_add_u32 s{sO}, s{sO}, {WS_O}
            s_lshl_b32 s{sOut}, s{sOut}, 15
            s_lshl_b32 s{sG}, s{sCB}, 7
            s_add_u32 s{sOut}, s{sOut}, s{sG}
            s_lshl_b32 s{sG}, s{sKh}, 6
            s_add_u32 s{sOut}, s{sOut}, s{sG}""")

    def oloads(self, h, sO):
        a = self.a
        for s in range(8 * h, 8 * h + 8):
            if s % 8 == 4:
                a(f"s_add_u32 s{sO}, s{sO}, 4096")
            a(f"buffer_load_dwordx4 {vr(192 + 4 * s, 4)}, v{self.vP}, {sr(sWS, 4)}, s{sO} offen offset:{1024 * (s % 4)} sc1")
            a.vm.issue(s)

    def early_o(self):
        a = self.a
        sFl, sOut, sO, sA, sTT, sKh, sF2, sG, sE, sX = range(sT0 + 1, sT0 + 11)
        skip = self.lab("noearly")
        a.vm.drain()
        a(f"""s_waitcnt lgkmcnt(0)
            s_min_u32 s{sE}, s{sPV}, s{sA}
            s_lshr_b32 s{sE}, s{sE}, 3
            s_cbranch_scc0 {skip}
            s_mov_b32 s{sX}, s{sO}""")
        self.oloads(0, sX)
        a(f"s_add_u32 s{sX}, s{sX}, 4096")
        self.oloads(1, sX)
        a.label(skip)
        a.vm.reset()

    def final(self):
        a = self.a
        B, PT, OWN, OTH, OF, WO = 32, 48, 96, 112, 192, 128
        vL, vH, vX, vZ, vA0, vA1 = self.vL, self.vP, self.vDump, self.vZ, self.vA0, self.vA1
        vOut, vG, vP1, vP2, vP3, vB0, vB1 = 1, 2, 9, 10, 13, 18, 19
        sFl, sOut, sO, sA, sTT, sKh, sF2, sG, sE, sX = range(sT0 + 1, sT0 + 11)
        top, got, loaded, join = self.lab("opoll"), self.lab("ogot"), self.lab("oloaded"), self.lab("ojoin")
        a.lg.reset()
        a(f"""v_xor_b32 v{vP1}, 0x10000, v{vX}
            v_xor_b32 v{vP2}, 0x8000, v{vX}
            v_xor_b32 v{vP3}, 0x18000, v{vX}
            v_mul_f32 v{vG}, {f32(LOG2E)}, v{vZ}
            v_and_b32 v{vOut}, 31, v{vL}
            v_exp_f32 v{vG + 2}, v{vG}
            v_exp_f32 v{vG}, -v{vG}
            v_lshlrev_b32 v{vOut}, 10, v{vOut}
            v_add_f32 v{vG + 2}, 1.0, v{vG + 2}
            v_add_f32 v{vG}, 1.0, v{vG}
            v_rcp_f32 v{vG + 2}, v{vG + 2}
            v_rcp_f32 v{vG}, v{vG}
            v_lshrrev_b32 v{vL}, 5, v{vL}
            v_lshl_add_u32 v{vOut}, v{vL}, 5, v{vOut}""")
        self.lds_check(self.vCnt, self.vTmp, 24, 16)
        a(f"""s_mov_b32 s{sG}, 0
            s_cmp_lg_u32 s{sE}, 0
            s_cbranch_scc1 {loaded}
            s_mov_b32 s{sSPIN}, 200000""")
        a.label(top)
        a(f"""s_mov_b32 s{sPV}, 0
            s_mov_b32 s{sA}, 0
            s_atomic_add s{sPV}, {sr(sWS, 2)}, s{sFl} glc
            s_atomic_add s{sA}, {sr(sWS, 2)}, s{sF2} glc
            s_sub_u32 s{sSPIN}, s{sSPIN}, 1
            s_cbranch_scc1 {got}
            s_waitcnt lgkmcnt(0)
            s_max_u32 s{sE}, s{sPV}, s{sA}
            s_cmp_lt_u32 s{sE}, 8
            s_cbranch_scc1 {top}""")
        a.label(got)
        a(f"""s_waitcnt lgkmcnt(0)
            s_cmp_lt_u32 s{sPV}, 8
            s_cselect_b32 s{sG}, 1, 0
            s_lshl_b32 s{sX}, s{sG}, 13
            s_add_u32 s{sO}, s{sO}, s{sX}""")
        self.stamp("Opoll", "M")
        a.vm.reset()
        self.oloads(0, sO)
        a(f"""s_xor_b32 s{sO}, s{sO}, 0x3000
            s_min_u32 s{sE}, s{sPV}, s{sA}
            s_lshr_b32 s{sE}, s{sE}, 3
            s_cselect_b32 s{sX}, s{sO}, {OOB}""")
        self.oloads(1, sX)
        a.label(loaded)
        a(f"""s_xor_b32 s{sF2}, s{sG}, 1
            s_lshl_b32 s{sF2}, s{sF2}, 7
            s_add_u32 s{sF2}, s{sF2}, s{sFl}
            s_xor_b32 s{sG}, s{sG}, s{sTT}
            s_lshl_b32 s{sG}, s{sG}, 15
            v_xor_b32 v{vA0}, s{sG}, v{vA0}
            v_xor_b32 v{vA1}, s{sG}, v{vA1}
            v_xor_b32 v{vB0}, 0x8000, v{vA0}
            v_xor_b32 v{vB1}, 0x8000, v{vA1}""")
        a.lg.reset()

        def wreads(s):
            if s >= 16:
                return
            for ct in range(2):
                for u in range(2):
                    self.dsr("ds_read_b64_tr_b16", WO + 8 * (s % 8) + 4 * ct + 2 * u, 2, ((vA0, vA1), (vB0, vB1))[s >> 3][ct], None,
                             (s & 7) * 2048 + 1024 * u, ("wo", s))

        def step(s):
            a.vm.wait(s)
            a.lg.wait(("wo", s))
            w = WO + 8 * (s % 8)
            ot, ow = (vr(OTH, 16), vr(OWN, 16)) if s < 8 else (vr(PT + 32, 16), vr(PT + 16, 16))
            a(f"v_mfma_f32_32x32x16_bf16 {ot}, {vr(w + 4, 4)}, {vr(OF + 4 * s, 4)}, {ot if s % 8 else 0}")
            wreads(s + 2)
            if 2 <= s < 8:
                i, h = divmod(s - 2, 2)
                for k in range(8 * h, 8 * h + 4):
                    a(f"v_add_f32 v{B + k}, v{B + k}, v{PT + 16 * i + k}")
            a(f"v_mfma_f32_32x32x16_bf16 {ow}, {vr(w, 4)}, {vr(OF + 4 * s, 4)}, {ow if s % 8 else 0}")
            if s < 6:
                i, h = divmod(s, 2)
                for q in range(2 * h, 2 * h + 2):
                    self.dsr("ds_read_b128", PT + 16 * i + 4 * q, 4, (vP1, vP2, vP3)[i], None, 16384 + 4096 * (i + 1) + 1024 * q, ("wo", s + 2))
            if 2 <= s < 8:
                i, h = divmod(s - 2, 2)
                for k in range(8 * h + 4, 8 * h + 8):
                    a(f"v_add_f32 v{B + k}, v{B + k}, v{PT + 16 * i + k}")
            if 8 <= s < 12:
                for k in range(4 * (s - 8), 4 * (s - 8) + 4):
                    a(f"v_mul_f32 v{B + k}, v{B + k}, v{vG + 2}")

        self.lds_probe(self.vCnt, self.vTmp, 4)
        for s in range(2):
            wreads(s)
        self.lds_check(self.vCnt, self.vTmp, 4, 16)
        self.stamp("msync", "M")
        for s in range(8):
            step(s)
        q, le = list(a.vm.q), list(a.lg.q)
        a(f"s_cmp_lg_u32 s{sE}, 0\ns_cbranch_scc1 {join}")
        self.spoll(sF2, 8)
        a.vm.drain()
        self.oloads(1, sO)
        assert a.vm.q == q
        a.lg.q = le
        a.label(join)
        for s in range(8, 16):
            step(s)
        self.stamp("Omfma", "M")
        a("s_nop 10")
        for q in range(4):
            for k in range(4 * q, 4 * q + 4):
                a(f"v_add_f32 v{OTH + k}, v{OTH + k}, v{PT + 32 + k}")
            a(f"ds_write_b128 v{vX}, {vr(OTH + 4 * q, 4)} offset:{16384 + 1024 * q}")
        for k in range(8):
            a(f"v_pk_add_f32 {vr(OWN + 2 * k, 2)}, {vr(OWN + 2 * k, 2)}, {vr(PT + 16 + 2 * k, 2)}")
        for k in range(8):
            a(f"v_pk_fma_f32 {vr(B + 2 * k, 2)}, {vr(OWN + 2 * k, 2)}, {vr(vG, 2)}, {vr(B + 2 * k, 2)} op_sel_hi:[1,0,1]")
        a("s_waitcnt lgkmcnt(0)\ns_barrier")
        for q in range(4):
            a(f"ds_read_b128 {vr(PT + 4 * q, 4)}, v{vP1} offset:{16384 + 1024 * q}")
        for q in range(4):
            a(f"s_waitcnt lgkmcnt({3 - q})")
            for k in range(2):
                r = 4 * q + 2 * k
                a(f"v_pk_fma_f32 {vr(B + r, 2)}, {vr(PT + r, 2)}, {vr(vG, 2)}, {vr(B + r, 2)} op_sel_hi:[1,0,1]")
            for k in range(2):
                r = 4 * q + 2 * k
                a(f"v_cvt_pk_bf16_f32 v{64 + 2 * q + k}, v{B + r}, v{B + r + 1}")
            if q % 2 == 1:
                a(f"buffer_store_dwordx4 {vr(64 + 4 * (q // 2), 4)}, v{vOut}, {sr(sOUT, 4)}, s{sOut} offen offset:{16 * (q // 2)}")

    def build(self):
        a = self.a
        cfg = self.cfg
        self.prologue()
        a(f"s_setprio {cfg['prio_l']}")
        self.loader()
        self.attn_start()
        self.stamp("attn0", "L")
        self.attn_loop()
        self.attn_finish()
        self.stamp("Oflag", "L")
        self.dump_stamps(True)
        a("s_endpgm")

        a.label("L_mwave")
        self.m_setup()
        a(f"s_bitcmp1_b32 s{sC}, 0\ns_cbranch_scc1 L_pass_v")
        self.pass_a(False)
        a("s_branch L_pass_q")
        a.label("L_pass_v")
        self.pass_a(True)
        a.label("L_pass_q")
        self.pass_q()
        a(f"s_cmp_eq_u32 s{sC}, 15\ns_cbranch_scc1 L_gate")
        self.pass_f()
        a(f"s_setprio {cfg['prio_gelu']}")
        self.ffn2_setup()
        self.gelu()
        a.label("L_ffn2")
        self.stamp("gelu", "M")
        self.ffn2()
        self.final()
        if cfg.get("stamps"):
            a("s_waitcnt vmcnt(0)")
            self.stamp("end", "M")
            self.dump_stamps(False)
        a.label("L_end")
        a("s_endpgm")
        a.label("L_gate")
        a(f"s_setprio {cfg['prio_gelu']}")
        self.gate()
        a("s_branch L_ffn2")
        self.fallback()
        return a.text()


HEADER = """; Fused kernel: out = g * MHA(x) + (1 - g) * GEGLU(x),  g = sigmoid(x . gate_w)
; Kernarg (88 bytes, pointers): 0 A_x, 8 A_wqkv, 16 A_wo, 24 B_x (unused by the reference), 32 B_w_gate, 40 B_w_up,
;   48 B_w_down, 56 gate_w, 64 d_out, 72 d_debug, 80 d_ws
; 256 workgroups, one per CU; hand-offs between workgroups go through d_ws with write-through stores and flags.
; @launch grid=(256,1,1) block=(512,1,1) lds=%d
.amdgcn_target "amdgcn-amd-amdhsa--gfx950"
.text
.globl %s_kernel
.p2align 8
.type %s_kernel,@function
%s_kernel:
""" % (LDS_BYTES, NAME, NAME, NAME)

FOOTER = """.section .rodata,"a"
.p2align 6
.amdhsa_kernel %s_kernel
  .amdhsa_next_free_vgpr 256
  .amdhsa_next_free_sgpr 102
  .amdhsa_accum_offset 256
  .amdhsa_group_segment_fixed_size 0
  .amdhsa_kernarg_size 88
  .amdhsa_user_sgpr_count 2
  .amdhsa_user_sgpr_kernarg_segment_ptr 1
  .amdhsa_system_sgpr_workgroup_id_x 1
  .amdhsa_float_denorm_mode_32 3
.end_amdhsa_kernel
""" % NAME

DEFAULT = dict(stM='start,BA0,KVst,KVflag,Qdone,F0,Fdone,gelu,Hflag,Hpoll,ffn2,Opoll,Omfma,end',
               stL='start,karg,A0,A2,A7,KVpoll,Qrdy,attn0,attn1,Ost,Oflag',
               outpol='', rowmask=14, qs=14400, tf=0, gate_f=1, gate_at=4, wpre=6, rel=1, touch=1, tq=1, f1_early=0, rbits=3, rot=4, rot2=1, la=2, nst=4, defer=0, tpol='', qpol='', xn=8, wn=8, fn=8, xpol='nt', wpol='nt', fpol='nt', pwkv=-1, pwo=0, pwout=0, kvflag_at=8, f0_at=4, sig_at=6, pd=2, cap=6, prio_l=2, prio_m=0, prio_gelu=3)


def generate(**kw):
    cfg = dict(DEFAULT)
    cfg.update(kw)
    body = Gen(cfg).build()
    msgs = lint(body)
    if cfg.get("stamps"):
        body += f"; STAMPS M {cfg['stM']}\n"
    return HEADER + body + FOOTER, msgs


if __name__ == "__main__":
    out = sys.argv[1]
    kw = {}
    for arg in sys.argv[2:]:
        k, v = arg.split("=")
        try:
            kw[k] = int(v)
        except ValueError:
            try:
                kw[k] = float(v)
            except ValueError:
                kw[k] = v
    text, msgs = generate(**kw)
    for m in msgs:
        print("LINT:", m)
    open(out, "w").write(text)
    print("wrote", out, len(text), "bytes,", text.count("\n"), "lines")
```

```python
import struct
import sys

from asmlib import Asm, lint, sr, vr

NAME = "gated_mix__softmax_full_mha__glu_gated_geglu__prompt"


def f32(x):
    return "0x%08x" % struct.unpack("<I", struct.pack("<f", x))[0]


LOG2E = 1.4426950408889634

WS_KV, WS_O, WS_H, WS_G, WS_FLAG, WS_STAMP = 0x000000, 0x400000, 0x600000, 0xBC0000, 0xC00000, 0xD00000
CKV, CH, CO = WS_FLAG, WS_FLAG + 128 * 128, WS_FLAG + 256 * 128
OOB = 0x20000000

NSLOT = 4
QW, QF, PART, CNT = 98304, 131072, 139264, 157696
LDS_BYTES = 163840

sX, sWQ, sWO, sWG, sWU, sWD, sGW, sOUT, sDBG, sWS = 4, 8, 12, 16, 20, 24, 28, 32, 36, 40
sC, sR, sW, sT, sROT, sRB, sCB, sDEL = 44, 45, 46, 47, 48, 49, 50, 51
sONE, sPV = 71, 69
sVM = 52
sT0 = 54
sSPIN = 70
sSTAMP = 72
SIZES = {sX: 2097152, sWQ: 1572864, sWO: 524288, sWG: 1409024, sWU: 1409024, sWD: 1409024, sGW: 1024, sOUT: 2097152,
         sDBG: 256, sWS: 268435456}
KARG = {sX: 0, sWQ: 8, sWO: 16, sWG: 32, sWU: 40, sWD: 48, sGW: 56, sOUT: 64, sDBG: 72, sWS: 80}


def slot(n):
    return (n % NSLOT) * 24576


class Gen:
    def __init__(self, cfg):
        self.cfg = cfg
        self.a = Asm()
        self.uid = 0

    def lab(self, base):
        self.uid += 1
        return f"L_{base}_{self.uid}"

    def clock(self):
        return "s_memtime" if self.cfg.get("stamps") == 2 else "s_memrealtime"

    def names(self, role):
        if "pad" in self.cfg:
            return ["start", self.cfg["pad"]]
        return self.cfg["st" + role].split(",")

    def stamp(self, name, role):
        if self.cfg.get("stamps") and name in self.names(role):
            n = self.names(role).index(name)
            a = self.a
            a(f"{self.clock()} {sr(sSTAMP + 2 * n, 2)}")
            a.lg.drain()

    def dump_stamps(self, is_l):
        if not self.cfg.get("stamps"):
            return
        a = self.a
        if "pad" in self.cfg:
            n = 0 if self.cfg["pad"] == "start" else 1
            top, done = self.lab("pad"), self.lab("paddone")
            if is_l:
                a("s_barrier")
            if "padx" in self.cfg:
                a(f"""s_and_b32 s{sT0}, s2, 7
                    s_cmp_eq_u32 s{sT0}, {self.cfg['padx']}
                    s_cselect_b32 s{sSTAMP + 2 * n}, s{sSTAMP + 2 * n}, 0""")
            a(f"""s_waitcnt vmcnt(0) lgkmcnt(0)
                s_cmp_eq_u32 s{sSTAMP + 2 * n}, 0
                s_cbranch_scc1 {done}""")
            a.label(top)
            a(f"""s_sleep 4
                s_memrealtime {sr(sT0, 2)}
                s_waitcnt lgkmcnt(0)
                s_sub_u32 s{sT0}, s{sT0}, s{sSTAMP + 2 * n}
                s_cmp_lt_u32 s{sT0}, 6000
                s_cbranch_scc1 {top}""")
            a.label(done)
            return
        a(f"""s_lshl_b32 s{sT0}, s2, 3
            s_add_u32 s{sT0}, s{sT0}, s{sW}
            s_lshl_b32 s{sT0}, s{sT0}, 6
            s_add_u32 s{sT0}, s{sT0}, {WS_STAMP}
            s_mov_b64 exec, 1""")
        for n in range(14):
            a(f"v_mov_b32 v0, s{sSTAMP + 2 * n}")
            a(f"buffer_store_dword v0, off, {sr(sWS, 4)}, s{sT0} offset:{4 * n}")
        a("s_mov_b64 exec, -1")

    def lane(self, v):
        self.a(f"""v_mbcnt_lo_u32_b32 v{v}, -1, 0
            v_mbcnt_hi_u32_b32 v{v}, -1, v{v}""")

    def srd(self, *regs):
        for r in regs:
            self.a(f"s_mov_b32 s{r + 2}, {SIZES[r]}\ns_mov_b32 s{r + 3}, 0x00020000")

    def kload(self, *regs):
        for r in regs:
            self.a(f"s_load_dwordx2 {sr(r, 2)}, s[0:1], {KARG[r]}")

    def chunk(self, dst, i):
        a = self.a
        if self.cfg["rot"] in (3, 4):
            a(f"""s_add_u32 s{dst}, s{sDEL}, {i & 3}
                s_and_b32 s{dst}, s{dst}, 3
                s_add_u32 s{dst}, s{dst}, s{sROT}""")
            if i & 4:
                a(f"s_xor_b32 s{dst}, s{dst}, 4")
        else:
            a(f"s_add_u32 s{dst}, s{sROT}, {i}\ns_and_b32 s{dst}, s{dst}, 7")

    def dsr(self, op, dst, n, lo, hi, imm, tag):
        reg = lo
        if imm >= 65536:
            reg, imm = hi, imm - 65536
        assert 0 <= imm < 65536 and reg is not None
        self.a(f"{op} {vr(dst, n)}, v{reg} offset:{imm}")
        self.a.lg.issue(tag)

    def poll(self, voff, soff, tmp, srd=sWS):
        a = self.a
        top, done = self.lab("poll"), self.lab("pdone")
        a(f"s_mov_b32 s{sSPIN}, 100000")
        a.label(top)
        a(f"""buffer_load_dword v{tmp}, v{voff}, {sr(srd, 4)}, {soff} offen sc1
            s_waitcnt vmcnt(0)
            v_cmp_gt_u32 vcc, 16, v{tmp}
            s_cbranch_vccz {done}
            s_sleep 8
            s_sub_u32 s{sSPIN}, s{sSPIN}, 1
            s_cmp_lg_u32 s{sSPIN}, 0
            s_cbranch_scc1 {top}""")
        a.label(done)
        a.vm.reset()

    def signal(self, soff):
        self.a(f"s_atomic_add s{sONE}, {sr(sWS, 2)}, s{soff}")

    def spoll(self, soff, need, back=None):
        a = self.a
        top, done = self.lab("spoll"), back or self.lab("sdone")
        a(f"s_mov_b32 s{sSPIN}, 200000")
        a.label(top)
        a(f"""s_mov_b32 s{sPV}, 0
            s_atomic_add s{sPV}, {sr(sWS, 2)}, s{soff} glc
            s_waitcnt lgkmcnt(0)
            s_cmp_ge_u32 s{sPV}, {need}
            s_cbranch_scc1 {done}
            s_sub_u32 s{sSPIN}, s{sSPIN}, 1
            s_cmp_lg_u32 s{sSPIN}, 0
            s_cbranch_scc1 {top}""")
        if back:
            a(f"s_branch {back}")
        else:
            a.label(done)
        a.lg.reset()

    def lds_signal(self, addr, one, off):
        a = self.a
        a(f"""s_mov_b64 exec, 1
            ds_add_u32 v{addr}, v{one} offset:{off}
            s_mov_b64 exec, -1""")
        a.lg.issue("sig")

    def lds_probe(self, addr, tmp, off):
        self.a(f"ds_read_b32 v{tmp}, v{addr} offset:{off}")
        self.a.lg.issue("probe")

    def lds_check(self, addr, tmp, off, need, nap=0):
        a = self.a
        top, done = self.lab("lspin"), self.lab("ldone")
        a.lg.wait("probe")
        a(f"""v_cmp_gt_u32 vcc, {need}, v{tmp}
            s_cbranch_vccz {done}
            s_mov_b32 s{sSPIN}, 1000000""")
        a.label(top)
        if nap:
            a(f"s_sleep {nap}")
        a(f"""ds_read_b32 v{tmp}, v{addr} offset:{off}
            s_waitcnt lgkmcnt(0)
            v_cmp_gt_u32 vcc, {need}, v{tmp}
            s_cbranch_vccz {done}
            s_sub_u32 s{sSPIN}, s{sSPIN}, 1
            s_cmp_lg_u32 s{sSPIN}, 0
            s_cbranch_scc1 {top}""")
        a.label(done)

    def prologue(self):
        a = self.a
        cfg = self.cfg
        rb = cfg["rbits"]
        a("s_cmp_ge_u32 s2, 256\ns_cbranch_scc1 L_end")
        if cfg.get("stamps"):
            a(f"{self.clock()} {sr(sSTAMP, 2)}")
        self.kload(sX, sWQ, sWS)
        if cfg.get("stamps"):
            for n in range(1, 14):
                a(f"s_mov_b32 s{sSTAMP + 2 * n}, 0")
        x, j, t = sT0, sT0 + 1, sT0 + 2
        a(f"""v_lshrrev_b32 v1, 6, v0
            s_and_b32 s{x}, s2, 7
            v_readfirstlane_b32 s{sW}, v1
            s_lshr_b32 s{j}, s2, 3
            v_and_b32 v0, 63, v0
            s_and_b32 s{sR}, s{x}, {(1 << (4 - rb)) - 1}
            s_lshl_b32 s{sR}, s{sR}, {rb}
            s_and_b32 s{t}, s{j}, {(1 << rb) - 1}
            s_add_u32 s{sR}, s{sR}, s{t}
            s_lshr_b32 s{sC}, s{x}, {4 - rb}
            s_lshl_b32 s{sC}, s{sC}, {5 - rb}
            s_lshr_b32 s{t}, s{j}, {rb}
            s_add_u32 s{sC}, s{sC}, s{t}
            s_and_b32 s{sT}, s{sW}, 3""")
        rot = cfg["rot"]
        if rot == 0:
            a(f"s_mov_b32 s{sROT}, 0")
        elif rot == 1:
            a(f"""s_mul_i32 s{sROT}, s{sC}, {cfg.get('rotc', 2)}
                s_mul_i32 s{t}, s{sR}, {cfg.get('rotr', 1)}
                s_add_u32 s{sROT}, s{sROT}, s{t}
                s_and_b32 s{sROT}, s{sROT}, 7""")
        else:
            a(f"""s_add_u32 s{sROT}, s{sC}, s{sR}
                s_and_b32 s{sROT}, s{sROT}, 1
                s_lshl_b32 s{sROT}, s{sROT}, 2""")
            if rot == 3:
                a(f"s_mov_b32 s{sDEL}, 0")
            else:
                a(f"""s_lshr_b32 s{sDEL}, s{x}, 1
                    s_lshl_b32 s{t}, s{x}, 1
                    s_add_u32 s{sDEL}, s{sDEL}, s{t}""")
        self.srd(sWS)
        a(f"""s_mov_b32 s{sONE}, 1
            s_cmp_ge_u32 s{sW}, 4
            s_cbranch_scc0 L_mwave""")

    def loader(self):
        a = self.a
        a.vm.reset()
        vX0, vX1, vKV, vQ = 8, 9, 10, 11
        sXB, sKB, sQB, sLx, sLk, sLq, sCh, sO = range(sT0, sT0 + 8)
        self.srd(sX, sWQ)
        a(f"""v_lshrrev_b32 v1, 3, v0
            v_and_b32 v2, 7, v0
            v_lshrrev_b32 v3, 4, v0
            s_lshl_b32 s{sO}, s{sT}, 5
            v_add_u32 v4, s{sO}, v1
            v_xor_b32 v5, v2, v3
            v_lshlrev_b32 v5, 4, v5
            v_lshl_add_u32 v{vX0}, v4, 10, v5
            v_xor_b32 v{vX1}, 64, v{vX0}
            v_add_u32 v{vX1}, 8192, v{vX1}
            s_lshl_b32 s{sO}, s{sT}, 4
            v_add_u32 v4, s{sO}, v1
            v_mul_u32_u24 v4, 3072, v4
            v_and_b32 v5, 1, v3
            v_lshlrev_b32 v5, 2, v5
            v_xor_b32 v5, v2, v5
            v_lshl_add_u32 v{vKV}, v5, 4, v4
            s_lshl_b32 s{sXB}, s{sR}, 17
            s_and_b32 s{sKB}, s{sC}, 1
            s_add_u32 s{sKB}, s{sKB}, 1
            s_lshl_b32 s{sKB}, s{sKB}, 10
            s_lshr_b32 s{sCh}, s{sC}, 1
            s_lshl_b32 s{sCh}, s{sCh}, 7
            s_add_u32 s{sKB}, s{sKB}, s{sCh}
            s_lshl_b32 s{sLx}, s{sT}, 12
            s_lshl_b32 s{sLk}, s{sT}, 11""")

        def issueA(i):
            B = slot(i)
            self.chunk(sCh, i)
            a(f"s_lshl_b32 s{sO}, s{sCh}, 7\ns_add_u32 s{sO}, s{sO}, s{sXB}")
            for k in range(4):
                a(f"s_add_u32 m0, s{sLx}, {B + 1024 * k}")
                if i == 0 and k == 0:
                    a("s_waitcnt lgkmcnt(0)")
                    self.stamp("karg", "L")
                else:
                    a(f"s_add_u32 s{sO}, s{sO}, 16384" if k == 2 else "s_nop 0")
                a(f"buffer_load_dwordx4 v{vX0 if k % 2 == 0 else vX1}, {sr(sX, 4)}, s{sO} offen {self.cfg['xpol'] if i < self.cfg['xn'] else ''} lds")
                a.vm.issue(("A", i))
            a(f"s_mul_i32 s{sO}, s{sCh}, 196608")
            for k in range(2):
                a(f"s_add_u32 m0, s{sLk}, {B + 16384 + 1024 * k}")
                a(f"s_add_u32 s{sO}, s{sO}, {'s%d' % sKB if k == 0 else 24576}")
                a(f"buffer_load_dwordx4 v{vKV}, {sr(sWQ, 4)}, s{sO} offen {self.cfg['wpol'] if i < self.cfg['wn'] else ''} lds")
                a.vm.issue(("A", i))

        def issueQ(lo, hi):
            for i in range(lo, hi):
                self.chunk(sCh, i)
                a(f"""s_mul_i32 s{sO}, s{sCh}, 196608
                    s_add_u32 m0, s{sLq}, {QW + 4096 * i}
                    s_add_u32 s{sO}, s{sO}, s{sQB}
                    buffer_load_dwordx4 v{vQ}, {sr(sWQ, 4)}, s{sO} offen lds""")
                a.vm.issue(("Q", 0))

        def setup2():
            a(f"""v_lshrrev_b32 v4, 2, v0
                s_lshl_b32 s{sO}, s{sT}, 4
                v_add_u32 v4, s{sO}, v4
                v_mul_u32_u24 v4, 3072, v4
                v_and_b32 v5, 3, v0
                v_lshl_add_u32 v{vQ}, v5, 4, v4
                s_lshl_b32 s{sQB}, s{sC}, 6
                s_lshl_b32 s{sLq}, s{sT}, 10
                s_mov_b32 s{sVM}, 0x0000ffff
                s_mov_b32 s{sVM + 1}, 0x0000ffff""")
            if self.cfg["tq"]:
                cb = 5 - self.cfg["rbits"]
                nl = 1 << (cb - 1)
                a(f"""v_lshrrev_b32 v4, {cb - 1}, v0
                    v_mul_u32_u24 v4, 3072, v4
                    v_and_b32 v5, {nl - 1}, v0
                    v_lshl_add_u32 v4, v5, 7, v4
                    s_lshr_b32 s{sO}, s2, 3
                    s_lshl_b32 s{sO}, s{sO}, 2
                    s_add_u32 s{sO}, s{sO}, s{sT}
                    s_mul_i32 s{sO}, s{sO}, 12288
                    s_lshr_b32 s{sCh}, s{sC}, {cb}
                    s_lshl_b32 s{sCh}, s{sCh}, {cb + 6}
                    s_add_u32 s{sO}, s{sO}, s{sCh}
                    s_mov_b32 m0, {CNT + 64}
                    s_mov_b64 exec, {(1 << (4 * nl)) - 1}
                    buffer_load_dword v4, {sr(sWQ, 4)}, s{sO} offen {self.cfg['qpol']} lds
                    s_mov_b64 exec, -1""")
                a.vm.issue("touch")
            a("s_setprio 0")
            self.attn_init()
            a(f"s_setprio {self.cfg['prio_l']}")

        la = self.cfg["la"]
        qs = [int(ch) for ch in str(self.cfg["qs"])[1:]]
        assert sum(qs) == 8
        nxt = 0
        for b in range(9):
            while nxt < 8 and nxt <= b + la and nxt - NSLOT + 2 <= b:
                issueA(nxt)
                nxt += 1
            if b == 0:
                setup2()
            if b >= 6:
                issueQ(sum(qs[:b - 6]), sum(qs[:b - 5]))
            if b == 8 and qs[3]:
                a("s_barrier")
                issueQ(8 - qs[3], 8)
            tag = ("A", b) if b < 8 else ("Q", 0)
            a.vm.wait(tag)
            self.stamp(f"{tag[0]}{tag[1]}", "L")
            a("s_barrier")

    O_, S_, Q_, KV_ = 16, 80, 112, 128
    vIDX, vKo, vVo, vFl, vQa_, vOne, vCa, vPa, vPs = 12, 13, 14, 15, 6, 7, 1, 2, 3

    def attn_init(self):
        a = self.a
        NST = self.cfg["nst"]
        assert NST == 4
        sHd, sQ, sOff, sRow, sCnt, sLd, sFl = range(sT0 + 8, sT0 + 15)
        self.sHd, self.sQ, self.sOff, self.sKr, self.sCnt, self.sLd, self.sFl = sHd, sQ, sOff, sRow, sCnt, sLd, sFl
        a(f"""s_and_b32 s{sHd}, s{sW}, 1
            s_lshr_b32 s{sQ}, s{sT}, 1
            v_lshrrev_b32 v5, 5, v0
            s_and_b32 s{sRow}, s{sR}, {self.cfg['rowmask']}
            s_add_u32 s{sRow}, s{sRow}, s{sQ}
            s_and_b32 s{sRow}, s{sRow}, 15
            s_mov_b32 s{sCnt}, {32 // NST}
            v_lshlrev_b32 v{self.vKo}, 4, v0
            v_and_b32 v{self.vVo}, 15, v0
            v_lshlrev_b32 v{self.vVo}, 4, v{self.vVo}
            v_lshl_add_u32 v{self.vVo}, v5, 8, v{self.vVo}
            s_lshl_b32 s{sLd}, s{sHd}, 12
            s_add_u32 s{sLd}, s{sLd}, {QF}
            v_add_u32 v{self.vQa_}, s{sLd}, v{self.vKo}
            s_lshl_b32 s{sLd}, s{sQ}, 11
            v_add_u32 v{self.vQa_}, s{sLd}, v{self.vQa_}
            v_mov_b32 v{self.vIDX}, 0xdddddddd
            v_mov_b32 v{self.vOne}, 1
            v_and_b32 v4, 0x1b, v0
            v_cmp_eq_u32 vcc, 16, v4
            v_mov_b32 v4, 0x3f803f80
            s_mul_i32 s{sLd}, s{sT}, 4608
            v_cndmask_b32 v4, 0, v4, vcc
            s_add_u32 s{sLd}, s{sLd}, {PART}
            v_lshl_add_u32 v{self.vPa}, v0, 4, s{sLd}
            v_lshl_add_u32 v{self.vPs}, v0, 2, s{sLd}
            s_lshl_b32 s{sLd}, s{sHd}, 2
            s_add_u32 s{sLd}, s{sLd}, {CNT + 8}
            v_mov_b32 v{self.vCa}, s{sLd}
            s_lshl_b32 s{sLd}, s{sT}, 2
            s_add_u32 s{sLd}, s{sLd}, {CNT + 32}
            v_mov_b32 v{self.vFl}, s{sLd}""")
        for st in range(NST):
            for k in range(8):
                a(f"v_mov_b32 v{self.KV_ + 12 * st + 4 + k}, v4")
        for k in range(64):
            a(f"v_mov_b32 v{self.O_ + k}, 0")

    def attn_start(self):
        a = self.a
        NST = self.cfg["nst"]
        sOff = self.sOff
        sHB, sFB, sRow, sFl = sT0, sT0 + 1, self.sKr, self.sFl
        a(f"""s_lshl_b32 s{sHB}, s{sC}, 1
            s_add_u32 s{sHB}, s{sHB}, s{self.sHd}
            s_lshl_b32 s{sHB}, s{sHB}, 17
            s_lshr_b32 s{sFB}, s{sC}, 1
            s_lshl_b32 s{sFB}, s{sFB}, 11
            s_add_u32 s{sFB}, s{sFB}, {CKV}
            s_lshl_b32 s{sOff}, s{sRow}, 13
            s_add_u32 s{sOff}, s{sOff}, s{sHB}
            s_lshl_b32 s{sFl}, s{sRow}, 7
            s_add_u32 s{sFl}, s{sFl}, s{sFB}""")
        self.spoll(sFl, 8)
        self.stamp("KVpoll", "L")
        for st in range(NST - 1):
            b = self.KV_ + 12 * st
            a(f"""buffer_load_dwordx4 {vr(b, 4)}, v{self.vKo}, {sr(sWS, 4)}, s{sOff} offen sc1
                s_mov_b64 exec, {sr(sVM, 2)}
                buffer_load_dwordx4 {vr(b + 4, 4)}, v{self.vVo}, {sr(sWS, 4)}, s{sOff} offen offset:1024 sc1
                buffer_load_dwordx4 {vr(b + 8, 4)}, v{self.vVo}, {sr(sWS, 4)}, s{sOff} offen offset:1536 sc1
                s_mov_b64 exec, -1
                s_add_u32 s{sOff}, s{sOff}, 2048""")
        self.stamp("KViss", "L")
        a(f"v_mov_b32 v5, {CNT}")
        a.lg.reset()
        self.lds_signal(5, self.vOne, 20)
        self.lds_probe(5, 4, 16)
        self.lds_check(5, 4, 16, 16)
        a(f"v_xor_b32 v4, 0x800, v{self.vQa_}")
        self.stamp("Qrdy", "L")
        for q in range(4):
            a(f"ds_read_b128 {vr(self.Q_ + 4 * q, 4)}, v{self.vQa_ if q >= 2 else 4} offset:{1024 * (q & 1)}")
        a(f"""s_add_u32 s{sRow}, s{sRow}, 2
            s_and_b32 s{sRow}, s{sRow}, 15
            s_lshl_b32 s{sFl}, s{sRow}, 7
            s_add_u32 s{sFl}, s{sFl}, s{sFB}
            s_mov_b32 s{sPV}, 0
            s_waitcnt lgkmcnt(0)
            s_atomic_add s{sPV}, {sr(sWS, 2)}, s{sFl} glc
            s_waitcnt vmcnt({3 * (NST - 2)})
            v_mfma_f32_32x32x16_bf16 {vr(self.S_, 16)}, {vr(self.KV_, 4)}, {vr(self.Q_, 4)}, 0
            s_nop 11""")

    def attn_loop(self):
        a = self.a
        NST = self.cfg["nst"]
        NT = 4 * NST
        O, S, Q, KV = self.O_, self.S_, self.Q_, self.KV_
        sOff, sRow, sCnt, sFl, sHB, sFB = self.sOff, self.sKr, self.sCnt, self.sFl, sT0, sT0 + 1
        sm = lambda st, qt, half, n: (f"v_smfmac_f32_32x32x32_bf16 {vr(O + 16 * qt, 16)}, {vr(KV + 12 * st + 4 + 4 * half, 4)}, "
                                      f"{vr(S + 16 * (n & 1) + 8 * half, 8)}, v{self.vIDX}")
        extra = {
            (2, 0): f"s_lshl_b32 s{sOff}, s{sRow}, 13\ns_add_u32 s{sOff}, s{sOff}, s{sHB}",
            (2, 2): f"s_cmp_eq_u32 s{sCnt}, 1\ns_cselect_b32 s{sOff}, {OOB}, s{sOff}",
            (3, 1): "s_waitcnt lgkmcnt(0)",
            (3, 2): f"s_cmp_lt_u32 s{sPV}, 8\ns_cbranch_scc1 L_kv_wait\nL_kv_ok:",
            (6, 0): f"s_add_u32 s{sRow}, s{sRow}, 2\ns_and_b32 s{sRow}, s{sRow}, 15",
            (6, 2): f"s_lshl_b32 s{sFl}, s{sRow}, 7\ns_add_u32 s{sFl}, s{sFl}, s{sFB}",
            (10, 0): f"s_mov_b32 s{sPV}, 0\ns_atomic_add s{sPV}, {sr(sWS, 2)}, s{sFl} glc",
            (NT - 3, 0): f"s_sub_u32 s{sCnt}, s{sCnt}, 1\ns_cmp_eq_u32 s{sCnt}, 0",
        }

        def ex(n, k):
            for l in extra.get((n, k), "").split("\n"):
                if l.endswith(":"):
                    a.label(l[:-1])
                else:
                    a(l)

        a(f"v_exp_f32 v{S}, v{S}\nv_exp_f32 v{S + 1}, v{S + 1}")
        a.raw(".p2align 6")
        a.label("L_attn")
        for n in range(NT + 1):
            st, qt = divmod(n, 4)
            cur = S + 16 * (n & 1)
            E = lambda lo, hi: [a(f"v_exp_f32 v{cur + k}, v{cur + k}") for k in range(lo, hi)]
            pst, pqt = divmod((n - 1) % NT, 4)
            nst, nqt = divmod((n + 1) % NT, 4)
            ld = KV + 12 * ((st - 1) % NST)
            if n:
                E(0, 2)
                a(sm(pst, pqt, 1, n - 1))
            if n == NT:
                break
            if n == NT - 2:
                a("s_cbranch_scc1 L_attn_tail")
            ex(n, 0)
            if qt == 3:
                a(f"s_waitcnt vmcnt({3 * (NST - 2)})")
            E(2, 5)
            a(f"v_mfma_f32_32x32x16_bf16 {vr(S + 16 * ((n + 1) & 1), 16)}, {vr(KV + 12 * nst, 4)}, {vr(Q + 4 * nqt, 4)}, 0")
            ex(n, 1)
            if qt == 0:
                a(f"buffer_load_dwordx4 {vr(ld, 4)}, v{self.vKo}, {sr(sWS, 4)}, s{sOff} offen sc1")
            if qt == 2 and st:
                a(f"s_add_u32 s{sOff}, s{sOff}, 2048")
            E(5, 10)
            a(sm(st, qt, 0, n))
            ex(n, 2)
            if qt == 1:
                a(f"""s_mov_b64 exec, {sr(sVM, 2)}
                    buffer_load_dwordx4 {vr(ld + 4, 4)}, v{self.vVo}, {sr(sWS, 4)}, s{sOff} offen offset:1024 sc1
                    buffer_load_dwordx4 {vr(ld + 8, 4)}, v{self.vVo}, {sr(sWS, 4)}, s{sOff} offen offset:1536 sc1
                    s_mov_b64 exec, -1""")
            E(10, 16)
        a("s_branch L_attn")
        self.sm = sm

    def attn_finish(self):
        a = self.a
        O, S, Q, KV, T, sm = self.O_, self.S_, self.Q_, self.KV_, 192, self.sm
        sA, sF, m = sT0, sT0 + 1, sT0 + 2
        E = lambda n, lo, hi: [a(f"v_exp_f32 v{S + 16 * (n & 1) + k}, v{S + 16 * (n & 1) + k}") for k in range(lo, hi)]

        def give(q):
            o = O + 16 * q
            a(f"""ds_write_b128 v{self.vPa}, {vr(o, 4)} offset:{2304 * q}
                ds_write_b128 v{self.vPa}, {vr(o + 4, 4)} offset:{2304 * q + 1024}
                ds_write_b32 v{self.vPs}, v{o + 8} offset:{2304 * q + 2048}""")

        a.label("L_attn_tail")
        a.lg.reset()
        a("s_waitcnt lgkmcnt(0)")
        give(0)
        E(14, 2, 5)
        a(f"v_mfma_f32_32x32x16_bf16 {vr(S + 16, 16)}, {vr(KV + 36, 4)}, {vr(Q + 12, 4)}, 0")
        a(f"s_lshl_b32 s{sF}, s{sR}, 1")
        E(14, 5, 10)
        a(sm(3, 2, 0, 14))
        give(1)
        if self.cfg["rel"] == 0:
            a(f"ds_write_b32 v{self.vFl}, v{self.vOne}")
        self.lds_signal(self.vCa, self.vOne, 0)
        E(14, 10, 16)
        E(15, 0, 2)
        a(sm(3, 2, 1, 14))
        self.lds_probe(self.vCa, 4, 0)
        a(f"""s_add_u32 s{sF}, s{sF}, s{self.sQ}
            s_lshl_b32 s{sA}, s{sF}, 5
            s_add_u32 s{sA}, s{sA}, s{sC}
            s_lshl_b32 s{sA}, s{sA}, 1
            s_add_u32 s{sA}, s{sA}, s{self.sHd}
            s_mul_i32 s{m}, s{self.sQ}, -18432
            s_add_u32 s{m}, s{m}, 9216""")
        E(15, 2, 10)
        a(sm(3, 3, 0, 15))
        a(f"""s_lshl_b32 s{sA}, s{sA}, 10
            s_add_u32 s{sA}, s{sA}, {WS_O}
            v_add_u32 v{self.vPa}, s{m}, v{self.vPa}
            v_add_u32 v{self.vPs}, s{m}, v{self.vPs}""")
        E(15, 10, 16)
        a(f"""s_lshl_b32 s{sF}, s{sF}, 2
            s_lshr_b32 s{m}, s{sC}, 2""")
        a(sm(3, 3, 1, 15))
        a(f"""s_add_u32 s{sF}, s{sF}, s{m}
            s_lshl_b32 s{sF}, s{sF}, 7
            s_add_u32 s{sF}, s{sF}, {CO}""")
        if self.cfg["rel"] == 1:
            a(f"ds_write_b32 v{self.vFl}, v{self.vOne}")
            a.lg.issue("rel")
        self.stamp("attn1", "L")
        self.lds_check(self.vCa, 4, 0, 2)
        self.stamp("pair", "L")
        for q in range(2):
            a(f"""ds_read_b32 v{T + 12 * q + 8}, v{self.vPs} offset:{2304 * q + 2048}
                ds_read_b128 {vr(T + 12 * q, 4)}, v{self.vPa} offset:{2304 * q}
                ds_read_b128 {vr(T + 12 * q + 4, 4)}, v{self.vPa} offset:{2304 * q + 1024}""")
        for q in range(2):
            o, t = O + 32 + 16 * q, T + 12 * q
            a(f"s_waitcnt lgkmcnt({3 - 3 * q})\nv_add_f32 v{o + 8}, v{o + 8}, v{t + 8}")
            for k in range(8):
                a(f"v_add_f32 v{o + k}, v{o + k}, v{t + k}")
            if q == 0:
                self.normalise(0)
        self.normalise(1)
        if self.cfg["rel"] == 2:
            a(f"ds_write_b32 v{self.vFl}, v{self.vOne}")
        self.stamp("Ost", "L")
        lo, hi = self.cfg.get("l_lo", 2.0 ** -24), self.cfg.get("l_hi", 2.0 ** 64)
        for q in range(2):
            o, t = O + 32 + 16 * q, T + 12 * q
            a(f"""v_pk_add_f32 {vr(t, 2)}, {vr(o, 2)}, {vr(o + 2, 2)}
                v_pk_add_f32 {vr(t + 2, 2)}, {vr(o + 4, 2)}, {vr(o + 6, 2)}
                v_cmp_lt_f32 vcc, {f32(lo)}, v{o + 8}
                v_pk_add_f32 {vr(t, 2)}, {vr(t, 2)}, {vr(t + 2, 2)}
                s_and_b64 {sr(m, 2)}, {'vcc' if q == 0 else sr(m, 2)}, vcc
                v_cmp_gt_f32 vcc, {f32(hi)}, v{o + 8}
                v_add_f32 v{t}, v{t}, v{t + 1}
                s_and_b64 {sr(m, 2)}, {sr(m, 2)}, vcc
                v_sub_f32 v{t}, v{t}, v{t}
                v_cmp_eq_f32 vcc, 0, v{t}
                s_and_b64 {sr(m, 2)}, {sr(m, 2)}, vcc""")
        a(f"s_cmp_eq_u64 {sr(m, 2)}, -1\ns_cbranch_scc0 L_fallback")
        a.label("L_publish")
        a("s_waitcnt vmcnt(0)")
        self.signal(sF)

    def normalise(self, q):
        a = self.a
        o, d = self.O_ + 32 + 16 * q, 224 + 4 * q
        a(f"v_rcp_f32 v{o + 9}, v{o + 8}\ns_add_u32 s{sT0 + 4}, s{sT0}, {32768 * q}")
        for k in range(8):
            a(f"v_mul_f32 v{o + k}, v{o + k}, v{o + 9}")
        for k in range(4):
            a(f"v_cvt_pk_bf16_f32 v{d + k}, v{o + 2 * k}, v{o + 2 * k + 1}")
        a(f"buffer_store_dwordx4 {vr(d, 4)}, v{self.vKo}, {sr(sWS, 4)}, s{sT0 + 4} offen sc1")

    def fallback(self):
        a = self.a
        S, M, K, V, vMx = self.S_, self.S_ + 16, self.KV_, self.KV_ + 4, 4
        sO, sN = sT0 + 2, sT0 + 3
        a.label("L_kv_wait")
        self.spoll(self.sFl, 8, "L_kv_ok")
        a.label("L_fallback")
        a("s_waitcnt vmcnt(0)")
        for q in range(2):
            O, Q = self.O_ + 32 + 16 * q, self.Q_ + 8 + 4 * q
            a(f"""v_mov_b32 v{vMx}, 0xff800000
                s_lshl_b32 s{sO}, s{sC}, 1
                s_add_u32 s{sO}, s{sO}, s{self.sHd}
                s_lshl_b32 s{sO}, s{sO}, 17
                s_mov_b32 s{sN}, 64""")
            a.label(f"L_fb_max{q}")
            a(f"""buffer_load_dwordx4 {vr(K, 4)}, v{self.vKo}, {sr(sWS, 4)}, s{sO} offen sc1
                s_waitcnt vmcnt(0)
                v_mfma_f32_32x32x16_bf16 {vr(S, 16)}, {vr(K, 4)}, {vr(Q, 4)}, 0
                s_nop 11""")
            for k in range(8):
                a(f"v_max3_f32 v{vMx}, v{S + 2 * k}, v{S + 2 * k + 1}, v{vMx}")
            a(f"""s_add_u32 s{sO}, s{sO}, 2048
                s_sub_u32 s{sN}, s{sN}, 1
                s_cmp_lg_u32 s{sN}, 0
                s_cbranch_scc1 L_fb_max{q}
                v_mov_b32 v{M}, v{vMx}
                s_nop 1
                v_permlane32_swap_b32 v{vMx}, v{M}
                s_nop 1
                v_max_f32 v{vMx}, v{vMx}, v{M}
                s_sub_u32 s{sO}, s{sO}, 131072
                s_mov_b32 s{sN}, 64""")
            for k in range(16):
                a(f"v_sub_f32 v{M + k}, 0, v{vMx}\nv_mov_b32 v{O + k}, 0")
            a.label(f"L_fb_sum{q}")
            a(f"""buffer_load_dwordx4 {vr(K, 4)}, v{self.vKo}, {sr(sWS, 4)}, s{sO} offen sc1
                s_mov_b64 exec, {sr(sVM, 2)}
                buffer_load_dwordx4 {vr(V, 4)}, v{self.vVo}, {sr(sWS, 4)}, s{sO} offen offset:1024 sc1
                buffer_load_dwordx4 {vr(V + 4, 4)}, v{self.vVo}, {sr(sWS, 4)}, s{sO} offen offset:1536 sc1
                s_mov_b64 exec, -1
                s_waitcnt vmcnt(0)
                v_mfma_f32_32x32x16_bf16 {vr(S, 16)}, {vr(K, 4)}, {vr(Q, 4)}, {vr(M, 16)}
                s_nop 11""")
            for k in range(16):
                a(f"v_exp_f32 v{S + k}, v{S + k}")
            a(f"""s_nop 1
                v_smfmac_f32_32x32x32_bf16 {vr(O, 16)}, {vr(V, 4)}, {vr(S, 8)}, v{self.vIDX}
                v_smfmac_f32_32x32x32_bf16 {vr(O, 16)}, {vr(V + 4, 4)}, {vr(S + 8, 8)}, v{self.vIDX}
                s_nop 7
                s_add_u32 s{sO}, s{sO}, 2048
                s_sub_u32 s{sN}, s{sN}, 1
                s_cmp_lg_u32 s{sN}, 0
                s_cbranch_scc1 L_fb_sum{q}
                s_nop 3""")
            self.normalise(q)
        a("s_branch L_publish")

    XR, ACC, WS_ = 128, 32, 8
    vFlo, vFhi, vF, vCnt, v1_, vTmp = 0, 1, 2, 5, 6, 7

    def m_setup(self):
        a = self.a
        self.vXA, self.vXAh, self.vWk, self.vWkh, self.vQa, self.vST, self.vGo, self.vQFa, self.vGa = 80, 84, 88, 90, 92, 93, 94, 95, 96
        self.kload(sDBG, sWG, sWU, sWD, sWO, sOUT, sGW)
        self.srd(sDBG, sWG, sWU, sWD, sWO, sOUT, sGW)
        skip = self.lab("noreset")
        a(f"""s_lshr_b32 s{sT0 + 3}, s2, 5
            s_or_b32 s{sT0 + 3}, s{sT0 + 3}, s{sW}
            s_cmp_lg_u32 s{sT0 + 3}, 0
            s_cbranch_scc1 {skip}
            s_mul_i32 s{sT0 + 3}, s2, 1536
            s_add_u32 s{sT0 + 3}, s{sT0 + 3}, {WS_FLAG}
            s_mov_b32 s{sPV}, 0
            s_waitcnt lgkmcnt(0)""")
        for k in range(12):
            a(f"s_atomic_and s{sPV}, {sr(sWS, 2)}, s{sT0 + 3}\ns_add_u32 s{sT0 + 3}, s{sT0 + 3}, 128")
        a.label(skip)
        a(f"""s_lshl_b32 s{sRB}, s{sT0}, 2
            s_and_b32 s{sT0 + 2}, s{sT0 + 1}, 3
            s_add_u32 s{sRB}, s{sRB}, s{sT0 + 2}
            s_lshr_b32 s{sCB}, s{sT0 + 1}, 2
            v_and_b32 v16, 31, v0
            v_lshrrev_b32 v17, 5, v0
            v_bfe_u32 v18, v0, 1, 3
            v_xor_b32 v18, v18, v17
            s_lshl_b32 s{sT0}, s{sT}, 12
            v_lshlrev_b32 v19, 7, v16
            v_lshl_add_u32 v19, v18, 4, v19
            v_add_u32 v{self.vXA}, s{sT0}, v19""")
        for s in range(1, 4):
            a(f"v_xor_b32 v{self.vXA + s}, {32 * s}, v{self.vXA}")
        for s in range(4):
            a(f"v_add_u32 v{self.vXAh + s}, 0x10000, v{self.vXA + s}")
        a(f"""v_bfe_u32 v18, v0, 2, 2
            v_lshl_add_u32 v18, v17, 3, v18
            v_bfe_u32 v19, v0, 4, 1
            v_and_b32 v20, 3, v0
            v_lshlrev_b32 v20, 3, v20
            v_lshl_add_u32 v20, v19, 5, v20
            v_bfe_u32 v21, v0, 3, 1
            v_lshl_add_u32 v22, v18, 7, v20
            v_lshl_add_u32 v{self.vWk}, v21, 6, v22
            v_xor_b32 v{self.vWk + 1}, 64, v{self.vWk}
            v_add_u32 v{self.vWkh}, 0x10000, v{self.vWk}
            v_add_u32 v{self.vWkh + 1}, 0x10000, v{self.vWk + 1}
            v_lshl_add_u32 v{self.vQa}, v18, 6, v20
            v_add_u32 v{self.vQa}, {QW}, v{self.vQa}
            s_lshl_b32 s{sT0}, s{sT}, 10
            s_add_u32 s{sT0}, s{sT0}, {QF}
            v_lshl_add_u32 v{self.vQFa}, v0, 4, s{sT0}
            v_mul_u32_u24 v22, 192, v18
            v_and_b32 v23, 0x33, v0
            v_bfe_u32 v25, v0, 2, 1
            v_lshl_add_u32 v23, v25, 3, v23
            v_lshl_add_u32 v23, v21, 2, v23
            v_lshlrev_b32 v23, 4, v23
            v_and_b32 v24, 15, v0
            v_lshlrev_b32 v{self.vGa}, 7, v17
            v_lshlrev_b32 v24, 4, v24
            v_lshl_add_u32 v24, v17, 8, v24
            v_lshl_add_u32 v24, v19, 17, v24
            v_add_u32 v24, 1024, v24
            v_lshlrev_b32 v26, 4, v0
            s_lshl_b32 s{sT0}, s{sT}, 4""")
        for k in range(3):
            a(f"""v_add_u32 v27, {64 * k}, v0
                v_mul_u32_u24 v28, 2731, v27
                v_lshrrev_b32 v28, 15, v28
                v_mul_u32_u24 v29, 12, v28
                v_sub_u32 v29, v27, v29
                v_add_u32 v28, s{sT0}, v28
                v_mul_u32_u24 v28, 2752, v28
                v_lshl_add_u32 v{self.vF + k}, v29, 4, v28""")
        a(f"""v_add_u32 v{self.vFlo}, v22, v20
            v_add_u32 v{self.vFhi}, 0x10000, v{self.vFlo}
            v_mov_b32 v{self.vCnt}, {CNT}
            v_lshl_add_u32 v{self.v1_}, v26, 3, 4""")
        for i in range(4):
            a(f"v_mov_b32 v{100 + i}, 0")
        a(f"ds_write_b128 v{self.vCnt}, v[100:103]\nds_write_b128 v{self.vCnt}, v[100:103] offset:16\nds_write_b128 v{self.vCnt}, v[100:103] offset:32\ns_waitcnt lgkmcnt(0)")
        skip = self.lab("nogo")
        a(f"""s_lshr_b32 s{sT0}, s2, 5
            s_or_b32 s{sT0}, s{sT0}, s{sW}
            s_cmp_lg_u32 s{sT0}, 0
            s_cbranch_scc1 {skip}
            s_and_b32 s{sT0}, s2, 1
            s_lshl_b32 s{sT0}, s{sT0}, 7
            s_atomic_add s{sONE}, {sr(sDBG, 2)}, s{sT0}
            s_waitcnt lgkmcnt(0)""")
        a.label(skip)
        if self.cfg["tf"]:
            assert self.cfg["rbits"] == 3 and self.cfg["rot"] in (3, 4)
            n = self.cfg["tf"]
            up, done = self.lab("tfu"), self.lab("tfd")
            a(f"""v_lshrrev_b32 v27, 8, v26
                v_add_u32 v27, s{sDEL}, v27
                v_and_b32 v27, 3, v27
                v_bfe_u32 v28, v26, 7, 1
                v_lshl_add_u32 v27, v27, 6, v28
                v_mul_u32_u24 v27, 2752, v27
                v_bfe_u32 v28, v26, 4, 3
                v_lshlrev_b32 v28, 7, v28
                v_min_u32 v28, 764, v28
                v_add_u32 v27, v27, v28
                s_lshr_b32 s{sT0}, s{sT}, 1
                s_lshl_b32 s{sT0}, s{sT0}, 7
                s_lshr_b32 s{sT0 + 1}, s2, 3
                s_add_u32 s{sT0}, s{sT0}, s{sT0 + 1}
                s_mul_i32 s{sT0}, s{sT0}, 5504
                s_lshr_b32 s{sT0 + 1}, s{sC}, 2
                s_mul_i32 s{sT0 + 1}, s{sT0 + 1}, 768
                s_add_u32 s{sT0}, s{sT0}, s{sT0 + 1}
                s_mov_b32 m0, {CNT + 64}
                s_mov_b32 exec_lo, {hex(0x7f7f7f7f & ((1 << min(32, 16 * n)) - 1))}
                s_mov_b32 exec_hi, {hex(0x7f7f7f7f & ((1 << max(0, 16 * n - 32)) - 1))}
                s_bitcmp1_b32 s{sT}, 0
                s_cbranch_scc1 {up}
                buffer_load_dword v27, {sr(sWG, 4)}, s{sT0} offen lds
                s_branch {done}""")
            a.label(up)
            a(f"buffer_load_dword v27, {sr(sWU, 4)}, s{sT0} offen lds")
            a.label(done)
            a("s_mov_b64 exec, -1")

    def pass_a(self, isv):
        a = self.a
        a.lg.reset()
        a.vm.reset()
        a(f"v_mov_b32 v{self.vST}, v{24 if isv else 23}")
        XR, ACC, W = self.XR, self.ACC, self.WS_
        sB = sT0 + 2
        atm = self.cfg["atm"]
        wr = lambda g: 104 if (g == 31 and atm) else W + 8 * (g % 3)

        def reads(g):
            i, s = divmod(g, 4)
            B = slot(i)
            self.dsr("ds_read_b128", XR + 4 * g, 4, self.vXA + s, self.vXAh + s, B, ("x", g))
            for ct in range(2):
                for u in range(2):
                    self.dsr("ds_read_b64_tr_b16", wr(g) + 4 * ct + 2 * u, 2, self.vWk + ct, self.vWkh + ct,
                             B + 16384 + (16 * s + 4 * u) * 128, ("w", g, ct))

        def comp(g, cts=(0, 1)):
            for ct in cts:
                a.lg.wait(("x", g), ("w", g, ct))
                wf, xf = vr(wr(g) + 4 * ct, 4), vr(XR + 4 * g, 4)
                d = vr(ACC + 16 * ct, 16)
                A, Bm = (xf, wf) if isv else (wf, xf)
                a(f"v_mfma_f32_32x32x16_bf16 {d}, {A}, {Bm}, {d if g else 0}")

        def kv_store(ct, q):
            d = 112 + 8 * ct + 4 * q
            for k in range(4):
                s = ACC + 16 * ct + 8 * q + 2 * k
                a(f"v_cvt_pk_bf16_f32 v{d + k}, v{s}, v{s + 1}")
            if isv:
                a(f"buffer_store_dwordx4 {vr(d, 4)}, v{self.vST}, {sr(sWS, 4)}, s{sB} offen offset:{512 * q} sc1")
                if q == 1 and ct == 0:
                    a(f"s_add_u32 s{sB}, s{sB}, 262144")
            else:
                a(f"buffer_store_dwordx4 {vr(d, 4)}, v{self.vST}, {sr(sWS, 4)}, s{sB} offen sc1")
                a(f"s_add_u32 s{sB}, s{sB}, 131072")

        a(f"""s_lshr_b32 s{sB}, s{sC}, 1
            s_lshl_b32 s{sB}, s{sB}, 19
            s_lshl_b32 s{sB + 1}, s{sR}, 2
            s_add_u32 s{sB + 1}, s{sB + 1}, s{sT}
            s_lshl_b32 s{sB + 1}, s{sB + 1}, 11
            s_add_u32 s{sB}, s{sB}, s{sB + 1}""")
        for i in range(8):
            g0 = 4 * i
            if i:
                a.lg.drain()
            if i == 7 and atm:
                comp(27)
                a("s_barrier")
                for g in range(28, 31):
                    reads(g)
                comp(28, (0,))
                reads(31)
                for g in range(29, 32):
                    comp(g, (0,))
                comp(28, (1,))
                a("s_nop 5")
                comp(29, (1,))
                a("s_nop 3")
                kv_store(0, 0)
                comp(30, (1,))
                comp(31, (1,))
                kv_store(0, 1)
                a("s_nop 5")
                kv_store(1, 0)
                kv_store(1, 1)
                break
            a("s_barrier")
            if i == 0:
                self.stamp("BA0", "M")
            reads(g0)
            reads(g0 + 1)
            if i:
                comp(g0 - 1)
            reads(g0 + 2)
            if i == 5:
                a(f"buffer_load_dword v{self.vGo}, v{self.vGa}, {sr(sDBG, 4)}, 0 offen sc1")
            comp(g0)
            reads(g0 + 3)
            comp(g0 + 1)
            comp(g0 + 2)
        if not atm:
            comp(31)
            a("s_nop 10")
            for k in range(4):
                kv_store(k >> 1, k & 1)
        self.stamp("KVst", "M")

    def kv_flag(self):
        a = self.a
        ok = self.lab("go")
        a(f"""s_lshr_b32 s{sT0}, s{sC}, 1
            s_lshl_b32 s{sT0}, s{sT0}, 4
            s_add_u32 s{sT0}, s{sT0}, s{sR}
            s_lshl_b32 s{sT0}, s{sT0}, 7
            s_add_u32 s{sT0}, s{sT0}, {CKV}
            s_waitcnt vmcnt({4 + len(a.vm.q)})
            v_cmp_gt_u32 vcc, 16, v{self.vGo}
            s_cbranch_vccz {ok}""")
        q = list(a.vm.q)
        self.poll(self.vGa, "0", self.vGo, sDBG)
        a.vm.q = q
        a.label(ok)

    def issue_f(self, i):
        a = self.a
        sCh, sO, sFB, sLf = sT0 + 4, sT0 + 5, sT0 + 6, sT0 + 7
        if i == 0:
            a(f"s_mul_i32 s{sFB}, s{sC}, 192\ns_mul_i32 s{sLf}, s{sT}, 3072")
        self.chunk(sCh, i)
        a(f"s_mul_i32 s{sO}, s{sCh}, 176128\ns_add_u32 s{sO}, s{sO}, s{sFB}")
        for m in range(2):
            for k in range(3):
                a(f"s_add_u32 m0, s{sLf}, {slot(i) + 12288 * m + 1024 * k}\ns_nop 0")
                a(f"buffer_load_dwordx4 v{self.vF + k}, {sr(sWG if m == 0 else sWU, 4)}, s{sO} offen {self.cfg['fpol'] if i < self.cfg['fn'] else ''} lds")
                a.vm.issue(("F", i))

    def touch(self, i, vA):
        a = self.a
        sA = sT0 + 8
        a(f"""s_lshr_b32 s{sA}, s2, 3
            s_lshl_b32 s{sA}, s{sA}, 2
            s_add_u32 s{sA}, s{sA}, s{sT}
            s_mul_i32 s{sA}, s{sA}, {11008 if i < 6 else 4096}
            s_add_u32 s{sA}, s{sA}, {2048 * (i if i < 6 else i - 6)}
            s_mov_b32 m0, {CNT + 64}
            s_mov_b64 exec, {'0x3f' if i == 5 else '0xffff'}
            buffer_load_dword v{vA}, {sr(sWD if i < 6 else sWO, 4)}, s{sA} offen {self.cfg['tpol']} lds
            s_mov_b64 exec, -1""")
        a.vm.issue("touch")

    def pass_q(self):
        a = self.a
        XR, W, QACC = self.XR, self.WS_, 64
        a.lg.reset()
        a.vm.reset()
        flag_at, f0_at = self.cfg["kvflag_at"], self.cfg["f0_at"]

        def reads(g):
            for u in range(2):
                self.dsr("ds_read_b64_tr_b16", W + 4 * (g % 6) + 2 * u, 2, self.vQa, None, (16 * g + 4 * u) * 64, g)

        def hooks(j):
            if j == flag_at:
                if a.vm.q:
                    a(f"s_cmp_eq_u32 s{sC}, 15\ns_cbranch_scc0 L_kvw\ns_waitcnt vmcnt(0)")
                    a.label("L_kvw")
                a(f"s_waitcnt vmcnt({len(a.vm.q)})")
                self.stamp("KVack", "M")
                self.signal(sT0)
                self.stamp("KVflag", "M")
            if j == f0_at:
                skip = self.lab("nof0")
                a(f"s_cmp_eq_u32 s{sC}, 15\ns_cbranch_scc1 {skip}")
                self.issue_f(0)
                a.label(skip)
            if self.cfg["f1_early"] and j == self.cfg["f1_early"]:
                skip = self.lab("nof1")
                a(f"s_cmp_eq_u32 s{sC}, 15\ns_cbranch_scc1 {skip}")
                self.issue_f(1)
                a.label(skip)

        if self.cfg["qs"] % 10:
            a("s_barrier")
        self.kv_flag()
        hooks(-2)
        hooks(-1)
        self.stamp("F0iss", "M")
        a("s_barrier")
        self.stamp("BQ", "M")
        for g in range(6):
            reads(g)
        nxt = 6
        for g in range(32):
            a.lg.wait(g)
            d = vr(QACC, 16)
            a(f"v_mfma_f32_32x32x16_bf16 {d}, {vr(W + 4 * (g % 6), 4)}, {vr(XR + 4 * g, 4)}, {d if g else 0}")
            if nxt < 32:
                reads(nxt)
                nxt += 1
            hooks(g)
        a(f"v_mov_b32 v98, {f32(0.25 * LOG2E)}\ns_nop 10")
        for k in range(8):
            a(f"v_pk_mul_f32 {vr(QACC + 2 * k, 2)}, {vr(QACC + 2 * k, 2)}, v[98:99] op_sel_hi:[1,0]")
        for hd in range(2):
            for k in range(4 * hd, 4 * hd + 4):
                a(f"v_cvt_pk_bf16_f32 v{QACC + k}, v{QACC + 2 * k}, v{QACC + 2 * k + 1}")
            a(f"ds_write_b128 v{self.vQFa}, {vr(QACC + 4 * hd, 4)} offset:{4096 * hd}")
        self.lds_signal(self.vCnt, self.v1_, 16)
        self.stamp("Qdone", "M")
        hooks(32)

    def pass_f(self):
        a = self.a
        XR, ACC, W = self.XR, self.ACC, self.WS_
        N = 192

        def reads(j):
            g, t = divmod(j, 6)
            i, s = divmod(g, 4)
            for u in range(2):
                self.dsr("ds_read_b64_tr_b16", W + 4 * (j % 6) + 2 * u, 2, self.vFlo, self.vFhi,
                         slot(i) + 12288 * (t & 1) + (16 * s + 4 * u) * 192 + 64 * (t >> 1), j)

        gf, gat = self.cfg["gate_f"], self.cfg.get("gate_at", 8)

        def landed(i):
            a.vm.wait(("F", i))
            self.lds_signal(self.vCnt, self.v1_, 0)
            if i + 1 != gf:
                more(i)

        def more(i):
            if i + 1 < 8 and not (i == 0 and self.cfg["f1_early"]):
                self.issue_f(i + 1)
            if self.cfg["touch"] and i + 1 >= gf:
                for k in (range(i + 1) if i + 1 == gf else [i]):
                    self.touch(k, self.v1_)

        landed(0)
        self.lds_probe(self.vCnt, self.vTmp, 0)
        self.lds_check(self.vCnt, self.vTmp, 0, 16)
        self.stamp("F0", "M")
        for j in range(6):
            reads(j)
        sig = self.cfg["sig_at"]
        for j in range(N):
            g, t = divmod(j, 6)
            i, jj = divmod(j, 24)
            a.lg.wait(j)
            d = vr(ACC + 16 * t, 16)
            a(f"v_mfma_f32_32x32x16_bf16 {d}, {vr(W + 4 * (j % 6), 4)}, {vr(XR + 4 * g, 4)}, {d if g else 0}")
            if jj == 23:
                self.stamp(f"f{i}", "M")
            if gf and j == gat - 2:
                self.lds_probe(self.vCnt, self.vTmp, 20)
            if gf and j == gat:
                self.lds_check(self.vCnt, self.vTmp, 20, 4)
                more(gf - 1)
            if i < 7:
                if jj == (sig if i or gf != 1 else 14):
                    landed(i + 1)
                if jj == 15:
                    self.lds_probe(self.vCnt, self.vTmp, 0)
                if jj == 18:
                    self.lds_check(self.vCnt, self.vTmp, 0, 16 * (i + 2))
            if j + 6 < N:
                reads(j + 6)
        self.lds_signal(self.vCnt, self.v1_, 0)
        self.stamp("Fdone", "M")

    def gelu(self):
        a = self.a
        ACC = self.ACC
        c0, c1, T, OUT, vOff = 130, 132, 136, 168, 134
        sT0 = globals()["sT0"] + 12
        nw = [0]

        def stage(j):
            if j and nw[0] < self.cfg["wpre"]:
                self.issue_w(nw[0])
                nw[0] += 1
                self.cap()

        k0 = -2.0 * 0.7978845608028654 * LOG2E
        self.lane(vOff)
        a(f"""v_mov_b32 v{c0}, {f32(k0)}
            v_mov_b32 v{c0 + 1}, {f32(k0)}
            v_mov_b32 v{c1}, {f32(k0 * 0.044715)}
            v_mov_b32 v{c1 + 1}, {f32(k0 * 0.044715)}
            v_lshlrev_b32 v{vOff}, 4, v{vOff}
            s_lshl_b32 s{sT0}, s{sR}, 2
            s_add_u32 s{sT0}, s{sT0}, s{sT}
            s_mul_i32 s{sT0}, s{sT0}, 86
            s_mul_i32 s{sT0 + 1}, s{sC}, 6
            s_add_u32 s{sT0}, s{sT0}, s{sT0 + 1}
            s_lshl_b32 s{sT0}, s{sT0}, 10
            s_add_u32 s{sT0}, s{sT0}, {WS_H}""")
        for j in range(3):
            G, U = ACC + 32 * j, ACC + 32 * j + 16
            p = lambda b, k: vr(b + 2 * k, 2)
            for k in range(8):
                a(f"v_pk_mul_f32 {p(T, k)}, {p(G, k)}, {p(G, k)}")
            stage(j)
            for k in range(8):
                a(f"v_pk_fma_f32 {p(T, k)}, {p(T, k)}, {vr(c1, 2)}, {vr(c0, 2)}")
            stage(j)
            for k in range(8):
                a(f"v_pk_mul_f32 {p(T, k)}, {p(T, k)}, {p(G, k)}")
            stage(j)
            for k in range(16):
                a(f"v_exp_f32 v{T + k}, v{T + k}")
            stage(j)
            for k in range(8):
                a(f"v_pk_mul_f32 {p(G, k)}, {p(G, k)}, {p(U, k)}")
            stage(j)
            for k in range(8):
                a(f"v_pk_add_f32 {p(T, k)}, {p(T, k)}, 1.0 op_sel_hi:[1,0]")
            stage(j)
            for k in range(16):
                a(f"v_rcp_f32 v{T + k}, v{T + k}")
            if j == 0:
                self.lds_probe(self.vCnt, self.vTmp, 0)
            a(f"""s_cmp_lt_u32 s{sT0 + 1}, {86 - 2 * j}
                s_cselect_b32 s{sT0 + 2}, s{sT0}, {OOB}""")
            for k in range(8):
                a(f"v_pk_mul_f32 {p(G, k)}, {p(G, k)}, {p(T, k)}")
            for q in range(2):
                d = OUT + 8 * j + 4 * q
                for k in range(4):
                    a(f"v_cvt_pk_bf16_f32 v{d + k}, v{G + 8 * q + 2 * k}, v{G + 8 * q + 2 * k + 1}")
                a(f"buffer_store_dwordx4 {vr(d, 4)}, v{vOff}, {sr(sWS, 4)}, s{sT0 + 2} offen offset:{1024 * q} sc1")
                a.vm.issue("H")
            a(f"s_add_u32 s{sT0}, s{sT0}, 2048")
            if j == 0:
                self.lds_check(self.vCnt, self.vTmp, 0, 144)
        assert nw[0] == self.cfg["wpre"]

    def gate(self):
        a = self.a
        XR, GB, Z, vO = self.XR, 32, 24, 28
        sCh = sT0 + 4
        a("s_waitcnt vmcnt(0)")
        a.vm.reset()
        self.lane(vO + 1)
        a(f"v_lshrrev_b32 v{vO}, 5, v{vO + 1}\nv_lshlrev_b32 v{vO}, 4, v{vO}")
        for k in range(4):
            a(f"v_mov_b32 v{Z + k}, 0")
        for half in range(2):
            for i in range(4 * half, 4 * half + 4):
                self.chunk(sCh, i)
                a(f"s_lshl_b32 s{sCh}, s{sCh}, 7")
                for s in range(4):
                    a(f"buffer_load_dwordx4 {vr(GB + 16 * (i & 3) + 4 * s, 4)}, v{vO}, {sr(sGW, 4)}, s{sCh} offen offset:{32 * s}")
            if self.cfg["touch"]:
                for i in range(4 * half, 4 * half + 4):
                    self.touch(i, self.v1_)
            a("s_waitcnt vmcnt(0)")
            for k in range(64):
                a(f"v_dot2c_f32_bf16 v{Z + (k & 3)}, v{XR + 64 * half + k}, v{GB + k}")
        a(f"""s_lshl_b32 s{sT0}, s{sR}, 2
            s_add_u32 s{sT0}, s{sT0}, s{sT}
            s_lshl_b32 s{sT0}, s{sT0}, 7
            s_add_u32 s{sT0}, s{sT0}, {WS_G}
            v_add_f32 v{Z}, v{Z}, v{Z + 1}
            v_add_f32 v{Z + 2}, v{Z + 2}, v{Z + 3}
            v_add_f32 v{Z}, v{Z}, v{Z + 2}
            v_mov_b32 v{Z + 1}, v{Z}
            v_lshlrev_b32 v{vO}, 2, v{vO + 1}
            s_nop 0
            v_permlane32_swap_b32 v{Z}, v{Z + 1}
            s_nop 1
            v_add_f32 v{Z}, v{Z}, v{Z + 1}
            s_mov_b32 s{sT0 + 12}, s{sT0}""")
        a.lg.reset()
        self.lds_probe(self.vCnt, self.vTmp, 16)
        self.lds_check(self.vCnt, self.vTmp, 16, 16)
        self.ffn2_setup()
        for k in range(self.cfg["wpre"]):
            self.issue_w(k)
            self.cap()
        a(f"""s_mov_b32 exec_hi, 0
            buffer_store_dword v{Z}, v{vO}, {sr(sWS, 4)}, s{sT0 + 12} offen sc1
            s_mov_b64 exec, -1""")

    def ffn2_setup(self):
        a = self.a
        ACC, HS, WB = 32, 128, 96
        vL, vD, vH, vA0, vA1, vOw, vOt, vDump, vP, vZ, vD2, vH2 = range(8, 20)
        self.vL, self.vDump, self.vZ, self.vA0, self.vA1, self.vP = vL, vDump, vZ, vA0, vA1, vP
        sRing, sS0, sS1, sWc, sW0, sWe, sHc, sH0, sHe, sHl, sFl, sRow = range(sT0, sT0 + 12)
        self.sRow = sRow
        NS, PD, NR, NH, CAP = 22, self.cfg["pd"], 16, 16, self.cfg["cap"]
        self.lane(vL)
        a(f"""s_lshl_b32 s{sRing}, s{sT}, 15
            v_lshrrev_b32 v20, 3, v{vL}
            v_and_b32 v21, 7, v{vL}
            v_bfe_u32 v22, v{vL}, 4, 1
            v_lshlrev_b32 v23, 2, v22
            v_xor_b32 v21, v21, v23
            v_lshlrev_b32 v21, 4, v21
            v_lshl_add_u32 v{vD}, v20, 10, v21
            v_add_u32 v{vD2}, 7168, v{vD}
            s_and_b32 s{sS0}, s{sRB}, 3
            s_lshl_b32 s{sS0}, s{sS0}, 1
            s_add_u32 s{sS0}, s{sS0}, s{sCB}
            s_and_b32 s{sS0}, s{sS0}, {7 if self.cfg['rot2'] else 0}
            s_mul_i32 s{sS0}, s{sS0}, 11
            s_lshr_b32 s{sS0}, s{sS0}, 2
            s_mul_i32 s{sS1}, s{sT}, {NS}
            s_lshl_b32 s{sW0}, s{sS1}, 14
            s_lshl_b32 s{sWc}, s{sCB}, 7
            s_add_u32 s{sW0}, s{sW0}, s{sWc}
            s_add_u32 s{sWe}, s{sW0}, {NS * 16384}
            s_lshl_b32 s{sWc}, s{sS0}, 14
            s_add_u32 s{sWc}, s{sWc}, s{sW0}
            s_mul_i32 s{sHl}, s{sRB}, 172
            s_add_u32 s{sH0}, s{sHl}, s{sS1}
            s_lshl_b32 s{sH0}, s{sH0}, 10
            s_add_u32 s{sH0}, s{sH0}, {WS_H}
            s_add_u32 s{sHe}, s{sH0}, {NS * 1024}
            s_lshl_b32 s{sHc}, s{sS0}, 10
            s_add_u32 s{sHc}, s{sHc}, s{sH0}
            s_lshl_b32 s{sHl}, s{sHl}, 10
            s_add_u32 s{sHl}, s{sHl}, {WS_H + 86 * 1024}
            s_lshl_b32 s{sFl}, s{sR}, 1
            s_lshr_b32 s{sS0}, s{sT}, 1
            s_add_u32 s{sFl}, s{sFl}, s{sS0}
            s_lshl_b32 s{sFl}, s{sFl}, 9
            s_add_u32 s{sFl}, s{sFl}, {CH}
            s_mov_b32 s{sRow}, 0x62223111
            s_cmp_ge_u32 s{sC}, 8
            s_cselect_b32 s{sRow}, 0xf8888444, s{sRow}
            s_and_b32 s{sS0}, s{sC}, 7
            s_lshl_b32 s{sS0}, s{sS0}, 2
            s_lshr_b32 s{sRow}, s{sRow}, s{sS0}""")

    def cap(self):
        a, CAP = self.a, self.cfg["cap"]
        if len(a.vm.q) > CAP:
            a.vm.q = a.vm.q[len(a.vm.q) - CAP:]
            a(f"s_waitcnt vmcnt({CAP})")

    def issue_w(self, s):
        a = self.a
        vD, vD2 = 9, 18
        sRing, sS0, sS1, sWc, sW0, sWe = range(sT0, sT0 + 6)
        a(f"s_add_u32 m0, s{sRing}, {(s if s < 16 else s - 8) * 2048}")
        if s:
            a(f"s_add_u32 s{sWc}, s{sWc}, 16384\ns_cmp_eq_u32 s{sWc}, s{sWe}\ns_cselect_b32 s{sWc}, s{sW0}, s{sWc}")
        else:
            a("s_nop 0")
        a(f"buffer_load_dwordx4 v{vD}, {sr(sWD, 4)}, s{sWc} offen lds")
        a(f"buffer_load_dwordx4 v{vD2}, {sr(sWD, 4)}, s{sWc} offen offset:1024 lds")
        a.vm.issue(("w", s))
        a.vm.issue(("w", s))

    def ffn2(self):
        a = self.a
        ACC, HS, WB = 32, 128, 96
        vL, vD, vH, vA0, vA1, vOw, vOt, vDump, vP, vZ, vD2, vH2 = range(8, 20)
        self.vL, self.vDump, self.vZ, self.vA0, self.vA1, self.vP = vL, vDump, vZ, vA0, vA1, vP
        sRing, sS0, sS1, sWc, sW0, sWe, sHc, sH0, sHe, sHl, sFl, sRow = range(sT0, sT0 + 12)
        self.sRow = sRow
        NS, PD, NR, NH, CAP = 22, self.cfg["pd"], 16, 16, self.cfg["cap"]
        cap, issue_w = self.cap, self.issue_w

        def setup2():
            a(f"""v_lshlrev_b32 v{vP}, 4, v{vL}
                s_and_b32 s{sS0}, s{sT}, 1
                s_mul_i32 s{sS0}, s{sS0}, 88064
                v_add_u32 v{vH}, s{sS0}, v{vP}
                s_sub_u32 s{sS0}, 88064, s{sS0}
                v_add_u32 v{vH2}, s{sS0}, v{vP}
                v_add_u32 v{vDump}, s{sRing}, v{vP}
                v_lshrrev_b32 v20, 5, v{vL}
                v_bfe_u32 v21, v{vL}, 2, 2
                v_lshl_add_u32 v20, v20, 2, v21
                v_and_b32 v21, 1, v{vL}
                v_lshlrev_b32 v21, 2, v21
                v_lshl_add_u32 v21, v22, 1, v21
                v_bfe_u32 v23, v{vL}, 1, 1
                v_add_u32 v21, v21, v23
                v_lshlrev_b32 v21, 3, v21
                v_lshl_add_u32 v21, v20, 7, v21
                v_bfe_u32 v23, v{vL}, 3, 1
                v_lshl_add_u32 v21, v23, 6, v21
                v_add_u32 v{vA0}, s{sRing}, v21
                s_lshr_b32 s{sS0}, s{sT}, 1
                s_lshl_b32 s{sS0}, s{sS0}, 6
                v_xor_b32 v{vA0}, s{sS0}, v{vA0}
                v_xor_b32 v{vA1}, 64, v{vA0}
                s_lshl_b32 s{sS0}, s{sT}, 2
                v_add_u32 v{vOw}, s{sS0}, v{self.vCnt}
                v_and_b32 v{vZ}, 31, v{vL}
                v_lshlrev_b32 v{vZ}, 2, v{vZ}
                s_setprio {self.cfg['prio_m']}""")

        a.lg.reset()
        a.vm.reset()
        a.vm.issue("H")

        wslot = lambda s: s if s < NR else s - 8

        def issue_wo(s):
            a(f"s_add_u32 m0, s{sRing}, {s * 2048}")
            if s == 0:
                a(f"""s_lshl_b32 s{sRow}, s{sT}, 17
                    s_lshl_b32 s{sS1}, s{sCB}, 7
                    s_add_u32 s{sRow}, s{sRow}, s{sS1}""")
            else:
                a(f"s_add_u32 s{sRow}, s{sRow}, 16384")
            a(f"buffer_load_dwordx4 v{vD}, {sr(sWO, 4)}, s{sRow} offen lds")
            a(f"buffer_load_dwordx4 v{vD2}, {sr(sWO, 4)}, s{sRow} offen offset:1024 lds")
            a.vm.issue("wo")
            a.vm.issue("wo")

        def issue_h(s):
            if s >= NS:
                return
            if s:
                a(f"""s_add_u32 s{sHc}, s{sHc}, 1024
                    s_cmp_eq_u32 s{sHc}, s{sHe}
                    s_cselect_b32 s{sHc}, s{sH0}, s{sHc}""")
            a(f"s_cmp_lt_u32 s{sHc}, s{sHl}\ns_cselect_b32 s{sS0}, s{sHc}, {OOB}")
            for tt in range(2):
                a(f"buffer_load_dwordx4 {vr(HS + 8 * (s % NH) + 4 * tt, 4)}, v{(vH, vH2)[tt]}, {sr(sWS, 4)}, s{sS0} offen sc1")
                a.vm.issue(("h", s))

        wreg = lambda s: (WB + 8 * (s % 3)) if s < 16 else (104, 112, 120, 96, 176, 184)[s - 16]

        def reads(s):
            a.vm.wait(("w", s))
            for ct in range(2):
                for u in range(2):
                    self.dsr("ds_read_b64_tr_b16", wreg(s) + 4 * ct + 2 * u, 2, (vA0, vA1)[ct], None,
                             wslot(s) * 2048 + 1024 * u, (s, ct))

        wpre = self.cfg["wpre"]
        setup2()
        for s in range(wpre, min(NR, wpre + 2)):
            issue_w(s)
        a.vm.wait("H")
        for k in range(4):
            skip = self.lab("nosig")
            a(f"s_bitcmp1_b32 s{sRow}, {k}\ns_cbranch_scc0 {skip}")
            self.signal(sFl)
            a.label(skip)
            a(f"s_add_u32 s{sFl}, s{sFl}, 128")
        self.stamp("Hflag", "M")
        a(f"""s_lshl_b32 s{sFl}, s{sRB}, 2
            s_add_u32 s{sFl}, s{sFl}, s{sT}
            s_lshl_b32 s{sFl}, s{sFl}, 7
            s_add_u32 s{sFl}, s{sFl}, {CH}
            s_cmp_eq_u32 s{sT}, 1
            s_cselect_b32 s{sRow}, 12, 10
            s_mov_b32 s{sPV}, 0""")
        for s in range(wpre + 2, NR):
            if s == max(wpre + 2, NR - 3) and self.cfg["hasync"]:
                a(f"s_atomic_add s{sPV}, {sr(sWS, 2)}, s{sFl} glc")
            issue_w(s)
            cap()
        self.stamp("W0", "M")
        ready = self.lab("hready")
        a(f"s_waitcnt lgkmcnt(0)\ns_cmp_ge_u32 s{sPV}, s{sRow}\ns_cbranch_scc1 {ready}")
        self.spoll(sFl, f"s{sRow}")
        a.label(ready)
        self.stamp("Hpoll", "M")
        for s in range(PD):
            issue_h(s)
        a(f"""s_lshl_b32 s{sFl}, s{sRB}, 1
            s_and_b32 s{sS0}, s{sT}, 1
            s_add_u32 s{sFl}, s{sFl}, s{sS0}
            s_lshl_b32 s{sFl}, s{sFl}, 7
            s_add_u32 s{sFl}, s{sFl}, {WS_G}
            buffer_load_dword v{vZ}, v{vZ}, {sr(sWS, 4)}, s{sFl} offen sc1""")
        a.vm.issue("z")
        reads(0)
        reads(1)
        nh = PD
        hold = NS - self.cfg["defer"]
        assert hold <= 16 or hold == NS

        def mm(s, ct, tt):
            a.vm.wait(("h", s))
            a.lg.wait((s, ct))
            d = vr(ACC + 32 * tt + 16 * ct, 16)
            a(f"v_mfma_f32_32x32x16_bf16 {d}, {vr(wreg(s) + 4 * ct, 4)}, {vr(HS + 8 * (s % NH) + 4 * tt, 4)}, {d if s else 0}")

        for s in range(17):
            if s == hold or s == 16:
                while nh < NS:
                    issue_h(nh)
                    nh += 1
                    cap()
            if s == hold:
                self.stamp("hold", "M")
                self.lds_probe(vOw, self.vTmp, 32)
                self.lds_check(vOw, self.vTmp, 32, 1, nap=2)
                self.stamp("resume", "M")
            if s == 16:
                break
            self.stamp(f"s{s}", "M")
            for k in range(4):
                mm(s, *divmod(k, 2))
                if k == 0 and nh < NS:
                    issue_h(nh)
                    nh += 1
                if k == 1:
                    reads(s + 2)
                if k == 2:
                    if s < 8:
                        issue_wo(s)
                    elif s < 14:
                        issue_w(s + 8)
                    elif nh < NS:
                        issue_h(nh)
                        nh += 1
                if k == 3 and s == 11:
                    a.vm.wait("wo")
                    self.lds_signal(self.vCnt, self.v1_, 24)
                if k == 3 and s == 15:
                    reads(18)
        self.stamp("s16", "M")
        self.final_setup()
        for n, (ct, tt) in enumerate(((0, 1), (1, 0), (1, 1), (0, 0))):
            for s in range(16, NS):
                mm(s, ct, tt)
                if n == 0 and s < 19:
                    reads(s + 3)
                if n == 0 and s == 18:
                    for _ in range(2):
                        self.lds_probe(self.vCnt, self.vTmp, 24)
                if n == 1 and s == 16:
                    a.lg.wait((21, 1))
                if n and s >= 18:
                    k = (8, 4, 12)[n - 1] + s - 18
                    if s == 18:
                        a("s_nop 8" if n < 3 else "s_nop 3")
                    a(f"ds_write_b128 v{vDump}, {vr(ACC + 4 * k, 4)} offset:{16384 + 1024 * k}")
                if n == 3 and s == 16:
                    self.early_o()
        self.lds_signal(self.vCnt, self.v1_, 4)
        self.stamp("s22", "M")

    def final_setup(self):
        a = self.a
        sFl, sOut, sO, sA, sTT, sKh, sF2, sG = range(sT0 + 1, sT0 + 9)
        a(f"""s_and_b32 s{sTT}, s{sT}, 1
            s_lshr_b32 s{sKh}, s{sT}, 1
            s_lshl_b32 s{sFl}, s{sRB}, 1
            s_add_u32 s{sFl}, s{sFl}, s{sKh}
            s_lshl_b32 s{sFl}, s{sFl}, 8
            s_add_u32 s{sFl}, s{sFl}, {CO}
            s_add_u32 s{sF2}, s{sFl}, 128
            s_mov_b32 s{sPV}, 0
            s_mov_b32 s{sA}, 0
            s_atomic_add s{sPV}, {sr(sWS, 2)}, s{sFl} glc
            s_atomic_add s{sA}, {sr(sWS, 2)}, s{sF2} glc
            s_lshl_b32 s{sOut}, s{sRB}, 1
            s_add_u32 s{sOut}, s{sOut}, s{sTT}
            s_lshl_b32 s{sO}, s{sOut}, 5
            s_lshl_b32 s{sG}, s{sKh}, 4
            s_add_u32 s{sO}, s{sO}, s{sG}
            s_lshl_b32 s{sO}, s{sO}, 10
            s_add_u32 s{sO}, s{sO}, {WS_O}
            s_lshl_b32 s{sOut}, s{sOut}, 15
            s_lshl_b32 s{sG}, s{sCB}, 7
            s_add_u32 s{sOut}, s{sOut}, s{sG}
            s_lshl_b32 s{sG}, s{sKh}, 6
            s_add_u32 s{sOut}, s{sOut}, s{sG}""")

    def oloads(self, h, sO):
        a = self.a
        for s in range(8 * h, 8 * h + 8):
            if s % 8 == 4:
                a(f"s_add_u32 s{sO}, s{sO}, 4096")
            a(f"buffer_load_dwordx4 {vr(192 + 4 * s, 4)}, v{self.vP}, {sr(sWS, 4)}, s{sO} offen offset:{1024 * (s % 4)} sc1")
            a.vm.issue(s)

    def early_o(self):
        a = self.a
        sFl, sOut, sO, sA, sTT, sKh, sF2, sG, sE, sX = range(sT0 + 1, sT0 + 11)
        skip = self.lab("noearly")
        a.vm.drain()
        a(f"""s_waitcnt lgkmcnt(0)
            s_min_u32 s{sE}, s{sPV}, s{sA}
            s_lshr_b32 s{sE}, s{sE}, 3
            s_cbranch_scc0 {skip}
            s_mov_b32 s{sX}, s{sO}""")
        self.oloads(0, sX)
        a(f"s_add_u32 s{sX}, s{sX}, 4096")
        self.oloads(1, sX)
        a.label(skip)
        a.vm.reset()

    def final(self):
        a = self.a
        B, PT, OWN, OTH, OF, WO = 32, 48, 96, 112, 192, 128
        vL, vH, vX, vZ, vA0, vA1 = self.vL, self.vP, self.vDump, self.vZ, self.vA0, self.vA1
        vOut, vG, vP1, vP2, vP3, vB0, vB1 = 1, 2, 9, 10, 13, 18, 19
        sFl, sOut, sO, sA, sTT, sKh, sF2, sG, sE, sX = range(sT0 + 1, sT0 + 11)
        top, got, loaded, join = self.lab("opoll"), self.lab("ogot"), self.lab("oloaded"), self.lab("ojoin")
        a.lg.reset()
        a(f"""v_xor_b32 v{vP1}, 0x10000, v{vX}
            v_xor_b32 v{vP2}, 0x8000, v{vX}
            v_xor_b32 v{vP3}, 0x18000, v{vX}
            v_mul_f32 v{vG}, {f32(LOG2E)}, v{vZ}
            v_and_b32 v{vOut}, 31, v{vL}
            v_exp_f32 v{vG + 2}, v{vG}
            v_exp_f32 v{vG}, -v{vG}
            v_lshlrev_b32 v{vOut}, 10, v{vOut}
            v_add_f32 v{vG + 2}, 1.0, v{vG + 2}
            v_add_f32 v{vG}, 1.0, v{vG}
            v_rcp_f32 v{vG + 2}, v{vG + 2}
            v_rcp_f32 v{vG}, v{vG}
            v_lshrrev_b32 v{vL}, 5, v{vL}
            v_lshl_add_u32 v{vOut}, v{vL}, 5, v{vOut}""")
        self.lds_check(self.vCnt, self.vTmp, 24, 16)
        a(f"""s_mov_b32 s{sG}, 0
            s_cmp_lg_u32 s{sE}, 0
            s_cbranch_scc1 {loaded}
            s_mov_b32 s{sSPIN}, 200000""")
        a.label(top)
        a(f"""s_mov_b32 s{sPV}, 0
            s_mov_b32 s{sA}, 0
            s_atomic_add s{sPV}, {sr(sWS, 2)}, s{sFl} glc
            s_atomic_add s{sA}, {sr(sWS, 2)}, s{sF2} glc
            s_sub_u32 s{sSPIN}, s{sSPIN}, 1
            s_cbranch_scc1 {got}
            s_waitcnt lgkmcnt(0)
            s_max_u32 s{sE}, s{sPV}, s{sA}
            s_cmp_lt_u32 s{sE}, 8
            s_cbranch_scc1 {top}""")
        a.label(got)
        a(f"""s_waitcnt lgkmcnt(0)
            s_cmp_lt_u32 s{sPV}, 8
            s_cselect_b32 s{sG}, 1, 0
            s_lshl_b32 s{sX}, s{sG}, 13
            s_add_u32 s{sO}, s{sO}, s{sX}""")
        self.stamp("Opoll", "M")
        a.vm.reset()
        self.oloads(0, sO)
        a(f"""s_xor_b32 s{sO}, s{sO}, 0x3000
            s_min_u32 s{sE}, s{sPV}, s{sA}
            s_lshr_b32 s{sE}, s{sE}, 3
            s_cselect_b32 s{sX}, s{sO}, {OOB}""")
        self.oloads(1, sX)
        a.label(loaded)
        a(f"""s_xor_b32 s{sF2}, s{sG}, 1
            s_lshl_b32 s{sF2}, s{sF2}, 7
            s_add_u32 s{sF2}, s{sF2}, s{sFl}
            s_xor_b32 s{sG}, s{sG}, s{sTT}
            s_lshl_b32 s{sG}, s{sG}, 15
            v_xor_b32 v{vA0}, s{sG}, v{vA0}
            v_xor_b32 v{vA1}, s{sG}, v{vA1}
            v_xor_b32 v{vB0}, 0x8000, v{vA0}
            v_xor_b32 v{vB1}, 0x8000, v{vA1}""")
        a.lg.reset()

        def wreads(s):
            if s >= 16:
                return
            for ct in range(2):
                for u in range(2):
                    self.dsr("ds_read_b64_tr_b16", WO + 8 * (s % 8) + 4 * ct + 2 * u, 2, ((vA0, vA1), (vB0, vB1))[s >> 3][ct], None,
                             (s & 7) * 2048 + 1024 * u, ("wo", s))

        def step(s):
            a.vm.wait(s)
            a.lg.wait(("wo", s))
            w = WO + 8 * (s % 8)
            ot, ow = (vr(OTH, 16), vr(OWN, 16)) if s < 8 else (vr(PT + 32, 16), vr(PT + 16, 16))
            a(f"v_mfma_f32_32x32x16_bf16 {ot}, {vr(w + 4, 4)}, {vr(OF + 4 * s, 4)}, {ot if s % 8 else 0}")
            wreads(s + 2)
            if 2 <= s < 8:
                i, h = divmod(s - 2, 2)
                for k in range(8 * h, 8 * h + 4):
                    a(f"v_add_f32 v{B + k}, v{B + k}, v{PT + 16 * i + k}")
            a(f"v_mfma_f32_32x32x16_bf16 {ow}, {vr(w, 4)}, {vr(OF + 4 * s, 4)}, {ow if s % 8 else 0}")
            if s < 6:
                i, h = divmod(s, 2)
                for q in range(2 * h, 2 * h + 2):
                    self.dsr("ds_read_b128", PT + 16 * i + 4 * q, 4, (vP1, vP2, vP3)[i], None, 16384 + 4096 * (i + 1) + 1024 * q, ("wo", s + 2))
            if 2 <= s < 8:
                i, h = divmod(s - 2, 2)
                for k in range(8 * h + 4, 8 * h + 8):
                    a(f"v_add_f32 v{B + k}, v{B + k}, v{PT + 16 * i + k}")
            if 8 <= s < 12:
                for k in range(4 * (s - 8), 4 * (s - 8) + 4):
                    a(f"v_mul_f32 v{B + k}, v{B + k}, v{vG + 2}")

        self.lds_probe(self.vCnt, self.vTmp, 4)
        for s in range(2):
            wreads(s)
        self.lds_check(self.vCnt, self.vTmp, 4, 16)
        self.stamp("msync", "M")
        for s in range(8):
            step(s)
        q, le = list(a.vm.q), list(a.lg.q)
        if self.cfg["otm"]:
            for s in range(10, 16):
                wreads(s)
                a.lg.wait(("wo", s - 2))
            le = list(a.lg.q)
        a(f"s_cmp_lg_u32 s{sE}, 0\ns_cbranch_scc1 {join}")
        self.spoll(sF2, 8)
        a.vm.drain()
        self.oloads(1, sO)
        assert a.vm.q == q
        a.lg.q = le
        a.label(join)
        if not self.cfg["otm"]:
            for s in range(8, 16):
                step(s)
            self.stamp("Omfma", "M")
            a("s_nop 10")
            for q in range(4):
                for k in range(4 * q, 4 * q + 4):
                    a(f"v_add_f32 v{OTH + k}, v{OTH + k}, v{PT + 32 + k}")
                a(f"ds_write_b128 v{vX}, {vr(OTH + 4 * q, 4)} offset:{16384 + 1024 * q}")
            for k in range(8):
                a(f"v_pk_add_f32 {vr(OWN + 2 * k, 2)}, {vr(OWN + 2 * k, 2)}, {vr(PT + 16 + 2 * k, 2)}")
            for k in range(8):
                a(f"v_pk_fma_f32 {vr(B + 2 * k, 2)}, {vr(OWN + 2 * k, 2)}, {vr(vG, 2)}, {vr(B + 2 * k, 2)} op_sel_hi:[1,0,1]")
        else:
            for k in range(16):
                a(f"v_mul_f32 v{B + k}, v{B + k}, v{vG + 2}")
            for s in range(8, 16):
                a.vm.wait(s)
                a.lg.wait(("wo", s))
                ot = vr(PT + 32, 16)
                a(f"v_mfma_f32_32x32x16_bf16 {ot}, {vr(WO + 8 * (s % 8) + 4, 4)}, {vr(OF + 4 * s, 4)}, {ot if s % 8 else 0}")
            for s in range(8, 16):
                ow = vr(PT + 16, 16)
                a(f"v_mfma_f32_32x32x16_bf16 {ow}, {vr(WO + 8 * (s % 8), 4)}, {vr(OF + 4 * s, 4)}, {ow if s % 8 else 0}")
                if s == 8:
                    a("s_nop 5")
                if s == 9:
                    a("s_nop 3")
                if 9 <= s < 13:
                    q = s - 9
                    for k in range(4 * q, 4 * q + 4):
                        a(f"v_add_f32 v{OTH + k}, v{OTH + k}, v{PT + 32 + k}")
                    a(f"ds_write_b128 v{vX}, {vr(OTH + 4 * q, 4)} offset:{16384 + 1024 * q}")
            self.stamp("Omfma", "M")
        a("s_waitcnt lgkmcnt(0)\ns_barrier")
        for q in range(4):
            a(f"ds_read_b128 {vr(PT + 4 * q, 4)}, v{vP1} offset:{16384 + 1024 * q}")
        if self.cfg["otm"]:
            a("s_nop 5")
            for k in range(8):
                a(f"v_pk_add_f32 {vr(OWN + 2 * k, 2)}, {vr(OWN + 2 * k, 2)}, {vr(PT + 16 + 2 * k, 2)}")
            for k in range(8):
                a(f"v_pk_fma_f32 {vr(B + 2 * k, 2)}, {vr(OWN + 2 * k, 2)}, {vr(vG, 2)}, {vr(B + 2 * k, 2)} op_sel_hi:[1,0,1]")
        for q in range(4):
            a(f"s_waitcnt lgkmcnt({3 - q})")
            for k in range(2):
                r = 4 * q + 2 * k
                a(f"v_pk_fma_f32 {vr(B + r, 2)}, {vr(PT + r, 2)}, {vr(vG, 2)}, {vr(B + r, 2)} op_sel_hi:[1,0,1]")
            for k in range(2):
                r = 4 * q + 2 * k
                a(f"v_cvt_pk_bf16_f32 v{64 + 2 * q + k}, v{B + r}, v{B + r + 1}")
            if q % 2 == 1:
                a(f"buffer_store_dwordx4 {vr(64 + 4 * (q // 2), 4)}, v{vOut}, {sr(sOUT, 4)}, s{sOut} offen offset:{16 * (q // 2)}")

    def build(self):
        a = self.a
        cfg = self.cfg
        self.prologue()
        a(f"s_setprio {cfg['prio_l']}")
        self.loader()
        self.attn_start()
        self.stamp("attn0", "L")
        self.attn_loop()
        self.attn_finish()
        self.stamp("Oflag", "L")
        self.dump_stamps(True)
        a("s_endpgm")

        a.label("L_mwave")
        self.m_setup()
        a(f"s_bitcmp1_b32 s{sC}, 0\ns_cbranch_scc1 L_pass_v")
        self.pass_a(False)
        a("s_branch L_pass_q")
        a.label("L_pass_v")
        self.pass_a(True)
        a.label("L_pass_q")
        self.pass_q()
        a(f"s_cmp_eq_u32 s{sC}, 15\ns_cbranch_scc1 L_gate")
        self.pass_f()
        a(f"s_setprio {cfg['prio_gelu']}")
        self.ffn2_setup()
        self.gelu()
        a.label("L_ffn2")
        self.stamp("gelu", "M")
        self.ffn2()
        self.final()
        if cfg.get("stamps"):
            a("s_waitcnt vmcnt(0)")
            self.stamp("end", "M")
            self.dump_stamps(False)
        a.label("L_end")
        a("s_endpgm")
        a.label("L_gate")
        a(f"s_setprio {cfg['prio_gelu']}")
        self.gate()
        a("s_branch L_ffn2")
        self.fallback()
        return a.text()


HEADER = """; Fused kernel: out = g * MHA(x) + (1 - g) * GEGLU(x),  g = sigmoid(x . gate_w)
; Kernarg (88 bytes, pointers): 0 A_x, 8 A_wqkv, 16 A_wo, 24 B_x (unused by the reference), 32 B_w_gate, 40 B_w_up,
;   48 B_w_down, 56 gate_w, 64 d_out, 72 d_debug, 80 d_ws
; 256 workgroups, one per CU; hand-offs between workgroups go through d_ws with write-through stores and flags.
; @launch grid=(256,1,1) block=(512,1,1) lds=%d
.amdgcn_target "amdgcn-amd-amdhsa--gfx950"
.text
.globl %s_kernel
.p2align 8
.type %s_kernel,@function
%s_kernel:
""" % (LDS_BYTES, NAME, NAME, NAME)

FOOTER = """.section .rodata,"a"
.p2align 6
.amdhsa_kernel %s_kernel
  .amdhsa_next_free_vgpr 256
  .amdhsa_next_free_sgpr 102
  .amdhsa_accum_offset 256
  .amdhsa_group_segment_fixed_size 0
  .amdhsa_kernarg_size 88
  .amdhsa_user_sgpr_count 2
  .amdhsa_user_sgpr_kernarg_segment_ptr 1
  .amdhsa_system_sgpr_workgroup_id_x 1
  .amdhsa_float_denorm_mode_32 3
.end_amdhsa_kernel
""" % NAME

DEFAULT = dict(stM='start,BA0,KVst,KVflag,Qdone,F0,Fdone,gelu,Hflag,Hpoll,ffn2,Opoll,Omfma,end',
               stL='start,karg,A0,A2,A7,KVpoll,Qrdy,attn0,attn1,Ost,Oflag',
               outpol='', rowmask=14, qs=14400, tf=0, gate_f=1, gate_at=4, wpre=6, rel=1, touch=1, tq=1, f1_early=0, rbits=3, rot=4, rot2=1, la=2, nst=4, defer=0, tpol='', qpol='', xn=8, wn=8, fn=8, xpol='', wpol='', fpol='nt', hasync=1, otm=1, atm=1, kvflag_at=8, f0_at=4, sig_at=6, pd=2, cap=6, prio_l=2, prio_m=0, prio_gelu=3)


def generate(**kw):
    cfg = dict(DEFAULT)
    cfg.update(kw)
    body = Gen(cfg).build()
    msgs = lint(body)
    if cfg.get("stamps"):
        body += f"; STAMPS M {cfg['stM']}\n"
    return HEADER + body + FOOTER, msgs


if __name__ == "__main__":
    out = sys.argv[1]
    kw = {}
    for arg in sys.argv[2:]:
        k, v = arg.split("=")
        try:
            kw[k] = int(v)
        except ValueError:
            try:
                kw[k] = float(v)
            except ValueError:
                kw[k] = v
    text, msgs = generate(**kw)
    for m in msgs:
        print("LINT:", m)
    open(out, "w").write(text)
    print("wrote", out, len(text), "bytes,", text.count("\n"), "lines")
```

```python
import struct
import sys

from asmlib import Asm, lint, sr, vr

NAME = "gated_mix__softmax_full_mha__glu_gated_geglu__prompt"


def f32(x):
    return "0x%08x" % struct.unpack("<I", struct.pack("<f", x))[0]


LOG2E = 1.4426950408889634

WS_KV, WS_O, WS_H, WS_G, WS_FLAG, WS_STAMP = 0x000000, 0x400000, 0x600000, 0xBC0000, 0xC00000, 0xD00000
CKV, CH, CO = WS_FLAG, WS_FLAG + 128 * 128, WS_FLAG + 256 * 128
OOB = 0x20000000

NSLOT = 4
QW, QF, PART, CNT = 98304, 131072, 139264, 157696
WOL, SEGB = 73728, 49152
WSLOT = [0, 1, 2, 3, 4, 5, 0, 1, 2, 3, 4, 5, 6, 7, 8, 0, 1, 2, 3, 4, 5, 6]
LDS_BYTES = 163840

sX, sWQ, sWO, sWG, sWU, sWD, sGW, sOUT, sDBG, sWS = 4, 8, 12, 16, 20, 24, 28, 32, 36, 40
sC, sR, sW, sT, sROT, sRB, sCB, sDEL = 44, 45, 46, 47, 48, 49, 50, 51
sONE, sPV = 71, 69
sVM = 52
sT0 = 54
sSPIN = 70
sSTAMP = 72
SIZES = {sX: 2097152, sWQ: 1572864, sWO: 524288, sWG: 1409024, sWU: 1409024, sWD: 1409024, sGW: 1024, sOUT: 2097152,
         sDBG: 256, sWS: 268435456}
KARG = {sX: 0, sWQ: 8, sWO: 16, sWG: 32, sWU: 40, sWD: 48, sGW: 56, sOUT: 64, sDBG: 72, sWS: 80}


def slot(n):
    return (n % NSLOT) * 24576


def fslot(n):
    return ((n + 1) % 3) * 24576


class Gen:
    def __init__(self, cfg):
        self.cfg = cfg
        self.a = Asm()
        self.uid = 0
        self.bg = self.hi = False

    def lab(self, base):
        self.uid += 1
        return f"L_{base}_{self.uid}"

    def clock(self):
        return "s_memtime" if self.cfg.get("stamps") == 2 else "s_memrealtime"

    def names(self, role):
        if "pad" in self.cfg:
            return ["start", self.cfg["pad"]]
        return self.cfg["st" + role].split(",")

    def stamp(self, name, role):
        if self.cfg.get("stamps") and name in self.names(role):
            n = self.names(role).index(name)
            a = self.a
            a(f"{self.clock()} {sr(sSTAMP + 2 * n, 2)}")
            a.lg.drain()

    def dump_stamps(self, is_l):
        if not self.cfg.get("stamps"):
            return
        a = self.a
        if "pad" in self.cfg:
            n = 0 if self.cfg["pad"] == "start" else 1
            top, done = self.lab("pad"), self.lab("paddone")
            if is_l:
                a("s_barrier")
            if "padx" in self.cfg:
                a(f"""s_and_b32 s{sT0}, s2, 7
                    s_cmp_eq_u32 s{sT0}, {self.cfg['padx']}
                    s_cselect_b32 s{sSTAMP + 2 * n}, s{sSTAMP + 2 * n}, 0""")
            a(f"""s_waitcnt vmcnt(0) lgkmcnt(0)
                s_cmp_eq_u32 s{sSTAMP + 2 * n}, 0
                s_cbranch_scc1 {done}""")
            a.label(top)
            a(f"""s_sleep 4
                s_memrealtime {sr(sT0, 2)}
                s_waitcnt lgkmcnt(0)
                s_sub_u32 s{sT0}, s{sT0}, s{sSTAMP + 2 * n}
                s_cmp_lt_u32 s{sT0}, 6000
                s_cbranch_scc1 {top}""")
            a.label(done)
            return
        a(f"""s_lshl_b32 s{sT0}, s2, 3
            s_add_u32 s{sT0}, s{sT0}, s{sW}
            s_lshl_b32 s{sT0}, s{sT0}, 6
            s_add_u32 s{sT0}, s{sT0}, {WS_STAMP}
            s_mov_b64 exec, 1""")
        for n in range(14):
            a(f"v_mov_b32 v0, s{sSTAMP + 2 * n}")
            a(f"buffer_store_dword v0, off, {sr(sWS, 4)}, s{sT0} offset:{4 * n}")
        a("s_mov_b64 exec, -1")

    def lane(self, v):
        self.a(f"""v_mbcnt_lo_u32_b32 v{v}, -1, 0
            v_mbcnt_hi_u32_b32 v{v}, -1, v{v}""")

    def srd(self, *regs):
        for r in regs:
            self.a(f"s_mov_b32 s{r + 2}, {SIZES[r]}\ns_mov_b32 s{r + 3}, 0x00020000")

    def kload(self, *regs):
        for r in regs:
            self.a(f"s_load_dwordx2 {sr(r, 2)}, s[0:1], {KARG[r]}")

    def chunk(self, dst, i):
        a = self.a
        if self.cfg["rot"] in (3, 4):
            a(f"""s_add_u32 s{dst}, s{sDEL}, {i & 3}
                s_and_b32 s{dst}, s{dst}, 3
                s_add_u32 s{dst}, s{dst}, s{sROT}""")
            if i & 4:
                a(f"s_xor_b32 s{dst}, s{dst}, 4")
        else:
            a(f"s_add_u32 s{dst}, s{sROT}, {i}\ns_and_b32 s{dst}, s{dst}, 7")

    def dsr(self, op, dst, n, lo, hi, imm, tag):
        reg = lo
        if imm >= 65536:
            reg, imm = hi, imm - 65536
        assert 0 <= imm < 65536 and reg is not None
        self.a(f"{op} {vr(dst, n)}, v{reg} offset:{imm}")
        self.a.lg.issue(tag)

    def poll(self, voff, soff, tmp, srd=sWS):
        a = self.a
        top, done = self.lab("poll"), self.lab("pdone")
        a(f"s_mov_b32 s{sSPIN}, 100000")
        a.label(top)
        a(f"""buffer_load_dword v{tmp}, v{voff}, {sr(srd, 4)}, {soff} offen sc1
            s_waitcnt vmcnt(0)
            v_cmp_gt_u32 vcc, 16, v{tmp}
            s_cbranch_vccz {done}
            s_sleep 8
            s_sub_u32 s{sSPIN}, s{sSPIN}, 1
            s_cmp_lg_u32 s{sSPIN}, 0
            s_cbranch_scc1 {top}""")
        a.label(done)
        a.vm.reset()

    def signal(self, soff):
        self.a(f"s_atomic_add s{sONE}, {sr(sWS, 2)}, s{soff}")

    def spoll(self, soff, need, back=None):
        a = self.a
        top, done = self.lab("spoll"), back or self.lab("sdone")
        a(f"s_mov_b32 s{sSPIN}, 200000")
        a.label(top)
        a(f"""s_mov_b32 s{sPV}, 0
            s_atomic_add s{sPV}, {sr(sWS, 2)}, s{soff} glc
            s_waitcnt lgkmcnt(0)
            s_cmp_ge_u32 s{sPV}, {need}
            s_cbranch_scc1 {done}
            s_sub_u32 s{sSPIN}, s{sSPIN}, 1
            s_cmp_lg_u32 s{sSPIN}, 0
            s_cbranch_scc1 {top}""")
        if back:
            a(f"s_branch {back}")
        else:
            a.label(done)
        a.lg.reset()

    def lds_signal(self, addr, one, off):
        a = self.a
        a(f"""s_mov_b64 exec, 1
            ds_add_u32 v{addr}, v{one} offset:{off}
            s_mov_b64 exec, -1""")
        a.lg.issue("sig")

    def lds_probe(self, addr, tmp, off):
        self.a(f"ds_read_b32 v{tmp}, v{addr} offset:{off}")
        self.a.lg.issue("probe")

    def boost(self):
        if self.bg and not self.hi:
            self.a("s_setprio 3")
            self.hi = True

    def unboost(self):
        if self.hi:
            self.a(f"s_setprio {self.cfg['prio_m']}")
            self.hi = False

    def lds_check(self, addr, tmp, off, need, nap=0):
        a = self.a
        top, done = self.lab("lspin"), self.lab("ldone")
        self.boost()
        a.lg.wait("probe")
        a(f"""v_cmp_gt_u32 vcc, {need}, v{tmp}
            s_cbranch_vccz {done}
            s_mov_b32 s{sSPIN}, 1000000""")
        a.label(top)
        if nap:
            a(f"s_sleep {nap}")
        a(f"""ds_read_b32 v{tmp}, v{addr} offset:{off}
            s_waitcnt lgkmcnt(0)
            v_cmp_gt_u32 vcc, {need}, v{tmp}
            s_cbranch_vccz {done}
            s_sub_u32 s{sSPIN}, s{sSPIN}, 1
            s_cmp_lg_u32 s{sSPIN}, 0
            s_cbranch_scc1 {top}""")
        a.label(done)

    def prologue(self):
        a = self.a
        cfg = self.cfg
        rb = cfg["rbits"]
        a("s_cmp_ge_u32 s2, 256\ns_cbranch_scc1 L_end")
        if cfg.get("stamps"):
            a(f"{self.clock()} {sr(sSTAMP, 2)}")
        self.kload(sX, sWQ, sWS)
        if cfg.get("stamps"):
            for n in range(1, 14):
                a(f"s_mov_b32 s{sSTAMP + 2 * n}, 0")
        x, j, t = sT0, sT0 + 1, sT0 + 2
        a(f"""v_lshrrev_b32 v1, 6, v0
            s_and_b32 s{x}, s2, 7
            v_readfirstlane_b32 s{sW}, v1
            s_lshr_b32 s{j}, s2, 3
            v_and_b32 v0, 63, v0
            s_and_b32 s{sR}, s{x}, {(1 << (4 - rb)) - 1}
            s_lshl_b32 s{sR}, s{sR}, {rb}
            s_and_b32 s{t}, s{j}, {(1 << rb) - 1}
            s_add_u32 s{sR}, s{sR}, s{t}
            s_lshr_b32 s{sC}, s{x}, {4 - rb}
            s_lshl_b32 s{sC}, s{sC}, {5 - rb}
            s_lshr_b32 s{t}, s{j}, {rb}
            s_add_u32 s{sC}, s{sC}, s{t}
            s_and_b32 s{sT}, s{sW}, 3""")
        rot = cfg["rot"]
        if rot == 0:
            a(f"s_mov_b32 s{sROT}, 0")
        elif rot == 1:
            a(f"""s_mul_i32 s{sROT}, s{sC}, {cfg.get('rotc', 2)}
                s_mul_i32 s{t}, s{sR}, {cfg.get('rotr', 1)}
                s_add_u32 s{sROT}, s{sROT}, s{t}
                s_and_b32 s{sROT}, s{sROT}, 7""")
        else:
            a(f"""s_add_u32 s{sROT}, s{sC}, s{sR}
                s_and_b32 s{sROT}, s{sROT}, 1
                s_lshl_b32 s{sROT}, s{sROT}, 2""")
            if rot == 3:
                a(f"s_mov_b32 s{sDEL}, 0")
            else:
                a(f"""s_lshr_b32 s{sDEL}, s{x}, 1
                    s_lshl_b32 s{t}, s{x}, 1
                    s_add_u32 s{sDEL}, s{sDEL}, s{t}""")
        self.srd(sWS)
        a(f"""s_mov_b32 s{sONE}, 1
            s_cmp_ge_u32 s{sW}, 4
            s_cbranch_scc0 L_mwave""")

    def loader(self):
        a = self.a
        a.vm.reset()
        vX0, vX1, vKV, vQ = 8, 9, 10, 11
        sXB, sKB, sQB, sLx, sLk, sLq, sCh, sO = range(sT0, sT0 + 8)
        self.srd(sX, sWQ)
        a(f"""v_lshrrev_b32 v1, 3, v0
            v_and_b32 v2, 7, v0
            v_lshrrev_b32 v3, 4, v0
            s_lshl_b32 s{sO}, s{sT}, 5
            v_add_u32 v4, s{sO}, v1
            v_xor_b32 v5, v2, v3
            v_lshlrev_b32 v5, 4, v5
            v_lshl_add_u32 v{vX0}, v4, 10, v5
            v_xor_b32 v{vX1}, 64, v{vX0}
            v_add_u32 v{vX1}, 8192, v{vX1}
            s_lshl_b32 s{sO}, s{sT}, 4
            v_add_u32 v4, s{sO}, v1
            v_mul_u32_u24 v4, 3072, v4
            v_and_b32 v5, 1, v3
            v_lshlrev_b32 v5, 2, v5
            v_xor_b32 v5, v2, v5
            v_lshl_add_u32 v{vKV}, v5, 4, v4
            s_lshl_b32 s{sXB}, s{sR}, 17
            s_and_b32 s{sKB}, s{sC}, 1
            s_add_u32 s{sKB}, s{sKB}, 1
            s_lshl_b32 s{sKB}, s{sKB}, 10
            s_lshr_b32 s{sCh}, s{sC}, 1
            s_lshl_b32 s{sCh}, s{sCh}, 7
            s_add_u32 s{sKB}, s{sKB}, s{sCh}
            s_lshl_b32 s{sLx}, s{sT}, 12
            s_lshl_b32 s{sLk}, s{sT}, 11""")

        def issueA(i):
            B = slot(i)
            self.chunk(sCh, i)
            a(f"s_lshl_b32 s{sO}, s{sCh}, 7\ns_add_u32 s{sO}, s{sO}, s{sXB}")
            for k in range(4):
                a(f"s_add_u32 m0, s{sLx}, {B + 1024 * k}")
                if i == 0 and k == 0:
                    a("s_waitcnt lgkmcnt(0)")
                    self.stamp("karg", "L")
                else:
                    a(f"s_add_u32 s{sO}, s{sO}, 16384" if k == 2 else "s_nop 0")
                a(f"buffer_load_dwordx4 v{vX0 if k % 2 == 0 else vX1}, {sr(sX, 4)}, s{sO} offen {self.cfg['xpol'] if i < self.cfg['xn'] else ''} lds")
                a.vm.issue(("A", i))
            a(f"s_mul_i32 s{sO}, s{sCh}, 196608")
            for k in range(2):
                a(f"s_add_u32 m0, s{sLk}, {B + 16384 + 1024 * k}")
                a(f"s_add_u32 s{sO}, s{sO}, {'s%d' % sKB if k == 0 else 24576}")
                a(f"buffer_load_dwordx4 v{vKV}, {sr(sWQ, 4)}, s{sO} offen {self.cfg['wpol'] if i < self.cfg['wn'] else ''} lds")
                a.vm.issue(("A", i))

        def issueQ(lo, hi):
            for i in range(lo, hi):
                self.chunk(sCh, i)
                a(f"""s_mul_i32 s{sO}, s{sCh}, 196608
                    s_add_u32 m0, s{sLq}, {QW + 4096 * i}
                    s_add_u32 s{sO}, s{sO}, s{sQB}
                    buffer_load_dwordx4 v{vQ}, {sr(sWQ, 4)}, s{sO} offen lds""")
                a.vm.issue(("Q", 0))

        def setup2():
            a(f"""v_lshrrev_b32 v4, 2, v0
                s_lshl_b32 s{sO}, s{sT}, 4
                v_add_u32 v4, s{sO}, v4
                v_mul_u32_u24 v4, 3072, v4
                v_and_b32 v5, 3, v0
                v_lshl_add_u32 v{vQ}, v5, 4, v4
                s_lshl_b32 s{sQB}, s{sC}, 6
                s_lshl_b32 s{sLq}, s{sT}, 10
                s_mov_b32 s{sVM}, 0x0000ffff
                s_mov_b32 s{sVM + 1}, 0x0000ffff""")
            if self.cfg["tq"]:
                cb = 5 - self.cfg["rbits"]
                nl = 1 << (cb - 1)
                a(f"""v_lshrrev_b32 v4, {cb - 1}, v0
                    v_mul_u32_u24 v4, 3072, v4
                    v_and_b32 v5, {nl - 1}, v0
                    v_lshl_add_u32 v4, v5, 7, v4
                    s_lshr_b32 s{sO}, s2, 3
                    s_lshl_b32 s{sO}, s{sO}, 2
                    s_add_u32 s{sO}, s{sO}, s{sT}
                    s_mul_i32 s{sO}, s{sO}, 12288
                    s_lshr_b32 s{sCh}, s{sC}, {cb}
                    s_lshl_b32 s{sCh}, s{sCh}, {cb + 6}
                    s_add_u32 s{sO}, s{sO}, s{sCh}
                    s_mov_b32 m0, {CNT + 64}
                    s_mov_b64 exec, {(1 << (4 * nl)) - 1}
                    buffer_load_dword v4, {sr(sWQ, 4)}, s{sO} offen {self.cfg['qpol']} lds
                    s_mov_b64 exec, -1""")
                a.vm.issue("touch")
            a("s_setprio 0")
            self.attn_init()
            a(f"s_setprio {self.cfg['prio_l']}")

        la = self.cfg["la"]
        qs = [int(ch) for ch in str(self.cfg["qs"])[1:]]
        assert sum(qs) == 8
        nxt = 0
        for b in range(9):
            while nxt < 8 and nxt <= b + la and nxt - NSLOT + 2 <= b:
                issueA(nxt)
                nxt += 1
            if b == 0:
                setup2()
            if b >= 6:
                issueQ(sum(qs[:b - 6]), sum(qs[:b - 5]))
            if b == 8 and qs[3]:
                a("s_barrier")
                issueQ(8 - qs[3], 8)
            tag = ("A", b) if b < 8 else ("Q", 0)
            a.vm.wait(tag)
            self.stamp(f"{tag[0]}{tag[1]}", "L")
            a("s_barrier")

    O_, S_, Q_, KV_ = 16, 80, 112, 128
    vIDX, vKo, vVo, vFl, vQa_, vOne, vCa, vPa, vPs = 12, 13, 14, 15, 6, 7, 1, 2, 3

    def attn_init(self):
        a = self.a
        NST = self.cfg["nst"]
        assert NST == 4
        sHd, sQ, sOff, sRow, sCnt, sLd, sFl = range(sT0 + 8, sT0 + 15)
        self.sHd, self.sQ, self.sOff, self.sKr, self.sCnt, self.sLd, self.sFl = sHd, sQ, sOff, sRow, sCnt, sLd, sFl
        a(f"""s_and_b32 s{sHd}, s{sW}, 1
            s_lshr_b32 s{sQ}, s{sT}, 1
            v_lshrrev_b32 v5, 5, v0
            s_and_b32 s{sRow}, s{sR}, {self.cfg['rowmask']}
            s_add_u32 s{sRow}, s{sRow}, s{sQ}
            s_and_b32 s{sRow}, s{sRow}, 15
            s_mov_b32 s{sCnt}, {32 // NST}
            v_lshlrev_b32 v{self.vKo}, 4, v0
            v_and_b32 v{self.vVo}, 15, v0
            v_lshlrev_b32 v{self.vVo}, 4, v{self.vVo}
            v_lshl_add_u32 v{self.vVo}, v5, 8, v{self.vVo}
            s_lshl_b32 s{sLd}, s{sHd}, 12
            s_add_u32 s{sLd}, s{sLd}, {QF}
            v_add_u32 v{self.vQa_}, s{sLd}, v{self.vKo}
            s_lshl_b32 s{sLd}, s{sQ}, 11
            v_add_u32 v{self.vQa_}, s{sLd}, v{self.vQa_}
            v_mov_b32 v{self.vIDX}, 0xdddddddd
            v_mov_b32 v{self.vOne}, 1
            v_and_b32 v4, 0x1b, v0
            v_cmp_eq_u32 vcc, 16, v4
            v_mov_b32 v4, 0x3f803f80
            s_mul_i32 s{sLd}, s{sT}, 4608
            v_cndmask_b32 v4, 0, v4, vcc
            s_add_u32 s{sLd}, s{sLd}, {PART}
            v_lshl_add_u32 v{self.vPa}, v0, 4, s{sLd}
            v_lshl_add_u32 v{self.vPs}, v0, 2, s{sLd}
            s_lshl_b32 s{sLd}, s{sHd}, 2
            s_add_u32 s{sLd}, s{sLd}, {CNT + 8}
            v_mov_b32 v{self.vCa}, s{sLd}
            s_lshl_b32 s{sLd}, s{sT}, 2
            s_add_u32 s{sLd}, s{sLd}, {CNT + 32}
            v_mov_b32 v{self.vFl}, s{sLd}""")
        for st in range(NST):
            for k in range(8):
                a(f"v_mov_b32 v{self.KV_ + 12 * st + 4 + k}, v4")
        for k in range(64):
            a(f"v_mov_b32 v{self.O_ + k}, 0")

    def attn_start(self):
        a = self.a
        NST = self.cfg["nst"]
        sOff = self.sOff
        sHB, sFB, sRow, sFl = sT0, sT0 + 1, self.sKr, self.sFl
        a(f"""s_lshl_b32 s{sHB}, s{sC}, 1
            s_add_u32 s{sHB}, s{sHB}, s{self.sHd}
            s_lshl_b32 s{sHB}, s{sHB}, 17
            s_lshr_b32 s{sFB}, s{sC}, 1
            s_lshl_b32 s{sFB}, s{sFB}, 11
            s_add_u32 s{sFB}, s{sFB}, {CKV}
            s_lshl_b32 s{sOff}, s{sRow}, 13
            s_add_u32 s{sOff}, s{sOff}, s{sHB}
            s_lshl_b32 s{sFl}, s{sRow}, 7
            s_add_u32 s{sFl}, s{sFl}, s{sFB}""")
        self.spoll(sFl, 8)
        self.stamp("KVpoll", "L")
        for st in range(NST - 1):
            b = self.KV_ + 12 * st
            a(f"""buffer_load_dwordx4 {vr(b, 4)}, v{self.vKo}, {sr(sWS, 4)}, s{sOff} offen sc1
                s_mov_b64 exec, {sr(sVM, 2)}
                buffer_load_dwordx4 {vr(b + 4, 4)}, v{self.vVo}, {sr(sWS, 4)}, s{sOff} offen offset:1024 sc1
                buffer_load_dwordx4 {vr(b + 8, 4)}, v{self.vVo}, {sr(sWS, 4)}, s{sOff} offen offset:1536 sc1
                s_mov_b64 exec, -1
                s_add_u32 s{sOff}, s{sOff}, 2048""")
        self.stamp("KViss", "L")
        a(f"v_mov_b32 v5, {CNT}")
        a.lg.reset()
        self.lds_signal(5, self.vOne, 20)
        self.lds_probe(5, 4, 16)
        self.lds_check(5, 4, 16, 16)
        a(f"v_xor_b32 v4, 0x800, v{self.vQa_}")
        self.stamp("Qrdy", "L")
        for q in range(4):
            a(f"ds_read_b128 {vr(self.Q_ + 4 * q, 4)}, v{self.vQa_ if q >= 2 else 4} offset:{1024 * (q & 1)}")
        a(f"""s_add_u32 s{sRow}, s{sRow}, 2
            s_and_b32 s{sRow}, s{sRow}, 15
            s_lshl_b32 s{sFl}, s{sRow}, 7
            s_add_u32 s{sFl}, s{sFl}, s{sFB}
            s_mov_b32 s{sPV}, 0
            s_waitcnt lgkmcnt(0)
            s_mov_b64 exec, 1
            ds_add_u32 v5, v{self.vOne} offset:24
            s_mov_b64 exec, -1
            s_atomic_add s{sPV}, {sr(sWS, 2)}, s{sFl} glc
            s_waitcnt vmcnt({3 * (NST - 2)})
            v_mfma_f32_32x32x16_bf16 {vr(self.S_, 16)}, {vr(self.KV_, 4)}, {vr(self.Q_, 4)}, 0
            s_nop 11""")

    def attn_loop(self):
        a = self.a
        NST = self.cfg["nst"]
        NT = 4 * NST
        O, S, Q, KV = self.O_, self.S_, self.Q_, self.KV_
        sOff, sRow, sCnt, sFl, sHB, sFB = self.sOff, self.sKr, self.sCnt, self.sFl, sT0, sT0 + 1
        sm = lambda st, qt, half, n: (f"v_smfmac_f32_32x32x32_bf16 {vr(O + 16 * qt, 16)}, {vr(KV + 12 * st + 4 + 4 * half, 4)}, "
                                      f"{vr(S + 16 * (n & 1) + 8 * half, 8)}, v{self.vIDX}")
        extra = {
            (2, 0): f"s_lshl_b32 s{sOff}, s{sRow}, 13\ns_add_u32 s{sOff}, s{sOff}, s{sHB}",
            (2, 2): f"s_cmp_eq_u32 s{sCnt}, 1\ns_cselect_b32 s{sOff}, {OOB}, s{sOff}",
            (3, 1): "s_waitcnt lgkmcnt(0)",
            (3, 2): f"s_cmp_lt_u32 s{sPV}, 8\ns_cbranch_scc1 L_kv_wait\nL_kv_ok:",
            (6, 0): f"s_add_u32 s{sRow}, s{sRow}, 2\ns_and_b32 s{sRow}, s{sRow}, 15",
            (6, 2): f"s_lshl_b32 s{sFl}, s{sRow}, 7\ns_add_u32 s{sFl}, s{sFl}, s{sFB}",
            (10, 0): f"s_mov_b32 s{sPV}, 0\ns_atomic_add s{sPV}, {sr(sWS, 2)}, s{sFl} glc",
            (NT - 3, 0): f"s_sub_u32 s{sCnt}, s{sCnt}, 1\ns_cmp_eq_u32 s{sCnt}, 0",
        }

        def ex(n, k):
            for l in extra.get((n, k), "").split("\n"):
                if l.endswith(":"):
                    a.label(l[:-1])
                else:
                    a(l)

        a(f"v_exp_f32 v{S}, v{S}\nv_exp_f32 v{S + 1}, v{S + 1}")
        a.raw(".p2align 6")
        a.label("L_attn")
        for n in range(NT + 1):
            st, qt = divmod(n, 4)
            cur = S + 16 * (n & 1)
            E = lambda lo, hi: [a(f"v_exp_f32 v{cur + k}, v{cur + k}") for k in range(lo, hi)]
            pst, pqt = divmod((n - 1) % NT, 4)
            nst, nqt = divmod((n + 1) % NT, 4)
            ld = KV + 12 * ((st - 1) % NST)
            if n:
                E(0, 2)
                a(sm(pst, pqt, 1, n - 1))
            if n == NT:
                break
            if n == NT - 2:
                a("s_cbranch_scc1 L_attn_tail")
            ex(n, 0)
            if qt == 3:
                a(f"s_waitcnt vmcnt({3 * (NST - 2)})")
            E(2, 5)
            a(f"v_mfma_f32_32x32x16_bf16 {vr(S + 16 * ((n + 1) & 1), 16)}, {vr(KV + 12 * nst, 4)}, {vr(Q + 4 * nqt, 4)}, 0")
            ex(n, 1)
            if qt == 0:
                a(f"buffer_load_dwordx4 {vr(ld, 4)}, v{self.vKo}, {sr(sWS, 4)}, s{sOff} offen sc1")
            if qt == 2 and st:
                a(f"s_add_u32 s{sOff}, s{sOff}, 2048")
            E(5, 10)
            a(sm(st, qt, 0, n))
            ex(n, 2)
            if qt == 1:
                a(f"""s_mov_b64 exec, {sr(sVM, 2)}
                    buffer_load_dwordx4 {vr(ld + 4, 4)}, v{self.vVo}, {sr(sWS, 4)}, s{sOff} offen offset:1024 sc1
                    buffer_load_dwordx4 {vr(ld + 8, 4)}, v{self.vVo}, {sr(sWS, 4)}, s{sOff} offen offset:1536 sc1
                    s_mov_b64 exec, -1""")
            E(10, 16)
        a("s_branch L_attn")
        self.sm = sm

    def attn_finish(self):
        a = self.a
        O, S, Q, KV, T, sm = self.O_, self.S_, self.Q_, self.KV_, 192, self.sm
        sA, sF, m = sT0, sT0 + 1, sT0 + 2
        E = lambda n, lo, hi: [a(f"v_exp_f32 v{S + 16 * (n & 1) + k}, v{S + 16 * (n & 1) + k}") for k in range(lo, hi)]

        def give(q):
            o = O + 16 * q
            a(f"""ds_write_b128 v{self.vPa}, {vr(o, 4)} offset:{2304 * q}
                ds_write_b128 v{self.vPa}, {vr(o + 4, 4)} offset:{2304 * q + 1024}
                ds_write_b32 v{self.vPs}, v{o + 8} offset:{2304 * q + 2048}""")

        a.label("L_attn_tail")
        a.lg.reset()
        a("s_waitcnt lgkmcnt(0)")
        give(0)
        E(14, 2, 5)
        a(f"v_mfma_f32_32x32x16_bf16 {vr(S + 16, 16)}, {vr(KV + 36, 4)}, {vr(Q + 12, 4)}, 0")
        a(f"s_lshl_b32 s{sF}, s{sR}, 1")
        E(14, 5, 10)
        a(sm(3, 2, 0, 14))
        give(1)
        if self.cfg["rel"] == 0:
            a(f"ds_write_b32 v{self.vFl}, v{self.vOne}")
        self.lds_signal(self.vCa, self.vOne, 0)
        E(14, 10, 16)
        E(15, 0, 2)
        a(sm(3, 2, 1, 14))
        self.lds_probe(self.vCa, 4, 0)
        a(f"""s_add_u32 s{sF}, s{sF}, s{self.sQ}
            s_lshl_b32 s{sA}, s{sF}, 5
            s_add_u32 s{sA}, s{sA}, s{sC}
            s_lshl_b32 s{sA}, s{sA}, 1
            s_add_u32 s{sA}, s{sA}, s{self.sHd}
            s_mul_i32 s{m}, s{self.sQ}, -18432
            s_add_u32 s{m}, s{m}, 9216""")
        E(15, 2, 10)
        a(sm(3, 3, 0, 15))
        a(f"""s_lshl_b32 s{sA}, s{sA}, 10
            s_add_u32 s{sA}, s{sA}, {WS_O}
            v_add_u32 v{self.vPa}, s{m}, v{self.vPa}
            v_add_u32 v{self.vPs}, s{m}, v{self.vPs}""")
        E(15, 10, 16)
        a(f"""s_lshl_b32 s{sF}, s{sF}, 2
            s_lshr_b32 s{m}, s{sC}, 2""")
        a(sm(3, 3, 1, 15))
        a(f"""s_add_u32 s{sF}, s{sF}, s{m}
            s_lshl_b32 s{sF}, s{sF}, 7
            s_add_u32 s{sF}, s{sF}, {CO}""")
        if self.cfg["rel"] == 1:
            a(f"ds_write_b32 v{self.vFl}, v{self.vOne}")
            a.lg.issue("rel")
        self.stamp("attn1", "L")
        self.lds_check(self.vCa, 4, 0, 2)
        self.stamp("pair", "L")
        for q in range(2):
            a(f"""ds_read_b32 v{T + 12 * q + 8}, v{self.vPs} offset:{2304 * q + 2048}
                ds_read_b128 {vr(T + 12 * q, 4)}, v{self.vPa} offset:{2304 * q}
                ds_read_b128 {vr(T + 12 * q + 4, 4)}, v{self.vPa} offset:{2304 * q + 1024}""")
        for q in range(2):
            o, t = O + 32 + 16 * q, T + 12 * q
            a(f"s_waitcnt lgkmcnt({3 - 3 * q})\nv_add_f32 v{o + 8}, v{o + 8}, v{t + 8}")
            for k in range(8):
                a(f"v_add_f32 v{o + k}, v{o + k}, v{t + k}")
            if q == 0:
                self.normalise(0)
        self.normalise(1)
        if self.cfg["rel"] == 2:
            a(f"ds_write_b32 v{self.vFl}, v{self.vOne}")
        self.stamp("Ost", "L")
        lo, hi = self.cfg.get("l_lo", 2.0 ** -24), self.cfg.get("l_hi", 2.0 ** 64)
        for q in range(2):
            o, t = O + 32 + 16 * q, T + 12 * q
            a(f"""v_pk_add_f32 {vr(t, 2)}, {vr(o, 2)}, {vr(o + 2, 2)}
                v_pk_add_f32 {vr(t + 2, 2)}, {vr(o + 4, 2)}, {vr(o + 6, 2)}
                v_cmp_lt_f32 vcc, {f32(lo)}, v{o + 8}
                v_pk_add_f32 {vr(t, 2)}, {vr(t, 2)}, {vr(t + 2, 2)}
                s_and_b64 {sr(m, 2)}, {'vcc' if q == 0 else sr(m, 2)}, vcc
                v_cmp_gt_f32 vcc, {f32(hi)}, v{o + 8}
                v_add_f32 v{t}, v{t}, v{t + 1}
                s_and_b64 {sr(m, 2)}, {sr(m, 2)}, vcc
                v_sub_f32 v{t}, v{t}, v{t}
                v_cmp_eq_f32 vcc, 0, v{t}
                s_and_b64 {sr(m, 2)}, {sr(m, 2)}, vcc""")
        a(f"s_cmp_eq_u64 {sr(m, 2)}, -1\ns_cbranch_scc0 L_fallback")
        a.label("L_publish")
        a("s_waitcnt vmcnt(0)")
        self.signal(sF)

    def normalise(self, q):
        a = self.a
        o, d = self.O_ + 32 + 16 * q, 224 + 4 * q
        a(f"v_rcp_f32 v{o + 9}, v{o + 8}\ns_add_u32 s{sT0 + 4}, s{sT0}, {32768 * q}")
        for k in range(8):
            a(f"v_mul_f32 v{o + k}, v{o + k}, v{o + 9}")
        for k in range(4):
            a(f"v_cvt_pk_bf16_f32 v{d + k}, v{o + 2 * k}, v{o + 2 * k + 1}")
        a(f"buffer_store_dwordx4 {vr(d, 4)}, v{self.vKo}, {sr(sWS, 4)}, s{sT0 + 4} offen sc1")

    def fallback(self):
        a = self.a
        S, M, K, V, vMx = self.S_, self.S_ + 16, self.KV_, self.KV_ + 4, 4
        sO, sN = sT0 + 2, sT0 + 3
        a.label("L_kv_wait")
        self.spoll(self.sFl, 8, "L_kv_ok")
        a.label("L_fallback")
        a("s_waitcnt vmcnt(0)")
        for q in range(2):
            O, Q = self.O_ + 32 + 16 * q, self.Q_ + 8 + 4 * q
            a(f"""v_mov_b32 v{vMx}, 0xff800000
                s_lshl_b32 s{sO}, s{sC}, 1
                s_add_u32 s{sO}, s{sO}, s{self.sHd}
                s_lshl_b32 s{sO}, s{sO}, 17
                s_mov_b32 s{sN}, 64""")
            a.label(f"L_fb_max{q}")
            a(f"""buffer_load_dwordx4 {vr(K, 4)}, v{self.vKo}, {sr(sWS, 4)}, s{sO} offen sc1
                s_waitcnt vmcnt(0)
                v_mfma_f32_32x32x16_bf16 {vr(S, 16)}, {vr(K, 4)}, {vr(Q, 4)}, 0
                s_nop 11""")
            for k in range(8):
                a(f"v_max3_f32 v{vMx}, v{S + 2 * k}, v{S + 2 * k + 1}, v{vMx}")
            a(f"""s_add_u32 s{sO}, s{sO}, 2048
                s_sub_u32 s{sN}, s{sN}, 1
                s_cmp_lg_u32 s{sN}, 0
                s_cbranch_scc1 L_fb_max{q}
                v_mov_b32 v{M}, v{vMx}
                s_nop 1
                v_permlane32_swap_b32 v{vMx}, v{M}
                s_nop 1
                v_max_f32 v{vMx}, v{vMx}, v{M}
                s_sub_u32 s{sO}, s{sO}, 131072
                s_mov_b32 s{sN}, 64""")
            for k in range(16):
                a(f"v_sub_f32 v{M + k}, 0, v{vMx}\nv_mov_b32 v{O + k}, 0")
            a.label(f"L_fb_sum{q}")
            a(f"""buffer_load_dwordx4 {vr(K, 4)}, v{self.vKo}, {sr(sWS, 4)}, s{sO} offen sc1
                s_mov_b64 exec, {sr(sVM, 2)}
                buffer_load_dwordx4 {vr(V, 4)}, v{self.vVo}, {sr(sWS, 4)}, s{sO} offen offset:1024 sc1
                buffer_load_dwordx4 {vr(V + 4, 4)}, v{self.vVo}, {sr(sWS, 4)}, s{sO} offen offset:1536 sc1
                s_mov_b64 exec, -1
                s_waitcnt vmcnt(0)
                v_mfma_f32_32x32x16_bf16 {vr(S, 16)}, {vr(K, 4)}, {vr(Q, 4)}, {vr(M, 16)}
                s_nop 11""")
            for k in range(16):
                a(f"v_exp_f32 v{S + k}, v{S + k}")
            a(f"""s_nop 1
                v_smfmac_f32_32x32x32_bf16 {vr(O, 16)}, {vr(V, 4)}, {vr(S, 8)}, v{self.vIDX}
                v_smfmac_f32_32x32x32_bf16 {vr(O, 16)}, {vr(V + 4, 4)}, {vr(S + 8, 8)}, v{self.vIDX}
                s_nop 7
                s_add_u32 s{sO}, s{sO}, 2048
                s_sub_u32 s{sN}, s{sN}, 1
                s_cmp_lg_u32 s{sN}, 0
                s_cbranch_scc1 L_fb_sum{q}
                s_nop 3""")
            self.normalise(q)
        a("s_branch L_publish")

    XR, ACC, WS_ = 128, 32, 8
    vFlo, vD, vF, vCnt, v1_, vTmp = 0, 1, 2, 5, 6, 7

    def m_setup(self):
        a = self.a
        self.vXA, self.vXAh, self.vWk, self.vWkh, self.vQa, self.vST, self.vGo, self.vQFa, self.vGa = 80, 84, 88, 90, 92, 93, 94, 95, 96
        self.kload(sDBG, sWG, sWU, sWD, sWO, sOUT, sGW)
        self.srd(sDBG, sWG, sWU, sWD, sWO, sOUT, sGW)
        skip = self.lab("noreset")
        a(f"""s_lshr_b32 s{sT0 + 3}, s2, 5
            s_or_b32 s{sT0 + 3}, s{sT0 + 3}, s{sW}
            s_cmp_lg_u32 s{sT0 + 3}, 0
            s_cbranch_scc1 {skip}
            s_mul_i32 s{sT0 + 3}, s2, 1536
            s_add_u32 s{sT0 + 3}, s{sT0 + 3}, {WS_FLAG}
            s_mov_b32 s{sPV}, 0
            s_waitcnt lgkmcnt(0)""")
        for k in range(12):
            a(f"s_atomic_and s{sPV}, {sr(sWS, 2)}, s{sT0 + 3}\ns_add_u32 s{sT0 + 3}, s{sT0 + 3}, 128")
        a.label(skip)
        a(f"""s_lshl_b32 s{sRB}, s{sT0}, 2
            s_and_b32 s{sT0 + 2}, s{sT0 + 1}, 3
            s_add_u32 s{sRB}, s{sRB}, s{sT0 + 2}
            s_lshr_b32 s{sCB}, s{sT0 + 1}, 2
            v_and_b32 v16, 31, v0
            v_lshrrev_b32 v17, 5, v0
            v_bfe_u32 v18, v0, 1, 3
            v_xor_b32 v18, v18, v17
            s_lshl_b32 s{sT0}, s{sT}, 12
            v_lshlrev_b32 v19, 7, v16
            v_lshl_add_u32 v19, v18, 4, v19
            v_add_u32 v{self.vXA}, s{sT0}, v19""")
        for s in range(1, 4):
            a(f"v_xor_b32 v{self.vXA + s}, {32 * s}, v{self.vXA}")
        for s in range(4):
            a(f"v_add_u32 v{self.vXAh + s}, 0x10000, v{self.vXA + s}")
        a(f"""v_bfe_u32 v18, v0, 2, 2
            v_lshl_add_u32 v18, v17, 3, v18
            v_bfe_u32 v19, v0, 4, 1
            v_and_b32 v20, 3, v0
            v_lshlrev_b32 v20, 3, v20
            v_lshl_add_u32 v20, v19, 5, v20
            v_bfe_u32 v21, v0, 3, 1
            v_lshl_add_u32 v22, v18, 7, v20
            v_lshl_add_u32 v{self.vWk}, v21, 6, v22
            v_xor_b32 v{self.vWk + 1}, 64, v{self.vWk}
            v_add_u32 v{self.vWkh}, 0x10000, v{self.vWk}
            v_add_u32 v{self.vWkh + 1}, 0x10000, v{self.vWk + 1}
            v_lshl_add_u32 v{self.vQa}, v18, 6, v20
            v_add_u32 v{self.vQa}, {QW}, v{self.vQa}
            s_lshl_b32 s{sT0}, s{sT}, 10
            s_add_u32 s{sT0}, s{sT0}, {QF}
            v_lshl_add_u32 v{self.vQFa}, v0, 4, s{sT0}
            v_mul_u32_u24 v22, 192, v18
            v_and_b32 v23, 0x33, v0
            v_bfe_u32 v25, v0, 2, 1
            v_lshl_add_u32 v23, v25, 3, v23
            v_lshl_add_u32 v23, v21, 2, v23
            v_lshlrev_b32 v23, 4, v23
            v_and_b32 v24, 15, v0
            v_lshlrev_b32 v{self.vGa}, 7, v17
            v_lshlrev_b32 v24, 4, v24
            v_lshl_add_u32 v24, v17, 8, v24
            v_lshl_add_u32 v24, v19, 17, v24
            v_add_u32 v24, 1024, v24
            v_lshlrev_b32 v26, 4, v0
            s_lshl_b32 s{sT0}, s{sT}, 4""")
        for k in range(3):
            a(f"""v_add_u32 v27, {64 * k}, v0
                v_mul_u32_u24 v28, 2731, v27
                v_lshrrev_b32 v28, 15, v28
                v_mul_u32_u24 v29, 12, v28
                v_sub_u32 v29, v27, v29
                v_add_u32 v28, s{sT0}, v28
                v_mul_u32_u24 v28, 2752, v28
                v_lshl_add_u32 v{self.vF + k}, v29, 4, v28""")
        a(f"""v_add_u32 v{self.vFlo}, v22, v20
            v_add_u32 v{self.vFlo}, {fslot(0)}, v{self.vFlo}
            v_bfe_u32 v20, v26, 4, 3
            v_lshlrev_b32 v22, 2, v19
            v_xor_b32 v20, v20, v22
            v_lshlrev_b32 v20, 4, v20
            v_lshrrev_b32 v22, 7, v26
            v_lshl_add_u32 v{self.vD}, v22, 10, v20
            v_mov_b32 v{self.vCnt}, {CNT}
            v_lshl_add_u32 v{self.v1_}, v26, 3, 4""")
        for i in range(4):
            a(f"v_mov_b32 v{100 + i}, 0")
        a(f"ds_write_b128 v{self.vCnt}, v[100:103]\nds_write_b128 v{self.vCnt}, v[100:103] offset:16\nds_write_b128 v{self.vCnt}, v[100:103] offset:32\ns_waitcnt lgkmcnt(0)")
        skip = self.lab("nogo")
        a(f"""s_lshr_b32 s{sT0}, s2, 5
            s_or_b32 s{sT0}, s{sT0}, s{sW}
            s_cmp_lg_u32 s{sT0}, 0
            s_cbranch_scc1 {skip}
            s_and_b32 s{sT0}, s2, 1
            s_lshl_b32 s{sT0}, s{sT0}, 7
            s_atomic_add s{sONE}, {sr(sDBG, 2)}, s{sT0}
            s_waitcnt lgkmcnt(0)""")
        a.label(skip)
        if self.cfg["tf"]:
            assert self.cfg["rbits"] == 3 and self.cfg["rot"] in (3, 4)
            n = self.cfg["tf"]
            up, done = self.lab("tfu"), self.lab("tfd")
            a(f"""v_lshrrev_b32 v27, 8, v26
                v_add_u32 v27, s{sDEL}, v27
                v_and_b32 v27, 3, v27
                v_bfe_u32 v28, v26, 7, 1
                v_lshl_add_u32 v27, v27, 6, v28
                v_mul_u32_u24 v27, 2752, v27
                v_bfe_u32 v28, v26, 4, 3
                v_lshlrev_b32 v28, 7, v28
                v_min_u32 v28, 764, v28
                v_add_u32 v27, v27, v28
                s_lshr_b32 s{sT0}, s{sT}, 1
                s_lshl_b32 s{sT0}, s{sT0}, 7
                s_lshr_b32 s{sT0 + 1}, s2, 3
                s_add_u32 s{sT0}, s{sT0}, s{sT0 + 1}
                s_mul_i32 s{sT0}, s{sT0}, 5504
                s_lshr_b32 s{sT0 + 1}, s{sC}, 2
                s_mul_i32 s{sT0 + 1}, s{sT0 + 1}, 768
                s_add_u32 s{sT0}, s{sT0}, s{sT0 + 1}
                s_mov_b32 m0, {CNT + 64}
                s_mov_b32 exec_lo, {hex(0x7f7f7f7f & ((1 << min(32, 16 * n)) - 1))}
                s_mov_b32 exec_hi, {hex(0x7f7f7f7f & ((1 << max(0, 16 * n - 32)) - 1))}
                s_bitcmp1_b32 s{sT}, 0
                s_cbranch_scc1 {up}
                buffer_load_dword v27, {sr(sWG, 4)}, s{sT0} offen lds
                s_branch {done}""")
            a.label(up)
            a(f"buffer_load_dword v27, {sr(sWU, 4)}, s{sT0} offen lds")
            a.label(done)
            a("s_mov_b64 exec, -1")

    def code_touch(self, lo, hi):
        a = self.a
        here = self.lab("pc")
        a(f"s_getpc_b64 {sr(sT0 + 10, 2)}")
        a.label(here)
        a(f"""s_sub_u32 s{sT0 + 10}, s{sT0 + 10}, {here}-{NAME}_kernel
            s_subb_u32 s{sT0 + 11}, s{sT0 + 11}, 0
            s_lshr_b32 s{sPV}, s2, 3
            s_lshl_b32 s{sPV}, s{sPV}, 2
            s_add_u32 s{sPV}, s{sPV}, s{sT}
            s_mul_i32 s{sPV}, s{sPV}, 384
            v_add_u32 v{lo}, s{sPV}, v{self.v1_}
            v_min_u32 v{lo}, L_code_end-{NAME}_kernel-4, v{lo}
            v_mov_b32 v{lo + 1}, s{sT0 + 11}
            v_add_co_u32 v{lo}, vcc, s{sT0 + 10}, v{lo}
            s_nop 1
            v_addc_co_u32 v{lo + 1}, vcc, 0, v{lo + 1}, vcc
            s_mov_b64 exec, 7
            global_load_dword v{hi}, {vr(lo, 2)}, off
            s_mov_b64 exec, -1""")

    def pass_a(self, isv):
        a = self.a
        a.lg.reset()
        a.vm.reset()
        a(f"v_mov_b32 v{self.vST}, v{24 if isv else 23}")
        XR, ACC, W = self.XR, self.ACC, self.WS_
        sB = sT0 + 2
        atm = self.cfg["atm"]
        wr = lambda g: 104 if (g == 31 and atm) else W + 8 * (g % 3)

        def reads(g):
            i, s = divmod(g, 4)
            B = slot(i)
            self.dsr("ds_read_b128", XR + 4 * g, 4, self.vXA + s, self.vXAh + s, B, ("x", g))
            for ct in range(2):
                for u in range(2):
                    self.dsr("ds_read_b64_tr_b16", wr(g) + 4 * ct + 2 * u, 2, self.vWk + ct, self.vWkh + ct,
                             B + 16384 + (16 * s + 4 * u) * 128, ("w", g, ct))

        def comp(g, cts=(0, 1)):
            for ct in cts:
                a.lg.wait(("x", g), ("w", g, ct))
                wf, xf = vr(wr(g) + 4 * ct, 4), vr(XR + 4 * g, 4)
                d = vr(ACC + 16 * ct, 16)
                A, Bm = (xf, wf) if isv else (wf, xf)
                a(f"v_mfma_f32_32x32x16_bf16 {d}, {A}, {Bm}, {d if g else 0}")

        def kv_store(ct, q):
            d = 112 + 8 * ct + 4 * q
            for k in range(4):
                s = ACC + 16 * ct + 8 * q + 2 * k
                a(f"v_cvt_pk_bf16_f32 v{d + k}, v{s}, v{s + 1}")
            if isv:
                a(f"buffer_store_dwordx4 {vr(d, 4)}, v{self.vST}, {sr(sWS, 4)}, s{sB} offen offset:{512 * q} sc1")
                if q == 1 and ct == 0:
                    a(f"s_add_u32 s{sB}, s{sB}, 262144")
            else:
                a(f"buffer_store_dwordx4 {vr(d, 4)}, v{self.vST}, {sr(sWS, 4)}, s{sB} offen sc1")
                a(f"s_add_u32 s{sB}, s{sB}, 131072")

        a(f"""s_lshr_b32 s{sB}, s{sC}, 1
            s_lshl_b32 s{sB}, s{sB}, 19
            s_lshl_b32 s{sB + 1}, s{sR}, 2
            s_add_u32 s{sB + 1}, s{sB + 1}, s{sT}
            s_lshl_b32 s{sB + 1}, s{sB + 1}, 11
            s_add_u32 s{sB}, s{sB}, s{sB + 1}""")
        for i in range(8):
            g0 = 4 * i
            if i:
                a.lg.drain()
            if i == 7 and atm:
                comp(27)
                a("s_barrier")
                for g in range(28, 31):
                    reads(g)
                comp(28, (0,))
                reads(31)
                for g in range(29, 32):
                    comp(g, (0,))
                comp(28, (1,))
                a("s_nop 5")
                comp(29, (1,))
                a("s_nop 3")
                kv_store(0, 0)
                comp(30, (1,))
                comp(31, (1,))
                kv_store(0, 1)
                a("s_nop 5")
                kv_store(1, 0)
                kv_store(1, 1)
                break
            a("s_barrier")
            if i == 0:
                self.stamp("BA0", "M")
            reads(g0)
            reads(g0 + 1)
            if i:
                comp(g0 - 1)
            reads(g0 + 2)
            if i == 5:
                a(f"buffer_load_dword v{self.vGo}, v{self.vGa}, {sr(sDBG, 4)}, 0 offen sc1")
            comp(g0)
            reads(g0 + 3)
            comp(g0 + 1)
            comp(g0 + 2)
        if not atm:
            comp(31)
            a("s_nop 10")
            for k in range(4):
                kv_store(k >> 1, k & 1)
        self.stamp("KVst", "M")

    def kv_flag(self):
        a = self.a
        ok = self.lab("go")
        a(f"""s_lshr_b32 s{sT0}, s{sC}, 1
            s_lshl_b32 s{sT0}, s{sT0}, 4
            s_add_u32 s{sT0}, s{sT0}, s{sR}
            s_lshl_b32 s{sT0}, s{sT0}, 7
            s_add_u32 s{sT0}, s{sT0}, {CKV}
            s_waitcnt vmcnt({4 + len(a.vm.q)})
            v_cmp_gt_u32 vcc, 16, v{self.vGo}
            s_cbranch_vccz {ok}""")
        q = list(a.vm.q)
        self.poll(self.vGa, "0", self.vGo, sDBG)
        a.vm.q = q
        a.label(ok)

    def issue_f(self, i):
        a = self.a
        sCh, sO, sFB, sLf = sT0 + 4, sT0 + 5, sT0 + 6, sT0 + 7
        if i == 0:
            a(f"s_mul_i32 s{sFB}, s{sC}, 192\ns_mul_i32 s{sLf}, s{sT}, 3072")
        self.chunk(sCh, i)
        a(f"s_mul_i32 s{sO}, s{sCh}, 176128\ns_add_u32 s{sO}, s{sO}, s{sFB}")
        for m in range(2):
            for k in range(3):
                a(f"s_add_u32 m0, s{sLf}, {fslot(i) + 12288 * m + 1024 * k}\ns_nop 0")
                a(f"buffer_load_dwordx4 v{self.vF + k}, {sr(sWG if m == 0 else sWU, 4)}, s{sO} offen {self.cfg['fpol'] if i < self.cfg['fn'] else ''} lds")
                a.vm.issue(("F", i))

    def touch(self, i):
        a = self.a
        sA = sT0 + 8
        a(f"""s_lshr_b32 s{sA}, s2, 3
            s_lshl_b32 s{sA}, s{sA}, 2
            s_add_u32 s{sA}, s{sA}, s{sT}
            s_mul_i32 s{sA}, s{sA}, 11008
            s_add_u32 s{sA}, s{sA}, {2048 * i}
            s_mov_b32 m0, {CNT + 64}
            s_mov_b64 exec, {'0x3f' if i == 5 else '0xffff'}
            buffer_load_dword v{self.v1_}, {sr(sWD, 4)}, s{sA} offen lds
            s_mov_b64 exec, -1""")
        a.vm.issue("touch")

    def issue_wo(self, lo, hi):
        a = self.a
        sA, sL = sT0 + 8, sT0 + 9
        a(f"""s_lshl_b32 s{sA}, s{sT}, 17
            s_lshl_b32 s{sL}, s{sCB}, 7
            s_add_u32 s{sA}, s{sA}, s{sL}
            s_lshl_b32 s{sL}, s{sT}, 14""")
        for k in range(lo, hi):
            a(f"""s_add_u32 m0, s{sL}, {WOL + 1024 * k}
                s_add_u32 s{sA}, s{sA}, {8192 * (k if k == lo else 1)}
                buffer_load_dwordx4 v{self.vD}, {sr(sWO, 4)}, s{sA} offen lds""")
            a.vm.issue("wo")

    def pass_q(self):
        a = self.a
        XR, W, QACC = self.XR, self.WS_, 64
        a.lg.reset()
        a.vm.reset()
        flag_at, f0_at = self.cfg["kvflag_at"], self.cfg["f0_at"]

        def reads(g):
            for u in range(2):
                self.dsr("ds_read_b64_tr_b16", W + 4 * (g % 6) + 2 * u, 2, self.vQa, None, (16 * g + 4 * u) * 64, g)

        def hooks(j):
            if j == flag_at:
                if a.vm.q:
                    a(f"s_cmp_eq_u32 s{sC}, 15\ns_cbranch_scc0 L_kvw\ns_waitcnt vmcnt(0)")
                    a.label("L_kvw")
                a(f"s_waitcnt vmcnt({len(a.vm.q)})")
                self.stamp("KVack", "M")
                self.signal(sT0)
                self.stamp("KVflag", "M")
            if j == f0_at:
                skip = self.lab("nof0")
                a(f"s_cmp_eq_u32 s{sC}, 15\ns_cbranch_scc1 {skip}")
                self.issue_f(0)
                a.label(skip)

        if self.cfg["qs"] % 10:
            a("s_barrier")
        self.kv_flag()
        hooks(-2)
        hooks(-1)
        self.stamp("F0iss", "M")
        a("s_barrier")
        self.stamp("BQ", "M")
        for g in range(6):
            reads(g)
        nxt = 6
        for g in range(32):
            a.lg.wait(g)
            d = vr(QACC, 16)
            a(f"v_mfma_f32_32x32x16_bf16 {d}, {vr(W + 4 * (g % 6), 4)}, {vr(XR + 4 * g, 4)}, {d if g else 0}")
            if nxt < 32:
                reads(nxt)
                nxt += 1
            hooks(g)
        a(f"v_mov_b32 v98, {f32(0.25 * LOG2E)}\ns_nop 10")
        for k in range(8):
            a(f"v_pk_mul_f32 {vr(QACC + 2 * k, 2)}, {vr(QACC + 2 * k, 2)}, v[98:99] op_sel_hi:[1,0]")
        for hd in range(2):
            for k in range(4 * hd, 4 * hd + 4):
                a(f"v_cvt_pk_bf16_f32 v{QACC + k}, v{QACC + 2 * k}, v{QACC + 2 * k + 1}")
            a(f"ds_write_b128 v{self.vQFa}, {vr(QACC + 4 * hd, 4)} offset:{4096 * hd}")
        self.lds_signal(self.vCnt, self.v1_, 16)
        self.stamp("Qdone", "M")
        hooks(32)

    def pass_f(self):
        a = self.a
        XR, ACC, W = self.XR, self.ACC, self.WS_
        N, sig, gat, rchk = 192, self.cfg["sig_at"], self.cfg["gate_at"], self.cfg["rchk"]

        def reads(j):
            g, t = divmod(j, 6)
            i, s = divmod(g, 4)
            if j % 24 == 0 and i:
                self.boost()
                a(f"v_add_u32 v{self.vFlo}, {(fslot(i) - fslot(i - 1)) & 0xffffffff}, v{self.vFlo}")
            for u in range(2):
                self.dsr("ds_read_b64_tr_b16", W + 4 * (j % 6) + 2 * u, 2, self.vFlo, None,
                         12288 * (t & 1) + (16 * s + 4 * u) * 192 + 64 * (t >> 1), j)

        def landed(i):
            a.vm.wait(("F", i))
            self.lds_signal(self.vCnt, self.v1_, 0)
            self.boost()

        self.bg = bool(self.cfg["boost"])
        landed(0)
        self.lds_probe(self.vCnt, self.vTmp, 0)
        self.lds_check(self.vCnt, self.vTmp, 0, 16)
        self.stamp("F0", "M")
        for j in range(6):
            reads(j)
        for j in range(N):
            g, t = divmod(j, 6)
            i, jj = divmod(j, 24)
            if self.cfg["pulse"] and j % self.cfg["pulse"] == 0:
                self.boost()
            a.lg.wait(j)
            d = vr(ACC + 16 * t, 16)
            a(f"v_mfma_f32_32x32x16_bf16 {d}, {vr(W + 4 * (j % 6), 4)}, {vr(XR + 4 * g, 4)}, {d if g else 0}")
            self.unboost()
            if jj == 23:
                self.stamp(f"f{i}", "M")
            if j == gat - 2:
                self.lds_probe(self.vCnt, self.vTmp, 20)
            if j == gat:
                self.lds_check(self.vCnt, self.vTmp, 20, 4)
                self.issue_f(1)
            if j == 20:
                self.lds_probe(self.vCnt, self.vTmp, 24)
            if j == 22:
                self.lds_check(self.vCnt, self.vTmp, 24, 4)
            if 1 <= i < 6:
                if jj == 0:
                    self.lds_signal(self.vCnt, self.v1_, 28)
                if jj == rchk - 2:
                    self.lds_probe(self.vCnt, self.vTmp, 28)
                if jj == rchk:
                    self.lds_check(self.vCnt, self.vTmp, 28, 16 * i)
                    self.issue_f(i + 2)
            if i == 7:
                if jj == 0:
                    self.lds_signal(self.vCnt, self.v1_, 28)
                    self.ffn2_scalars()
                if jj == rchk - 2:
                    self.lds_probe(self.vCnt, self.vTmp, 28)
                if jj == rchk:
                    self.lds_check(self.vCnt, self.vTmp, 28, 96)
                    a(f"v_add_u32 v{self.vD2}, 7168, v{self.vD}")
                    a.vm.wait("wo")
                if jj >= rchk and (jj - rchk) % 2 == 0 and jj - rchk < 12:
                    self.issue_w((jj - rchk) // 2)
            if i < 7:
                if jj == (sig if i else 14):
                    landed(i + 1)
                    if i == 0:
                        self.issue_f(2)
                if jj == self.cfg["wo_at"] and i:
                    self.touch(i - 1)
                    self.issue_wo(*((0, 3), (3, 6), (6, 9), (9, 12), (12, 14), (14, 16))[i - 1])
                if jj == 15:
                    self.lds_probe(self.vCnt, self.vTmp, 0)
                if jj == 18:
                    self.lds_check(self.vCnt, self.vTmp, 0, 16 * (i + 2))
            if j + 6 < N:
                reads(j + 6)
        self.bg = False
        self.lds_signal(self.vCnt, self.v1_, 0)
        self.stamp("Fdone", "M")

    def gelu(self):
        a = self.a
        ACC = self.ACC
        c0, c1, T, OUT, vOff = 240, 242, 224, 200, self.vP
        sH, sV, sA = sT0 + 12, sT0 + 13, sT0 + 14
        prog = self.w_program()
        per_gap = [int(ch) for ch in str(self.cfg["gaps"])[1:]]
        k0 = -2.0 * 0.7978845608028654 * LOG2E
        a(f"""s_lshl_b32 s{sH}, s{sR}, 2
            s_add_u32 s{sH}, s{sH}, s{sT}
            s_mul_i32 s{sH}, s{sH}, 86
            s_mul_i32 s{sV}, s{sC}, 6
            s_add_u32 s{sH}, s{sH}, s{sV}
            s_lshl_b32 s{sH}, s{sH}, 10
            s_add_u32 s{sH}, s{sH}, {WS_H}""")
        self.ffn2_setup()
        a(f"""v_mov_b32 v{c0}, {f32(k0)}
            v_mov_b32 v{c0 + 1}, {f32(k0)}
            v_mov_b32 v{c1}, {f32(k0 * 0.044715)}
            v_mov_b32 v{c1 + 1}, {f32(k0 * 0.044715)}""")

        def stores(j):
            a(f"s_cmp_lt_u32 s{sV}, {86 - 2 * j}\ns_cselect_b32 s{sA}, s{sH}, {OOB}\ns_add_u32 s{sH}, s{sH}, 2048")
            for q in range(2):
                a(f"buffer_store_dwordx4 {vr(OUT + 8 * j + 4 * q, 4)}, v{vOff}, {sr(sWS, 4)}, s{sA} offen offset:{1024 * q} sc1")
                a.vm.issue("H")

        def gap(n):
            for _ in range(per_gap[n]):
                prog.pop(0)()

        for j in range(3):
            G, U = ACC + 32 * j, ACC + 32 * j + 16
            p = lambda b, k: vr(b + 2 * k, 2)
            for k in range(8):
                if j == 0 and k < self.cfg["plain"]:
                    a(f"v_mul_f32 v{T + 2 * k}, v{G + 2 * k}, v{G + 2 * k}\nv_mul_f32 v{T + 2 * k + 1}, v{G + 2 * k + 1}, v{G + 2 * k + 1}")
                else:
                    a(f"v_pk_mul_f32 {p(T, k)}, {p(G, k)}, {p(G, k)}")
            for k in range(8):
                a(f"v_pk_fma_f32 {p(T, k)}, {p(T, k)}, {vr(c1, 2)}, {vr(c0, 2)}")
            for k in range(8):
                a(f"v_pk_mul_f32 {p(T, k)}, {p(T, k)}, {p(G, k)}")
            if j:
                stores(j - 1)
            gap(2 * j)
            for k in range(16):
                a(f"v_exp_f32 v{T + k}, v{T + k}")
            for k in range(8):
                a(f"v_pk_mul_f32 {p(G, k)}, {p(G, k)}, {p(U, k)}")
            for k in range(8):
                a(f"v_pk_add_f32 {p(T, k)}, {p(T, k)}, 1.0 op_sel_hi:[1,0]")
            gap(2 * j + 1)
            for k in range(16):
                a(f"v_rcp_f32 v{T + k}, v{T + k}")
            for k in range(8):
                a(f"v_pk_mul_f32 {p(G, k)}, {p(G, k)}, {p(T, k)}")
            for k in range(8):
                a(f"v_cvt_pk_bf16_f32 v{OUT + 8 * j + k}, v{G + 2 * k}, v{G + 2 * k + 1}")
        stores(2)

    def gate(self):
        a = self.a
        XR, GB, Z, vO = self.XR, 32, 24, 28
        sCh = sT0 + 4
        a.vm.drain()
        a.lg.reset()
        self.lds_probe(self.vCnt, self.vTmp, 24)
        self.lds_check(self.vCnt, self.vTmp, 24, 4, nap=2)
        self.lane(vO + 1)
        a(f"v_lshrrev_b32 v{vO}, 5, v{vO + 1}\nv_lshlrev_b32 v{vO}, 4, v{vO}")
        for k in range(4):
            a(f"v_mov_b32 v{Z + k}, 0")
        for half in range(2):
            for i in range(4 * half, 4 * half + 4):
                self.chunk(sCh, i)
                a(f"s_lshl_b32 s{sCh}, s{sCh}, 7")
                for s in range(4):
                    a(f"buffer_load_dwordx4 {vr(GB + 16 * (i & 3) + 4 * s, 4)}, v{vO}, {sr(sGW, 4)}, s{sCh} offen offset:{32 * s}")
            for i in range(3 * half, 3 * half + 3):
                self.touch(i)
            a("s_waitcnt vmcnt(0)")
            for k in range(64):
                a(f"v_dot2c_f32_bf16 v{Z + (k & 3)}, v{XR + 64 * half + k}, v{GB + k}")
        a(f"""s_lshl_b32 s{sT0}, s{sR}, 2
            s_add_u32 s{sT0}, s{sT0}, s{sT}
            s_lshl_b32 s{sT0}, s{sT0}, 7
            s_add_u32 s{sT0}, s{sT0}, {WS_G}
            v_add_f32 v{Z}, v{Z}, v{Z + 1}
            v_add_f32 v{Z + 2}, v{Z + 2}, v{Z + 3}
            v_add_f32 v{Z}, v{Z}, v{Z + 2}
            v_mov_b32 v{Z + 1}, v{Z}
            v_lshlrev_b32 v{vO}, 2, v{vO + 1}
            s_nop 0
            v_permlane32_swap_b32 v{Z}, v{Z + 1}
            s_nop 1
            v_add_f32 v{Z}, v{Z}, v{Z + 1}
            s_mov_b32 s{sT0 + 12}, s{sT0}""")
        for k in range(0, 16, 4):
            self.issue_wo(k, k + 4)
            self.cap()
        a.vm.drain()
        a(f"v_mov_b32 v{self.vTmp}, 36")
        self.lds_signal(self.vCnt, self.vTmp, 0)
        self.ffn2_scalars()
        a(f"v_add_u32 v{self.vD2}, 7168, v{self.vD}")
        for k in range(6):
            self.issue_w(k)
            self.cap()
        self.ffn2_setup()
        for op in self.w_program()[:sum(int(ch) for ch in str(self.cfg["gaps"])[1:])]:
            op()
        a(f"""s_mov_b32 exec_hi, 0
            buffer_store_dword v{Z}, v{vO}, {sr(sWS, 4)}, s{sT0 + 12} offen sc1
            s_mov_b64 exec, -1""")

    vL, vH, vA0, vA1, vRel, vDump, vP, vZ, vD2, vH2, vT0, vB0, vB1 = 8, 10, 11, 12, 13, 15, 16, 17, 2, 19, 9, 14, 18

    sRB2 = 4

    def ffn2_scalars(self):
        a = self.a
        sRing, sS0, sS1, sWc, sW0, sWe, sHc, sH0, sHe, sHl, sFl, sRow = range(sT0, sT0 + 12)
        NS = 22
        a(f"""s_mul_i32 s{sRing}, s{sT}, 12288
            s_mul_i32 s{self.sRB2}, s{sT}, 6144
            s_add_u32 s{self.sRB2}, s{self.sRB2}, {SEGB}
            s_and_b32 s{sS0}, s{sRB}, 3
            s_lshl_b32 s{sS0}, s{sS0}, 1
            s_add_u32 s{sS0}, s{sS0}, s{sCB}
            s_and_b32 s{sS0}, s{sS0}, {7 if self.cfg['rot2'] else 0}
            s_mul_i32 s{sS0}, s{sS0}, 11
            s_lshr_b32 s{sS0}, s{sS0}, 2
            s_mul_i32 s{sS1}, s{sT}, {NS}
            s_lshl_b32 s{sW0}, s{sS1}, 14
            s_lshl_b32 s{sWc}, s{sCB}, 7
            s_add_u32 s{sW0}, s{sW0}, s{sWc}
            s_add_u32 s{sWe}, s{sW0}, {NS * 16384}
            s_lshl_b32 s{sWc}, s{sS0}, 14
            s_add_u32 s{sWc}, s{sWc}, s{sW0}
            s_mul_i32 s{sHl}, s{sRB}, 172
            s_add_u32 s{sH0}, s{sHl}, s{sS1}
            s_lshl_b32 s{sH0}, s{sH0}, 10
            s_add_u32 s{sH0}, s{sH0}, {WS_H}
            s_add_u32 s{sHe}, s{sH0}, {NS * 1024}
            s_lshl_b32 s{sHc}, s{sS0}, 10
            s_add_u32 s{sHc}, s{sHc}, s{sH0}
            s_lshl_b32 s{sHl}, s{sHl}, 10
            s_add_u32 s{sHl}, s{sHl}, {WS_H + 86 * 1024}
            s_lshl_b32 s{sFl}, s{sR}, 1
            s_lshr_b32 s{sS0}, s{sT}, 1
            s_add_u32 s{sFl}, s{sFl}, s{sS0}
            s_lshl_b32 s{sFl}, s{sFl}, 9
            s_add_u32 s{sFl}, s{sFl}, {CH}
            s_mov_b32 s{sRow}, 0x62223111
            s_cmp_ge_u32 s{sC}, 8
            s_cselect_b32 s{sRow}, 0xf8888444, s{sRow}
            s_and_b32 s{sS0}, s{sC}, 7
            s_lshl_b32 s{sS0}, s{sS0}, 2
            s_lshr_b32 s{sRow}, s{sRow}, s{sS0}""")

    def cap(self):
        a, CAP = self.a, self.cfg["cap"]
        if len(a.vm.q) > CAP:
            a.vm.q = a.vm.q[len(a.vm.q) - CAP:]
            a(f"s_waitcnt vmcnt({CAP})")

    def issue_w(self, s):
        a = self.a
        sRing, sS0, sS1, sWc, sW0, sWe = range(sT0, sT0 + 6)
        a(f"s_add_u32 m0, s{sRing if WSLOT[s] < 6 else self.sRB2}, {(WSLOT[s] % 6) * 2048}")
        if s:
            a(f"s_add_u32 s{sWc}, s{sWc}, 16384\ns_cmp_eq_u32 s{sWc}, s{sWe}\ns_cselect_b32 s{sWc}, s{sW0}, s{sWc}")
        else:
            a("s_nop 0")
        a(f"buffer_load_dwordx4 v{self.vD}, {sr(sWD, 4)}, s{sWc} offen lds")
        a(f"buffer_load_dwordx4 v{self.vD2}, {sr(sWD, 4)}, s{sWc} offen offset:1024 lds")
        a.vm.issue(("w", s))
        a.vm.issue(("w", s))

    @staticmethod
    def wreg(s):
        return 128 + 8 * s if s < 9 else 96 + 8 * (s - 9) if s < 13 else 128 + 8 * (s - 13)

    def w_reads(self, s):
        self.a.vm.wait(("w", s))
        regs = (self.vA0, self.vA1) if WSLOT[s] < 6 else (self.vB0, self.vB1)
        for ct in range(2):
            for u in range(2):
                self.dsr("ds_read_b64_tr_b16", self.wreg(s) + 4 * ct + 2 * u, 2, regs[ct], None,
                         (WSLOT[s] % 6) * 2048 + 1024 * u, (s, ct))

    def w_program(self, need=144):
        a = self.a

        def R(*steps):
            return lambda: [self.w_reads(s) for s in steps]

        def I(s):
            def op():
                prev = [p for p in range(s) if WSLOT[p] == WSLOT[s]]
                if prev:
                    a.lg.wait((prev[-1], 1))
                if s == 11:
                    self.lds_probe(self.vCnt, self.vTmp, 0)
                if s == 12:
                    self.lds_check(self.vCnt, self.vTmp, 0, need)
                self.issue_w(s)
                self.cap()
            return op

        return [R(0, 1, 2), I(6), I(7), R(3, 4, 5), I(8), I(9), I(10), I(11), I(12), I(13), R(6, 7, 8), I(14), I(15), I(16), I(17),
                R(9, 10), R(11, 12), I(18), I(19), I(20), I(21)]

    def ffn2_setup(self):
        a = self.a
        vL, vH, vA0, vA1, vRel, vDump, vP, vZ, vH2, vT0 = (self.vL, self.vH, self.vA0, self.vA1, self.vRel, self.vDump, self.vP,
                                                           self.vZ, self.vH2, self.vT0)
        sRing, sS0 = sT0, sT0 + 1
        self.lane(vL)
        a(f"""v_lshlrev_b32 v{vP}, 4, v{vL}
            s_and_b32 s{sS0}, s{sT}, 1
            s_mul_i32 s{sS0}, s{sS0}, 88064
            v_add_u32 v{vH}, s{sS0}, v{vP}
            s_sub_u32 s{sS0}, 88064, s{sS0}
            v_add_u32 v{vH2}, s{sS0}, v{vP}
            v_add_u32 v{vDump}, s{sRing}, v{vP}
            v_lshrrev_b32 v20, 5, v{vL}
            v_bfe_u32 v21, v{vL}, 2, 2
            v_lshl_add_u32 v20, v20, 2, v21
            v_and_b32 v21, 1, v{vL}
            v_lshlrev_b32 v21, 2, v21
            v_bfe_u32 v22, v{vL}, 4, 1
            v_lshl_add_u32 v21, v22, 1, v21
            v_bfe_u32 v23, v{vL}, 1, 1
            v_add_u32 v21, v21, v23
            v_lshlrev_b32 v21, 3, v21
            v_lshl_add_u32 v21, v20, 7, v21
            v_bfe_u32 v23, v{vL}, 3, 1
            v_lshl_add_u32 v21, v23, 6, v21
            s_lshr_b32 s{sS0}, s{sT}, 1
            s_lshl_b32 s{sS0}, s{sS0}, 6
            v_xor_b32 v{vT0}, s{sS0}, v21
            v_add_u32 v{vA0}, s{sRing}, v{vT0}
            v_xor_b32 v{vA1}, 64, v{vA0}
            v_add_u32 v{self.vB0}, s{self.sRB2}, v{vT0}
            v_xor_b32 v{self.vB1}, 64, v{self.vB0}
            s_lshl_b32 s{sS0}, s{sT}, 2
            v_add_u32 v{vRel}, s{sS0}, v{self.vCnt}
            v_and_b32 v{vZ}, 31, v{vL}
            v_lshlrev_b32 v{vZ}, 2, v{vZ}""")

    def ffn2(self):
        a = self.a
        ACC = 32
        vH, vRel, vDump, vZ, vH2 = self.vH, self.vRel, self.vDump, self.vZ, self.vH2
        sRing, sS0, sS1, sWc, sW0, sWe, sHc, sH0, sHe, sHl, sFl, sRow = range(sT0, sT0 + 12)
        NS, PD = 22, self.cfg["pd"]
        cap, issue_w, reads, wreg = self.cap, self.issue_w, self.w_reads, self.wreg
        hreg = lambda s: 200 + 8 * ((s + 6) % 7)
        a(f"s_setprio {self.cfg['prio_m']}")
        a.lg.reset()
        a.vm.reset()

        def issue_h(s):
            if s:
                a(f"""s_add_u32 s{sHc}, s{sHc}, 1024
                    s_cmp_eq_u32 s{sHc}, s{sHe}
                    s_cselect_b32 s{sHc}, s{sH0}, s{sHc}""")
            a(f"s_cmp_lt_u32 s{sHc}, s{sHl}\ns_cselect_b32 s{sS0}, s{sHc}, {OOB}")
            for tt in range(2):
                a(f"buffer_load_dwordx4 {vr(hreg(s) + 4 * tt, 4)}, v{(vH, vH2)[tt]}, {sr(sWS, 4)}, s{sS0} offen sc1")
                a.vm.issue(("h", s))

        done = sum(int(ch) for ch in str(self.cfg["gaps"])[1:])
        assert done <= 15 and done != 8
        prog = self.w_program()[done:]
        a("s_waitcnt vmcnt(0) lgkmcnt(0)")
        for k in range(4):
            skip = self.lab("nosig")
            a(f"s_bitcmp1_b32 s{sRow}, {k}\ns_cbranch_scc0 {skip}")
            self.signal(sFl)
            a.label(skip)
            a(f"s_add_u32 s{sFl}, s{sFl}, 128")
        self.stamp("Hflag", "M")
        a(f"""s_lshl_b32 s{sFl}, s{sRB}, 2
            s_add_u32 s{sFl}, s{sFl}, s{sT}
            s_lshl_b32 s{sFl}, s{sFl}, 7
            s_add_u32 s{sFl}, s{sFl}, {CH}
            s_cmp_eq_u32 s{sT}, 1
            s_cselect_b32 s{sRow}, 12, 10
            s_mov_b32 s{sPV}, 0""")
        for n, op in enumerate(prog):
            if n == len(prog) - 3:
                a.lg.drain()
                a(f"s_atomic_add s{sPV}, {sr(sWS, 2)}, s{sFl} glc")
            op()
        self.stamp("W0", "M")
        ready = self.lab("hready")
        a(f"s_waitcnt lgkmcnt(0)\ns_cmp_ge_u32 s{sPV}, s{sRow}\ns_cbranch_scc1 {ready}")
        self.spoll(sFl, f"s{sRow}")
        a.label(ready)
        self.stamp("Hpoll", "M")
        for s in range(PD):
            issue_h(s)
        a(f"""s_lshl_b32 s{sFl}, s{sRB}, 1
            s_and_b32 s{sS0}, s{sT}, 1
            s_add_u32 s{sFl}, s{sFl}, s{sS0}
            s_lshl_b32 s{sFl}, s{sFl}, 7
            s_add_u32 s{sFl}, s{sFl}, {WS_G}
            buffer_load_dword v{vZ}, v{vZ}, {sr(sWS, 4)}, s{sFl} offen sc1""")
        a.vm.issue("z")
        nh = PD
        hold = NS - self.cfg["defer"]
        assert hold <= 16 or hold == NS

        cnt = [0]

        def mm(s, ct, tt):
            self.bg = bool(self.cfg["pulse2"])
            if self.bg and cnt[0] % self.cfg["pulse2"] == 0:
                self.boost()
            cnt[0] += 1
            a.vm.wait(("h", s))
            a.lg.wait((s, ct))
            d = vr(ACC + 32 * tt + 16 * ct, 16)
            a(f"v_mfma_f32_32x32x16_bf16 {d}, {vr(wreg(s) + 4 * ct, 4)}, {vr(hreg(s) + 4 * tt, 4)}, {d if s else 0}")
            self.unboost()
            self.bg = False

        for s in range(17):
            if s == hold or s == 16:
                while nh < min(NS, s + 7):
                    issue_h(nh)
                    nh += 1
                    cap()
            if s == hold:
                self.stamp("hold", "M")
                self.lds_probe(vRel, self.vTmp, 32)
                self.lds_check(vRel, self.vTmp, 32, 1, nap=2)
                self.stamp("resume", "M")
            if s == 16:
                break
            self.stamp(f"s{s}", "M")
            for k in range(4):
                mm(s, *divmod(k, 2))
                if k == 0 and nh < min(NS, s + 7):
                    issue_h(nh)
                    nh += 1
                if k == 1 and 1 <= s <= 9:
                    reads(s + 12)
        self.stamp("s16", "M")
        a.lg.drain()
        self.final_setup()
        for n, (ct, tt) in enumerate(((0, 1), (1, 0), (1, 1), (0, 0))):
            for s in range(16, NS):
                mm(s, ct, tt)
                if n and s >= 18:
                    k = (8, 4, 12)[n - 1] + s - 18
                    if s == 18:
                        a("s_nop 8" if n < 3 else "s_nop 3")
                    a(f"ds_write_b128 v{vDump}, {vr(ACC + 4 * k, 4)} offset:{1024 * (k - 4)}")
                if n == 3 and s == 16:
                    self.early_o()
        self.lds_signal(self.vCnt, self.v1_, 4)
        self.stamp("s22", "M")

    def final_setup(self):
        a = self.a
        sFl, sOut, sO, sA, sTT, sKh, sF2, sG = range(sT0 + 1, sT0 + 9)
        a(f"""s_and_b32 s{sTT}, s{sT}, 1
            s_lshr_b32 s{sKh}, s{sT}, 1
            s_lshl_b32 s{sFl}, s{sRB}, 1
            s_add_u32 s{sFl}, s{sFl}, s{sKh}
            s_lshl_b32 s{sFl}, s{sFl}, 8
            s_add_u32 s{sFl}, s{sFl}, {CO}
            s_add_u32 s{sF2}, s{sFl}, 128
            s_mov_b32 s{sPV}, 0
            s_mov_b32 s{sA}, 0
            s_atomic_add s{sPV}, {sr(sWS, 2)}, s{sFl} glc
            s_atomic_add s{sA}, {sr(sWS, 2)}, s{sF2} glc
            s_lshl_b32 s{sOut}, s{sRB}, 1
            s_add_u32 s{sOut}, s{sOut}, s{sTT}
            s_lshl_b32 s{sO}, s{sOut}, 5
            s_lshl_b32 s{sG}, s{sKh}, 4
            s_add_u32 s{sO}, s{sO}, s{sG}
            s_lshl_b32 s{sO}, s{sO}, 10
            s_add_u32 s{sO}, s{sO}, {WS_O}
            s_lshl_b32 s{sOut}, s{sOut}, 15
            s_lshl_b32 s{sG}, s{sCB}, 7
            s_add_u32 s{sOut}, s{sOut}, s{sG}
            s_lshl_b32 s{sG}, s{sKh}, 6
            s_add_u32 s{sOut}, s{sOut}, s{sG}""")

    @staticmethod
    def of(s):
        return 96 + 4 * s if s < 14 else 200 + 4 * (s - 14)

    def oloads(self, h, sO):
        a = self.a
        for s in range(8 * h, 8 * h + 8):
            if s % 8 == 4:
                a(f"s_add_u32 s{sO}, s{sO}, 4096")
            a(f"buffer_load_dwordx4 {vr(self.of(s), 4)}, v{self.vP}, {sr(sWS, 4)}, s{sO} offen offset:{1024 * (s % 4)} sc1")
            a.vm.issue(s)

    def early_o(self):
        a = self.a
        sFl, sOut, sO, sA, sTT, sKh, sF2, sG, sE, sX = range(sT0 + 1, sT0 + 11)
        skip = self.lab("noearly")
        a.vm.drain()
        a(f"""s_waitcnt lgkmcnt(0)
            s_min_u32 s{sE}, s{sPV}, s{sA}
            s_lshr_b32 s{sE}, s{sE}, 3
            s_cbranch_scc0 {skip}
            s_mov_b32 s{sX}, s{sO}""")
        self.oloads(0, sX)
        a(f"s_add_u32 s{sX}, s{sX}, 4096")
        self.oloads(1, sX)
        a.label(skip)
        a.vm.reset()

    def final(self):
        a = self.a
        B, PT, OWN, OTH = 32, 48, 152, 168
        WO = lambda s: (184, 192, 208, 216, 224, 232, 240, 248)[s % 8]
        vL, vH, vX, vZ, vA0, vA1 = self.vL, self.vP, self.vDump, self.vZ, self.vA0, self.vA1
        vOut, vG, vP1, vP2, vP3, vB0, vB1, vXp = 1, 2, 19, 10, 13, self.vB0, self.vB1, 20
        sFl, sOut, sO, sA, sTT, sKh, sF2, sG, sE, sX = range(sT0 + 1, sT0 + 11)
        top, got, loaded, join = self.lab("opoll"), self.lab("ogot"), self.lab("oloaded"), self.lab("ojoin")
        a.lg.reset()
        for reg, d in ((vP1, 2), (vP2, 1), (vP3, 3)):
            a(f"s_xor_b32 s{sG}, s{sT}, {d}\ns_mul_i32 s{sG}, s{sG}, 12288\nv_add_u32 v{reg}, s{sG}, v{vH}")
        a(f"""v_add_u32 v{vX}, s{self.sRB2}, v{vH}
            s_xor_b32 s{sG}, s{sT}, 2
            s_mul_i32 s{sG}, s{sG}, 6144
            s_add_u32 s{sG}, s{sG}, {SEGB}
            v_add_u32 v{vXp}, s{sG}, v{vH}
            v_mul_f32 v{vG}, {f32(LOG2E)}, v{vZ}
            v_and_b32 v{vOut}, 31, v{vL}
            v_exp_f32 v{vG + 2}, v{vG}
            v_exp_f32 v{vG}, -v{vG}
            v_lshlrev_b32 v{vOut}, 10, v{vOut}
            v_add_f32 v{vG + 2}, 1.0, v{vG + 2}
            v_add_f32 v{vG}, 1.0, v{vG}
            v_rcp_f32 v{vG + 2}, v{vG + 2}
            v_rcp_f32 v{vG}, v{vG}
            v_lshrrev_b32 v{vL}, 5, v{vL}
            v_lshl_add_u32 v{vOut}, v{vL}, 5, v{vOut}""")
        a(f"""s_mov_b32 s{sG}, 0
            s_cmp_lg_u32 s{sE}, 0
            s_cbranch_scc1 {loaded}
            s_mov_b32 s{sSPIN}, 200000""")
        a.label(top)
        a(f"""s_mov_b32 s{sPV}, 0
            s_mov_b32 s{sA}, 0
            s_atomic_add s{sPV}, {sr(sWS, 2)}, s{sFl} glc
            s_atomic_add s{sA}, {sr(sWS, 2)}, s{sF2} glc
            s_sub_u32 s{sSPIN}, s{sSPIN}, 1
            s_cbranch_scc1 {got}
            s_waitcnt lgkmcnt(0)
            s_max_u32 s{sE}, s{sPV}, s{sA}
            s_cmp_lt_u32 s{sE}, 8
            s_cbranch_scc1 {top}""")
        a.label(got)
        a(f"""s_waitcnt lgkmcnt(0)
            s_cmp_lt_u32 s{sPV}, 8
            s_cselect_b32 s{sG}, 1, 0
            s_lshl_b32 s{sX}, s{sG}, 13
            s_add_u32 s{sO}, s{sO}, s{sX}""")
        self.stamp("Opoll", "M")
        a.vm.reset()
        self.oloads(0, sO)
        a(f"""s_xor_b32 s{sO}, s{sO}, 0x3000
            s_min_u32 s{sE}, s{sPV}, s{sA}
            s_lshr_b32 s{sE}, s{sE}, 3
            s_cselect_b32 s{sX}, s{sO}, {OOB}""")
        self.oloads(1, sX)
        a.label(loaded)
        a(f"""s_xor_b32 s{sF2}, s{sG}, 1
            s_lshl_b32 s{sF2}, s{sF2}, 7
            s_add_u32 s{sF2}, s{sF2}, s{sFl}
            s_lshl_b32 s{sX}, s{sKh}, 1
            s_add_u32 s{sG}, s{sG}, s{sX}
            s_lshl_b32 s{sX}, s{sG}, 14
            s_add_u32 s{sX}, s{sX}, {WOL}
            v_add_u32 v{vA0}, s{sX}, v{self.vT0}
            s_xor_b32 s{sG}, s{sG}, 1
            s_lshl_b32 s{sX}, s{sG}, 14
            s_add_u32 s{sX}, s{sX}, {WOL}
            v_add_u32 v{vB0}, s{sX}, v{self.vT0}
            v_xor_b32 v{vA1}, 64, v{vA0}
            v_xor_b32 v{vB1}, 64, v{vB0}""")
        a.lg.reset()

        def wreads(s):
            if s >= 16:
                return
            for ct in range(2):
                for u in range(2):
                    self.dsr("ds_read_b64_tr_b16", WO(s) + 4 * ct + 2 * u, 2, ((vA0, vA1), (vB0, vB1))[s >> 3][ct], None,
                             (s & 7) * 2048 + 1024 * u, ("wo", s))

        def step(s):
            a.vm.wait(s)
            a.lg.wait(("wo", s))
            w = WO(s)
            ot, ow = (vr(OTH, 16), vr(OWN, 16)) if s < 8 else (vr(PT + 32, 16), vr(PT + 16, 16))
            a(f"v_mfma_f32_32x32x16_bf16 {ot}, {vr(w + 4, 4)}, {vr(self.of(s), 4)}, {ot if s % 8 else 0}")
            wreads(s + 2)
            if 2 <= s < 8:
                i, h = divmod(s - 2, 2)
                for k in range(8 * h, 8 * h + 4):
                    a(f"v_add_f32 v{B + k}, v{B + k}, v{PT + 16 * i + k}")
            a(f"v_mfma_f32_32x32x16_bf16 {ow}, {vr(w, 4)}, {vr(self.of(s), 4)}, {ow if s % 8 else 0}")
            if s < 6:
                i, h = divmod(s, 2)
                for q in range(2 * h, 2 * h + 2):
                    self.dsr("ds_read_b128", PT + 16 * i + 4 * q, 4, (vP1, vP2, vP3)[i], None, 4096 * i + 1024 * q, ("wo", s + 2))
            if 2 <= s < 8:
                i, h = divmod(s - 2, 2)
                for k in range(8 * h + 4, 8 * h + 8):
                    a(f"v_add_f32 v{B + k}, v{B + k}, v{PT + 16 * i + k}")
            if 8 <= s < 12:
                for k in range(4 * (s - 8), 4 * (s - 8) + 4):
                    a(f"v_mul_f32 v{B + k}, v{B + k}, v{vG + 2}")

        self.lds_probe(self.vCnt, self.vTmp, 4)
        for s in range(2):
            wreads(s)
        self.lds_check(self.vCnt, self.vTmp, 4, 16)
        self.stamp("msync", "M")
        for s in range(8):
            step(s)
        q, le = list(a.vm.q), list(a.lg.q)
        if self.cfg["otm"]:
            for s in range(10, 16):
                wreads(s)
                a.lg.wait(("wo", s - 2))
            le = list(a.lg.q)
        a(f"s_cmp_lg_u32 s{sE}, 0\ns_cbranch_scc1 {join}")
        self.stamp("g1done", "M")
        self.spoll(sF2, 8)
        self.stamp("late", "M")
        a.vm.drain()
        self.oloads(1, sO)
        assert a.vm.q == q
        a.lg.q = le
        a.label(join)
        if not self.cfg["otm"]:
            for s in range(8, 16):
                step(s)
            self.stamp("Omfma", "M")
            a("s_nop 10")
            for q in range(4):
                for k in range(4 * q, 4 * q + 4):
                    a(f"v_add_f32 v{OTH + k}, v{OTH + k}, v{PT + 32 + k}")
                a(f"ds_write_b128 v{vX}, {vr(OTH + 4 * q, 4)} offset:{1024 * q}")
            for k in range(8):
                a(f"v_pk_add_f32 {vr(OWN + 2 * k, 2)}, {vr(OWN + 2 * k, 2)}, {vr(PT + 16 + 2 * k, 2)}")
            for k in range(8):
                a(f"v_pk_fma_f32 {vr(B + 2 * k, 2)}, {vr(OWN + 2 * k, 2)}, {vr(vG, 2)}, {vr(B + 2 * k, 2)} op_sel_hi:[1,0,1]")
        else:
            for k in range(16):
                a(f"v_mul_f32 v{B + k}, v{B + k}, v{vG + 2}")
            for s in range(8, 16):
                a.vm.wait(s)
                a.lg.wait(("wo", s))
                ot = vr(PT + 32, 16)
                a(f"v_mfma_f32_32x32x16_bf16 {ot}, {vr(WO(s) + 4, 4)}, {vr(self.of(s), 4)}, {ot if s % 8 else 0}")
            for s in range(8, 16):
                ow = vr(PT + 16, 16)
                a(f"v_mfma_f32_32x32x16_bf16 {ow}, {vr(WO(s), 4)}, {vr(self.of(s), 4)}, {ow if s % 8 else 0}")
                if s == 8:
                    a("s_nop 5")
                if s == 9:
                    a("s_nop 3")
                if 9 <= s < 13:
                    q = s - 9
                    for k in range(4 * q, 4 * q + 4):
                        a(f"v_add_f32 v{OTH + k}, v{OTH + k}, v{PT + 32 + k}")
                    a(f"ds_write_b128 v{vX}, {vr(OTH + 4 * q, 4)} offset:{1024 * q}")
            self.stamp("Omfma", "M")
        a("s_waitcnt lgkmcnt(0)\ns_barrier")
        self.stamp("bar", "M")
        for q in range(4):
            a(f"ds_read_b128 {vr(PT + 4 * q, 4)}, v{vXp} offset:{1024 * q}")
        if self.cfg["otm"]:
            a("s_nop 5")
            for k in range(8):
                a(f"v_pk_add_f32 {vr(OWN + 2 * k, 2)}, {vr(OWN + 2 * k, 2)}, {vr(PT + 16 + 2 * k, 2)}")
            for k in range(8):
                a(f"v_pk_fma_f32 {vr(B + 2 * k, 2)}, {vr(OWN + 2 * k, 2)}, {vr(vG, 2)}, {vr(B + 2 * k, 2)} op_sel_hi:[1,0,1]")
        for q in range(4):
            a(f"s_waitcnt lgkmcnt({3 - q})")
            for k in range(2):
                r = 4 * q + 2 * k
                a(f"v_pk_fma_f32 {vr(B + r, 2)}, {vr(PT + r, 2)}, {vr(vG, 2)}, {vr(B + r, 2)} op_sel_hi:[1,0,1]")
            for k in range(2):
                r = 4 * q + 2 * k
                a(f"v_cvt_pk_bf16_f32 v{64 + 2 * q + k}, v{B + r}, v{B + r + 1}")
            if q % 2 == 1:
                a(f"buffer_store_dwordx4 {vr(64 + 4 * (q // 2), 4)}, v{vOut}, {sr(sOUT, 4)}, s{sOut} offen offset:{16 * (q // 2)}")

    def build(self):
        a = self.a
        cfg = self.cfg
        self.prologue()
        a(f"s_setprio {cfg['prio_l']}")
        self.loader()
        self.attn_start()
        self.stamp("attn0", "L")
        self.attn_loop()
        self.attn_finish()
        self.stamp("Oflag", "L")
        self.dump_stamps(True)
        a("s_endpgm")

        a.label("L_mwave")
        self.m_setup()
        if cfg["codepf"]:
            self.code_touch(28, 99)
        a(f"s_bitcmp1_b32 s{sC}, 0\ns_cbranch_scc1 L_pass_v")
        self.pass_a(False)
        a("s_branch L_pass_q")
        a.label("L_pass_v")
        self.pass_a(True)
        a.label("L_pass_q")
        self.pass_q()
        a(f"s_cmp_eq_u32 s{sC}, 15\ns_cbranch_scc1 L_gate")
        self.pass_f()
        a(f"s_setprio {cfg['prio_gelu']}")
        self.gelu()
        a.label("L_ffn2")
        self.stamp("gelu", "M")
        self.ffn2()
        self.final()
        if cfg.get("stamps"):
            a("s_waitcnt vmcnt(0)")
            self.stamp("end", "M")
            self.dump_stamps(False)
        a.label("L_end")
        a("s_endpgm")
        a.label("L_gate")
        a(f"s_setprio {cfg['prio_gelu']}")
        self.gate()
        a("s_branch L_ffn2")
        self.fallback()
        a.label("L_code_end")
        return a.text()


HEADER = """; Fused kernel: out = g * MHA(x) + (1 - g) * GEGLU(x),  g = sigmoid(x . gate_w)
; Kernarg (88 bytes, pointers): 0 A_x, 8 A_wqkv, 16 A_wo, 24 B_x (unused by the reference), 32 B_w_gate, 40 B_w_up,
;   48 B_w_down, 56 gate_w, 64 d_out, 72 d_debug, 80 d_ws
; 256 workgroups, one per CU; hand-offs between workgroups go through d_ws with write-through stores and flags.
; @launch grid=(256,1,1) block=(512,1,1) lds=%d
.amdgcn_target "amdgcn-amd-amdhsa--gfx950"
.text
.globl %s_kernel
.p2align 8
.type %s_kernel,@function
%s_kernel:
""" % (LDS_BYTES, NAME, NAME, NAME)

FOOTER = """.section .rodata,"a"
.p2align 6
.amdhsa_kernel %s_kernel
  .amdhsa_next_free_vgpr 256
  .amdhsa_next_free_sgpr 102
  .amdhsa_accum_offset 256
  .amdhsa_group_segment_fixed_size 0
  .amdhsa_kernarg_size 88
  .amdhsa_user_sgpr_count 2
  .amdhsa_user_sgpr_kernarg_segment_ptr 1
  .amdhsa_system_sgpr_workgroup_id_x 1
  .amdhsa_float_denorm_mode_32 3
.end_amdhsa_kernel
""" % NAME

DEFAULT = dict(stM='start,BA0,KVst,KVflag,Qdone,F0,Fdone,gelu,Hflag,Hpoll,ffn2,Opoll,Omfma,end',
               stL='start,karg,A0,A2,A7,KVpoll,Qrdy,attn0,attn1,Ost,Oflag',
               outpol='', rowmask=14, qs=14400, tf=0, gate_f=1, gate_at=4, gaps=1131110, plain=8, codepf=0, rel=1, touch=1, tq=1, f1_early=0, rbits=3, rot=4, rot2=1, la=2, nst=4, defer=0, tpol='', qpol='', xn=8, wn=8, fn=8, xpol='', wpol='', fpol='nt', hasync=1, otm=1, atm=1, kvflag_at=8, f0_at=4, sig_at=8, rchk=10, wo_at=20, boost=0, pulse=0, pulse2=0, pd=5, cap=6, prio_l=2, prio_m=0, prio_gelu=3)


def generate(**kw):
    cfg = dict(DEFAULT)
    cfg.update(kw)
    body = Gen(cfg).build()
    msgs = lint(body)
    if cfg.get("stamps"):
        body += f"; STAMPS M {cfg['stM']}\n"
    return HEADER + body + FOOTER, msgs


if __name__ == "__main__":
    out = sys.argv[1]
    kw = {}
    for arg in sys.argv[2:]:
        k, v = arg.split("=")
        try:
            kw[k] = int(v)
        except ValueError:
            try:
                kw[k] = float(v)
            except ValueError:
                kw[k] = v
    text, msgs = generate(**kw)
    for m in msgs:
        print("LINT:", m)
    open(out, "w").write(text)
    print("wrote", out, len(text), "bytes,", text.count("\n"), "lines")
```

```python
import struct
import sys

from asmlib import Asm, lint, sr, vr

NAME = "gated_mix__softmax_full_mha__glu_gated_geglu__prompt"


def f32(x):
    return "0x%08x" % struct.unpack("<I", struct.pack("<f", x))[0]


LOG2E = 1.4426950408889634

WS_KV, WS_O, WS_H, WS_G, WS_FLAG, WS_STAMP = 0x000000, 0x400000, 0x600000, 0xBC0000, 0xC00000, 0xD00000
CKV, CH, CO = WS_FLAG, WS_FLAG + 128 * 128, WS_FLAG + 256 * 128
OOB = 0x20000000

NSLOT = 4
QW, QF, PART, CNT = 98304, 131072, 139264, 157696
WOL, SEGB = 73728, 49152
WSLOT = [0, 1, 2, 3, 4, 5, 0, 1, 2, 3, 4, 5, 6, 7, 8, 0, 1, 2, 3, 4, 5, 6]
LDS_BYTES = 163840

sX, sWQ, sWO, sWG, sWU, sWD, sGW, sOUT, sDBG, sWS = 4, 8, 12, 16, 20, 24, 28, 32, 36, 40
sC, sR, sW, sT, sROT, sRB, sCB, sDEL = 44, 45, 46, 47, 48, 49, 50, 51
sONE, sPV = 71, 69
sVM = 52
sT0 = 54
sSPIN = 70
sSTAMP = 72
SIZES = {sX: 2097152, sWQ: 1572864, sWO: 524288, sWG: 1409024, sWU: 1409024, sWD: 1409024, sGW: 1024, sOUT: 2097152,
         sDBG: 256, sWS: 268435456}
KARG = {sX: 0, sWQ: 8, sWO: 16, sWG: 32, sWU: 40, sWD: 48, sGW: 56, sOUT: 64, sDBG: 72, sWS: 80}


def slot(n):
    return (n % NSLOT) * 24576


def fslot(n):
    return ((n + 1) % 3) * 24576


class Gen:
    def __init__(self, cfg):
        self.cfg = cfg
        self.a = Asm()
        self.uid = 0
        self.bg = self.hi = False

    def lab(self, base):
        self.uid += 1
        return f"L_{base}_{self.uid}"

    def clock(self):
        return "s_memtime" if self.cfg.get("stamps") == 2 else "s_memrealtime"

    def names(self, role):
        if "pad" in self.cfg:
            return ["start", self.cfg["pad"]]
        return self.cfg["st" + role].split(",")

    def stamp(self, name, role):
        if self.cfg.get("stamps") and name in self.names(role):
            n = self.names(role).index(name)
            a = self.a
            a(f"{self.clock()} {sr(sSTAMP + 2 * n, 2)}")
            a.lg.drain()

    def dump_stamps(self, is_l):
        if not self.cfg.get("stamps"):
            return
        a = self.a
        if "pad" in self.cfg:
            n = 0 if self.cfg["pad"] == "start" else 1
            top, done = self.lab("pad"), self.lab("paddone")
            if is_l:
                a("s_barrier")
            if "padx" in self.cfg:
                a(f"""s_and_b32 s{sT0}, s2, 7
                    s_cmp_eq_u32 s{sT0}, {self.cfg['padx']}
                    s_cselect_b32 s{sSTAMP + 2 * n}, s{sSTAMP + 2 * n}, 0""")
            a(f"""s_waitcnt vmcnt(0) lgkmcnt(0)
                s_cmp_eq_u32 s{sSTAMP + 2 * n}, 0
                s_cbranch_scc1 {done}""")
            a.label(top)
            a(f"""s_sleep 4
                s_memrealtime {sr(sT0, 2)}
                s_waitcnt lgkmcnt(0)
                s_sub_u32 s{sT0}, s{sT0}, s{sSTAMP + 2 * n}
                s_cmp_lt_u32 s{sT0}, 6000
                s_cbranch_scc1 {top}""")
            a.label(done)
            return
        a(f"""s_lshl_b32 s{sT0}, s2, 3
            s_add_u32 s{sT0}, s{sT0}, s{sW}
            s_lshl_b32 s{sT0}, s{sT0}, 6
            s_add_u32 s{sT0}, s{sT0}, {WS_STAMP}
            s_mov_b64 exec, 1""")
        for n in range(14):
            a(f"v_mov_b32 v0, s{sSTAMP + 2 * n}")
            a(f"buffer_store_dword v0, off, {sr(sWS, 4)}, s{sT0} offset:{4 * n}")
        a("s_mov_b64 exec, -1")

    def lane(self, v):
        self.a(f"""v_mbcnt_lo_u32_b32 v{v}, -1, 0
            v_mbcnt_hi_u32_b32 v{v}, -1, v{v}""")

    def srd(self, *regs):
        for r in regs:
            self.a(f"s_mov_b32 s{r + 2}, {SIZES[r]}\ns_mov_b32 s{r + 3}, 0x00020000")

    def kload(self, *regs):
        for r in regs:
            self.a(f"s_load_dwordx2 {sr(r, 2)}, s[0:1], {KARG[r]}")

    def chunk(self, dst, i):
        a = self.a
        if self.cfg["rot"] in (3, 4):
            a(f"""s_add_u32 s{dst}, s{sDEL}, {i & 3}
                s_and_b32 s{dst}, s{dst}, 3
                s_add_u32 s{dst}, s{dst}, s{sROT}""")
            if i & 4:
                a(f"s_xor_b32 s{dst}, s{dst}, 4")
        else:
            a(f"s_add_u32 s{dst}, s{sROT}, {i}\ns_and_b32 s{dst}, s{dst}, 7")

    def dsr(self, op, dst, n, lo, hi, imm, tag):
        reg = lo
        if imm >= 65536:
            reg, imm = hi, imm - 65536
        assert 0 <= imm < 65536 and reg is not None
        self.a(f"{op} {vr(dst, n)}, v{reg} offset:{imm}")
        self.a.lg.issue(tag)

    def poll(self, voff, soff, tmp, srd=sWS):
        a = self.a
        top, done = self.lab("poll"), self.lab("pdone")
        a(f"s_mov_b32 s{sSPIN}, 100000")
        a.label(top)
        a(f"""buffer_load_dword v{tmp}, v{voff}, {sr(srd, 4)}, {soff} offen sc1
            s_waitcnt vmcnt(0)
            v_cmp_gt_u32 vcc, 16, v{tmp}
            s_cbranch_vccz {done}
            s_sleep 8
            s_sub_u32 s{sSPIN}, s{sSPIN}, 1
            s_cmp_lg_u32 s{sSPIN}, 0
            s_cbranch_scc1 {top}""")
        a.label(done)
        a.vm.reset()

    def signal(self, soff):
        self.a(f"s_atomic_add s{sONE}, {sr(sWS, 2)}, s{soff}")

    def spoll(self, soff, need, back=None):
        a = self.a
        top, done = self.lab("spoll"), back or self.lab("sdone")
        a(f"s_mov_b32 s{sSPIN}, 200000")
        a.label(top)
        a(f"""s_mov_b32 s{sPV}, 0
            s_atomic_add s{sPV}, {sr(sWS, 2)}, s{soff} glc
            s_waitcnt lgkmcnt(0)
            s_cmp_ge_u32 s{sPV}, {need}
            s_cbranch_scc1 {done}
            s_sub_u32 s{sSPIN}, s{sSPIN}, 1
            s_cmp_lg_u32 s{sSPIN}, 0
            s_cbranch_scc1 {top}""")
        if back:
            a(f"s_branch {back}")
        else:
            a.label(done)
        a.lg.reset()

    def lds_signal(self, addr, one, off):
        a = self.a
        a(f"""s_mov_b64 exec, 1
            ds_add_u32 v{addr}, v{one} offset:{off}
            s_mov_b64 exec, -1""")
        a.lg.issue("sig")

    def lds_probe(self, addr, tmp, off):
        self.a(f"ds_read_b32 v{tmp}, v{addr} offset:{off}")
        self.a.lg.issue("probe")

    def boost(self):
        if self.bg and not self.hi:
            self.a("s_setprio 3")
            self.hi = True

    def unboost(self):
        if self.hi:
            self.a(f"s_setprio {self.cfg['prio_m']}")
            self.hi = False

    def lds_check(self, addr, tmp, off, need, nap=0):
        a = self.a
        top, done = self.lab("lspin"), self.lab("ldone")
        self.boost()
        a.lg.wait("probe")
        a(f"""v_cmp_gt_u32 vcc, {need}, v{tmp}
            s_cbranch_vccz {done}
            s_mov_b32 s{sSPIN}, 1000000""")
        a.label(top)
        if nap:
            a(f"s_sleep {nap}")
        a(f"""ds_read_b32 v{tmp}, v{addr} offset:{off}
            s_waitcnt lgkmcnt(0)
            v_cmp_gt_u32 vcc, {need}, v{tmp}
            s_cbranch_vccz {done}
            s_sub_u32 s{sSPIN}, s{sSPIN}, 1
            s_cmp_lg_u32 s{sSPIN}, 0
            s_cbranch_scc1 {top}""")
        a.label(done)

    def prologue(self):
        a = self.a
        cfg = self.cfg
        rb = cfg["rbits"]
        a("s_cmp_ge_u32 s2, 256\ns_cbranch_scc1 L_end")
        if cfg.get("stamps"):
            a(f"{self.clock()} {sr(sSTAMP, 2)}")
        self.kload(sX, sWQ, sWS)
        if cfg.get("stamps"):
            for n in range(1, 14):
                a(f"s_mov_b32 s{sSTAMP + 2 * n}, 0")
        x, j, t = sT0, sT0 + 1, sT0 + 2
        a(f"""v_lshrrev_b32 v1, 6, v0
            s_and_b32 s{x}, s2, 7
            v_readfirstlane_b32 s{sW}, v1
            s_lshr_b32 s{j}, s2, 3
            v_and_b32 v0, 63, v0
            s_and_b32 s{sR}, s{x}, {(1 << (4 - rb)) - 1}
            s_lshl_b32 s{sR}, s{sR}, {rb}
            s_and_b32 s{t}, s{j}, {(1 << rb) - 1}
            s_add_u32 s{sR}, s{sR}, s{t}
            s_lshr_b32 s{sC}, s{x}, {4 - rb}
            s_lshl_b32 s{sC}, s{sC}, {5 - rb}
            s_lshr_b32 s{t}, s{j}, {rb}
            s_add_u32 s{sC}, s{sC}, s{t}
            s_and_b32 s{sT}, s{sW}, 3""")
        if cfg["swap"]:
            a(f"s_xor_b32 s{sW}, s{sW}, 4")
        rot = cfg["rot"]
        if rot == 0:
            a(f"s_mov_b32 s{sROT}, 0")
        elif rot == 1:
            a(f"""s_mul_i32 s{sROT}, s{sC}, {cfg.get('rotc', 2)}
                s_mul_i32 s{t}, s{sR}, {cfg.get('rotr', 1)}
                s_add_u32 s{sROT}, s{sROT}, s{t}
                s_and_b32 s{sROT}, s{sROT}, 7""")
        else:
            a(f"""s_add_u32 s{sROT}, s{sC}, s{sR}
                s_and_b32 s{sROT}, s{sROT}, 1
                s_lshl_b32 s{sROT}, s{sROT}, 2""")
            if rot == 3:
                a(f"s_mov_b32 s{sDEL}, 0")
            else:
                a(f"""s_lshr_b32 s{sDEL}, s{x}, 1
                    s_lshl_b32 s{t}, s{x}, 1
                    s_add_u32 s{sDEL}, s{sDEL}, s{t}""")
        self.srd(sWS)
        a(f"""s_mov_b32 s{sONE}, 1
            s_cmp_ge_u32 s{sW}, 4
            s_cbranch_scc0 L_mwave""")

    def loader(self):
        a = self.a
        a.vm.reset()
        vX0, vX1, vKV, vQ = 8, 9, 10, 11
        sXB, sKB, sQB, sLx, sLk, sLq, sCh, sO = range(sT0, sT0 + 8)
        self.srd(sX, sWQ)
        a(f"""v_lshrrev_b32 v1, 3, v0
            v_and_b32 v2, 7, v0
            v_lshrrev_b32 v3, 4, v0
            s_lshl_b32 s{sO}, s{sT}, 5
            v_add_u32 v4, s{sO}, v1
            v_xor_b32 v5, v2, v3
            v_lshlrev_b32 v5, 4, v5
            v_lshl_add_u32 v{vX0}, v4, 10, v5
            v_xor_b32 v{vX1}, 64, v{vX0}
            v_add_u32 v{vX1}, 8192, v{vX1}
            s_lshl_b32 s{sO}, s{sT}, 4
            v_add_u32 v4, s{sO}, v1
            v_mul_u32_u24 v4, 3072, v4
            v_and_b32 v5, 1, v3
            v_lshlrev_b32 v5, 2, v5
            v_xor_b32 v5, v2, v5
            v_lshl_add_u32 v{vKV}, v5, 4, v4
            s_lshl_b32 s{sXB}, s{sR}, 17
            s_and_b32 s{sKB}, s{sC}, 1
            s_add_u32 s{sKB}, s{sKB}, 1
            s_lshl_b32 s{sKB}, s{sKB}, 10
            s_lshr_b32 s{sCh}, s{sC}, 1
            s_lshl_b32 s{sCh}, s{sCh}, 7
            s_add_u32 s{sKB}, s{sKB}, s{sCh}
            s_lshl_b32 s{sLx}, s{sT}, 12
            s_lshl_b32 s{sLk}, s{sT}, 11""")

        def issueA(i):
            B = slot(i)
            self.chunk(sCh, i)
            a(f"s_lshl_b32 s{sO}, s{sCh}, 7\ns_add_u32 s{sO}, s{sO}, s{sXB}")
            for k in range(4):
                a(f"s_add_u32 m0, s{sLx}, {B + 1024 * k}")
                if i == 0 and k == 0:
                    a("s_waitcnt lgkmcnt(0)")
                    self.stamp("karg", "L")
                else:
                    a(f"s_add_u32 s{sO}, s{sO}, 16384" if k == 2 else "s_nop 0")
                a(f"buffer_load_dwordx4 v{vX0 if k % 2 == 0 else vX1}, {sr(sX, 4)}, s{sO} offen {self.cfg['xpol'] if i < self.cfg['xn'] else ''} lds")
                a.vm.issue(("A", i))
            a(f"s_mul_i32 s{sO}, s{sCh}, 196608")
            for k in range(2):
                a(f"s_add_u32 m0, s{sLk}, {B + 16384 + 1024 * k}")
                a(f"s_add_u32 s{sO}, s{sO}, {'s%d' % sKB if k == 0 else 24576}")
                a(f"buffer_load_dwordx4 v{vKV}, {sr(sWQ, 4)}, s{sO} offen {self.cfg['wpol'] if i < self.cfg['wn'] else ''} lds")
                a.vm.issue(("A", i))

        def issueQ(lo, hi):
            for i in range(lo, hi):
                self.chunk(sCh, i)
                a(f"""s_mul_i32 s{sO}, s{sCh}, 196608
                    s_add_u32 m0, s{sLq}, {QW + 4096 * i}
                    s_add_u32 s{sO}, s{sO}, s{sQB}
                    buffer_load_dwordx4 v{vQ}, {sr(sWQ, 4)}, s{sO} offen lds""")
                a.vm.issue(("Q", 0))

        def setup2():
            a(f"""v_lshrrev_b32 v4, 2, v0
                s_lshl_b32 s{sO}, s{sT}, 4
                v_add_u32 v4, s{sO}, v4
                v_mul_u32_u24 v4, 3072, v4
                v_and_b32 v5, 3, v0
                v_lshl_add_u32 v{vQ}, v5, 4, v4
                s_lshl_b32 s{sQB}, s{sC}, 6
                s_lshl_b32 s{sLq}, s{sT}, 10
                s_mov_b32 s{sVM}, 0x0000ffff
                s_mov_b32 s{sVM + 1}, 0x0000ffff""")
            if self.cfg["tq"]:
                cb = 5 - self.cfg["rbits"]
                nl = 1 << (cb - 1)
                a(f"""v_lshrrev_b32 v4, {cb - 1}, v0
                    v_mul_u32_u24 v4, 3072, v4
                    v_and_b32 v5, {nl - 1}, v0
                    v_lshl_add_u32 v4, v5, 7, v4
                    s_lshr_b32 s{sO}, s2, 3
                    s_lshl_b32 s{sO}, s{sO}, 2
                    s_add_u32 s{sO}, s{sO}, s{sT}
                    s_mul_i32 s{sO}, s{sO}, 12288
                    s_lshr_b32 s{sCh}, s{sC}, {cb}
                    s_lshl_b32 s{sCh}, s{sCh}, {cb + 6}
                    s_add_u32 s{sO}, s{sO}, s{sCh}
                    s_mov_b32 m0, {CNT + 64}
                    s_mov_b64 exec, {(1 << (4 * nl)) - 1}
                    buffer_load_dword v4, {sr(sWQ, 4)}, s{sO} offen {self.cfg['qpol']} lds
                    s_mov_b64 exec, -1""")
                a.vm.issue("touch")
            a("s_setprio 0")
            self.attn_init()
            a(f"s_setprio {self.cfg['prio_l']}")

        la = self.cfg["la"]
        qs = [int(ch) for ch in str(self.cfg["qs"])[1:]]
        assert sum(qs) == 8
        nxt = 0
        for b in range(9):
            while nxt < 8 and nxt <= b + la and nxt - NSLOT + 2 <= b:
                issueA(nxt)
                nxt += 1
            if b == 0:
                setup2()
            if b >= 6:
                issueQ(sum(qs[:b - 6]), sum(qs[:b - 5]))
            if b == 8 and qs[3]:
                a("s_barrier")
                issueQ(8 - qs[3], 8)
            tag = ("A", b) if b < 8 else ("Q", 0)
            a.vm.wait(tag)
            self.stamp(f"{tag[0]}{tag[1]}", "L")
            a("s_barrier")

    O_, S_, Q_, KV_ = 16, 80, 112, 128
    vIDX, vKo, vVo, vFl, vQa_, vOne, vCa, vPa, vPs = 12, 13, 14, 15, 6, 7, 1, 2, 3

    def attn_init(self):
        a = self.a
        NST = self.cfg["nst"]
        assert NST == 4
        sHd, sQ, sOff, sRow, sCnt, sLd, sFl = range(sT0 + 8, sT0 + 15)
        self.sHd, self.sQ, self.sOff, self.sKr, self.sCnt, self.sLd, self.sFl = sHd, sQ, sOff, sRow, sCnt, sLd, sFl
        a(f"""s_and_b32 s{sHd}, s{sW}, 1
            s_lshr_b32 s{sQ}, s{sT}, 1
            v_lshrrev_b32 v5, 5, v0
            s_and_b32 s{sRow}, s{sR}, {self.cfg['rowmask']}
            s_add_u32 s{sRow}, s{sRow}, s{sQ}
            s_and_b32 s{sRow}, s{sRow}, 15
            s_mov_b32 s{sCnt}, {32 // NST}
            v_lshlrev_b32 v{self.vKo}, 4, v0
            v_and_b32 v{self.vVo}, 15, v0
            v_lshlrev_b32 v{self.vVo}, 4, v{self.vVo}
            v_lshl_add_u32 v{self.vVo}, v5, 8, v{self.vVo}
            s_lshl_b32 s{sLd}, s{sHd}, 12
            s_add_u32 s{sLd}, s{sLd}, {QF}
            v_add_u32 v{self.vQa_}, s{sLd}, v{self.vKo}
            s_lshl_b32 s{sLd}, s{sQ}, 11
            v_add_u32 v{self.vQa_}, s{sLd}, v{self.vQa_}
            v_mov_b32 v{self.vIDX}, 0xdddddddd
            v_mov_b32 v{self.vOne}, 1
            v_and_b32 v4, 0x1b, v0
            v_cmp_eq_u32 vcc, 16, v4
            v_mov_b32 v4, 0x3f803f80
            s_mul_i32 s{sLd}, s{sT}, 4608
            v_cndmask_b32 v4, 0, v4, vcc
            s_add_u32 s{sLd}, s{sLd}, {PART}
            v_lshl_add_u32 v{self.vPa}, v0, 4, s{sLd}
            v_lshl_add_u32 v{self.vPs}, v0, 2, s{sLd}
            s_lshl_b32 s{sLd}, s{sHd}, 2
            s_add_u32 s{sLd}, s{sLd}, {CNT + 8}
            v_mov_b32 v{self.vCa}, s{sLd}
            s_lshl_b32 s{sLd}, s{sT}, 2
            s_add_u32 s{sLd}, s{sLd}, {CNT + 32}
            v_mov_b32 v{self.vFl}, s{sLd}""")
        for st in range(NST):
            for k in range(8):
                a(f"v_mov_b32 v{self.KV_ + 12 * st + 4 + k}, v4")
        for k in range(64):
            a(f"v_mov_b32 v{self.O_ + k}, 0")

    def attn_start(self):
        a = self.a
        NST = self.cfg["nst"]
        sOff = self.sOff
        sHB, sFB, sRow, sFl = sT0, sT0 + 1, self.sKr, self.sFl
        a(f"""s_lshl_b32 s{sHB}, s{sC}, 1
            s_add_u32 s{sHB}, s{sHB}, s{self.sHd}
            s_lshl_b32 s{sHB}, s{sHB}, 17
            s_lshr_b32 s{sFB}, s{sC}, 1
            s_lshl_b32 s{sFB}, s{sFB}, 11
            s_add_u32 s{sFB}, s{sFB}, {CKV}
            s_lshl_b32 s{sOff}, s{sRow}, 13
            s_add_u32 s{sOff}, s{sOff}, s{sHB}
            s_lshl_b32 s{sFl}, s{sRow}, 7
            s_add_u32 s{sFl}, s{sFl}, s{sFB}""")
        self.spoll(sFl, 8)
        self.stamp("KVpoll", "L")
        for st in range(NST - 1):
            b = self.KV_ + 12 * st
            a(f"""buffer_load_dwordx4 {vr(b, 4)}, v{self.vKo}, {sr(sWS, 4)}, s{sOff} offen sc1
                s_mov_b64 exec, {sr(sVM, 2)}
                buffer_load_dwordx4 {vr(b + 4, 4)}, v{self.vVo}, {sr(sWS, 4)}, s{sOff} offen offset:1024 sc1
                buffer_load_dwordx4 {vr(b + 8, 4)}, v{self.vVo}, {sr(sWS, 4)}, s{sOff} offen offset:1536 sc1
                s_mov_b64 exec, -1
                s_add_u32 s{sOff}, s{sOff}, 2048""")
        self.stamp("KViss", "L")
        a(f"v_mov_b32 v5, {CNT}")
        a.lg.reset()
        self.lds_signal(5, self.vOne, 20)
        self.lds_probe(5, 4, 16)
        self.lds_check(5, 4, 16, 16)
        a(f"v_xor_b32 v4, 0x800, v{self.vQa_}")
        self.stamp("Qrdy", "L")
        for q in range(4):
            a(f"ds_read_b128 {vr(self.Q_ + 4 * q, 4)}, v{self.vQa_ if q >= 2 else 4} offset:{1024 * (q & 1)}")
        a(f"""s_add_u32 s{sRow}, s{sRow}, 2
            s_and_b32 s{sRow}, s{sRow}, 15
            s_lshl_b32 s{sFl}, s{sRow}, 7
            s_add_u32 s{sFl}, s{sFl}, s{sFB}
            s_mov_b32 s{sPV}, 0
            s_waitcnt lgkmcnt(0)
            s_mov_b64 exec, 1
            ds_add_u32 v5, v{self.vOne} offset:24
            s_mov_b64 exec, -1
            s_atomic_add s{sPV}, {sr(sWS, 2)}, s{sFl} glc
            s_waitcnt vmcnt({3 * (NST - 2)})
            v_mfma_f32_32x32x16_bf16 {vr(self.S_, 16)}, {vr(self.KV_, 4)}, {vr(self.Q_, 4)}, 0
            s_nop 11""")

    def attn_loop(self):
        a = self.a
        NST = self.cfg["nst"]
        NT = 4 * NST
        O, S, Q, KV = self.O_, self.S_, self.Q_, self.KV_
        sOff, sRow, sCnt, sFl, sHB, sFB = self.sOff, self.sKr, self.sCnt, self.sFl, sT0, sT0 + 1
        sm = lambda st, qt, half, n: (f"v_smfmac_f32_32x32x32_bf16 {vr(O + 16 * qt, 16)}, {vr(KV + 12 * st + 4 + 4 * half, 4)}, "
                                      f"{vr(S + 16 * (n & 1) + 8 * half, 8)}, v{self.vIDX}")
        extra = {
            (2, 0): f"s_lshl_b32 s{sOff}, s{sRow}, 13\ns_add_u32 s{sOff}, s{sOff}, s{sHB}",
            (2, 2): f"s_cmp_eq_u32 s{sCnt}, 1\ns_cselect_b32 s{sOff}, {OOB}, s{sOff}",
            (3, 1): "s_waitcnt lgkmcnt(0)",
            (3, 2): f"s_cmp_lt_u32 s{sPV}, 8\ns_cbranch_scc1 L_kv_wait\nL_kv_ok:",
            (6, 0): f"s_add_u32 s{sRow}, s{sRow}, 2\ns_and_b32 s{sRow}, s{sRow}, 15",
            (6, 2): f"s_lshl_b32 s{sFl}, s{sRow}, 7\ns_add_u32 s{sFl}, s{sFl}, s{sFB}",
            (10, 0): f"s_mov_b32 s{sPV}, 0\ns_atomic_add s{sPV}, {sr(sWS, 2)}, s{sFl} glc",
            (NT - 3, 0): f"s_sub_u32 s{sCnt}, s{sCnt}, 1\ns_cmp_eq_u32 s{sCnt}, 0",
        }

        def ex(n, k):
            for l in extra.get((n, k), "").split("\n"):
                if l.endswith(":"):
                    a.label(l[:-1])
                else:
                    a(l)

        a(f"v_exp_f32 v{S}, v{S}\nv_exp_f32 v{S + 1}, v{S + 1}")
        a.raw(".p2align 6")
        a.label("L_attn")
        for n in range(NT + 1):
            st, qt = divmod(n, 4)
            cur = S + 16 * (n & 1)
            E = lambda lo, hi: [a(f"v_exp_f32 v{cur + k}, v{cur + k}") for k in range(lo, hi)]
            pst, pqt = divmod((n - 1) % NT, 4)
            nst, nqt = divmod((n + 1) % NT, 4)
            ld = KV + 12 * ((st - 1) % NST)
            if n:
                E(0, 2)
                a(sm(pst, pqt, 1, n - 1))
            if n == NT:
                break
            if n == NT - 2:
                a("s_cbranch_scc1 L_attn_tail")
            ex(n, 0)
            if qt == 3:
                a(f"s_waitcnt vmcnt({3 * (NST - 2)})")
            E(2, 5)
            a(f"v_mfma_f32_32x32x16_bf16 {vr(S + 16 * ((n + 1) & 1), 16)}, {vr(KV + 12 * nst, 4)}, {vr(Q + 4 * nqt, 4)}, 0")
            ex(n, 1)
            if qt == 0 and not self.cfg["k1"]:
                a(f"buffer_load_dwordx4 {vr(ld, 4)}, v{self.vKo}, {sr(sWS, 4)}, s{sOff} offen sc1")
            if qt == 2 and st:
                a(f"s_add_u32 s{sOff}, s{sOff}, 2048")
            E(5, 10)
            a(sm(st, qt, 0, n))
            ex(n, 2)
            if qt == 0 and self.cfg["k1"]:
                a(f"buffer_load_dwordx4 {vr(ld, 4)}, v{self.vKo}, {sr(sWS, 4)}, s{sOff} offen sc1")
            if qt == 1:
                a(f"""s_mov_b64 exec, {sr(sVM, 2)}
                    buffer_load_dwordx4 {vr(ld + 4, 4)}, v{self.vVo}, {sr(sWS, 4)}, s{sOff} offen offset:1024 sc1
                    buffer_load_dwordx4 {vr(ld + 8, 4)}, v{self.vVo}, {sr(sWS, 4)}, s{sOff} offen offset:1536 sc1
                    s_mov_b64 exec, -1""")
            E(10, 16)
        a("s_branch L_attn")
        self.sm = sm

    def attn_finish(self):
        a = self.a
        O, S, Q, KV, T, sm = self.O_, self.S_, self.Q_, self.KV_, 192, self.sm
        sA, sF, m = sT0, sT0 + 1, sT0 + 2
        E = lambda n, lo, hi: [a(f"v_exp_f32 v{S + 16 * (n & 1) + k}, v{S + 16 * (n & 1) + k}") for k in range(lo, hi)]

        def give(q):
            o = O + 16 * q
            a(f"""ds_write_b128 v{self.vPa}, {vr(o, 4)} offset:{2304 * q}
                ds_write_b128 v{self.vPa}, {vr(o + 4, 4)} offset:{2304 * q + 1024}
                ds_write_b32 v{self.vPs}, v{o + 8} offset:{2304 * q + 2048}""")

        a.label("L_attn_tail")
        a.lg.reset()
        a("s_waitcnt lgkmcnt(0)")
        give(0)
        E(14, 2, 5)
        a(f"v_mfma_f32_32x32x16_bf16 {vr(S + 16, 16)}, {vr(KV + 36, 4)}, {vr(Q + 12, 4)}, 0")
        a(f"s_lshl_b32 s{sF}, s{sR}, 1")
        E(14, 5, 10)
        a(sm(3, 2, 0, 14))
        give(1)
        if self.cfg["rel"] == 0:
            a(f"ds_write_b32 v{self.vFl}, v{self.vOne}")
        self.lds_signal(self.vCa, self.vOne, 0)
        E(14, 10, 16)
        E(15, 0, 2)
        a(sm(3, 2, 1, 14))
        self.lds_probe(self.vCa, 4, 0)
        a(f"""s_add_u32 s{sF}, s{sF}, s{self.sQ}
            s_lshl_b32 s{sA}, s{sF}, 5
            s_add_u32 s{sA}, s{sA}, s{sC}
            s_lshl_b32 s{sA}, s{sA}, 1
            s_add_u32 s{sA}, s{sA}, s{self.sHd}
            s_mul_i32 s{m}, s{self.sQ}, -18432
            s_add_u32 s{m}, s{m}, 9216""")
        E(15, 2, 10)
        a(sm(3, 3, 0, 15))
        a(f"""s_lshl_b32 s{sA}, s{sA}, 10
            s_add_u32 s{sA}, s{sA}, {WS_O}
            v_add_u32 v{self.vPa}, s{m}, v{self.vPa}
            v_add_u32 v{self.vPs}, s{m}, v{self.vPs}""")
        E(15, 10, 16)
        a(f"""s_lshl_b32 s{sF}, s{sF}, 2
            s_lshr_b32 s{m}, s{sC}, 2""")
        a(sm(3, 3, 1, 15))
        a(f"""s_add_u32 s{sF}, s{sF}, s{m}
            s_lshl_b32 s{sF}, s{sF}, 7
            s_add_u32 s{sF}, s{sF}, {CO}""")
        if self.cfg["rel"] == 1:
            a(f"ds_write_b32 v{self.vFl}, v{self.vOne}")
            a.lg.issue("rel")
        self.stamp("attn1", "L")
        self.lds_check(self.vCa, 4, 0, 2)
        self.stamp("pair", "L")
        for q in range(2):
            a(f"""ds_read_b32 v{T + 12 * q + 8}, v{self.vPs} offset:{2304 * q + 2048}
                ds_read_b128 {vr(T + 12 * q, 4)}, v{self.vPa} offset:{2304 * q}
                ds_read_b128 {vr(T + 12 * q + 4, 4)}, v{self.vPa} offset:{2304 * q + 1024}""")
        for q in range(2):
            o, t = O + 32 + 16 * q, T + 12 * q
            a(f"s_waitcnt lgkmcnt({3 - 3 * q})\nv_add_f32 v{o + 8}, v{o + 8}, v{t + 8}")
            for k in range(8):
                a(f"v_add_f32 v{o + k}, v{o + k}, v{t + k}")
            if q == 0:
                self.normalise(0)
        self.normalise(1)
        if self.cfg["rel"] == 2:
            a(f"ds_write_b32 v{self.vFl}, v{self.vOne}")
        self.stamp("Ost", "L")
        lo, hi = self.cfg.get("l_lo", 2.0 ** -24), self.cfg.get("l_hi", 2.0 ** 64)
        for q in range(2):
            o, t = O + 32 + 16 * q, T + 12 * q
            a(f"""v_pk_add_f32 {vr(t, 2)}, {vr(o, 2)}, {vr(o + 2, 2)}
                v_pk_add_f32 {vr(t + 2, 2)}, {vr(o + 4, 2)}, {vr(o + 6, 2)}
                v_cmp_lt_f32 vcc, {f32(lo)}, v{o + 8}
                v_pk_add_f32 {vr(t, 2)}, {vr(t, 2)}, {vr(t + 2, 2)}
                s_and_b64 {sr(m, 2)}, {'vcc' if q == 0 else sr(m, 2)}, vcc
                v_cmp_gt_f32 vcc, {f32(hi)}, v{o + 8}
                v_add_f32 v{t}, v{t}, v{t + 1}
                s_and_b64 {sr(m, 2)}, {sr(m, 2)}, vcc
                v_sub_f32 v{t}, v{t}, v{t}
                v_cmp_eq_f32 vcc, 0, v{t}
                s_and_b64 {sr(m, 2)}, {sr(m, 2)}, vcc""")
        a(f"s_cmp_eq_u64 {sr(m, 2)}, -1\ns_cbranch_scc0 L_fallback")
        a.label("L_publish")
        a("s_waitcnt vmcnt(0)")
        self.signal(sF)

    def normalise(self, q):
        a = self.a
        o, d = self.O_ + 32 + 16 * q, 224 + 4 * q
        a(f"v_rcp_f32 v{o + 9}, v{o + 8}\ns_add_u32 s{sT0 + 4}, s{sT0}, {32768 * q}")
        for k in range(8):
            a(f"v_mul_f32 v{o + k}, v{o + k}, v{o + 9}")
        for k in range(4):
            a(f"v_cvt_pk_bf16_f32 v{d + k}, v{o + 2 * k}, v{o + 2 * k + 1}")
        a(f"buffer_store_dwordx4 {vr(d, 4)}, v{self.vKo}, {sr(sWS, 4)}, s{sT0 + 4} offen sc1")

    def fallback(self):
        a = self.a
        S, M, K, V, vMx = self.S_, self.S_ + 16, self.KV_, self.KV_ + 4, 4
        sO, sN = sT0 + 2, sT0 + 3
        a.label("L_kv_wait")
        self.spoll(self.sFl, 8, "L_kv_ok")
        a.label("L_fallback")
        a("s_waitcnt vmcnt(0)")
        for q in range(2):
            O, Q = self.O_ + 32 + 16 * q, self.Q_ + 8 + 4 * q
            a(f"""v_mov_b32 v{vMx}, 0xff800000
                s_lshl_b32 s{sO}, s{sC}, 1
                s_add_u32 s{sO}, s{sO}, s{self.sHd}
                s_lshl_b32 s{sO}, s{sO}, 17
                s_mov_b32 s{sN}, 64""")
            a.label(f"L_fb_max{q}")
            a(f"""buffer_load_dwordx4 {vr(K, 4)}, v{self.vKo}, {sr(sWS, 4)}, s{sO} offen sc1
                s_waitcnt vmcnt(0)
                v_mfma_f32_32x32x16_bf16 {vr(S, 16)}, {vr(K, 4)}, {vr(Q, 4)}, 0
                s_nop 11""")
            for k in range(8):
                a(f"v_max3_f32 v{vMx}, v{S + 2 * k}, v{S + 2 * k + 1}, v{vMx}")
            a(f"""s_add_u32 s{sO}, s{sO}, 2048
                s_sub_u32 s{sN}, s{sN}, 1
                s_cmp_lg_u32 s{sN}, 0
                s_cbranch_scc1 L_fb_max{q}
                v_mov_b32 v{M}, v{vMx}
                s_nop 1
                v_permlane32_swap_b32 v{vMx}, v{M}
                s_nop 1
                v_max_f32 v{vMx}, v{vMx}, v{M}
                s_sub_u32 s{sO}, s{sO}, 131072
                s_mov_b32 s{sN}, 64""")
            for k in range(16):
                a(f"v_sub_f32 v{M + k}, 0, v{vMx}\nv_mov_b32 v{O + k}, 0")
            a.label(f"L_fb_sum{q}")
            a(f"""buffer_load_dwordx4 {vr(K, 4)}, v{self.vKo}, {sr(sWS, 4)}, s{sO} offen sc1
                s_mov_b64 exec, {sr(sVM, 2)}
                buffer_load_dwordx4 {vr(V, 4)}, v{self.vVo}, {sr(sWS, 4)}, s{sO} offen offset:1024 sc1
                buffer_load_dwordx4 {vr(V + 4, 4)}, v{self.vVo}, {sr(sWS, 4)}, s{sO} offen offset:1536 sc1
                s_mov_b64 exec, -1
                s_waitcnt vmcnt(0)
                v_mfma_f32_32x32x16_bf16 {vr(S, 16)}, {vr(K, 4)}, {vr(Q, 4)}, {vr(M, 16)}
                s_nop 11""")
            for k in range(16):
                a(f"v_exp_f32 v{S + k}, v{S + k}")
            a(f"""s_nop 1
                v_smfmac_f32_32x32x32_bf16 {vr(O, 16)}, {vr(V, 4)}, {vr(S, 8)}, v{self.vIDX}
                v_smfmac_f32_32x32x32_bf16 {vr(O, 16)}, {vr(V + 4, 4)}, {vr(S + 8, 8)}, v{self.vIDX}
                s_nop 7
                s_add_u32 s{sO}, s{sO}, 2048
                s_sub_u32 s{sN}, s{sN}, 1
                s_cmp_lg_u32 s{sN}, 0
                s_cbranch_scc1 L_fb_sum{q}
                s_nop 3""")
            self.normalise(q)
        a("s_branch L_publish")

    XR, ACC, WS_ = 128, 32, 8
    vFlo, vD, vF, vCnt, v1_, vTmp = 0, 1, 2, 5, 6, 7

    def m_setup(self):
        a = self.a
        self.vXA, self.vXAh, self.vWk, self.vWkh, self.vQa, self.vST, self.vGo, self.vQFa, self.vGa = 80, 84, 88, 90, 92, 93, 94, 95, 96
        self.stamp("mjmp", "M")
        self.kload(sDBG, sWG, sWU, sWD, sWO, sOUT, sGW)
        self.srd(sDBG, sWG, sWU, sWD, sWO, sOUT, sGW)
        skip = self.lab("noreset")
        a(f"""s_lshr_b32 s{sT0 + 3}, s2, 5
            s_or_b32 s{sT0 + 3}, s{sT0 + 3}, s{sW}
            s_cmp_lg_u32 s{sT0 + 3}, 0
            s_cbranch_scc1 {skip}
            s_mul_i32 s{sT0 + 3}, s2, 1536
            s_add_u32 s{sT0 + 3}, s{sT0 + 3}, {WS_FLAG}
            s_mov_b32 s{sPV}, 0
            s_waitcnt lgkmcnt(0)""")
        for k in range(12):
            a(f"s_atomic_and s{sPV}, {sr(sWS, 2)}, s{sT0 + 3}\ns_add_u32 s{sT0 + 3}, s{sT0 + 3}, 128")
        a.label(skip)
        a(f"""s_lshl_b32 s{sRB}, s{sT0}, 2
            s_and_b32 s{sT0 + 2}, s{sT0 + 1}, 3
            s_add_u32 s{sRB}, s{sRB}, s{sT0 + 2}
            s_lshr_b32 s{sCB}, s{sT0 + 1}, 2
            v_and_b32 v16, 31, v0
            v_lshrrev_b32 v17, 5, v0
            v_bfe_u32 v18, v0, 1, 3
            v_xor_b32 v18, v18, v17
            s_lshl_b32 s{sT0}, s{sT}, 12
            v_lshlrev_b32 v19, 7, v16
            v_lshl_add_u32 v19, v18, 4, v19
            v_add_u32 v{self.vXA}, s{sT0}, v19""")
        for s in range(1, 4):
            a(f"v_xor_b32 v{self.vXA + s}, {32 * s}, v{self.vXA}")
        for s in range(4):
            a(f"v_add_u32 v{self.vXAh + s}, 0x10000, v{self.vXA + s}")
        a(f"""v_bfe_u32 v18, v0, 2, 2
            v_lshl_add_u32 v18, v17, 3, v18
            v_bfe_u32 v19, v0, 4, 1
            v_and_b32 v20, 3, v0
            v_lshlrev_b32 v20, 3, v20
            v_lshl_add_u32 v20, v19, 5, v20
            v_bfe_u32 v21, v0, 3, 1
            v_lshl_add_u32 v22, v18, 7, v20
            v_lshl_add_u32 v{self.vWk}, v21, 6, v22
            v_xor_b32 v{self.vWk + 1}, 64, v{self.vWk}
            v_add_u32 v{self.vWkh}, 0x10000, v{self.vWk}
            v_add_u32 v{self.vWkh + 1}, 0x10000, v{self.vWk + 1}
            v_lshl_add_u32 v{self.vQa}, v18, 6, v20
            v_add_u32 v{self.vQa}, {QW}, v{self.vQa}
            s_lshl_b32 s{sT0}, s{sT}, 10
            s_add_u32 s{sT0}, s{sT0}, {QF}
            v_lshl_add_u32 v{self.vQFa}, v0, 4, s{sT0}
            v_mul_u32_u24 v22, 192, v18
            v_and_b32 v23, 0x33, v0
            v_bfe_u32 v25, v0, 2, 1
            v_lshl_add_u32 v23, v25, 3, v23
            v_lshl_add_u32 v23, v21, 2, v23
            v_lshlrev_b32 v23, 4, v23
            v_and_b32 v24, 15, v0
            v_lshlrev_b32 v{self.vGa}, 7, v17
            v_lshlrev_b32 v24, 4, v24
            v_lshl_add_u32 v24, v17, 8, v24
            v_lshl_add_u32 v24, v19, 17, v24
            v_add_u32 v24, 1024, v24
            v_lshlrev_b32 v26, 4, v0
            s_lshl_b32 s{sT0}, s{sT}, 4""")
        for k in range(3):
            a(f"""v_add_u32 v27, {64 * k}, v0
                v_mul_u32_u24 v28, 2731, v27
                v_lshrrev_b32 v28, 15, v28
                v_mul_u32_u24 v29, 12, v28
                v_sub_u32 v29, v27, v29
                v_add_u32 v28, s{sT0}, v28
                v_mul_u32_u24 v28, 2752, v28
                v_lshl_add_u32 v{self.vF + k}, v29, 4, v28""")
        a(f"""v_add_u32 v{self.vFlo}, v22, v20
            v_add_u32 v{self.vFlo}, {fslot(0)}, v{self.vFlo}
            v_bfe_u32 v20, v26, 4, 3
            v_lshlrev_b32 v22, 2, v19
            v_xor_b32 v20, v20, v22
            v_lshlrev_b32 v20, 4, v20
            v_lshrrev_b32 v22, 7, v26
            v_lshl_add_u32 v{self.vD}, v22, 10, v20
            v_mov_b32 v{self.vCnt}, {CNT}
            v_lshl_add_u32 v{self.v1_}, v26, 3, 4""")
        for i in range(4):
            a(f"v_mov_b32 v{100 + i}, 0")
        a(f"ds_write_b128 v{self.vCnt}, v[100:103]\nds_write_b128 v{self.vCnt}, v[100:103] offset:16\nds_write_b128 v{self.vCnt}, v[100:103] offset:32\ns_waitcnt lgkmcnt(0)")
        skip = self.lab("nogo")
        a(f"""s_lshr_b32 s{sT0}, s2, 5
            s_or_b32 s{sT0}, s{sT0}, s{sW}
            s_cmp_lg_u32 s{sT0}, 0
            s_cbranch_scc1 {skip}
            s_and_b32 s{sT0}, s2, 1
            s_lshl_b32 s{sT0}, s{sT0}, 7
            s_atomic_add s{sONE}, {sr(sDBG, 2)}, s{sT0}
            s_waitcnt lgkmcnt(0)""")
        a.label(skip)
        if self.cfg["tf"]:
            assert self.cfg["rbits"] == 3 and self.cfg["rot"] in (3, 4)
            n = self.cfg["tf"]
            up, done = self.lab("tfu"), self.lab("tfd")
            a(f"""v_lshrrev_b32 v27, 8, v26
                v_add_u32 v27, s{sDEL}, v27
                v_and_b32 v27, 3, v27
                v_bfe_u32 v28, v26, 7, 1
                v_lshl_add_u32 v27, v27, 6, v28
                v_mul_u32_u24 v27, 2752, v27
                v_bfe_u32 v28, v26, 4, 3
                v_lshlrev_b32 v28, 7, v28
                v_min_u32 v28, 764, v28
                v_add_u32 v27, v27, v28
                s_lshr_b32 s{sT0}, s{sT}, 1
                s_lshl_b32 s{sT0}, s{sT0}, 7
                s_lshr_b32 s{sT0 + 1}, s2, 3
                s_add_u32 s{sT0}, s{sT0}, s{sT0 + 1}
                s_mul_i32 s{sT0}, s{sT0}, 5504
                s_lshr_b32 s{sT0 + 1}, s{sC}, 2
                s_mul_i32 s{sT0 + 1}, s{sT0 + 1}, 768
                s_add_u32 s{sT0}, s{sT0}, s{sT0 + 1}
                s_mov_b32 m0, {CNT + 64}
                s_mov_b32 exec_lo, {hex(0x7f7f7f7f & ((1 << min(32, 16 * n)) - 1))}
                s_mov_b32 exec_hi, {hex(0x7f7f7f7f & ((1 << max(0, 16 * n - 32)) - 1))}
                s_bitcmp1_b32 s{sT}, 0
                s_cbranch_scc1 {up}
                buffer_load_dword v27, {sr(sWG, 4)}, s{sT0} offen lds
                s_branch {done}""")
            a.label(up)
            a(f"buffer_load_dword v27, {sr(sWU, 4)}, s{sT0} offen lds")
            a.label(done)
            a("s_mov_b64 exec, -1")

    def pass_a(self, isv):
        a = self.a
        a.lg.reset()
        a.vm.reset()
        a(f"v_mov_b32 v{self.vST}, v{24 if isv else 23}")
        XR, ACC, W = self.XR, self.ACC, self.WS_
        sB = sT0 + 2
        atm = self.cfg["atm"]
        wr = lambda g: 104 if (g == 31 and atm) else W + 8 * (g % 3)

        def reads(g):
            i, s = divmod(g, 4)
            B = slot(i)
            self.dsr("ds_read_b128", XR + 4 * g, 4, self.vXA + s, self.vXAh + s, B, ("x", g))
            for ct in range(2):
                for u in range(2):
                    self.dsr("ds_read_b64_tr_b16", wr(g) + 4 * ct + 2 * u, 2, self.vWk + ct, self.vWkh + ct,
                             B + 16384 + (16 * s + 4 * u) * 128, ("w", g, ct))

        def comp(g, cts=(0, 1)):
            for ct in cts:
                a.lg.wait(("x", g), ("w", g, ct))
                wf, xf = vr(wr(g) + 4 * ct, 4), vr(XR + 4 * g, 4)
                d = vr(ACC + 16 * ct, 16)
                A, Bm = (xf, wf) if isv else (wf, xf)
                a(f"v_mfma_f32_32x32x16_bf16 {d}, {A}, {Bm}, {d if g else 0}")

        def kv_store(ct, q):
            d = 112 + 8 * ct + 4 * q
            for k in range(4):
                s = ACC + 16 * ct + 8 * q + 2 * k
                a(f"v_cvt_pk_bf16_f32 v{d + k}, v{s}, v{s + 1}")
            if isv:
                a(f"buffer_store_dwordx4 {vr(d, 4)}, v{self.vST}, {sr(sWS, 4)}, s{sB} offen offset:{512 * q} sc1")
                if q == 1 and ct == 0:
                    a(f"s_add_u32 s{sB}, s{sB}, 262144")
            else:
                a(f"buffer_store_dwordx4 {vr(d, 4)}, v{self.vST}, {sr(sWS, 4)}, s{sB} offen sc1")
                a(f"s_add_u32 s{sB}, s{sB}, 131072")

        a(f"""s_lshr_b32 s{sB}, s{sC}, 1
            s_lshl_b32 s{sB}, s{sB}, 19
            s_lshl_b32 s{sB + 1}, s{sR}, 2
            s_add_u32 s{sB + 1}, s{sB + 1}, s{sT}
            s_lshl_b32 s{sB + 1}, s{sB + 1}, 11
            s_add_u32 s{sB}, s{sB}, s{sB + 1}""")
        self.stamp("mrdy", "M")
        for i in range(8):
            g0 = 4 * i
            if i:
                a.lg.drain()
            if i == 7 and atm:
                comp(27)
                a("s_barrier")
                for g in range(28, 31):
                    reads(g)
                comp(28, (0,))
                reads(31)
                for g in range(29, 32):
                    comp(g, (0,))
                comp(28, (1,))
                a("s_nop 5")
                comp(29, (1,))
                a("s_nop 3")
                kv_store(0, 0)
                comp(30, (1,))
                comp(31, (1,))
                kv_store(0, 1)
                a("s_nop 5")
                kv_store(1, 0)
                kv_store(1, 1)
                break
            a("s_barrier")
            if i == 0:
                self.stamp("BA0", "M")
            reads(g0)
            reads(g0 + 1)
            if i:
                comp(g0 - 1)
            reads(g0 + 2)
            if i == 5:
                a(f"buffer_load_dword v{self.vGo}, v{self.vGa}, {sr(sDBG, 4)}, 0 offen sc1")
            comp(g0)
            reads(g0 + 3)
            comp(g0 + 1)
            comp(g0 + 2)
        if not atm:
            comp(31)
            a("s_nop 10")
            for k in range(4):
                kv_store(k >> 1, k & 1)
        self.stamp("KVst", "M")

    def kv_flag(self):
        a = self.a
        ok = self.lab("go")
        a(f"""s_lshr_b32 s{sT0}, s{sC}, 1
            s_lshl_b32 s{sT0}, s{sT0}, 4
            s_add_u32 s{sT0}, s{sT0}, s{sR}
            s_lshl_b32 s{sT0}, s{sT0}, 7
            s_add_u32 s{sT0}, s{sT0}, {CKV}
            s_waitcnt vmcnt({4 + len(a.vm.q)})
            v_cmp_gt_u32 vcc, 16, v{self.vGo}
            s_cbranch_vccz {ok}""")
        q = list(a.vm.q)
        self.poll(self.vGa, "0", self.vGo, sDBG)
        a.vm.q = q
        a.label(ok)

    def issue_f(self, i):
        a = self.a
        sCh, sO, sFB, sLf = sT0 + 4, sT0 + 5, sT0 + 6, sT0 + 7
        if i == 0:
            a(f"s_mul_i32 s{sFB}, s{sC}, 192\ns_mul_i32 s{sLf}, s{sT}, 3072")
        self.chunk(sCh, i)
        a(f"s_mul_i32 s{sO}, s{sCh}, 176128\ns_add_u32 s{sO}, s{sO}, s{sFB}")
        for m in range(2):
            for k in range(3):
                a(f"s_add_u32 m0, s{sLf}, {fslot(i) + 12288 * m + 1024 * k}\ns_nop 0")
                a(f"buffer_load_dwordx4 v{self.vF + k}, {sr(sWG if m == 0 else sWU, 4)}, s{sO} offen {self.cfg['fpol'] if i < self.cfg['fn'] else ''} lds")
                a.vm.issue(("F", i))

    def touch(self, i):
        a = self.a
        sA = sT0 + 8
        a(f"""s_lshr_b32 s{sA}, s2, 3
            s_lshl_b32 s{sA}, s{sA}, 2
            s_add_u32 s{sA}, s{sA}, s{sT}
            s_mul_i32 s{sA}, s{sA}, 11008
            s_add_u32 s{sA}, s{sA}, {2048 * i}
            s_mov_b32 m0, {CNT + 64}
            s_mov_b64 exec, {'0x3f' if i == 5 else '0xffff'}
            buffer_load_dword v{self.v1_}, {sr(sWD, 4)}, s{sA} offen lds
            s_mov_b64 exec, -1""")
        a.vm.issue("touch")

    def issue_wo(self, lo, hi):
        a = self.a
        sA, sL = sT0 + 8, sT0 + 9
        a(f"""s_lshl_b32 s{sA}, s{sT}, 17
            s_lshl_b32 s{sL}, s{sCB}, 7
            s_add_u32 s{sA}, s{sA}, s{sL}
            s_lshl_b32 s{sL}, s{sT}, 14""")
        for k in range(lo, hi):
            a(f"""s_add_u32 m0, s{sL}, {WOL + 1024 * k}
                s_add_u32 s{sA}, s{sA}, {8192 * (k if k == lo else 1)}
                buffer_load_dwordx4 v{self.vD}, {sr(sWO, 4)}, s{sA} offen lds""")
            a.vm.issue("wo")

    def pass_q(self):
        a = self.a
        XR, W, QACC = self.XR, self.WS_, 64
        a.lg.reset()
        a.vm.reset()
        flag_at, f0_at = self.cfg["kvflag_at"], self.cfg["f0_at"]

        def reads(g):
            for u in range(2):
                self.dsr("ds_read_b64_tr_b16", W + 4 * (g % 6) + 2 * u, 2, self.vQa, None, (16 * g + 4 * u) * 64, g)

        def hooks(j):
            if j == flag_at:
                if a.vm.q:
                    a(f"s_cmp_eq_u32 s{sC}, 15\ns_cbranch_scc0 L_kvw\ns_waitcnt vmcnt(0)")
                    a.label("L_kvw")
                a(f"s_waitcnt vmcnt({len(a.vm.q)})")
                self.stamp("KVack", "M")
                self.signal(sT0)
                self.stamp("KVflag", "M")
            if j == f0_at:
                skip = self.lab("nof0")
                a(f"s_cmp_eq_u32 s{sC}, 15\ns_cbranch_scc1 {skip}")
                self.issue_f(0)
                a.label(skip)

        if self.cfg["qs"] % 10:
            a("s_barrier")
        self.kv_flag()
        hooks(-2)
        hooks(-1)
        self.stamp("F0iss", "M")
        a("s_barrier")
        self.stamp("BQ", "M")
        for g in range(6):
            reads(g)
        nxt = 6
        for g in range(32):
            a.lg.wait(g)
            d = vr(QACC, 16)
            a(f"v_mfma_f32_32x32x16_bf16 {d}, {vr(W + 4 * (g % 6), 4)}, {vr(XR + 4 * g, 4)}, {d if g else 0}")
            if nxt < 32:
                reads(nxt)
                nxt += 1
            hooks(g)
        a(f"v_mov_b32 v98, {f32(0.25 * LOG2E)}\ns_nop 10")
        for k in range(8):
            a(f"v_pk_mul_f32 {vr(QACC + 2 * k, 2)}, {vr(QACC + 2 * k, 2)}, v[98:99] op_sel_hi:[1,0]")
        for hd in range(2):
            for k in range(4 * hd, 4 * hd + 4):
                a(f"v_cvt_pk_bf16_f32 v{QACC + k}, v{QACC + 2 * k}, v{QACC + 2 * k + 1}")
            a(f"ds_write_b128 v{self.vQFa}, {vr(QACC + 4 * hd, 4)} offset:{4096 * hd}")
        self.lds_signal(self.vCnt, self.v1_, 16)
        self.stamp("Qdone", "M")
        hooks(32)

    def pass_f(self):
        a = self.a
        XR, ACC, W = self.XR, self.ACC, self.WS_
        N, sig, gat, rchk = 192, self.cfg["sig_at"], self.cfg["gate_at"], self.cfg["rchk"]

        def reads(j):
            g, t = divmod(j, 6)
            i, s = divmod(g, 4)
            if j % 24 == 0 and i:
                self.boost()
                a(f"v_add_u32 v{self.vFlo}, {(fslot(i) - fslot(i - 1)) & 0xffffffff}, v{self.vFlo}")
            for u in range(2):
                self.dsr("ds_read_b64_tr_b16", W + 4 * (j % 6) + 2 * u, 2, self.vFlo, None,
                         12288 * (t & 1) + (16 * s + 4 * u) * 192 + 64 * (t >> 1), j)

        def landed(i):
            a.vm.wait(("F", i))
            self.lds_signal(self.vCnt, self.v1_, 0)
            self.boost()

        self.bg = bool(self.cfg["boost"])
        landed(0)
        self.lds_probe(self.vCnt, self.vTmp, 0)
        self.lds_check(self.vCnt, self.vTmp, 0, 16)
        self.stamp("F0", "M")
        for j in range(6):
            reads(j)
        for j in range(N):
            g, t = divmod(j, 6)
            i, jj = divmod(j, 24)
            if self.cfg["pulse"] and j % self.cfg["pulse"] == 0:
                self.boost()
            a.lg.wait(j)
            d = vr(ACC + 16 * t, 16)
            a(f"v_mfma_f32_32x32x16_bf16 {d}, {vr(W + 4 * (j % 6), 4)}, {vr(XR + 4 * g, 4)}, {d if g else 0}")
            self.unboost()
            if jj == 23:
                self.stamp(f"f{i}", "M")
            if j == gat - 2:
                self.lds_probe(self.vCnt, self.vTmp, 20)
            if j == gat:
                self.lds_check(self.vCnt, self.vTmp, 20, 4)
                self.issue_f(1)
            if j == 20:
                self.lds_probe(self.vCnt, self.vTmp, 24)
            if j == 22:
                self.lds_check(self.vCnt, self.vTmp, 24, 4)
            if 1 <= i < 6:
                if jj == 0:
                    self.lds_signal(self.vCnt, self.v1_, 28)
                if jj == rchk - 2:
                    self.lds_probe(self.vCnt, self.vTmp, 28)
                if jj == rchk:
                    self.lds_check(self.vCnt, self.vTmp, 28, 16 * i)
                    self.issue_f(i + 2)
            if i == 7:
                if jj == 0:
                    self.lds_signal(self.vCnt, self.v1_, 28)
                    self.ffn2_scalars()
                if jj == rchk - 2:
                    self.lds_probe(self.vCnt, self.vTmp, 28)
                if jj == rchk:
                    self.lds_check(self.vCnt, self.vTmp, 28, 96)
                    a(f"v_add_u32 v{self.vD2}, 7168, v{self.vD}")
                    a.vm.wait("wo")
                if jj >= rchk and (jj - rchk) % 2 == 0 and jj - rchk < 12:
                    self.issue_w((jj - rchk) // 2)
            if i < 7:
                if jj == (sig if i else 14):
                    landed(i + 1)
                    if i == 0:
                        self.issue_f(2)
                if jj == self.cfg["wo_at"] and i:
                    self.touch(i - 1)
                    self.issue_wo(*((0, 3), (3, 6), (6, 9), (9, 12), (12, 14), (14, 16))[i - 1])
                if jj == 15:
                    self.lds_probe(self.vCnt, self.vTmp, 0)
                if jj == 18:
                    self.lds_check(self.vCnt, self.vTmp, 0, 16 * (i + 2))
            if j + 6 < N:
                reads(j + 6)
        self.bg = False
        self.lds_signal(self.vCnt, self.v1_, 0)
        self.stamp("Fdone", "M")

    def gelu(self):
        a = self.a
        ACC = self.ACC
        c0, c1, T, OUT, vOff = 240, 242, 224, 200, self.vP
        sH, sV, sA = sT0 + 12, sT0 + 13, sT0 + 14
        prog = self.w_program()
        per_gap = [int(ch) for ch in str(self.cfg["gaps"])[1:]]
        k0 = -2.0 * 0.7978845608028654 * LOG2E
        a(f"""s_lshl_b32 s{sH}, s{sR}, 2
            s_add_u32 s{sH}, s{sH}, s{sT}
            s_mul_i32 s{sH}, s{sH}, 86
            s_mul_i32 s{sV}, s{sC}, 6
            s_add_u32 s{sH}, s{sH}, s{sV}
            s_lshl_b32 s{sH}, s{sH}, 10
            s_add_u32 s{sH}, s{sH}, {WS_H}""")
        self.ffn2_setup()
        if self.cfg["galign"]:
            a.raw(".p2align 3")
        a(f"""v_mov_b32 v{c0}, {f32(k0)}
            v_mov_b32 v{c0 + 1}, {f32(k0)}
            v_mov_b32 v{c1}, {f32(k0 * 0.044715)}
            v_mov_b32 v{c1 + 1}, {f32(k0 * 0.044715)}""")

        def stores(j):
            a(f"s_cmp_lt_u32 s{sV}, {86 - 2 * j}\ns_cselect_b32 s{sA}, s{sH}, {OOB}\ns_add_u32 s{sH}, s{sH}, 2048")
            for q in range(2):
                a(f"buffer_store_dwordx4 {vr(OUT + 8 * j + 4 * q, 4)}, v{vOff}, {sr(sWS, 4)}, s{sA} offen offset:{1024 * q} sc1")
                a.vm.issue("H")

        def gap(n):
            for _ in range(per_gap[n]):
                prog.pop(0)()
            if self.cfg["galign"]:
                a.raw(".p2align 3")

        for j in range(3):
            G, U = ACC + 32 * j, ACC + 32 * j + 16
            p = lambda b, k: vr(b + 2 * k, 2)
            for k in range(8):
                if j == 0 and k < self.cfg["plain"]:
                    a(f"v_mul_f32 v{T + 2 * k}, v{G + 2 * k}, v{G + 2 * k}\nv_mul_f32 v{T + 2 * k + 1}, v{G + 2 * k + 1}, v{G + 2 * k + 1}")
                else:
                    a(f"v_pk_mul_f32 {p(T, k)}, {p(G, k)}, {p(G, k)}")
            for k in range(8):
                a(f"v_pk_fma_f32 {p(T, k)}, {p(T, k)}, {vr(c1, 2)}, {vr(c0, 2)}")
            for k in range(8):
                a(f"v_pk_mul_f32 {p(T, k)}, {p(T, k)}, {p(G, k)}")
            if j:
                stores(j - 1)
            gap(2 * j)
            for k in range(16):
                a(f"v_exp_f32 v{T + k}, v{T + k}")
            for k in range(8):
                a(f"v_pk_mul_f32 {p(G, k)}, {p(G, k)}, {p(U, k)}")
            for k in range(8):
                a(f"v_pk_add_f32 {p(T, k)}, {p(T, k)}, 1.0 op_sel_hi:[1,0]")
            gap(2 * j + 1)
            for k in range(16):
                a(f"v_rcp_f32 v{T + k}, v{T + k}")
            for k in range(8):
                a(f"v_pk_mul_f32 {p(G, k)}, {p(G, k)}, {p(T, k)}")
            for k in range(8):
                a(f"v_cvt_pk_bf16_f32 v{OUT + 8 * j + k}, v{G + 2 * k}, v{G + 2 * k + 1}")
        stores(2)

    def gate(self):
        a = self.a
        XR, GB, Z, vO = self.XR, 32, 24, 28
        sCh = sT0 + 4
        a.vm.drain()
        a.lg.reset()
        self.lds_probe(self.vCnt, self.vTmp, 24)
        self.lds_check(self.vCnt, self.vTmp, 24, 4, nap=2)
        self.lane(vO + 1)
        a(f"v_lshrrev_b32 v{vO}, 5, v{vO + 1}\nv_lshlrev_b32 v{vO}, 4, v{vO}")
        for k in range(4):
            a(f"v_mov_b32 v{Z + k}, 0")
        for half in range(2):
            for i in range(4 * half, 4 * half + 4):
                self.chunk(sCh, i)
                a(f"s_lshl_b32 s{sCh}, s{sCh}, 7")
                for s in range(4):
                    a(f"buffer_load_dwordx4 {vr(GB + 16 * (i & 3) + 4 * s, 4)}, v{vO}, {sr(sGW, 4)}, s{sCh} offen offset:{32 * s}")
            for i in range(3 * half, 3 * half + 3):
                self.touch(i)
            a("s_waitcnt vmcnt(0)")
            for k in range(64):
                a(f"v_dot2c_f32_bf16 v{Z + (k & 3)}, v{XR + 64 * half + k}, v{GB + k}")
        a(f"""s_lshl_b32 s{sT0}, s{sR}, 2
            s_add_u32 s{sT0}, s{sT0}, s{sT}
            s_lshl_b32 s{sT0}, s{sT0}, 7
            s_add_u32 s{sT0}, s{sT0}, {WS_G}
            v_add_f32 v{Z}, v{Z}, v{Z + 1}
            v_add_f32 v{Z + 2}, v{Z + 2}, v{Z + 3}
            v_add_f32 v{Z}, v{Z}, v{Z + 2}
            v_mov_b32 v{Z + 1}, v{Z}
            v_lshlrev_b32 v{vO}, 2, v{vO + 1}
            s_nop 0
            v_permlane32_swap_b32 v{Z}, v{Z + 1}
            s_nop 1
            v_add_f32 v{Z}, v{Z}, v{Z + 1}
            s_mov_b32 s{sT0 + 12}, s{sT0}""")
        for k in range(0, 16, 4):
            self.issue_wo(k, k + 4)
            self.cap()
        a.vm.drain()
        a(f"v_mov_b32 v{self.vTmp}, 36")
        self.lds_signal(self.vCnt, self.vTmp, 0)
        self.ffn2_scalars()
        a(f"v_add_u32 v{self.vD2}, 7168, v{self.vD}")
        for k in range(6):
            self.issue_w(k)
            self.cap()
        self.ffn2_setup()
        for op in self.w_program()[:sum(int(ch) for ch in str(self.cfg["gaps"])[1:])]:
            op()
        a(f"""s_mov_b32 exec_hi, 0
            buffer_store_dword v{Z}, v{vO}, {sr(sWS, 4)}, s{sT0 + 12} offen sc1
            s_mov_b64 exec, -1""")

    vL, vH, vA0, vA1, vRel, vDump, vP, vZ, vD2, vH2, vT0, vB0, vB1 = 8, 10, 11, 12, 13, 15, 16, 17, 2, 19, 9, 14, 18

    sRB2 = 4

    def ffn2_scalars(self):
        a = self.a
        sRing, sS0, sS1, sWc, sW0, sWe, sHc, sH0, sHe, sHl, sFl, sRow = range(sT0, sT0 + 12)
        NS = 22
        a(f"""s_mul_i32 s{sRing}, s{sT}, 12288
            s_mul_i32 s{self.sRB2}, s{sT}, 6144
            s_add_u32 s{self.sRB2}, s{self.sRB2}, {SEGB}
            s_and_b32 s{sS0}, s{sRB}, 3
            s_lshl_b32 s{sS0}, s{sS0}, 1
            s_add_u32 s{sS0}, s{sS0}, s{sCB}
            s_and_b32 s{sS0}, s{sS0}, {7 if self.cfg['rot2'] else 0}
            s_mul_i32 s{sS0}, s{sS0}, 11
            s_lshr_b32 s{sS0}, s{sS0}, 2
            s_mul_i32 s{sS1}, s{sT}, {NS}
            s_lshl_b32 s{sW0}, s{sS1}, 14
            s_lshl_b32 s{sWc}, s{sCB}, 7
            s_add_u32 s{sW0}, s{sW0}, s{sWc}
            s_add_u32 s{sWe}, s{sW0}, {NS * 16384}
            s_lshl_b32 s{sWc}, s{sS0}, 14
            s_add_u32 s{sWc}, s{sWc}, s{sW0}
            s_mul_i32 s{sHl}, s{sRB}, 172
            s_add_u32 s{sH0}, s{sHl}, s{sS1}
            s_lshl_b32 s{sH0}, s{sH0}, 10
            s_add_u32 s{sH0}, s{sH0}, {WS_H}
            s_add_u32 s{sHe}, s{sH0}, {NS * 1024}
            s_lshl_b32 s{sHc}, s{sS0}, 10
            s_add_u32 s{sHc}, s{sHc}, s{sH0}
            s_lshl_b32 s{sHl}, s{sHl}, 10
            s_add_u32 s{sHl}, s{sHl}, {WS_H + 86 * 1024}
            s_lshl_b32 s{sFl}, s{sR}, 1
            s_lshr_b32 s{sS0}, s{sT}, 1
            s_add_u32 s{sFl}, s{sFl}, s{sS0}
            s_lshl_b32 s{sFl}, s{sFl}, 9
            s_add_u32 s{sFl}, s{sFl}, {CH}
            s_mov_b32 s{sRow}, 0x62223111
            s_cmp_ge_u32 s{sC}, 8
            s_cselect_b32 s{sRow}, 0xf8888444, s{sRow}
            s_and_b32 s{sS0}, s{sC}, 7
            s_lshl_b32 s{sS0}, s{sS0}, 2
            s_lshr_b32 s{sRow}, s{sRow}, s{sS0}""")

    def cap(self):
        a, CAP = self.a, self.cfg["cap"]
        if len(a.vm.q) > CAP:
            a.vm.q = a.vm.q[len(a.vm.q) - CAP:]
            a(f"s_waitcnt vmcnt({CAP})")

    def issue_w(self, s):
        a = self.a
        sRing, sS0, sS1, sWc, sW0, sWe = range(sT0, sT0 + 6)
        a(f"s_add_u32 m0, s{sRing if WSLOT[s] < 6 else self.sRB2}, {(WSLOT[s] % 6) * 2048}")
        if s:
            a(f"s_add_u32 s{sWc}, s{sWc}, 16384\ns_cmp_eq_u32 s{sWc}, s{sWe}\ns_cselect_b32 s{sWc}, s{sW0}, s{sWc}")
        else:
            a("s_nop 0")
        a(f"buffer_load_dwordx4 v{self.vD}, {sr(sWD, 4)}, s{sWc} offen lds")
        a(f"buffer_load_dwordx4 v{self.vD2}, {sr(sWD, 4)}, s{sWc} offen offset:1024 lds")
        a.vm.issue(("w", s))
        a.vm.issue(("w", s))

    @staticmethod
    def wreg(s):
        return 128 + 8 * s if s < 9 else 96 + 8 * (s - 9) if s < 13 else 128 + 8 * (s - 13)

    def w_reads(self, s):
        self.a.vm.wait(("w", s))
        regs = (self.vA0, self.vA1) if WSLOT[s] < 6 else (self.vB0, self.vB1)
        for ct in range(2):
            for u in range(2):
                self.dsr("ds_read_b64_tr_b16", self.wreg(s) + 4 * ct + 2 * u, 2, regs[ct], None,
                         (WSLOT[s] % 6) * 2048 + 1024 * u, (s, ct))

    def w_program(self, need=144):
        a = self.a

        def R(*steps):
            return lambda: [self.w_reads(s) for s in steps]

        def I(s):
            def op():
                prev = [p for p in range(s) if WSLOT[p] == WSLOT[s]]
                if prev:
                    a.lg.wait((prev[-1], 1))
                if s == 11:
                    self.lds_probe(self.vCnt, self.vTmp, 0)
                if s == 12:
                    self.lds_check(self.vCnt, self.vTmp, 0, need)
                self.issue_w(s)
                self.cap()
            return op

        return [R(0, 1, 2), I(6), I(7), R(3, 4, 5), I(8), I(9), I(10), I(11), I(12), I(13), R(6, 7, 8), I(14), I(15), I(16), I(17),
                R(9, 10), R(11, 12), I(18), I(19), I(20), I(21)]

    def ffn2_setup(self):
        a = self.a
        vL, vH, vA0, vA1, vRel, vDump, vP, vZ, vH2, vT0 = (self.vL, self.vH, self.vA0, self.vA1, self.vRel, self.vDump, self.vP,
                                                           self.vZ, self.vH2, self.vT0)
        sRing, sS0 = sT0, sT0 + 1
        self.lane(vL)
        a(f"""v_lshlrev_b32 v{vP}, 4, v{vL}
            s_and_b32 s{sS0}, s{sT}, 1
            s_mul_i32 s{sS0}, s{sS0}, 88064
            v_add_u32 v{vH}, s{sS0}, v{vP}
            s_sub_u32 s{sS0}, 88064, s{sS0}
            v_add_u32 v{vH2}, s{sS0}, v{vP}
            v_add_u32 v{vDump}, s{sRing}, v{vP}
            v_lshrrev_b32 v20, 5, v{vL}
            v_bfe_u32 v21, v{vL}, 2, 2
            v_lshl_add_u32 v20, v20, 2, v21
            v_and_b32 v21, 1, v{vL}
            v_lshlrev_b32 v21, 2, v21
            v_bfe_u32 v22, v{vL}, 4, 1
            v_lshl_add_u32 v21, v22, 1, v21
            v_bfe_u32 v23, v{vL}, 1, 1
            v_add_u32 v21, v21, v23
            v_lshlrev_b32 v21, 3, v21
            v_lshl_add_u32 v21, v20, 7, v21
            v_bfe_u32 v23, v{vL}, 3, 1
            v_lshl_add_u32 v21, v23, 6, v21
            s_lshr_b32 s{sS0}, s{sT}, 1
            s_lshl_b32 s{sS0}, s{sS0}, 6
            v_xor_b32 v{vT0}, s{sS0}, v21
            v_add_u32 v{vA0}, s{sRing}, v{vT0}
            v_xor_b32 v{vA1}, 64, v{vA0}
            v_add_u32 v{self.vB0}, s{self.sRB2}, v{vT0}
            v_xor_b32 v{self.vB1}, 64, v{self.vB0}
            s_lshl_b32 s{sS0}, s{sT}, 2
            v_add_u32 v{vRel}, s{sS0}, v{self.vCnt}
            v_and_b32 v{vZ}, 31, v{vL}
            v_lshlrev_b32 v{vZ}, 2, v{vZ}""")

    def ffn2(self):
        a = self.a
        ACC = 32
        vH, vRel, vDump, vZ, vH2 = self.vH, self.vRel, self.vDump, self.vZ, self.vH2
        sRing, sS0, sS1, sWc, sW0, sWe, sHc, sH0, sHe, sHl, sFl, sRow = range(sT0, sT0 + 12)
        NS, PD = 22, self.cfg["pd"]
        cap, issue_w, reads, wreg = self.cap, self.issue_w, self.w_reads, self.wreg
        hreg = lambda s: 200 + 8 * ((s + 6) % 7)
        a(f"s_setprio {self.cfg['prio_m']}")
        a.lg.reset()
        a.vm.reset()

        def issue_h(s):
            if s:
                a(f"""s_add_u32 s{sHc}, s{sHc}, 1024
                    s_cmp_eq_u32 s{sHc}, s{sHe}
                    s_cselect_b32 s{sHc}, s{sH0}, s{sHc}""")
            a(f"s_cmp_lt_u32 s{sHc}, s{sHl}\ns_cselect_b32 s{sS0}, s{sHc}, {OOB}")
            for tt in range(2):
                a(f"buffer_load_dwordx4 {vr(hreg(s) + 4 * tt, 4)}, v{(vH, vH2)[tt]}, {sr(sWS, 4)}, s{sS0} offen sc1")
                a.vm.issue(("h", s))

        done = sum(int(ch) for ch in str(self.cfg["gaps"])[1:])
        assert done <= 15 and done != 8
        prog = self.w_program()[done:]
        a("s_waitcnt vmcnt(0) lgkmcnt(0)")
        for k in range(4):
            skip = self.lab("nosig")
            a(f"s_bitcmp1_b32 s{sRow}, {k}\ns_cbranch_scc0 {skip}")
            self.signal(sFl)
            a.label(skip)
            a(f"s_add_u32 s{sFl}, s{sFl}, 128")
        self.stamp("Hflag", "M")
        a(f"""s_lshl_b32 s{sFl}, s{sRB}, 2
            s_add_u32 s{sFl}, s{sFl}, s{sT}
            s_lshl_b32 s{sFl}, s{sFl}, 7
            s_add_u32 s{sFl}, s{sFl}, {CH}
            s_cmp_eq_u32 s{sT}, 1
            s_cselect_b32 s{sRow}, 12, 10
            s_mov_b32 s{sPV}, 0""")
        for n, op in enumerate(prog):
            if n == len(prog) - 3:
                a.lg.drain()
                a(f"s_atomic_add s{sPV}, {sr(sWS, 2)}, s{sFl} glc")
            op()
        self.stamp("W0", "M")
        ready = self.lab("hready")
        a(f"s_waitcnt lgkmcnt(0)\ns_cmp_ge_u32 s{sPV}, s{sRow}\ns_cbranch_scc1 {ready}")
        self.spoll(sFl, f"s{sRow}")
        a.label(ready)
        self.stamp("Hpoll", "M")
        for s in range(PD):
            issue_h(s)
        a(f"""s_lshl_b32 s{sFl}, s{sRB}, 1
            s_and_b32 s{sS0}, s{sT}, 1
            s_add_u32 s{sFl}, s{sFl}, s{sS0}
            s_lshl_b32 s{sFl}, s{sFl}, 7
            s_add_u32 s{sFl}, s{sFl}, {WS_G}
            buffer_load_dword v{vZ}, v{vZ}, {sr(sWS, 4)}, s{sFl} offen sc1""")
        a.vm.issue("z")
        nh = PD
        hold = NS - self.cfg["defer"]
        assert hold <= 16 or hold == NS

        cnt = [0]

        def mm(s, ct, tt):
            self.bg = bool(self.cfg["pulse2"])
            if self.bg and cnt[0] % self.cfg["pulse2"] == 0:
                self.boost()
            cnt[0] += 1
            a.vm.wait(("h", s))
            a.lg.wait((s, ct))
            d = vr(ACC + 32 * tt + 16 * ct, 16)
            a(f"v_mfma_f32_32x32x16_bf16 {d}, {vr(wreg(s) + 4 * ct, 4)}, {vr(hreg(s) + 4 * tt, 4)}, {d if s else 0}")
            self.unboost()
            self.bg = False

        for s in range(17):
            if s == hold or s == 16:
                while nh < min(NS, s + 7):
                    issue_h(nh)
                    nh += 1
                    cap()
            if s == hold:
                self.stamp("hold", "M")
                self.lds_probe(vRel, self.vTmp, 32)
                self.lds_check(vRel, self.vTmp, 32, 1, nap=2)
                self.stamp("resume", "M")
            if s == 16:
                break
            self.stamp(f"s{s}", "M")
            for k in range(4):
                mm(s, *divmod(k, 2))
                if k == 0 and nh < min(NS, s + 7):
                    issue_h(nh)
                    nh += 1
                if k == 1 and 1 <= s <= 9:
                    reads(s + 12)
        self.stamp("s16", "M")
        a.lg.drain()
        self.final_setup()
        for n, (ct, tt) in enumerate(((0, 1), (1, 0), (1, 1), (0, 0))):
            for s in range(16, NS):
                mm(s, ct, tt)
                if n and s >= 18:
                    k = (8, 4, 12)[n - 1] + s - 18
                    if s == 18:
                        a("s_nop 8" if n < 3 else "s_nop 3")
                    a(f"ds_write_b128 v{vDump}, {vr(ACC + 4 * k, 4)} offset:{1024 * (k - 4)}")
                if n == 3 and s == 16:
                    self.early_o()
        self.lds_signal(self.vCnt, self.v1_, 4)
        self.stamp("s22", "M")

    def final_setup(self):
        a = self.a
        sFl, sOut, sO, sA, sTT, sKh, sF2, sG = range(sT0 + 1, sT0 + 9)
        a(f"""s_and_b32 s{sTT}, s{sT}, 1
            s_lshr_b32 s{sKh}, s{sT}, 1
            s_lshl_b32 s{sFl}, s{sRB}, 1
            s_add_u32 s{sFl}, s{sFl}, s{sKh}
            s_lshl_b32 s{sFl}, s{sFl}, 8
            s_add_u32 s{sFl}, s{sFl}, {CO}
            s_add_u32 s{sF2}, s{sFl}, 128
            s_mov_b32 s{sPV}, 0
            s_mov_b32 s{sA}, 0
            s_atomic_add s{sPV}, {sr(sWS, 2)}, s{sFl} glc
            s_atomic_add s{sA}, {sr(sWS, 2)}, s{sF2} glc
            s_lshl_b32 s{sOut}, s{sRB}, 1
            s_add_u32 s{sOut}, s{sOut}, s{sTT}
            s_lshl_b32 s{sO}, s{sOut}, 5
            s_lshl_b32 s{sG}, s{sKh}, 4
            s_add_u32 s{sO}, s{sO}, s{sG}
            s_lshl_b32 s{sO}, s{sO}, 10
            s_add_u32 s{sO}, s{sO}, {WS_O}
            s_lshl_b32 s{sOut}, s{sOut}, 15
            s_lshl_b32 s{sG}, s{sCB}, 7
            s_add_u32 s{sOut}, s{sOut}, s{sG}
            s_lshl_b32 s{sG}, s{sKh}, 6
            s_add_u32 s{sOut}, s{sOut}, s{sG}""")

    @staticmethod
    def of(s):
        return 96 + 4 * s if s < 14 else 200 + 4 * (s - 14)

    def oloads(self, h, sO):
        a = self.a
        for s in range(8 * h, 8 * h + 8):
            if s % 8 == 4:
                a(f"s_add_u32 s{sO}, s{sO}, 4096")
            a(f"buffer_load_dwordx4 {vr(self.of(s), 4)}, v{self.vP}, {sr(sWS, 4)}, s{sO} offen offset:{1024 * (s % 4)} sc1")
            a.vm.issue(s)

    def early_o(self):
        a = self.a
        sFl, sOut, sO, sA, sTT, sKh, sF2, sG, sE, sX = range(sT0 + 1, sT0 + 11)
        skip = self.lab("noearly")
        a.vm.drain()
        a(f"""s_waitcnt lgkmcnt(0)
            s_min_u32 s{sE}, s{sPV}, s{sA}
            s_lshr_b32 s{sE}, s{sE}, 3
            s_cbranch_scc0 {skip}
            s_mov_b32 s{sX}, s{sO}""")
        self.oloads(0, sX)
        a(f"s_add_u32 s{sX}, s{sX}, 4096")
        self.oloads(1, sX)
        a.label(skip)
        a.vm.reset()

    def final(self):
        a = self.a
        B, PT, OWN, OTH = 32, 48, 152, 168
        WO = lambda s: (184, 192, 208, 216, 224, 232, 240, 248)[s % 8]
        vL, vH, vX, vZ, vA0, vA1 = self.vL, self.vP, self.vDump, self.vZ, self.vA0, self.vA1
        vOut, vG, vP1, vP2, vP3, vB0, vB1, vXp = 1, 2, 19, 10, 13, self.vB0, self.vB1, 20
        sFl, sOut, sO, sA, sTT, sKh, sF2, sG, sE, sX = range(sT0 + 1, sT0 + 11)
        top, got, loaded, join = self.lab("opoll"), self.lab("ogot"), self.lab("oloaded"), self.lab("ojoin")
        a.lg.reset()
        for reg, d in ((vP1, 2), (vP2, 1), (vP3, 3)):
            a(f"s_xor_b32 s{sG}, s{sT}, {d}\ns_mul_i32 s{sG}, s{sG}, 12288\nv_add_u32 v{reg}, s{sG}, v{vH}")
        a(f"""v_add_u32 v{vX}, s{self.sRB2}, v{vH}
            s_xor_b32 s{sG}, s{sT}, 2
            s_mul_i32 s{sG}, s{sG}, 6144
            s_add_u32 s{sG}, s{sG}, {SEGB}
            v_add_u32 v{vXp}, s{sG}, v{vH}
            v_mul_f32 v{vG}, {f32(LOG2E)}, v{vZ}
            v_and_b32 v{vOut}, 31, v{vL}
            v_exp_f32 v{vG + 2}, v{vG}
            v_exp_f32 v{vG}, -v{vG}
            v_lshlrev_b32 v{vOut}, 10, v{vOut}
            v_add_f32 v{vG + 2}, 1.0, v{vG + 2}
            v_add_f32 v{vG}, 1.0, v{vG}
            v_rcp_f32 v{vG + 2}, v{vG + 2}
            v_rcp_f32 v{vG}, v{vG}
            v_lshrrev_b32 v{vL}, 5, v{vL}
            v_lshl_add_u32 v{vOut}, v{vL}, 5, v{vOut}""")
        a(f"""s_mov_b32 s{sG}, 0
            s_cmp_lg_u32 s{sE}, 0
            s_cbranch_scc1 {loaded}
            s_mov_b32 s{sSPIN}, 200000""")
        a.label(top)
        a(f"""s_mov_b32 s{sPV}, 0
            s_mov_b32 s{sA}, 0
            s_atomic_add s{sPV}, {sr(sWS, 2)}, s{sFl} glc
            s_atomic_add s{sA}, {sr(sWS, 2)}, s{sF2} glc
            s_sub_u32 s{sSPIN}, s{sSPIN}, 1
            s_cbranch_scc1 {got}
            s_waitcnt lgkmcnt(0)
            s_max_u32 s{sE}, s{sPV}, s{sA}
            s_cmp_lt_u32 s{sE}, 8
            s_cbranch_scc1 {top}""")
        a.label(got)
        a(f"""s_waitcnt lgkmcnt(0)
            s_cmp_lt_u32 s{sPV}, 8
            s_cselect_b32 s{sG}, 1, 0
            s_lshl_b32 s{sX}, s{sG}, 13
            s_add_u32 s{sO}, s{sO}, s{sX}""")
        self.stamp("Opoll", "M")
        a.vm.reset()
        self.oloads(0, sO)
        a(f"""s_xor_b32 s{sO}, s{sO}, 0x3000
            s_min_u32 s{sE}, s{sPV}, s{sA}
            s_lshr_b32 s{sE}, s{sE}, 3
            s_cselect_b32 s{sX}, s{sO}, {OOB}""")
        self.oloads(1, sX)
        a.label(loaded)
        a(f"""s_xor_b32 s{sF2}, s{sG}, 1
            s_lshl_b32 s{sF2}, s{sF2}, 7
            s_add_u32 s{sF2}, s{sF2}, s{sFl}
            s_lshl_b32 s{sX}, s{sKh}, 1
            s_add_u32 s{sG}, s{sG}, s{sX}
            s_lshl_b32 s{sX}, s{sG}, 14
            s_add_u32 s{sX}, s{sX}, {WOL}
            v_add_u32 v{vA0}, s{sX}, v{self.vT0}
            s_xor_b32 s{sG}, s{sG}, 1
            s_lshl_b32 s{sX}, s{sG}, 14
            s_add_u32 s{sX}, s{sX}, {WOL}
            v_add_u32 v{vB0}, s{sX}, v{self.vT0}
            v_xor_b32 v{vA1}, 64, v{vA0}
            v_xor_b32 v{vB1}, 64, v{vB0}""")
        a.lg.reset()

        def wreads(s):
            if s >= 16:
                return
            for ct in range(2):
                for u in range(2):
                    self.dsr("ds_read_b64_tr_b16", WO(s) + 4 * ct + 2 * u, 2, ((vA0, vA1), (vB0, vB1))[s >> 3][ct], None,
                             (s & 7) * 2048 + 1024 * u, ("wo", s))

        def step(s):
            a.vm.wait(s)
            a.lg.wait(("wo", s))
            w = WO(s)
            ot, ow = (vr(OTH, 16), vr(OWN, 16)) if s < 8 else (vr(PT + 32, 16), vr(PT + 16, 16))
            a(f"v_mfma_f32_32x32x16_bf16 {ot}, {vr(w + 4, 4)}, {vr(self.of(s), 4)}, {ot if s % 8 else 0}")
            wreads(s + 2)
            if 2 <= s < 8:
                i, h = divmod(s - 2, 2)
                for k in range(8 * h, 8 * h + 4):
                    a(f"v_add_f32 v{B + k}, v{B + k}, v{PT + 16 * i + k}")
            a(f"v_mfma_f32_32x32x16_bf16 {ow}, {vr(w, 4)}, {vr(self.of(s), 4)}, {ow if s % 8 else 0}")
            if s < 6:
                i, h = divmod(s, 2)
                for q in range(2 * h, 2 * h + 2):
                    self.dsr("ds_read_b128", PT + 16 * i + 4 * q, 4, (vP1, vP2, vP3)[i], None, 4096 * i + 1024 * q, ("wo", s + 2))
            if 2 <= s < 8:
                i, h = divmod(s - 2, 2)
                for k in range(8 * h + 4, 8 * h + 8):
                    a(f"v_add_f32 v{B + k}, v{B + k}, v{PT + 16 * i + k}")
            if 8 <= s < 12:
                for k in range(4 * (s - 8), 4 * (s - 8) + 4):
                    a(f"v_mul_f32 v{B + k}, v{B + k}, v{vG + 2}")

        self.lds_probe(self.vCnt, self.vTmp, 4)
        for s in range(2):
            wreads(s)
        self.lds_check(self.vCnt, self.vTmp, 4, 16)
        self.stamp("msync", "M")
        for s in range(8):
            step(s)
        q, le = list(a.vm.q), list(a.lg.q)
        if self.cfg["otm"]:
            for s in range(10, 16):
                wreads(s)
                a.lg.wait(("wo", s - 2))
            le = list(a.lg.q)
        a(f"s_cmp_lg_u32 s{sE}, 0\ns_cbranch_scc1 {join}")
        self.stamp("g1done", "M")
        self.spoll(sF2, 8)
        self.stamp("late", "M")
        a.vm.drain()
        self.oloads(1, sO)
        assert a.vm.q == q
        a.lg.q = le
        a.label(join)
        if not self.cfg["otm"]:
            for s in range(8, 16):
                step(s)
            self.stamp("Omfma", "M")
            a("s_nop 10")
            for q in range(4):
                for k in range(4 * q, 4 * q + 4):
                    a(f"v_add_f32 v{OTH + k}, v{OTH + k}, v{PT + 32 + k}")
                a(f"ds_write_b128 v{vX}, {vr(OTH + 4 * q, 4)} offset:{1024 * q}")
            for k in range(8):
                a(f"v_pk_add_f32 {vr(OWN + 2 * k, 2)}, {vr(OWN + 2 * k, 2)}, {vr(PT + 16 + 2 * k, 2)}")
            for k in range(8):
                a(f"v_pk_fma_f32 {vr(B + 2 * k, 2)}, {vr(OWN + 2 * k, 2)}, {vr(vG, 2)}, {vr(B + 2 * k, 2)} op_sel_hi:[1,0,1]")
        else:
            for k in range(16):
                a(f"v_mul_f32 v{B + k}, v{B + k}, v{vG + 2}")
            for s in range(8, 16):
                a.vm.wait(s)
                a.lg.wait(("wo", s))
                ot = vr(PT + 32, 16)
                a(f"v_mfma_f32_32x32x16_bf16 {ot}, {vr(WO(s) + 4, 4)}, {vr(self.of(s), 4)}, {ot if s % 8 else 0}")
            for s in range(8, 16):
                ow = vr(PT + 16, 16)
                a(f"v_mfma_f32_32x32x16_bf16 {ow}, {vr(WO(s), 4)}, {vr(self.of(s), 4)}, {ow if s % 8 else 0}")
                if s == 8:
                    a("s_nop 5")
                if s == 9:
                    a("s_nop 3")
                if 9 <= s < 13:
                    q = s - 9
                    for k in range(4 * q, 4 * q + 4):
                        a(f"v_add_f32 v{OTH + k}, v{OTH + k}, v{PT + 32 + k}")
                    a(f"ds_write_b128 v{vX}, {vr(OTH + 4 * q, 4)} offset:{1024 * q}")
            self.stamp("Omfma", "M")
        a("s_waitcnt lgkmcnt(0)\ns_barrier")
        self.stamp("bar", "M")
        for q in range(4):
            a(f"ds_read_b128 {vr(PT + 4 * q, 4)}, v{vXp} offset:{1024 * q}")
        if self.cfg["otm"]:
            a("s_nop 5")
            for k in range(8):
                a(f"v_pk_add_f32 {vr(OWN + 2 * k, 2)}, {vr(OWN + 2 * k, 2)}, {vr(PT + 16 + 2 * k, 2)}")
            for k in range(8):
                a(f"v_pk_fma_f32 {vr(B + 2 * k, 2)}, {vr(OWN + 2 * k, 2)}, {vr(vG, 2)}, {vr(B + 2 * k, 2)} op_sel_hi:[1,0,1]")
        for q in range(4):
            a(f"s_waitcnt lgkmcnt({3 - q})")
            for k in range(2):
                r = 4 * q + 2 * k
                a(f"v_pk_fma_f32 {vr(B + r, 2)}, {vr(PT + r, 2)}, {vr(vG, 2)}, {vr(B + r, 2)} op_sel_hi:[1,0,1]")
            for k in range(2):
                r = 4 * q + 2 * k
                a(f"v_cvt_pk_bf16_f32 v{64 + 2 * q + k}, v{B + r}, v{B + r + 1}")
            if q % 2 == 1:
                a(f"buffer_store_dwordx4 {vr(64 + 4 * (q // 2), 4)}, v{vOut}, {sr(sOUT, 4)}, s{sOut} offen offset:{16 * (q // 2)}")

    def build(self):
        a = self.a
        cfg = self.cfg
        self.prologue()
        a(f"s_setprio {cfg['prio_l']}")
        self.loader()
        self.attn_start()
        self.stamp("attn0", "L")
        self.attn_loop()
        self.attn_finish()
        self.stamp("Oflag", "L")
        self.dump_stamps(True)
        a("s_endpgm")

        a.label("L_mwave")
        if cfg["swap"]:
            a("s_setprio 1")
        self.m_setup()
        if cfg["swap"]:
            a(f"s_setprio {cfg['prio_m']}")
        a(f"s_bitcmp1_b32 s{sC}, 0\ns_cbranch_scc1 L_pass_v")
        self.pass_a(False)
        a("s_branch L_pass_q")
        a.label("L_pass_v")
        self.pass_a(True)
        a.label("L_pass_q")
        self.pass_q()
        a(f"s_cmp_eq_u32 s{sC}, 15\ns_cbranch_scc1 L_gate")
        self.pass_f()
        a(f"s_setprio {cfg['prio_gelu']}")
        self.gelu()
        a.label("L_ffn2")
        self.stamp("gelu", "M")
        self.ffn2()
        self.final()
        if cfg.get("stamps"):
            a("s_waitcnt vmcnt(0)")
            self.stamp("end", "M")
            self.dump_stamps(False)
        a.label("L_end")
        a("s_endpgm")
        a.label("L_gate")
        a(f"s_setprio {cfg['prio_gelu']}")
        self.gate()
        a("s_branch L_ffn2")
        self.fallback()
        return a.text()


HEADER = """; Fused kernel: out = g * MHA(x) + (1 - g) * GEGLU(x),  g = sigmoid(x . gate_w)
; Kernarg (88 bytes, pointers): 0 A_x, 8 A_wqkv, 16 A_wo, 24 B_x (unused by the reference), 32 B_w_gate, 40 B_w_up,
;   48 B_w_down, 56 gate_w, 64 d_out, 72 d_debug, 80 d_ws
; 256 workgroups, one per CU; hand-offs between workgroups go through d_ws with write-through stores and flags.
; @launch grid=(256,1,1) block=(512,1,1) lds=%d
.amdgcn_target "amdgcn-amd-amdhsa--gfx950"
.text
.globl %s_kernel
.p2align 8
.type %s_kernel,@function
%s_kernel:
""" % (LDS_BYTES, NAME, NAME, NAME)

FOOTER = """.section .rodata,"a"
.p2align 6
.amdhsa_kernel %s_kernel
  .amdhsa_next_free_vgpr 256
  .amdhsa_next_free_sgpr 102
  .amdhsa_accum_offset 256
  .amdhsa_group_segment_fixed_size 0
  .amdhsa_kernarg_size 88
  .amdhsa_user_sgpr_count 2
  .amdhsa_user_sgpr_kernarg_segment_ptr 1
  .amdhsa_system_sgpr_workgroup_id_x 1
  .amdhsa_float_denorm_mode_32 3
.end_amdhsa_kernel
""" % NAME

DEFAULT = dict(stM='start,BA0,KVst,KVflag,Qdone,F0,Fdone,gelu,Hflag,Hpoll,ffn2,Opoll,Omfma,end',
               stL='start,karg,A0,A2,A7,KVpoll,Qrdy,attn0,attn1,Ost,Oflag',
               outpol='', rowmask=14, qs=14400, tf=0, gate_f=1, gate_at=4, gaps=1131110, plain=8, galign=1, k1=0, swap=0, rel=1, touch=1, tq=1, f1_early=0, rbits=3, rot=4, rot2=1, la=2, nst=4, defer=0, tpol='', qpol='', xn=8, wn=8, fn=8, xpol='', wpol='', fpol='nt', hasync=1, otm=1, atm=1, kvflag_at=8, f0_at=4, sig_at=8, rchk=10, wo_at=20, boost=0, pulse=0, pulse2=0, pd=5, cap=6, prio_l=2, prio_m=0, prio_gelu=3)


def generate(**kw):
    cfg = dict(DEFAULT)
    cfg.update(kw)
    body = Gen(cfg).build()
    msgs = lint(body)
    if cfg.get("stamps"):
        body += f"; STAMPS M {cfg['stM']}\n"
    return HEADER + body + FOOTER, msgs


if __name__ == "__main__":
    out = sys.argv[1]
    kw = {}
    for arg in sys.argv[2:]:
        k, v = arg.split("=")
        try:
            kw[k] = int(v)
        except ValueError:
            try:
                kw[k] = float(v)
            except ValueError:
                kw[k] = v
    text, msgs = generate(**kw)
    for m in msgs:
        print("LINT:", m)
    open(out, "w").write(text)
    print("wrote", out, len(text), "bytes,", text.count("\n"), "lines")
```

```python
import struct
import sys

from asmlib import Asm, lint, sr, vr

NAME = "gated_mix__softmax_full_mha__glu_gated_geglu__prompt"


def f32(x):
    return "0x%08x" % struct.unpack("<I", struct.pack("<f", x))[0]


LOG2E = 1.4426950408889634

WS_KV, WS_O, WS_H, WS_G, WS_FLAG, WS_STAMP = 0x000000, 0x400000, 0x600000, 0xBC0000, 0xC00000, 0xD00000
CKV, CH, CO = WS_FLAG, WS_FLAG + 128 * 128, WS_FLAG + 256 * 128
OOB = 0x20000000

NSLOT = 4
QW, QF, PART, CNT = 98304, 131072, 139264, 157696
WOL, SEGB = 73728, 49152
WSLOT = [0, 1, 2, 3, 4, 5, 0, 1, 2, 3, 4, 5, 6, 7, 8, 0, 1, 2, 3, 4, 5, 6]
LDS_BYTES = 163840

sX, sWQ, sWO, sWG, sWU, sWD, sGW, sOUT, sDBG, sWS = 4, 8, 12, 16, 20, 24, 28, 32, 36, 40
sC, sR, sW, sT, sROT, sRB, sCB, sDEL = 44, 45, 46, 47, 48, 49, 50, 51
sONE, sPV = 71, 69
sVM = 52
sT0 = 54
sSPIN = 70
sSTAMP = 72
SIZES = {sX: 2097152, sWQ: 1572864, sWO: 524288, sWG: 1409024, sWU: 1409024, sWD: 1409024, sGW: 1024, sOUT: 2097152,
         sDBG: 256, sWS: 268435456}
KARG = {sX: 0, sWQ: 8, sWO: 16, sWG: 32, sWU: 40, sWD: 48, sGW: 56, sOUT: 64, sDBG: 72, sWS: 80}


def slot(n):
    return (n % NSLOT) * 24576


def fslot(n):
    return ((n + 1) % 3) * 24576


class Gen:
    def __init__(self, cfg):
        self.cfg = cfg
        self.a = Asm()
        self.uid = 0
        self.bg = self.hi = False

    def lab(self, base):
        self.uid += 1
        return f"L_{base}_{self.uid}"

    def clock(self):
        return "s_memtime" if self.cfg.get("stamps") == 2 else "s_memrealtime"

    def names(self, role):
        if "pad" in self.cfg:
            return ["start", self.cfg["pad"]]
        return self.cfg["st" + role].split(",")

    def stamp(self, name, role):
        if self.cfg.get("stamps") and name in self.names(role):
            n = self.names(role).index(name)
            a = self.a
            a(f"{self.clock()} {sr(sSTAMP + 2 * n, 2)}")
            a.lg.drain()

    def dump_stamps(self, is_l):
        if not self.cfg.get("stamps"):
            return
        a = self.a
        if "pad" in self.cfg:
            n = 0 if self.cfg["pad"] == "start" else 1
            top, done = self.lab("pad"), self.lab("paddone")
            if is_l:
                a("s_barrier")
            if "padx" in self.cfg:
                a(f"""s_and_b32 s{sT0}, s2, 7
                    s_cmp_eq_u32 s{sT0}, {self.cfg['padx']}
                    s_cselect_b32 s{sSTAMP + 2 * n}, s{sSTAMP + 2 * n}, 0""")
            a(f"""s_waitcnt vmcnt(0) lgkmcnt(0)
                s_cmp_eq_u32 s{sSTAMP + 2 * n}, 0
                s_cbranch_scc1 {done}""")
            a.label(top)
            a(f"""s_sleep 4
                s_memrealtime {sr(sT0, 2)}
                s_waitcnt lgkmcnt(0)
                s_sub_u32 s{sT0}, s{sT0}, s{sSTAMP + 2 * n}
                s_cmp_lt_u32 s{sT0}, 6000
                s_cbranch_scc1 {top}""")
            a.label(done)
            return
        a(f"""s_lshl_b32 s{sT0}, s2, 3
            s_add_u32 s{sT0}, s{sT0}, s{sW}
            s_lshl_b32 s{sT0}, s{sT0}, 6
            s_add_u32 s{sT0}, s{sT0}, {WS_STAMP}
            s_mov_b64 exec, 1""")
        for n in range(14):
            a(f"v_mov_b32 v0, s{sSTAMP + 2 * n}")
            a(f"buffer_store_dword v0, off, {sr(sWS, 4)}, s{sT0} offset:{4 * n}")
        a("s_mov_b64 exec, -1")

    def lane(self, v):
        self.a(f"""v_mbcnt_lo_u32_b32 v{v}, -1, 0
            v_mbcnt_hi_u32_b32 v{v}, -1, v{v}""")

    def srd(self, *regs):
        for r in regs:
            self.a(f"s_mov_b32 s{r + 2}, {SIZES[r]}\ns_mov_b32 s{r + 3}, 0x00020000")

    def kload(self, *regs):
        for r in regs:
            self.a(f"s_load_dwordx2 {sr(r, 2)}, s[0:1], {KARG[r]}")

    def chunk(self, dst, i):
        a = self.a
        if self.cfg["rot"] in (3, 4):
            a(f"""s_add_u32 s{dst}, s{sDEL}, {i & 3}
                s_and_b32 s{dst}, s{dst}, 3
                s_add_u32 s{dst}, s{dst}, s{sROT}""")
            if i & 4:
                a(f"s_xor_b32 s{dst}, s{dst}, 4")
        else:
            a(f"s_add_u32 s{dst}, s{sROT}, {i}\ns_and_b32 s{dst}, s{dst}, 7")

    def dsr(self, op, dst, n, lo, hi, imm, tag):
        reg = lo
        if imm >= 65536:
            reg, imm = hi, imm - 65536
        assert 0 <= imm < 65536 and reg is not None
        self.a(f"{op} {vr(dst, n)}, v{reg} offset:{imm}")
        self.a.lg.issue(tag)

    def poll(self, voff, soff, tmp, srd=sWS):
        a = self.a
        top, done = self.lab("poll"), self.lab("pdone")
        a(f"s_mov_b32 s{sSPIN}, 100000")
        a.label(top)
        a(f"""buffer_load_dword v{tmp}, v{voff}, {sr(srd, 4)}, {soff} offen sc1
            s_waitcnt vmcnt(0)
            v_cmp_gt_u32 vcc, 16, v{tmp}
            s_cbranch_vccz {done}
            s_sleep 8
            s_sub_u32 s{sSPIN}, s{sSPIN}, 1
            s_cmp_lg_u32 s{sSPIN}, 0
            s_cbranch_scc1 {top}""")
        a.label(done)
        a.vm.reset()

    def signal(self, soff):
        self.a(f"s_atomic_add s{sONE}, {sr(sWS, 2)}, s{soff}")

    def spoll(self, soff, need, back=None):
        a = self.a
        top, done = self.lab("spoll"), back or self.lab("sdone")
        a(f"s_mov_b32 s{sSPIN}, 200000")
        a.label(top)
        a(f"""s_mov_b32 s{sPV}, 0
            s_atomic_add s{sPV}, {sr(sWS, 2)}, s{soff} glc
            s_waitcnt lgkmcnt(0)
            s_cmp_ge_u32 s{sPV}, {need}
            s_cbranch_scc1 {done}
            s_sub_u32 s{sSPIN}, s{sSPIN}, 1
            s_cmp_lg_u32 s{sSPIN}, 0
            s_cbranch_scc1 {top}""")
        if back:
            a(f"s_branch {back}")
        else:
            a.label(done)
        a.lg.reset()

    def lds_signal(self, addr, one, off):
        a = self.a
        a(f"""s_mov_b64 exec, 1
            ds_add_u32 v{addr}, v{one} offset:{off}
            s_mov_b64 exec, -1""")
        a.lg.issue("sig")

    def lds_probe(self, addr, tmp, off):
        self.a(f"ds_read_b32 v{tmp}, v{addr} offset:{off}")
        self.a.lg.issue("probe")

    def boost(self):
        if self.bg and not self.hi:
            self.a("s_setprio 3")
            self.hi = True

    def unboost(self):
        if self.hi:
            self.a(f"s_setprio {self.cfg['prio_m']}")
            self.hi = False

    def lds_check(self, addr, tmp, off, need, nap=0):
        a = self.a
        top, done = self.lab("lspin"), self.lab("ldone")
        self.boost()
        a.lg.wait("probe")
        a(f"""v_cmp_gt_u32 vcc, {need}, v{tmp}
            s_cbranch_vccz {done}
            s_mov_b32 s{sSPIN}, 1000000""")
        a.label(top)
        if nap:
            a(f"s_sleep {nap}")
        a(f"""ds_read_b32 v{tmp}, v{addr} offset:{off}
            s_waitcnt lgkmcnt(0)
            v_cmp_gt_u32 vcc, {need}, v{tmp}
            s_cbranch_vccz {done}
            s_sub_u32 s{sSPIN}, s{sSPIN}, 1
            s_cmp_lg_u32 s{sSPIN}, 0
            s_cbranch_scc1 {top}""")
        a.label(done)

    def prologue(self):
        a = self.a
        cfg = self.cfg
        rb = cfg["rbits"]
        a("s_cmp_ge_u32 s2, 256\ns_cbranch_scc1 L_end")
        if cfg.get("stamps"):
            a(f"{self.clock()} {sr(sSTAMP, 2)}")
        self.kload(sX, sWQ, sWS)
        if cfg.get("stamps"):
            for n in range(1, 14):
                a(f"s_mov_b32 s{sSTAMP + 2 * n}, 0")
        x, j, t = sT0, sT0 + 1, sT0 + 2
        a(f"""v_lshrrev_b32 v1, 6, v0
            s_and_b32 s{x}, s2, 7
            v_readfirstlane_b32 s{sW}, v1
            s_lshr_b32 s{j}, s2, 3
            v_and_b32 v0, 63, v0
            s_and_b32 s{sR}, s{x}, {(1 << (4 - rb)) - 1}
            s_lshl_b32 s{sR}, s{sR}, {rb}
            s_and_b32 s{t}, s{j}, {(1 << rb) - 1}
            s_add_u32 s{sR}, s{sR}, s{t}
            s_lshr_b32 s{sC}, s{x}, {4 - rb}
            s_lshl_b32 s{sC}, s{sC}, {5 - rb}
            s_lshr_b32 s{t}, s{j}, {rb}
            s_add_u32 s{sC}, s{sC}, s{t}
            s_and_b32 s{sT}, s{sW}, 3""")
        if cfg["swap"]:
            a(f"s_xor_b32 s{sW}, s{sW}, 4")
        rot = cfg["rot"]
        if rot == 0:
            a(f"s_mov_b32 s{sROT}, 0")
        elif rot == 1:
            a(f"""s_mul_i32 s{sROT}, s{sC}, {cfg.get('rotc', 2)}
                s_mul_i32 s{t}, s{sR}, {cfg.get('rotr', 1)}
                s_add_u32 s{sROT}, s{sROT}, s{t}
                s_and_b32 s{sROT}, s{sROT}, 7""")
        else:
            a(f"""s_add_u32 s{sROT}, s{sC}, s{sR}
                s_and_b32 s{sROT}, s{sROT}, 1
                s_lshl_b32 s{sROT}, s{sROT}, 2""")
            if rot == 3:
                a(f"s_mov_b32 s{sDEL}, 0")
            else:
                a(f"""s_lshr_b32 s{sDEL}, s{x}, 1
                    s_lshl_b32 s{t}, s{x}, 1
                    s_add_u32 s{sDEL}, s{sDEL}, s{t}""")
        self.srd(sWS)
        a(f"""s_mov_b32 s{sONE}, 1
            s_cmp_ge_u32 s{sW}, 4
            s_cbranch_scc0 L_mwave""")

    def loader(self):
        a = self.a
        a.vm.reset()
        vX0, vX1, vKV, vQ = 8, 9, 10, 11
        sXB, sKB, sQB, sLx, sLk, sLq, sCh, sO = range(sT0, sT0 + 8)
        self.srd(sX, sWQ)
        a(f"""v_lshrrev_b32 v1, 3, v0
            v_and_b32 v2, 7, v0
            v_lshrrev_b32 v3, 4, v0
            s_lshl_b32 s{sO}, s{sT}, 5
            v_add_u32 v4, s{sO}, v1
            v_xor_b32 v5, v2, v3
            v_lshlrev_b32 v5, 4, v5
            v_lshl_add_u32 v{vX0}, v4, 10, v5
            v_xor_b32 v{vX1}, 64, v{vX0}
            v_add_u32 v{vX1}, 8192, v{vX1}
            s_lshl_b32 s{sO}, s{sT}, 4
            v_add_u32 v4, s{sO}, v1
            v_mul_u32_u24 v4, 3072, v4
            v_and_b32 v5, 1, v3
            v_lshlrev_b32 v5, 2, v5
            v_xor_b32 v5, v2, v5
            v_lshl_add_u32 v{vKV}, v5, 4, v4
            s_lshl_b32 s{sXB}, s{sR}, 17
            s_and_b32 s{sKB}, s{sC}, 1
            s_add_u32 s{sKB}, s{sKB}, 1
            s_lshl_b32 s{sKB}, s{sKB}, 10
            s_lshr_b32 s{sCh}, s{sC}, 1
            s_lshl_b32 s{sCh}, s{sCh}, 7
            s_add_u32 s{sKB}, s{sKB}, s{sCh}
            s_lshl_b32 s{sLx}, s{sT}, 12
            s_lshl_b32 s{sLk}, s{sT}, 11""")

        def issueA(i):
            B = slot(i)
            self.chunk(sCh, i)
            a(f"s_lshl_b32 s{sO}, s{sCh}, 7\ns_add_u32 s{sO}, s{sO}, s{sXB}")
            for k in range(4):
                a(f"s_add_u32 m0, s{sLx}, {B + 1024 * k}")
                if i == 0 and k == 0:
                    a("s_waitcnt lgkmcnt(0)")
                    self.stamp("karg", "L")
                else:
                    a(f"s_add_u32 s{sO}, s{sO}, 16384" if k == 2 else "s_nop 0")
                a(f"buffer_load_dwordx4 v{vX0 if k % 2 == 0 else vX1}, {sr(sX, 4)}, s{sO} offen {self.cfg['xpol'] if i < self.cfg['xn'] else ''} lds")
                a.vm.issue(("A", i))
            a(f"s_mul_i32 s{sO}, s{sCh}, 196608")
            for k in range(2):
                a(f"s_add_u32 m0, s{sLk}, {B + 16384 + 1024 * k}")
                a(f"s_add_u32 s{sO}, s{sO}, {'s%d' % sKB if k == 0 else 24576}")
                a(f"buffer_load_dwordx4 v{vKV}, {sr(sWQ, 4)}, s{sO} offen {self.cfg['wpol'] if i < self.cfg['wn'] else ''} lds")
                a.vm.issue(("A", i))

        def issueQ(lo, hi):
            for i in range(lo, hi):
                self.chunk(sCh, i)
                a(f"""s_mul_i32 s{sO}, s{sCh}, 196608
                    s_add_u32 m0, s{sLq}, {QW + 4096 * i}
                    s_add_u32 s{sO}, s{sO}, s{sQB}
                    buffer_load_dwordx4 v{vQ}, {sr(sWQ, 4)}, s{sO} offen lds""")
                a.vm.issue(("Q", 0))

        def setup2():
            a(f"""v_lshrrev_b32 v4, 2, v0
                s_lshl_b32 s{sO}, s{sT}, 4
                v_add_u32 v4, s{sO}, v4
                v_mul_u32_u24 v4, 3072, v4
                v_and_b32 v5, 3, v0
                v_lshl_add_u32 v{vQ}, v5, 4, v4
                s_lshl_b32 s{sQB}, s{sC}, 6
                s_lshl_b32 s{sLq}, s{sT}, 10
                s_mov_b32 s{sVM}, 0x0000ffff
                s_mov_b32 s{sVM + 1}, 0x0000ffff""")
            if self.cfg["tq"]:
                cb = 5 - self.cfg["rbits"]
                nl = 1 << (cb - 1)
                a(f"""v_lshrrev_b32 v4, {cb - 1}, v0
                    v_mul_u32_u24 v4, 3072, v4
                    v_and_b32 v5, {nl - 1}, v0
                    v_lshl_add_u32 v4, v5, 7, v4
                    s_lshr_b32 s{sO}, s2, 3
                    s_lshl_b32 s{sO}, s{sO}, 2
                    s_add_u32 s{sO}, s{sO}, s{sT}
                    s_mul_i32 s{sO}, s{sO}, 12288
                    s_lshr_b32 s{sCh}, s{sC}, {cb}
                    s_lshl_b32 s{sCh}, s{sCh}, {cb + 6}
                    s_add_u32 s{sO}, s{sO}, s{sCh}
                    s_mov_b32 m0, {CNT + 64}
                    s_mov_b64 exec, {(1 << (4 * nl)) - 1}
                    buffer_load_dword v4, {sr(sWQ, 4)}, s{sO} offen {self.cfg['qpol']} lds
                    s_mov_b64 exec, -1""")
                a.vm.issue("touch")
            a("s_setprio 0")
            self.attn_init()
            a(f"s_setprio {self.cfg['prio_l']}")

        la = self.cfg["la"]
        qs = [int(ch) for ch in str(self.cfg["qs"])[1:]]
        assert sum(qs) == 8
        nxt = 0
        for b in range(9):
            while nxt < 8 and nxt <= b + la and nxt - NSLOT + 2 <= b:
                issueA(nxt)
                nxt += 1
            if b == 0:
                setup2()
            if b >= 6:
                issueQ(sum(qs[:b - 6]), sum(qs[:b - 5]))
            if b == 8 and qs[3]:
                a("s_barrier")
                issueQ(8 - qs[3], 8)
            tag = ("A", b) if b < 8 else ("Q", 0)
            a.vm.wait(tag)
            self.stamp(f"{tag[0]}{tag[1]}", "L")
            a("s_barrier")

    O_, S_, Q_, KV_ = 16, 80, 112, 128
    vIDX, vKo, vVo, vFl, vQa_, vOne, vCa, vPa, vPs = 12, 13, 14, 15, 6, 7, 1, 2, 3

    def attn_init(self):
        a = self.a
        NST = self.cfg["nst"]
        assert NST == 4
        sHd, sQ, sOff, sRow, sCnt, sLd, sFl = range(sT0 + 8, sT0 + 15)
        self.sHd, self.sQ, self.sOff, self.sKr, self.sCnt, self.sLd, self.sFl = sHd, sQ, sOff, sRow, sCnt, sLd, sFl
        a(f"""s_and_b32 s{sHd}, s{sW}, 1
            s_lshr_b32 s{sQ}, s{sT}, 1
            v_lshrrev_b32 v5, 5, v0
            s_and_b32 s{sRow}, s{sR}, {self.cfg['rowmask']}
            s_add_u32 s{sRow}, s{sRow}, s{sQ}
            s_and_b32 s{sRow}, s{sRow}, 15
            s_mov_b32 s{sCnt}, {32 // NST}
            v_lshlrev_b32 v{self.vKo}, 4, v0
            v_and_b32 v{self.vVo}, 15, v0
            v_lshlrev_b32 v{self.vVo}, 4, v{self.vVo}
            v_lshl_add_u32 v{self.vVo}, v5, 8, v{self.vVo}
            s_lshl_b32 s{sLd}, s{sHd}, 12
            s_add_u32 s{sLd}, s{sLd}, {QF}
            v_add_u32 v{self.vQa_}, s{sLd}, v{self.vKo}
            s_lshl_b32 s{sLd}, s{sQ}, 11
            v_add_u32 v{self.vQa_}, s{sLd}, v{self.vQa_}
            v_mov_b32 v{self.vIDX}, 0xdddddddd
            v_mov_b32 v{self.vOne}, 1
            v_and_b32 v4, 0x1b, v0
            v_cmp_eq_u32 vcc, 16, v4
            v_mov_b32 v4, 0x3f803f80
            s_mul_i32 s{sLd}, s{sT}, 4608
            v_cndmask_b32 v4, 0, v4, vcc
            s_add_u32 s{sLd}, s{sLd}, {PART}
            v_lshl_add_u32 v{self.vPa}, v0, 4, s{sLd}
            v_lshl_add_u32 v{self.vPs}, v0, 2, s{sLd}
            s_lshl_b32 s{sLd}, s{sHd}, 2
            s_add_u32 s{sLd}, s{sLd}, {CNT + 8}
            v_mov_b32 v{self.vCa}, s{sLd}
            s_lshl_b32 s{sLd}, s{sT}, 2
            s_add_u32 s{sLd}, s{sLd}, {CNT + 32}
            v_mov_b32 v{self.vFl}, s{sLd}""")
        for st in range(NST):
            for k in range(8):
                a(f"v_mov_b32 v{self.KV_ + 12 * st + 4 + k}, v4")
        for k in range(64):
            a(f"v_mov_b32 v{self.O_ + k}, 0")

    def attn_start(self):
        a = self.a
        NST = self.cfg["nst"]
        sOff = self.sOff
        sHB, sFB, sRow, sFl = sT0, sT0 + 1, self.sKr, self.sFl
        a(f"""s_lshl_b32 s{sHB}, s{sC}, 1
            s_add_u32 s{sHB}, s{sHB}, s{self.sHd}
            s_lshl_b32 s{sHB}, s{sHB}, 17
            s_lshr_b32 s{sFB}, s{sC}, 1
            s_lshl_b32 s{sFB}, s{sFB}, 11
            s_add_u32 s{sFB}, s{sFB}, {CKV}
            s_lshl_b32 s{sOff}, s{sRow}, 13
            s_add_u32 s{sOff}, s{sOff}, s{sHB}
            s_lshl_b32 s{sFl}, s{sRow}, 7
            s_add_u32 s{sFl}, s{sFl}, s{sFB}""")
        self.spoll(sFl, 8)
        self.stamp("KVpoll", "L")
        for st in range(NST - 1):
            b = self.KV_ + 12 * st
            a(f"""buffer_load_dwordx4 {vr(b, 4)}, v{self.vKo}, {sr(sWS, 4)}, s{sOff} offen sc1
                s_mov_b64 exec, {sr(sVM, 2)}
                buffer_load_dwordx4 {vr(b + 4, 4)}, v{self.vVo}, {sr(sWS, 4)}, s{sOff} offen offset:1024 sc1
                buffer_load_dwordx4 {vr(b + 8, 4)}, v{self.vVo}, {sr(sWS, 4)}, s{sOff} offen offset:1536 sc1
                s_mov_b64 exec, -1
                s_add_u32 s{sOff}, s{sOff}, 2048""")
        self.stamp("KViss", "L")
        a(f"v_mov_b32 v5, {CNT}")
        a.lg.reset()
        self.lds_signal(5, self.vOne, 20)
        self.lds_probe(5, 4, 16)
        self.lds_check(5, 4, 16, 16)
        a(f"v_xor_b32 v4, 0x800, v{self.vQa_}")
        self.stamp("Qrdy", "L")
        for q in range(4):
            a(f"ds_read_b128 {vr(self.Q_ + 4 * q, 4)}, v{self.vQa_ if q >= 2 else 4} offset:{1024 * (q & 1)}")
        a(f"""s_add_u32 s{sRow}, s{sRow}, 2
            s_and_b32 s{sRow}, s{sRow}, 15
            s_lshl_b32 s{sFl}, s{sRow}, 7
            s_add_u32 s{sFl}, s{sFl}, s{sFB}
            s_mov_b32 s{sPV}, 0
            s_waitcnt lgkmcnt(0)
            s_mov_b64 exec, 1
            ds_add_u32 v5, v{self.vOne} offset:24
            s_mov_b64 exec, -1
            s_atomic_add s{sPV}, {sr(sWS, 2)}, s{sFl} glc
            s_waitcnt vmcnt({3 * (NST - 2)})
            v_mfma_f32_32x32x16_bf16 {vr(self.S_, 16)}, {vr(self.KV_, 4)}, {vr(self.Q_, 4)}, 0
            s_nop 11""")

    def attn_loop(self):
        a = self.a
        NST = self.cfg["nst"]
        NT = 4 * NST
        O, S, Q, KV = self.O_, self.S_, self.Q_, self.KV_
        sOff, sRow, sCnt, sFl, sHB, sFB = self.sOff, self.sKr, self.sCnt, self.sFl, sT0, sT0 + 1
        sm = lambda st, qt, half, n: (f"v_smfmac_f32_32x32x32_bf16 {vr(O + 16 * qt, 16)}, {vr(KV + 12 * st + 4 + 4 * half, 4)}, "
                                      f"{vr(S + 16 * (n & 1) + 8 * half, 8)}, v{self.vIDX}")
        extra = {
            (2, 0): f"s_lshl_b32 s{sOff}, s{sRow}, 13\ns_add_u32 s{sOff}, s{sOff}, s{sHB}",
            (2, 2): f"s_cmp_eq_u32 s{sCnt}, 1\ns_cselect_b32 s{sOff}, {OOB}, s{sOff}",
            (3, 1): "s_waitcnt lgkmcnt(0)",
            (3, 2): f"s_cmp_lt_u32 s{sPV}, 8\ns_cbranch_scc1 L_kv_wait\nL_kv_ok:",
            (6, 0): f"s_add_u32 s{sRow}, s{sRow}, 2\ns_and_b32 s{sRow}, s{sRow}, 15",
            (6, 2): f"s_lshl_b32 s{sFl}, s{sRow}, 7\ns_add_u32 s{sFl}, s{sFl}, s{sFB}",
            (10, 0): f"s_mov_b32 s{sPV}, 0\ns_atomic_add s{sPV}, {sr(sWS, 2)}, s{sFl} glc",
            (NT - 3, 0): f"s_sub_u32 s{sCnt}, s{sCnt}, 1\ns_cmp_eq_u32 s{sCnt}, 0",
        }

        if self.cfg["chk"]:
            it, n0 = divmod(self.cfg["chk"], NT)
            assert n0 in (1, 4, 5, 8, 9, 12) and (n0, 0) not in extra
            extra[(n0, 0)] = f"s_cmp_eq_u32 s{sCnt}, {8 - it}\ns_cbranch_scc1 L_m_wait\nL_m_ok:"

        def ex(n, k):
            for l in extra.get((n, k), "").split("\n"):
                if l.endswith(":"):
                    a.label(l[:-1])
                else:
                    a(l)

        a(f"v_exp_f32 v{S}, v{S}\nv_exp_f32 v{S + 1}, v{S + 1}")
        a.raw(".p2align 6")
        a.label("L_attn")
        for n in range(NT + 1):
            st, qt = divmod(n, 4)
            cur = S + 16 * (n & 1)
            E = lambda lo, hi: [a(f"v_exp_f32 v{cur + k}, v{cur + k}") for k in range(lo, hi)]
            pst, pqt = divmod((n - 1) % NT, 4)
            nst, nqt = divmod((n + 1) % NT, 4)
            ld = KV + 12 * ((st - 1) % NST)
            if n:
                E(0, 2)
                a(sm(pst, pqt, 1, n - 1))
            if n == NT:
                break
            if n == NT - 2:
                a("s_cbranch_scc1 L_attn_tail")
            ex(n, 0)
            if qt == 3:
                a(f"s_waitcnt vmcnt({3 * (NST - 2)})")
            E(2, 5)
            a(f"v_mfma_f32_32x32x16_bf16 {vr(S + 16 * ((n + 1) & 1), 16)}, {vr(KV + 12 * nst, 4)}, {vr(Q + 4 * nqt, 4)}, 0")
            ex(n, 1)
            if qt == 0 and not self.cfg["k1"]:
                a(f"buffer_load_dwordx4 {vr(ld, 4)}, v{self.vKo}, {sr(sWS, 4)}, s{sOff} offen sc1")
            if qt == 2 and st:
                a(f"s_add_u32 s{sOff}, s{sOff}, 2048")
            E(5, 10)
            a(sm(st, qt, 0, n))
            ex(n, 2)
            if qt == 0 and self.cfg["k1"]:
                a(f"buffer_load_dwordx4 {vr(ld, 4)}, v{self.vKo}, {sr(sWS, 4)}, s{sOff} offen sc1")
            if qt == 1:
                a(f"""s_mov_b64 exec, {sr(sVM, 2)}
                    buffer_load_dwordx4 {vr(ld + 4, 4)}, v{self.vVo}, {sr(sWS, 4)}, s{sOff} offen offset:1024 sc1
                    buffer_load_dwordx4 {vr(ld + 8, 4)}, v{self.vVo}, {sr(sWS, 4)}, s{sOff} offen offset:1536 sc1
                    s_mov_b64 exec, -1""")
            E(10, 16)
        a("s_branch L_attn")
        self.sm = sm

    def attn_finish(self):
        a = self.a
        O, S, Q, KV, T, sm = self.O_, self.S_, self.Q_, self.KV_, 192, self.sm
        sA, sF, m = sT0, sT0 + 1, sT0 + 2
        E = lambda n, lo, hi: [a(f"v_exp_f32 v{S + 16 * (n & 1) + k}, v{S + 16 * (n & 1) + k}") for k in range(lo, hi)]

        def give(q):
            o = O + 16 * q
            a(f"""ds_write_b128 v{self.vPa}, {vr(o, 4)} offset:{2304 * q}
                ds_write_b128 v{self.vPa}, {vr(o + 4, 4)} offset:{2304 * q + 1024}
                ds_write_b32 v{self.vPs}, v{o + 8} offset:{2304 * q + 2048}""")

        a.label("L_attn_tail")
        a.lg.reset()
        a("s_waitcnt lgkmcnt(0)")
        give(0)
        E(14, 2, 5)
        a(f"v_mfma_f32_32x32x16_bf16 {vr(S + 16, 16)}, {vr(KV + 36, 4)}, {vr(Q + 12, 4)}, 0")
        a(f"s_lshl_b32 s{sF}, s{sR}, 1")
        E(14, 5, 10)
        a(sm(3, 2, 0, 14))
        give(1)
        if self.cfg["rel"] == 0:
            a(f"ds_write_b32 v{self.vFl}, v{self.vOne}")
        self.lds_signal(self.vCa, self.vOne, 0)
        E(14, 10, 16)
        E(15, 0, 2)
        a(sm(3, 2, 1, 14))
        a(f"""s_add_u32 s{sF}, s{sF}, s{self.sQ}
            s_lshl_b32 s{sA}, s{sF}, 5
            s_add_u32 s{sA}, s{sA}, s{sC}
            s_lshl_b32 s{sA}, s{sA}, 1
            s_add_u32 s{sA}, s{sA}, s{self.sHd}
            s_mul_i32 s{m}, s{self.sQ}, -18432
            s_add_u32 s{m}, s{m}, 9216""")
        E(15, 2, 10)
        a(sm(3, 3, 0, 15))
        a(f"""s_lshl_b32 s{sA}, s{sA}, 10
            s_add_u32 s{sA}, s{sA}, {WS_O}
            v_add_u32 v{self.vPa}, s{m}, v{self.vPa}
            v_add_u32 v{self.vPs}, s{m}, v{self.vPs}""")
        self.lds_probe(self.vCa, 4, 0)

        def fetch():
            for q in range(2):
                a(f"""ds_read_b32 v{T + 12 * q + 8}, v{self.vPs} offset:{2304 * q + 2048}
                    ds_read_b128 {vr(T + 12 * q, 4)}, v{self.vPa} offset:{2304 * q}
                    ds_read_b128 {vr(T + 12 * q + 4, 4)}, v{self.vPa} offset:{2304 * q + 1024}""")

        if self.cfg["lfast"]:
            fetch()
        E(15, 10, 16)
        a(f"""s_lshl_b32 s{sF}, s{sF}, 2
            s_lshr_b32 s{m}, s{sC}, 2""")
        a(sm(3, 3, 1, 15))
        a(f"""s_add_u32 s{sF}, s{sF}, s{m}
            s_lshl_b32 s{sF}, s{sF}, 7
            s_add_u32 s{sF}, s{sF}, {CO}""")
        self.stamp("attn1", "L")
        have = self.lab("have")
        if self.cfg["lfast"]:
            a(f"s_waitcnt lgkmcnt(0)\nv_cmp_gt_u32 vcc, 2, v4")
        if self.cfg["rel"] == 1:
            a(f"ds_write_b32 v{self.vFl}, v{self.vOne}")
            a.lg.issue("rel")
        if self.cfg["lfast"]:
            a(f"s_cbranch_vccz {have}")
            a.lg.reset()
        self.lds_check(self.vCa, 4, 0, 2)
        self.stamp("pair", "L")
        fetch()
        a("s_waitcnt lgkmcnt(3)")
        a.label(have)
        for q in range(2):
            o, t = O + 32 + 16 * q, T + 12 * q
            if q:
                a("s_waitcnt lgkmcnt(0)")
            a(f"v_add_f32 v{o + 8}, v{o + 8}, v{t + 8}")
            for k in range(8):
                a(f"v_add_f32 v{o + k}, v{o + k}, v{t + k}")
            self.normalise(q)
        if self.cfg["rel"] == 2:
            a(f"ds_write_b32 v{self.vFl}, v{self.vOne}")
        self.stamp("Ost", "L")
        lo, hi = self.cfg.get("l_lo", 2.0 ** -24), self.cfg.get("l_hi", 2.0 ** 64)
        for q in range(2):
            o, t = O + 32 + 16 * q, T + 12 * q
            a(f"""v_pk_add_f32 {vr(t, 2)}, {vr(o, 2)}, {vr(o + 2, 2)}
                v_pk_add_f32 {vr(t + 2, 2)}, {vr(o + 4, 2)}, {vr(o + 6, 2)}
                v_cmp_lt_f32 vcc, {f32(lo)}, v{o + 8}
                v_pk_add_f32 {vr(t, 2)}, {vr(t, 2)}, {vr(t + 2, 2)}
                s_and_b64 {sr(m, 2)}, {'vcc' if q == 0 else sr(m, 2)}, vcc
                v_cmp_gt_f32 vcc, {f32(hi)}, v{o + 8}
                v_add_f32 v{t}, v{t}, v{t + 1}
                s_and_b64 {sr(m, 2)}, {sr(m, 2)}, vcc
                v_sub_f32 v{t}, v{t}, v{t}
                v_cmp_eq_f32 vcc, 0, v{t}
                s_and_b64 {sr(m, 2)}, {sr(m, 2)}, vcc""")
        a(f"s_cmp_eq_u64 {sr(m, 2)}, -1\ns_cbranch_scc0 L_fallback")
        a.label("L_publish")
        a("s_waitcnt vmcnt(0)")
        self.signal(sF)

    def normalise(self, q):
        a = self.a
        o, d = self.O_ + 32 + 16 * q, 224 + 4 * q
        a(f"v_rcp_f32 v{o + 9}, v{o + 8}\ns_add_u32 s{sT0 + 4}, s{sT0}, {32768 * q}")
        for k in range(8):
            a(f"v_mul_f32 v{o + k}, v{o + k}, v{o + 9}")
        for k in range(4):
            a(f"v_cvt_pk_bf16_f32 v{d + k}, v{o + 2 * k}, v{o + 2 * k + 1}")
        a(f"buffer_store_dwordx4 {vr(d, 4)}, v{self.vKo}, {sr(sWS, 4)}, s{sT0 + 4} offen sc1")

    def fallback(self):
        a = self.a
        S, M, K, V, vMx = self.S_, self.S_ + 16, self.KV_, self.KV_ + 4, 4
        sO, sN = sT0 + 2, sT0 + 3
        a.label("L_kv_wait")
        self.spoll(self.sFl, 8, "L_kv_ok")
        if self.cfg["chk"]:
            a.label("L_m_wait")
            a.lg.reset()
            self.lds_probe(5, 4, 0)
            self.lds_check(5, 4, 0, self.cfg["chk_need"], nap=1)
            a("s_branch L_m_ok")
        a.label("L_fallback")
        a("s_waitcnt vmcnt(0)")
        for q in range(2):
            O, Q = self.O_ + 32 + 16 * q, self.Q_ + 8 + 4 * q
            a(f"""v_mov_b32 v{vMx}, 0xff800000
                s_lshl_b32 s{sO}, s{sC}, 1
                s_add_u32 s{sO}, s{sO}, s{self.sHd}
                s_lshl_b32 s{sO}, s{sO}, 17
                s_mov_b32 s{sN}, 64""")
            a.label(f"L_fb_max{q}")
            a(f"""buffer_load_dwordx4 {vr(K, 4)}, v{self.vKo}, {sr(sWS, 4)}, s{sO} offen sc1
                s_waitcnt vmcnt(0)
                v_mfma_f32_32x32x16_bf16 {vr(S, 16)}, {vr(K, 4)}, {vr(Q, 4)}, 0
                s_nop 11""")
            for k in range(8):
                a(f"v_max3_f32 v{vMx}, v{S + 2 * k}, v{S + 2 * k + 1}, v{vMx}")
            a(f"""s_add_u32 s{sO}, s{sO}, 2048
                s_sub_u32 s{sN}, s{sN}, 1
                s_cmp_lg_u32 s{sN}, 0
                s_cbranch_scc1 L_fb_max{q}
                v_mov_b32 v{M}, v{vMx}
                s_nop 1
                v_permlane32_swap_b32 v{vMx}, v{M}
                s_nop 1
                v_max_f32 v{vMx}, v{vMx}, v{M}
                s_sub_u32 s{sO}, s{sO}, 131072
                s_mov_b32 s{sN}, 64""")
            for k in range(16):
                a(f"v_sub_f32 v{M + k}, 0, v{vMx}\nv_mov_b32 v{O + k}, 0")
            a.label(f"L_fb_sum{q}")
            a(f"""buffer_load_dwordx4 {vr(K, 4)}, v{self.vKo}, {sr(sWS, 4)}, s{sO} offen sc1
                s_mov_b64 exec, {sr(sVM, 2)}
                buffer_load_dwordx4 {vr(V, 4)}, v{self.vVo}, {sr(sWS, 4)}, s{sO} offen offset:1024 sc1
                buffer_load_dwordx4 {vr(V + 4, 4)}, v{self.vVo}, {sr(sWS, 4)}, s{sO} offen offset:1536 sc1
                s_mov_b64 exec, -1
                s_waitcnt vmcnt(0)
                v_mfma_f32_32x32x16_bf16 {vr(S, 16)}, {vr(K, 4)}, {vr(Q, 4)}, {vr(M, 16)}
                s_nop 11""")
            for k in range(16):
                a(f"v_exp_f32 v{S + k}, v{S + k}")
            a(f"""s_nop 1
                v_smfmac_f32_32x32x32_bf16 {vr(O, 16)}, {vr(V, 4)}, {vr(S, 8)}, v{self.vIDX}
                v_smfmac_f32_32x32x32_bf16 {vr(O, 16)}, {vr(V + 4, 4)}, {vr(S + 8, 8)}, v{self.vIDX}
                s_nop 7
                s_add_u32 s{sO}, s{sO}, 2048
                s_sub_u32 s{sN}, s{sN}, 1
                s_cmp_lg_u32 s{sN}, 0
                s_cbranch_scc1 L_fb_sum{q}
                s_nop 3""")
            self.normalise(q)
        a("s_branch L_publish")

    XR, ACC, WS_ = 128, 32, 8
    vFlo, vD, vF, vCnt, v1_, vTmp = 0, 1, 2, 5, 6, 7

    def m_setup(self):
        a = self.a
        self.vXA, self.vXAh, self.vWk, self.vWkh, self.vQa, self.vST, self.vGo, self.vQFa, self.vGa = 80, 84, 88, 90, 92, 93, 94, 95, 96
        self.stamp("mjmp", "M")
        self.kload(sDBG, sWG, sWU, sWD, sWO, sOUT, sGW)
        self.srd(sDBG, sWG, sWU, sWD, sWO, sOUT, sGW)
        skip = self.lab("noreset")
        a(f"""s_lshr_b32 s{sT0 + 3}, s2, 5
            s_or_b32 s{sT0 + 3}, s{sT0 + 3}, s{sW}
            s_cmp_lg_u32 s{sT0 + 3}, 0
            s_cbranch_scc1 {skip}
            s_mul_i32 s{sT0 + 3}, s2, 1536
            s_add_u32 s{sT0 + 3}, s{sT0 + 3}, {WS_FLAG}
            s_mov_b32 s{sPV}, 0
            s_waitcnt lgkmcnt(0)""")
        for k in range(12):
            a(f"s_atomic_and s{sPV}, {sr(sWS, 2)}, s{sT0 + 3}\ns_add_u32 s{sT0 + 3}, s{sT0 + 3}, 128")
        a.label(skip)
        a(f"""s_lshl_b32 s{sRB}, s{sT0}, 2
            s_and_b32 s{sT0 + 2}, s{sT0 + 1}, 3
            s_add_u32 s{sRB}, s{sRB}, s{sT0 + 2}
            s_lshr_b32 s{sCB}, s{sT0 + 1}, 2
            v_and_b32 v16, 31, v0
            v_lshrrev_b32 v17, 5, v0
            v_bfe_u32 v18, v0, 1, 3
            v_xor_b32 v18, v18, v17
            s_lshl_b32 s{sT0}, s{sT}, 12
            v_lshlrev_b32 v19, 7, v16
            v_lshl_add_u32 v19, v18, 4, v19
            v_add_u32 v{self.vXA}, s{sT0}, v19""")
        for s in range(1, 4):
            a(f"v_xor_b32 v{self.vXA + s}, {32 * s}, v{self.vXA}")
        for s in range(4):
            a(f"v_add_u32 v{self.vXAh + s}, 0x10000, v{self.vXA + s}")
        a(f"""v_bfe_u32 v18, v0, 2, 2
            v_lshl_add_u32 v18, v17, 3, v18
            v_bfe_u32 v19, v0, 4, 1
            v_and_b32 v20, 3, v0
            v_lshlrev_b32 v20, 3, v20
            v_lshl_add_u32 v20, v19, 5, v20
            v_bfe_u32 v21, v0, 3, 1
            v_lshl_add_u32 v22, v18, 7, v20
            v_lshl_add_u32 v{self.vWk}, v21, 6, v22
            v_xor_b32 v{self.vWk + 1}, 64, v{self.vWk}
            v_add_u32 v{self.vWkh}, 0x10000, v{self.vWk}
            v_add_u32 v{self.vWkh + 1}, 0x10000, v{self.vWk + 1}
            v_lshl_add_u32 v{self.vQa}, v18, 6, v20
            v_add_u32 v{self.vQa}, {QW}, v{self.vQa}
            s_lshl_b32 s{sT0}, s{sT}, 10
            s_add_u32 s{sT0}, s{sT0}, {QF}
            v_lshl_add_u32 v{self.vQFa}, v0, 4, s{sT0}
            v_mul_u32_u24 v22, 192, v18
            v_and_b32 v23, 0x33, v0
            v_bfe_u32 v25, v0, 2, 1
            v_lshl_add_u32 v23, v25, 3, v23
            v_lshl_add_u32 v23, v21, 2, v23
            v_lshlrev_b32 v23, 4, v23
            v_and_b32 v24, 15, v0
            v_lshlrev_b32 v{self.vGa}, 7, v17
            v_lshlrev_b32 v24, 4, v24
            v_lshl_add_u32 v24, v17, 8, v24
            v_lshl_add_u32 v24, v19, 17, v24
            v_add_u32 v24, 1024, v24
            v_lshlrev_b32 v26, 4, v0
            s_lshl_b32 s{sT0}, s{sT}, 4""")
        for k in range(3):
            a(f"""v_add_u32 v27, {64 * k}, v0
                v_mul_u32_u24 v28, 2731, v27
                v_lshrrev_b32 v28, 15, v28
                v_mul_u32_u24 v29, 12, v28
                v_sub_u32 v29, v27, v29
                v_add_u32 v28, s{sT0}, v28
                v_mul_u32_u24 v28, 2752, v28
                v_lshl_add_u32 v{self.vF + k}, v29, 4, v28""")
        a(f"""v_add_u32 v{self.vFlo}, v22, v20
            v_add_u32 v{self.vFlo}, {fslot(0)}, v{self.vFlo}
            v_bfe_u32 v20, v26, 4, 3
            v_lshlrev_b32 v22, 2, v19
            v_xor_b32 v20, v20, v22
            v_lshlrev_b32 v20, 4, v20
            v_lshrrev_b32 v22, 7, v26
            v_lshl_add_u32 v{self.vD}, v22, 10, v20
            v_mov_b32 v{self.vCnt}, {CNT}
            v_lshl_add_u32 v{self.v1_}, v26, 3, 4""")
        for i in range(4):
            a(f"v_mov_b32 v{100 + i}, 0")
        a(f"ds_write_b128 v{self.vCnt}, v[100:103]\nds_write_b128 v{self.vCnt}, v[100:103] offset:16\nds_write_b128 v{self.vCnt}, v[100:103] offset:32\ns_waitcnt lgkmcnt(0)")
        skip = self.lab("nogo")
        a(f"""s_lshr_b32 s{sT0}, s2, 5
            s_or_b32 s{sT0}, s{sT0}, s{sW}
            s_cmp_lg_u32 s{sT0}, 0
            s_cbranch_scc1 {skip}
            s_and_b32 s{sT0}, s2, 1
            s_lshl_b32 s{sT0}, s{sT0}, 7
            s_atomic_add s{sONE}, {sr(sDBG, 2)}, s{sT0}
            s_waitcnt lgkmcnt(0)""")
        a.label(skip)

    def pass_a(self, isv):
        a = self.a
        a.lg.reset()
        a.vm.reset()
        a(f"v_mov_b32 v{self.vST}, v{24 if isv else 23}")
        XR, ACC, W = self.XR, self.ACC, self.WS_
        sB = sT0 + 2
        atm = self.cfg["atm"]
        wr = lambda g: 104 if (g == 31 and atm) else W + 8 * (g % 3)

        def reads(g):
            i, s = divmod(g, 4)
            B = slot(i)
            self.dsr("ds_read_b128", XR + 4 * g, 4, self.vXA + s, self.vXAh + s, B, ("x", g))
            for ct in range(2):
                for u in range(2):
                    self.dsr("ds_read_b64_tr_b16", wr(g) + 4 * ct + 2 * u, 2, self.vWk + ct, self.vWkh + ct,
                             B + 16384 + (16 * s + 4 * u) * 128, ("w", g, ct))

        def comp(g, cts=(0, 1)):
            for ct in cts:
                a.lg.wait(("x", g), ("w", g, ct))
                wf, xf = vr(wr(g) + 4 * ct, 4), vr(XR + 4 * g, 4)
                d = vr(ACC + 16 * ct, 16)
                A, Bm = (xf, wf) if isv else (wf, xf)
                a(f"v_mfma_f32_32x32x16_bf16 {d}, {A}, {Bm}, {d if g else 0}")

        def kv_store(ct, q):
            d = 112 + 8 * ct + 4 * q
            for k in range(4):
                s = ACC + 16 * ct + 8 * q + 2 * k
                a(f"v_cvt_pk_bf16_f32 v{d + k}, v{s}, v{s + 1}")
            if isv:
                a(f"buffer_store_dwordx4 {vr(d, 4)}, v{self.vST}, {sr(sWS, 4)}, s{sB} offen offset:{512 * q} sc1")
                if q == 1 and ct == 0:
                    a(f"s_add_u32 s{sB}, s{sB}, 262144")
            else:
                a(f"buffer_store_dwordx4 {vr(d, 4)}, v{self.vST}, {sr(sWS, 4)}, s{sB} offen sc1")
                a(f"s_add_u32 s{sB}, s{sB}, 131072")

        a(f"""s_lshr_b32 s{sB}, s{sC}, 1
            s_lshl_b32 s{sB}, s{sB}, 19
            s_lshl_b32 s{sB + 1}, s{sR}, 2
            s_add_u32 s{sB + 1}, s{sB + 1}, s{sT}
            s_lshl_b32 s{sB + 1}, s{sB + 1}, 11
            s_add_u32 s{sB}, s{sB}, s{sB + 1}""")
        self.stamp("mrdy", "M")
        for i in range(8):
            g0 = 4 * i
            if i:
                a.lg.drain()
            if i == 7 and atm:
                comp(27)
                a("s_barrier")
                for g in range(28, 31):
                    reads(g)
                comp(28, (0,))
                reads(31)
                for g in range(29, 32):
                    comp(g, (0,))
                comp(28, (1,))
                a("s_nop 5")
                comp(29, (1,))
                a("s_nop 3")
                kv_store(0, 0)
                comp(30, (1,))
                comp(31, (1,))
                kv_store(0, 1)
                a("s_nop 5")
                kv_store(1, 0)
                kv_store(1, 1)
                break
            a("s_barrier")
            if i == 0:
                self.stamp("BA0", "M")
            reads(g0)
            reads(g0 + 1)
            if i:
                comp(g0 - 1)
            reads(g0 + 2)
            if i == 5:
                a(f"buffer_load_dword v{self.vGo}, v{self.vGa}, {sr(sDBG, 4)}, 0 offen sc1")
            comp(g0)
            reads(g0 + 3)
            comp(g0 + 1)
            comp(g0 + 2)
        if not atm:
            comp(31)
            a("s_nop 10")
            for k in range(4):
                kv_store(k >> 1, k & 1)
        self.stamp("KVst", "M")

    def kv_flag(self):
        a = self.a
        ok = self.lab("go")
        a(f"""s_lshr_b32 s{sT0}, s{sC}, 1
            s_lshl_b32 s{sT0}, s{sT0}, 4
            s_add_u32 s{sT0}, s{sT0}, s{sR}
            s_lshl_b32 s{sT0}, s{sT0}, 7
            s_add_u32 s{sT0}, s{sT0}, {CKV}
            s_waitcnt vmcnt({4 + len(a.vm.q)})
            v_cmp_gt_u32 vcc, 16, v{self.vGo}
            s_cbranch_vccz {ok}""")
        q = list(a.vm.q)
        self.poll(self.vGa, "0", self.vGo, sDBG)
        a.vm.q = q
        a.label(ok)

    def issue_f(self, i):
        a = self.a
        sCh, sO, sFB, sLf = sT0 + 4, sT0 + 5, sT0 + 6, sT0 + 7
        if i == 0:
            a(f"s_mul_i32 s{sFB}, s{sC}, 192\ns_mul_i32 s{sLf}, s{sT}, 3072")
        self.chunk(sCh, i)
        a(f"s_mul_i32 s{sO}, s{sCh}, 176128\ns_add_u32 s{sO}, s{sO}, s{sFB}")
        for m in range(2):
            for k in range(3):
                a(f"s_add_u32 m0, s{sLf}, {fslot(i) + 12288 * m + 1024 * k}\ns_nop 0")
                a(f"buffer_load_dwordx4 v{self.vF + k}, {sr(sWG if m == 0 else sWU, 4)}, s{sO} offen {self.cfg['fpol'] if i < self.cfg['fn'] else ''} lds")
                a.vm.issue(("F", i))

    def touch(self, i):
        a = self.a
        sA = sT0 + 8
        a(f"""s_lshr_b32 s{sA}, s2, 3
            s_lshl_b32 s{sA}, s{sA}, 2
            s_add_u32 s{sA}, s{sA}, s{sT}
            s_mul_i32 s{sA}, s{sA}, 11008
            s_add_u32 s{sA}, s{sA}, {2048 * i}
            s_mov_b32 m0, {CNT + 64}
            s_mov_b64 exec, {'0x3f' if i == 5 else '0xffff'}
            buffer_load_dword v{self.v1_}, {sr(sWD, 4)}, s{sA} offen lds
            s_mov_b64 exec, -1""")
        a.vm.issue("touch")

    def issue_wo(self, lo, hi):
        a = self.a
        sA, sL = sT0 + 8, sT0 + 9
        a(f"""s_lshl_b32 s{sA}, s{sT}, 17
            s_lshl_b32 s{sL}, s{sCB}, 7
            s_add_u32 s{sA}, s{sA}, s{sL}
            s_lshl_b32 s{sL}, s{sT}, 14""")
        for k in range(lo, hi):
            a(f"""s_add_u32 m0, s{sL}, {WOL + 1024 * k}
                s_add_u32 s{sA}, s{sA}, {8192 * (k if k == lo else 1)}
                buffer_load_dwordx4 v{self.vD}, {sr(sWO, 4)}, s{sA} offen lds""")
            a.vm.issue("wo")

    def pass_q(self):
        a = self.a
        XR, W, QACC = self.XR, self.WS_, 64
        a.lg.reset()
        a.vm.reset()
        flag_at, f0_at = self.cfg["kvflag_at"], self.cfg["f0_at"]

        def reads(g):
            for u in range(2):
                self.dsr("ds_read_b64_tr_b16", W + 4 * (g % 6) + 2 * u, 2, self.vQa, None, (16 * g + 4 * u) * 64, g)

        def hooks(j):
            if j == flag_at:
                if a.vm.q:
                    a(f"s_cmp_eq_u32 s{sC}, 15\ns_cbranch_scc0 L_kvw\ns_waitcnt vmcnt(0)")
                    a.label("L_kvw")
                a(f"s_waitcnt vmcnt({len(a.vm.q)})")
                self.stamp("KVack", "M")
                self.signal(sT0)
                self.stamp("KVflag", "M")
            if j == f0_at:
                skip = self.lab("nof0")
                a(f"s_cmp_eq_u32 s{sC}, 15\ns_cbranch_scc1 {skip}")
                self.issue_f(0)
                a.label(skip)
            if j == self.cfg["f1_at"]:
                skip = self.lab("nof1")
                a(f"s_cmp_eq_u32 s{sC}, 15\ns_cbranch_scc1 {skip}")
                self.issue_f(1)
                a.label(skip)

        if self.cfg["qs"] % 10:
            a("s_barrier")
        self.kv_flag()
        hooks(-2)
        hooks(-1)
        self.stamp("F0iss", "M")
        a("s_barrier")
        self.stamp("BQ", "M")
        for g in range(6):
            reads(g)
        nxt = 6
        for g in range(32):
            a.lg.wait(g)
            d = vr(QACC, 16)
            a(f"v_mfma_f32_32x32x16_bf16 {d}, {vr(W + 4 * (g % 6), 4)}, {vr(XR + 4 * g, 4)}, {d if g else 0}")
            if nxt < 32:
                reads(nxt)
                nxt += 1
            hooks(g)
        a(f"v_mov_b32 v98, {f32(0.25 * LOG2E)}\ns_nop 10")
        for k in range(8):
            a(f"v_pk_mul_f32 {vr(QACC + 2 * k, 2)}, {vr(QACC + 2 * k, 2)}, v[98:99] op_sel_hi:[1,0]")
        for hd in range(2):
            for k in range(4 * hd, 4 * hd + 4):
                a(f"v_cvt_pk_bf16_f32 v{QACC + k}, v{QACC + 2 * k}, v{QACC + 2 * k + 1}")
            a(f"ds_write_b128 v{self.vQFa}, {vr(QACC + 4 * hd, 4)} offset:{4096 * hd}")
        self.lds_signal(self.vCnt, self.v1_, 16)
        self.stamp("Qdone", "M")
        hooks(32)

    def pass_f(self):
        a = self.a
        XR, ACC, W = self.XR, self.ACC, self.WS_
        N, sig, gat, rchk = 192, self.cfg["sig_at"], self.cfg["gate_at"], self.cfg["rchk"]

        def reads(j):
            g, t = divmod(j, 6)
            i, s = divmod(g, 4)
            if j % 24 == 0 and i:
                self.boost()
                a(f"v_add_u32 v{self.vFlo}, {(fslot(i) - fslot(i - 1)) & 0xffffffff}, v{self.vFlo}")
            for u in range(2):
                self.dsr("ds_read_b64_tr_b16", W + 4 * (j % 6) + 2 * u, 2, self.vFlo, None,
                         12288 * (t & 1) + (16 * s + 4 * u) * 192 + 64 * (t >> 1), j)

        def landed(i):
            a.vm.wait(("F", i))
            self.lds_signal(self.vCnt, self.v1_, 0)
            self.boost()

        self.bg = bool(self.cfg["boost"])
        if gat < 0:
            self.lds_probe(self.vCnt, self.vTmp, 20)
            self.lds_check(self.vCnt, self.vTmp, 20, 4)
            self.issue_f(1)
        landed(0)
        self.lds_probe(self.vCnt, self.vTmp, 0)
        self.lds_check(self.vCnt, self.vTmp, 0, 16)
        self.stamp("F0", "M")
        for j in range(6):
            reads(j)
        for j in range(N):
            g, t = divmod(j, 6)
            i, jj = divmod(j, 24)
            if self.cfg["pulse"] and j % self.cfg["pulse"] == 0:
                self.boost()
            a.lg.wait(j)
            d = vr(ACC + 16 * t, 16)
            a(f"v_mfma_f32_32x32x16_bf16 {d}, {vr(W + 4 * (j % 6), 4)}, {vr(XR + 4 * g, 4)}, {d if g else 0}")
            self.unboost()
            if jj == 23:
                self.stamp(f"f{i}", "M")
            if j == gat - 2:
                self.lds_probe(self.vCnt, self.vTmp, 20)
            if j == gat:
                self.lds_check(self.vCnt, self.vTmp, 20, 4)
                self.issue_f(1 if self.cfg["f1_at"] > 32 else 2)
            if j == 20:
                self.lds_probe(self.vCnt, self.vTmp, 24)
            if j == 22:
                self.lds_check(self.vCnt, self.vTmp, 24, 4)
            if 1 <= i < 6:
                if jj == 0:
                    self.lds_signal(self.vCnt, self.v1_, 28)
                if jj == rchk - 2:
                    self.lds_probe(self.vCnt, self.vTmp, 28)
                if jj == rchk:
                    self.lds_check(self.vCnt, self.vTmp, 28, 16 * i)
                    self.issue_f(i + 2)
            if i == 7:
                if jj == 0:
                    self.lds_signal(self.vCnt, self.v1_, 28)
                    self.ffn2_scalars()
                if jj == rchk - 2:
                    self.lds_probe(self.vCnt, self.vTmp, 28)
                if jj == rchk:
                    self.lds_check(self.vCnt, self.vTmp, 28, 96)
                    a(f"v_add_u32 v{self.vD2}, 7168, v{self.vD}")
                    a.vm.wait("wo")
                if jj >= rchk and (jj - rchk) % 2 == 0 and jj - rchk < 12:
                    self.issue_w((jj - rchk) // 2)
            if i < 7:
                if jj == (sig if i else self.cfg["sig0"]):
                    landed(i + 1)
                    if i == 0 and self.cfg["f1_at"] > 32:
                        self.issue_f(2)
                if jj == self.cfg["wo_at"] and i:
                    self.touch(i - 1)
                    self.issue_wo(*((0, 3), (3, 6), (6, 9), (9, 12), (12, 14), (14, 16))[i - 1])
                if jj == 15:
                    self.lds_probe(self.vCnt, self.vTmp, 0)
                if jj == 18:
                    self.lds_check(self.vCnt, self.vTmp, 0, 16 * (i + 2))
            if j + 6 < N:
                reads(j + 6)
        self.bg = False
        self.lds_signal(self.vCnt, self.v1_, 0)
        self.stamp("Fdone", "M")

    def gelu(self):
        a = self.a
        ACC = self.ACC
        c0, c1, T, OUT, vOff = 240, 242, 224, 200, self.vP
        sH, sV, sA = sT0 + 12, sT0 + 13, sT0 + 14
        prog = self.w_program()
        per_gap = [int(ch) for ch in str(self.cfg["gaps"])[1:]]
        k0 = -2.0 * 0.7978845608028654 * LOG2E
        a(f"""s_lshl_b32 s{sH}, s{sR}, 2
            s_add_u32 s{sH}, s{sH}, s{sT}
            s_mul_i32 s{sH}, s{sH}, 86
            s_mul_i32 s{sV}, s{sC}, 6
            s_add_u32 s{sH}, s{sH}, s{sV}
            s_lshl_b32 s{sH}, s{sH}, 10
            s_add_u32 s{sH}, s{sH}, {WS_H}""")
        self.ffn2_setup()
        if self.cfg["galign"]:
            a.raw(".p2align 3")
        a(f"""v_mov_b32 v{c0}, {f32(k0)}
            v_mov_b32 v{c0 + 1}, {f32(k0)}
            v_mov_b32 v{c1}, {f32(k0 * 0.044715)}
            v_mov_b32 v{c1 + 1}, {f32(k0 * 0.044715)}""")

        def stores(j):
            a(f"s_cmp_lt_u32 s{sV}, {86 - 2 * j}\ns_cselect_b32 s{sA}, s{sH}, {OOB}\ns_add_u32 s{sH}, s{sH}, 2048")
            for q in range(2):
                a(f"buffer_store_dwordx4 {vr(OUT + 8 * j + 4 * q, 4)}, v{vOff}, {sr(sWS, 4)}, s{sA} offen offset:{1024 * q} sc1")
                a.vm.issue("H")

        def gap(n):
            for _ in range(per_gap[n]):
                prog.pop(0)()
            if self.cfg["galign"]:
                a.raw(".p2align 3")

        for j in range(3):
            G, U = ACC + 32 * j, ACC + 32 * j + 16
            p = lambda b, k: vr(b + 2 * k, 2)
            for k in range(8):
                if j == 0 and k < self.cfg["plain"]:
                    a(f"v_mul_f32 v{T + 2 * k}, v{G + 2 * k}, v{G + 2 * k}\nv_mul_f32 v{T + 2 * k + 1}, v{G + 2 * k + 1}, v{G + 2 * k + 1}")
                else:
                    a(f"v_pk_mul_f32 {p(T, k)}, {p(G, k)}, {p(G, k)}")
            for k in range(8):
                a(f"v_pk_fma_f32 {p(T, k)}, {p(T, k)}, {vr(c1, 2)}, {vr(c0, 2)}")
            for k in range(8):
                a(f"v_pk_mul_f32 {p(T, k)}, {p(T, k)}, {p(G, k)}")
            if j:
                stores(j - 1)
            gap(2 * j)
            for k in range(16):
                a(f"v_exp_f32 v{T + k}, v{T + k}")
            for k in range(8):
                a(f"v_pk_mul_f32 {p(G, k)}, {p(G, k)}, {p(U, k)}")
            for k in range(8):
                a(f"v_pk_add_f32 {p(T, k)}, {p(T, k)}, 1.0 op_sel_hi:[1,0]")
            gap(2 * j + 1)
            for k in range(16):
                a(f"v_rcp_f32 v{T + k}, v{T + k}")
            for k in range(8):
                a(f"v_pk_mul_f32 {p(G, k)}, {p(G, k)}, {p(T, k)}")
            for k in range(8):
                a(f"v_cvt_pk_bf16_f32 v{OUT + 8 * j + k}, v{G + 2 * k}, v{G + 2 * k + 1}")
        stores(2)

    def gate(self):
        a = self.a
        XR, GB, Z, vO = self.XR, 32, 24, 28
        sCh = sT0 + 4
        a.vm.drain()
        a.lg.reset()
        self.lds_probe(self.vCnt, self.vTmp, 24)
        self.lds_check(self.vCnt, self.vTmp, 24, 4, nap=2)
        self.lane(vO + 1)
        a(f"v_lshrrev_b32 v{vO}, 5, v{vO + 1}\nv_lshlrev_b32 v{vO}, 4, v{vO}")
        for k in range(4):
            a(f"v_mov_b32 v{Z + k}, 0")
        for half in range(2):
            for i in range(4 * half, 4 * half + 4):
                self.chunk(sCh, i)
                a(f"s_lshl_b32 s{sCh}, s{sCh}, 7")
                for s in range(4):
                    a(f"buffer_load_dwordx4 {vr(GB + 16 * (i & 3) + 4 * s, 4)}, v{vO}, {sr(sGW, 4)}, s{sCh} offen offset:{32 * s}")
            for i in range(3 * half, 3 * half + 3):
                self.touch(i)
            a("s_waitcnt vmcnt(0)")
            for k in range(64):
                a(f"v_dot2c_f32_bf16 v{Z + (k & 3)}, v{XR + 64 * half + k}, v{GB + k}")
        a(f"""s_lshl_b32 s{sT0}, s{sR}, 2
            s_add_u32 s{sT0}, s{sT0}, s{sT}
            s_lshl_b32 s{sT0}, s{sT0}, 7
            s_add_u32 s{sT0}, s{sT0}, {WS_G}
            v_add_f32 v{Z}, v{Z}, v{Z + 1}
            v_add_f32 v{Z + 2}, v{Z + 2}, v{Z + 3}
            v_add_f32 v{Z}, v{Z}, v{Z + 2}
            v_mov_b32 v{Z + 1}, v{Z}
            v_lshlrev_b32 v{vO}, 2, v{vO + 1}
            s_nop 0
            v_permlane32_swap_b32 v{Z}, v{Z + 1}
            s_nop 1
            v_add_f32 v{Z}, v{Z}, v{Z + 1}
            s_mov_b32 s{sT0 + 12}, s{sT0}""")
        for k in range(0, 16, 4):
            self.issue_wo(k, k + 4)
            self.cap()
        a.vm.drain()
        a(f"v_mov_b32 v{self.vTmp}, 36")
        self.lds_signal(self.vCnt, self.vTmp, 0)
        self.ffn2_scalars()
        a(f"v_add_u32 v{self.vD2}, 7168, v{self.vD}")
        for k in range(6):
            self.issue_w(k)
            self.cap()
        self.ffn2_setup()
        for op in self.w_program()[:sum(int(ch) for ch in str(self.cfg["gaps"])[1:])]:
            op()
        a(f"""s_mov_b32 exec_hi, 0
            buffer_store_dword v{Z}, v{vO}, {sr(sWS, 4)}, s{sT0 + 12} offen sc1
            s_mov_b64 exec, -1""")

    vL, vH, vA0, vA1, vRel, vDump, vP, vZ, vD2, vH2, vT0, vB0, vB1 = 8, 10, 11, 12, 13, 15, 16, 17, 2, 19, 9, 14, 18

    sRB2 = 4
    FS = (5, 6, 7, 8, 9, 10, 11, sT0 + 12, sT0 + 13, sT0 + 14)

    def ffn2_scalars(self):
        a = self.a
        sRing, sS0, sS1, sWc, sW0, sWe, sHc, sH0, sHe, sHl, sFl, sRow = range(sT0, sT0 + 12)
        NS = 22
        a(f"""s_mul_i32 s{sRing}, s{sT}, 12288
            s_mul_i32 s{self.sRB2}, s{sT}, 6144
            s_add_u32 s{self.sRB2}, s{self.sRB2}, {SEGB}
            s_and_b32 s{sS0}, s{sRB}, 3
            s_lshl_b32 s{sS0}, s{sS0}, 1
            s_add_u32 s{sS0}, s{sS0}, s{sCB}
            s_and_b32 s{sS0}, s{sS0}, {7 if self.cfg['rot2'] else 0}
            s_mul_i32 s{sS0}, s{sS0}, 11
            s_lshr_b32 s{sS0}, s{sS0}, 2
            s_mul_i32 s{sS1}, s{sT}, {NS}
            s_lshl_b32 s{sW0}, s{sS1}, 14
            s_lshl_b32 s{sWc}, s{sCB}, 7
            s_add_u32 s{sW0}, s{sW0}, s{sWc}
            s_add_u32 s{sWe}, s{sW0}, {NS * 16384}
            s_lshl_b32 s{sWc}, s{sS0}, 14
            s_add_u32 s{sWc}, s{sWc}, s{sW0}
            s_mul_i32 s{sHl}, s{sRB}, 172
            s_add_u32 s{sH0}, s{sHl}, s{sS1}
            s_lshl_b32 s{sH0}, s{sH0}, 10
            s_add_u32 s{sH0}, s{sH0}, {WS_H}
            s_add_u32 s{sHe}, s{sH0}, {NS * 1024}
            s_lshl_b32 s{sHc}, s{sS0}, 10
            s_add_u32 s{sHc}, s{sHc}, s{sH0}
            s_lshl_b32 s{sHl}, s{sHl}, 10
            s_add_u32 s{sHl}, s{sHl}, {WS_H + 86 * 1024}
            s_lshl_b32 s{sFl}, s{sR}, 1
            s_lshr_b32 s{sS0}, s{sT}, 1
            s_add_u32 s{sFl}, s{sFl}, s{sS0}
            s_lshl_b32 s{sFl}, s{sFl}, 9
            s_add_u32 s{sFl}, s{sFl}, {CH}
            s_mov_b32 s{sRow}, 0x62223111
            s_cmp_ge_u32 s{sC}, 8
            s_cselect_b32 s{sRow}, 0xf8888444, s{sRow}
            s_and_b32 s{sS0}, s{sC}, 7
            s_lshl_b32 s{sS0}, s{sS0}, 2
            s_lshr_b32 s{sRow}, s{sRow}, s{sS0}""")

    def cap(self):
        a, CAP = self.a, self.cfg["cap"]
        if len(a.vm.q) > CAP:
            a.vm.q = a.vm.q[len(a.vm.q) - CAP:]
            a(f"s_waitcnt vmcnt({CAP})")

    def issue_w(self, s):
        a = self.a
        sRing, sS0, sS1, sWc, sW0, sWe = range(sT0, sT0 + 6)
        a(f"s_add_u32 m0, s{sRing if WSLOT[s] < 6 else self.sRB2}, {(WSLOT[s] % 6) * 2048}")
        if s:
            a(f"s_add_u32 s{sWc}, s{sWc}, 16384\ns_cmp_eq_u32 s{sWc}, s{sWe}\ns_cselect_b32 s{sWc}, s{sW0}, s{sWc}")
        else:
            a("s_nop 0")
        a(f"buffer_load_dwordx4 v{self.vD}, {sr(sWD, 4)}, s{sWc} offen lds")
        a(f"buffer_load_dwordx4 v{self.vD2}, {sr(sWD, 4)}, s{sWc} offen offset:1024 lds")
        a.vm.issue(("w", s))
        a.vm.issue(("w", s))

    @staticmethod
    def wreg(s):
        return 128 + 8 * s if s < 9 else 96 + 8 * (s - 9) if s < 13 else 128 + 8 * (s - 13)

    def w_reads(self, s):
        self.a.vm.wait(("w", s))
        regs = (self.vA0, self.vA1) if WSLOT[s] < 6 else (self.vB0, self.vB1)
        for ct in range(2):
            for u in range(2):
                self.dsr("ds_read_b64_tr_b16", self.wreg(s) + 4 * ct + 2 * u, 2, regs[ct], None,
                         (WSLOT[s] % 6) * 2048 + 1024 * u, (s, ct))

    def w_program(self, need=144):
        a = self.a

        def R(*steps):
            return lambda: [self.w_reads(s) for s in steps]

        def I(s):
            def op():
                prev = [p for p in range(s) if WSLOT[p] == WSLOT[s]]
                if prev:
                    a.lg.wait((prev[-1], 1))
                if s == 11:
                    self.lds_probe(self.vCnt, self.vTmp, 0)
                if s == 12:
                    self.lds_check(self.vCnt, self.vTmp, 0, need)
                self.issue_w(s)
                self.cap()
            return op

        return [R(0, 1, 2), I(6), I(7), R(3, 4, 5), I(8), I(9), I(10), I(11), I(12), I(13), R(6, 7, 8), I(14), I(15), I(16), I(17),
                R(9, 10), R(11, 12), I(18), I(19), I(20), I(21)]

    def ffn2_setup(self):
        a = self.a
        vL, vH, vA0, vA1, vRel, vDump, vP, vZ, vH2, vT0 = (self.vL, self.vH, self.vA0, self.vA1, self.vRel, self.vDump, self.vP,
                                                           self.vZ, self.vH2, self.vT0)
        sRing, sS0 = sT0, sT0 + 1
        self.lane(vL)
        a(f"""v_lshlrev_b32 v{vP}, 4, v{vL}
            s_and_b32 s{sS0}, s{sT}, 1
            s_mul_i32 s{sS0}, s{sS0}, 88064
            v_add_u32 v{vH}, s{sS0}, v{vP}
            s_sub_u32 s{sS0}, 88064, s{sS0}
            v_add_u32 v{vH2}, s{sS0}, v{vP}
            v_add_u32 v{vDump}, s{sRing}, v{vP}
            v_lshrrev_b32 v20, 5, v{vL}
            v_bfe_u32 v21, v{vL}, 2, 2
            v_lshl_add_u32 v20, v20, 2, v21
            v_and_b32 v21, 1, v{vL}
            v_lshlrev_b32 v21, 2, v21
            v_bfe_u32 v22, v{vL}, 4, 1
            v_lshl_add_u32 v21, v22, 1, v21
            v_bfe_u32 v23, v{vL}, 1, 1
            v_add_u32 v21, v21, v23
            v_lshlrev_b32 v21, 3, v21
            v_lshl_add_u32 v21, v20, 7, v21
            v_bfe_u32 v23, v{vL}, 3, 1
            v_lshl_add_u32 v21, v23, 6, v21
            s_lshr_b32 s{sS0}, s{sT}, 1
            s_lshl_b32 s{sS0}, s{sS0}, 6
            v_xor_b32 v{vT0}, s{sS0}, v21
            v_add_u32 v{vA0}, s{sRing}, v{vT0}
            v_xor_b32 v{vA1}, 64, v{vA0}
            v_add_u32 v{self.vB0}, s{self.sRB2}, v{vT0}
            v_xor_b32 v{self.vB1}, 64, v{self.vB0}
            s_lshl_b32 s{sS0}, s{sT}, 2
            v_add_u32 v{vRel}, s{sS0}, v{self.vCnt}
            v_and_b32 v{vZ}, 31, v{vL}
            v_lshlrev_b32 v30, 10, v{vZ}
            v_lshlrev_b32 v{vZ}, 2, v{vZ}
            v_lshrrev_b32 v20, 5, v{vL}
            v_lshl_add_u32 v30, v20, 5, v30
            v_add_u32 v31, s{self.sRB2}, v{vP}
            s_xor_b32 s{sS0}, s{sT}, 2
            s_mul_i32 s{sS0}, s{sS0}, 6144
            s_add_u32 s{sS0}, s{sS0}, {SEGB}
            v_add_u32 v20, s{sS0}, v{vP}""")
        for reg, d in ((21, 2), (22, 1), (23, 3)):
            a(f"s_xor_b32 s{sS0}, s{sT}, {d}\ns_mul_i32 s{sS0}, s{sS0}, 12288\nv_add_u32 v{reg}, s{sS0}, v{vP}")

    def ffn2(self):
        a = self.a
        ACC = 32
        vH, vRel, vDump, vZ, vH2 = self.vH, self.vRel, self.vDump, self.vZ, self.vH2
        sRing, sS0, sS1, sWc, sW0, sWe, sHc, sH0, sHe, sHl, sFl, sRow = range(sT0, sT0 + 12)
        NS, PD = 22, self.cfg["pd"]
        cap, issue_w, reads, wreg = self.cap, self.issue_w, self.w_reads, self.wreg
        hreg = lambda s: 200 + 8 * ((s + 6) % 7)
        a(f"s_setprio {self.cfg['prio_m']}")
        a.lg.reset()
        a.vm.reset()

        def issue_h(s):
            if s:
                a(f"""s_add_u32 s{sHc}, s{sHc}, 1024
                    s_cmp_eq_u32 s{sHc}, s{sHe}
                    s_cselect_b32 s{sHc}, s{sH0}, s{sHc}""")
            a(f"s_cmp_lt_u32 s{sHc}, s{sHl}\ns_cselect_b32 s{sS0}, s{sHc}, {OOB}")
            for tt in range(2):
                a(f"buffer_load_dwordx4 {vr(hreg(s) + 4 * tt, 4)}, v{(vH, vH2)[tt]}, {sr(sWS, 4)}, s{sS0} offen sc1")
                a.vm.issue(("h", s))

        done = sum(int(ch) for ch in str(self.cfg["gaps"])[1:])
        assert done <= 15 and done != 8
        prog = self.w_program()[done:]
        a("s_waitcnt vmcnt(0) lgkmcnt(0)")
        for k in range(4):
            skip = self.lab("nosig")
            a(f"s_bitcmp1_b32 s{sRow}, {k}\ns_cbranch_scc0 {skip}")
            self.signal(sFl)
            a.label(skip)
            a(f"s_add_u32 s{sFl}, s{sFl}, 128")
        self.stamp("Hflag", "M")
        a(f"""s_lshl_b32 s{sFl}, s{sRB}, 2
            s_add_u32 s{sFl}, s{sFl}, s{sT}
            s_lshl_b32 s{sFl}, s{sFl}, 7
            s_add_u32 s{sFl}, s{sFl}, {CH}
            s_cmp_eq_u32 s{sT}, 1
            s_cselect_b32 s{sRow}, 12, 10
            s_mov_b32 s{sPV}, 0""")
        for n, op in enumerate(prog):
            if n == len(prog) - 3:
                a.lg.drain()
                a(f"s_atomic_add s{sPV}, {sr(sWS, 2)}, s{sFl} glc")
            op()
        self.stamp("W0", "M")
        ready = self.lab("hready")
        a(f"s_waitcnt lgkmcnt(0)\ns_cmp_ge_u32 s{sPV}, s{sRow}\ns_cbranch_scc1 {ready}")
        self.spoll(sFl, f"s{sRow}")
        a.label(ready)
        self.stamp("Hpoll", "M")
        for s in range(PD):
            issue_h(s)
        a(f"""s_lshl_b32 s{sFl}, s{sRB}, 1
            s_and_b32 s{sS0}, s{sT}, 1
            s_add_u32 s{sFl}, s{sFl}, s{sS0}
            s_lshl_b32 s{sFl}, s{sFl}, 7
            s_add_u32 s{sFl}, s{sFl}, {WS_G}
            buffer_load_dword v{vZ}, v{vZ}, {sr(sWS, 4)}, s{sFl} offen sc1""")
        a.vm.issue("z")
        nh = PD
        hold = NS - self.cfg["defer"]
        assert hold <= 16 or hold == NS

        cnt = [0]

        def mm(s, ct, tt):
            self.bg = bool(self.cfg["pulse2"])
            if self.bg and cnt[0] % self.cfg["pulse2"] == 0:
                self.boost()
            cnt[0] += 1
            a.vm.wait(("h", s))
            a.lg.wait((s, ct))
            d = vr(ACC + 32 * tt + 16 * ct, 16)
            a(f"v_mfma_f32_32x32x16_bf16 {d}, {vr(wreg(s) + 4 * ct, 4)}, {vr(hreg(s) + 4 * tt, 4)}, {d if s else 0}")
            self.unboost()
            self.bg = False

        for s in range(17):
            if s == hold or s == 16:
                while nh < min(NS, s + 7):
                    issue_h(nh)
                    nh += 1
                    cap()
            if s == hold:
                self.stamp("hold", "M")
                self.lds_probe(vRel, self.vTmp, 32)
                self.lds_check(vRel, self.vTmp, 32, 1, nap=2)
                self.stamp("resume", "M")
            if s == 16:
                break
            self.stamp(f"s{s}", "M")
            if s == max(self.cfg["look"], hold if hold < NS else 0):
                a.lg.drain()
                self.final_setup()
            for k in range(4):
                mm(s, *divmod(k, 2))
                if k == 0 and nh < min(NS, s + 7):
                    issue_h(nh)
                    nh += 1
                if k == 1 and 1 <= s <= 9:
                    reads(s + 12)
        self.stamp("s16", "M")
        if max(self.cfg["look"], hold if hold < NS else 0) >= 16:
            a.lg.drain()
            self.final_setup()
        for n, (ct, tt) in enumerate(((0, 1), (1, 0), (1, 1), (0, 0))):
            for s in range(16, NS):
                mm(s, ct, tt)
                if n and s >= 18:
                    k = (8, 4, 12)[n - 1] + s - 18
                    if s == 18:
                        a(("s_nop 3", "s_nop 6", "s_nop 8")[n - 1])
                    a(f"ds_write_b128 v{vDump}, {vr(ACC + 4 * k, 4)} offset:{1024 * (k - 4)}")
                if n and 6 * (n - 1) + s - 16 < 9:
                    self.early_o(6 * (n - 1) + s - 16)
                if 6 * n + s - 16 == self.cfg["look2"]:
                    self.o_look()
        self.lds_signal(self.vCnt, self.v1_, 4)
        self.stamp("s22", "M")

    def final_setup(self):
        a = self.a
        sFl, sOut, sO, sA, sTT, sKh, sF2, sG, sE, sX = self.FS
        a(f"""s_and_b32 s{sTT}, s{sT}, 1
            s_lshr_b32 s{sKh}, s{sT}, 1
            s_lshl_b32 s{sFl}, s{sRB}, 1
            s_add_u32 s{sFl}, s{sFl}, s{sKh}
            s_lshl_b32 s{sFl}, s{sFl}, 8
            s_add_u32 s{sFl}, s{sFl}, {CO}
            s_add_u32 s{sF2}, s{sFl}, 128
            s_mov_b32 s{sPV}, 0
            s_mov_b32 s{sA}, 0
            s_atomic_add s{sPV}, {sr(sWS, 2)}, s{sFl} glc
            s_atomic_add s{sA}, {sr(sWS, 2)}, s{sF2} glc
            s_lshl_b32 s{sOut}, s{sRB}, 1
            s_add_u32 s{sOut}, s{sOut}, s{sTT}
            s_lshl_b32 s{sO}, s{sOut}, 5
            s_lshl_b32 s{sG}, s{sKh}, 4
            s_add_u32 s{sO}, s{sO}, s{sG}
            s_lshl_b32 s{sO}, s{sO}, 10
            s_add_u32 s{sO}, s{sO}, {WS_O}
            s_lshl_b32 s{sOut}, s{sOut}, 15
            s_lshl_b32 s{sG}, s{sCB}, 7
            s_add_u32 s{sOut}, s{sOut}, s{sG}
            s_lshl_b32 s{sG}, s{sKh}, 6
            s_add_u32 s{sOut}, s{sOut}, s{sG}""")

    @staticmethod
    def of(s):
        return 96 + 4 * s if s < 14 else 200 + 4 * (s - 14)

    def oloads(self, h, sO):
        a = self.a
        for s in range(8 * h, 8 * h + 8):
            if s % 8 == 4:
                a(f"s_add_u32 s{sO}, s{sO}, 4096")
            a(f"buffer_load_dwordx4 {vr(self.of(s), 4)}, v{self.vP}, {sr(sWS, 4)}, s{sO} offen offset:{1024 * (s % 4)} sc1")
            a.vm.issue(s)

    def o_look(self):
        sFl, sOut, sO, sA, sTT, sKh, sF2, sG, sE, sX = self.FS
        self.a(f"""s_mov_b32 s{sPV}, 0
            s_mov_b32 s{sA}, 0
            s_atomic_add s{sPV}, {sr(sWS, 2)}, s{sFl} glc
            s_atomic_add s{sA}, {sr(sWS, 2)}, s{sF2} glc""")

    def early_o(self, n):
        a = self.a
        sFl, sOut, sO, sA, sTT, sKh, sF2, sG, sE, sX = self.FS
        if n == 0:
            a.vm.drain()
            a(f"""s_add_u32 s{sT0 + 1}, s{sO}, 4096
                s_add_u32 s{sT0 + 2}, s{sO}, 8192
                s_add_u32 s{sT0 + 3}, s{sO}, 12288
                s_waitcnt lgkmcnt(0)
                s_min_u32 s{sE}, s{sPV}, s{sA}
                s_lshr_b32 s{sE}, s{sE}, 3""")
            return
        skip = self.lab("noearly")
        a(f"s_cbranch_scc0 {skip}")
        for s in range(2 * n - 2, 2 * n):
            a(f"buffer_load_dwordx4 {vr(self.of(s), 4)}, v{self.vP}, {sr(sWS, 4)}, s{sO if s < 4 else sT0 + (s >> 2)} offen offset:{1024 * (s % 4)} sc1")
        a.label(skip)

    def final(self):
        a = self.a
        B, PT, OWN, OTH = 32, 48, 152, 168
        WO = lambda s: (184, 192, 208, 216, 224, 232, 240, 248)[s % 8]
        vL, vH, vX, vZ, vA0, vA1 = self.vL, self.vP, self.vDump, self.vZ, self.vA0, self.vA1
        vOut, vG, vP1, vP2, vP3, vB0, vB1, vXp, vX = 30, 2, 21, 22, 23, self.vB0, self.vB1, 20, 31
        sFl, sOut, sO, sA, sTT, sKh, sF2, sG, sE, sX = self.FS
        top, got, loaded, join = self.lab("opoll"), self.lab("ogot"), self.lab("oloaded"), self.lab("ojoin")
        a.lg.reset()
        a(f"""s_mov_b32 s{sG}, 0
            s_cmp_lg_u32 s{sE}, 0
            s_cbranch_scc1 {loaded}
            s_mov_b32 s{sSPIN}, 200000""")
        a.label(top)
        a(f"""s_waitcnt lgkmcnt(0)
            s_max_u32 s{sE}, s{sPV}, s{sA}
            s_cmp_ge_u32 s{sE}, 8
            s_cbranch_scc1 {got}""")
        self.o_look()
        a(f"""s_sub_u32 s{sSPIN}, s{sSPIN}, 1
            s_cbranch_scc0 {top}""")
        a.label(got)
        a(f"""s_waitcnt lgkmcnt(0)
            s_cmp_lt_u32 s{sPV}, 8
            s_cselect_b32 s{sG}, 1, 0
            s_lshl_b32 s{sX}, s{sG}, 13
            s_add_u32 s{sO}, s{sO}, s{sX}""")
        self.stamp("Opoll", "M")
        a.vm.reset()
        self.oloads(0, sO)
        a(f"""s_xor_b32 s{sO}, s{sO}, 0x3000
            s_min_u32 s{sE}, s{sPV}, s{sA}
            s_lshr_b32 s{sE}, s{sE}, 3
            s_cselect_b32 s{sX}, s{sO}, {OOB}""")
        self.oloads(1, sX)
        a.label(loaded)
        a(f"""s_xor_b32 s{sF2}, s{sG}, 1
            s_lshl_b32 s{sF2}, s{sF2}, 7
            s_add_u32 s{sF2}, s{sF2}, s{sFl}
            s_lshl_b32 s{sX}, s{sKh}, 1
            s_add_u32 s{sG}, s{sG}, s{sX}
            s_lshl_b32 s{sX}, s{sG}, 14
            s_add_u32 s{sX}, s{sX}, {WOL}
            v_add_u32 v{vA0}, s{sX}, v{self.vT0}
            s_xor_b32 s{sG}, s{sG}, 1
            s_lshl_b32 s{sX}, s{sG}, 14
            s_add_u32 s{sX}, s{sX}, {WOL}
            v_add_u32 v{vB0}, s{sX}, v{self.vT0}
            v_xor_b32 v{vA1}, 64, v{vA0}
            v_xor_b32 v{vB1}, 64, v{vB0}""")
        a.lg.reset()

        def wreads(s):
            if s >= 16:
                return
            for ct in range(2):
                for u in range(2):
                    self.dsr("ds_read_b64_tr_b16", WO(s) + 4 * ct + 2 * u, 2, ((vA0, vA1), (vB0, vB1))[s >> 3][ct], None,
                             (s & 7) * 2048 + 1024 * u, ("wo", s))

        def step(s):
            a.vm.wait(s)
            a.lg.wait(("wo", s))
            w = WO(s)
            ot, ow = (vr(OTH, 16), vr(OWN, 16)) if s < 8 else (vr(PT + 32, 16), vr(PT + 16, 16))
            a(f"v_mfma_f32_32x32x16_bf16 {ot}, {vr(w + 4, 4)}, {vr(self.of(s), 4)}, {ot if s % 8 else 0}")
            wreads(s + 2)
            if 2 <= s < 8:
                i, h = divmod(s - 2, 2)
                for k in range(8 * h, 8 * h + 4):
                    a(f"v_add_f32 v{B + k}, v{B + k}, v{PT + 16 * i + k}")
            a(f"v_mfma_f32_32x32x16_bf16 {ow}, {vr(w, 4)}, {vr(self.of(s), 4)}, {ow if s % 8 else 0}")
            if s < 6:
                i, h = divmod(s, 2)
                for q in range(2 * h, 2 * h + 2):
                    self.dsr("ds_read_b128", PT + 16 * i + 4 * q, 4, (vP1, vP2, vP3)[i], None, 4096 * i + 1024 * q, ("wo", s + 2))
            if 2 <= s < 8:
                i, h = divmod(s - 2, 2)
                for k in range(8 * h + 4, 8 * h + 8):
                    a(f"v_add_f32 v{B + k}, v{B + k}, v{PT + 16 * i + k}")
            if 8 <= s < 12:
                for k in range(4 * (s - 8), 4 * (s - 8) + 4):
                    a(f"v_mul_f32 v{B + k}, v{B + k}, v{vG + 2}")

        self.lds_probe(self.vCnt, self.vTmp, 4)
        for s in range(2):
            wreads(s)
        a(f"""v_mul_f32 v{vG}, {f32(LOG2E)}, v{vZ}
            v_exp_f32 v{vG + 2}, v{vG}
            v_exp_f32 v{vG}, -v{vG}
            s_nop 0
            v_add_f32 v{vG + 2}, 1.0, v{vG + 2}
            v_add_f32 v{vG}, 1.0, v{vG}
            v_rcp_f32 v{vG + 2}, v{vG + 2}
            v_rcp_f32 v{vG}, v{vG}""")
        self.lds_check(self.vCnt, self.vTmp, 4, 16)
        self.stamp("msync", "M")
        for s in range(8):
            step(s)
            if s == self.cfg["look3"]:
                a(f"s_mov_b32 s{sPV}, 0\ns_atomic_add s{sPV}, {sr(sWS, 2)}, s{sF2} glc")
        q, le = list(a.vm.q), list(a.lg.q)
        if self.cfg["otm"]:
            for s in range(10, 16):
                wreads(s)
                a.lg.wait(("wo", s - 2))
            le = list(a.lg.q)
        a(f"s_cmp_lg_u32 s{sE}, 0\ns_cbranch_scc1 {join}")
        self.stamp("g1done", "M")
        seen = self.lab("oseen")
        if self.cfg["look3"] < 8:
            a(f"s_waitcnt lgkmcnt(0)\ns_cmp_ge_u32 s{sPV}, 8\ns_cbranch_scc1 {seen}")
        self.spoll(sF2, 8)
        a.label(seen)
        self.stamp("late", "M")
        a.vm.drain()
        self.oloads(1, sO)
        assert a.vm.q == q
        a.lg.q = le
        a.label(join)
        if not self.cfg["otm"]:
            for s in range(8, 16):
                step(s)
            self.stamp("Omfma", "M")
            a("s_nop 10")
            for q in range(4):
                for k in range(4 * q, 4 * q + 4):
                    a(f"v_add_f32 v{OTH + k}, v{OTH + k}, v{PT + 32 + k}")
                a(f"ds_write_b128 v{vX}, {vr(OTH + 4 * q, 4)} offset:{1024 * q}")
            for k in range(8):
                a(f"v_pk_add_f32 {vr(OWN + 2 * k, 2)}, {vr(OWN + 2 * k, 2)}, {vr(PT + 16 + 2 * k, 2)}")
            for k in range(8):
                a(f"v_pk_fma_f32 {vr(B + 2 * k, 2)}, {vr(OWN + 2 * k, 2)}, {vr(vG, 2)}, {vr(B + 2 * k, 2)} op_sel_hi:[1,0,1]")
        else:
            for k in range(16):
                a(f"v_mul_f32 v{B + k}, v{B + k}, v{vG + 2}")
            for s in range(8, 16):
                a.vm.wait(s)
                a.lg.wait(("wo", s))
                ot = vr(PT + 32, 16)
                a(f"v_mfma_f32_32x32x16_bf16 {ot}, {vr(WO(s) + 4, 4)}, {vr(self.of(s), 4)}, {ot if s % 8 else 0}")
            for s in range(8, 16):
                ow = vr(PT + 16, 16)
                a(f"v_mfma_f32_32x32x16_bf16 {ow}, {vr(WO(s), 4)}, {vr(self.of(s), 4)}, {ow if s % 8 else 0}")
                if s == 8:
                    a("s_nop 5")
                if s == 9:
                    a("s_nop 3")
                if 9 <= s < 13:
                    q = s - 9
                    for k in range(4 * q, 4 * q + 4):
                        a(f"v_add_f32 v{OTH + k}, v{OTH + k}, v{PT + 32 + k}")
                    a(f"ds_write_b128 v{vX}, {vr(OTH + 4 * q, 4)} offset:{1024 * q}")
            self.stamp("Omfma", "M")
        a("s_waitcnt lgkmcnt(0)\ns_barrier")
        self.stamp("bar", "M")
        for q in range(4):
            a(f"ds_read_b128 {vr(PT + 4 * q, 4)}, v{vXp} offset:{1024 * q}")
        if self.cfg["otm"]:
            a("s_nop 5")
            for k in range(8):
                a(f"v_pk_add_f32 {vr(OWN + 2 * k, 2)}, {vr(OWN + 2 * k, 2)}, {vr(PT + 16 + 2 * k, 2)}")
            for k in range(8):
                a(f"v_pk_fma_f32 {vr(B + 2 * k, 2)}, {vr(OWN + 2 * k, 2)}, {vr(vG, 2)}, {vr(B + 2 * k, 2)} op_sel_hi:[1,0,1]")
        for q in range(4):
            a(f"s_waitcnt lgkmcnt({3 - q})")
            for k in range(2):
                r = 4 * q + 2 * k
                a(f"v_pk_fma_f32 {vr(B + r, 2)}, {vr(PT + r, 2)}, {vr(vG, 2)}, {vr(B + r, 2)} op_sel_hi:[1,0,1]")
            for k in range(2):
                r = 4 * q + 2 * k
                a(f"v_cvt_pk_bf16_f32 v{64 + 2 * q + k}, v{B + r}, v{B + r + 1}")
            if q % 2 == 1:
                a(f"buffer_store_dwordx4 {vr(64 + 4 * (q // 2), 4)}, v{vOut}, {sr(sOUT, 4)}, s{sOut} offen offset:{16 * (q // 2)}")

    def build(self):
        a = self.a
        cfg = self.cfg
        self.prologue()
        a(f"s_setprio {cfg['prio_l']}")
        self.loader()
        self.attn_start()
        self.stamp("attn0", "L")
        self.attn_loop()
        self.attn_finish()
        self.stamp("Oflag", "L")
        self.dump_stamps(True)
        a("s_endpgm")

        a.label("L_mwave")
        if cfg["swap"]:
            a("s_setprio 1")
        self.m_setup()
        if cfg["swap"]:
            a(f"s_setprio {cfg['prio_m']}")
        a(f"s_bitcmp1_b32 s{sC}, 0\ns_cbranch_scc1 L_pass_v")
        self.pass_a(False)
        a("s_branch L_pass_q")
        a.label("L_pass_v")
        self.pass_a(True)
        a.label("L_pass_q")
        self.pass_q()
        a(f"s_cmp_eq_u32 s{sC}, 15\ns_cbranch_scc1 L_gate")
        self.pass_f()
        a(f"s_setprio {cfg['prio_gelu']}")
        self.gelu()
        a.label("L_ffn2")
        self.stamp("gelu", "M")
        self.ffn2()
        self.final()
        if cfg.get("stamps"):
            a("s_waitcnt vmcnt(0)")
            self.stamp("end", "M")
            self.dump_stamps(False)
        a.label("L_end")
        a("s_endpgm")
        a.label("L_gate")
        a(f"s_setprio {cfg['prio_gelu']}")
        self.gate()
        a("s_branch L_ffn2")
        self.fallback()
        return a.text()


HEADER = """; Fused kernel: out = g * MHA(x) + (1 - g) * GEGLU(x),  g = sigmoid(x . gate_w)
; Kernarg (88 bytes, pointers): 0 A_x, 8 A_wqkv, 16 A_wo, 24 B_x (unused by the reference), 32 B_w_gate, 40 B_w_up,
;   48 B_w_down, 56 gate_w, 64 d_out, 72 d_debug, 80 d_ws
; 256 workgroups, one per CU; hand-offs between workgroups go through d_ws with write-through stores and flags.
; @launch grid=(256,1,1) block=(512,1,1) lds=%d
.amdgcn_target "amdgcn-amd-amdhsa--gfx950"
.text
.globl %s_kernel
.p2align 8
.type %s_kernel,@function
%s_kernel:
""" % (LDS_BYTES, NAME, NAME, NAME)

FOOTER = """.section .rodata,"a"
.p2align 6
.amdhsa_kernel %s_kernel
  .amdhsa_next_free_vgpr 256
  .amdhsa_next_free_sgpr 102
  .amdhsa_accum_offset 256
  .amdhsa_group_segment_fixed_size 0
  .amdhsa_kernarg_size 88
  .amdhsa_user_sgpr_count 2
  .amdhsa_user_sgpr_kernarg_segment_ptr 1
  .amdhsa_system_sgpr_workgroup_id_x 1
  .amdhsa_float_denorm_mode_32 3
.end_amdhsa_kernel
""" % NAME

DEFAULT = dict(stM='start,BA0,KVst,KVflag,Qdone,F0,Fdone,gelu,Hflag,Hpoll,ffn2,Opoll,Omfma,end',
               stL='start,karg,A0,A2,A7,KVpoll,Qrdy,attn0,attn1,Ost,Oflag',
               outpol='', rowmask=14, qs=14400, tf=0, gate_f=1, gate_at=-1, look=13, lfast=1, chk=89, chk_need=144, look2=12, look3=1, gaps=1131110, plain=8, galign=1, k1=0, sig0=14, f1_at=99, swap=0, rel=1, touch=1, tq=1, f1_early=0, rbits=3, rot=4, rot2=1, la=2, nst=4, defer=0, tpol='', qpol='', xn=8, wn=8, fn=8, xpol='', wpol='', fpol='nt', hasync=1, otm=1, atm=1, kvflag_at=8, f0_at=4, sig_at=8, rchk=10, wo_at=20, boost=0, pulse=0, pulse2=0, pd=5, cap=6, prio_l=2, prio_m=0, prio_gelu=3)


def generate(**kw):
    cfg = dict(DEFAULT)
    cfg.update(kw)
    body = Gen(cfg).build()
    msgs = lint(body)
    if cfg.get("stamps"):
        body += f"; STAMPS M {cfg['stM']}\n"
    return HEADER + body + FOOTER, msgs


if __name__ == "__main__":
    out = sys.argv[1]
    kw = {}
    for arg in sys.argv[2:]:
        k, v = arg.split("=")
        try:
            kw[k] = int(v)
        except ValueError:
            try:
                kw[k] = float(v)
            except ValueError:
                kw[k] = v
    text, msgs = generate(**kw)
    for m in msgs:
        print("LINT:", m)
    open(out, "w").write(text)
    print("wrote", out, len(text), "bytes,", text.count("\n"), "lines")
```

```python
import struct
import sys

from asmlib import Asm, lint, sr, vr

NAME = "gated_mix__softmax_full_mha__glu_gated_geglu__prompt"


def f32(x):
    return "0x%08x" % struct.unpack("<I", struct.pack("<f", x))[0]


LOG2E = 1.4426950408889634

WS_KV, WS_O, WS_H, WS_G, WS_FLAG, WS_STAMP = 0x000000, 0x400000, 0x600000, 0xBC0000, 0xC00000, 0xD00000
CKV, CH, CO = WS_FLAG, WS_FLAG + 128 * 128, WS_FLAG + 256 * 128
OOB = 0x20000000

NSLOT = 4
QW, QF, PART, CNT = 98304, 131072, 139264, 157696
WOL, SEGB = 73728, 49152
WSLOT = [0, 1, 2, 3, 4, 5, 0, 1, 2, 3, 4, 5, 6, 7, 8, 0, 1, 2, 3, 4, 5, 6]
LDS_BYTES = 163840

sX, sWQ, sWO, sWG, sWU, sWD, sGW, sOUT, sDBG, sWS = 4, 8, 12, 16, 20, 24, 28, 32, 36, 40
sC, sR, sW, sT, sROT, sRB, sCB, sDEL = 44, 45, 46, 47, 48, 49, 50, 51
sONE, sPV = 71, 69
sVM = 52
sT0 = 54
sSPIN = 70
sSTAMP = 72
SIZES = {sX: 2097152, sWQ: 1572864, sWO: 524288, sWG: 1409024, sWU: 1409024, sWD: 1409024, sGW: 1024, sOUT: 2097152,
         sDBG: 256, sWS: 268435456}
KARG = {sX: 0, sWQ: 8, sWO: 16, sWG: 32, sWU: 40, sWD: 48, sGW: 56, sOUT: 64, sDBG: 72, sWS: 80}


def slot(n):
    return (n % NSLOT) * 24576


def fslot(n):
    return ((n + 1) % 3) * 24576


class Gen:
    def __init__(self, cfg):
        self.cfg = cfg
        self.a = Asm()
        self.uid = 0
        self.bg = self.hi = False

    def lab(self, base):
        self.uid += 1
        return f"L_{base}_{self.uid}"

    def clock(self):
        return "s_memtime" if self.cfg.get("stamps") == 2 else "s_memrealtime"

    def names(self, role):
        if "pad" in self.cfg:
            return ["start", self.cfg["pad"]]
        return self.cfg["st" + role].split(",")

    def stamp(self, name, role):
        if self.cfg.get("stamps") and name in self.names(role):
            n = self.names(role).index(name)
            a = self.a
            a(f"{self.clock()} {sr(sSTAMP + 2 * n, 2)}")
            a.lg.drain()

    def dump_stamps(self, is_l):
        if not self.cfg.get("stamps"):
            return
        a = self.a
        if "pad" in self.cfg:
            n = 0 if self.cfg["pad"] == "start" else 1
            top, done = self.lab("pad"), self.lab("paddone")
            if is_l:
                a("s_barrier")
            if "padx" in self.cfg:
                a(f"""s_and_b32 s{sT0}, s2, 7
                    s_cmp_eq_u32 s{sT0}, {self.cfg['padx']}
                    s_cselect_b32 s{sSTAMP + 2 * n}, s{sSTAMP + 2 * n}, 0""")
            a(f"""s_waitcnt vmcnt(0) lgkmcnt(0)
                s_cmp_eq_u32 s{sSTAMP + 2 * n}, 0
                s_cbranch_scc1 {done}""")
            a.label(top)
            a(f"""s_sleep 4
                s_memrealtime {sr(sT0, 2)}
                s_waitcnt lgkmcnt(0)
                s_sub_u32 s{sT0}, s{sT0}, s{sSTAMP + 2 * n}
                s_cmp_lt_u32 s{sT0}, 6000
                s_cbranch_scc1 {top}""")
            a.label(done)
            return
        a(f"""s_lshl_b32 s{sT0}, s2, 3
            s_add_u32 s{sT0}, s{sT0}, s{sW}
            s_lshl_b32 s{sT0}, s{sT0}, 6
            s_add_u32 s{sT0}, s{sT0}, {WS_STAMP}
            s_mov_b64 exec, 1""")
        for n in range(14):
            a(f"v_mov_b32 v0, s{sSTAMP + 2 * n}")
            a(f"buffer_store_dword v0, off, {sr(sWS, 4)}, s{sT0} offset:{4 * n}")
        a("s_mov_b64 exec, -1")

    def lane(self, v):
        self.a(f"""v_mbcnt_lo_u32_b32 v{v}, -1, 0
            v_mbcnt_hi_u32_b32 v{v}, -1, v{v}""")

    def srd(self, *regs):
        for r in regs:
            self.a(f"s_mov_b32 s{r + 2}, {SIZES[r]}\ns_mov_b32 s{r + 3}, 0x00020000")

    def kload(self, *regs):
        for r in regs:
            self.a(f"s_load_dwordx2 {sr(r, 2)}, s[0:1], {KARG[r]}")

    def chunk(self, dst, i):
        a = self.a
        if self.cfg["rot"] in (3, 4):
            a(f"""s_add_u32 s{dst}, s{sDEL}, {i & 3}
                s_and_b32 s{dst}, s{dst}, 3
                s_add_u32 s{dst}, s{dst}, s{sROT}""")
            if i & 4:
                a(f"s_xor_b32 s{dst}, s{dst}, 4")
        else:
            a(f"s_add_u32 s{dst}, s{sROT}, {i}\ns_and_b32 s{dst}, s{dst}, 7")

    def dsr(self, op, dst, n, lo, hi, imm, tag):
        reg = lo
        if imm >= 65536:
            reg, imm = hi, imm - 65536
        assert 0 <= imm < 65536 and reg is not None
        self.a(f"{op} {vr(dst, n)}, v{reg} offset:{imm}")
        self.a.lg.issue(tag)

    def poll(self, voff, soff, tmp, srd=sWS):
        a = self.a
        top, done = self.lab("poll"), self.lab("pdone")
        a(f"s_mov_b32 s{sSPIN}, 100000")
        a.label(top)
        a(f"""buffer_load_dword v{tmp}, v{voff}, {sr(srd, 4)}, {soff} offen sc1
            s_waitcnt vmcnt(0)
            v_cmp_gt_u32 vcc, 16, v{tmp}
            s_cbranch_vccz {done}
            s_sleep 8
            s_sub_u32 s{sSPIN}, s{sSPIN}, 1
            s_cmp_lg_u32 s{sSPIN}, 0
            s_cbranch_scc1 {top}""")
        a.label(done)
        a.vm.reset()

    def signal(self, soff):
        self.a(f"s_atomic_add s{sONE}, {sr(sWS, 2)}, s{soff}")

    def spoll(self, soff, need, back=None):
        a = self.a
        top, done = self.lab("spoll"), back or self.lab("sdone")
        a(f"s_mov_b32 s{sSPIN}, 200000")
        a.label(top)
        a(f"""s_mov_b32 s{sPV}, 0
            s_atomic_add s{sPV}, {sr(sWS, 2)}, s{soff} glc
            s_waitcnt lgkmcnt(0)
            s_cmp_ge_u32 s{sPV}, {need}
            s_cbranch_scc1 {done}
            s_sub_u32 s{sSPIN}, s{sSPIN}, 1
            s_cmp_lg_u32 s{sSPIN}, 0
            s_cbranch_scc1 {top}""")
        if back:
            a(f"s_branch {back}")
        else:
            a.label(done)
        a.lg.reset()

    def lds_signal(self, addr, one, off):
        a = self.a
        a(f"""s_mov_b64 exec, 1
            ds_add_u32 v{addr}, v{one} offset:{off}
            s_mov_b64 exec, -1""")
        a.lg.issue("sig")

    def lds_probe(self, addr, tmp, off):
        self.a(f"ds_read_b32 v{tmp}, v{addr} offset:{off}")
        self.a.lg.issue("probe")

    def boost(self):
        if self.bg and not self.hi:
            self.a("s_setprio 3")
            self.hi = True

    def unboost(self):
        if self.hi:
            self.a(f"s_setprio {self.cfg['prio_m']}")
            self.hi = False

    def lds_check(self, addr, tmp, off, need, nap=0):
        a = self.a
        top, done = self.lab("lspin"), self.lab("ldone")
        self.boost()
        a.lg.wait("probe")
        a(f"""v_cmp_gt_u32 vcc, {need}, v{tmp}
            s_cbranch_vccz {done}
            s_mov_b32 s{sSPIN}, 1000000""")
        a.label(top)
        if nap:
            a(f"s_sleep {nap}")
        a(f"""ds_read_b32 v{tmp}, v{addr} offset:{off}
            s_waitcnt lgkmcnt(0)
            v_cmp_gt_u32 vcc, {need}, v{tmp}
            s_cbranch_vccz {done}
            s_sub_u32 s{sSPIN}, s{sSPIN}, 1
            s_cmp_lg_u32 s{sSPIN}, 0
            s_cbranch_scc1 {top}""")
        a.label(done)

    def prologue(self):
        a = self.a
        cfg = self.cfg
        rb = cfg["rbits"]
        a("s_cmp_ge_u32 s2, 256\ns_cbranch_scc1 L_end")
        if cfg.get("stamps"):
            a(f"{self.clock()} {sr(sSTAMP, 2)}")
        self.kload(sX, sWQ, sWS)
        if cfg.get("stamps"):
            for n in range(1, 14):
                a(f"s_mov_b32 s{sSTAMP + 2 * n}, 0")
        x, j, t = sT0, sT0 + 1, sT0 + 2
        a(f"""v_lshrrev_b32 v1, 6, v0
            s_and_b32 s{x}, s2, 7
            v_readfirstlane_b32 s{sW}, v1
            s_lshr_b32 s{j}, s2, 3
            v_and_b32 v0, 63, v0
            s_and_b32 s{sR}, s{x}, {(1 << (4 - rb)) - 1}
            s_lshl_b32 s{sR}, s{sR}, {rb}
            s_and_b32 s{t}, s{j}, {(1 << rb) - 1}
            s_add_u32 s{sR}, s{sR}, s{t}
            s_lshr_b32 s{sC}, s{x}, {4 - rb}
            s_lshl_b32 s{sC}, s{sC}, {5 - rb}
            s_lshr_b32 s{t}, s{j}, {rb}
            s_add_u32 s{sC}, s{sC}, s{t}
            s_and_b32 s{sT}, s{sW}, 3""")
        if cfg["swap"]:
            a(f"s_xor_b32 s{sW}, s{sW}, 4")
        rot = cfg["rot"]
        if rot == 0:
            a(f"s_mov_b32 s{sROT}, 0")
        elif rot == 1:
            a(f"""s_mul_i32 s{sROT}, s{sC}, {cfg.get('rotc', 2)}
                s_mul_i32 s{t}, s{sR}, {cfg.get('rotr', 1)}
                s_add_u32 s{sROT}, s{sROT}, s{t}
                s_and_b32 s{sROT}, s{sROT}, 7""")
        else:
            a(f"""s_add_u32 s{sROT}, s{sC}, s{sR}
                s_and_b32 s{sROT}, s{sROT}, 1
                s_lshl_b32 s{sROT}, s{sROT}, 2""")
            if rot == 3:
                a(f"s_mov_b32 s{sDEL}, 0")
            else:
                a(f"""s_lshr_b32 s{sDEL}, s{x}, 1
                    s_lshl_b32 s{t}, s{x}, 1
                    s_add_u32 s{sDEL}, s{sDEL}, s{t}""")
        self.srd(sWS)
        a(f"""s_mov_b32 s{sONE}, 1
            s_cmp_ge_u32 s{sW}, 4
            s_cbranch_scc0 L_mwave""")

    def loader(self):
        a = self.a
        a.vm.reset()
        vX0, vX1, vKV, vQ = 8, 9, 10, 11
        sXB, sKB, sQB, sLx, sLk, sLq, sCh, sO = range(sT0, sT0 + 8)
        self.srd(sX, sWQ)
        a(f"""v_lshrrev_b32 v1, 3, v0
            v_and_b32 v2, 7, v0
            v_lshrrev_b32 v3, 4, v0
            s_lshl_b32 s{sO}, s{sT}, 5
            v_add_u32 v4, s{sO}, v1
            v_xor_b32 v5, v2, v3
            v_lshlrev_b32 v5, 4, v5
            v_lshl_add_u32 v{vX0}, v4, 10, v5
            v_xor_b32 v{vX1}, 64, v{vX0}
            v_add_u32 v{vX1}, 8192, v{vX1}
            s_lshl_b32 s{sO}, s{sT}, 4
            v_add_u32 v4, s{sO}, v1
            v_mul_u32_u24 v4, 3072, v4
            v_and_b32 v5, 1, v3
            v_lshlrev_b32 v5, 2, v5
            v_xor_b32 v5, v2, v5
            v_lshl_add_u32 v{vKV}, v5, 4, v4
            s_lshl_b32 s{sXB}, s{sR}, 17
            s_and_b32 s{sKB}, s{sC}, 1
            s_add_u32 s{sKB}, s{sKB}, 1
            s_lshl_b32 s{sKB}, s{sKB}, 10
            s_lshr_b32 s{sCh}, s{sC}, 1
            s_lshl_b32 s{sCh}, s{sCh}, 7
            s_add_u32 s{sKB}, s{sKB}, s{sCh}
            s_lshl_b32 s{sLx}, s{sT}, 12
            s_lshl_b32 s{sLk}, s{sT}, 11""")

        def issueA(i):
            B = slot(i)
            self.chunk(sCh, i)
            a(f"s_lshl_b32 s{sO}, s{sCh}, 7\ns_add_u32 s{sO}, s{sO}, s{sXB}")
            for k in range(4):
                a(f"s_add_u32 m0, s{sLx}, {B + 1024 * k}")
                if i == 0 and k == 0:
                    a("s_waitcnt lgkmcnt(0)")
                    self.stamp("karg", "L")
                else:
                    a(f"s_add_u32 s{sO}, s{sO}, 16384" if k == 2 else "s_nop 0")
                a(f"buffer_load_dwordx4 v{vX0 if k % 2 == 0 else vX1}, {sr(sX, 4)}, s{sO} offen {self.cfg['xpol'] if i < self.cfg['xn'] else ''} lds")
                a.vm.issue(("A", i))
            a(f"s_mul_i32 s{sO}, s{sCh}, 196608")
            for k in range(2):
                a(f"s_add_u32 m0, s{sLk}, {B + 16384 + 1024 * k}")
                a(f"s_add_u32 s{sO}, s{sO}, {'s%d' % sKB if k == 0 else 24576}")
                a(f"buffer_load_dwordx4 v{vKV}, {sr(sWQ, 4)}, s{sO} offen {self.cfg['wpol'] if i < self.cfg['wn'] else ''} lds")
                a.vm.issue(("A", i))

        def issueQ(lo, hi):
            for i in range(lo, hi):
                self.chunk(sCh, i)
                a(f"""s_mul_i32 s{sO}, s{sCh}, 196608
                    s_add_u32 m0, s{sLq}, {QW + 4096 * i}
                    s_add_u32 s{sO}, s{sO}, s{sQB}
                    buffer_load_dwordx4 v{vQ}, {sr(sWQ, 4)}, s{sO} offen lds""")
                a.vm.issue(("Q", 0))

        def setup2():
            a(f"""v_lshrrev_b32 v4, 2, v0
                s_lshl_b32 s{sO}, s{sT}, 4
                v_add_u32 v4, s{sO}, v4
                v_mul_u32_u24 v4, 3072, v4
                v_and_b32 v5, 3, v0
                v_lshl_add_u32 v{vQ}, v5, 4, v4
                s_lshl_b32 s{sQB}, s{sC}, 6
                s_lshl_b32 s{sLq}, s{sT}, 10
                s_mov_b32 s{sVM}, 0x0000ffff
                s_mov_b32 s{sVM + 1}, 0x0000ffff""")
            if self.cfg["tq"]:
                cb = 5 - self.cfg["rbits"]
                nl = 1 << (cb - 1)
                a(f"""v_lshrrev_b32 v4, {cb - 1}, v0
                    v_mul_u32_u24 v4, 3072, v4
                    v_and_b32 v5, {nl - 1}, v0
                    v_lshl_add_u32 v4, v5, 7, v4
                    s_lshr_b32 s{sO}, s2, 3
                    s_lshl_b32 s{sO}, s{sO}, 2
                    s_add_u32 s{sO}, s{sO}, s{sT}
                    s_mul_i32 s{sO}, s{sO}, 12288
                    s_lshr_b32 s{sCh}, s{sC}, {cb}
                    s_lshl_b32 s{sCh}, s{sCh}, {cb + 6}
                    s_add_u32 s{sO}, s{sO}, s{sCh}
                    s_mov_b32 m0, {CNT + 64}
                    s_mov_b64 exec, {(1 << (4 * nl)) - 1}
                    buffer_load_dword v4, {sr(sWQ, 4)}, s{sO} offen {self.cfg['qpol']} lds
                    s_mov_b64 exec, -1""")
                a.vm.issue("touch")
            a("s_setprio 0")
            self.attn_init()
            a(f"s_setprio {self.cfg['prio_l']}")

        la = self.cfg["la"]
        qs = [int(ch) for ch in str(self.cfg["qs"])[1:]]
        assert sum(qs) == 8
        nxt = 0
        for b in range(9):
            while nxt < 8 and nxt <= b + la and nxt - NSLOT + 2 <= b:
                issueA(nxt)
                nxt += 1
            if b == 0:
                setup2()
            if b >= 6:
                issueQ(sum(qs[:b - 6]), sum(qs[:b - 5]))
            if b == 8 and qs[3]:
                a("s_barrier")
                issueQ(8 - qs[3], 8)
            tag = ("A", b) if b < 8 else ("Q", 0)
            a.vm.wait(tag)
            self.stamp(f"{tag[0]}{tag[1]}", "L")
            a("s_barrier")

    O_, S_, Q_, KV_ = 16, 80, 112, 128
    vIDX, vKo, vVo, vFl, vQa_, vOne, vCa, vPa, vPs = 12, 13, 14, 15, 6, 7, 1, 2, 3

    def attn_init(self):
        a = self.a
        NST = self.cfg["nst"]
        assert NST == 4
        sHd, sQ, sOff, sRow, sCnt, sLd, sFl = range(sT0 + 8, sT0 + 15)
        self.sHd, self.sQ, self.sOff, self.sKr, self.sCnt, self.sLd, self.sFl = sHd, sQ, sOff, sRow, sCnt, sLd, sFl
        a(f"""s_and_b32 s{sHd}, s{sW}, 1
            s_lshr_b32 s{sQ}, s{sT}, 1
            v_lshrrev_b32 v5, 5, v0
            s_and_b32 s{sRow}, s{sR}, {self.cfg['rowmask']}
            s_add_u32 s{sRow}, s{sRow}, s{sQ}
            s_and_b32 s{sRow}, s{sRow}, 15
            s_mov_b32 s{sCnt}, {32 // NST}
            v_lshlrev_b32 v{self.vKo}, 4, v0
            v_and_b32 v{self.vVo}, 15, v0
            v_lshlrev_b32 v{self.vVo}, 4, v{self.vVo}
            v_lshl_add_u32 v{self.vVo}, v5, 8, v{self.vVo}
            s_lshl_b32 s{sLd}, s{sHd}, 12
            s_add_u32 s{sLd}, s{sLd}, {QF}
            v_add_u32 v{self.vQa_}, s{sLd}, v{self.vKo}
            s_lshl_b32 s{sLd}, s{sQ}, 11
            v_add_u32 v{self.vQa_}, s{sLd}, v{self.vQa_}
            v_mov_b32 v{self.vIDX}, 0xdddddddd
            v_mov_b32 v{self.vOne}, 1
            v_and_b32 v4, 0x1b, v0
            v_cmp_eq_u32 vcc, 16, v4
            v_mov_b32 v4, 0x3f803f80
            s_mul_i32 s{sLd}, s{sT}, 4608
            v_cndmask_b32 v4, 0, v4, vcc
            s_add_u32 s{sLd}, s{sLd}, {PART}
            v_lshl_add_u32 v{self.vPa}, v0, 4, s{sLd}
            v_lshl_add_u32 v{self.vPs}, v0, 2, s{sLd}
            s_lshl_b32 s{sLd}, s{sHd}, 2
            s_add_u32 s{sLd}, s{sLd}, {CNT + 8}
            v_mov_b32 v{self.vCa}, s{sLd}
            s_lshl_b32 s{sLd}, s{sT}, 2
            s_add_u32 s{sLd}, s{sLd}, {CNT + 32}
            v_mov_b32 v{self.vFl}, s{sLd}""")
        for st in range(NST):
            for k in range(8):
                a(f"v_mov_b32 v{self.KV_ + 12 * st + 4 + k}, v4")
        for k in range(64):
            a(f"v_mov_b32 v{self.O_ + k}, 0")

    def attn_start(self):
        a = self.a
        NST = self.cfg["nst"]
        sOff = self.sOff
        sHB, sFB, sRow, sFl = sT0, sT0 + 1, self.sKr, self.sFl
        a(f"""s_lshl_b32 s{sHB}, s{sC}, 1
            s_add_u32 s{sHB}, s{sHB}, s{self.sHd}
            s_lshl_b32 s{sHB}, s{sHB}, 17
            s_lshr_b32 s{sFB}, s{sC}, 1
            s_lshl_b32 s{sFB}, s{sFB}, 11
            s_add_u32 s{sFB}, s{sFB}, {CKV}
            s_lshl_b32 s{sOff}, s{sRow}, 13
            s_add_u32 s{sOff}, s{sOff}, s{sHB}
            s_lshl_b32 s{sFl}, s{sRow}, 7
            s_add_u32 s{sFl}, s{sFl}, s{sFB}""")
        a(f"v_mov_b32 v5, {CNT}")
        if self.cfg["pwait"]:
            a.lg.reset()
            self.lds_probe(5, 4, 48)
            self.lds_check(5, 4, 48, 4 * self.cfg["pwait"])
        self.spoll(sFl, 8)
        self.stamp("KVpoll", "L")
        for st in range(NST - 1):
            b = self.KV_ + 12 * st
            a(f"""buffer_load_dwordx4 {vr(b, 4)}, v{self.vKo}, {sr(sWS, 4)}, s{sOff} offen sc1
                s_mov_b64 exec, {sr(sVM, 2)}
                buffer_load_dwordx4 {vr(b + 4, 4)}, v{self.vVo}, {sr(sWS, 4)}, s{sOff} offen offset:1024 sc1
                buffer_load_dwordx4 {vr(b + 8, 4)}, v{self.vVo}, {sr(sWS, 4)}, s{sOff} offen offset:1536 sc1
                s_mov_b64 exec, -1
                s_add_u32 s{sOff}, s{sOff}, 2048""")
        self.stamp("KViss", "L")
        a.lg.reset()
        self.lds_signal(5, self.vOne, 20)
        self.lds_probe(5, 4, 16)
        self.lds_check(5, 4, 16, 16)
        a(f"v_xor_b32 v4, 0x800, v{self.vQa_}")
        self.stamp("Qrdy", "L")
        for q in range(4):
            a(f"ds_read_b128 {vr(self.Q_ + 4 * q, 4)}, v{self.vQa_ if q >= 2 else 4} offset:{1024 * (q & 1)}")
        a(f"""s_add_u32 s{sRow}, s{sRow}, 2
            s_and_b32 s{sRow}, s{sRow}, 15
            s_lshl_b32 s{sFl}, s{sRow}, 7
            s_add_u32 s{sFl}, s{sFl}, s{sFB}
            s_mov_b32 s{sPV}, 0
            s_waitcnt lgkmcnt(0)
            s_mov_b64 exec, 1
            ds_add_u32 v5, v{self.vOne} offset:24
            s_mov_b64 exec, -1
            s_atomic_add s{sPV}, {sr(sWS, 2)}, s{sFl} glc
            s_waitcnt vmcnt({3 * (NST - 2)})
            v_mfma_f32_32x32x16_bf16 {vr(self.S_, 16)}, {vr(self.KV_, 4)}, {vr(self.Q_, 4)}, {self.cfg['shift']}
            s_nop 11""")

    def attn_loop(self):
        a = self.a
        NST = self.cfg["nst"]
        NT = 4 * NST
        O, S, Q, KV = self.O_, self.S_, self.Q_, self.KV_
        sOff, sRow, sCnt, sFl, sHB, sFB = self.sOff, self.sKr, self.sCnt, self.sFl, sT0, sT0 + 1
        sm = lambda st, qt, half, n: (f"v_smfmac_f32_32x32x32_bf16 {vr(O + 16 * qt, 16)}, {vr(KV + 12 * st + 4 + 4 * half, 4)}, "
                                      f"{vr(S + 16 * (n & 1) + 8 * half, 8)}, v{self.vIDX}")
        extra = {
            (2, 0): f"s_lshl_b32 s{sOff}, s{sRow}, 13\ns_add_u32 s{sOff}, s{sOff}, s{sHB}",
            (2, 2): f"s_cmp_eq_u32 s{sCnt}, 1\ns_cselect_b32 s{sOff}, {OOB}, s{sOff}",
            (3, 1): "s_waitcnt lgkmcnt(0)",
            (3, 2): f"s_cmp_lt_u32 s{sPV}, 8\ns_cbranch_scc1 L_kv_wait\nL_kv_ok:",
            (6, 0): f"s_add_u32 s{sRow}, s{sRow}, 2\ns_and_b32 s{sRow}, s{sRow}, 15",
            (6, 2): f"s_lshl_b32 s{sFl}, s{sRow}, 7\ns_add_u32 s{sFl}, s{sFl}, s{sFB}",
            (10, 0): f"s_mov_b32 s{sPV}, 0\ns_atomic_add s{sPV}, {sr(sWS, 2)}, s{sFl} glc",
            (NT - 3, 0): f"s_sub_u32 s{sCnt}, s{sCnt}, 1\ns_cmp_eq_u32 s{sCnt}, 0",
        }

        if self.cfg["chk"]:
            it, n0 = divmod(self.cfg["chk"], NT)
            assert n0 in (1, 4, 5, 8, 9, 12) and (n0, 0) not in extra
            extra[(n0, 0)] = f"s_cmp_eq_u32 s{sCnt}, {8 - it}\ns_cbranch_scc1 L_m_wait\nL_m_ok:"

        def ex(n, k):
            for l in extra.get((n, k), "").split("\n"):
                if l.endswith(":"):
                    a.label(l[:-1])
                else:
                    a(l)

        a(f"v_exp_f32 v{S}, v{S}\nv_exp_f32 v{S + 1}, v{S + 1}")
        a.raw(".p2align 6")
        a.label("L_attn")
        for n in range(NT + 1):
            st, qt = divmod(n, 4)
            cur = S + 16 * (n & 1)
            E = lambda lo, hi: [a(f"v_exp_f32 v{cur + k}, v{cur + k}") for k in range(lo, hi)]
            pst, pqt = divmod((n - 1) % NT, 4)
            nst, nqt = divmod((n + 1) % NT, 4)
            ld = KV + 12 * ((st - 1) % NST)
            if n:
                E(0, 2)
                a(sm(pst, pqt, 1, n - 1))
            if n == NT:
                break
            if n == NT - 2:
                a("s_cbranch_scc1 L_attn_tail")
            ex(n, 0)
            if qt == 3:
                a(f"s_waitcnt vmcnt({3 * (NST - 2)})")
            E(2, 5)
            a(f"v_mfma_f32_32x32x16_bf16 {vr(S + 16 * ((n + 1) & 1), 16)}, {vr(KV + 12 * nst, 4)}, {vr(Q + 4 * nqt, 4)}, {self.cfg['shift']}")
            ex(n, 1)
            if qt == 0 and not self.cfg["k1"]:
                a(f"buffer_load_dwordx4 {vr(ld, 4)}, v{self.vKo}, {sr(sWS, 4)}, s{sOff} offen sc1")
            if qt == 2 and st:
                a(f"s_add_u32 s{sOff}, s{sOff}, 2048")
            E(5, self.cfg["p1"])
            a(sm(st, qt, 0, n))
            ex(n, 2)
            if qt == 0 and self.cfg["k1"]:
                a(f"buffer_load_dwordx4 {vr(ld, 4)}, v{self.vKo}, {sr(sWS, 4)}, s{sOff} offen sc1")
            if qt == 1:
                a(f"""s_mov_b64 exec, {sr(sVM, 2)}
                    buffer_load_dwordx4 {vr(ld + 4, 4)}, v{self.vVo}, {sr(sWS, 4)}, s{sOff} offen offset:1024 sc1
                    buffer_load_dwordx4 {vr(ld + 8, 4)}, v{self.vVo}, {sr(sWS, 4)}, s{sOff} offen offset:1536 sc1
                    s_mov_b64 exec, -1""")
            E(self.cfg["p1"], 16)
        a("s_branch L_attn")
        self.sm = sm

    def attn_finish(self):
        a = self.a
        O, S, Q, KV, T, sm = self.O_, self.S_, self.Q_, self.KV_, 192, self.sm
        sA, sF, m = sT0, sT0 + 1, sT0 + 2
        E = lambda n, lo, hi: [a(f"v_exp_f32 v{S + 16 * (n & 1) + k}, v{S + 16 * (n & 1) + k}") for k in range(lo, hi)]

        def give(q):
            o = O + 16 * q
            a(f"""ds_write_b128 v{self.vPa}, {vr(o, 4)} offset:{2304 * q}
                ds_write_b128 v{self.vPa}, {vr(o + 4, 4)} offset:{2304 * q + 1024}
                ds_write_b32 v{self.vPs}, v{o + 8} offset:{2304 * q + 2048}""")

        a.label("L_attn_tail")
        a.lg.reset()
        a("s_waitcnt lgkmcnt(0)")
        give(0)
        E(14, 2, 5)
        a(f"v_mfma_f32_32x32x16_bf16 {vr(S + 16, 16)}, {vr(KV + 36, 4)}, {vr(Q + 12, 4)}, {self.cfg['shift']}")
        a(f"s_lshl_b32 s{sF}, s{sR}, 1")
        E(14, 5, 10)
        a(sm(3, 2, 0, 14))
        give(1)
        if self.cfg["rel"] == 0:
            a(f"ds_write_b32 v{self.vFl}, v{self.vOne}")
        self.lds_signal(self.vCa, self.vOne, 0)
        E(14, 10, 16)
        E(15, 0, 2)
        a(sm(3, 2, 1, 14))
        a(f"""s_add_u32 s{sF}, s{sF}, s{self.sQ}
            s_lshl_b32 s{sA}, s{sF}, 5
            s_add_u32 s{sA}, s{sA}, s{sC}
            s_lshl_b32 s{sA}, s{sA}, 1
            s_add_u32 s{sA}, s{sA}, s{self.sHd}
            s_mul_i32 s{m}, s{self.sQ}, -18432
            s_add_u32 s{m}, s{m}, 9216""")
        E(15, 2, 10)
        a(sm(3, 3, 0, 15))
        a(f"""s_lshl_b32 s{sA}, s{sA}, 10
            s_add_u32 s{sA}, s{sA}, {WS_O}
            v_add_u32 v{self.vPa}, s{m}, v{self.vPa}
            v_add_u32 v{self.vPs}, s{m}, v{self.vPs}""")
        self.lds_probe(self.vCa, 4, 0)

        def fetch():
            for q in range(2):
                a(f"""ds_read_b32 v{T + 12 * q + 8}, v{self.vPs} offset:{2304 * q + 2048}
                    ds_read_b128 {vr(T + 12 * q, 4)}, v{self.vPa} offset:{2304 * q}
                    ds_read_b128 {vr(T + 12 * q + 4, 4)}, v{self.vPa} offset:{2304 * q + 1024}""")

        if self.cfg["lfast"]:
            fetch()
        E(15, 10, 16)
        a(f"""s_lshl_b32 s{sF}, s{sF}, {2 + self.cfg['ott']}
            s_lshr_b32 s{m}, s{sC}, 2""")
        a(sm(3, 3, 1, 15))
        a(f"""s_add_u32 s{sF}, s{sF}, s{m}
            s_lshl_b32 s{sF}, s{sF}, 7
            s_add_u32 s{sF}, s{sF}, {CO}""")
        self.stamp("attn1", "L")
        have = self.lab("have")
        if self.cfg["lfast"]:
            a(f"s_waitcnt lgkmcnt(0)\nv_cmp_gt_u32 vcc, 2, v4")
        if self.cfg["rel"] == 1:
            a(f"ds_write_b32 v{self.vFl}, v{self.vOne}")
            a.lg.issue("rel")
        if self.cfg["lfast"]:
            a(f"s_cbranch_vccz {have}")
            a.lg.reset()
        self.lds_check(self.vCa, 4, 0, 2)
        self.stamp("pair", "L")
        fetch()
        a("s_waitcnt lgkmcnt(3)")
        a.label(have)
        for q in range(2):
            o, t = O + 32 + 16 * q, T + 12 * q
            if q:
                a("s_waitcnt lgkmcnt(0)")
            a(f"v_add_f32 v{o + 8}, v{o + 8}, v{t + 8}")
            for k in range(8):
                a(f"v_add_f32 v{o + k}, v{o + k}, v{t + k}")
            self.normalise(q)
        if self.cfg["rel"] == 2:
            a(f"ds_write_b32 v{self.vFl}, v{self.vOne}")
        self.stamp("Ost", "L")
        lo, hi = self.cfg.get("l_lo", 2.0 ** -24), self.cfg.get("l_hi", 2.0 ** 64)
        for q in range(2):
            o, t = O + 32 + 16 * q, T + 12 * q
            a(f"""v_pk_add_f32 {vr(t, 2)}, {vr(o, 2)}, {vr(o + 2, 2)}
                v_pk_add_f32 {vr(t + 2, 2)}, {vr(o + 4, 2)}, {vr(o + 6, 2)}
                v_cmp_lt_f32 vcc, {f32(lo)}, v{o + 8}
                v_pk_add_f32 {vr(t, 2)}, {vr(t, 2)}, {vr(t + 2, 2)}
                s_and_b64 {sr(m, 2)}, {'vcc' if q == 0 else sr(m, 2)}, vcc
                v_cmp_gt_f32 vcc, {f32(hi)}, v{o + 8}
                v_add_f32 v{t}, v{t}, v{t + 1}
                s_and_b64 {sr(m, 2)}, {sr(m, 2)}, vcc
                v_sub_f32 v{t}, v{t}, v{t}
                v_cmp_eq_f32 vcc, 0, v{t}
                s_and_b64 {sr(m, 2)}, {sr(m, 2)}, vcc""")
        a(f"s_cmp_eq_u64 {sr(m, 2)}, -1\ns_cbranch_scc0 L_fallback")
        a.label("L_publish")
        if self.cfg["ott"]:
            a(f"s_add_u32 s{m}, s{sF}, 512\ns_waitcnt vmcnt(1)")
            self.signal(sF)
            a("s_waitcnt vmcnt(0)")
            self.signal(m)
        else:
            a("s_waitcnt vmcnt(0)")
            self.signal(sF)

    def normalise(self, q):
        a = self.a
        o, d = self.O_ + 32 + 16 * q, 224 + 4 * q
        a(f"v_rcp_f32 v{o + 9}, v{o + 8}\ns_add_u32 s{sT0 + 4}, s{sT0}, {32768 * q}")
        for k in range(8):
            a(f"v_mul_f32 v{o + k}, v{o + k}, v{o + 9}")
        for k in range(4):
            a(f"v_cvt_pk_bf16_f32 v{d + k}, v{o + 2 * k}, v{o + 2 * k + 1}")
        a(f"buffer_store_dwordx4 {vr(d, 4)}, v{self.vKo}, {sr(sWS, 4)}, s{sT0 + 4} offen sc1")

    def fallback(self):
        a = self.a
        S, M, K, V, vMx = self.S_, self.S_ + 16, self.KV_, self.KV_ + 4, 4
        sO, sN = sT0 + 2, sT0 + 3
        a.label("L_kv_wait")
        self.spoll(self.sFl, 8, "L_kv_ok")
        if self.cfg["chk"]:
            a.label("L_m_wait")
            a.lg.reset()
            self.lds_probe(5, 4, 0)
            self.lds_check(5, 4, 0, self.cfg["chk_need"], nap=1)
            a("s_branch L_m_ok")
        a.label("L_fallback")
        a("s_waitcnt vmcnt(0)")
        for q in range(2):
            O, Q = self.O_ + 32 + 16 * q, self.Q_ + 8 + 4 * q
            a(f"""v_mov_b32 v{vMx}, 0xff800000
                s_lshl_b32 s{sO}, s{sC}, 1
                s_add_u32 s{sO}, s{sO}, s{self.sHd}
                s_lshl_b32 s{sO}, s{sO}, 17
                s_mov_b32 s{sN}, 64""")
            a.label(f"L_fb_max{q}")
            a(f"""buffer_load_dwordx4 {vr(K, 4)}, v{self.vKo}, {sr(sWS, 4)}, s{sO} offen sc1
                s_waitcnt vmcnt(0)
                v_mfma_f32_32x32x16_bf16 {vr(S, 16)}, {vr(K, 4)}, {vr(Q, 4)}, 0
                s_nop 11""")
            for k in range(8):
                a(f"v_max3_f32 v{vMx}, v{S + 2 * k}, v{S + 2 * k + 1}, v{vMx}")
            a(f"""s_add_u32 s{sO}, s{sO}, 2048
                s_sub_u32 s{sN}, s{sN}, 1
                s_cmp_lg_u32 s{sN}, 0
                s_cbranch_scc1 L_fb_max{q}
                v_mov_b32 v{M}, v{vMx}
                s_nop 1
                v_permlane32_swap_b32 v{vMx}, v{M}
                s_nop 1
                v_max_f32 v{vMx}, v{vMx}, v{M}
                s_sub_u32 s{sO}, s{sO}, 131072
                s_mov_b32 s{sN}, 64""")
            for k in range(16):
                a(f"v_sub_f32 v{M + k}, 0, v{vMx}\nv_mov_b32 v{O + k}, 0")
            a.label(f"L_fb_sum{q}")
            a(f"""buffer_load_dwordx4 {vr(K, 4)}, v{self.vKo}, {sr(sWS, 4)}, s{sO} offen sc1
                s_mov_b64 exec, {sr(sVM, 2)}
                buffer_load_dwordx4 {vr(V, 4)}, v{self.vVo}, {sr(sWS, 4)}, s{sO} offen offset:1024 sc1
                buffer_load_dwordx4 {vr(V + 4, 4)}, v{self.vVo}, {sr(sWS, 4)}, s{sO} offen offset:1536 sc1
                s_mov_b64 exec, -1
                s_waitcnt vmcnt(0)
                v_mfma_f32_32x32x16_bf16 {vr(S, 16)}, {vr(K, 4)}, {vr(Q, 4)}, {vr(M, 16)}
                s_nop 11""")
            for k in range(16):
                a(f"v_exp_f32 v{S + k}, v{S + k}")
            a(f"""s_nop 1
                v_smfmac_f32_32x32x32_bf16 {vr(O, 16)}, {vr(V, 4)}, {vr(S, 8)}, v{self.vIDX}
                v_smfmac_f32_32x32x32_bf16 {vr(O, 16)}, {vr(V + 4, 4)}, {vr(S + 8, 8)}, v{self.vIDX}
                s_nop 7
                s_add_u32 s{sO}, s{sO}, 2048
                s_sub_u32 s{sN}, s{sN}, 1
                s_cmp_lg_u32 s{sN}, 0
                s_cbranch_scc1 L_fb_sum{q}
                s_nop 3""")
            self.normalise(q)
        a("s_branch L_publish")

    XR, ACC, WS_ = 128, 32, 8
    vFlo, vD, vF, vCnt, v1_, vTmp = 0, 1, 2, 5, 6, 7

    def m_setup(self):
        a = self.a
        self.vXA, self.vXAh, self.vWk, self.vWkh, self.vQa, self.vST, self.vGo, self.vQFa, self.vGa = 80, 84, 88, 90, 92, 93, 94, 95, 96
        self.stamp("mjmp", "M")
        self.kload(sDBG, sWG, sWU, sWD, sWO, sOUT, sGW)
        self.srd(sDBG, sWG, sWU, sWD, sWO, sOUT, sGW)
        skip = self.lab("noreset")
        a(f"""s_lshr_b32 s{sT0 + 3}, s2, 5
            s_or_b32 s{sT0 + 3}, s{sT0 + 3}, s{sW}
            s_cmp_lg_u32 s{sT0 + 3}, 0
            s_cbranch_scc1 {skip}
            s_mul_i32 s{sT0 + 3}, s2, 2048
            s_add_u32 s{sT0 + 3}, s{sT0 + 3}, {WS_FLAG}
            s_mov_b32 s{sPV}, 0
            s_waitcnt lgkmcnt(0)""")
        for k in range(16):
            a(f"s_atomic_and s{sPV}, {sr(sWS, 2)}, s{sT0 + 3}\ns_add_u32 s{sT0 + 3}, s{sT0 + 3}, 128")
        a.label(skip)
        a(f"""s_lshl_b32 s{sRB}, s{sT0}, 2
            s_and_b32 s{sT0 + 2}, s{sT0 + 1}, 3
            s_add_u32 s{sRB}, s{sRB}, s{sT0 + 2}
            s_lshr_b32 s{sCB}, s{sT0 + 1}, 2
            v_and_b32 v16, 31, v0
            v_lshrrev_b32 v17, 5, v0
            v_bfe_u32 v18, v0, 1, 3
            v_xor_b32 v18, v18, v17
            s_lshl_b32 s{sT0}, s{sT}, 12
            v_lshlrev_b32 v19, 7, v16
            v_lshl_add_u32 v19, v18, 4, v19
            v_add_u32 v{self.vXA}, s{sT0}, v19""")
        for s in range(1, 4):
            a(f"v_xor_b32 v{self.vXA + s}, {32 * s}, v{self.vXA}")
        for s in range(4):
            a(f"v_add_u32 v{self.vXAh + s}, 0x10000, v{self.vXA + s}")
        a(f"""v_bfe_u32 v18, v0, 2, 2
            v_lshl_add_u32 v18, v17, 3, v18
            v_bfe_u32 v19, v0, 4, 1
            v_and_b32 v20, 3, v0
            v_lshlrev_b32 v20, 3, v20
            v_lshl_add_u32 v20, v19, 5, v20
            v_bfe_u32 v21, v0, 3, 1
            v_lshl_add_u32 v22, v18, 7, v20
            v_lshl_add_u32 v{self.vWk}, v21, 6, v22
            v_xor_b32 v{self.vWk + 1}, 64, v{self.vWk}
            v_add_u32 v{self.vWkh}, 0x10000, v{self.vWk}
            v_add_u32 v{self.vWkh + 1}, 0x10000, v{self.vWk + 1}
            v_lshl_add_u32 v{self.vQa}, v18, 6, v20
            v_add_u32 v{self.vQa}, {QW}, v{self.vQa}
            s_lshl_b32 s{sT0}, s{sT}, 10
            s_add_u32 s{sT0}, s{sT0}, {QF}
            v_lshl_add_u32 v{self.vQFa}, v0, 4, s{sT0}
            v_mul_u32_u24 v22, 192, v18
            v_and_b32 v23, 0x33, v0
            v_bfe_u32 v25, v0, 2, 1
            v_lshl_add_u32 v23, v25, 3, v23
            v_lshl_add_u32 v23, v21, 2, v23
            v_lshlrev_b32 v23, 4, v23
            v_and_b32 v24, 15, v0
            v_lshlrev_b32 v{self.vGa}, 7, v17
            v_lshlrev_b32 v24, 4, v24
            v_lshl_add_u32 v24, v17, 8, v24
            v_lshl_add_u32 v24, v19, 17, v24
            v_add_u32 v24, 1024, v24
            v_lshlrev_b32 v26, 4, v0
            s_lshl_b32 s{sT0}, s{sT}, 4""")
        for k in range(3):
            a(f"""v_add_u32 v27, {64 * k}, v0
                v_mul_u32_u24 v28, 2731, v27
                v_lshrrev_b32 v28, 15, v28
                v_mul_u32_u24 v29, 12, v28
                v_sub_u32 v29, v27, v29
                v_add_u32 v28, s{sT0}, v28
                v_mul_u32_u24 v28, 2752, v28
                v_lshl_add_u32 v{self.vF + k}, v29, 4, v28""")
        a(f"""v_add_u32 v{self.vFlo}, v22, v20
            v_add_u32 v{self.vFlo}, {fslot(0)}, v{self.vFlo}
            v_bfe_u32 v20, v26, 4, 3
            v_lshlrev_b32 v22, 2, v19
            v_xor_b32 v20, v20, v22
            v_lshlrev_b32 v20, 4, v20
            v_lshrrev_b32 v22, 7, v26
            v_lshl_add_u32 v{self.vD}, v22, 10, v20
            v_mov_b32 v{self.vCnt}, {CNT}
            v_lshl_add_u32 v{self.v1_}, v26, 3, 4""")
        for i in range(4):
            a(f"v_mov_b32 v{100 + i}, 0")
        a(f"ds_write_b128 v{self.vCnt}, v[100:103]\nds_write_b128 v{self.vCnt}, v[100:103] offset:16\nds_write_b128 v{self.vCnt}, v[100:103] offset:32\nds_write_b128 v{self.vCnt}, v[100:103] offset:48\ns_waitcnt lgkmcnt(0)")
        skip = self.lab("nogo")
        a(f"""s_lshr_b32 s{sT0}, s2, 5
            s_or_b32 s{sT0}, s{sT0}, s{sW}
            s_cmp_lg_u32 s{sT0}, 0
            s_cbranch_scc1 {skip}
            s_and_b32 s{sT0}, s2, 1
            s_lshl_b32 s{sT0}, s{sT0}, 7
            s_atomic_add s{sONE}, {sr(sDBG, 2)}, s{sT0}
            s_waitcnt lgkmcnt(0)""")
        a.label(skip)

    def pass_a(self, isv):
        a = self.a
        a.lg.reset()
        a.vm.reset()
        a(f"v_mov_b32 v{self.vST}, v{24 if isv else 23}")
        XR, ACC, W = self.XR, self.ACC, self.WS_
        sB = sT0 + 2
        atm = self.cfg["atm"]
        wr = lambda g: 104 if (g == 31 and atm) else W + 8 * (g % 3)

        def reads(g):
            i, s = divmod(g, 4)
            B = slot(i)
            self.dsr("ds_read_b128", XR + 4 * g, 4, self.vXA + s, self.vXAh + s, B, ("x", g))
            for ct in range(2):
                for u in range(2):
                    self.dsr("ds_read_b64_tr_b16", wr(g) + 4 * ct + 2 * u, 2, self.vWk + ct, self.vWkh + ct,
                             B + 16384 + (16 * s + 4 * u) * 128, ("w", g, ct))

        def comp(g, cts=(0, 1)):
            for ct in cts:
                a.lg.wait(("x", g), ("w", g, ct))
                wf, xf = vr(wr(g) + 4 * ct, 4), vr(XR + 4 * g, 4)
                d = vr(ACC + 16 * ct, 16)
                A, Bm = (xf, wf) if isv else (wf, xf)
                a(f"v_mfma_f32_32x32x16_bf16 {d}, {A}, {Bm}, {d if g else 0}")

        def kv_store(ct, q):
            d = 112 + 8 * ct + 4 * q
            for k in range(4):
                s = ACC + 16 * ct + 8 * q + 2 * k
                a(f"v_cvt_pk_bf16_f32 v{d + k}, v{s}, v{s + 1}")
            if isv:
                a(f"buffer_store_dwordx4 {vr(d, 4)}, v{self.vST}, {sr(sWS, 4)}, s{sB} offen offset:{512 * q} sc1")
                if q == 1 and ct == 0:
                    a(f"s_add_u32 s{sB}, s{sB}, 262144")
            else:
                a(f"buffer_store_dwordx4 {vr(d, 4)}, v{self.vST}, {sr(sWS, 4)}, s{sB} offen sc1")
                a(f"s_add_u32 s{sB}, s{sB}, 131072")

        a(f"""s_lshr_b32 s{sB}, s{sC}, 1
            s_lshl_b32 s{sB}, s{sB}, 19
            s_lshl_b32 s{sB + 1}, s{sR}, 2
            s_add_u32 s{sB + 1}, s{sB + 1}, s{sT}
            s_lshl_b32 s{sB + 1}, s{sB + 1}, 11
            s_add_u32 s{sB}, s{sB}, s{sB + 1}""")
        self.stamp("mrdy", "M")
        for i in range(8):
            g0 = 4 * i
            if i:
                a.lg.drain()
            if i == 7 and atm:
                comp(27)
                a("s_barrier")
                for g in range(28, 31):
                    reads(g)
                comp(28, (0,))
                reads(31)
                for g in range(29, 32):
                    comp(g, (0,))
                comp(28, (1,))
                a("s_nop 5")
                comp(29, (1,))
                a("s_nop 3")
                kv_store(0, 0)
                comp(30, (1,))
                comp(31, (1,))
                kv_store(0, 1)
                a("s_nop 5")
                kv_store(1, 0)
                kv_store(1, 1)
                break
            a("s_barrier")
            if i == 0:
                self.stamp("BA0", "M")
            reads(g0)
            reads(g0 + 1)
            if i:
                comp(g0 - 1)
            reads(g0 + 2)
            if i == 5:
                a(f"buffer_load_dword v{self.vGo}, v{self.vGa}, {sr(sDBG, 4)}, 0 offen sc1")
            comp(g0)
            reads(g0 + 3)
            comp(g0 + 1)
            comp(g0 + 2)
        if not atm:
            comp(31)
            a("s_nop 10")
            for k in range(4):
                kv_store(k >> 1, k & 1)
        self.stamp("KVst", "M")

    def kv_flag(self):
        a = self.a
        ok = self.lab("go")
        a(f"""s_lshr_b32 s{sT0}, s{sC}, 1
            s_lshl_b32 s{sT0}, s{sT0}, 4
            s_add_u32 s{sT0}, s{sT0}, s{sR}
            s_lshl_b32 s{sT0}, s{sT0}, 7
            s_add_u32 s{sT0}, s{sT0}, {CKV}
            s_waitcnt vmcnt({4 + len(a.vm.q)})
            v_cmp_gt_u32 vcc, 16, v{self.vGo}
            s_cbranch_vccz {ok}""")
        q = list(a.vm.q)
        self.poll(self.vGa, "0", self.vGo, sDBG)
        a.vm.q = q
        a.label(ok)

    def issue_f(self, i):
        a = self.a
        sCh, sO, sFB, sLf = sT0 + 4, sT0 + 5, sT0 + 6, sT0 + 7
        if i == 0:
            a(f"s_mul_i32 s{sFB}, s{sC}, 192\ns_mul_i32 s{sLf}, s{sT}, 3072")
        self.chunk(sCh, i)
        a(f"s_mul_i32 s{sO}, s{sCh}, 176128\ns_add_u32 s{sO}, s{sO}, s{sFB}")
        for m in range(2):
            for k in range(3):
                a(f"s_add_u32 m0, s{sLf}, {fslot(i) + 12288 * m + 1024 * k}\ns_nop 0")
                a(f"buffer_load_dwordx4 v{self.vF + k}, {sr(sWG if m == 0 else sWU, 4)}, s{sO} offen {self.cfg['fpol'] if i < self.cfg['fn'] else ''} lds")
                a.vm.issue(("F", i))

    def touch(self, i):
        a = self.a
        sA = sT0 + 8
        a(f"""s_lshr_b32 s{sA}, s2, 3
            s_lshl_b32 s{sA}, s{sA}, 2
            s_add_u32 s{sA}, s{sA}, s{sT}
            s_mul_i32 s{sA}, s{sA}, 11008
            s_add_u32 s{sA}, s{sA}, {2048 * i}
            s_mov_b32 m0, {CNT + 64}
            s_mov_b64 exec, {'0x3f' if i == 5 else '0xffff'}
            buffer_load_dword v{self.v1_}, {sr(sWD, 4)}, s{sA} offen lds
            s_mov_b64 exec, -1""")
        a.vm.issue("touch")

    def issue_wo(self, lo, hi):
        a = self.a
        sA, sL = sT0 + 8, sT0 + 9
        a(f"""s_lshl_b32 s{sA}, s{sT}, 17
            s_lshl_b32 s{sL}, s{sCB}, 7
            s_add_u32 s{sA}, s{sA}, s{sL}
            s_lshl_b32 s{sL}, s{sT}, 14""")
        for k in range(lo, hi):
            a(f"""s_add_u32 m0, s{sL}, {WOL + 1024 * k}
                s_add_u32 s{sA}, s{sA}, {8192 * (k if k == lo else 1)}
                buffer_load_dwordx4 v{self.vD}, {sr(sWO, 4)}, s{sA} offen lds""")
            a.vm.issue("wo")

    def pass_q(self):
        a = self.a
        XR, W, QACC = self.XR, self.WS_, 64
        a.lg.reset()
        a.vm.reset()
        flag_at, f0_at = self.cfg["kvflag_at"], self.cfg["f0_at"]

        def reads(g):
            for u in range(2):
                self.dsr("ds_read_b64_tr_b16", W + 4 * (g % 6) + 2 * u, 2, self.vQa, None, (16 * g + 4 * u) * 64, g)

        def hooks(j):
            if j == flag_at:
                if a.vm.q:
                    a(f"s_cmp_eq_u32 s{sC}, 15\ns_cbranch_scc0 L_kvw\ns_waitcnt vmcnt(0)")
                    a.label("L_kvw")
                a(f"s_waitcnt vmcnt({len(a.vm.q)})")
                self.stamp("KVack", "M")
                self.signal(sT0)
                if self.cfg["pwait"]:
                    self.lds_signal(self.vCnt, self.v1_, 48)
                self.stamp("KVflag", "M")
            if j == f0_at:
                skip = self.lab("nof0")
                a(f"s_cmp_eq_u32 s{sC}, 15\ns_cbranch_scc1 {skip}")
                self.issue_f(0)
                a.label(skip)
            if j == self.cfg["f1_at"]:
                skip = self.lab("nof1")
                a(f"s_cmp_eq_u32 s{sC}, 15\ns_cbranch_scc1 {skip}")
                self.issue_f(1)
                a.label(skip)

        if self.cfg["qs"] % 10:
            a("s_barrier")
        self.kv_flag()
        hooks(-2)
        hooks(-1)
        self.stamp("F0iss", "M")
        a("s_barrier")
        self.stamp("BQ", "M")
        for g in range(6):
            reads(g)
        nxt = 6
        for g in range(32):
            a.lg.wait(g)
            d = vr(QACC, 16)
            a(f"v_mfma_f32_32x32x16_bf16 {d}, {vr(W + 4 * (g % 6), 4)}, {vr(XR + 4 * g, 4)}, {d if g else 0}")
            if nxt < 32:
                reads(nxt)
                nxt += 1
            hooks(g)
        a(f"v_mov_b32 v98, {f32(0.25 * LOG2E)}\ns_nop 10")
        for k in range(8):
            a(f"v_pk_mul_f32 {vr(QACC + 2 * k, 2)}, {vr(QACC + 2 * k, 2)}, v[98:99] op_sel_hi:[1,0]")
        for hd in range(2):
            for k in range(4 * hd, 4 * hd + 4):
                a(f"v_cvt_pk_bf16_f32 v{QACC + k}, v{QACC + 2 * k}, v{QACC + 2 * k + 1}")
            a(f"ds_write_b128 v{self.vQFa}, {vr(QACC + 4 * hd, 4)} offset:{4096 * hd}")
        self.lds_signal(self.vCnt, self.v1_, 16)
        self.stamp("Qdone", "M")
        hooks(32)

    def pass_f(self):
        a = self.a
        XR, ACC, W = self.XR, self.ACC, self.WS_
        N, sig, gat, rchk = 192, self.cfg["sig_at"], self.cfg["gate_at"], self.cfg["rchk"]

        jit = [int(ch) for ch in str(self.cfg["jit"])[1:]]
        due = {(j, u): j - ((1, 2)[u] if jit[j // 24] else 6) for j in range(N) for u in range(2)}
        first = [min(due[(j, u)] for j in range(24 * i, 24 * i + 24) for u in range(2)) for i in range(8)]
        for (j, u) in due:
            if j // 24 < 7:
                due[(j, u)] = min(due[(j, u)], first[j // 24 + 1])
        todo = sorted(due, key=lambda k: (due[k], k[0] // 24, k[0], k[1]))
        cur = [0]

        def reads(now):
            while todo and due[todo[0]] <= now:
                j, u = todo.pop(0)
                g, t = divmod(j, 6)
                i, s = divmod(g, 4)
                if i != cur[0]:
                    self.boost()
                    a(f"v_add_u32 v{self.vFlo}, {(fslot(i) - fslot(i - 1)) & 0xffffffff}, v{self.vFlo}")
                    cur[0] = i
                self.dsr("ds_read_b64_tr_b16", W + 4 * (j % 6) + 2 * u, 2, self.vFlo, None,
                         12288 * (t & 1) + (16 * s + 4 * u) * 192 + 64 * (t >> 1), j)

        def landed(i):
            a.vm.wait(("F", i))
            self.lds_signal(self.vCnt, self.v1_, 0)
            self.boost()

        self.bg = bool(self.cfg["boost"])
        if gat < 0:
            self.lds_probe(self.vCnt, self.vTmp, 20)
            self.lds_check(self.vCnt, self.vTmp, 20, 4)
            self.issue_f(1)
        landed(0)
        self.lds_probe(self.vCnt, self.vTmp, 0)
        self.lds_check(self.vCnt, self.vTmp, 0, 16)
        self.stamp("F0", "M")
        reads(-1)
        for j in range(N):
            g, t = divmod(j, 6)
            i, jj = divmod(j, 24)
            if self.cfg["pulse"] and j % self.cfg["pulse"] == 0:
                self.boost()
            a.lg.wait(j)
            d = vr(ACC + 16 * t, 16)
            a(f"v_mfma_f32_32x32x16_bf16 {d}, {vr(W + 4 * (j % 6), 4)}, {vr(XR + 4 * g, 4)}, {d if g else 0}")
            self.unboost()
            if jj == 23:
                self.stamp(f"f{i}", "M")
            if j == gat - 2:
                self.lds_probe(self.vCnt, self.vTmp, 20)
            if j == gat:
                self.lds_check(self.vCnt, self.vTmp, 20, 4)
                self.issue_f(1 if self.cfg["f1_at"] > 32 else 2)
            if j == 26:
                self.lds_probe(self.vCnt, self.vTmp, 24)
            if j == 28:
                self.lds_check(self.vCnt, self.vTmp, 24, 4)
            if 1 <= i < 6:
                if jj == 0:
                    self.lds_signal(self.vCnt, self.v1_, 28)
                if jj == rchk - 2:
                    self.lds_probe(self.vCnt, self.vTmp, 28)
                if jj == rchk:
                    self.lds_check(self.vCnt, self.vTmp, 28, 16 * i)
                    self.issue_f(i + 2)
            if i == 7:
                if jj == 0:
                    self.lds_signal(self.vCnt, self.v1_, 28)
                    self.ffn2_scalars()
                if jj == rchk - 2:
                    self.lds_probe(self.vCnt, self.vTmp, 28)
                if jj == rchk:
                    self.lds_check(self.vCnt, self.vTmp, 28, 96)
                    a(f"v_add_u32 v{self.vD2}, 7168, v{self.vD}")
                    a.vm.wait("wo")
                if jj >= rchk and (jj - rchk) % 2 == 0 and jj - rchk < 12:
                    self.issue_w((jj - rchk) // 2)
            if i < 7:
                if jj == (sig if i else self.cfg["sig0"]):
                    landed(i + 1)
                    if i == 0 and self.cfg["f1_at"] > 32:
                        self.issue_f(2)
                if jj == self.cfg["wo_at"] and i:
                    self.touch(i - 1)
                    self.issue_wo(*((0, 3), (3, 6), (6, 9), (9, 12), (12, 14), (14, 16))[i - 1])
                if j == first[i + 1] - 2:
                    self.lds_probe(self.vCnt, self.vTmp, 0)
                if j == first[i + 1]:
                    self.lds_check(self.vCnt, self.vTmp, 0, 16 * (i + 2))
            reads(j)
        self.bg = False
        self.lds_signal(self.vCnt, self.v1_, 0)
        self.stamp("Fdone", "M")

    def gelu(self):
        a = self.a
        ACC = self.ACC
        c0, c1, T, OUT, vOff = 240, 242, 224, 200, self.vP
        sH, sV, sA = sT0 + 12, sT0 + 13, sT0 + 14
        prog = self.w_program()
        per_gap = [int(ch) for ch in str(self.cfg["gaps"])[1:]]
        k0 = -2.0 * 0.7978845608028654 * LOG2E
        a(f"""s_lshl_b32 s{sH}, s{sR}, 2
            s_add_u32 s{sH}, s{sH}, s{sT}
            s_mul_i32 s{sH}, s{sH}, 86
            s_mul_i32 s{sV}, s{sC}, 6
            s_add_u32 s{sH}, s{sH}, s{sV}
            s_lshl_b32 s{sH}, s{sH}, 10
            s_add_u32 s{sH}, s{sH}, {WS_H}""")
        self.ffn2_setup()
        if self.cfg["galign"]:
            a.raw(".p2align 3")
        a(f"""v_mov_b32 v{c0}, {f32(k0)}
            v_mov_b32 v{c0 + 1}, {f32(k0)}
            v_mov_b32 v{c1}, {f32(k0 * 0.044715)}
            v_mov_b32 v{c1 + 1}, {f32(k0 * 0.044715)}""")

        def stores(j):
            a(f"s_cmp_lt_u32 s{sV}, {86 - 2 * j}\ns_cselect_b32 s{sA}, s{sH}, {OOB}\ns_add_u32 s{sH}, s{sH}, 2048")
            for q in range(2):
                a(f"buffer_store_dwordx4 {vr(OUT + 8 * j + 4 * q, 4)}, v{vOff}, {sr(sWS, 4)}, s{sA} offen offset:{1024 * q} sc1")
                a.vm.issue("H")

        def gap(n):
            for _ in range(per_gap[n]):
                prog.pop(0)()
            if self.cfg["galign"]:
                a.raw(".p2align 3")

        for j in range(3):
            G, U = ACC + 32 * j, ACC + 32 * j + 16
            p = lambda b, k: vr(b + 2 * k, 2)
            for k in range(8):
                if j == 0 and k < self.cfg["plain"]:
                    a(f"v_mul_f32 v{T + 2 * k}, v{G + 2 * k}, v{G + 2 * k}\nv_mul_f32 v{T + 2 * k + 1}, v{G + 2 * k + 1}, v{G + 2 * k + 1}")
                else:
                    a(f"v_pk_mul_f32 {p(T, k)}, {p(G, k)}, {p(G, k)}")
            for k in range(8):
                a(f"v_pk_fma_f32 {p(T, k)}, {p(T, k)}, {vr(c1, 2)}, {vr(c0, 2)}")
            for k in range(8):
                a(f"v_pk_mul_f32 {p(T, k)}, {p(T, k)}, {p(G, k)}")
            if j:
                stores(j - 1)
            gap(2 * j)
            for k in range(16):
                a(f"v_exp_f32 v{T + k}, v{T + k}")
            for k in range(8):
                a(f"v_pk_mul_f32 {p(G, k)}, {p(G, k)}, {p(U, k)}")
            for k in range(8):
                a(f"v_pk_add_f32 {p(T, k)}, {p(T, k)}, 1.0 op_sel_hi:[1,0]")
            gap(2 * j + 1)
            for k in range(16):
                a(f"v_rcp_f32 v{T + k}, v{T + k}")
            for k in range(8):
                a(f"v_pk_mul_f32 {p(G, k)}, {p(G, k)}, {p(T, k)}")
            for k in range(8):
                a(f"v_cvt_pk_bf16_f32 v{OUT + 8 * j + k}, v{G + 2 * k}, v{G + 2 * k + 1}")
        stores(2)

    def gate(self):
        a = self.a
        XR, GB, Z, vO = self.XR, 32, 24, 28
        sCh = sT0 + 4
        a.vm.drain()
        a.lg.reset()
        self.lds_probe(self.vCnt, self.vTmp, 24)
        self.lds_check(self.vCnt, self.vTmp, 24, 4, nap=2)
        self.lane(vO + 1)
        a(f"v_lshrrev_b32 v{vO}, 5, v{vO + 1}\nv_lshlrev_b32 v{vO}, 4, v{vO}")
        for k in range(4):
            a(f"v_mov_b32 v{Z + k}, 0")
        for half in range(2):
            for i in range(4 * half, 4 * half + 4):
                self.chunk(sCh, i)
                a(f"s_lshl_b32 s{sCh}, s{sCh}, 7")
                for s in range(4):
                    a(f"buffer_load_dwordx4 {vr(GB + 16 * (i & 3) + 4 * s, 4)}, v{vO}, {sr(sGW, 4)}, s{sCh} offen offset:{32 * s}")
            for i in range(3 * half, 3 * half + 3):
                self.touch(i)
            a("s_waitcnt vmcnt(0)")
            for k in range(64):
                a(f"v_dot2c_f32_bf16 v{Z + (k & 3)}, v{XR + 64 * half + k}, v{GB + k}")
        a(f"""s_lshl_b32 s{sT0}, s{sR}, 2
            s_add_u32 s{sT0}, s{sT0}, s{sT}
            s_lshl_b32 s{sT0}, s{sT0}, 7
            s_add_u32 s{sT0}, s{sT0}, {WS_G}
            v_add_f32 v{Z}, v{Z}, v{Z + 1}
            v_add_f32 v{Z + 2}, v{Z + 2}, v{Z + 3}
            v_add_f32 v{Z}, v{Z}, v{Z + 2}
            v_mov_b32 v{Z + 1}, v{Z}
            v_lshlrev_b32 v{vO}, 2, v{vO + 1}
            s_nop 0
            v_permlane32_swap_b32 v{Z}, v{Z + 1}
            s_nop 1
            v_add_f32 v{Z}, v{Z}, v{Z + 1}
            s_mov_b32 s{sT0 + 12}, s{sT0}""")
        for k in range(0, 16, 4):
            self.issue_wo(k, k + 4)
            self.cap()
        a.vm.drain()
        a(f"v_mov_b32 v{self.vTmp}, 36")
        self.lds_signal(self.vCnt, self.vTmp, 0)
        self.ffn2_scalars()
        a(f"v_add_u32 v{self.vD2}, 7168, v{self.vD}")
        for k in range(6):
            self.issue_w(k)
            self.cap()
        self.ffn2_setup()
        for op in self.w_program()[:sum(int(ch) for ch in str(self.cfg["gaps"])[1:])]:
            op()
        a(f"""s_mov_b32 exec_hi, 0
            buffer_store_dword v{Z}, v{vO}, {sr(sWS, 4)}, s{sT0 + 12} offen sc1
            s_mov_b64 exec, -1""")

    vL, vH, vA0, vA1, vRel, vDump, vP, vZ, vD2, vH2, vT0, vB0, vB1 = 8, 10, 11, 12, 13, 15, 16, 17, 2, 19, 9, 14, 18

    sRB2 = 4
    FS = (5, 6, 7, 8, 9, 10, 11, sT0 + 12, sT0 + 13, sT0 + 14)

    def ffn2_scalars(self):
        a = self.a
        sRing, sS0, sS1, sWc, sW0, sWe, sHc, sH0, sHe, sHl, sFl, sRow = range(sT0, sT0 + 12)
        NS = 22
        a(f"""s_mul_i32 s{sRing}, s{sT}, 12288
            s_mul_i32 s{self.sRB2}, s{sT}, 6144
            s_add_u32 s{self.sRB2}, s{self.sRB2}, {SEGB}
            s_and_b32 s{sS0}, s{sRB}, 3
            s_lshl_b32 s{sS0}, s{sS0}, 1
            s_add_u32 s{sS0}, s{sS0}, s{sCB}
            s_and_b32 s{sS0}, s{sS0}, {7 if self.cfg['rot2'] else 0}
            s_mul_i32 s{sS0}, s{sS0}, 11
            s_lshr_b32 s{sS0}, s{sS0}, 2
            s_mul_i32 s{sS1}, s{sT}, {NS}
            s_lshl_b32 s{sW0}, s{sS1}, 14
            s_lshl_b32 s{sWc}, s{sCB}, 7
            s_add_u32 s{sW0}, s{sW0}, s{sWc}
            s_add_u32 s{sWe}, s{sW0}, {NS * 16384}
            s_lshl_b32 s{sWc}, s{sS0}, 14
            s_add_u32 s{sWc}, s{sWc}, s{sW0}
            s_mul_i32 s{sHl}, s{sRB}, 172
            s_add_u32 s{sH0}, s{sHl}, s{sS1}
            s_lshl_b32 s{sH0}, s{sH0}, 10
            s_add_u32 s{sH0}, s{sH0}, {WS_H}
            s_add_u32 s{sHe}, s{sH0}, {NS * 1024}
            s_lshl_b32 s{sHc}, s{sS0}, 10
            s_add_u32 s{sHc}, s{sHc}, s{sH0}
            s_lshl_b32 s{sHl}, s{sHl}, 10
            s_add_u32 s{sHl}, s{sHl}, {WS_H + 86 * 1024}
            s_lshl_b32 s{sFl}, s{sR}, 1
            s_lshr_b32 s{sS0}, s{sT}, 1
            s_add_u32 s{sFl}, s{sFl}, s{sS0}
            s_lshl_b32 s{sFl}, s{sFl}, 9
            s_add_u32 s{sFl}, s{sFl}, {CH}
            s_mov_b32 s{sRow}, 0x62223111
            s_cmp_ge_u32 s{sC}, 8
            s_cselect_b32 s{sRow}, 0xf8888444, s{sRow}
            s_and_b32 s{sS0}, s{sC}, 7
            s_lshl_b32 s{sS0}, s{sS0}, 2
            s_lshr_b32 s{sRow}, s{sRow}, s{sS0}""")

    def cap(self):
        a, CAP = self.a, self.cfg["cap"]
        if len(a.vm.q) > CAP:
            a.vm.q = a.vm.q[len(a.vm.q) - CAP:]
            a(f"s_waitcnt vmcnt({CAP})")

    def issue_w(self, s):
        a = self.a
        sRing, sS0, sS1, sWc, sW0, sWe = range(sT0, sT0 + 6)
        a(f"s_add_u32 m0, s{sRing if WSLOT[s] < 6 else self.sRB2}, {(WSLOT[s] % 6) * 2048}")
        if s:
            a(f"s_add_u32 s{sWc}, s{sWc}, 16384\ns_cmp_eq_u32 s{sWc}, s{sWe}\ns_cselect_b32 s{sWc}, s{sW0}, s{sWc}")
        else:
            a("s_nop 0")
        a(f"buffer_load_dwordx4 v{self.vD}, {sr(sWD, 4)}, s{sWc} offen lds")
        a(f"buffer_load_dwordx4 v{self.vD2}, {sr(sWD, 4)}, s{sWc} offen offset:1024 lds")
        a.vm.issue(("w", s))
        a.vm.issue(("w", s))

    @staticmethod
    def wreg(s):
        return 128 + 8 * s if s < 9 else 96 + 8 * (s - 9) if s < 13 else 128 + 8 * (s - 13)

    def w_reads(self, s):
        self.a.vm.wait(("w", s))
        regs = (self.vA0, self.vA1) if WSLOT[s] < 6 else (self.vB0, self.vB1)
        for ct in range(2):
            for u in range(2):
                self.dsr("ds_read_b64_tr_b16", self.wreg(s) + 4 * ct + 2 * u, 2, regs[ct], None,
                         (WSLOT[s] % 6) * 2048 + 1024 * u, (s, ct))

    def w_program(self, need=144):
        a = self.a

        def R(*steps):
            return lambda: [self.w_reads(s) for s in steps]

        def I(s):
            def op():
                prev = [p for p in range(s) if WSLOT[p] == WSLOT[s]]
                if prev:
                    a.lg.wait((prev[-1], 1))
                if s == 11:
                    self.lds_probe(self.vCnt, self.vTmp, 0)
                if s == 12:
                    self.lds_check(self.vCnt, self.vTmp, 0, need)
                self.issue_w(s)
                self.cap()
            return op

        return [R(0, 1, 2), I(6), I(7), R(3, 4, 5), I(8), I(9), I(10), I(11), I(12), I(13), R(6, 7, 8), I(14), I(15), I(16), I(17),
                R(9, 10), R(11, 12), I(18), I(19), I(20), I(21)]

    def ffn2_setup(self):
        a = self.a
        vL, vH, vA0, vA1, vRel, vDump, vP, vZ, vH2, vT0 = (self.vL, self.vH, self.vA0, self.vA1, self.vRel, self.vDump, self.vP,
                                                           self.vZ, self.vH2, self.vT0)
        sRing, sS0 = sT0, sT0 + 1
        self.lane(vL)
        a(f"""v_lshlrev_b32 v{vP}, 4, v{vL}
            s_and_b32 s{sS0}, s{sT}, 1
            s_mul_i32 s{sS0}, s{sS0}, 88064
            v_add_u32 v{vH}, s{sS0}, v{vP}
            s_sub_u32 s{sS0}, 88064, s{sS0}
            v_add_u32 v{vH2}, s{sS0}, v{vP}
            v_add_u32 v{vDump}, s{sRing}, v{vP}
            v_lshrrev_b32 v20, 5, v{vL}
            v_bfe_u32 v21, v{vL}, 2, 2
            v_lshl_add_u32 v20, v20, 2, v21
            v_and_b32 v21, 1, v{vL}
            v_lshlrev_b32 v21, 2, v21
            v_bfe_u32 v22, v{vL}, 4, 1
            v_lshl_add_u32 v21, v22, 1, v21
            v_bfe_u32 v23, v{vL}, 1, 1
            v_add_u32 v21, v21, v23
            v_lshlrev_b32 v21, 3, v21
            v_lshl_add_u32 v21, v20, 7, v21
            v_bfe_u32 v23, v{vL}, 3, 1
            v_lshl_add_u32 v21, v23, 6, v21
            s_lshr_b32 s{sS0}, s{sT}, 1
            s_lshl_b32 s{sS0}, s{sS0}, 6
            v_xor_b32 v{vT0}, s{sS0}, v21
            v_add_u32 v{vA0}, s{sRing}, v{vT0}
            v_xor_b32 v{vA1}, 64, v{vA0}
            v_add_u32 v{self.vB0}, s{self.sRB2}, v{vT0}
            v_xor_b32 v{self.vB1}, 64, v{self.vB0}
            s_lshl_b32 s{sS0}, s{sT}, 2
            v_add_u32 v{vRel}, s{sS0}, v{self.vCnt}
            v_and_b32 v{vZ}, 31, v{vL}
            v_lshlrev_b32 v30, 10, v{vZ}
            v_lshlrev_b32 v{vZ}, 2, v{vZ}
            v_lshrrev_b32 v20, 5, v{vL}
            v_lshl_add_u32 v30, v20, 5, v30
            v_add_u32 v31, s{self.sRB2}, v{vP}
            s_xor_b32 s{sS0}, s{sT}, 2
            s_mul_i32 s{sS0}, s{sS0}, 6144
            s_add_u32 s{sS0}, s{sS0}, {SEGB}
            v_add_u32 v20, s{sS0}, v{vP}""")
        for reg, d in ((21, 2), (22, 1), (23, 3)):
            a(f"s_xor_b32 s{sS0}, s{sT}, {d}\ns_mul_i32 s{sS0}, s{sS0}, 12288\nv_add_u32 v{reg}, s{sS0}, v{vP}")

    def ffn2(self):
        a = self.a
        ACC = 32
        vH, vRel, vDump, vZ, vH2 = self.vH, self.vRel, self.vDump, self.vZ, self.vH2
        sRing, sS0, sS1, sWc, sW0, sWe, sHc, sH0, sHe, sHl, sFl, sRow = range(sT0, sT0 + 12)
        NS, PD = 22, self.cfg["pd"]
        cap, issue_w, reads, wreg = self.cap, self.issue_w, self.w_reads, self.wreg
        hreg = lambda s: 200 + 8 * ((s + 6) % 7)
        a(f"s_setprio {self.cfg['prio_m']}")
        a.lg.reset()
        a.vm.reset()

        def issue_h(s):
            if s:
                a(f"""s_add_u32 s{sHc}, s{sHc}, 1024
                    s_cmp_eq_u32 s{sHc}, s{sHe}
                    s_cselect_b32 s{sHc}, s{sH0}, s{sHc}""")
            a(f"s_cmp_lt_u32 s{sHc}, s{sHl}\ns_cselect_b32 s{sS0}, s{sHc}, {OOB}")
            for tt in range(2):
                a(f"buffer_load_dwordx4 {vr(hreg(s) + 4 * tt, 4)}, v{(vH, vH2)[tt]}, {sr(sWS, 4)}, s{sS0} offen sc1")
                a.vm.issue(("h", s))

        done = sum(int(ch) for ch in str(self.cfg["gaps"])[1:])
        assert done <= 15 and done != 8
        prog = self.w_program()[done:]
        a("s_waitcnt vmcnt(0) lgkmcnt(0)")
        for k in range(4):
            skip = self.lab("nosig")
            a(f"s_bitcmp1_b32 s{sRow}, {k}\ns_cbranch_scc0 {skip}")
            self.signal(sFl)
            a.label(skip)
            a(f"s_add_u32 s{sFl}, s{sFl}, 128")
        self.stamp("Hflag", "M")
        a(f"""s_lshl_b32 s{sFl}, s{sRB}, 2
            s_add_u32 s{sFl}, s{sFl}, s{sT}
            s_lshl_b32 s{sFl}, s{sFl}, 7
            s_add_u32 s{sFl}, s{sFl}, {CH}
            s_cmp_eq_u32 s{sT}, 1
            s_cselect_b32 s{sRow}, 12, 10
            s_mov_b32 s{sPV}, 0""")
        for n, op in enumerate(prog):
            if n == len(prog) - 3:
                a.lg.drain()
                a(f"s_atomic_add s{sPV}, {sr(sWS, 2)}, s{sFl} glc")
            op()
        self.stamp("W0", "M")
        ready = self.lab("hready")
        a(f"s_waitcnt lgkmcnt(0)\ns_cmp_ge_u32 s{sPV}, s{sRow}\ns_cbranch_scc1 {ready}")
        self.spoll(sFl, f"s{sRow}")
        a.label(ready)
        self.stamp("Hpoll", "M")
        for s in range(PD):
            issue_h(s)
        a(f"""s_lshl_b32 s{sFl}, s{sRB}, 1
            s_and_b32 s{sS0}, s{sT}, 1
            s_add_u32 s{sFl}, s{sFl}, s{sS0}
            s_lshl_b32 s{sFl}, s{sFl}, 7
            s_add_u32 s{sFl}, s{sFl}, {WS_G}
            buffer_load_dword v{vZ}, v{vZ}, {sr(sWS, 4)}, s{sFl} offen sc1""")
        a.vm.issue("z")
        nh = PD
        hold = NS - self.cfg["defer"]
        assert hold <= 16 or hold == NS

        cnt = [0]

        def mm(s, ct, tt):
            self.bg = bool(self.cfg["pulse2"])
            if self.bg and cnt[0] % self.cfg["pulse2"] == 0:
                self.boost()
            cnt[0] += 1
            a.vm.wait(("h", s))
            a.lg.wait((s, ct))
            d = vr(ACC + 32 * tt + 16 * ct, 16)
            a(f"v_mfma_f32_32x32x16_bf16 {d}, {vr(wreg(s) + 4 * ct, 4)}, {vr(hreg(s) + 4 * tt, 4)}, {d if s else 0}")
            self.unboost()
            self.bg = False

        for s in range(17):
            if s == hold or s == 16:
                while nh < min(NS, s + 7):
                    issue_h(nh)
                    nh += 1
                    cap()
            if s == hold:
                self.stamp("hold", "M")
                self.lds_probe(vRel, self.vTmp, 32)
                self.lds_check(vRel, self.vTmp, 32, 1, nap=2)
                self.stamp("resume", "M")
            if s == 16:
                break
            self.stamp(f"s{s}", "M")
            if s == max(self.cfg["look"], hold if hold < NS else 0):
                a.lg.drain()
                self.final_setup()
            for k in range(4):
                mm(s, *divmod(k, 2))
                if k == 0 and nh < min(NS, s + 7):
                    issue_h(nh)
                    nh += 1
                if k == 1 and 1 <= s <= 9:
                    reads(s + 12)
        self.stamp("s16", "M")
        if max(self.cfg["look"], hold if hold < NS else 0) >= 16:
            a.lg.drain()
            self.final_setup()
        for n, (ct, tt) in enumerate(((0, 1), (1, 0), (1, 1), (0, 0))):
            for s in range(16, NS):
                mm(s, ct, tt)
                if n and s >= 18:
                    k = (8, 4, 12)[n - 1] + s - 18
                    if s == 18:
                        a(("s_nop 3", "s_nop 6", "s_nop 8")[n - 1])
                    a(f"ds_write_b128 v{vDump}, {vr(ACC + 4 * k, 4)} offset:{1024 * (k - 4)}")
                if n and 6 * (n - 1) + s - 16 < 9:
                    self.early_o(6 * (n - 1) + s - 16)
                if 6 * n + s - 16 == self.cfg["look2"]:
                    self.o_look()
        self.lds_signal(self.vCnt, self.v1_, 4)
        self.stamp("s22", "M")

    def final_setup(self):
        a = self.a
        sFl, sOut, sO, sA, sTT, sKh, sF2, sG, sE, sX = self.FS
        a(f"""s_and_b32 s{sTT}, s{sT}, 1
            s_lshr_b32 s{sKh}, s{sT}, 1
            s_lshl_b32 s{sFl}, s{sRB}, 1
            {f"s_add_u32 s{sFl}, s{sFl}, s{sTT}" if self.cfg['ott'] else ""}
            {f"s_lshl_b32 s{sFl}, s{sFl}, 1" if self.cfg['ott'] else ""}
            s_add_u32 s{sFl}, s{sFl}, s{sKh}
            s_lshl_b32 s{sFl}, s{sFl}, 8
            s_add_u32 s{sFl}, s{sFl}, {CO}
            s_add_u32 s{sF2}, s{sFl}, 128
            s_mov_b32 s{sPV}, 0
            s_mov_b32 s{sA}, 0
            s_atomic_add s{sPV}, {sr(sWS, 2)}, s{sFl} glc
            s_atomic_add s{sA}, {sr(sWS, 2)}, s{sF2} glc
            s_lshl_b32 s{sOut}, s{sRB}, 1
            s_add_u32 s{sOut}, s{sOut}, s{sTT}
            s_lshl_b32 s{sO}, s{sOut}, 5
            s_lshl_b32 s{sG}, s{sKh}, 4
            s_add_u32 s{sO}, s{sO}, s{sG}
            s_lshl_b32 s{sO}, s{sO}, 10
            s_add_u32 s{sO}, s{sO}, {WS_O}
            s_lshl_b32 s{sOut}, s{sOut}, 15
            s_lshl_b32 s{sG}, s{sCB}, 7
            s_add_u32 s{sOut}, s{sOut}, s{sG}
            s_lshl_b32 s{sG}, s{sKh}, 6
            s_add_u32 s{sOut}, s{sOut}, s{sG}""")

    @staticmethod
    def of(s):
        return 96 + 4 * s if s < 14 else 200 + 4 * (s - 14)

    def oloads(self, h, sO):
        a = self.a
        for s in range(8 * h, 8 * h + 8):
            if s % 8 == 4:
                a(f"s_add_u32 s{sO}, s{sO}, 4096")
            a(f"buffer_load_dwordx4 {vr(self.of(s), 4)}, v{self.vP}, {sr(sWS, 4)}, s{sO} offen offset:{1024 * (s % 4)} sc1")
            a.vm.issue(s)

    def o_look(self):
        sFl, sOut, sO, sA, sTT, sKh, sF2, sG, sE, sX = self.FS
        self.a(f"""s_mov_b32 s{sPV}, 0
            s_mov_b32 s{sA}, 0
            s_atomic_add s{sPV}, {sr(sWS, 2)}, s{sFl} glc
            s_atomic_add s{sA}, {sr(sWS, 2)}, s{sF2} glc""")

    def o_pick(self):
        sFl, sOut, sO, sA, sTT, sKh, sF2, sG, sE, sX = self.FS
        self.a(f"""s_cmp_lt_u32 s{sPV}, 8
            s_cselect_b32 s{sG}, 1, 0
            s_lshl_b32 s{sX}, s{sG}, 13
            s_add_u32 s{sT0 + 1}, s{sO}, s{sX}
            s_add_u32 s{sX}, s{sT0 + 1}, 4096""")

    def oload(self, s, lo, hi):
        self.a(f"buffer_load_dwordx4 {vr(self.of(s), 4)}, v{self.vP}, {sr(sWS, 4)}, s{lo if s % 8 < 4 else hi} offen offset:{1024 * (s % 4)} sc1")

    def early_o(self, n):
        a = self.a
        sFl, sOut, sO, sA, sTT, sKh, sF2, sG, sE, sX = self.FS
        if n == 0:
            a.vm.drain()
            a("s_waitcnt lgkmcnt(0)")
            self.o_pick()
            a(f"s_max_u32 s{sE}, s{sPV}, s{sA}\ns_lshr_b32 s{sE}, s{sE}, 3")
            return
        skip = self.lab("noearly")
        a(f"s_cbranch_scc0 {skip}")
        self.oload(n - 1, sT0 + 1, sX)
        a.label(skip)

    def final(self):
        a = self.a
        B, PT, OWN, OTH = 32, 48, 152, 168
        WO = lambda s: (184, 192, 208, 216, 224, 232, 240, 248)[s % 8]
        vL, vH, vX, vZ, vA0, vA1 = self.vL, self.vP, self.vDump, self.vZ, self.vA0, self.vA1
        vOut, vG, vP1, vP2, vP3, vB0, vB1, vXp, vX = 30, 2, 21, 22, 23, self.vB0, self.vB1, 20, 31
        sFl, sOut, sO, sA, sTT, sKh, sF2, sG, sE, sX = self.FS
        top, got, loaded, join = self.lab("opoll"), self.lab("ogot"), self.lab("oloaded"), self.lab("ojoin")
        a.lg.reset()
        a(f"""s_cmp_lg_u32 s{sE}, 0
            s_cbranch_scc1 {loaded}
            s_mov_b32 s{sSPIN}, 200000""")
        a.label(top)
        a(f"""s_waitcnt lgkmcnt(0)
            s_max_u32 s{sE}, s{sPV}, s{sA}
            s_cmp_ge_u32 s{sE}, 8
            s_cbranch_scc1 {got}""")
        self.o_look()
        a(f"""s_sub_u32 s{sSPIN}, s{sSPIN}, 1
            s_cbranch_scc0 {top}
            s_waitcnt lgkmcnt(0)""")
        a.label(got)
        self.o_pick()
        self.stamp("Opoll", "M")
        a.vm.reset()
        for s in range(8):
            self.oload(s, sT0 + 1, sX)
            a.vm.issue(s)
        self.o_look()
        a.label(loaded)
        a(f"s_xor_b32 s{sO}, s{sT0 + 1}, 0x2000")
        a(f"""s_xor_b32 s{sF2}, s{sG}, 1
            s_lshl_b32 s{sF2}, s{sF2}, 7
            s_add_u32 s{sF2}, s{sF2}, s{sFl}
            s_lshl_b32 s{sX}, s{sKh}, 1
            s_add_u32 s{sG}, s{sG}, s{sX}
            s_lshl_b32 s{sX}, s{sG}, 14
            s_add_u32 s{sX}, s{sX}, {WOL}
            v_add_u32 v{vA0}, s{sX}, v{self.vT0}
            s_xor_b32 s{sG}, s{sG}, 1
            s_lshl_b32 s{sX}, s{sG}, 14
            s_add_u32 s{sX}, s{sX}, {WOL}
            v_add_u32 v{vB0}, s{sX}, v{self.vT0}
            v_xor_b32 v{vA1}, 64, v{vA0}
            v_xor_b32 v{vB1}, 64, v{vB0}""")
        a.lg.reset()

        def wreads(s):
            if s >= 16:
                return
            for ct in range(2):
                for u in range(2):
                    self.dsr("ds_read_b64_tr_b16", WO(s) + 4 * ct + 2 * u, 2, ((vA0, vA1), (vB0, vB1))[s >> 3][ct], None,
                             (s & 7) * 2048 + 1024 * u, ("wo", s))

        def step(s):
            a.vm.wait(s)
            a.lg.wait(("wo", s))
            w = WO(s)
            ot, ow = (vr(OTH, 16), vr(OWN, 16)) if s < 8 else (vr(PT + 32, 16), vr(PT + 16, 16))
            a(f"v_mfma_f32_32x32x16_bf16 {ot}, {vr(w + 4, 4)}, {vr(self.of(s), 4)}, {ot if s % 8 else 0}")
            wreads(s + 2)
            if s < 4:
                self.oload(8 + 2 * s, sT0 + 1, sX)
                a.vm.issue(8 + 2 * s)
            if 2 <= s < 8:
                i, h = divmod(s - 2, 2)
                for k in range(8 * h, 8 * h + 4):
                    a(f"v_add_f32 v{B + k}, v{B + k}, v{PT + 16 * i + k}")
            a(f"v_mfma_f32_32x32x16_bf16 {ow}, {vr(w, 4)}, {vr(self.of(s), 4)}, {ow if s % 8 else 0}")
            if s < 4:
                self.oload(9 + 2 * s, sT0 + 1, sX)
                a.vm.issue(9 + 2 * s)
            if s < 6:
                i, h = divmod(s, 2)
                for q in range(2 * h, 2 * h + 2):
                    self.dsr("ds_read_b128", PT + 16 * i + 4 * q, 4, (vP1, vP2, vP3)[i], None, 4096 * i + 1024 * q, ("wo", s + 2))
            if 2 <= s < 8:
                i, h = divmod(s - 2, 2)
                for k in range(8 * h + 4, 8 * h + 8):
                    a(f"v_add_f32 v{B + k}, v{B + k}, v{PT + 16 * i + k}")
            if 8 <= s < 12:
                for k in range(4 * (s - 8), 4 * (s - 8) + 4):
                    a(f"v_mul_f32 v{B + k}, v{B + k}, v{vG + 2}")

        self.lds_probe(self.vCnt, self.vTmp, 4)
        for s in range(2):
            wreads(s)
        a(f"""v_mul_f32 v{vG}, {f32(LOG2E)}, v{vZ}
            v_exp_f32 v{vG + 2}, v{vG}
            v_exp_f32 v{vG}, -v{vG}
            s_nop 0
            v_add_f32 v{vG + 2}, 1.0, v{vG + 2}
            v_add_f32 v{vG}, 1.0, v{vG}
            v_rcp_f32 v{vG + 2}, v{vG + 2}
            v_rcp_f32 v{vG}, v{vG}""")
        self.lds_check(self.vCnt, self.vTmp, 4, 16)
        self.stamp("msync", "M")
        a.lg.drain()
        a(f"""s_min_u32 s{sE}, s{sPV}, s{sA}
            s_lshr_b32 s{sE}, s{sE}, 3
            s_cselect_b32 s{sT0 + 1}, s{sO}, {OOB}
            s_add_u32 s{sX}, s{sT0 + 1}, 4096""")
        for s in range(8):
            step(s)
            if s == self.cfg["look3"]:
                a(f"s_mov_b32 s{sPV}, 0\ns_atomic_add s{sPV}, {sr(sWS, 2)}, s{sF2} glc")
        q, le = list(a.vm.q), list(a.lg.q)
        if self.cfg["otm"]:
            for s in range(10, 16):
                wreads(s)
                a.lg.wait(("wo", s - 2))
            le = list(a.lg.q)
        a(f"s_cmp_lg_u32 s{sE}, 0\ns_cbranch_scc1 {join}")
        self.stamp("g1done", "M")
        seen = self.lab("oseen")
        if self.cfg["look3"] < 8:
            a(f"s_waitcnt lgkmcnt(0)\ns_cmp_ge_u32 s{sPV}, 8\ns_cbranch_scc1 {seen}")
        self.spoll(sF2, 8)
        a.label(seen)
        self.stamp("late", "M")
        a.vm.drain()
        self.oloads(1, sO)
        assert a.vm.q == q
        a.lg.q = le
        a.label(join)
        if not self.cfg["otm"]:
            for s in range(8, 16):
                step(s)
            self.stamp("Omfma", "M")
            a("s_nop 10")
            for q in range(4):
                for k in range(4 * q, 4 * q + 4):
                    a(f"v_add_f32 v{OTH + k}, v{OTH + k}, v{PT + 32 + k}")
                a(f"ds_write_b128 v{vX}, {vr(OTH + 4 * q, 4)} offset:{1024 * q}")
            for k in range(8):
                a(f"v_pk_add_f32 {vr(OWN + 2 * k, 2)}, {vr(OWN + 2 * k, 2)}, {vr(PT + 16 + 2 * k, 2)}")
            for k in range(8):
                a(f"v_pk_fma_f32 {vr(B + 2 * k, 2)}, {vr(OWN + 2 * k, 2)}, {vr(vG, 2)}, {vr(B + 2 * k, 2)} op_sel_hi:[1,0,1]")
        else:
            for k in range(16):
                a(f"v_mul_f32 v{B + k}, v{B + k}, v{vG + 2}")
            for s in range(8, 16):
                a.vm.wait(s)
                a.lg.wait(("wo", s))
                ot = vr(PT + 32, 16)
                a(f"v_mfma_f32_32x32x16_bf16 {ot}, {vr(WO(s) + 4, 4)}, {vr(self.of(s), 4)}, {ot if s % 8 else 0}")
            for s in range(8, 16):
                ow = vr(PT + 16, 16)
                a(f"v_mfma_f32_32x32x16_bf16 {ow}, {vr(WO(s), 4)}, {vr(self.of(s), 4)}, {ow if s % 8 else 0}")
                if s == 8:
                    a("s_nop 5")
                if s == 9:
                    a("s_nop 3")
                if 9 <= s < 13:
                    q = s - 9
                    for k in range(4 * q, 4 * q + 4):
                        a(f"v_add_f32 v{OTH + k}, v{OTH + k}, v{PT + 32 + k}")
                    a(f"ds_write_b128 v{vX}, {vr(OTH + 4 * q, 4)} offset:{1024 * q}")
            self.stamp("Omfma", "M")
        a("s_waitcnt lgkmcnt(0)\ns_barrier")
        self.stamp("bar", "M")
        for q in range(4):
            a(f"ds_read_b128 {vr(PT + 4 * q, 4)}, v{vXp} offset:{1024 * q}")
        if self.cfg["otm"]:
            a("s_nop 5")
            for k in range(8):
                a(f"v_pk_add_f32 {vr(OWN + 2 * k, 2)}, {vr(OWN + 2 * k, 2)}, {vr(PT + 16 + 2 * k, 2)}")
            for k in range(8):
                a(f"v_pk_fma_f32 {vr(B + 2 * k, 2)}, {vr(OWN + 2 * k, 2)}, {vr(vG, 2)}, {vr(B + 2 * k, 2)} op_sel_hi:[1,0,1]")
        for q in range(4):
            a(f"s_waitcnt lgkmcnt({3 - q})")
            for k in range(2):
                r = 4 * q + 2 * k
                a(f"v_pk_fma_f32 {vr(B + r, 2)}, {vr(PT + r, 2)}, {vr(vG, 2)}, {vr(B + r, 2)} op_sel_hi:[1,0,1]")
            for k in range(2):
                r = 4 * q + 2 * k
                a(f"v_cvt_pk_bf16_f32 v{64 + 2 * q + k}, v{B + r}, v{B + r + 1}")
            if q % 2 == 1:
                a(f"buffer_store_dwordx4 {vr(64 + 4 * (q // 2), 4)}, v{vOut}, {sr(sOUT, 4)}, s{sOut} offen offset:{16 * (q // 2)}")

    def build(self):
        a = self.a
        cfg = self.cfg
        self.prologue()
        a(f"s_setprio {cfg['prio_l']}")
        self.loader()
        self.attn_start()
        self.stamp("attn0", "L")
        self.attn_loop()
        self.attn_finish()
        self.stamp("Oflag", "L")
        self.dump_stamps(True)
        a("s_endpgm")

        a.label("L_mwave")
        if cfg["swap"]:
            a("s_setprio 1")
        self.m_setup()
        if cfg["swap"]:
            a(f"s_setprio {cfg['prio_m']}")
        a(f"s_bitcmp1_b32 s{sC}, 0\ns_cbranch_scc1 L_pass_v")
        self.pass_a(False)
        a("s_branch L_pass_q")
        a.label("L_pass_v")
        self.pass_a(True)
        a.label("L_pass_q")
        self.pass_q()
        a(f"s_cmp_eq_u32 s{sC}, 15\ns_cbranch_scc1 L_gate")
        self.pass_f()
        a(f"s_setprio {cfg['prio_gelu']}")
        self.gelu()
        a.label("L_ffn2")
        self.stamp("gelu", "M")
        self.ffn2()
        self.final()
        if cfg.get("stamps"):
            a("s_waitcnt vmcnt(0)")
            self.stamp("end", "M")
            self.dump_stamps(False)
        a.label("L_end")
        a("s_endpgm")
        a.label("L_gate")
        a(f"s_setprio {cfg['prio_gelu']}")
        self.gate()
        a("s_branch L_ffn2")
        self.fallback()
        return a.text()


HEADER = """; Fused kernel: out = g * MHA(x) + (1 - g) * GEGLU(x),  g = sigmoid(x . gate_w)
; Kernarg (88 bytes, pointers): 0 A_x, 8 A_wqkv, 16 A_wo, 24 B_x (unused by the reference), 32 B_w_gate, 40 B_w_up,
;   48 B_w_down, 56 gate_w, 64 d_out, 72 d_debug, 80 d_ws
;
; 256 workgroups of 8 waves, one per CU. Workgroup (c, r) owns 128 tokens (row block r) and column group c:
;   waves 0-3  K (c even) or V (c odd) for heads 4*(c>>1)..+3, Q for heads 2c, 2c+1, gate/up columns 96c..96c+95 with
;              GELU (group 15 computes the mixing logit instead), then one 64x64 tile of h @ w_down and o @ wo and the mix.
;   waves 4-7  stage x / w_qkv into LDS, then attention: one head, four query tiles, half of the keys per wave.
; Hand-offs between workgroups (K/V, h, logit, o) go through d_ws: write-through (sc1) stores, vmcnt wait, then an atomic
;   add on a counter; the reader polls the counter with atomics and loads with sc1. The counters are cleared at the start
;   of every launch by workgroups 0-31, which report that in d_debug; nobody touches a counter before seeing the report.
;   All waits are bounded. No hand-off depends on where a workgroup runs.
; Softmax: scores are exponentiated with a constant shift while that is exact, and the row sum is checked afterwards. A wave whose
;   row sum left [2^-24, 2^64], or whose result is not finite, recomputes its tiles with the true row maximum subtracted
;   (L_fallback) before it publishes them.
; P @ V uses the 2:4 sparse MFMA with an index that selects the upper halves of the f32 exponentials (bf16 by truncation);
;   a row of ones in the V operand yields the row sum from the same values.
; @launch grid=(256,1,1) block=(512,1,1) lds=%d
.amdgcn_target "amdgcn-amd-amdhsa--gfx950"
.text
.globl %s_kernel
.p2align 8
.type %s_kernel,@function
%s_kernel:
""" % (LDS_BYTES, NAME, NAME, NAME)

FOOTER = """.section .rodata,"a"
.p2align 6
.amdhsa_kernel %s_kernel
  .amdhsa_next_free_vgpr 256
  .amdhsa_next_free_sgpr 102
  .amdhsa_accum_offset 256
  .amdhsa_group_segment_fixed_size 0
  .amdhsa_kernarg_size 88
  .amdhsa_user_sgpr_count 2
  .amdhsa_user_sgpr_kernarg_segment_ptr 1
  .amdhsa_system_sgpr_workgroup_id_x 1
  .amdhsa_float_denorm_mode_32 3
.end_amdhsa_kernel
""" % NAME

DEFAULT = dict(stM='start,BA0,KVst,KVflag,Qdone,F0,Fdone,gelu,Hflag,Hpoll,ffn2,Opoll,Omfma,end',
               stL='start,karg,A0,A2,A7,KVpoll,Qrdy,attn0,attn1,Ost,Oflag',
               outpol='', rowmask=14, qs=14400, tf=0, gate_f=1, gate_at=-1, look=13, lfast=1, shift=4.0, pwait=4, p1=10, jit=100000000, chk=92, chk_need=144, look2=16, look3=1, gaps=1131110, plain=8, galign=1, k1=0, sig0=14, f1_at=99, swap=0, rel=1, touch=1, tq=1, f1_early=0, rbits=3, rot=4, rot2=1, la=2, nst=4, defer=0, tpol='', qpol='', xn=8, wn=8, fn=8, xpol='', wpol='', fpol='nt', hasync=1, otm=1, atm=1, kvflag_at=12, ott=1, f0_at=4, sig_at=8, rchk=10, wo_at=20, boost=0, pulse=0, pulse2=0, pd=5, cap=6, prio_l=2, prio_m=0, prio_gelu=3)


def generate(**kw):
    cfg = dict(DEFAULT)
    cfg.update(kw)
    body = Gen(cfg).build()
    msgs = lint(body)
    if cfg.get("stamps"):
        body += f"; STAMPS M {cfg['stM']}\n"
    return HEADER + body + FOOTER, msgs


if __name__ == "__main__":
    out = sys.argv[1]
    kw = {}
    for arg in sys.argv[2:]:
        k, v = arg.split("=")
        try:
            kw[k] = int(v)
        except ValueError:
            try:
                kw[k] = float(v)
            except ValueError:
                kw[k] = v
    text, msgs = generate(**kw)
    for m in msgs:
        print("LINT:", m)
    open(out, "w").write(text)
    print("wrote", out, len(text), "bytes,", text.count("\n"), "lines")
```

```python
import struct
import sys

from asmlib import Asm, lint, sr, vr

NAME = "gated_mix__softmax_full_mha__glu_gated_geglu__prompt"


def f32(x):
    return "0x%08x" % struct.unpack("<I", struct.pack("<f", x))[0]


LOG2E = 1.4426950408889634

WS_KV, WS_O, WS_H, WS_G, WS_FLAG, WS_STAMP = 0x000000, 0x400000, 0x600000, 0xBC0000, 0xC00000, 0xD00000
CKV, CH, CO = WS_FLAG, WS_FLAG + 128 * 128, WS_FLAG + 256 * 128
OOB = 0x20000000

NSLOT = 4
QW, QF, PART, CNT = 98304, 131072, 139776, 158208
FROW, FMAT = 3088, 12352
WOL, SEGB = 74240, 49152
WSLOT = [0, 1, 2, 3, 4, 5, 0, 1, 2, 3, 4, 5, 6, 7, 8, 0, 1, 2, 3, 4, 5, 6]
LDS_BYTES = 163840

sX, sWQ, sWO, sWG, sWU, sWD, sGW, sOUT, sDBG, sWS = 4, 8, 12, 16, 20, 24, 28, 32, 36, 40
sC, sR, sW, sT, sROT, sRB, sCB, sDEL = 44, 45, 46, 47, 48, 49, 50, 51
sONE, sPV = 71, 69
sVM = 52
sT0 = 54
sSPIN = 70
sSTAMP = 72
SIZES = {sX: 2097152, sWQ: 1572864, sWO: 524288, sWG: 1409024, sWU: 1409024, sWD: 1409024, sGW: 1024, sOUT: 2097152,
         sDBG: 256, sWS: 268435456}
KARG = {sX: 0, sWQ: 8, sWO: 16, sWG: 32, sWU: 40, sWD: 48, sGW: 56, sOUT: 64, sDBG: 72, sWS: 80}


def slot(n):
    return (n % NSLOT) * 24576


def fslot(n):
    return ((n + 1) % 3) * 2 * FMAT


class Gen:
    def __init__(self, cfg):
        self.cfg = cfg
        self.a = Asm()
        self.uid = 0
        self.bg = self.hi = False

    def lab(self, base):
        self.uid += 1
        return f"L_{base}_{self.uid}"

    def clock(self):
        return "s_memtime" if self.cfg.get("stamps") == 2 else "s_memrealtime"

    def names(self, role):
        if "pad" in self.cfg:
            return ["start", self.cfg["pad"]]
        return self.cfg["st" + role].split(",")

    def stamp(self, name, role):
        if self.cfg.get("stamps") and name in self.names(role):
            n = self.names(role).index(name)
            a = self.a
            a(f"{self.clock()} {sr(sSTAMP + 2 * n, 2)}")
            a.lg.drain()

    def dump_stamps(self, is_l):
        if not self.cfg.get("stamps"):
            return
        a = self.a
        if "pad" in self.cfg:
            n = 0 if self.cfg["pad"] == "start" else 1
            top, done = self.lab("pad"), self.lab("paddone")
            if is_l:
                a("s_barrier")
            if "padx" in self.cfg:
                a(f"""s_and_b32 s{sT0}, s2, 7
                    s_cmp_eq_u32 s{sT0}, {self.cfg['padx']}
                    s_cselect_b32 s{sSTAMP + 2 * n}, s{sSTAMP + 2 * n}, 0""")
            a(f"""s_waitcnt vmcnt(0) lgkmcnt(0)
                s_cmp_eq_u32 s{sSTAMP + 2 * n}, 0
                s_cbranch_scc1 {done}""")
            a.label(top)
            a(f"""s_sleep 4
                s_memrealtime {sr(sT0, 2)}
                s_waitcnt lgkmcnt(0)
                s_sub_u32 s{sT0}, s{sT0}, s{sSTAMP + 2 * n}
                s_cmp_lt_u32 s{sT0}, 6000
                s_cbranch_scc1 {top}""")
            a.label(done)
            return
        a(f"""s_lshl_b32 s{sT0}, s2, 3
            s_add_u32 s{sT0}, s{sT0}, s{sW}
            s_lshl_b32 s{sT0}, s{sT0}, 6
            s_add_u32 s{sT0}, s{sT0}, {WS_STAMP}
            s_mov_b64 exec, 1""")
        for n in range(14):
            a(f"v_mov_b32 v0, s{sSTAMP + 2 * n}")
            a(f"buffer_store_dword v0, off, {sr(sWS, 4)}, s{sT0} offset:{4 * n}")
        a("s_mov_b64 exec, -1")

    def lane(self, v):
        self.a(f"""v_mbcnt_lo_u32_b32 v{v}, -1, 0
            v_mbcnt_hi_u32_b32 v{v}, -1, v{v}""")

    def srd(self, *regs):
        for r in regs:
            self.a(f"s_mov_b32 s{r + 2}, {SIZES[r]}\ns_mov_b32 s{r + 3}, 0x00020000")

    def kload(self, *regs):
        for r in regs:
            self.a(f"s_load_dwordx2 {sr(r, 2)}, s[0:1], {KARG[r]}")

    def chunk(self, dst, i):
        a = self.a
        if self.cfg["rot"] in (3, 4):
            a(f"""s_add_u32 s{dst}, s{sDEL}, {i & 3}
                s_and_b32 s{dst}, s{dst}, 3
                s_add_u32 s{dst}, s{dst}, s{sROT}""")
            if i & 4:
                a(f"s_xor_b32 s{dst}, s{dst}, 4")
        else:
            a(f"s_add_u32 s{dst}, s{sROT}, {i}\ns_and_b32 s{dst}, s{dst}, 7")

    def dsr(self, op, dst, n, lo, hi, imm, tag):
        reg = lo
        if imm >= 65536:
            reg, imm = hi, imm - 65536
        assert 0 <= imm < 65536 and reg is not None
        self.a(f"{op} {vr(dst, n)}, v{reg} offset:{imm}")
        self.a.lg.issue(tag)

    def poll(self, voff, soff, tmp, srd=sWS):
        a = self.a
        top, done = self.lab("poll"), self.lab("pdone")
        a(f"s_mov_b32 s{sSPIN}, 100000")
        a.label(top)
        a(f"""buffer_load_dword v{tmp}, v{voff}, {sr(srd, 4)}, {soff} offen sc1
            s_waitcnt vmcnt(0)
            v_cmp_gt_u32 vcc, 16, v{tmp}
            s_cbranch_vccz {done}
            s_sleep 8
            s_sub_u32 s{sSPIN}, s{sSPIN}, 1
            s_cmp_lg_u32 s{sSPIN}, 0
            s_cbranch_scc1 {top}""")
        a.label(done)
        a.vm.reset()

    def signal(self, soff):
        self.a(f"s_atomic_add s{sONE}, {sr(sWS, 2)}, s{soff}")

    def spoll(self, soff, need, back=None):
        a = self.a
        top, done = self.lab("spoll"), back or self.lab("sdone")
        a(f"s_mov_b32 s{sSPIN}, 200000")
        a.label(top)
        a(f"""s_mov_b32 s{sPV}, 0
            s_atomic_add s{sPV}, {sr(sWS, 2)}, s{soff} glc
            s_waitcnt lgkmcnt(0)
            s_cmp_ge_u32 s{sPV}, {need}
            s_cbranch_scc1 {done}
            s_sub_u32 s{sSPIN}, s{sSPIN}, 1
            s_cmp_lg_u32 s{sSPIN}, 0
            s_cbranch_scc1 {top}""")
        if back:
            a(f"s_branch {back}")
        else:
            a.label(done)
        a.lg.reset()

    def lds_signal(self, addr, one, off):
        a = self.a
        a(f"""s_mov_b64 exec, 1
            ds_add_u32 v{addr}, v{one} offset:{off}
            s_mov_b64 exec, -1""")
        a.lg.issue("sig")

    def lds_probe(self, addr, tmp, off):
        self.a(f"ds_read_b32 v{tmp}, v{addr} offset:{off}")
        self.a.lg.issue("probe")

    def boost(self):
        if self.bg and not self.hi:
            self.a("s_setprio 3")
            self.hi = True

    def unboost(self):
        if self.hi:
            self.a(f"s_setprio {self.cfg['prio_m']}")
            self.hi = False

    def lds_check(self, addr, tmp, off, need, nap=0):
        a = self.a
        top, done = self.lab("lspin"), self.lab("ldone")
        self.boost()
        a.lg.wait("probe")
        a(f"""v_cmp_gt_u32 vcc, {need}, v{tmp}
            s_cbranch_vccz {done}
            s_mov_b32 s{sSPIN}, 1000000""")
        a.label(top)
        if nap:
            a(f"s_sleep {nap}")
        a(f"""ds_read_b32 v{tmp}, v{addr} offset:{off}
            s_waitcnt lgkmcnt(0)
            v_cmp_gt_u32 vcc, {need}, v{tmp}
            s_cbranch_vccz {done}
            s_sub_u32 s{sSPIN}, s{sSPIN}, 1
            s_cmp_lg_u32 s{sSPIN}, 0
            s_cbranch_scc1 {top}""")
        a.label(done)

    def prologue(self):
        a = self.a
        cfg = self.cfg
        rb = cfg["rbits"]
        a("s_cmp_ge_u32 s2, 256\ns_cbranch_scc1 L_end")
        if cfg.get("stamps"):
            a(f"{self.clock()} {sr(sSTAMP, 2)}")
        self.kload(sX, sWQ, sWS)
        if cfg.get("stamps"):
            for n in range(1, 14):
                a(f"s_mov_b32 s{sSTAMP + 2 * n}, 0")
        x, j, t = sT0, sT0 + 1, sT0 + 2
        a(f"""v_lshrrev_b32 v1, 6, v0
            s_and_b32 s{x}, s2, 7
            v_readfirstlane_b32 s{sW}, v1
            s_lshr_b32 s{j}, s2, 3
            v_and_b32 v0, 63, v0
            s_and_b32 s{sR}, s{x}, {(1 << (4 - rb)) - 1}
            s_lshl_b32 s{sR}, s{sR}, {rb}
            s_and_b32 s{t}, s{j}, {(1 << rb) - 1}
            s_add_u32 s{sR}, s{sR}, s{t}
            s_lshr_b32 s{sC}, s{x}, {4 - rb}
            s_lshl_b32 s{sC}, s{sC}, {5 - rb}
            s_lshr_b32 s{t}, s{j}, {rb}
            s_add_u32 s{sC}, s{sC}, s{t}
            s_and_b32 s{sT}, s{sW}, 3""")
        if cfg["swap"]:
            a(f"s_xor_b32 s{sW}, s{sW}, 4")
        rot = cfg["rot"]
        if rot == 0:
            a(f"s_mov_b32 s{sROT}, 0")
        elif rot == 1:
            a(f"""s_mul_i32 s{sROT}, s{sC}, {cfg.get('rotc', 2)}
                s_mul_i32 s{t}, s{sR}, {cfg.get('rotr', 1)}
                s_add_u32 s{sROT}, s{sROT}, s{t}
                s_and_b32 s{sROT}, s{sROT}, 7""")
        else:
            a(f"""s_add_u32 s{sROT}, s{sC}, s{sR}
                s_and_b32 s{sROT}, s{sROT}, 1
                s_lshl_b32 s{sROT}, s{sROT}, 2""")
            if rot == 3:
                a(f"s_mov_b32 s{sDEL}, 0")
            else:
                a(f"""s_lshr_b32 s{sDEL}, s{x}, 1
                    s_lshl_b32 s{t}, s{x}, 1
                    s_add_u32 s{sDEL}, s{sDEL}, s{t}""")
        self.srd(sWS)
        a(f"""s_mov_b32 s{sONE}, 1
            s_cmp_ge_u32 s{sW}, 4
            s_cbranch_scc0 L_mwave""")

    def loader(self):
        a = self.a
        a.vm.reset()
        vX0, vX1, vKV, vQ = 8, 9, 10, 11
        sXB, sKB, sQB, sLx, sLk, sLq, sCh, sO = range(sT0, sT0 + 8)
        self.srd(sX, sWQ)
        a(f"""v_lshrrev_b32 v1, 3, v0
            v_and_b32 v2, 7, v0
            v_lshrrev_b32 v3, 4, v0
            s_lshl_b32 s{sO}, s{sT}, 5
            v_add_u32 v4, s{sO}, v1
            v_xor_b32 v5, v2, v3
            v_lshlrev_b32 v5, 4, v5
            v_lshl_add_u32 v{vX0}, v4, 10, v5
            v_xor_b32 v{vX1}, 64, v{vX0}
            v_add_u32 v{vX1}, 8192, v{vX1}
            s_lshl_b32 s{sO}, s{sT}, 4
            v_add_u32 v4, s{sO}, v1
            v_mul_u32_u24 v4, 3072, v4
            v_and_b32 v5, 1, v3
            v_lshlrev_b32 v5, 2, v5
            v_xor_b32 v5, v2, v5
            v_lshl_add_u32 v{vKV}, v5, 4, v4
            s_lshl_b32 s{sXB}, s{sR}, 17
            s_and_b32 s{sKB}, s{sC}, 1
            s_add_u32 s{sKB}, s{sKB}, 1
            s_lshl_b32 s{sKB}, s{sKB}, 10
            s_lshr_b32 s{sCh}, s{sC}, 1
            s_lshl_b32 s{sCh}, s{sCh}, 7
            s_add_u32 s{sKB}, s{sKB}, s{sCh}
            s_lshl_b32 s{sLx}, s{sT}, 12
            s_lshl_b32 s{sLk}, s{sT}, 11""")

        def issueA(i):
            B = slot(i)
            self.chunk(sCh, i)
            a(f"s_lshl_b32 s{sO}, s{sCh}, 7\ns_add_u32 s{sO}, s{sO}, s{sXB}")
            for k in range(4):
                a(f"s_add_u32 m0, s{sLx}, {B + 1024 * k}")
                if i == 0 and k == 0:
                    a("s_waitcnt lgkmcnt(0)")
                    self.stamp("karg", "L")
                else:
                    a(f"s_add_u32 s{sO}, s{sO}, 16384" if k == 2 else "s_nop 0")
                a(f"buffer_load_dwordx4 v{vX0 if k % 2 == 0 else vX1}, {sr(sX, 4)}, s{sO} offen {self.cfg['xpol'] if i < self.cfg['xn'] else ''} lds")
                a.vm.issue(("A", i))
            a(f"s_mul_i32 s{sO}, s{sCh}, 196608")
            for k in range(2):
                a(f"s_add_u32 m0, s{sLk}, {B + 16384 + 1024 * k}")
                a(f"s_add_u32 s{sO}, s{sO}, {'s%d' % sKB if k == 0 else 24576}")
                a(f"buffer_load_dwordx4 v{vKV}, {sr(sWQ, 4)}, s{sO} offen {self.cfg['wpol'] if i < self.cfg['wn'] else ''} lds")
                a.vm.issue(("A", i))

        def issueQ(lo, hi):
            for i in range(lo, hi):
                self.chunk(sCh, i)
                a(f"""s_mul_i32 s{sO}, s{sCh}, 196608
                    s_add_u32 m0, s{sLq}, {QW + 4096 * i}
                    s_add_u32 s{sO}, s{sO}, s{sQB}
                    buffer_load_dwordx4 v{vQ}, {sr(sWQ, 4)}, s{sO} offen lds""")
                a.vm.issue(("Q", 0))

        def setup2():
            a(f"""v_lshrrev_b32 v4, 2, v0
                s_lshl_b32 s{sO}, s{sT}, 4
                v_add_u32 v4, s{sO}, v4
                v_mul_u32_u24 v4, 3072, v4
                v_and_b32 v5, 3, v0
                v_lshl_add_u32 v{vQ}, v5, 4, v4
                s_lshl_b32 s{sQB}, s{sC}, 6
                s_lshl_b32 s{sLq}, s{sT}, 10
                s_mov_b32 s{sVM}, 0x0000ffff
                s_mov_b32 s{sVM + 1}, 0x0000ffff""")
            if self.cfg["tq"]:
                cb = 5 - self.cfg["rbits"]
                nl = 1 << (cb - 1)
                a(f"""v_lshrrev_b32 v4, {cb - 1}, v0
                    v_mul_u32_u24 v4, 3072, v4
                    v_and_b32 v5, {nl - 1}, v0
                    v_lshl_add_u32 v4, v5, 7, v4
                    s_lshr_b32 s{sO}, s2, 3
                    s_lshl_b32 s{sO}, s{sO}, 2
                    s_add_u32 s{sO}, s{sO}, s{sT}
                    s_mul_i32 s{sO}, s{sO}, 12288
                    s_lshr_b32 s{sCh}, s{sC}, {cb}
                    s_lshl_b32 s{sCh}, s{sCh}, {cb + 6}
                    s_add_u32 s{sO}, s{sO}, s{sCh}
                    s_mov_b32 m0, {CNT + 64}
                    s_mov_b64 exec, {(1 << (4 * nl)) - 1}
                    buffer_load_dword v4, {sr(sWQ, 4)}, s{sO} offen {self.cfg['qpol']} lds
                    s_mov_b64 exec, -1""")
                a.vm.issue("touch")
            a("s_setprio 0")
            self.attn_init()
            a(f"s_setprio {self.cfg['prio_l']}")

        la = self.cfg["la"]
        qs = [int(ch) for ch in str(self.cfg["qs"])[1:]]
        assert sum(qs) == 8
        nxt = 0
        for b in range(9):
            while nxt < 8 and nxt <= b + la and nxt - NSLOT + 2 <= b:
                issueA(nxt)
                nxt += 1
            if b == 0:
                setup2()
            if b >= 6:
                issueQ(sum(qs[:b - 6]), sum(qs[:b - 5]))
            if b == 8 and qs[3]:
                a("s_barrier")
                issueQ(8 - qs[3], 8)
            tag = ("A", b) if b < 8 else ("Q", 0)
            a.vm.wait(tag)
            self.stamp(f"{tag[0]}{tag[1]}", "L")
            a("s_barrier")

    O_, S_, Q_, KV_ = 16, 80, 112, 128
    vIDX, vKo, vVo, vFl, vQa_, vOne, vCa, vPa, vPs = 12, 13, 14, 15, 6, 7, 1, 2, 3

    def attn_init(self):
        a = self.a
        NST = self.cfg["nst"]
        assert NST == 4
        sHd, sQ, sOff, sRow, sCnt, sLd, sFl = range(sT0 + 8, sT0 + 15)
        self.sHd, self.sQ, self.sOff, self.sKr, self.sCnt, self.sLd, self.sFl = sHd, sQ, sOff, sRow, sCnt, sLd, sFl
        a(f"""s_and_b32 s{sHd}, s{sW}, 1
            s_lshr_b32 s{sQ}, s{sT}, 1
            v_lshrrev_b32 v5, 5, v0
            s_and_b32 s{sRow}, s{sR}, {self.cfg['rowmask']}
            s_add_u32 s{sRow}, s{sRow}, s{sQ}
            s_and_b32 s{sRow}, s{sRow}, 15
            s_mov_b32 s{sCnt}, {32 // NST}
            v_lshlrev_b32 v{self.vKo}, 4, v0
            v_and_b32 v{self.vVo}, 15, v0
            v_lshlrev_b32 v{self.vVo}, 4, v{self.vVo}
            v_lshl_add_u32 v{self.vVo}, v5, 8, v{self.vVo}
            s_lshl_b32 s{sLd}, s{sHd}, 12
            s_add_u32 s{sLd}, s{sLd}, {QF}
            v_add_u32 v{self.vQa_}, s{sLd}, v{self.vKo}
            s_lshl_b32 s{sLd}, s{sQ}, 11
            v_add_u32 v{self.vQa_}, s{sLd}, v{self.vQa_}
            v_mov_b32 v{self.vIDX}, 0xdddddddd
            v_mov_b32 v{self.vOne}, 1
            v_and_b32 v4, 0x1b, v0
            v_cmp_eq_u32 vcc, 16, v4
            v_mov_b32 v4, 0x3f803f80
            s_mul_i32 s{sLd}, s{sT}, 4608
            v_cndmask_b32 v4, 0, v4, vcc
            s_add_u32 s{sLd}, s{sLd}, {PART}
            v_lshl_add_u32 v{self.vPa}, v0, 4, s{sLd}
            v_lshl_add_u32 v{self.vPs}, v0, 2, s{sLd}
            s_lshl_b32 s{sLd}, s{sHd}, 2
            s_add_u32 s{sLd}, s{sLd}, {CNT + 8}
            v_mov_b32 v{self.vCa}, s{sLd}
            s_lshl_b32 s{sLd}, s{sT}, 2
            s_add_u32 s{sLd}, s{sLd}, {CNT + 32}
            v_mov_b32 v{self.vFl}, s{sLd}""")
        for st in range(NST):
            for k in range(8):
                a(f"v_mov_b32 v{self.KV_ + 12 * st + 4 + k}, v4")
        for k in range(64):
            a(f"v_mov_b32 v{self.O_ + k}, 0")

    def attn_start(self):
        a = self.a
        NST = self.cfg["nst"]
        sOff = self.sOff
        sHB, sFB, sRow, sFl = sT0, sT0 + 1, self.sKr, self.sFl
        a(f"""s_lshl_b32 s{sHB}, s{sC}, 1
            s_add_u32 s{sHB}, s{sHB}, s{self.sHd}
            s_lshl_b32 s{sHB}, s{sHB}, 17
            s_lshr_b32 s{sFB}, s{sC}, 1
            s_lshl_b32 s{sFB}, s{sFB}, 11
            s_add_u32 s{sFB}, s{sFB}, {CKV}
            s_lshl_b32 s{sOff}, s{sRow}, 13
            s_add_u32 s{sOff}, s{sOff}, s{sHB}
            s_lshl_b32 s{sFl}, s{sRow}, 7
            s_add_u32 s{sFl}, s{sFl}, s{sFB}""")
        a(f"v_mov_b32 v5, {CNT}")
        if self.cfg["pwait"]:
            a.lg.reset()
            self.lds_probe(5, 4, 48)
            self.lds_check(5, 4, 48, 4 * self.cfg["pwait"])
        self.spoll(sFl, 8)
        self.stamp("KVpoll", "L")
        for st in range(NST - 1):
            b = self.KV_ + 12 * st
            a(f"""buffer_load_dwordx4 {vr(b, 4)}, v{self.vKo}, {sr(sWS, 4)}, s{sOff} offen sc1
                s_mov_b64 exec, {sr(sVM, 2)}
                buffer_load_dwordx4 {vr(b + 4, 4)}, v{self.vVo}, {sr(sWS, 4)}, s{sOff} offen offset:1024 sc1
                buffer_load_dwordx4 {vr(b + 8, 4)}, v{self.vVo}, {sr(sWS, 4)}, s{sOff} offen offset:1536 sc1
                s_mov_b64 exec, -1
                s_add_u32 s{sOff}, s{sOff}, 2048""")
        self.stamp("KViss", "L")
        a.lg.reset()
        self.lds_signal(5, self.vOne, 20)
        self.lds_probe(5, 4, 16)
        self.lds_check(5, 4, 16, 16)
        a(f"v_xor_b32 v4, 0x800, v{self.vQa_}")
        self.stamp("Qrdy", "L")
        for q in range(4):
            a(f"ds_read_b128 {vr(self.Q_ + 4 * q, 4)}, v{self.vQa_ if q >= 2 else 4} offset:{1024 * (q & 1)}")
        a(f"""s_add_u32 s{sRow}, s{sRow}, 2
            s_and_b32 s{sRow}, s{sRow}, 15
            s_lshl_b32 s{sFl}, s{sRow}, 7
            s_add_u32 s{sFl}, s{sFl}, s{sFB}
            s_mov_b32 s{sPV}, 0
            s_waitcnt lgkmcnt(0)
            s_mov_b64 exec, 1
            ds_add_u32 v5, v{self.vOne} offset:24
            s_mov_b64 exec, -1
            s_atomic_add s{sPV}, {sr(sWS, 2)}, s{sFl} glc
            s_waitcnt vmcnt({3 * (NST - 2)})
            v_mfma_f32_32x32x16_bf16 {vr(self.S_, 16)}, {vr(self.KV_, 4)}, {vr(self.Q_, 4)}, {self.cfg['shift']}
            s_nop 11""")

    def P(self, n):
        oop = self.cfg["oop"]
        return self.S_ + 16 * (n & 1) if not oop else 232 if oop == 1 else (176, 232)[n & 1]

    def attn_loop(self):
        a = self.a
        NST = self.cfg["nst"]
        NT = 4 * NST
        O, S, Q, KV = self.O_, self.S_, self.Q_, self.KV_
        sOff, sRow, sCnt, sFl, sHB, sFB = self.sOff, self.sKr, self.sCnt, self.sFl, sT0, sT0 + 1
        P = self.P
        sm = lambda st, qt, half, n: (f"v_smfmac_f32_32x32x32_bf16 {vr(O + 16 * qt, 16)}, {vr(KV + 12 * st + 4 + 4 * half, 4)}, "
                                      f"{vr(P(n) + 8 * half, 8)}, v{self.vIDX}")
        extra = {
            (2, 0): f"s_lshl_b32 s{sOff}, s{sRow}, 13\ns_add_u32 s{sOff}, s{sOff}, s{sHB}",
            (2, 2): f"s_cmp_eq_u32 s{sCnt}, 1\ns_cselect_b32 s{sOff}, {OOB}, s{sOff}",
            (3, 1): "s_waitcnt lgkmcnt(0)",
            (3, 2): f"s_cmp_lt_u32 s{sPV}, 8\ns_cbranch_scc1 L_kv_wait\nL_kv_ok:",
            (6, 0): f"s_add_u32 s{sRow}, s{sRow}, 2\ns_and_b32 s{sRow}, s{sRow}, 15",
            (6, 2): f"s_lshl_b32 s{sFl}, s{sRow}, 7\ns_add_u32 s{sFl}, s{sFl}, s{sFB}",
            (10, 0): f"s_mov_b32 s{sPV}, 0\ns_atomic_add s{sPV}, {sr(sWS, 2)}, s{sFl} glc",
            (NT - 3, 0): f"s_sub_u32 s{sCnt}, s{sCnt}, 1\ns_cmp_eq_u32 s{sCnt}, 0",
        }

        if self.cfg["chk"]:
            it, n0 = divmod(self.cfg["chk"], NT)
            assert n0 in (1, 4, 5, 8, 9, 12) and (n0, 0) not in extra
            extra[(n0, 0)] = f"s_cmp_eq_u32 s{sCnt}, {8 - it}\ns_cbranch_scc1 L_m_wait\nL_m_ok:"

        def ex(n, k):
            for l in extra.get((n, k), "").split("\n"):
                if l.endswith(":"):
                    a.label(l[:-1])
                else:
                    a(l)

        a(f"v_exp_f32 v{P(0)}, v{S}\nv_exp_f32 v{P(0) + 1}, v{S + 1}")
        a.raw(".p2align 6")
        a.label("L_attn")
        for n in range(NT + 1):
            st, qt = divmod(n, 4)
            cur = S + 16 * (n & 1)
            E = lambda lo, hi: [a(f"v_exp_f32 v{P(n) + k}, v{cur + k}") for k in range(lo, hi)]
            pst, pqt = divmod((n - 1) % NT, 4)
            nst, nqt = divmod((n + 1) % NT, 4)
            ld = KV + 12 * ((st - 1) % NST)
            if n:
                E(0, 2)
                a(sm(pst, pqt, 1, n - 1))
            if n == NT:
                break
            if n == NT - 2:
                a("s_cbranch_scc1 L_attn_tail")
            ex(n, 0)
            if qt == 3:
                a(f"s_waitcnt vmcnt({3 * (NST - 2)})")
            E(2, 5)
            a(f"v_mfma_f32_32x32x16_bf16 {vr(S + 16 * ((n + 1) & 1), 16)}, {vr(KV + 12 * nst, 4)}, {vr(Q + 4 * nqt, 4)}, {self.cfg['shift']}")
            ex(n, 1)
            if qt == 0 and not self.cfg["k1"]:
                a(f"buffer_load_dwordx4 {vr(ld, 4)}, v{self.vKo}, {sr(sWS, 4)}, s{sOff} offen sc1")
            if qt == 2 and st:
                a(f"s_add_u32 s{sOff}, s{sOff}, 2048")
            E(5, self.cfg["p1"])
            a(sm(st, qt, 0, n))
            ex(n, 2)
            if qt == 0 and self.cfg["k1"]:
                a(f"buffer_load_dwordx4 {vr(ld, 4)}, v{self.vKo}, {sr(sWS, 4)}, s{sOff} offen sc1")
            if qt == 1:
                a(f"""s_mov_b64 exec, {sr(sVM, 2)}
                    buffer_load_dwordx4 {vr(ld + 4, 4)}, v{self.vVo}, {sr(sWS, 4)}, s{sOff} offen offset:1024 sc1
                    buffer_load_dwordx4 {vr(ld + 8, 4)}, v{self.vVo}, {sr(sWS, 4)}, s{sOff} offen offset:1536 sc1
                    s_mov_b64 exec, -1""")
            E(self.cfg["p1"], 16)
        a("s_branch L_attn")
        self.sm = sm

    def attn_finish(self):
        a = self.a
        O, S, Q, KV, T, sm = self.O_, self.S_, self.Q_, self.KV_, 192, self.sm
        sA, sF, m = sT0, sT0 + 1, sT0 + 2
        E = lambda n, lo, hi: [a(f"v_exp_f32 v{self.P(n) + k}, v{S + 16 * (n & 1) + k}") for k in range(lo, hi)]

        def give(q):
            o = O + 16 * q
            a(f"""ds_write_b128 v{self.vPa}, {vr(o, 4)} offset:{2304 * q}
                ds_write_b128 v{self.vPa}, {vr(o + 4, 4)} offset:{2304 * q + 1024}
                ds_write_b32 v{self.vPs}, v{o + 8} offset:{2304 * q + 2048}""")

        a.label("L_attn_tail")
        a.lg.reset()
        a("s_waitcnt lgkmcnt(0)")
        give(0)
        E(14, 2, 5)
        a(f"v_mfma_f32_32x32x16_bf16 {vr(S + 16, 16)}, {vr(KV + 36, 4)}, {vr(Q + 12, 4)}, {self.cfg['shift']}")
        a(f"s_lshl_b32 s{sF}, s{sR}, 1")
        E(14, 5, 10)
        a(sm(3, 2, 0, 14))
        give(1)
        if self.cfg["rel"] == 0:
            a(f"ds_write_b32 v{self.vFl}, v{self.vOne}")
        self.lds_signal(self.vCa, self.vOne, 0)
        E(14, 10, 16)
        E(15, 0, 2)
        a(sm(3, 2, 1, 14))
        a(f"""s_add_u32 s{sF}, s{sF}, s{self.sQ}
            s_lshl_b32 s{sA}, s{sF}, 5
            s_add_u32 s{sA}, s{sA}, s{sC}
            s_lshl_b32 s{sA}, s{sA}, 1
            s_add_u32 s{sA}, s{sA}, s{self.sHd}
            s_mul_i32 s{m}, s{self.sQ}, -18432
            s_add_u32 s{m}, s{m}, 9216""")
        E(15, 2, 10)
        a(sm(3, 3, 0, 15))
        a(f"""s_lshl_b32 s{sA}, s{sA}, 10
            s_add_u32 s{sA}, s{sA}, {WS_O}
            v_add_u32 v{self.vPa}, s{m}, v{self.vPa}
            v_add_u32 v{self.vPs}, s{m}, v{self.vPs}""")
        self.lds_probe(self.vCa, 4, 0)

        def fetch():
            for q in range(2):
                a(f"""ds_read_b32 v{T + 12 * q + 8}, v{self.vPs} offset:{2304 * q + 2048}
                    ds_read_b128 {vr(T + 12 * q, 4)}, v{self.vPa} offset:{2304 * q}
                    ds_read_b128 {vr(T + 12 * q + 4, 4)}, v{self.vPa} offset:{2304 * q + 1024}""")

        if self.cfg["lfast"]:
            fetch()
        E(15, 10, 16)
        a(f"""s_lshl_b32 s{sF}, s{sF}, {2 + self.cfg['ott']}
            s_lshr_b32 s{m}, s{sC}, 2""")
        a(sm(3, 3, 1, 15))
        a(f"""s_add_u32 s{sF}, s{sF}, s{m}
            s_lshl_b32 s{sF}, s{sF}, 7
            s_add_u32 s{sF}, s{sF}, {CO}""")
        self.stamp("attn1", "L")
        have = self.lab("have")
        if self.cfg["lfast"]:
            a(f"s_waitcnt lgkmcnt(0)\nv_cmp_gt_u32 vcc, 2, v4")
        if self.cfg["rel"] == 1:
            a(f"ds_write_b32 v{self.vFl}, v{self.vOne}")
            a.lg.issue("rel")
        if self.cfg["lfast"]:
            a(f"s_cbranch_vccz {have}")
            a.lg.reset()
        self.lds_check(self.vCa, 4, 0, 2)
        self.stamp("pair", "L")
        fetch()
        a("s_waitcnt lgkmcnt(3)")
        a.label(have)
        for q in range(2):
            o, t = O + 32 + 16 * q, T + 12 * q
            if q:
                a("s_waitcnt lgkmcnt(0)")
            a(f"v_add_f32 v{o + 8}, v{o + 8}, v{t + 8}")
            for k in range(8):
                a(f"v_add_f32 v{o + k}, v{o + k}, v{t + k}")
            self.normalise(q)
        if self.cfg["rel"] == 2:
            a(f"ds_write_b32 v{self.vFl}, v{self.vOne}")
        self.stamp("Ost", "L")
        lo, hi = self.cfg.get("l_lo", 2.0 ** -24), self.cfg.get("l_hi", 2.0 ** 64)
        for q in range(2):
            o, t = O + 32 + 16 * q, T + 12 * q
            a(f"""v_pk_add_f32 {vr(t, 2)}, {vr(o, 2)}, {vr(o + 2, 2)}
                v_pk_add_f32 {vr(t + 2, 2)}, {vr(o + 4, 2)}, {vr(o + 6, 2)}
                v_cmp_lt_f32 vcc, {f32(lo)}, v{o + 8}
                v_pk_add_f32 {vr(t, 2)}, {vr(t, 2)}, {vr(t + 2, 2)}
                s_and_b64 {sr(m, 2)}, {'vcc' if q == 0 else sr(m, 2)}, vcc
                v_cmp_gt_f32 vcc, {f32(hi)}, v{o + 8}
                v_add_f32 v{t}, v{t}, v{t + 1}
                s_and_b64 {sr(m, 2)}, {sr(m, 2)}, vcc
                v_sub_f32 v{t}, v{t}, v{t}
                v_cmp_eq_f32 vcc, 0, v{t}
                s_and_b64 {sr(m, 2)}, {sr(m, 2)}, vcc""")
        a(f"s_cmp_eq_u64 {sr(m, 2)}, -1\ns_cbranch_scc0 L_fallback")
        a.label("L_publish")
        if self.cfg["ott"]:
            a(f"s_add_u32 s{m}, s{sF}, 512\ns_waitcnt vmcnt(1)")
            self.signal(sF)
            a("s_waitcnt vmcnt(0)")
            self.signal(m)
        else:
            a("s_waitcnt vmcnt(0)")
            self.signal(sF)

    def normalise(self, q):
        a = self.a
        o, d = self.O_ + 32 + 16 * q, 224 + 4 * q
        a(f"v_rcp_f32 v{o + 9}, v{o + 8}\ns_add_u32 s{sT0 + 4}, s{sT0}, {32768 * q}")
        for k in range(8):
            a(f"v_mul_f32 v{o + k}, v{o + k}, v{o + 9}")
        for k in range(4):
            a(f"v_cvt_pk_bf16_f32 v{d + k}, v{o + 2 * k}, v{o + 2 * k + 1}")
        a(f"buffer_store_dwordx4 {vr(d, 4)}, v{self.vKo}, {sr(sWS, 4)}, s{sT0 + 4} offen sc1")

    def fallback(self):
        a = self.a
        S, M, K, V, vMx = self.S_, self.S_ + 16, self.KV_, self.KV_ + 4, 4
        sO, sN = sT0 + 2, sT0 + 3
        a.label("L_kv_wait")
        self.spoll(self.sFl, 8, "L_kv_ok")
        if self.cfg["chk"]:
            a.label("L_m_wait")
            a.lg.reset()
            self.lds_probe(5, 4, 0)
            self.lds_check(5, 4, 0, self.cfg["chk_need"], nap=1)
            a("s_branch L_m_ok")
        a.label("L_fallback")
        a("s_waitcnt vmcnt(0)")
        for q in range(2):
            O, Q = self.O_ + 32 + 16 * q, self.Q_ + 8 + 4 * q
            a(f"""v_mov_b32 v{vMx}, 0xff800000
                s_lshl_b32 s{sO}, s{sC}, 1
                s_add_u32 s{sO}, s{sO}, s{self.sHd}
                s_lshl_b32 s{sO}, s{sO}, 17
                s_mov_b32 s{sN}, 64""")
            a.label(f"L_fb_max{q}")
            a(f"""buffer_load_dwordx4 {vr(K, 4)}, v{self.vKo}, {sr(sWS, 4)}, s{sO} offen sc1
                s_waitcnt vmcnt(0)
                v_mfma_f32_32x32x16_bf16 {vr(S, 16)}, {vr(K, 4)}, {vr(Q, 4)}, 0
                s_nop 11""")
            for k in range(8):
                a(f"v_max3_f32 v{vMx}, v{S + 2 * k}, v{S + 2 * k + 1}, v{vMx}")
            a(f"""s_add_u32 s{sO}, s{sO}, 2048
                s_sub_u32 s{sN}, s{sN}, 1
                s_cmp_lg_u32 s{sN}, 0
                s_cbranch_scc1 L_fb_max{q}
                v_mov_b32 v{M}, v{vMx}
                s_nop 1
                v_permlane32_swap_b32 v{vMx}, v{M}
                s_nop 1
                v_max_f32 v{vMx}, v{vMx}, v{M}
                s_sub_u32 s{sO}, s{sO}, 131072
                s_mov_b32 s{sN}, 64""")
            for k in range(16):
                a(f"v_sub_f32 v{M + k}, 0, v{vMx}\nv_mov_b32 v{O + k}, 0")
            a.label(f"L_fb_sum{q}")
            a(f"""buffer_load_dwordx4 {vr(K, 4)}, v{self.vKo}, {sr(sWS, 4)}, s{sO} offen sc1
                s_mov_b64 exec, {sr(sVM, 2)}
                buffer_load_dwordx4 {vr(V, 4)}, v{self.vVo}, {sr(sWS, 4)}, s{sO} offen offset:1024 sc1
                buffer_load_dwordx4 {vr(V + 4, 4)}, v{self.vVo}, {sr(sWS, 4)}, s{sO} offen offset:1536 sc1
                s_mov_b64 exec, -1
                s_waitcnt vmcnt(0)
                v_mfma_f32_32x32x16_bf16 {vr(S, 16)}, {vr(K, 4)}, {vr(Q, 4)}, {vr(M, 16)}
                s_nop 11""")
            for k in range(16):
                a(f"v_exp_f32 v{S + k}, v{S + k}")
            a(f"""s_nop 1
                v_smfmac_f32_32x32x32_bf16 {vr(O, 16)}, {vr(V, 4)}, {vr(S, 8)}, v{self.vIDX}
                v_smfmac_f32_32x32x32_bf16 {vr(O, 16)}, {vr(V + 4, 4)}, {vr(S + 8, 8)}, v{self.vIDX}
                s_nop 7
                s_add_u32 s{sO}, s{sO}, 2048
                s_sub_u32 s{sN}, s{sN}, 1
                s_cmp_lg_u32 s{sN}, 0
                s_cbranch_scc1 L_fb_sum{q}
                s_nop 3""")
            self.normalise(q)
        a("s_branch L_publish")

    XR, ACC, WS_ = 128, 32, 8
    vFlo, vD, vF, vCnt, v1_, vTmp = 0, 1, 2, 5, 6, 7

    def m_setup(self):
        a = self.a
        self.vXA, self.vXAh, self.vWk, self.vWkh, self.vQa, self.vST, self.vGo, self.vQFa, self.vGa = 80, 84, 88, 90, 92, 93, 94, 95, 96
        self.stamp("mjmp", "M")
        self.kload(sDBG, sWG, sWU, sWD, sWO, sOUT, sGW)
        self.srd(sDBG, sWG, sWU, sWD, sWO, sOUT, sGW)
        skip = self.lab("noreset")
        a(f"""s_lshr_b32 s{sT0 + 3}, s2, 5
            s_or_b32 s{sT0 + 3}, s{sT0 + 3}, s{sW}
            s_cmp_lg_u32 s{sT0 + 3}, 0
            s_cbranch_scc1 {skip}
            s_mul_i32 s{sT0 + 3}, s2, 2048
            s_add_u32 s{sT0 + 3}, s{sT0 + 3}, {WS_FLAG}
            s_mov_b32 s{sPV}, 0
            s_waitcnt lgkmcnt(0)""")
        for k in range(16):
            a(f"s_atomic_and s{sPV}, {sr(sWS, 2)}, s{sT0 + 3}\ns_add_u32 s{sT0 + 3}, s{sT0 + 3}, 128")
        a.label(skip)
        a(f"""s_lshl_b32 s{sRB}, s{sT0}, 2
            s_and_b32 s{sT0 + 2}, s{sT0 + 1}, 3
            s_add_u32 s{sRB}, s{sRB}, s{sT0 + 2}
            s_lshr_b32 s{sCB}, s{sT0 + 1}, 2
            v_and_b32 v16, 31, v0
            v_lshrrev_b32 v17, 5, v0
            v_bfe_u32 v18, v0, 1, 3
            v_xor_b32 v18, v18, v17
            s_lshl_b32 s{sT0}, s{sT}, 12
            v_lshlrev_b32 v19, 7, v16
            v_lshl_add_u32 v19, v18, 4, v19
            v_add_u32 v{self.vXA}, s{sT0}, v19""")
        for s in range(1, 4):
            a(f"v_xor_b32 v{self.vXA + s}, {32 * s}, v{self.vXA}")
        for s in range(4):
            a(f"v_add_u32 v{self.vXAh + s}, 0x10000, v{self.vXA + s}")
        a(f"""v_bfe_u32 v18, v0, 2, 2
            v_lshl_add_u32 v18, v17, 3, v18
            v_bfe_u32 v19, v0, 4, 1
            v_and_b32 v20, 3, v0
            v_lshlrev_b32 v20, 3, v20
            v_lshl_add_u32 v20, v19, 5, v20
            v_bfe_u32 v21, v0, 3, 1
            v_lshl_add_u32 v22, v18, 7, v20
            v_lshl_add_u32 v{self.vWk}, v21, 6, v22
            v_xor_b32 v{self.vWk + 1}, 64, v{self.vWk}
            v_add_u32 v{self.vWkh}, 0x10000, v{self.vWk}
            v_add_u32 v{self.vWkh + 1}, 0x10000, v{self.vWk + 1}
            v_lshl_add_u32 v{self.vQa}, v18, 6, v20
            v_add_u32 v{self.vQa}, {QW}, v{self.vQa}
            s_lshl_b32 s{sT0}, s{sT}, 10
            s_add_u32 s{sT0}, s{sT0}, {QF}
            v_lshl_add_u32 v{self.vQFa}, v0, 4, s{sT0}
            v_mul_u32_u24 v22, 192, v18
            v_and_b32 v23, 0x33, v0
            v_bfe_u32 v25, v0, 2, 1
            v_lshl_add_u32 v23, v25, 3, v23
            v_lshl_add_u32 v23, v21, 2, v23
            v_lshlrev_b32 v23, 4, v23
            v_and_b32 v24, 15, v0
            v_lshlrev_b32 v{self.vGa}, 7, v17
            v_lshlrev_b32 v24, 4, v24
            v_lshl_add_u32 v24, v17, 8, v24
            v_lshl_add_u32 v24, v19, 17, v24
            v_add_u32 v24, 1024, v24
            v_lshlrev_b32 v26, 4, v0
            s_lshl_b32 s{sT0}, s{sT}, 4""")
        if self.cfg["f16"]:
            a(f"""v_mul_u32_u24 v20, {FROW}, v19
                v_bfe_u32 v27, v0, 1, 1
                v_lshl_add_u32 v20, v27, 5, v20
                v_and_b32 v27, 1, v0
                v_lshl_add_u32 v20, v27, 3, v20""")
        for k in range(3):
            a(f"""v_add_u32 v27, {64 * k}, v0
                v_mul_u32_u24 v28, 2731, v27
                v_lshrrev_b32 v28, 15, v28
                v_mul_u32_u24 v29, 12, v28
                v_sub_u32 v29, v27, v29
                v_add_u32 v28, s{sT0}, v28
                v_mul_u32_u24 v28, 2752, v28
                v_lshl_add_u32 v{self.vF + k}, v29, 4, v28""")
        a(f"""v_add_u32 v{self.vFlo}, v22, v20
            v_add_u32 v{self.vFlo}, {fslot(0)}, v{self.vFlo}
            v_bfe_u32 v20, v26, 4, 3
            v_lshlrev_b32 v22, 2, v19
            v_xor_b32 v20, v20, v22
            v_lshlrev_b32 v20, 4, v20
            v_lshrrev_b32 v22, 7, v26
            v_lshl_add_u32 v{self.vD}, v22, 10, v20
            v_mov_b32 v{self.vCnt}, {CNT}
            v_lshl_add_u32 v{self.v1_}, v26, 3, 4""")
        for i in range(4):
            a(f"v_mov_b32 v{100 + i}, 0")
        a(f"ds_write_b128 v{self.vCnt}, v[100:103]\nds_write_b128 v{self.vCnt}, v[100:103] offset:16\nds_write_b128 v{self.vCnt}, v[100:103] offset:32\nds_write_b128 v{self.vCnt}, v[100:103] offset:48\ns_waitcnt lgkmcnt(0)")
        skip = self.lab("nogo")
        a(f"""s_lshr_b32 s{sT0}, s2, 5
            s_or_b32 s{sT0}, s{sT0}, s{sW}
            s_cmp_lg_u32 s{sT0}, 0
            s_cbranch_scc1 {skip}
            s_and_b32 s{sT0}, s2, 1
            s_lshl_b32 s{sT0}, s{sT0}, 7
            s_atomic_add s{sONE}, {sr(sDBG, 2)}, s{sT0}
            s_waitcnt lgkmcnt(0)""")
        a.label(skip)

    def pass_a(self, isv):
        a = self.a
        a.lg.reset()
        a.vm.reset()
        a(f"v_mov_b32 v{self.vST}, v{24 if isv else 23}")
        XR, ACC, W = self.XR, self.ACC, self.WS_
        sB = sT0 + 2
        atm = self.cfg["atm"]
        wr = lambda g: 104 if (g == 31 and atm) else W + 8 * (g % 3)

        def reads(g):
            i, s = divmod(g, 4)
            B = slot(i)
            self.dsr("ds_read_b128", XR + 4 * g, 4, self.vXA + s, self.vXAh + s, B, ("x", g))
            for ct in range(2):
                for u in range(2):
                    self.dsr("ds_read_b64_tr_b16", wr(g) + 4 * ct + 2 * u, 2, self.vWk + ct, self.vWkh + ct,
                             B + 16384 + (16 * s + 4 * u) * 128, ("w", g, ct))

        def comp(g, cts=(0, 1)):
            for ct in cts:
                a.lg.wait(("x", g), ("w", g, ct))
                wf, xf = vr(wr(g) + 4 * ct, 4), vr(XR + 4 * g, 4)
                d = vr(ACC + 16 * ct, 16)
                A, Bm = (xf, wf) if isv else (wf, xf)
                a(f"v_mfma_f32_32x32x16_bf16 {d}, {A}, {Bm}, {d if g else 0}")

        def kv_store(ct, q):
            d = 112 + 8 * ct + 4 * q
            for k in range(4):
                s = ACC + 16 * ct + 8 * q + 2 * k
                a(f"v_cvt_pk_bf16_f32 v{d + k}, v{s}, v{s + 1}")
            if isv:
                a(f"buffer_store_dwordx4 {vr(d, 4)}, v{self.vST}, {sr(sWS, 4)}, s{sB} offen offset:{512 * q} sc1")
                if q == 1 and ct == 0:
                    a(f"s_add_u32 s{sB}, s{sB}, 262144")
            else:
                a(f"buffer_store_dwordx4 {vr(d, 4)}, v{self.vST}, {sr(sWS, 4)}, s{sB} offen sc1")
                a(f"s_add_u32 s{sB}, s{sB}, 131072")

        a(f"""s_lshr_b32 s{sB}, s{sC}, 1
            s_lshl_b32 s{sB}, s{sB}, 19
            s_lshl_b32 s{sB + 1}, s{sR}, 2
            s_add_u32 s{sB + 1}, s{sB + 1}, s{sT}
            s_lshl_b32 s{sB + 1}, s{sB + 1}, 11
            s_add_u32 s{sB}, s{sB}, s{sB + 1}""")
        self.stamp("mrdy", "M")
        for i in range(8):
            g0 = 4 * i
            if i:
                a.lg.drain()
            if i == 7 and atm:
                comp(27)
                a("s_barrier")
                for g in range(28, 31):
                    reads(g)
                comp(28, (0,))
                reads(31)
                for g in range(29, 32):
                    comp(g, (0,))
                comp(28, (1,))
                a("s_nop 5")
                comp(29, (1,))
                a("s_nop 3")
                kv_store(0, 0)
                comp(30, (1,))
                comp(31, (1,))
                kv_store(0, 1)
                a("s_nop 5")
                kv_store(1, 0)
                kv_store(1, 1)
                break
            a("s_barrier")
            if i == 0:
                self.stamp("BA0", "M")
            reads(g0)
            reads(g0 + 1)
            if i:
                comp(g0 - 1)
            reads(g0 + 2)
            if i == 5:
                a(f"buffer_load_dword v{self.vGo}, v{self.vGa}, {sr(sDBG, 4)}, 0 offen sc1")
            comp(g0)
            reads(g0 + 3)
            comp(g0 + 1)
            comp(g0 + 2)
        if not atm:
            comp(31)
            a("s_nop 10")
            for k in range(4):
                kv_store(k >> 1, k & 1)
        self.stamp("KVst", "M")

    def kv_flag(self):
        a = self.a
        ok = self.lab("go")
        a(f"""s_lshr_b32 s{sT0}, s{sC}, 1
            s_lshl_b32 s{sT0}, s{sT0}, 4
            s_add_u32 s{sT0}, s{sT0}, s{sR}
            s_lshl_b32 s{sT0}, s{sT0}, 7
            s_add_u32 s{sT0}, s{sT0}, {CKV}
            s_waitcnt vmcnt({4 + len(a.vm.q)})
            v_cmp_gt_u32 vcc, 16, v{self.vGo}
            s_cbranch_vccz {ok}""")
        q = list(a.vm.q)
        self.poll(self.vGa, "0", self.vGo, sDBG)
        a.vm.q = q
        a.label(ok)

    def issue_f(self, i):
        a = self.a
        sCh, sO, sFB, sLf = sT0 + 4, sT0 + 5, sT0 + 6, sT0 + 7
        if i == 0:
            a(f"s_mul_i32 s{sFB}, s{sC}, 192\ns_mul_i32 s{sLf}, s{sT}, {FROW}")
        self.chunk(sCh, i)
        a(f"s_mul_i32 s{sO}, s{sCh}, 176128\ns_add_u32 s{sO}, s{sO}, s{sFB}")
        for m in range(2):
            for k in range(3):
                a(f"s_add_u32 m0, s{sLf}, {fslot(i) + FMAT * m + 1024 * k}\ns_nop 0")
                a(f"buffer_load_dwordx4 v{self.vF + k}, {sr(sWG if m == 0 else sWU, 4)}, s{sO} offen {self.cfg['fpol'] if i < self.cfg['fn'] else ''} lds")
                a.vm.issue(("F", i))

    def touch(self, i):
        a = self.a
        sA = sT0 + 8
        a(f"""s_lshr_b32 s{sA}, s2, 3
            s_lshl_b32 s{sA}, s{sA}, 2
            s_add_u32 s{sA}, s{sA}, s{sT}
            s_mul_i32 s{sA}, s{sA}, 11008
            s_add_u32 s{sA}, s{sA}, {2048 * i}
            s_mov_b32 m0, {CNT + 64}
            s_mov_b64 exec, {'0x3f' if i == 5 else '0xffff'}
            buffer_load_dword v{self.v1_}, {sr(sWD, 4)}, s{sA} offen lds
            s_mov_b64 exec, -1""")
        a.vm.issue("touch")

    def issue_wo(self, lo, hi):
        a = self.a
        sA, sL = sT0 + 8, sT0 + 9
        a(f"""s_lshl_b32 s{sA}, s{sT}, 17
            s_lshl_b32 s{sL}, s{sCB}, 7
            s_add_u32 s{sA}, s{sA}, s{sL}
            s_lshl_b32 s{sL}, s{sT}, 14""")
        for k in range(lo, hi):
            a(f"""s_add_u32 m0, s{sL}, {WOL + 1024 * k}
                s_add_u32 s{sA}, s{sA}, {8192 * (k if k == lo else 1)}
                buffer_load_dwordx4 v{self.vD}, {sr(sWO, 4)}, s{sA} offen lds""")
            a.vm.issue("wo")

    def pass_q(self):
        a = self.a
        XR, W, QACC = self.XR, self.WS_, 64
        a.lg.reset()
        a.vm.reset()
        flag_at, f0_at = self.cfg["kvflag_at"], self.cfg["f0_at"]

        def reads(g):
            for u in range(2):
                self.dsr("ds_read_b64_tr_b16", W + 4 * (g % 6) + 2 * u, 2, self.vQa, None, (16 * g + 4 * u) * 64, g)

        def hooks(j):
            if j == flag_at:
                if a.vm.q:
                    a(f"s_cmp_eq_u32 s{sC}, 15\ns_cbranch_scc0 L_kvw\ns_waitcnt vmcnt(0)")
                    a.label("L_kvw")
                a(f"s_waitcnt vmcnt({len(a.vm.q)})")
                self.stamp("KVack", "M")
                self.signal(sT0)
                if self.cfg["pwait"]:
                    self.lds_signal(self.vCnt, self.v1_, 48)
                self.stamp("KVflag", "M")
            if j == f0_at:
                skip = self.lab("nof0")
                a(f"s_cmp_eq_u32 s{sC}, 15\ns_cbranch_scc1 {skip}")
                self.issue_f(0)
                a.label(skip)
            if j == self.cfg["f1_at"]:
                skip = self.lab("nof1")
                a(f"s_cmp_eq_u32 s{sC}, 15\ns_cbranch_scc1 {skip}")
                self.issue_f(1)
                a.label(skip)

        if self.cfg["qs"] % 10:
            a("s_barrier")
        self.kv_flag()
        hooks(-2)
        hooks(-1)
        self.stamp("F0iss", "M")
        a("s_barrier")
        self.stamp("BQ", "M")
        for g in range(6):
            reads(g)
        nxt = 6
        for g in range(32):
            a.lg.wait(g)
            d = vr(QACC, 16)
            a(f"v_mfma_f32_32x32x16_bf16 {d}, {vr(W + 4 * (g % 6), 4)}, {vr(XR + 4 * g, 4)}, {d if g else 0}")
            if nxt < 32:
                reads(nxt)
                nxt += 1
            hooks(g)
        a(f"v_mov_b32 v98, {f32(0.25 * LOG2E)}\ns_nop 10")
        for k in range(8):
            a(f"v_pk_mul_f32 {vr(QACC + 2 * k, 2)}, {vr(QACC + 2 * k, 2)}, v[98:99] op_sel_hi:[1,0]")
        for hd in range(2):
            for k in range(4 * hd, 4 * hd + 4):
                a(f"v_cvt_pk_bf16_f32 v{QACC + k}, v{QACC + 2 * k}, v{QACC + 2 * k + 1}")
            a(f"ds_write_b128 v{self.vQFa}, {vr(QACC + 4 * hd, 4)} offset:{4096 * hd}")
        self.lds_signal(self.vCnt, self.v1_, 16)
        self.stamp("Qdone", "M")
        hooks(32)

    def pass_f(self):
        a = self.a
        XR, ACC, W = self.XR, self.ACC, self.WS_
        N, sig, gat, rchk = 192, self.cfg["sig_at"], self.cfg["gate_at"], self.cfg["rchk"]

        jit = [int(ch) for ch in str(self.cfg["jit"])[1:]]
        due = {(j, u): j - ((1, 2)[u] if jit[j // 24] else 6) for j in range(N) for u in range(2)}
        first = [min(due[(j, u)] for j in range(24 * i, 24 * i + 24) for u in range(2)) for i in range(8)]
        for (j, u) in due:
            if j // 24 < 7:
                due[(j, u)] = min(due[(j, u)], first[j // 24 + 1])
        todo = sorted(due, key=lambda k: (due[k], k[0] // 24, k[0], k[1]))
        cur, par, f16 = [0], [0], self.cfg["f16"]

        def reads(now, limit=99):
            while todo and due[todo[0]] <= now and limit:
                limit -= 1
                j, u = todo.pop(0)
                g, t = divmod(j, 6)
                i, s = divmod(g, 4)
                if i != cur[0]:
                    self.boost()
                    a(f"v_add_u32 v{self.vFlo}, {(fslot(i) - fslot(i - 1)) & 0xffffffff}, v{self.vFlo}")
                    cur[0] = i
                off = FROW * (s & 2) + 16 * (s & 1) if f16 else FROW * s
                self.dsr("ds_read_b64_tr_b16", W + 4 * (j % 6) + 2 * u, 2, self.vFlo, None,
                         FMAT * (t & 1) + off + 768 * u + 64 * (t >> 1), j)

        def landed(i):
            a.vm.wait(("F", i))
            self.lds_signal(self.vCnt, self.v1_, 0)
            self.boost()

        if f16:
            for k in range(16):
                for q in range(4):
                    a(f"v_permlane16_swap_b32 v{XR + 8 * k + q}, v{XR + 8 * k + 4 + q}")
        self.bg = bool(self.cfg["boost"])
        if gat < 0:
            self.lds_probe(self.vCnt, self.vTmp, 20)
            self.lds_check(self.vCnt, self.vTmp, 20, 4)
            self.issue_f(1)
        landed(0)
        self.lds_probe(self.vCnt, self.vTmp, 0)
        self.lds_check(self.vCnt, self.vTmp, 0, 16)
        self.stamp("F0", "M")
        reads(-1)
        for j in range(N):
            g, t = divmod(j, 6)
            i, jj = divmod(j, 24)
            if self.cfg["pulse"] and j % self.cfg["pulse"] == 0:
                self.boost()
            a.lg.wait(j)
            if f16:
                for th in range(2):
                    d = vr(ACC + 16 * t + 8 * th + 4 * (g & 1), 4)
                    a(f"v_mfma_f32_16x16x32_bf16 {d}, {vr(W + 4 * (j % 6), 4)}, {vr(XR + 8 * (g >> 1) + 4 * th, 4)}, {d if g > 1 else 0}")
                    if th == 0:
                        self.unboost()
                        reads(j - 1)
            else:
                d = vr(ACC + 16 * t, 16)
                a(f"v_mfma_f32_32x32x16_bf16 {d}, {vr(W + 4 * (j % 6), 4)}, {vr(XR + 4 * g, 4)}, {d if g else 0}")
            self.unboost()
            if jj == 23:
                self.stamp(f"f{i}", "M")
            if j == gat - 2:
                self.lds_probe(self.vCnt, self.vTmp, 20)
            if j == gat:
                self.lds_check(self.vCnt, self.vTmp, 20, 4)
                self.issue_f(1 if self.cfg["f1_at"] > 32 else 2)
            if j == 26:
                self.lds_probe(self.vCnt, self.vTmp, 24)
            if j == 28:
                self.lds_check(self.vCnt, self.vTmp, 24, 4)
            if 1 <= i < 6:
                if jj == 0:
                    self.lds_signal(self.vCnt, self.v1_, 28)
                if jj == rchk - 2:
                    self.lds_probe(self.vCnt, self.vTmp, 28)
                if jj == rchk:
                    self.lds_check(self.vCnt, self.vTmp, 28, 16 * i)
                    self.issue_f(i + 2)
            if i == 7:
                if jj == 0:
                    self.lds_signal(self.vCnt, self.v1_, 28)
                    self.ffn2_scalars()
                if jj == rchk - 2:
                    self.lds_probe(self.vCnt, self.vTmp, 28)
                if jj == rchk:
                    self.lds_check(self.vCnt, self.vTmp, 28, 96)
                    a(f"v_add_u32 v{self.vD2}, 7168, v{self.vD}")
                    a.vm.wait("wo")
                if jj >= rchk and (jj - rchk) % 2 == 0 and jj - rchk < 12:
                    self.issue_w((jj - rchk) // 2)
            if i < 7:
                if jj == (sig if i else self.cfg["sig0"]):
                    landed(i + 1)
                    if i == 0 and self.cfg["f1_at"] > 32:
                        self.issue_f(2)
                if jj == self.cfg["wo_at"] and i:
                    self.touch(i - 1)
                    self.issue_wo(*((0, 3), (3, 6), (6, 9), (9, 12), (12, 14), (14, 16))[i - 1])
                if j == first[i + 1] - 2:
                    self.lds_probe(self.vCnt, self.vTmp, 0)
                if j == first[i + 1]:
                    self.lds_check(self.vCnt, self.vTmp, 0, 16 * (i + 2))
            reads(j, 1 if f16 == 1 else 99)
        self.bg = False
        self.lds_signal(self.vCnt, self.v1_, 0)
        self.stamp("Fdone", "M")

    def gelu(self):
        a = self.a
        ACC = self.ACC
        f16 = self.cfg["f16"]
        c0, c1, T, OUT, vOff = 240, 242, 224, 200, 244 if f16 else self.vP
        sH, sV, sA = sT0 + 12, sT0 + 13, sT0 + 14
        prog = self.w_program()
        per_gap = [int(ch) for ch in str(self.cfg["gaps"])[1:]]
        k0 = -2.0 * 0.7978845608028654 * LOG2E
        a(f"""s_lshl_b32 s{sH}, s{sR}, 2
            s_add_u32 s{sH}, s{sH}, s{sT}
            s_mul_i32 s{sH}, s{sH}, 86
            s_mul_i32 s{sV}, s{sC}, 6
            s_add_u32 s{sH}, s{sH}, s{sV}
            s_lshl_b32 s{sH}, s{sH}, 10
            s_add_u32 s{sH}, s{sH}, {WS_H}""")
        self.ffn2_setup()
        if f16:
            a(f"v_and_b32 v{vOff}, 0x300, v{self.vP}\nv_add_u32 v{vOff}, v{vOff}, v{self.vP}")
        if self.cfg["galign"]:
            a.raw(".p2align 3")
        a(f"""v_mov_b32 v{c0}, {f32(k0)}
            v_mov_b32 v{c0 + 1}, {f32(k0)}
            v_mov_b32 v{c1}, {f32(k0 * 0.044715)}
            v_mov_b32 v{c1 + 1}, {f32(k0 * 0.044715)}""")

        def stores(j):
            a(f"s_cmp_lt_u32 s{sV}, {86 - 2 * j}\ns_cselect_b32 s{sA}, s{sH}, {OOB}\ns_add_u32 s{sH}, s{sH}, 2048")
            for q in range(2):
                a(f"buffer_store_dwordx4 {vr(OUT + 8 * j + 4 * q, 4)}, v{vOff}, {sr(sWS, 4)}, s{sA} offen offset:{(256 if f16 else 1024) * q} sc1")
                a.vm.issue("H")

        def gap(n):
            for _ in range(per_gap[n]):
                prog.pop(0)()
            if self.cfg["galign"]:
                a.raw(".p2align 3")

        for j in range(3):
            G, U = ACC + 32 * j, ACC + 32 * j + 16
            p = lambda b, k: vr(b + 2 * k, 2)
            for k in range(8):
                if j == 0 and k < self.cfg["plain"]:
                    a(f"v_mul_f32 v{T + 2 * k}, v{G + 2 * k}, v{G + 2 * k}\nv_mul_f32 v{T + 2 * k + 1}, v{G + 2 * k + 1}, v{G + 2 * k + 1}")
                else:
                    a(f"v_pk_mul_f32 {p(T, k)}, {p(G, k)}, {p(G, k)}")
            for k in range(8):
                a(f"v_pk_fma_f32 {p(T, k)}, {p(T, k)}, {vr(c1, 2)}, {vr(c0, 2)}")
            for k in range(8):
                a(f"v_pk_mul_f32 {p(T, k)}, {p(T, k)}, {p(G, k)}")
            if j:
                stores(j - 1)
            gap(2 * j)
            for k in range(16):
                a(f"v_exp_f32 v{T + k}, v{T + k}")
            for k in range(8):
                a(f"v_pk_mul_f32 {p(G, k)}, {p(G, k)}, {p(U, k)}")
            for k in range(8):
                a(f"v_pk_add_f32 {p(T, k)}, {p(T, k)}, 1.0 op_sel_hi:[1,0]")
            gap(2 * j + 1)
            for k in range(16):
                a(f"v_rcp_f32 v{T + k}, v{T + k}")
            for k in range(8):
                a(f"v_pk_mul_f32 {p(G, k)}, {p(G, k)}, {p(T, k)}")
            for k in range(8):
                a(f"v_cvt_pk_bf16_f32 v{OUT + 8 * j + k}, v{G + 2 * k}, v{G + 2 * k + 1}")
        stores(2)

    def gate(self):
        a = self.a
        XR, GB, Z, vO = self.XR, 32, 24, 28
        sCh = sT0 + 4
        a.vm.drain()
        a.lg.reset()
        self.lds_probe(self.vCnt, self.vTmp, 24)
        self.lds_check(self.vCnt, self.vTmp, 24, 4, nap=2)
        self.lane(vO + 1)
        a(f"v_lshrrev_b32 v{vO}, 5, v{vO + 1}\nv_lshlrev_b32 v{vO}, 4, v{vO}")
        for k in range(4):
            a(f"v_mov_b32 v{Z + k}, 0")
        for half in range(2):
            for i in range(4 * half, 4 * half + 4):
                self.chunk(sCh, i)
                a(f"s_lshl_b32 s{sCh}, s{sCh}, 7")
                for s in range(4):
                    a(f"buffer_load_dwordx4 {vr(GB + 16 * (i & 3) + 4 * s, 4)}, v{vO}, {sr(sGW, 4)}, s{sCh} offen offset:{32 * s}")
            for i in range(3 * half, 3 * half + 3):
                self.touch(i)
            a("s_waitcnt vmcnt(0)")
            for k in range(64):
                a(f"v_dot2c_f32_bf16 v{Z + (k & 3)}, v{XR + 64 * half + k}, v{GB + k}")
        a(f"""s_lshl_b32 s{sT0}, s{sR}, 2
            s_add_u32 s{sT0}, s{sT0}, s{sT}
            s_lshl_b32 s{sT0}, s{sT0}, 7
            s_add_u32 s{sT0}, s{sT0}, {WS_G}
            v_add_f32 v{Z}, v{Z}, v{Z + 1}
            v_add_f32 v{Z + 2}, v{Z + 2}, v{Z + 3}
            v_add_f32 v{Z}, v{Z}, v{Z + 2}
            v_mov_b32 v{Z + 1}, v{Z}
            v_lshlrev_b32 v{vO}, 2, v{vO + 1}
            s_nop 0
            v_permlane32_swap_b32 v{Z}, v{Z + 1}
            s_nop 1
            v_add_f32 v{Z}, v{Z}, v{Z + 1}
            s_mov_b32 s{sT0 + 12}, s{sT0}""")
        for k in range(0, 16, 4):
            self.issue_wo(k, k + 4)
            self.cap()
        a.vm.drain()
        a(f"v_mov_b32 v{self.vTmp}, 36")
        self.lds_signal(self.vCnt, self.vTmp, 0)
        self.ffn2_scalars()
        a(f"v_add_u32 v{self.vD2}, 7168, v{self.vD}")
        for k in range(6):
            self.issue_w(k)
            self.cap()
        self.ffn2_setup()
        for op in self.w_program()[:sum(int(ch) for ch in str(self.cfg["gaps"])[1:])]:
            op()
        a(f"""s_mov_b32 exec_hi, 0
            buffer_store_dword v{Z}, v{vO}, {sr(sWS, 4)}, s{sT0 + 12} offen sc1
            s_mov_b64 exec, -1""")

    vL, vH, vA0, vA1, vRel, vDump, vP, vZ, vD2, vH2, vT0, vB0, vB1 = 8, 10, 11, 12, 13, 15, 16, 17, 2, 19, 9, 14, 18

    sRB2 = 4
    FS = (5, 6, 7, 8, 9, 10, 11, sT0 + 12, sT0 + 13, sT0 + 14)

    def ffn2_scalars(self):
        a = self.a
        sRing, sS0, sS1, sWc, sW0, sWe, sHc, sH0, sHe, sHl, sFl, sRow = range(sT0, sT0 + 12)
        NS = 22
        a(f"""s_mul_i32 s{sRing}, s{sT}, 12288
            s_mul_i32 s{self.sRB2}, s{sT}, 6144
            s_add_u32 s{self.sRB2}, s{self.sRB2}, {SEGB}
            s_and_b32 s{sS0}, s{sRB}, 3
            s_lshl_b32 s{sS0}, s{sS0}, 1
            s_add_u32 s{sS0}, s{sS0}, s{sCB}
            s_and_b32 s{sS0}, s{sS0}, {7 if self.cfg['rot2'] else 0}
            s_mul_i32 s{sS0}, s{sS0}, 11
            s_lshr_b32 s{sS0}, s{sS0}, 2
            s_mul_i32 s{sS1}, s{sT}, {NS}
            s_lshl_b32 s{sW0}, s{sS1}, 14
            s_lshl_b32 s{sWc}, s{sCB}, 7
            s_add_u32 s{sW0}, s{sW0}, s{sWc}
            s_add_u32 s{sWe}, s{sW0}, {NS * 16384}
            s_lshl_b32 s{sWc}, s{sS0}, 14
            s_add_u32 s{sWc}, s{sWc}, s{sW0}
            s_mul_i32 s{sHl}, s{sRB}, 172
            s_add_u32 s{sH0}, s{sHl}, s{sS1}
            s_lshl_b32 s{sH0}, s{sH0}, 10
            s_add_u32 s{sH0}, s{sH0}, {WS_H}
            s_add_u32 s{sHe}, s{sH0}, {NS * 1024}
            s_lshl_b32 s{sHc}, s{sS0}, 10
            s_add_u32 s{sHc}, s{sHc}, s{sH0}
            s_lshl_b32 s{sHl}, s{sHl}, 10
            s_add_u32 s{sHl}, s{sHl}, {WS_H + 86 * 1024}
            s_lshl_b32 s{sFl}, s{sR}, 1
            s_lshr_b32 s{sS0}, s{sT}, 1
            s_add_u32 s{sFl}, s{sFl}, s{sS0}
            s_lshl_b32 s{sFl}, s{sFl}, 9
            s_add_u32 s{sFl}, s{sFl}, {CH}
            s_mov_b32 s{sRow}, 0x62223111
            s_cmp_ge_u32 s{sC}, 8
            s_cselect_b32 s{sRow}, 0xf8888444, s{sRow}
            s_and_b32 s{sS0}, s{sC}, 7
            s_lshl_b32 s{sS0}, s{sS0}, 2
            s_lshr_b32 s{sRow}, s{sRow}, s{sS0}""")

    def cap(self):
        a, CAP = self.a, self.cfg["cap"]
        if len(a.vm.q) > CAP:
            a.vm.q = a.vm.q[len(a.vm.q) - CAP:]
            a(f"s_waitcnt vmcnt({CAP})")

    def issue_w(self, s):
        a = self.a
        sRing, sS0, sS1, sWc, sW0, sWe = range(sT0, sT0 + 6)
        a(f"s_add_u32 m0, s{sRing if WSLOT[s] < 6 else self.sRB2}, {(WSLOT[s] % 6) * 2048}")
        if s:
            a(f"s_add_u32 s{sWc}, s{sWc}, 16384\ns_cmp_eq_u32 s{sWc}, s{sWe}\ns_cselect_b32 s{sWc}, s{sW0}, s{sWc}")
        else:
            a("s_nop 0")
        a(f"buffer_load_dwordx4 v{self.vD}, {sr(sWD, 4)}, s{sWc} offen lds")
        a(f"buffer_load_dwordx4 v{self.vD2}, {sr(sWD, 4)}, s{sWc} offen offset:1024 lds")
        a.vm.issue(("w", s))
        a.vm.issue(("w", s))

    @staticmethod
    def wreg(s):
        return 128 + 8 * s if s < 9 else 96 + 8 * (s - 9) if s < 13 else 128 + 8 * (s - 13)

    def w_reads(self, s):
        self.a.vm.wait(("w", s))
        regs = (self.vA0, self.vA1) if WSLOT[s] < 6 else (self.vB0, self.vB1)
        for ct in range(2):
            for u in range(2):
                self.dsr("ds_read_b64_tr_b16", self.wreg(s) + 4 * ct + 2 * u, 2, regs[ct], None,
                         (WSLOT[s] % 6) * 2048 + 1024 * u, (s, ct))

    def w_program(self, need=144):
        a = self.a

        def R(*steps):
            return lambda: [self.w_reads(s) for s in steps]

        def I(s):
            def op():
                prev = [p for p in range(s) if WSLOT[p] == WSLOT[s]]
                if prev:
                    a.lg.wait((prev[-1], 1))
                if s == 11:
                    self.lds_probe(self.vCnt, self.vTmp, 0)
                if s == 12:
                    self.lds_check(self.vCnt, self.vTmp, 0, need)
                self.issue_w(s)
                self.cap()
            return op

        return [R(0, 1, 2), I(6), I(7), R(3, 4, 5), I(8), I(9), I(10), I(11), I(12), I(13), R(6, 7, 8), I(14), I(15), I(16), I(17),
                R(9, 10), R(11, 12), I(18), I(19), I(20), I(21)]

    def ffn2_setup(self):
        a = self.a
        vL, vH, vA0, vA1, vRel, vDump, vP, vZ, vH2, vT0 = (self.vL, self.vH, self.vA0, self.vA1, self.vRel, self.vDump, self.vP,
                                                           self.vZ, self.vH2, self.vT0)
        sRing, sS0 = sT0, sT0 + 1
        self.lane(vL)
        a(f"""v_lshlrev_b32 v{vP}, 4, v{vL}
            s_and_b32 s{sS0}, s{sT}, 1
            s_mul_i32 s{sS0}, s{sS0}, 88064
            v_add_u32 v{vH}, s{sS0}, v{vP}
            s_sub_u32 s{sS0}, 88064, s{sS0}
            v_add_u32 v{vH2}, s{sS0}, v{vP}
            v_add_u32 v{vDump}, s{sRing}, v{vP}
            v_lshrrev_b32 v20, 5, v{vL}
            v_bfe_u32 v21, v{vL}, 2, 2
            v_lshl_add_u32 v20, v20, 2, v21
            v_and_b32 v21, 1, v{vL}
            v_lshlrev_b32 v21, 2, v21
            v_bfe_u32 v22, v{vL}, 4, 1
            v_lshl_add_u32 v21, v22, 1, v21
            v_bfe_u32 v23, v{vL}, 1, 1
            v_add_u32 v21, v21, v23
            v_lshlrev_b32 v21, 3, v21
            v_lshl_add_u32 v21, v20, 7, v21
            v_bfe_u32 v23, v{vL}, 3, 1
            v_lshl_add_u32 v21, v23, 6, v21
            s_lshr_b32 s{sS0}, s{sT}, 1
            s_lshl_b32 s{sS0}, s{sS0}, 6
            v_xor_b32 v{vT0}, s{sS0}, v21
            v_add_u32 v{vA0}, s{sRing}, v{vT0}
            v_xor_b32 v{vA1}, 64, v{vA0}
            v_add_u32 v{self.vB0}, s{self.sRB2}, v{vT0}
            v_xor_b32 v{self.vB1}, 64, v{self.vB0}
            s_lshl_b32 s{sS0}, s{sT}, 2
            v_add_u32 v{vRel}, s{sS0}, v{self.vCnt}
            v_and_b32 v{vZ}, 31, v{vL}
            v_lshlrev_b32 v30, 10, v{vZ}
            v_lshlrev_b32 v{vZ}, 2, v{vZ}
            v_lshrrev_b32 v20, 5, v{vL}
            v_lshl_add_u32 v30, v20, 5, v30
            v_add_u32 v31, s{self.sRB2}, v{vP}
            s_xor_b32 s{sS0}, s{sT}, 2
            s_mul_i32 s{sS0}, s{sS0}, 6144
            s_add_u32 s{sS0}, s{sS0}, {SEGB}
            v_add_u32 v20, s{sS0}, v{vP}""")
        for reg, d in ((21, 2), (22, 1), (23, 3)):
            a(f"s_xor_b32 s{sS0}, s{sT}, {d}\ns_mul_i32 s{sS0}, s{sS0}, 12288\nv_add_u32 v{reg}, s{sS0}, v{vP}")

    def ffn2(self):
        a = self.a
        ACC = 32
        vH, vRel, vDump, vZ, vH2 = self.vH, self.vRel, self.vDump, self.vZ, self.vH2
        sRing, sS0, sS1, sWc, sW0, sWe, sHc, sH0, sHe, sHl, sFl, sRow = range(sT0, sT0 + 12)
        NS, PD = 22, self.cfg["pd"]
        cap, issue_w, reads, wreg = self.cap, self.issue_w, self.w_reads, self.wreg
        hreg = lambda s: 200 + 8 * ((s + 6) % 7)
        a(f"s_setprio {self.cfg['prio_m']}")
        a.lg.reset()
        a.vm.reset()

        def issue_h(s):
            if s:
                a(f"""s_add_u32 s{sHc}, s{sHc}, 1024
                    s_cmp_eq_u32 s{sHc}, s{sHe}
                    s_cselect_b32 s{sHc}, s{sH0}, s{sHc}""")
            a(f"s_cmp_lt_u32 s{sHc}, s{sHl}\ns_cselect_b32 s{sS0}, s{sHc}, {OOB}")
            for tt in range(2):
                a(f"buffer_load_dwordx4 {vr(hreg(s) + 4 * tt, 4)}, v{(vH, vH2)[tt]}, {sr(sWS, 4)}, s{sS0} offen sc1")
                a.vm.issue(("h", s))

        done = sum(int(ch) for ch in str(self.cfg["gaps"])[1:])
        assert done <= 15 and done != 8
        prog = self.w_program()[done:]
        a("s_waitcnt vmcnt(0) lgkmcnt(0)")
        for k in range(4):
            skip = self.lab("nosig")
            a(f"s_bitcmp1_b32 s{sRow}, {k}\ns_cbranch_scc0 {skip}")
            self.signal(sFl)
            a.label(skip)
            a(f"s_add_u32 s{sFl}, s{sFl}, 128")
        self.stamp("Hflag", "M")
        a(f"""s_lshl_b32 s{sFl}, s{sRB}, 2
            s_add_u32 s{sFl}, s{sFl}, s{sT}
            s_lshl_b32 s{sFl}, s{sFl}, 7
            s_add_u32 s{sFl}, s{sFl}, {CH}
            s_cmp_eq_u32 s{sT}, 1
            s_cselect_b32 s{sRow}, 12, 10
            s_mov_b32 s{sPV}, 0""")
        for n, op in enumerate(prog):
            if n == len(prog) - 3:
                a.lg.drain()
                a(f"s_atomic_add s{sPV}, {sr(sWS, 2)}, s{sFl} glc")
            op()
        self.stamp("W0", "M")
        ready = self.lab("hready")
        a(f"s_waitcnt lgkmcnt(0)\ns_cmp_ge_u32 s{sPV}, s{sRow}\ns_cbranch_scc1 {ready}")
        self.spoll(sFl, f"s{sRow}")
        a.label(ready)
        self.stamp("Hpoll", "M")
        for s in range(PD):
            issue_h(s)
        a(f"""s_lshl_b32 s{sFl}, s{sRB}, 1
            s_and_b32 s{sS0}, s{sT}, 1
            s_add_u32 s{sFl}, s{sFl}, s{sS0}
            s_lshl_b32 s{sFl}, s{sFl}, 7
            s_add_u32 s{sFl}, s{sFl}, {WS_G}
            buffer_load_dword v{vZ}, v{vZ}, {sr(sWS, 4)}, s{sFl} offen sc1""")
        a.vm.issue("z")
        nh = PD
        hold = NS - self.cfg["defer"]
        assert hold <= 16 or hold == NS

        cnt = [0]

        def mm(s, ct, tt):
            self.bg = bool(self.cfg["pulse2"])
            if self.bg and cnt[0] % self.cfg["pulse2"] == 0:
                self.boost()
            cnt[0] += 1
            a.vm.wait(("h", s))
            a.lg.wait((s, ct))
            d = vr(ACC + 32 * tt + 16 * ct, 16)
            a(f"v_mfma_f32_32x32x16_bf16 {d}, {vr(wreg(s) + 4 * ct, 4)}, {vr(hreg(s) + 4 * tt, 4)}, {d if s else 0}")
            self.unboost()
            self.bg = False

        for s in range(17):
            if s == hold or s == 16:
                while nh < min(NS, s + 7):
                    issue_h(nh)
                    nh += 1
                    cap()
            if s == hold:
                self.stamp("hold", "M")
                self.lds_probe(vRel, self.vTmp, 32)
                self.lds_check(vRel, self.vTmp, 32, 1, nap=2)
                self.stamp("resume", "M")
            if s == 16:
                break
            self.stamp(f"s{s}", "M")
            if s == max(self.cfg["look"], hold if hold < NS else 0):
                a.lg.drain()
                self.final_setup()
            for k in range(4):
                mm(s, *divmod(k, 2))
                if k == 0 and nh < min(NS, s + 7):
                    issue_h(nh)
                    nh += 1
                if k == 1 and 1 <= s <= 9:
                    reads(s + 12)
        self.stamp("s16", "M")
        if max(self.cfg["look"], hold if hold < NS else 0) >= 16:
            a.lg.drain()
            self.final_setup()
        for n, (ct, tt) in enumerate(((0, 1), (1, 0), (1, 1), (0, 0))):
            for s in range(16, NS):
                mm(s, ct, tt)
                if n and s >= 18:
                    k = (8, 4, 12)[n - 1] + s - 18
                    if s == 18:
                        a(("s_nop 3", "s_nop 6", "s_nop 8")[n - 1])
                    a(f"ds_write_b128 v{vDump}, {vr(ACC + 4 * k, 4)} offset:{1024 * (k - 4)}")
                if n and 6 * (n - 1) + s - 16 < 9:
                    self.early_o(6 * (n - 1) + s - 16)
                if 6 * n + s - 16 == self.cfg["look2"]:
                    self.o_look()
        self.lds_signal(self.vCnt, self.v1_, 4)
        self.stamp("s22", "M")

    def final_setup(self):
        a = self.a
        sFl, sOut, sO, sA, sTT, sKh, sF2, sG, sE, sX = self.FS
        a(f"""s_and_b32 s{sTT}, s{sT}, 1
            s_lshr_b32 s{sKh}, s{sT}, 1
            s_lshl_b32 s{sFl}, s{sRB}, 1
            {f"s_add_u32 s{sFl}, s{sFl}, s{sTT}" if self.cfg['ott'] else ""}
            {f"s_lshl_b32 s{sFl}, s{sFl}, 1" if self.cfg['ott'] else ""}
            s_add_u32 s{sFl}, s{sFl}, s{sKh}
            s_lshl_b32 s{sFl}, s{sFl}, 8
            s_add_u32 s{sFl}, s{sFl}, {CO}
            s_add_u32 s{sF2}, s{sFl}, 128
            s_mov_b32 s{sPV}, 0
            s_mov_b32 s{sA}, 0
            s_atomic_add s{sPV}, {sr(sWS, 2)}, s{sFl} glc
            s_atomic_add s{sA}, {sr(sWS, 2)}, s{sF2} glc
            s_lshl_b32 s{sOut}, s{sRB}, 1
            s_add_u32 s{sOut}, s{sOut}, s{sTT}
            s_lshl_b32 s{sO}, s{sOut}, 5
            s_lshl_b32 s{sG}, s{sKh}, 4
            s_add_u32 s{sO}, s{sO}, s{sG}
            s_lshl_b32 s{sO}, s{sO}, 10
            s_add_u32 s{sO}, s{sO}, {WS_O}
            s_lshl_b32 s{sOut}, s{sOut}, 15
            s_lshl_b32 s{sG}, s{sCB}, 7
            s_add_u32 s{sOut}, s{sOut}, s{sG}
            s_lshl_b32 s{sG}, s{sKh}, 6
            s_add_u32 s{sOut}, s{sOut}, s{sG}""")

    @staticmethod
    def of(s):
        return 96 + 4 * s if s < 14 else 200 + 4 * (s - 14)

    def oloads(self, h, sO):
        a = self.a
        for s in range(8 * h, 8 * h + 8):
            if s % 8 == 4:
                a(f"s_add_u32 s{sO}, s{sO}, 4096")
            a(f"buffer_load_dwordx4 {vr(self.of(s), 4)}, v{self.vP}, {sr(sWS, 4)}, s{sO} offen offset:{1024 * (s % 4)} sc1")
            a.vm.issue(s)

    def o_look(self):
        sFl, sOut, sO, sA, sTT, sKh, sF2, sG, sE, sX = self.FS
        self.a(f"""s_mov_b32 s{sPV}, 0
            s_mov_b32 s{sA}, 0
            s_atomic_add s{sPV}, {sr(sWS, 2)}, s{sFl} glc
            s_atomic_add s{sA}, {sr(sWS, 2)}, s{sF2} glc""")

    def o_pick(self):
        sFl, sOut, sO, sA, sTT, sKh, sF2, sG, sE, sX = self.FS
        self.a(f"""s_cmp_lt_u32 s{sPV}, 8
            s_cselect_b32 s{sG}, 1, 0
            s_lshl_b32 s{sX}, s{sG}, 13
            s_add_u32 s{sT0 + 1}, s{sO}, s{sX}
            s_add_u32 s{sX}, s{sT0 + 1}, 4096""")

    def oload(self, s, lo, hi):
        self.a(f"buffer_load_dwordx4 {vr(self.of(s), 4)}, v{self.vP}, {sr(sWS, 4)}, s{lo if s % 8 < 4 else hi} offen offset:{1024 * (s % 4)} sc1")

    def early_o(self, n):
        a = self.a
        sFl, sOut, sO, sA, sTT, sKh, sF2, sG, sE, sX = self.FS
        if n == 0:
            a.vm.drain()
            a("s_waitcnt lgkmcnt(0)")
            self.o_pick()
            a(f"s_max_u32 s{sE}, s{sPV}, s{sA}\ns_lshr_b32 s{sE}, s{sE}, 3")
            return
        skip = self.lab("noearly")
        a(f"s_cbranch_scc0 {skip}")
        self.oload(n - 1, sT0 + 1, sX)
        a.label(skip)

    def final(self):
        a = self.a
        B, PT, OWN, OTH = 32, 48, 152, 168
        WO = lambda s: (184, 192, 208, 216, 224, 232, 240, 248)[s % 8]
        vL, vH, vX, vZ, vA0, vA1 = self.vL, self.vP, self.vDump, self.vZ, self.vA0, self.vA1
        vOut, vG, vP1, vP2, vP3, vB0, vB1, vXp, vX = 30, 2, 21, 22, 23, self.vB0, self.vB1, 20, 31
        sFl, sOut, sO, sA, sTT, sKh, sF2, sG, sE, sX = self.FS
        top, got, loaded, join = self.lab("opoll"), self.lab("ogot"), self.lab("oloaded"), self.lab("ojoin")
        a.lg.reset()
        a(f"""s_cmp_lg_u32 s{sE}, 0
            s_cbranch_scc1 {loaded}
            s_mov_b32 s{sSPIN}, 200000""")
        a.label(top)
        a(f"""s_waitcnt lgkmcnt(0)
            s_max_u32 s{sE}, s{sPV}, s{sA}
            s_cmp_ge_u32 s{sE}, 8
            s_cbranch_scc1 {got}""")
        self.o_look()
        a(f"""s_sub_u32 s{sSPIN}, s{sSPIN}, 1
            s_cbranch_scc0 {top}
            s_waitcnt lgkmcnt(0)""")
        a.label(got)
        self.o_pick()
        self.stamp("Opoll", "M")
        a.vm.reset()
        for s in range(8):
            self.oload(s, sT0 + 1, sX)
            a.vm.issue(s)
        self.o_look()
        a.label(loaded)
        a(f"s_xor_b32 s{sO}, s{sT0 + 1}, 0x2000")
        a(f"""s_xor_b32 s{sF2}, s{sG}, 1
            s_lshl_b32 s{sF2}, s{sF2}, 7
            s_add_u32 s{sF2}, s{sF2}, s{sFl}
            s_lshl_b32 s{sX}, s{sKh}, 1
            s_add_u32 s{sG}, s{sG}, s{sX}
            s_lshl_b32 s{sX}, s{sG}, 14
            s_add_u32 s{sX}, s{sX}, {WOL}
            v_add_u32 v{vA0}, s{sX}, v{self.vT0}
            s_xor_b32 s{sG}, s{sG}, 1
            s_lshl_b32 s{sX}, s{sG}, 14
            s_add_u32 s{sX}, s{sX}, {WOL}
            v_add_u32 v{vB0}, s{sX}, v{self.vT0}
            v_xor_b32 v{vA1}, 64, v{vA0}
            v_xor_b32 v{vB1}, 64, v{vB0}""")
        a.lg.reset()

        def wreads(s):
            if s >= 16:
                return
            for ct in range(2):
                for u in range(2):
                    self.dsr("ds_read_b64_tr_b16", WO(s) + 4 * ct + 2 * u, 2, ((vA0, vA1), (vB0, vB1))[s >> 3][ct], None,
                             (s & 7) * 2048 + 1024 * u, ("wo", s))

        def step(s):
            a.vm.wait(s)
            a.lg.wait(("wo", s))
            w = WO(s)
            ot, ow = (vr(OTH, 16), vr(OWN, 16)) if s < 8 else (vr(PT + 32, 16), vr(PT + 16, 16))
            a(f"v_mfma_f32_32x32x16_bf16 {ot}, {vr(w + 4, 4)}, {vr(self.of(s), 4)}, {ot if s % 8 else 0}")
            wreads(s + 2)
            if s < 4:
                self.oload(8 + 2 * s, sT0 + 1, sX)
                a.vm.issue(8 + 2 * s)
            if 2 <= s < 8:
                i, h = divmod(s - 2, 2)
                for k in range(8 * h, 8 * h + 4):
                    a(f"v_add_f32 v{B + k}, v{B + k}, v{PT + 16 * i + k}")
            a(f"v_mfma_f32_32x32x16_bf16 {ow}, {vr(w, 4)}, {vr(self.of(s), 4)}, {ow if s % 8 else 0}")
            if s < 4:
                self.oload(9 + 2 * s, sT0 + 1, sX)
                a.vm.issue(9 + 2 * s)
            if s < 6:
                i, h = divmod(s, 2)
                for q in range(2 * h, 2 * h + 2):
                    self.dsr("ds_read_b128", PT + 16 * i + 4 * q, 4, (vP1, vP2, vP3)[i], None, 4096 * i + 1024 * q, ("wo", s + 2))
            if 2 <= s < 8:
                i, h = divmod(s - 2, 2)
                for k in range(8 * h + 4, 8 * h + 8):
                    a(f"v_add_f32 v{B + k}, v{B + k}, v{PT + 16 * i + k}")
            if 8 <= s < 12:
                for k in range(4 * (s - 8), 4 * (s - 8) + 4):
                    a(f"v_mul_f32 v{B + k}, v{B + k}, v{vG + 2}")

        self.lds_probe(self.vCnt, self.vTmp, 4)
        for s in range(2):
            wreads(s)
        a(f"""v_mul_f32 v{vG}, {f32(LOG2E)}, v{vZ}
            v_exp_f32 v{vG + 2}, v{vG}
            v_exp_f32 v{vG}, -v{vG}
            s_nop 0
            v_add_f32 v{vG + 2}, 1.0, v{vG + 2}
            v_add_f32 v{vG}, 1.0, v{vG}
            v_rcp_f32 v{vG + 2}, v{vG + 2}
            v_rcp_f32 v{vG}, v{vG}""")
        self.lds_check(self.vCnt, self.vTmp, 4, 16)
        self.stamp("msync", "M")
        a.lg.drain()
        a(f"""s_min_u32 s{sE}, s{sPV}, s{sA}
            s_lshr_b32 s{sE}, s{sE}, 3
            s_cselect_b32 s{sT0 + 1}, s{sO}, {OOB}
            s_add_u32 s{sX}, s{sT0 + 1}, 4096""")
        for s in range(8):
            step(s)
            if s == self.cfg["look3"]:
                a(f"s_mov_b32 s{sPV}, 0\ns_atomic_add s{sPV}, {sr(sWS, 2)}, s{sF2} glc")
        q, le = list(a.vm.q), list(a.lg.q)
        if self.cfg["otm"]:
            for s in range(10, 16):
                wreads(s)
                a.lg.wait(("wo", s - 2))
            le = list(a.lg.q)
        a(f"s_cmp_lg_u32 s{sE}, 0\ns_cbranch_scc1 {join}")
        self.stamp("g1done", "M")
        seen = self.lab("oseen")
        if self.cfg["look3"] < 8:
            a(f"s_waitcnt lgkmcnt(0)\ns_cmp_ge_u32 s{sPV}, 8\ns_cbranch_scc1 {seen}")
        self.spoll(sF2, 8)
        a.label(seen)
        self.stamp("late", "M")
        a.vm.drain()
        self.oloads(1, sO)
        assert a.vm.q == q
        a.lg.q = le
        a.label(join)
        if not self.cfg["otm"]:
            for s in range(8, 16):
                step(s)
            self.stamp("Omfma", "M")
            a("s_nop 10")
            for q in range(4):
                for k in range(4 * q, 4 * q + 4):
                    a(f"v_add_f32 v{OTH + k}, v{OTH + k}, v{PT + 32 + k}")
                a(f"ds_write_b128 v{vX}, {vr(OTH + 4 * q, 4)} offset:{1024 * q}")
            for k in range(8):
                a(f"v_pk_add_f32 {vr(OWN + 2 * k, 2)}, {vr(OWN + 2 * k, 2)}, {vr(PT + 16 + 2 * k, 2)}")
            for k in range(8):
                a(f"v_pk_fma_f32 {vr(B + 2 * k, 2)}, {vr(OWN + 2 * k, 2)}, {vr(vG, 2)}, {vr(B + 2 * k, 2)} op_sel_hi:[1,0,1]")
        else:
            for k in range(16):
                a(f"v_mul_f32 v{B + k}, v{B + k}, v{vG + 2}")
            for s in range(8, 16):
                a.vm.wait(s)
                a.lg.wait(("wo", s))
                ot = vr(PT + 32, 16)
                a(f"v_mfma_f32_32x32x16_bf16 {ot}, {vr(WO(s) + 4, 4)}, {vr(self.of(s), 4)}, {ot if s % 8 else 0}")
            for s in range(8, 16):
                ow = vr(PT + 16, 16)
                a(f"v_mfma_f32_32x32x16_bf16 {ow}, {vr(WO(s), 4)}, {vr(self.of(s), 4)}, {ow if s % 8 else 0}")
                if s == 8:
                    a("s_nop 5")
                if s == 9:
                    a("s_nop 3")
                if 9 <= s < 13:
                    q = s - 9
                    for k in range(4 * q, 4 * q + 4):
                        a(f"v_add_f32 v{OTH + k}, v{OTH + k}, v{PT + 32 + k}")
                    a(f"ds_write_b128 v{vX}, {vr(OTH + 4 * q, 4)} offset:{1024 * q}")
            self.stamp("Omfma", "M")
        a("s_waitcnt lgkmcnt(0)\ns_barrier")
        self.stamp("bar", "M")
        for q in range(4):
            a(f"ds_read_b128 {vr(PT + 4 * q, 4)}, v{vXp} offset:{1024 * q}")
        if self.cfg["otm"]:
            a("s_nop 5")
            for k in range(8):
                a(f"v_pk_add_f32 {vr(OWN + 2 * k, 2)}, {vr(OWN + 2 * k, 2)}, {vr(PT + 16 + 2 * k, 2)}")
            for k in range(8):
                a(f"v_pk_fma_f32 {vr(B + 2 * k, 2)}, {vr(OWN + 2 * k, 2)}, {vr(vG, 2)}, {vr(B + 2 * k, 2)} op_sel_hi:[1,0,1]")
        for q in range(4):
            a(f"s_waitcnt lgkmcnt({3 - q})")
            for k in range(2):
                r = 4 * q + 2 * k
                a(f"v_pk_fma_f32 {vr(B + r, 2)}, {vr(PT + r, 2)}, {vr(vG, 2)}, {vr(B + r, 2)} op_sel_hi:[1,0,1]")
            for k in range(2):
                r = 4 * q + 2 * k
                a(f"v_cvt_pk_bf16_f32 v{64 + 2 * q + k}, v{B + r}, v{B + r + 1}")
            if q % 2 == 1:
                a(f"buffer_store_dwordx4 {vr(64 + 4 * (q // 2), 4)}, v{vOut}, {sr(sOUT, 4)}, s{sOut} offen offset:{16 * (q // 2)}")

    def build(self):
        a = self.a
        cfg = self.cfg
        self.prologue()
        a(f"s_setprio {cfg['prio_l']}")
        self.loader()
        self.attn_start()
        self.stamp("attn0", "L")
        self.attn_loop()
        self.attn_finish()
        self.stamp("Oflag", "L")
        self.dump_stamps(True)
        a("s_endpgm")

        a.label("L_mwave")
        if cfg["swap"]:
            a("s_setprio 1")
        self.m_setup()
        if cfg["swap"]:
            a(f"s_setprio {cfg['prio_m']}")
        a(f"s_bitcmp1_b32 s{sC}, 0\ns_cbranch_scc1 L_pass_v")
        self.pass_a(False)
        a("s_branch L_pass_q")
        a.label("L_pass_v")
        self.pass_a(True)
        a.label("L_pass_q")
        self.pass_q()
        a(f"s_cmp_eq_u32 s{sC}, 15\ns_cbranch_scc1 L_gate")
        self.pass_f()
        a(f"s_setprio {cfg['prio_gelu']}")
        self.gelu()
        a.label("L_ffn2")
        self.stamp("gelu", "M")
        self.ffn2()
        self.final()
        if cfg.get("stamps"):
            a("s_waitcnt vmcnt(0)")
            self.stamp("end", "M")
            self.dump_stamps(False)
        a.label("L_end")
        a("s_endpgm")
        a.label("L_gate")
        a(f"s_setprio {cfg['prio_gelu']}")
        self.gate()
        a("s_branch L_ffn2")
        self.fallback()
        return a.text()


HEADER = """; Fused kernel: out = g * MHA(x) + (1 - g) * GEGLU(x),  g = sigmoid(x . gate_w)
; Kernarg (88 bytes, pointers): 0 A_x, 8 A_wqkv, 16 A_wo, 24 B_x (unused by the reference), 32 B_w_gate, 40 B_w_up,
;   48 B_w_down, 56 gate_w, 64 d_out, 72 d_debug, 80 d_ws
;
; 256 workgroups of 8 waves, one per CU. Workgroup (c, r) owns 128 tokens (row block r) and column group c:
;   waves 0-3  K (c even) or V (c odd) for heads 4*(c>>1)..+3, Q for heads 2c, 2c+1, gate/up columns 96c..96c+95 with
;              GELU (group 15 computes the mixing logit instead), then one 64x64 tile of h @ w_down and o @ wo and the mix.
;   waves 4-7  stage x / w_qkv into LDS, then attention: one head, four query tiles, half of the keys per wave.
; Hand-offs between workgroups (K/V, h, logit, o) go through d_ws: write-through (sc1) stores, vmcnt wait, then an atomic
;   add on a counter; the reader polls the counter with atomics and loads with sc1. The counters are cleared at the start
;   of every launch by workgroups 0-31, which report that in d_debug; nobody touches a counter before seeing the report.
;   All waits are bounded. No hand-off depends on where a workgroup runs.
; Softmax: scores are exponentiated with a constant shift while that is exact, and the row sum is checked afterwards. A wave whose
;   row sum left [2^-24, 2^64], or whose result is not finite, recomputes its tiles with the true row maximum subtracted
;   (L_fallback) before it publishes them.
; P @ V uses the 2:4 sparse MFMA with an index that selects the upper halves of the f32 exponentials (bf16 by truncation);
;   a row of ones in the V operand yields the row sum from the same values.
; @launch grid=(256,1,1) block=(512,1,1) lds=%d
.amdgcn_target "amdgcn-amd-amdhsa--gfx950"
.text
.globl %s_kernel
.p2align 8
.type %s_kernel,@function
%s_kernel:
""" % (LDS_BYTES, NAME, NAME, NAME)

FOOTER = """.section .rodata,"a"
.p2align 6
.amdhsa_kernel %s_kernel
  .amdhsa_next_free_vgpr 256
  .amdhsa_next_free_sgpr 102
  .amdhsa_accum_offset 256
  .amdhsa_group_segment_fixed_size 0
  .amdhsa_kernarg_size 88
  .amdhsa_user_sgpr_count 2
  .amdhsa_user_sgpr_kernarg_segment_ptr 1
  .amdhsa_system_sgpr_workgroup_id_x 1
  .amdhsa_float_denorm_mode_32 3
.end_amdhsa_kernel
""" % NAME

DEFAULT = dict(stM='start,BA0,KVst,KVflag,Qdone,F0,Fdone,gelu,Hflag,Hpoll,ffn2,Opoll,Omfma,end',
               stL='start,karg,A0,A2,A7,KVpoll,Qrdy,attn0,attn1,Ost,Oflag',
               outpol='', rowmask=14, qs=14400, tf=0, gate_f=1, gate_at=-1, look=13, lfast=1, shift=4.0, oop=0, f16=1, denorm=3, pwait=4, p1=10, jit=100000000, chk=92, chk_need=144, look2=16, look3=1, gaps=1131110, plain=8, galign=1, k1=0, sig0=14, f1_at=99, swap=0, rel=1, touch=1, tq=1, f1_early=0, rbits=3, rot=4, rot2=1, la=2, nst=4, defer=0, tpol='', qpol='', xn=8, wn=8, fn=8, xpol='', wpol='', fpol='nt', hasync=1, otm=1, atm=1, kvflag_at=12, ott=1, f0_at=4, sig_at=8, rchk=10, wo_at=20, boost=0, pulse=0, pulse2=0, pd=5, cap=6, prio_l=2, prio_m=0, prio_gelu=3)


def generate(**kw):
    cfg = dict(DEFAULT)
    cfg.update(kw)
    body = Gen(cfg).build()
    msgs = lint(body)
    if cfg.get("stamps"):
        body += f"; STAMPS M {cfg['stM']}\n"
    return HEADER + body + FOOTER.replace("denorm_mode_32 3", f"denorm_mode_32 {cfg['denorm']}"), msgs


if __name__ == "__main__":
    out = sys.argv[1]
    kw = {}
    for arg in sys.argv[2:]:
        k, v = arg.split("=")
        try:
            kw[k] = int(v)
        except ValueError:
            try:
                kw[k] = float(v)
            except ValueError:
                kw[k] = v
    text, msgs = generate(**kw)
    for m in msgs:
        print("LINT:", m)
    open(out, "w").write(text)
    print("wrote", out, len(text), "bytes,", text.count("\n"), "lines")
```

```python
import re


def vr(a, n=1):
    return f"v{a}" if n == 1 else f"v[{a}:{a + n - 1}]"


def sr(a, n=1):
    return f"s{a}" if n == 1 else f"s[{a}:{a + n - 1}]"


class Counter:
    def __init__(self, asm, name, limit):
        self.asm, self.name, self.limit = asm, name, limit
        self.q = []

    def issue(self, tag):
        self.q.append(tag)

    def soften(self):
        self.q[-1] = ("soft", self.q[-1])

    def need(self, *tags):
        soft = lambda t: isinstance(t, tuple) and t[:1] == ("soft",)
        idx = [i for i, t in enumerate(self.q) if (t[1] if soft(t) else t) in tags]
        if not idx:
            return None
        self.q = self.q[max(idx) + 1:]
        n = sum(not soft(t) for t in self.q)
        return min(n, self.limit)

    def wait(self, *tags):
        n = self.need(*tags)
        if n is not None:
            self.asm(f"s_waitcnt {self.name}({n})")

    def drain(self):
        self.q = []
        self.asm(f"s_waitcnt {self.name}(0)")

    def reset(self):
        self.q = []


class Asm:
    def __init__(self):
        self.lines = []
        self.vm = Counter(self, "vmcnt", 63)
        self.lg = Counter(self, "lgkmcnt", 15)

    def __call__(self, s):
        for l in s.split("\n"):
            l = l.strip()
            if l:
                self.lines.append("    " + l)

    def label(self, name):
        self.lines.append(name + ":")

    def comment(self, s):
        self.lines.append("    ; " + s)

    def raw(self, s):
        self.lines.append(s)

    def text(self):
        return "\n".join(self.lines) + "\n"


_REG = re.compile(r"\b([vsa])(?:(\d+)\b|\[(\d+):(\d+)\])")
TRANS = ("v_exp_", "v_log_", "v_rcp_", "v_rsq_", "v_sqrt_", "v_sin_", "v_cos_")


def _regs(op):
    out = set()
    for m in _REG.finditer(op):
        k = m.group(1)
        lo = int(m.group(2) if m.group(2) is not None else m.group(3))
        hi = int(m.group(2) if m.group(2) is not None else m.group(4))
        out |= {(k, i) for i in range(lo, hi + 1)}
    if re.search(r"\bvcc\b", op):
        out |= {("s", 106), ("s", 107)}
    if re.search(r"\bm0\b", op):
        out |= {("s", 124)}
    if re.search(r"\bexec\b", op):
        out |= {("s", 126), ("s", 127)}
    return out


class Ins:
    def __init__(self, text, lineno):
        self.text, self.lineno = text, lineno
        body = text.split(";")[0].strip()
        p = body.split(None, 1)
        self.mn = p[0]
        ops = [o.strip() for o in p[1].split(",")] if len(p) > 1 else []
        self.ops = ops
        mn = self.mn
        self.mfma = mn.startswith(("v_mfma", "v_smfmac"))
        self.valu = mn.startswith("v_") and not self.mfma
        self.trans = mn.startswith(TRANS)
        self.dot = mn.startswith("v_dot")
        self.vmem = mn.startswith(("buffer_", "global_"))
        self.ds = mn.startswith("ds_")
        self.salu = mn.startswith("s_")
        self.lds_dma = self.vmem and re.search(r"\blds\b", body) is not None
        self.w, self.r = set(), set()
        self.srcc, self.srcab = set(), set()
        self.store_data = set()
        R = [_regs(o) for o in ops]
        if self.mfma:
            self.w = R[0]
            self.srcab = R[1] | R[2]
            if mn.startswith("v_smfmac"):
                self.srcc = R[0]
                self.srcab |= R[3]
            else:
                self.srcc = R[3]
            self.r = self.srcab | self.srcc
            self.passes = 4 if "16x16" in mn else 8
        elif self.valu:
            if mn.startswith("v_permlane"):
                self.w = R[0] | R[1]
                self.r = R[0] | R[1]
            else:
                self.w = R[0]
                rest = R[1:]
                if mn.startswith(("v_add_co", "v_sub_co", "v_addc_co")):
                    self.w |= R[1]
                    rest = R[2:]
                for x in rest:
                    self.r |= x
                if mn.startswith(("v_fmac", "v_dot2c", "v_writelane")) or "UNUSED_PRESERVE" in body:
                    self.r |= R[0]
        elif self.vmem:
            if self.lds_dma:
                for x in R:
                    self.r |= x
                self.r |= {("s", 124)}
            elif "_load" in mn:
                self.w = R[0]
                for x in R[1:]:
                    self.r |= x
            else:
                for x in R:
                    self.r |= x
                d = R[0] if mn.startswith("buffer_") else R[1]
                if mn.endswith(("x3", "x4")):
                    self.store_data = d
        elif self.ds:
            if mn.startswith(("ds_read", "ds_bpermute", "ds_swizzle")):
                self.w = R[0]
                for x in R[1:]:
                    self.r |= x
            else:
                for x in R:
                    self.r |= x
        elif self.salu:
            if mn.startswith(("s_cmp", "s_waitcnt", "s_nop", "s_barrier", "s_cbranch", "s_branch", "s_setprio", "s_sleep", "s_endpgm")):
                for x in R:
                    self.r |= x
            else:
                if R:
                    self.w = R[0]
                for x in R[1:]:
                    self.r |= x
                if "saveexec" in mn:
                    self.w |= {("s", 126), ("s", 127)}
        self.states = int(ops[0]) + 1 if mn == "s_nop" else 1


def _need(p, c):
    n = 0
    V = lambda s: {x for x in s if x[0] in "va"}
    S = lambda s: {x for x in s if x[0] == "s"}
    if p.mfma:
        big = p.passes == 8
        if c.mfma:
            if p.w & c.srcab:
                n = max(n, 12 if big else 8)
            if p.w & c.srcc and not (p.w == c.srcc and p.passes == c.passes):
                n = max(n, 10 if big else 6)
            if p.w & c.w and not (p.w == c.w):
                n = max(n, 10 if big else 6)
        elif (c.valu and p.w & (c.r | c.w)) or ((c.vmem or c.ds) and p.w & (c.r | c.w)):
            n = max(n, 12 if big else 8)
        if c.valu and p.srcc & c.w:
            n = max(n, 7 if big else 3)
    if p.valu:
        if c.mfma and V(p.w) & c.r:
            n = max(n, 3 if p.dot else 2)
        if p.trans and c.valu and not c.trans and p.w & c.r:
            n = max(n, 1)
        if p.trans and (c.vmem or c.ds) and p.w & c.r:
            n = max(n, 1)
        if p.dot and (c.valu or c.vmem or c.ds) and p.w & (c.r | c.w) and c.mn != p.mn:
            n = max(n, 3)
        if c.vmem and S(p.w) & c.r:
            n = max(n, 5)
        if c.valu and S(p.w) & c.r:
            n = max(n, 4 if c.mn.startswith(("v_readlane", "v_writelane")) else 2)
        if c.mn.startswith(("v_readfirstlane", "v_readlane")) and V(p.w) & c.r:
            n = max(n, 1)
        if c.mn.startswith("v_permlane") and V(p.w) & c.r:
            n = max(n, 2)
        if c.valu and "dpp" in c.text and V(p.w) & c.r:
            n = max(n, 2)
        if ("sdwa" in p.mn or "op_sel" in p.text) and not p.mn.startswith("v_pk") and c.valu and p.w & (c.r | c.w):
            n = max(n, 1)
    if p.store_data and p.store_data & c.w:
        n = max(n, 2)
    if p.salu and ("s", 124) in p.w and c.lds_dma:
        n = max(n, 1)
    return n


def lint(text, window=24):
    ins, labels = [], {}
    for no, l in enumerate(text.split("\n"), 1):
        s = l.split(";")[0].strip()
        if not s or s.startswith("."):
            continue
        if s.endswith(":"):
            labels[s[:-1]] = len(ins)
            continue
        ins.append(Ins(s, no))
    msgs = set()

    def succ(i):
        c = ins[i]
        out = []
        if c.mn == "s_endpgm":
            return out
        if c.mn.startswith(("s_cbranch", "s_branch")) and c.ops[0] in labels:
            out.append(labels[c.ops[0]])
        if c.mn != "s_branch" and i + 1 < len(ins):
            out.append(i + 1)
        return out

    for i, p in enumerate(ins):
        if not (p.mfma or p.valu or p.store_data or (p.salu and ("s", 124) in p.w)):
            continue
        stack = [(j, 0) for j in succ(i)]
        seen = {}
        while stack:
            j, d = stack.pop()
            if j >= len(ins) or d >= 12 or seen.get(j, 99) <= d:
                continue
            seen[j] = d
            c = ins[j]
            n = _need(p, c)
            if n > d:
                msgs.add(f"line {p.lineno} [{p.text}] -> line {c.lineno} [{c.text}]: need {n}, have {d}")
            for k in succ(j):
                stack.append((k, d + c.states))
    return sorted(msgs, key=lambda m: int(m.split()[1]))
```

```python
import struct
import sys

from asmlib import Asm, lint, sr, vr

NAME = "gated_mix__softmax_full_mha__glu_gated_geglu__prompt"


def f32(x):
    return "0x%08x" % struct.unpack("<I", struct.pack("<f", x))[0]


LOG2E = 1.4426950408889634

WS_KV, WS_O, WS_H, WS_G, WS_FLAG, WS_STAMP = 0x000000, 0x400000, 0x600000, 0xBC0000, 0xC00000, 0xD00000
CKV, CH, CO = WS_FLAG, WS_FLAG + 128 * 128, WS_FLAG + 256 * 128
OOB = 0x20000000

NSLOT = 4
QW, QF, PART, CNT = 98304, 131072, 139776, 158208
FROW, FMAT = 3088, 12352
WOL, SEGB = 74240, 49152
WSLOT = [0, 1, 2, 3, 4, 5, 0, 1, 2, 3, 4, 5, 6, 7, 8, 0, 1, 2, 3, 4, 5, 6]
LDS_BYTES = 163840

sX, sWQ, sWO, sWG, sWU, sWD, sGW, sOUT, sDBG, sWS = 4, 8, 12, 16, 20, 24, 28, 32, 36, 40
sC, sR, sW, sT, sROT, sRB, sCB, sDEL = 44, 45, 46, 47, 48, 49, 50, 51
sONE, sPV = 71, 69
sVM = 52
sT0 = 54
sSPIN = 70
sSTAMP = 72
SIZES = {sX: 2097152, sWQ: 1572864, sWO: 524288, sWG: 1409024, sWU: 1409024, sWD: 1409024, sGW: 1024, sOUT: 2097152,
         sDBG: 256, sWS: 268435456}
KARG = {sX: 0, sWQ: 8, sWO: 16, sWG: 32, sWU: 40, sWD: 48, sGW: 56, sOUT: 64, sDBG: 72, sWS: 80}


def slot(n):
    return (n % NSLOT) * 24576


def fslot(n):
    return ((n + 1) % 3) * 2 * FMAT


class Gen:
    def __init__(self, cfg):
        self.cfg = cfg
        self.a = Asm()
        self.uid = 0
        self.bg = self.hi = False

    def lab(self, base):
        self.uid += 1
        return f"L_{base}_{self.uid}"

    def clock(self):
        return "s_memtime" if self.cfg.get("stamps") == 2 else "s_memrealtime"

    def names(self, role):
        if "pad" in self.cfg:
            return ["start", self.cfg["pad"]]
        return self.cfg["st" + role].split(",")

    def stamp(self, name, role):
        if self.cfg.get("stamps") and name in self.names(role):
            n = self.names(role).index(name)
            a = self.a
            a(f"{self.clock()} {sr(sSTAMP + 2 * n, 2)}")
            a.lg.drain()

    def dump_stamps(self, is_l):
        if not self.cfg.get("stamps"):
            return
        a = self.a
        if "pad" in self.cfg:
            n = 0 if self.cfg["pad"] == "start" else 1
            top, done = self.lab("pad"), self.lab("paddone")
            if is_l:
                a("s_barrier")
            if "padx" in self.cfg:
                a(f"""s_and_b32 s{sT0}, s2, 7
                    s_cmp_eq_u32 s{sT0}, {self.cfg['padx']}
                    s_cselect_b32 s{sSTAMP + 2 * n}, s{sSTAMP + 2 * n}, 0""")
            a(f"""s_waitcnt vmcnt(0) lgkmcnt(0)
                s_cmp_eq_u32 s{sSTAMP + 2 * n}, 0
                s_cbranch_scc1 {done}""")
            a.label(top)
            a(f"""s_sleep 4
                s_memrealtime {sr(sT0, 2)}
                s_waitcnt lgkmcnt(0)
                s_sub_u32 s{sT0}, s{sT0}, s{sSTAMP + 2 * n}
                s_cmp_lt_u32 s{sT0}, 6000
                s_cbranch_scc1 {top}""")
            a.label(done)
            return
        a(f"""s_lshl_b32 s{sT0}, s2, 3
            s_add_u32 s{sT0}, s{sT0}, s{sW}
            s_lshl_b32 s{sT0}, s{sT0}, 6
            s_add_u32 s{sT0}, s{sT0}, {WS_STAMP}
            s_mov_b64 exec, 1""")
        for n in range(14):
            a(f"v_mov_b32 v0, s{sSTAMP + 2 * n}")
            a(f"buffer_store_dword v0, off, {sr(sWS, 4)}, s{sT0} offset:{4 * n}")
        a("s_mov_b64 exec, -1")

    def lane(self, v):
        self.a(f"""v_mbcnt_lo_u32_b32 v{v}, -1, 0
            v_mbcnt_hi_u32_b32 v{v}, -1, v{v}""")

    def srd(self, *regs):
        for r in regs:
            self.a(f"s_mov_b32 s{r + 2}, {SIZES[r]}\ns_mov_b32 s{r + 3}, 0x00020000")

    def kload(self, *regs):
        for r in regs:
            self.a(f"s_load_dwordx2 {sr(r, 2)}, s[0:1], {KARG[r]}")

    def chunk(self, dst, i):
        a = self.a
        if self.cfg["rot"] in (3, 4):
            a(f"""s_add_u32 s{dst}, s{sDEL}, {i & 3}
                s_and_b32 s{dst}, s{dst}, 3
                s_add_u32 s{dst}, s{dst}, s{sROT}""")
            if i & 4:
                a(f"s_xor_b32 s{dst}, s{dst}, 4")
        else:
            a(f"s_add_u32 s{dst}, s{sROT}, {i}\ns_and_b32 s{dst}, s{dst}, 7")

    def dsr(self, op, dst, n, lo, hi, imm, tag):
        reg = lo
        if imm >= 65536:
            reg, imm = hi, imm - 65536
        assert 0 <= imm < 65536 and reg is not None
        self.a(f"{op} {vr(dst, n)}, v{reg} offset:{imm}")
        self.a.lg.issue(tag)

    def poll(self, voff, soff, tmp, srd=sWS):
        a = self.a
        top, done = self.lab("poll"), self.lab("pdone")
        a(f"s_mov_b32 s{sSPIN}, 100000")
        a.label(top)
        a(f"""buffer_load_dword v{tmp}, v{voff}, {sr(srd, 4)}, {soff} offen sc1
            s_waitcnt vmcnt(0)
            v_cmp_gt_u32 vcc, 32, v{tmp}
            s_cbranch_vccz {done}
            s_sleep 8
            s_sub_u32 s{sSPIN}, s{sSPIN}, 1
            s_cmp_lg_u32 s{sSPIN}, 0
            s_cbranch_scc1 {top}""")
        a.label(done)
        a.vm.reset()

    def signal(self, soff):
        self.a(f"s_atomic_add s{sONE}, {sr(sWS, 2)}, s{soff}")

    def spoll(self, soff, need, back=None):
        a = self.a
        top, done = self.lab("spoll"), back or self.lab("sdone")
        a(f"s_mov_b32 s{sSPIN}, 200000")
        a.label(top)
        a(f"""s_mov_b32 s{sPV}, 0
            s_atomic_add s{sPV}, {sr(sWS, 2)}, s{soff} glc
            s_waitcnt lgkmcnt(0)
            s_cmp_ge_u32 s{sPV}, {need}
            s_cbranch_scc1 {done}
            s_sub_u32 s{sSPIN}, s{sSPIN}, 1
            s_cmp_lg_u32 s{sSPIN}, 0
            s_cbranch_scc1 {top}""")
        if back:
            a(f"s_branch {back}")
        else:
            a.label(done)
        a.lg.reset()

    def lds_signal(self, addr, one, off):
        a = self.a
        a(f"""s_mov_b64 exec, 1
            ds_add_u32 v{addr}, v{one} offset:{off}
            s_mov_b64 exec, -1""")
        a.lg.issue("sig")

    def lds_probe(self, addr, tmp, off):
        self.a(f"ds_read_b32 v{tmp}, v{addr} offset:{off}")
        self.a.lg.issue("probe")

    def boost(self):
        if self.bg and not self.hi:
            self.a("s_setprio 3")
            self.hi = True

    def unboost(self):
        if self.hi:
            self.a(f"s_setprio {self.cfg['prio_m']}")
            self.hi = False

    def lds_check(self, addr, tmp, off, need, nap=0):
        a = self.a
        top, done = self.lab("lspin"), self.lab("ldone")
        self.boost()
        a.lg.wait("probe")
        a(f"""v_cmp_gt_u32 vcc, {need}, v{tmp}
            s_cbranch_vccz {done}
            s_mov_b32 s{sSPIN}, 1000000""")
        a.label(top)
        if nap:
            a(f"s_sleep {nap}")
        a(f"""ds_read_b32 v{tmp}, v{addr} offset:{off}
            s_waitcnt lgkmcnt(0)
            v_cmp_gt_u32 vcc, {need}, v{tmp}
            s_cbranch_vccz {done}
            s_sub_u32 s{sSPIN}, s{sSPIN}, 1
            s_cmp_lg_u32 s{sSPIN}, 0
            s_cbranch_scc1 {top}""")
        a.label(done)

    def prologue(self):
        a = self.a
        cfg = self.cfg
        rb = cfg["rbits"]
        a("s_cmp_ge_u32 s2, 256\ns_cbranch_scc1 L_end")
        if cfg.get("stamps"):
            a(f"{self.clock()} {sr(sSTAMP, 2)}")
        self.kload(sX, sWQ, sWS, sDBG)
        if cfg.get("stamps"):
            for n in range(1, 14):
                a(f"s_mov_b32 s{sSTAMP + 2 * n}, 0")
        x, j, t = sT0, sT0 + 1, sT0 + 2
        a(f"""v_lshrrev_b32 v1, 6, v0
            s_and_b32 s{x}, s2, 7
            v_readfirstlane_b32 s{sW}, v1
            s_lshr_b32 s{j}, s2, 3
            v_and_b32 v0, 63, v0
            s_and_b32 s{sR}, s{x}, {(1 << (4 - rb)) - 1}
            s_lshl_b32 s{sR}, s{sR}, {rb}
            s_and_b32 s{t}, s{j}, {(1 << rb) - 1}
            s_add_u32 s{sR}, s{sR}, s{t}
            s_lshr_b32 s{sC}, s{x}, {4 - rb}
            s_lshl_b32 s{sC}, s{sC}, {5 - rb}
            s_lshr_b32 s{t}, s{j}, {rb}
            s_add_u32 s{sC}, s{sC}, s{t}
            s_and_b32 s{sT}, s{sW}, 3""")
        if cfg["swap"]:
            a(f"s_xor_b32 s{sW}, s{sW}, 4")
        rot = cfg["rot"]
        if rot == 0:
            a(f"s_mov_b32 s{sROT}, 0")
        elif rot == 1:
            a(f"""s_mul_i32 s{sROT}, s{sC}, {cfg.get('rotc', 2)}
                s_mul_i32 s{t}, s{sR}, {cfg.get('rotr', 1)}
                s_add_u32 s{sROT}, s{sROT}, s{t}
                s_and_b32 s{sROT}, s{sROT}, 7""")
        else:
            a(f"""s_add_u32 s{sROT}, s{sC}, s{sR}
                s_and_b32 s{sROT}, s{sROT}, 1
                s_lshl_b32 s{sROT}, s{sROT}, 2""")
            if rot == 3:
                a(f"s_mov_b32 s{sDEL}, 0")
            else:
                a(f"""s_lshr_b32 s{sDEL}, s{x}, 1
                    s_lshl_b32 s{t}, s{x}, 1
                    s_add_u32 s{sDEL}, s{sDEL}, s{t}""")
        self.srd(sWS)
        a(f"""s_mov_b32 s{sONE}, 1
            s_cmp_ge_u32 s{sW}, 4
            s_cbranch_scc0 L_mwave""")

    def loader(self):
        a = self.a
        a.vm.reset()
        vX0, vX1, vKV, vQ = 8, 9, 10, 11
        sXB, sKB, sQB, sLx, sLk, sLq, sCh, sO = range(sT0, sT0 + 8)
        self.srd(sX, sWQ)
        a(f"""v_lshrrev_b32 v1, 3, v0
            v_and_b32 v2, 7, v0
            v_lshrrev_b32 v3, 4, v0
            s_lshl_b32 s{sO}, s{sT}, 5
            v_add_u32 v4, s{sO}, v1
            v_xor_b32 v5, v2, v3
            v_lshlrev_b32 v5, 4, v5
            v_lshl_add_u32 v{vX0}, v4, 10, v5
            v_xor_b32 v{vX1}, 64, v{vX0}
            v_add_u32 v{vX1}, 8192, v{vX1}
            s_lshl_b32 s{sO}, s{sT}, 4
            v_add_u32 v4, s{sO}, v1
            v_mul_u32_u24 v4, 3072, v4
            v_and_b32 v5, 1, v3
            v_lshlrev_b32 v5, 2, v5
            v_xor_b32 v5, v2, v5
            v_lshl_add_u32 v{vKV}, v5, 4, v4
            s_lshl_b32 s{sXB}, s{sR}, 17
            s_and_b32 s{sKB}, s{sC}, 1
            s_add_u32 s{sKB}, s{sKB}, 1
            s_lshl_b32 s{sKB}, s{sKB}, 10
            s_lshr_b32 s{sCh}, s{sC}, 1
            s_lshl_b32 s{sCh}, s{sCh}, 7
            s_add_u32 s{sKB}, s{sKB}, s{sCh}
            s_lshl_b32 s{sLx}, s{sT}, 12
            s_lshl_b32 s{sLk}, s{sT}, 11""")

        def issueA(i):
            B = slot(i)
            self.chunk(sCh, i)
            first = [i == 0]

            def ready(filler):
                a(filler)
                if first[0]:
                    a("s_waitcnt lgkmcnt(0)")
                    self.stamp("karg", "L")
                    first[0] = False

            def xs():
                a(f"s_lshl_b32 s{sO}, s{sCh}, 7\ns_add_u32 s{sO}, s{sO}, s{sXB}")
                for k in range(4):
                    a(f"s_add_u32 m0, s{sLx}, {B + 1024 * k}")
                    ready(f"s_add_u32 s{sO}, s{sO}, 16384" if k == 2 else "s_nop 0")
                    a(f"buffer_load_dwordx4 v{vX0 if k % 2 == 0 else vX1}, {sr(sX, 4)}, s{sO} offen lds")
                    a.vm.issue(("A", i))

            def ws():
                a(f"s_mul_i32 s{sO}, s{sCh}, 196608")
                for k in range(2):
                    a(f"s_add_u32 m0, s{sLk}, {B + 16384 + 1024 * k}")
                    ready(f"s_add_u32 s{sO}, s{sO}, {'s%d' % sKB if k == 0 else 24576}")
                    a(f"buffer_load_dwordx4 v{vKV}, {sr(sWQ, 4)}, s{sO} offen lds")
                    a.vm.issue(("A", i))

            for f in ((ws, xs) if self.cfg["wfirst"] else (xs, ws)):
                f()

        def issueQ(lo, hi):
            for i in range(lo, hi):
                self.chunk(sCh, i)
                a(f"""s_mul_i32 s{sO}, s{sCh}, 196608
                    s_add_u32 m0, s{sLq}, {QW + 4096 * i}
                    s_add_u32 s{sO}, s{sO}, s{sQB}
                    buffer_load_dwordx4 v{vQ}, {sr(sWQ, 4)}, s{sO} offen lds""")
                a.vm.issue(("Q", 0))

        def setup2():
            a(f"""v_lshrrev_b32 v4, 2, v0
                s_lshl_b32 s{sO}, s{sT}, 4
                v_add_u32 v4, s{sO}, v4
                v_mul_u32_u24 v4, 3072, v4
                v_and_b32 v5, 3, v0
                v_lshl_add_u32 v{vQ}, v5, 4, v4
                s_lshl_b32 s{sQB}, s{sC}, 6
                s_lshl_b32 s{sLq}, s{sT}, 10
                s_mov_b32 s{sVM}, 0x0000ffff
                s_mov_b32 s{sVM + 1}, 0x0000ffff""")
            if self.cfg["tq"]:
                cb = 5 - self.cfg["rbits"]
                nl = 1 << (cb - 1)
                a(f"""v_lshrrev_b32 v4, {cb - 1}, v0
                    v_mul_u32_u24 v4, 3072, v4
                    v_and_b32 v5, {nl - 1}, v0
                    v_lshl_add_u32 v4, v5, 7, v4
                    s_lshr_b32 s{sO}, s2, 3
                    s_lshl_b32 s{sO}, s{sO}, 2
                    s_add_u32 s{sO}, s{sO}, s{sT}
                    s_mul_i32 s{sO}, s{sO}, 12288
                    s_lshr_b32 s{sCh}, s{sC}, {cb}
                    s_lshl_b32 s{sCh}, s{sCh}, {cb + 6}
                    s_add_u32 s{sO}, s{sO}, s{sCh}
                    s_mov_b32 m0, {CNT + 64}
                    s_mov_b64 exec, {(1 << (4 * nl)) - 1}
                    buffer_load_dword v4, {sr(sWQ, 4)}, s{sO} offen {self.cfg['qpol']} lds
                    s_mov_b64 exec, -1""")
                a.vm.issue("touch")
            a("s_setprio 0")
            self.attn_init()
            a(f"s_setprio {self.cfg['prio_l']}")
            skip = self.lab("nogo")
            a(f"""s_cmp_lg_u32 s{sRB}, 0
                s_cbranch_scc1 {skip}
                s_lshl_b32 s{sO}, s{sT}, 7
                s_waitcnt lgkmcnt(0)
                s_atomic_add s{sONE}, {sr(sDBG, 2)}, s{sO}""")
            a.label(skip)

        def reset():
            skip = self.lab("noreset")
            a(f"""s_lshr_b32 s{sRB}, s2, 5
                s_lshr_b32 s{sO}, s{sT}, 1
                s_or_b32 s{sRB}, s{sRB}, s{sO}
                s_cbranch_scc1 {skip}
                s_lshl_b32 s{sO}, s2, 1
                s_add_u32 s{sO}, s{sO}, s{sT}
                s_lshl_b32 s{sO}, s{sO}, 10
                s_add_u32 s{sO}, s{sO}, {WS_FLAG}
                s_mov_b32 s{sPV}, 0""")
            for k in range(8):
                a(f"s_atomic_and s{sPV}, {sr(sWS, 2)}, s{sO} offset:{128 * k}")
            a.label(skip)

        la = self.cfg["la"]
        qs = [int(ch) for ch in str(self.cfg["qs"])[1:]]
        assert sum(qs) == 8
        nxt = 0
        for b in range(9):
            while nxt < 8 and nxt <= b + la and nxt - NSLOT + 2 <= b:
                issueA(nxt)
                nxt += 1
                if nxt == 1:
                    reset()
            if b == 0:
                setup2()
            if b >= 6:
                issueQ(sum(qs[:b - 6]), sum(qs[:b - 5]))
            if b == 8 and qs[3]:
                a("s_barrier")
                issueQ(8 - qs[3], 8)
            tag = ("A", b) if b < 8 else ("Q", 0)
            a.vm.wait(tag)
            self.stamp(f"{tag[0]}{tag[1]}", "L")
            a("s_barrier")

    O_, S_, Q_, KV_ = 16, 80, 112, 128
    vIDX, vKo, vVo, vFl, vQa_, vOne, vCa, vPa, vPs = 12, 13, 14, 15, 6, 7, 1, 2, 3

    def attn_init(self):
        a = self.a
        NST = self.cfg["nst"]
        assert NST == 4
        sHd, sQ, sOff, sRow, sCnt, sLd, sFl = range(sT0 + 8, sT0 + 15)
        self.sHd, self.sQ, self.sOff, self.sKr, self.sCnt, self.sLd, self.sFl = sHd, sQ, sOff, sRow, sCnt, sLd, sFl
        a(f"""s_and_b32 s{sHd}, s{sW}, 1
            s_lshr_b32 s{sQ}, s{sT}, 1
            v_lshrrev_b32 v5, 5, v0
            s_and_b32 s{sRow}, s{sR}, {self.cfg['rowmask']}
            s_add_u32 s{sRow}, s{sRow}, s{sQ}
            s_and_b32 s{sRow}, s{sRow}, 15
            s_mov_b32 s{sCnt}, {32 // NST}
            v_lshlrev_b32 v{self.vKo}, 4, v0
            v_and_b32 v{self.vVo}, 15, v0
            v_lshlrev_b32 v{self.vVo}, 4, v{self.vVo}
            v_lshl_add_u32 v{self.vVo}, v5, 8, v{self.vVo}
            s_lshl_b32 s{sLd}, s{sHd}, 12
            s_add_u32 s{sLd}, s{sLd}, {QF}
            v_add_u32 v{self.vQa_}, s{sLd}, v{self.vKo}
            s_lshl_b32 s{sLd}, s{sQ}, 11
            v_add_u32 v{self.vQa_}, s{sLd}, v{self.vQa_}
            v_mov_b32 v{self.vIDX}, 0xdddddddd
            v_mov_b32 v{self.vOne}, 1
            v_and_b32 v4, 0x1b, v0
            v_cmp_eq_u32 vcc, 16, v4
            v_mov_b32 v4, 0x3f803f80
            s_mul_i32 s{sLd}, s{sT}, 4608
            v_cndmask_b32 v4, 0, v4, vcc
            s_add_u32 s{sLd}, s{sLd}, {PART}
            v_lshl_add_u32 v{self.vPa}, v0, 4, s{sLd}
            v_lshl_add_u32 v{self.vPs}, v0, 2, s{sLd}
            s_lshl_b32 s{sLd}, s{sHd}, 2
            s_add_u32 s{sLd}, s{sLd}, {CNT + 8}
            v_mov_b32 v{self.vCa}, s{sLd}
            s_lshl_b32 s{sLd}, s{sT}, 2
            s_add_u32 s{sLd}, s{sLd}, {CNT + 32}
            v_mov_b32 v{self.vFl}, s{sLd}""")
        for st in range(NST):
            for k in range(8):
                a(f"v_mov_b32 v{self.KV_ + 12 * st + 4 + k}, v4")
        for k in range(64):
            a(f"v_mov_b32 v{self.O_ + k}, 0")

    def attn_start(self):
        a = self.a
        NST = self.cfg["nst"]
        sOff = self.sOff
        sHB, sFB, sRow, sFl = sT0, sT0 + 1, self.sKr, self.sFl
        a(f"""s_lshl_b32 s{sHB}, s{sC}, 1
            s_add_u32 s{sHB}, s{sHB}, s{self.sHd}
            s_lshl_b32 s{sHB}, s{sHB}, 17
            s_lshr_b32 s{sFB}, s{sC}, 1
            s_lshl_b32 s{sFB}, s{sFB}, 11
            s_add_u32 s{sFB}, s{sFB}, {CKV}
            s_lshl_b32 s{sOff}, s{sRow}, 13
            s_add_u32 s{sOff}, s{sOff}, s{sHB}
            s_lshl_b32 s{sFl}, s{sRow}, 7
            s_add_u32 s{sFl}, s{sFl}, s{sFB}""")
        a(f"v_mov_b32 v5, {CNT}")
        if self.cfg["pwait"]:
            a.lg.reset()
            self.lds_probe(5, 4, 48)
            self.lds_check(5, 4, 48, 4 * self.cfg["pwait"])
        self.spoll(sFl, 8)
        self.stamp("KVpoll", "L")
        for st in range(NST - 1):
            b = self.KV_ + 12 * st
            a(f"""buffer_load_dwordx4 {vr(b, 4)}, v{self.vKo}, {sr(sWS, 4)}, s{sOff} offen sc1
                s_mov_b64 exec, {sr(sVM, 2)}
                buffer_load_dwordx4 {vr(b + 4, 4)}, v{self.vVo}, {sr(sWS, 4)}, s{sOff} offen offset:1024 sc1
                buffer_load_dwordx4 {vr(b + 8, 4)}, v{self.vVo}, {sr(sWS, 4)}, s{sOff} offen offset:1536 sc1
                s_mov_b64 exec, -1
                s_add_u32 s{sOff}, s{sOff}, 2048""")
        self.stamp("KViss", "L")
        a.lg.reset()
        self.lds_signal(5, self.vOne, 20)
        self.lds_probe(5, 4, 16)
        self.lds_check(5, 4, 16, 16)
        a(f"v_xor_b32 v4, 0x800, v{self.vQa_}")
        self.stamp("Qrdy", "L")
        for q in range(4):
            a(f"ds_read_b128 {vr(self.Q_ + 4 * q, 4)}, v{self.vQa_ if q >= 2 else 4} offset:{1024 * (q & 1)}")
        a(f"""s_add_u32 s{sRow}, s{sRow}, 2
            s_and_b32 s{sRow}, s{sRow}, 15
            s_lshl_b32 s{sFl}, s{sRow}, 7
            s_add_u32 s{sFl}, s{sFl}, s{sFB}
            s_mov_b32 s{sPV}, 0
            s_waitcnt lgkmcnt(0)
            s_mov_b64 exec, 1
            ds_add_u32 v5, v{self.vOne} offset:24
            s_mov_b64 exec, -1
            s_atomic_add s{sPV}, {sr(sWS, 2)}, s{sFl} glc
            s_waitcnt vmcnt({3 * (NST - 2)})
            v_mfma_f32_32x32x16_bf16 {vr(self.S_, 16)}, {vr(self.KV_, 4)}, {vr(self.Q_, 4)}, {self.cfg['shift']}
            s_nop 11""")

    def P(self, n):
        oop = self.cfg["oop"]
        return self.S_ + 16 * (n & 1) if not oop else 232 if oop == 1 else (176, 232)[n & 1]

    def attn_loop(self):
        a = self.a
        NST = self.cfg["nst"]
        NT = 4 * NST
        O, S, Q, KV = self.O_, self.S_, self.Q_, self.KV_
        sOff, sRow, sCnt, sFl, sHB, sFB = self.sOff, self.sKr, self.sCnt, self.sFl, sT0, sT0 + 1
        P = self.P
        sm = lambda st, qt, half, n: (f"v_smfmac_f32_32x32x32_bf16 {vr(O + 16 * qt, 16)}, {vr(KV + 12 * st + 4 + 4 * half, 4)}, "
                                      f"{vr(P(n) + 8 * half, 8)}, v{self.vIDX}")
        extra = {
            (2, 0): f"s_lshl_b32 s{sOff}, s{sRow}, 13\ns_add_u32 s{sOff}, s{sOff}, s{sHB}",
            (2, 2): f"s_cmp_eq_u32 s{sCnt}, 1\ns_cselect_b32 s{sOff}, {OOB}, s{sOff}",
            (3, 1): "s_waitcnt lgkmcnt(0)",
            (3, 2): f"s_cmp_lt_u32 s{sPV}, 8\ns_cbranch_scc1 L_kv_wait\nL_kv_ok:",
            (6, 0): f"s_add_u32 s{sRow}, s{sRow}, 2\ns_and_b32 s{sRow}, s{sRow}, 15",
            (6, 2): f"s_lshl_b32 s{sFl}, s{sRow}, 7\ns_add_u32 s{sFl}, s{sFl}, s{sFB}",
            (10, 0): f"s_mov_b32 s{sPV}, 0\ns_atomic_add s{sPV}, {sr(sWS, 2)}, s{sFl} glc",
            (NT - 3, 0): f"s_sub_u32 s{sCnt}, s{sCnt}, 1\ns_cmp_eq_u32 s{sCnt}, 0",
        }

        if self.cfg["chk"]:
            it, n0 = divmod(self.cfg["chk"], NT)
            assert n0 in (1, 4, 5, 8, 9, 12) and (n0, 0) not in extra
            extra[(n0, 0)] = f"s_cmp_eq_u32 s{sCnt}, {8 - it}\ns_cbranch_scc1 L_m_wait\nL_m_ok:"

        def ex(n, k):
            for l in extra.get((n, k), "").split("\n"):
                if l.endswith(":"):
                    a.label(l[:-1])
                else:
                    a(l)

        a(f"v_exp_f32 v{P(0)}, v{S}\nv_exp_f32 v{P(0) + 1}, v{S + 1}")
        a.raw(".p2align 6")
        a.label("L_attn")
        for n in range(NT + 1):
            st, qt = divmod(n, 4)
            cur = S + 16 * (n & 1)
            E = lambda lo, hi: [a(f"v_exp_f32 v{P(n) + k}, v{cur + k}") for k in range(lo, hi)]
            pst, pqt = divmod((n - 1) % NT, 4)
            nst, nqt = divmod((n + 1) % NT, 4)
            ld = KV + 12 * ((st - 1) % NST)
            if n:
                E(0, 2)
                a(sm(pst, pqt, 1, n - 1))
            if n == NT:
                break
            if n == NT - 2:
                a("s_cbranch_scc1 L_attn_tail")
            ex(n, 0)
            if qt == 3:
                a(f"s_waitcnt vmcnt({3 * (NST - 2)})")
            E(2, 5)
            a(f"v_mfma_f32_32x32x16_bf16 {vr(S + 16 * ((n + 1) & 1), 16)}, {vr(KV + 12 * nst, 4)}, {vr(Q + 4 * nqt, 4)}, {self.cfg['shift']}")
            ex(n, 1)
            if qt == 0 and not self.cfg["k1"]:
                a(f"buffer_load_dwordx4 {vr(ld, 4)}, v{self.vKo}, {sr(sWS, 4)}, s{sOff} offen sc1")
            if qt == 2 and st:
                a(f"s_add_u32 s{sOff}, s{sOff}, 2048")
            E(5, self.cfg["p1"])
            a(sm(st, qt, 0, n))
            ex(n, 2)
            if qt == 0 and self.cfg["k1"]:
                a(f"buffer_load_dwordx4 {vr(ld, 4)}, v{self.vKo}, {sr(sWS, 4)}, s{sOff} offen sc1")
            if qt == 1:
                a(f"""s_mov_b64 exec, {sr(sVM, 2)}
                    buffer_load_dwordx4 {vr(ld + 4, 4)}, v{self.vVo}, {sr(sWS, 4)}, s{sOff} offen offset:1024 sc1
                    buffer_load_dwordx4 {vr(ld + 8, 4)}, v{self.vVo}, {sr(sWS, 4)}, s{sOff} offen offset:1536 sc1
                    s_mov_b64 exec, -1""")
            E(self.cfg["p1"], 16)
        a("s_branch L_attn")
        self.sm = sm

    def attn_finish(self):
        a = self.a
        O, S, Q, KV, T, sm = self.O_, self.S_, self.Q_, self.KV_, 192, self.sm
        sA, sF, m = sT0, sT0 + 1, sT0 + 2
        E = lambda n, lo, hi: [a(f"v_exp_f32 v{self.P(n) + k}, v{S + 16 * (n & 1) + k}") for k in range(lo, hi)]

        def give(q):
            o = O + 16 * q
            a(f"""ds_write_b128 v{self.vPa}, {vr(o, 4)} offset:{2304 * q}
                ds_write_b128 v{self.vPa}, {vr(o + 4, 4)} offset:{2304 * q + 1024}
                ds_write_b32 v{self.vPs}, v{o + 8} offset:{2304 * q + 2048}""")

        a.label("L_attn_tail")
        a.lg.reset()
        a("s_waitcnt lgkmcnt(0)")
        give(0)
        E(14, 2, 5)
        a(f"v_mfma_f32_32x32x16_bf16 {vr(S + 16, 16)}, {vr(KV + 36, 4)}, {vr(Q + 12, 4)}, {self.cfg['shift']}")
        a(f"s_lshl_b32 s{sF}, s{sR}, 1")
        E(14, 5, 10)
        a(sm(3, 2, 0, 14))
        give(1)
        if self.cfg["rel"] == 0:
            a(f"ds_write_b32 v{self.vFl}, v{self.vOne}")
        self.lds_signal(self.vCa, self.vOne, 0)
        E(14, 10, 16)
        E(15, 0, 2)
        a(sm(3, 2, 1, 14))
        a(f"""s_add_u32 s{sF}, s{sF}, s{self.sQ}
            s_lshl_b32 s{sA}, s{sF}, 5
            s_add_u32 s{sA}, s{sA}, s{sC}
            s_lshl_b32 s{sA}, s{sA}, 1
            s_add_u32 s{sA}, s{sA}, s{self.sHd}
            s_mul_i32 s{m}, s{self.sQ}, -18432
            s_add_u32 s{m}, s{m}, 9216""")
        E(15, 2, 10)
        a(sm(3, 3, 0, 15))
        a(f"""s_lshl_b32 s{sA}, s{sA}, 10
            s_add_u32 s{sA}, s{sA}, {WS_O}
            v_add_u32 v{self.vPa}, s{m}, v{self.vPa}
            v_add_u32 v{self.vPs}, s{m}, v{self.vPs}""")
        self.lds_probe(self.vCa, 4, 0)

        def fetch():
            for q in range(2):
                a(f"""ds_read_b32 v{T + 12 * q + 8}, v{self.vPs} offset:{2304 * q + 2048}
                    ds_read_b128 {vr(T + 12 * q, 4)}, v{self.vPa} offset:{2304 * q}
                    ds_read_b128 {vr(T + 12 * q + 4, 4)}, v{self.vPa} offset:{2304 * q + 1024}""")

        if self.cfg["lfast"]:
            fetch()
        E(15, 10, 16)
        a(f"""s_lshl_b32 s{sF}, s{sF}, {2 + self.cfg['ott']}
            s_lshr_b32 s{m}, s{sC}, 2""")
        a(sm(3, 3, 1, 15))
        a(f"""s_add_u32 s{sF}, s{sF}, s{m}
            s_lshl_b32 s{sF}, s{sF}, 7
            s_add_u32 s{sF}, s{sF}, {CO}""")
        self.stamp("attn1", "L")
        have = self.lab("have")
        if self.cfg["lfast"]:
            a(f"s_waitcnt lgkmcnt(0)\nv_cmp_gt_u32 vcc, 2, v4")
        if self.cfg["rel"] == 1:
            a(f"ds_write_b32 v{self.vFl}, v{self.vOne}")
            a.lg.issue("rel")
        if self.cfg["lfast"]:
            a(f"s_cbranch_vccz {have}")
            a.lg.reset()
        self.lds_check(self.vCa, 4, 0, 2)
        self.stamp("pair", "L")
        fetch()
        a("s_waitcnt lgkmcnt(3)")
        a.label(have)
        for q in range(2):
            o, t = O + 32 + 16 * q, T + 12 * q
            if q:
                a("s_waitcnt lgkmcnt(0)")
            a(f"v_add_f32 v{o + 8}, v{o + 8}, v{t + 8}")
            for k in range(8):
                a(f"v_add_f32 v{o + k}, v{o + k}, v{t + k}")
            self.normalise(q)
        if self.cfg["rel"] == 2:
            a(f"ds_write_b32 v{self.vFl}, v{self.vOne}")
        self.stamp("Ost", "L")
        lo, hi = self.cfg.get("l_lo", 2.0 ** -24), self.cfg.get("l_hi", 2.0 ** 64)
        for q in range(2):
            o, t = O + 32 + 16 * q, T + 12 * q
            a(f"""v_pk_add_f32 {vr(t, 2)}, {vr(o, 2)}, {vr(o + 2, 2)}
                v_pk_add_f32 {vr(t + 2, 2)}, {vr(o + 4, 2)}, {vr(o + 6, 2)}
                v_cmp_lt_f32 vcc, {f32(lo)}, v{o + 8}
                v_pk_add_f32 {vr(t, 2)}, {vr(t, 2)}, {vr(t + 2, 2)}
                s_and_b64 {sr(m, 2)}, {'vcc' if q == 0 else sr(m, 2)}, vcc
                v_cmp_gt_f32 vcc, {f32(hi)}, v{o + 8}
                v_add_f32 v{t}, v{t}, v{t + 1}
                s_and_b64 {sr(m, 2)}, {sr(m, 2)}, vcc
                v_sub_f32 v{t}, v{t}, v{t}
                v_cmp_eq_f32 vcc, 0, v{t}
                s_and_b64 {sr(m, 2)}, {sr(m, 2)}, vcc""")
        a(f"s_cmp_eq_u64 {sr(m, 2)}, -1\ns_cbranch_scc0 L_fallback")
        a.label("L_publish")
        if self.cfg["ott"]:
            a(f"s_add_u32 s{m}, s{sF}, 512\ns_waitcnt vmcnt(1)")
            self.signal(sF)
            a("s_waitcnt vmcnt(0)")
            self.signal(m)
        else:
            a("s_waitcnt vmcnt(0)")
            self.signal(sF)

    def normalise(self, q):
        a = self.a
        o, d = self.O_ + 32 + 16 * q, 224 + 4 * q
        a(f"v_rcp_f32 v{o + 9}, v{o + 8}\ns_add_u32 s{sT0 + 4}, s{sT0}, {32768 * q}")
        for k in range(8):
            a(f"v_mul_f32 v{o + k}, v{o + k}, v{o + 9}")
        for k in range(4):
            a(f"v_cvt_pk_bf16_f32 v{d + k}, v{o + 2 * k}, v{o + 2 * k + 1}")
        a(f"buffer_store_dwordx4 {vr(d, 4)}, v{self.vKo}, {sr(sWS, 4)}, s{sT0 + 4} offen sc1")

    def fallback(self):
        a = self.a
        S, M, K, V, vMx = self.S_, self.S_ + 16, self.KV_, self.KV_ + 4, 4
        sO, sN = sT0 + 2, sT0 + 3
        a.label("L_kv_wait")
        self.spoll(self.sFl, 8, "L_kv_ok")
        if self.cfg["chk"]:
            a.label("L_m_wait")
            a.lg.reset()
            self.lds_probe(5, 4, 0)
            self.lds_check(5, 4, 0, self.cfg["chk_need"], nap=1)
            a("s_branch L_m_ok")
        a.label("L_fallback")
        a("s_waitcnt vmcnt(0)")
        for q in range(2):
            O, Q = self.O_ + 32 + 16 * q, self.Q_ + 8 + 4 * q
            a(f"""v_mov_b32 v{vMx}, 0xff800000
                s_lshl_b32 s{sO}, s{sC}, 1
                s_add_u32 s{sO}, s{sO}, s{self.sHd}
                s_lshl_b32 s{sO}, s{sO}, 17
                s_mov_b32 s{sN}, 64""")
            a.label(f"L_fb_max{q}")
            a(f"""buffer_load_dwordx4 {vr(K, 4)}, v{self.vKo}, {sr(sWS, 4)}, s{sO} offen sc1
                s_waitcnt vmcnt(0)
                v_mfma_f32_32x32x16_bf16 {vr(S, 16)}, {vr(K, 4)}, {vr(Q, 4)}, 0
                s_nop 11""")
            for k in range(8):
                a(f"v_max3_f32 v{vMx}, v{S + 2 * k}, v{S + 2 * k + 1}, v{vMx}")
            a(f"""s_add_u32 s{sO}, s{sO}, 2048
                s_sub_u32 s{sN}, s{sN}, 1
                s_cmp_lg_u32 s{sN}, 0
                s_cbranch_scc1 L_fb_max{q}
                v_mov_b32 v{M}, v{vMx}
                s_nop 1
                v_permlane32_swap_b32 v{vMx}, v{M}
                s_nop 1
                v_max_f32 v{vMx}, v{vMx}, v{M}
                s_sub_u32 s{sO}, s{sO}, 131072
                s_mov_b32 s{sN}, 64""")
            for k in range(16):
                a(f"v_sub_f32 v{M + k}, 0, v{vMx}\nv_mov_b32 v{O + k}, 0")
            a.label(f"L_fb_sum{q}")
            a(f"""buffer_load_dwordx4 {vr(K, 4)}, v{self.vKo}, {sr(sWS, 4)}, s{sO} offen sc1
                s_mov_b64 exec, {sr(sVM, 2)}
                buffer_load_dwordx4 {vr(V, 4)}, v{self.vVo}, {sr(sWS, 4)}, s{sO} offen offset:1024 sc1
                buffer_load_dwordx4 {vr(V + 4, 4)}, v{self.vVo}, {sr(sWS, 4)}, s{sO} offen offset:1536 sc1
                s_mov_b64 exec, -1
                s_waitcnt vmcnt(0)
                v_mfma_f32_32x32x16_bf16 {vr(S, 16)}, {vr(K, 4)}, {vr(Q, 4)}, {vr(M, 16)}
                s_nop 11""")
            for k in range(16):
                a(f"v_exp_f32 v{S + k}, v{S + k}")
            a(f"""s_nop 1
                v_smfmac_f32_32x32x32_bf16 {vr(O, 16)}, {vr(V, 4)}, {vr(S, 8)}, v{self.vIDX}
                v_smfmac_f32_32x32x32_bf16 {vr(O, 16)}, {vr(V + 4, 4)}, {vr(S + 8, 8)}, v{self.vIDX}
                s_nop 7
                s_add_u32 s{sO}, s{sO}, 2048
                s_sub_u32 s{sN}, s{sN}, 1
                s_cmp_lg_u32 s{sN}, 0
                s_cbranch_scc1 L_fb_sum{q}
                s_nop 3""")
            self.normalise(q)
        a("s_branch L_publish")

    XR, ACC, WS_ = 128, 32, 8
    vFlo, vD, vF, vCnt, v1_, vTmp = 0, 1, 2, 5, 6, 7

    def m_setup(self):
        a = self.a
        self.vXA, self.vXAh, self.vWk, self.vWkh, self.vQa, self.vST, self.vGo, self.vQFa, self.vGa = 80, 84, 88, 90, 92, 93, 94, 95, 96
        self.stamp("mjmp", "M")
        self.kload(sWG, sWU, sWD, sWO, sOUT, sGW)
        self.srd(sDBG, sWG, sWU, sWD, sWO, sOUT, sGW)
        a(f"""s_lshl_b32 s{sRB}, s{sT0}, 2
            s_and_b32 s{sT0 + 2}, s{sT0 + 1}, 3
            s_add_u32 s{sRB}, s{sRB}, s{sT0 + 2}
            s_lshr_b32 s{sCB}, s{sT0 + 1}, 2
            v_and_b32 v16, 31, v0
            v_lshrrev_b32 v17, 5, v0
            v_bfe_u32 v18, v0, 1, 3
            v_xor_b32 v18, v18, v17
            s_lshl_b32 s{sT0}, s{sT}, 12
            v_lshlrev_b32 v19, 7, v16
            v_lshl_add_u32 v19, v18, 4, v19
            v_add_u32 v{self.vXA}, s{sT0}, v19""")
        for s in range(1, 4):
            a(f"v_xor_b32 v{self.vXA + s}, {32 * s}, v{self.vXA}")
        for s in range(4):
            a(f"v_add_u32 v{self.vXAh + s}, 0x10000, v{self.vXA + s}")
        a(f"""v_bfe_u32 v18, v0, 2, 2
            v_lshl_add_u32 v18, v17, 3, v18
            v_bfe_u32 v19, v0, 4, 1
            v_and_b32 v20, 3, v0
            v_lshlrev_b32 v20, 3, v20
            v_lshl_add_u32 v20, v19, 5, v20
            v_bfe_u32 v21, v0, 3, 1
            v_lshl_add_u32 v22, v18, 7, v20
            v_lshl_add_u32 v{self.vWk}, v21, 6, v22
            v_xor_b32 v{self.vWk + 1}, 64, v{self.vWk}
            v_add_u32 v{self.vWkh}, 0x10000, v{self.vWk}
            v_add_u32 v{self.vWkh + 1}, 0x10000, v{self.vWk + 1}
            v_lshl_add_u32 v{self.vQa}, v18, 6, v20
            v_add_u32 v{self.vQa}, {QW}, v{self.vQa}
            s_lshl_b32 s{sT0}, s{sT}, 10
            s_add_u32 s{sT0}, s{sT0}, {QF}
            v_lshl_add_u32 v{self.vQFa}, v0, 4, s{sT0}
            v_mul_u32_u24 v22, 192, v18
            v_and_b32 v23, 0x33, v0
            v_bfe_u32 v25, v0, 2, 1
            v_lshl_add_u32 v23, v25, 3, v23
            v_lshl_add_u32 v23, v21, 2, v23
            v_lshlrev_b32 v23, 4, v23
            v_and_b32 v24, 15, v0
            v_lshlrev_b32 v{self.vGa}, 7, v17
            v_lshlrev_b32 v24, 4, v24
            v_lshl_add_u32 v24, v17, 8, v24
            v_lshl_add_u32 v24, v19, 17, v24
            v_add_u32 v24, 1024, v24
            v_lshlrev_b32 v26, 4, v0
            s_cmp_eq_u32 s{sC}, {14 if self.cfg['z14'] else 99}
            s_cselect_b32 s{sT0 + 1}, 4, 12
            v_mov_b32 v31, {OOB >> 4}
            s_lshl_b32 s{sT0}, s{sT}, 4""")
        if self.cfg["f16"]:
            a(f"""v_mul_u32_u24 v20, {FROW}, v19
                v_bfe_u32 v27, v0, 1, 1
                v_lshl_add_u32 v20, v27, 5, v20
                v_and_b32 v27, 1, v0
                v_lshl_add_u32 v20, v27, 3, v20""")
        for k in range(3):
            a(f"""v_add_u32 v27, {64 * k}, v0
                v_mul_u32_u24 v28, 2731, v27
                v_lshrrev_b32 v28, 15, v28
                v_mul_u32_u24 v29, 12, v28
                v_sub_u32 v29, v27, v29
                v_cmp_le_u32 vcc, s{sT0 + 1}, v29
                v_add_u32 v28, s{sT0}, v28
                v_mul_u32_u24 v28, 2752, v28
                v_cndmask_b32 v29, v29, v31, vcc
                v_lshl_add_u32 v{self.vF + k}, v29, 4, v28""")
        a(f"""v_add_u32 v{self.vFlo}, v22, v20
            v_add_u32 v{self.vFlo}, {fslot(0)}, v{self.vFlo}
            v_bfe_u32 v20, v26, 4, 3
            v_lshlrev_b32 v22, 2, v19
            v_xor_b32 v20, v20, v22
            v_lshlrev_b32 v20, 4, v20
            v_lshrrev_b32 v22, 7, v26
            v_lshl_add_u32 v{self.vD}, v22, 10, v20
            v_mov_b32 v{self.vCnt}, {CNT}
            v_lshl_add_u32 v{self.v1_}, v26, 3, 4""")
        for i in range(4):
            a(f"v_mov_b32 v{100 + i}, 0")
        a(f"ds_write_b128 v{self.vCnt}, v[100:103]\nds_write_b128 v{self.vCnt}, v[100:103] offset:16\nds_write_b128 v{self.vCnt}, v[100:103] offset:32\nds_write_b128 v{self.vCnt}, v[100:103] offset:48\ns_waitcnt lgkmcnt(0)")

    def pass_a(self, isv):
        a = self.a
        a.lg.reset()
        a.vm.reset()
        a(f"v_mov_b32 v{self.vST}, v{24 if isv else 23}")
        XR, ACC, W = self.XR, self.ACC, self.WS_
        sB = sT0 + 2
        atm = self.cfg["atm"]
        wr = lambda g: 104 if (g == 31 and atm) else W + 8 * (g % 3)

        def reads(g):
            i, s = divmod(g, 4)
            B = slot(i)
            self.dsr("ds_read_b128", XR + 4 * g, 4, self.vXA + s, self.vXAh + s, B, ("x", g))
            for ct in range(2):
                for u in range(2):
                    self.dsr("ds_read_b64_tr_b16", wr(g) + 4 * ct + 2 * u, 2, self.vWk + ct, self.vWkh + ct,
                             B + 16384 + (16 * s + 4 * u) * 128, ("w", g, ct))

        def comp(g, cts=(0, 1)):
            for ct in cts:
                a.lg.wait(("x", g), ("w", g, ct))
                wf, xf = vr(wr(g) + 4 * ct, 4), vr(XR + 4 * g, 4)
                d = vr(ACC + 16 * ct, 16)
                A, Bm = (xf, wf) if isv else (wf, xf)
                a(f"v_mfma_f32_32x32x16_bf16 {d}, {A}, {Bm}, {d if g else 0}")

        def kv_store(ct, q):
            d = 112 + 8 * ct + 4 * q
            for k in range(4):
                s = ACC + 16 * ct + 8 * q + 2 * k
                a(f"v_cvt_pk_bf16_f32 v{d + k}, v{s}, v{s + 1}")
            if isv:
                a(f"buffer_store_dwordx4 {vr(d, 4)}, v{self.vST}, {sr(sWS, 4)}, s{sB} offen offset:{512 * q} sc1")
                if q == 1 and ct == 0:
                    a(f"s_add_u32 s{sB}, s{sB}, 262144")
            else:
                a(f"buffer_store_dwordx4 {vr(d, 4)}, v{self.vST}, {sr(sWS, 4)}, s{sB} offen sc1")
                a(f"s_add_u32 s{sB}, s{sB}, 131072")

        a(f"""s_lshr_b32 s{sB}, s{sC}, 1
            s_lshl_b32 s{sB}, s{sB}, 19
            s_lshl_b32 s{sB + 1}, s{sR}, 2
            s_add_u32 s{sB + 1}, s{sB + 1}, s{sT}
            s_lshl_b32 s{sB + 1}, s{sB + 1}, 11
            s_add_u32 s{sB}, s{sB}, s{sB + 1}""")
        self.stamp("mrdy", "M")
        for i in range(8):
            g0 = 4 * i
            if i:
                a.lg.drain()
            if i == 7 and atm:
                comp(27)
                a("s_barrier")
                for g in range(28, 31):
                    reads(g)
                comp(28, (0,))
                reads(31)
                for g in range(29, 32):
                    comp(g, (0,))
                comp(28, (1,))
                a("s_nop 5")
                comp(29, (1,))
                a("s_nop 3")
                kv_store(0, 0)
                comp(30, (1,))
                comp(31, (1,))
                kv_store(0, 1)
                a("s_nop 5")
                kv_store(1, 0)
                kv_store(1, 1)
                break
            a("s_barrier")
            if i == 0:
                self.stamp("BA0", "M")
            reads(g0)
            reads(g0 + 1)
            if i:
                comp(g0 - 1)
            reads(g0 + 2)
            if i == self.cfg['go_at']:
                a(f"buffer_load_dword v{self.vGo}, v{self.vGa}, {sr(sDBG, 4)}, 0 offen sc1")
            comp(g0)
            reads(g0 + 3)
            comp(g0 + 1)
            comp(g0 + 2)
        if not atm:
            comp(31)
            a("s_nop 10")
            for k in range(4):
                kv_store(k >> 1, k & 1)
        self.stamp("KVst", "M")

    def kv_flag(self):
        a = self.a
        ok = self.lab("go")
        a(f"""s_lshr_b32 s{sT0}, s{sC}, 1
            s_lshl_b32 s{sT0}, s{sT0}, 4
            s_add_u32 s{sT0}, s{sT0}, s{sR}
            s_lshl_b32 s{sT0}, s{sT0}, 7
            s_add_u32 s{sT0}, s{sT0}, {CKV}
            s_waitcnt vmcnt({4 + len(a.vm.q)})
            v_cmp_gt_u32 vcc, 32, v{self.vGo}
            s_cbranch_vccz {ok}""")
        q = list(a.vm.q)
        self.poll(self.vGa, "0", self.vGo, sDBG)
        a.vm.q = q
        a.label(ok)

    def issue_f(self, i):
        a = self.a
        sCh, sO, sFB, sLf = sT0 + 4, sT0 + 5, sT0 + 6, sT0 + 7
        if i == 0:
            a(f"s_mul_i32 s{sFB}, s{sC}, 192\ns_mul_i32 s{sLf}, s{sT}, {FROW}")
        self.chunk(sCh, i)
        a(f"s_mul_i32 s{sO}, s{sCh}, 176128\ns_add_u32 s{sO}, s{sO}, s{sFB}")
        for m in range(2):
            for k in range(3):
                a(f"s_add_u32 m0, s{sLf}, {fslot(i) + FMAT * m + 1024 * k}\ns_nop 0")
                a(f"buffer_load_dwordx4 v{self.vF + k}, {sr(sWG if m == 0 else sWU, 4)}, s{sO} offen {self.cfg['fpol'] if i < self.cfg['fn'] else ''} lds")
                a.vm.issue(("F", i))

    def touch(self, i):
        a = self.a
        sA = sT0 + 8
        a(f"""s_lshr_b32 s{sA}, s2, 3
            s_lshl_b32 s{sA}, s{sA}, 2
            s_add_u32 s{sA}, s{sA}, s{sT}
            s_mul_i32 s{sA}, s{sA}, 11008
            s_add_u32 s{sA}, s{sA}, {2048 * i}
            s_mov_b32 m0, {CNT + 64}
            s_mov_b64 exec, {'0x3f' if i == 5 else '0xffff'}
            buffer_load_dword v{self.v1_}, {sr(sWD, 4)}, s{sA} offen lds
            s_mov_b64 exec, -1""")
        a.vm.issue("touch")

    def issue_wo(self, lo, hi):
        a = self.a
        sA, sL = sT0 + 8, sT0 + 9
        a(f"""s_lshl_b32 s{sA}, s{sT}, 17
            s_lshl_b32 s{sL}, s{sCB}, 7
            s_add_u32 s{sA}, s{sA}, s{sL}
            s_lshl_b32 s{sL}, s{sT}, 14""")
        for k in range(lo, hi):
            a(f"""s_add_u32 m0, s{sL}, {WOL + 1024 * k}
                s_add_u32 s{sA}, s{sA}, {8192 * (k if k == lo else 1)}
                buffer_load_dwordx4 v{self.vD}, {sr(sWO, 4)}, s{sA} offen lds""")
            a.vm.issue("wo")

    def pass_q(self):
        a = self.a
        XR, W, QACC = self.XR, self.WS_, 64
        a.lg.reset()
        a.vm.reset()
        flag_at, f0_at = self.cfg["kvflag_at"], self.cfg["f0_at"]

        def reads(g):
            for u in range(2):
                self.dsr("ds_read_b64_tr_b16", W + 4 * (g % 6) + 2 * u, 2, self.vQa, None, (16 * g + 4 * u) * 64, g)

        def hooks(j):
            if j == flag_at:
                if a.vm.q:
                    a(f"s_cmp_eq_u32 s{sC}, 15\ns_cbranch_scc0 L_kvw\ns_waitcnt vmcnt(0)")
                    a.label("L_kvw")
                a(f"s_waitcnt vmcnt({len(a.vm.q)})")
                self.stamp("KVack", "M")
                self.signal(sT0)
                if self.cfg["pwait"]:
                    self.lds_signal(self.vCnt, self.v1_, 48)
                self.stamp("KVflag", "M")
            if j == f0_at:
                skip = self.lab("nof0")
                a(f"s_cmp_eq_u32 s{sC}, 15\ns_cbranch_scc1 {skip}")
                self.issue_f(0)
                a.label(skip)
            if j == self.cfg["f1_at"]:
                skip = self.lab("nof1")
                a(f"s_cmp_eq_u32 s{sC}, 15\ns_cbranch_scc1 {skip}")
                self.issue_f(1)
                a.label(skip)

        if self.cfg["qs"] % 10:
            a("s_barrier")
        self.kv_flag()
        hooks(-2)
        hooks(-1)
        self.stamp("F0iss", "M")
        a("s_barrier")
        self.stamp("BQ", "M")
        for g in range(6):
            reads(g)
        nxt = 6
        for g in range(32):
            a.lg.wait(g)
            d = vr(QACC, 16)
            a(f"v_mfma_f32_32x32x16_bf16 {d}, {vr(W + 4 * (g % 6), 4)}, {vr(XR + 4 * g, 4)}, {d if g else 0}")
            if nxt < 32:
                reads(nxt)
                nxt += 1
            hooks(g)
        a(f"v_mov_b32 v98, {f32(0.25 * LOG2E)}\ns_nop 10")
        for k in range(8):
            a(f"v_pk_mul_f32 {vr(QACC + 2 * k, 2)}, {vr(QACC + 2 * k, 2)}, v[98:99] op_sel_hi:[1,0]")
        for hd in range(2):
            for k in range(4 * hd, 4 * hd + 4):
                a(f"v_cvt_pk_bf16_f32 v{QACC + k}, v{QACC + 2 * k}, v{QACC + 2 * k + 1}")
            a(f"ds_write_b128 v{self.vQFa}, {vr(QACC + 4 * hd, 4)} offset:{4096 * hd}")
        self.lds_signal(self.vCnt, self.v1_, 16)
        self.stamp("Qdone", "M")
        hooks(32)

    def pass_f(self):
        a = self.a
        XR, ACC, W = self.XR, self.ACC, self.WS_
        N, sig, gat, rchk = 192, self.cfg["sig_at"], self.cfg["gate_at"], self.cfg["rchk"]

        jit = [int(ch) for ch in str(self.cfg["jit"])[1:]]
        due = {(j, u): j - ((1, 2)[u] if jit[j // 24] else 6) for j in range(N) for u in range(2)}
        first = [min(due[(j, u)] for j in range(24 * i, 24 * i + 24) for u in range(2)) for i in range(8)]
        for (j, u) in due:
            if j // 24 < 7:
                due[(j, u)] = min(due[(j, u)], first[j // 24 + 1])
        todo = sorted(due, key=lambda k: (due[k], k[0] // 24, k[0], k[1]))
        cur, par, f16 = [0], [0], self.cfg["f16"]

        def reads(now, limit=99):
            while todo and due[todo[0]] <= now and limit:
                limit -= 1
                j, u = todo.pop(0)
                g, t = divmod(j, 6)
                i, s = divmod(g, 4)
                if i != cur[0]:
                    self.boost()
                    a(f"v_add_u32 v{self.vFlo}, {(fslot(i) - fslot(i - 1)) & 0xffffffff}, v{self.vFlo}")
                    cur[0] = i
                off = FROW * (s & 2) + 16 * (s & 1) if f16 else FROW * s
                self.dsr("ds_read_b64_tr_b16", W + 4 * (j % 6) + 2 * u, 2, self.vFlo, None,
                         FMAT * (t & 1) + off + 768 * u + 64 * (t >> 1), j)

        def landed(i):
            a.vm.wait(("F", i))
            self.lds_signal(self.vCnt, self.v1_, 0)
            self.boost()

        if f16:
            for k in range(16):
                for q in range(4):
                    a(f"v_permlane16_swap_b32 v{XR + 8 * k + q}, v{XR + 8 * k + 4 + q}")
        self.bg = bool(self.cfg["boost"])
        if gat < 0:
            self.lds_probe(self.vCnt, self.vTmp, 20)
            self.lds_check(self.vCnt, self.vTmp, 20, 4)
            self.issue_f(1)
        landed(0)
        self.lds_probe(self.vCnt, self.vTmp, 0)
        self.lds_check(self.vCnt, self.vTmp, 0, 16)
        self.stamp("F0", "M")
        reads(-1)
        for j in range(N):
            g, t = divmod(j, 6)
            i, jj = divmod(j, 24)
            if self.cfg["pulse"] and j % self.cfg["pulse"] == 0:
                self.boost()
            a.lg.wait(j)
            if f16:
                for th in range(2):
                    d = vr(ACC + 16 * t + 8 * th + 4 * (g & 1), 4)
                    a(f"v_mfma_f32_16x16x32_bf16 {d}, {vr(W + 4 * (j % 6), 4)}, {vr(XR + 8 * (g >> 1) + 4 * th, 4)}, {d if g > 1 else 0}")
                    if th == 0:
                        self.unboost()
                        reads(j - 1)
            else:
                d = vr(ACC + 16 * t, 16)
                a(f"v_mfma_f32_32x32x16_bf16 {d}, {vr(W + 4 * (j % 6), 4)}, {vr(XR + 4 * g, 4)}, {d if g else 0}")
            self.unboost()
            if jj == 23:
                self.stamp(f"f{i}", "M")
            if j == gat - 2:
                self.lds_probe(self.vCnt, self.vTmp, 20)
            if j == gat:
                self.lds_check(self.vCnt, self.vTmp, 20, 4)
                self.issue_f(1 if self.cfg["f1_at"] > 32 else 2)
            if j == 26:
                self.lds_probe(self.vCnt, self.vTmp, 24)
            if j == 28:
                self.lds_check(self.vCnt, self.vTmp, 24, 4)
            if 1 <= i < 6:
                if jj == 0:
                    self.lds_signal(self.vCnt, self.v1_, 28)
                if jj == rchk - 2:
                    self.lds_probe(self.vCnt, self.vTmp, 28)
                if jj == rchk:
                    self.lds_check(self.vCnt, self.vTmp, 28, 16 * i)
                    self.issue_f(i + 2)
            if i == 7:
                if jj == 0:
                    self.lds_signal(self.vCnt, self.v1_, 28)
                    self.ffn2_scalars()
                if jj == rchk - 2:
                    self.lds_probe(self.vCnt, self.vTmp, 28)
                if jj == rchk:
                    self.lds_check(self.vCnt, self.vTmp, 28, 96)
                    a(f"v_add_u32 v{self.vD2}, 7168, v{self.vD}")
                    a.vm.wait("wo")
                if jj >= rchk and (jj - rchk) % 2 == 0 and jj - rchk < 12:
                    self.issue_w((jj - rchk) // 2)
            if i < 7:
                if jj == (sig if i else self.cfg["sig0"]):
                    landed(i + 1)
                    if i == 0 and self.cfg["f1_at"] > 32:
                        self.issue_f(2)
                if jj == self.cfg["wo_at"] and i:
                    self.touch(i - 1)
                    self.issue_wo(*((0, 3), (3, 6), (6, 9), (9, 12), (12, 14), (14, 16))[i - 1])
                if j == first[i + 1] - 2:
                    self.lds_probe(self.vCnt, self.vTmp, 0)
                if j == first[i + 1]:
                    self.lds_check(self.vCnt, self.vTmp, 0, 16 * (i + 2))
            reads(j, 1 if f16 == 1 else 99)
        self.bg = False
        self.lds_signal(self.vCnt, self.v1_, 0)
        self.stamp("Fdone", "M")

    def gelu(self):
        a = self.a
        ACC = self.ACC
        f16 = self.cfg["f16"]
        c0, c1, T, OUT, vOff = 240, 242, 224, 200, 244 if f16 else self.vP
        sH, sV, sA = sT0 + 12, sT0 + 13, sT0 + 14
        prog = self.w_program()
        per_gap = [int(ch) for ch in str(self.cfg["gaps"])[1:]]
        k0 = -2.0 * 0.7978845608028654 * LOG2E
        a(f"""s_lshl_b32 s{sH}, s{sR}, 2
            s_add_u32 s{sH}, s{sH}, s{sT}
            s_mul_i32 s{sH}, s{sH}, 86
            s_mul_i32 s{sV}, s{sC}, 6
            s_add_u32 s{sH}, s{sH}, s{sV}
            s_lshl_b32 s{sH}, s{sH}, 10
            s_add_u32 s{sH}, s{sH}, {WS_H}""")
        self.ffn2_setup()
        if f16:
            a(f"v_and_b32 v{vOff}, 0x300, v{self.vP}\nv_add_u32 v{vOff}, v{vOff}, v{self.vP}")
        if self.cfg["galign"]:
            a.raw(".p2align 3")
        a(f"""v_mov_b32 v{c0}, {f32(k0)}
            v_mov_b32 v{c0 + 1}, {f32(k0)}
            v_mov_b32 v{c1}, {f32(k0 * 0.044715)}
            v_mov_b32 v{c1 + 1}, {f32(k0 * 0.044715)}""")

        def stores(j):
            a(f"s_cmp_lt_u32 s{sV}, {86 - 2 * j}\ns_cselect_b32 s{sA}, s{sH}, {OOB}\ns_add_u32 s{sH}, s{sH}, 2048")
            for q in range(2):
                a(f"buffer_store_dwordx4 {vr(OUT + 8 * j + 4 * q, 4)}, v{vOff}, {sr(sWS, 4)}, s{sA} offen offset:{(256 if f16 else 1024) * q} sc1")
                a.vm.issue("H")

        def gap(n):
            for _ in range(per_gap[n]):
                prog.pop(0)()
            if self.cfg["galign"]:
                a.raw(".p2align 3")

        for j in range(3):
            G, U = ACC + 32 * j, ACC + 32 * j + 16
            p = lambda b, k: vr(b + 2 * k, 2)
            for k in range(8):
                if j == 0 and k < self.cfg["plain"]:
                    a(f"v_mul_f32 v{T + 2 * k}, v{G + 2 * k}, v{G + 2 * k}\nv_mul_f32 v{T + 2 * k + 1}, v{G + 2 * k + 1}, v{G + 2 * k + 1}")
                else:
                    a(f"v_pk_mul_f32 {p(T, k)}, {p(G, k)}, {p(G, k)}")
            for k in range(8):
                a(f"v_pk_fma_f32 {p(T, k)}, {p(T, k)}, {vr(c1, 2)}, {vr(c0, 2)}")
            for k in range(8):
                a(f"v_pk_mul_f32 {p(T, k)}, {p(T, k)}, {p(G, k)}")
            if j:
                stores(j - 1)
            gap(2 * j)
            for k in range(16):
                a(f"v_exp_f32 v{T + k}, v{T + k}")
            for k in range(8):
                a(f"v_pk_mul_f32 {p(G, k)}, {p(G, k)}, {p(U, k)}")
            for k in range(8):
                a(f"v_pk_add_f32 {p(T, k)}, {p(T, k)}, 1.0 op_sel_hi:[1,0]")
            gap(2 * j + 1)
            for k in range(16):
                a(f"v_rcp_f32 v{T + k}, v{T + k}")
            for k in range(8):
                a(f"v_pk_mul_f32 {p(G, k)}, {p(G, k)}, {p(T, k)}")
            for k in range(8):
                a(f"v_cvt_pk_bf16_f32 v{OUT + 8 * j + k}, v{G + 2 * k}, v{G + 2 * k + 1}")
        stores(2)

    def gate(self):
        a = self.a
        XR, GB, Z, vO = self.XR, 32, 24, 28
        sCh = sT0 + 4
        a.vm.drain()
        a.lg.reset()
        self.lds_probe(self.vCnt, self.vTmp, 24)
        self.lds_check(self.vCnt, self.vTmp, 24, 4, nap=2)
        self.lane(vO + 1)
        a(f"v_lshrrev_b32 v{vO}, 5, v{vO + 1}\nv_lshlrev_b32 v{vO}, 4, v{vO}")
        for k in range(4):
            a(f"v_mov_b32 v{Z + k}, 0")
        for half in range(2):
            for i in range(4 * half, 4 * half + 4):
                self.chunk(sCh, i)
                a(f"s_lshl_b32 s{sCh}, s{sCh}, 7")
                for s in range(4):
                    a(f"buffer_load_dwordx4 {vr(GB + 16 * (i & 3) + 4 * s, 4)}, v{vO}, {sr(sGW, 4)}, s{sCh} offen offset:{32 * s}")
            for i in range(3 * half, 3 * half + 3):
                self.touch(i)
            a("s_waitcnt vmcnt(0)")
            for k in range(64):
                a(f"v_dot2c_f32_bf16 v{Z + (k & 3)}, v{XR + 64 * half + k}, v{GB + k}")
        a(f"""s_lshl_b32 s{sT0}, s{sR}, 2
            s_add_u32 s{sT0}, s{sT0}, s{sT}
            s_lshl_b32 s{sT0}, s{sT0}, 7
            s_add_u32 s{sT0}, s{sT0}, {WS_G}
            v_add_f32 v{Z}, v{Z}, v{Z + 1}
            v_add_f32 v{Z + 2}, v{Z + 2}, v{Z + 3}
            v_add_f32 v{Z}, v{Z}, v{Z + 2}
            v_mov_b32 v{Z + 1}, v{Z}
            v_lshlrev_b32 v{vO}, 2, v{vO + 1}
            s_nop 0
            v_permlane32_swap_b32 v{Z}, v{Z + 1}
            s_nop 1
            v_add_f32 v{Z}, v{Z}, v{Z + 1}
            s_mov_b32 s{sT0 + 12}, s{sT0}""")
        for k in range(0, 16, 4):
            self.issue_wo(k, k + 4)
            self.cap()
        a.vm.drain()
        a(f"v_mov_b32 v{self.vTmp}, 36")
        self.lds_signal(self.vCnt, self.vTmp, 0)
        self.ffn2_scalars()
        a(f"v_add_u32 v{self.vD2}, 7168, v{self.vD}")
        for k in range(6):
            self.issue_w(k)
            self.cap()
        self.ffn2_setup()
        for op in self.w_program()[:sum(int(ch) for ch in str(self.cfg["gaps"])[1:])]:
            op()
        a(f"""s_mov_b32 exec_hi, 0
            buffer_store_dword v{Z}, v{vO}, {sr(sWS, 4)}, s{sT0 + 12} offen sc1
            s_mov_b64 exec, -1""")

    vL, vH, vA0, vA1, vRel, vDump, vP, vZ, vD2, vH2, vT0, vB0, vB1 = 8, 10, 11, 12, 13, 15, 16, 17, 2, 19, 9, 14, 18

    sRB2 = 4
    FS = (5, 6, 7, 8, 9, 10, 11, sT0 + 12, sT0 + 13, sT0 + 14)

    def ffn2_scalars(self):
        a = self.a
        sRing, sS0, sS1, sWc, sW0, sWe, sHc, sH0, sHe, sHl, sFl, sRow = range(sT0, sT0 + 12)
        NS = 22
        a(f"""s_mul_i32 s{sRing}, s{sT}, 12288
            s_mul_i32 s{self.sRB2}, s{sT}, 6144
            s_add_u32 s{self.sRB2}, s{self.sRB2}, {SEGB}
            s_and_b32 s{sS0}, s{sRB}, 3
            s_lshl_b32 s{sS0}, s{sS0}, 1
            s_add_u32 s{sS0}, s{sS0}, s{sCB}
            s_and_b32 s{sS0}, s{sS0}, {7 if self.cfg['rot2'] else 0}
            s_mul_i32 s{sS0}, s{sS0}, 11
            s_lshr_b32 s{sS0}, s{sS0}, 2
            s_mul_i32 s{sS1}, s{sT}, {NS}
            s_lshl_b32 s{sW0}, s{sS1}, 14
            s_lshl_b32 s{sWc}, s{sCB}, 7
            s_add_u32 s{sW0}, s{sW0}, s{sWc}
            s_add_u32 s{sWe}, s{sW0}, {NS * 16384}
            s_lshl_b32 s{sWc}, s{sS0}, 14
            s_add_u32 s{sWc}, s{sWc}, s{sW0}
            s_mul_i32 s{sHl}, s{sRB}, 172
            s_add_u32 s{sH0}, s{sHl}, s{sS1}
            s_lshl_b32 s{sH0}, s{sH0}, 10
            s_add_u32 s{sH0}, s{sH0}, {WS_H}
            s_add_u32 s{sHe}, s{sH0}, {NS * 1024}
            s_lshl_b32 s{sHc}, s{sS0}, 10
            s_add_u32 s{sHc}, s{sHc}, s{sH0}
            s_lshl_b32 s{sHl}, s{sHl}, 10
            s_add_u32 s{sHl}, s{sHl}, {WS_H + 86 * 1024}
            s_lshl_b32 s{sFl}, s{sR}, 1
            s_lshr_b32 s{sS0}, s{sT}, 1
            s_add_u32 s{sFl}, s{sFl}, s{sS0}
            s_lshl_b32 s{sFl}, s{sFl}, 9
            s_add_u32 s{sFl}, s{sFl}, {CH}
            s_mov_b32 s{sRow}, 0x62223111
            s_cmp_ge_u32 s{sC}, 8
            s_cselect_b32 s{sRow}, 0xf8888444, s{sRow}
            s_and_b32 s{sS0}, s{sC}, 7
            s_lshl_b32 s{sS0}, s{sS0}, 2
            s_lshr_b32 s{sRow}, s{sRow}, s{sS0}""")

    def cap(self):
        a, CAP = self.a, self.cfg["cap"]
        if len(a.vm.q) > CAP:
            a.vm.q = a.vm.q[len(a.vm.q) - CAP:]
            a(f"s_waitcnt vmcnt({CAP})")

    def issue_w(self, s):
        a = self.a
        sRing, sS0, sS1, sWc, sW0, sWe = range(sT0, sT0 + 6)
        a(f"s_add_u32 m0, s{sRing if WSLOT[s] < 6 else self.sRB2}, {(WSLOT[s] % 6) * 2048}")
        if s:
            a(f"s_add_u32 s{sWc}, s{sWc}, 16384\ns_cmp_eq_u32 s{sWc}, s{sWe}\ns_cselect_b32 s{sWc}, s{sW0}, s{sWc}")
        else:
            a("s_nop 0")
        a(f"buffer_load_dwordx4 v{self.vD}, {sr(sWD, 4)}, s{sWc} offen lds")
        a(f"buffer_load_dwordx4 v{self.vD2}, {sr(sWD, 4)}, s{sWc} offen offset:1024 lds")
        a.vm.issue(("w", s))
        a.vm.issue(("w", s))

    @staticmethod
    def wreg(s):
        return 128 + 8 * s if s < 9 else 96 + 8 * (s - 9) if s < 13 else 128 + 8 * (s - 13)

    def w_reads(self, s):
        self.a.vm.wait(("w", s))
        regs = (self.vA0, self.vA1) if WSLOT[s] < 6 else (self.vB0, self.vB1)
        for ct in range(2):
            for u in range(2):
                self.dsr("ds_read_b64_tr_b16", self.wreg(s) + 4 * ct + 2 * u, 2, regs[ct], None,
                         (WSLOT[s] % 6) * 2048 + 1024 * u, (s, ct))

    def w_program(self, need=144):
        a = self.a

        def R(*steps):
            return lambda: [self.w_reads(s) for s in steps]

        def I(s):
            def op():
                prev = [p for p in range(s) if WSLOT[p] == WSLOT[s]]
                if prev:
                    a.lg.wait((prev[-1], 1))
                if s == 11:
                    self.lds_probe(self.vCnt, self.vTmp, 0)
                if s == 12:
                    self.lds_check(self.vCnt, self.vTmp, 0, need)
                self.issue_w(s)
                self.cap()
            return op

        return [R(0, 1, 2), I(6), I(7), R(3, 4, 5), I(8), I(9), I(10), I(11), I(12), I(13), R(6, 7, 8), I(14), I(15), I(16), I(17),
                R(9, 10), R(11, 12), I(18), I(19), I(20), I(21)]

    def ffn2_setup(self):
        a = self.a
        vL, vH, vA0, vA1, vRel, vDump, vP, vZ, vH2, vT0 = (self.vL, self.vH, self.vA0, self.vA1, self.vRel, self.vDump, self.vP,
                                                           self.vZ, self.vH2, self.vT0)
        sRing, sS0 = sT0, sT0 + 1
        self.lane(vL)
        a(f"""v_lshlrev_b32 v{vP}, 4, v{vL}
            s_and_b32 s{sS0}, s{sT}, 1
            s_mul_i32 s{sS0}, s{sS0}, 88064
            v_add_u32 v{vH}, s{sS0}, v{vP}
            s_sub_u32 s{sS0}, 88064, s{sS0}
            v_add_u32 v{vH2}, s{sS0}, v{vP}
            v_add_u32 v{vDump}, s{sRing}, v{vP}
            v_lshrrev_b32 v20, 5, v{vL}
            v_bfe_u32 v21, v{vL}, 2, 2
            v_lshl_add_u32 v20, v20, 2, v21
            v_and_b32 v21, 1, v{vL}
            v_lshlrev_b32 v21, 2, v21
            v_bfe_u32 v22, v{vL}, 4, 1
            v_lshl_add_u32 v21, v22, 1, v21
            v_bfe_u32 v23, v{vL}, 1, 1
            v_add_u32 v21, v21, v23
            v_lshlrev_b32 v21, 3, v21
            v_lshl_add_u32 v21, v20, 7, v21
            v_bfe_u32 v23, v{vL}, 3, 1
            v_lshl_add_u32 v21, v23, 6, v21
            s_lshr_b32 s{sS0}, s{sT}, 1
            s_lshl_b32 s{sS0}, s{sS0}, 6
            v_xor_b32 v{vT0}, s{sS0}, v21
            v_add_u32 v{vA0}, s{sRing}, v{vT0}
            v_xor_b32 v{vA1}, 64, v{vA0}
            v_add_u32 v{self.vB0}, s{self.sRB2}, v{vT0}
            v_xor_b32 v{self.vB1}, 64, v{self.vB0}
            s_lshl_b32 s{sS0}, s{sT}, 2
            v_add_u32 v{vRel}, s{sS0}, v{self.vCnt}
            v_and_b32 v{vZ}, 31, v{vL}
            v_lshlrev_b32 v30, 10, v{vZ}
            v_lshlrev_b32 v{vZ}, 2, v{vZ}
            v_lshrrev_b32 v20, 5, v{vL}
            v_lshl_add_u32 v30, v20, 5, v30
            v_add_u32 v31, s{self.sRB2}, v{vP}
            s_xor_b32 s{sS0}, s{sT}, 2
            s_mul_i32 s{sS0}, s{sS0}, 6144
            s_add_u32 s{sS0}, s{sS0}, {SEGB}
            v_add_u32 v20, s{sS0}, v{vP}""")
        for reg, d in ((21, 2), (22, 1), (23, 3)):
            a(f"s_xor_b32 s{sS0}, s{sT}, {d}\ns_mul_i32 s{sS0}, s{sS0}, 12288\nv_add_u32 v{reg}, s{sS0}, v{vP}")

    def ffn2(self):
        a = self.a
        ACC = 32
        vH, vRel, vDump, vZ, vH2 = self.vH, self.vRel, self.vDump, self.vZ, self.vH2
        sRing, sS0, sS1, sWc, sW0, sWe, sHc, sH0, sHe, sHl, sFl, sRow = range(sT0, sT0 + 12)
        NS, PD = 22, self.cfg["pd"]
        cap, issue_w, reads, wreg = self.cap, self.issue_w, self.w_reads, self.wreg
        hreg = lambda s: 200 + 8 * ((s + 6) % 7)
        a(f"s_setprio {self.cfg['prio_m']}")
        a.lg.reset()
        a.vm.reset()

        def issue_h(s):
            if s:
                a(f"""s_add_u32 s{sHc}, s{sHc}, 1024
                    s_cmp_eq_u32 s{sHc}, s{sHe}
                    s_cselect_b32 s{sHc}, s{sH0}, s{sHc}""")
            a(f"s_cmp_lt_u32 s{sHc}, s{sHl}\ns_cselect_b32 s{sS0}, s{sHc}, {OOB}")
            for tt in range(2):
                a(f"buffer_load_dwordx4 {vr(hreg(s) + 4 * tt, 4)}, v{(vH, vH2)[tt]}, {sr(sWS, 4)}, s{sS0} offen sc1")
                a.vm.issue(("h", s))

        done = sum(int(ch) for ch in str(self.cfg["gaps"])[1:])
        assert done <= 15 and done != 8
        prog = self.w_program()[done:]
        a("s_waitcnt vmcnt(0) lgkmcnt(0)")
        for k in range(4):
            skip = self.lab("nosig")
            a(f"s_bitcmp1_b32 s{sRow}, {k}\ns_cbranch_scc0 {skip}")
            self.signal(sFl)
            a.label(skip)
            a(f"s_add_u32 s{sFl}, s{sFl}, 128")
        self.stamp("Hflag", "M")
        a(f"""s_lshl_b32 s{sFl}, s{sRB}, 2
            s_add_u32 s{sFl}, s{sFl}, s{sT}
            s_lshl_b32 s{sFl}, s{sFl}, 7
            s_add_u32 s{sFl}, s{sFl}, {CH}
            s_cmp_eq_u32 s{sT}, 1
            s_cselect_b32 s{sRow}, 12, 10
            s_mov_b32 s{sPV}, 0""")
        for n, op in enumerate(prog):
            if n == len(prog) - 3:
                a.lg.drain()
                a(f"s_atomic_add s{sPV}, {sr(sWS, 2)}, s{sFl} glc")
            op()
        self.stamp("W0", "M")
        ready = self.lab("hready")
        a(f"s_waitcnt lgkmcnt(0)\ns_cmp_ge_u32 s{sPV}, s{sRow}\ns_cbranch_scc1 {ready}")
        self.spoll(sFl, f"s{sRow}")
        a.label(ready)
        self.stamp("Hpoll", "M")
        for s in range(PD):
            issue_h(s)
        a(f"""s_lshl_b32 s{sFl}, s{sRB}, 1
            s_and_b32 s{sS0}, s{sT}, 1
            s_add_u32 s{sFl}, s{sFl}, s{sS0}
            s_lshl_b32 s{sFl}, s{sFl}, 7
            s_add_u32 s{sFl}, s{sFl}, {WS_G}
            buffer_load_dword v{vZ}, v{vZ}, {sr(sWS, 4)}, s{sFl} offen sc1""")
        a.vm.issue("z")
        nh = PD
        hold = NS - self.cfg["defer"]
        assert hold <= 16 or hold == NS

        cnt = [0]

        def mm(s, ct, tt):
            self.bg = bool(self.cfg["pulse2"])
            if self.bg and cnt[0] % self.cfg["pulse2"] == 0:
                self.boost()
            cnt[0] += 1
            a.vm.wait(("h", s))
            a.lg.wait((s, ct))
            d = vr(ACC + 32 * tt + 16 * ct, 16)
            a(f"v_mfma_f32_32x32x16_bf16 {d}, {vr(wreg(s) + 4 * ct, 4)}, {vr(hreg(s) + 4 * tt, 4)}, {d if s else 0}")
            self.unboost()
            self.bg = False

        for s in range(17):
            if s == hold or s == 16:
                while nh < min(NS, s + 7):
                    issue_h(nh)
                    nh += 1
                    cap()
            if s == hold:
                self.stamp("hold", "M")
                self.lds_probe(vRel, self.vTmp, 32)
                self.lds_check(vRel, self.vTmp, 32, 1, nap=2)
                self.stamp("resume", "M")
            if s == 16:
                break
            self.stamp(f"s{s}", "M")
            if s == max(self.cfg["look"], hold if hold < NS else 0):
                a.lg.drain()
                self.final_setup()
            for k in range(4):
                mm(s, *divmod(k, 2))
                if k == 0 and nh < min(NS, s + 7):
                    issue_h(nh)
                    nh += 1
                if k == 1 and 1 <= s <= 9:
                    reads(s + 12)
        self.stamp("s16", "M")
        if max(self.cfg["look"], hold if hold < NS else 0) >= 16:
            a.lg.drain()
            self.final_setup()
        for n, (ct, tt) in enumerate(((0, 1), (1, 0), (1, 1), (0, 0))):
            for s in range(16, NS):
                mm(s, ct, tt)
                if n and s >= 18:
                    k = (8, 4, 12)[n - 1] + s - 18
                    if s == 18:
                        a(("s_nop 3", "s_nop 6", "s_nop 8")[n - 1])
                    a(f"ds_write_b128 v{vDump}, {vr(ACC + 4 * k, 4)} offset:{1024 * (k - 4)}")
                if n and 6 * (n - 1) + s - 16 < 9:
                    self.early_o(6 * (n - 1) + s - 16)
                if 6 * n + s - 16 == self.cfg["look2"]:
                    self.o_look()
        self.lds_signal(self.vCnt, self.v1_, 4)
        self.stamp("s22", "M")

    def final_setup(self):
        a = self.a
        sFl, sOut, sO, sA, sTT, sKh, sF2, sG, sE, sX = self.FS
        a(f"""s_and_b32 s{sTT}, s{sT}, 1
            s_lshr_b32 s{sKh}, s{sT}, 1
            s_lshl_b32 s{sFl}, s{sRB}, 1
            {f"s_add_u32 s{sFl}, s{sFl}, s{sTT}" if self.cfg['ott'] else ""}
            {f"s_lshl_b32 s{sFl}, s{sFl}, 1" if self.cfg['ott'] else ""}
            s_add_u32 s{sFl}, s{sFl}, s{sKh}
            s_lshl_b32 s{sFl}, s{sFl}, 8
            s_add_u32 s{sFl}, s{sFl}, {CO}
            s_add_u32 s{sF2}, s{sFl}, 128
            s_mov_b32 s{sPV}, 0
            s_mov_b32 s{sA}, 0
            s_atomic_add s{sPV}, {sr(sWS, 2)}, s{sFl} glc
            s_atomic_add s{sA}, {sr(sWS, 2)}, s{sF2} glc
            s_lshl_b32 s{sOut}, s{sRB}, 1
            s_add_u32 s{sOut}, s{sOut}, s{sTT}
            s_lshl_b32 s{sO}, s{sOut}, 5
            s_lshl_b32 s{sG}, s{sKh}, 4
            s_add_u32 s{sO}, s{sO}, s{sG}
            s_lshl_b32 s{sO}, s{sO}, 10
            s_add_u32 s{sO}, s{sO}, {WS_O}
            s_lshl_b32 s{sOut}, s{sOut}, 15
            s_lshl_b32 s{sG}, s{sCB}, 7
            s_add_u32 s{sOut}, s{sOut}, s{sG}
            s_lshl_b32 s{sG}, s{sKh}, 6
            s_add_u32 s{sOut}, s{sOut}, s{sG}""")

    @staticmethod
    def of(s):
        return 96 + 4 * s if s < 14 else 200 + 4 * (s - 14)

    def oloads(self, h, sO):
        a = self.a
        for s in range(8 * h, 8 * h + 8):
            if s % 8 == 4:
                a(f"s_add_u32 s{sO}, s{sO}, 4096")
            a(f"buffer_load_dwordx4 {vr(self.of(s), 4)}, v{self.vP}, {sr(sWS, 4)}, s{sO} offen offset:{1024 * (s % 4)} sc1")
            a.vm.issue(s)

    def o_look(self):
        sFl, sOut, sO, sA, sTT, sKh, sF2, sG, sE, sX = self.FS
        self.a(f"""s_mov_b32 s{sPV}, 0
            s_mov_b32 s{sA}, 0
            s_atomic_add s{sPV}, {sr(sWS, 2)}, s{sFl} glc
            s_atomic_add s{sA}, {sr(sWS, 2)}, s{sF2} glc""")

    def o_pick(self):
        sFl, sOut, sO, sA, sTT, sKh, sF2, sG, sE, sX = self.FS
        self.a(f"""s_cmp_lt_u32 s{sPV}, 8
            s_cselect_b32 s{sG}, 1, 0
            s_lshl_b32 s{sX}, s{sG}, 13
            s_add_u32 s{sT0 + 1}, s{sO}, s{sX}
            s_add_u32 s{sX}, s{sT0 + 1}, 4096""")

    def oload(self, s, lo, hi):
        self.a(f"buffer_load_dwordx4 {vr(self.of(s), 4)}, v{self.vP}, {sr(sWS, 4)}, s{lo if s % 8 < 4 else hi} offen offset:{1024 * (s % 4)} sc1")

    def early_o(self, n):
        a = self.a
        sFl, sOut, sO, sA, sTT, sKh, sF2, sG, sE, sX = self.FS
        if n == 0:
            a.vm.drain()
            a("s_waitcnt lgkmcnt(0)")
            self.o_pick()
            a(f"s_max_u32 s{sE}, s{sPV}, s{sA}\ns_lshr_b32 s{sE}, s{sE}, 3")
            return
        skip = self.lab("noearly")
        a(f"s_cbranch_scc0 {skip}")
        self.oload(n - 1, sT0 + 1, sX)
        a.label(skip)

    def final(self):
        a = self.a
        B, PT, OWN, OTH = 32, 48, 152, 168
        WO = lambda s: (184, 192, 208, 216, 224, 232, 240, 248)[s % 8]
        vL, vH, vX, vZ, vA0, vA1 = self.vL, self.vP, self.vDump, self.vZ, self.vA0, self.vA1
        vOut, vG, vP1, vP2, vP3, vB0, vB1, vXp, vX = 30, 2, 21, 22, 23, self.vB0, self.vB1, 20, 31
        sFl, sOut, sO, sA, sTT, sKh, sF2, sG, sE, sX = self.FS
        top, got, loaded, join = self.lab("opoll"), self.lab("ogot"), self.lab("oloaded"), self.lab("ojoin")
        a.lg.reset()
        a(f"""s_cmp_lg_u32 s{sE}, 0
            s_cbranch_scc1 {loaded}
            s_mov_b32 s{sSPIN}, 200000""")
        a.label(top)
        a(f"""s_waitcnt lgkmcnt(0)
            s_max_u32 s{sE}, s{sPV}, s{sA}
            s_cmp_ge_u32 s{sE}, 8
            s_cbranch_scc1 {got}""")
        self.o_look()
        a(f"""s_sub_u32 s{sSPIN}, s{sSPIN}, 1
            s_cbranch_scc0 {top}
            s_waitcnt lgkmcnt(0)""")
        a.label(got)
        self.o_pick()
        self.stamp("Opoll", "M")
        a.vm.reset()
        for s in range(8):
            self.oload(s, sT0 + 1, sX)
            a.vm.issue(s)
        self.o_look()
        a.label(loaded)
        a(f"s_xor_b32 s{sO}, s{sT0 + 1}, 0x2000")
        a(f"""s_xor_b32 s{sF2}, s{sG}, 1
            s_lshl_b32 s{sF2}, s{sF2}, 7
            s_add_u32 s{sF2}, s{sF2}, s{sFl}
            s_lshl_b32 s{sX}, s{sKh}, 1
            s_add_u32 s{sG}, s{sG}, s{sX}
            s_lshl_b32 s{sX}, s{sG}, 14
            s_add_u32 s{sX}, s{sX}, {WOL}
            v_add_u32 v{vA0}, s{sX}, v{self.vT0}
            s_xor_b32 s{sG}, s{sG}, 1
            s_lshl_b32 s{sX}, s{sG}, 14
            s_add_u32 s{sX}, s{sX}, {WOL}
            v_add_u32 v{vB0}, s{sX}, v{self.vT0}
            v_xor_b32 v{vA1}, 64, v{vA0}
            v_xor_b32 v{vB1}, 64, v{vB0}""")
        a.lg.reset()

        def wreads(s):
            if s >= 16:
                return
            for ct in range(2):
                for u in range(2):
                    self.dsr("ds_read_b64_tr_b16", WO(s) + 4 * ct + 2 * u, 2, ((vA0, vA1), (vB0, vB1))[s >> 3][ct], None,
                             (s & 7) * 2048 + 1024 * u, ("wo", s))

        def step(s):
            a.vm.wait(s)
            a.lg.wait(("wo", s))
            w = WO(s)
            ot, ow = (vr(OTH, 16), vr(OWN, 16)) if s < 8 else (vr(PT + 32, 16), vr(PT + 16, 16))
            a(f"v_mfma_f32_32x32x16_bf16 {ot}, {vr(w + 4, 4)}, {vr(self.of(s), 4)}, {ot if s % 8 else 0}")
            wreads(s + 2)
            if s < 4:
                self.oload(8 + 2 * s, sT0 + 1, sX)
                a.vm.issue(8 + 2 * s)
            if 2 <= s < 8:
                i, h = divmod(s - 2, 2)
                for k in range(8 * h, 8 * h + 4):
                    a(f"v_add_f32 v{B + k}, v{B + k}, v{PT + 16 * i + k}")
            a(f"v_mfma_f32_32x32x16_bf16 {ow}, {vr(w, 4)}, {vr(self.of(s), 4)}, {ow if s % 8 else 0}")
            if s < 4:
                self.oload(9 + 2 * s, sT0 + 1, sX)
                a.vm.issue(9 + 2 * s)
            if s < 6:
                i, h = divmod(s, 2)
                for q in range(2 * h, 2 * h + 2):
                    self.dsr("ds_read_b128", PT + 16 * i + 4 * q, 4, (vP1, vP2, vP3)[i], None, 4096 * i + 1024 * q, ("wo", s + 2))
            if 2 <= s < 8:
                i, h = divmod(s - 2, 2)
                for k in range(8 * h + 4, 8 * h + 8):
                    a(f"v_add_f32 v{B + k}, v{B + k}, v{PT + 16 * i + k}")
            if 8 <= s < 12:
                for k in range(4 * (s - 8), 4 * (s - 8) + 4):
                    a(f"v_mul_f32 v{B + k}, v{B + k}, v{vG + 2}")

        self.lds_probe(self.vCnt, self.vTmp, 4)
        for s in range(2):
            wreads(s)
        a(f"""v_mul_f32 v{vG}, {f32(LOG2E)}, v{vZ}
            v_exp_f32 v{vG + 2}, v{vG}
            v_exp_f32 v{vG}, -v{vG}
            s_nop 0
            v_add_f32 v{vG + 2}, 1.0, v{vG + 2}
            v_add_f32 v{vG}, 1.0, v{vG}
            v_rcp_f32 v{vG + 2}, v{vG + 2}
            v_rcp_f32 v{vG}, v{vG}""")
        self.lds_check(self.vCnt, self.vTmp, 4, 16)
        self.stamp("msync", "M")
        a.lg.drain()
        a(f"""s_min_u32 s{sE}, s{sPV}, s{sA}
            s_lshr_b32 s{sE}, s{sE}, 3
            s_cselect_b32 s{sT0 + 1}, s{sO}, {OOB}
            s_add_u32 s{sX}, s{sT0 + 1}, 4096""")
        for s in range(8):
            step(s)
            if s == self.cfg["look3"]:
                a(f"s_mov_b32 s{sPV}, 0\ns_atomic_add s{sPV}, {sr(sWS, 2)}, s{sF2} glc")
        q, le = list(a.vm.q), list(a.lg.q)
        if self.cfg["otm"]:
            for s in range(10, 16):
                wreads(s)
                a.lg.wait(("wo", s - 2))
            le = list(a.lg.q)
        a(f"s_cmp_lg_u32 s{sE}, 0\ns_cbranch_scc1 {join}")
        self.stamp("g1done", "M")
        seen = self.lab("oseen")
        if self.cfg["look3"] < 8:
            a(f"s_waitcnt lgkmcnt(0)\ns_cmp_ge_u32 s{sPV}, 8\ns_cbranch_scc1 {seen}")
        self.spoll(sF2, 8)
        a.label(seen)
        self.stamp("late", "M")
        a.vm.drain()
        self.oloads(1, sO)
        assert a.vm.q == q
        a.lg.q = le
        a.label(join)
        if not self.cfg["otm"]:
            for s in range(8, 16):
                step(s)
            self.stamp("Omfma", "M")
            a("s_nop 10")
            for q in range(4):
                for k in range(4 * q, 4 * q + 4):
                    a(f"v_add_f32 v{OTH + k}, v{OTH + k}, v{PT + 32 + k}")
                a(f"ds_write_b128 v{vX}, {vr(OTH + 4 * q, 4)} offset:{1024 * q}")
            for k in range(8):
                a(f"v_pk_add_f32 {vr(OWN + 2 * k, 2)}, {vr(OWN + 2 * k, 2)}, {vr(PT + 16 + 2 * k, 2)}")
            for k in range(8):
                a(f"v_pk_fma_f32 {vr(B + 2 * k, 2)}, {vr(OWN + 2 * k, 2)}, {vr(vG, 2)}, {vr(B + 2 * k, 2)} op_sel_hi:[1,0,1]")
        else:
            for k in range(16):
                a(f"v_mul_f32 v{B + k}, v{B + k}, v{vG + 2}")
            for s in range(8, 16):
                a.vm.wait(s)
                a.lg.wait(("wo", s))
                ot = vr(PT + 32, 16)
                a(f"v_mfma_f32_32x32x16_bf16 {ot}, {vr(WO(s) + 4, 4)}, {vr(self.of(s), 4)}, {ot if s % 8 else 0}")
            for s in range(8, 16):
                ow = vr(PT + 16, 16)
                a(f"v_mfma_f32_32x32x16_bf16 {ow}, {vr(WO(s), 4)}, {vr(self.of(s), 4)}, {ow if s % 8 else 0}")
                if s == 8:
                    a("s_nop 5")
                if s == 9:
                    a("s_nop 3")
                if 9 <= s < 13:
                    q = s - 9
                    for k in range(4 * q, 4 * q + 4):
                        a(f"v_add_f32 v{OTH + k}, v{OTH + k}, v{PT + 32 + k}")
                    a(f"ds_write_b128 v{vX}, {vr(OTH + 4 * q, 4)} offset:{1024 * q}")
            self.stamp("Omfma", "M")
        a("s_waitcnt lgkmcnt(0)\ns_barrier")
        self.stamp("bar", "M")
        for q in range(4):
            a(f"ds_read_b128 {vr(PT + 4 * q, 4)}, v{vXp} offset:{1024 * q}")
        if self.cfg["otm"]:
            a("s_nop 5")
            for k in range(8):
                a(f"v_pk_add_f32 {vr(OWN + 2 * k, 2)}, {vr(OWN + 2 * k, 2)}, {vr(PT + 16 + 2 * k, 2)}")
            for k in range(8):
                a(f"v_pk_fma_f32 {vr(B + 2 * k, 2)}, {vr(OWN + 2 * k, 2)}, {vr(vG, 2)}, {vr(B + 2 * k, 2)} op_sel_hi:[1,0,1]")
        for q in range(4):
            a(f"s_waitcnt lgkmcnt({3 - q})")
            for k in range(2):
                r = 4 * q + 2 * k
                a(f"v_pk_fma_f32 {vr(B + r, 2)}, {vr(PT + r, 2)}, {vr(vG, 2)}, {vr(B + r, 2)} op_sel_hi:[1,0,1]")
            for k in range(2):
                r = 4 * q + 2 * k
                a(f"v_cvt_pk_bf16_f32 v{64 + 2 * q + k}, v{B + r}, v{B + r + 1}")
            if q % 2 == 1:
                a(f"buffer_store_dwordx4 {vr(64 + 4 * (q // 2), 4)}, v{vOut}, {sr(sOUT, 4)}, s{sOut} offen offset:{16 * (q // 2)}")

    def build(self):
        a = self.a
        cfg = self.cfg
        self.prologue()
        a(f"s_setprio {cfg['prio_l']}")
        self.loader()
        self.attn_start()
        self.stamp("attn0", "L")
        self.attn_loop()
        self.attn_finish()
        self.stamp("Oflag", "L")
        self.dump_stamps(True)
        a("s_endpgm")

        a.label("L_mwave")
        if cfg["swap"]:
            a("s_setprio 1")
        self.m_setup()
        if cfg["swap"]:
            a(f"s_setprio {cfg['prio_m']}")
        a(f"s_bitcmp1_b32 s{sC}, 0\ns_cbranch_scc1 L_pass_v")
        self.pass_a(False)
        a("s_branch L_pass_q")
        a.label("L_pass_v")
        self.pass_a(True)
        a.label("L_pass_q")
        self.pass_q()
        a(f"s_cmp_eq_u32 s{sC}, 15\ns_cbranch_scc1 L_gate")
        self.pass_f()
        a(f"s_setprio {cfg['prio_gelu']}")
        self.gelu()
        a.label("L_ffn2")
        self.stamp("gelu", "M")
        self.ffn2()
        self.final()
        if cfg.get("stamps"):
            a("s_waitcnt vmcnt(0)")
            self.stamp("end", "M")
            self.dump_stamps(False)
        a.label("L_end")
        a("s_endpgm")
        a.label("L_gate")
        a(f"s_setprio {cfg['prio_gelu']}")
        self.gate()
        a("s_branch L_ffn2")
        self.fallback()
        return a.text()


HEADER = """; Fused kernel: out = g * MHA(x) + (1 - g) * GEGLU(x),  g = sigmoid(x . gate_w)
; Kernarg (88 bytes, pointers): 0 A_x, 8 A_wqkv, 16 A_wo, 24 B_x (unused by the reference), 32 B_w_gate, 40 B_w_up,
;   48 B_w_down, 56 gate_w, 64 d_out, 72 d_debug, 80 d_ws
;
; 256 workgroups of 8 waves, one per CU. Workgroup (c, r) owns 128 tokens (row block r) and column group c:
;   waves 0-3  K (c even) or V (c odd) for heads 4*(c>>1)..+3, Q for heads 2c, 2c+1, gate/up columns 96c..96c+95 with
;              GELU (group 15 computes the mixing logit instead), then one 64x64 tile of h @ w_down and o @ wo and the mix.
;   waves 4-7  stage x / w_qkv into LDS, then attention: one head, four query tiles, half of the keys per wave.
; Hand-offs between workgroups (K/V, h, logit, o) go through d_ws: write-through (sc1) stores, vmcnt wait, then an atomic
;   add on a counter; the reader polls the counter with atomics and loads with sc1. The counters are cleared at the start
;   of every launch by workgroups 0-31, which report that in d_debug; nobody touches a counter before seeing the report.
;   All waits are bounded. No hand-off depends on where a workgroup runs.
; Softmax: scores are exponentiated with a constant shift while that is exact, and the row sum is checked afterwards. A wave whose
;   row sum left [2^-24, 2^64], or whose result is not finite, recomputes its tiles with the true row maximum subtracted
;   (L_fallback) before it publishes them.
; P @ V uses the 2:4 sparse MFMA with an index that selects the upper halves of the f32 exponentials (bf16 by truncation);
;   a row of ones in the V operand yields the row sum from the same values.
; @launch grid=(256,1,1) block=(512,1,1) lds=%d
.amdgcn_target "amdgcn-amd-amdhsa--gfx950"
.text
.globl %s_kernel
.p2align 8
.type %s_kernel,@function
%s_kernel:
""" % (LDS_BYTES, NAME, NAME, NAME)

FOOTER = """.section .rodata,"a"
.p2align 6
.amdhsa_kernel %s_kernel
  .amdhsa_next_free_vgpr 256
  .amdhsa_next_free_sgpr 102
  .amdhsa_accum_offset 256
  .amdhsa_group_segment_fixed_size 0
  .amdhsa_kernarg_size 88
  .amdhsa_user_sgpr_count 2
  .amdhsa_user_sgpr_kernarg_segment_ptr 1
  .amdhsa_system_sgpr_workgroup_id_x 1
  .amdhsa_float_denorm_mode_32 3
.end_amdhsa_kernel
""" % NAME

DEFAULT = dict(stM='start,BA0,KVst,KVflag,Qdone,F0,Fdone,gelu,Hflag,Hpoll,ffn2,Opoll,Omfma,end',
               stL='start,karg,A0,A2,A7,KVpoll,Qrdy,attn0,attn1,Ost,Oflag',
               outpol='', rowmask=14, qs=14400, tf=0, gate_f=1, gate_at=-1, look=13, lfast=1, shift=4.0, oop=0, wfirst=0, go_at=6, z14=1, f16=1, denorm=3, pwait=4, p1=10, jit=100000000, chk=89, chk_need=144, look2=16, look3=1, gaps=1131110, plain=8, galign=1, k1=0, sig0=14, f1_at=99, swap=0, rel=1, touch=1, tq=1, f1_early=0, rbits=3, rot=4, rot2=1, la=2, nst=4, defer=0, tpol='', qpol='', xn=8, wn=8, fn=8, xpol='', wpol='', fpol='nt', hasync=1, otm=1, atm=1, kvflag_at=12, ott=1, f0_at=4, sig_at=8, rchk=10, wo_at=20, boost=0, pulse=0, pulse2=0, pd=5, cap=6, prio_l=2, prio_m=0, prio_gelu=3)


def generate(**kw):
    cfg = dict(DEFAULT)
    cfg.update(kw)
    body = Gen(cfg).build()
    msgs = lint(body)
    if cfg.get("stamps"):
        body += f"; STAMPS M {cfg['stM']}\n"
    return HEADER + body + FOOTER.replace("denorm_mode_32 3", f"denorm_mode_32 {cfg['denorm']}"), msgs


if __name__ == "__main__":
    out = sys.argv[1]
    kw = {}
    for arg in sys.argv[2:]:
        k, v = arg.split("=")
        try:
            kw[k] = int(v)
        except ValueError:
            try:
                kw[k] = float(v)
            except ValueError:
                kw[k] = v
    text, msgs = generate(**kw)
    for m in msgs:
        print("LINT:", m)
    open(out, "w").write(text)
    print("wrote", out, len(text), "bytes,", text.count("\n"), "lines")
```

```python
import struct
import sys

from asmlib import Asm, lint, sr, vr

NAME = "gated_mix__softmax_full_mha__glu_gated_geglu__prompt"


def f32(x):
    return "0x%08x" % struct.unpack("<I", struct.pack("<f", x))[0]


LOG2E = 1.4426950408889634

WS_KV, WS_O, WS_H, WS_G, WS_FLAG, WS_STAMP = 0x000000, 0x400000, 0x600000, 0xBC0000, 0xC00000, 0xD00000
CKV, CH, CO = WS_FLAG, WS_FLAG + 128 * 128, WS_FLAG + 256 * 128
OOB = 0x20000000

NSLOT = 4
QW, QF, PART, CNT = 98304, 131072, 139776, 158208
FROW, FMAT = 3088, 12352
WOL, SEGB = 74240, 49152
WSLOT = [0, 1, 2, 3, 4, 5, 0, 1, 2, 3, 4, 5, 6, 7, 8, 0, 1, 2, 3, 4, 5, 6]
LDS_BYTES = 163840

sX, sWQ, sWO, sWG, sWU, sWD, sGW, sOUT, sDBG, sWS = 4, 8, 12, 16, 20, 24, 28, 32, 36, 40
sC, sR, sW, sT, sROT, sRB, sCB, sDEL = 44, 45, 46, 47, 48, 49, 50, 51
sONE, sPV = 71, 69
sVM = 52
sT0 = 54
sSPIN = 70
sSTAMP = 72
SIZES = {sX: 2097152, sWQ: 1572864, sWO: 524288, sWG: 1409024, sWU: 1409024, sWD: 1409024, sGW: 1024, sOUT: 2097152,
         sDBG: 256, sWS: 268435456}
KARG = {sX: 0, sWQ: 8, sWO: 16, sWG: 32, sWU: 40, sWD: 48, sGW: 56, sOUT: 64, sDBG: 72, sWS: 80}


def slot(n):
    return (n % NSLOT) * 24576


def fslot(n):
    return ((n + 1) % 3) * 2 * FMAT


class Gen:
    def __init__(self, cfg):
        self.cfg = cfg
        self.a = Asm()
        self.uid = 0
        self.bg = self.hi = False

    def lab(self, base):
        self.uid += 1
        return f"L_{base}_{self.uid}"

    def clock(self):
        return "s_memtime" if self.cfg.get("stamps") == 2 else "s_memrealtime"

    def names(self, role):
        if "pad" in self.cfg:
            return ["start", self.cfg["pad"]]
        return self.cfg["st" + role].split(",")

    def stamp(self, name, role):
        if self.cfg.get("stamps") and name in self.names(role):
            n = self.names(role).index(name)
            a = self.a
            a(f"{self.clock()} {sr(sSTAMP + 2 * n, 2)}")
            a.lg.drain()

    def dump_stamps(self, is_l):
        if not self.cfg.get("stamps"):
            return
        a = self.a
        if "pad" in self.cfg:
            n = 0 if self.cfg["pad"] == "start" else 1
            top, done = self.lab("pad"), self.lab("paddone")
            if is_l:
                a("s_barrier")
            if "padx" in self.cfg:
                a(f"""s_and_b32 s{sT0}, s2, 7
                    s_cmp_eq_u32 s{sT0}, {self.cfg['padx']}
                    s_cselect_b32 s{sSTAMP + 2 * n}, s{sSTAMP + 2 * n}, 0""")
            a(f"""s_waitcnt vmcnt(0) lgkmcnt(0)
                s_cmp_eq_u32 s{sSTAMP + 2 * n}, 0
                s_cbranch_scc1 {done}""")
            a.label(top)
            a(f"""s_sleep 4
                s_memrealtime {sr(sT0, 2)}
                s_waitcnt lgkmcnt(0)
                s_sub_u32 s{sT0}, s{sT0}, s{sSTAMP + 2 * n}
                s_cmp_lt_u32 s{sT0}, 6000
                s_cbranch_scc1 {top}""")
            a.label(done)
            return
        a(f"""s_lshl_b32 s{sT0}, s2, 3
            s_add_u32 s{sT0}, s{sT0}, s{sW}
            s_lshl_b32 s{sT0}, s{sT0}, 6
            s_add_u32 s{sT0}, s{sT0}, {WS_STAMP}
            s_mov_b64 exec, 1""")
        for n in range(14):
            a(f"v_mov_b32 v0, s{sSTAMP + 2 * n}")
            a(f"buffer_store_dword v0, off, {sr(sWS, 4)}, s{sT0} offset:{4 * n}")
        a("s_mov_b64 exec, -1")

    def lane(self, v):
        self.a(f"""v_mbcnt_lo_u32_b32 v{v}, -1, 0
            v_mbcnt_hi_u32_b32 v{v}, -1, v{v}""")

    def srd(self, *regs):
        for r in regs:
            self.a(f"s_mov_b32 s{r + 2}, {SIZES[r]}\ns_mov_b32 s{r + 3}, 0x00020000")

    def kload(self, *regs):
        for r in regs:
            self.a(f"s_load_dwordx2 {sr(r, 2)}, s[0:1], {KARG[r]}")

    def chunk(self, dst, i):
        a = self.a
        if self.cfg["rot"] in (3, 4):
            a(f"""s_add_u32 s{dst}, s{sDEL}, {i & 3}
                s_and_b32 s{dst}, s{dst}, 3
                s_add_u32 s{dst}, s{dst}, s{sROT}""")
            if i & 4:
                a(f"s_xor_b32 s{dst}, s{dst}, 4")
        else:
            a(f"s_add_u32 s{dst}, s{sROT}, {i}\ns_and_b32 s{dst}, s{dst}, 7")

    def dsr(self, op, dst, n, lo, hi, imm, tag):
        reg = lo
        if imm >= 65536:
            reg, imm = hi, imm - 65536
        assert 0 <= imm < 65536 and reg is not None
        self.a(f"{op} {vr(dst, n)}, v{reg} offset:{imm}")
        self.a.lg.issue(tag)

    def poll(self, voff, soff, tmp, srd=sWS):
        a = self.a
        top, done = self.lab("poll"), self.lab("pdone")
        a(f"s_mov_b32 s{sSPIN}, 100000")
        a.label(top)
        a(f"""buffer_load_dword v{tmp}, v{voff}, {sr(srd, 4)}, {soff} offen sc1
            s_waitcnt vmcnt(0)
            v_cmp_gt_u32 vcc, 32, v{tmp}
            s_cbranch_vccz {done}
            s_sleep 8
            s_sub_u32 s{sSPIN}, s{sSPIN}, 1
            s_cmp_lg_u32 s{sSPIN}, 0
            s_cbranch_scc1 {top}""")
        a.label(done)
        a.vm.reset()

    def signal(self, soff):
        self.a(f"s_atomic_add s{sONE}, {sr(sWS, 2)}, s{soff}")

    def spoll(self, soff, need, back=None):
        a = self.a
        top, done = self.lab("spoll"), back or self.lab("sdone")
        a(f"s_mov_b32 s{sSPIN}, 200000")
        a.label(top)
        a(f"""s_mov_b32 s{sPV}, 0
            s_atomic_add s{sPV}, {sr(sWS, 2)}, s{soff} glc
            s_waitcnt lgkmcnt(0)
            s_cmp_ge_u32 s{sPV}, {need}
            s_cbranch_scc1 {done}
            s_sub_u32 s{sSPIN}, s{sSPIN}, 1
            s_cmp_lg_u32 s{sSPIN}, 0
            s_cbranch_scc1 {top}""")
        if back:
            a(f"s_branch {back}")
        else:
            a.label(done)
        a.lg.reset()

    def lds_signal(self, addr, one, off):
        a = self.a
        a(f"""s_mov_b64 exec, 1
            ds_add_u32 v{addr}, v{one} offset:{off}
            s_mov_b64 exec, -1""")
        a.lg.issue("sig")

    def lds_probe(self, addr, tmp, off):
        self.a(f"ds_read_b32 v{tmp}, v{addr} offset:{off}")
        self.a.lg.issue("probe")

    def boost(self):
        if self.bg and not self.hi:
            self.a("s_setprio 3")
            self.hi = True

    def unboost(self):
        if self.hi:
            self.a(f"s_setprio {self.cfg['prio_m']}")
            self.hi = False

    def lds_check(self, addr, tmp, off, need, nap=0):
        a = self.a
        top, done = self.lab("lspin"), self.lab("ldone")
        self.boost()
        a.lg.wait("probe")
        a(f"""v_cmp_gt_u32 vcc, {need}, v{tmp}
            s_cbranch_vccz {done}
            s_mov_b32 s{sSPIN}, 1000000""")
        a.label(top)
        if nap:
            a(f"s_sleep {nap}")
        a(f"""ds_read_b32 v{tmp}, v{addr} offset:{off}
            s_waitcnt lgkmcnt(0)
            v_cmp_gt_u32 vcc, {need}, v{tmp}
            s_cbranch_vccz {done}
            s_sub_u32 s{sSPIN}, s{sSPIN}, 1
            s_cmp_lg_u32 s{sSPIN}, 0
            s_cbranch_scc1 {top}""")
        a.label(done)

    def prologue(self):
        a = self.a
        cfg = self.cfg
        rb = cfg["rbits"]
        a("s_cmp_ge_u32 s2, 256\ns_cbranch_scc1 L_end")
        if cfg.get("stamps"):
            a(f"{self.clock()} {sr(sSTAMP, 2)}")
        self.kload(sX, sWQ, sWS, sDBG)
        if cfg.get("stamps"):
            for n in range(1, 14):
                a(f"s_mov_b32 s{sSTAMP + 2 * n}, 0")
        x, j, t = sT0, sT0 + 1, sT0 + 2
        a(f"""v_lshrrev_b32 v1, 6, v0
            s_and_b32 s{x}, s2, 7
            v_readfirstlane_b32 s{sW}, v1
            s_lshr_b32 s{j}, s2, 3
            v_and_b32 v0, 63, v0
            s_and_b32 s{sR}, s{x}, {(1 << (4 - rb)) - 1}
            s_lshl_b32 s{sR}, s{sR}, {rb}
            s_and_b32 s{t}, s{j}, {(1 << rb) - 1}
            s_add_u32 s{sR}, s{sR}, s{t}
            s_lshr_b32 s{sC}, s{x}, {4 - rb}
            s_lshl_b32 s{sC}, s{sC}, {5 - rb}
            s_lshr_b32 s{t}, s{j}, {rb}
            s_add_u32 s{sC}, s{sC}, s{t}
            s_and_b32 s{sT}, s{sW}, 3""")
        if cfg["swap"]:
            a(f"s_xor_b32 s{sW}, s{sW}, 4")
        rot = cfg["rot"]
        if rot == 0:
            a(f"s_mov_b32 s{sROT}, 0")
        elif rot == 1:
            a(f"""s_mul_i32 s{sROT}, s{sC}, {cfg.get('rotc', 2)}
                s_mul_i32 s{t}, s{sR}, {cfg.get('rotr', 1)}
                s_add_u32 s{sROT}, s{sROT}, s{t}
                s_and_b32 s{sROT}, s{sROT}, 7""")
        else:
            a(f"""s_add_u32 s{sROT}, s{sC}, s{sR}
                s_and_b32 s{sROT}, s{sROT}, 1
                s_lshl_b32 s{sROT}, s{sROT}, 2""")
            if rot == 3:
                a(f"s_mov_b32 s{sDEL}, 0")
            else:
                a(f"""s_lshr_b32 s{sDEL}, s{x}, 1
                    s_lshl_b32 s{t}, s{x}, 1
                    s_add_u32 s{sDEL}, s{sDEL}, s{t}""")
        self.srd(sWS)
        a(f"""s_mov_b32 s{sONE}, 1
            s_cmp_ge_u32 s{sW}, 4
            s_cbranch_scc0 L_mwave""")

    def loader(self):
        a = self.a
        a.vm.reset()
        vX0, vX1, vKV, vQ = 8, 9, 10, 11
        sXB, sKB, sQB, sLx, sLk, sLq, sCh, sO = range(sT0, sT0 + 8)
        self.srd(sX, sWQ)
        a(f"""v_lshrrev_b32 v1, 3, v0
            v_and_b32 v2, 7, v0
            v_lshrrev_b32 v3, 4, v0
            s_lshl_b32 s{sO}, s{sT}, 5
            v_add_u32 v4, s{sO}, v1
            v_xor_b32 v5, v2, v3
            v_lshlrev_b32 v5, 4, v5
            v_lshl_add_u32 v{vX0}, v4, 10, v5
            v_xor_b32 v{vX1}, 64, v{vX0}
            v_add_u32 v{vX1}, 8192, v{vX1}
            s_lshl_b32 s{sO}, s{sT}, 4
            v_add_u32 v4, s{sO}, v1
            v_mul_u32_u24 v4, 3072, v4
            v_and_b32 v5, 1, v3
            v_lshlrev_b32 v5, 2, v5
            v_xor_b32 v5, v2, v5
            v_lshl_add_u32 v{vKV}, v5, 4, v4
            s_lshl_b32 s{sXB}, s{sR}, 17
            s_and_b32 s{sKB}, s{sC}, 1
            s_add_u32 s{sKB}, s{sKB}, 1
            s_lshl_b32 s{sKB}, s{sKB}, 10
            s_lshr_b32 s{sCh}, s{sC}, 1
            s_lshl_b32 s{sCh}, s{sCh}, 7
            s_add_u32 s{sKB}, s{sKB}, s{sCh}
            s_lshl_b32 s{sLx}, s{sT}, 12
            s_lshl_b32 s{sLk}, s{sT}, 11""")

        def issueA(i):
            B = slot(i)
            self.chunk(sCh, i)
            first = [i == 0]

            def ready(filler):
                a(filler)
                if first[0]:
                    a("s_waitcnt lgkmcnt(0)")
                    self.stamp("karg", "L")
                    first[0] = False

            def xs():
                a(f"s_lshl_b32 s{sO}, s{sCh}, 7\ns_add_u32 s{sO}, s{sO}, s{sXB}")
                for k in range(4):
                    a(f"s_add_u32 m0, s{sLx}, {B + 1024 * k}")
                    ready(f"s_add_u32 s{sO}, s{sO}, 16384" if k == 2 else "s_nop 0")
                    a(f"buffer_load_dwordx4 v{vX0 if k % 2 == 0 else vX1}, {sr(sX, 4)}, s{sO} offen lds")
                    a.vm.issue(("A", i))

            def ws():
                a(f"s_mul_i32 s{sO}, s{sCh}, 196608")
                for k in range(2):
                    a(f"s_add_u32 m0, s{sLk}, {B + 16384 + 1024 * k}")
                    ready(f"s_add_u32 s{sO}, s{sO}, {'s%d' % sKB if k == 0 else 24576}")
                    a(f"buffer_load_dwordx4 v{vKV}, {sr(sWQ, 4)}, s{sO} offen lds")
                    a.vm.issue(("A", i))

            for f in ((ws, xs) if self.cfg["wfirst"] else (xs, ws)):
                f()

        def issueQ(lo, hi):
            for i in range(lo, hi):
                self.chunk(sCh, i)
                a(f"""s_mul_i32 s{sO}, s{sCh}, 196608
                    s_add_u32 m0, s{sLq}, {QW + 4096 * i}
                    s_add_u32 s{sO}, s{sO}, s{sQB}
                    buffer_load_dwordx4 v{vQ}, {sr(sWQ, 4)}, s{sO} offen lds""")
                a.vm.issue(("Q", 0))

        def setup2():
            a(f"""v_lshrrev_b32 v4, 2, v0
                s_lshl_b32 s{sO}, s{sT}, 4
                v_add_u32 v4, s{sO}, v4
                v_mul_u32_u24 v4, 3072, v4
                v_and_b32 v5, 3, v0
                v_lshl_add_u32 v{vQ}, v5, 4, v4
                s_lshl_b32 s{sQB}, s{sC}, 6
                s_lshl_b32 s{sLq}, s{sT}, 10
                s_mov_b32 s{sVM}, 0x0000ffff
                s_mov_b32 s{sVM + 1}, 0x0000ffff""")
            if self.cfg["tq"]:
                cb = 5 - self.cfg["rbits"]
                nl = 1 << (cb - 1)
                a(f"""v_lshrrev_b32 v4, {cb - 1}, v0
                    v_mul_u32_u24 v4, 3072, v4
                    v_and_b32 v5, {nl - 1}, v0
                    v_lshl_add_u32 v4, v5, 7, v4
                    s_lshr_b32 s{sO}, s2, 3
                    s_lshl_b32 s{sO}, s{sO}, 2
                    s_add_u32 s{sO}, s{sO}, s{sT}
                    s_mul_i32 s{sO}, s{sO}, 12288
                    s_lshr_b32 s{sCh}, s{sC}, {cb}
                    s_lshl_b32 s{sCh}, s{sCh}, {cb + 6}
                    s_add_u32 s{sO}, s{sO}, s{sCh}
                    s_mov_b32 m0, {CNT + 64}
                    s_mov_b64 exec, {(1 << (4 * nl)) - 1}
                    buffer_load_dword v4, {sr(sWQ, 4)}, s{sO} offen {self.cfg['qpol']} lds
                    s_mov_b64 exec, -1""")
                a.vm.issue("touch")
            a("s_setprio 0")
            self.attn_init()
            a(f"s_setprio {self.cfg['prio_l']}")
            skip = self.lab("nogo")
            a(f"""s_cmp_lg_u32 s{sRB}, 0
                s_cbranch_scc1 {skip}
                s_lshl_b32 s{sO}, s{sT}, 7
                s_waitcnt lgkmcnt(0)
                s_atomic_add s{sONE}, {sr(sDBG, 2)}, s{sO}""")
            a.label(skip)

        def reset():
            skip = self.lab("noreset")
            a(f"""s_lshr_b32 s{sRB}, s2, 5
                s_lshr_b32 s{sO}, s{sT}, 1
                s_or_b32 s{sRB}, s{sRB}, s{sO}
                s_cbranch_scc1 {skip}
                s_lshl_b32 s{sO}, s2, 1
                s_add_u32 s{sO}, s{sO}, s{sT}
                s_lshl_b32 s{sO}, s{sO}, 10
                s_add_u32 s{sO}, s{sO}, {WS_FLAG}
                s_mov_b32 s{sPV}, 0""")
            for k in range(8):
                a(f"s_atomic_and s{sPV}, {sr(sWS, 2)}, s{sO} offset:{128 * k}")
            a.label(skip)

        la = self.cfg["la"]
        qs = [int(ch) for ch in str(self.cfg["qs"])[1:]]
        assert sum(qs) == 8
        nxt = 0
        for b in range(9):
            while nxt < 8 and nxt <= b + la and nxt - NSLOT + 2 <= b:
                issueA(nxt)
                nxt += 1
                if nxt == 1:
                    reset()
                if nxt == self.cfg["su"]:
                    setup2()
            if b >= 6:
                issueQ(sum(qs[:b - 6]), sum(qs[:b - 5]))
            if b == 8 and qs[3]:
                a("s_barrier")
                issueQ(8 - qs[3], 8)
            tag = ("A", b) if b < 8 else ("Q", 0)
            a.vm.wait(tag)
            self.stamp(f"{tag[0]}{tag[1]}", "L")
            a("s_barrier")

    O_, S_, Q_, KV_ = 16, 80, 112, 128
    vIDX, vKo, vVo, vFl, vQa_, vOne, vCa, vPa, vPs = 12, 13, 14, 15, 6, 7, 1, 2, 3

    def attn_init(self):
        a = self.a
        NST = self.cfg["nst"]
        assert NST == 4
        sHd, sQ, sOff, sRow, sCnt, sLd, sFl = range(sT0 + 8, sT0 + 15)
        self.sHd, self.sQ, self.sOff, self.sKr, self.sCnt, self.sLd, self.sFl = sHd, sQ, sOff, sRow, sCnt, sLd, sFl
        a(f"""s_and_b32 s{sHd}, s{sW}, 1
            s_lshr_b32 s{sQ}, s{sT}, 1
            v_lshrrev_b32 v5, 5, v0
            s_and_b32 s{sRow}, s{sR}, {self.cfg['rowmask']}
            s_add_u32 s{sRow}, s{sRow}, s{sQ}
            s_and_b32 s{sRow}, s{sRow}, 15
            s_mov_b32 s{sCnt}, {32 // NST}
            v_lshlrev_b32 v{self.vKo}, 4, v0
            v_and_b32 v{self.vVo}, 15, v0
            v_lshlrev_b32 v{self.vVo}, 4, v{self.vVo}
            v_lshl_add_u32 v{self.vVo}, v5, 8, v{self.vVo}
            s_lshl_b32 s{sLd}, s{sHd}, 12
            s_add_u32 s{sLd}, s{sLd}, {QF}
            v_add_u32 v{self.vQa_}, s{sLd}, v{self.vKo}
            s_lshl_b32 s{sLd}, s{sQ}, 11
            v_add_u32 v{self.vQa_}, s{sLd}, v{self.vQa_}
            v_mov_b32 v{self.vIDX}, 0xdddddddd
            v_mov_b32 v{self.vOne}, 1
            v_and_b32 v4, 0x1b, v0
            v_cmp_eq_u32 vcc, 16, v4
            v_mov_b32 v4, 0x3f803f80
            s_mul_i32 s{sLd}, s{sT}, 4608
            v_cndmask_b32 v4, 0, v4, vcc
            s_add_u32 s{sLd}, s{sLd}, {PART}
            v_lshl_add_u32 v{self.vPa}, v0, 4, s{sLd}
            v_lshl_add_u32 v{self.vPs}, v0, 2, s{sLd}
            s_lshl_b32 s{sLd}, s{sHd}, 2
            s_add_u32 s{sLd}, s{sLd}, {CNT + 8}
            v_mov_b32 v{self.vCa}, s{sLd}
            s_lshl_b32 s{sLd}, s{sT}, 2
            s_add_u32 s{sLd}, s{sLd}, {CNT + 32}
            v_mov_b32 v{self.vFl}, s{sLd}""")
        for st in range(NST):
            for k in range(8):
                a(f"v_mov_b32 v{self.KV_ + 12 * st + 4 + k}, v4")
        for k in range(64):
            a(f"v_mov_b32 v{self.O_ + k}, 0")

    def attn_start(self):
        a = self.a
        NST = self.cfg["nst"]
        sOff = self.sOff
        sHB, sFB, sRow, sFl = sT0, sT0 + 1, self.sKr, self.sFl
        a(f"""s_lshl_b32 s{sHB}, s{sC}, 1
            s_add_u32 s{sHB}, s{sHB}, s{self.sHd}
            s_lshl_b32 s{sHB}, s{sHB}, 17
            s_lshr_b32 s{sFB}, s{sC}, 1
            s_lshl_b32 s{sFB}, s{sFB}, 11
            s_add_u32 s{sFB}, s{sFB}, {CKV}
            s_lshl_b32 s{sOff}, s{sRow}, 13
            s_add_u32 s{sOff}, s{sOff}, s{sHB}
            s_lshl_b32 s{sFl}, s{sRow}, 7
            s_add_u32 s{sFl}, s{sFl}, s{sFB}""")
        a(f"v_mov_b32 v5, {CNT}")
        if self.cfg["pwait"]:
            a.lg.reset()
            self.lds_probe(5, 4, 48)
            self.lds_check(5, 4, 48, 4 * self.cfg["pwait"])
        self.spoll(sFl, 8)
        self.stamp("KVpoll", "L")
        for st in range(NST - 1):
            b = self.KV_ + 12 * st
            a(f"""buffer_load_dwordx4 {vr(b, 4)}, v{self.vKo}, {sr(sWS, 4)}, s{sOff} offen sc1
                s_mov_b64 exec, {sr(sVM, 2)}
                buffer_load_dwordx4 {vr(b + 4, 4)}, v{self.vVo}, {sr(sWS, 4)}, s{sOff} offen offset:1024 sc1
                buffer_load_dwordx4 {vr(b + 8, 4)}, v{self.vVo}, {sr(sWS, 4)}, s{sOff} offen offset:1536 sc1
                s_mov_b64 exec, -1
                s_add_u32 s{sOff}, s{sOff}, 2048""")
        self.stamp("KViss", "L")
        a.lg.reset()
        self.lds_signal(5, self.vOne, 20)
        self.lds_probe(5, 4, 16)
        self.lds_check(5, 4, 16, 16)
        a(f"v_xor_b32 v4, 0x800, v{self.vQa_}")
        self.stamp("Qrdy", "L")
        for q in range(4):
            a(f"ds_read_b128 {vr(self.Q_ + 4 * q, 4)}, v{self.vQa_ if q >= 2 else 4} offset:{1024 * (q & 1)}")
        a(f"""s_add_u32 s{sRow}, s{sRow}, 2
            s_and_b32 s{sRow}, s{sRow}, 15
            s_lshl_b32 s{sFl}, s{sRow}, 7
            s_add_u32 s{sFl}, s{sFl}, s{sFB}
            s_mov_b32 s{sPV}, 0
            s_waitcnt lgkmcnt(0)
            s_mov_b64 exec, 1
            ds_add_u32 v5, v{self.vOne} offset:24
            s_mov_b64 exec, -1
            s_atomic_add s{sPV}, {sr(sWS, 2)}, s{sFl} glc
            s_waitcnt vmcnt({3 * (NST - 2)})
            v_mfma_f32_32x32x16_bf16 {vr(self.S_, 16)}, {vr(self.KV_, 4)}, {vr(self.Q_, 4)}, {self.cfg['shift']}
            s_nop 11""")

    def P(self, n):
        oop = self.cfg["oop"]
        return self.S_ + 16 * (n & 1) if not oop else 232 if oop == 1 else (176, 232)[n & 1]

    def attn_loop(self):
        a = self.a
        NST = self.cfg["nst"]
        NT = 4 * NST
        O, S, Q, KV = self.O_, self.S_, self.Q_, self.KV_
        sOff, sRow, sCnt, sFl, sHB, sFB = self.sOff, self.sKr, self.sCnt, self.sFl, sT0, sT0 + 1
        P = self.P
        sm = lambda st, qt, half, n: (f"v_smfmac_f32_32x32x32_bf16 {vr(O + 16 * qt, 16)}, {vr(KV + 12 * st + 4 + 4 * half, 4)}, "
                                      f"{vr(P(n) + 8 * half, 8)}, v{self.vIDX}")
        extra = {
            (2, 0): f"s_lshl_b32 s{sOff}, s{sRow}, 13\ns_add_u32 s{sOff}, s{sOff}, s{sHB}",
            (2, 2): f"s_cmp_eq_u32 s{sCnt}, 1\ns_cselect_b32 s{sOff}, {OOB}, s{sOff}",
            (3, 1): "s_waitcnt lgkmcnt(0)",
            (3, 2): f"s_cmp_lt_u32 s{sPV}, 8\ns_cbranch_scc1 L_kv_wait\nL_kv_ok:",
            (6, 0): f"s_add_u32 s{sRow}, s{sRow}, 2\ns_and_b32 s{sRow}, s{sRow}, 15",
            (6, 2): f"s_lshl_b32 s{sFl}, s{sRow}, 7\ns_add_u32 s{sFl}, s{sFl}, s{sFB}",
            (10, 0): f"s_mov_b32 s{sPV}, 0\ns_atomic_add s{sPV}, {sr(sWS, 2)}, s{sFl} glc",
            (NT - 3, 0): f"s_sub_u32 s{sCnt}, s{sCnt}, 1\ns_cmp_eq_u32 s{sCnt}, 0",
        }

        if self.cfg["chk"]:
            it, n0 = divmod(self.cfg["chk"], NT)
            assert n0 in (1, 4, 5, 8, 9, 12) and (n0, 0) not in extra
            extra[(n0, 0)] = f"s_cmp_eq_u32 s{sCnt}, {8 - it}\ns_cbranch_scc1 L_m_wait\nL_m_ok:"

        def ex(n, k):
            for l in extra.get((n, k), "").split("\n"):
                if l.endswith(":"):
                    a.label(l[:-1])
                else:
                    a(l)

        a(f"v_exp_f32 v{P(0)}, v{S}\nv_exp_f32 v{P(0) + 1}, v{S + 1}")
        a.raw(".p2align 6")
        a.label("L_attn")
        for n in range(NT + 1):
            st, qt = divmod(n, 4)
            cur = S + 16 * (n & 1)
            E = lambda lo, hi: [a(f"v_exp_f32 v{P(n) + k}, v{cur + k}") for k in range(lo, hi)]
            pst, pqt = divmod((n - 1) % NT, 4)
            nst, nqt = divmod((n + 1) % NT, 4)
            ld = KV + 12 * ((st - 1) % NST)
            if n:
                E(0, 2)
                a(sm(pst, pqt, 1, n - 1))
            if n == NT:
                break
            if n == NT - 2:
                a("s_cbranch_scc1 L_attn_tail")
            ex(n, 0)
            if qt == 3:
                a(f"s_waitcnt vmcnt({3 * (NST - 2)})")
            E(2, 5)
            a(f"v_mfma_f32_32x32x16_bf16 {vr(S + 16 * ((n + 1) & 1), 16)}, {vr(KV + 12 * nst, 4)}, {vr(Q + 4 * nqt, 4)}, {self.cfg['shift']}")
            ex(n, 1)
            if qt == 0 and not self.cfg["k1"]:
                a(f"buffer_load_dwordx4 {vr(ld, 4)}, v{self.vKo}, {sr(sWS, 4)}, s{sOff} offen sc1")
            if qt == 2 and st:
                a(f"s_add_u32 s{sOff}, s{sOff}, 2048")
            E(5, self.cfg["p1"])
            a(sm(st, qt, 0, n))
            ex(n, 2)
            if qt == 0 and self.cfg["k1"]:
                a(f"buffer_load_dwordx4 {vr(ld, 4)}, v{self.vKo}, {sr(sWS, 4)}, s{sOff} offen sc1")
            if qt == 1:
                a(f"""s_mov_b64 exec, {sr(sVM, 2)}
                    buffer_load_dwordx4 {vr(ld + 4, 4)}, v{self.vVo}, {sr(sWS, 4)}, s{sOff} offen offset:1024 sc1
                    buffer_load_dwordx4 {vr(ld + 8, 4)}, v{self.vVo}, {sr(sWS, 4)}, s{sOff} offen offset:1536 sc1
                    s_mov_b64 exec, -1""")
            E(self.cfg["p1"], 16)
        a("s_branch L_attn")
        self.sm = sm

    def attn_finish(self):
        a = self.a
        O, S, Q, KV, T, sm = self.O_, self.S_, self.Q_, self.KV_, 192, self.sm
        sA, sF, m = sT0, sT0 + 1, sT0 + 2
        E = lambda n, lo, hi: [a(f"v_exp_f32 v{self.P(n) + k}, v{S + 16 * (n & 1) + k}") for k in range(lo, hi)]

        def give(q):
            o = O + 16 * q
            a(f"""ds_write_b128 v{self.vPa}, {vr(o, 4)} offset:{2304 * q}
                ds_write_b128 v{self.vPa}, {vr(o + 4, 4)} offset:{2304 * q + 1024}
                ds_write_b32 v{self.vPs}, v{o + 8} offset:{2304 * q + 2048}""")

        a.label("L_attn_tail")
        a.lg.reset()
        a("s_waitcnt lgkmcnt(0)")
        give(0)
        E(14, 2, 5)
        a(f"v_mfma_f32_32x32x16_bf16 {vr(S + 16, 16)}, {vr(KV + 36, 4)}, {vr(Q + 12, 4)}, {self.cfg['shift']}")
        a(f"s_lshl_b32 s{sF}, s{sR}, 1")
        E(14, 5, 10)
        a(sm(3, 2, 0, 14))
        give(1)
        if self.cfg["rel"] == 0:
            a(f"ds_write_b32 v{self.vFl}, v{self.vOne}")
        self.lds_signal(self.vCa, self.vOne, 0)
        E(14, 10, 16)
        E(15, 0, 2)
        a(sm(3, 2, 1, 14))
        a(f"""s_add_u32 s{sF}, s{sF}, s{self.sQ}
            s_lshl_b32 s{sA}, s{sF}, 5
            s_add_u32 s{sA}, s{sA}, s{sC}
            s_lshl_b32 s{sA}, s{sA}, 1
            s_add_u32 s{sA}, s{sA}, s{self.sHd}
            s_mul_i32 s{m}, s{self.sQ}, -18432
            s_add_u32 s{m}, s{m}, 9216""")
        E(15, 2, 10)
        a(sm(3, 3, 0, 15))
        a(f"""s_lshl_b32 s{sA}, s{sA}, 10
            s_add_u32 s{sA}, s{sA}, {WS_O}
            v_add_u32 v{self.vPa}, s{m}, v{self.vPa}
            v_add_u32 v{self.vPs}, s{m}, v{self.vPs}""")
        self.lds_probe(self.vCa, 4, 0)

        def fetch():
            for q in range(2):
                a(f"""ds_read_b32 v{T + 12 * q + 8}, v{self.vPs} offset:{2304 * q + 2048}
                    ds_read_b128 {vr(T + 12 * q, 4)}, v{self.vPa} offset:{2304 * q}
                    ds_read_b128 {vr(T + 12 * q + 4, 4)}, v{self.vPa} offset:{2304 * q + 1024}""")

        if self.cfg["lfast"]:
            fetch()
        E(15, 10, 16)
        a(f"""s_lshl_b32 s{sF}, s{sF}, {2 + self.cfg['ott']}
            s_lshr_b32 s{m}, s{sC}, 2""")
        a(sm(3, 3, 1, 15))
        a(f"""s_add_u32 s{sF}, s{sF}, s{m}
            s_lshl_b32 s{sF}, s{sF}, 7
            s_add_u32 s{sF}, s{sF}, {CO}""")
        self.stamp("attn1", "L")
        have = self.lab("have")
        if self.cfg["lfast"]:
            a(f"s_waitcnt lgkmcnt(0)\nv_cmp_gt_u32 vcc, 2, v4")
        if self.cfg["rel"] == 1:
            a(f"ds_write_b32 v{self.vFl}, v{self.vOne}")
            a.lg.issue("rel")
        if self.cfg["lfast"]:
            a(f"s_cbranch_vccz {have}")
            a.lg.reset()
        self.lds_check(self.vCa, 4, 0, 2)
        self.stamp("pair", "L")
        fetch()
        a("s_waitcnt lgkmcnt(3)")
        a.label(have)
        for q in range(2):
            o, t = O + 32 + 16 * q, T + 12 * q
            if q:
                a("s_waitcnt lgkmcnt(0)")
            a(f"v_add_f32 v{o + 8}, v{o + 8}, v{t + 8}")
            for k in range(8):
                a(f"v_add_f32 v{o + k}, v{o + k}, v{t + k}")
            self.normalise(q)
        if self.cfg["rel"] == 2:
            a(f"ds_write_b32 v{self.vFl}, v{self.vOne}")
        self.stamp("Ost", "L")
        lo, hi = self.cfg.get("l_lo", 2.0 ** -24), self.cfg.get("l_hi", 2.0 ** 64)
        for q in range(2):
            o, t = O + 32 + 16 * q, T + 12 * q
            a(f"""v_pk_add_f32 {vr(t, 2)}, {vr(o, 2)}, {vr(o + 2, 2)}
                v_pk_add_f32 {vr(t + 2, 2)}, {vr(o + 4, 2)}, {vr(o + 6, 2)}
                v_cmp_lt_f32 vcc, {f32(lo)}, v{o + 8}
                v_pk_add_f32 {vr(t, 2)}, {vr(t, 2)}, {vr(t + 2, 2)}
                s_and_b64 {sr(m, 2)}, {'vcc' if q == 0 else sr(m, 2)}, vcc
                v_cmp_gt_f32 vcc, {f32(hi)}, v{o + 8}
                v_add_f32 v{t}, v{t}, v{t + 1}
                s_and_b64 {sr(m, 2)}, {sr(m, 2)}, vcc
                v_sub_f32 v{t}, v{t}, v{t}
                v_cmp_eq_f32 vcc, 0, v{t}
                s_and_b64 {sr(m, 2)}, {sr(m, 2)}, vcc""")
        a(f"s_cmp_eq_u64 {sr(m, 2)}, -1\ns_cbranch_scc0 L_fallback")
        a.label("L_publish")
        if self.cfg["ott"]:
            a(f"s_add_u32 s{m}, s{sF}, 512\ns_waitcnt vmcnt(1)")
            self.signal(sF)
            a("s_waitcnt vmcnt(0)")
            self.signal(m)
        else:
            a("s_waitcnt vmcnt(0)")
            self.signal(sF)

    def normalise(self, q):
        a = self.a
        o, d = self.O_ + 32 + 16 * q, 224 + 4 * q
        a(f"v_rcp_f32 v{o + 9}, v{o + 8}\ns_add_u32 s{sT0 + 4}, s{sT0}, {32768 * q}")
        for k in range(8):
            a(f"v_mul_f32 v{o + k}, v{o + k}, v{o + 9}")
        for k in range(4):
            a(f"v_cvt_pk_bf16_f32 v{d + k}, v{o + 2 * k}, v{o + 2 * k + 1}")
        a(f"buffer_store_dwordx4 {vr(d, 4)}, v{self.vKo}, {sr(sWS, 4)}, s{sT0 + 4} offen sc1")

    def fallback(self):
        a = self.a
        S, M, K, V, vMx = self.S_, self.S_ + 16, self.KV_, self.KV_ + 4, 4
        sO, sN = sT0 + 2, sT0 + 3
        a.label("L_kv_wait")
        self.spoll(self.sFl, 8, "L_kv_ok")
        if self.cfg["chk"]:
            a.label("L_m_wait")
            a.lg.reset()
            self.lds_probe(5, 4, 0)
            self.lds_check(5, 4, 0, self.cfg["chk_need"], nap=1)
            a("s_branch L_m_ok")
        a.label("L_fallback")
        a("s_waitcnt vmcnt(0)")
        for q in range(2):
            O, Q = self.O_ + 32 + 16 * q, self.Q_ + 8 + 4 * q
            a(f"""v_mov_b32 v{vMx}, 0xff800000
                s_lshl_b32 s{sO}, s{sC}, 1
                s_add_u32 s{sO}, s{sO}, s{self.sHd}
                s_lshl_b32 s{sO}, s{sO}, 17
                s_mov_b32 s{sN}, 64""")
            a.label(f"L_fb_max{q}")
            a(f"""buffer_load_dwordx4 {vr(K, 4)}, v{self.vKo}, {sr(sWS, 4)}, s{sO} offen sc1
                s_waitcnt vmcnt(0)
                v_mfma_f32_32x32x16_bf16 {vr(S, 16)}, {vr(K, 4)}, {vr(Q, 4)}, 0
                s_nop 11""")
            for k in range(8):
                a(f"v_max3_f32 v{vMx}, v{S + 2 * k}, v{S + 2 * k + 1}, v{vMx}")
            a(f"""s_add_u32 s{sO}, s{sO}, 2048
                s_sub_u32 s{sN}, s{sN}, 1
                s_cmp_lg_u32 s{sN}, 0
                s_cbranch_scc1 L_fb_max{q}
                v_mov_b32 v{M}, v{vMx}
                s_nop 1
                v_permlane32_swap_b32 v{vMx}, v{M}
                s_nop 1
                v_max_f32 v{vMx}, v{vMx}, v{M}
                s_sub_u32 s{sO}, s{sO}, 131072
                s_mov_b32 s{sN}, 64""")
            for k in range(16):
                a(f"v_sub_f32 v{M + k}, 0, v{vMx}\nv_mov_b32 v{O + k}, 0")
            a.label(f"L_fb_sum{q}")
            a(f"""buffer_load_dwordx4 {vr(K, 4)}, v{self.vKo}, {sr(sWS, 4)}, s{sO} offen sc1
                s_mov_b64 exec, {sr(sVM, 2)}
                buffer_load_dwordx4 {vr(V, 4)}, v{self.vVo}, {sr(sWS, 4)}, s{sO} offen offset:1024 sc1
                buffer_load_dwordx4 {vr(V + 4, 4)}, v{self.vVo}, {sr(sWS, 4)}, s{sO} offen offset:1536 sc1
                s_mov_b64 exec, -1
                s_waitcnt vmcnt(0)
                v_mfma_f32_32x32x16_bf16 {vr(S, 16)}, {vr(K, 4)}, {vr(Q, 4)}, {vr(M, 16)}
                s_nop 11""")
            for k in range(16):
                a(f"v_exp_f32 v{S + k}, v{S + k}")
            a(f"""s_nop 1
                v_smfmac_f32_32x32x32_bf16 {vr(O, 16)}, {vr(V, 4)}, {vr(S, 8)}, v{self.vIDX}
                v_smfmac_f32_32x32x32_bf16 {vr(O, 16)}, {vr(V + 4, 4)}, {vr(S + 8, 8)}, v{self.vIDX}
                s_nop 7
                s_add_u32 s{sO}, s{sO}, 2048
                s_sub_u32 s{sN}, s{sN}, 1
                s_cmp_lg_u32 s{sN}, 0
                s_cbranch_scc1 L_fb_sum{q}
                s_nop 3""")
            self.normalise(q)
        a("s_branch L_publish")

    XR, ACC, WS_ = 128, 32, 8
    vFlo, vD, vF, vCnt, v1_, vTmp = 0, 1, 2, 5, 6, 7

    def m_setup(self):
        a = self.a
        self.vXA, self.vXAh, self.vWk, self.vWkh, self.vQa, self.vST, self.vGo, self.vQFa, self.vGa = 80, 84, 88, 90, 92, 93, 94, 95, 96
        self.stamp("mjmp", "M")
        self.kload(sWG, sWU, sWD, sWO, sOUT, sGW)
        self.srd(sDBG, sWG, sWU, sWD, sWO, sOUT, sGW)
        a(f"""s_lshl_b32 s{sRB}, s{sT0}, 2
            s_and_b32 s{sT0 + 2}, s{sT0 + 1}, 3
            s_add_u32 s{sRB}, s{sRB}, s{sT0 + 2}
            s_lshr_b32 s{sCB}, s{sT0 + 1}, 2
            v_and_b32 v16, 31, v0
            v_lshrrev_b32 v17, 5, v0
            v_bfe_u32 v18, v0, 1, 3
            v_xor_b32 v18, v18, v17
            s_lshl_b32 s{sT0}, s{sT}, 12
            v_lshlrev_b32 v19, 7, v16
            v_lshl_add_u32 v19, v18, 4, v19
            v_add_u32 v{self.vXA}, s{sT0}, v19""")
        for s in range(1, 4):
            a(f"v_xor_b32 v{self.vXA + s}, {32 * s}, v{self.vXA}")
        for s in range(4):
            a(f"v_add_u32 v{self.vXAh + s}, 0x10000, v{self.vXA + s}")
        a(f"""v_bfe_u32 v18, v0, 2, 2
            v_lshl_add_u32 v18, v17, 3, v18
            v_bfe_u32 v19, v0, 4, 1
            v_and_b32 v20, 3, v0
            v_lshlrev_b32 v20, 3, v20
            v_lshl_add_u32 v20, v19, 5, v20
            v_bfe_u32 v21, v0, 3, 1
            v_lshl_add_u32 v22, v18, 7, v20
            v_lshl_add_u32 v{self.vWk}, v21, 6, v22
            v_xor_b32 v{self.vWk + 1}, 64, v{self.vWk}
            v_add_u32 v{self.vWkh}, 0x10000, v{self.vWk}
            v_add_u32 v{self.vWkh + 1}, 0x10000, v{self.vWk + 1}
            v_lshl_add_u32 v{self.vQa}, v18, 6, v20
            v_add_u32 v{self.vQa}, {QW}, v{self.vQa}
            s_lshl_b32 s{sT0}, s{sT}, 10
            s_add_u32 s{sT0}, s{sT0}, {QF}
            v_lshl_add_u32 v{self.vQFa}, v0, 4, s{sT0}
            v_mul_u32_u24 v22, 192, v18
            v_and_b32 v23, 0x33, v0
            v_bfe_u32 v25, v0, 2, 1
            v_lshl_add_u32 v23, v25, 3, v23
            v_lshl_add_u32 v23, v21, 2, v23
            v_lshlrev_b32 v23, 4, v23
            v_and_b32 v24, 15, v0
            v_lshlrev_b32 v{self.vGa}, 7, v17
            v_lshlrev_b32 v24, 4, v24
            v_lshl_add_u32 v24, v17, 8, v24
            v_lshl_add_u32 v24, v19, 17, v24
            v_add_u32 v24, 1024, v24
            v_lshlrev_b32 v26, 4, v0
            s_cmp_eq_u32 s{sC}, {14 if self.cfg['z14'] else 99}
            s_cselect_b32 s{sT0 + 1}, 4, 12
            v_mov_b32 v31, {OOB >> 4}
            s_lshl_b32 s{sT0}, s{sT}, 4""")
        if self.cfg["f16"]:
            a(f"""v_mul_u32_u24 v20, {FROW}, v19
                v_bfe_u32 v27, v0, 1, 1
                v_lshl_add_u32 v20, v27, 5, v20
                v_and_b32 v27, 1, v0
                v_lshl_add_u32 v20, v27, 3, v20""")
        for k in range(3):
            a(f"""v_add_u32 v27, {64 * k}, v0
                v_mul_u32_u24 v28, 2731, v27
                v_lshrrev_b32 v28, 15, v28
                v_mul_u32_u24 v29, 12, v28
                v_sub_u32 v29, v27, v29
                v_cmp_le_u32 vcc, s{sT0 + 1}, v29
                v_add_u32 v28, s{sT0}, v28
                v_mul_u32_u24 v28, 2752, v28
                v_cndmask_b32 v29, v29, v31, vcc
                v_lshl_add_u32 v{self.vF + k}, v29, 4, v28""")
        a(f"""v_add_u32 v{self.vFlo}, v22, v20
            v_add_u32 v{self.vFlo}, {fslot(0)}, v{self.vFlo}
            v_bfe_u32 v20, v26, 4, 3
            v_lshlrev_b32 v22, 2, v19
            v_xor_b32 v20, v20, v22
            v_lshlrev_b32 v20, 4, v20
            v_lshrrev_b32 v22, 7, v26
            v_lshl_add_u32 v{self.vD}, v22, 10, v20
            v_mov_b32 v{self.vCnt}, {CNT}
            v_lshl_add_u32 v{self.v1_}, v26, 3, 4""")
        for i in range(4):
            a(f"v_mov_b32 v{100 + i}, 0")
        a(f"ds_write_b128 v{self.vCnt}, v[100:103]\nds_write_b128 v{self.vCnt}, v[100:103] offset:16\nds_write_b128 v{self.vCnt}, v[100:103] offset:32\nds_write_b128 v{self.vCnt}, v[100:103] offset:48\ns_waitcnt lgkmcnt(0)")

    def pass_a(self, isv):
        a = self.a
        a.lg.reset()
        a.vm.reset()
        a(f"v_mov_b32 v{self.vST}, v{24 if isv else 23}")
        XR, ACC, W = self.XR, self.ACC, self.WS_
        sB = sT0 + 2
        atm = self.cfg["atm"]
        wr = lambda g: 104 if (g == 31 and atm) else W + 8 * (g % 3)

        def reads(g):
            i, s = divmod(g, 4)
            B = slot(i)
            self.dsr("ds_read_b128", XR + 4 * g, 4, self.vXA + s, self.vXAh + s, B, ("x", g))
            for ct in range(2):
                for u in range(2):
                    self.dsr("ds_read_b64_tr_b16", wr(g) + 4 * ct + 2 * u, 2, self.vWk + ct, self.vWkh + ct,
                             B + 16384 + (16 * s + 4 * u) * 128, ("w", g, ct))

        def comp(g, cts=(0, 1)):
            for ct in cts:
                a.lg.wait(("x", g), ("w", g, ct))
                wf, xf = vr(wr(g) + 4 * ct, 4), vr(XR + 4 * g, 4)
                d = vr(ACC + 16 * ct, 16)
                A, Bm = (xf, wf) if isv else (wf, xf)
                a(f"v_mfma_f32_32x32x16_bf16 {d}, {A}, {Bm}, {d if g else 0}")

        def kv_store(ct, q):
            d = 112 + 8 * ct + 4 * q
            for k in range(4):
                s = ACC + 16 * ct + 8 * q + 2 * k
                a(f"v_cvt_pk_bf16_f32 v{d + k}, v{s}, v{s + 1}")
            if isv:
                a(f"buffer_store_dwordx4 {vr(d, 4)}, v{self.vST}, {sr(sWS, 4)}, s{sB} offen offset:{512 * q} sc1")
                if q == 1 and ct == 0:
                    a(f"s_add_u32 s{sB}, s{sB}, 262144")
            else:
                a(f"buffer_store_dwordx4 {vr(d, 4)}, v{self.vST}, {sr(sWS, 4)}, s{sB} offen sc1")
                a(f"s_add_u32 s{sB}, s{sB}, 131072")

        a(f"""s_lshr_b32 s{sB}, s{sC}, 1
            s_lshl_b32 s{sB}, s{sB}, 19
            s_lshl_b32 s{sB + 1}, s{sR}, 2
            s_add_u32 s{sB + 1}, s{sB + 1}, s{sT}
            s_lshl_b32 s{sB + 1}, s{sB + 1}, 11
            s_add_u32 s{sB}, s{sB}, s{sB + 1}""")
        self.stamp("mrdy", "M")
        for i in range(8):
            g0 = 4 * i
            if i:
                a.lg.drain()
            if i == 7 and atm:
                comp(27)
                a("s_barrier")
                for g in range(28, 31):
                    reads(g)
                comp(28, (0,))
                reads(31)
                for g in range(29, 32):
                    comp(g, (0,))
                comp(28, (1,))
                a("s_nop 5")
                comp(29, (1,))
                a("s_nop 3")
                kv_store(0, 0)
                comp(30, (1,))
                comp(31, (1,))
                kv_store(0, 1)
                a("s_nop 5")
                kv_store(1, 0)
                kv_store(1, 1)
                break
            a("s_barrier")
            if i == 0:
                self.stamp("BA0", "M")
            reads(g0)
            reads(g0 + 1)
            if i:
                comp(g0 - 1)
            reads(g0 + 2)
            if i == self.cfg['go_at']:
                a(f"buffer_load_dword v{self.vGo}, v{self.vGa}, {sr(sDBG, 4)}, 0 offen sc1")
            comp(g0)
            reads(g0 + 3)
            comp(g0 + 1)
            comp(g0 + 2)
        if not atm:
            comp(31)
            a("s_nop 10")
            for k in range(4):
                kv_store(k >> 1, k & 1)
        self.stamp("KVst", "M")

    def kv_flag(self):
        a = self.a
        ok = self.lab("go")
        a(f"""s_lshr_b32 s{sT0}, s{sC}, 1
            s_lshl_b32 s{sT0}, s{sT0}, 4
            s_add_u32 s{sT0}, s{sT0}, s{sR}
            s_lshl_b32 s{sT0}, s{sT0}, 7
            s_add_u32 s{sT0}, s{sT0}, {CKV}
            s_waitcnt vmcnt({4 + len(a.vm.q)})
            v_cmp_gt_u32 vcc, 32, v{self.vGo}
            s_cbranch_vccz {ok}""")
        q = list(a.vm.q)
        self.poll(self.vGa, "0", self.vGo, sDBG)
        a.vm.q = q
        a.label(ok)

    def issue_f(self, i):
        a = self.a
        sCh, sO, sFB, sLf = sT0 + 4, sT0 + 5, sT0 + 6, sT0 + 7
        if i == 0:
            a(f"s_mul_i32 s{sFB}, s{sC}, 192\ns_mul_i32 s{sLf}, s{sT}, {FROW}")
        self.chunk(sCh, i)
        a(f"s_mul_i32 s{sO}, s{sCh}, 176128\ns_add_u32 s{sO}, s{sO}, s{sFB}")
        for m in range(2):
            for k in range(3):
                a(f"s_add_u32 m0, s{sLf}, {fslot(i) + FMAT * m + 1024 * k}\ns_nop 0")
                a(f"buffer_load_dwordx4 v{self.vF + k}, {sr(sWG if m == 0 else sWU, 4)}, s{sO} offen {self.cfg['fpol'] if i < self.cfg['fn'] else ''} lds")
                a.vm.issue(("F", i))

    def touch(self, i):
        a = self.a
        sA = sT0 + 8
        a(f"""s_lshr_b32 s{sA}, s2, 3
            s_lshl_b32 s{sA}, s{sA}, 2
            s_add_u32 s{sA}, s{sA}, s{sT}
            s_mul_i32 s{sA}, s{sA}, 11008
            s_add_u32 s{sA}, s{sA}, {2048 * i}
            s_mov_b32 m0, {CNT + 64}
            s_mov_b64 exec, {'0x3f' if i == 5 else '0xffff'}
            buffer_load_dword v{self.v1_}, {sr(sWD, 4)}, s{sA} offen lds
            s_mov_b64 exec, -1""")
        a.vm.issue("touch")

    def issue_wo(self, lo, hi):
        a = self.a
        sA, sL = sT0 + 8, sT0 + 9
        a(f"""s_lshl_b32 s{sA}, s{sT}, 17
            s_lshl_b32 s{sL}, s{sCB}, 7
            s_add_u32 s{sA}, s{sA}, s{sL}
            s_lshl_b32 s{sL}, s{sT}, 14""")
        for k in range(lo, hi):
            a(f"""s_add_u32 m0, s{sL}, {WOL + 1024 * k}
                s_add_u32 s{sA}, s{sA}, {8192 * (k if k == lo else 1)}
                buffer_load_dwordx4 v{self.vD}, {sr(sWO, 4)}, s{sA} offen lds""")
            a.vm.issue("wo")

    def pass_q(self):
        a = self.a
        XR, W, QACC = self.XR, self.WS_, 64
        a.lg.reset()
        a.vm.reset()
        flag_at, f0_at = self.cfg["kvflag_at"], self.cfg["f0_at"]

        def reads(g):
            for u in range(2):
                self.dsr("ds_read_b64_tr_b16", W + 4 * (g % 6) + 2 * u, 2, self.vQa, None, (16 * g + 4 * u) * 64, g)

        def hooks(j):
            if j == flag_at:
                if a.vm.q:
                    a(f"s_cmp_eq_u32 s{sC}, 15\ns_cbranch_scc0 L_kvw\ns_waitcnt vmcnt(0)")
                    a.label("L_kvw")
                a(f"s_waitcnt vmcnt({len(a.vm.q)})")
                self.stamp("KVack", "M")
                self.signal(sT0)
                if self.cfg["pwait"]:
                    self.lds_signal(self.vCnt, self.v1_, 48)
                self.stamp("KVflag", "M")
            if j == f0_at:
                skip = self.lab("nof0")
                a(f"s_cmp_eq_u32 s{sC}, 15\ns_cbranch_scc1 {skip}")
                self.issue_f(0)
                a.label(skip)
            if j == self.cfg["f1_at"]:
                skip = self.lab("nof1")
                a(f"s_cmp_eq_u32 s{sC}, 15\ns_cbranch_scc1 {skip}")
                self.issue_f(1)
                a.label(skip)

        if self.cfg["qs"] % 10:
            a("s_barrier")
        self.kv_flag()
        hooks(-2)
        hooks(-1)
        self.stamp("F0iss", "M")
        a("s_barrier")
        self.stamp("BQ", "M")
        for g in range(6):
            reads(g)
        nxt = 6
        for g in range(32):
            a.lg.wait(g)
            d = vr(QACC, 16)
            a(f"v_mfma_f32_32x32x16_bf16 {d}, {vr(W + 4 * (g % 6), 4)}, {vr(XR + 4 * g, 4)}, {d if g else 0}")
            if nxt < 32:
                reads(nxt)
                nxt += 1
            hooks(g)
        a(f"v_mov_b32 v98, {f32(0.25 * LOG2E)}\ns_nop 10")
        for k in range(8):
            a(f"v_pk_mul_f32 {vr(QACC + 2 * k, 2)}, {vr(QACC + 2 * k, 2)}, v[98:99] op_sel_hi:[1,0]")
        for hd in range(2):
            for k in range(4 * hd, 4 * hd + 4):
                a(f"v_cvt_pk_bf16_f32 v{QACC + k}, v{QACC + 2 * k}, v{QACC + 2 * k + 1}")
            a(f"ds_write_b128 v{self.vQFa}, {vr(QACC + 4 * hd, 4)} offset:{4096 * hd}")
        self.lds_signal(self.vCnt, self.v1_, 16)
        self.stamp("Qdone", "M")
        hooks(32)

    def pass_f(self):
        a = self.a
        XR, ACC, W = self.XR, self.ACC, self.WS_
        N, sig, gat, rchk = 192, self.cfg["sig_at"], self.cfg["gate_at"], self.cfg["rchk"]

        jit = [int(ch) for ch in str(self.cfg["jit"])[1:]]
        due = {(j, u): j - ((1, 2)[u] if jit[j // 24] else 6) for j in range(N) for u in range(2)}
        first = [min(due[(j, u)] for j in range(24 * i, 24 * i + 24) for u in range(2)) for i in range(8)]
        for (j, u) in due:
            if j // 24 < 7:
                due[(j, u)] = min(due[(j, u)], first[j // 24 + 1])
        todo = sorted(due, key=lambda k: (due[k], k[0] // 24, k[0], k[1]))
        cur, par, f16 = [0], [0], self.cfg["f16"]

        def reads(now, limit=99):
            while todo and due[todo[0]] <= now and limit:
                limit -= 1
                j, u = todo.pop(0)
                g, t = divmod(j, 6)
                i, s = divmod(g, 4)
                if i != cur[0]:
                    self.boost()
                    a(f"v_add_u32 v{self.vFlo}, {(fslot(i) - fslot(i - 1)) & 0xffffffff}, v{self.vFlo}")
                    cur[0] = i
                off = FROW * (s & 2) + 16 * (s & 1) if f16 else FROW * s
                self.dsr("ds_read_b64_tr_b16", W + 4 * (j % 6) + 2 * u, 2, self.vFlo, None,
                         FMAT * (t & 1) + off + 768 * u + 64 * (t >> 1), j)

        def landed(i):
            a.vm.wait(("F", i))
            self.lds_signal(self.vCnt, self.v1_, 0)
            self.boost()

        if f16:
            for k in range(16):
                for q in range(4):
                    a(f"v_permlane16_swap_b32 v{XR + 8 * k + q}, v{XR + 8 * k + 4 + q}")
        self.bg = bool(self.cfg["boost"])
        if gat < 0:
            self.lds_probe(self.vCnt, self.vTmp, 20)
            self.lds_check(self.vCnt, self.vTmp, 20, 4)
            self.issue_f(1)
        landed(0)
        self.lds_probe(self.vCnt, self.vTmp, 0)
        self.lds_check(self.vCnt, self.vTmp, 0, 16)
        self.stamp("F0", "M")
        reads(-1)
        for j in range(N):
            g, t = divmod(j, 6)
            i, jj = divmod(j, 24)
            if self.cfg["pulse"] and j % self.cfg["pulse"] == 0:
                self.boost()
            a.lg.wait(j)
            if f16:
                for th in range(2):
                    d = vr(ACC + 16 * t + 8 * th + 4 * (g & 1), 4)
                    a(f"v_mfma_f32_16x16x32_bf16 {d}, {vr(W + 4 * (j % 6), 4)}, {vr(XR + 8 * (g >> 1) + 4 * th, 4)}, {d if g > 1 else 0}")
                    if th == 0:
                        self.unboost()
                        reads(j - 1)
            else:
                d = vr(ACC + 16 * t, 16)
                a(f"v_mfma_f32_32x32x16_bf16 {d}, {vr(W + 4 * (j % 6), 4)}, {vr(XR + 4 * g, 4)}, {d if g else 0}")
            self.unboost()
            if jj == 23:
                self.stamp(f"f{i}", "M")
            if j == gat - 2:
                self.lds_probe(self.vCnt, self.vTmp, 20)
            if j == gat:
                self.lds_check(self.vCnt, self.vTmp, 20, 4)
                self.issue_f(1 if self.cfg["f1_at"] > 32 else 2)
            if j == 26:
                self.lds_probe(self.vCnt, self.vTmp, 24)
            if j == 28:
                self.lds_check(self.vCnt, self.vTmp, 24, 4)
            if 1 <= i < 6:
                if jj == 0:
                    self.lds_signal(self.vCnt, self.v1_, 28)
                if jj == rchk - 2:
                    self.lds_probe(self.vCnt, self.vTmp, 28)
                if jj == rchk:
                    self.lds_check(self.vCnt, self.vTmp, 28, 16 * i)
                    self.issue_f(i + 2)
            if i == 7:
                if jj == 0:
                    self.lds_signal(self.vCnt, self.v1_, 28)
                    self.ffn2_scalars()
                if jj == rchk - 2:
                    self.lds_probe(self.vCnt, self.vTmp, 28)
                if jj == rchk:
                    self.lds_check(self.vCnt, self.vTmp, 28, 96)
                    a(f"v_add_u32 v{self.vD2}, 7168, v{self.vD}")
                    a.vm.wait("wo")
                if jj >= rchk and (jj - rchk) % 2 == 0 and jj - rchk < 12:
                    self.issue_w((jj - rchk) // 2)
            if i < 7:
                if jj == (sig if i else self.cfg["sig0"]):
                    landed(i + 1)
                    if i == 0 and self.cfg["f1_at"] > 32:
                        self.issue_f(2)
                if jj == self.cfg["wo_at"] and i:
                    self.touch(i - 1)
                    self.issue_wo(*((0, 3), (3, 6), (6, 9), (9, 12), (12, 14), (14, 16))[i - 1])
                if j == first[i + 1] - 2:
                    self.lds_probe(self.vCnt, self.vTmp, 0)
                if j == first[i + 1]:
                    self.lds_check(self.vCnt, self.vTmp, 0, 16 * (i + 2))
            reads(j, 1 if f16 == 1 else 99)
        self.bg = False
        self.lds_signal(self.vCnt, self.v1_, 0)
        self.stamp("Fdone", "M")

    def gelu(self):
        a = self.a
        ACC = self.ACC
        f16 = self.cfg["f16"]
        c0, c1, T, OUT, vOff = 240, 242, 224, 200, 244 if f16 else self.vP
        sH, sV, sA = sT0 + 12, sT0 + 13, sT0 + 14
        prog = self.w_program()
        per_gap = [int(ch) for ch in str(self.cfg["gaps"])[1:]]
        k0 = -2.0 * 0.7978845608028654 * LOG2E
        a(f"""s_lshl_b32 s{sH}, s{sR}, 2
            s_add_u32 s{sH}, s{sH}, s{sT}
            s_mul_i32 s{sH}, s{sH}, 86
            s_mul_i32 s{sV}, s{sC}, 6
            s_add_u32 s{sH}, s{sH}, s{sV}
            s_lshl_b32 s{sH}, s{sH}, 10
            s_add_u32 s{sH}, s{sH}, {WS_H}""")
        self.ffn2_setup()
        if f16:
            a(f"v_and_b32 v{vOff}, 0x300, v{self.vP}\nv_add_u32 v{vOff}, v{vOff}, v{self.vP}")
        if self.cfg["galign"]:
            a.raw(".p2align 3")
        a(f"""v_mov_b32 v{c0}, {f32(k0)}
            v_mov_b32 v{c0 + 1}, {f32(k0)}
            v_mov_b32 v{c1}, {f32(k0 * 0.044715)}
            v_mov_b32 v{c1 + 1}, {f32(k0 * 0.044715)}""")

        def stores(j):
            a(f"s_cmp_lt_u32 s{sV}, {86 - 2 * j}\ns_cselect_b32 s{sA}, s{sH}, {OOB}\ns_add_u32 s{sH}, s{sH}, 2048")
            for q in range(2):
                a(f"buffer_store_dwordx4 {vr(OUT + 8 * j + 4 * q, 4)}, v{vOff}, {sr(sWS, 4)}, s{sA} offen offset:{(256 if f16 else 1024) * q} sc1")
                a.vm.issue("H")

        def gap(n):
            for _ in range(per_gap[n]):
                prog.pop(0)()
            if self.cfg["galign"]:
                a.raw(".p2align 3")

        for j in range(3):
            G, U = ACC + 32 * j, ACC + 32 * j + 16
            p = lambda b, k: vr(b + 2 * k, 2)
            for k in range(8):
                if j == 0 and k < self.cfg["plain"]:
                    a(f"v_mul_f32 v{T + 2 * k}, v{G + 2 * k}, v{G + 2 * k}\nv_mul_f32 v{T + 2 * k + 1}, v{G + 2 * k + 1}, v{G + 2 * k + 1}")
                else:
                    a(f"v_pk_mul_f32 {p(T, k)}, {p(G, k)}, {p(G, k)}")
            for k in range(8):
                a(f"v_pk_fma_f32 {p(T, k)}, {p(T, k)}, {vr(c1, 2)}, {vr(c0, 2)}")
            for k in range(8):
                a(f"v_pk_mul_f32 {p(T, k)}, {p(T, k)}, {p(G, k)}")
            if j:
                stores(j - 1)
            gap(2 * j)
            for k in range(16):
                a(f"v_exp_f32 v{T + k}, v{T + k}")
            for k in range(8):
                a(f"v_pk_mul_f32 {p(G, k)}, {p(G, k)}, {p(U, k)}")
            for k in range(8):
                a(f"v_pk_add_f32 {p(T, k)}, {p(T, k)}, 1.0 op_sel_hi:[1,0]")
            gap(2 * j + 1)
            for k in range(16):
                a(f"v_rcp_f32 v{T + k}, v{T + k}")
            for k in range(8):
                a(f"v_pk_mul_f32 {p(G, k)}, {p(G, k)}, {p(T, k)}")
            for k in range(8):
                a(f"v_cvt_pk_bf16_f32 v{OUT + 8 * j + k}, v{G + 2 * k}, v{G + 2 * k + 1}")
        stores(2)

    def gate(self):
        a = self.a
        XR, GB, Z, vO = self.XR, 32, 24, 28
        sCh = sT0 + 4
        a.vm.drain()
        a.lg.reset()
        self.lds_probe(self.vCnt, self.vTmp, 24)
        self.lds_check(self.vCnt, self.vTmp, 24, 4, nap=2)
        self.lane(vO + 1)
        a(f"v_lshrrev_b32 v{vO}, 5, v{vO + 1}\nv_lshlrev_b32 v{vO}, 4, v{vO}")
        for k in range(4):
            a(f"v_mov_b32 v{Z + k}, 0")
        for half in range(2):
            for i in range(4 * half, 4 * half + 4):
                self.chunk(sCh, i)
                a(f"s_lshl_b32 s{sCh}, s{sCh}, 7")
                for s in range(4):
                    a(f"buffer_load_dwordx4 {vr(GB + 16 * (i & 3) + 4 * s, 4)}, v{vO}, {sr(sGW, 4)}, s{sCh} offen offset:{32 * s}")
            for i in range(3 * half, 3 * half + 3):
                self.touch(i)
            a("s_waitcnt vmcnt(0)")
            for k in range(64):
                a(f"v_dot2c_f32_bf16 v{Z + (k & 3)}, v{XR + 64 * half + k}, v{GB + k}")
        a(f"""s_lshl_b32 s{sT0}, s{sR}, 2
            s_add_u32 s{sT0}, s{sT0}, s{sT}
            s_lshl_b32 s{sT0}, s{sT0}, 7
            s_add_u32 s{sT0}, s{sT0}, {WS_G}
            v_add_f32 v{Z}, v{Z}, v{Z + 1}
            v_add_f32 v{Z + 2}, v{Z + 2}, v{Z + 3}
            v_add_f32 v{Z}, v{Z}, v{Z + 2}
            v_mov_b32 v{Z + 1}, v{Z}
            v_lshlrev_b32 v{vO}, 2, v{vO + 1}
            s_nop 0
            v_permlane32_swap_b32 v{Z}, v{Z + 1}
            s_nop 1
            v_add_f32 v{Z}, v{Z}, v{Z + 1}
            s_mov_b32 s{sT0 + 12}, s{sT0}""")
        for k in range(0, 16, 4):
            self.issue_wo(k, k + 4)
            self.cap()
        a.vm.drain()
        a(f"v_mov_b32 v{self.vTmp}, 36")
        self.lds_signal(self.vCnt, self.vTmp, 0)
        self.ffn2_scalars()
        a(f"v_add_u32 v{self.vD2}, 7168, v{self.vD}")
        for k in range(6):
            self.issue_w(k)
            self.cap()
        self.ffn2_setup()
        for op in self.w_program()[:sum(int(ch) for ch in str(self.cfg["gaps"])[1:])]:
            op()
        a(f"""s_mov_b32 exec_hi, 0
            buffer_store_dword v{Z}, v{vO}, {sr(sWS, 4)}, s{sT0 + 12} offen sc1
            s_mov_b64 exec, -1""")

    vL, vH, vA0, vA1, vRel, vDump, vP, vZ, vD2, vH2, vT0, vB0, vB1 = 8, 10, 11, 12, 13, 15, 16, 17, 2, 19, 9, 14, 18

    sRB2 = 4
    FS = (5, 6, 7, 8, 9, 10, 11, sT0 + 12, sT0 + 13, sT0 + 14)

    def ffn2_scalars(self):
        a = self.a
        sRing, sS0, sS1, sWc, sW0, sWe, sHc, sH0, sHe, sHl, sFl, sRow = range(sT0, sT0 + 12)
        NS = 22
        a(f"""s_mul_i32 s{sRing}, s{sT}, 12288
            s_mul_i32 s{self.sRB2}, s{sT}, 6144
            s_add_u32 s{self.sRB2}, s{self.sRB2}, {SEGB}
            s_and_b32 s{sS0}, s{sRB}, 3
            s_lshl_b32 s{sS0}, s{sS0}, 1
            s_add_u32 s{sS0}, s{sS0}, s{sCB}
            s_and_b32 s{sS0}, s{sS0}, {7 if self.cfg['rot2'] else 0}
            s_mul_i32 s{sS0}, s{sS0}, 11
            s_lshr_b32 s{sS0}, s{sS0}, 2
            s_mul_i32 s{sS1}, s{sT}, {NS}
            s_lshl_b32 s{sW0}, s{sS1}, 14
            s_lshl_b32 s{sWc}, s{sCB}, 7
            s_add_u32 s{sW0}, s{sW0}, s{sWc}
            s_add_u32 s{sWe}, s{sW0}, {NS * 16384}
            s_lshl_b32 s{sWc}, s{sS0}, 14
            s_add_u32 s{sWc}, s{sWc}, s{sW0}
            s_mul_i32 s{sHl}, s{sRB}, 172
            s_add_u32 s{sH0}, s{sHl}, s{sS1}
            s_lshl_b32 s{sH0}, s{sH0}, 10
            s_add_u32 s{sH0}, s{sH0}, {WS_H}
            s_add_u32 s{sHe}, s{sH0}, {NS * 1024}
            s_lshl_b32 s{sHc}, s{sS0}, 10
            s_add_u32 s{sHc}, s{sHc}, s{sH0}
            s_lshl_b32 s{sHl}, s{sHl}, 10
            s_add_u32 s{sHl}, s{sHl}, {WS_H + 86 * 1024}
            s_lshl_b32 s{sFl}, s{sR}, 1
            s_lshr_b32 s{sS0}, s{sT}, 1
            s_add_u32 s{sFl}, s{sFl}, s{sS0}
            s_lshl_b32 s{sFl}, s{sFl}, 9
            s_add_u32 s{sFl}, s{sFl}, {CH}
            s_mov_b32 s{sRow}, 0x62223111
            s_cmp_ge_u32 s{sC}, 8
            s_cselect_b32 s{sRow}, 0xf8888444, s{sRow}
            s_and_b32 s{sS0}, s{sC}, 7
            s_lshl_b32 s{sS0}, s{sS0}, 2
            s_lshr_b32 s{sRow}, s{sRow}, s{sS0}""")

    def cap(self):
        a, CAP = self.a, self.cfg["cap"]
        if len(a.vm.q) > CAP:
            a.vm.q = a.vm.q[len(a.vm.q) - CAP:]
            a(f"s_waitcnt vmcnt({CAP})")

    def issue_w(self, s):
        a = self.a
        sRing, sS0, sS1, sWc, sW0, sWe = range(sT0, sT0 + 6)
        a(f"s_add_u32 m0, s{sRing if WSLOT[s] < 6 else self.sRB2}, {(WSLOT[s] % 6) * 2048}")
        if s:
            a(f"s_add_u32 s{sWc}, s{sWc}, 16384\ns_cmp_eq_u32 s{sWc}, s{sWe}\ns_cselect_b32 s{sWc}, s{sW0}, s{sWc}")
        else:
            a("s_nop 0")
        a(f"buffer_load_dwordx4 v{self.vD}, {sr(sWD, 4)}, s{sWc} offen lds")
        a(f"buffer_load_dwordx4 v{self.vD2}, {sr(sWD, 4)}, s{sWc} offen offset:1024 lds")
        a.vm.issue(("w", s))
        a.vm.issue(("w", s))

    @staticmethod
    def wreg(s):
        return 128 + 8 * s if s < 9 else 96 + 8 * (s - 9) if s < 13 else 128 + 8 * (s - 13)

    def w_reads(self, s):
        self.a.vm.wait(("w", s))
        regs = (self.vA0, self.vA1) if WSLOT[s] < 6 else (self.vB0, self.vB1)
        for ct in range(2):
            for u in range(2):
                self.dsr("ds_read_b64_tr_b16", self.wreg(s) + 4 * ct + 2 * u, 2, regs[ct], None,
                         (WSLOT[s] % 6) * 2048 + 1024 * u, (s, ct))

    def w_program(self, need=144):
        a = self.a

        def R(*steps):
            return lambda: [self.w_reads(s) for s in steps]

        def I(s):
            def op():
                prev = [p for p in range(s) if WSLOT[p] == WSLOT[s]]
                if prev:
                    a.lg.wait((prev[-1], 1))
                if s == 11:
                    self.lds_probe(self.vCnt, self.vTmp, 0)
                if s == 12:
                    self.lds_check(self.vCnt, self.vTmp, 0, need)
                self.issue_w(s)
                self.cap()
            return op

        return [R(0, 1, 2), I(6), I(7), R(3, 4, 5), I(8), I(9), I(10), I(11), I(12), I(13), R(6, 7, 8), I(14), I(15), I(16), I(17),
                R(9, 10), R(11, 12), I(18), I(19), I(20), I(21)]

    def ffn2_setup(self):
        a = self.a
        vL, vH, vA0, vA1, vRel, vDump, vP, vZ, vH2, vT0 = (self.vL, self.vH, self.vA0, self.vA1, self.vRel, self.vDump, self.vP,
                                                           self.vZ, self.vH2, self.vT0)
        sRing, sS0 = sT0, sT0 + 1
        self.lane(vL)
        a(f"""v_lshlrev_b32 v{vP}, 4, v{vL}
            s_and_b32 s{sS0}, s{sT}, 1
            s_mul_i32 s{sS0}, s{sS0}, 88064
            v_add_u32 v{vH}, s{sS0}, v{vP}
            s_sub_u32 s{sS0}, 88064, s{sS0}
            v_add_u32 v{vH2}, s{sS0}, v{vP}
            v_add_u32 v{vDump}, s{sRing}, v{vP}
            v_lshrrev_b32 v20, 5, v{vL}
            v_bfe_u32 v21, v{vL}, 2, 2
            v_lshl_add_u32 v20, v20, 2, v21
            v_and_b32 v21, 1, v{vL}
            v_lshlrev_b32 v21, 2, v21
            v_bfe_u32 v22, v{vL}, 4, 1
            v_lshl_add_u32 v21, v22, 1, v21
            v_bfe_u32 v23, v{vL}, 1, 1
            v_add_u32 v21, v21, v23
            v_lshlrev_b32 v21, 3, v21
            v_lshl_add_u32 v21, v20, 7, v21
            v_bfe_u32 v23, v{vL}, 3, 1
            v_lshl_add_u32 v21, v23, 6, v21
            s_lshr_b32 s{sS0}, s{sT}, 1
            s_lshl_b32 s{sS0}, s{sS0}, 6
            v_xor_b32 v{vT0}, s{sS0}, v21
            v_add_u32 v{vA0}, s{sRing}, v{vT0}
            v_xor_b32 v{vA1}, 64, v{vA0}
            v_add_u32 v{self.vB0}, s{self.sRB2}, v{vT0}
            v_xor_b32 v{self.vB1}, 64, v{self.vB0}
            s_lshl_b32 s{sS0}, s{sT}, 2
            v_add_u32 v{vRel}, s{sS0}, v{self.vCnt}
            v_and_b32 v{vZ}, 31, v{vL}
            v_lshlrev_b32 v30, 10, v{vZ}
            v_lshlrev_b32 v{vZ}, 2, v{vZ}
            v_lshrrev_b32 v20, 5, v{vL}
            v_lshl_add_u32 v30, v20, 5, v30
            v_add_u32 v31, s{self.sRB2}, v{vP}
            s_xor_b32 s{sS0}, s{sT}, 2
            s_mul_i32 s{sS0}, s{sS0}, 6144
            s_add_u32 s{sS0}, s{sS0}, {SEGB}
            v_add_u32 v20, s{sS0}, v{vP}""")
        for reg, d in ((21, 2), (22, 1), (23, 3)):
            a(f"s_xor_b32 s{sS0}, s{sT}, {d}\ns_mul_i32 s{sS0}, s{sS0}, 12288\nv_add_u32 v{reg}, s{sS0}, v{vP}")

    def ffn2(self):
        a = self.a
        ACC = 32
        vH, vRel, vDump, vZ, vH2 = self.vH, self.vRel, self.vDump, self.vZ, self.vH2
        sRing, sS0, sS1, sWc, sW0, sWe, sHc, sH0, sHe, sHl, sFl, sRow = range(sT0, sT0 + 12)
        NS, PD = 22, self.cfg["pd"]
        cap, issue_w, reads, wreg = self.cap, self.issue_w, self.w_reads, self.wreg
        hreg = lambda s: 200 + 8 * ((s + 6) % 7)
        a(f"s_setprio {self.cfg['prio_m']}")
        a.lg.reset()
        a.vm.reset()

        def issue_h(s):
            if s:
                a(f"""s_add_u32 s{sHc}, s{sHc}, 1024
                    s_cmp_eq_u32 s{sHc}, s{sHe}
                    s_cselect_b32 s{sHc}, s{sH0}, s{sHc}""")
            a(f"s_cmp_lt_u32 s{sHc}, s{sHl}\ns_cselect_b32 s{sS0}, s{sHc}, {OOB}")
            for tt in range(2):
                a(f"buffer_load_dwordx4 {vr(hreg(s) + 4 * tt, 4)}, v{(vH, vH2)[tt]}, {sr(sWS, 4)}, s{sS0} offen sc1")
                a.vm.issue(("h", s))

        done = sum(int(ch) for ch in str(self.cfg["gaps"])[1:])
        assert done <= 15 and done != 8
        prog = self.w_program()[done:]
        a("s_waitcnt vmcnt(0) lgkmcnt(0)")
        for k in range(4):
            skip = self.lab("nosig")
            a(f"s_bitcmp1_b32 s{sRow}, {k}\ns_cbranch_scc0 {skip}")
            self.signal(sFl)
            a.label(skip)
            a(f"s_add_u32 s{sFl}, s{sFl}, 128")
        self.stamp("Hflag", "M")
        a(f"""s_lshl_b32 s{sFl}, s{sRB}, 2
            s_add_u32 s{sFl}, s{sFl}, s{sT}
            s_lshl_b32 s{sFl}, s{sFl}, 7
            s_add_u32 s{sFl}, s{sFl}, {CH}
            s_cmp_eq_u32 s{sT}, 1
            s_cselect_b32 s{sRow}, 12, 10
            s_mov_b32 s{sPV}, 0""")
        for n, op in enumerate(prog):
            if n == len(prog) - 3:
                a.lg.drain()
                a(f"s_atomic_add s{sPV}, {sr(sWS, 2)}, s{sFl} glc")
            op()
        self.stamp("W0", "M")
        ready = self.lab("hready")
        a(f"s_waitcnt lgkmcnt(0)\ns_cmp_ge_u32 s{sPV}, s{sRow}\ns_cbranch_scc1 {ready}")
        self.spoll(sFl, f"s{sRow}")
        a.label(ready)
        self.stamp("Hpoll", "M")
        for s in range(PD):
            issue_h(s)
        a(f"""s_lshl_b32 s{sFl}, s{sRB}, 1
            s_and_b32 s{sS0}, s{sT}, 1
            s_add_u32 s{sFl}, s{sFl}, s{sS0}
            s_lshl_b32 s{sFl}, s{sFl}, 7
            s_add_u32 s{sFl}, s{sFl}, {WS_G}
            buffer_load_dword v{vZ}, v{vZ}, {sr(sWS, 4)}, s{sFl} offen sc1""")
        a.vm.issue("z")
        nh = PD
        hold = NS - self.cfg["defer"]
        assert hold <= 16 or hold == NS

        cnt = [0]

        def mm(s, ct, tt):
            self.bg = bool(self.cfg["pulse2"])
            if self.bg and cnt[0] % self.cfg["pulse2"] == 0:
                self.boost()
            cnt[0] += 1
            a.vm.wait(("h", s))
            a.lg.wait((s, ct))
            d = vr(ACC + 32 * tt + 16 * ct, 16)
            a(f"v_mfma_f32_32x32x16_bf16 {d}, {vr(wreg(s) + 4 * ct, 4)}, {vr(hreg(s) + 4 * tt, 4)}, {d if s else 0}")
            self.unboost()
            self.bg = False

        for s in range(17):
            if s == hold or s == 16:
                while nh < min(NS, s + 7):
                    issue_h(nh)
                    nh += 1
                    cap()
            if s == hold:
                self.stamp("hold", "M")
                self.lds_probe(vRel, self.vTmp, 32)
                self.lds_check(vRel, self.vTmp, 32, 1, nap=2)
                self.stamp("resume", "M")
            if s == 16:
                break
            self.stamp(f"s{s}", "M")
            if s == max(self.cfg["look"], hold if hold < NS else 0):
                a.lg.drain()
                self.final_setup()
            for k in range(4):
                mm(s, *divmod(k, 2))
                if k == 0 and nh < min(NS, s + 7):
                    issue_h(nh)
                    nh += 1
                if k == 1 and 1 <= s <= 9:
                    reads(s + 12)
        self.stamp("s16", "M")
        if max(self.cfg["look"], hold if hold < NS else 0) >= 16:
            a.lg.drain()
            self.final_setup()
        for n, (ct, tt) in enumerate(((0, 1), (1, 0), (1, 1), (0, 0))):
            for s in range(16, NS):
                mm(s, ct, tt)
                if n and s >= 18:
                    k = (8, 4, 12)[n - 1] + s - 18
                    if s == 18:
                        a(("s_nop 3", "s_nop 6", "s_nop 8")[n - 1])
                    a(f"ds_write_b128 v{vDump}, {vr(ACC + 4 * k, 4)} offset:{1024 * (k - 4)}")
                if n and 6 * (n - 1) + s - 16 < 9:
                    self.early_o(6 * (n - 1) + s - 16)
                if 6 * n + s - 16 == self.cfg["look2"]:
                    self.o_look()
        self.lds_signal(self.vCnt, self.v1_, 4)
        self.stamp("s22", "M")

    def final_setup(self):
        a = self.a
        sFl, sOut, sO, sA, sTT, sKh, sF2, sG, sE, sX = self.FS
        a(f"""s_and_b32 s{sTT}, s{sT}, 1
            s_lshr_b32 s{sKh}, s{sT}, 1
            s_lshl_b32 s{sFl}, s{sRB}, 1
            {f"s_add_u32 s{sFl}, s{sFl}, s{sTT}" if self.cfg['ott'] else ""}
            {f"s_lshl_b32 s{sFl}, s{sFl}, 1" if self.cfg['ott'] else ""}
            s_add_u32 s{sFl}, s{sFl}, s{sKh}
            s_lshl_b32 s{sFl}, s{sFl}, 8
            s_add_u32 s{sFl}, s{sFl}, {CO}
            s_add_u32 s{sF2}, s{sFl}, 128
            s_mov_b32 s{sPV}, 0
            s_mov_b32 s{sA}, 0
            s_atomic_add s{sPV}, {sr(sWS, 2)}, s{sFl} glc
            s_atomic_add s{sA}, {sr(sWS, 2)}, s{sF2} glc
            s_lshl_b32 s{sOut}, s{sRB}, 1
            s_add_u32 s{sOut}, s{sOut}, s{sTT}
            s_lshl_b32 s{sO}, s{sOut}, 5
            s_lshl_b32 s{sG}, s{sKh}, 4
            s_add_u32 s{sO}, s{sO}, s{sG}
            s_lshl_b32 s{sO}, s{sO}, 10
            s_add_u32 s{sO}, s{sO}, {WS_O}
            s_lshl_b32 s{sOut}, s{sOut}, 15
            s_lshl_b32 s{sG}, s{sCB}, 7
            s_add_u32 s{sOut}, s{sOut}, s{sG}
            s_lshl_b32 s{sG}, s{sKh}, 6
            s_add_u32 s{sOut}, s{sOut}, s{sG}""")

    @staticmethod
    def of(s):
        return 96 + 4 * s if s < 14 else 200 + 4 * (s - 14)

    def oloads(self, h, sO):
        a = self.a
        for s in range(8 * h, 8 * h + 8):
            if s % 8 == 4:
                a(f"s_add_u32 s{sO}, s{sO}, 4096")
            a(f"buffer_load_dwordx4 {vr(self.of(s), 4)}, v{self.vP}, {sr(sWS, 4)}, s{sO} offen offset:{1024 * (s % 4)} sc1")
            a.vm.issue(s)

    def o_look(self):
        sFl, sOut, sO, sA, sTT, sKh, sF2, sG, sE, sX = self.FS
        self.a(f"""s_mov_b32 s{sPV}, 0
            s_mov_b32 s{sA}, 0
            s_atomic_add s{sPV}, {sr(sWS, 2)}, s{sFl} glc
            s_atomic_add s{sA}, {sr(sWS, 2)}, s{sF2} glc""")

    def o_pick(self):
        sFl, sOut, sO, sA, sTT, sKh, sF2, sG, sE, sX = self.FS
        self.a(f"""s_cmp_lt_u32 s{sPV}, 8
            s_cselect_b32 s{sG}, 1, 0
            s_lshl_b32 s{sX}, s{sG}, 13
            s_add_u32 s{sT0 + 1}, s{sO}, s{sX}
            s_add_u32 s{sX}, s{sT0 + 1}, 4096""")

    def oload(self, s, lo, hi):
        self.a(f"buffer_load_dwordx4 {vr(self.of(s), 4)}, v{self.vP}, {sr(sWS, 4)}, s{lo if s % 8 < 4 else hi} offen offset:{1024 * (s % 4)} sc1")

    def early_o(self, n):
        a = self.a
        sFl, sOut, sO, sA, sTT, sKh, sF2, sG, sE, sX = self.FS
        if n == 0:
            a.vm.drain()
            a("s_waitcnt lgkmcnt(0)")
            self.o_pick()
            a(f"s_max_u32 s{sE}, s{sPV}, s{sA}\ns_lshr_b32 s{sE}, s{sE}, 3")
            return
        skip = self.lab("noearly")
        a(f"s_cbranch_scc0 {skip}")
        self.oload(n - 1, sT0 + 1, sX)
        a.label(skip)

    def final(self):
        a = self.a
        B, PT, OWN, OTH = 32, 48, 152, 168
        WO = lambda s: (184, 192, 208, 216, 224, 232, 240, 248)[s % 8]
        vL, vH, vX, vZ, vA0, vA1 = self.vL, self.vP, self.vDump, self.vZ, self.vA0, self.vA1
        vOut, vG, vP1, vP2, vP3, vB0, vB1, vXp, vX = 30, 2, 21, 22, 23, self.vB0, self.vB1, 20, 31
        sFl, sOut, sO, sA, sTT, sKh, sF2, sG, sE, sX = self.FS
        top, got, loaded, join = self.lab("opoll"), self.lab("ogot"), self.lab("oloaded"), self.lab("ojoin")
        a.lg.reset()
        a(f"""s_cmp_lg_u32 s{sE}, 0
            s_cbranch_scc1 {loaded}
            s_mov_b32 s{sSPIN}, 200000""")
        a.label(top)
        a(f"""s_waitcnt lgkmcnt(0)
            s_max_u32 s{sE}, s{sPV}, s{sA}
            s_cmp_ge_u32 s{sE}, 8
            s_cbranch_scc1 {got}""")
        self.o_look()
        a(f"""s_sub_u32 s{sSPIN}, s{sSPIN}, 1
            s_cbranch_scc0 {top}
            s_waitcnt lgkmcnt(0)""")
        a.label(got)
        self.o_pick()
        self.stamp("Opoll", "M")
        a.vm.reset()
        for s in range(8):
            self.oload(s, sT0 + 1, sX)
            a.vm.issue(s)
        self.o_look()
        a.label(loaded)
        a(f"s_xor_b32 s{sO}, s{sT0 + 1}, 0x2000")
        a(f"""s_xor_b32 s{sF2}, s{sG}, 1
            s_lshl_b32 s{sF2}, s{sF2}, 7
            s_add_u32 s{sF2}, s{sF2}, s{sFl}
            s_lshl_b32 s{sX}, s{sKh}, 1
            s_add_u32 s{sG}, s{sG}, s{sX}
            s_lshl_b32 s{sX}, s{sG}, 14
            s_add_u32 s{sX}, s{sX}, {WOL}
            v_add_u32 v{vA0}, s{sX}, v{self.vT0}
            s_xor_b32 s{sG}, s{sG}, 1
            s_lshl_b32 s{sX}, s{sG}, 14
            s_add_u32 s{sX}, s{sX}, {WOL}
            v_add_u32 v{vB0}, s{sX}, v{self.vT0}
            v_xor_b32 v{vA1}, 64, v{vA0}
            v_xor_b32 v{vB1}, 64, v{vB0}""")
        a.lg.reset()

        def wreads(s):
            if s >= 16:
                return
            for ct in range(2):
                for u in range(2):
                    self.dsr("ds_read_b64_tr_b16", WO(s) + 4 * ct + 2 * u, 2, ((vA0, vA1), (vB0, vB1))[s >> 3][ct], None,
                             (s & 7) * 2048 + 1024 * u, ("wo", s))

        def step(s):
            a.vm.wait(s)
            a.lg.wait(("wo", s))
            w = WO(s)
            ot, ow = (vr(OTH, 16), vr(OWN, 16)) if s < 8 else (vr(PT + 32, 16), vr(PT + 16, 16))
            a(f"v_mfma_f32_32x32x16_bf16 {ot}, {vr(w + 4, 4)}, {vr(self.of(s), 4)}, {ot if s % 8 else 0}")
            wreads(s + 2)
            if s < 4:
                self.oload(8 + 2 * s, sT0 + 1, sX)
                a.vm.issue(8 + 2 * s)
            if 2 <= s < 8:
                i, h = divmod(s - 2, 2)
                for k in range(8 * h, 8 * h + 4):
                    a(f"v_add_f32 v{B + k}, v{B + k}, v{PT + 16 * i + k}")
            a(f"v_mfma_f32_32x32x16_bf16 {ow}, {vr(w, 4)}, {vr(self.of(s), 4)}, {ow if s % 8 else 0}")
            if s < 4:
                self.oload(9 + 2 * s, sT0 + 1, sX)
                a.vm.issue(9 + 2 * s)
            if s < 6:
                i, h = divmod(s, 2)
                for q in range(2 * h, 2 * h + 2):
                    self.dsr("ds_read_b128", PT + 16 * i + 4 * q, 4, (vP1, vP2, vP3)[i], None, 4096 * i + 1024 * q, ("wo", s + 2))
            if 2 <= s < 8:
                i, h = divmod(s - 2, 2)
                for k in range(8 * h + 4, 8 * h + 8):
                    a(f"v_add_f32 v{B + k}, v{B + k}, v{PT + 16 * i + k}")
            if 8 <= s < 12:
                for k in range(4 * (s - 8), 4 * (s - 8) + 4):
                    a(f"v_mul_f32 v{B + k}, v{B + k}, v{vG + 2}")

        self.lds_probe(self.vCnt, self.vTmp, 4)
        for s in range(2):
            wreads(s)
        a(f"""v_mul_f32 v{vG}, {f32(LOG2E)}, v{vZ}
            v_exp_f32 v{vG + 2}, v{vG}
            v_exp_f32 v{vG}, -v{vG}
            s_nop 0
            v_add_f32 v{vG + 2}, 1.0, v{vG + 2}
            v_add_f32 v{vG}, 1.0, v{vG}
            v_rcp_f32 v{vG + 2}, v{vG + 2}
            v_rcp_f32 v{vG}, v{vG}""")
        self.lds_check(self.vCnt, self.vTmp, 4, 16)
        self.stamp("msync", "M")
        a.lg.drain()
        a(f"""s_min_u32 s{sE}, s{sPV}, s{sA}
            s_lshr_b32 s{sE}, s{sE}, 3
            s_cselect_b32 s{sT0 + 1}, s{sO}, {OOB}
            s_add_u32 s{sX}, s{sT0 + 1}, 4096""")
        for s in range(8):
            step(s)
            if s == self.cfg["look3"]:
                a(f"s_mov_b32 s{sPV}, 0\ns_atomic_add s{sPV}, {sr(sWS, 2)}, s{sF2} glc")
        q, le = list(a.vm.q), list(a.lg.q)
        if self.cfg["otm"]:
            for s in range(10, 16):
                wreads(s)
                a.lg.wait(("wo", s - 2))
            le = list(a.lg.q)
        a(f"s_cmp_lg_u32 s{sE}, 0\ns_cbranch_scc1 {join}")
        self.stamp("g1done", "M")
        seen = self.lab("oseen")
        if self.cfg["look3"] < 8:
            a(f"s_waitcnt lgkmcnt(0)\ns_cmp_ge_u32 s{sPV}, 8\ns_cbranch_scc1 {seen}")
        self.spoll(sF2, 8)
        a.label(seen)
        self.stamp("late", "M")
        a.vm.drain()
        self.oloads(1, sO)
        assert a.vm.q == q
        a.lg.q = le
        a.label(join)
        if not self.cfg["otm"]:
            for s in range(8, 16):
                step(s)
            self.stamp("Omfma", "M")
            a("s_nop 10")
            for q in range(4):
                for k in range(4 * q, 4 * q + 4):
                    a(f"v_add_f32 v{OTH + k}, v{OTH + k}, v{PT + 32 + k}")
                a(f"ds_write_b128 v{vX}, {vr(OTH + 4 * q, 4)} offset:{1024 * q}")
            for k in range(8):
                a(f"v_pk_add_f32 {vr(OWN + 2 * k, 2)}, {vr(OWN + 2 * k, 2)}, {vr(PT + 16 + 2 * k, 2)}")
            for k in range(8):
                a(f"v_pk_fma_f32 {vr(B + 2 * k, 2)}, {vr(OWN + 2 * k, 2)}, {vr(vG, 2)}, {vr(B + 2 * k, 2)} op_sel_hi:[1,0,1]")
        else:
            for k in range(16):
                a(f"v_mul_f32 v{B + k}, v{B + k}, v{vG + 2}")
            for s in range(8, 16):
                a.vm.wait(s)
                a.lg.wait(("wo", s))
                ot = vr(PT + 32, 16)
                a(f"v_mfma_f32_32x32x16_bf16 {ot}, {vr(WO(s) + 4, 4)}, {vr(self.of(s), 4)}, {ot if s % 8 else 0}")
            for s in range(8, 16):
                ow = vr(PT + 16, 16)
                a(f"v_mfma_f32_32x32x16_bf16 {ow}, {vr(WO(s), 4)}, {vr(self.of(s), 4)}, {ow if s % 8 else 0}")
                if s == 8:
                    a("s_nop 5")
                if s == 9:
                    a("s_nop 3")
                if 9 <= s < 13:
                    q = s - 9
                    for k in range(4 * q, 4 * q + 4):
                        a(f"v_add_f32 v{OTH + k}, v{OTH + k}, v{PT + 32 + k}")
                    a(f"ds_write_b128 v{vX}, {vr(OTH + 4 * q, 4)} offset:{1024 * q}")
                if s == 13 and self.cfg["ebar"]:
                    a("s_waitcnt lgkmcnt(0)\ns_barrier")
                    for q in range(4):
                        a(f"ds_read_b128 {vr(PT + 4 * q, 4)}, v{vXp} offset:{1024 * q}")
            self.stamp("Omfma", "M")
            if self.cfg["ebar"]:
                for q in range(4):
                    a(f"s_waitcnt lgkmcnt({3 - q})")
                    for k in range(4 * q, 4 * q + 4):
                        a(f"v_fmac_f32 v{B + k}, v{PT + k}, v{vG}")
                for h in range(2):
                    ks = range(4 * h, 4 * h + 4)
                    for k in ks:
                        a(f"v_pk_add_f32 {vr(OWN + 2 * k, 2)}, {vr(OWN + 2 * k, 2)}, {vr(PT + 16 + 2 * k, 2)}")
                    for k in ks:
                        a(f"v_pk_fma_f32 {vr(B + 2 * k, 2)}, {vr(OWN + 2 * k, 2)}, {vr(vG, 2)}, {vr(B + 2 * k, 2)} op_sel_hi:[1,0,1]")
                    for k in ks:
                        a(f"v_cvt_pk_bf16_f32 v{PT + k}, v{B + 2 * k}, v{B + 2 * k + 1}")
                    a(f"buffer_store_dwordx4 {vr(PT + 4 * h, 4)}, v{vOut}, {sr(sOUT, 4)}, s{sOut} offen offset:{16 * h}")
                return
        a("s_waitcnt lgkmcnt(0)\ns_barrier")
        self.stamp("bar", "M")
        for q in range(4):
            a(f"ds_read_b128 {vr(PT + 4 * q, 4)}, v{vXp} offset:{1024 * q}")
        if self.cfg["otm"]:
            a("s_nop 5")
            for k in range(8):
                a(f"v_pk_add_f32 {vr(OWN + 2 * k, 2)}, {vr(OWN + 2 * k, 2)}, {vr(PT + 16 + 2 * k, 2)}")
            for k in range(8):
                a(f"v_pk_fma_f32 {vr(B + 2 * k, 2)}, {vr(OWN + 2 * k, 2)}, {vr(vG, 2)}, {vr(B + 2 * k, 2)} op_sel_hi:[1,0,1]")
        for q in range(4):
            a(f"s_waitcnt lgkmcnt({3 - q})")
            for k in range(2):
                r = 4 * q + 2 * k
                a(f"v_pk_fma_f32 {vr(B + r, 2)}, {vr(PT + r, 2)}, {vr(vG, 2)}, {vr(B + r, 2)} op_sel_hi:[1,0,1]")
            for k in range(2):
                r = 4 * q + 2 * k
                a(f"v_cvt_pk_bf16_f32 v{64 + 2 * q + k}, v{B + r}, v{B + r + 1}")
            if q % 2 == 1:
                a(f"buffer_store_dwordx4 {vr(64 + 4 * (q // 2), 4)}, v{vOut}, {sr(sOUT, 4)}, s{sOut} offen offset:{16 * (q // 2)}")

    def build(self):
        a = self.a
        cfg = self.cfg
        self.prologue()
        a(f"s_setprio {cfg['prio_l']}")
        self.loader()
        self.attn_start()
        self.stamp("attn0", "L")
        self.attn_loop()
        self.attn_finish()
        self.stamp("Oflag", "L")
        self.dump_stamps(True)
        a("s_endpgm")

        a.label("L_mwave")
        if cfg["swap"]:
            a("s_setprio 1")
        self.m_setup()
        if cfg["swap"]:
            a(f"s_setprio {cfg['prio_m']}")
        a(f"s_bitcmp1_b32 s{sC}, 0\ns_cbranch_scc1 L_pass_v")
        self.pass_a(False)
        a("s_branch L_pass_q")
        a.label("L_pass_v")
        self.pass_a(True)
        a.label("L_pass_q")
        self.pass_q()
        a(f"s_cmp_eq_u32 s{sC}, 15\ns_cbranch_scc1 L_gate")
        self.pass_f()
        a(f"s_setprio {cfg['prio_gelu']}")
        self.gelu()
        a.label("L_ffn2")
        self.stamp("gelu", "M")
        self.ffn2()
        self.final()
        if cfg.get("stamps"):
            a("s_waitcnt vmcnt(0)")
            self.stamp("end", "M")
            self.dump_stamps(False)
        a.label("L_end")
        a("s_endpgm")
        a.label("L_gate")
        a(f"s_setprio {cfg['prio_gelu']}")
        self.gate()
        a("s_branch L_ffn2")
        self.fallback()
        return a.text()


HEADER = """; Fused kernel: out = g * MHA(x) + (1 - g) * GEGLU(x),  g = sigmoid(x . gate_w)
; Kernarg (88 bytes, pointers): 0 A_x, 8 A_wqkv, 16 A_wo, 24 B_x (unused by the reference), 32 B_w_gate, 40 B_w_up,
;   48 B_w_down, 56 gate_w, 64 d_out, 72 d_debug, 80 d_ws
;
; 256 workgroups of 8 waves, one per CU. Workgroup (c, r) owns 128 tokens (row block r) and column group c:
;   waves 0-3  K (c even) or V (c odd) for heads 4*(c>>1)..+3, Q for heads 2c, 2c+1, gate/up columns 96c..96c+95 with
;              GELU (group 15 computes the mixing logit instead), then one 64x64 tile of h @ w_down and o @ wo and the mix.
;   waves 4-7  stage x / w_qkv into LDS, then attention: one head, four query tiles, half of the keys per wave.
; Hand-offs between workgroups (K/V, h, logit, o) go through d_ws: write-through (sc1) stores, vmcnt wait, then an atomic
;   add on a counter; the reader polls the counter with atomics and loads with sc1. The counters are cleared at the start
;   of every launch by workgroups 0-31, which report that in d_debug; nobody touches a counter before seeing the report.
;   All waits are bounded. No hand-off depends on where a workgroup runs.
; Softmax: scores are exponentiated with a constant shift while that is exact, and the row sum is checked afterwards. A wave whose
;   row sum left [2^-24, 2^64], or whose result is not finite, recomputes its tiles with the true row maximum subtracted
;   (L_fallback) before it publishes them.
; P @ V uses the 2:4 sparse MFMA with an index that selects the upper halves of the f32 exponentials (bf16 by truncation);
;   a row of ones in the V operand yields the row sum from the same values.
; @launch grid=(256,1,1) block=(512,1,1) lds=%d
.amdgcn_target "amdgcn-amd-amdhsa--gfx950"
.text
.globl %s_kernel
.p2align 8
.type %s_kernel,@function
%s_kernel:
""" % (LDS_BYTES, NAME, NAME, NAME)

FOOTER = """.section .rodata,"a"
.p2align 6
.amdhsa_kernel %s_kernel
  .amdhsa_next_free_vgpr 256
  .amdhsa_next_free_sgpr 102
  .amdhsa_accum_offset 256
  .amdhsa_group_segment_fixed_size 0
  .amdhsa_kernarg_size 88
  .amdhsa_user_sgpr_count 2
  .amdhsa_user_sgpr_kernarg_segment_ptr 1
  .amdhsa_system_sgpr_workgroup_id_x 1
  .amdhsa_float_denorm_mode_32 3
.end_amdhsa_kernel
""" % NAME

DEFAULT = dict(stM='start,BA0,KVst,KVflag,Qdone,F0,Fdone,gelu,Hflag,Hpoll,ffn2,Opoll,Omfma,end',
               stL='start,karg,A0,A2,A7,KVpoll,Qrdy,attn0,attn1,Ost,Oflag',
               outpol='', rowmask=14, qs=14400, tf=0, gate_f=1, gate_at=-1, look=13, lfast=1, shift=4.0, oop=0, wfirst=0, ebar=1, su=2, go_at=6, z14=1, f16=1, denorm=3, pwait=4, p1=10, jit=100000000, chk=89, chk_need=144, look2=16, look3=1, gaps=1131110, plain=8, galign=1, k1=0, sig0=14, f1_at=99, swap=0, rel=1, touch=1, tq=1, f1_early=0, rbits=3, rot=4, rot2=1, la=2, nst=4, defer=0, tpol='', qpol='', xn=8, wn=8, fn=8, xpol='', wpol='', fpol='nt', hasync=1, otm=1, atm=1, kvflag_at=12, ott=1, f0_at=4, sig_at=8, rchk=10, wo_at=20, boost=0, pulse=0, pulse2=0, pd=5, cap=6, prio_l=2, prio_m=0, prio_gelu=3)


def generate(**kw):
    cfg = dict(DEFAULT)
    cfg.update(kw)
    body = Gen(cfg).build()
    msgs = lint(body)
    if cfg.get("stamps"):
        body += f"; STAMPS M {cfg['stM']}\n"
    return HEADER + body + FOOTER.replace("denorm_mode_32 3", f"denorm_mode_32 {cfg['denorm']}"), msgs


if __name__ == "__main__":
    out = sys.argv[1]
    kw = {}
    for arg in sys.argv[2:]:
        k, v = arg.split("=")
        try:
            kw[k] = int(v)
        except ValueError:
            try:
                kw[k] = float(v)
            except ValueError:
                kw[k] = v
    text, msgs = generate(**kw)
    for m in msgs:
        print("LINT:", m)
    open(out, "w").write(text)
    print("wrote", out, len(text), "bytes,", text.count("\n"), "lines")
```

```python
import struct
import sys

from asmlib import Asm, lint, sr, vr

NAME = "gated_mix__softmax_full_mha__glu_gated_geglu__prompt"


def f32(x):
    return "0x%08x" % struct.unpack("<I", struct.pack("<f", x))[0]


LOG2E = 1.4426950408889634

WS_KV, WS_O, WS_H, WS_G, WS_FLAG, WS_STAMP = 0x000000, 0x400000, 0x600000, 0xBC0000, 0xC00000, 0xD00000
CKV, CH, CO, CHB, TK = (WS_FLAG + 128 * n for n in (0, 128, 256, 512, 640))
OOB = 0x20000000

NSLOT = 4
QW, QF, PART, CNT = 98304, 131072, 139776, 158208
FROW, FMAT = 2064, 8256
WOL, SEGB = 74240, 49152
WSLOT = [s % 9 for s in range(22)]
LDS_BYTES = 163840

sX, sWQ, sWO, sWG, sWU, sWD, sGW, sOUT, sDBG, sWS = 4, 8, 12, 16, 20, 24, 28, 32, 36, 40
sC, sR, sW, sT, sROT, sRB, sCB, sDEL = 44, 45, 46, 47, 48, 49, 50, 51
sONE, sPV, sTK = 71, 69, 53
sVM = 52
sT0 = 54
sSPIN = 70
sSTAMP = 72
SIZES = {sX: 2097152, sWQ: 1572864, sWO: 524288, sWG: 1409024, sWU: 1409024, sWD: 1409024, sGW: 1024, sOUT: 2097152,
         sDBG: 256, sWS: 268435456}
KARG = {sX: 0, sWQ: 8, sWO: 16, sWG: 32, sWU: 40, sWD: 48, sGW: 56, sOUT: 64, sDBG: 72, sWS: 80}


def slot(n):
    return (n % NSLOT) * 24576


def fslot(n):
    return (n % 4) * 2 * FMAT


class Gen:
    def __init__(self, cfg):
        self.cfg = cfg
        self.a = Asm()
        self.uid = 0
        self.bg = self.hi = False

    def lab(self, base):
        self.uid += 1
        return f"L_{base}_{self.uid}"

    def clock(self):
        return "s_memtime" if self.cfg.get("stamps") == 2 else "s_memrealtime"

    def names(self, role):
        if "pad" in self.cfg:
            return ["start", self.cfg["pad"]]
        return self.cfg["st" + role].split(",")

    def stamp(self, name, role):
        if self.cfg.get("stamps") and name in self.names(role):
            n = self.names(role).index(name)
            a = self.a
            a(f"{self.clock()} {sr(sSTAMP + 2 * n, 2)}")
            a.lg.drain()

    def dump_stamps(self, is_l):
        if not self.cfg.get("stamps"):
            return
        a = self.a
        if "pad" in self.cfg:
            n = 0 if self.cfg["pad"] == "start" else 1
            top, done = self.lab("pad"), self.lab("paddone")
            if is_l:
                a("s_barrier")
            if "padx" in self.cfg:
                a(f"""s_and_b32 s{sT0}, s2, 7
                    s_cmp_eq_u32 s{sT0}, {self.cfg['padx']}
                    s_cselect_b32 s{sSTAMP + 2 * n}, s{sSTAMP + 2 * n}, 0""")
            a(f"""s_waitcnt vmcnt(0) lgkmcnt(0)
                s_cmp_eq_u32 s{sSTAMP + 2 * n}, 0
                s_cbranch_scc1 {done}""")
            a.label(top)
            a(f"""s_sleep 4
                s_memrealtime {sr(sT0, 2)}
                s_waitcnt lgkmcnt(0)
                s_sub_u32 s{sT0}, s{sT0}, s{sSTAMP + 2 * n}
                s_cmp_lt_u32 s{sT0}, 6000
                s_cbranch_scc1 {top}""")
            a.label(done)
            return
        a(f"""s_lshl_b32 s{sT0}, s2, 3
            s_add_u32 s{sT0}, s{sT0}, s{sW}
            s_lshl_b32 s{sT0}, s{sT0}, 6
            s_add_u32 s{sT0}, s{sT0}, {WS_STAMP}
            s_mov_b64 exec, 1""")
        for n in range(14):
            a(f"v_mov_b32 v0, s{sSTAMP + 2 * n}")
            a(f"buffer_store_dword v0, off, {sr(sWS, 4)}, s{sT0} offset:{4 * n}")
        a("s_mov_b64 exec, -1")

    def lane(self, v):
        self.a(f"""v_mbcnt_lo_u32_b32 v{v}, -1, 0
            v_mbcnt_hi_u32_b32 v{v}, -1, v{v}""")

    def srd(self, *regs):
        for r in regs:
            self.a(f"s_mov_b32 s{r + 2}, {SIZES[r]}\ns_mov_b32 s{r + 3}, 0x00020000")

    def kload(self, *regs):
        for r in regs:
            self.a(f"s_load_dwordx2 {sr(r, 2)}, s[0:1], {KARG[r]}")

    def chunk(self, dst, i):
        a = self.a
        if self.cfg["rot"] in (3, 4):
            a(f"""s_add_u32 s{dst}, s{sDEL}, {i & 3}
                s_and_b32 s{dst}, s{dst}, 3
                s_add_u32 s{dst}, s{dst}, s{sROT}""")
            if i & 4:
                a(f"s_xor_b32 s{dst}, s{dst}, 4")
        else:
            a(f"s_add_u32 s{dst}, s{sROT}, {i}\ns_and_b32 s{dst}, s{dst}, 7")

    def dsr(self, op, dst, n, lo, hi, imm, tag):
        reg = lo
        if imm >= 65536:
            reg, imm = hi, imm - 65536
        assert 0 <= imm < 65536 and reg is not None
        self.a(f"{op} {vr(dst, n)}, v{reg} offset:{imm}")
        self.a.lg.issue(tag)

    def poll(self, voff, soff, tmp, srd=sWS):
        a = self.a
        top, done = self.lab("poll"), self.lab("pdone")
        a(f"s_mov_b32 s{sSPIN}, 100000")
        a.label(top)
        a(f"""buffer_load_dword v{tmp}, v{voff}, {sr(srd, 4)}, {soff} offen sc1
            s_waitcnt vmcnt(0)
            v_cmp_gt_u32 vcc, 32, v{tmp}
            s_cbranch_vccz {done}
            s_sleep 8
            s_sub_u32 s{sSPIN}, s{sSPIN}, 1
            s_cmp_lg_u32 s{sSPIN}, 0
            s_cbranch_scc1 {top}""")
        a.label(done)
        a.vm.reset()

    def signal(self, soff):
        self.a(f"s_atomic_add s{sONE}, {sr(sWS, 2)}, s{soff}")

    def spoll(self, soff, need, back=None):
        a = self.a
        top, done = self.lab("spoll"), back or self.lab("sdone")
        a(f"s_mov_b32 s{sSPIN}, 200000")
        a.label(top)
        a(f"""s_mov_b32 s{sPV}, 0
            s_atomic_add s{sPV}, {sr(sWS, 2)}, s{soff} glc
            s_waitcnt lgkmcnt(0)
            s_cmp_ge_u32 s{sPV}, {need}
            s_cbranch_scc1 {done}
            s_sub_u32 s{sSPIN}, s{sSPIN}, 1
            s_cmp_lg_u32 s{sSPIN}, 0
            s_cbranch_scc1 {top}""")
        if back:
            a(f"s_branch {back}")
        else:
            a.label(done)
        a.lg.reset()

    def lds_signal(self, addr, one, off):
        a = self.a
        a(f"""s_mov_b64 exec, 1
            ds_add_u32 v{addr}, v{one} offset:{off}
            s_mov_b64 exec, -1""")
        a.lg.issue("sig")

    def lds_probe(self, addr, tmp, off):
        self.a(f"ds_read_b32 v{tmp}, v{addr} offset:{off}")
        self.a.lg.issue("probe")

    def boost(self):
        if self.bg and not self.hi:
            self.a("s_setprio 3")
            self.hi = True

    def unboost(self):
        if self.hi:
            self.a(f"s_setprio {self.cfg['prio_m']}")
            self.hi = False

    def lds_check(self, addr, tmp, off, need, nap=0):
        a = self.a
        top, done = self.lab("lspin"), self.lab("ldone")
        self.boost()
        a.lg.wait("probe")
        a(f"""v_cmp_gt_u32 vcc, {need}, v{tmp}
            s_cbranch_vccz {done}
            s_mov_b32 s{sSPIN}, 1000000""")
        a.label(top)
        if nap:
            a(f"s_sleep {nap}")
        a(f"""ds_read_b32 v{tmp}, v{addr} offset:{off}
            s_waitcnt lgkmcnt(0)
            v_cmp_gt_u32 vcc, {need}, v{tmp}
            s_cbranch_vccz {done}
            s_sub_u32 s{sSPIN}, s{sSPIN}, 1
            s_cmp_lg_u32 s{sSPIN}, 0
            s_cbranch_scc1 {top}""")
        a.label(done)

    def prologue(self):
        a = self.a
        cfg = self.cfg
        rb = cfg["rbits"]
        a("s_cmp_ge_u32 s2, 256\ns_cbranch_scc1 L_end")
        if cfg.get("stamps"):
            a(f"{self.clock()} {sr(sSTAMP, 2)}")
        self.kload(sX, sWQ, sWS, sDBG)
        if cfg.get("stamps"):
            for n in range(1, 14):
                a(f"s_mov_b32 s{sSTAMP + 2 * n}, 0")
        x, j, t = sT0, sT0 + 1, sT0 + 2
        a(f"""v_lshrrev_b32 v1, 6, v0
            s_and_b32 s{x}, s2, 7
            v_readfirstlane_b32 s{sW}, v1
            s_lshr_b32 s{j}, s2, 3
            v_and_b32 v0, 63, v0
            s_and_b32 s{sR}, s{x}, {(1 << (4 - rb)) - 1}
            s_lshl_b32 s{sR}, s{sR}, {rb}
            s_and_b32 s{t}, s{j}, {(1 << rb) - 1}
            s_add_u32 s{sR}, s{sR}, s{t}
            s_lshr_b32 s{sC}, s{x}, {4 - rb}
            s_lshl_b32 s{sC}, s{sC}, {5 - rb}
            s_lshr_b32 s{t}, s{j}, {rb}
            s_add_u32 s{sC}, s{sC}, s{t}
            s_and_b32 s{sT}, s{sW}, 3""")
        if cfg["swap"]:
            a(f"s_xor_b32 s{sW}, s{sW}, 4")
        rot = cfg["rot"]
        if rot == 0:
            a(f"s_mov_b32 s{sROT}, 0")
        elif rot == 1:
            a(f"""s_mul_i32 s{sROT}, s{sC}, {cfg.get('rotc', 2)}
                s_mul_i32 s{t}, s{sR}, {cfg.get('rotr', 1)}
                s_add_u32 s{sROT}, s{sROT}, s{t}
                s_and_b32 s{sROT}, s{sROT}, 7""")
        else:
            a(f"""s_add_u32 s{sROT}, s{sC}, s{sR}
                s_and_b32 s{sROT}, s{sROT}, 1
                s_lshl_b32 s{sROT}, s{sROT}, 2""")
            if rot == 3:
                a(f"s_mov_b32 s{sDEL}, 0")
            else:
                a(f"""s_lshr_b32 s{sDEL}, s{x}, 1
                    s_lshl_b32 s{t}, s{x}, 1
                    s_add_u32 s{sDEL}, s{sDEL}, s{t}""")
        self.srd(sWS)
        a(f"""s_mov_b32 s{sONE}, 1
            s_cmp_ge_u32 s{sW}, 4
            s_cbranch_scc0 L_mwave""")

    def loader(self):
        a = self.a
        a.vm.reset()
        vX0, vX1, vKV, vQ = 8, 9, 10, 11
        sXB, sKB, sQB, sLx, sLk, sLq, sCh, sO = range(sT0, sT0 + 8)
        self.srd(sX, sWQ)
        a(f"""v_lshrrev_b32 v1, 3, v0
            v_and_b32 v2, 7, v0
            v_lshrrev_b32 v3, 4, v0
            s_lshl_b32 s{sO}, s{sT}, 5
            v_add_u32 v4, s{sO}, v1
            v_xor_b32 v5, v2, v3
            v_lshlrev_b32 v5, 4, v5
            v_lshl_add_u32 v{vX0}, v4, 10, v5
            v_xor_b32 v{vX1}, 64, v{vX0}
            v_add_u32 v{vX1}, 8192, v{vX1}
            s_lshl_b32 s{sO}, s{sT}, 4
            v_add_u32 v4, s{sO}, v1
            v_mul_u32_u24 v4, 3072, v4
            v_and_b32 v5, 1, v3
            v_lshlrev_b32 v5, 2, v5
            v_xor_b32 v5, v2, v5
            v_lshl_add_u32 v{vKV}, v5, 4, v4
            s_lshl_b32 s{sXB}, s{sR}, 17
            s_and_b32 s{sKB}, s{sC}, 1
            s_add_u32 s{sKB}, s{sKB}, 1
            s_lshl_b32 s{sKB}, s{sKB}, 10
            s_lshr_b32 s{sCh}, s{sC}, 1
            s_lshl_b32 s{sCh}, s{sCh}, 7
            s_add_u32 s{sKB}, s{sKB}, s{sCh}
            s_lshl_b32 s{sLx}, s{sT}, 12
            s_lshl_b32 s{sLk}, s{sT}, 11""")

        def issueA(i):
            B = slot(i)
            self.chunk(sCh, i)
            first = [i == 0]

            def ready(filler):
                a(filler)
                if first[0]:
                    a("s_waitcnt lgkmcnt(0)")
                    self.stamp("karg", "L")
                    first[0] = False

            def xs():
                a(f"s_lshl_b32 s{sO}, s{sCh}, 7\ns_add_u32 s{sO}, s{sO}, s{sXB}")
                for k in range(4):
                    a(f"s_add_u32 m0, s{sLx}, {B + 1024 * k}")
                    ready(f"s_add_u32 s{sO}, s{sO}, 16384" if k == 2 else "s_nop 0")
                    a(f"buffer_load_dwordx4 v{vX0 if k % 2 == 0 else vX1}, {sr(sX, 4)}, s{sO} offen lds")
                    a.vm.issue(("A", i))

            def ws():
                a(f"s_mul_i32 s{sO}, s{sCh}, 196608")
                for k in range(2):
                    a(f"s_add_u32 m0, s{sLk}, {B + 16384 + 1024 * k}")
                    ready(f"s_add_u32 s{sO}, s{sO}, {'s%d' % sKB if k == 0 else 24576}")
                    a(f"buffer_load_dwordx4 v{vKV}, {sr(sWQ, 4)}, s{sO} offen lds")
                    a.vm.issue(("A", i))

            for f in ((ws, xs) if self.cfg["wfirst"] else (xs, ws)):
                f()

        def issueQ(lo, hi):
            for i in range(lo, hi):
                self.chunk(sCh, i)
                a(f"""s_mul_i32 s{sO}, s{sCh}, 196608
                    s_add_u32 m0, s{sLq}, {QW + 4096 * i}
                    s_add_u32 s{sO}, s{sO}, s{sQB}
                    buffer_load_dwordx4 v{vQ}, {sr(sWQ, 4)}, s{sO} offen lds""")
                a.vm.issue(("Q", 0))

        def setup2():
            a(f"""v_lshrrev_b32 v4, 2, v0
                s_lshl_b32 s{sO}, s{sT}, 4
                v_add_u32 v4, s{sO}, v4
                v_mul_u32_u24 v4, 3072, v4
                v_and_b32 v5, 3, v0
                v_lshl_add_u32 v{vQ}, v5, 4, v4
                s_lshl_b32 s{sQB}, s{sC}, 6
                s_lshl_b32 s{sLq}, s{sT}, 10
                s_mov_b32 s{sVM}, 0x0000ffff
                s_mov_b32 s{sVM + 1}, 0x0000ffff""")
            if self.cfg["tq"]:
                cb = 5 - self.cfg["rbits"]
                nl = 1 << (cb - 1)
                a(f"""v_lshrrev_b32 v4, {cb - 1}, v0
                    v_mul_u32_u24 v4, 3072, v4
                    v_and_b32 v5, {nl - 1}, v0
                    v_lshl_add_u32 v4, v5, 7, v4
                    s_lshr_b32 s{sO}, s2, 3
                    s_lshl_b32 s{sO}, s{sO}, 2
                    s_add_u32 s{sO}, s{sO}, s{sT}
                    s_mul_i32 s{sO}, s{sO}, 12288
                    s_lshr_b32 s{sCh}, s{sC}, {cb}
                    s_lshl_b32 s{sCh}, s{sCh}, {cb + 6}
                    s_add_u32 s{sO}, s{sO}, s{sCh}
                    s_mov_b32 m0, {CNT + 64}
                    s_mov_b64 exec, {(1 << (4 * nl)) - 1}
                    buffer_load_dword v4, {sr(sWQ, 4)}, s{sO} offen {self.cfg['qpol']} lds
                    s_mov_b64 exec, -1""")
                a.vm.issue("touch")
            a("s_setprio 0")
            self.attn_init()
            a(f"s_setprio {self.cfg['prio_l']}")
            skip = self.lab("nogo")
            a(f"""s_cmp_lg_u32 s{sRB}, 0
                s_cbranch_scc1 {skip}
                s_lshl_b32 s{sO}, s{sT}, 7
                s_waitcnt lgkmcnt(0)
                s_atomic_add s{sONE}, {sr(sDBG, 2)}, s{sO}""")
            a.label(skip)

        def reset():
            skip = self.lab("noreset")
            a(f"""s_lshr_b32 s{sRB}, s2, 5
                s_lshr_b32 s{sO}, s{sT}, 1
                s_or_b32 s{sRB}, s{sRB}, s{sO}
                s_cbranch_scc1 {skip}
                s_lshl_b32 s{sO}, s2, 1
                s_add_u32 s{sO}, s{sO}, s{sT}
                s_mul_i32 s{sO}, s{sO}, 1408
                s_add_u32 s{sO}, s{sO}, {WS_FLAG}
                s_mov_b32 s{sPV}, 0""")
            for k in range(11):
                a(f"s_atomic_and s{sPV}, {sr(sWS, 2)}, s{sO} offset:{128 * k}")
            a.label(skip)

        la = self.cfg["la"]
        qs = [int(ch) for ch in str(self.cfg["qs"])[1:]]
        assert sum(qs) == 8
        nxt = 0
        for b in range(9):
            while nxt < 8 and nxt <= b + la and nxt - NSLOT + 2 <= b:
                issueA(nxt)
                nxt += 1
                if nxt == 1:
                    reset()
                if nxt == self.cfg["su"]:
                    setup2()
            if b >= 6:
                issueQ(sum(qs[:b - 6]), sum(qs[:b - 5]))
            if b == 8 and qs[3]:
                a("s_barrier")
                issueQ(8 - qs[3], 8)
            tag = ("A", b) if b < 8 else ("Q", 0)
            a.vm.wait(tag)
            self.stamp(f"{tag[0]}{tag[1]}", "L")
            a("s_barrier")

    O_, S_, Q_, KV_ = 16, 80, 112, 128
    vIDX, vKo, vVo, vFl, vQa_, vOne, vCa, vPa, vPs = 12, 13, 14, 15, 6, 7, 1, 2, 3

    def attn_init(self):
        a = self.a
        NST = self.cfg["nst"]
        assert NST == 4
        sHd, sQ, sOff, sRow, sCnt, sLd, sFl = range(sT0 + 8, sT0 + 15)
        self.sHd, self.sQ, self.sOff, self.sKr, self.sCnt, self.sLd, self.sFl = sHd, sQ, sOff, sRow, sCnt, sLd, sFl
        a(f"""s_and_b32 s{sHd}, s{sW}, 1
            s_lshr_b32 s{sQ}, s{sT}, 1
            v_lshrrev_b32 v5, 5, v0
            s_and_b32 s{sRow}, s{sR}, {self.cfg['rowmask']}
            s_add_u32 s{sRow}, s{sRow}, s{sQ}
            s_and_b32 s{sRow}, s{sRow}, 15
            s_mov_b32 s{sCnt}, {32 // NST}
            v_lshlrev_b32 v{self.vKo}, 4, v0
            v_and_b32 v{self.vVo}, 15, v0
            v_lshlrev_b32 v{self.vVo}, 4, v{self.vVo}
            v_lshl_add_u32 v{self.vVo}, v5, 8, v{self.vVo}
            s_lshl_b32 s{sLd}, s{sHd}, 12
            s_add_u32 s{sLd}, s{sLd}, {QF}
            v_add_u32 v{self.vQa_}, s{sLd}, v{self.vKo}
            s_lshl_b32 s{sLd}, s{sQ}, 11
            v_add_u32 v{self.vQa_}, s{sLd}, v{self.vQa_}
            v_mov_b32 v{self.vIDX}, 0xdddddddd
            v_mov_b32 v{self.vOne}, 1
            v_and_b32 v4, 0x1b, v0
            v_cmp_eq_u32 vcc, 16, v4
            v_mov_b32 v4, 0x3f803f80
            s_mul_i32 s{sLd}, s{sT}, 4608
            v_cndmask_b32 v4, 0, v4, vcc
            s_add_u32 s{sLd}, s{sLd}, {PART}
            v_lshl_add_u32 v{self.vPa}, v0, 4, s{sLd}
            v_lshl_add_u32 v{self.vPs}, v0, 2, s{sLd}
            s_lshl_b32 s{sLd}, s{sHd}, 2
            s_add_u32 s{sLd}, s{sLd}, {CNT + 8}
            v_mov_b32 v{self.vCa}, s{sLd}
            s_lshl_b32 s{sLd}, s{sT}, 2
            s_add_u32 s{sLd}, s{sLd}, {CNT + 32}
            v_mov_b32 v{self.vFl}, s{sLd}""")
        for st in range(NST):
            for k in range(8):
                a(f"v_mov_b32 v{self.KV_ + 12 * st + 4 + k}, v4")
        for k in range(64):
            a(f"v_mov_b32 v{self.O_ + k}, 0")

    def attn_start(self):
        a = self.a
        NST = self.cfg["nst"]
        sOff = self.sOff
        sHB, sFB, sRow, sFl = sT0, sT0 + 1, self.sKr, self.sFl
        a(f"""s_lshl_b32 s{sHB}, s{sC}, 1
            s_add_u32 s{sHB}, s{sHB}, s{self.sHd}
            s_lshl_b32 s{sHB}, s{sHB}, 17
            s_lshr_b32 s{sFB}, s{sC}, 1
            s_lshl_b32 s{sFB}, s{sFB}, 11
            s_add_u32 s{sFB}, s{sFB}, {CKV}
            s_lshl_b32 s{sOff}, s{sRow}, 13
            s_add_u32 s{sOff}, s{sOff}, s{sHB}
            s_lshl_b32 s{sFl}, s{sRow}, 7
            s_add_u32 s{sFl}, s{sFl}, s{sFB}""")
        a(f"v_mov_b32 v5, {CNT}")
        if self.cfg["pwait"]:
            a.lg.reset()
            self.lds_probe(5, 4, 48)
            self.lds_check(5, 4, 48, 4 * self.cfg["pwait"])
        self.spoll(sFl, 8)
        self.stamp("KVpoll", "L")
        for st in range(NST - 1):
            b = self.KV_ + 12 * st
            a(f"""buffer_load_dwordx4 {vr(b, 4)}, v{self.vKo}, {sr(sWS, 4)}, s{sOff} offen sc1
                s_mov_b64 exec, {sr(sVM, 2)}
                buffer_load_dwordx4 {vr(b + 4, 4)}, v{self.vVo}, {sr(sWS, 4)}, s{sOff} offen offset:1024 sc1
                buffer_load_dwordx4 {vr(b + 8, 4)}, v{self.vVo}, {sr(sWS, 4)}, s{sOff} offen offset:1536 sc1
                s_mov_b64 exec, -1
                s_add_u32 s{sOff}, s{sOff}, 2048""")
        self.stamp("KViss", "L")
        a.lg.reset()
        self.lds_signal(5, self.vOne, 20)
        self.lds_probe(5, 4, 16)
        self.lds_check(5, 4, 16, 16)
        a(f"v_xor_b32 v4, 0x800, v{self.vQa_}")
        self.stamp("Qrdy", "L")
        for q in range(4):
            a(f"ds_read_b128 {vr(self.Q_ + 4 * q, 4)}, v{self.vQa_ if q >= 2 else 4} offset:{1024 * (q & 1)}")
        a(f"""s_add_u32 s{sRow}, s{sRow}, 2
            s_and_b32 s{sRow}, s{sRow}, 15
            s_lshl_b32 s{sFl}, s{sRow}, 7
            s_add_u32 s{sFl}, s{sFl}, s{sFB}
            s_mov_b32 s{sPV}, 0
            s_waitcnt lgkmcnt(0)
            s_mov_b64 exec, 1
            ds_add_u32 v5, v{self.vOne} offset:24
            s_mov_b64 exec, -1
            s_atomic_add s{sPV}, {sr(sWS, 2)}, s{sFl} glc
            s_waitcnt vmcnt({3 * (NST - 2)})
            v_mfma_f32_32x32x16_bf16 {vr(self.S_, 16)}, {vr(self.KV_, 4)}, {vr(self.Q_, 4)}, {self.cfg['shift']}
            s_nop 11""")

    def P(self, n):
        oop = self.cfg["oop"]
        return self.S_ + 16 * (n & 1) if not oop else 232 if oop == 1 else (176, 232)[n & 1]

    def attn_loop(self):
        a = self.a
        NST = self.cfg["nst"]
        NT = 4 * NST
        O, S, Q, KV = self.O_, self.S_, self.Q_, self.KV_
        sOff, sRow, sCnt, sFl, sHB, sFB = self.sOff, self.sKr, self.sCnt, self.sFl, sT0, sT0 + 1
        P = self.P
        sm = lambda st, qt, half, n: (f"v_smfmac_f32_32x32x32_bf16 {vr(O + 16 * qt, 16)}, {vr(KV + 12 * st + 4 + 4 * half, 4)}, "
                                      f"{vr(P(n) + 8 * half, 8)}, v{self.vIDX}")
        extra = {
            (2, 0): f"s_lshl_b32 s{sOff}, s{sRow}, 13\ns_add_u32 s{sOff}, s{sOff}, s{sHB}",
            (2, 2): f"s_cmp_eq_u32 s{sCnt}, 1\ns_cselect_b32 s{sOff}, {OOB}, s{sOff}",
            (3, 1): "s_waitcnt lgkmcnt(0)",
            (3, 2): f"s_cmp_lt_u32 s{sPV}, 8\ns_cbranch_scc1 L_kv_wait\nL_kv_ok:",
            (6, 0): f"s_add_u32 s{sRow}, s{sRow}, 2\ns_and_b32 s{sRow}, s{sRow}, 15",
            (6, 2): f"s_lshl_b32 s{sFl}, s{sRow}, 7\ns_add_u32 s{sFl}, s{sFl}, s{sFB}",
            (10, 0): f"s_mov_b32 s{sPV}, 0\ns_atomic_add s{sPV}, {sr(sWS, 2)}, s{sFl} glc",
            (NT - 3, 0): f"s_sub_u32 s{sCnt}, s{sCnt}, 1\ns_cmp_eq_u32 s{sCnt}, 0",
        }

        if self.cfg["chk"]:
            it, n0 = divmod(self.cfg["chk"], NT)
            assert n0 in (1, 4, 5, 8, 9, 12) and (n0, 0) not in extra
            extra[(n0, 0)] = f"s_cmp_eq_u32 s{sCnt}, {8 - it}\ns_cbranch_scc1 L_m_wait\nL_m_ok:"

        it, n0 = divmod(self.cfg["rdv"], NT)
        assert n0 in (1, 4, 5, 8, 9, 12) and (n0, 0) not in extra
        extra[(n0, 0)] = f"s_cmp_eq_u32 s{sCnt}, {8 - it}\ns_cbranch_scc1 L_rdv\nL_rdv_ok:"

        def ex(n, k):
            for l in extra.get((n, k), "").split("\n"):
                if l.endswith(":"):
                    a.label(l[:-1])
                else:
                    a(l)

        a(f"v_exp_f32 v{P(0)}, v{S}\nv_exp_f32 v{P(0) + 1}, v{S + 1}")
        a.raw(".p2align 6")
        a.label("L_attn")
        for n in range(NT + 1):
            st, qt = divmod(n, 4)
            cur = S + 16 * (n & 1)
            E = lambda lo, hi: [a(f"v_exp_f32 v{P(n) + k}, v{cur + k}") for k in range(lo, hi)]
            pst, pqt = divmod((n - 1) % NT, 4)
            nst, nqt = divmod((n + 1) % NT, 4)
            ld = KV + 12 * ((st - 1) % NST)
            if n:
                E(0, 2)
                a(sm(pst, pqt, 1, n - 1))
            if n == NT:
                break
            if n == NT - 2:
                a("s_cbranch_scc1 L_attn_tail")
            ex(n, 0)
            if qt == 3:
                a(f"s_waitcnt vmcnt({3 * (NST - 2)})")
            E(2, 5)
            a(f"v_mfma_f32_32x32x16_bf16 {vr(S + 16 * ((n + 1) & 1), 16)}, {vr(KV + 12 * nst, 4)}, {vr(Q + 4 * nqt, 4)}, {self.cfg['shift']}")
            ex(n, 1)
            if qt == 0 and not self.cfg["k1"]:
                a(f"buffer_load_dwordx4 {vr(ld, 4)}, v{self.vKo}, {sr(sWS, 4)}, s{sOff} offen sc1")
            if qt == 2 and st:
                a(f"s_add_u32 s{sOff}, s{sOff}, 2048")
            E(5, self.cfg["p1"])
            a(sm(st, qt, 0, n))
            ex(n, 2)
            if qt == 0 and self.cfg["k1"]:
                a(f"buffer_load_dwordx4 {vr(ld, 4)}, v{self.vKo}, {sr(sWS, 4)}, s{sOff} offen sc1")
            if qt == 1:
                a(f"""s_mov_b64 exec, {sr(sVM, 2)}
                    buffer_load_dwordx4 {vr(ld + 4, 4)}, v{self.vVo}, {sr(sWS, 4)}, s{sOff} offen offset:1024 sc1
                    buffer_load_dwordx4 {vr(ld + 8, 4)}, v{self.vVo}, {sr(sWS, 4)}, s{sOff} offen offset:1536 sc1
                    s_mov_b64 exec, -1""")
            E(self.cfg["p1"], 16)
        a("s_branch L_attn")
        self.sm = sm

    def attn_finish(self):
        a = self.a
        O, S, Q, KV, T, sm = self.O_, self.S_, self.Q_, self.KV_, 192, self.sm
        sA, sF, m = sT0, sT0 + 1, sT0 + 2
        E = lambda n, lo, hi: [a(f"v_exp_f32 v{self.P(n) + k}, v{S + 16 * (n & 1) + k}") for k in range(lo, hi)]

        def give(q):
            o = O + 16 * q
            a(f"""ds_write_b128 v{self.vPa}, {vr(o, 4)} offset:{2304 * q}
                ds_write_b128 v{self.vPa}, {vr(o + 4, 4)} offset:{2304 * q + 1024}
                ds_write_b32 v{self.vPs}, v{o + 8} offset:{2304 * q + 2048}""")

        a.label("L_attn_tail")
        a.lg.reset()
        a("s_waitcnt lgkmcnt(0)")
        give(0)
        E(14, 2, 5)
        a(f"v_mfma_f32_32x32x16_bf16 {vr(S + 16, 16)}, {vr(KV + 36, 4)}, {vr(Q + 12, 4)}, {self.cfg['shift']}")
        a(f"s_lshl_b32 s{sF}, s{sR}, 1")
        E(14, 5, 10)
        a(sm(3, 2, 0, 14))
        give(1)
        if self.cfg["rel"] == 0:
            a(f"ds_write_b32 v{self.vFl}, v{self.vOne}")
        self.lds_signal(self.vCa, self.vOne, 0)
        E(14, 10, 16)
        E(15, 0, 2)
        a(sm(3, 2, 1, 14))
        a(f"""s_add_u32 s{sF}, s{sF}, s{self.sQ}
            s_lshl_b32 s{sA}, s{sF}, 5
            s_add_u32 s{sA}, s{sA}, s{sC}
            s_lshl_b32 s{sA}, s{sA}, 1
            s_add_u32 s{sA}, s{sA}, s{self.sHd}
            s_mul_i32 s{m}, s{self.sQ}, -18432
            s_add_u32 s{m}, s{m}, 9216""")
        E(15, 2, 10)
        a(sm(3, 3, 0, 15))
        a(f"""s_lshl_b32 s{sA}, s{sA}, 10
            s_add_u32 s{sA}, s{sA}, {WS_O}
            v_add_u32 v{self.vPa}, s{m}, v{self.vPa}
            v_add_u32 v{self.vPs}, s{m}, v{self.vPs}""")
        self.lds_probe(self.vCa, 4, 0)

        def fetch():
            for q in range(2):
                a(f"""ds_read_b32 v{T + 12 * q + 8}, v{self.vPs} offset:{2304 * q + 2048}
                    ds_read_b128 {vr(T + 12 * q, 4)}, v{self.vPa} offset:{2304 * q}
                    ds_read_b128 {vr(T + 12 * q + 4, 4)}, v{self.vPa} offset:{2304 * q + 1024}""")

        if self.cfg["lfast"]:
            fetch()
        E(15, 10, 16)
        a(f"""s_lshl_b32 s{sF}, s{sF}, {2 + self.cfg['ott']}
            s_lshr_b32 s{m}, s{sC}, 2""")
        a(sm(3, 3, 1, 15))
        a(f"""s_add_u32 s{sF}, s{sF}, s{m}
            s_lshl_b32 s{sF}, s{sF}, 7
            s_add_u32 s{sF}, s{sF}, {CO}""")
        self.stamp("attn1", "L")
        have = self.lab("have")
        if self.cfg["lfast"]:
            a(f"s_waitcnt lgkmcnt(0)\nv_cmp_gt_u32 vcc, 2, v4")
        if self.cfg["rel"] == 1:
            a(f"ds_write_b32 v{self.vFl}, v{self.vOne}")
            a.lg.issue("rel")
        if self.cfg["lfast"]:
            a(f"s_cbranch_vccz {have}")
            a.lg.reset()
        self.lds_check(self.vCa, 4, 0, 2)
        self.stamp("pair", "L")
        fetch()
        a("s_waitcnt lgkmcnt(3)")
        a.label(have)
        for q in range(2):
            o, t = O + 32 + 16 * q, T + 12 * q
            if q:
                a("s_waitcnt lgkmcnt(0)")
            a(f"v_add_f32 v{o + 8}, v{o + 8}, v{t + 8}")
            for k in range(8):
                a(f"v_add_f32 v{o + k}, v{o + k}, v{t + k}")
            self.normalise(q)
        if self.cfg["rel"] == 2:
            a(f"ds_write_b32 v{self.vFl}, v{self.vOne}")
        self.stamp("Ost", "L")
        lo, hi = self.cfg.get("l_lo", 2.0 ** -24), self.cfg.get("l_hi", 2.0 ** 64)
        for q in range(2):
            o, t = O + 32 + 16 * q, T + 12 * q
            a(f"""v_pk_add_f32 {vr(t, 2)}, {vr(o, 2)}, {vr(o + 2, 2)}
                v_pk_add_f32 {vr(t + 2, 2)}, {vr(o + 4, 2)}, {vr(o + 6, 2)}
                v_cmp_lt_f32 vcc, {f32(lo)}, v{o + 8}
                v_pk_add_f32 {vr(t, 2)}, {vr(t, 2)}, {vr(t + 2, 2)}
                s_and_b64 {sr(m, 2)}, {'vcc' if q == 0 else sr(m, 2)}, vcc
                v_cmp_gt_f32 vcc, {f32(hi)}, v{o + 8}
                v_add_f32 v{t}, v{t}, v{t + 1}
                s_and_b64 {sr(m, 2)}, {sr(m, 2)}, vcc
                v_sub_f32 v{t}, v{t}, v{t}
                v_cmp_eq_f32 vcc, 0, v{t}
                s_and_b64 {sr(m, 2)}, {sr(m, 2)}, vcc""")
        a(f"s_cmp_eq_u64 {sr(m, 2)}, -1\ns_cbranch_scc0 L_fallback")
        a.label("L_publish")
        if self.cfg["ott"]:
            a(f"s_add_u32 s{m}, s{sF}, 512\ns_waitcnt vmcnt(1)")
            self.signal(sF)
            a("s_waitcnt vmcnt(0)")
            self.signal(m)
        else:
            a("s_waitcnt vmcnt(0)")
            self.signal(sF)

    def normalise(self, q):
        a = self.a
        o, d = self.O_ + 32 + 16 * q, 224 + 4 * q
        a(f"v_rcp_f32 v{o + 9}, v{o + 8}\ns_add_u32 s{sT0 + 4}, s{sT0}, {32768 * q}")
        for k in range(8):
            a(f"v_mul_f32 v{o + k}, v{o + k}, v{o + 9}")
        for k in range(4):
            a(f"v_cvt_pk_bf16_f32 v{d + k}, v{o + 2 * k}, v{o + 2 * k + 1}")
        a(f"buffer_store_dwordx4 {vr(d, 4)}, v{self.vKo}, {sr(sWS, 4)}, s{sT0 + 4} offen sc1")

    def fallback(self):
        a = self.a
        S, M, K, V, vMx = self.S_, self.S_ + 16, self.KV_, self.KV_ + 4, 4
        sO, sN = sT0 + 2, sT0 + 3
        a.label("L_kv_wait")
        self.spoll(self.sFl, 8, "L_kv_ok")
        if self.cfg["chk"]:
            a.label("L_m_wait")
            a.lg.reset()
            self.lds_probe(5, 4, 0)
            self.lds_check(5, 4, 0, self.cfg["chk_need"], nap=1)
            a("s_branch L_m_ok")
        a.label("L_rdv")
        a.lg.reset()
        self.lds_signal(5, self.vOne, 52)
        if self.cfg["rdv_need"]:
            self.lds_probe(5, 4, 0)
            self.lds_check(5, 4, 0, self.cfg["rdv_need"], nap=1)
        a("s_branch L_rdv_ok")
        a.label("L_fallback")
        a("s_waitcnt vmcnt(0)")
        for q in range(2):
            O, Q = self.O_ + 32 + 16 * q, self.Q_ + 8 + 4 * q
            a(f"""v_mov_b32 v{vMx}, 0xff800000
                s_lshl_b32 s{sO}, s{sC}, 1
                s_add_u32 s{sO}, s{sO}, s{self.sHd}
                s_lshl_b32 s{sO}, s{sO}, 17
                s_mov_b32 s{sN}, 64""")
            a.label(f"L_fb_max{q}")
            a(f"""buffer_load_dwordx4 {vr(K, 4)}, v{self.vKo}, {sr(sWS, 4)}, s{sO} offen sc1
                s_waitcnt vmcnt(0)
                v_mfma_f32_32x32x16_bf16 {vr(S, 16)}, {vr(K, 4)}, {vr(Q, 4)}, 0
                s_nop 11""")
            for k in range(8):
                a(f"v_max3_f32 v{vMx}, v{S + 2 * k}, v{S + 2 * k + 1}, v{vMx}")
            a(f"""s_add_u32 s{sO}, s{sO}, 2048
                s_sub_u32 s{sN}, s{sN}, 1
                s_cmp_lg_u32 s{sN}, 0
                s_cbranch_scc1 L_fb_max{q}
                v_mov_b32 v{M}, v{vMx}
                s_nop 1
                v_permlane32_swap_b32 v{vMx}, v{M}
                s_nop 1
                v_max_f32 v{vMx}, v{vMx}, v{M}
                s_sub_u32 s{sO}, s{sO}, 131072
                s_mov_b32 s{sN}, 64""")
            for k in range(16):
                a(f"v_sub_f32 v{M + k}, 0, v{vMx}\nv_mov_b32 v{O + k}, 0")
            a.label(f"L_fb_sum{q}")
            a(f"""buffer_load_dwordx4 {vr(K, 4)}, v{self.vKo}, {sr(sWS, 4)}, s{sO} offen sc1
                s_mov_b64 exec, {sr(sVM, 2)}
                buffer_load_dwordx4 {vr(V, 4)}, v{self.vVo}, {sr(sWS, 4)}, s{sO} offen offset:1024 sc1
                buffer_load_dwordx4 {vr(V + 4, 4)}, v{self.vVo}, {sr(sWS, 4)}, s{sO} offen offset:1536 sc1
                s_mov_b64 exec, -1
                s_waitcnt vmcnt(0)
                v_mfma_f32_32x32x16_bf16 {vr(S, 16)}, {vr(K, 4)}, {vr(Q, 4)}, {vr(M, 16)}
                s_nop 11""")
            for k in range(16):
                a(f"v_exp_f32 v{S + k}, v{S + k}")
            a(f"""s_nop 1
                v_smfmac_f32_32x32x32_bf16 {vr(O, 16)}, {vr(V, 4)}, {vr(S, 8)}, v{self.vIDX}
                v_smfmac_f32_32x32x32_bf16 {vr(O, 16)}, {vr(V + 4, 4)}, {vr(S + 8, 8)}, v{self.vIDX}
                s_nop 7
                s_add_u32 s{sO}, s{sO}, 2048
                s_sub_u32 s{sN}, s{sN}, 1
                s_cmp_lg_u32 s{sN}, 0
                s_cbranch_scc1 L_fb_sum{q}
                s_nop 3""")
            self.normalise(q)
        a("s_branch L_publish")

    XR, ACC, WS_ = 128, 32, 8
    vFlo, vD, vF, vCnt, v1_, vTmp = 0, 1, 2, 5, 6, 7

    def m_setup(self):
        a = self.a
        self.vXA, self.vXAh, self.vWk, self.vWkh, self.vQa, self.vST, self.vGo, self.vQFa, self.vGa = 80, 84, 88, 90, 92, 93, 94, 95, 96
        self.stamp("mjmp", "M")
        self.kload(sWG, sWU, sWD, sWO, sOUT, sGW)
        self.srd(sDBG, sWG, sWU, sWD, sWO, sOUT, sGW)
        a(f"""s_lshl_b32 s{sRB}, s{sT0}, 2
            s_and_b32 s{sT0 + 2}, s{sT0 + 1}, 3
            s_add_u32 s{sRB}, s{sRB}, s{sT0 + 2}
            s_lshr_b32 s{sCB}, s{sT0 + 1}, 2
            v_and_b32 v16, 31, v0
            v_lshrrev_b32 v17, 5, v0
            v_bfe_u32 v18, v0, 1, 3
            v_xor_b32 v18, v18, v17
            s_lshl_b32 s{sT0}, s{sT}, 12
            v_lshlrev_b32 v19, 7, v16
            v_lshl_add_u32 v19, v18, 4, v19
            v_add_u32 v{self.vXA}, s{sT0}, v19""")
        for s in range(1, 4):
            a(f"v_xor_b32 v{self.vXA + s}, {32 * s}, v{self.vXA}")
        for s in range(4):
            a(f"v_add_u32 v{self.vXAh + s}, 0x10000, v{self.vXA + s}")
        a(f"""v_bfe_u32 v18, v0, 2, 2
            v_lshl_add_u32 v18, v17, 3, v18
            v_bfe_u32 v19, v0, 4, 1
            v_and_b32 v20, 3, v0
            v_lshlrev_b32 v20, 3, v20
            v_lshl_add_u32 v20, v19, 5, v20
            v_bfe_u32 v21, v0, 3, 1
            v_lshl_add_u32 v22, v18, 7, v20
            v_lshl_add_u32 v{self.vWk}, v21, 6, v22
            v_xor_b32 v{self.vWk + 1}, 64, v{self.vWk}
            v_add_u32 v{self.vWkh}, 0x10000, v{self.vWk}
            v_add_u32 v{self.vWkh + 1}, 0x10000, v{self.vWk + 1}
            v_lshl_add_u32 v{self.vQa}, v18, 6, v20
            v_add_u32 v{self.vQa}, {QW}, v{self.vQa}
            s_lshl_b32 s{sT0}, s{sT}, 10
            s_add_u32 s{sT0}, s{sT0}, {QF}
            v_lshl_add_u32 v{self.vQFa}, v0, 4, s{sT0}
            v_and_b32 v23, 0x33, v0
            v_bfe_u32 v25, v0, 2, 1
            v_lshl_add_u32 v23, v25, 3, v23
            v_lshl_add_u32 v23, v21, 2, v23
            v_lshlrev_b32 v23, 4, v23
            v_and_b32 v24, 15, v0
            v_lshlrev_b32 v{self.vGa}, 7, v17
            v_lshlrev_b32 v24, 4, v24
            v_lshl_add_u32 v24, v17, 8, v24
            v_lshl_add_u32 v24, v19, 17, v24
            v_add_u32 v24, 1024, v24
            v_lshlrev_b32 v26, 4, v0
            s_lshl_b32 s{sT0}, s{sT}, 4
            v_bfe_u32 v27, v0, 2, 3
            v_add_u32 v27, s{sT0}, v27
            v_mul_u32_u24 v27, 2752, v27
            v_and_b32 v28, 3, v0
            v_lshl_add_u32 v27, v28, 4, v27
            v_lshl_add_u32 v{self.vF}, v17, 6, v27
            s_lshr_b32 s{sT0}, s{sROT}, 2
            v_xor_b32 v28, s{sT0}, v17
            v_mul_u32_u24 v28, 704512, v28
            v_add_u32 v{self.vF + 1}, v27, v28
            v_lshrrev_b32 v27, 3, v0
            v_mul_u32_u24 v27, 2752, v27
            v_and_b32 v28, 7, v0
            v_lshlrev_b32 v28, 7, v28
            v_min_u32 v28, 700, v28
            v_add_u32 v97, v27, v28
            v_and_b32 v27, 0x300, v26
            v_add_u32 v{self.vF + 2}, v27, v26
            v_mul_u32_u24 v20, {FROW}, v19
            v_lshl_add_u32 v20, v17, 10, v20
            v_bfe_u32 v27, v0, 1, 3
            v_lshl_add_u32 v20, v27, 5, v20
            v_and_b32 v27, 1, v0
            v_lshl_add_u32 v{self.vFlo}, v27, 3, v20
            v_bfe_u32 v20, v26, 4, 3
            v_lshlrev_b32 v22, 2, v19
            v_xor_b32 v20, v20, v22
            v_lshlrev_b32 v20, 4, v20
            v_lshrrev_b32 v22, 7, v26
            v_lshl_add_u32 v{self.vD}, v22, 10, v20
            v_mov_b32 v{self.vCnt}, {CNT}
            v_lshl_add_u32 v{self.v1_}, v26, 3, 4""")
        for i in range(4):
            a(f"v_mov_b32 v{100 + i}, 0")
        a(f"ds_write_b128 v{self.vCnt}, v[100:103]\nds_write_b128 v{self.vCnt}, v[100:103] offset:16\nds_write_b128 v{self.vCnt}, v[100:103] offset:32\nds_write_b128 v{self.vCnt}, v[100:103] offset:48\ns_waitcnt lgkmcnt(0)")

    def pass_a(self, isv):
        a = self.a
        a.lg.reset()
        a.vm.reset()
        a(f"v_mov_b32 v{self.vST}, v{24 if isv else 23}")
        XR, ACC, W = self.XR, self.ACC, self.WS_
        sB = sT0 + 2
        atm = self.cfg["atm"]
        wr = lambda g: 104 if (g == 31 and atm) else W + 8 * (g % 3)

        def reads(g):
            i, s = divmod(g, 4)
            B = slot(i)
            self.dsr("ds_read_b128", XR + 4 * g, 4, self.vXA + s, self.vXAh + s, B, ("x", g))
            for ct in range(2):
                for u in range(2):
                    self.dsr("ds_read_b64_tr_b16", wr(g) + 4 * ct + 2 * u, 2, self.vWk + ct, self.vWkh + ct,
                             B + 16384 + (16 * s + 4 * u) * 128, ("w", g, ct))

        def comp(g, cts=(0, 1)):
            for ct in cts:
                a.lg.wait(("x", g), ("w", g, ct))
                wf, xf = vr(wr(g) + 4 * ct, 4), vr(XR + 4 * g, 4)
                d = vr(ACC + 16 * ct, 16)
                A, Bm = (xf, wf) if isv else (wf, xf)
                a(f"v_mfma_f32_32x32x16_bf16 {d}, {A}, {Bm}, {d if g else 0}")

        def kv_store(ct, q):
            d = 112 + 8 * ct + 4 * q
            for k in range(4):
                s = ACC + 16 * ct + 8 * q + 2 * k
                a(f"v_cvt_pk_bf16_f32 v{d + k}, v{s}, v{s + 1}")
            if isv:
                a(f"buffer_store_dwordx4 {vr(d, 4)}, v{self.vST}, {sr(sWS, 4)}, s{sB} offen offset:{512 * q} sc1")
                if q == 1 and ct == 0:
                    a(f"s_add_u32 s{sB}, s{sB}, 262144")
            else:
                a(f"buffer_store_dwordx4 {vr(d, 4)}, v{self.vST}, {sr(sWS, 4)}, s{sB} offen sc1")
                a(f"s_add_u32 s{sB}, s{sB}, 131072")

        a(f"""s_lshr_b32 s{sB}, s{sC}, 1
            s_lshl_b32 s{sB}, s{sB}, 19
            s_lshl_b32 s{sB + 1}, s{sR}, 2
            s_add_u32 s{sB + 1}, s{sB + 1}, s{sT}
            s_lshl_b32 s{sB + 1}, s{sB + 1}, 11
            s_add_u32 s{sB}, s{sB}, s{sB + 1}""")
        self.stamp("mrdy", "M")
        for i in range(8):
            g0 = 4 * i
            if i:
                a.lg.drain()
            if i == 7 and atm:
                comp(27)
                a("s_barrier")
                for g in range(28, 31):
                    reads(g)
                comp(28, (0,))
                reads(31)
                for g in range(29, 32):
                    comp(g, (0,))
                comp(28, (1,))
                a("s_nop 5")
                comp(29, (1,))
                a("s_nop 3")
                kv_store(0, 0)
                comp(30, (1,))
                comp(31, (1,))
                kv_store(0, 1)
                a("s_nop 5")
                kv_store(1, 0)
                kv_store(1, 1)
                break
            a("s_barrier")
            if i == 0:
                self.stamp("BA0", "M")
            reads(g0)
            reads(g0 + 1)
            if i:
                comp(g0 - 1)
            reads(g0 + 2)
            if i == self.cfg['go_at']:
                a(f"buffer_load_dword v{self.vGo}, v{self.vGa}, {sr(sDBG, 4)}, 0 offen sc1")
            comp(g0)
            reads(g0 + 3)
            comp(g0 + 1)
            comp(g0 + 2)
        if not atm:
            comp(31)
            a("s_nop 10")
            for k in range(4):
                kv_store(k >> 1, k & 1)
        self.stamp("KVst", "M")

    def kv_flag(self):
        a = self.a
        ok = self.lab("go")
        a(f"""s_lshr_b32 s{sT0}, s{sC}, 1
            s_lshl_b32 s{sT0}, s{sT0}, 4
            s_add_u32 s{sT0}, s{sT0}, s{sR}
            s_lshl_b32 s{sT0}, s{sT0}, 7
            s_add_u32 s{sT0}, s{sT0}, {CKV}
            s_waitcnt vmcnt({4 + len(a.vm.q)})
            v_cmp_gt_u32 vcc, 32, v{self.vGo}
            s_cbranch_vccz {ok}""")
        q = list(a.vm.q)
        self.poll(self.vGa, "0", self.vGo, sDBG)
        a.vm.q = q
        a.label(ok)

    def issue_f(self, n):
        a = self.a
        sCh, sO, sFB, sLf = sT0 + 4, sT0 + 5, sT0 + 6, sT0 + 7
        if n == 0:
            a(f"s_lshl_b32 s{sFB}, s{sC}, 7\ns_mul_i32 s{sLf}, s{sT}, {FROW}")
        if n == 8:
            a(f"""s_lshl_b32 s{sFB}, s{sTK}, 6
                s_add_u32 s{sFB}, s{sFB}, 2048
                s_cmp_lt_u32 s{sTK}, 11
                s_cselect_b32 s{sFB}, s{sFB}, {OOB}""")
        self.chunk(sCh, n & 7)
        if n >= 8:
            a(f"s_and_b32 s{sCh}, s{sCh}, 3")
        a(f"s_mul_i32 s{sO}, s{sCh}, 176128\ns_add_u32 s{sO}, s{sO}, s{sFB}\ns_add_u32 s{sCh}, s{sO}, 22016")
        pol = "nt" if self.cfg["ntmask"] >> n & 1 else ""
        for m in range(2):
            for k in range(2):
                a(f"s_add_u32 m0, s{sLf}, {fslot(n) + FMAT * m + 1024 * k}\ns_nop 0")
                a(f"buffer_load_dwordx4 v{self.vF + (n >> 3)}, {sr(sWG if m == 0 else sWU, 4)}, s{(sO, sCh)[k]} offen {pol} lds")
                a.vm.issue(("F", n))

    def touch(self, i):
        a = self.a
        sA = sT0 + 8
        a(f"""s_lshr_b32 s{sA}, s2, 3
            s_lshl_b32 s{sA}, s{sA}, 2
            s_add_u32 s{sA}, s{sA}, s{sT}
            s_mul_i32 s{sA}, s{sA}, 11008
            s_add_u32 s{sA}, s{sA}, {2048 * i}
            s_mov_b32 m0, {CNT + 64}
            s_mov_b64 exec, {'0x3f' if i == 5 else '0xffff'}
            buffer_load_dword v{self.v1_}, {sr(sWD, 4)}, s{sA} offen lds
            s_mov_b64 exec, -1""")
        a.vm.issue("touch")

    def touch_b(self, k):
        a = self.a
        sA = sT0 + 8
        a(f"""s_lshr_b32 s{sA}, s2, 3
            s_lshl_b32 s{sA}, s{sA}, 2
            s_add_u32 s{sA}, s{sA}, s{sT}
            s_mul_i32 s{sA}, s{sA}, 11008
            s_add_u32 s{sA}, s{sA}, {2048 + 5504 * (k & 1)}
            s_mov_b32 m0, {CNT + 64}
            s_mov_b64 exec, 0x7f7f
            buffer_load_dword v97, {sr(sWG if k < 2 else sWU, 4)}, s{sA} offen lds
            s_mov_b64 exec, -1""")
        a.vm.issue("touch")

    def issue_wo(self, lo, hi):
        a = self.a
        sA, sL = sT0 + 8, sT0 + 9
        a(f"""s_lshl_b32 s{sA}, s{sT}, 17
            s_lshl_b32 s{sL}, s{sCB}, 7
            s_add_u32 s{sA}, s{sA}, s{sL}
            s_lshl_b32 s{sL}, s{sT}, 14""")
        for k in range(lo, hi):
            a(f"""s_add_u32 m0, s{sL}, {WOL + 1024 * k}
                s_add_u32 s{sA}, s{sA}, {8192 * (k if k == lo else 1)}
                buffer_load_dwordx4 v{self.vD}, {sr(sWO, 4)}, s{sA} offen lds""")
            a.vm.issue("wo")

    def pass_q(self):
        a = self.a
        XR, W, QACC = self.XR, self.WS_, 64
        a.lg.reset()
        a.vm.reset()
        flag_at, f0_at = self.cfg["kvflag_at"], self.cfg["f0_at"]

        def reads(g):
            for u in range(2):
                self.dsr("ds_read_b64_tr_b16", W + 4 * (g % 6) + 2 * u, 2, self.vQa, None, (16 * g + 4 * u) * 64, g)

        def hooks(j):
            if j == flag_at:
                a(f"s_waitcnt vmcnt({len(a.vm.q)})")
                self.stamp("KVack", "M")
                self.signal(sT0)
                if self.cfg["pwait"]:
                    self.lds_signal(self.vCnt, self.v1_, 48)
                self.stamp("KVflag", "M")
            if j == f0_at:
                self.issue_f(0)

        if self.cfg["qs"] % 10:
            a("s_barrier")
        self.kv_flag()
        hooks(-2)
        hooks(-1)
        self.stamp("F0iss", "M")
        a("s_barrier")
        self.stamp("BQ", "M")
        for g in range(6):
            reads(g)
        nxt = 6
        for g in range(32):
            a.lg.wait(g)
            d = vr(QACC, 16)
            a(f"v_mfma_f32_32x32x16_bf16 {d}, {vr(W + 4 * (g % 6), 4)}, {vr(XR + 4 * g, 4)}, {d if g else 0}")
            if nxt < 32:
                reads(nxt)
                nxt += 1
            hooks(g)
        a(f"v_mov_b32 v98, {f32(0.25 * LOG2E)}\ns_nop 10")
        for k in range(8):
            a(f"v_pk_mul_f32 {vr(QACC + 2 * k, 2)}, {vr(QACC + 2 * k, 2)}, v[98:99] op_sel_hi:[1,0]")
        for hd in range(2):
            for k in range(4 * hd, 4 * hd + 4):
                a(f"v_cvt_pk_bf16_f32 v{QACC + k}, v{QACC + 2 * k}, v{QACC + 2 * k + 1}")
            a(f"ds_write_b128 v{self.vQFa}, {vr(QACC + 4 * hd, 4)} offset:{4096 * hd}")
        self.lds_signal(self.vCnt, self.v1_, 16)
        self.stamp("Qdone", "M")
        hooks(32)

    def f_units(self, units, hook):
        a = self.a
        XR, ACC, W = self.XR, self.ACC, self.WS_
        jobs = [(n, jj) for n in units for jj in range(16)]
        todo = [(j, u) for j in range(len(jobs)) for u in range(2)]

        def parts(n, jj):
            hi, lo = jj >> 3, (jj >> 2) & 1
            k2, col = (hi, lo) if n < 8 else (lo, hi)
            pos = n if n < 8 else n - 8 + 4 * col
            acc = ACC + (32 * col if n < 8 else 0) + 16 * ((jj >> 1) & 1) + 4 * (jj & 1)
            return k2, col, pos, acc, (n, k2) == (0, 0) or (n, jj >> 2) == (8, 0)

        def reads(now, limit=99):
            while todo and todo[0][0] - 6 <= now and limit:
                limit -= 1
                j, u = todo.pop(0)
                n, jj = jobs[j]
                k2, col = parts(n, jj)[:2]
                self.dsr("ds_read_b64_tr_b16", W + 4 * (j % 6) + 2 * u, 2, self.vFlo, None,
                         fslot(n) + FMAT * ((jj >> 1) & 1) + 2 * FROW * k2 + 256 * u + 512 * col + 16 * (jj & 1), j)

        reads(-1)
        for j, (n, jj) in enumerate(jobs):
            k2, col, pos, acc, first = parts(n, jj)
            a.lg.wait(j)
            for th in range(2):
                d = vr(acc + 8 * th, 4)
                a(f"v_mfma_f32_16x16x32_bf16 {d}, {vr(W + 4 * (j % 6), 4)}, {vr(XR + 16 * pos + 8 * k2 + 4 * th, 4)}, {0 if first else d}")
                if th == 0:
                    reads(j - 1)
            hook(n, jj)
            reads(j, 1)

    def landed(self, *units):
        self.a.vm.wait(*[("F", n) for n in units])
        self.lds_signal(self.vCnt, self.v1_, 0)

    def pass_fa(self):
        a = self.a
        cfg, XR = self.cfg, self.XR
        a(f"s_setprio {cfg['prio_cv']}")
        for k in range(16):
            for q in range(4):
                a(f"v_permlane16_swap_b32 v{XR + 8 * k + q}, v{XR + 8 * k + 4 + q}")
        self.lds_probe(self.vCnt, self.vTmp, 20)
        self.lds_check(self.vCnt, self.vTmp, 20, 4)
        self.issue_f(1)
        self.landed(0)
        self.lds_probe(self.vCnt, self.vTmp, 0)
        self.lds_check(self.vCnt, self.vTmp, 0, 16)
        a(f"s_setprio {cfg['prio_m']}")
        self.stamp("F0", "M")
        tk0, tk1, tk2 = cfg["tk0"], cfg["tk0"] + cfg["tkd"], cfg["tk2"]

        def hook(n, jj):
            j = 16 * n + jj
            if jj == 15:
                self.stamp(f"f{n}", "M")
            if j == 12:
                self.lds_probe(self.vCnt, self.vTmp, 24)
            if j == 14:
                self.lds_check(self.vCnt, self.vTmp, 24, 4)
            if n < 7:
                if jj == (cfg["sig_at"] if n else cfg["sig0"]):
                    self.landed(n + 1)
                    if n < 6:
                        self.issue_f(n + 2)
                if jj == cfg["wo_at"] and n:
                    if cfg["tb"] and cfg["tb"] <= n < cfg["tb"] + 4:
                        self.touch_b(n - cfg["tb"])
                    if not cfg["tlate"]:
                        self.touch(n - 1)
                    self.issue_wo(*((0, 3), (3, 6), (6, 9), (9, 12), (12, 14), (14, 16))[n - 1])
                if jj == 8:
                    self.lds_probe(self.vCnt, self.vTmp, 0)
                if jj == 10:
                    self.lds_check(self.vCnt, self.vTmp, 0, 16 * (n + 2))
            if j in (tk0, tk1):
                back = "L_tk_back%d" % (j == tk1)
                a(f"s_cmp_eq_u32 s{sT}, 0\ns_cbranch_scc1 L_tk{int(j == tk1)}")
                a.label(back)
            if j == tk2 - 2:
                self.lds_probe(self.vCnt, self.vTmp, 56)
            if j == tk2:
                self.lds_check(self.vCnt, self.vTmp, 56, 1)
                a(f"v_readfirstlane_b32 s{sTK}, v{self.vTmp}\ns_sub_u32 s{sTK}, s{sTK}, 1")
                self.stamp("ticket", "M")
                self.issue_f(8)
            if j == 127 and not cfg["u9"]:
                self.issue_f(9)

        self.f_units(range(8), hook)
        self.stamp("Fadone", "M")

    def ticket(self):
        a = self.a
        a.label("L_tk0")
        a.lg.reset()
        self.lds_probe(self.vCnt, self.vTmp, 52)
        self.lds_check(self.vCnt, self.vTmp, 52, 4, nap=1)
        a(f"""s_lshl_b32 s{sPV}, s{sR}, 7
            s_add_u32 s{sPV}, s{sPV}, {TK}
            s_mov_b32 s{sTK}, 1
            s_atomic_add s{sTK}, {sr(sWS, 2)}, s{sPV} glc
            s_branch L_tk_back0""")
        a.label("L_tk1")
        fixed = self.cfg["fixtk"]
        a(f"""s_waitcnt lgkmcnt(0)
            s_add_u32 s{sTK}, s{sC if fixed else sTK}, 1
            v_mov_b32 v{self.vTmp}, s{sTK}
            ds_write_b32 v{self.vCnt}, v{self.vTmp} offset:56
            s_waitcnt lgkmcnt(0)
            s_branch L_tk_back1""")

    def h_signal(self, base, quarter):
        a = self.a
        sA, sB = sT0 + 8, sT0 + 9
        a(f"""s_lshl_b32 s{sA}, s{sR}, 1
            s_lshr_b32 s{sB}, s{sT}, 1
            s_add_u32 s{sA}, s{sA}, s{sB}
            s_lshl_b32 s{sA}, s{sA}, 2
            {quarter.format(d=sB)}
            s_add_u32 s{sA}, s{sA}, s{sB}
            s_lshl_b32 s{sA}, s{sA}, 7
            s_add_u32 s{sA}, s{sA}, {base}""")
        self.signal(sA)

    def gelu(self, tiles, first, c0, T, OUT, lead, gaps):
        a = self.a
        ACC, vOff, c1, sH = self.ACC, self.vF + 2, c0 + 2, sT0 + 12
        k0 = -2.0 * 0.7978845608028654 * LOG2E
        a(f"""s_setprio {self.cfg['prio_gelu']}
            s_lshl_b32 s{sH}, s{sR}, 2
            s_add_u32 s{sH}, s{sH}, s{sT}
            s_mul_i32 s{sH}, s{sH}, 86
            {first.format(d=sH + 1)}
            s_add_u32 s{sH}, s{sH}, s{sH + 1}
            s_lshl_b32 s{sH}, s{sH}, 10
            s_add_u32 s{sH}, s{sH}, {WS_H}""")
        lead()
        a.raw(".p2align 3")
        a(f"""v_mov_b32 v{c0}, {f32(k0)}
            v_mov_b32 v{c0 + 1}, {f32(k0)}
            v_mov_b32 v{c1}, {f32(k0 * 0.044715)}
            v_mov_b32 v{c1 + 1}, {f32(k0 * 0.044715)}""")

        def stores(j):
            for q in range(2):
                a(f"buffer_store_dwordx4 {vr(OUT + 8 * j + 4 * q, 4)}, v{vOff}, {sr(sWS, 4)}, s{sH} offen offset:{2048 * j + 256 * q} sc1")
                a.vm.issue("H")

        for j in range(tiles):
            G, U = ACC + 32 * j, ACC + 32 * j + 16
            p = lambda b, k: vr(b + 2 * k, 2)
            for k in range(8):
                if j == 0 and k < self.cfg["plain"]:
                    a(f"v_mul_f32 v{T + 2 * k}, v{G + 2 * k}, v{G + 2 * k}\nv_mul_f32 v{T + 2 * k + 1}, v{G + 2 * k + 1}, v{G + 2 * k + 1}")
                else:
                    a(f"v_pk_mul_f32 {p(T, k)}, {p(G, k)}, {p(G, k)}")
            for k in range(8):
                a(f"v_pk_fma_f32 {p(T, k)}, {p(T, k)}, {vr(c1, 2)}, {vr(c0, 2)}")
            for k in range(8):
                a(f"v_pk_mul_f32 {p(T, k)}, {p(T, k)}, {p(G, k)}")
            if j:
                stores(j - 1)
            gaps(2 * j)
            a.raw(".p2align 3")
            for k in range(16):
                a(f"v_exp_f32 v{T + k}, v{T + k}")
            for k in range(8):
                a(f"v_pk_mul_f32 {p(G, k)}, {p(G, k)}, {p(U, k)}")
            for k in range(8):
                a(f"v_pk_add_f32 {p(T, k)}, {p(T, k)}, 1.0 op_sel_hi:[1,0]")
            gaps(2 * j + 1)
            a.raw(".p2align 3")
            for k in range(16):
                a(f"v_rcp_f32 v{T + k}, v{T + k}")
            for k in range(8):
                a(f"v_pk_mul_f32 {p(G, k)}, {p(G, k)}, {p(T, k)}")
            for k in range(8):
                a(f"v_cvt_pk_bf16_f32 v{OUT + 8 * j + k}, v{G + 2 * k}, v{G + 2 * k + 1}")
        stores(tiles - 1)

    def gelu_a(self):
        a = self.a
        self.gelu(2, f"s_lshl_b32 s{{d}}, s{sC}, 2", 8, 96, 112, lambda: a(f"v_add_u32 v{self.vD2}, 7168, v{self.vD}"),
                  lambda n: self.issue_f(9) if n + 1 == self.cfg["u9"] else None)
        self.landed(8, 9)
        self.lds_probe(self.vCnt, self.vTmp, 0)
        self.lds_check(self.vCnt, self.vTmp, 0, 144)
        a(f"s_setprio {self.cfg['prio_m']}")
        self.stamp("gelua", "M")

    def h_look(self):
        sFl = sT0 + 10
        self.a(f"""s_lshl_b32 s{sFl}, s{sRB}, 2
            s_add_u32 s{sFl}, s{sFl}, s{sT}
            s_lshl_b32 s{sFl}, s{sFl}, 7
            s_add_u32 s{sFl}, s{sFl}, {CH}
            s_mov_b32 s{sPV}, 0
            s_atomic_add s{sPV}, {sr(sWS, 2)}, s{sFl} glc""")

    def pass_fb(self):
        a = self.a
        cfg, rchk = self.cfg, self.cfg["rchk"]
        self.issue_f(10)

        def hook(n, jj):
            if (n, jj) == (8, 6):
                a.vm.wait("H")
                self.h_signal(CH, f"s_lshr_b32 s{{d}}, s{sC}, 2")
                self.issue_f(11)
            if cfg["tlate"] == 1 and n < 11 and jj in (2, 12):
                self.touch(2 * (n - 8) + (jj == 12))
            if (n, jj) == (9, cfg["sig_at"]):
                self.landed(10, 11)
            if (n, jj) == (9, 8):
                self.lds_probe(self.vCnt, self.vTmp, 0)
            if (n, jj) == (9, 10):
                self.lds_check(self.vCnt, self.vTmp, 0, 160)
            if n == 11:
                if jj == 0:
                    self.lds_signal(self.vCnt, self.v1_, 28)
                    self.ffn2_scalars()
                if jj == rchk - 2:
                    self.lds_probe(self.vCnt, self.vTmp, 28)
                if jj == rchk:
                    self.lds_check(self.vCnt, self.vTmp, 28, 16)
                k = jj - rchk
                if k >= 0 and k % 2 == 0 and k < 12:
                    self.issue_w(k // 2)

        assert rchk <= 5
        self.f_units(range(8, 12), hook)
        self.lds_signal(self.vCnt, self.v1_, 0)
        self.stamp("Fdone", "M")

        def gaps(n):
            if n == 0:
                self.lds_probe(self.vCnt, self.vTmp, 0)
            else:
                self.lds_check(self.vCnt, self.vTmp, 0, 176)
                self.h_look()
                for k in range(6, 9):
                    self.issue_w(k)

        self.gelu(1, f"s_lshl_b32 s{{d}}, s{sTK}, 1\ns_add_u32 s{{d}}, s{{d}}, 64", 72, 96, 64, self.ffn2_setup, gaps)

    def skipper(self):
        a = self.a
        XR, GB, Z, vO = self.XR, 32, 96, 104
        sCh = sT0 + 4
        a.vm.drain()
        self.h_signal(CH, f"s_lshr_b32 s{{d}}, s{sC}, 2")
        a(f"v_mov_b32 v{self.vTmp}, 8")
        a.lg.reset()
        self.lds_signal(self.vCnt, self.vTmp, 0)
        a(f"s_setprio {self.cfg['prio_gelu']}\ns_cmp_lg_u32 s{sTK}, 11\ns_cbranch_scc1 L_nologit")
        self.lane(vO + 1)
        a(f"""v_lshrrev_b32 v{vO}, 5, v{vO + 1}
            v_lshlrev_b32 v{vO}, 4, v{vO}
            v_bfe_u32 v{vO + 2}, v{vO + 1}, 4, 1
            v_lshl_add_u32 v{vO}, v{vO + 2}, 5, v{vO}
            v_lshlrev_b32 v{vO + 1}, 2, v{vO + 1}""")
        for i in range(8):
            self.chunk(sCh, i)
            a(f"s_lshl_b32 s{sCh}, s{sCh}, 7")
            for k in range(2):
                a(f"buffer_load_dwordx4 {vr(GB + 8 * i + 4 * k, 4)}, v{vO}, {sr(sGW, 4)}, s{sCh} offen offset:{64 * k}")
        a(f"""s_lshl_b32 s{sCh}, s{sR}, 2
            s_add_u32 s{sCh}, s{sCh}, s{sT}
            s_lshl_b32 s{sCh}, s{sCh}, 7
            s_add_u32 s{sCh}, s{sCh}, {WS_G}
            s_waitcnt vmcnt(0)""")
        for kk in range(16):
            for th in range(2):
                d = vr(Z + 4 * th, 4)
                a(f"v_mfma_f32_16x16x32_bf16 {d}, {vr(GB + 4 * kk, 4)}, {vr(XR + 8 * kk + 4 * th, 4)}, {d if kk else 0}")
        a(f"""s_nop 6
            s_mov_b64 exec, 0xffff
            buffer_store_dword v{Z}, v{vO + 1}, {sr(sWS, 4)}, s{sCh} offen sc1
            buffer_store_dword v{Z + 4}, v{vO + 1}, {sr(sWS, 4)}, s{sCh} offen offset:64 sc1
            s_mov_b64 exec, -1
            s_waitcnt vmcnt(0)""")
        self.h_signal(CHB, "s_mov_b32 s{d}, 0")
        for k in range(3):
            a(f"s_add_u32 s{sT0 + 8}, s{sT0 + 8}, 128")
            self.signal(sT0 + 8)
        a.label("L_nologit")
        if self.cfg["tlate"] == 1:
            for k in range(6):
                self.touch(k)
        self.ffn2_scalars()
        self.ffn2_setup()
        a.vm.reset()
        for k in range(9):
            self.issue_w(k)
            self.cap()
        self.h_look()

    vL, vH, vA0, vA1, vRel, vDump, vP, vZ, vD2, vH2, vT0, vB0, vB1 = 8, 10, 11, 12, 13, 15, 16, 17, 2, 19, 9, 14, 18

    sRB2 = 4
    FS = (5, 6, 7, 8, 9, 10, 11, sT0 + 12, sT0 + 13, sT0 + 14)

    def ffn2_scalars(self):
        a = self.a
        sRing, sS0, sS1, sKw, sW0, sKh, sH0 = range(sT0, sT0 + 7)
        a(f"""s_mul_i32 s{sRing}, s{sT}, 12288
            s_mul_i32 s{self.sRB2}, s{sT}, 6144
            s_add_u32 s{self.sRB2}, s{self.sRB2}, {SEGB}
            s_and_b32 s{sKw}, s{sRB}, 3
            s_lshl_b32 s{sKw}, s{sKw}, 1
            s_add_u32 s{sKw}, s{sKw}, s{sCB}
            s_lshl_b32 s{sKw}, s{sKw}, 1
            s_and_b32 s{sKw}, s{sKw}, {15 if self.cfg['rot2'] else 0}
            s_mov_b32 s{sKh}, s{sKw}
            s_lshl_b32 s{sW0}, s{sT}, 18
            s_lshl_b32 s{sS0}, s{sCB}, 7
            s_add_u32 s{sW0}, s{sW0}, s{sS0}
            s_mul_i32 s{sH0}, s{sRB}, 172
            s_lshl_b32 s{sS0}, s{sT}, 4
            s_add_u32 s{sH0}, s{sH0}, s{sS0}
            s_lshl_b32 s{sH0}, s{sH0}, 10
            s_add_u32 s{sH0}, s{sH0}, {WS_H}""")

    def next_step(self, s, sK):
        if 0 < s < 16:
            self.a(f"s_add_u32 s{sK}, s{sK}, 1\ns_and_b32 s{sK}, s{sK}, 15")
        elif s == 16:
            self.a(f"s_mul_i32 s{sK}, s{sT}, 10\ns_sub_u32 s{sK}, 64, s{sK}")
        elif s:
            self.a(f"s_add_u32 s{sK}, s{sK}, 1")

    def cap(self):
        a, CAP = self.a, self.cfg["cap"]
        if len(a.vm.q) > CAP:
            a.vm.q = a.vm.q[len(a.vm.q) - CAP:]
            a(f"s_waitcnt vmcnt({CAP})")

    def issue_w(self, s):
        a = self.a
        sRing, sS0, sS1, sKw, sW0 = range(sT0, sT0 + 5)
        a(f"s_add_u32 m0, s{sRing if WSLOT[s] < 6 else self.sRB2}, {(WSLOT[s] % 6) * 2048}")
        self.next_step(s, sKw)
        a(f"s_lshl_b32 s{sS1}, s{sKw}, 14\ns_add_u32 s{sS1}, s{sS1}, s{sW0}")
        a(f"buffer_load_dwordx4 v{self.vD}, {sr(sWD, 4)}, s{sS1} offen lds")
        a(f"buffer_load_dwordx4 v{self.vD2}, {sr(sWD, 4)}, s{sS1} offen offset:1024 lds")
        a.vm.issue(("w", s))
        a.vm.issue(("w", s))

    @staticmethod
    def wreg(s):
        return 96 + 8 * (s % 3) if s < 16 else 128 + 8 * (s - 16)

    def w_reads(self, s):
        self.a.vm.wait(("w", s))
        regs = (self.vA0, self.vA1) if WSLOT[s] < 6 else (self.vB0, self.vB1)
        for ct in range(2):
            for u in range(2):
                self.dsr("ds_read_b64_tr_b16", self.wreg(s) + 4 * ct + 2 * u, 2, regs[ct], None,
                         (WSLOT[s] % 6) * 2048 + 1024 * u, (s, ct))

    def ffn2_setup(self):
        a = self.a
        vL, vH, vA0, vA1, vRel, vDump, vP, vZ, vH2, vT0 = (self.vL, self.vH, self.vA0, self.vA1, self.vRel, self.vDump, self.vP,
                                                           self.vZ, self.vH2, self.vT0)
        sRing, sS0 = sT0, sT0 + 1
        self.lane(vL)
        a(f"""v_lshlrev_b32 v{vP}, 4, v{vL}
            s_and_b32 s{sS0}, s{sT}, 1
            s_mul_i32 s{sS0}, s{sS0}, 88064
            v_add_u32 v{vH}, s{sS0}, v{vP}
            s_sub_u32 s{sS0}, 88064, s{sS0}
            v_add_u32 v{vH2}, s{sS0}, v{vP}
            v_add_u32 v{vDump}, s{sRing}, v{vP}
            v_lshrrev_b32 v20, 5, v{vL}
            v_bfe_u32 v21, v{vL}, 2, 2
            v_lshl_add_u32 v20, v20, 2, v21
            v_and_b32 v21, 1, v{vL}
            v_lshlrev_b32 v21, 2, v21
            v_bfe_u32 v22, v{vL}, 4, 1
            v_lshl_add_u32 v21, v22, 1, v21
            v_bfe_u32 v23, v{vL}, 1, 1
            v_add_u32 v21, v21, v23
            v_lshlrev_b32 v21, 3, v21
            v_lshl_add_u32 v21, v20, 7, v21
            v_bfe_u32 v23, v{vL}, 3, 1
            v_lshl_add_u32 v21, v23, 6, v21
            s_lshr_b32 s{sS0}, s{sT}, 1
            s_lshl_b32 s{sS0}, s{sS0}, 6
            v_xor_b32 v{vT0}, s{sS0}, v21
            v_add_u32 v{vA0}, s{sRing}, v{vT0}
            v_xor_b32 v{vA1}, 64, v{vA0}
            v_add_u32 v{self.vB0}, s{self.sRB2}, v{vT0}
            v_xor_b32 v{self.vB1}, 64, v{self.vB0}
            s_lshl_b32 s{sS0}, s{sT}, 2
            v_add_u32 v{vRel}, s{sS0}, v{self.vCnt}
            v_and_b32 v{vZ}, 31, v{vL}
            v_lshlrev_b32 v30, 10, v{vZ}
            v_lshlrev_b32 v{vZ}, 2, v{vZ}
            v_lshrrev_b32 v20, 5, v{vL}
            v_lshl_add_u32 v30, v20, 5, v30
            v_add_u32 v31, s{self.sRB2}, v{vP}
            s_xor_b32 s{sS0}, s{sT}, 2
            s_mul_i32 s{sS0}, s{sS0}, 6144
            s_add_u32 s{sS0}, s{sS0}, {SEGB}
            v_add_u32 v20, s{sS0}, v{vP}""")
        for reg, d in ((21, 2), (22, 1), (23, 3)):
            a(f"s_xor_b32 s{sS0}, s{sT}, {d}\ns_mul_i32 s{sS0}, s{sS0}, 12288\nv_add_u32 v{reg}, s{sS0}, v{vP}")

    def ffn2(self):
        a = self.a
        ACC = 32
        vH, vDump, vZ, vH2 = self.vH, self.vDump, self.vZ, self.vH2
        sRing, sS0, sS1, sKw, sW0, sKh, sH0 = range(sT0, sT0 + 7)
        sFl, sNeed = sT0 + 10, sT0 + 11
        NS, PD = 22, self.cfg["pd"]
        issue_w, reads, wreg = self.issue_w, self.w_reads, self.wreg
        hreg = lambda s: 176 + 8 * (s % 10)
        a(f"s_setprio {self.cfg['prio_m']}")
        a.lg.reset()
        a.vm.reset()
        a.vm.issue("pre")

        def arrived(need):
            ready = self.lab("hready")
            a.lg.drain()
            a(f"s_cmp_ge_u32 s{sPV}, {need}\ns_cbranch_scc1 {ready}")
            self.spoll(sFl, need)
            a.label(ready)

        def issue_h(s):
            if s == 16:
                arrived(f"s{sNeed}")
                self.stamp("Hbpoll", "M")
                a(f"""s_lshl_b32 s{sFl}, s{sRB}, 1
                    s_and_b32 s{sS0}, s{sT}, 1
                    s_add_u32 s{sFl}, s{sFl}, s{sS0}
                    s_lshl_b32 s{sFl}, s{sFl}, 7
                    s_add_u32 s{sFl}, s{sFl}, {WS_G}
                    buffer_load_dword v{vZ}, v{vZ}, {sr(sWS, 4)}, s{sFl} offen sc1""")
                a.vm.issue("z")
            self.next_step(s, sKh)
            a(f"s_lshl_b32 s{sS0}, s{sKh}, 10\ns_add_u32 s{sS0}, s{sS0}, s{sH0}")
            if s >= 20:
                a(f"s_cmp_eq_u32 s{sT}, 3\ns_cselect_b32 s{sS0}, {OOB}, s{sS0}")
            for tt in range(2):
                a(f"buffer_load_dwordx4 {vr(hreg(s) + 4 * tt, 4)}, v{(vH, vH2)[tt]}, {sr(sWS, 4)}, s{sS0} offen sc1")
                a.vm.issue(("h", s))

        arrived(8)
        self.stamp("Hpoll", "M")
        for s in range(PD):
            issue_h(s)
        a.vm.wait("pre")
        reads(0)
        reads(1)
        skip = self.lab("nosig")
        a(f"s_cmp_ge_u32 s{sTK}, 11\ns_cbranch_scc1 {skip}")
        self.h_signal(CHB, f"s_mul_i32 s{{d}}, s{sTK}, 11\ns_lshr_b32 s{{d}}, s{{d}}, 5")
        a.label(skip)
        nh = PD
        hb = self.cfg["hb"]

        def mm(s, ct, tt):
            a.vm.wait(("h", s))
            a.lg.wait((s, ct))
            d = vr(ACC + 32 * tt + 16 * ct, 16)
            a(f"v_mfma_f32_32x32x16_bf16 {d}, {vr(wreg(s) + 4 * ct, 4)}, {vr(hreg(s) + 4 * tt, 4)}, {d if s else 0}")

        def hold(s):
            if s == self.cfg["hold"]:
                self.lds_probe(self.vRel, self.vTmp, 32)
                self.lds_check(self.vRel, self.vTmp, 32, 1, nap=2)
                self.o_look()

        for s in range(16):
            self.stamp(f"s{s}", "M")
            hold(s)
            if s == hb - 2:
                a(f"""s_add_u32 s{sFl}, s{sFl}, {CHB - CH}
                    s_cmp_eq_u32 s{sT}, 3
                    s_cselect_b32 s{sNeed}, 6, 8
                    s_mov_b32 s{sPV}, 0
                    s_atomic_add s{sPV}, {sr(sWS, 2)}, s{sFl} glc""")
            if s == hb + 1:
                self.final_setup()
            for k in range(4):
                mm(s, *divmod(k, 2))
                if (k == 0 or (k == 2 and s >= 13)) and nh < NS and (nh < 16 or s >= hb):
                    issue_h(nh)
                    nh += 1
                if k == 1:
                    reads(s + 2)
                if k == 2 and s < 13:
                    issue_w(s + 9)
                if k == 3 and s >= 14:
                    reads(s + 4)
        while nh < NS:
            issue_h(nh)
            nh += 1
        reads(20)
        reads(21)
        hold(16)
        self.stamp("s16", "M")
        for n, (ct, tt) in enumerate(((0, 1), (1, 0), (1, 1), (0, 0))):
            for s in range(16, NS):
                mm(s, ct, tt)
                if n and s >= 18:
                    k = (8, 4, 12)[n - 1] + s - 18
                    if s == 18:
                        a(("s_nop 3", "s_nop 6", "s_nop 8")[n - 1])
                    a(f"ds_write_b128 v{vDump}, {vr(ACC + 4 * k, 4)} offset:{1024 * (k - 4)}")
                if n and 6 * (n - 1) + s - 16 < 9:
                    self.early_o(6 * (n - 1) + s - 16)
                if 6 * n + s - 16 == self.cfg["look2"]:
                    self.o_look()
        self.lds_signal(self.vCnt, self.v1_, 4)
        self.stamp("s22", "M")

    def final_setup(self):
        a = self.a
        sFl, sOut, sO, sA, sTT, sKh, sF2, sG, sE, sX = self.FS
        a(f"""s_and_b32 s{sTT}, s{sT}, 1
            s_lshr_b32 s{sKh}, s{sT}, 1
            s_lshl_b32 s{sFl}, s{sRB}, 1
            {f"s_add_u32 s{sFl}, s{sFl}, s{sTT}" if self.cfg['ott'] else ""}
            {f"s_lshl_b32 s{sFl}, s{sFl}, 1" if self.cfg['ott'] else ""}
            s_add_u32 s{sFl}, s{sFl}, s{sKh}
            s_lshl_b32 s{sFl}, s{sFl}, 8
            s_add_u32 s{sFl}, s{sFl}, {CO}
            s_add_u32 s{sF2}, s{sFl}, 128
            s_mov_b32 s{sPV}, 0
            s_mov_b32 s{sA}, 0
            s_atomic_add s{sPV}, {sr(sWS, 2)}, s{sFl} glc
            s_atomic_add s{sA}, {sr(sWS, 2)}, s{sF2} glc
            s_lshl_b32 s{sOut}, s{sRB}, 1
            s_add_u32 s{sOut}, s{sOut}, s{sTT}
            s_lshl_b32 s{sO}, s{sOut}, 5
            s_lshl_b32 s{sG}, s{sKh}, 4
            s_add_u32 s{sO}, s{sO}, s{sG}
            s_lshl_b32 s{sO}, s{sO}, 10
            s_add_u32 s{sO}, s{sO}, {WS_O}
            s_lshl_b32 s{sOut}, s{sOut}, 15
            s_lshl_b32 s{sG}, s{sCB}, 7
            s_add_u32 s{sOut}, s{sOut}, s{sG}
            s_lshl_b32 s{sG}, s{sKh}, 6
            s_add_u32 s{sOut}, s{sOut}, s{sG}""")

    @staticmethod
    def of(s):
        return 96 + 4 * s if s < 14 else 200 + 4 * (s - 14)

    def oloads(self, h, sO):
        a = self.a
        for s in range(8 * h, 8 * h + 8):
            if s % 8 == 4:
                a(f"s_add_u32 s{sO}, s{sO}, 4096")
            a(f"buffer_load_dwordx4 {vr(self.of(s), 4)}, v{self.vP}, {sr(sWS, 4)}, s{sO} offen offset:{1024 * (s % 4)} sc1")
            a.vm.issue(s)

    def o_look(self):
        sFl, sOut, sO, sA, sTT, sKh, sF2, sG, sE, sX = self.FS
        self.a(f"""s_mov_b32 s{sPV}, 0
            s_mov_b32 s{sA}, 0
            s_atomic_add s{sPV}, {sr(sWS, 2)}, s{sFl} glc
            s_atomic_add s{sA}, {sr(sWS, 2)}, s{sF2} glc""")

    def o_pick(self):
        sFl, sOut, sO, sA, sTT, sKh, sF2, sG, sE, sX = self.FS
        self.a(f"""s_cmp_lt_u32 s{sPV}, 8
            s_cselect_b32 s{sG}, 1, 0
            s_lshl_b32 s{sX}, s{sG}, 13
            s_add_u32 s{sT0 + 1}, s{sO}, s{sX}
            s_add_u32 s{sX}, s{sT0 + 1}, 4096""")

    def oload(self, s, lo, hi):
        self.a(f"buffer_load_dwordx4 {vr(self.of(s), 4)}, v{self.vP}, {sr(sWS, 4)}, s{lo if s % 8 < 4 else hi} offen offset:{1024 * (s % 4)} sc1")

    def early_o(self, n):
        a = self.a
        sFl, sOut, sO, sA, sTT, sKh, sF2, sG, sE, sX = self.FS
        if n == 0:
            a.vm.drain()
            a.lg.drain()
            self.o_pick()
            a(f"s_max_u32 s{sE}, s{sPV}, s{sA}\ns_lshr_b32 s{sE}, s{sE}, 3")
            return
        skip = self.lab("noearly")
        a(f"s_cbranch_scc0 {skip}")
        self.oload(n - 1, sT0 + 1, sX)
        a.label(skip)

    def final(self):
        a = self.a
        B, PT, OWN, OTH = 32, 48, 152, 168
        WO = lambda s: (184, 192, 208, 216, 224, 232, 240, 248)[s % 8]
        vL, vH, vX, vZ, vA0, vA1 = self.vL, self.vP, self.vDump, self.vZ, self.vA0, self.vA1
        vOut, vG, vP1, vP2, vP3, vB0, vB1, vXp, vX = 30, 2, 21, 22, 23, self.vB0, self.vB1, 20, 31
        sFl, sOut, sO, sA, sTT, sKh, sF2, sG, sE, sX = self.FS
        top, got, loaded, join = self.lab("opoll"), self.lab("ogot"), self.lab("oloaded"), self.lab("ojoin")
        a.lg.reset()
        a(f"""s_cmp_lg_u32 s{sE}, 0
            s_cbranch_scc1 {loaded}
            s_mov_b32 s{sSPIN}, 200000""")
        a.label(top)
        a(f"""s_waitcnt lgkmcnt(0)
            s_max_u32 s{sE}, s{sPV}, s{sA}
            s_cmp_ge_u32 s{sE}, 8
            s_cbranch_scc1 {got}""")
        self.o_look()
        a(f"""s_sub_u32 s{sSPIN}, s{sSPIN}, 1
            s_cbranch_scc0 {top}
            s_waitcnt lgkmcnt(0)""")
        a.label(got)
        self.o_pick()
        self.stamp("Opoll", "M")
        a.vm.reset()
        for s in range(8):
            self.oload(s, sT0 + 1, sX)
            a.vm.issue(s)
        self.o_look()
        a.label(loaded)
        a(f"s_xor_b32 s{sO}, s{sT0 + 1}, 0x2000")
        a(f"""s_xor_b32 s{sF2}, s{sG}, 1
            s_lshl_b32 s{sF2}, s{sF2}, 7
            s_add_u32 s{sF2}, s{sF2}, s{sFl}
            s_lshl_b32 s{sX}, s{sKh}, 1
            s_add_u32 s{sG}, s{sG}, s{sX}
            s_lshl_b32 s{sX}, s{sG}, 14
            s_add_u32 s{sX}, s{sX}, {WOL}
            v_add_u32 v{vA0}, s{sX}, v{self.vT0}
            s_xor_b32 s{sG}, s{sG}, 1
            s_lshl_b32 s{sX}, s{sG}, 14
            s_add_u32 s{sX}, s{sX}, {WOL}
            v_add_u32 v{vB0}, s{sX}, v{self.vT0}
            v_xor_b32 v{vA1}, 64, v{vA0}
            v_xor_b32 v{vB1}, 64, v{vB0}""")
        a.lg.reset()

        def wreads(s):
            if s >= 16:
                return
            for ct in range(2):
                for u in range(2):
                    self.dsr("ds_read_b64_tr_b16", WO(s) + 4 * ct + 2 * u, 2, ((vA0, vA1), (vB0, vB1))[s >> 3][ct], None,
                             (s & 7) * 2048 + 1024 * u, ("wo", s))

        def step(s):
            a.vm.wait(s)
            a.lg.wait(("wo", s))
            w = WO(s)
            ot, ow = (vr(OTH, 16), vr(OWN, 16)) if s < 8 else (vr(PT + 32, 16), vr(PT + 16, 16))
            a(f"v_mfma_f32_32x32x16_bf16 {ot}, {vr(w + 4, 4)}, {vr(self.of(s), 4)}, {ot if s % 8 else 0}")
            wreads(s + 2)
            if s < 4:
                self.oload(8 + 2 * s, sT0 + 1, sX)
                a.vm.issue(8 + 2 * s)
            if 2 <= s < 8:
                i, h = divmod(s - 2, 2)
                for k in range(8 * h, 8 * h + 4):
                    a(f"v_add_f32 v{B + k}, v{B + k}, v{PT + 16 * i + k}")
            a(f"v_mfma_f32_32x32x16_bf16 {ow}, {vr(w, 4)}, {vr(self.of(s), 4)}, {ow if s % 8 else 0}")
            if s < 4:
                self.oload(9 + 2 * s, sT0 + 1, sX)
                a.vm.issue(9 + 2 * s)
            if s < 6:
                i, h = divmod(s, 2)
                for q in range(2 * h, 2 * h + 2):
                    self.dsr("ds_read_b128", PT + 16 * i + 4 * q, 4, (vP1, vP2, vP3)[i], None, 4096 * i + 1024 * q, ("wo", s + 2))
            if 2 <= s < 8:
                i, h = divmod(s - 2, 2)
                for k in range(8 * h + 4, 8 * h + 8):
                    a(f"v_add_f32 v{B + k}, v{B + k}, v{PT + 16 * i + k}")
            if 8 <= s < 12:
                for k in range(4 * (s - 8), 4 * (s - 8) + 4):
                    a(f"v_mul_f32 v{B + k}, v{B + k}, v{vG + 2}")

        self.lds_probe(self.vCnt, self.vTmp, 4)
        for s in range(2):
            wreads(s)
        a(f"""v_mul_f32 v{vG}, {f32(LOG2E)}, v{vZ}
            v_exp_f32 v{vG + 2}, v{vG}
            v_exp_f32 v{vG}, -v{vG}
            s_nop 0
            v_add_f32 v{vG + 2}, 1.0, v{vG + 2}
            v_add_f32 v{vG}, 1.0, v{vG}
            v_rcp_f32 v{vG + 2}, v{vG + 2}
            v_rcp_f32 v{vG}, v{vG}""")
        self.lds_check(self.vCnt, self.vTmp, 4, 16)
        self.stamp("msync", "M")
        a.lg.drain()
        a(f"""s_min_u32 s{sE}, s{sPV}, s{sA}
            s_lshr_b32 s{sE}, s{sE}, 3
            s_cselect_b32 s{sT0 + 1}, s{sO}, {OOB}
            s_add_u32 s{sX}, s{sT0 + 1}, 4096""")
        for s in range(8):
            step(s)
            if s == self.cfg["look3"]:
                a(f"s_mov_b32 s{sPV}, 0\ns_atomic_add s{sPV}, {sr(sWS, 2)}, s{sF2} glc")
        q, le = list(a.vm.q), list(a.lg.q)
        if self.cfg["otm"]:
            for s in range(10, 16):
                wreads(s)
                a.lg.wait(("wo", s - 2))
            le = list(a.lg.q)
        a(f"s_cmp_lg_u32 s{sE}, 0\ns_cbranch_scc1 {join}")
        self.stamp("g1done", "M")
        seen = self.lab("oseen")
        if self.cfg["look3"] < 8:
            a(f"s_waitcnt lgkmcnt(0)\ns_cmp_ge_u32 s{sPV}, 8\ns_cbranch_scc1 {seen}")
        self.spoll(sF2, 8)
        a.label(seen)
        self.stamp("late", "M")
        a.vm.drain()
        self.oloads(1, sO)
        assert a.vm.q == q
        a.lg.q = le
        a.label(join)
        if not self.cfg["otm"]:
            for s in range(8, 16):
                step(s)
            self.stamp("Omfma", "M")
            a("s_nop 10")
            for q in range(4):
                for k in range(4 * q, 4 * q + 4):
                    a(f"v_add_f32 v{OTH + k}, v{OTH + k}, v{PT + 32 + k}")
                a(f"ds_write_b128 v{vX}, {vr(OTH + 4 * q, 4)} offset:{1024 * q}")
            for k in range(8):
                a(f"v_pk_add_f32 {vr(OWN + 2 * k, 2)}, {vr(OWN + 2 * k, 2)}, {vr(PT + 16 + 2 * k, 2)}")
            for k in range(8):
                a(f"v_pk_fma_f32 {vr(B + 2 * k, 2)}, {vr(OWN + 2 * k, 2)}, {vr(vG, 2)}, {vr(B + 2 * k, 2)} op_sel_hi:[1,0,1]")
        else:
            for k in range(16):
                a(f"v_mul_f32 v{B + k}, v{B + k}, v{vG + 2}")
            for s in range(8, 16):
                a.vm.wait(s)
                a.lg.wait(("wo", s))
                ot = vr(PT + 32, 16)
                a(f"v_mfma_f32_32x32x16_bf16 {ot}, {vr(WO(s) + 4, 4)}, {vr(self.of(s), 4)}, {ot if s % 8 else 0}")
            for s in range(8, 16):
                ow = vr(PT + 16, 16)
                a(f"v_mfma_f32_32x32x16_bf16 {ow}, {vr(WO(s), 4)}, {vr(self.of(s), 4)}, {ow if s % 8 else 0}")
                if s == 8:
                    a("s_nop 5")
                if s == 9:
                    a("s_nop 3")
                if 9 <= s < 13:
                    q = s - 9
                    for k in range(4 * q, 4 * q + 4):
                        a(f"v_add_f32 v{OTH + k}, v{OTH + k}, v{PT + 32 + k}")
                    a(f"ds_write_b128 v{vX}, {vr(OTH + 4 * q, 4)} offset:{1024 * q}")
                if s == 13 and self.cfg["ebar"]:
                    a("s_waitcnt lgkmcnt(0)\ns_barrier")
                    for q in range(4):
                        a(f"ds_read_b128 {vr(PT + 4 * q, 4)}, v{vXp} offset:{1024 * q}")
            self.stamp("Omfma", "M")
            if self.cfg["ebar"]:
                for q in range(4):
                    a(f"s_waitcnt lgkmcnt({3 - q})")
                    for k in range(4 * q, 4 * q + 4):
                        a(f"v_fmac_f32 v{B + k}, v{PT + k}, v{vG}")
                for h in range(2):
                    ks = range(4 * h, 4 * h + 4)
                    for k in ks:
                        a(f"v_pk_add_f32 {vr(OWN + 2 * k, 2)}, {vr(OWN + 2 * k, 2)}, {vr(PT + 16 + 2 * k, 2)}")
                    for k in ks:
                        a(f"v_pk_fma_f32 {vr(B + 2 * k, 2)}, {vr(OWN + 2 * k, 2)}, {vr(vG, 2)}, {vr(B + 2 * k, 2)} op_sel_hi:[1,0,1]")
                    for k in ks:
                        a(f"v_cvt_pk_bf16_f32 v{PT + k}, v{B + 2 * k}, v{B + 2 * k + 1}")
                    a(f"buffer_store_dwordx4 {vr(PT + 4 * h, 4)}, v{vOut}, {sr(sOUT, 4)}, s{sOut} offen offset:{16 * h}")
                return
        a("s_waitcnt lgkmcnt(0)\ns_barrier")
        self.stamp("bar", "M")
        for q in range(4):
            a(f"ds_read_b128 {vr(PT + 4 * q, 4)}, v{vXp} offset:{1024 * q}")
        if self.cfg["otm"]:
            a("s_nop 5")
            for k in range(8):
                a(f"v_pk_add_f32 {vr(OWN + 2 * k, 2)}, {vr(OWN + 2 * k, 2)}, {vr(PT + 16 + 2 * k, 2)}")
            for k in range(8):
                a(f"v_pk_fma_f32 {vr(B + 2 * k, 2)}, {vr(OWN + 2 * k, 2)}, {vr(vG, 2)}, {vr(B + 2 * k, 2)} op_sel_hi:[1,0,1]")
        for q in range(4):
            a(f"s_waitcnt lgkmcnt({3 - q})")
            for k in range(2):
                r = 4 * q + 2 * k
                a(f"v_pk_fma_f32 {vr(B + r, 2)}, {vr(PT + r, 2)}, {vr(vG, 2)}, {vr(B + r, 2)} op_sel_hi:[1,0,1]")
            for k in range(2):
                r = 4 * q + 2 * k
                a(f"v_cvt_pk_bf16_f32 v{64 + 2 * q + k}, v{B + r}, v{B + r + 1}")
            if q % 2 == 1:
                a(f"buffer_store_dwordx4 {vr(64 + 4 * (q // 2), 4)}, v{vOut}, {sr(sOUT, 4)}, s{sOut} offen offset:{16 * (q // 2)}")

    def build(self):
        a = self.a
        cfg = self.cfg
        self.prologue()
        a(f"s_setprio {cfg['prio_l']}")
        self.loader()
        self.attn_start()
        self.stamp("attn0", "L")
        self.attn_loop()
        self.attn_finish()
        self.stamp("Oflag", "L")
        self.dump_stamps(True)
        a("s_endpgm")

        a.label("L_mwave")
        if cfg["swap"]:
            a("s_setprio 1")
        self.m_setup()
        if cfg["swap"]:
            a(f"s_setprio {cfg['prio_m']}")
        a(f"s_bitcmp1_b32 s{sC}, 0\ns_cbranch_scc1 L_pass_v")
        self.pass_a(False)
        a("s_branch L_pass_q")
        a.label("L_pass_v")
        self.pass_a(True)
        a.label("L_pass_q")
        self.pass_q()
        self.pass_fa()
        self.gelu_a()
        a(f"s_cmp_ge_u32 s{sTK}, 11\ns_cbranch_scc1 L_skipper")
        self.pass_fb()
        a.label("L_ffn2")
        self.stamp("gelu", "M")
        self.ffn2()
        self.final()
        if cfg.get("stamps"):
            a("s_waitcnt vmcnt(0)")
            self.stamp("end", "M")
            self.dump_stamps(False)
        a.label("L_end")
        a("s_endpgm")
        self.ticket()
        a.label("L_skipper")
        self.skipper()
        a("s_branch L_ffn2")
        self.fallback()
        return a.text()


HEADER = """; Fused kernel: out = g * MHA(x) + (1 - g) * GEGLU(x),  g = sigmoid(x . gate_w)
; Kernarg (88 bytes, pointers): 0 A_x, 8 A_wqkv, 16 A_wo, 24 B_x (unused by the reference), 32 B_w_gate, 40 B_w_up,
;   48 B_w_down, 56 gate_w, 64 d_out, 72 d_debug, 80 d_ws
;
; 256 workgroups of 8 waves, one per CU. Workgroup (c, r) owns 128 tokens (row block r) and column group c:
;   waves 0-3  K (c even) or V (c odd) for heads 4*(c>>1)..+3, Q for heads 2c, 2c+1, gate/up columns 64c..64c+63 with
;              GELU; the other 352 columns and the mixing logit go by ticket to the first 12 groups of a row block; then one 64x64 tile of h @ w_down and o @ wo and the mix.
;   waves 4-7  stage x / w_qkv into LDS, then attention: one head, four query tiles, half of the keys per wave.
; Hand-offs between workgroups (K/V, h, logit, o) go through d_ws: write-through (sc1) stores, vmcnt wait, then an atomic
;   add on a counter; the reader polls the counter with atomics and loads with sc1. The counters are cleared at the start
;   of every launch by workgroups 0-31, which report that in d_debug; nobody touches a counter before seeing the report.
;   All waits are bounded. No hand-off depends on where a workgroup runs.
; Softmax: scores are exponentiated with a constant shift while that is exact, and the row sum is checked afterwards. A wave whose
;   row sum left [2^-24, 2^64], or whose result is not finite, recomputes its tiles with the true row maximum subtracted
;   (L_fallback) before it publishes them.
; P @ V uses the 2:4 sparse MFMA with an index that selects the upper halves of the f32 exponentials (bf16 by truncation);
;   a row of ones in the V operand yields the row sum from the same values.
; @launch grid=(256,1,1) block=(512,1,1) lds=%d
.amdgcn_target "amdgcn-amd-amdhsa--gfx950"
.text
.globl %s_kernel
.p2align 8
.type %s_kernel,@function
%s_kernel:
""" % (LDS_BYTES, NAME, NAME, NAME)

FOOTER = """.section .rodata,"a"
.p2align 6
.amdhsa_kernel %s_kernel
  .amdhsa_next_free_vgpr 256
  .amdhsa_next_free_sgpr 102
  .amdhsa_accum_offset 256
  .amdhsa_group_segment_fixed_size 0
  .amdhsa_kernarg_size 88
  .amdhsa_user_sgpr_count 2
  .amdhsa_user_sgpr_kernarg_segment_ptr 1
  .amdhsa_system_sgpr_workgroup_id_x 1
  .amdhsa_float_denorm_mode_32 3
.end_amdhsa_kernel
""" % NAME

DEFAULT = dict(stM='start,BA0,KVst,KVflag,Qdone,F0,Fdone,gelu,Hflag,Hpoll,ffn2,Opoll,Omfma,end',
               stL='start,karg,A0,A2,A7,KVpoll,Qrdy,attn0,attn1,Ost,Oflag',
               outpol='', rowmask=14, qs=14400, tf=0, gate_f=1, gate_at=-1, look=13, lfast=1, shift=4.0, oop=0, wfirst=0, ebar=1, su=2, go_at=6, z14=1, f16=1, denorm=3, pwait=4, p1=10, jit=100000000, chk=0, chk_need=176, rdv=52, rdv_need=128, tk0=107, tkd=6, tk2=118, fixtk=0, tb=0, tlate=0, ntmask=1, u9=0, prio_cv=3, hold=16, bpol='', hb=13, look2=16, look3=1, gaps=1131110, plain=8, galign=1, k1=0, sig0=7, f1_at=99, swap=0, rel=1, touch=1, tq=1, f1_early=0, rbits=3, rot=4, rot2=1, la=2, nst=4, defer=0, tpol='', qpol='', xn=8, wn=8, fn=8, xpol='', wpol='', fpol='nt', hasync=1, otm=1, atm=1, kvflag_at=12, ott=1, f0_at=4, sig_at=4, rchk=4, wo_at=12, boost=0, pulse=0, pulse2=0, pd=3, cap=6, prio_l=2, prio_m=0, prio_gelu=3)


def generate(**kw):
    cfg = dict(DEFAULT)
    cfg.update(kw)
    body = Gen(cfg).build()
    msgs = lint(body)
    if cfg.get("stamps"):
        body += f"; STAMPS M {cfg['stM']}\n"
    return HEADER + body + FOOTER.replace("denorm_mode_32 3", f"denorm_mode_32 {cfg['denorm']}"), msgs


if __name__ == "__main__":
    out = sys.argv[1]
    kw = {}
    for arg in sys.argv[2:]:
        k, v = arg.split("=")
        try:
            kw[k] = int(v)
        except ValueError:
            try:
                kw[k] = float(v)
            except ValueError:
                kw[k] = v
    text, msgs = generate(**kw)
    for m in msgs:
        print("LINT:", m)
    open(out, "w").write(text)
    print("wrote", out, len(text), "bytes,", text.count("\n"), "lines")
```

```python
import struct
import sys

from asmlib import Asm, lint, sr, vr

NAME = "gated_mix__softmax_full_mha__glu_gated_geglu__prompt"


def f32(x):
    return "0x%08x" % struct.unpack("<I", struct.pack("<f", x))[0]


LOG2E = 1.4426950408889634

WS_KV, WS_O, WS_H, WS_G, WS_FLAG, WS_STAMP = 0x000000, 0x400000, 0x600000, 0xBC0000, 0xC00000, 0xD00000
CKV, CH, CO, CHB, TK = (WS_FLAG + 128 * n for n in (0, 128, 256, 512, 640))
OOB = 0x20000000

NSLOT = 4
QW, QF, PART, CNT = 98304, 131072, 139776, 158208
FROW, FMAT = 2064, 8256
WOL, SEGB = 74240, 49152
WSLOT = [s % 9 for s in range(22)]
LDS_BYTES = 163840

sX, sWQ, sWO, sWG, sWU, sWD, sGW, sOUT, sDBG, sWS = 4, 8, 12, 16, 20, 24, 28, 32, 36, 40
sC, sR, sW, sT, sROT, sRB, sCB, sDEL = 44, 45, 46, 47, 48, 49, 50, 51
sONE, sPV, sTK = 71, 69, 53
sVM = 52
sT0 = 54
sSPIN = 70
sSTAMP = 72
SIZES = {sX: 2097152, sWQ: 1572864, sWO: 524288, sWG: 1409024, sWU: 1409024, sWD: 1409024, sGW: 1024, sOUT: 2097152,
         sDBG: 256, sWS: 268435456}
KARG = {sX: 0, sWQ: 8, sWO: 16, sWG: 32, sWU: 40, sWD: 48, sGW: 56, sOUT: 64, sDBG: 72, sWS: 80}


def slot(n):
    return (n % NSLOT) * 24576


def fslot(n):
    return (n % 4) * 2 * FMAT


class Gen:
    def __init__(self, cfg):
        self.cfg = cfg
        self.a = Asm()
        self.uid = 0
        self.bg = self.hi = False

    def lab(self, base):
        self.uid += 1
        return f"L_{base}_{self.uid}"

    def clock(self):
        return "s_memtime" if self.cfg.get("stamps") == 2 else "s_memrealtime"

    def names(self, role):
        if "pad" in self.cfg:
            return ["start", self.cfg["pad"]]
        return self.cfg["st" + role].split(",")

    def stamp(self, name, role):
        if self.cfg.get("stamps") and name in self.names(role):
            n = self.names(role).index(name)
            a = self.a
            a(f"{self.clock()} {sr(sSTAMP + 2 * n, 2)}")
            a.lg.drain()

    def dump_stamps(self, is_l):
        if not self.cfg.get("stamps"):
            return
        a = self.a
        if "pad" in self.cfg:
            n = 0 if self.cfg["pad"] == "start" else 1
            top, done = self.lab("pad"), self.lab("paddone")
            if is_l:
                a("s_barrier")
            if "padx" in self.cfg:
                a(f"""s_and_b32 s{sT0}, s2, 7
                    s_cmp_eq_u32 s{sT0}, {self.cfg['padx']}
                    s_cselect_b32 s{sSTAMP + 2 * n}, s{sSTAMP + 2 * n}, 0""")
            a(f"""s_waitcnt vmcnt(0) lgkmcnt(0)
                s_cmp_eq_u32 s{sSTAMP + 2 * n}, 0
                s_cbranch_scc1 {done}""")
            a.label(top)
            a(f"""s_sleep 4
                s_memrealtime {sr(sT0, 2)}
                s_waitcnt lgkmcnt(0)
                s_sub_u32 s{sT0}, s{sT0}, s{sSTAMP + 2 * n}
                s_cmp_lt_u32 s{sT0}, 6000
                s_cbranch_scc1 {top}""")
            a.label(done)
            return
        a(f"""s_lshl_b32 s{sT0}, s2, 3
            s_add_u32 s{sT0}, s{sT0}, s{sW}
            s_lshl_b32 s{sT0}, s{sT0}, 6
            s_add_u32 s{sT0}, s{sT0}, {WS_STAMP}
            s_mov_b64 exec, 1""")
        for n in range(14):
            a(f"v_mov_b32 v0, s{sSTAMP + 2 * n}")
            a(f"buffer_store_dword v0, off, {sr(sWS, 4)}, s{sT0} offset:{4 * n}")
        a("s_mov_b64 exec, -1")

    def lane(self, v):
        self.a(f"""v_mbcnt_lo_u32_b32 v{v}, -1, 0
            v_mbcnt_hi_u32_b32 v{v}, -1, v{v}""")

    def srd(self, *regs):
        for r in regs:
            self.a(f"s_mov_b32 s{r + 2}, {SIZES[r]}\ns_mov_b32 s{r + 3}, 0x00020000")

    def kload(self, *regs):
        for r in regs:
            self.a(f"s_load_dwordx2 {sr(r, 2)}, s[0:1], {KARG[r]}")

    def chunk(self, dst, i):
        a = self.a
        if self.cfg["rot"] in (3, 4):
            a(f"""s_add_u32 s{dst}, s{sDEL}, {i & 3}
                s_and_b32 s{dst}, s{dst}, 3
                s_add_u32 s{dst}, s{dst}, s{sROT}""")
            if i & 4:
                a(f"s_xor_b32 s{dst}, s{dst}, 4")
        else:
            a(f"s_add_u32 s{dst}, s{sROT}, {i}\ns_and_b32 s{dst}, s{dst}, 7")

    def dsr(self, op, dst, n, lo, hi, imm, tag):
        reg = lo
        if imm >= 65536:
            reg, imm = hi, imm - 65536
        assert 0 <= imm < 65536 and reg is not None
        self.a(f"{op} {vr(dst, n)}, v{reg} offset:{imm}")
        self.a.lg.issue(tag)

    def poll(self, voff, soff, tmp, srd=sWS):
        a = self.a
        top, done = self.lab("poll"), self.lab("pdone")
        a(f"s_mov_b32 s{sSPIN}, 100000")
        a.label(top)
        a(f"""buffer_load_dword v{tmp}, v{voff}, {sr(srd, 4)}, {soff} offen sc1
            s_waitcnt vmcnt(0)
            v_cmp_gt_u32 vcc, 32, v{tmp}
            s_cbranch_vccz {done}
            s_sleep 8
            s_sub_u32 s{sSPIN}, s{sSPIN}, 1
            s_cmp_lg_u32 s{sSPIN}, 0
            s_cbranch_scc1 {top}""")
        a.label(done)
        a.vm.reset()

    def signal(self, soff):
        self.a(f"s_atomic_add s{sONE}, {sr(sWS, 2)}, s{soff}")

    def spoll(self, soff, need, back=None):
        a = self.a
        top, done = self.lab("spoll"), back or self.lab("sdone")
        a(f"s_mov_b32 s{sSPIN}, 200000")
        a.label(top)
        a(f"""s_mov_b32 s{sPV}, 0
            s_atomic_add s{sPV}, {sr(sWS, 2)}, s{soff} glc
            s_waitcnt lgkmcnt(0)
            s_cmp_ge_u32 s{sPV}, {need}
            s_cbranch_scc1 {done}
            s_sub_u32 s{sSPIN}, s{sSPIN}, 1
            s_cmp_lg_u32 s{sSPIN}, 0
            s_cbranch_scc1 {top}""")
        if back:
            a(f"s_branch {back}")
        else:
            a.label(done)
        a.lg.reset()

    def lds_signal(self, addr, one, off):
        a = self.a
        a(f"""s_mov_b64 exec, 1
            ds_add_u32 v{addr}, v{one} offset:{off}
            s_mov_b64 exec, -1""")
        a.lg.issue("sig")

    def lds_probe(self, addr, tmp, off):
        self.a(f"ds_read_b32 v{tmp}, v{addr} offset:{off}")
        self.a.lg.issue("probe")

    def boost(self):
        if self.bg and not self.hi:
            self.a("s_setprio 3")
            self.hi = True

    def unboost(self):
        if self.hi:
            self.a(f"s_setprio {self.cfg['prio_m']}")
            self.hi = False

    def lds_check(self, addr, tmp, off, need, nap=0):
        a = self.a
        top, done = self.lab("lspin"), self.lab("ldone")
        self.boost()
        a.lg.wait("probe")
        a(f"""v_cmp_gt_u32 vcc, {need}, v{tmp}
            s_cbranch_vccz {done}
            s_mov_b32 s{sSPIN}, 1000000""")
        a.label(top)
        if nap:
            a(f"s_sleep {nap}")
        a(f"""ds_read_b32 v{tmp}, v{addr} offset:{off}
            s_waitcnt lgkmcnt(0)
            v_cmp_gt_u32 vcc, {need}, v{tmp}
            s_cbranch_vccz {done}
            s_sub_u32 s{sSPIN}, s{sSPIN}, 1
            s_cmp_lg_u32 s{sSPIN}, 0
            s_cbranch_scc1 {top}""")
        a.label(done)

    def prologue(self):
        a = self.a
        cfg = self.cfg
        rb = cfg["rbits"]
        a("s_cmp_ge_u32 s2, 256\ns_cbranch_scc1 L_end")
        if cfg.get("stamps"):
            a(f"{self.clock()} {sr(sSTAMP, 2)}")
        self.kload(sX, sWQ, sWS, sDBG)
        if cfg.get("stamps"):
            for n in range(1, 14):
                a(f"s_mov_b32 s{sSTAMP + 2 * n}, 0")
        x, j, t = sT0, sT0 + 1, sT0 + 2
        a(f"""v_lshrrev_b32 v1, 6, v0
            s_and_b32 s{x}, s2, 7
            v_readfirstlane_b32 s{sW}, v1
            s_lshr_b32 s{j}, s2, 3
            v_and_b32 v0, 63, v0
            {f"s_bfe_u32 s{t}, s{x}, 0x10001" if cfg["xmap"] else ""}
            {f"s_xor_b32 s{x}, s{x}, s{t}" if cfg["xmap"] else ""}
            s_and_b32 s{sR}, s{x}, {(1 << (4 - rb)) - 1}
            s_lshl_b32 s{sR}, s{sR}, {rb}
            s_and_b32 s{t}, s{j}, {(1 << rb) - 1}
            s_add_u32 s{sR}, s{sR}, s{t}
            s_lshr_b32 s{sC}, s{x}, {4 - rb}
            s_lshl_b32 s{sC}, s{sC}, {5 - rb}
            s_lshr_b32 s{t}, s{j}, {rb}
            s_add_u32 s{sC}, s{sC}, s{t}
            s_and_b32 s{sT}, s{sW}, 3""")
        if cfg["swap"]:
            a(f"s_xor_b32 s{sW}, s{sW}, 4")
        rot = cfg["rot"]
        if rot == 0:
            a(f"s_mov_b32 s{sROT}, 0")
        elif rot == 1:
            a(f"""s_mul_i32 s{sROT}, s{sC}, {cfg.get('rotc', 2)}
                s_mul_i32 s{t}, s{sR}, {cfg.get('rotr', 1)}
                s_add_u32 s{sROT}, s{sROT}, s{t}
                s_and_b32 s{sROT}, s{sROT}, 7""")
        else:
            a(f"""s_add_u32 s{sROT}, s{sC}, s{sR}
                s_and_b32 s{sROT}, s{sROT}, 1
                s_lshl_b32 s{sROT}, s{sROT}, 2""")
            if rot == 3:
                a(f"s_mov_b32 s{sDEL}, 0")
            else:
                a(f"""s_lshr_b32 s{sDEL}, s{x}, 1
                    s_lshl_b32 s{t}, s{x}, 1
                    s_add_u32 s{sDEL}, s{sDEL}, s{t}""")
        self.srd(sWS)
        a(f"""s_mov_b32 s{sONE}, 1
            s_cmp_ge_u32 s{sW}, 4
            s_cbranch_scc0 L_mwave""")

    def loader(self):
        a = self.a
        a.vm.reset()
        vX0, vX1, vKV, vQ = 8, 9, 10, 11
        sXB, sKB, sQB, sLx, sLk, sLq, sCh, sO = range(sT0, sT0 + 8)
        self.srd(sX, sWQ)
        a(f"""v_lshrrev_b32 v1, 3, v0
            v_and_b32 v2, 7, v0
            v_lshrrev_b32 v3, 4, v0
            s_lshl_b32 s{sO}, s{sT}, 5
            v_add_u32 v4, s{sO}, v1
            v_xor_b32 v5, v2, v3
            v_lshlrev_b32 v5, 4, v5
            v_lshl_add_u32 v{vX0}, v4, 10, v5
            v_xor_b32 v{vX1}, 64, v{vX0}
            v_add_u32 v{vX1}, 8192, v{vX1}
            s_lshl_b32 s{sO}, s{sT}, 4
            v_add_u32 v4, s{sO}, v1
            v_mul_u32_u24 v4, 3072, v4
            v_and_b32 v5, 1, v3
            v_lshlrev_b32 v5, 2, v5
            v_xor_b32 v5, v2, v5
            v_lshl_add_u32 v{vKV}, v5, 4, v4
            s_lshl_b32 s{sXB}, s{sR}, 17
            s_and_b32 s{sKB}, s{sC}, 1
            s_add_u32 s{sKB}, s{sKB}, 1
            s_lshl_b32 s{sKB}, s{sKB}, 10
            s_lshr_b32 s{sCh}, s{sC}, 1
            s_lshl_b32 s{sCh}, s{sCh}, 7
            s_add_u32 s{sKB}, s{sKB}, s{sCh}
            s_lshl_b32 s{sLx}, s{sT}, 12
            s_lshl_b32 s{sLk}, s{sT}, 11""")

        def issueA(i):
            B = slot(i)
            self.chunk(sCh, i)
            first = [i == 0]

            def ready(filler):
                a(filler)
                if first[0]:
                    a("s_waitcnt lgkmcnt(0)")
                    self.stamp("karg", "L")
                    first[0] = False

            def xs():
                a(f"s_lshl_b32 s{sO}, s{sCh}, 7\ns_add_u32 s{sO}, s{sO}, s{sXB}")
                for k in range(4):
                    a(f"s_add_u32 m0, s{sLx}, {B + 1024 * k}")
                    ready(f"s_add_u32 s{sO}, s{sO}, 16384" if k == 2 else "s_nop 0")
                    a(f"buffer_load_dwordx4 v{vX0 if k % 2 == 0 else vX1}, {sr(sX, 4)}, s{sO} offen lds")
                    a.vm.issue(("A", i))

            def ws():
                a(f"s_mul_i32 s{sO}, s{sCh}, 196608")
                for k in range(2):
                    a(f"s_add_u32 m0, s{sLk}, {B + 16384 + 1024 * k}")
                    ready(f"s_add_u32 s{sO}, s{sO}, {'s%d' % sKB if k == 0 else 24576}")
                    a(f"buffer_load_dwordx4 v{vKV}, {sr(sWQ, 4)}, s{sO} offen lds")
                    a.vm.issue(("A", i))

            for f in ((ws, xs) if self.cfg["wfirst"] else (xs, ws)):
                f()

        def issueQ(lo, hi):
            for i in range(lo, hi):
                self.chunk(sCh, i)
                a(f"""s_mul_i32 s{sO}, s{sCh}, 196608
                    s_add_u32 m0, s{sLq}, {QW + 4096 * i}
                    s_add_u32 s{sO}, s{sO}, s{sQB}
                    buffer_load_dwordx4 v{vQ}, {sr(sWQ, 4)}, s{sO} offen lds""")
                a.vm.issue(("Q", 0))

        def setup2():
            a(f"""v_lshrrev_b32 v4, 2, v0
                s_lshl_b32 s{sO}, s{sT}, 4
                v_add_u32 v4, s{sO}, v4
                v_mul_u32_u24 v4, 3072, v4
                v_and_b32 v5, 3, v0
                v_lshl_add_u32 v{vQ}, v5, 4, v4
                s_lshl_b32 s{sQB}, s{sC}, 6
                s_lshl_b32 s{sLq}, s{sT}, 10
                s_mov_b32 s{sVM}, 0x0000ffff
                s_mov_b32 s{sVM + 1}, 0x0000ffff""")
            if self.cfg["tq"]:
                cb = 5 - self.cfg["rbits"]
                nl = 1 << (cb - 1)
                a(f"""v_lshrrev_b32 v4, {cb - 1}, v0
                    v_mul_u32_u24 v4, 3072, v4
                    v_and_b32 v5, {nl - 1}, v0
                    v_lshl_add_u32 v4, v5, 7, v4
                    s_lshr_b32 s{sO}, s2, 3
                    s_lshl_b32 s{sO}, s{sO}, 2
                    s_add_u32 s{sO}, s{sO}, s{sT}
                    s_mul_i32 s{sO}, s{sO}, 12288
                    s_lshr_b32 s{sCh}, s{sC}, {cb}
                    s_lshl_b32 s{sCh}, s{sCh}, {cb + 6}
                    s_add_u32 s{sO}, s{sO}, s{sCh}
                    s_mov_b32 m0, {CNT + 64}
                    s_mov_b64 exec, {(1 << (4 * nl)) - 1}
                    buffer_load_dword v4, {sr(sWQ, 4)}, s{sO} offen {self.cfg['qpol']} lds
                    s_mov_b64 exec, -1""")
                a.vm.issue("touch")
            a("s_setprio 0")
            self.attn_init()
            a(f"s_setprio {self.cfg['prio_l']}")
            skip = self.lab("nogo")
            a(f"""s_cmp_lg_u32 s{sRB}, 0
                s_cbranch_scc1 {skip}
                s_lshl_b32 s{sO}, s{sT}, 7
                s_waitcnt lgkmcnt(0)
                s_atomic_add s{sONE}, {sr(sDBG, 2)}, s{sO}""")
            a.label(skip)

        def reset():
            skip = self.lab("noreset")
            a(f"""s_lshr_b32 s{sRB}, s2, 5
                s_lshr_b32 s{sO}, s{sT}, 1
                s_or_b32 s{sRB}, s{sRB}, s{sO}
                s_cbranch_scc1 {skip}
                s_lshl_b32 s{sO}, s2, 1
                s_add_u32 s{sO}, s{sO}, s{sT}
                s_mul_i32 s{sO}, s{sO}, 1408
                s_add_u32 s{sO}, s{sO}, {WS_FLAG}
                s_mov_b32 s{sPV}, 0""")
            for k in range(11):
                a(f"s_atomic_and s{sPV}, {sr(sWS, 2)}, s{sO} offset:{128 * k}")
            a.label(skip)

        la = self.cfg["la"]
        qs = [int(ch) for ch in str(self.cfg["qs"])[1:]]
        assert sum(qs) == 8
        nxt = 0
        for b in range(9):
            while nxt < 8 and nxt <= b + la and nxt - NSLOT + 2 <= b:
                issueA(nxt)
                nxt += 1
                if nxt == 1:
                    reset()
                if nxt == self.cfg["su"]:
                    setup2()
            if b >= 6:
                issueQ(sum(qs[:b - 6]), sum(qs[:b - 5]))
            if b == 8 and qs[3]:
                a("s_barrier")
                issueQ(8 - qs[3], 8)
            tag = ("A", b) if b < 8 else ("Q", 0)
            a.vm.wait(tag)
            self.stamp(f"{tag[0]}{tag[1]}", "L")
            a("s_barrier")

    O_, S_, Q_, KV_ = 16, 80, 112, 128
    vIDX, vKo, vVo, vFl, vQa_, vOne, vCa, vPa, vPs = 12, 13, 14, 15, 6, 7, 1, 2, 3

    def attn_init(self):
        a = self.a
        NST = self.cfg["nst"]
        assert NST == 4
        sHd, sQ, sOff, sRow, sCnt, sLd, sFl = range(sT0 + 8, sT0 + 15)
        self.sHd, self.sQ, self.sOff, self.sKr, self.sCnt, self.sLd, self.sFl = sHd, sQ, sOff, sRow, sCnt, sLd, sFl
        a(f"""s_and_b32 s{sHd}, s{sW}, 1
            s_lshr_b32 s{sQ}, s{sT}, 1
            v_lshrrev_b32 v5, 5, v0
            s_and_b32 s{sRow}, s{sR}, {self.cfg['rowmask']}
            s_add_u32 s{sRow}, s{sRow}, s{sQ}
            s_and_b32 s{sRow}, s{sRow}, 15
            s_mov_b32 s{sCnt}, {32 // NST}
            v_lshlrev_b32 v{self.vKo}, 4, v0
            v_and_b32 v{self.vVo}, 15, v0
            v_lshlrev_b32 v{self.vVo}, 4, v{self.vVo}
            v_lshl_add_u32 v{self.vVo}, v5, 8, v{self.vVo}
            s_lshl_b32 s{sLd}, s{sHd}, 12
            s_add_u32 s{sLd}, s{sLd}, {QF}
            v_add_u32 v{self.vQa_}, s{sLd}, v{self.vKo}
            s_lshl_b32 s{sLd}, s{sQ}, 11
            v_add_u32 v{self.vQa_}, s{sLd}, v{self.vQa_}
            v_mov_b32 v{self.vIDX}, 0xdddddddd
            v_mov_b32 v{self.vOne}, 1
            v_and_b32 v4, 0x1b, v0
            v_cmp_eq_u32 vcc, 16, v4
            v_mov_b32 v4, 0x3f803f80
            s_mul_i32 s{sLd}, s{sT}, 4608
            v_cndmask_b32 v4, 0, v4, vcc
            s_add_u32 s{sLd}, s{sLd}, {PART}
            v_lshl_add_u32 v{self.vPa}, v0, 4, s{sLd}
            v_lshl_add_u32 v{self.vPs}, v0, 2, s{sLd}
            s_lshl_b32 s{sLd}, s{sHd}, 2
            s_add_u32 s{sLd}, s{sLd}, {CNT + 8}
            v_mov_b32 v{self.vCa}, s{sLd}
            s_lshl_b32 s{sLd}, s{sT}, 2
            s_add_u32 s{sLd}, s{sLd}, {CNT + 32}
            v_mov_b32 v{self.vFl}, s{sLd}""")
        for st in range(NST):
            for k in range(8):
                a(f"v_mov_b32 v{self.KV_ + 12 * st + 4 + k}, v4")
        for k in range(64):
            a(f"v_mov_b32 v{self.O_ + k}, 0")

    def attn_start(self):
        a = self.a
        NST = self.cfg["nst"]
        sOff = self.sOff
        sHB, sFB, sRow, sFl = sT0, sT0 + 1, self.sKr, self.sFl
        a(f"""s_lshl_b32 s{sHB}, s{sC}, 1
            s_add_u32 s{sHB}, s{sHB}, s{self.sHd}
            s_lshl_b32 s{sHB}, s{sHB}, 17
            s_lshr_b32 s{sFB}, s{sC}, 1
            s_lshl_b32 s{sFB}, s{sFB}, 11
            s_add_u32 s{sFB}, s{sFB}, {CKV}
            s_lshl_b32 s{sOff}, s{sRow}, 13
            s_add_u32 s{sOff}, s{sOff}, s{sHB}
            s_lshl_b32 s{sFl}, s{sRow}, 7
            s_add_u32 s{sFl}, s{sFl}, s{sFB}""")
        a(f"v_mov_b32 v5, {CNT}")
        if self.cfg["pwait"]:
            a.lg.reset()
            self.lds_probe(5, 4, 48)
            self.lds_check(5, 4, 48, 4 * self.cfg["pwait"])
        self.spoll(sFl, 8)
        self.stamp("KVpoll", "L")
        for st in range(NST - 1):
            b = self.KV_ + 12 * st
            a(f"""buffer_load_dwordx4 {vr(b, 4)}, v{self.vKo}, {sr(sWS, 4)}, s{sOff} offen sc1
                s_mov_b64 exec, {sr(sVM, 2)}
                buffer_load_dwordx4 {vr(b + 4, 4)}, v{self.vVo}, {sr(sWS, 4)}, s{sOff} offen offset:1024 sc1
                buffer_load_dwordx4 {vr(b + 8, 4)}, v{self.vVo}, {sr(sWS, 4)}, s{sOff} offen offset:1536 sc1
                s_mov_b64 exec, -1
                s_add_u32 s{sOff}, s{sOff}, 2048""")
        self.stamp("KViss", "L")
        a.lg.reset()
        self.lds_signal(5, self.vOne, 20)
        self.lds_probe(5, 4, 16)
        self.lds_check(5, 4, 16, 16)
        a(f"v_xor_b32 v4, 0x800, v{self.vQa_}")
        self.stamp("Qrdy", "L")
        for q in range(4):
            a(f"ds_read_b128 {vr(self.Q_ + 4 * q, 4)}, v{self.vQa_ if q >= 2 else 4} offset:{1024 * (q & 1)}")
        a(f"""s_add_u32 s{sRow}, s{sRow}, 2
            s_and_b32 s{sRow}, s{sRow}, 15
            s_lshl_b32 s{sFl}, s{sRow}, 7
            s_add_u32 s{sFl}, s{sFl}, s{sFB}
            s_mov_b32 s{sPV}, 0
            s_waitcnt lgkmcnt(0)
            s_mov_b64 exec, 1
            ds_add_u32 v5, v{self.vOne} offset:24
            s_mov_b64 exec, -1
            s_atomic_add s{sPV}, {sr(sWS, 2)}, s{sFl} glc
            s_waitcnt vmcnt({3 * (NST - 2)})
            v_mfma_f32_32x32x16_bf16 {vr(self.S_, 16)}, {vr(self.KV_, 4)}, {vr(self.Q_, 4)}, {self.cfg['shift']}
            s_nop 11""")

    def P(self, n):
        oop = self.cfg["oop"]
        return self.S_ + 16 * (n & 1) if not oop else 232 if oop == 1 else (176, 232)[n & 1]

    def attn_loop(self):
        a = self.a
        NST = self.cfg["nst"]
        NT = 4 * NST
        O, S, Q, KV = self.O_, self.S_, self.Q_, self.KV_
        sOff, sRow, sCnt, sFl, sHB, sFB = self.sOff, self.sKr, self.sCnt, self.sFl, sT0, sT0 + 1
        P = self.P
        sm = lambda st, qt, half, n: (f"v_smfmac_f32_32x32x32_bf16 {vr(O + 16 * qt, 16)}, {vr(KV + 12 * st + 4 + 4 * half, 4)}, "
                                      f"{vr(P(n) + 8 * half, 8)}, v{self.vIDX}")
        extra = {
            (2, 0): f"s_lshl_b32 s{sOff}, s{sRow}, 13\ns_add_u32 s{sOff}, s{sOff}, s{sHB}",
            (2, 2): f"s_cmp_eq_u32 s{sCnt}, 1\ns_cselect_b32 s{sOff}, {OOB}, s{sOff}",
            (3, 1): "s_waitcnt lgkmcnt(0)",
            (3, 2): f"s_cmp_lt_u32 s{sPV}, 8\ns_cbranch_scc1 L_kv_wait\nL_kv_ok:",
            (6, 0): f"s_add_u32 s{sRow}, s{sRow}, 2\ns_and_b32 s{sRow}, s{sRow}, 15",
            (6, 2): f"s_lshl_b32 s{sFl}, s{sRow}, 7\ns_add_u32 s{sFl}, s{sFl}, s{sFB}",
            (10, 0): f"s_mov_b32 s{sPV}, 0\ns_atomic_add s{sPV}, {sr(sWS, 2)}, s{sFl} glc",
            (NT - 3, 0): f"s_sub_u32 s{sCnt}, s{sCnt}, 1\ns_cmp_eq_u32 s{sCnt}, 0",
        }

        if self.cfg["chk"]:
            it, n0 = divmod(self.cfg["chk"], NT)
            assert n0 in (1, 4, 5, 8, 9, 12) and (n0, 0) not in extra
            extra[(n0, 0)] = f"s_cmp_eq_u32 s{sCnt}, {8 - it}\ns_cbranch_scc1 L_m_wait\nL_m_ok:"

        it, n0 = divmod(self.cfg["rdv"], NT)
        assert n0 in (1, 4, 5, 8, 9, 12) and (n0, 0) not in extra
        extra[(n0, 0)] = f"s_cmp_eq_u32 s{sCnt}, {8 - it}\ns_cbranch_scc1 L_rdv\nL_rdv_ok:"

        def ex(n, k):
            for l in extra.get((n, k), "").split("\n"):
                if l.endswith(":"):
                    a.label(l[:-1])
                else:
                    a(l)

        a(f"v_exp_f32 v{P(0)}, v{S}\nv_exp_f32 v{P(0) + 1}, v{S + 1}")
        a.raw(".p2align 6")
        a.label("L_attn")
        for n in range(NT + 1):
            st, qt = divmod(n, 4)
            cur = S + 16 * (n & 1)
            E = lambda lo, hi: [a(f"v_exp_f32 v{P(n) + k}, v{cur + k}") for k in range(lo, hi)]
            pst, pqt = divmod((n - 1) % NT, 4)
            nst, nqt = divmod((n + 1) % NT, 4)
            ld = KV + 12 * ((st - 1) % NST)
            if n:
                E(0, 2)
                a(sm(pst, pqt, 1, n - 1))
            if n == NT:
                break
            if n == NT - 2:
                a("s_cbranch_scc1 L_attn_tail")
            ex(n, 0)
            if qt == 3:
                a(f"s_waitcnt vmcnt({3 * (NST - 2)})")
            E(2, 5)
            a(f"v_mfma_f32_32x32x16_bf16 {vr(S + 16 * ((n + 1) & 1), 16)}, {vr(KV + 12 * nst, 4)}, {vr(Q + 4 * nqt, 4)}, {self.cfg['shift']}")
            ex(n, 1)
            if qt == 0 and not self.cfg["k1"]:
                a(f"buffer_load_dwordx4 {vr(ld, 4)}, v{self.vKo}, {sr(sWS, 4)}, s{sOff} offen sc1")
            if qt == 2 and st:
                a(f"s_add_u32 s{sOff}, s{sOff}, 2048")
            E(5, self.cfg["p1"])
            a(sm(st, qt, 0, n))
            ex(n, 2)
            if qt == 0 and self.cfg["k1"]:
                a(f"buffer_load_dwordx4 {vr(ld, 4)}, v{self.vKo}, {sr(sWS, 4)}, s{sOff} offen sc1")
            if qt == 1:
                a(f"""s_mov_b64 exec, {sr(sVM, 2)}
                    buffer_load_dwordx4 {vr(ld + 4, 4)}, v{self.vVo}, {sr(sWS, 4)}, s{sOff} offen offset:1024 sc1
                    buffer_load_dwordx4 {vr(ld + 8, 4)}, v{self.vVo}, {sr(sWS, 4)}, s{sOff} offen offset:1536 sc1
                    s_mov_b64 exec, -1""")
            E(self.cfg["p1"], 16)
        a("s_branch L_attn")
        self.sm = sm

    def attn_finish(self):
        a = self.a
        O, S, Q, KV, T, sm = self.O_, self.S_, self.Q_, self.KV_, 192, self.sm
        sA, sF, m = sT0, sT0 + 1, sT0 + 2
        E = lambda n, lo, hi: [a(f"v_exp_f32 v{self.P(n) + k}, v{S + 16 * (n & 1) + k}") for k in range(lo, hi)]

        def give(q):
            o = O + 16 * q
            a(f"""ds_write_b128 v{self.vPa}, {vr(o, 4)} offset:{2304 * q}
                ds_write_b128 v{self.vPa}, {vr(o + 4, 4)} offset:{2304 * q + 1024}
                ds_write_b32 v{self.vPs}, v{o + 8} offset:{2304 * q + 2048}""")

        a.label("L_attn_tail")
        a.lg.reset()
        a("s_waitcnt lgkmcnt(0)")
        give(0)
        E(14, 2, 5)
        a(f"v_mfma_f32_32x32x16_bf16 {vr(S + 16, 16)}, {vr(KV + 36, 4)}, {vr(Q + 12, 4)}, {self.cfg['shift']}")
        a(f"s_lshl_b32 s{sF}, s{sR}, 1")
        E(14, 5, 10)
        a(sm(3, 2, 0, 14))
        give(1)
        if self.cfg["rel"] == 0:
            a(f"ds_write_b32 v{self.vFl}, v{self.vOne}")
        self.lds_signal(self.vCa, self.vOne, 0)
        E(14, 10, 16)
        E(15, 0, 2)
        a(sm(3, 2, 1, 14))
        a(f"""s_add_u32 s{sF}, s{sF}, s{self.sQ}
            s_lshl_b32 s{sA}, s{sF}, 5
            s_add_u32 s{sA}, s{sA}, s{sC}
            s_lshl_b32 s{sA}, s{sA}, 1
            s_add_u32 s{sA}, s{sA}, s{self.sHd}
            s_mul_i32 s{m}, s{self.sQ}, -18432
            s_add_u32 s{m}, s{m}, 9216""")
        E(15, 2, 10)
        a(sm(3, 3, 0, 15))
        a(f"""s_lshl_b32 s{sA}, s{sA}, 10
            s_add_u32 s{sA}, s{sA}, {WS_O}
            v_add_u32 v{self.vPa}, s{m}, v{self.vPa}
            v_add_u32 v{self.vPs}, s{m}, v{self.vPs}""")
        self.lds_probe(self.vCa, 4, 0)

        def fetch():
            for q in range(2):
                a(f"""ds_read_b32 v{T + 12 * q + 8}, v{self.vPs} offset:{2304 * q + 2048}
                    ds_read_b128 {vr(T + 12 * q, 4)}, v{self.vPa} offset:{2304 * q}
                    ds_read_b128 {vr(T + 12 * q + 4, 4)}, v{self.vPa} offset:{2304 * q + 1024}""")

        if self.cfg["lfast"]:
            fetch()
        E(15, 10, 16)
        a(f"""s_lshl_b32 s{sF}, s{sF}, {2 + self.cfg['ott']}
            s_lshr_b32 s{m}, s{sC}, 2""")
        a(sm(3, 3, 1, 15))
        a(f"""s_add_u32 s{sF}, s{sF}, s{m}
            s_lshl_b32 s{sF}, s{sF}, 7
            s_add_u32 s{sF}, s{sF}, {CO}""")
        self.stamp("attn1", "L")
        have = self.lab("have")
        if self.cfg["lfast"]:
            a(f"s_waitcnt lgkmcnt(0)\nv_cmp_gt_u32 vcc, 2, v4")
        if self.cfg["rel"] == 1:
            a(f"ds_write_b32 v{self.vFl}, v{self.vOne}")
            a.lg.issue("rel")
        if self.cfg["lfast"]:
            a(f"s_cbranch_vccz {have}")
            a.lg.reset()
        self.lds_check(self.vCa, 4, 0, 2)
        self.stamp("pair", "L")
        fetch()
        a("s_waitcnt lgkmcnt(3)")
        a.label(have)
        for q in range(2):
            o, t = O + 32 + 16 * q, T + 12 * q
            if q:
                a("s_waitcnt lgkmcnt(0)")
            a(f"v_add_f32 v{o + 8}, v{o + 8}, v{t + 8}")
            for k in range(8):
                a(f"v_add_f32 v{o + k}, v{o + k}, v{t + k}")
            self.normalise(q)
        if self.cfg["rel"] == 2:
            a(f"ds_write_b32 v{self.vFl}, v{self.vOne}")
        self.stamp("Ost", "L")
        lo, hi = self.cfg.get("l_lo", 2.0 ** -24), self.cfg.get("l_hi", 2.0 ** 64)
        for q in range(2):
            o, t = O + 32 + 16 * q, T + 12 * q
            a(f"""v_pk_add_f32 {vr(t, 2)}, {vr(o, 2)}, {vr(o + 2, 2)}
                v_pk_add_f32 {vr(t + 2, 2)}, {vr(o + 4, 2)}, {vr(o + 6, 2)}
                v_cmp_lt_f32 vcc, {f32(lo)}, v{o + 8}
                v_pk_add_f32 {vr(t, 2)}, {vr(t, 2)}, {vr(t + 2, 2)}
                s_and_b64 {sr(m, 2)}, {'vcc' if q == 0 else sr(m, 2)}, vcc
                v_cmp_gt_f32 vcc, {f32(hi)}, v{o + 8}
                v_add_f32 v{t}, v{t}, v{t + 1}
                s_and_b64 {sr(m, 2)}, {sr(m, 2)}, vcc
                v_sub_f32 v{t}, v{t}, v{t}
                v_cmp_eq_f32 vcc, 0, v{t}
                s_and_b64 {sr(m, 2)}, {sr(m, 2)}, vcc""")
        a(f"s_cmp_eq_u64 {sr(m, 2)}, -1\ns_cbranch_scc0 L_fallback")
        a.label("L_publish")
        if self.cfg["ott"]:
            a(f"s_add_u32 s{m}, s{sF}, 512\ns_waitcnt vmcnt(1)")
            self.signal(sF)
            a("s_waitcnt vmcnt(0)")
            self.signal(m)
        else:
            a("s_waitcnt vmcnt(0)")
            self.signal(sF)

    def normalise(self, q):
        a = self.a
        o, d = self.O_ + 32 + 16 * q, 224 + 4 * q
        a(f"v_rcp_f32 v{o + 9}, v{o + 8}\ns_add_u32 s{sT0 + 4}, s{sT0}, {32768 * q}")
        for k in range(8):
            a(f"v_mul_f32 v{o + k}, v{o + k}, v{o + 9}")
        for k in range(4):
            a(f"v_cvt_pk_bf16_f32 v{d + k}, v{o + 2 * k}, v{o + 2 * k + 1}")
        a(f"buffer_store_dwordx4 {vr(d, 4)}, v{self.vKo}, {sr(sWS, 4)}, s{sT0 + 4} offen sc1")

    def fallback(self):
        a = self.a
        S, M, K, V, vMx = self.S_, self.S_ + 16, self.KV_, self.KV_ + 4, 4
        sO, sN = sT0 + 2, sT0 + 3
        a.label("L_kv_wait")
        self.spoll(self.sFl, 8, "L_kv_ok")
        if self.cfg["chk"]:
            a.label("L_m_wait")
            a.lg.reset()
            self.lds_probe(5, 4, 0)
            self.lds_check(5, 4, 0, self.cfg["chk_need"], nap=1)
            a("s_branch L_m_ok")
        a.label("L_rdv")
        a.lg.reset()
        self.lds_signal(5, self.vOne, 52)
        if self.cfg["rdv_need"]:
            self.lds_probe(5, 4, 0)
            self.lds_check(5, 4, 0, self.cfg["rdv_need"], nap=1)
        a("s_branch L_rdv_ok")
        a.label("L_fallback")
        a("s_waitcnt vmcnt(0)")
        for q in range(2):
            O, Q = self.O_ + 32 + 16 * q, self.Q_ + 8 + 4 * q
            a(f"""v_mov_b32 v{vMx}, 0xff800000
                s_lshl_b32 s{sO}, s{sC}, 1
                s_add_u32 s{sO}, s{sO}, s{self.sHd}
                s_lshl_b32 s{sO}, s{sO}, 17
                s_mov_b32 s{sN}, 64""")
            a.label(f"L_fb_max{q}")
            a(f"""buffer_load_dwordx4 {vr(K, 4)}, v{self.vKo}, {sr(sWS, 4)}, s{sO} offen sc1
                s_waitcnt vmcnt(0)
                v_mfma_f32_32x32x16_bf16 {vr(S, 16)}, {vr(K, 4)}, {vr(Q, 4)}, 0
                s_nop 11""")
            for k in range(8):
                a(f"v_max3_f32 v{vMx}, v{S + 2 * k}, v{S + 2 * k + 1}, v{vMx}")
            a(f"""s_add_u32 s{sO}, s{sO}, 2048
                s_sub_u32 s{sN}, s{sN}, 1
                s_cmp_lg_u32 s{sN}, 0
                s_cbranch_scc1 L_fb_max{q}
                v_mov_b32 v{M}, v{vMx}
                s_nop 1
                v_permlane32_swap_b32 v{vMx}, v{M}
                s_nop 1
                v_max_f32 v{vMx}, v{vMx}, v{M}
                s_sub_u32 s{sO}, s{sO}, 131072
                s_mov_b32 s{sN}, 64""")
            for k in range(16):
                a(f"v_sub_f32 v{M + k}, 0, v{vMx}\nv_mov_b32 v{O + k}, 0")
            a.label(f"L_fb_sum{q}")
            a(f"""buffer_load_dwordx4 {vr(K, 4)}, v{self.vKo}, {sr(sWS, 4)}, s{sO} offen sc1
                s_mov_b64 exec, {sr(sVM, 2)}
                buffer_load_dwordx4 {vr(V, 4)}, v{self.vVo}, {sr(sWS, 4)}, s{sO} offen offset:1024 sc1
                buffer_load_dwordx4 {vr(V + 4, 4)}, v{self.vVo}, {sr(sWS, 4)}, s{sO} offen offset:1536 sc1
                s_mov_b64 exec, -1
                s_waitcnt vmcnt(0)
                v_mfma_f32_32x32x16_bf16 {vr(S, 16)}, {vr(K, 4)}, {vr(Q, 4)}, {vr(M, 16)}
                s_nop 11""")
            for k in range(16):
                a(f"v_exp_f32 v{S + k}, v{S + k}")
            a(f"""s_nop 1
                v_smfmac_f32_32x32x32_bf16 {vr(O, 16)}, {vr(V, 4)}, {vr(S, 8)}, v{self.vIDX}
                v_smfmac_f32_32x32x32_bf16 {vr(O, 16)}, {vr(V + 4, 4)}, {vr(S + 8, 8)}, v{self.vIDX}
                s_nop 7
                s_add_u32 s{sO}, s{sO}, 2048
                s_sub_u32 s{sN}, s{sN}, 1
                s_cmp_lg_u32 s{sN}, 0
                s_cbranch_scc1 L_fb_sum{q}
                s_nop 3""")
            self.normalise(q)
        a("s_branch L_publish")

    XR, ACC, WS_ = 128, 32, 8
    vFlo, vD, vF, vCnt, v1_, vTmp = 0, 1, 2, 5, 6, 7

    def m_setup(self):
        a = self.a
        self.vXA, self.vXAh, self.vWk, self.vWkh, self.vQa, self.vST, self.vGo, self.vQFa, self.vGa = 80, 84, 88, 90, 92, 93, 94, 95, 96
        self.stamp("mjmp", "M")
        self.kload(sWG, sWU, sWD, sWO, sOUT, sGW)
        self.srd(sDBG, sWG, sWU, sWD, sWO, sOUT, sGW)
        a(f"""s_lshl_b32 s{sRB}, s{sT0}, 2
            s_and_b32 s{sT0 + 2}, s{sT0 + 1}, 3
            s_add_u32 s{sRB}, s{sRB}, s{sT0 + 2}
            s_lshr_b32 s{sCB}, s{sT0 + 1}, 2
            v_and_b32 v16, 31, v0
            v_lshrrev_b32 v17, 5, v0
            v_bfe_u32 v18, v0, 1, 3
            v_xor_b32 v18, v18, v17
            s_lshl_b32 s{sT0}, s{sT}, 12
            v_lshlrev_b32 v19, 7, v16
            v_lshl_add_u32 v19, v18, 4, v19
            v_add_u32 v{self.vXA}, s{sT0}, v19""")
        for s in range(1, 4):
            a(f"v_xor_b32 v{self.vXA + s}, {32 * s}, v{self.vXA}")
        for s in range(4):
            a(f"v_add_u32 v{self.vXAh + s}, 0x10000, v{self.vXA + s}")
        a(f"""v_bfe_u32 v18, v0, 2, 2
            v_lshl_add_u32 v18, v17, 3, v18
            v_bfe_u32 v19, v0, 4, 1
            v_and_b32 v20, 3, v0
            v_lshlrev_b32 v20, 3, v20
            v_lshl_add_u32 v20, v19, 5, v20
            v_bfe_u32 v21, v0, 3, 1
            v_lshl_add_u32 v22, v18, 7, v20
            v_lshl_add_u32 v{self.vWk}, v21, 6, v22
            v_xor_b32 v{self.vWk + 1}, 64, v{self.vWk}
            v_add_u32 v{self.vWkh}, 0x10000, v{self.vWk}
            v_add_u32 v{self.vWkh + 1}, 0x10000, v{self.vWk + 1}
            v_lshl_add_u32 v{self.vQa}, v18, 6, v20
            v_add_u32 v{self.vQa}, {QW}, v{self.vQa}
            s_lshl_b32 s{sT0}, s{sT}, 10
            s_add_u32 s{sT0}, s{sT0}, {QF}
            v_lshl_add_u32 v{self.vQFa}, v0, 4, s{sT0}
            v_and_b32 v23, 0x33, v0
            v_bfe_u32 v25, v0, 2, 1
            v_lshl_add_u32 v23, v25, 3, v23
            v_lshl_add_u32 v23, v21, 2, v23
            v_lshlrev_b32 v23, 4, v23
            v_and_b32 v24, 15, v0
            v_lshlrev_b32 v{self.vGa}, 7, v17
            v_lshlrev_b32 v24, 4, v24
            v_lshl_add_u32 v24, v17, 8, v24
            v_lshl_add_u32 v24, v19, 17, v24
            v_add_u32 v24, 1024, v24
            v_lshlrev_b32 v26, 4, v0
            s_lshl_b32 s{sT0}, s{sT}, 4
            v_bfe_u32 v27, v0, 2, 3
            v_add_u32 v27, s{sT0}, v27
            v_mul_u32_u24 v27, 2752, v27
            v_and_b32 v28, 3, v0
            v_lshl_add_u32 v27, v28, 4, v27
            v_lshl_add_u32 v{self.vF}, v17, 6, v27
            s_lshr_b32 s{sT0}, s{sROT}, 2
            v_xor_b32 v28, s{sT0}, v17
            v_mul_u32_u24 v28, 704512, v28
            v_add_u32 v{self.vF + 1}, v27, v28
            v_and_b32 v27, 0x300, v26
            v_add_u32 v{self.vF + 2}, v27, v26
            v_mul_u32_u24 v20, {FROW}, v19
            v_lshl_add_u32 v20, v17, 10, v20
            v_bfe_u32 v27, v0, 1, 3
            v_lshl_add_u32 v20, v27, 5, v20
            v_and_b32 v27, 1, v0
            v_lshl_add_u32 v{self.vFlo}, v27, 3, v20
            v_bfe_u32 v20, v26, 4, 3
            v_lshlrev_b32 v22, 2, v19
            v_xor_b32 v20, v20, v22
            v_lshlrev_b32 v20, 4, v20
            v_lshrrev_b32 v22, 7, v26
            v_lshl_add_u32 v{self.vD}, v22, 10, v20
            v_mov_b32 v{self.vCnt}, {CNT}
            v_lshl_add_u32 v{self.v1_}, v26, 3, 4""")
        for i in range(4):
            a(f"v_mov_b32 v{100 + i}, 0")
        a(f"ds_write_b128 v{self.vCnt}, v[100:103]\nds_write_b128 v{self.vCnt}, v[100:103] offset:16\nds_write_b128 v{self.vCnt}, v[100:103] offset:32\nds_write_b128 v{self.vCnt}, v[100:103] offset:48\ns_waitcnt lgkmcnt(0)")

    def pass_a(self, isv):
        a = self.a
        a.lg.reset()
        a.vm.reset()
        a(f"v_mov_b32 v{self.vST}, v{24 if isv else 23}")
        XR, ACC, W = self.XR, self.ACC, self.WS_
        sB = sT0 + 2
        atm = self.cfg["atm"]
        wr = lambda g: 104 if (g == 31 and atm) else W + 8 * (g % 3)

        def reads(g):
            i, s = divmod(g, 4)
            B = slot(i)
            self.dsr("ds_read_b128", XR + 4 * g, 4, self.vXA + s, self.vXAh + s, B, ("x", g))
            for ct in range(2):
                for u in range(2):
                    self.dsr("ds_read_b64_tr_b16", wr(g) + 4 * ct + 2 * u, 2, self.vWk + ct, self.vWkh + ct,
                             B + 16384 + (16 * s + 4 * u) * 128, ("w", g, ct))

        def comp(g, cts=(0, 1)):
            for ct in cts:
                a.lg.wait(("x", g), ("w", g, ct))
                wf, xf = vr(wr(g) + 4 * ct, 4), vr(XR + 4 * g, 4)
                d = vr(ACC + 16 * ct, 16)
                A, Bm = (xf, wf) if isv else (wf, xf)
                a(f"v_mfma_f32_32x32x16_bf16 {d}, {A}, {Bm}, {d if g else 0}")

        def kv_store(ct, q):
            d = 112 + 8 * ct + 4 * q
            for k in range(4):
                s = ACC + 16 * ct + 8 * q + 2 * k
                a(f"v_cvt_pk_bf16_f32 v{d + k}, v{s}, v{s + 1}")
            if isv:
                a(f"buffer_store_dwordx4 {vr(d, 4)}, v{self.vST}, {sr(sWS, 4)}, s{sB} offen offset:{512 * q} sc1")
                if q == 1 and ct == 0:
                    a(f"s_add_u32 s{sB}, s{sB}, 262144")
            else:
                a(f"buffer_store_dwordx4 {vr(d, 4)}, v{self.vST}, {sr(sWS, 4)}, s{sB} offen sc1")
                a(f"s_add_u32 s{sB}, s{sB}, 131072")

        a(f"""s_lshr_b32 s{sB}, s{sC}, 1
            s_lshl_b32 s{sB}, s{sB}, 19
            s_lshl_b32 s{sB + 1}, s{sR}, 2
            s_add_u32 s{sB + 1}, s{sB + 1}, s{sT}
            s_lshl_b32 s{sB + 1}, s{sB + 1}, 11
            s_add_u32 s{sB}, s{sB}, s{sB + 1}""")
        self.stamp("mrdy", "M")
        for i in range(8):
            g0 = 4 * i
            if i:
                a.lg.drain()
            if i == 7 and atm:
                comp(27)
                a("s_barrier")
                for g in range(28, 31):
                    reads(g)
                comp(28, (0,))
                reads(31)
                for g in range(29, 32):
                    comp(g, (0,))
                comp(28, (1,))
                a("s_nop 5")
                comp(29, (1,))
                a("s_nop 3")
                kv_store(0, 0)
                comp(30, (1,))
                comp(31, (1,))
                kv_store(0, 1)
                a("s_nop 5")
                kv_store(1, 0)
                kv_store(1, 1)
                break
            a("s_barrier")
            if i == 0:
                self.stamp("BA0", "M")
            reads(g0)
            reads(g0 + 1)
            if i:
                comp(g0 - 1)
            reads(g0 + 2)
            if i == self.cfg['go_at']:
                a(f"buffer_load_dword v{self.vGo}, v{self.vGa}, {sr(sDBG, 4)}, 0 offen sc1")
            comp(g0)
            reads(g0 + 3)
            comp(g0 + 1)
            comp(g0 + 2)
        if not atm:
            comp(31)
            a("s_nop 10")
            for k in range(4):
                kv_store(k >> 1, k & 1)
        self.stamp("KVst", "M")

    def kv_flag(self):
        a = self.a
        ok = self.lab("go")
        a(f"""s_lshr_b32 s{sT0}, s{sC}, 1
            s_lshl_b32 s{sT0}, s{sT0}, 4
            s_add_u32 s{sT0}, s{sT0}, s{sR}
            s_lshl_b32 s{sT0}, s{sT0}, 7
            s_add_u32 s{sT0}, s{sT0}, {CKV}
            s_waitcnt vmcnt({4 + len(a.vm.q)})
            v_cmp_gt_u32 vcc, 32, v{self.vGo}
            s_cbranch_vccz {ok}""")
        q = list(a.vm.q)
        self.poll(self.vGa, "0", self.vGo, sDBG)
        a.vm.q = q
        a.label(ok)

    def issue_f(self, n):
        a = self.a
        sCh, sO, sFB, sLf = sT0 + 4, sT0 + 5, sT0 + 6, sT0 + 7
        if n == 0:
            a(f"s_lshl_b32 s{sFB}, s{sC}, 7\ns_mul_i32 s{sLf}, s{sT}, {FROW}")
        if n == 8:
            a(f"""s_lshl_b32 s{sFB}, s{sTK}, 6
                s_add_u32 s{sFB}, s{sFB}, 2048
                s_cmp_lt_u32 s{sTK}, 11
                s_cselect_b32 s{sFB}, s{sFB}, {OOB}""")
        self.chunk(sCh, n & 7)
        if n >= 8:
            a(f"s_and_b32 s{sCh}, s{sCh}, 3")
        a(f"s_mul_i32 s{sO}, s{sCh}, 176128\ns_add_u32 s{sO}, s{sO}, s{sFB}\ns_add_u32 s{sCh}, s{sO}, 22016")
        pol = "nt" if self.cfg["ntmask"] >> n & 1 else ""
        for m in range(2):
            for k in range(2):
                a(f"s_add_u32 m0, s{sLf}, {fslot(n) + FMAT * m + 1024 * k}\ns_nop 0")
                a(f"buffer_load_dwordx4 v{self.vF + (n >> 3)}, {sr(sWG if m == 0 else sWU, 4)}, s{(sO, sCh)[k]} offen {pol} lds")
                a.vm.issue(("F", n))

    def touch(self, i):
        a = self.a
        sA = sT0 + 8
        a(f"""s_lshr_b32 s{sA}, s2, 3
            s_lshl_b32 s{sA}, s{sA}, 2
            s_add_u32 s{sA}, s{sA}, s{sT}
            s_mul_i32 s{sA}, s{sA}, 11008
            s_add_u32 s{sA}, s{sA}, {2048 * i}
            s_mov_b32 m0, {CNT + 64}
            s_mov_b64 exec, {'0x3f' if i == 5 else '0xffff'}
            buffer_load_dword v{self.v1_}, {sr(sWD, 4)}, s{sA} offen lds
            s_mov_b64 exec, -1""")
        a.vm.issue("touch")

    def issue_wo(self, lo, hi):
        a = self.a
        sA, sL = sT0 + 8, sT0 + 9
        a(f"""s_lshl_b32 s{sA}, s{sT}, 17
            s_lshl_b32 s{sL}, s{sCB}, 7
            s_add_u32 s{sA}, s{sA}, s{sL}
            s_lshl_b32 s{sL}, s{sT}, 14""")
        for k in range(lo, hi):
            a(f"""s_add_u32 m0, s{sL}, {WOL + 1024 * k}
                s_add_u32 s{sA}, s{sA}, {8192 * (k if k == lo else 1)}
                buffer_load_dwordx4 v{self.vD}, {sr(sWO, 4)}, s{sA} offen lds""")
            a.vm.issue("wo")

    def pass_q(self):
        a = self.a
        XR, W, QACC = self.XR, self.WS_, 64
        a.lg.reset()
        a.vm.reset()
        flag_at, f0_at = self.cfg["kvflag_at"], self.cfg["f0_at"]

        def reads(g):
            for u in range(2):
                self.dsr("ds_read_b64_tr_b16", W + 4 * (g % 6) + 2 * u, 2, self.vQa, None, (16 * g + 4 * u) * 64, g)

        def hooks(j):
            if j == flag_at:
                a(f"s_waitcnt vmcnt({len(a.vm.q)})")
                self.stamp("KVack", "M")
                self.signal(sT0)
                if self.cfg["pwait"]:
                    self.lds_signal(self.vCnt, self.v1_, 48)
                self.stamp("KVflag", "M")
            if j == f0_at:
                self.issue_f(0)
            if j == self.cfg["f1_at"]:
                self.issue_f(1)

        if self.cfg["qs"] % 10:
            a("s_barrier")
        self.kv_flag()
        hooks(-2)
        hooks(-1)
        self.stamp("F0iss", "M")
        a("s_barrier")
        self.stamp("BQ", "M")
        for g in range(6):
            reads(g)
        nxt = 6
        for g in range(32):
            a.lg.wait(g)
            d = vr(QACC, 16)
            a(f"v_mfma_f32_32x32x16_bf16 {d}, {vr(W + 4 * (g % 6), 4)}, {vr(XR + 4 * g, 4)}, {d if g else 0}")
            if nxt < 32:
                reads(nxt)
                nxt += 1
            hooks(g)
        a(f"v_mov_b32 v98, {f32(0.25 * LOG2E)}\ns_nop 10")
        for k in range(8):
            a(f"v_pk_mul_f32 {vr(QACC + 2 * k, 2)}, {vr(QACC + 2 * k, 2)}, v[98:99] op_sel_hi:[1,0]")
        for hd in range(2):
            for k in range(4 * hd, 4 * hd + 4):
                a(f"v_cvt_pk_bf16_f32 v{QACC + k}, v{QACC + 2 * k}, v{QACC + 2 * k + 1}")
            a(f"ds_write_b128 v{self.vQFa}, {vr(QACC + 4 * hd, 4)} offset:{4096 * hd}")
        self.lds_signal(self.vCnt, self.v1_, 16)
        self.stamp("Qdone", "M")
        hooks(32)

    def f_units(self, units, hook):
        a = self.a
        XR, ACC, W = self.XR, self.ACC, self.WS_
        jobs = [(n, jj) for n in units for jj in range(16)]
        todo = [(j, u) for j in range(len(jobs)) for u in range(2)]

        def parts(n, jj):
            hi, lo = jj >> 3, (jj >> 2) & 1
            k2, col = (hi, lo) if n < 8 else (lo, hi)
            pos = n if n < 8 else n - 8 + 4 * col
            acc = ACC + (32 * col if n < 8 else 0) + 16 * ((jj >> 1) & 1) + 4 * (jj & 1)
            return k2, col, pos, acc, (n, k2) == (0, 0) or (n, jj >> 2) == (8, 0)

        def reads(now, limit=99):
            while todo and todo[0][0] - 6 <= now and limit:
                limit -= 1
                j, u = todo.pop(0)
                n, jj = jobs[j]
                k2, col = parts(n, jj)[:2]
                self.dsr("ds_read_b64_tr_b16", W + 4 * (j % 6) + 2 * u, 2, self.vFlo, None,
                         fslot(n) + FMAT * ((jj >> 1) & 1) + 2 * FROW * k2 + 256 * u + 512 * col + 16 * (jj & 1), j)

        reads(-1)
        for j, (n, jj) in enumerate(jobs):
            k2, col, pos, acc, first = parts(n, jj)
            a.lg.wait(j)
            for th in range(2):
                d = vr(acc + 8 * th, 4)
                a(f"v_mfma_f32_16x16x32_bf16 {d}, {vr(W + 4 * (j % 6), 4)}, {vr(XR + 16 * pos + 8 * k2 + 4 * th, 4)}, {0 if first else d}")
                if th == 0:
                    reads(j - 1)
            hook(n, jj)
            reads(j, 1)

    def landed(self, *units):
        self.a.vm.wait(*[("F", n) for n in units])
        self.lds_signal(self.vCnt, self.v1_, 0)

    def pass_fa(self):
        a = self.a
        cfg, XR = self.cfg, self.XR
        a(f"s_setprio {cfg['prio_cv']}")
        for k in range(16):
            for q in range(4):
                a(f"v_permlane16_swap_b32 v{XR + 8 * k + q}, v{XR + 8 * k + 4 + q}")
        gat, gated = cfg["gate_at"], 1 if cfg["f1_at"] > 32 else 2
        if gat < 0:
            self.lds_probe(self.vCnt, self.vTmp, 20)
            self.lds_check(self.vCnt, self.vTmp, 20, 4)
            if cfg["f0_at"] > 32:
                self.issue_f(0)
            self.issue_f(gated)
        self.landed(0)
        self.lds_probe(self.vCnt, self.vTmp, 0)
        self.lds_check(self.vCnt, self.vTmp, 0, 16)
        a(f"s_setprio {cfg['prio_m']}")
        self.stamp("F0", "M")
        tk0, tk1, tk2 = cfg["tk0"], cfg["tk0"] + cfg["tkd"], cfg["tk2"]

        def hook(n, jj):
            j = 16 * n + jj
            if jj == 15:
                self.stamp(f"f{n}", "M")
            if j == gat - 2:
                self.lds_probe(self.vCnt, self.vTmp, 20)
            if j == gat:
                self.lds_check(self.vCnt, self.vTmp, 20, 4)
                self.issue_f(gated)
            if j == 17:
                self.lds_probe(self.vCnt, self.vTmp, 24)
            if j == 19:
                self.lds_check(self.vCnt, self.vTmp, 24, 4)
            if n < 7:
                if jj == (cfg["sig_at"] if n else cfg["sig0"]):
                    self.landed(n + 1)
                    if n < 6 and n + 2 > gated:
                        self.issue_f(n + 2)
                if jj == cfg["wo_at"] and n:
                    self.touch(n - 1)
                    self.issue_wo(*((0, 3), (3, 6), (6, 9), (9, 12), (12, 14), (14, 16))[n - 1])
                if jj == 8:
                    self.lds_probe(self.vCnt, self.vTmp, 0)
                if jj == 10:
                    self.lds_check(self.vCnt, self.vTmp, 0, 16 * (n + 2))
            if j in (tk0, tk1):
                back = "L_tk_back%d" % (j == tk1)
                a(f"s_cmp_eq_u32 s{sT}, 0\ns_cbranch_scc1 L_tk{int(j == tk1)}")
                a.label(back)
            if j == tk2 - 2:
                self.lds_probe(self.vCnt, self.vTmp, 56)
            if j == tk2:
                self.lds_check(self.vCnt, self.vTmp, 56, 1)
                a(f"v_readfirstlane_b32 s{sTK}, v{self.vTmp}\ns_sub_u32 s{sTK}, s{sTK}, 1")
                self.stamp("ticket", "M")
                self.issue_f(8)
            if j == 127 and not cfg["u9"]:
                self.issue_f(9)

        self.f_units(range(8), hook)
        self.stamp("Fadone", "M")

    def ticket(self):
        a = self.a
        a.label("L_tk0")
        a.lg.reset()
        self.lds_probe(self.vCnt, self.vTmp, 52)
        self.lds_check(self.vCnt, self.vTmp, 52, 4, nap=1)
        a(f"""s_lshl_b32 s{sPV}, s{sR}, 7
            s_add_u32 s{sPV}, s{sPV}, {TK}
            s_mov_b32 s{sTK}, 1
            s_atomic_add s{sTK}, {sr(sWS, 2)}, s{sPV} glc
            s_branch L_tk_back0""")
        a.label("L_tk1")
        fixed = self.cfg["fixtk"]
        a(f"""s_waitcnt lgkmcnt(0)
            s_add_u32 s{sTK}, s{sC if fixed else sTK}, 1
            v_mov_b32 v{self.vTmp}, s{sTK}
            ds_write_b32 v{self.vCnt}, v{self.vTmp} offset:56
            s_waitcnt lgkmcnt(0)
            s_branch L_tk_back1""")

    def h_signal(self, base, quarter):
        a = self.a
        sA, sB = sT0 + 8, sT0 + 9
        a(f"""s_lshl_b32 s{sA}, s{sR}, 1
            s_lshr_b32 s{sB}, s{sT}, 1
            s_add_u32 s{sA}, s{sA}, s{sB}
            s_lshl_b32 s{sA}, s{sA}, 2
            {quarter.format(d=sB)}
            s_add_u32 s{sA}, s{sA}, s{sB}
            s_lshl_b32 s{sA}, s{sA}, 7
            s_add_u32 s{sA}, s{sA}, {base}""")
        self.signal(sA)

    def gelu(self, tiles, first, c0, T, OUT, lead, gaps):
        a = self.a
        ACC, vOff, c1, sH = self.ACC, self.vF + 2, c0 + 2, sT0 + 12
        k0 = -2.0 * 0.7978845608028654 * LOG2E
        a(f"""s_setprio {self.cfg['prio_gelu']}
            s_lshl_b32 s{sH}, s{sR}, 2
            s_add_u32 s{sH}, s{sH}, s{sT}
            s_mul_i32 s{sH}, s{sH}, 86
            {first.format(d=sH + 1)}
            s_add_u32 s{sH}, s{sH}, s{sH + 1}
            s_lshl_b32 s{sH}, s{sH}, 10
            s_add_u32 s{sH}, s{sH}, {WS_H}""")
        lead()
        a.raw(".p2align 3")
        a(f"""v_mov_b32 v{c0}, {f32(k0)}
            v_mov_b32 v{c0 + 1}, {f32(k0)}
            v_mov_b32 v{c1}, {f32(k0 * 0.044715)}
            v_mov_b32 v{c1 + 1}, {f32(k0 * 0.044715)}""")

        def stores(j):
            for q in range(2):
                a(f"buffer_store_dwordx4 {vr(OUT + 8 * j + 4 * q, 4)}, v{vOff}, {sr(sWS, 4)}, s{sH} offen offset:{2048 * j + 256 * q} sc1")
                a.vm.issue("H")

        for j in range(tiles):
            G, U = ACC + 32 * j, ACC + 32 * j + 16
            p = lambda b, k: vr(b + 2 * k, 2)
            for k in range(8):
                if j == 0 and k < self.cfg["plain"]:
                    a(f"v_mul_f32 v{T + 2 * k}, v{G + 2 * k}, v{G + 2 * k}\nv_mul_f32 v{T + 2 * k + 1}, v{G + 2 * k + 1}, v{G + 2 * k + 1}")
                else:
                    a(f"v_pk_mul_f32 {p(T, k)}, {p(G, k)}, {p(G, k)}")
            for k in range(8):
                a(f"v_pk_fma_f32 {p(T, k)}, {p(T, k)}, {vr(c1, 2)}, {vr(c0, 2)}")
            for k in range(8):
                a(f"v_pk_mul_f32 {p(T, k)}, {p(T, k)}, {p(G, k)}")
            if j:
                stores(j - 1)
            gaps(2 * j)
            a.raw(".p2align 3")
            for k in range(16):
                a(f"v_exp_f32 v{T + k}, v{T + k}")
            for k in range(8):
                a(f"v_pk_mul_f32 {p(G, k)}, {p(G, k)}, {p(U, k)}")
            for k in range(8):
                a(f"v_pk_add_f32 {p(T, k)}, {p(T, k)}, 1.0 op_sel_hi:[1,0]")
            gaps(2 * j + 1)
            a.raw(".p2align 3")
            for k in range(16):
                a(f"v_rcp_f32 v{T + k}, v{T + k}")
            for k in range(8):
                a(f"v_pk_mul_f32 {p(G, k)}, {p(G, k)}, {p(T, k)}")
            for k in range(8):
                a(f"v_cvt_pk_bf16_f32 v{OUT + 8 * j + k}, v{G + 2 * k}, v{G + 2 * k + 1}")
        stores(tiles - 1)

    def gelu_a(self):
        a = self.a
        self.gelu(2, f"s_lshl_b32 s{{d}}, s{sC}, 2", 8, 96, 112, lambda: a(f"v_add_u32 v{self.vD2}, 7168, v{self.vD}"),
                  lambda n: self.issue_f(9) if n + 1 == self.cfg["u9"] else None)
        self.landed(8, 9)
        self.lds_probe(self.vCnt, self.vTmp, 0)
        self.lds_check(self.vCnt, self.vTmp, 0, 144)
        a(f"s_setprio {self.cfg['prio_m']}")
        self.stamp("gelua", "M")

    def h_look(self):
        sFl = sT0 + 10
        self.a(f"""s_lshl_b32 s{sFl}, s{sRB}, 2
            s_add_u32 s{sFl}, s{sFl}, s{sT}
            s_lshl_b32 s{sFl}, s{sFl}, 7
            s_add_u32 s{sFl}, s{sFl}, {CH}
            s_mov_b32 s{sPV}, 0
            s_atomic_add s{sPV}, {sr(sWS, 2)}, s{sFl} glc""")

    def pass_fb(self):
        a = self.a
        cfg, rchk = self.cfg, self.cfg["rchk"]
        self.issue_f(10)

        def hook(n, jj):
            if (n, jj) == (8, 6):
                a.vm.wait("H")
                self.h_signal(CH, f"s_lshr_b32 s{{d}}, s{sC}, 2")
                self.issue_f(11)
            if (n, jj) == (9, cfg["sig_at"]):
                self.landed(10, 11)
            if (n, jj) == (9, 8):
                self.lds_probe(self.vCnt, self.vTmp, 0)
            if (n, jj) == (9, 10):
                self.lds_check(self.vCnt, self.vTmp, 0, 160)
            if n == 11:
                if jj == 0:
                    self.lds_signal(self.vCnt, self.v1_, 28)
                    self.ffn2_scalars()
                if jj == rchk - 2:
                    self.lds_probe(self.vCnt, self.vTmp, 28)
                if jj == rchk:
                    self.lds_check(self.vCnt, self.vTmp, 28, 16)
                k = jj - rchk
                if k >= 0 and k % 2 == 0 and k < 12:
                    self.issue_w(k // 2)

        assert rchk <= 5
        self.f_units(range(8, 12), hook)
        self.lds_signal(self.vCnt, self.v1_, 0)
        self.stamp("Fdone", "M")

        def gaps(n):
            if n == 0:
                self.lds_probe(self.vCnt, self.vTmp, 0)
            else:
                self.lds_check(self.vCnt, self.vTmp, 0, 176)
                self.h_look()
                for k in range(6, 9):
                    self.issue_w(k)

        self.gelu(1, f"s_lshl_b32 s{{d}}, s{sTK}, 1\ns_add_u32 s{{d}}, s{{d}}, 64", 72, 96, 64, self.ffn2_setup, gaps)

    def skipper(self):
        a = self.a
        XR, GB, Z, vO = self.XR, 32, 96, 104
        sCh = sT0 + 4
        a.vm.drain()
        self.h_signal(CH, f"s_lshr_b32 s{{d}}, s{sC}, 2")
        a(f"v_mov_b32 v{self.vTmp}, 8")
        a.lg.reset()
        self.lds_signal(self.vCnt, self.vTmp, 0)
        a(f"s_setprio {self.cfg['prio_gelu']}\ns_cmp_lg_u32 s{sTK}, 11\ns_cbranch_scc1 L_nologit")
        self.lane(vO + 1)
        a(f"""v_lshrrev_b32 v{vO}, 5, v{vO + 1}
            v_lshlrev_b32 v{vO}, 4, v{vO}
            v_bfe_u32 v{vO + 2}, v{vO + 1}, 4, 1
            v_lshl_add_u32 v{vO}, v{vO + 2}, 5, v{vO}
            v_lshlrev_b32 v{vO + 1}, 2, v{vO + 1}""")
        for i in range(8):
            self.chunk(sCh, i)
            a(f"s_lshl_b32 s{sCh}, s{sCh}, 7")
            for k in range(2):
                a(f"buffer_load_dwordx4 {vr(GB + 8 * i + 4 * k, 4)}, v{vO}, {sr(sGW, 4)}, s{sCh} offen offset:{64 * k}")
        a(f"""s_lshl_b32 s{sCh}, s{sR}, 2
            s_add_u32 s{sCh}, s{sCh}, s{sT}
            s_lshl_b32 s{sCh}, s{sCh}, 7
            s_add_u32 s{sCh}, s{sCh}, {WS_G}
            s_waitcnt vmcnt(0)""")
        for kk in range(16):
            for th in range(2):
                d = vr(Z + 4 * th, 4)
                a(f"v_mfma_f32_16x16x32_bf16 {d}, {vr(GB + 4 * kk, 4)}, {vr(XR + 8 * kk + 4 * th, 4)}, {d if kk else 0}")
        a(f"""s_nop 6
            s_mov_b64 exec, 0xffff
            buffer_store_dword v{Z}, v{vO + 1}, {sr(sWS, 4)}, s{sCh} offen sc1
            buffer_store_dword v{Z + 4}, v{vO + 1}, {sr(sWS, 4)}, s{sCh} offen offset:64 sc1
            s_mov_b64 exec, -1
            s_waitcnt vmcnt(0)""")
        self.h_signal(CHB, "s_mov_b32 s{d}, 0")
        for k in range(3):
            a(f"s_add_u32 s{sT0 + 8}, s{sT0 + 8}, 128")
            self.signal(sT0 + 8)
        a.label("L_nologit")

        self.ffn2_scalars()
        self.ffn2_setup()
        a.vm.reset()
        for k in range(9):
            self.issue_w(k)
            self.cap()
        self.h_look()

    vL, vH, vA0, vA1, vRel, vDump, vP, vZ, vD2, vH2, vT0, vB0, vB1 = 8, 10, 11, 12, 13, 15, 16, 17, 2, 19, 9, 14, 18

    sRB2 = 4
    FS = (5, 6, 7, 8, 9, 10, 11, sT0 + 12, sT0 + 13, sT0 + 14)

    def ffn2_scalars(self):
        a = self.a
        sRing, sS0, sS1, sKw, sW0, sKh, sH0 = range(sT0, sT0 + 7)
        a(f"""s_mul_i32 s{sRing}, s{sT}, 12288
            s_mul_i32 s{self.sRB2}, s{sT}, 6144
            s_add_u32 s{self.sRB2}, s{self.sRB2}, {SEGB}
            s_and_b32 s{sKw}, s{sRB}, 3
            s_lshl_b32 s{sKw}, s{sKw}, 1
            s_add_u32 s{sKw}, s{sKw}, s{sCB}
            s_lshl_b32 s{sKw}, s{sKw}, 1
            s_and_b32 s{sKw}, s{sKw}, {15 if self.cfg['rot2'] else 0}
            s_mov_b32 s{sKh}, s{sKw}
            s_lshl_b32 s{sW0}, s{sT}, 18
            s_lshl_b32 s{sS0}, s{sCB}, 7
            s_add_u32 s{sW0}, s{sW0}, s{sS0}
            s_mul_i32 s{sH0}, s{sRB}, 172
            s_lshl_b32 s{sS0}, s{sT}, 4
            s_add_u32 s{sH0}, s{sH0}, s{sS0}
            s_lshl_b32 s{sH0}, s{sH0}, 10
            s_add_u32 s{sH0}, s{sH0}, {WS_H}""")

    def next_step(self, s, sK):
        if 0 < s < 16:
            self.a(f"s_add_u32 s{sK}, s{sK}, 1\ns_and_b32 s{sK}, s{sK}, 15")
        elif s == 16:
            self.a(f"s_mul_i32 s{sK}, s{sT}, 10\ns_sub_u32 s{sK}, 64, s{sK}")
        elif s:
            self.a(f"s_add_u32 s{sK}, s{sK}, 1")

    def cap(self):
        a, CAP = self.a, self.cfg["cap"]
        if len(a.vm.q) > CAP:
            a.vm.q = a.vm.q[len(a.vm.q) - CAP:]
            a(f"s_waitcnt vmcnt({CAP})")

    def issue_w(self, s):
        a = self.a
        sRing, sS0, sS1, sKw, sW0 = range(sT0, sT0 + 5)
        a(f"s_add_u32 m0, s{sRing if WSLOT[s] < 6 else self.sRB2}, {(WSLOT[s] % 6) * 2048}")
        self.next_step(s, sKw)
        a(f"s_lshl_b32 s{sS1}, s{sKw}, 14\ns_add_u32 s{sS1}, s{sS1}, s{sW0}")
        a(f"buffer_load_dwordx4 v{self.vD}, {sr(sWD, 4)}, s{sS1} offen lds")
        a(f"buffer_load_dwordx4 v{self.vD2}, {sr(sWD, 4)}, s{sS1} offen offset:1024 lds")
        a.vm.issue(("w", s))
        a.vm.issue(("w", s))

    @staticmethod
    def wreg(s):
        return 96 + 8 * (s % 3) if s < 16 else 128 + 8 * (s - 16)

    def w_reads(self, s):
        self.a.vm.wait(("w", s))
        regs = (self.vA0, self.vA1) if WSLOT[s] < 6 else (self.vB0, self.vB1)
        for ct in range(2):
            for u in range(2):
                self.dsr("ds_read_b64_tr_b16", self.wreg(s) + 4 * ct + 2 * u, 2, regs[ct], None,
                         (WSLOT[s] % 6) * 2048 + 1024 * u, (s, ct))

    def ffn2_setup(self):
        a = self.a
        vL, vH, vA0, vA1, vRel, vDump, vP, vZ, vH2, vT0 = (self.vL, self.vH, self.vA0, self.vA1, self.vRel, self.vDump, self.vP,
                                                           self.vZ, self.vH2, self.vT0)
        sRing, sS0 = sT0, sT0 + 1
        self.lane(vL)
        a(f"""v_lshlrev_b32 v{vP}, 4, v{vL}
            s_and_b32 s{sS0}, s{sT}, 1
            s_mul_i32 s{sS0}, s{sS0}, 88064
            v_add_u32 v{vH}, s{sS0}, v{vP}
            s_sub_u32 s{sS0}, 88064, s{sS0}
            v_add_u32 v{vH2}, s{sS0}, v{vP}
            v_add_u32 v{vDump}, s{sRing}, v{vP}
            v_lshrrev_b32 v20, 5, v{vL}
            v_bfe_u32 v21, v{vL}, 2, 2
            v_lshl_add_u32 v20, v20, 2, v21
            v_and_b32 v21, 1, v{vL}
            v_lshlrev_b32 v21, 2, v21
            v_bfe_u32 v22, v{vL}, 4, 1
            v_lshl_add_u32 v21, v22, 1, v21
            v_bfe_u32 v23, v{vL}, 1, 1
            v_add_u32 v21, v21, v23
            v_lshlrev_b32 v21, 3, v21
            v_lshl_add_u32 v21, v20, 7, v21
            v_bfe_u32 v23, v{vL}, 3, 1
            v_lshl_add_u32 v21, v23, 6, v21
            s_lshr_b32 s{sS0}, s{sT}, 1
            s_lshl_b32 s{sS0}, s{sS0}, 6
            v_xor_b32 v{vT0}, s{sS0}, v21
            v_add_u32 v{vA0}, s{sRing}, v{vT0}
            v_xor_b32 v{vA1}, 64, v{vA0}
            v_add_u32 v{self.vB0}, s{self.sRB2}, v{vT0}
            v_xor_b32 v{self.vB1}, 64, v{self.vB0}
            s_lshl_b32 s{sS0}, s{sT}, 2
            v_add_u32 v{vRel}, s{sS0}, v{self.vCnt}
            v_and_b32 v{vZ}, 31, v{vL}
            v_lshlrev_b32 v30, 10, v{vZ}
            v_lshlrev_b32 v{vZ}, 2, v{vZ}
            v_lshrrev_b32 v20, 5, v{vL}
            v_lshl_add_u32 v30, v20, 5, v30
            v_add_u32 v31, s{self.sRB2}, v{vP}
            s_xor_b32 s{sS0}, s{sT}, 2
            s_mul_i32 s{sS0}, s{sS0}, 6144
            s_add_u32 s{sS0}, s{sS0}, {SEGB}
            v_add_u32 v20, s{sS0}, v{vP}""")
        for reg, d in ((21, 2), (22, 1), (23, 3)):
            a(f"s_xor_b32 s{sS0}, s{sT}, {d}\ns_mul_i32 s{sS0}, s{sS0}, 12288\nv_add_u32 v{reg}, s{sS0}, v{vP}")

    def ffn2(self):
        a = self.a
        ACC = 32
        vH, vDump, vZ, vH2 = self.vH, self.vDump, self.vZ, self.vH2
        sRing, sS0, sS1, sKw, sW0, sKh, sH0 = range(sT0, sT0 + 7)
        sFl, sNeed = sT0 + 10, sT0 + 11
        NS, PD = 22, self.cfg["pd"]
        issue_w, reads, wreg = self.issue_w, self.w_reads, self.wreg
        hreg = lambda s: 176 + 8 * (s % 10)
        a(f"s_setprio {self.cfg['prio_m']}")
        a.lg.reset()
        a.vm.reset()
        a.vm.issue("pre")

        def arrived(need):
            ready = self.lab("hready")
            a.lg.drain()
            a(f"s_cmp_ge_u32 s{sPV}, {need}\ns_cbranch_scc1 {ready}")
            self.spoll(sFl, need)
            a.label(ready)

        def issue_h(s):
            if s == 16:
                arrived(f"s{sNeed}")
                self.stamp("Hbpoll", "M")
                a(f"""s_lshl_b32 s{sFl}, s{sRB}, 1
                    s_and_b32 s{sS0}, s{sT}, 1
                    s_add_u32 s{sFl}, s{sFl}, s{sS0}
                    s_lshl_b32 s{sFl}, s{sFl}, 7
                    s_add_u32 s{sFl}, s{sFl}, {WS_G}
                    buffer_load_dword v{vZ}, v{vZ}, {sr(sWS, 4)}, s{sFl} offen sc1""")
                a.vm.issue("z")
            self.next_step(s, sKh)
            a(f"s_lshl_b32 s{sS0}, s{sKh}, 10\ns_add_u32 s{sS0}, s{sS0}, s{sH0}")
            if s >= 20:
                a(f"s_cmp_eq_u32 s{sT}, 3\ns_cselect_b32 s{sS0}, {OOB}, s{sS0}")
            for tt in range(2):
                a(f"buffer_load_dwordx4 {vr(hreg(s) + 4 * tt, 4)}, v{(vH, vH2)[tt]}, {sr(sWS, 4)}, s{sS0} offen sc1")
                a.vm.issue(("h", s))

        arrived(8)
        self.stamp("Hpoll", "M")
        for s in range(PD):
            issue_h(s)
        a.vm.wait("pre")
        reads(0)
        reads(1)
        skip = self.lab("nosig")
        a(f"s_cmp_ge_u32 s{sTK}, 11\ns_cbranch_scc1 {skip}")
        self.h_signal(CHB, f"s_mul_i32 s{{d}}, s{sTK}, 11\ns_lshr_b32 s{{d}}, s{{d}}, 5")
        a.label(skip)
        nh = PD
        hb = self.cfg["hb"]

        def mm(s, ct, tt):
            a.vm.wait(("h", s))
            a.lg.wait((s, ct))
            d = vr(ACC + 32 * tt + 16 * ct, 16)
            a(f"v_mfma_f32_32x32x16_bf16 {d}, {vr(wreg(s) + 4 * ct, 4)}, {vr(hreg(s) + 4 * tt, 4)}, {d if s else 0}")

        def hold(s):
            if s == self.cfg["hold"]:
                self.lds_probe(self.vRel, self.vTmp, 32)
                self.lds_check(self.vRel, self.vTmp, 32, 1, nap=2)
                self.o_look()

        for s in range(16):
            self.stamp(f"s{s}", "M")
            hold(s)
            if s == hb - 2:
                a(f"""s_add_u32 s{sFl}, s{sFl}, {CHB - CH}
                    s_cmp_eq_u32 s{sT}, 3
                    s_cselect_b32 s{sNeed}, 6, 8
                    s_mov_b32 s{sPV}, 0
                    s_atomic_add s{sPV}, {sr(sWS, 2)}, s{sFl} glc""")
            if s == hb + 1:
                self.final_setup()
            for k in range(4):
                mm(s, *divmod(k, 2))
                if (k == 0 or (k == 2 and s >= 13)) and nh < NS and (nh < 16 or s >= hb):
                    issue_h(nh)
                    nh += 1
                if k == 1:
                    reads(s + 2)
                if k == 2 and s < 13:
                    issue_w(s + 9)
                if k == 3 and s >= 14:
                    reads(s + 4)
        while nh < NS:
            issue_h(nh)
            nh += 1
        reads(20)
        reads(21)
        hold(16)
        self.stamp("s16", "M")
        for n, (ct, tt) in enumerate(((0, 1), (1, 0), (1, 1), (0, 0))):
            for s in range(16, NS):
                mm(s, ct, tt)
                if n and s >= 18:
                    k = (8, 4, 12)[n - 1] + s - 18
                    if s == 18:
                        a(("s_nop 3", "s_nop 6", "s_nop 8")[n - 1])
                    a(f"ds_write_b128 v{vDump}, {vr(ACC + 4 * k, 4)} offset:{1024 * (k - 4)}")
                if n and 6 * (n - 1) + s - 16 < 9:
                    self.early_o(6 * (n - 1) + s - 16)
                if 6 * n + s - 16 == self.cfg["look2"]:
                    self.o_look()
        self.lds_signal(self.vCnt, self.v1_, 4)
        self.stamp("s22", "M")

    def final_setup(self):
        a = self.a
        sFl, sOut, sO, sA, sTT, sKh, sF2, sG, sE, sX = self.FS
        a(f"""s_and_b32 s{sTT}, s{sT}, 1
            s_lshr_b32 s{sKh}, s{sT}, 1
            s_lshl_b32 s{sFl}, s{sRB}, 1
            {f"s_add_u32 s{sFl}, s{sFl}, s{sTT}" if self.cfg['ott'] else ""}
            {f"s_lshl_b32 s{sFl}, s{sFl}, 1" if self.cfg['ott'] else ""}
            s_add_u32 s{sFl}, s{sFl}, s{sKh}
            s_lshl_b32 s{sFl}, s{sFl}, 8
            s_add_u32 s{sFl}, s{sFl}, {CO}
            s_add_u32 s{sF2}, s{sFl}, 128
            s_mov_b32 s{sPV}, 0
            s_mov_b32 s{sA}, 0
            s_atomic_add s{sPV}, {sr(sWS, 2)}, s{sFl} glc
            s_atomic_add s{sA}, {sr(sWS, 2)}, s{sF2} glc
            s_lshl_b32 s{sOut}, s{sRB}, 1
            s_add_u32 s{sOut}, s{sOut}, s{sTT}
            s_lshl_b32 s{sO}, s{sOut}, 5
            s_lshl_b32 s{sG}, s{sKh}, 4
            s_add_u32 s{sO}, s{sO}, s{sG}
            s_lshl_b32 s{sO}, s{sO}, 10
            s_add_u32 s{sO}, s{sO}, {WS_O}
            s_lshl_b32 s{sOut}, s{sOut}, 15
            s_lshl_b32 s{sG}, s{sCB}, 7
            s_add_u32 s{sOut}, s{sOut}, s{sG}
            s_lshl_b32 s{sG}, s{sKh}, 6
            s_add_u32 s{sOut}, s{sOut}, s{sG}""")

    @staticmethod
    def of(s):
        return 96 + 4 * s if s < 14 else 200 + 4 * (s - 14)

    def oloads(self, h, sO):
        a = self.a
        for s in range(8 * h, 8 * h + 8):
            if s % 8 == 4:
                a(f"s_add_u32 s{sO}, s{sO}, 4096")
            a(f"buffer_load_dwordx4 {vr(self.of(s), 4)}, v{self.vP}, {sr(sWS, 4)}, s{sO} offen offset:{1024 * (s % 4)} sc1")
            a.vm.issue(s)

    def o_look(self):
        sFl, sOut, sO, sA, sTT, sKh, sF2, sG, sE, sX = self.FS
        self.a(f"""s_mov_b32 s{sPV}, 0
            s_mov_b32 s{sA}, 0
            s_atomic_add s{sPV}, {sr(sWS, 2)}, s{sFl} glc
            s_atomic_add s{sA}, {sr(sWS, 2)}, s{sF2} glc""")

    def o_pick(self):
        sFl, sOut, sO, sA, sTT, sKh, sF2, sG, sE, sX = self.FS
        self.a(f"""s_cmp_lt_u32 s{sPV}, 8
            s_cselect_b32 s{sG}, 1, 0
            s_lshl_b32 s{sX}, s{sG}, 13
            s_add_u32 s{sT0 + 1}, s{sO}, s{sX}
            s_add_u32 s{sX}, s{sT0 + 1}, 4096""")

    def oload(self, s, lo, hi):
        self.a(f"buffer_load_dwordx4 {vr(self.of(s), 4)}, v{self.vP}, {sr(sWS, 4)}, s{lo if s % 8 < 4 else hi} offen offset:{1024 * (s % 4)} sc1")

    def early_o(self, n):
        a = self.a
        sFl, sOut, sO, sA, sTT, sKh, sF2, sG, sE, sX = self.FS
        if n == 0:
            a.vm.drain()
            a.lg.drain()
            self.o_pick()
            a(f"s_max_u32 s{sE}, s{sPV}, s{sA}\ns_lshr_b32 s{sE}, s{sE}, 3")
            return
        skip = self.lab("noearly")
        a(f"s_cbranch_scc0 {skip}")
        self.oload(n - 1, sT0 + 1, sX)
        a.label(skip)

    def final(self):
        a = self.a
        B, PT, OWN, OTH = 32, 48, 152, 168
        WO = lambda s: (184, 192, 208, 216, 224, 232, 240, 248)[s % 8]
        vL, vH, vX, vZ, vA0, vA1 = self.vL, self.vP, self.vDump, self.vZ, self.vA0, self.vA1
        vOut, vG, vP1, vP2, vP3, vB0, vB1, vXp, vX = 30, 2, 21, 22, 23, self.vB0, self.vB1, 20, 31
        sFl, sOut, sO, sA, sTT, sKh, sF2, sG, sE, sX = self.FS
        top, got, loaded, join = self.lab("opoll"), self.lab("ogot"), self.lab("oloaded"), self.lab("ojoin")
        a.lg.reset()
        a(f"""s_cmp_lg_u32 s{sE}, 0
            s_cbranch_scc1 {loaded}
            s_mov_b32 s{sSPIN}, 200000""")
        a.label(top)
        a(f"""s_waitcnt lgkmcnt(0)
            s_max_u32 s{sE}, s{sPV}, s{sA}
            s_cmp_ge_u32 s{sE}, 8
            s_cbranch_scc1 {got}""")
        self.o_look()
        a(f"""s_sub_u32 s{sSPIN}, s{sSPIN}, 1
            s_cbranch_scc0 {top}
            s_waitcnt lgkmcnt(0)""")
        a.label(got)
        self.o_pick()
        self.stamp("Opoll", "M")
        a.vm.reset()
        for s in range(8):
            self.oload(s, sT0 + 1, sX)
            a.vm.issue(s)
        self.o_look()
        a.label(loaded)
        a(f"s_xor_b32 s{sO}, s{sT0 + 1}, 0x2000")
        a(f"""s_xor_b32 s{sF2}, s{sG}, 1
            s_lshl_b32 s{sF2}, s{sF2}, 7
            s_add_u32 s{sF2}, s{sF2}, s{sFl}
            s_lshl_b32 s{sX}, s{sKh}, 1
            s_add_u32 s{sG}, s{sG}, s{sX}
            s_lshl_b32 s{sX}, s{sG}, 14
            s_add_u32 s{sX}, s{sX}, {WOL}
            v_add_u32 v{vA0}, s{sX}, v{self.vT0}
            s_xor_b32 s{sG}, s{sG}, 1
            s_lshl_b32 s{sX}, s{sG}, 14
            s_add_u32 s{sX}, s{sX}, {WOL}
            v_add_u32 v{vB0}, s{sX}, v{self.vT0}
            v_xor_b32 v{vA1}, 64, v{vA0}
            v_xor_b32 v{vB1}, 64, v{vB0}""")
        a.lg.reset()

        def wreads(s):
            if s >= 16:
                return
            for ct in range(2):
                for u in range(2):
                    self.dsr("ds_read_b64_tr_b16", WO(s) + 4 * ct + 2 * u, 2, ((vA0, vA1), (vB0, vB1))[s >> 3][ct], None,
                             (s & 7) * 2048 + 1024 * u, ("wo", s))

        def step(s):
            a.vm.wait(s)
            a.lg.wait(("wo", s))
            w = WO(s)
            ot, ow = (vr(OTH, 16), vr(OWN, 16)) if s < 8 else (vr(PT + 32, 16), vr(PT + 16, 16))
            a(f"v_mfma_f32_32x32x16_bf16 {ot}, {vr(w + 4, 4)}, {vr(self.of(s), 4)}, {ot if s % 8 else 0}")
            wreads(s + 2)
            if s < 4:
                self.oload(8 + 2 * s, sT0 + 1, sX)
                a.vm.issue(8 + 2 * s)
            if 2 <= s < 8:
                i, h = divmod(s - 2, 2)
                for k in range(8 * h, 8 * h + 4):
                    a(f"v_add_f32 v{B + k}, v{B + k}, v{PT + 16 * i + k}")
            a(f"v_mfma_f32_32x32x16_bf16 {ow}, {vr(w, 4)}, {vr(self.of(s), 4)}, {ow if s % 8 else 0}")
            if s < 4:
                self.oload(9 + 2 * s, sT0 + 1, sX)
                a.vm.issue(9 + 2 * s)
            if s < 6:
                i, h = divmod(s, 2)
                for q in range(2 * h, 2 * h + 2):
                    self.dsr("ds_read_b128", PT + 16 * i + 4 * q, 4, (vP1, vP2, vP3)[i], None, 4096 * i + 1024 * q, ("wo", s + 2))
            if 2 <= s < 8:
                i, h = divmod(s - 2, 2)
                for k in range(8 * h + 4, 8 * h + 8):
                    a(f"v_add_f32 v{B + k}, v{B + k}, v{PT + 16 * i + k}")
            if 8 <= s < 12:
                for k in range(4 * (s - 8), 4 * (s - 8) + 4):
                    a(f"v_mul_f32 v{B + k}, v{B + k}, v{vG + 2}")

        self.lds_probe(self.vCnt, self.vTmp, 4)
        for s in range(2):
            wreads(s)
        a(f"""v_mul_f32 v{vG}, {f32(LOG2E)}, v{vZ}
            v_exp_f32 v{vG + 2}, v{vG}
            v_exp_f32 v{vG}, -v{vG}
            s_nop 0
            v_add_f32 v{vG + 2}, 1.0, v{vG + 2}
            v_add_f32 v{vG}, 1.0, v{vG}
            v_rcp_f32 v{vG + 2}, v{vG + 2}
            v_rcp_f32 v{vG}, v{vG}""")
        self.lds_check(self.vCnt, self.vTmp, 4, 16)
        self.stamp("msync", "M")
        a.lg.drain()
        a(f"""s_min_u32 s{sE}, s{sPV}, s{sA}
            s_lshr_b32 s{sE}, s{sE}, 3
            s_cselect_b32 s{sT0 + 1}, s{sO}, {OOB}
            s_add_u32 s{sX}, s{sT0 + 1}, 4096""")
        for s in range(8):
            step(s)
            if s == self.cfg["look3"]:
                a(f"s_mov_b32 s{sPV}, 0\ns_atomic_add s{sPV}, {sr(sWS, 2)}, s{sF2} glc")
        q, le = list(a.vm.q), list(a.lg.q)
        if self.cfg["otm"]:
            for s in range(10, 16):
                wreads(s)
                a.lg.wait(("wo", s - 2))
            le = list(a.lg.q)
        a(f"s_cmp_lg_u32 s{sE}, 0\ns_cbranch_scc1 {join}")
        self.stamp("g1done", "M")
        seen = self.lab("oseen")
        if self.cfg["look3"] < 8:
            a(f"s_waitcnt lgkmcnt(0)\ns_cmp_ge_u32 s{sPV}, 8\ns_cbranch_scc1 {seen}")
        self.spoll(sF2, 8)
        a.label(seen)
        self.stamp("late", "M")
        a.vm.drain()
        self.oloads(1, sO)
        assert a.vm.q == q
        a.lg.q = le
        a.label(join)
        if not self.cfg["otm"]:
            for s in range(8, 16):
                step(s)
            self.stamp("Omfma", "M")
            a("s_nop 10")
            for q in range(4):
                for k in range(4 * q, 4 * q + 4):
                    a(f"v_add_f32 v{OTH + k}, v{OTH + k}, v{PT + 32 + k}")
                a(f"ds_write_b128 v{vX}, {vr(OTH + 4 * q, 4)} offset:{1024 * q}")
            for k in range(8):
                a(f"v_pk_add_f32 {vr(OWN + 2 * k, 2)}, {vr(OWN + 2 * k, 2)}, {vr(PT + 16 + 2 * k, 2)}")
            for k in range(8):
                a(f"v_pk_fma_f32 {vr(B + 2 * k, 2)}, {vr(OWN + 2 * k, 2)}, {vr(vG, 2)}, {vr(B + 2 * k, 2)} op_sel_hi:[1,0,1]")
        else:
            for k in range(16):
                a(f"v_mul_f32 v{B + k}, v{B + k}, v{vG + 2}")
            for s in range(8, 16):
                a.vm.wait(s)
                a.lg.wait(("wo", s))
                ot = vr(PT + 32, 16)
                a(f"v_mfma_f32_32x32x16_bf16 {ot}, {vr(WO(s) + 4, 4)}, {vr(self.of(s), 4)}, {ot if s % 8 else 0}")
            for s in range(8, 16):
                ow = vr(PT + 16, 16)
                a(f"v_mfma_f32_32x32x16_bf16 {ow}, {vr(WO(s), 4)}, {vr(self.of(s), 4)}, {ow if s % 8 else 0}")
                if s == 8:
                    a("s_nop 5")
                if s == 9:
                    a("s_nop 3")
                if 9 <= s < 13:
                    q = s - 9
                    for k in range(4 * q, 4 * q + 4):
                        a(f"v_add_f32 v{OTH + k}, v{OTH + k}, v{PT + 32 + k}")
                    a(f"ds_write_b128 v{vX}, {vr(OTH + 4 * q, 4)} offset:{1024 * q}")
                if s == 13 and self.cfg["ebar"]:
                    a("s_waitcnt lgkmcnt(0)\ns_barrier")
                    for q in range(4):
                        a(f"ds_read_b128 {vr(PT + 4 * q, 4)}, v{vXp} offset:{1024 * q}")
            self.stamp("Omfma", "M")
            if self.cfg["ebar"]:
                for q in range(4):
                    a(f"s_waitcnt lgkmcnt({3 - q})")
                    for k in range(4 * q, 4 * q + 4):
                        a(f"v_fmac_f32 v{B + k}, v{PT + k}, v{vG}")
                for h in range(2):
                    ks = range(4 * h, 4 * h + 4)
                    for k in ks:
                        a(f"v_pk_add_f32 {vr(OWN + 2 * k, 2)}, {vr(OWN + 2 * k, 2)}, {vr(PT + 16 + 2 * k, 2)}")
                    for k in ks:
                        a(f"v_pk_fma_f32 {vr(B + 2 * k, 2)}, {vr(OWN + 2 * k, 2)}, {vr(vG, 2)}, {vr(B + 2 * k, 2)} op_sel_hi:[1,0,1]")
                    for k in ks:
                        a(f"v_cvt_pk_bf16_f32 v{PT + k}, v{B + 2 * k}, v{B + 2 * k + 1}")
                    a(f"buffer_store_dwordx4 {vr(PT + 4 * h, 4)}, v{vOut}, {sr(sOUT, 4)}, s{sOut} offen offset:{16 * h}")
                return
        a("s_waitcnt lgkmcnt(0)\ns_barrier")
        self.stamp("bar", "M")
        for q in range(4):
            a(f"ds_read_b128 {vr(PT + 4 * q, 4)}, v{vXp} offset:{1024 * q}")
        if self.cfg["otm"]:
            a("s_nop 5")
            for k in range(8):
                a(f"v_pk_add_f32 {vr(OWN + 2 * k, 2)}, {vr(OWN + 2 * k, 2)}, {vr(PT + 16 + 2 * k, 2)}")
            for k in range(8):
                a(f"v_pk_fma_f32 {vr(B + 2 * k, 2)}, {vr(OWN + 2 * k, 2)}, {vr(vG, 2)}, {vr(B + 2 * k, 2)} op_sel_hi:[1,0,1]")
        for q in range(4):
            a(f"s_waitcnt lgkmcnt({3 - q})")
            for k in range(2):
                r = 4 * q + 2 * k
                a(f"v_pk_fma_f32 {vr(B + r, 2)}, {vr(PT + r, 2)}, {vr(vG, 2)}, {vr(B + r, 2)} op_sel_hi:[1,0,1]")
            for k in range(2):
                r = 4 * q + 2 * k
                a(f"v_cvt_pk_bf16_f32 v{64 + 2 * q + k}, v{B + r}, v{B + r + 1}")
            if q % 2 == 1:
                a(f"buffer_store_dwordx4 {vr(64 + 4 * (q // 2), 4)}, v{vOut}, {sr(sOUT, 4)}, s{sOut} offen offset:{16 * (q // 2)}")

    def build(self):
        a = self.a
        cfg = self.cfg
        self.prologue()
        a(f"s_setprio {cfg['prio_l']}")
        self.loader()
        self.attn_start()
        self.stamp("attn0", "L")
        self.attn_loop()
        self.attn_finish()
        self.stamp("Oflag", "L")
        self.dump_stamps(True)
        a("s_endpgm")

        a.label("L_mwave")
        if cfg["swap"]:
            a("s_setprio 1")
        self.m_setup()
        if cfg["swap"]:
            a(f"s_setprio {cfg['prio_m']}")
        a(f"s_bitcmp1_b32 s{sC}, 0\ns_cbranch_scc1 L_pass_v")
        self.pass_a(False)
        a("s_branch L_pass_q")
        a.label("L_pass_v")
        self.pass_a(True)
        a.label("L_pass_q")
        self.pass_q()
        self.pass_fa()
        self.gelu_a()
        a(f"s_cmp_ge_u32 s{sTK}, 11\ns_cbranch_scc1 L_skipper")
        self.pass_fb()
        a.label("L_ffn2")
        self.stamp("gelu", "M")
        self.ffn2()
        self.final()
        if cfg.get("stamps"):
            a("s_waitcnt vmcnt(0)")
            self.stamp("end", "M")
            self.dump_stamps(False)
        a.label("L_end")
        a("s_endpgm")
        self.ticket()
        a.label("L_skipper")
        self.skipper()
        a("s_branch L_ffn2")
        self.fallback()
        return a.text()


HEADER = """; Fused kernel: out = g * MHA(x) + (1 - g) * GEGLU(x),  g = sigmoid(x . gate_w)
; Kernarg (88 bytes, pointers): 0 A_x, 8 A_wqkv, 16 A_wo, 24 B_x (unused by the reference), 32 B_w_gate, 40 B_w_up,
;   48 B_w_down, 56 gate_w, 64 d_out, 72 d_debug, 80 d_ws
;
; 256 workgroups of 8 waves, one per CU. Workgroup (c, r) owns 128 tokens (row block r) and column group c:
;   waves 0-3  K (c even) or V (c odd) for heads 4*(c>>1)..+3, Q for heads 2c, 2c+1, gate/up columns 64c..64c+63 with
;              GELU; the other 352 columns and the mixing logit go by ticket to the first 12 groups of a row block; then one 64x64 tile of h @ w_down and o @ wo and the mix.
;   waves 4-7  stage x / w_qkv into LDS, then attention: one head, four query tiles, half of the keys per wave.
; Hand-offs between workgroups (K/V, h, logit, o) go through d_ws: write-through (sc1) stores, vmcnt wait, then an atomic
;   add on a counter; the reader polls the counter with atomics and loads with sc1. The counters are cleared at the start
;   of every launch by workgroups 0-31, which report that in d_debug; nobody touches a counter before seeing the report.
;   All waits are bounded. No hand-off depends on where a workgroup runs.
; Softmax: scores are exponentiated with a constant shift while that is exact, and the row sum is checked afterwards. A wave whose
;   row sum left [2^-24, 2^64], or whose result is not finite, recomputes its tiles with the true row maximum subtracted
;   (L_fallback) before it publishes them.
; P @ V uses the 2:4 sparse MFMA with an index that selects the upper halves of the f32 exponentials (bf16 by truncation);
;   a row of ones in the V operand yields the row sum from the same values.
; @launch grid=(256,1,1) block=(512,1,1) lds=%d
.amdgcn_target "amdgcn-amd-amdhsa--gfx950"
.text
.globl %s_kernel
.p2align 8
.type %s_kernel,@function
%s_kernel:
""" % (LDS_BYTES, NAME, NAME, NAME)

FOOTER = """.section .rodata,"a"
.p2align 6
.amdhsa_kernel %s_kernel
  .amdhsa_next_free_vgpr 256
  .amdhsa_next_free_sgpr 102
  .amdhsa_accum_offset 256
  .amdhsa_group_segment_fixed_size 0
  .amdhsa_kernarg_size 88
  .amdhsa_user_sgpr_count 2
  .amdhsa_user_sgpr_kernarg_segment_ptr 1
  .amdhsa_system_sgpr_workgroup_id_x 1
  .amdhsa_float_denorm_mode_32 3
.end_amdhsa_kernel
""" % NAME

DEFAULT = dict(stM='start,BA0,KVst,KVflag,Qdone,F0,Fdone,gelu,Hflag,Hpoll,ffn2,Opoll,Omfma,end',
               stL='start,karg,A0,A2,A7,KVpoll,Qrdy,attn0,attn1,Ost,Oflag',
               outpol='', rowmask=14, qs=14400, tf=0, gate_f=1, gate_at=-1, look=13, lfast=1, shift=4.0, oop=0, wfirst=0, ebar=1, su=2, go_at=6, z14=1, f16=1, denorm=3, pwait=4, p1=10, jit=100000000, chk=0, chk_need=176, rdv=52, rdv_need=128, tk0=107, tkd=6, tk2=118, fixtk=0, xmap=1, tb=0, tlate=0, ntmask=241, u9=0, prio_cv=3, hold=16, bpol='', hb=13, look2=16, look3=1, gaps=1131110, plain=8, galign=1, k1=0, sig0=7, f1_at=99, swap=0, rel=1, touch=1, tq=1, f1_early=0, rbits=3, rot=4, rot2=1, la=2, nst=4, defer=0, tpol='', qpol='', xn=8, wn=8, fn=8, xpol='', wpol='', fpol='nt', hasync=1, otm=1, atm=1, kvflag_at=12, ott=1, f0_at=0, sig_at=4, rchk=4, wo_at=12, boost=0, pulse=0, pulse2=0, pd=3, cap=6, prio_l=2, prio_m=0, prio_gelu=3)


def generate(**kw):
    cfg = dict(DEFAULT)
    cfg.update(kw)
    body = Gen(cfg).build()
    msgs = lint(body)
    if cfg.get("stamps"):
        body += f"; STAMPS M {cfg['stM']}\n"
    return HEADER + body + FOOTER.replace("denorm_mode_32 3", f"denorm_mode_32 {cfg['denorm']}"), msgs


if __name__ == "__main__":
    out = sys.argv[1]
    kw = {}
    for arg in sys.argv[2:]:
        k, v = arg.split("=")
        try:
            kw[k] = int(v)
        except ValueError:
            try:
                kw[k] = float(v)
            except ValueError:
                kw[k] = v
    text, msgs = generate(**kw)
    for m in msgs:
        print("LINT:", m)
    open(out, "w").write(text)
    print("wrote", out, len(text), "bytes,", text.count("\n"), "lines")
```

```python
import struct
import sys

from asmlib import Asm, lint, sr, vr

NAME = "gated_mix__softmax_full_mha__glu_gated_geglu__prompt"


def f32(x):
    return "0x%08x" % struct.unpack("<I", struct.pack("<f", x))[0]


LOG2E = 1.4426950408889634

WS_KV, WS_O, WS_H, WS_G, WS_FLAG, WS_STAMP = 0x000000, 0x400000, 0x600000, 0xBC0000, 0xC00000, 0xD00000
CKV, CH, CO, CHB, TK = (WS_FLAG + 128 * n for n in (0, 128, 256, 512, 640))
OOB = 0x20000000

NSLOT = 4
QW, QF, PART, CNT = 98304, 131072, 139776, 158208
FROW, FMAT = 2064, 8256
WOL, SEGA, SEGB = 74240, 12352, 49408
WSLOT = [s % 8 for s in range(22)]


def woff(s):
    return (WSLOT[s] % 6 >> 1) * 4112

LDS_BYTES = 163840

sX, sWQ, sWO, sWG, sWU, sWD, sGW, sOUT, sDBG, sWS = 4, 8, 12, 16, 20, 24, 28, 32, 36, 40
sC, sR, sW, sT, sROT, sRB, sCB, sDEL = 44, 45, 46, 47, 48, 49, 50, 51
sONE, sPV, sTK = 71, 69, 53
sVM = 52
sT0 = 54
sSPIN = 70
sSTAMP = 72
SIZES = {sX: 2097152, sWQ: 1572864, sWO: 524288, sWG: 1409024, sWU: 1409024, sWD: 1409024, sGW: 1024, sOUT: 2097152,
         sDBG: 256, sWS: 268435456}
KARG = {sX: 0, sWQ: 8, sWO: 16, sWG: 32, sWU: 40, sWD: 48, sGW: 56, sOUT: 64, sDBG: 72, sWS: 80}


def slot(n):
    return (n % NSLOT) * 24576


def fslot(n):
    return (n % 4) * 2 * FMAT


class Gen:
    def __init__(self, cfg):
        self.cfg = cfg
        self.a = Asm()
        self.uid = 0
        self.bg = self.hi = False

    def lab(self, base):
        self.uid += 1
        return f"L_{base}_{self.uid}"

    def clock(self):
        return "s_memtime" if self.cfg.get("stamps") == 2 else "s_memrealtime"

    def names(self, role):
        if "pad" in self.cfg:
            return ["start", self.cfg["pad"]]
        return self.cfg["st" + role].split(",")

    def stamp(self, name, role):
        if self.cfg.get("stamps") and name in self.names(role):
            n = self.names(role).index(name)
            a = self.a
            a(f"{self.clock()} {sr(sSTAMP + 2 * n, 2)}")
            a.lg.drain()

    def dump_stamps(self, is_l):
        if not self.cfg.get("stamps"):
            return
        a = self.a
        if "pad" in self.cfg:
            n = 0 if self.cfg["pad"] == "start" else 1
            top, done = self.lab("pad"), self.lab("paddone")
            if is_l:
                a("s_barrier")
            if "padx" in self.cfg:
                a(f"""s_and_b32 s{sT0}, s2, 7
                    s_cmp_eq_u32 s{sT0}, {self.cfg['padx']}
                    s_cselect_b32 s{sSTAMP + 2 * n}, s{sSTAMP + 2 * n}, 0""")
            a(f"""s_waitcnt vmcnt(0) lgkmcnt(0)
                s_cmp_eq_u32 s{sSTAMP + 2 * n}, 0
                s_cbranch_scc1 {done}""")
            a.label(top)
            a(f"""s_sleep 4
                s_memrealtime {sr(sT0, 2)}
                s_waitcnt lgkmcnt(0)
                s_sub_u32 s{sT0}, s{sT0}, s{sSTAMP + 2 * n}
                s_cmp_lt_u32 s{sT0}, 6000
                s_cbranch_scc1 {top}""")
            a.label(done)
            return
        a(f"""s_lshl_b32 s{sT0}, s2, 3
            s_add_u32 s{sT0}, s{sT0}, s{sW}
            s_lshl_b32 s{sT0}, s{sT0}, 6
            s_add_u32 s{sT0}, s{sT0}, {WS_STAMP}
            s_mov_b64 exec, 1""")
        for n in range(14):
            a(f"v_mov_b32 v0, s{sSTAMP + 2 * n}")
            a(f"buffer_store_dword v0, off, {sr(sWS, 4)}, s{sT0} offset:{4 * n}")
        a("s_mov_b64 exec, -1")

    def lane(self, v):
        self.a(f"""v_mbcnt_lo_u32_b32 v{v}, -1, 0
            v_mbcnt_hi_u32_b32 v{v}, -1, v{v}""")

    def srd(self, *regs):
        for r in regs:
            self.a(f"s_mov_b32 s{r + 2}, {SIZES[r]}\ns_mov_b32 s{r + 3}, 0x00020000")

    def kload(self, *regs):
        for r in regs:
            self.a(f"s_load_dwordx2 {sr(r, 2)}, s[0:1], {KARG[r]}")

    def chunk(self, dst, i):
        a = self.a
        if self.cfg["rot"] in (3, 4):
            a(f"""s_add_u32 s{dst}, s{sDEL}, {i & 3}
                s_and_b32 s{dst}, s{dst}, 3
                s_add_u32 s{dst}, s{dst}, s{sROT}""")
            if i & 4:
                a(f"s_xor_b32 s{dst}, s{dst}, 4")
        else:
            a(f"s_add_u32 s{dst}, s{sROT}, {i}\ns_and_b32 s{dst}, s{dst}, 7")

    def dsr(self, op, dst, n, lo, hi, imm, tag):
        reg = lo
        if imm >= 65536:
            reg, imm = hi, imm - 65536
        assert 0 <= imm < 65536 and reg is not None
        self.a(f"{op} {vr(dst, n)}, v{reg} offset:{imm}")
        self.a.lg.issue(tag)

    def poll(self, voff, soff, tmp, srd=sWS):
        a = self.a
        top, done = self.lab("poll"), self.lab("pdone")
        a(f"s_mov_b32 s{sSPIN}, 100000")
        a.label(top)
        a(f"""buffer_load_dword v{tmp}, v{voff}, {sr(srd, 4)}, {soff} offen sc1
            s_waitcnt vmcnt(0)
            v_cmp_gt_u32 vcc, 32, v{tmp}
            s_cbranch_vccz {done}
            s_sleep 8
            s_sub_u32 s{sSPIN}, s{sSPIN}, 1
            s_cmp_lg_u32 s{sSPIN}, 0
            s_cbranch_scc1 {top}""")
        a.label(done)
        a.vm.reset()

    def signal(self, soff):
        self.a(f"s_atomic_add s{sONE}, {sr(sWS, 2)}, s{soff}")

    def spoll(self, soff, need, back=None):
        a = self.a
        top, done = self.lab("spoll"), back or self.lab("sdone")
        a(f"s_mov_b32 s{sSPIN}, 200000")
        a.label(top)
        a(f"""s_mov_b32 s{sPV}, 0
            s_atomic_add s{sPV}, {sr(sWS, 2)}, s{soff} glc
            s_waitcnt lgkmcnt(0)
            s_cmp_ge_u32 s{sPV}, {need}
            s_cbranch_scc1 {done}
            s_sub_u32 s{sSPIN}, s{sSPIN}, 1
            s_cmp_lg_u32 s{sSPIN}, 0
            s_cbranch_scc1 {top}""")
        if back:
            a(f"s_branch {back}")
        else:
            a.label(done)
        a.lg.reset()

    def lds_signal(self, addr, one, off):
        a = self.a
        a(f"""s_mov_b64 exec, 1
            ds_add_u32 v{addr}, v{one} offset:{off}
            s_mov_b64 exec, -1""")
        a.lg.issue("sig")

    def lds_probe(self, addr, tmp, off):
        self.a(f"ds_read_b32 v{tmp}, v{addr} offset:{off}")
        self.a.lg.issue("probe")

    def boost(self):
        if self.bg and not self.hi:
            self.a("s_setprio 3")
            self.hi = True

    def unboost(self):
        if self.hi:
            self.a(f"s_setprio {self.cfg['prio_m']}")
            self.hi = False

    def lds_check(self, addr, tmp, off, need, nap=0):
        a = self.a
        top, done = self.lab("lspin"), self.lab("ldone")
        self.boost()
        a.lg.wait("probe")
        a(f"""v_cmp_gt_u32 vcc, {need}, v{tmp}
            s_cbranch_vccz {done}
            s_mov_b32 s{sSPIN}, 1000000""")
        a.label(top)
        if nap:
            a(f"s_sleep {nap}")
        a(f"""ds_read_b32 v{tmp}, v{addr} offset:{off}
            s_waitcnt lgkmcnt(0)
            v_cmp_gt_u32 vcc, {need}, v{tmp}
            s_cbranch_vccz {done}
            s_sub_u32 s{sSPIN}, s{sSPIN}, 1
            s_cmp_lg_u32 s{sSPIN}, 0
            s_cbranch_scc1 {top}""")
        a.label(done)

    def prologue(self):
        a = self.a
        cfg = self.cfg
        rb = cfg["rbits"]
        a("s_cmp_ge_u32 s2, 256\ns_cbranch_scc1 L_end")
        if cfg.get("stamps"):
            a(f"{self.clock()} {sr(sSTAMP, 2)}")
        self.kload(sX, sWQ, sWS, sDBG)
        if cfg.get("stamps"):
            for n in range(1, 14):
                a(f"s_mov_b32 s{sSTAMP + 2 * n}, 0")
        x, j, t = sT0, sT0 + 1, sT0 + 2
        a(f"""v_lshrrev_b32 v1, 6, v0
            s_and_b32 s{x}, s2, 7
            v_readfirstlane_b32 s{sW}, v1
            s_lshr_b32 s{j}, s2, 3
            v_and_b32 v0, 63, v0
            {f"s_bfe_u32 s{t}, s{x}, 0x10001" if cfg["xmap"] else ""}
            {f"s_xor_b32 s{x}, s{x}, s{t}" if cfg["xmap"] else ""}
            s_and_b32 s{sR}, s{x}, {(1 << (4 - rb)) - 1}
            s_lshl_b32 s{sR}, s{sR}, {rb}
            s_and_b32 s{t}, s{j}, {(1 << rb) - 1}
            s_add_u32 s{sR}, s{sR}, s{t}
            s_lshr_b32 s{sC}, s{x}, {4 - rb}
            s_lshl_b32 s{sC}, s{sC}, {5 - rb}
            s_lshr_b32 s{t}, s{j}, {rb}
            s_add_u32 s{sC}, s{sC}, s{t}
            s_and_b32 s{sT}, s{sW}, 3""")
        if cfg["swap"]:
            a(f"s_xor_b32 s{sW}, s{sW}, 4")
        rot = cfg["rot"]
        if rot == 0:
            a(f"s_mov_b32 s{sROT}, 0")
        elif rot == 1:
            a(f"""s_mul_i32 s{sROT}, s{sC}, {cfg.get('rotc', 2)}
                s_mul_i32 s{t}, s{sR}, {cfg.get('rotr', 1)}
                s_add_u32 s{sROT}, s{sROT}, s{t}
                s_and_b32 s{sROT}, s{sROT}, 7""")
        else:
            a(f"""s_add_u32 s{sROT}, s{sC}, s{sR}
                s_and_b32 s{sROT}, s{sROT}, 1
                s_lshl_b32 s{sROT}, s{sROT}, 2""")
            if rot == 3:
                a(f"s_mov_b32 s{sDEL}, 0")
            else:
                a(f"""s_lshr_b32 s{sDEL}, s{x}, 1
                    s_lshl_b32 s{t}, s{x}, 1
                    s_add_u32 s{sDEL}, s{sDEL}, s{t}""")
        self.srd(sWS)
        a(f"""s_mov_b32 s{sONE}, 1
            s_cmp_ge_u32 s{sW}, 4
            s_cbranch_scc0 L_mwave""")

    def loader(self):
        a = self.a
        a.vm.reset()
        vX0, vX1, vKV, vQ = 8, 9, 10, 11
        sXB, sKB, sQB, sLx, sLk, sLq, sCh, sO = range(sT0, sT0 + 8)
        self.srd(sX, sWQ)
        a(f"""v_lshrrev_b32 v1, 3, v0
            v_and_b32 v2, 7, v0
            v_lshrrev_b32 v3, 4, v0
            s_lshl_b32 s{sO}, s{sT}, 5
            v_add_u32 v4, s{sO}, v1
            v_xor_b32 v5, v2, v3
            v_lshlrev_b32 v5, 4, v5
            v_lshl_add_u32 v{vX0}, v4, 10, v5
            v_xor_b32 v{vX1}, 64, v{vX0}
            v_add_u32 v{vX1}, 8192, v{vX1}
            s_lshl_b32 s{sO}, s{sT}, 4
            v_add_u32 v4, s{sO}, v1
            v_mul_u32_u24 v4, 3072, v4
            v_and_b32 v5, 1, v3
            v_lshlrev_b32 v5, 2, v5
            v_xor_b32 v5, v2, v5
            v_lshl_add_u32 v{vKV}, v5, 4, v4
            s_lshl_b32 s{sXB}, s{sR}, 17
            s_and_b32 s{sKB}, s{sC}, 1
            s_add_u32 s{sKB}, s{sKB}, 1
            s_lshl_b32 s{sKB}, s{sKB}, 10
            s_lshr_b32 s{sCh}, s{sC}, 1
            s_lshl_b32 s{sCh}, s{sCh}, 7
            s_add_u32 s{sKB}, s{sKB}, s{sCh}
            s_lshl_b32 s{sLx}, s{sT}, 12
            s_lshl_b32 s{sLk}, s{sT}, 11""")

        def issueA(i):
            B = slot(i)
            self.chunk(sCh, i)
            first = [i == 0]

            def ready(filler):
                a(filler)
                if first[0]:
                    a("s_waitcnt lgkmcnt(0)")
                    self.stamp("karg", "L")
                    first[0] = False

            def xs():
                a(f"s_lshl_b32 s{sO}, s{sCh}, 7\ns_add_u32 s{sO}, s{sO}, s{sXB}")
                for k in range(4):
                    a(f"s_add_u32 m0, s{sLx}, {B + 1024 * k}")
                    ready(f"s_add_u32 s{sO}, s{sO}, 16384" if k == 2 else "s_nop 0")
                    a(f"buffer_load_dwordx4 v{vX0 if k % 2 == 0 else vX1}, {sr(sX, 4)}, s{sO} offen lds")
                    a.vm.issue(("A", i))

            def ws():
                a(f"s_mul_i32 s{sO}, s{sCh}, 196608")
                for k in range(2):
                    a(f"s_add_u32 m0, s{sLk}, {B + 16384 + 1024 * k}")
                    ready(f"s_add_u32 s{sO}, s{sO}, {'s%d' % sKB if k == 0 else 24576}")
                    a(f"buffer_load_dwordx4 v{vKV}, {sr(sWQ, 4)}, s{sO} offen lds")
                    a.vm.issue(("A", i))

            for f in ((ws, xs) if self.cfg["wfirst"] else (xs, ws)):
                f()

        def issueQ(lo, hi):
            for i in range(lo, hi):
                self.chunk(sCh, i)
                a(f"""s_mul_i32 s{sO}, s{sCh}, 196608
                    s_add_u32 m0, s{sLq}, {QW + 4096 * i}
                    s_add_u32 s{sO}, s{sO}, s{sQB}
                    buffer_load_dwordx4 v{vQ}, {sr(sWQ, 4)}, s{sO} offen lds""")
                a.vm.issue(("Q", 0))

        def setup2():
            a(f"""v_lshrrev_b32 v4, 2, v0
                s_lshl_b32 s{sO}, s{sT}, 4
                v_add_u32 v4, s{sO}, v4
                v_mul_u32_u24 v4, 3072, v4
                v_and_b32 v5, 3, v0
                v_lshl_add_u32 v{vQ}, v5, 4, v4
                s_lshl_b32 s{sQB}, s{sC}, 6
                s_lshl_b32 s{sLq}, s{sT}, 10
                s_mov_b32 s{sVM}, 0x0000ffff
                s_mov_b32 s{sVM + 1}, 0x0000ffff""")
            if self.cfg["tq"]:
                cb = 5 - self.cfg["rbits"]
                nl = 1 << (cb - 1)
                a(f"""v_lshrrev_b32 v4, {cb - 1}, v0
                    v_mul_u32_u24 v4, 3072, v4
                    v_and_b32 v5, {nl - 1}, v0
                    v_lshl_add_u32 v4, v5, 7, v4
                    s_lshr_b32 s{sO}, s2, 3
                    s_lshl_b32 s{sO}, s{sO}, 2
                    s_add_u32 s{sO}, s{sO}, s{sT}
                    s_mul_i32 s{sO}, s{sO}, 12288
                    s_lshr_b32 s{sCh}, s{sC}, {cb}
                    s_lshl_b32 s{sCh}, s{sCh}, {cb + 6}
                    s_add_u32 s{sO}, s{sO}, s{sCh}
                    s_mov_b32 m0, {CNT + 64}
                    s_mov_b64 exec, {(1 << (4 * nl)) - 1}
                    buffer_load_dword v4, {sr(sWQ, 4)}, s{sO} offen {self.cfg['qpol']} lds
                    s_mov_b64 exec, -1""")
                a.vm.issue("touch")
            a("s_setprio 0")
            self.attn_init()
            a(f"s_setprio {self.cfg['prio_l']}")
            skip = self.lab("nogo")
            a(f"""s_cmp_lg_u32 s{sRB}, 0
                s_cbranch_scc1 {skip}
                s_lshl_b32 s{sO}, s{sT}, 7
                s_waitcnt lgkmcnt(0)
                s_atomic_add s{sONE}, {sr(sDBG, 2)}, s{sO}""")
            a.label(skip)

        def reset():
            skip = self.lab("noreset")
            a(f"""s_lshr_b32 s{sRB}, s2, 5
                s_lshr_b32 s{sO}, s{sT}, 1
                s_or_b32 s{sRB}, s{sRB}, s{sO}
                s_cbranch_scc1 {skip}
                s_lshl_b32 s{sO}, s2, 1
                s_add_u32 s{sO}, s{sO}, s{sT}
                s_mul_i32 s{sO}, s{sO}, 1408
                s_add_u32 s{sO}, s{sO}, {WS_FLAG}
                s_mov_b32 s{sPV}, 0""")
            for k in range(11):
                a(f"s_atomic_and s{sPV}, {sr(sWS, 2)}, s{sO} offset:{128 * k}")
            a.label(skip)

        la = self.cfg["la"]
        qs = [int(ch) for ch in str(self.cfg["qs"])[1:]]
        assert sum(qs) == 8
        nxt = 0
        for b in range(9):
            while nxt < 8 and nxt <= b + la and nxt - NSLOT + 2 <= b:
                issueA(nxt)
                nxt += 1
                if nxt == 1:
                    reset()
                if nxt == self.cfg["su"]:
                    setup2()
            if b >= 6:
                issueQ(sum(qs[:b - 6]), sum(qs[:b - 5]))
            if b == 8 and qs[3]:
                a("s_barrier")
                issueQ(8 - qs[3], 8)
            tag = ("A", b) if b < 8 else ("Q", 0)
            a.vm.wait(tag)
            self.stamp(f"{tag[0]}{tag[1]}", "L")
            a("s_barrier")

    O_, S_, Q_, KV_ = 16, 80, 112, 128
    vIDX, vKo, vVo, vFl, vQa_, vOne, vCa, vPa, vPs = 12, 13, 14, 15, 6, 7, 1, 2, 3

    def attn_init(self):
        a = self.a
        NST = self.cfg["nst"]
        assert NST == 4
        sHd, sQ, sOff, sRow, sCnt, sLd, sFl = range(sT0 + 8, sT0 + 15)
        self.sHd, self.sQ, self.sOff, self.sKr, self.sCnt, self.sLd, self.sFl = sHd, sQ, sOff, sRow, sCnt, sLd, sFl
        a(f"""s_and_b32 s{sHd}, s{sW}, 1
            s_lshr_b32 s{sQ}, s{sT}, 1
            v_lshrrev_b32 v5, 5, v0
            s_and_b32 s{sRow}, s{sR}, {self.cfg['rowmask']}
            s_add_u32 s{sRow}, s{sRow}, s{sQ}
            s_and_b32 s{sRow}, s{sRow}, 15
            s_mov_b32 s{sCnt}, {32 // NST}
            v_lshlrev_b32 v{self.vKo}, 4, v0
            v_and_b32 v{self.vVo}, 15, v0
            v_lshlrev_b32 v{self.vVo}, 4, v{self.vVo}
            v_lshl_add_u32 v{self.vVo}, v5, 8, v{self.vVo}
            s_lshl_b32 s{sLd}, s{sHd}, 12
            s_add_u32 s{sLd}, s{sLd}, {QF}
            v_add_u32 v{self.vQa_}, s{sLd}, v{self.vKo}
            s_lshl_b32 s{sLd}, s{sQ}, 11
            v_add_u32 v{self.vQa_}, s{sLd}, v{self.vQa_}
            v_mov_b32 v{self.vIDX}, 0xdddddddd
            v_mov_b32 v{self.vOne}, 1
            v_and_b32 v4, 0x1b, v0
            v_cmp_eq_u32 vcc, 16, v4
            v_mov_b32 v4, 0x3f803f80
            s_mul_i32 s{sLd}, s{sT}, 4608
            v_cndmask_b32 v4, 0, v4, vcc
            s_add_u32 s{sLd}, s{sLd}, {PART}
            v_lshl_add_u32 v{self.vPa}, v0, 4, s{sLd}
            v_lshl_add_u32 v{self.vPs}, v0, 2, s{sLd}
            s_lshl_b32 s{sLd}, s{sHd}, 2
            s_add_u32 s{sLd}, s{sLd}, {CNT + 8}
            v_mov_b32 v{self.vCa}, s{sLd}
            s_lshl_b32 s{sLd}, s{sT}, 2
            s_add_u32 s{sLd}, s{sLd}, {CNT + 32}
            v_mov_b32 v{self.vFl}, s{sLd}""")
        for st in range(NST):
            for k in range(8):
                a(f"v_mov_b32 v{self.KV_ + 12 * st + 4 + k}, v4")
        for k in range(64):
            a(f"v_mov_b32 v{self.O_ + k}, 0")

    def attn_start(self):
        a = self.a
        NST = self.cfg["nst"]
        sOff = self.sOff
        sHB, sFB, sRow, sFl = sT0, sT0 + 1, self.sKr, self.sFl
        a(f"""s_lshl_b32 s{sHB}, s{sC}, 1
            s_add_u32 s{sHB}, s{sHB}, s{self.sHd}
            s_lshl_b32 s{sHB}, s{sHB}, 17
            s_lshr_b32 s{sFB}, s{sC}, 1
            s_lshl_b32 s{sFB}, s{sFB}, 11
            s_add_u32 s{sFB}, s{sFB}, {CKV}
            s_lshl_b32 s{sOff}, s{sRow}, 13
            s_add_u32 s{sOff}, s{sOff}, s{sHB}
            s_lshl_b32 s{sFl}, s{sRow}, 7
            s_add_u32 s{sFl}, s{sFl}, s{sFB}""")
        a(f"v_mov_b32 v5, {CNT}")
        if self.cfg["pwait"]:
            a.lg.reset()
            self.lds_probe(5, 4, 48)
            self.lds_check(5, 4, 48, 4 * self.cfg["pwait"])
        self.spoll(sFl, 8)
        self.stamp("KVpoll", "L")
        for st in range(NST - 1):
            b = self.KV_ + 12 * st
            a(f"""buffer_load_dwordx4 {vr(b, 4)}, v{self.vKo}, {sr(sWS, 4)}, s{sOff} offen sc1
                s_mov_b64 exec, {sr(sVM, 2)}
                buffer_load_dwordx4 {vr(b + 4, 4)}, v{self.vVo}, {sr(sWS, 4)}, s{sOff} offen offset:1024 sc1
                buffer_load_dwordx4 {vr(b + 8, 4)}, v{self.vVo}, {sr(sWS, 4)}, s{sOff} offen offset:1536 sc1
                s_mov_b64 exec, -1
                s_add_u32 s{sOff}, s{sOff}, 2048""")
        self.stamp("KViss", "L")
        a.lg.reset()
        self.lds_signal(5, self.vOne, 20)
        self.lds_probe(5, 4, 16)
        self.lds_check(5, 4, 16, 16)
        a(f"v_xor_b32 v4, 0x800, v{self.vQa_}")
        self.stamp("Qrdy", "L")
        for q in range(4):
            a(f"ds_read_b128 {vr(self.Q_ + 4 * q, 4)}, v{self.vQa_ if q >= 2 else 4} offset:{1024 * (q & 1)}")
        a(f"""s_add_u32 s{sRow}, s{sRow}, 2
            s_and_b32 s{sRow}, s{sRow}, 15
            s_lshl_b32 s{sFl}, s{sRow}, 7
            s_add_u32 s{sFl}, s{sFl}, s{sFB}
            s_mov_b32 s{sPV}, 0
            s_waitcnt lgkmcnt(0)
            s_mov_b64 exec, 1
            ds_add_u32 v5, v{self.vOne} offset:24
            s_mov_b64 exec, -1
            s_atomic_add s{sPV}, {sr(sWS, 2)}, s{sFl} glc
            s_waitcnt vmcnt({3 * (NST - 2)})
            v_mfma_f32_32x32x16_bf16 {vr(self.S_, 16)}, {vr(self.KV_, 4)}, {vr(self.Q_, 4)}, {self.cfg['shift']}
            s_nop 11""")

    def P(self, n):
        oop = self.cfg["oop"]
        return self.S_ + 16 * (n & 1) if not oop else 232 if oop == 1 else (176, 232)[n & 1]

    def attn_loop(self):
        a = self.a
        NST = self.cfg["nst"]
        NT = 4 * NST
        O, S, Q, KV = self.O_, self.S_, self.Q_, self.KV_
        sOff, sRow, sCnt, sFl, sHB, sFB = self.sOff, self.sKr, self.sCnt, self.sFl, sT0, sT0 + 1
        P = self.P
        sm = lambda st, qt, half, n: (f"v_smfmac_f32_32x32x32_bf16 {vr(O + 16 * qt, 16)}, {vr(KV + 12 * st + 4 + 4 * half, 4)}, "
                                      f"{vr(P(n) + 8 * half, 8)}, v{self.vIDX}")
        extra = {
            (2, 0): f"s_lshl_b32 s{sOff}, s{sRow}, 13\ns_add_u32 s{sOff}, s{sOff}, s{sHB}",
            (2, 2): f"s_cmp_eq_u32 s{sCnt}, 1\ns_cselect_b32 s{sOff}, {OOB}, s{sOff}",
            (3, 1): "s_waitcnt lgkmcnt(0)",
            (3, 2): f"s_cmp_lt_u32 s{sPV}, 8\ns_cbranch_scc1 L_kv_wait\nL_kv_ok:",
            (6, 0): f"s_add_u32 s{sRow}, s{sRow}, 2\ns_and_b32 s{sRow}, s{sRow}, 15",
            (6, 2): f"s_lshl_b32 s{sFl}, s{sRow}, 7\ns_add_u32 s{sFl}, s{sFl}, s{sFB}",
            (10, 0): f"s_mov_b32 s{sPV}, 0\ns_atomic_add s{sPV}, {sr(sWS, 2)}, s{sFl} glc",
            (NT - 3, 0): f"s_sub_u32 s{sCnt}, s{sCnt}, 1\ns_cmp_eq_u32 s{sCnt}, 0",
        }

        if self.cfg["chk"]:
            it, n0 = divmod(self.cfg["chk"], NT)
            assert n0 in (1, 4, 5, 8, 9, 12) and (n0, 0) not in extra
            extra[(n0, 0)] = f"s_cmp_eq_u32 s{sCnt}, {8 - it}\ns_cbranch_scc1 L_m_wait\nL_m_ok:"

        it, n0 = divmod(self.cfg["rdv"], NT)
        assert n0 in (1, 4, 5, 8, 9, 12) and (n0, 0) not in extra
        extra[(n0, 0)] = f"s_cmp_eq_u32 s{sCnt}, {8 - it}\ns_cbranch_scc1 L_rdv\nL_rdv_ok:"

        def ex(n, k):
            for l in extra.get((n, k), "").split("\n"):
                if l.endswith(":"):
                    a.label(l[:-1])
                else:
                    a(l)

        a(f"v_exp_f32 v{P(0)}, v{S}\nv_exp_f32 v{P(0) + 1}, v{S + 1}")
        a.raw(".p2align 6")
        a.label("L_attn")
        for n in range(NT + 1):
            st, qt = divmod(n, 4)
            cur = S + 16 * (n & 1)
            E = lambda lo, hi: [a(f"v_exp_f32 v{P(n) + k}, v{cur + k}") for k in range(lo, hi)]
            pst, pqt = divmod((n - 1) % NT, 4)
            nst, nqt = divmod((n + 1) % NT, 4)
            ld = KV + 12 * ((st - 1) % NST)
            if n:
                E(0, 2)
                a(sm(pst, pqt, 1, n - 1))
            if n == NT:
                break
            if n == NT - 2:
                a("s_cbranch_scc1 L_attn_tail")
            ex(n, 0)
            if qt == 3:
                a(f"s_waitcnt vmcnt({3 * (NST - 2)})")
            E(2, 5)
            a(f"v_mfma_f32_32x32x16_bf16 {vr(S + 16 * ((n + 1) & 1), 16)}, {vr(KV + 12 * nst, 4)}, {vr(Q + 4 * nqt, 4)}, {self.cfg['shift']}")
            ex(n, 1)
            if qt == 0 and not self.cfg["k1"]:
                a(f"buffer_load_dwordx4 {vr(ld, 4)}, v{self.vKo}, {sr(sWS, 4)}, s{sOff} offen sc1")
            if qt == 2 and st:
                a(f"s_add_u32 s{sOff}, s{sOff}, 2048")
            E(5, self.cfg["p1"])
            a(sm(st, qt, 0, n))
            ex(n, 2)
            if qt == 0 and self.cfg["k1"]:
                a(f"buffer_load_dwordx4 {vr(ld, 4)}, v{self.vKo}, {sr(sWS, 4)}, s{sOff} offen sc1")
            if qt == 1:
                a(f"""s_mov_b64 exec, {sr(sVM, 2)}
                    buffer_load_dwordx4 {vr(ld + 4, 4)}, v{self.vVo}, {sr(sWS, 4)}, s{sOff} offen offset:1024 sc1
                    buffer_load_dwordx4 {vr(ld + 8, 4)}, v{self.vVo}, {sr(sWS, 4)}, s{sOff} offen offset:1536 sc1
                    s_mov_b64 exec, -1""")
            E(self.cfg["p1"], 16)
        a("s_branch L_attn")
        self.sm = sm

    def attn_finish(self):
        a = self.a
        O, S, Q, KV, T, sm = self.O_, self.S_, self.Q_, self.KV_, 192, self.sm
        sA, sF, m = sT0, sT0 + 1, sT0 + 2
        E = lambda n, lo, hi: [a(f"v_exp_f32 v{self.P(n) + k}, v{S + 16 * (n & 1) + k}") for k in range(lo, hi)]

        def give(q):
            o = O + 16 * q
            a(f"""ds_write_b128 v{self.vPa}, {vr(o, 4)} offset:{2304 * q}
                ds_write_b128 v{self.vPa}, {vr(o + 4, 4)} offset:{2304 * q + 1024}
                ds_write_b32 v{self.vPs}, v{o + 8} offset:{2304 * q + 2048}""")

        a.label("L_attn_tail")
        a.lg.reset()
        a("s_waitcnt lgkmcnt(0)")
        give(0)
        E(14, 2, 5)
        a(f"v_mfma_f32_32x32x16_bf16 {vr(S + 16, 16)}, {vr(KV + 36, 4)}, {vr(Q + 12, 4)}, {self.cfg['shift']}")
        a(f"s_lshl_b32 s{sF}, s{sR}, 1")
        E(14, 5, 10)
        a(sm(3, 2, 0, 14))
        give(1)
        if self.cfg["rel"] == 0:
            a(f"ds_write_b32 v{self.vFl}, v{self.vOne}")
        self.lds_signal(self.vCa, self.vOne, 0)
        E(14, 10, 16)
        E(15, 0, 2)
        a(sm(3, 2, 1, 14))
        a(f"""s_add_u32 s{sF}, s{sF}, s{self.sQ}
            s_lshl_b32 s{sA}, s{sF}, 5
            s_add_u32 s{sA}, s{sA}, s{sC}
            s_lshl_b32 s{sA}, s{sA}, 1
            s_add_u32 s{sA}, s{sA}, s{self.sHd}
            s_mul_i32 s{m}, s{self.sQ}, -18432
            s_add_u32 s{m}, s{m}, 9216""")
        E(15, 2, 10)
        a(sm(3, 3, 0, 15))
        a(f"""s_lshl_b32 s{sA}, s{sA}, 10
            s_add_u32 s{sA}, s{sA}, {WS_O}
            v_add_u32 v{self.vPa}, s{m}, v{self.vPa}
            v_add_u32 v{self.vPs}, s{m}, v{self.vPs}""")
        self.lds_probe(self.vCa, 4, 0)

        def fetch():
            for q in range(2):
                a(f"""ds_read_b32 v{T + 12 * q + 8}, v{self.vPs} offset:{2304 * q + 2048}
                    ds_read_b128 {vr(T + 12 * q, 4)}, v{self.vPa} offset:{2304 * q}
                    ds_read_b128 {vr(T + 12 * q + 4, 4)}, v{self.vPa} offset:{2304 * q + 1024}""")

        if self.cfg["lfast"]:
            fetch()
        E(15, 10, 16)
        a(f"""s_lshl_b32 s{sF}, s{sF}, {2 + self.cfg['ott']}
            s_lshr_b32 s{m}, s{sC}, 2""")
        a(sm(3, 3, 1, 15))
        a(f"""s_add_u32 s{sF}, s{sF}, s{m}
            s_lshl_b32 s{sF}, s{sF}, 7
            s_add_u32 s{sF}, s{sF}, {CO}""")
        self.stamp("attn1", "L")
        have = self.lab("have")
        if self.cfg["lfast"]:
            a(f"s_waitcnt lgkmcnt(0)\nv_cmp_gt_u32 vcc, 2, v4")
        if self.cfg["rel"] == 1:
            a(f"ds_write_b32 v{self.vFl}, v{self.vOne}")
            a.lg.issue("rel")
        if self.cfg["lfast"]:
            a(f"s_cbranch_vccz {have}")
            a.lg.reset()
        self.lds_check(self.vCa, 4, 0, 2)
        self.stamp("pair", "L")
        fetch()
        a("s_waitcnt lgkmcnt(3)")
        a.label(have)
        for q in range(2):
            o, t = O + 32 + 16 * q, T + 12 * q
            if q:
                a("s_waitcnt lgkmcnt(0)")
            a(f"v_add_f32 v{o + 8}, v{o + 8}, v{t + 8}")
            for k in range(8):
                a(f"v_add_f32 v{o + k}, v{o + k}, v{t + k}")
            self.normalise(q)
        if self.cfg["rel"] == 2:
            a(f"ds_write_b32 v{self.vFl}, v{self.vOne}")
        self.stamp("Ost", "L")
        lo, hi = self.cfg.get("l_lo", 2.0 ** -24), self.cfg.get("l_hi", 2.0 ** 64)
        for q in range(2):
            o, t = O + 32 + 16 * q, T + 12 * q
            a(f"""v_pk_add_f32 {vr(t, 2)}, {vr(o, 2)}, {vr(o + 2, 2)}
                v_pk_add_f32 {vr(t + 2, 2)}, {vr(o + 4, 2)}, {vr(o + 6, 2)}
                v_cmp_lt_f32 vcc, {f32(lo)}, v{o + 8}
                v_pk_add_f32 {vr(t, 2)}, {vr(t, 2)}, {vr(t + 2, 2)}
                s_and_b64 {sr(m, 2)}, {'vcc' if q == 0 else sr(m, 2)}, vcc
                v_cmp_gt_f32 vcc, {f32(hi)}, v{o + 8}
                v_add_f32 v{t}, v{t}, v{t + 1}
                s_and_b64 {sr(m, 2)}, {sr(m, 2)}, vcc
                v_sub_f32 v{t}, v{t}, v{t}
                v_cmp_eq_f32 vcc, 0, v{t}
                s_and_b64 {sr(m, 2)}, {sr(m, 2)}, vcc""")
        a(f"s_cmp_eq_u64 {sr(m, 2)}, -1\ns_cbranch_scc0 L_fallback")
        a.label("L_publish")
        if self.cfg["ott"]:
            a(f"s_add_u32 s{m}, s{sF}, 512\ns_waitcnt vmcnt(1)")
            self.signal(sF)
            a("s_waitcnt vmcnt(0)")
            self.signal(m)
        else:
            a("s_waitcnt vmcnt(0)")
            self.signal(sF)

    def normalise(self, q):
        a = self.a
        o, d = self.O_ + 32 + 16 * q, 224 + 4 * q
        a(f"v_rcp_f32 v{o + 9}, v{o + 8}\ns_add_u32 s{sT0 + 4}, s{sT0}, {32768 * q}")
        for k in range(8):
            a(f"v_mul_f32 v{o + k}, v{o + k}, v{o + 9}")
        for k in range(4):
            a(f"v_cvt_pk_bf16_f32 v{d + k}, v{o + 2 * k}, v{o + 2 * k + 1}")
        a(f"buffer_store_dwordx4 {vr(d, 4)}, v{self.vKo}, {sr(sWS, 4)}, s{sT0 + 4} offen sc1")

    def fallback(self):
        a = self.a
        S, M, K, V, vMx = self.S_, self.S_ + 16, self.KV_, self.KV_ + 4, 4
        sO, sN = sT0 + 2, sT0 + 3
        a.label("L_kv_wait")
        self.spoll(self.sFl, 8, "L_kv_ok")
        if self.cfg["chk"]:
            a.label("L_m_wait")
            a.lg.reset()
            self.lds_probe(5, 4, 0)
            self.lds_check(5, 4, 0, self.cfg["chk_need"], nap=1)
            a("s_branch L_m_ok")
        a.label("L_rdv")
        a.lg.reset()
        self.lds_signal(5, self.vOne, 52)
        if self.cfg["rdv_need"]:
            self.lds_probe(5, 4, 0)
            self.lds_check(5, 4, 0, self.cfg["rdv_need"], nap=1)
        a("s_branch L_rdv_ok")
        a.label("L_fallback")
        a("s_waitcnt vmcnt(0)")
        for q in range(2):
            O, Q = self.O_ + 32 + 16 * q, self.Q_ + 8 + 4 * q
            a(f"""v_mov_b32 v{vMx}, 0xff800000
                s_lshl_b32 s{sO}, s{sC}, 1
                s_add_u32 s{sO}, s{sO}, s{self.sHd}
                s_lshl_b32 s{sO}, s{sO}, 17
                s_mov_b32 s{sN}, 64""")
            a.label(f"L_fb_max{q}")
            a(f"""buffer_load_dwordx4 {vr(K, 4)}, v{self.vKo}, {sr(sWS, 4)}, s{sO} offen sc1
                s_waitcnt vmcnt(0)
                v_mfma_f32_32x32x16_bf16 {vr(S, 16)}, {vr(K, 4)}, {vr(Q, 4)}, 0
                s_nop 11""")
            for k in range(8):
                a(f"v_max3_f32 v{vMx}, v{S + 2 * k}, v{S + 2 * k + 1}, v{vMx}")
            a(f"""s_add_u32 s{sO}, s{sO}, 2048
                s_sub_u32 s{sN}, s{sN}, 1
                s_cmp_lg_u32 s{sN}, 0
                s_cbranch_scc1 L_fb_max{q}
                v_mov_b32 v{M}, v{vMx}
                s_nop 1
                v_permlane32_swap_b32 v{vMx}, v{M}
                s_nop 1
                v_max_f32 v{vMx}, v{vMx}, v{M}
                s_sub_u32 s{sO}, s{sO}, 131072
                s_mov_b32 s{sN}, 64""")
            for k in range(16):
                a(f"v_sub_f32 v{M + k}, 0, v{vMx}\nv_mov_b32 v{O + k}, 0")
            a.label(f"L_fb_sum{q}")
            a(f"""buffer_load_dwordx4 {vr(K, 4)}, v{self.vKo}, {sr(sWS, 4)}, s{sO} offen sc1
                s_mov_b64 exec, {sr(sVM, 2)}
                buffer_load_dwordx4 {vr(V, 4)}, v{self.vVo}, {sr(sWS, 4)}, s{sO} offen offset:1024 sc1
                buffer_load_dwordx4 {vr(V + 4, 4)}, v{self.vVo}, {sr(sWS, 4)}, s{sO} offen offset:1536 sc1
                s_mov_b64 exec, -1
                s_waitcnt vmcnt(0)
                v_mfma_f32_32x32x16_bf16 {vr(S, 16)}, {vr(K, 4)}, {vr(Q, 4)}, {vr(M, 16)}
                s_nop 11""")
            for k in range(16):
                a(f"v_exp_f32 v{S + k}, v{S + k}")
            a(f"""s_nop 1
                v_smfmac_f32_32x32x32_bf16 {vr(O, 16)}, {vr(V, 4)}, {vr(S, 8)}, v{self.vIDX}
                v_smfmac_f32_32x32x32_bf16 {vr(O, 16)}, {vr(V + 4, 4)}, {vr(S + 8, 8)}, v{self.vIDX}
                s_nop 7
                s_add_u32 s{sO}, s{sO}, 2048
                s_sub_u32 s{sN}, s{sN}, 1
                s_cmp_lg_u32 s{sN}, 0
                s_cbranch_scc1 L_fb_sum{q}
                s_nop 3""")
            self.normalise(q)
        a("s_branch L_publish")

    XR, ACC, WS_ = 128, 32, 8
    vFlo, vD, vF, vCnt, v1_, vTmp = 0, 1, 2, 5, 6, 7

    def m_setup(self):
        a = self.a
        self.vXA, self.vXAh, self.vWk, self.vWkh, self.vQa, self.vST, self.vGo, self.vQFa, self.vGa = 80, 84, 88, 90, 92, 93, 94, 95, 96
        self.stamp("mjmp", "M")
        self.kload(sWG, sWU, sWD, sWO, sOUT, sGW)
        self.srd(sDBG, sWG, sWU, sWD, sWO, sOUT, sGW)
        a(f"""s_lshl_b32 s{sRB}, s{sT0}, 2
            s_and_b32 s{sT0 + 2}, s{sT0 + 1}, 3
            s_add_u32 s{sRB}, s{sRB}, s{sT0 + 2}
            s_lshr_b32 s{sCB}, s{sT0 + 1}, 2
            v_and_b32 v16, 31, v0
            v_lshrrev_b32 v17, 5, v0
            v_bfe_u32 v18, v0, 1, 3
            v_xor_b32 v18, v18, v17
            s_lshl_b32 s{sT0}, s{sT}, 12
            v_lshlrev_b32 v19, 7, v16
            v_lshl_add_u32 v19, v18, 4, v19
            v_add_u32 v{self.vXA}, s{sT0}, v19""")
        for s in range(1, 4):
            a(f"v_xor_b32 v{self.vXA + s}, {32 * s}, v{self.vXA}")
        for s in range(4):
            a(f"v_add_u32 v{self.vXAh + s}, 0x10000, v{self.vXA + s}")
        a(f"""v_bfe_u32 v18, v0, 2, 2
            v_lshl_add_u32 v18, v17, 3, v18
            v_bfe_u32 v19, v0, 4, 1
            v_and_b32 v20, 3, v0
            v_lshlrev_b32 v20, 3, v20
            v_lshl_add_u32 v20, v19, 5, v20
            v_bfe_u32 v21, v0, 3, 1
            v_lshl_add_u32 v22, v18, 7, v20
            v_lshl_add_u32 v{self.vWk}, v21, 6, v22
            v_xor_b32 v{self.vWk + 1}, 64, v{self.vWk}
            v_add_u32 v{self.vWkh}, 0x10000, v{self.vWk}
            v_add_u32 v{self.vWkh + 1}, 0x10000, v{self.vWk + 1}
            v_lshl_add_u32 v{self.vQa}, v18, 6, v20
            v_add_u32 v{self.vQa}, {QW}, v{self.vQa}
            s_lshl_b32 s{sT0}, s{sT}, 10
            s_add_u32 s{sT0}, s{sT0}, {QF}
            v_lshl_add_u32 v{self.vQFa}, v0, 4, s{sT0}
            v_and_b32 v23, 0x33, v0
            v_bfe_u32 v25, v0, 2, 1
            v_lshl_add_u32 v23, v25, 3, v23
            v_lshl_add_u32 v23, v21, 2, v23
            v_lshlrev_b32 v23, 4, v23
            v_and_b32 v24, 15, v0
            v_lshlrev_b32 v{self.vGa}, 7, v17
            v_lshlrev_b32 v24, 4, v24
            v_lshl_add_u32 v24, v17, 8, v24
            v_lshl_add_u32 v24, v19, 17, v24
            v_add_u32 v24, 1024, v24
            v_lshlrev_b32 v26, 4, v0
            s_lshl_b32 s{sT0}, s{sT}, 4
            v_bfe_u32 v27, v0, 2, 3
            v_add_u32 v27, s{sT0}, v27
            v_mul_u32_u24 v27, 2752, v27
            v_and_b32 v28, 3, v0
            v_lshl_add_u32 v27, v28, 4, v27
            v_lshl_add_u32 v{self.vF}, v17, 6, v27
            s_lshr_b32 s{sT0}, s{sROT}, 2
            v_xor_b32 v28, s{sT0}, v17
            v_mul_u32_u24 v28, 704512, v28
            v_add_u32 v{self.vF + 1}, v27, v28
            v_and_b32 v27, 0x300, v26
            v_add_u32 v{self.vF + 2}, v27, v26
            v_mul_u32_u24 v20, {FROW}, v19
            v_lshl_add_u32 v20, v17, 10, v20
            v_bfe_u32 v27, v0, 1, 3
            v_lshl_add_u32 v20, v27, 5, v20
            v_and_b32 v27, 1, v0
            v_lshl_add_u32 v{self.vFlo}, v27, 3, v20
            v_bfe_u32 v20, v26, 4, 3
            v_lshlrev_b32 v22, 2, v19
            v_xor_b32 v20, v20, v22
            v_lshlrev_b32 v20, 4, v20
            v_lshrrev_b32 v22, 7, v26
            v_lshl_add_u32 v{self.vD}, v22, 10, v20
            v_mov_b32 v{self.vCnt}, {CNT}
            v_lshl_add_u32 v{self.v1_}, v26, 3, 4""")
        for i in range(4):
            a(f"v_mov_b32 v{100 + i}, 0")
        a(f"ds_write_b128 v{self.vCnt}, v[100:103]\nds_write_b128 v{self.vCnt}, v[100:103] offset:16\nds_write_b128 v{self.vCnt}, v[100:103] offset:32\nds_write_b128 v{self.vCnt}, v[100:103] offset:48\ns_waitcnt lgkmcnt(0)")

    def pass_a(self, isv):
        a = self.a
        a.lg.reset()
        a.vm.reset()
        a(f"v_mov_b32 v{self.vST}, v{24 if isv else 23}")
        XR, ACC, W = self.XR, self.ACC, self.WS_
        sB = sT0 + 2
        atm = self.cfg["atm"]
        wr = lambda g: 104 if (g == 31 and atm) else W + 8 * (g % 3)

        def reads(g):
            i, s = divmod(g, 4)
            B = slot(i)
            self.dsr("ds_read_b128", XR + 4 * g, 4, self.vXA + s, self.vXAh + s, B, ("x", g))
            for ct in range(2):
                for u in range(2):
                    self.dsr("ds_read_b64_tr_b16", wr(g) + 4 * ct + 2 * u, 2, self.vWk + ct, self.vWkh + ct,
                             B + 16384 + (16 * s + 4 * u) * 128, ("w", g, ct))

        def comp(g, cts=(0, 1)):
            for ct in cts:
                a.lg.wait(("x", g), ("w", g, ct))
                wf, xf = vr(wr(g) + 4 * ct, 4), vr(XR + 4 * g, 4)
                d = vr(ACC + 16 * ct, 16)
                A, Bm = (xf, wf) if isv else (wf, xf)
                a(f"v_mfma_f32_32x32x16_bf16 {d}, {A}, {Bm}, {d if g else 0}")

        def kv_store(ct, q):
            d = 112 + 8 * ct + 4 * q
            for k in range(4):
                s = ACC + 16 * ct + 8 * q + 2 * k
                a(f"v_cvt_pk_bf16_f32 v{d + k}, v{s}, v{s + 1}")
            if isv:
                a(f"buffer_store_dwordx4 {vr(d, 4)}, v{self.vST}, {sr(sWS, 4)}, s{sB} offen offset:{512 * q} sc1")
                if q == 1 and ct == 0:
                    a(f"s_add_u32 s{sB}, s{sB}, 262144")
            else:
                a(f"buffer_store_dwordx4 {vr(d, 4)}, v{self.vST}, {sr(sWS, 4)}, s{sB} offen sc1")
                a(f"s_add_u32 s{sB}, s{sB}, 131072")

        a(f"""s_lshr_b32 s{sB}, s{sC}, 1
            s_lshl_b32 s{sB}, s{sB}, 19
            s_lshl_b32 s{sB + 1}, s{sR}, 2
            s_add_u32 s{sB + 1}, s{sB + 1}, s{sT}
            s_lshl_b32 s{sB + 1}, s{sB + 1}, 11
            s_add_u32 s{sB}, s{sB}, s{sB + 1}""")
        self.stamp("mrdy", "M")
        for i in range(8):
            g0 = 4 * i
            if i:
                a.lg.drain()
            if i == 7 and atm:
                comp(27)
                a("s_barrier")
                for g in range(28, 31):
                    reads(g)
                comp(28, (0,))
                reads(31)
                for g in range(29, 32):
                    comp(g, (0,))
                comp(28, (1,))
                a("s_nop 5")
                comp(29, (1,))
                a("s_nop 3")
                kv_store(0, 0)
                comp(30, (1,))
                comp(31, (1,))
                kv_store(0, 1)
                a("s_nop 5")
                kv_store(1, 0)
                kv_store(1, 1)
                break
            a("s_barrier")
            if i == 0:
                self.stamp("BA0", "M")
            reads(g0)
            reads(g0 + 1)
            if i:
                comp(g0 - 1)
            reads(g0 + 2)
            if i == self.cfg['go_at']:
                a(f"buffer_load_dword v{self.vGo}, v{self.vGa}, {sr(sDBG, 4)}, 0 offen sc1")
            comp(g0)
            reads(g0 + 3)
            comp(g0 + 1)
            comp(g0 + 2)
        if not atm:
            comp(31)
            a("s_nop 10")
            for k in range(4):
                kv_store(k >> 1, k & 1)
        self.stamp("KVst", "M")

    def kv_flag(self):
        a = self.a
        ok = self.lab("go")
        a(f"""s_lshr_b32 s{sT0}, s{sC}, 1
            s_lshl_b32 s{sT0}, s{sT0}, 4
            s_add_u32 s{sT0}, s{sT0}, s{sR}
            s_lshl_b32 s{sT0}, s{sT0}, 7
            s_add_u32 s{sT0}, s{sT0}, {CKV}
            s_waitcnt vmcnt({4 + len(a.vm.q)})
            v_cmp_gt_u32 vcc, 32, v{self.vGo}
            s_cbranch_vccz {ok}""")
        q = list(a.vm.q)
        self.poll(self.vGa, "0", self.vGo, sDBG)
        a.vm.q = q
        a.label(ok)

    def issue_f(self, n):
        a = self.a
        sCh, sO, sFB, sLf = sT0 + 4, sT0 + 5, sT0 + 6, sT0 + 7
        if n == 0:
            a(f"s_lshl_b32 s{sFB}, s{sC}, 7\ns_mul_i32 s{sLf}, s{sT}, {FROW}")
        if n == 8:
            a(f"""s_lshl_b32 s{sFB}, s{sTK}, 6
                s_add_u32 s{sFB}, s{sFB}, 2048
                s_cmp_lt_u32 s{sTK}, 11
                s_cselect_b32 s{sFB}, s{sFB}, {OOB}""")
        self.chunk(sCh, n & 7)
        if n >= 8:
            a(f"s_and_b32 s{sCh}, s{sCh}, 3")
        a(f"s_mul_i32 s{sO}, s{sCh}, 176128\ns_add_u32 s{sO}, s{sO}, s{sFB}\ns_add_u32 s{sCh}, s{sO}, 22016")
        pol = "nt" if self.cfg["ntmask"] >> n & 1 else ""
        for m in range(2):
            for k in range(2):
                a(f"s_add_u32 m0, s{sLf}, {fslot(n) + FMAT * m + 1024 * k}\ns_nop 0")
                a(f"buffer_load_dwordx4 v{self.vF + (n >> 3)}, {sr(sWG if m == 0 else sWU, 4)}, s{(sO, sCh)[k]} offen {pol} lds")
                a.vm.issue(("F", n))

    def touch(self, i):
        a = self.a
        sA = sT0 + 8
        a(f"""s_lshr_b32 s{sA}, s2, 3
            s_lshl_b32 s{sA}, s{sA}, 2
            s_add_u32 s{sA}, s{sA}, s{sT}
            s_mul_i32 s{sA}, s{sA}, 11008
            s_add_u32 s{sA}, s{sA}, {2048 * i}
            s_mov_b32 m0, {CNT + 64}
            s_mov_b64 exec, {'0x3f' if i == 5 else '0xffff'}
            buffer_load_dword v{self.v1_}, {sr(sWD, 4)}, s{sA} offen lds
            s_mov_b64 exec, -1""")
        a.vm.issue("touch")

    def issue_wo(self, lo, hi):
        a = self.a
        sA, sL = sT0 + 8, sT0 + 9
        a(f"""s_lshl_b32 s{sA}, s{sT}, 17
            s_lshl_b32 s{sL}, s{sCB}, 7
            s_add_u32 s{sA}, s{sA}, s{sL}
            s_lshl_b32 s{sL}, s{sT}, 14""")
        for k in range(lo, hi):
            a(f"""s_add_u32 m0, s{sL}, {WOL + 1024 * k}
                s_add_u32 s{sA}, s{sA}, {8192 * (k if k == lo else 1)}
                buffer_load_dwordx4 v{self.vD}, {sr(sWO, 4)}, s{sA} offen lds""")
            a.vm.issue("wo")

    def pass_q(self):
        a = self.a
        XR, W, QACC = self.XR, self.WS_, 64
        a.lg.reset()
        a.vm.reset()
        flag_at, f0_at = self.cfg["kvflag_at"], self.cfg["f0_at"]

        def reads(g):
            for u in range(2):
                self.dsr("ds_read_b64_tr_b16", W + 4 * (g % 6) + 2 * u, 2, self.vQa, None, (16 * g + 4 * u) * 64, g)

        def hooks(j):
            if j == flag_at:
                a(f"s_waitcnt vmcnt({len(a.vm.q)})")
                self.stamp("KVack", "M")
                self.signal(sT0)
                if self.cfg["pwait"]:
                    self.lds_signal(self.vCnt, self.v1_, 48)
                self.stamp("KVflag", "M")
            if j == f0_at:
                self.issue_f(0)
            if j == self.cfg["f1_at"]:
                self.issue_f(1)

        if self.cfg["qs"] % 10:
            a("s_barrier")
        self.kv_flag()
        hooks(-2)
        hooks(-1)
        self.stamp("F0iss", "M")
        a("s_barrier")
        self.stamp("BQ", "M")
        for g in range(6):
            reads(g)
        nxt = 6
        for g in range(32):
            a.lg.wait(g)
            d = vr(QACC, 16)
            a(f"v_mfma_f32_32x32x16_bf16 {d}, {vr(W + 4 * (g % 6), 4)}, {vr(XR + 4 * g, 4)}, {d if g else 0}")
            if nxt < 32:
                reads(nxt)
                nxt += 1
            hooks(g)
        a(f"v_mov_b32 v98, {f32(0.25 * LOG2E)}\ns_nop 10")
        for k in range(8):
            a(f"v_pk_mul_f32 {vr(QACC + 2 * k, 2)}, {vr(QACC + 2 * k, 2)}, v[98:99] op_sel_hi:[1,0]")
        for hd in range(2):
            for k in range(4 * hd, 4 * hd + 4):
                a(f"v_cvt_pk_bf16_f32 v{QACC + k}, v{QACC + 2 * k}, v{QACC + 2 * k + 1}")
            a(f"ds_write_b128 v{self.vQFa}, {vr(QACC + 4 * hd, 4)} offset:{4096 * hd}")
        self.lds_signal(self.vCnt, self.v1_, 16)
        self.stamp("Qdone", "M")
        hooks(32)

    def f_units(self, units, hook):
        a = self.a
        XR, ACC, W = self.XR, self.ACC, self.WS_
        jobs = [(n, jj) for n in units for jj in range(16)]
        todo = [(j, u) for j in range(len(jobs)) for u in range(2)]

        def parts(n, jj):
            hi, lo = jj >> 3, (jj >> 2) & 1
            k2, col = (hi, lo) if n < 8 else (lo, hi)
            pos = n if n < 8 else n - 8 + 4 * col
            acc = ACC + (32 * col if n < 8 else 0) + 16 * ((jj >> 1) & 1) + 4 * (jj & 1)
            return k2, col, pos, acc, (n, k2) == (0, 0) or (n, jj >> 2) == (8, 0)

        def reads(now, limit=99):
            while todo and todo[0][0] - 6 <= now and limit:
                limit -= 1
                j, u = todo.pop(0)
                n, jj = jobs[j]
                k2, col = parts(n, jj)[:2]
                self.dsr("ds_read_b64_tr_b16", W + 4 * (j % 6) + 2 * u, 2, self.vFlo, None,
                         fslot(n) + FMAT * ((jj >> 1) & 1) + 2 * FROW * k2 + 256 * u + 512 * col + 16 * (jj & 1), j)

        reads(-1)
        for j, (n, jj) in enumerate(jobs):
            k2, col, pos, acc, first = parts(n, jj)
            a.lg.wait(j)
            for th in range(2):
                d = vr(acc + 8 * th, 4)
                a(f"v_mfma_f32_16x16x32_bf16 {d}, {vr(W + 4 * (j % 6), 4)}, {vr(XR + 16 * pos + 8 * k2 + 4 * th, 4)}, {0 if first else d}")
                if th == 0:
                    reads(j - 1)
            hook(n, jj)
            reads(j, 1)

    def landed(self, *units):
        self.a.vm.wait(*[("F", n) for n in units])
        self.lds_signal(self.vCnt, self.v1_, 0)

    def pass_fa(self):
        a = self.a
        cfg, XR = self.cfg, self.XR
        a(f"s_setprio {cfg['prio_cv']}")
        for k in range(16):
            for q in range(4):
                a(f"v_permlane16_swap_b32 v{XR + 8 * k + q}, v{XR + 8 * k + 4 + q}")
        gat, gated = cfg["gate_at"], 1 if cfg["f1_at"] > 32 else 2
        if gat < 0:
            self.lds_probe(self.vCnt, self.vTmp, 20)
            self.lds_check(self.vCnt, self.vTmp, 20, 4)
            if cfg["f0_at"] > 32:
                self.issue_f(0)
            self.issue_f(gated)
        self.landed(0)
        self.lds_probe(self.vCnt, self.vTmp, 0)
        self.lds_check(self.vCnt, self.vTmp, 0, 16)
        a(f"s_setprio {cfg['prio_m']}")
        self.stamp("F0", "M")
        tk0, tk1, tk2 = cfg["tk0"], cfg["tk0"] + cfg["tkd"], cfg["tk2"]

        def hook(n, jj):
            j = 16 * n + jj
            if jj == 15:
                self.stamp(f"f{n}", "M")
            if j == gat - 2:
                self.lds_probe(self.vCnt, self.vTmp, 20)
            if j == gat:
                self.lds_check(self.vCnt, self.vTmp, 20, 4)
                self.issue_f(gated)
            if j == 17:
                self.lds_probe(self.vCnt, self.vTmp, 24)
            if j == 19:
                self.lds_check(self.vCnt, self.vTmp, 24, 4)
            if n < 7:
                if jj == (cfg["sig_at"] if n else cfg["sig0"]):
                    self.landed(n + 1)
                    if n < 6 and n + 2 > gated:
                        self.issue_f(n + 2)
                if jj == cfg["wo_at"] and n:
                    self.touch(n - 1)
                    self.issue_wo(*((0, 3), (3, 6), (6, 9), (9, 12), (12, 14), (14, 16))[n - 1])
                if jj == 8:
                    self.lds_probe(self.vCnt, self.vTmp, 0)
                if jj == 10:
                    self.lds_check(self.vCnt, self.vTmp, 0, 16 * (n + 2))
            if j in (tk0, tk1):
                back = "L_tk_back%d" % (j == tk1)
                a(f"s_cmp_eq_u32 s{sT}, 0\ns_cbranch_scc1 L_tk{int(j == tk1)}")
                a.label(back)
            if j == tk2 - 2:
                self.lds_probe(self.vCnt, self.vTmp, 56)
            if j == tk2:
                self.lds_check(self.vCnt, self.vTmp, 56, 1)
                a(f"v_readfirstlane_b32 s{sTK}, v{self.vTmp}\ns_sub_u32 s{sTK}, s{sTK}, 1")
                self.stamp("ticket", "M")
                self.issue_f(8)
            if j == 127 and not cfg["u9"]:
                self.issue_f(9)

        self.f_units(range(8), hook)
        self.stamp("Fadone", "M")

    def ticket(self):
        a = self.a
        a.label("L_tk0")
        a.lg.reset()
        self.lds_probe(self.vCnt, self.vTmp, 52)
        self.lds_check(self.vCnt, self.vTmp, 52, 4, nap=1)
        a(f"""s_lshl_b32 s{sPV}, s{sR}, 7
            s_add_u32 s{sPV}, s{sPV}, {TK}
            s_mov_b32 s{sTK}, 1
            s_atomic_add s{sTK}, {sr(sWS, 2)}, s{sPV} glc
            s_branch L_tk_back0""")
        a.label("L_tk1")
        fixed = self.cfg["fixtk"]
        a(f"""s_waitcnt lgkmcnt(0)
            s_add_u32 s{sTK}, s{sC if fixed else sTK}, 1
            v_mov_b32 v{self.vTmp}, s{sTK}
            ds_write_b32 v{self.vCnt}, v{self.vTmp} offset:56
            s_waitcnt lgkmcnt(0)
            s_branch L_tk_back1""")

    def h_signal(self, base, quarter):
        a = self.a
        sA, sB = sT0 + 8, sT0 + 9
        a(f"""s_lshl_b32 s{sA}, s{sR}, 1
            s_lshr_b32 s{sB}, s{sT}, 1
            s_add_u32 s{sA}, s{sA}, s{sB}
            s_lshl_b32 s{sA}, s{sA}, 2
            {quarter.format(d=sB)}
            s_add_u32 s{sA}, s{sA}, s{sB}
            s_lshl_b32 s{sA}, s{sA}, 7
            s_add_u32 s{sA}, s{sA}, {base}""")
        self.signal(sA)

    def gelu(self, tiles, first, c0, T, OUT, lead, gaps):
        a = self.a
        ACC, vOff, c1, sH = self.ACC, self.vF + 2, c0 + 2, sT0 + 12
        k0 = -2.0 * 0.7978845608028654 * LOG2E
        a(f"""s_setprio {self.cfg['prio_gelu']}
            s_lshl_b32 s{sH}, s{sR}, 2
            s_add_u32 s{sH}, s{sH}, s{sT}
            s_mul_i32 s{sH}, s{sH}, 86
            {first.format(d=sH + 1)}
            s_add_u32 s{sH}, s{sH}, s{sH + 1}
            s_lshl_b32 s{sH}, s{sH}, 10
            s_add_u32 s{sH}, s{sH}, {WS_H}""")
        lead()
        a.raw(".p2align 3")
        a(f"""v_mov_b32 v{c0}, {f32(k0)}
            v_mov_b32 v{c0 + 1}, {f32(k0)}
            v_mov_b32 v{c1}, {f32(k0 * 0.044715)}
            v_mov_b32 v{c1 + 1}, {f32(k0 * 0.044715)}""")

        def stores(j):
            for q in range(2):
                a(f"buffer_store_dwordx4 {vr(OUT + 8 * j + 4 * q, 4)}, v{vOff}, {sr(sWS, 4)}, s{sH} offen offset:{2048 * j + 256 * q} sc1")
                a.vm.issue("H")

        for j in range(tiles):
            G, U = ACC + 32 * j, ACC + 32 * j + 16
            p = lambda b, k: vr(b + 2 * k, 2)
            for k in range(8):
                if j == 0 and k < self.cfg["plain"]:
                    a(f"v_mul_f32 v{T + 2 * k}, v{G + 2 * k}, v{G + 2 * k}\nv_mul_f32 v{T + 2 * k + 1}, v{G + 2 * k + 1}, v{G + 2 * k + 1}")
                else:
                    a(f"v_pk_mul_f32 {p(T, k)}, {p(G, k)}, {p(G, k)}")
            for k in range(8):
                a(f"v_pk_fma_f32 {p(T, k)}, {p(T, k)}, {vr(c1, 2)}, {vr(c0, 2)}")
            for k in range(8):
                a(f"v_pk_mul_f32 {p(T, k)}, {p(T, k)}, {p(G, k)}")
            if j:
                stores(j - 1)
            gaps(2 * j)
            a.raw(".p2align 3")
            for k in range(16):
                a(f"v_exp_f32 v{T + k}, v{T + k}")
            for k in range(8):
                a(f"v_pk_mul_f32 {p(G, k)}, {p(G, k)}, {p(U, k)}")
            for k in range(8):
                a(f"v_pk_add_f32 {p(T, k)}, {p(T, k)}, 1.0 op_sel_hi:[1,0]")
            gaps(2 * j + 1)
            a.raw(".p2align 3")
            for k in range(16):
                a(f"v_rcp_f32 v{T + k}, v{T + k}")
            for k in range(8):
                a(f"v_pk_mul_f32 {p(G, k)}, {p(G, k)}, {p(T, k)}")
            for k in range(8):
                a(f"v_cvt_pk_bf16_f32 v{OUT + 8 * j + k}, v{G + 2 * k}, v{G + 2 * k + 1}")
        stores(tiles - 1)

    def gelu_a(self):
        a = self.a
        self.gelu(2, f"s_lshl_b32 s{{d}}, s{sC}, 2", 8, 96, 112, lambda: a(f"v_add_u32 v{self.vD2}, 7168, v{self.vD}"),
                  lambda n: self.issue_f(9) if n + 1 == self.cfg["u9"] else None)
        self.landed(8, 9)
        self.lds_probe(self.vCnt, self.vTmp, 0)
        self.lds_check(self.vCnt, self.vTmp, 0, 144)
        a(f"s_setprio {self.cfg['prio_m']}")
        self.stamp("gelua", "M")

    def h_look(self):
        sFl = sT0 + 10
        self.a(f"""s_lshl_b32 s{sFl}, s{sRB}, 2
            s_add_u32 s{sFl}, s{sFl}, s{sT}
            s_lshl_b32 s{sFl}, s{sFl}, 7
            s_add_u32 s{sFl}, s{sFl}, {CH}
            s_mov_b32 s{sPV}, 0
            s_atomic_add s{sPV}, {sr(sWS, 2)}, s{sFl} glc""")

    def pass_fb(self):
        a = self.a
        cfg, rchk = self.cfg, self.cfg["rchk"]
        self.issue_f(10)

        def hook(n, jj):
            if (n, jj) == (8, 6):
                a.vm.wait("H")
                self.h_signal(CH, f"s_lshr_b32 s{{d}}, s{sC}, 2")
                self.issue_f(11)
            if (n, jj) == (9, cfg["sig_at"]):
                self.landed(10, 11)
            if (n, jj) == (9, 8):
                self.lds_probe(self.vCnt, self.vTmp, 0)
            if (n, jj) == (9, 10):
                self.lds_check(self.vCnt, self.vTmp, 0, 160)
            if n == 11:
                if jj == 0:
                    self.lds_signal(self.vCnt, self.v1_, 28)
                    self.ffn2_scalars()
                if jj == rchk - 2:
                    self.lds_probe(self.vCnt, self.vTmp, 28)
                if jj == rchk:
                    self.lds_check(self.vCnt, self.vTmp, 28, 16)
                k = jj - rchk
                if k >= 0 and k % 2 == 0 and k < 12:
                    self.issue_w(k // 2)

        assert rchk <= 5
        self.f_units(range(8, 12), hook)
        self.lds_signal(self.vCnt, self.v1_, 0)
        self.stamp("Fdone", "M")

        def gaps(n):
            if n == 0:
                self.lds_probe(self.vCnt, self.vTmp, 0)
            else:
                self.lds_check(self.vCnt, self.vTmp, 0, 176)
                self.h_look()
                for k in range(6, 8):
                    self.issue_w(k)

        self.gelu(1, f"s_lshl_b32 s{{d}}, s{sTK}, 1\ns_add_u32 s{{d}}, s{{d}}, 64", 72, 96, 64, self.ffn2_setup, gaps)

    def skipper(self):
        a = self.a
        XR, GB, Z, vO = self.XR, 32, 96, 104
        sCh = sT0 + 4
        a.vm.drain()
        self.h_signal(CH, f"s_lshr_b32 s{{d}}, s{sC}, 2")
        a(f"v_mov_b32 v{self.vTmp}, 8")
        a.lg.reset()
        self.lds_signal(self.vCnt, self.vTmp, 0)
        a(f"s_setprio {self.cfg['prio_gelu']}\ns_cmp_lg_u32 s{sTK}, 11\ns_cbranch_scc1 L_nologit")
        self.lane(vO + 1)
        a(f"""v_lshrrev_b32 v{vO}, 5, v{vO + 1}
            v_lshlrev_b32 v{vO}, 4, v{vO}
            v_bfe_u32 v{vO + 2}, v{vO + 1}, 4, 1
            v_lshl_add_u32 v{vO}, v{vO + 2}, 5, v{vO}
            v_lshlrev_b32 v{vO + 1}, 2, v{vO + 1}""")
        for i in range(8):
            self.chunk(sCh, i)
            a(f"s_lshl_b32 s{sCh}, s{sCh}, 7")
            for k in range(2):
                a(f"buffer_load_dwordx4 {vr(GB + 8 * i + 4 * k, 4)}, v{vO}, {sr(sGW, 4)}, s{sCh} offen offset:{64 * k}")
        a(f"""s_lshl_b32 s{sCh}, s{sR}, 2
            s_add_u32 s{sCh}, s{sCh}, s{sT}
            s_lshl_b32 s{sCh}, s{sCh}, 7
            s_add_u32 s{sCh}, s{sCh}, {WS_G}
            s_waitcnt vmcnt(0)""")
        for kk in range(16):
            for th in range(2):
                d = vr(Z + 4 * th, 4)
                a(f"v_mfma_f32_16x16x32_bf16 {d}, {vr(GB + 4 * kk, 4)}, {vr(XR + 8 * kk + 4 * th, 4)}, {d if kk else 0}")
        a(f"""s_nop 6
            s_mov_b64 exec, 0xffff
            buffer_store_dword v{Z}, v{vO + 1}, {sr(sWS, 4)}, s{sCh} offen sc1
            buffer_store_dword v{Z + 4}, v{vO + 1}, {sr(sWS, 4)}, s{sCh} offen offset:64 sc1
            s_mov_b64 exec, -1
            s_waitcnt vmcnt(0)""")
        self.h_signal(CHB, "s_mov_b32 s{d}, 0")
        for k in range(3):
            a(f"s_add_u32 s{sT0 + 8}, s{sT0 + 8}, 128")
            self.signal(sT0 + 8)
        a.label("L_nologit")

        self.ffn2_scalars()
        self.ffn2_setup()
        a.vm.reset()
        for k in range(8):
            self.issue_w(k)
            self.cap()
        self.h_look()

    vL, vH, vA0, vA1, vRel, vDump, vP, vZ, vD2, vH2, vT0, vB0, vB1 = 8, 10, 11, 12, 13, 15, 16, 17, 2, 19, 9, 14, 18

    sRB2 = 4
    FS = (5, 6, 7, 8, 9, 10, 11, sT0 + 12, sT0 + 13, sT0 + 14)

    def ffn2_scalars(self):
        a = self.a
        sRing, sS0, sS1, sKw, sW0, sKh, sH0 = range(sT0, sT0 + 7)
        a(f"""s_mul_i32 s{sRing}, s{sT}, {SEGA}
            s_mul_i32 s{self.sRB2}, s{sT}, 6144
            s_add_u32 s{self.sRB2}, s{self.sRB2}, {SEGB}
            s_and_b32 s{sKw}, s{sRB}, 3
            s_lshl_b32 s{sKw}, s{sKw}, 1
            s_add_u32 s{sKw}, s{sKw}, s{sCB}
            s_lshl_b32 s{sKw}, s{sKw}, 1
            s_and_b32 s{sKw}, s{sKw}, {15 if self.cfg['rot2'] else 0}
            s_mov_b32 s{sKh}, s{sKw}
            s_lshl_b32 s{sW0}, s{sT}, 18
            s_lshl_b32 s{sS0}, s{sCB}, 7
            s_add_u32 s{sW0}, s{sW0}, s{sS0}
            s_mul_i32 s{sH0}, s{sRB}, 172
            s_lshl_b32 s{sS0}, s{sT}, 4
            s_add_u32 s{sH0}, s{sH0}, s{sS0}
            s_lshl_b32 s{sH0}, s{sH0}, 10
            s_add_u32 s{sH0}, s{sH0}, {WS_H}""")

    def next_step(self, s, sK):
        if 0 < s < 16:
            self.a(f"s_add_u32 s{sK}, s{sK}, 1\ns_and_b32 s{sK}, s{sK}, 15")
        elif s == 16:
            self.a(f"s_mul_i32 s{sK}, s{sT}, 10\ns_sub_u32 s{sK}, 64, s{sK}")
        elif s:
            self.a(f"s_add_u32 s{sK}, s{sK}, 1")

    def cap(self):
        a, CAP = self.a, self.cfg["cap"]
        if len(a.vm.q) > CAP:
            a.vm.q = a.vm.q[len(a.vm.q) - CAP:]
            a(f"s_waitcnt vmcnt({CAP})")

    def issue_w(self, s):
        a = self.a
        sRing, sS0, sS1, sKw, sW0 = range(sT0, sT0 + 5)
        a(f"s_add_u32 m0, s{sRing if WSLOT[s] < 6 else self.sRB2}, {woff(s) + 2064 * (s & 1)}")
        self.next_step(s, sKw)
        a(f"s_lshl_b32 s{sS1}, s{sKw}, 14\ns_add_u32 s{sS1}, s{sS1}, s{sW0}")
        a(f"buffer_load_dwordx4 v{self.vD}, {sr(sWD, 4)}, s{sS1} offen lds")
        a(f"buffer_load_dwordx4 v{self.vD2}, {sr(sWD, 4)}, s{sS1} offen offset:1024 lds")
        a.vm.issue(("w", s))
        a.vm.issue(("w", s))

    @staticmethod
    def wreg(s):
        return 96 + 8 * (s % 4) if s < 16 else 128 + 8 * (s - 16)

    def w_reads(self, s):
        self.a.vm.wait(("w", s | 1))
        regs = (self.vA0, self.vA1) if WSLOT[s] < 6 else (self.vB0, self.vB1)
        for ct in range(2):
            for u in range(2):
                self.dsr("ds_read_b64_tr_b16", self.wreg(s) + 4 * ct + 2 * u, 2, regs[ct], None,
                         woff(s) + 16 * (s & 1) + 1024 * u, (s, ct))

    def ffn2_setup(self):
        a = self.a
        vL, vH, vA0, vA1, vRel, vDump, vP, vZ, vH2, vT0 = (self.vL, self.vH, self.vA0, self.vA1, self.vRel, self.vDump, self.vP,
                                                           self.vZ, self.vH2, self.vT0)
        sRing, sS0 = sT0, sT0 + 1
        self.lane(vL)
        a(f"""v_lshlrev_b32 v{vP}, 4, v{vL}
            s_and_b32 s{sS0}, s{sT}, 1
            s_mul_i32 s{sS0}, s{sS0}, 88064
            v_bfe_u32 v22, v{vL}, 4, 1
            v_mul_u32_u24 v20, 768, v22
            v_add_u32 v20, v20, v{vP}
            v_add_u32 v{vH}, s{sS0}, v20
            s_sub_u32 s{sS0}, 88064, s{sS0}
            v_add_u32 v{vH2}, s{sS0}, v20
            v_add_u32 v{vDump}, s{sRing}, v{vP}
            v_lshrrev_b32 v20, 5, v{vL}
            v_bfe_u32 v21, v{vL}, 2, 2
            v_lshl_add_u32 v20, v20, 2, v21
            v_and_b32 v21, 1, v{vL}
            v_lshlrev_b32 v21, 2, v21
            v_lshl_add_u32 v21, v22, 1, v21
            v_bfe_u32 v23, v{vL}, 1, 1
            v_add_u32 v21, v21, v23
            v_lshlrev_b32 v21, 3, v21
            v_lshl_add_u32 v21, v20, 7, v21
            v_bfe_u32 v23, v{vL}, 3, 1
            v_lshl_add_u32 v21, v23, 6, v21
            s_lshr_b32 s{sS0}, s{sT}, 1
            s_lshl_b32 s{sS0}, s{sS0}, 6
            v_xor_b32 v{vT0}, s{sS0}, v21
            v_and_b32 v20, 0x3d0, v{vT0}
            v_lshl_add_u32 v20, v22, 11, v20
            v_and_b32 v21, 1, v{vL}
            v_lshl_add_u32 v20, v21, 3, v20
            v_and_b32 v21, 2, v{vL}
            v_lshl_add_u32 v20, v21, 4, v20
            v_xor_b32 v21, 64, v20
            v_add_u32 v{vA0}, s{sRing}, v20
            v_add_u32 v{vA1}, s{sRing}, v21
            v_add_u32 v{self.vB0}, s{self.sRB2}, v20
            v_add_u32 v{self.vB1}, s{self.sRB2}, v21
            s_lshl_b32 s{sS0}, s{sT}, 2
            v_add_u32 v{vRel}, s{sS0}, v{self.vCnt}
            v_and_b32 v{vZ}, 31, v{vL}
            v_lshlrev_b32 v30, 10, v{vZ}
            v_lshlrev_b32 v{vZ}, 2, v{vZ}
            v_lshrrev_b32 v20, 5, v{vL}
            v_lshl_add_u32 v30, v20, 5, v30
            v_add_u32 v31, s{self.sRB2}, v{vP}
            s_xor_b32 s{sS0}, s{sT}, 2
            s_mul_i32 s{sS0}, s{sS0}, 6144
            s_add_u32 s{sS0}, s{sS0}, {SEGB}
            v_add_u32 v20, s{sS0}, v{vP}""")
        for reg, d in ((21, 2), (22, 1), (23, 3)):
            a(f"s_xor_b32 s{sS0}, s{sT}, {d}\ns_mul_i32 s{sS0}, s{sS0}, {SEGA}\nv_add_u32 v{reg}, s{sS0}, v{vP}")

    def ffn2(self):
        a = self.a
        ACC = 32
        vH, vDump, vZ, vH2 = self.vH, self.vDump, self.vZ, self.vH2
        sRing, sS0, sS1, sKw, sW0, sKh, sH0 = range(sT0, sT0 + 7)
        sFl, sNeed = sT0 + 10, sT0 + 11
        NS, PD = 22, self.cfg["pd"]
        issue_w, reads, wreg = self.issue_w, self.w_reads, self.wreg
        hreg = lambda s: 176 + 8 * (s % 10)
        a(f"s_setprio {self.cfg['prio_m']}")
        a.lg.reset()
        a.vm.reset()
        a.vm.issue("pre")

        def arrived(need):
            ready = self.lab("hready")
            a.lg.drain()
            a(f"s_cmp_ge_u32 s{sPV}, {need}\ns_cbranch_scc1 {ready}")
            self.spoll(sFl, need)
            a.label(ready)

        def issue_h(s):
            if s == 16:
                arrived(f"s{sNeed}")
                self.stamp("Hbpoll", "M")
                a(f"""s_lshl_b32 s{sFl}, s{sRB}, 1
                    s_and_b32 s{sS0}, s{sT}, 1
                    s_add_u32 s{sFl}, s{sFl}, s{sS0}
                    s_lshl_b32 s{sFl}, s{sFl}, 7
                    s_add_u32 s{sFl}, s{sFl}, {WS_G}
                    buffer_load_dword v{vZ}, v{vZ}, {sr(sWS, 4)}, s{sFl} offen sc1""")
                a.vm.issue("z")
            self.next_step(s, sKh)
            a(f"s_lshl_b32 s{sS0}, s{sKh}, 10\ns_add_u32 s{sS0}, s{sS0}, s{sH0}")
            if s & 1:
                a(f"s_sub_u32 s{sS0}, s{sS0}, 768")
            if s >= 20:
                a(f"s_cmp_eq_u32 s{sT}, 3\ns_cselect_b32 s{sS0}, {OOB}, s{sS0}")
            for tt in range(2):
                a(f"buffer_load_dwordx4 {vr(hreg(s) + 4 * tt, 4)}, v{(vH, vH2)[tt]}, {sr(sWS, 4)}, s{sS0} offen sc1")
                a.vm.issue(("h", s))

        arrived(8)
        self.stamp("Hpoll", "M")
        for s in range(PD):
            issue_h(s)
        a.vm.wait("pre")
        reads(0)
        reads(1)
        skip = self.lab("nosig")
        a(f"s_cmp_ge_u32 s{sTK}, 11\ns_cbranch_scc1 {skip}")
        self.h_signal(CHB, f"s_mul_i32 s{{d}}, s{sTK}, 11\ns_lshr_b32 s{{d}}, s{{d}}, 5")
        a.label(skip)
        nh = PD
        hb = self.cfg["hb"]

        def mm(s, ct, tt, mid=None):
            a.vm.wait(("h", s))
            for c in range(2):
                if c and mid:
                    mid()
                w = (s & ~1) + c
                a.lg.wait((w, ct))
                d = vr(ACC + 32 * tt + 16 * ct + 8 * c + 4 * (s & 1), 4)
                a(f"v_mfma_f32_16x16x32_bf16 {d}, {vr(wreg(w) + 4 * ct, 4)}, {vr(hreg(s) + 4 * tt, 4)}, {d if s > 1 else 0}")

        def hold(s):
            if s == self.cfg["hold"]:
                self.lds_probe(self.vRel, self.vTmp, 32)
                self.lds_check(self.vRel, self.vTmp, 32, 1, nap=2)
                self.o_look()

        for s in range(16):
            self.stamp(f"s{s}", "M")
            hold(s)
            if s == hb - 2:
                a(f"""s_add_u32 s{sFl}, s{sFl}, {CHB - CH}
                    s_cmp_eq_u32 s{sT}, 3
                    s_cselect_b32 s{sNeed}, 6, 8
                    s_mov_b32 s{sPV}, 0
                    s_atomic_add s{sPV}, {sr(sWS, 2)}, s{sFl} glc""")
            if s == hb + 1:
                self.final_setup()
            for k in range(4):
                mm(s, *divmod(k, 2))
                if (k == 0 or (k == 2 and s >= 14)) and nh < NS and (nh < 16 or s >= hb):
                    issue_h(nh)
                    nh += 1
                if k == 1:
                    reads(s + 2)
                if k == 2 and s < 14:
                    issue_w(s + 8)
                if k == 3 and s >= 14:
                    reads(s + 4)
        while nh < NS:
            issue_h(nh)
            nh += 1
        reads(20)
        reads(21)
        hold(16)
        self.stamp("s16", "M")
        for n, (ct, tt) in enumerate(((0, 1), (1, 0), (1, 1), (0, 0))):
            for s in range(16, NS):
                def dump():
                    k = (8, 4, 12)[n - 1] + s - 18
                    if s == 18 and n > 1:
                        a("s_nop 2")
                    a(f"ds_write_b128 v{vDump}, {vr(ACC + 4 * k, 4)} offset:{1024 * (k - 4)}")

                mm(s, ct, tt, dump if n and s >= 18 else None)
                if n and 6 * (n - 1) + s - 16 < 9:
                    self.early_o(6 * (n - 1) + s - 16)
                if 6 * n + s - 16 == self.cfg["look2"]:
                    self.o_look()
        self.lds_signal(self.vCnt, self.v1_, 4)
        self.stamp("s22", "M")

    def final_setup(self):
        a = self.a
        sFl, sOut, sO, sA, sTT, sKh, sF2, sG, sE, sX = self.FS
        a(f"""s_and_b32 s{sTT}, s{sT}, 1
            s_lshr_b32 s{sKh}, s{sT}, 1
            s_lshl_b32 s{sFl}, s{sRB}, 1
            {f"s_add_u32 s{sFl}, s{sFl}, s{sTT}" if self.cfg['ott'] else ""}
            {f"s_lshl_b32 s{sFl}, s{sFl}, 1" if self.cfg['ott'] else ""}
            s_add_u32 s{sFl}, s{sFl}, s{sKh}
            s_lshl_b32 s{sFl}, s{sFl}, 8
            s_add_u32 s{sFl}, s{sFl}, {CO}
            s_add_u32 s{sF2}, s{sFl}, 128
            s_mov_b32 s{sPV}, 0
            s_mov_b32 s{sA}, 0
            s_atomic_add s{sPV}, {sr(sWS, 2)}, s{sFl} glc
            s_atomic_add s{sA}, {sr(sWS, 2)}, s{sF2} glc
            s_lshl_b32 s{sOut}, s{sRB}, 1
            s_add_u32 s{sOut}, s{sOut}, s{sTT}
            s_lshl_b32 s{sO}, s{sOut}, 5
            s_lshl_b32 s{sG}, s{sKh}, 4
            s_add_u32 s{sO}, s{sO}, s{sG}
            s_lshl_b32 s{sO}, s{sO}, 10
            s_add_u32 s{sO}, s{sO}, {WS_O}
            s_lshl_b32 s{sOut}, s{sOut}, 15
            s_lshl_b32 s{sG}, s{sCB}, 7
            s_add_u32 s{sOut}, s{sOut}, s{sG}
            s_lshl_b32 s{sG}, s{sKh}, 6
            s_add_u32 s{sOut}, s{sOut}, s{sG}""")

    @staticmethod
    def of(s):
        return 96 + 4 * s if s < 14 else 200 + 4 * (s - 14)

    def oloads(self, h, sO):
        a = self.a
        for s in range(8 * h, 8 * h + 8):
            if s % 8 == 4:
                a(f"s_add_u32 s{sO}, s{sO}, 4096")
            a(f"buffer_load_dwordx4 {vr(self.of(s), 4)}, v{self.vP}, {sr(sWS, 4)}, s{sO} offen offset:{1024 * (s % 4)} sc1")
            a.vm.issue(s)

    def o_look(self):
        sFl, sOut, sO, sA, sTT, sKh, sF2, sG, sE, sX = self.FS
        self.a(f"""s_mov_b32 s{sPV}, 0
            s_mov_b32 s{sA}, 0
            s_atomic_add s{sPV}, {sr(sWS, 2)}, s{sFl} glc
            s_atomic_add s{sA}, {sr(sWS, 2)}, s{sF2} glc""")

    def o_pick(self):
        sFl, sOut, sO, sA, sTT, sKh, sF2, sG, sE, sX = self.FS
        self.a(f"""s_cmp_lt_u32 s{sPV}, 8
            s_cselect_b32 s{sG}, 1, 0
            s_lshl_b32 s{sX}, s{sG}, 13
            s_add_u32 s{sT0 + 1}, s{sO}, s{sX}
            s_add_u32 s{sX}, s{sT0 + 1}, 4096""")

    def oload(self, s, lo, hi):
        self.a(f"buffer_load_dwordx4 {vr(self.of(s), 4)}, v{self.vP}, {sr(sWS, 4)}, s{lo if s % 8 < 4 else hi} offen offset:{1024 * (s % 4)} sc1")

    def early_o(self, n):
        a = self.a
        sFl, sOut, sO, sA, sTT, sKh, sF2, sG, sE, sX = self.FS
        if n == 0:
            a.vm.drain()
            a.lg.drain()
            self.o_pick()
            a(f"s_max_u32 s{sE}, s{sPV}, s{sA}\ns_lshr_b32 s{sE}, s{sE}, 3")
            return
        skip = self.lab("noearly")
        a(f"s_cbranch_scc0 {skip}")
        self.oload(n - 1, sT0 + 1, sX)
        a.label(skip)

    def final(self):
        a = self.a
        B, PT, OWN, OTH = 32, 48, 152, 168
        WO = lambda s: (184, 192, 208, 216, 224, 232, 240, 248)[s % 8]
        vL, vH, vX, vZ, vA0, vA1 = self.vL, self.vP, self.vDump, self.vZ, self.vA0, self.vA1
        vOut, vG, vP1, vP2, vP3, vB0, vB1, vXp, vX = 30, 2, 21, 22, 23, self.vB0, self.vB1, 20, 31
        sFl, sOut, sO, sA, sTT, sKh, sF2, sG, sE, sX = self.FS
        top, got, loaded, join = self.lab("opoll"), self.lab("ogot"), self.lab("oloaded"), self.lab("ojoin")
        a.lg.reset()
        a(f"""s_cmp_lg_u32 s{sE}, 0
            s_cbranch_scc1 {loaded}
            s_mov_b32 s{sSPIN}, 200000""")
        a.label(top)
        a(f"""s_waitcnt lgkmcnt(0)
            s_max_u32 s{sE}, s{sPV}, s{sA}
            s_cmp_ge_u32 s{sE}, 8
            s_cbranch_scc1 {got}""")
        self.o_look()
        a(f"""s_sub_u32 s{sSPIN}, s{sSPIN}, 1
            s_cbranch_scc0 {top}
            s_waitcnt lgkmcnt(0)""")
        a.label(got)
        self.o_pick()
        self.stamp("Opoll", "M")
        a.vm.reset()
        for s in range(8):
            self.oload(s, sT0 + 1, sX)
            a.vm.issue(s)
        self.o_look()
        a.label(loaded)
        a(f"s_xor_b32 s{sO}, s{sT0 + 1}, 0x2000")
        a(f"""s_xor_b32 s{sF2}, s{sG}, 1
            s_lshl_b32 s{sF2}, s{sF2}, 7
            s_add_u32 s{sF2}, s{sF2}, s{sFl}
            s_lshl_b32 s{sX}, s{sKh}, 1
            s_add_u32 s{sG}, s{sG}, s{sX}
            s_lshl_b32 s{sX}, s{sG}, 14
            s_add_u32 s{sX}, s{sX}, {WOL}
            v_add_u32 v{vA0}, s{sX}, v{self.vT0}
            s_xor_b32 s{sG}, s{sG}, 1
            s_lshl_b32 s{sX}, s{sG}, 14
            s_add_u32 s{sX}, s{sX}, {WOL}
            v_add_u32 v{vB0}, s{sX}, v{self.vT0}
            v_xor_b32 v{vA1}, 64, v{vA0}
            v_xor_b32 v{vB1}, 64, v{vB0}""")
        a.lg.reset()

        def wreads(s):
            if s >= 16:
                return
            for ct in range(2):
                for u in range(2):
                    self.dsr("ds_read_b64_tr_b16", WO(s) + 4 * ct + 2 * u, 2, ((vA0, vA1), (vB0, vB1))[s >> 3][ct], None,
                             (s & 7) * 2048 + 1024 * u, ("wo", s))

        def step(s):
            a.vm.wait(s)
            a.lg.wait(("wo", s))
            w = WO(s)
            ot, ow = (vr(OTH, 16), vr(OWN, 16)) if s < 8 else (vr(PT + 32, 16), vr(PT + 16, 16))
            a(f"v_mfma_f32_32x32x16_bf16 {ot}, {vr(w + 4, 4)}, {vr(self.of(s), 4)}, {ot if s % 8 else 0}")
            wreads(s + 2)
            if s < 4:
                self.oload(8 + 2 * s, sT0 + 1, sX)
                a.vm.issue(8 + 2 * s)
            if 2 <= s < 8:
                i, h = divmod(s - 2, 2)
                for k in range(8 * h, 8 * h + 4):
                    a(f"v_add_f32 v{B + k}, v{B + k}, v{PT + 16 * i + k}")
            a(f"v_mfma_f32_32x32x16_bf16 {ow}, {vr(w, 4)}, {vr(self.of(s), 4)}, {ow if s % 8 else 0}")
            if s < 4:
                self.oload(9 + 2 * s, sT0 + 1, sX)
                a.vm.issue(9 + 2 * s)
            if s < 6:
                i, h = divmod(s, 2)
                for q in range(2 * h, 2 * h + 2):
                    self.dsr("ds_read_b128", PT + 16 * i + 4 * q, 4, (vP1, vP2, vP3)[i], None, 4096 * i + 1024 * q, ("wo", s + 2))
            if 2 <= s < 8:
                i, h = divmod(s - 2, 2)
                for k in range(8 * h + 4, 8 * h + 8):
                    a(f"v_add_f32 v{B + k}, v{B + k}, v{PT + 16 * i + k}")
            if 8 <= s < 12:
                for k in range(4 * (s - 8), 4 * (s - 8) + 4):
                    a(f"v_mul_f32 v{B + k}, v{B + k}, v{vG + 2}")

        self.lds_probe(self.vCnt, self.vTmp, 4)
        for s in range(2):
            wreads(s)
        a(f"""v_mul_f32 v{vG}, {f32(LOG2E)}, v{vZ}
            v_exp_f32 v{vG + 2}, v{vG}
            v_exp_f32 v{vG}, -v{vG}
            s_nop 0
            v_add_f32 v{vG + 2}, 1.0, v{vG + 2}
            v_add_f32 v{vG}, 1.0, v{vG}
            v_rcp_f32 v{vG + 2}, v{vG + 2}
            v_rcp_f32 v{vG}, v{vG}""")
        self.lds_check(self.vCnt, self.vTmp, 4, 16)
        self.stamp("msync", "M")
        a.lg.drain()
        a(f"""s_min_u32 s{sE}, s{sPV}, s{sA}
            s_lshr_b32 s{sE}, s{sE}, 3
            s_cselect_b32 s{sT0 + 1}, s{sO}, {OOB}
            s_add_u32 s{sX}, s{sT0 + 1}, 4096""")
        for s in range(8):
            step(s)
            if s == self.cfg["look3"]:
                a(f"s_mov_b32 s{sPV}, 0\ns_atomic_add s{sPV}, {sr(sWS, 2)}, s{sF2} glc")
        q, le = list(a.vm.q), list(a.lg.q)
        if self.cfg["otm"]:
            for s in range(10, 16):
                wreads(s)
                a.lg.wait(("wo", s - 2))
            le = list(a.lg.q)
        a(f"s_cmp_lg_u32 s{sE}, 0\ns_cbranch_scc1 {join}")
        self.stamp("g1done", "M")
        seen = self.lab("oseen")
        if self.cfg["look3"] < 8:
            a(f"s_waitcnt lgkmcnt(0)\ns_cmp_ge_u32 s{sPV}, 8\ns_cbranch_scc1 {seen}")
        self.spoll(sF2, 8)
        a.label(seen)
        self.stamp("late", "M")
        a.vm.drain()
        self.oloads(1, sO)
        assert a.vm.q == q
        a.lg.q = le
        a.label(join)
        if not self.cfg["otm"]:
            for s in range(8, 16):
                step(s)
            self.stamp("Omfma", "M")
            a("s_nop 10")
            for q in range(4):
                for k in range(4 * q, 4 * q + 4):
                    a(f"v_add_f32 v{OTH + k}, v{OTH + k}, v{PT + 32 + k}")
                a(f"ds_write_b128 v{vX}, {vr(OTH + 4 * q, 4)} offset:{1024 * q}")
            for k in range(8):
                a(f"v_pk_add_f32 {vr(OWN + 2 * k, 2)}, {vr(OWN + 2 * k, 2)}, {vr(PT + 16 + 2 * k, 2)}")
            for k in range(8):
                a(f"v_pk_fma_f32 {vr(B + 2 * k, 2)}, {vr(OWN + 2 * k, 2)}, {vr(vG, 2)}, {vr(B + 2 * k, 2)} op_sel_hi:[1,0,1]")
        else:
            for s in range(8, 16):
                a.vm.wait(s)
                a.lg.wait(("wo", s))
                ot = vr(PT + 32, 16)
                a(f"v_mfma_f32_32x32x16_bf16 {ot}, {vr(WO(s) + 4, 4)}, {vr(self.of(s), 4)}, {ot if s % 8 else 0}")
                r = B + 8 * ((s - 8) >> 2) + (s & 3)
                a(f"v_permlane16_swap_b32 v{r}, v{r + 4}\nv_mul_f32 v{r}, v{r}, v{vG + 2}\nv_mul_f32 v{r + 4}, v{r + 4}, v{vG + 2}")
            for s in range(8, 16):
                ow = vr(PT + 16, 16)
                a(f"v_mfma_f32_32x32x16_bf16 {ow}, {vr(WO(s), 4)}, {vr(self.of(s), 4)}, {ow if s % 8 else 0}")
                if s == 8:
                    a("s_nop 5")
                if s == 9:
                    a("s_nop 3")
                if 9 <= s < 13:
                    q = s - 9
                    for k in range(4 * q, 4 * q + 4):
                        a(f"v_add_f32 v{OTH + k}, v{OTH + k}, v{PT + 32 + k}")
                    a(f"ds_write_b128 v{vX}, {vr(OTH + 4 * q, 4)} offset:{1024 * q}")
                if s == 13 and self.cfg["ebar"]:
                    a("s_waitcnt lgkmcnt(0)\ns_barrier")
                    for q in range(4):
                        a(f"ds_read_b128 {vr(PT + 4 * q, 4)}, v{vXp} offset:{1024 * q}")
            self.stamp("Omfma", "M")
            if self.cfg["ebar"]:
                for q in range(4):
                    a(f"s_waitcnt lgkmcnt({3 - q})")
                    for k in range(4 * q, 4 * q + 4):
                        a(f"v_fmac_f32 v{B + k}, v{PT + k}, v{vG}")
                for h in range(2):
                    ks = range(4 * h, 4 * h + 4)
                    for k in ks:
                        a(f"v_pk_add_f32 {vr(OWN + 2 * k, 2)}, {vr(OWN + 2 * k, 2)}, {vr(PT + 16 + 2 * k, 2)}")
                    for k in ks:
                        a(f"v_pk_fma_f32 {vr(B + 2 * k, 2)}, {vr(OWN + 2 * k, 2)}, {vr(vG, 2)}, {vr(B + 2 * k, 2)} op_sel_hi:[1,0,1]")
                    for k in ks:
                        a(f"v_cvt_pk_bf16_f32 v{PT + k}, v{B + 2 * k}, v{B + 2 * k + 1}")
                    a(f"buffer_store_dwordx4 {vr(PT + 4 * h, 4)}, v{vOut}, {sr(sOUT, 4)}, s{sOut} offen offset:{16 * h}")
                return
        a("s_waitcnt lgkmcnt(0)\ns_barrier")
        self.stamp("bar", "M")
        for q in range(4):
            a(f"ds_read_b128 {vr(PT + 4 * q, 4)}, v{vXp} offset:{1024 * q}")
        if self.cfg["otm"]:
            a("s_nop 5")
            for k in range(8):
                a(f"v_pk_add_f32 {vr(OWN + 2 * k, 2)}, {vr(OWN + 2 * k, 2)}, {vr(PT + 16 + 2 * k, 2)}")
            for k in range(8):
                a(f"v_pk_fma_f32 {vr(B + 2 * k, 2)}, {vr(OWN + 2 * k, 2)}, {vr(vG, 2)}, {vr(B + 2 * k, 2)} op_sel_hi:[1,0,1]")
        for q in range(4):
            a(f"s_waitcnt lgkmcnt({3 - q})")
            for k in range(2):
                r = 4 * q + 2 * k
                a(f"v_pk_fma_f32 {vr(B + r, 2)}, {vr(PT + r, 2)}, {vr(vG, 2)}, {vr(B + r, 2)} op_sel_hi:[1,0,1]")
            for k in range(2):
                r = 4 * q + 2 * k
                a(f"v_cvt_pk_bf16_f32 v{64 + 2 * q + k}, v{B + r}, v{B + r + 1}")
            if q % 2 == 1:
                a(f"buffer_store_dwordx4 {vr(64 + 4 * (q // 2), 4)}, v{vOut}, {sr(sOUT, 4)}, s{sOut} offen offset:{16 * (q // 2)}")

    def build(self):
        a = self.a
        cfg = self.cfg
        self.prologue()
        a(f"s_setprio {cfg['prio_l']}")
        self.loader()
        self.attn_start()
        self.stamp("attn0", "L")
        self.attn_loop()
        self.attn_finish()
        self.stamp("Oflag", "L")
        self.dump_stamps(True)
        a("s_endpgm")

        a.label("L_mwave")
        if cfg["swap"]:
            a("s_setprio 1")
        self.m_setup()
        if cfg["swap"]:
            a(f"s_setprio {cfg['prio_m']}")
        a(f"s_bitcmp1_b32 s{sC}, 0\ns_cbranch_scc1 L_pass_v")
        self.pass_a(False)
        a("s_branch L_pass_q")
        a.label("L_pass_v")
        self.pass_a(True)
        a.label("L_pass_q")
        self.pass_q()
        self.pass_fa()
        self.gelu_a()
        a(f"s_cmp_ge_u32 s{sTK}, 11\ns_cbranch_scc1 L_skipper")
        self.pass_fb()
        a.label("L_ffn2")
        self.stamp("gelu", "M")
        self.ffn2()
        self.final()
        if cfg.get("stamps"):
            a("s_waitcnt vmcnt(0)")
            self.stamp("end", "M")
            self.dump_stamps(False)
        a.label("L_end")
        a("s_endpgm")
        self.ticket()
        a.label("L_skipper")
        self.skipper()
        a("s_branch L_ffn2")
        self.fallback()
        return a.text()


HEADER = """; Fused kernel: out = g * MHA(x) + (1 - g) * GEGLU(x),  g = sigmoid(x . gate_w)
; Kernarg (88 bytes, pointers): 0 A_x, 8 A_wqkv, 16 A_wo, 24 B_x (unused by the reference), 32 B_w_gate, 40 B_w_up,
;   48 B_w_down, 56 gate_w, 64 d_out, 72 d_debug, 80 d_ws
;
; 256 workgroups of 8 waves, one per CU. Workgroup (c, r) owns 128 tokens (row block r) and column group c:
;   waves 0-3  K (c even) or V (c odd) for heads 4*(c>>1)..+3, Q for heads 2c, 2c+1, gate/up columns 64c..64c+63 with
;              GELU; the other 352 columns and the mixing logit go by ticket to the first 12 groups of a row block; then one 64x64 tile of h @ w_down and o @ wo and the mix.
;   waves 4-7  stage x / w_qkv into LDS, then attention: one head, four query tiles, half of the keys per wave.
; Hand-offs between workgroups (K/V, h, logit, o) go through d_ws: write-through (sc1) stores, vmcnt wait, then an atomic
;   add on a counter; the reader polls the counter with atomics and loads with sc1. The counters are cleared at the start
;   of every launch by workgroups 0-31, which report that in d_debug; nobody touches a counter before seeing the report.
;   All waits are bounded. No hand-off depends on where a workgroup runs.
; Softmax: scores are exponentiated with a constant shift while that is exact, and the row sum is checked afterwards. A wave whose
;   row sum left [2^-24, 2^64], or whose result is not finite, recomputes its tiles with the true row maximum subtracted
;   (L_fallback) before it publishes them.
; P @ V uses the 2:4 sparse MFMA with an index that selects the upper halves of the f32 exponentials (bf16 by truncation);
;   a row of ones in the V operand yields the row sum from the same values.
; @launch grid=(256,1,1) block=(512,1,1) lds=%d
.amdgcn_target "amdgcn-amd-amdhsa--gfx950"
.text
.globl %s_kernel
.p2align 8
.type %s_kernel,@function
%s_kernel:
""" % (LDS_BYTES, NAME, NAME, NAME)

FOOTER = """.section .rodata,"a"
.p2align 6
.amdhsa_kernel %s_kernel
  .amdhsa_next_free_vgpr 256
  .amdhsa_next_free_sgpr 102
  .amdhsa_accum_offset 256
  .amdhsa_group_segment_fixed_size 0
  .amdhsa_kernarg_size 88
  .amdhsa_user_sgpr_count 2
  .amdhsa_user_sgpr_kernarg_segment_ptr 1
  .amdhsa_system_sgpr_workgroup_id_x 1
  .amdhsa_float_denorm_mode_32 3
.end_amdhsa_kernel
""" % NAME

DEFAULT = dict(stM='start,BA0,KVst,KVflag,Qdone,F0,Fdone,gelu,Hflag,Hpoll,ffn2,Opoll,Omfma,end',
               stL='start,karg,A0,A2,A7,KVpoll,Qrdy,attn0,attn1,Ost,Oflag',
               outpol='', rowmask=14, qs=14400, tf=0, gate_f=1, gate_at=-1, look=13, lfast=1, shift=4.0, oop=0, wfirst=0, ebar=1, su=2, go_at=6, z14=1, f16=1, denorm=3, pwait=4, p1=10, jit=100000000, chk=0, chk_need=176, rdv=52, rdv_need=128, tk0=107, tkd=6, tk2=118, fixtk=0, xmap=1, tb=0, tlate=0, ntmask=241, u9=0, prio_cv=3, hold=16, bpol='', hb=13, look2=16, look3=1, gaps=1131110, plain=8, galign=1, k1=0, sig0=7, f1_at=99, swap=0, rel=1, touch=1, tq=1, f1_early=0, rbits=3, rot=4, rot2=1, la=2, nst=4, defer=0, tpol='', qpol='', xn=8, wn=8, fn=8, xpol='', wpol='', fpol='nt', hasync=1, otm=1, atm=1, kvflag_at=12, ott=1, f0_at=0, sig_at=4, rchk=4, wo_at=12, boost=0, pulse=0, pulse2=0, pd=3, cap=6, prio_l=2, prio_m=0, prio_gelu=3)


def generate(**kw):
    cfg = dict(DEFAULT)
    cfg.update(kw)
    body = Gen(cfg).build()
    msgs = lint(body)
    if cfg.get("stamps"):
        body += f"; STAMPS M {cfg['stM']}\n"
    return HEADER + body + FOOTER.replace("denorm_mode_32 3", f"denorm_mode_32 {cfg['denorm']}"), msgs


if __name__ == "__main__":
    out = sys.argv[1]
    kw = {}
    for arg in sys.argv[2:]:
        k, v = arg.split("=")
        try:
            kw[k] = int(v)
        except ValueError:
            try:
                kw[k] = float(v)
            except ValueError:
                kw[k] = v
    text, msgs = generate(**kw)
    for m in msgs:
        print("LINT:", m)
    open(out, "w").write(text)
    print("wrote", out, len(text), "bytes,", text.count("\n"), "lines")
```
